```python
import torch

def _softmax(x, axis=-1):
    return torch.softmax(x, dim=axis)
def _gelu(x):
    return torch.nn.functional.gelu(x, approximate="tanh")
def _silu(x):
    return torch.nn.functional.silu(x)
def _sigmoid(x):
    return torch.sigmoid(x)
def _layernorm(x, axis=-1, eps=1e-5):
    m = x.mean(dim=axis, keepdim=True)
    v = x.var(dim=axis, keepdim=True, unbiased=False)
    return (x - m) / torch.sqrt(v + eps)
def _scatter_add(tgt, idx, src, axis=0):
    return tgt.clone().index_add_(axis, idx, src)
def _segment_sum(src, seg, n):
    out = torch.zeros((n,) + src.shape[1:], dtype=src.dtype)
    return out.index_add_(0, seg, src)
def _pad(x, pw):
    flat = tuple(v for pair in reversed(pw) for v in pair)
    return torch.nn.functional.pad(x, flat)

kernel_name = 'concat_heads__linear_kernel_hedgehog__ssm_conv_s4d__prompt'

def setup_inputs():

    _w = (lambda a: (lambda t: t.to(torch.bfloat16) if t.is_floating_point() else t)(torch.as_tensor(a)))
    def _A_setup():
        B, S, D, H = 1, 2048, 640, 32
        Dh = D // H
        return {
            "x": _w((lambda *s: torch.randn(*s, dtype=torch.bfloat16) * 0.4)(B, S, D)),
            "wqkv": _w((lambda *s: torch.randn(*s, dtype=torch.bfloat16) * 0.4)(D, 3 * D)),
            "w_phi": _w((lambda *s: torch.randn(*s, dtype=torch.bfloat16) * 0.4)(H, Dh, Dh) * (Dh ** -0.5)),
            "wo": _w((lambda *s: torch.randn(*s, dtype=torch.bfloat16) * 0.05)(D, D)),
        }
    _A_in = _A_setup()

    def _B_setup():
        Bsz, L, D, N = 1, 2048, 640, 128
        return {
            "u": _w((lambda *s: torch.randn(*s, dtype=torch.bfloat16) * 0.05)(Bsz, L, D)),
            "log_A_real": _w((lambda *s: torch.randn(*s, dtype=torch.bfloat16) * 3.2)(D, N) * 0.5),
            "A_imag": _w((lambda *s: torch.randn(*s, dtype=torch.bfloat16) * 0.2)(D, N) * 3.14),
            "C_real": _w((lambda *s: torch.randn(*s, dtype=torch.bfloat16) * 3.2)(D, N) / N ** 0.5),
            "C_imag": _w((lambda *s: torch.randn(*s, dtype=torch.bfloat16) * 3.2)(D, N) / N ** 0.5),
            "log_dt": _w((lambda *s: torch.randn(*s, dtype=torch.bfloat16) * 0.2)(D) * 0.5 - 4.0),
            "D_skip": _w((lambda *s: torch.randn(*s, dtype=torch.bfloat16) * 0.4)(D)),
        }
    _B_in = _B_setup()

    return {
        "A_x": _A_in["x"],
        "A_wqkv": _A_in["wqkv"],
        "A_w_phi": _A_in["w_phi"],
        "A_wo": _A_in["wo"],
        "B_u": _B_in["u"],
        "B_log_A_real": _B_in["log_A_real"],
        "B_A_imag": _B_in["A_imag"],
        "B_C_real": _B_in["C_real"],
        "B_C_imag": _B_in["C_imag"],
        "B_log_dt": _B_in["log_dt"],
        "B_D_skip": _B_in["D_skip"],
    }

def reference(A_x, A_wqkv, A_w_phi, A_wo, B_u, B_log_A_real, B_A_imag, B_C_real, B_C_imag, B_log_dt, B_D_skip):
    def _A_ref(x, wqkv, w_phi, wo):
        B, S, D = x.shape
        H = 32; Dh = D // H
        qkv = (lambda x, *d: x.permute(*d))((x @ wqkv).reshape(B, S, 3, H, Dh), 2, 0, 3, 1, 4)
        q, k, v = qkv[0], qkv[1], qkv[2]
        pq = torch.einsum("bhsd,hdf->bhsf", q, w_phi)
        pk = torch.einsum("bhsd,hdf->bhsf", k, w_phi)
        phi_q = torch.concatenate([_softmax(pq, axis=-1), _softmax(-pq, axis=-1)], axis=-1)
        phi_k = torch.concatenate([_softmax(pk, axis=-1), _softmax(-pk, axis=-1)], axis=-1)
        kv = torch.einsum("bhsf,bhsd->bhfd", phi_k, v)
        z  = torch.einsum("bhsf->bhf", phi_k)
        num = torch.einsum("bhqf,bhfd->bhqd", phi_q, kv)
        den = torch.einsum("bhqf,bhf->bhq", phi_q, z)[..., None] + 1e-6
        o = num / den
        return (lambda x, *d: x.permute(*d))(o, 0, 2, 1, 3).reshape(B, S, D) @ wo

    def _B_ref(u, log_A_real, A_imag, C_real, C_imag, log_dt, D_skip):
        L = u.shape[1]
        dt = torch.exp(log_dt)
        A = -torch.exp(log_A_real) + 1j * A_imag
        C = (C_real + 1j * C_imag) * dt[:, None]
        pos = (lambda x, dt: x.to(dt))(torch.arange(L), log_dt.dtype)
        P = torch.exp((A * dt[:, None])[:, :, None] * pos[None, None, :])
        K = 2.0 * torch.einsum("dn,dnl->dl", C, P).real
        L2 = 2 * L
        u_t = (lambda x, *d: x.permute(*d))(u, 0, 2, 1)
        Kf = (lambda x, *a, **k: torch.fft.rfft(x.float(), *a, **k))(K, L2)
        Uf = (lambda x, *a, **k: torch.fft.rfft(x.float(), *a, **k))(u_t, L2)
        y = (lambda x, *a, **k: torch.fft.irfft(x, *a, **k).to(torch.bfloat16))(Uf * Kf[None, :, :], L2)[:, :, :L]
        y = (lambda x, *d: x.permute(*d))(y, 0, 2, 1)
        return y + u * D_skip[None, None, :]

    a = _A_ref(A_x, A_wqkv, A_w_phi, A_wo)
    b = _B_ref(B_u, B_log_A_real, B_A_imag, B_C_real, B_C_imag, B_log_dt, B_D_skip)
    return torch.concatenate([a, b], axis=-1)
```

```python
import re

REG_RE = re.compile(r'(?<![\w.])([vas])(\d+)(?![\w\[])|(?<![\w.])([vas])\[(\d+):(\d+)\]')
TRANS = ('v_exp_f32', 'v_log_f32', 'v_rcp_f32', 'v_rsq_f32', 'v_sqrt_f32', 'v_sin_f32', 'v_cos_f32')

def regs_of(tok):
    out = []
    for m in REG_RE.finditer(tok):
        if m.group(1): out.append((m.group(1), int(m.group(2))))
        else: out += [(m.group(3), i) for i in range(int(m.group(4)), int(m.group(5)) + 1)]
    t = tok.strip().lstrip('-').strip('|')
    if t == 'vcc': out += [('s', 'vcc_lo'), ('s', 'vcc_hi')]
    elif t in ('vcc_lo', 'vcc_hi'): out.append(('s', t))
    elif t == 'exec': out += [('s', 'exec')]
    elif t == 'm0': out.append(('s', 'm0'))
    return out

def split_ops(s):
    ops = []; depth = 0; cur = ''
    for ch in s:
        if ch in '[(': depth += 1
        if ch in '])': depth -= 1
        if ch == ',' and depth == 0: ops.append(cur.strip()); cur = ''
        else: cur += ch
    if cur.strip(): ops.append(cur.strip())
    return ops

class I:
    __slots__ = ('text', 'mn', 'defs', 'uses', 'kind', 'tag', 'srcc', 'passes', 'wide', 'note')
    def __init__(self, text, tag=None):
        self.text = text.strip(); self.tag = tag; self.note = None
        self.srcc = []; self.passes = 0; self.wide = False
        t = self.text
        if t.endswith(':') or t.startswith('.') or t.startswith(';'):
            self.mn = t; self.kind = 'label' if t.endswith(':') else 'dir'; self.defs = []; self.uses = []; return
        parts = t.split(None, 1)
        mn = parts[0]; self.mn = mn
        rest = parts[1] if len(parts) > 1 else ''
        base = re.sub(r'_e(32|64)$', '', mn)
        ops = split_ops(rest)
        if ops:
            last = ops[-1].split()
            mods = ' '.join(last[1:]) if len(last) > 1 else ''
            ops[-1] = last[0]
        else: mods = ''
        R = [regs_of(o) for o in ops]
        flat = lambda l: [x for y in l for x in y]
        defs = []; uses = []
        if base.startswith('v_mfma'):
            self.kind = 'mfma'; defs = R[0]; uses = flat(R[1:4]); self.srcc = R[3]
            self.passes = 8 if '32x32' in base else 4
        elif base.startswith('v_cmp'):
            self.kind = 'valu'; defs = R[0]; uses = flat(R[1:])
        elif base in ('v_readfirstlane_b32', 'v_readlane_b32'):
            self.kind = 'valu'; defs = R[0]; uses = flat(R[1:])
        elif base.startswith('v_permlane') and 'swap' in base:
            self.kind = 'valu'; defs = flat(R[:2]); uses = flat(R[:2])
        elif base.startswith('v_'):
            self.kind = 'valu'; defs = R[0]; uses = flat(R[1:])
            if base in ('v_fmac_f32', 'v_pk_fmac_f16', 'v_writelane_b32') or 'dpp' in mods or 'row_' in mods or 'quad_perm' in mods: uses = uses + R[0]
            if base in ('v_add_co_u32', 'v_sub_co_u32', 'v_addc_co_u32'): defs = flat(R[:2]); uses = flat(R[2:])
            if base == 'v_cndmask_b32' and len(ops) == 3: uses += regs_of('vcc')
        elif base.startswith('ds_read') or base.startswith('ds_bpermute') or base.startswith('ds_swizzle'):
            self.kind = 'ds'; defs = R[0]; uses = flat(R[1:])
        elif base.startswith('ds_'):
            self.kind = 'ds'; uses = flat(R)
        elif base.startswith('buffer_load') or base.startswith('global_load'):
            self.kind = 'vm'
            if re.search(r'\blds\b', mods): uses = flat(R) + [('s', 'm0')]; self.note = 'dma'
            else: defs = R[0]; uses = flat(R[1:])
        elif base.startswith('buffer_atomic') or base.startswith('global_atomic'):
            self.kind = 'vm'; uses = flat(R)
            if 'sc0' in mods: defs = R[0]
        elif base.startswith('buffer_store') or base.startswith('global_store'):
            self.kind = 'vm'; uses = flat(R)
            if 'x3' in base or 'x4' in base:
                self.wide = True
                self.srcc = R[0] if base.startswith('buffer') else R[1]
        elif base.startswith('s_load') or base in ('s_memtime', 's_memrealtime'):
            self.kind = 'smem'; defs = R[0]; uses = flat(R[1:])
        elif base == 's_waitcnt': self.kind = 'wait'
        elif base == 's_nop': self.kind = 'nop'
        elif base == 's_barrier': self.kind = 'barrier'
        elif base.startswith('s_cbranch') or base in ('s_branch', 's_setpc_b64', 's_swappc_b64', 's_endpgm', 's_call_b64'):
            self.kind = 'branch'; uses = flat(R)
        elif base.startswith('s_cmp') or base in ('s_sleep', 's_setprio', 's_bitcmp1_b32', 's_bitcmp0_b32'):
            self.kind = 'salu'; uses = flat(R)
        elif base.startswith('s_'):
            self.kind = 'salu'; defs = R[0]; uses = flat(R[1:])
            if 'saveexec' in base: defs = defs + [('s', 'exec')]
        else:
            raise ValueError('unknown instr ' + t)
        self.defs = defs; self.uses = uses
    def states(self):
        if self.kind == 'nop': return int(self.text.split()[1], 0) + 1
        if self.kind in ('label', 'dir'): return 0
        return 1

class Prog:
    def __init__(self):
        self.L = []
    def __call__(self, text, tag=None):
        for line in text.split('\n'):
            line = line.split(';;')[0].strip()
            if line: self.L.append(I(line, tag))
    def waitvm(self, tag):
        i = I('; waitvm ' + str(tag)); i.kind = 'waitvm'; i.tag = tag; self.L.append(i)
    def waitall(self, vm=True, lgkm=True):
        self(('s_waitcnt ' + ('vmcnt(0) ' if vm else '') + ('lgkmcnt(0)' if lgkm else '')).strip())
    def extend(self, other): self.L += other.L

def merge(main, side, ratio_fn=None, start=0, every=1, count=1):
    out = Prog(); si = 0; nm = 0
    S = side.L
    for ins in main.L:
        out.L.append(ins)
        if ins.kind == 'mfma':
            nm += 1
            if nm > start and (nm - start) % every == 0:
                c = 0
                while c < count and si < len(S):
                    out.L.append(S[si]);
                    if S[si].kind not in ('dir', 'waitvm'): c += 1
                    si += 1
    out.L += S[si:]
    return out

def insert_waits(L):
    out = []; vm = []; lg = []; smem = set()
    def need(q, regs, tagmatch=None):
        idx = -1
        for k, e in enumerate(q):
            if (regs and e[0] & regs) or (tagmatch is not None and e[1] == tagmatch): idx = k
        return idx
    for ins in L:
        if ins.kind == 'wait':
            m = re.search(r'vmcnt\((\d+)\)', ins.text)
            if m: n = int(m.group(1)); vm = vm[len(vm) - n:] if n < len(vm) and n > 0 else ([] if n == 0 else vm)
            m = re.search(r'lgkmcnt\((\d+)\)', ins.text)
            if m:
                n = int(m.group(1))
                if n == 0: lg = []; smem = set()
                elif not smem and n < len(lg): lg = lg[len(lg) - n:]
            out.append(ins); continue
        if ins.kind == 'label':
            out.append(ins); continue
        regs = set(ins.uses) | set(ins.defs)
        w = []
        if ins.kind == 'waitvm': k = need(vm, None, ins.tag)
        else: k = need(vm, regs)
        if k >= 0:
            n = len(vm) - 1 - k
            w.append('vmcnt(%d)' % min(n, 63)); vm = vm[k + 1:]
        if smem & regs or (smem and need(lg, regs) >= 0):
            w.append('lgkmcnt(0)'); lg = []; smem = set()
        else:
            k = need(lg, regs)
            if k >= 0:
                n = len(lg) - 1 - k
                w.append('lgkmcnt(%d)' % min(n, 15)); lg = lg[k + 1:]
        if w: out.append(I('s_waitcnt ' + ' '.join(w)))
        if ins.kind == 'waitvm': continue
        out.append(ins)
        if ins.kind == 'vm': vm.append((set(ins.defs), ins.tag))
        elif ins.kind == 'ds': lg.append((set(ins.defs), ins.tag))
        elif ins.kind == 'smem': smem |= set(ins.defs); smem.add(('x', 0))
        if ins.kind == 'branch' and ins.mn != 's_endpgm' and 'nocheck' not in (ins.tag or ''):
            pend = [e for e in vm + lg if e[0]]
            if pend and not (ins.tag and 'keep' in ins.tag):
                raise ValueError('pending loads across branch: ' + ins.text + ' ' + str(pend[:2]))
    return out

def isv(r): return r[0] in 'va'
def req_states(p, c):
    n = 0
    pd = set(p.defs); cu = set(c.uses); cd = set(c.defs)
    cb = re.sub(r'_e(32|64)$', '', c.mn); pb = re.sub(r'_e(32|64)$', '', p.mn)
    if p.kind == 'valu':
        vd = {r for r in pd if isv(r)}; sd = pd - vd
        if c.kind == 'mfma' and vd & cu: n = max(n, 2)
        if c.kind == 'valu':
            if cb in ('v_readfirstlane_b32', 'v_readlane_b32') and vd & cu: n = max(n, 1)
            if cb.startswith('v_permlane') and vd & cu: n = max(n, 2)
            if ('row_' in c.text or 'quad_perm' in c.text or 'dpp' in c.text) and vd & cu: n = max(n, 2)
            if pb in TRANS and cb not in TRANS and vd & cu: n = max(n, 1)
            if pb in TRANS and vd & cu: n = max(n, 1)
            if sd & cu: n = max(n, 4 if cb in ('v_readlane_b32', 'v_writelane_b32') else 2)
            if 'op_sel' in p.text and not pb.startswith('v_pk') and vd & (cu | cd): n = max(n, 1)
        if pb in TRANS and c.kind in ('ds', 'vm') and vd & cu: n = max(n, 1)
        if c.kind == 'vm' and sd & cu: n = max(n, 5)
        if c.kind in ('salu', 'branch', 'smem') and sd & cu: n = max(n, 1)
    elif p.kind == 'mfma':
        P = p.passes
        if c.kind == 'mfma':
            cc = set(c.srcc); ab = cu - cc if not (cu - cc) & cc else cu
            abregs = set(regs_of(split_ops(c.text.split(None, 1)[1])[1])) | set(regs_of(split_ops(c.text.split(None, 1)[1])[2]))
            if pd & abregs: n = max(n, 8 if P == 4 else 12)
            if pd & cc:
                if not (list(p.defs) == list(c.srcc) and c.passes == P): n = max(n, 6 if P == 4 else 10)
            elif pd & cd: n = max(n, 8 if P == 4 else 12)
        elif c.kind in ('valu', 'ds', 'vm'):
            if pd & (cu | cd): n = max(n, 8 if P == 4 else 12)
            if c.kind == 'valu' and set(p.srcc) & cd: n = max(n, 3 if P == 4 else 7)
    elif p.kind == 'salu':
        if ('s', 'm0') in pd and c.note == 'dma': n = max(n, 1)
        if ('s', 'exec') in pd and c.kind == 'mfma': n = max(n, 1)
    elif p.kind == 'vm' and p.wide:
        if set(p.srcc) & cd: n = max(n, 2)
    return n

def insert_nops(L):
    out = []
    for ins in L:
        if ins.kind in ('label', 'dir', 'nop', 'wait', 'barrier'):
            out.append(ins); continue
        need = 0; dist = 0
        for p in reversed(out):
            if dist >= 12: break
            r = req_states(p, ins)
            if r - dist > need: need = r - dist
            dist += p.states()
        if need > 0: out.append(I('s_nop %d' % (need - 1)))
        out.append(ins)
    return out

def finalize(prog):
    L = insert_waits(prog.L)
    L = insert_nops(L)
    return '\n'.join((i.text if i.kind in ('label',) or i.text.startswith('.') else ' ' + i.text) for i in L) + '\n'
```

```python
import sys, struct
from gasm import Prog, finalize, merge
NAME = "concat_heads__linear_kernel_hedgehog__ssm_conv_s4d__prompt"
OPT = dict(a.split('=') for a in sys.argv[1:] if '=' in a)
def opt(k, d): return type(d)(OPT.get(k, d))
STAMP = opt('stamp', 0)
ROT = opt('rot', 1)
def f2u(x): return struct.unpack('<I', struct.pack('<f', x))[0]
def vr(a, n): return f"v[{a}:{a+n-1}]" if n > 1 else f"v{a}"
def ar(a, n): return f"a[{a}:{a+n-1}]" if n > 1 else f"a{a}"
def sr(a, n): return f"s[{a}:{a+n-1}]" if n > 1 else f"s{a}"
def magic(d): return (2**32 + d - 1) // d

WS_KVCNT = 0; WS_OCNT = 2048; WS_KV = 8192; WS_ZERO_END = WS_KV + 32 * 4096
WS_O = 262144; WS_STAMP = 4 << 20; WS_SIZE = 8 << 20
NSPARE = 48
NZERO_WG = (WS_ZERO_END + 4095) // 4096
P_X, P_W, P_PHI, P_WO, P_U, P_LA, P_AI, P_CR, P_CI, P_LDT, P_DS, P_OUT, P_DBG, P_WS = [8 + 2 * i for i in range(14)]
OOB = 0x80000000
SPIN = 400000

def srd(p, s, ptr, size, off=None):
    if off is None:
        p(f"s_mov_b32 s{s}, s{ptr}\n s_mov_b32 s{s+1}, s{ptr+1}")
    else:
        p(f"s_add_u32 s{s}, s{ptr}, {off}\n s_addc_u32 s{s+1}, s{ptr+1}, 0")
    p(f"s_mov_b32 s{s+2}, {size}\n s_mov_b32 s{s+3}, 0x20000")

nstamp = [0]
def stamp(p, sreg_base=96):
    if not STAMP: return
    k = nstamp[0]; nstamp[0] += 1
    p(f"s_memtime s[96:97]\n s_waitcnt lgkmcnt(0)\n v_writelane_b32 v255, s96, {k}")
def stamp_store(p, wsrd):
    if not STAMP: return
    p(f"""s_lshl_b32 s96, s2, 2
    s_add_u32 s96, s96, s68
    s_lshl_b32 s96, s96, 8
    s_add_u32 s96, s96, {WS_STAMP}
    v_and_b32 v254, 63, v0
    v_lshlrev_b32 v254, 2, v254
    buffer_store_dword v255, v254, {sr(wsrd,4)}, s96 offen""")

def poll(p, name, srdreg, soff, target, vt, va):
    p(f"s_mov_b32 s94, {SPIN}")
    p.waitall()
    p(f"{name}:")
    p(f"""buffer_load_dword v{vt}, v{va}, {sr(srdreg,4)}, {soff} offen sc1
    s_waitcnt vmcnt(0)
    v_readfirstlane_b32 s95, v{vt}
    s_sub_u32 s94, s94, 1
    s_cmp_eq_u32 s94, 0
    s_cbranch_scc1 {name}_x
    s_cmp_ge_u32 s95, {target}
    s_cbranch_scc1 {name}_x
    s_sleep 1
    s_branch {name}""")
    p(f"{name}_x:")

A_RING = 0; NSLOT = 16; GR = 5120
A_PHIK = NSLOT * GR; PHI_RS = 352
A_VFR = A_PHIK + 128 * PHI_RS
A_WPHI = A_VFR + 20480
A_END = A_WPHI + 4800
A_KVIMG = A_PHIK
S_X, S_W, S_WO, S_WS, S_OUT, S_DBG, S_PHI = 40, 44, 48, 52, 56, 60, 64
V_XO = 1; V_WD = 3; V_OD1 = 8; V_OD2 = 13; V_TK = 18; V_TV = 19; V_TKH = 20; V_TVH = 21
V_Z = 22; V_T = 23
V_WF = 32
V_KA = 112; V_VA = 152; V_PA = 192; V_X = 232

def mfma(p, d, a, b, c=None):
    p(f"v_mfma_f32_16x16x32_bf16 {d}, {a}, {b}, {d if c is None else c}")

def role_A():
    p = Prog(); nstamp[0] = 0
    p("roleA:")
    stamp(p)
    p("""s_and_b32 s72, s2, 7
    s_lshr_b32 s73, s2, 3
    s_lshr_b32 s69, s72, 1
    s_lshl_b32 s69, s69, 2
    s_lshr_b32 s74, s73, 2
    s_add_u32 s69, s69, s74
    s_and_b32 s70, s72, 1
    s_lshl_b32 s70, s70, 2
    s_and_b32 s75, s73, 3
    s_add_u32 s70, s70, s75
    s_add_u32 s71, s74, s75
    s_and_b32 s71, s71, 3""")
    p(f"s_mul_i32 s71, s71, {5 if ROT else 0}")
    p(f"""v_and_b32 v{V_T}, 63, v0
    v_and_b32 v{V_T+1}, 15, v0
    v_bfe_u32 v{V_T+2}, v0, 4, 2
    v_mov_b32 v{V_Z}, 0""")
    p(f"""s_lshl_b32 s76, s68, 5
    v_add_u32 v{V_XO}, s76, v{V_T+1}
    v_mul_u32_u24 v{V_XO}, 1280, v{V_XO}
    v_lshl_add_u32 v{V_XO}, v{V_T+2}, 4, v{V_XO}
    v_add_u32 v{V_XO+1}, {16*1280}, v{V_XO}""")
    p(f"s_mov_b32 s77, {magic(10)}")
    def dma_offs(base, rowstride, kfun):
        for i in range(5):
            t = V_T + 3
            p(f"""v_add_u32 v{t}, {64*i}, v{V_T}
            v_mul_hi_u32 v{t+1}, v{t}, s77
            v_mul_u32_u24 v{t+2}, 10, v{t+1}
            v_sub_u32 v{t}, v{t}, v{t+2}""")
            p(f"""v_lshrrev_b32 v{t+2}, 4, v{t+1}
            v_bfe_u32 v{t+3}, v{t+1}, 2, 2
            v_and_b32 v{t+1}, 3, v{t+1}""")
            gm, hm = kfun
            p(f"""v_mad_u32_u24 v{t+1}, v{t+3}, {gm}, v{t+1}""")
            if hm <= 64: p(f"v_mad_u32_u24 v{t+1}, v{t+2}, {hm}, v{t+1}")
            else: p(f"v_mul_u32_u24 v{t+2}, {hm}, v{t+2}\n v_add_u32 v{t+1}, v{t+1}, v{t+2}")
            p(f"""v_mul_u32_u24 v{t+1}, {rowstride}, v{t+1}
            v_lshl_add_u32 v{base+i}, v{t}, 4, v{t+1}""")
    dma_offs(V_WD, 3840, (8, 4))
    p(f"s_mul_i32 s78, s69, {128*1280}")
    srd(p, S_X, P_X, 128 * 1280, 's78')
    srd(p, S_W, P_W, 640 * 3840)
    p(f"""s_mov_b32 s80, s71
    s_lshr_b32 s81, s68, 1
    s_add_u32 s81, s81, s71
    s_and_b32 s82, s68, 1
    s_add_u32 s82, s82, 1
    s_mul_i32 s82, s82, 1280
    s_mul_i32 s83, s70, 160
    s_add_u32 s82, s82, s83
    s_mul_i32 s84, s68, {GR}""")
    def wrap(s, inc):
        p(f"""s_add_u32 s{s}, s{s}, {inc}
        s_sub_u32 s85, s{s}, 20
        s_cmp_ge_u32 s{s}, 20
        s_cselect_b32 s{s}, s85, s{s}""")
    def issue_group(p, G):
        slotbase = A_RING + (G % 4) * 4 * GR
        if G < 15:
            p(f"s_mul_i32 s86, s81, {32*3840}\n s_add_u32 s86, s86, s82")
            vo, sd = V_WD, S_W
        elif G < 19:
            p(f"""s_lshr_b32 s86, s68, 1
            s_mul_i32 s86, s86, {80*1280}
            s_and_b32 s85, s68, 1
            s_mul_i32 s85, s85, {8*1280}
            s_add_u32 s86, s86, s85
            s_add_u32 s86, s86, s83
            s_add_u32 s86, s86, {(G-15)*160*1280}""")
            vo, sd = V_OD1, S_WO
        else:
            p(f"""s_mul_i32 s86, s68, {160*1280}
            s_add_u32 s86, s86, s83
            s_add_u32 s86, s86, {16*1280}""")
            vo, sd = V_OD2, S_WO
        for i in range(5):
            p(f"s_add_u32 m0, s84, {slotbase + 1024*i}")
            p(f"buffer_load_dwordx4 v{vo+i}, {sr(sd,4)}, s86 offen lds", tag=('dma', G))
        if G < 9: wrap(81, 2)
        elif G == 9:
            p("s_add_u32 s81, s68, s71\n s_mov_b32 s82, s83")
            wrap(81, 0)
        elif G < 14: wrap(81, 4)
        if G < 10:
            for j in (2 * G, 2 * G + 1):
                p("s_lshl_b32 s87, s80, 6")
                for st in range(2):
                    p(f"buffer_load_dwordx4 {ar((st*20+j)*4,4)}, v{V_XO+st}, {sr(S_X,4)}, s87 offen")
                wrap(80, 1)
    wrap(81, 0)
    for G in range(4): issue_group(p, G)
    stamp(p)
    srd(p, S_WO, P_WO, 640 * 1280)
    srd(p, S_WS, P_WS, WS_SIZE)
    p(f"s_mul_i32 s78, s69, {128*2560}\n s_add_u32 s78, s78, s83")
    srd(p, S_OUT, P_OUT, 0, 's78')
    p(f"s_sub_u32 s{S_OUT+2}, {2048*2560}, s78")
    srd(p, S_DBG, P_DBG, 256)
    p("s_mul_i32 s78, s70, 3200")
    srd(p, S_PHI, P_PHI, 3200, 's78')
    t = V_T + 3
    p(f"""v_lshlrev_b32 v{t}, 4, v0
    buffer_load_dwordx4 {vr(V_X,4)}, v{t}, {sr(S_PHI,4)}, 0 offen
    s_mov_b32 s78, {magic(50)}
    v_mul_hi_u32 v{t+1}, v0, s78
    v_mul_u32_u24 v{t+1}, 160, v{t+1}
    v_add_u32 v{t}, v{t}, v{t+1}
    v_add_u32 v{t}, {A_WPHI}, v{t}
    v_mov_b32 v{t+1}, {A_END}
    v_cmp_gt_u32 vcc, 200, v0
    v_cndmask_b32 v{V_X+8}, v{t+1}, v{t}, vcc""")
    p(f"""v_mul_hi_u32 v{t}, v0, s77
    v_mul_u32_u24 v{t}, 800, v{t}
    v_lshl_add_u32 v{t}, v0, 4, v{t}
    v_add_u32 v{t}, {A_WPHI+800}, v{t}
    v_lshlrev_b32 v{t+2}, 4, v0
    v_add_u32 v{t+2}, {A_WPHI+3840-640}, v{t+2}
    v_cmp_gt_u32 vcc, 40, v0
    v_cndmask_b32 v{t}, v{t+2}, v{t}, vcc
    v_cmp_gt_u32 vcc, 100, v0
    v_cndmask_b32 v{t}, v{t+1}, v{t}, vcc
    v_mov_b32 v{V_X+4}, 0
    v_mov_b32 v{V_X+5}, 0
    v_mov_b32 v{V_X+6}, 0
    v_mov_b32 v{V_X+7}, 0
    ds_write_b128 v{t}, {vr(V_X+4,4)}""")
    p(f"""v_bfe_u32 v{t}, v0, 2, 4
    v_mul_u32_u24 v{t}, 160, v{t}
    v_and_b32 v{t+1}, 3, v0
    v_mad_u32_u24 v{V_TK}, v{t+1}, 40, v{t}
    v_lshl_add_u32 v{V_TV}, v{t+1}, 3, v{t}
    v_add_u32 v{V_TKH}, {8*GR}, v{V_TK}
    v_add_u32 v{V_TVH}, {8*GR}, v{V_TV}""")
    dma_offs(V_OD1, 1280, (20, 4))
    dma_offs(V_OD2, 1280, (20, 80))
    p(f"ds_write_b128 v{V_X+8}, {vr(V_X,4)}")
    stamp(p)

    def rd_frag(p, dst, slot, kind, t):
        if kind == 'v' and t < 4: base, off = V_TV, 40 * t
        else: base, off = V_TK, 8 * t
        so = slot * GR
        if slot >= 8: base += 2; so -= 8 * GR
        for h in range(2):
            p(f"ds_read_b64_tr_b16 {vr(dst+2*h,2)}, v{base} offset:{so + off + 2560*h}")
    def sync_group(p, G):
        p.waitvm(('dma', G)); p("s_waitcnt lgkmcnt(0)\n s_barrier")
        if 1 <= G and G + 3 < 20: issue_group(p, G + 3)

    sync_group(p, 0)
    p(f"""v_bfe_u32 v{t}, v0, 2, 2
    v_mul_u32_u24 v{t}, 40, v{t}
    v_mul_u32_u24 v{t+1}, 960, v{V_T+2}
    v_add3_u32 v{t}, v{t}, v{t+1}, v{V_Z}
    v_add_u32 v{t}, {A_WPHI}, v{t}
    v_and_b32 v{t+1}, 3, v0
    v_mov_b32 v{t+2}, {A_WPHI+3840}
    v_cmp_eq_u32 vcc, v{t+1}, v{V_T+2}
    v_cndmask_b32 v{V_X}, v{t+2}, v{t}, vcc""")
    stamp(p)
    def kv_reads(j):
        q = Prog(); fb = V_WF + (j % 2) * 40
        for tt in range(5):
            rd_frag(q, fb + 4 * tt, (2 * j) % NSLOT, 'k', tt)
            rd_frag(q, fb + 20 + 4 * tt, (2 * j + 1) % NSLOT, 'v', tt)
        return q
    p.extend(kv_reads(0))
    for j in range(20):
        m = Prog(); fb = V_WF + (j % 2) * 40
        for tt in range(5):
            for st in range(2):
                xf = ar((st * 20 + j) * 4, 4)
                mfma(m, vr(V_KA + st * 20 + 4 * tt, 4), vr(fb + 4 * tt, 4), xf, '0' if j == 0 else None)
            for st in range(2):
                xf = ar((st * 20 + j) * 4, 4)
                mfma(m, vr(V_VA + st * 20 + 4 * tt, 4), xf, vr(fb + 20 + 4 * tt, 4), '0' if j == 0 else None)
        side = Prog()
        if j % 2 == 1: sync_group(p, (j + 1) // 2)
        if j + 1 < 20: side.extend(kv_reads(j + 1))
        if j == 2:
            for tt in range(5):
                for ka in range(3):
                    for h in range(2):
                        side(f"ds_read_b64_tr_b16 {ar(160 + (tt*3+ka)*4 + 2*h, 2)}, v{V_X} offset:{(8*ka+4*h)*40 + 8*tt}")
            p.extend(merge(m, side, count=3))
        else:
            p.extend(merge(m, side))
    stamp(p)
    L2E = 1.4426950408889634
    p(f"s_mov_b32 s88, {f2u(L2E):#x}\n s_mov_b32 s89, {f2u(L2E):#x}")

    def phi_step(p, acc, out):
        B = V_WF
        for st in range(2):
            for q in range(10):
                p(f"v_cvt_pk_bf16_f32 v{B+st*12+q}, v{acc+st*20+2*q}, v{acc+st*20+2*q+1}")
            p(f"v_mov_b32 v{B+st*12+10}, 0\n v_mov_b32 v{B+st*12+11}, 0")
        for st in range(2):
            for ka in range(3):
                for tt in range(5):
                    mfma(p, vr(V_PA + st * 20 + 4 * tt, 4), ar(160 + (tt * 3 + ka) * 4, 4), vr(B + st * 12 + 4 * ka, 4), '0' if ka == 0 else None)
        E = V_WF + 24
        M = V_WF + 64
        for st in range(2):
            x = V_PA + st * 20
            p(f"v_max3_f32 v{M}, v{x}, v{x+1}, v{x+2}\n v_min3_f32 v{M+2}, v{x}, v{x+1}, v{x+2}")
            for q in range(3, 19, 2):
                p(f"v_max3_f32 v{M}, v{M}, v{x+q}, v{x+q+1}\n v_min3_f32 v{M+2}, v{M+2}, v{x+q}, v{x+q+1}")
            p(f"v_max_f32 v{M}, v{M}, v{x+19}\n v_min_f32 v{M+2}, v{M+2}, v{x+19}")
            p(f"v_mul_f32 v{M}, s88, v{M}\n v_mul_f32 v{M+2}, s88, v{M+2}")
            for q in range(10):
                p(f"v_pk_fma_f32 {vr(E+2*q,2)}, {vr(x+2*q,2)}, s[88:89], {vr(M,2)} op_sel_hi:[1,1,0] neg_lo:[0,0,1] neg_hi:[0,0,1]")
                p(f"v_pk_fma_f32 {vr(E+20+2*q,2)}, {vr(x+2*q,2)}, s[88:89], {vr(M+2,2)} op_sel_hi:[1,1,0] neg_lo:[1,0,0] neg_hi:[1,0,0]")
            for q in range(40): p(f"v_exp_f32 v{E+q}, v{E+q}")
            for hh in range(2):
                S = M + 4 + 2 * hh; e = E + 20 * hh
                p(f"v_pk_add_f32 {vr(S,2)}, {vr(e,2)}, {vr(e+2,2)}")
                for q in range(2, 10): p(f"v_pk_add_f32 {vr(S,2)}, {vr(S,2)}, {vr(e+2*q,2)}")
                p(f"v_add_f32 v{S}, v{S}, v{S+1}")
            p(f"v_rcp_f32 v{M+4}, v{M+4}\n v_rcp_f32 v{M+6}, v{M+6}")
            for hh in range(2):
                for q in range(10):
                    e = E + 20 * hh + 2 * q
                    p(f"v_pk_mul_f32 {vr(e,2)}, {vr(e,2)}, {vr(M+4+2*hh,2)} op_sel_hi:[1,0]")
            for q in range(20):
                p(f"v_cvt_pk_bf16_f32 v{out+st*20+q}, v{E+2*q}, v{E+2*q+1}")

    t = V_T + 3
    p(f"""s_mul_i32 s78, s68, 5120
    v_lshlrev_b32 v{t}, 4, v{V_T}
    v_add_u32 v{t}, s78, v{t}""")
    for tt in range(5):
        d = V_X + 4 * (tt % 2)
        for st in range(2):
            a = V_VA + st * 20 + 4 * tt
            p(f"v_cvt_pk_bf16_f32 v{d+2*st}, v{a}, v{a+1}\n v_cvt_pk_bf16_f32 v{d+2*st+1}, v{a+2}, v{a+3}")
        if tt == 0: p(f"v_add_u32 v{t}, {A_VFR}, v{t}")
        p(f"ds_write_b128 v{t}, {vr(d,4)} offset:{1024*tt}")
    phi_step(p, V_KA, V_VA)
    stamp(p)
    p(f"""s_lshl_b32 s78, s68, 5
    v_add_u32 v{t}, s78, v{V_T+1}
    v_mul_u32_u24 v{t}, {PHI_RS}, v{t}
    v_mul_u32_u24 v{t+1}, 80, v{V_T+2}
    v_add_u32 v{t}, v{t}, v{t+1}
    v_add_u32 v{t}, {A_PHIK}, v{t}""")
    for st in range(2):
        for q in range(5):
            p(f"ds_write_b128 v{t}, {vr(V_VA+st*20+4*q,4)} offset:{st*16*PHI_RS + 16*q}")
    poll(p, "a_pz", S_DBG, 0, NZERO_WG, V_X, V_Z)
    p("s_waitcnt lgkmcnt(0)\n s_barrier")
    p(f"""v_bfe_u32 v{t}, v0, 2, 4
    v_mul_u32_u24 v{t}, {PHI_RS}, v{t}
    v_and_b32 v{t+1}, 3, v0
    v_lshl_add_u32 v{t}, v{t+1}, 3, v{t}
    s_mul_i32 s78, s68, 80
    s_add_u32 s78, s78, {A_PHIK}
    v_add_u32 v{t}, s78, v{t}
    s_lshl_b32 s78, s68, 10
    s_add_u32 s78, s78, {A_VFR}
    v_lshlrev_b32 v{t+1}, 4, v{V_T}
    v_add_u32 v{t+2}, {A_VFR+4096}, v{t+1}
    v_add_u32 v{t+1}, s78, v{t+1}
    v_bfe_u32 v{t+3}, v0, 2, 2
    v_cmp_eq_u32 s[90:91], s68, v{t+3}
    v_mov_b32 v{t+3}, 0x3f803f80""")
    F = V_WF
    for sw in range(4):
        fb = F + sw * 20
        p(f"ds_read_b128 {vr(fb,4)}, v{t+1} offset:{sw*5120}\n ds_read_b128 {vr(fb+4,4)}, v{t+2} offset:{sw*5120}")
        for nf in range(3):
            for h in range(2):
                p(f"ds_read_b64_tr_b16 {vr(fb+8+4*nf+2*h,2)}, v{t} offset:{sw*32*PHI_RS + h*16*PHI_RS + 32*nf}")
    D = V_PA
    for sw in range(4):
        fb = F + sw * 20
        for q in range(4): p(f"v_cndmask_b32 v{fb+4+q}, v{t+3}, v{fb+4+q}, s[90:91]")
        for md in range(2):
            for nf in range(3):
                mfma(p, vr(D + (md * 3 + nf) * 4, 4), vr(fb + 4 * md, 4), vr(fb + 8 + 4 * nf, 4), '0' if sw == 0 else None)
    a0 = V_X
    p(f"""v_lshlrev_b32 v{t}, 2, v{V_T+1}
    v_mul_u32_u24 v{t+1}, 768, v{V_T+2}
    v_add_u32 v{a0}, v{t}, v{t+1}
    v_mov_b32 v{t+2}, {OOB:#x}
    v_cmp_gt_u32 s[90:91], 8, v{V_T+1}
    v_cndmask_b32 v{a0+1}, v{t+2}, v{a0}, s[90:91]
    v_add_u32 v{t+1}, {16*192}, v{t}
    v_cmp_eq_u32 vcc, s68, v{V_T+2}
    v_cndmask_b32 v{a0+2}, v{t+2}, v{t+1}, vcc
    v_cndmask_b32 v{a0+3}, v{t+2}, v{a0+2}, s[90:91]
    s_add_u32 s78, s68, 1
    s_and_b32 s78, s78, 3
    v_add_u32 v{t+1}, {20*192}, v{t}
    v_cmp_eq_u32 vcc, s78, v{V_T+2}
    v_cndmask_b32 v{a0+4}, v{a0+2}, v{t+1}, vcc
    v_cndmask_b32 v{a0+5}, v{t+2}, v{a0+4}, s[90:91]
    s_lshl_b32 s78, s70, 2
    s_add_u32 s78, s78, s68
    s_lshl_b32 s78, s78, 12
    s_add_u32 s78, s78, {WS_KV}""")
    for md in range(2):
        for nf in range(3):
            for i in range(4):
                vo = (a0 if md == 0 else (a0 + 4 if i == 0 else a0 + 2)) + (1 if nf == 2 else 0)
                p(f"buffer_atomic_add_f32 v{D+(md*3+nf)*4+i}, v{vo}, {sr(S_WS,4)}, s78 offen offset:{i*192+nf*64}", tag='kvat')
    stamp(p)

    def gemm80(p, g0, acc, pre=None, mid=None):
        def reads(j):
            q = Prog(); fb = V_WF + (j % 2) * 20
            for tt in range(5): rd_frag(q, fb + 4 * tt, (4 * g0 + j) % NSLOT, 'k', tt)
            return q
        p.extend(reads(0))
        for j in range(20):
            m = Prog(); fb = V_WF + (j % 2) * 20
            for tt in range(5):
                for st in range(2):
                    mfma(m, vr(acc + st * 20 + 4 * tt, 4), vr(fb + 4 * tt, 4), ar((st * 20 + j) * 4, 4), '0' if j == 0 else None)
            if j % 4 == 3 and g0 + (j + 1) // 4 < 20: sync_group(p, g0 + (j + 1) // 4)
            if mid and j in mid: mid[j](p)
            p.extend(merge(m, reads(j + 1) if j + 1 < 20 else Prog()))

    def kv_signal(p):
        p(f"""s_lshl_b32 s78, s70, 8
        v_mov_b32 v{V_X+6}, 1
        v_mov_b32 v{V_X+7}, {OOB:#x}
        v_cmp_eq_u32 vcc, 0, v0
        v_cndmask_b32 v{V_X+7}, v{V_X+7}, v{V_Z}, vcc
        buffer_atomic_add v{V_X+6}, v{V_X+7}, {sr(S_WS,4)}, s78 offen sc1""")
    KS = opt('ks', 12)
    orig_sync = sync_group
    def sync_group(p, G):
        if G == KS: p.waitvm('kvat')
        orig_sync(p, G)
        if G == KS: kv_signal(p)
    gemm80(p, 10, V_KA)
    stamp(p)
    phi_step(p, V_KA, V_VA)
    stamp(p)
    p(f"s_mov_b32 s78, {magic(105)}\n s_mov_b32 s79, {magic(5)}")
    for r in range(2):
        ga, la = V_X + 2 * r, V_X + 2 * r + 1
        p(f"""v_add_u32 v{t}, {256*r}, v0
        v_mul_hi_u32 v{t+1}, v{t}, s78
        v_mul_u32_u24 v{t+2}, 105, v{t+1}
        v_sub_u32 v{t+2}, v{t}, v{t+2}
        v_mul_hi_u32 v{t+3}, v{t+2}, s79
        v_mul_u32_u24 v{t+4}, 5, v{t+3}
        v_sub_u32 v{t+2}, v{t+2}, v{t+4}
        v_lshlrev_b32 v{ga}, 12, v{t+1}
        v_mul_u32_u24 v{t+4}, 192, v{t+3}
        v_add_u32 v{ga}, v{ga}, v{t+4}
        v_lshl_add_u32 v{ga}, v{t+2}, 5, v{ga}
        v_mul_u32_u24 v{la}, 1920, v{t+1}
        v_mul_u32_u24 v{t+4}, 80, v{t+3}
        v_add_u32 v{la}, v{la}, v{t+4}
        v_lshl_add_u32 v{la}, v{t+2}, 4, v{la}
        v_add_u32 v{la}, {A_KVIMG}, v{la}""")
        if r == 1:
            p(f"""v_cmp_gt_u32 vcc, 420, v{t}
            v_mov_b32 v{t+1}, {OOB:#x}
            v_mov_b32 v{t+2}, {A_KVIMG+9600}
            v_cndmask_b32 v{ga}, v{t+1}, v{ga}, vcc
            v_cndmask_b32 v{la}, v{t+2}, v{la}, vcc""")
    p(f"""v_lshlrev_b32 v{t}, 4, v0
    v_add_u32 v{t}, {A_KVIMG+7680}, v{t}
    v_mov_b32 v{t+2}, {A_KVIMG+9600}
    v_cmp_gt_u32 vcc, 120, v0
    v_cndmask_b32 v{t}, v{t+2}, v{t}, vcc
    v_mov_b32 v{V_X+4}, 0
    v_mov_b32 v{V_X+5}, 0
    v_mov_b32 v{V_X+6}, 0
    v_mov_b32 v{V_X+7}, 0
    ds_write_b128 v{t}, {vr(V_X+4,4)}
    s_lshl_b32 s78, s70, 8""")
    poll(p, "a_pk", S_WS, 's78', 16, V_X + 8, V_Z)
    stamp(p)
    p(f"s_lshl_b32 s78, s70, 14\n s_add_u32 s78, s78, {WS_KV}")
    for r in range(2):
        for h in range(2):
            p(f"buffer_load_dwordx4 {vr(F+8*r+4*h,4)}, v{V_X+2*r}, {sr(S_WS,4)}, s78 offen offset:{16*h} sc1")
    p(f"""v_and_b32 v{t}, 3, v0
    v_mul_u32_u24 v{t}, 80, v{t}
    v_mul_u32_u24 v{t+1}, 1920, v{V_T+2}
    v_add_u32 v{t}, v{t}, v{t+1}
    v_add_u32 v{t}, {A_KVIMG}, v{t}
    v_mov_b32 v{t+1}, {A_KVIMG+7680}
    v_bfe_u32 v{t+2}, v0, 2, 2
    v_cmp_eq_u32 vcc, v{t+2}, v{V_T+2}
    v_cndmask_b32 v{t}, v{t+1}, v{t}, vcc""")
    for r in range(2):
        for q in range(4): p(f"v_cvt_pk_bf16_f32 v{F+16+4*r+q}, v{F+8*r+2*q}, v{F+8*r+2*q+1}")
        p(f"ds_write_b128 v{V_X+2*r+1}, {vr(F+16+4*r,4)}")
    p("s_waitcnt lgkmcnt(0)\n s_barrier")
    stamp(p)
    def oreg(st, tt): return V_PA + st * 20 + 4 * tt if tt < 5 else V_KA + 4 * st
    rd = Prog(); mm = Prog()
    order = [(tt, ka) for tt in (5, 0, 1, 2, 3, 4) for ka in range(5)]
    NB = 10
    for n, (tt, ka) in enumerate(order[:NB]):
        p(f"ds_read_b128 {vr(F+4*(n%NB),4)}, v{t} offset:{tt*320+16*ka}")
    for n, (tt, ka) in enumerate(order):
        for st in range(2):
            mfma(p, vr(oreg(st, tt), 4), vr(F + 4 * (n % NB), 4), vr(V_VA + st * 20 + 4 * ka, 4), '0' if ka == 0 else None)
        if n + NB < len(order):
            t2, k2 = order[n + NB]
            p(f"ds_read_b128 {vr(F+4*(n%NB),4)}, v{t} offset:{t2*320+16*k2}")
    p(f"s_mov_b32 s78, {f2u(1e-6):#x}")
    for st in range(2):
        p(f"v_add_f32 v{V_KA+4*st}, s78, v{V_KA+4*st}\n v_rcp_f32 v{V_KA+4*st}, v{V_KA+4*st}")
    p(f"""s_lshl_b32 s78, s69, 2
    s_add_u32 s78, s78, s68
    s_mul_i32 s78, s78, 40960
    s_add_u32 s92, s78, {WS_O}
    s_mul_i32 s79, s70, 2560
    s_add_u32 s78, s92, s79
    v_lshlrev_b32 v{t}, 4, v{V_T}
    v_add_u32 v{t+1}, 20480, v{t}
    v_lshlrev_b32 v{t+2}, 3, v{V_T}
    v_add_u32 v{t+3}, 20480, v{t+2}""")
    for st in range(2):
        x = V_PA + st * 20; o = F + 12 * st
        for q in range(10):
            p(f"v_pk_mul_f32 {vr(x+2*q,2)}, {vr(x+2*q,2)}, {vr(V_KA+4*st,2)} op_sel_hi:[1,0]")
        for q in range(10): p(f"v_cvt_pk_bf16_f32 v{o+q}, v{x+2*q}, v{x+2*q+1}")
        p(f"""buffer_store_dwordx4 {vr(o,4)}, v{t+st}, {sr(S_WS,4)}, s78 offen sc1
        buffer_store_dwordx4 {vr(o+4,4)}, v{t+st}, {sr(S_WS,4)}, s78 offen offset:1024 sc1
        buffer_store_dwordx2 {vr(o+8,2)}, v{t+2+st}, {sr(S_WS,4)}, s78 offen offset:2048 sc1""")
    stamp(p)
    p(f"""s_waitcnt vmcnt(0)
    s_barrier
    s_lshl_b32 s78, s69, 8
    s_add_u32 s78, s78, {WS_OCNT}
    v_mov_b32 v{V_X+6}, 1
    v_mov_b32 v{V_X+7}, {OOB:#x}
    v_cmp_eq_u32 vcc, 0, v0
    v_cndmask_b32 v{V_X+7}, v{V_X+7}, v{V_Z}, vcc
    buffer_atomic_add v{V_X+6}, v{V_X+7}, {sr(S_WS,4)}, s78 offen sc1""")
    stamp(p)
    poll(p, "a_po", S_WS, 's78', 8, V_X + 8, V_Z)
    stamp(p)
    for hq in range(8):
        for pp in range(2):
            for st in range(2):
                p(f"buffer_load_dwordx4 {ar((st*20+2*hq+pp)*4,4)}, v{t+st}, {sr(S_WS,4)}, s92 offen offset:{1024*pp} sc1")
        p("s_add_u32 s92, s92, 2560")
    p("s_sub_u32 s92, s92, 20480")
    for hq in range(8):
        for st in range(2):
            p(f"buffer_load_dwordx2 {ar((st*20+16+hq//2)*4+2*(hq%2),2)}, v{t+2+st}, {sr(S_WS,4)}, s92 offen offset:2048 sc1")
        p("s_add_u32 s92, s92, 2560")
    gemm80(p, 15, V_KA)
    stamp(p)
    p(f"""s_lshl_b32 s78, s68, 5
    v_add_u32 v{t}, s78, v{V_T+1}
    v_mul_u32_u24 v{t}, 2560, v{t}
    v_mad_u32_u24 v{t}, v{V_T+2}, 40, v{t}
    v_add_u32 v{t+1}, {16*2560}, v{t}""")
    for st in range(2):
        x = V_KA + st * 20; o = F + 12 * st
        for q in range(10): p(f"v_cvt_pk_bf16_f32 v{o+q}, v{x+2*q}, v{x+2*q+1}")
        p(f"""buffer_store_dwordx4 {vr(o,4)}, v{t+st}, {sr(S_OUT,4)}, 0 offen
        buffer_store_dwordx4 {vr(o+4,4)}, v{t+st}, {sr(S_OUT,4)}, 0 offen offset:16
        buffer_store_dwordx2 {vr(o+8,2)}, v{t+st}, {sr(S_OUT,4)}, 0 offen offset:32""")
    stamp(p)
    stamp_store(p, S_WS)
    p("s_endpgm")
    return p

CP = 4168; YP = 4160; SRS = 544
B_RAW = 0
B_UC = 33280
B_KR = B_UC + 16 * CP
B_SC = B_KR + 4 * 4608
B_END = B_SC + 4 * 16 * SRS
def role_B():
    p = Prog(); nstamp[0] = 0
    S_U, S_LA, S_AI, S_CR, S_CI, S_LDT, S_DS, S_O, S_WSB = 40, 44, 48, 52, 56, 60, 64, 72, 76
    p("roleB:")
    stamp(p)
    p("""s_and_b32 s69, s2, 7
    s_mul_i32 s69, s69, 10
    s_lshr_b32 s70, s2, 3
    s_sub_u32 s70, s70, 16
    s_add_u32 s69, s69, s70""")
    LN, L15, G, Z = 1, 2, 3, 4
    p(f"""v_and_b32 v{LN}, 63, v0
    v_and_b32 v{L15}, 15, v0
    v_bfe_u32 v{G}, v0, 4, 2
    v_mov_b32 v{Z}, 0
    v_lshlrev_b32 v5, 2, v{LN}
    s_waitcnt lgkmcnt(0)""")
    for s_, ptr, size in ((S_LA, P_LA, 640*256), (S_AI, P_AI, 640*256), (S_CR, P_CR, 640*256), (S_CI, P_CI, 640*256), (S_LDT, P_LDT, 1280), (S_DS, P_DS, 1280)):
        srd(p, s_, ptr, size)
    PR = 8
    p(f"s_lshl_b32 s71, s69, 3\n s_add_u32 s71, s71, s68")
    for c2 in range(2):
        p(f"""s_add_u32 s80, s71, {4*c2}
        s_lshl_b32 s81, s80, 8
        s_lshl_b32 s80, s80, 1""")
        for k, s_ in enumerate((S_LA, S_AI, S_CR, S_CI)):
            p(f"buffer_load_dword v{PR+6*c2+k}, v5, {sr(s_,4)}, s81 offen")
        p(f"buffer_load_ushort v{PR+6*c2+4}, v{Z}, {sr(S_LDT,4)}, s80 offen")
        p(f"buffer_load_ushort v{PR+6*c2+5}, v{Z}, {sr(S_DS,4)}, s80 offen")
    p("s_lshl_b32 s80, s69, 4")
    srd(p, S_U, P_U, 0, 's80')
    p(f"""s_sub_u32 s{S_U+2}, {2048*1280}, s80
    v_mul_u32_u24 v6, 1280, v{LN}
    s_mul_i32 s80, s70, 3
    s_lshl_b32 s81, s68, 3
    s_add_u32 s80, s80, s81""")
    for i in range(8):
        p(f"""s_add_u32 s81, s80, {i}
        s_and_b32 s81, s81, 31
        s_mul_i32 s82, s81, {64*1280}
        s_lshl_b32 s81, s81, 10
        s_add_u32 m0, s81, {B_RAW+256}""")
        p(f"buffer_load_dwordx4 v6, {sr(S_U,4)}, s82 offen lds", tag='raw')
    stamp(p)
    p(f"s_lshl_b32 s80, s69, 4\n s_add_u32 s80, s80, 1280")
    srd(p, S_O, P_OUT, 0, 's80')
    p(f"s_sub_u32 s{S_O+2}, {2048*2560}, s80")
    srd(p, S_WSB, P_WS, WS_SIZE)
    T = 24
    p(f"""v_mov_b32 v20, 0
    v_mov_b32 v21, 0
    v_mov_b32 v22, 0
    v_mov_b32 v23, 0
    v_lshlrev_b32 v{T}, 4, v{L15}
    ds_write_b128 v{T}, v[20:23] offset:{B_RAW}
    s_mul_i32 s83, s68, 4608
    s_add_u32 s83, s83, {B_KR}
    s_mul_i32 s84, s68, {16*SRS}
    s_add_u32 s84, s84, {B_SC}
    v_and_b32 v{T}, 31, v0
    v_lshlrev_b32 v{T}, 4, v{T}
    v_add_u32 v{T}, s83, v{T}
    ds_write_b128 v{T}, v[20:23] offset:4096""")
    A_SW, A_SR, A_T0, A_T1, A_T1b, A_T2, A_X3, A_X2, A_X1, A_X0, A_KW, A_KW32, A_KB, MSK = range(24, 38)
    t = 40
    p(f"""v_lshl_add_u32 v{A_SW}, v{LN}, 3, v{Z}
    v_add_u32 v{A_SW}, s84, v{A_SW}
    v_mul_u32_u24 v{A_SR}, {SRS}, v{L15}
    v_lshl_add_u32 v{A_SR}, v{G}, 4, v{A_SR}
    v_add_u32 v{A_SR}, s84, v{A_SR}
    v_lshrrev_b32 v{t}, 1, v{G}
    v_and_b32 v{t+1}, 1, v{G}
    v_lshlrev_b32 v{A_T0}, 9, v{t}
    v_lshl_add_u32 v{A_T0}, v{t+1}, 4, v{A_T0}
    v_lshl_add_u32 v{A_T0}, v{L15}, 5, v{A_T0}
    v_add_u32 v{A_T0}, s84, v{A_T0}
    v_lshlrev_b32 v{t+2}, 4, v{L15}
    v_lshlrev_b32 v{t+3}, 3, v{L15}
    v_cmp_gt_u32 vcc, 2, v{G}
    v_cndmask_b32 v{t+2}, v{t+3}, v{t+2}, vcc
    v_lshl_add_u32 v{A_T1}, v{G}, 8, v{t+2}
    v_add_u32 v{A_T1}, s84, v{A_T1}
    v_mov_b32 v{t+2}, 128
    v_cndmask_b32 v{t+2}, v{t+2}, 8, vcc""".replace(f"v_cndmask_b32 v{t+2}, v{t+2}, 8, vcc", f"v_mov_b32 v{t+3}, 8\n v_cndmask_b32 v{t+2}, v{t+2}, v{t+3}, vcc"))
    p(f"""v_add_u32 v{A_T1b}, v{A_T1}, v{t+2}
    v_lshlrev_b32 v{A_T2}, 8, v{G}
    v_lshl_add_u32 v{A_T2}, v{L15}, 2, v{A_T2}
    v_add_u32 v{A_T2}, s84, v{A_T2}
    v_lshl_add_u32 v{A_X3}, v{LN}, 2, v{Z}
    v_add_u32 v{A_X3}, s84, v{A_X3}
    v_lshl_add_u32 v{A_X2}, v{LN}, 3, v{Z}
    v_add_u32 v{A_X2}, s84, v{A_X2}
    v_and_b32 v{t}, 31, v0
    v_lshlrev_b32 v{A_X1}, 4, v{t}
    v_add_u32 v{A_X1}, s84, v{A_X1}
    v_lshlrev_b32 v{A_X0}, 5, v{t}
    v_add_u32 v{A_X0}, s84, v{A_X0}
    v_lshlrev_b32 v{t+1}, 4, v{LN}
    v_sub_u32 v{A_KW}, s83, v{t+1}
    v_add_u32 v{A_KW}, 1008, v{A_KW}
    v_lshlrev_b32 v{t+1}, 4, v{t}
    v_sub_u32 v{A_KW32}, s83, v{t+1}
    v_add_u32 v{A_KW32}, 496, v{A_KW32}
    v_lshlrev_b32 v{t+1}, 5, v{L15}
    v_sub_u32 v{A_KB}, s83, v{t+1}
    v_lshl_add_u32 v{A_KB}, v{G}, 4, v{A_KB}
    v_add_u32 v{A_KB}, 480, v{A_KB}
    v_and_b32 v{t}, 1, v0
    v_mov_b32 v{t+1}, 0xffff
    v_mov_b32 v{t+2}, -1
    v_cmp_eq_u32 vcc, 1, v{t}
    v_cndmask_b32 v{MSK}, v{t+1}, v{t+2}, vcc
    s_mov_b32 s85, 0xffff
    s_mov_b32 s86, {f2u(1.4426950408889634):#x}
    s_mov_b32 s87, 0x32a57060
    s_mov_b32 s88, {f2u(0.6931471805599453):#x}
    s_mov_b32 s89, 0xffff0000""")

    def exp_bf16(p, d, x, t):
        p(f"""v_mul_f32 v{t}, s86, v{x}
        v_fma_f32 v{t+1}, v{x}, s86, -v{t}
        v_fma_f32 v{t+1}, v{x}, s87, v{t+1}
        v_exp_f32 v{t}, v{t}
        v_mul_f32 v{t+1}, s88, v{t+1}
        v_fma_f32 v{t}, v{t}, v{t+1}, v{t}
        v_cvt_pk_bf16_f32 v{t}, v{t}, v{t}
        v_and_b32 v{d}, s89, v{t}""")
    def cmul(p, c, a, b):
        p(f"v_pk_mul_f32 {vr(c,2)}, {vr(a,2)}, {vr(b,2)} op_sel:[0,0] op_sel_hi:[0,1]")
        p(f"v_pk_fma_f32 {vr(c,2)}, {vr(a,2)}, {vr(b,2)}, {vr(c,2)} op_sel:[1,1,0] op_sel_hi:[1,0,1] neg_lo:[0,1,0]")
    E = lambda k, mu: 48 + 4 * (k - 1) + 2 * mu
    E8 = lambda mu: 76 + 2 * mu
    E128 = lambda mu: 80 + 2 * mu
    GA = lambda par, mu: 84 + 4 * par + 2 * mu
    XT = lambda k, mu: 92 + 4 * (k % 2) + 2 * mu
    PK = lambda k: 100 + 2 * (k % 4)
    FB = 108
    FA = 140
    DT = 172
    def kgen(p, c2):
        P = PR + 6 * c2; t = 40
        p(f"v_lshlrev_b32 v{t+6}, 16, v{P+4}")
        exp_bf16(p, t + 7, t + 6, t)
        rho = lambda mu: 92 + mu; th = lambda mu: 94 + mu
        for mu in range(2):
            up = (lambda d, s_: f"v_lshlrev_b32 v{d}, 16, v{s_}") if mu == 0 else (lambda d, s_: f"v_and_b32 v{d}, s89, v{s_}")
            p(up(t + 6, P))
            exp_bf16(p, t + 5, t + 6, t)
            p(f"v_mul_f32 v{t+5}, v{t+5}, v{t+7}\n v_mul_f32 v{rho(mu)}, s86, v{t+5}")
            p(up(t + 6, P + 1))
            p(f"v_mul_f32 v{t+6}, v{t+6}, v{t+7}\n v_mul_f32 v{th(mu)}, 0.15915494, v{t+6}")
            p(up(t + 5, P + 2)); p(up(t + 6, P + 3))
            p(f"v_add_f32 v{t+4}, v{t+7}, v{t+7}\n v_mul_f32 v{GA(0,mu)}, v{t+5}, v{t+4}\n v_mul_f32 v{GA(0,mu)+1}, v{t+6}, v{t+4}")
        for pw, dst in ((1, lambda mu: E(1, mu)), (8, E8), (128, E128)):
            for mu in range(2):
                d = dst(mu); u = t + 3 * mu
                p(f"""v_mul_f32 v{u}, {f2u(-float(pw)):#x}, v{rho(mu)}
                v_mul_f32 v{u+1}, {f2u(float(pw)):#x}, v{th(mu)}
                v_exp_f32 v{u}, v{u}
                v_fract_f32 v{u+1}, v{u+1}
                v_cos_f32 v{d}, v{u+1}
                v_sin_f32 v{d+1}, v{u+1}
                v_pk_mul_f32 {vr(d,2)}, {vr(d,2)}, {vr(u if u % 2 == 0 else u - 1,2)} op_sel:[0,{u%2}] op_sel_hi:[1,{u%2}]""")
        cnt = [0]
        def put(row, src, neg=False):
            k = cnt[0]; cnt[0] += 1
            for mu in range(2):
                a = src(mu)
                p(f"v_cvt_pk_bf16_f32 v{PK(k)+mu}, v{a}, {'-' if neg else ''}v{a+1}")
            p(f"ds_write_b64 v{A_SW}, {vr(PK(k),2)} offset:{row*SRS}")
        p(f"v_mov_b32 v{PK(3)}, 0x3f80\n v_mov_b32 v{PK(3)+1}, 0x3f80\n ds_write_b64 v{A_SW}, {vr(PK(3),2)}")
        put(1, E8, True)
        prev = E8
        for b in range(2, 16):
            cur = (lambda bb: (lambda mu: XT(bb, mu)))(b)
            for mu in range(2): cmul(p, cur(mu), prev(mu), E8(mu))
            put(b, cur, True); prev = cur
        for ka in range(8): p(f"ds_read_b128 {vr(FB+4*ka,4)}, v{A_SR} offset:{64*ka}")
        for k in range(2, 8):
            for mu in range(2): cmul(p, E(k, mu), E(k - 1, mu), E(1, mu))
        al = [0]
        def Gcur(mu): return GA(al[0] % 2, mu)
        def Gnext():
            for mu in range(2): cmul(p, GA((al[0] + 1) % 2, mu), GA(al[0] % 2, mu), E128(mu))
            al[0] += 1
        def prod(row, k):
            if k == 0: put(row, Gcur); return
            for mu in range(2): cmul(p, XT(row, mu), Gcur(mu), E(k, mu))
            put(row, lambda mu: XT(row, mu))
        def tile(T):
            for ka in range(8): p(f"ds_read_b128 {vr(FA+4*ka,4)}, v{A_SR} offset:{64*ka}")
            return [f"v_mfma_f32_16x16x32_bf16 {vr(DT+4*T,4)}, {vr(FA+4*ka,4)}, {vr(FB+4*ka,4)}, {'0' if ka == 0 else vr(DT+4*T,4)}" for ka in range(8)]
        for a in range(2):
            for g in range(8): prod(8 * a + g, g)
            Gnext()
        mm = tile(0)
        for a in range(2):
            for g in range(4): prod(4 * a + g, 2 * g)
            Gnext()
            if a == 0:
                for x in mm: p(x)
        for a in range(4):
            for g in range(2): prod(8 + 2 * a + g, 4 * g)
            Gnext()
        mm = tile(1)
        for a in range(9):
            prod(a, 0)
            if a < 8: Gnext()
            if a == 3:
                for x in mm: p(x)
        for x in tile(2): p(x)
        p(f"""v_lshlrev_b32 v{t}, 16, v{P+5}
        v_cmp_eq_u32 vcc, 0, v{LN}
        v_cndmask_b32 v{t}, v{Z}, v{t}, vcc
        v_add_f32 v{DT}, v{DT}, v{t}""")
        for q in range(12): p(f"v_cvt_pk_bf16_f32 v{DT+q}, v{DT+q}, v{DT+q}")
        p(f"""ds_write_b128 v{A_T0}, {vr(DT,4)}
        ds_write_b64 v{A_T1}, {vr(DT+4,2)} offset:1024
        ds_write_b64 v{A_T1b}, {vr(DT+6,2)} offset:1024""")
        for i in range(4): p(f"ds_write_b32 v{A_T2}, v{DT+8+i} offset:{2048+64*i}")
        R = FA
        for r in range(2):
            p(f"ds_read_b32 v{R+4*r}, v{A_X3} offset:{2048+256*r+4}")
            p(f"ds_read_b32 v{R+4*r+2}, v{A_X3} offset:{2048+256*r}\n ds_read_b32 v{R+4*r+3}, v{A_X3} offset:{2048+256*r}")
        p(f"""ds_read_b32 v{R+8}, v{A_X2} offset:{1536+8}
        ds_read_b32 v{R+9}, v{A_X2} offset:{1536+4}
        ds_read_b32 v{R+11}, v{A_X2} offset:{1536}
        ds_read_b128 {vr(R+16,4)}, v{A_X1} offset:1024
        ds_read_b32 v{R+20}, v{A_X1} offset:{1024+16}
        ds_read_b128 {vr(R+24,4)}, v{A_X0}
        ds_read_b128 {vr(R+28,4)}, v{A_X0} offset:16""")
        for r in range(2):
            p(f"v_bfi_b32 v{R+4*r+1}, v{MSK}, v{R+4*r}, v{R+4*r+2}")
            p(f"ds_write_b128 v{A_KW}, {vr(R+4*r,4)} offset:{1024*(1-r)}")
        p(f"""v_bfi_b32 v{R+10}, s85, v{R+9}, v{R+11}
        ds_write_b128 v{A_KW}, {vr(R+8,4)} offset:2048
        v_bfi_b32 v{R+12}, s85, v{R+20}, v{R+19}
        v_mov_b32 v{R+13}, v{R+18}
        v_bfi_b32 v{R+14}, s85, v{R+18}, v{R+17}
        v_mov_b32 v{R+15}, v{R+16}
        ds_write_b128 v{A_KW32}, {vr(R+12,4)} offset:3072
        v_bfi_b32 v{R+16}, s85, v{R+31}, v{R+30}
        v_bfi_b32 v{R+17}, s85, v{R+29}, v{R+28}
        v_bfi_b32 v{R+18}, s85, v{R+27}, v{R+26}
        v_bfi_b32 v{R+19}, s85, v{R+25}, v{R+24}
        ds_write_b128 v{A_KW32}, {vr(R+16,4)} offset:3584""")

    Y = 184
    UB = 216
    def conv(p, c2):
        t = 40
        p(f"""s_add_u32 s80, s68, {4*c2}
        s_mul_i32 s81, s80, {2*CP}
        s_add_u32 s81, s81, {B_UC}
        v_and_b32 v{t}, 1, v0
        v_mul_u32_u24 v{t}, {CP}, v{t}
        v_lshrrev_b32 v{t+1}, 1, v{L15}
        v_lshl_add_u32 v{t+1}, v{G}, 2, v{t+1}
        v_lshl_add_u32 v{t}, v{t+1}, 2, v{t}
        v_add_u32 v{UB}, s81, v{t}
        v_add_u32 v{UB+1}, 1024, v{UB}
        v_add_u32 v{UB+2}, 2048, v{UB}
        v_add_u32 v{UB+3}, 3072, v{UB}
        s_mul_i32 s80, s80, {YP}
        v_lshlrev_b32 v{t}, 5, v{L15}
        v_lshl_add_u32 v{t}, v{G}, 3, v{t}
        v_add_u32 v{UB+4}, s80, v{t}""")
        def fa(b, a): return ar((b % 2) * 64 + 4 * a, 4)
        def fb(b, c): return ar((b % 2) * 64 + 32 + 4 * c, 4)
        def reads(b):
            q = Prog()
            for a in range(8):
                o = 128 * (a % 2) + 16 * b; r0 = (b % 2) * 64 + 4 * a
                q(f"ds_read_b128 {fb(b,a)}, v{A_KB} offset:{512*(7-a)+64*b}")
                q(f"ds_read2_b32 {ar(r0,2)}, v{UB+a//2} offset0:{o} offset1:{o+1}")
                q(f"ds_read2_b32 {ar(r0+2,2)}, v{UB+a//2} offset0:{o+2} offset1:{o+3}")
            return q
        p.extend(reads(0))
        for b in range(8):
            m = Prog()
            prs = sorted([(a, c) for c in range(8) for a in range(c + 1)], key=lambda x: (max(x[0], x[1] - x[0]), x[1]))
            seen = set()
            for a, c in prs:
                first = b == 0 and c not in seen; seen.add(c)
                mfma(m, vr(Y + 4 * c, 4), fa(b, a), fb(b, c - a), '0' if first else None)
            p.extend(merge(m, reads(b + 1) if b < 7 else Prog(), start=4))
        for c in range(8):
            d = 40 + 2 * (c % 4)
            p(f"v_cvt_pk_bf16_f32 v{d}, v{Y+4*c}, v{Y+4*c+1}\n v_cvt_pk_bf16_f32 v{d+1}, v{Y+4*c+2}, v{Y+4*c+3}")
            p(f"ds_write_b64 v{UB+4}, {vr(d,2)} offset:{B_RAW+512*c}")

    kgen(p, 0)
    stamp(p)
    p.waitvm('raw'); p("s_waitcnt lgkmcnt(0)\n s_barrier")
    stamp(p)
    p(f"""v_bfe_u32 v{t}, v0, 2, 2
    v_lshl_add_u32 v{t}, v{G}, 3, v{t}
    v_bfe_u32 v{t+1}, v0, 1, 1
    v_lshl_add_u32 v{t}, v{t+1}, 2, v{t}
    v_lshlrev_b32 v{t}, 4, v{t}
    v_and_b32 v{t+1}, 1, v0
    v_lshl_add_u32 v{t}, v{t+1}, 3, v{t}
    s_lshl_b32 s80, s68, 9
    v_add_u32 v{t}, s80, v{t}
    v_and_b32 v{t+1}, 7, v0
    v_mul_u32_u24 v{t+1}, {2*CP}, v{t+1}
    v_bfe_u32 v{t+2}, v0, 3, 1
    v_lshl_add_u32 v{t+1}, v{t+2}, 3, v{t+1}
    v_lshl_add_u32 v{t+1}, v{G}, 4, v{t+1}
    s_lshl_b32 s80, s68, 6
    s_add_u32 s80, s80, {B_UC}
    v_add_u32 v{t+1}, s80, v{t+1}""")
    jobs = [(k, pp) for k in range(17) for pp in range(2)]
    NBUF = 8
    def rdj(n):
        k, pp = jobs[n]; p(f"ds_read_b64_tr_b16 {vr(48+2*(n%NBUF),2)}, v{t} offset:{B_RAW + 16*(1+pp) + 2048*k}")
    def wrj(n):
        k, pp = jobs[n]
        if k == 16: p(f"ds_write_b64 v{t+3}, {vr(48+2*(n%NBUF),2)} offset:{pp*CP + 256*k}")
        else: p(f"ds_write_b64 v{t+1}, {vr(48+2*(n%NBUF),2)} offset:{pp*CP + 256*k}")
    p(f"""s_cmp_eq_u32 s68, 0
    s_cselect_b32 s80, 2, 0
    v_mov_b32 v{t+2}, {B_END - 4096}
    v_cmp_gt_u32 vcc, s80, v{G}
    v_cndmask_b32 v{t+3}, v{t+2}, v{t+1}, vcc""")
    for n in range(NBUF): rdj(n)
    for n in range(len(jobs)):
        wrj(n)
        if n + NBUF < len(jobs): rdj(n + NBUF)
    p("s_waitcnt lgkmcnt(0)\n s_barrier")
    stamp(p)
    conv(p, 0)
    stamp(p)
    kgen(p, 1)
    stamp(p)
    conv(p, 1)
    stamp(p)
    p("s_waitcnt lgkmcnt(0)\n s_barrier")
    p(f"""v_bfe_u32 v{t}, v0, 2, 2
    v_mul_u32_u24 v{t}, {YP}, v{t}
    v_and_b32 v{t+1}, 3, v0
    v_lshl_add_u32 v{t}, v{t+1}, 3, v{t}
    v_lshl_add_u32 v{t}, v{G}, 5, v{t}
    s_lshl_b32 s80, s68, 10
    v_add_u32 v{t}, s80, v{t}
    v_mul_u32_u24 v{t+1}, 2560, v{LN}
    s_mul_i32 s80, s68, {512*2560}""")
    for it in range(8):
        for h in range(2):
            p(f"ds_read_b64_tr_b16 {vr(48+4*it+2*h,2)}, v{t} offset:{B_RAW + h*4*YP + 128*it}")
    for it in range(8):
        p(f"buffer_store_dwordx4 {vr(48+4*it,4)}, v{t+1}, {sr(S_O,4)}, s80 offen")
        p(f"s_add_u32 s80, s80, {64*2560}")
    stamp(p)
    stamp_store(p, S_WSB)
    p("s_endpgm")
    return p

def role_S():
    p = Prog()
    p("roleS:")
    p(f"""s_sub_u32 s69, s2, 208
    s_cmp_ge_u32 s69, {NZERO_WG}
    s_cbranch_scc1 done
    s_waitcnt lgkmcnt(0)""")
    srd(p, 40, P_WS, WS_ZERO_END)
    srd(p, 44, P_DBG, 256)
    p(f"""s_lshl_b32 s70, s69, 12
    v_lshlrev_b32 v1, 4, v0
    v_mov_b32 v4, 0
    v_mov_b32 v5, 0
    v_mov_b32 v6, 0
    v_mov_b32 v7, 0
    buffer_store_dwordx4 v[4:7], v1, s[40:43], s70 offen sc1
    v_mov_b32 v2, 1
    v_mov_b32 v3, {OOB:#x}
    v_cmp_eq_u32 vcc, 0, v0
    v_cndmask_b32 v3, v3, v4, vcc
    s_waitcnt vmcnt(0)
    s_barrier
    buffer_atomic_add v2, v3, s[44:47], 0 offen sc1""")
    p("done:\n s_endpgm")
    return p

def main():
    LDS = max(A_END + 16, B_END + 4608)
    assert LDS <= 163840, LDS
    ref = open(f"cdna_kernels/{NAME}.s.ref").read().split('\n')
    hdr = [l for l in ref if l.startswith(';') and '@launch' not in l]
    s = '\n'.join(hdr) + f"\n; @launch grid=(256,1,1) block=(256,1,1) lds={LDS}\n"
    s += f""".amdgcn_target "amdgcn-amd-amdhsa--gfx950"
.text
.globl {NAME}_kernel
.p2align 8
.type {NAME}_kernel,@function
{NAME}_kernel:
"""
    e = Prog()
    e(f"""s_cmp_ge_u32 s2, 256
    s_cbranch_scc1 done
    s_load_dwordx16 s[8:23], s[0:1], 0
    s_load_dwordx8 s[24:31], s[0:1], 64
    s_load_dwordx4 s[32:35], s[0:1], 96
    v_lshrrev_b32 v1, 6, v0
    s_nop 0
    v_readfirstlane_b32 s68, v1
    s_cmp_ge_u32 s2, 208
    s_cbranch_scc1 roleS
    s_cmp_ge_u32 s2, 128
    s_cbranch_scc1 roleB""")
    a = role_A()
    e.extend(a)
    s += finalize(e) + finalize(role_B()) + finalize(role_S())
    s += f""".section .rodata,"a"
.p2align 6
.amdhsa_kernel {NAME}_kernel
  .amdhsa_next_free_vgpr 512
  .amdhsa_next_free_sgpr 102
  .amdhsa_accum_offset 256
  .amdhsa_group_segment_fixed_size 0
  .amdhsa_kernarg_size 112
  .amdhsa_user_sgpr_count 2
  .amdhsa_user_sgpr_kernarg_segment_ptr 1
  .amdhsa_system_sgpr_workgroup_id_x 1
.end_amdhsa_kernel
"""
    out = OPT.get('out', f"cdna_kernels/{NAME}.s")
    open(out, 'w').write(s)
    print("LDS", LDS, "A_END", A_END, "B_END", B_END, "lines", s.count('\n'))
main()
```

```python
import re

REG_RE = re.compile(r'(?<![\w.])([vas])(\d+)(?![\w\[])|(?<![\w.])([vas])\[(\d+):(\d+)\]')
TRANS = ('v_exp_f32', 'v_log_f32', 'v_rcp_f32', 'v_rsq_f32', 'v_sqrt_f32', 'v_sin_f32', 'v_cos_f32')

def regs_of(tok):
    out = []
    for m in REG_RE.finditer(tok):
        if m.group(1): out.append((m.group(1), int(m.group(2))))
        else: out += [(m.group(3), i) for i in range(int(m.group(4)), int(m.group(5)) + 1)]
    t = tok.strip().lstrip('-').strip('|')
    if t == 'vcc': out += [('s', 'vcc_lo'), ('s', 'vcc_hi')]
    elif t in ('vcc_lo', 'vcc_hi'): out.append(('s', t))
    elif t == 'exec': out += [('s', 'exec')]
    elif t == 'm0': out.append(('s', 'm0'))
    return out

def split_ops(s):
    ops = []; depth = 0; cur = ''
    for ch in s:
        if ch in '[(': depth += 1
        if ch in '])': depth -= 1
        if ch == ',' and depth == 0: ops.append(cur.strip()); cur = ''
        else: cur += ch
    if cur.strip(): ops.append(cur.strip())
    return ops

class I:
    __slots__ = ('text', 'mn', 'defs', 'uses', 'kind', 'tag', 'srcc', 'passes', 'wide', 'note')
    def __init__(self, text, tag=None):
        self.text = text.strip(); self.tag = tag; self.note = None
        self.srcc = []; self.passes = 0; self.wide = False
        t = self.text
        if t.endswith(':') or t.startswith('.') or t.startswith(';'):
            self.mn = t; self.kind = 'label' if t.endswith(':') else 'dir'; self.defs = []; self.uses = []; return
        parts = t.split(None, 1)
        mn = parts[0]; self.mn = mn
        rest = parts[1] if len(parts) > 1 else ''
        base = re.sub(r'_e(32|64)$', '', mn)
        ops = split_ops(rest)
        if ops:
            last = ops[-1].split()
            mods = ' '.join(last[1:]) if len(last) > 1 else ''
            ops[-1] = last[0]
        else: mods = ''
        R = [regs_of(o) for o in ops]
        flat = lambda l: [x for y in l for x in y]
        defs = []; uses = []
        if base.startswith('v_mfma'):
            self.kind = 'mfma'; defs = R[0]; uses = flat(R[1:4]); self.srcc = R[3]
            self.passes = 8 if '32x32' in base else 4
        elif base.startswith('v_cmp'):
            self.kind = 'valu'; defs = R[0]; uses = flat(R[1:])
        elif base in ('v_readfirstlane_b32', 'v_readlane_b32'):
            self.kind = 'valu'; defs = R[0]; uses = flat(R[1:])
        elif base.startswith('v_permlane') and 'swap' in base:
            self.kind = 'valu'; defs = flat(R[:2]); uses = flat(R[:2])
        elif base.startswith('v_'):
            self.kind = 'valu'; defs = R[0]; uses = flat(R[1:])
            if base in ('v_fmac_f32', 'v_pk_fmac_f16', 'v_writelane_b32') or 'dpp' in mods or 'row_' in mods or 'quad_perm' in mods: uses = uses + R[0]
            if base in ('v_add_co_u32', 'v_sub_co_u32', 'v_addc_co_u32'): defs = flat(R[:2]); uses = flat(R[2:])
            if base == 'v_cndmask_b32' and len(ops) == 3: uses += regs_of('vcc')
        elif base.startswith('ds_read') or base.startswith('ds_bpermute') or base.startswith('ds_swizzle'):
            self.kind = 'ds'; defs = R[0]; uses = flat(R[1:])
        elif base.startswith('ds_'):
            self.kind = 'ds'; uses = flat(R)
        elif base.startswith('buffer_load') or base.startswith('global_load'):
            self.kind = 'vm'
            if re.search(r'\blds\b', mods): uses = flat(R) + [('s', 'm0')]; self.note = 'dma'
            else: defs = R[0]; uses = flat(R[1:])
        elif base.startswith('buffer_atomic') or base.startswith('global_atomic'):
            self.kind = 'vm'; uses = flat(R)
            if 'sc0' in mods: defs = R[0]
        elif base.startswith('buffer_store') or base.startswith('global_store'):
            self.kind = 'vm'; uses = flat(R)
            if 'x3' in base or 'x4' in base:
                self.wide = True
                self.srcc = R[0] if base.startswith('buffer') else R[1]
        elif base.startswith('s_load') or base in ('s_memtime', 's_memrealtime'):
            self.kind = 'smem'; defs = R[0]; uses = flat(R[1:])
        elif base == 's_waitcnt': self.kind = 'wait'
        elif base == 's_nop': self.kind = 'nop'
        elif base == 's_barrier': self.kind = 'barrier'
        elif base.startswith('s_cbranch') or base in ('s_branch', 's_setpc_b64', 's_swappc_b64', 's_endpgm', 's_call_b64'):
            self.kind = 'branch'; uses = flat(R)
        elif base.startswith('s_cmp') or base in ('s_sleep', 's_setprio', 's_bitcmp1_b32', 's_bitcmp0_b32'):
            self.kind = 'salu'; uses = flat(R)
        elif base.startswith('s_'):
            self.kind = 'salu'; defs = R[0]; uses = flat(R[1:])
            if 'saveexec' in base: defs = defs + [('s', 'exec')]
        else:
            raise ValueError('unknown instr ' + t)
        self.defs = defs; self.uses = uses
    def states(self):
        if self.kind == 'nop': return int(self.text.split()[1], 0) + 1
        if self.kind in ('label', 'dir'): return 0
        return 1

class Prog:
    def __init__(self):
        self.L = []
    def __call__(self, text, tag=None):
        for line in text.split('\n'):
            line = line.split(';;')[0].strip()
            if line: self.L.append(I(line, tag))
    def waitvm(self, tag):
        i = I('; waitvm ' + str(tag)); i.kind = 'waitvm'; i.tag = tag; self.L.append(i)
    def waitall(self, vm=True, lgkm=True):
        self(('s_waitcnt ' + ('vmcnt(0) ' if vm else '') + ('lgkmcnt(0)' if lgkm else '')).strip())
    def extend(self, other): self.L += other.L

def merge(main, side, ratio_fn=None, start=0, every=1, count=1):
    out = Prog(); si = 0; nm = 0
    S = side.L
    for ins in main.L:
        out.L.append(ins)
        if ins.kind == 'mfma':
            nm += 1
            if nm > start and (nm - start) % every == 0:
                c = 0
                while c < count and si < len(S):
                    out.L.append(S[si]);
                    if S[si].kind not in ('dir', 'waitvm'): c += 1
                    si += 1
    out.L += S[si:]
    return out

def insert_waits(L):
    out = []; vm = []; lg = []; smem = set()
    def need(q, regs, tagmatch=None):
        idx = -1
        for k, e in enumerate(q):
            if (regs and e[0] & regs) or (tagmatch is not None and e[1] == tagmatch): idx = k
        return idx
    for ins in L:
        if ins.kind == 'wait':
            m = re.search(r'vmcnt\((\d+)\)', ins.text)
            if m: n = int(m.group(1)); vm = vm[len(vm) - n:] if n < len(vm) and n > 0 else ([] if n == 0 else vm)
            m = re.search(r'lgkmcnt\((\d+)\)', ins.text)
            if m:
                n = int(m.group(1))
                if n == 0: lg = []; smem = set()
                elif not smem and n < len(lg): lg = lg[len(lg) - n:]
            out.append(ins); continue
        if ins.kind == 'label':
            out.append(ins); continue
        regs = set(ins.uses) | set(ins.defs)
        w = []
        if ins.kind == 'waitvm': k = need(vm, None, ins.tag)
        else: k = need(vm, regs)
        if k >= 0:
            n = len(vm) - 1 - k
            w.append('vmcnt(%d)' % min(n, 62)); vm = vm[k + 1:]
        if smem & regs or (smem and need(lg, regs) >= 0):
            w.append('lgkmcnt(0)'); lg = []; smem = set()
        else:
            k = need(lg, regs)
            if k >= 0:
                n = len(lg) - 1 - k
                w.append('lgkmcnt(%d)' % min(n, 14)); lg = lg[k + 1:]
        if w: out.append(I('s_waitcnt ' + ' '.join(w)))
        if ins.kind == 'waitvm': continue
        out.append(ins)
        if ins.kind == 'vm': vm.append((set(ins.defs), ins.tag))
        elif ins.kind == 'ds': lg.append((set(ins.defs), ins.tag))
        elif ins.kind == 'smem': smem |= set(ins.defs); smem.add(('x', 0))
        if ins.kind == 'branch' and ins.mn != 's_endpgm' and 'nocheck' not in (ins.tag or ''):
            pend = [e for e in vm + lg if e[0]]
            if pend and not (ins.tag and 'keep' in ins.tag):
                raise ValueError('pending loads across branch: ' + ins.text + ' ' + str(pend[:2]))
    return out

def isv(r): return r[0] in 'va'
def req_states(p, c):
    n = 0
    pd = set(p.defs); cu = set(c.uses); cd = set(c.defs)
    cb = re.sub(r'_e(32|64)$', '', c.mn); pb = re.sub(r'_e(32|64)$', '', p.mn)
    if p.kind == 'valu':
        vd = {r for r in pd if isv(r)}; sd = pd - vd
        if c.kind == 'mfma' and vd & cu: n = max(n, 2)
        if c.kind == 'valu':
            if cb in ('v_readfirstlane_b32', 'v_readlane_b32') and vd & cu: n = max(n, 1)
            if cb.startswith('v_permlane') and vd & cu: n = max(n, 2)
            if ('row_' in c.text or 'quad_perm' in c.text or 'dpp' in c.text) and vd & cu: n = max(n, 2)
            if pb in TRANS and cb not in TRANS and vd & cu: n = max(n, 1)
            if pb in TRANS and vd & cu: n = max(n, 1)
            if sd & cu: n = max(n, 4 if cb in ('v_readlane_b32', 'v_writelane_b32') else 2)
            if 'op_sel' in p.text and not pb.startswith('v_pk') and vd & (cu | cd): n = max(n, 1)
        if pb in TRANS and c.kind in ('ds', 'vm') and vd & cu: n = max(n, 1)
        if c.kind == 'vm' and sd & cu: n = max(n, 5)
        if c.kind in ('salu', 'branch', 'smem') and sd & cu: n = max(n, 1)
    elif p.kind == 'mfma':
        P = p.passes
        if c.kind == 'mfma':
            cc = set(c.srcc); ab = cu - cc if not (cu - cc) & cc else cu
            abregs = set(regs_of(split_ops(c.text.split(None, 1)[1])[1])) | set(regs_of(split_ops(c.text.split(None, 1)[1])[2]))
            if pd & abregs: n = max(n, 8 if P == 4 else 12)
            if pd & cc:
                if not (list(p.defs) == list(c.srcc) and c.passes == P): n = max(n, 6 if P == 4 else 10)
            elif pd & cd: n = max(n, 8 if P == 4 else 12)
        elif c.kind in ('valu', 'ds', 'vm'):
            if pd & (cu | cd): n = max(n, 8 if P == 4 else 12)
            if c.kind == 'valu' and set(p.srcc) & cd: n = max(n, 3 if P == 4 else 7)
    elif p.kind == 'salu':
        if ('s', 'm0') in pd and c.note == 'dma': n = max(n, 1)
        if ('s', 'exec') in pd and c.kind == 'mfma': n = max(n, 1)
    elif p.kind == 'vm' and p.wide:
        if set(p.srcc) & cd: n = max(n, 2)
    return n

def insert_nops(L):
    out = []
    for ins in L:
        if ins.kind in ('label', 'dir', 'nop', 'wait', 'barrier'):
            out.append(ins); continue
        need = 0; dist = 0
        for p in reversed(out):
            if dist >= 12: break
            r = req_states(p, ins)
            if r - dist > need: need = r - dist
            dist += p.states()
        if need > 0: out.append(I('s_nop %d' % (need - 1)))
        out.append(ins)
    return out

def finalize(prog):
    L = insert_waits(prog.L)
    L = insert_nops(L)
    return '\n'.join((i.text if i.kind in ('label',) or i.text.startswith('.') else ' ' + i.text) for i in L) + '\n'

def spread(main, bundles, lo=0, hi=None):
    n = sum(1 for i in main.L if i.kind == 'mfma')
    if hi is None: hi = n
    nb = len(bundles)
    pos = {}
    for k, b in enumerate(bundles):
        q = lo + int((k + 0.5) * (hi - lo) / nb) if nb else 0
        pos.setdefault(min(max(q, 0), n - 1), []).append(b)
    out = Prog(); c = 0
    for ins in main.L:
        out.L.append(ins)
        if ins.kind == 'mfma':
            for b in pos.get(c, []): out.L += b.L
            c += 1
    return out
def singles(prog):
    r = []
    for i in prog.L:
        q = Prog(); q.L = [i]; r.append(q)
    return r
```

```python
import sys, struct
from gasm import Prog, finalize, merge, spread, singles
NAME = "concat_heads__linear_kernel_hedgehog__ssm_conv_s4d__prompt"
OPT = dict(a.split('=') for a in sys.argv[1:] if '=' in a)
def opt(k, d): return type(d)(OPT.get(k, d))
STAMP = opt('stamp', 0)
ROT = opt('rot', 1)
def f2u(x): return struct.unpack('<I', struct.pack('<f', x))[0]
def vr(a, n): return f"v[{a}:{a+n-1}]" if n > 1 else f"v{a}"
def ar(a, n): return f"a[{a}:{a+n-1}]" if n > 1 else f"a{a}"
def sr(a, n): return f"s[{a}:{a+n-1}]" if n > 1 else f"s{a}"
def magic(d): return (2**32 + d - 1) // d

WS_KVCNT = 0; WS_OCNT = 2048; WS_KV = 8192; WS_ZERO_END = WS_KV + 32 * 4096
WS_O = 262144; WS_STAMP = 4 << 20; WS_SIZE = 8 << 20
NSPARE = 48
NZERO_WG = (WS_ZERO_END + 4095) // 4096
P_X, P_W, P_PHI, P_WO, P_U, P_LA, P_AI, P_CR, P_CI, P_LDT, P_DS, P_OUT, P_DBG, P_WS = [8 + 2 * i for i in range(14)]
OOB = 0x80000000
SPIN = 400000

def srd(p, s, ptr, size, off=None):
    if off is None:
        p(f"s_mov_b32 s{s}, s{ptr}\n s_mov_b32 s{s+1}, s{ptr+1}")
    else:
        p(f"s_add_u32 s{s}, s{ptr}, {off}\n s_addc_u32 s{s+1}, s{ptr+1}, 0")
    p(f"s_mov_b32 s{s+2}, {size}\n s_mov_b32 s{s+3}, 0x20000")

nstamp = [0]
def stamp(p, sreg_base=96):
    if not STAMP: return
    k = nstamp[0]; nstamp[0] += 1
    if k == 0: p(f"s_memrealtime s[96:97]\n s_waitcnt lgkmcnt(0)\n v_writelane_b32 v255, s96, 62")
    p(f"s_memtime s[96:97]\n s_waitcnt lgkmcnt(0)\n v_writelane_b32 v255, s96, {k}")
def stamp_store(p, wsrd):
    if not STAMP: return
    p(f"s_waitcnt vmcnt(0)\n s_memtime s[96:97]\n s_waitcnt lgkmcnt(0)\n v_writelane_b32 v255, s96, 61\n s_memrealtime s[96:97]\n s_waitcnt lgkmcnt(0)\n v_writelane_b32 v255, s96, 63")
    p(f"""s_lshl_b32 s96, s2, 2
    s_add_u32 s96, s96, s68
    s_lshl_b32 s96, s96, 8
    s_add_u32 s96, s96, {WS_STAMP}
    v_and_b32 v254, 63, v0
    v_lshlrev_b32 v254, 2, v254
    buffer_store_dword v255, v254, {sr(wsrd,4)}, s96 offen""")

def poll(p, name, srdreg, soff, target, vt, va):
    p(f"s_mov_b32 s94, {SPIN}")
    p.waitall()
    p(f"{name}:")
    p(f"""buffer_load_dword v{vt}, v{va}, {sr(srdreg,4)}, {soff} offen sc1
    s_waitcnt vmcnt(0)
    v_readfirstlane_b32 s95, v{vt}
    s_sub_u32 s94, s94, 1
    s_cmp_eq_u32 s94, 0
    s_cbranch_scc1 {name}_x
    s_cmp_ge_u32 s95, {target}
    s_cbranch_scc1 {name}_x
    s_sleep 1
    s_branch {name}""")
    p(f"{name}_x:")

A_RING = 0; NSLOT = 16; GR = 5120
A_PHIK = NSLOT * GR; PHI_RS = 352
A_VFR = A_PHIK + 128 * PHI_RS
A_WPHI = A_VFR + 20480
A_END = A_WPHI + 4800
A_KVIMG = A_PHIK
S_X, S_W, S_WO, S_WS, S_OUT, S_DBG, S_PHI = 40, 44, 48, 52, 56, 60, 64
V_XO = 1; V_XD = 244; V_WD = 3; V_OD1 = 8; V_OD2 = 13; V_TK = 18; V_TV = 19; V_TKH = 20; V_TVH = 21
V_Z = 22; V_T = 23
V_WF = 32
V_KA = 112; V_VA = 152; V_PA = 192; V_X = 232

def mfma(p, d, a, b, c=None):
    p(f"v_mfma_f32_16x16x32_bf16 {d}, {a}, {b}, {d if c is None else c}")

def role_A():
    p = Prog(); nstamp[0] = 0
    p("roleA:")
    stamp(p)
    p("""s_and_b32 s72, s2, 7
    s_lshr_b32 s73, s2, 3
    s_lshr_b32 s69, s72, 1
    s_lshl_b32 s69, s69, 2
    s_lshr_b32 s74, s73, 2
    s_add_u32 s69, s69, s74
    s_and_b32 s70, s72, 1
    s_lshl_b32 s70, s70, 2
    s_and_b32 s75, s73, 3
    s_add_u32 s70, s70, s75
    s_add_u32 s71, s74, s75
    s_and_b32 s71, s71, 3""")
    p(f"s_mul_i32 s71, s71, {5 if ROT else 0}\n s_add_u32 s71, s71, {1 if ROT else 0}\n s_lshr_b32 s71, s71, 1")
    p(f"""v_and_b32 v{V_T}, 63, v0
    v_and_b32 v{V_T+1}, 15, v0
    v_bfe_u32 v{V_T+2}, v0, 4, 2
    v_mov_b32 v{V_Z}, 0""")
    t = V_T + 3
    p(f"""s_lshl_b32 s76, s68, 5
    v_lshrrev_b32 v{t}, 3, v{V_T}
    v_add_u32 v{t}, s76, v{t}
    v_mul_u32_u24 v{t}, 1280, v{t}
    v_and_b32 v{t+1}, 7, v0
    v_xor_b32 v{t+1}, v{t+1}, v{V_T+2}
    v_lshl_add_u32 v{V_XD}, v{t+1}, 4, v{t}
    v_xor_b32 v{V_XD+1}, 64, v{V_XD}
    v_add_u32 v{V_XD+1}, {8*1280}, v{V_XD+1}
    v_add_u32 v{V_XD+2}, {16*1280}, v{V_XD}
    v_add_u32 v{V_XD+3}, {16*1280}, v{V_XD+1}""")
    p(f"s_mov_b32 s77, {magic(10)}")
    def dma_offs(base, rowstride, kfun):
        for i in range(5):
            p(f"""v_add_u32 v{t}, {64*i}, v{V_T}
            v_mul_hi_u32 v{t+1}, v{t}, s77
            v_mul_u32_u24 v{t+2}, 10, v{t+1}
            v_sub_u32 v{t}, v{t}, v{t+2}""")
            p(f"""v_lshrrev_b32 v{t+2}, 4, v{t+1}
            v_bfe_u32 v{t+3}, v{t+1}, 2, 2
            v_and_b32 v{t+1}, 3, v{t+1}""")
            gm, hm = kfun
            p(f"""v_mad_u32_u24 v{t+1}, v{t+3}, {gm}, v{t+1}""")
            if hm <= 64: p(f"v_mad_u32_u24 v{t+1}, v{t+2}, {hm}, v{t+1}")
            else: p(f"v_mul_u32_u24 v{t+2}, {hm}, v{t+2}\n v_add_u32 v{t+1}, v{t+1}, v{t+2}")
            p(f"""v_mul_u32_u24 v{t+1}, {rowstride}, v{t+1}
            v_lshl_add_u32 v{base+i}, v{t}, 4, v{t+1}""")
    dma_offs(V_WD, 3840, (8, 4))
    p(f"""s_mov_b32 s80, s71
    s_lshr_b32 s81, s68, 1
    s_mul_i32 s81, s81, {32*3840}
    s_and_b32 s82, s68, 1
    s_add_u32 s82, s82, 1
    s_mul_i32 s82, s82, 1280
    s_add_u32 s82, s82, s81
    s_mul_i32 s83, s70, 160
    s_add_u32 s82, s82, s83
    s_mul_i32 s84, s68, {GR}
    s_lshl_b32 s87, s68, 14
    s_add_u32 s87, s87, {A_PHIK}
    s_mul_i32 s78, s69, {128*1280}""")
    srd(p, S_X, P_X, 128 * 1280, 's78')
    srd(p, S_W, P_W, 640 * 3840)
    def issue_group(G):
        B = []; slotbase = A_RING + (G % 4) * 4 * GR
        h = Prog()
        if G < 10:
            h(f"s_mul_i32 s86, s80, {64*3840}\n s_add_u32 s86, s86, s82\n s_lshl_b32 s93, s80, 7")
            h(f"s_add_u32 s80, s80, 1\n s_cmp_eq_u32 s80, 10\n s_cselect_b32 s80, 0, s80")
            vo, sd = V_WD, S_W
        elif G < 15:
            h(f"""s_lshl_b32 s86, s71, 1
            s_add_u32 s86, s86, s68
            s_add_u32 s86, s86, {4*(G-10)}
            s_sub_u32 s85, s86, 20
            s_cmp_ge_u32 s86, 20
            s_cselect_b32 s86, s85, s86
            s_mul_i32 s86, s86, {32*3840}
            s_add_u32 s86, s86, s83""")
            vo, sd = V_WD, S_W
        elif G < 19:
            h(f"s_add_u32 s86, s79, {(G-15)*160*1280}")
            vo, sd = V_OD1, S_WO
        else:
            h(f"""s_mul_i32 s86, s68, {160*1280}
            s_add_u32 s86, s86, s83
            s_add_u32 s86, s86, {16*1280}""")
            vo, sd = V_OD2, S_WO
        items = []
        if G < 10: items += [('x', r) for r in range(4)]
        items += [('w', i) for i in range(5)]
        if G < 10: items = [items[k] for k in (4, 0, 5, 1, 6, 2, 7, 3, 8)]
        def m0(it):
            return f"s_add_u32 m0, s87, {(G%4)*4096 + 1024*it[1]}" if it[0] == 'x' else f"s_add_u32 m0, s84, {slotbase + 1024*it[1]}"
        h(m0(items[0])); B.append(h)
        for k, it in enumerate(items):
            q = Prog()
            if it[0] == 'x': q(f"buffer_load_dwordx4 v{V_XD+it[1]}, {sr(S_X,4)}, s93 offen lds", tag=('dma', G))
            else: q(f"buffer_load_dwordx4 v{vo+it[1]}, {sr(sd,4)}, s86 offen lds", tag=('dma', G))
            if k + 1 < len(items): q(m0(items[k + 1]))
            B.append(q)
        return B
    for G in range(4):
        for b in issue_group(G): p.extend(b)
    stamp(p)
    srd(p, S_WO, P_WO, 640 * 1280)
    srd(p, S_WS, P_WS, WS_SIZE)
    p(f"s_mul_i32 s78, s69, {128*2560}\n s_add_u32 s78, s78, s83")
    srd(p, S_OUT, P_OUT, 0, 's78')
    p(f"s_sub_u32 s{S_OUT+2}, {2048*2560}, s78")
    srd(p, S_DBG, P_DBG, 256)
    p("s_mul_i32 s78, s70, 3200")
    srd(p, S_PHI, P_PHI, 3200, 's78')
    p(f"""s_lshr_b32 s79, s68, 1
    s_mul_i32 s79, s79, {80*1280}
    s_and_b32 s85, s68, 1
    s_mul_i32 s85, s85, {8*1280}
    s_add_u32 s79, s79, s85
    s_add_u32 s79, s79, s83""")
    p(f"""v_lshlrev_b32 v{t}, 4, v0
    buffer_load_dwordx4 {vr(V_X,4)}, v{t}, {sr(S_PHI,4)}, 0 offen
    s_mov_b32 s78, {magic(50)}
    v_mul_hi_u32 v{t+1}, v0, s78
    v_mul_u32_u24 v{t+1}, 160, v{t+1}
    v_add_u32 v{t}, v{t}, v{t+1}
    v_add_u32 v{t}, {A_WPHI}, v{t}
    v_mov_b32 v{t+1}, {A_END}
    v_cmp_gt_u32 vcc, 200, v0
    v_cndmask_b32 v{V_X+8}, v{t+1}, v{t}, vcc""")
    p(f"""v_mul_hi_u32 v{t}, v0, s77
    v_mul_u32_u24 v{t}, 800, v{t}
    v_lshl_add_u32 v{t}, v0, 4, v{t}
    v_add_u32 v{t}, {A_WPHI+800}, v{t}
    v_lshlrev_b32 v{t+2}, 4, v0
    v_add_u32 v{t+2}, {A_WPHI+3840-640}, v{t+2}
    v_cmp_gt_u32 vcc, 40, v0
    v_cndmask_b32 v{t}, v{t+2}, v{t}, vcc
    v_cmp_gt_u32 vcc, 100, v0
    v_cndmask_b32 v{t}, v{t+1}, v{t}, vcc
    v_mov_b32 v{V_X+4}, 0
    v_mov_b32 v{V_X+5}, 0
    v_mov_b32 v{V_X+6}, 0
    v_mov_b32 v{V_X+7}, 0
    ds_write_b128 v{t}, {vr(V_X+4,4)}""")
    p(f"""v_bfe_u32 v{t}, v0, 2, 4
    v_mul_u32_u24 v{t}, 160, v{t}
    v_and_b32 v{t+1}, 3, v0
    v_mad_u32_u24 v{V_TK}, v{t+1}, 40, v{t}
    v_lshl_add_u32 v{V_TV}, v{t+1}, 3, v{t}
    v_add_u32 v{V_TKH}, {8*GR}, v{V_TK}
    v_add_u32 v{V_TVH}, {8*GR}, v{V_TV}
    v_lshrrev_b32 v{t}, 1, v{V_T+1}
    v_xor_b32 v{t}, v{t}, v{V_T+2}
    v_lshlrev_b32 v{t}, 4, v{t}
    v_lshl_add_u32 v{t}, v{V_T+1}, 7, v{t}
    v_add_u32 v{V_XO}, s87, v{t}
    v_xor_b32 v{V_XO+1}, 64, v{V_XO}""")
    dma_offs(V_OD1, 1280, (20, 4))
    dma_offs(V_OD2, 1280, (20, 80))
    p(f"""v_bfe_u32 v{t}, v0, 2, 2
    v_mul_u32_u24 v{t}, 40, v{t}
    v_mul_u32_u24 v{t+1}, 960, v{V_T+2}
    v_add3_u32 v{t}, v{t}, v{t+1}, v{V_Z}
    v_add_u32 v{t}, {A_WPHI}, v{t}
    v_and_b32 v{t+1}, 3, v0
    v_mov_b32 v{t+2}, {A_WPHI+3840}
    v_cmp_eq_u32 vcc, v{t+1}, v{V_T+2}
    v_cndmask_b32 v{V_X+9}, v{t+2}, v{t}, vcc""")
    stamp(p)

    def rd_frag(p, dst, slot, kind, t):
        if kind == 'v' and t < 4: base, off = V_TV, 40 * t
        else: base, off = V_TK, 8 * t
        so = slot * GR
        if slot >= 8: base += 2; so -= 8 * GR
        for h in range(2):
            p(f"ds_read_b64_tr_b16 {vr(dst+2*h,2)}, v{base} offset:{so + off + 2560*h}")
    def sync_group(p, G):
        p.waitvm(('dma', G)); p("s_waitcnt lgkmcnt(0)\n s_barrier")
        return issue_group(G + 3) if 1 <= G and G + 3 < 20 else []

    sync_group(p, 0)
    stamp(p)
    def kv_reads(j):
        q = Prog(); fb = V_WF + (j % 2) * 40
        for st in range(2):
            q(f"ds_read_b128 {ar((st*20+j)*4,4)}, v{V_XO+(j%2)} offset:{((j//2)%4)*4096 + st*2048}")
        for tt in range(5):
            rd_frag(q, fb + 4 * tt, (2 * j) % NSLOT, 'k', tt)
            rd_frag(q, fb + 20 + 4 * tt, (2 * j + 1) % NSLOT, 'v', tt)
        return q
    p.extend(kv_reads(0))
    pend = []
    for j in range(20):
        m = Prog(); fb = V_WF + (j % 2) * 40
        for tt in range(5):
            for st in range(2):
                xf = ar((st * 20 + j) * 4, 4)
                mfma(m, vr(V_KA + st * 20 + 4 * tt, 4), vr(fb + 4 * tt, 4), xf, '0' if j == 0 else None)
            for st in range(2):
                xf = ar((st * 20 + j) * 4, 4)
                mfma(m, vr(V_VA + st * 20 + 4 * tt, 4), xf, vr(fb + 20 + 4 * tt, 4), '0' if j == 0 else None)
        side = Prog()
        if j % 2 == 1: pend = sync_group(p, (j + 1) // 2)
        if j == 5: p(f"ds_write_b128 v{V_X+8}, {vr(V_X,4)}")
        if j + 1 < 20: side.extend(kv_reads(j + 1))
        if 8 <= j < 13:
            tt = j - 8
            for ka in range(3):
                for h in range(2):
                    side(f"ds_read_b64_tr_b16 {ar(160 + (tt*3+ka)*4 + 2*h, 2)}, v{V_X+9} offset:{(8*ka+4*h)*40 + 8*tt}")
        m = spread(m, singles(side), 0, 18)
        if j % 2 == 1 and j < 19: now, pend = pend[:(len(pend) + 1) // 2], pend[(len(pend) + 1) // 2:]
        else: now, pend = pend, []
        p.extend(spread(m, now))
    stamp(p)
    L2E = 1.4426950408889634
    p(f"s_mov_b32 s88, {f2u(L2E):#x}\n s_mov_b32 s89, {f2u(L2E):#x}")

    def phi_step(p, acc, out):
        B = V_WF
        for st in range(2):
            for q in range(10):
                p(f"v_cvt_pk_bf16_f32 v{B+st*12+q}, v{acc+st*20+2*q}, v{acc+st*20+2*q+1}")
            p(f"v_mov_b32 v{B+st*12+10}, 0\n v_mov_b32 v{B+st*12+11}, 0")
        for st in range(2):
            for ka in range(3):
                for tt in range(5):
                    mfma(p, vr(V_PA + st * 20 + 4 * tt, 4), ar(160 + (tt * 3 + ka) * 4, 4), vr(B + st * 12 + 4 * ka, 4), '0' if ka == 0 else None)
        E = V_WF + 24
        M = V_WF + 64
        for st in range(2):
            x = V_PA + st * 20
            p(f"v_max3_f32 v{M}, v{x}, v{x+1}, v{x+2}\n v_min3_f32 v{M+2}, v{x}, v{x+1}, v{x+2}")
            for q in range(3, 19, 2):
                p(f"v_max3_f32 v{M}, v{M}, v{x+q}, v{x+q+1}\n v_min3_f32 v{M+2}, v{M+2}, v{x+q}, v{x+q+1}")
            p(f"v_max_f32 v{M}, v{M}, v{x+19}\n v_min_f32 v{M+2}, v{M+2}, v{x+19}")
            p(f"v_mul_f32 v{M}, s88, v{M}\n v_mul_f32 v{M+2}, s88, v{M+2}")
            for q in range(10):
                p(f"v_pk_fma_f32 {vr(E+2*q,2)}, {vr(x+2*q,2)}, s[88:89], {vr(M,2)} op_sel_hi:[1,1,0] neg_lo:[0,0,1] neg_hi:[0,0,1]")
                p(f"v_pk_fma_f32 {vr(E+20+2*q,2)}, {vr(x+2*q,2)}, s[88:89], {vr(M+2,2)} op_sel_hi:[1,1,0] neg_lo:[1,0,0] neg_hi:[1,0,0]")
            for q in range(40): p(f"v_exp_f32 v{E+q}, v{E+q}")
            for hh in range(2):
                S = M + 4 + 2 * hh; e = E + 20 * hh
                p(f"v_pk_add_f32 {vr(S,2)}, {vr(e,2)}, {vr(e+2,2)}")
                for q in range(2, 10): p(f"v_pk_add_f32 {vr(S,2)}, {vr(S,2)}, {vr(e+2*q,2)}")
                p(f"v_add_f32 v{S}, v{S}, v{S+1}")
            p(f"v_rcp_f32 v{M+4}, v{M+4}\n v_rcp_f32 v{M+6}, v{M+6}")
            for hh in range(2):
                for q in range(10):
                    e = E + 20 * hh + 2 * q
                    p(f"v_pk_mul_f32 {vr(e,2)}, {vr(e,2)}, {vr(M+4+2*hh,2)} op_sel_hi:[1,0]")
            for q in range(20):
                p(f"v_cvt_pk_bf16_f32 v{out+st*20+q}, v{E+2*q}, v{E+2*q+1}")

    t = V_T + 3
    p(f"""s_mul_i32 s78, s68, 5120
    v_lshlrev_b32 v{t}, 4, v{V_T}
    v_add_u32 v{t}, s78, v{t}""")
    for tt in range(5):
        d = V_X + 4 * (tt % 2)
        for st in range(2):
            a = V_VA + st * 20 + 4 * tt
            p(f"v_cvt_pk_bf16_f32 v{d+2*st}, v{a}, v{a+1}\n v_cvt_pk_bf16_f32 v{d+2*st+1}, v{a+2}, v{a+3}")
        if tt == 0: p(f"v_add_u32 v{t}, {A_VFR}, v{t}")
        p(f"ds_write_b128 v{t}, {vr(d,4)} offset:{1024*tt}")
    phi_step(p, V_KA, V_VA)
    stamp(p)
    p(f"""s_lshl_b32 s78, s68, 5
    v_add_u32 v{t}, s78, v{V_T+1}
    v_mul_u32_u24 v{t}, {PHI_RS}, v{t}
    v_mul_u32_u24 v{t+1}, 80, v{V_T+2}
    v_add_u32 v{t}, v{t}, v{t+1}
    v_add_u32 v{t}, {A_PHIK}, v{t}""")
    for st in range(2):
        for q in range(5):
            p(f"ds_write_b128 v{t}, {vr(V_VA+st*20+4*q,4)} offset:{st*16*PHI_RS + 16*q}")
    poll(p, "a_pz", S_DBG, 0, NZERO_WG, V_X, V_Z)
    p("s_waitcnt lgkmcnt(0)\n s_barrier")
    p(f"""v_bfe_u32 v{t}, v0, 2, 4
    v_mul_u32_u24 v{t}, {PHI_RS}, v{t}
    v_and_b32 v{t+1}, 3, v0
    v_lshl_add_u32 v{t}, v{t+1}, 3, v{t}
    s_mul_i32 s78, s68, 80
    s_add_u32 s78, s78, {A_PHIK}
    v_add_u32 v{t}, s78, v{t}
    s_lshl_b32 s78, s68, 10
    s_add_u32 s78, s78, {A_VFR}
    v_lshlrev_b32 v{t+1}, 4, v{V_T}
    v_add_u32 v{t+2}, {A_VFR+4096}, v{t+1}
    v_add_u32 v{t+1}, s78, v{t+1}
    v_bfe_u32 v{t+3}, v0, 2, 2
    v_cmp_eq_u32 s[90:91], s68, v{t+3}
    v_mov_b32 v{t+3}, 0x3f803f80""")
    F = V_WF
    for sw in range(4):
        fb = F + sw * 20
        p(f"ds_read_b128 {vr(fb,4)}, v{t+1} offset:{sw*5120}\n ds_read_b128 {vr(fb+4,4)}, v{t+2} offset:{sw*5120}")
        for nf in range(3):
            for h in range(2):
                p(f"ds_read_b64_tr_b16 {vr(fb+8+4*nf+2*h,2)}, v{t} offset:{sw*32*PHI_RS + h*16*PHI_RS + 32*nf}")
    D = V_PA
    for sw in range(4):
        fb = F + sw * 20
        for q in range(4): p(f"v_cndmask_b32 v{fb+4+q}, v{t+3}, v{fb+4+q}, s[90:91]")
        for md in range(2):
            for nf in range(3):
                mfma(p, vr(D + (md * 3 + nf) * 4, 4), vr(fb + 4 * md, 4), vr(fb + 8 + 4 * nf, 4), '0' if sw == 0 else None)
    a0 = V_X
    p(f"""v_lshlrev_b32 v{t}, 2, v{V_T+1}
    v_mul_u32_u24 v{t+1}, 768, v{V_T+2}
    v_add_u32 v{a0}, v{t}, v{t+1}
    v_mov_b32 v{t+2}, {OOB:#x}
    v_cmp_gt_u32 s[90:91], 8, v{V_T+1}
    v_cndmask_b32 v{a0+1}, v{t+2}, v{a0}, s[90:91]
    v_add_u32 v{t+1}, {16*192}, v{t}
    v_cmp_eq_u32 vcc, s68, v{V_T+2}
    v_cndmask_b32 v{a0+2}, v{t+2}, v{t+1}, vcc
    v_cndmask_b32 v{a0+3}, v{t+2}, v{a0+2}, s[90:91]
    s_add_u32 s78, s68, 1
    s_and_b32 s78, s78, 3
    v_add_u32 v{t+1}, {20*192}, v{t}
    v_cmp_eq_u32 vcc, s78, v{V_T+2}
    v_cndmask_b32 v{a0+4}, v{a0+2}, v{t+1}, vcc
    v_cndmask_b32 v{a0+5}, v{t+2}, v{a0+4}, s[90:91]
    s_lshl_b32 s78, s70, 2
    s_add_u32 s78, s78, s68
    s_lshl_b32 s78, s78, 12
    s_add_u32 s78, s78, {WS_KV}""")
    for md in range(2):
        for nf in range(3):
            for i in range(4):
                vo = (a0 if md == 0 else (a0 + 4 if i == 0 else a0 + 2)) + (1 if nf == 2 else 0)
                p(f"buffer_atomic_add_f32 v{D+(md*3+nf)*4+i}, v{vo}, {sr(S_WS,4)}, s78 offen offset:{i*192+nf*64}", tag='kvat')
    stamp(p)

    def gemm80(p, g0, acc):
        def reads(j):
            q = Prog(); fb = V_WF + (j % 2) * 20
            for tt in range(5): rd_frag(q, fb + 4 * tt, (4 * g0 + j) % NSLOT, 'k', tt)
            return q
        p.extend(reads(0))
        pend = []
        for j in range(20):
            m = Prog(); fb = V_WF + (j % 2) * 20
            for tt in range(5):
                for st in range(2):
                    mfma(m, vr(acc + st * 20 + 4 * tt, 4), vr(fb + 4 * tt, 4), ar((st * 20 + j) * 4, 4), '0' if j == 0 else None)
            if j % 4 == 3 and g0 + (j + 1) // 4 < 20: pend = sync_group(p, g0 + (j + 1) // 4)
            if j + 1 < 20: m = spread(m, singles(reads(j + 1)), 0, 9)
            k = len(pend) if j == 19 else min(2, len(pend))
            now, pend = pend[:k], pend[k:]
            p.extend(spread(m, now))

    def kv_signal(p):
        p(f"""s_lshl_b32 s78, s70, 8
        v_mov_b32 v{V_X+6}, 1
        v_mov_b32 v{V_X+7}, {OOB:#x}
        v_cmp_eq_u32 vcc, 0, v0
        v_cndmask_b32 v{V_X+7}, v{V_X+7}, v{V_Z}, vcc
        buffer_atomic_add v{V_X+6}, v{V_X+7}, {sr(S_WS,4)}, s78 offen sc1""")
    KS = opt('ks', 12)
    orig_sync = sync_group
    def sync_group(p, G):
        if G == KS: p.waitvm('kvat')
        r = orig_sync(p, G)
        if G == KS: kv_signal(p)
        return r
    gemm80(p, 10, V_KA)
    stamp(p)
    phi_step(p, V_KA, V_VA)
    stamp(p)
    p(f"s_mov_b32 s78, {magic(105)}\n s_mov_b32 s76, {magic(5)}")
    for r in range(2):
        ga, la = V_X + 2 * r, V_X + 2 * r + 1
        p(f"""v_add_u32 v{t}, {256*r}, v0
        v_mul_hi_u32 v{t+1}, v{t}, s78
        v_mul_u32_u24 v{t+2}, 105, v{t+1}
        v_sub_u32 v{t+2}, v{t}, v{t+2}
        v_mul_hi_u32 v{t+3}, v{t+2}, s76
        v_mul_u32_u24 v{t+4}, 5, v{t+3}
        v_sub_u32 v{t+2}, v{t+2}, v{t+4}
        v_lshlrev_b32 v{ga}, 12, v{t+1}
        v_mul_u32_u24 v{t+4}, 192, v{t+3}
        v_add_u32 v{ga}, v{ga}, v{t+4}
        v_lshl_add_u32 v{ga}, v{t+2}, 5, v{ga}
        v_mul_u32_u24 v{la}, 1920, v{t+1}
        v_mul_u32_u24 v{t+4}, 80, v{t+3}
        v_add_u32 v{la}, v{la}, v{t+4}
        v_lshl_add_u32 v{la}, v{t+2}, 4, v{la}
        v_add_u32 v{la}, {A_KVIMG}, v{la}""")
        if r == 1:
            p(f"""v_cmp_gt_u32 vcc, 420, v{t}
            v_mov_b32 v{t+1}, {OOB:#x}
            v_mov_b32 v{t+2}, {A_KVIMG+9600}
            v_cndmask_b32 v{ga}, v{t+1}, v{ga}, vcc
            v_cndmask_b32 v{la}, v{t+2}, v{la}, vcc""")
    p(f"""v_lshlrev_b32 v{t}, 4, v0
    v_add_u32 v{t}, {A_KVIMG+7680}, v{t}
    v_mov_b32 v{t+2}, {A_KVIMG+9600}
    v_cmp_gt_u32 vcc, 120, v0
    v_cndmask_b32 v{t}, v{t+2}, v{t}, vcc
    v_mov_b32 v{V_X+4}, 0
    v_mov_b32 v{V_X+5}, 0
    v_mov_b32 v{V_X+6}, 0
    v_mov_b32 v{V_X+7}, 0
    ds_write_b128 v{t}, {vr(V_X+4,4)}
    s_lshl_b32 s78, s70, 8""")
    poll(p, "a_pk", S_WS, 's78', 16, V_X + 8, V_Z)
    stamp(p)
    p(f"s_lshl_b32 s78, s70, 14\n s_add_u32 s78, s78, {WS_KV}")
    for r in range(2):
        for h in range(2):
            p(f"buffer_load_dwordx4 {vr(F+8*r+4*h,4)}, v{V_X+2*r}, {sr(S_WS,4)}, s78 offen offset:{16*h} sc1")
    p(f"""v_and_b32 v{t}, 3, v0
    v_mul_u32_u24 v{t}, 80, v{t}
    v_mul_u32_u24 v{t+1}, 1920, v{V_T+2}
    v_add_u32 v{t}, v{t}, v{t+1}
    v_add_u32 v{t}, {A_KVIMG}, v{t}
    v_mov_b32 v{t+1}, {A_KVIMG+7680}
    v_bfe_u32 v{t+2}, v0, 2, 2
    v_cmp_eq_u32 vcc, v{t+2}, v{V_T+2}
    v_cndmask_b32 v{t}, v{t+1}, v{t}, vcc""")
    for r in range(2):
        for q in range(4): p(f"v_cvt_pk_bf16_f32 v{F+16+4*r+q}, v{F+8*r+2*q}, v{F+8*r+2*q+1}")
        p(f"ds_write_b128 v{V_X+2*r+1}, {vr(F+16+4*r,4)}")
    p("s_waitcnt lgkmcnt(0)\n s_barrier")
    stamp(p)
    def oreg(st, tt): return V_PA + st * 20 + 4 * tt if tt < 5 else V_KA + 4 * st
    rd = Prog(); mm = Prog()
    order = [(tt, ka) for tt in (5, 0, 1, 2, 3, 4) for ka in range(5)]
    NB = 10
    for n, (tt, ka) in enumerate(order[:NB]):
        p(f"ds_read_b128 {vr(F+4*(n%NB),4)}, v{t} offset:{tt*320+16*ka}")
    for n, (tt, ka) in enumerate(order):
        for st in range(2):
            mfma(p, vr(oreg(st, tt), 4), vr(F + 4 * (n % NB), 4), vr(V_VA + st * 20 + 4 * ka, 4), '0' if ka == 0 else None)
        if n + NB < len(order):
            t2, k2 = order[n + NB]
            p(f"ds_read_b128 {vr(F+4*(n%NB),4)}, v{t} offset:{t2*320+16*k2}")
    p(f"s_mov_b32 s78, {f2u(1e-6):#x}")
    for st in range(2):
        p(f"v_add_f32 v{V_KA+4*st}, s78, v{V_KA+4*st}\n v_rcp_f32 v{V_KA+4*st}, v{V_KA+4*st}")
    p(f"""s_lshl_b32 s78, s69, 2
    s_add_u32 s78, s78, s68
    s_mul_i32 s78, s78, 40960
    s_add_u32 s92, s78, {WS_O}
    s_mul_i32 s76, s70, 2560
    s_add_u32 s78, s92, s76
    v_lshlrev_b32 v{t}, 4, v{V_T}
    v_add_u32 v{t+1}, 20480, v{t}
    v_lshlrev_b32 v{t+2}, 3, v{V_T}
    v_add_u32 v{t+3}, 20480, v{t+2}""")
    for st in range(2):
        x = V_PA + st * 20; o = F + 12 * st
        for q in range(10):
            p(f"v_pk_mul_f32 {vr(x+2*q,2)}, {vr(x+2*q,2)}, {vr(V_KA+4*st,2)} op_sel_hi:[1,0]")
        for q in range(10): p(f"v_cvt_pk_bf16_f32 v{o+q}, v{x+2*q}, v{x+2*q+1}")
        p(f"""buffer_store_dwordx4 {vr(o,4)}, v{t+st}, {sr(S_WS,4)}, s78 offen sc1
        buffer_store_dwordx4 {vr(o+4,4)}, v{t+st}, {sr(S_WS,4)}, s78 offen offset:1024 sc1
        buffer_store_dwordx2 {vr(o+8,2)}, v{t+2+st}, {sr(S_WS,4)}, s78 offen offset:2048 sc1""")
    stamp(p)
    p(f"""s_waitcnt vmcnt(0)
    s_barrier
    s_lshl_b32 s78, s69, 8
    s_add_u32 s78, s78, {WS_OCNT}
    v_mov_b32 v{V_X+6}, 1
    v_mov_b32 v{V_X+7}, {OOB:#x}
    v_cmp_eq_u32 vcc, 0, v0
    v_cndmask_b32 v{V_X+7}, v{V_X+7}, v{V_Z}, vcc
    buffer_atomic_add v{V_X+6}, v{V_X+7}, {sr(S_WS,4)}, s78 offen sc1""")
    stamp(p)
    poll(p, "a_po", S_WS, 's78', 8, V_X + 8, V_Z)
    stamp(p)
    for hq in range(8):
        for pp in range(2):
            for st in range(2):
                p(f"buffer_load_dwordx4 {ar((st*20+2*hq+pp)*4,4)}, v{t+st}, {sr(S_WS,4)}, s92 offen offset:{1024*pp} sc1")
        p("s_add_u32 s92, s92, 2560")
    p("s_sub_u32 s92, s92, 20480")
    for hq in range(8):
        for st in range(2):
            p(f"buffer_load_dwordx2 {ar((st*20+16+hq//2)*4+2*(hq%2),2)}, v{t+2+st}, {sr(S_WS,4)}, s92 offen offset:2048 sc1")
        p("s_add_u32 s92, s92, 2560")
    gemm80(p, 15, V_KA)
    stamp(p)
    p(f"""s_lshl_b32 s78, s68, 5
    v_add_u32 v{t}, s78, v{V_T+1}
    v_mul_u32_u24 v{t}, 2560, v{t}
    v_mad_u32_u24 v{t}, v{V_T+2}, 40, v{t}
    v_add_u32 v{t+1}, {16*2560}, v{t}""")
    for st in range(2):
        x = V_KA + st * 20; o = F + 12 * st
        for q in range(10): p(f"v_cvt_pk_bf16_f32 v{o+q}, v{x+2*q}, v{x+2*q+1}")
        p(f"""buffer_store_dwordx4 {vr(o,4)}, v{t+st}, {sr(S_OUT,4)}, 0 offen
        buffer_store_dwordx4 {vr(o+4,4)}, v{t+st}, {sr(S_OUT,4)}, 0 offen offset:16
        buffer_store_dwordx2 {vr(o+8,2)}, v{t+st}, {sr(S_OUT,4)}, 0 offen offset:32""")
    stamp(p)
    stamp_store(p, S_WS)
    p("s_endpgm")
    return p

CP = 4168; YP = 4160; SRS = 544
B_RAW = 0
B_UC = 33280
B_KR = B_UC + 16 * CP
B_SC = B_KR + 4 * 4608
B_END = B_SC + 4 * 16 * SRS
def role_B():
    p = Prog(); nstamp[0] = 0
    S_U, S_LA, S_AI, S_CR, S_CI, S_LDT, S_DS, S_O, S_WSB = 40, 44, 48, 52, 56, 60, 64, 72, 76
    p("roleB:")
    stamp(p)
    p("""s_and_b32 s69, s2, 7
    s_mul_i32 s69, s69, 10
    s_lshr_b32 s70, s2, 3
    s_sub_u32 s70, s70, 16
    s_add_u32 s69, s69, s70""")
    LN, L15, G, Z = 1, 2, 3, 4
    p(f"""v_and_b32 v{LN}, 63, v0
    v_and_b32 v{L15}, 15, v0
    v_bfe_u32 v{G}, v0, 4, 2
    v_mov_b32 v{Z}, 0
    v_lshlrev_b32 v5, 2, v{LN}
    s_waitcnt lgkmcnt(0)""")
    for s_, ptr, size in ((S_LA, P_LA, 640*256), (S_AI, P_AI, 640*256), (S_CR, P_CR, 640*256), (S_CI, P_CI, 640*256), (S_LDT, P_LDT, 1280), (S_DS, P_DS, 1280)):
        srd(p, s_, ptr, size)
    PR = 8
    p(f"s_lshl_b32 s71, s69, 3\n s_add_u32 s71, s71, s68")
    for c2 in range(2):
        p(f"""s_add_u32 s80, s71, {4*c2}
        s_lshl_b32 s81, s80, 8
        s_lshl_b32 s80, s80, 1""")
        for k, s_ in enumerate((S_LA, S_AI, S_CR, S_CI)):
            p(f"buffer_load_dword v{PR+6*c2+k}, v5, {sr(s_,4)}, s81 offen")
        p(f"buffer_load_ushort v{PR+6*c2+4}, v{Z}, {sr(S_LDT,4)}, s80 offen")
        p(f"buffer_load_ushort v{PR+6*c2+5}, v{Z}, {sr(S_DS,4)}, s80 offen")
    p("s_lshl_b32 s80, s69, 4")
    srd(p, S_U, P_U, 0, 's80')
    p(f"""s_sub_u32 s{S_U+2}, {2048*1280}, s80
    v_mul_u32_u24 v6, 1280, v{LN}
    s_mul_i32 s80, s70, 3
    s_lshl_b32 s81, s68, 3
    s_add_u32 s80, s80, s81""")
    for i in range(8):
        p(f"""s_add_u32 s81, s80, {i}
        s_and_b32 s81, s81, 31
        s_mul_i32 s82, s81, {64*1280}
        s_lshl_b32 s81, s81, 10
        s_add_u32 m0, s81, {B_RAW+256}""")
        p(f"buffer_load_dwordx4 v6, {sr(S_U,4)}, s82 offen lds", tag='raw')
    stamp(p)
    p(f"s_lshl_b32 s80, s69, 4\n s_add_u32 s80, s80, 1280")
    srd(p, S_O, P_OUT, 0, 's80')
    p(f"s_sub_u32 s{S_O+2}, {2048*2560}, s80")
    srd(p, S_WSB, P_WS, WS_SIZE)
    T = 24
    p(f"""v_mov_b32 v20, 0
    v_mov_b32 v21, 0
    v_mov_b32 v22, 0
    v_mov_b32 v23, 0
    v_lshlrev_b32 v{T}, 4, v{L15}
    ds_write_b128 v{T}, v[20:23] offset:{B_RAW}
    s_mul_i32 s83, s68, 4608
    s_add_u32 s83, s83, {B_KR}
    s_mul_i32 s84, s68, {16*SRS}
    s_add_u32 s84, s84, {B_SC}
    v_and_b32 v{T}, 31, v0
    v_lshlrev_b32 v{T}, 4, v{T}
    v_add_u32 v{T}, s83, v{T}
    ds_write_b128 v{T}, v[20:23] offset:4096""")
    A_SW, A_SR, A_T0, A_T1, A_T1b, A_T2, A_X3, A_X2, A_X1, A_X0, A_KW, A_KW32, A_KB, MSK = range(24, 38)
    t = 40
    p(f"""v_lshl_add_u32 v{A_SW}, v{LN}, 3, v{Z}
    v_add_u32 v{A_SW}, s84, v{A_SW}
    v_mul_u32_u24 v{A_SR}, {SRS}, v{L15}
    v_lshl_add_u32 v{A_SR}, v{G}, 4, v{A_SR}
    v_add_u32 v{A_SR}, s84, v{A_SR}
    v_lshrrev_b32 v{t}, 1, v{G}
    v_and_b32 v{t+1}, 1, v{G}
    v_lshlrev_b32 v{A_T0}, 9, v{t}
    v_lshl_add_u32 v{A_T0}, v{t+1}, 4, v{A_T0}
    v_lshl_add_u32 v{A_T0}, v{L15}, 5, v{A_T0}
    v_add_u32 v{A_T0}, s84, v{A_T0}
    v_lshlrev_b32 v{t+2}, 4, v{L15}
    v_lshlrev_b32 v{t+3}, 3, v{L15}
    v_cmp_gt_u32 vcc, 2, v{G}
    v_cndmask_b32 v{t+2}, v{t+3}, v{t+2}, vcc
    v_lshl_add_u32 v{A_T1}, v{G}, 8, v{t+2}
    v_add_u32 v{A_T1}, s84, v{A_T1}
    v_mov_b32 v{t+2}, 128
    v_cndmask_b32 v{t+2}, v{t+2}, 8, vcc""".replace(f"v_cndmask_b32 v{t+2}, v{t+2}, 8, vcc", f"v_mov_b32 v{t+3}, 8\n v_cndmask_b32 v{t+2}, v{t+2}, v{t+3}, vcc"))
    p(f"""v_add_u32 v{A_T1b}, v{A_T1}, v{t+2}
    v_lshlrev_b32 v{A_T2}, 8, v{G}
    v_lshl_add_u32 v{A_T2}, v{L15}, 2, v{A_T2}
    v_add_u32 v{A_T2}, s84, v{A_T2}
    v_lshl_add_u32 v{A_X3}, v{LN}, 2, v{Z}
    v_add_u32 v{A_X3}, s84, v{A_X3}
    v_lshl_add_u32 v{A_X2}, v{LN}, 3, v{Z}
    v_add_u32 v{A_X2}, s84, v{A_X2}
    v_and_b32 v{t}, 31, v0
    v_lshlrev_b32 v{A_X1}, 4, v{t}
    v_add_u32 v{A_X1}, s84, v{A_X1}
    v_lshlrev_b32 v{A_X0}, 5, v{t}
    v_add_u32 v{A_X0}, s84, v{A_X0}
    v_lshlrev_b32 v{t+1}, 4, v{LN}
    v_sub_u32 v{A_KW}, s83, v{t+1}
    v_add_u32 v{A_KW}, 1008, v{A_KW}
    v_lshlrev_b32 v{t+1}, 4, v{t}
    v_sub_u32 v{A_KW32}, s83, v{t+1}
    v_add_u32 v{A_KW32}, 496, v{A_KW32}
    v_lshlrev_b32 v{t+1}, 5, v{L15}
    v_sub_u32 v{A_KB}, s83, v{t+1}
    v_lshl_add_u32 v{A_KB}, v{G}, 4, v{A_KB}
    v_add_u32 v{A_KB}, 480, v{A_KB}
    v_and_b32 v{t}, 1, v0
    v_mov_b32 v{t+1}, 0xffff
    v_mov_b32 v{t+2}, -1
    v_cmp_eq_u32 vcc, 1, v{t}
    v_cndmask_b32 v{MSK}, v{t+1}, v{t+2}, vcc
    s_mov_b32 s85, 0xffff
    s_mov_b32 s86, {f2u(1.4426950408889634):#x}
    s_mov_b32 s87, 0x32a57060
    s_mov_b32 s88, {f2u(0.6931471805599453):#x}
    s_mov_b32 s89, 0xffff0000""")

    def exp_bf16(p, d, x, t):
        p(f"""v_mul_f32 v{t}, s86, v{x}
        v_fma_f32 v{t+1}, v{x}, s86, -v{t}
        v_fma_f32 v{t+1}, v{x}, s87, v{t+1}
        v_exp_f32 v{t}, v{t}
        v_mul_f32 v{t+1}, s88, v{t+1}
        v_fma_f32 v{t}, v{t}, v{t+1}, v{t}
        v_cvt_pk_bf16_f32 v{t}, v{t}, v{t}
        v_and_b32 v{d}, s89, v{t}""")
    def cmul(p, c, a, b):
        p(f"v_pk_mul_f32 {vr(c,2)}, {vr(a,2)}, {vr(b,2)} op_sel:[0,0] op_sel_hi:[0,1]")
        p(f"v_pk_fma_f32 {vr(c,2)}, {vr(a,2)}, {vr(b,2)}, {vr(c,2)} op_sel:[1,1,0] op_sel_hi:[1,0,1] neg_lo:[0,1,0]")
    E = lambda k, mu: 48 + 4 * (k - 1) + 2 * mu
    E8 = lambda mu: 76 + 2 * mu
    E128 = lambda mu: 80 + 2 * mu
    GA = lambda par, mu: 84 + 4 * par + 2 * mu
    XT = lambda k, mu: 92 + 4 * (k % 2) + 2 * mu
    PK = lambda k: 100 + 2 * (k % 4)
    FB = 108
    FA = 140
    DT = 172
    def kgen(p, c2):
        P = PR + 6 * c2; t = 40
        p(f"v_lshlrev_b32 v{t+6}, 16, v{P+4}")
        exp_bf16(p, t + 7, t + 6, t)
        rho = lambda mu: 92 + mu; th = lambda mu: 94 + mu
        for mu in range(2):
            up = (lambda d, s_: f"v_lshlrev_b32 v{d}, 16, v{s_}") if mu == 0 else (lambda d, s_: f"v_and_b32 v{d}, s89, v{s_}")
            p(up(t + 6, P))
            exp_bf16(p, t + 5, t + 6, t)
            p(f"v_mul_f32 v{t+5}, v{t+5}, v{t+7}\n v_mul_f32 v{rho(mu)}, s86, v{t+5}")
            p(up(t + 6, P + 1))
            p(f"v_mul_f32 v{t+6}, v{t+6}, v{t+7}\n v_mul_f32 v{th(mu)}, 0.15915494, v{t+6}")
            p(up(t + 5, P + 2)); p(up(t + 6, P + 3))
            p(f"v_add_f32 v{t+4}, v{t+7}, v{t+7}\n v_mul_f32 v{GA(0,mu)}, v{t+5}, v{t+4}\n v_mul_f32 v{GA(0,mu)+1}, v{t+6}, v{t+4}")
        for pw, dst in ((1, lambda mu: E(1, mu)), (8, E8), (128, E128)):
            for mu in range(2):
                d = dst(mu); u = t + 3 * mu
                p(f"""v_mul_f32 v{u}, {f2u(-float(pw)):#x}, v{rho(mu)}
                v_mul_f32 v{u+1}, {f2u(float(pw)):#x}, v{th(mu)}
                v_exp_f32 v{u}, v{u}
                v_fract_f32 v{u+1}, v{u+1}
                v_cos_f32 v{d}, v{u+1}
                v_sin_f32 v{d+1}, v{u+1}
                v_pk_mul_f32 {vr(d,2)}, {vr(d,2)}, {vr(u if u % 2 == 0 else u - 1,2)} op_sel:[0,{u%2}] op_sel_hi:[1,{u%2}]""")
        cnt = [0]
        def put(row, src, neg=False):
            k = cnt[0]; cnt[0] += 1
            for mu in range(2):
                a = src(mu)
                p(f"v_cvt_pk_bf16_f32 v{PK(k)+mu}, v{a}, {'-' if neg else ''}v{a+1}")
            p(f"ds_write_b64 v{A_SW}, {vr(PK(k),2)} offset:{row*SRS}")
        p(f"v_mov_b32 v{PK(3)}, 0x3f80\n v_mov_b32 v{PK(3)+1}, 0x3f80\n ds_write_b64 v{A_SW}, {vr(PK(3),2)}")
        put(1, E8, True)
        prev = E8
        for b in range(2, 16):
            cur = (lambda bb: (lambda mu: XT(bb, mu)))(b)
            for mu in range(2): cmul(p, cur(mu), prev(mu), E8(mu))
            put(b, cur, True); prev = cur
        for ka in range(8): p(f"ds_read_b128 {vr(FB+4*ka,4)}, v{A_SR} offset:{64*ka}")
        for k in range(2, 8):
            for mu in range(2): cmul(p, E(k, mu), E(k - 1, mu), E(1, mu))
        al = [0]
        def Gcur(mu): return GA(al[0] % 2, mu)
        def Gnext():
            for mu in range(2): cmul(p, GA((al[0] + 1) % 2, mu), GA(al[0] % 2, mu), E128(mu))
            al[0] += 1
        def prod(row, k):
            if k == 0: put(row, Gcur); return
            for mu in range(2): cmul(p, XT(row, mu), Gcur(mu), E(k, mu))
            put(row, lambda mu: XT(row, mu))
        def tile(T):
            for ka in range(8): p(f"ds_read_b128 {vr(FA+4*ka,4)}, v{A_SR} offset:{64*ka}")
            return [f"v_mfma_f32_16x16x32_bf16 {vr(DT+4*T,4)}, {vr(FA+4*ka,4)}, {vr(FB+4*ka,4)}, {'0' if ka == 0 else vr(DT+4*T,4)}" for ka in range(8)]
        for a in range(2):
            for g in range(8): prod(8 * a + g, g)
            Gnext()
        mm = tile(0)
        for a in range(2):
            for g in range(4): prod(4 * a + g, 2 * g)
            Gnext()
            if a == 0:
                for x in mm: p(x)
        for a in range(4):
            for g in range(2): prod(8 + 2 * a + g, 4 * g)
            Gnext()
        mm = tile(1)
        for a in range(9):
            prod(a, 0)
            if a < 8: Gnext()
            if a == 3:
                for x in mm: p(x)
        for x in tile(2): p(x)
        p(f"""v_lshlrev_b32 v{t}, 16, v{P+5}
        v_cmp_eq_u32 vcc, 0, v{LN}
        v_cndmask_b32 v{t}, v{Z}, v{t}, vcc
        v_add_f32 v{DT}, v{DT}, v{t}""")
        for q in range(12): p(f"v_cvt_pk_bf16_f32 v{DT+q}, v{DT+q}, v{DT+q}")
        p(f"""ds_write_b128 v{A_T0}, {vr(DT,4)}
        ds_write_b64 v{A_T1}, {vr(DT+4,2)} offset:1024
        ds_write_b64 v{A_T1b}, {vr(DT+6,2)} offset:1024""")
        for i in range(4): p(f"ds_write_b32 v{A_T2}, v{DT+8+i} offset:{2048+64*i}")
        R = FA
        for r in range(2):
            p(f"ds_read_b32 v{R+4*r}, v{A_X3} offset:{2048+256*r+4}")
            p(f"ds_read_b32 v{R+4*r+2}, v{A_X3} offset:{2048+256*r}\n ds_read_b32 v{R+4*r+3}, v{A_X3} offset:{2048+256*r}")
        p(f"""ds_read_b32 v{R+8}, v{A_X2} offset:{1536+8}
        ds_read_b32 v{R+9}, v{A_X2} offset:{1536+4}
        ds_read_b32 v{R+11}, v{A_X2} offset:{1536}
        ds_read_b128 {vr(R+16,4)}, v{A_X1} offset:1024
        ds_read_b32 v{R+20}, v{A_X1} offset:{1024+16}
        ds_read_b128 {vr(R+24,4)}, v{A_X0}
        ds_read_b128 {vr(R+28,4)}, v{A_X0} offset:16""")
        for r in range(2):
            p(f"v_bfi_b32 v{R+4*r+1}, v{MSK}, v{R+4*r}, v{R+4*r+2}")
            p(f"ds_write_b128 v{A_KW}, {vr(R+4*r,4)} offset:{1024*(1-r)}")
        p(f"""v_bfi_b32 v{R+10}, s85, v{R+9}, v{R+11}
        ds_write_b128 v{A_KW}, {vr(R+8,4)} offset:2048
        v_bfi_b32 v{R+12}, s85, v{R+20}, v{R+19}
        v_mov_b32 v{R+13}, v{R+18}
        v_bfi_b32 v{R+14}, s85, v{R+18}, v{R+17}
        v_mov_b32 v{R+15}, v{R+16}
        ds_write_b128 v{A_KW32}, {vr(R+12,4)} offset:3072
        v_bfi_b32 v{R+16}, s85, v{R+31}, v{R+30}
        v_bfi_b32 v{R+17}, s85, v{R+29}, v{R+28}
        v_bfi_b32 v{R+18}, s85, v{R+27}, v{R+26}
        v_bfi_b32 v{R+19}, s85, v{R+25}, v{R+24}
        ds_write_b128 v{A_KW32}, {vr(R+16,4)} offset:3584""")

    Y = 184
    UB = 216
    def conv(p, c2):
        t = 40
        p(f"""s_add_u32 s80, s68, {4*c2}
        s_mul_i32 s81, s80, {2*CP}
        s_add_u32 s81, s81, {B_UC}
        v_and_b32 v{t}, 1, v0
        v_mul_u32_u24 v{t}, {CP}, v{t}
        v_lshrrev_b32 v{t+1}, 1, v{L15}
        v_lshl_add_u32 v{t+1}, v{G}, 2, v{t+1}
        v_lshl_add_u32 v{t}, v{t+1}, 2, v{t}
        v_add_u32 v{UB}, s81, v{t}
        v_add_u32 v{UB+1}, 1024, v{UB}
        v_add_u32 v{UB+2}, 2048, v{UB}
        v_add_u32 v{UB+3}, 3072, v{UB}
        s_mul_i32 s80, s80, {YP}
        v_lshlrev_b32 v{t}, 5, v{L15}
        v_lshl_add_u32 v{t}, v{G}, 3, v{t}
        v_add_u32 v{UB+4}, s80, v{t}""")
        def fa(b, a): return ar((b % 2) * 64 + 4 * a, 4)
        def fb(b, c): return ar((b % 2) * 64 + 32 + 4 * c, 4)
        def reads(b):
            q = Prog()
            for a in range(8):
                o = 128 * (a % 2) + 16 * b; r0 = (b % 2) * 64 + 4 * a
                q(f"ds_read_b128 {fb(b,a)}, v{A_KB} offset:{512*(7-a)+64*b}")
                q(f"ds_read2_b32 {ar(r0,2)}, v{UB+a//2} offset0:{o} offset1:{o+1}")
                q(f"ds_read2_b32 {ar(r0+2,2)}, v{UB+a//2} offset0:{o+2} offset1:{o+3}")
            return q
        p.extend(reads(0))
        for b in range(8):
            m = Prog()
            prs = sorted([(a, c) for c in range(8) for a in range(c + 1)], key=lambda x: (max(x[0], x[1] - x[0]), x[1]))
            seen = set()
            for a, c in prs:
                first = b == 0 and c not in seen; seen.add(c)
                mfma(m, vr(Y + 4 * c, 4), fa(b, a), fb(b, c - a), '0' if first else None)
            p.extend(merge(m, reads(b + 1) if b < 7 else Prog(), start=4))
        for c in range(8):
            d = 40 + 2 * (c % 4)
            p(f"v_cvt_pk_bf16_f32 v{d}, v{Y+4*c}, v{Y+4*c+1}\n v_cvt_pk_bf16_f32 v{d+1}, v{Y+4*c+2}, v{Y+4*c+3}")
            p(f"ds_write_b64 v{UB+4}, {vr(d,2)} offset:{B_RAW+512*c}")

    kgen(p, 0)
    stamp(p)
    p.waitvm('raw'); p("s_waitcnt lgkmcnt(0)\n s_barrier")
    stamp(p)
    p(f"""v_bfe_u32 v{t}, v0, 2, 2
    v_lshl_add_u32 v{t}, v{G}, 3, v{t}
    v_bfe_u32 v{t+1}, v0, 1, 1
    v_lshl_add_u32 v{t}, v{t+1}, 2, v{t}
    v_lshlrev_b32 v{t}, 4, v{t}
    v_and_b32 v{t+1}, 1, v0
    v_lshl_add_u32 v{t}, v{t+1}, 3, v{t}
    s_lshl_b32 s80, s68, 9
    v_add_u32 v{t}, s80, v{t}
    v_and_b32 v{t+1}, 7, v0
    v_mul_u32_u24 v{t+1}, {2*CP}, v{t+1}
    v_bfe_u32 v{t+2}, v0, 3, 1
    v_lshl_add_u32 v{t+1}, v{t+2}, 3, v{t+1}
    v_lshl_add_u32 v{t+1}, v{G}, 4, v{t+1}
    s_lshl_b32 s80, s68, 6
    s_add_u32 s80, s80, {B_UC}
    v_add_u32 v{t+1}, s80, v{t+1}""")
    jobs = [(k, pp) for k in range(17) for pp in range(2)]
    NBUF = 8
    def rdj(n):
        k, pp = jobs[n]; p(f"ds_read_b64_tr_b16 {vr(48+2*(n%NBUF),2)}, v{t} offset:{B_RAW + 16*(1+pp) + 2048*k}")
    def wrj(n):
        k, pp = jobs[n]
        if k == 16: p(f"ds_write_b64 v{t+3}, {vr(48+2*(n%NBUF),2)} offset:{pp*CP + 256*k}")
        else: p(f"ds_write_b64 v{t+1}, {vr(48+2*(n%NBUF),2)} offset:{pp*CP + 256*k}")
    p(f"""s_cmp_eq_u32 s68, 0
    s_cselect_b32 s80, 2, 0
    v_mov_b32 v{t+2}, {B_END - 4096}
    v_cmp_gt_u32 vcc, s80, v{G}
    v_cndmask_b32 v{t+3}, v{t+2}, v{t+1}, vcc""")
    for n in range(NBUF): rdj(n)
    for n in range(len(jobs)):
        wrj(n)
        if n + NBUF < len(jobs): rdj(n + NBUF)
    p("s_waitcnt lgkmcnt(0)\n s_barrier")
    stamp(p)
    conv(p, 0)
    stamp(p)
    kgen(p, 1)
    stamp(p)
    conv(p, 1)
    stamp(p)
    p("s_waitcnt lgkmcnt(0)\n s_barrier")
    p(f"""v_bfe_u32 v{t}, v0, 2, 2
    v_mul_u32_u24 v{t}, {YP}, v{t}
    v_and_b32 v{t+1}, 3, v0
    v_lshl_add_u32 v{t}, v{t+1}, 3, v{t}
    v_lshl_add_u32 v{t}, v{G}, 5, v{t}
    s_lshl_b32 s80, s68, 10
    v_add_u32 v{t}, s80, v{t}
    v_mul_u32_u24 v{t+1}, 2560, v{LN}
    s_mul_i32 s80, s68, {512*2560}""")
    for it in range(8):
        for h in range(2):
            p(f"ds_read_b64_tr_b16 {vr(48+4*it+2*h,2)}, v{t} offset:{B_RAW + h*4*YP + 128*it}")
    for it in range(8):
        p(f"buffer_store_dwordx4 {vr(48+4*it,4)}, v{t+1}, {sr(S_O,4)}, s80 offen")
        p(f"s_add_u32 s80, s80, {64*2560}")
    stamp(p)
    stamp_store(p, S_WSB)
    p("s_endpgm")
    return p

def role_S():
    p = Prog()
    p("roleS:")
    p(f"""s_sub_u32 s69, s2, 208
    s_cmp_ge_u32 s69, {NZERO_WG}
    s_cbranch_scc1 done
    s_waitcnt lgkmcnt(0)""")
    srd(p, 40, P_WS, WS_ZERO_END)
    srd(p, 44, P_DBG, 256)
    p(f"""s_lshl_b32 s70, s69, 12
    v_lshlrev_b32 v1, 4, v0
    v_mov_b32 v4, 0
    v_mov_b32 v5, 0
    v_mov_b32 v6, 0
    v_mov_b32 v7, 0
    buffer_store_dwordx4 v[4:7], v1, s[40:43], s70 offen sc1
    v_mov_b32 v2, 1
    v_mov_b32 v3, {OOB:#x}
    v_cmp_eq_u32 vcc, 0, v0
    v_cndmask_b32 v3, v3, v4, vcc
    s_waitcnt vmcnt(0)
    s_barrier
    buffer_atomic_add v2, v3, s[44:47], 0 offen sc1""")
    p("done:\n s_endpgm")
    return p

def main():
    LDS = max(A_END + 16, B_END + 4608)
    assert LDS <= 163840, LDS
    ref = open(f"cdna_kernels/{NAME}.s.ref").read().split('\n')
    hdr = [l for l in ref if l.startswith(';') and '@launch' not in l]
    s = '\n'.join(hdr) + f"\n; @launch grid=(256,1,1) block=(256,1,1) lds={LDS}\n"
    s += f""".amdgcn_target "amdgcn-amd-amdhsa--gfx950"
.text
.globl {NAME}_kernel
.p2align 8
.type {NAME}_kernel,@function
{NAME}_kernel:
"""
    e = Prog()
    e(f"""s_cmp_ge_u32 s2, 256
    s_cbranch_scc1 done
    s_load_dwordx16 s[8:23], s[0:1], 0
    s_load_dwordx8 s[24:31], s[0:1], 64
    s_load_dwordx4 s[32:35], s[0:1], 96
    v_lshrrev_b32 v1, 6, v0
    s_nop 0
    v_readfirstlane_b32 s68, v1
    s_cmp_ge_u32 s2, 208
    s_cbranch_scc1 roleS
    s_cmp_ge_u32 s2, 128
    s_cbranch_scc1 roleB""")
    a = role_A()
    e.extend(a)
    s += finalize(e) + finalize(role_B()) + finalize(role_S())
    s += f""".section .rodata,"a"
.p2align 6
.amdhsa_kernel {NAME}_kernel
  .amdhsa_next_free_vgpr 512
  .amdhsa_next_free_sgpr 102
  .amdhsa_accum_offset 256
  .amdhsa_group_segment_fixed_size 0
  .amdhsa_kernarg_size 112
  .amdhsa_user_sgpr_count 2
  .amdhsa_user_sgpr_kernarg_segment_ptr 1
  .amdhsa_system_sgpr_workgroup_id_x 1
.end_amdhsa_kernel
"""
    out = OPT.get('out', f"cdna_kernels/{NAME}.s")
    open(out, 'w').write(s)
    print("LDS", LDS, "A_END", A_END, "B_END", B_END, "lines", s.count('\n'))
main()
```

```python
import re

REG_RE = re.compile(r'(?<![\w.])([vas])(\d+)(?![\w\[])|(?<![\w.])([vas])\[(\d+):(\d+)\]')
TRANS = ('v_exp_f32', 'v_log_f32', 'v_rcp_f32', 'v_rsq_f32', 'v_sqrt_f32', 'v_sin_f32', 'v_cos_f32')

def regs_of(tok):
    out = []
    for m in REG_RE.finditer(tok):
        if m.group(1): out.append((m.group(1), int(m.group(2))))
        else: out += [(m.group(3), i) for i in range(int(m.group(4)), int(m.group(5)) + 1)]
    t = tok.strip().lstrip('-').strip('|')
    if t == 'vcc': out += [('s', 'vcc_lo'), ('s', 'vcc_hi')]
    elif t in ('vcc_lo', 'vcc_hi'): out.append(('s', t))
    elif t == 'exec': out += [('s', 'exec')]
    elif t == 'm0': out.append(('s', 'm0'))
    return out

def split_ops(s):
    ops = []; depth = 0; cur = ''
    for ch in s:
        if ch in '[(': depth += 1
        if ch in '])': depth -= 1
        if ch == ',' and depth == 0: ops.append(cur.strip()); cur = ''
        else: cur += ch
    if cur.strip(): ops.append(cur.strip())
    return ops

class I:
    __slots__ = ('text', 'mn', 'defs', 'uses', 'kind', 'tag', 'srcc', 'passes', 'wide', 'note')
    def __init__(self, text, tag=None):
        self.text = text.strip(); self.tag = tag; self.note = None
        self.srcc = []; self.passes = 0; self.wide = False
        t = self.text
        if t.endswith(':') or t.startswith('.') or t.startswith(';'):
            self.mn = t; self.kind = 'label' if t.endswith(':') else 'dir'; self.defs = []; self.uses = []; return
        parts = t.split(None, 1)
        mn = parts[0]; self.mn = mn
        rest = parts[1] if len(parts) > 1 else ''
        base = re.sub(r'_e(32|64)$', '', mn)
        ops = split_ops(rest)
        if ops:
            last = ops[-1].split()
            mods = ' '.join(last[1:]) if len(last) > 1 else ''
            ops[-1] = last[0]
        else: mods = ''
        R = [regs_of(o) for o in ops]
        flat = lambda l: [x for y in l for x in y]
        defs = []; uses = []
        if base.startswith('v_mfma'):
            self.kind = 'mfma'; defs = R[0]; uses = flat(R[1:4]); self.srcc = R[3]
            self.passes = 8 if '32x32' in base else 4
        elif base.startswith('v_cmp'):
            self.kind = 'valu'; defs = R[0]; uses = flat(R[1:])
        elif base in ('v_readfirstlane_b32', 'v_readlane_b32'):
            self.kind = 'valu'; defs = R[0]; uses = flat(R[1:])
        elif base.startswith('v_permlane') and 'swap' in base:
            self.kind = 'valu'; defs = flat(R[:2]); uses = flat(R[:2])
        elif base.startswith('v_'):
            self.kind = 'valu'; defs = R[0]; uses = flat(R[1:])
            if base in ('v_fmac_f32', 'v_pk_fmac_f16', 'v_writelane_b32') or 'dpp' in mods or 'row_' in mods or 'quad_perm' in mods: uses = uses + R[0]
            if base in ('v_add_co_u32', 'v_sub_co_u32', 'v_addc_co_u32'): defs = flat(R[:2]); uses = flat(R[2:])
            if base == 'v_cndmask_b32' and len(ops) == 3: uses += regs_of('vcc')
        elif base.startswith('ds_read') or base.startswith('ds_bpermute') or base.startswith('ds_swizzle'):
            self.kind = 'ds'; defs = R[0]; uses = flat(R[1:])
        elif base.startswith('ds_'):
            self.kind = 'ds'; uses = flat(R)
        elif base.startswith('buffer_load') or base.startswith('global_load'):
            self.kind = 'vm'
            if re.search(r'\blds\b', mods): uses = flat(R) + [('s', 'm0')]; self.note = 'dma'
            else: defs = R[0]; uses = flat(R[1:])
        elif base.startswith('buffer_atomic') or base.startswith('global_atomic'):
            self.kind = 'vm'; uses = flat(R)
            if 'sc0' in mods: defs = R[0]
        elif base.startswith('buffer_store') or base.startswith('global_store'):
            self.kind = 'vm'; uses = flat(R)
            if 'x3' in base or 'x4' in base:
                self.wide = True
                self.srcc = R[0] if base.startswith('buffer') else R[1]
        elif base.startswith('s_load') or base in ('s_memtime', 's_memrealtime'):
            self.kind = 'smem'; defs = R[0]; uses = flat(R[1:])
        elif base == 's_waitcnt': self.kind = 'wait'
        elif base == 's_nop': self.kind = 'nop'
        elif base == 's_barrier': self.kind = 'barrier'
        elif base.startswith('s_cbranch') or base in ('s_branch', 's_setpc_b64', 's_swappc_b64', 's_endpgm', 's_call_b64'):
            self.kind = 'branch'; uses = flat(R)
        elif base.startswith('s_cmp') or base in ('s_sleep', 's_setprio', 's_bitcmp1_b32', 's_bitcmp0_b32'):
            self.kind = 'salu'; uses = flat(R)
        elif base.startswith('s_'):
            self.kind = 'salu'; defs = R[0]; uses = flat(R[1:])
            if 'saveexec' in base: defs = defs + [('s', 'exec')]
        else:
            raise ValueError('unknown instr ' + t)
        self.defs = defs; self.uses = uses
    def states(self):
        if self.kind == 'nop': return int(self.text.split()[1], 0) + 1
        if self.kind in ('label', 'dir'): return 0
        return 1

class Prog:
    def __init__(self):
        self.L = []
    def __call__(self, text, tag=None):
        for line in text.split('\n'):
            line = line.split(';;')[0].strip()
            if line: self.L.append(I(line, tag))
    def waitvm(self, tag):
        i = I('; waitvm ' + str(tag)); i.kind = 'waitvm'; i.tag = tag; self.L.append(i)
    def waitall(self, vm=True, lgkm=True):
        self(('s_waitcnt ' + ('vmcnt(0) ' if vm else '') + ('lgkmcnt(0)' if lgkm else '')).strip())
    def extend(self, other): self.L += other.L

def merge(main, side, ratio_fn=None, start=0, every=1, count=1):
    out = Prog(); si = 0; nm = 0
    S = side.L
    for ins in main.L:
        out.L.append(ins)
        if ins.kind == 'mfma':
            nm += 1
            if nm > start and (nm - start) % every == 0:
                c = 0
                while c < count and si < len(S):
                    out.L.append(S[si]);
                    if S[si].kind not in ('dir', 'waitvm'): c += 1
                    si += 1
    out.L += S[si:]
    return out

def insert_waits(L):
    out = []; vm = []; lg = []; smem = set()
    def need(q, regs, tagmatch=None):
        idx = -1
        for k, e in enumerate(q):
            if (regs and e[0] & regs) or (tagmatch is not None and e[1] == tagmatch): idx = k
        return idx
    for ins in L:
        if ins.tag == 'offpath':
            out.append(ins); continue
        if ins.kind == 'wait':
            m = re.search(r'vmcnt\((\d+)\)', ins.text)
            if m: n = int(m.group(1)); vm = vm[len(vm) - n:] if n < len(vm) and n > 0 else ([] if n == 0 else vm)
            m = re.search(r'lgkmcnt\((\d+)\)', ins.text)
            if m:
                n = int(m.group(1))
                if n == 0: lg = []; smem = set()
                elif not smem and n < len(lg): lg = lg[len(lg) - n:]
            out.append(ins); continue
        if ins.kind == 'label':
            out.append(ins); continue
        regs = set(ins.uses) | set(ins.defs)
        w = []
        if ins.kind == 'waitvm': k = need(vm, None, ins.tag)
        else: k = need(vm, regs)
        if k >= 0:
            n = len(vm) - 1 - k
            w.append('vmcnt(%d)' % min(n, 62)); vm = vm[k + 1:]
        if smem & regs or (smem and need(lg, regs) >= 0):
            w.append('lgkmcnt(0)'); lg = []; smem = set()
        else:
            k = need(lg, regs)
            if k >= 0:
                n = len(lg) - 1 - k
                w.append('lgkmcnt(%d)' % min(n, 14)); lg = lg[k + 1:]
        if w: out.append(I('s_waitcnt ' + ' '.join(w)))
        if ins.kind == 'waitvm': continue
        out.append(ins)
        if ins.kind == 'vm': vm.append((set(ins.defs), ins.tag))
        elif ins.kind == 'ds': lg.append((set(ins.defs), ins.tag))
        elif ins.kind == 'smem': smem |= set(ins.defs); smem.add(('x', 0))
        if ins.kind == 'branch' and ins.mn != 's_endpgm' and 'nocheck' not in (ins.tag or ''):
            pend = [e for e in vm + lg if e[0]]
            if pend and not (ins.tag and 'keep' in ins.tag):
                raise ValueError('pending loads across branch: ' + ins.text + ' ' + str(pend[:2]))
    return out

def isv(r): return r[0] in 'va'
def req_states(p, c):
    n = 0
    pd = set(p.defs); cu = set(c.uses); cd = set(c.defs)
    cb = re.sub(r'_e(32|64)$', '', c.mn); pb = re.sub(r'_e(32|64)$', '', p.mn)
    if p.kind == 'valu':
        vd = {r for r in pd if isv(r)}; sd = pd - vd
        if c.kind == 'mfma' and vd & cu: n = max(n, 2)
        if c.kind == 'valu':
            if cb in ('v_readfirstlane_b32', 'v_readlane_b32') and vd & cu: n = max(n, 1)
            if cb.startswith('v_permlane') and vd & cu: n = max(n, 2)
            if ('row_' in c.text or 'quad_perm' in c.text or 'dpp' in c.text) and vd & cu: n = max(n, 2)
            if pb in TRANS and cb not in TRANS and vd & cu: n = max(n, 1)
            if pb in TRANS and vd & cu: n = max(n, 1)
            if sd & cu: n = max(n, 4 if cb in ('v_readlane_b32', 'v_writelane_b32') else 2)
            if 'op_sel' in p.text and not pb.startswith('v_pk') and vd & (cu | cd): n = max(n, 1)
        if pb in TRANS and c.kind in ('ds', 'vm') and vd & cu: n = max(n, 1)
        if c.kind == 'vm' and sd & cu: n = max(n, 5)
        if c.kind in ('salu', 'branch', 'smem') and sd & cu: n = max(n, 1)
    elif p.kind == 'mfma':
        P = p.passes
        if c.kind == 'mfma':
            cc = set(c.srcc); ab = cu - cc if not (cu - cc) & cc else cu
            abregs = set(regs_of(split_ops(c.text.split(None, 1)[1])[1])) | set(regs_of(split_ops(c.text.split(None, 1)[1])[2]))
            if pd & abregs: n = max(n, 8 if P == 4 else 12)
            if pd & cc:
                if not (list(p.defs) == list(c.srcc) and c.passes == P): n = max(n, 6 if P == 4 else 10)
            elif pd & cd: n = max(n, 8 if P == 4 else 12)
        elif c.kind in ('valu', 'ds', 'vm'):
            if pd & (cu | cd): n = max(n, 8 if P == 4 else 12)
            if c.kind == 'valu' and set(p.srcc) & cd: n = max(n, 3 if P == 4 else 7)
    elif p.kind == 'salu':
        if ('s', 'm0') in pd and c.note == 'dma': n = max(n, 1)
        if ('s', 'exec') in pd and c.kind == 'mfma': n = max(n, 1)
    elif p.kind == 'vm' and p.wide:
        if set(p.srcc) & cd: n = max(n, 2)
    return n

def insert_nops(L):
    out = []
    for ins in L:
        if ins.kind in ('label', 'dir', 'nop', 'wait', 'barrier'):
            out.append(ins); continue
        need = 0; dist = 0
        for p in reversed(out):
            if dist >= 12: break
            r = req_states(p, ins)
            if r - dist > need: need = r - dist
            dist += p.states()
        if need > 0: out.append(I('s_nop %d' % (need - 1)))
        out.append(ins)
    return out

def finalize(prog):
    L = insert_waits(prog.L)
    L = insert_nops(L)
    return '\n'.join((i.text if i.kind in ('label',) or i.text.startswith('.') else ' ' + i.text) for i in L) + '\n'

def spread(main, bundles, lo=0, hi=None):
    n = sum(1 for i in main.L if i.kind == 'mfma')
    if hi is None: hi = n
    nb = len(bundles)
    pos = {}
    for k, b in enumerate(bundles):
        q = lo + int((k + 0.5) * (hi - lo) / nb) if nb else 0
        pos.setdefault(min(max(q, 0), n - 1), []).append(b)
    out = Prog(); c = 0
    for ins in main.L:
        out.L.append(ins)
        if ins.kind == 'mfma':
            for b in pos.get(c, []): out.L += b.L
            c += 1
    return out
def singles(prog):
    r = []
    for i in prog.L:
        q = Prog(); q.L = [i]; r.append(q)
    return r

def cost(i):
    if i.kind == 'vm': return 14
    if i.kind == 'ds': return 20 if i.mn.startswith('ds_write') else 4
    if i.kind == 'valu': return 8 if re.sub(r'_e(32|64)$', '', i.mn) in TRANS else 4
    if i.kind == 'salu': return 2
    return 0
def pack(main, streams, cap=24):
    n = sum(1 for i in main.L if i.kind == 'mfma')
    allit = []
    for si, (items, lo, hi) in enumerate(streams):
        hi = n if hi is None else hi
        for k, b in enumerate(items):
            allit.append((lo + (k + 0.5) * (hi - lo) / len(items) - 0.5, si, k, b))
    allit.sort(key=lambda x: (x[0], x[1], x[2]))
    out = Prog(); c = 0; q = 0
    for ins in main.L:
        out.L.append(ins)
        if ins.kind == 'mfma':
            used = 0
            while q < len(allit) and (allit[q][0] <= c + 0.49 or c == n - 1):
                cs = sum(cost(i) for i in allit[q][3].L)
                if used and used + cs > cap and c != n - 1: break
                out.L += allit[q][3].L; used += cs; q += 1
            c += 1
    return out
def bundles(prog):
    r = []; cur = None
    for i in prog.L:
        glue = cur is not None and (i.mn.startswith(('s_cselect', 's_addc', 's_subb', 's_cbranch')))
        if not glue:
            cur = Prog(); r.append(cur)
        cur.L.append(i)
    return r
```

```python
import sys, struct
from gasm import Prog, finalize, merge, spread, singles, pack, bundles
NAME = "concat_heads__linear_kernel_hedgehog__ssm_conv_s4d__prompt"
OPT = dict(a.split('=') for a in sys.argv[1:] if '=' in a)
def opt(k, d): return type(d)(OPT.get(k, d))
STAMP = opt('stamp', 0)
ROT = opt('rot', 1)
def f2u(x): return struct.unpack('<I', struct.pack('<f', x))[0]
def vr(a, n): return f"v[{a}:{a+n-1}]" if n > 1 else f"v{a}"
def ar(a, n): return f"a[{a}:{a+n-1}]" if n > 1 else f"a{a}"
def sr(a, n): return f"s[{a}:{a+n-1}]" if n > 1 else f"s{a}"
def magic(d): return (2**32 + d - 1) // d

WS_KVF = 0; WS_OF = 2048; WS_KV = 10240; WS_ZERO_END = WS_KV + 32 * 4096
WS_O = 262144; WS_STAMP = 4 << 20; WS_SIZE = 8 << 20
NSPARE = 48
NZERO_WG = NSPARE
assert WS_ZERO_END <= NSPARE * 4096
P_X, P_W, P_PHI, P_WO, P_U, P_LA, P_AI, P_CR, P_CI, P_LDT, P_DS, P_OUT, P_DBG, P_WS = [8 + 2 * i for i in range(14)]
OOB = 0x80000000
SPIN = 400000

def srd(p, s, ptr, size, off=None):
    if off is None:
        p(f"s_mov_b32 s{s}, s{ptr}\n s_mov_b32 s{s+1}, s{ptr+1}")
    else:
        p(f"s_add_u32 s{s}, s{ptr}, {off}\n s_addc_u32 s{s+1}, s{ptr+1}, 0")
    p(f"s_mov_b32 s{s+2}, {size}\n s_mov_b32 s{s+3}, 0x20000")

nstamp = [0]
def stamp(p, sreg_base=96):
    if not STAMP: return
    k = nstamp[0]; nstamp[0] += 1
    if k == 0: p(f"s_memrealtime s[96:97]\n s_waitcnt lgkmcnt(0)\n v_writelane_b32 v255, s96, 62")
    p(f"s_memtime s[96:97]\n s_waitcnt lgkmcnt(0)\n v_writelane_b32 v255, s96, {k}")
def stamp_store(p, wsrd):
    if not STAMP: return
    p(f"s_waitcnt vmcnt(0)\n s_memtime s[96:97]\n s_waitcnt lgkmcnt(0)\n v_writelane_b32 v255, s96, 61\n s_memrealtime s[96:97]\n s_waitcnt lgkmcnt(0)\n v_writelane_b32 v255, s96, 63")
    p(f"""s_lshl_b32 s96, s2, 2
    s_add_u32 s96, s96, s68
    s_lshl_b32 s96, s96, 8
    s_add_u32 s96, s96, {WS_STAMP}
    v_and_b32 v254, 63, v0
    v_lshlrev_b32 v254, 2, v254
    buffer_store_dword v255, v254, {sr(wsrd,4)}, s96 offen""")

def pollall(p, name, srdreg, soff, vt, va):
    p(f"s_mov_b32 s94, {SPIN}")
    p(f"{name}:")
    p(f"""buffer_load_dword v{vt}, v{va}, {sr(srdreg,4)}, {soff} offen sc1
    s_sub_u32 s94, s94, 1
    s_waitcnt vmcnt(0)
    v_cmp_ne_u32 vcc, 0, v{vt}
    s_cmp_eq_u32 s94, 0""")
    p(f"s_cbranch_scc1 {name}_x", tag='keep')
    p(f"s_cmp_eq_u64 vcc, -1")
    p(f"s_cbranch_scc0 {name}", tag='keep')
    p(f"{name}_x:")

A_RING = 0; NSLOT = 16; GR = 5120
A_PHIK = NSLOT * GR; PHI_RS = 352
A_VST = A_PHIK + 128 * PHI_RS
A_BD = A_VST + 20480
A_END = A_BD + 12800
A_KVIMG = A_PHIK
S_X, S_W, S_WO, S_WS, S_OUT, S_DBG, S_PHI = 40, 44, 48, 52, 56, 60, 64
V_XO = 1
V_XD = 5
V_WD = 9
V_TA = 14
V_Z = 22; V_T = 23
V_WF = 32
V_KA = 112; V_VA = 152; V_PA = 192; V_X = 240
OLD = 'sc1' if opt('osc1', 0) else ''

def mfma(p, d, a, b, c=None):
    p(f"v_mfma_f32_16x16x32_bf16 {d}, {a}, {b}, {d if c is None else c}")
def mfma32(p, d, a, b, c=None):
    p(f"v_mfma_f32_32x32x16_bf16 {d}, {a}, {b}, {d if c is None else c}")

LN = V_T; t = V_T + 1
parked = {}
def park(p, name, v):
    if name not in parked: parked[name] = 204 + len(parked)
    assert parked[name] < 256
    p(f"v_accvgpr_write_b32 a{parked[name]}, v{v}")
def unpark(q, name, v): q(f"v_accvgpr_read_b32 v{v}, a{parked[name]}")

def trbase(p, d, rowk, rowrho, extra=0):
    p(f"""v_bfe_u32 v{t}, v0, 5, 1
    v_mul_u32_u24 v{t}, {rowk}, v{t}
    v_bfe_u32 v{t+1}, v0, 2, 2
    v_mul_u32_u24 v{t+1}, {rowrho}, v{t+1}
    v_bfe_u32 v{t+2}, v0, 4, 1
    v_lshl_add_u32 v{t}, v{t+2}, 5, v{t}
    v_and_b32 v{t+2}, 3, v0
    v_lshl_add_u32 v{t}, v{t+2}, 3, v{t}
    v_add_u32 v{d}, v{t}, v{t+1}""")
    if extra: p(f"v_add_u32 v{d}, {extra}, v{d}")

def setup_g2(p):
    srd(p, S_WO, P_WO, 640 * 1280)
    srd(p, S_WS, P_WS, WS_SIZE)
    p(f"s_mul_i32 s78, s69, {128*2560}\n s_add_u32 s78, s78, s83")
    srd(p, S_OUT, P_OUT, 0, 's78')
    p(f"s_sub_u32 s{S_OUT+2}, {2048*2560}, s78")
    p(f"""s_lshr_b32 s79, s68, 1
    s_mul_i32 s79, s79, {80*1280}
    s_add_u32 s79, s79, s83
    s_and_b32 s85, s68, 1
    s_mul_i32 s85, s85, 40
    s_lshl_b32 s78, s69, 2
    s_add_u32 s78, s78, s68
    s_lshl_b32 s93, s78, 7
    s_add_u32 s93, s93, {WS_OF}
    s_mul_i32 s78, s78, 40960
    s_add_u32 s92, s78, {WS_O}""")
    for i in range(5):
        p(f"""v_lshrrev_b32 v{t}, 3, v{LN}
        v_add_u32 v{t}, s85, v{t}
        v_add_u32 v{t}, {8*i}, v{t}
        v_lshrrev_b32 v{t+1}, 4, v{t}
        v_and_b32 v{t+2}, 7, v{t}
        v_lshl_add_u32 v{t+1}, v{t+1}, 3, v{t+2}
        v_bfe_u32 v{t+2}, v{t}, 3, 1
        v_mad_u32_u24 v{t+2}, v{t+2}, 20, v{t+1}
        v_add_u32 v{t+3}, 20, v{t+2}
        v_cmp_le_u32 vcc, 20, v{t+1}
        v_cndmask_b32 v{t+2}, v{t+2}, v{t+3}, vcc
        v_mul_u32_u24 v{t+2}, 1280, v{t+2}
        v_bfe_u32 v{t}, v{t}, 1, 1
        v_lshlrev_b32 v{t}, 2, v{t}
        v_and_b32 v{t+1}, 7, v0
        v_xor_b32 v{t}, v{t}, v{t+1}
        v_lshl_add_u32 v{t}, v{t}, 4, v{t+2}""")
        park(p, f'wo{i}', t)
    trbase(p, t + 3, 8 * 128, 128)
    p(f"""v_bfe_u32 v{t}, v0, 3, 1
    v_lshl_add_u32 v{t+3}, v{t}, 6, v{t+3}""")
    park(p, 'two', t + 3)
    p(f"""s_add_u32 s78, s84, {A_VST}
    v_and_b32 v{t}, 31, v0
    v_mul_u32_u24 v{t}, 144, v{t}
    v_bfe_u32 v{t+1}, v0, 5, 1
    v_lshl_add_u32 v{t}, v{t+1}, 3, v{t}
    v_add_u32 v{t}, s78, v{t}""")
    park(p, 'outw', t)
    p(f"""v_lshrrev_b32 v{t}, 3, v{LN}
    v_and_b32 v{t+1}, 7, v0
    v_lshlrev_b32 v{t+1}, 4, v{t+1}
    v_mul_u32_u24 v{t+2}, 144, v{t}
    v_add3_u32 v{t+2}, v{t+2}, v{t+1}, s78
    v_mul_u32_u24 v{t}, 2560, v{t}
    v_add_u32 v{t}, v{t}, v{t+1}""")
    park(p, 'outr', t + 2); park(p, 'outg', t)

def dma_bundles(G, hdr, items):
    B = []
    hdr(items[0][0]); B.append(hdr)
    for k, (m0, ld) in enumerate(items):
        q = Prog(); q(ld, tag=('dma', G))
        if k + 1 < len(items): q(items[k + 1][0])
        B.append(q)
    return B
def issue_group(G):
    slotbase = A_RING + (G % 4) * 4 * GR
    h = Prog()
    if G < 10:
        h(f"s_mul_i32 s86, s80, {64*3840}\n s_add_u32 s86, s86, s82\n s_lshl_b32 s81, s80, 7")
        h(f"s_add_u32 s80, s80, 1\n s_cmp_eq_u32 s80, 10\n s_cselect_b32 s80, 0, s80")
        sd = S_W
    elif G < 15:
        h(f"""s_lshl_b32 s86, s71, 1
        s_add_u32 s86, s86, s68
        s_add_u32 s86, s86, {4*(G-10)}
        s_sub_u32 s74, s86, 20
        s_cmp_ge_u32 s86, 20
        s_cselect_b32 s86, s74, s86
        s_mul_i32 s86, s86, {32*3840}
        s_add_u32 s86, s86, s75""")
        sd = S_W
    else:
        h(f"s_add_u32 s86, s79, {(G%4)*160*1280}")
        sd = S_WO
    W = [(f"s_add_u32 m0, s84, {slotbase + 1024*i}", f"buffer_load_dwordx4 v{V_QD[i] if 10 <= G < 15 else V_WD+i}, {sr(sd,4)}, s86 offen lds") for i in range(5)]
    if G < 10:
        X = [(f"s_add_u32 m0, s87, {(G%4)*4096 + 1024*r}", f"buffer_load_dwordx4 v{V_XD+r}, {sr(S_X,4)}, s81 offen lds") for r in range(4)]
        items = [W[0], X[0], W[1], X[1], W[2], X[2], W[3], X[3], W[4]]
    else: items = W
    return dma_bundles(G, h, items)
V_QD = [21, 29, 30, 31, 252]

def gemm2_tail(p):
    F = V_WF
    p("g2_tail:")
    unpark(p, 'two', V_TA)
    p(f"""v_xor_b32 v{V_TA+1}, 64, v{V_TA}
    v_add_u32 v{V_TA+2}, {8*GR}, v{V_TA}
    v_add_u32 v{V_TA+3}, {8*GR}, v{V_TA+1}
    v_lshlrev_b32 v{t+2}, 4, v{LN}
    v_and_b32 v{t+4}, 7, v0
    v_lshlrev_b32 v{t+4}, 2, v{t+4}
    s_barrier""")
    def reads(n):
        hq, pp = divmod(n, 5); q = Prog(); fb = F + (n % 2) * 8
        off = hq * 10240 + pp * 2048; hi = 0
        if hq >= 4: off -= 8 * GR; hi = 2
        for T in range(2):
            for h in range(2):
                q(f"ds_read_b64_tr_b16 {vr(fb+4*T+2*h,2)}, v{V_TA+hi+T} offset:{off + 512*h}")
        return q
    p.extend(reads(0))
    unpark(p, 'outw', t); unpark(p, 'outr', t + 1); unpark(p, 'outg', t + 3)
    stamp(p)
    pollall(p, "a_po", S_WS, 's93', V_X + 8, t + 4)
    stamp(p)
    def oload(n):
        q = Prog(); hq, pp = divmod(n, 5)
        if pp == 4: q(f"s_add_u32 s85, s92, 4096")
        q(f"buffer_load_dwordx4 {ar(4*n,4)}, v{t+2}, {sr(S_WS,4)}, {'s85' if pp == 4 else 's92'} offen offset:{1024*(pp%4)} {OLD}")
        if pp == 4: q("s_add_u32 s92, s92, 5120")
        return q
    PRE = opt('opre', 10)
    for n in range(PRE): p.extend(oload(n))
    m = Prog(); rd = []
    for n in range(40):
        fb = F + (n % 2) * 8
        mm = Prog()
        for T in range(2): mfma32(mm, vr(V_KA + 16 * T, 16), vr(fb + 4 * T, 4), ar(4 * n, 4), '0' if n == 0 else None)
        st = []
        if n + 1 < 40: st.append((singles(reads(n + 1)), 0, 2))
        if n + PRE < 40: st.append(([oload(n + PRE)], 0, 1))
        p.extend(pack(mm, st, cap=32))
    stamp(p)
    p(f"s_mul_i32 s78, s68, {32*2560}")
    for T in range(2):
        for j in range(4):
            x = V_KA + 16 * T + 4 * j; o = F + 16 + 8 * T + 2 * j
            p(f"v_cvt_pk_bf16_f32 v{o}, v{x}, v{x+1}\n v_cvt_pk_bf16_f32 v{o+1}, v{x+2}, v{x+3}")
            p(f"ds_write_b64 v{t}, {vr(o,2)} offset:{64*T+16*j}")
    for i in range(4): p(f"ds_read_b128 {vr(F+32+4*i,4)}, v{t+1} offset:{8*144*i}")
    for i in range(4):
        p(f"buffer_store_dwordx4 {vr(F+32+4*i,4)}, v{t+3}, {sr(S_OUT,4)}, s78 offen")
        if i < 3: p(f"s_add_u32 s78, s78, {8*2560}")
    stamp(p)
    stamp_store(p, S_WS)
    p("s_endpgm")

def role_A():
    p = Prog(); nstamp[0] = 0
    p("roleA:")
    stamp(p)
    p("""s_and_b32 s72, s2, 7
    s_lshr_b32 s73, s2, 3
    s_lshr_b32 s69, s72, 1
    s_lshl_b32 s69, s69, 2
    s_lshr_b32 s74, s73, 2
    s_add_u32 s69, s69, s74
    s_and_b32 s70, s72, 1
    s_lshl_b32 s70, s70, 2
    s_and_b32 s75, s73, 3
    s_add_u32 s70, s70, s75
    s_add_u32 s71, s74, s75
    s_and_b32 s71, s71, 3""")
    p(f"s_mul_i32 s71, s71, {5 if ROT else 0}\n s_add_u32 s71, s71, {1 if ROT else 0}\n s_lshr_b32 s71, s71, 1")
    p(f"""v_and_b32 v{LN}, 63, v0
    v_mov_b32 v{V_Z}, 0""")
    p(f"""s_lshl_b32 s76, s68, 5
    v_lshrrev_b32 v{t}, 3, v{LN}
    v_add_u32 v{t}, s76, v{t}
    v_mul_u32_u24 v{t}, 1280, v{t}
    v_and_b32 v{t+1}, 7, v0
    v_bfe_u32 v{t+2}, v0, 4, 2
    v_xor_b32 v{t+1}, v{t+1}, v{t+2}
    v_lshl_add_u32 v{V_XD}, v{t+1}, 4, v{t}
    v_xor_b32 v{V_XD+1}, 64, v{V_XD}
    v_add_u32 v{V_XD+1}, {8*1280}, v{V_XD+1}
    v_add_u32 v{V_XD+2}, {16*1280}, v{V_XD}
    v_add_u32 v{V_XD+3}, {16*1280}, v{V_XD+1}""")
    p(f"s_mov_b32 s77, {magic(20)}\n s_movk_i32 s78, 1120")
    for i in range(5):
        p(f"""v_add_u32 v{t}, {64*i}, v{LN}
        v_mul_hi_u32 v{t+1}, v{t}, s77
        v_mul_u32_u24 v{t+2}, 20, v{t+1}
        v_sub_u32 v{t}, v{t}, v{t+2}
        v_mul_u32_u24 v{t+1}, 3840, v{t+1}
        v_lshl_add_u32 v{t+1}, v{t}, 4, v{t+1}
        v_cmp_le_u32 vcc, 10, v{t}
        v_add_u32 v{t+2}, s78, v{t+1}
        v_cndmask_b32 v{V_WD+i}, v{t+1}, v{t+2}, vcc""")
    p(f"""s_mov_b32 s80, s71
    s_mul_i32 s75, s70, 160
    s_mul_i32 s82, s68, {16*3840}
    s_add_u32 s82, s82, s75
    s_add_u32 s82, s82, 1280
    s_lshl_b32 s83, s70, 7
    s_mul_i32 s84, s68, {GR}
    s_lshl_b32 s87, s68, 14
    s_add_u32 s87, s87, {A_PHIK}
    s_mul_i32 s78, s69, {128*1280}""")
    srd(p, S_X, P_X, 128 * 1280, 's78')
    srd(p, S_W, P_W, 640 * 3840)
    def issue_now(G):
        for b in issue_group(G): p.extend(b)
    issue_now(0)
    p("s_mul_i32 s78, s70, 3200")
    srd(p, S_PHI, P_PHI, 3200, 's78')
    p(f"""v_lshlrev_b32 v{t}, 3, v0
    buffer_load_dwordx2 {vr(V_X,2)}, v{t}, {sr(S_PHI,4)}, 0 offen
    buffer_load_dwordx2 {vr(V_X+2,2)}, v{t}, {sr(S_PHI,4)}, 0 offen offset:2048""")
    trbase(p, V_TA, 8 * 320, 320)
    p(f"""v_add_u32 v{V_TA+1}, {8*GR}, v{V_TA}
    v_and_b32 v{t}, 31, v0
    v_bfe_u32 v{t+1}, v0, 1, 3
    v_bfe_u32 v{t+2}, v0, 5, 1
    v_xor_b32 v{t+1}, v{t+1}, v{t+2}
    v_lshlrev_b32 v{t+1}, 4, v{t+1}
    v_lshl_add_u32 v{t}, v{t}, 7, v{t+1}
    v_add_u32 v{V_XO}, s87, v{t}
    v_xor_b32 v{V_XO+1}, 32, v{V_XO}
    v_xor_b32 v{V_XO+2}, 64, v{V_XO}
    v_xor_b32 v{V_XO+3}, 96, v{V_XO}""")
    issue_now(1)
    p(f"""v_mov_b32 v{V_X+4}, 0
    v_mov_b32 v{V_X+5}, 0
    v_mov_b32 v{V_X+6}, 0
    v_mov_b32 v{V_X+7}, 0
    v_lshlrev_b32 v{t}, 4, v0
    v_add_u32 v{t}, {A_BD}, v{t}
    v_min_u32 v{t+1}, {A_BD+496}, v{t}
    ds_write_b128 v{t}, {vr(V_X+4,4)}
    ds_write_b128 v{t}, {vr(V_X+4,4)} offset:4096
    ds_write_b128 v{t}, {vr(V_X+4,4)} offset:8192
    ds_write_b128 v{t+1}, {vr(V_X+4,4)} offset:12288""")
    stamp(p)
    su = Prog()
    L2E = 1.4426950408889634
    su(f"s_mov_b32 s88, {f2u(L2E):#x}\n s_mov_b32 s89, {f2u(L2E):#x}")
    su(f"s_mov_b32 s78, {magic(5)}\n s_mov_b32 s85, {magic(100)}")
    for r in range(2):
        su(f"""v_add_u32 v{t}, {256*r}, v0
        v_mul_hi_u32 v{t+1}, v{t}, s78
        v_mul_hi_u32 v{t+2}, v{t}, s85
        v_mul_u32_u24 v{t+1}, 120, v{t+1}
        v_mad_u32_u24 v{t+1}, v{t+2}, 40, v{t+1}
        v_lshl_add_u32 v{t+1}, v{t}, 3, v{t+1}
        v_add_u32 v{V_X+8+r}, {A_BD}, v{t+1}""")
    su(f"""v_mov_b32 v{t+1}, {A_END}
    v_cmp_gt_u32 vcc, 400, v{t}
    v_cndmask_b32 v{V_X+9}, v{t+1}, v{V_X+9}, vcc""")
    su1 = su; su = Prog()
    srd(su, S_DBG, P_DBG, 256)
    su(f"s_mov_b32 s77, {magic(10)}")
    for i in range(5):
        su(f"""v_add_u32 v{t}, {64*i}, v{LN}
        v_mul_hi_u32 v{t+1}, v{t}, s77
        v_mul_u32_u24 v{t+2}, 10, v{t+1}
        v_sub_u32 v{t}, v{t}, v{t+2}
        v_and_b32 v{t+2}, 24, v{t+1}
        v_and_b32 v{t+3}, 1, v{t+1}
        v_lshl_add_u32 v{t+2}, v{t+3}, 2, v{t+2}
        v_bfe_u32 v{t+3}, v{t+1}, 1, 2
        v_add_u32 v{t+2}, v{t+2}, v{t+3}
        v_mul_u32_u24 v{t+2}, 3840, v{t+2}
        v_lshl_add_u32 v{V_QD[i]}, v{t}, 4, v{t+2}""")
    su(f"""v_bfe_u32 v{t}, v0, 5, 1
    v_bfe_u32 v{t+1}, v0, 2, 2
    v_lshl_add_u32 v{t}, v{t}, 2, v{t+1}
    v_mul_u32_u24 v{t}, 160, v{t}
    v_and_b32 v{t+1}, 1, v0
    v_mad_u32_u24 v{t}, v{t+1}, 40, v{t}
    v_bfe_u32 v{t+1}, v0, 4, 1
    v_bfe_u32 v{t+2}, v0, 1, 1
    v_lshl_add_u32 v{t+1}, v{t+1}, 1, v{t+2}
    v_lshl_add_u32 v{t}, v{t+1}, 3, v{t}
    v_add_u32 v18, {A_BD}, v{t}
    v_add_u32 v19, 32, v18
    v_add_u32 v{t+2}, 72, v18
    v_cmp_eq_u32 vcc, 0, v{t+1}
    v_cndmask_b32 v19, v{t+2}, v19, vcc
    v_add_u32 v20, 104, v18
    v_cmp_gt_u32 vcc, 2, v{t+1}
    v_cndmask_b32 v20, v18, v20, vcc""")
    trbase(su, t + 3, 8 * 160, 320); park(su, 'tq', t + 3)
    su(f"""v_and_b32 v{t}, 31, v0
    v_add_u32 v{t}, s76, v{t}
    v_bfe_u32 v{t+1}, v0, 5, 1
    v_mul_u32_u24 v{t+2}, {PHI_RS}, v{t}
    v_mul_u32_u24 v{t+3}, 80, v{t+1}
    v_add_u32 v{t+2}, v{t+2}, v{t+3}
    v_add_u32 v{t+2}, {A_PHIK}, v{t+2}
    v_mul_u32_u24 v{t}, 160, v{t}
    v_lshl_add_u32 v{t}, v{t+1}, 3, v{t}
    v_add_u32 v{t}, {A_VST}, v{t}""")
    park(su, 'phiw', t + 2); park(su, 'vw', t)
    su(f"""v_bfe_u32 v{t}, v0, 2, 4
    v_and_b32 v{t+1}, 3, v0
    v_mul_u32_u24 v{t+2}, {PHI_RS}, v{t}
    v_lshl_add_u32 v{t+2}, v{t+1}, 3, v{t+2}
    s_mul_i32 s78, s68, 80
    s_add_u32 s78, s78, {A_PHIK}
    v_add_u32 v{t+2}, s78, v{t+2}
    s_mul_i32 s78, s68, 40
    s_add_u32 s78, s78, {A_VST}
    v_mul_u32_u24 v{t}, 160, v{t}
    v_add_u32 v{t}, s78, v{t}
    v_lshl_add_u32 v{t+1}, v{t+1}, 3, v{t}
    v_add_u32 v{t}, 32, v{t}""")
    park(su, 'phir', t + 2); park(su, 'vr0', t + 1); park(su, 'vr1', t)
    a0 = V_PA
    su(f"""v_and_b32 v{t+3}, 15, v0
    v_bfe_u32 v{t+4}, v0, 4, 2
    v_lshlrev_b32 v{t}, 2, v{t+3}
    v_mul_u32_u24 v{t+1}, 768, v{t+4}
    v_add_u32 v{a0}, v{t}, v{t+1}
    v_mov_b32 v{t+2}, {OOB:#x}
    v_cmp_gt_u32 s[90:91], 8, v{t+3}
    v_cndmask_b32 v{a0+1}, v{t+2}, v{a0}, s[90:91]
    v_add_u32 v{t+1}, {16*192}, v{t}
    v_cmp_eq_u32 vcc, 0, v{t+4}
    v_cndmask_b32 v{a0+2}, v{t+2}, v{t+1}, vcc
    v_cndmask_b32 v{a0+3}, v{t+2}, v{a0+2}, s[90:91]
    v_add_u32 v{t+1}, {20*192}, v{t}
    v_cmp_eq_u32 vcc, 1, v{t+4}
    v_cndmask_b32 v{a0+4}, v{a0+2}, v{t+1}, vcc
    v_cndmask_b32 v{a0+5}, v{t+2}, v{a0+4}, s[90:91]
    v_cmp_eq_u32 vcc, 0, v{LN}
    v_cndmask_b32 v{a0+6}, v{t+2}, v{V_Z}, vcc
    v_cmp_gt_u32 s[90:91], 4, v{t+3}""")
    for k in range(6): park(su, f'at{k}', a0 + k)
    park(su, 'l0', a0 + 6)
    su(f"s_mov_b32 s78, {magic(12)}\n s_mul_i32 s85, s68, 1920\n s_add_u32 s85, s85, {A_KVIMG}\n v_mov_b32 v{t+4}, {A_KVIMG+9600}")
    for i in range(4):
        su(f"""v_add_u32 v{t}, {64*i}, v{LN}
        v_mul_hi_u32 v{t+1}, v{t}, s78
        v_mul_u32_u24 v{t+2}, 12, v{t+1}
        v_sub_u32 v{t+2}, v{t}, v{t+2}
        v_mul_u32_u24 v{t+1}, 80, v{t+1}
        v_lshl_add_u32 v{t+1}, v{t+2}, 3, v{t+1}
        v_add_u32 v{t+1}, s85, v{t+1}
        v_cmp_gt_u32 vcc, 10, v{t+2}
        v_cndmask_b32 v{t+1}, v{t+4}, v{t+1}, vcc""")
        if i == 3: su(f"v_cmp_gt_u32 vcc, 60, v{LN}\n v_cndmask_b32 v{t+1}, v{t+4}, v{t+1}, vcc")
        park(su, f'kvw{i}', t + 1)
    su(f"""v_lshlrev_b32 v{t}, 4, v0
    v_add_u32 v{t}, {A_KVIMG+7680}, v{t}
    v_cmp_gt_u32 vcc, 120, v0
    v_cndmask_b32 v{t}, v{t+4}, v{t}, vcc""")
    park(su, 'kvz', t)
    su(f"""v_bfe_u32 v{t}, v0, 3, 2
    v_and_b32 v{t+1}, 3, v0
    v_lshl_add_u32 v{t}, v{t}, 2, v{t+1}
    v_mul_u32_u24 v{t}, 80, v{t}
    v_bfe_u32 v{t+1}, v0, 2, 1
    v_mul_u32_u24 v{t+2}, 1920, v{t+1}
    v_add_u32 v{t}, v{t}, v{t+2}
    v_add_u32 v{t}, {A_KVIMG}, v{t}
    v_add_u32 v{t+3}, 3840, v{t}
    v_mov_b32 v{t+2}, {A_KVIMG+7680}
    v_bfe_u32 v{t+4}, v0, 5, 1
    v_cmp_eq_u32 vcc, v{t+1}, v{t+4}
    v_cndmask_b32 v{t}, v{t+2}, v{t}, vcc
    v_cndmask_b32 v{t+3}, v{t+2}, v{t+3}, vcc""")
    park(su, 'kvr0', t); park(su, 'kvr1', t + 3)
    setup_g2(su)

    def sync(p, G):
        p.waitvm(('dma', G)); p("s_barrier")
    p("s_waitcnt lgkmcnt(0)")
    sync(p, 0)
    stamp(p)
    def kv_reads(k):
        q = Prog(); fb = V_WF + (k % 2) * 20
        slot = k % NSLOT; base = V_TA + (slot >= 8); so = (slot % 8) * GR
        q(f"ds_read_b128 {ar(4*k,4)}, v{V_XO+k%4} offset:{((k//4)%4)*4096}")
        for T in range(5):
            for h in range(2):
                q(f"ds_read_b64_tr_b16 {vr(fb+4*T+2*h,2)}, v{base} offset:{so + 1280*h + 64*T}")
        return q
    PH = [(0, 0), (0, 1), (0, 2), (1, 0), (1, 1), (1, 2), (1, 3), (1, 4), (2, 2), (2, 3), (2, 4)]
    bdr = Prog()
    for n, (U, ka) in enumerate(PH):
        for h in range(2): bdr(f"ds_read_b64_tr_b16 {ar(160+4*n+2*h,2)}, v{18+U} offset:{(16*ka+8*h)*160}")
    p.extend(kv_reads(0))
    sub = bundles(su); nseg = 8
    segs = [[0, 1, 2]] + [list(range(4 * G - 1, 4 * G + 3)) for G in range(1, 10)] + [[39]]
    for si, steps in enumerate(segs):
        if si >= 1:
            if si == 10: p("s_waitcnt lgkmcnt(0)")
            if STAMP == 2: stamp(p)
            sync(p, si)
        m = Prog(); st = []
        for n, k in enumerate(steps):
            fb = V_WF + (k % 2) * 20
            for T in range(5): mfma32(m, vr(V_KA + 16 * T, 16), vr(fb + 4 * T, 4), ar(4 * k, 4), '0' if k == 0 else None)
            if k + 1 < 40: st.append((singles(kv_reads(k + 1)), 5 * n, 5 * n + 5))
        st.append((issue_group(si + 2), 0, None))
        if si == 0: st.append((bundles(su1), 0, None))
        if si == 1:
            w = Prog(); w(f"ds_write_b64 v{V_X+8}, {vr(V_X,2)}\n ds_write_b64 v{V_X+9}, {vr(V_X+2,2)}")
            st.append((singles(w), 2, 12))
        if 1 <= si <= nseg:
            c = (len(sub) + nseg - 1) // nseg
            st.append((sub[(si - 1) * c: si * c], 0, None))
        if si == 9:
            st.append((singles(bdr), 0, None))
            w = Prog(); w(f"buffer_load_dword v{V_X+10}, v{V_Z}, {sr(S_DBG,4)}, 0 offen sc1")
            st.append(([w], 0, 1))
        p.extend(pack(m, st))
    stamp(p)

    def phi_step(p, acc, out, extra=None):
        B = V_WF; E = V_WF + 24; M = V_WF + 64
        cv = [f"v_cvt_pk_bf16_f32 v{B+k}, v{acc+2*k}, v{acc+2*k+1}" for k in range(20)]
        def minmax(y):
            q = Prog(); x = V_PA + y * 20; Mx = M + 8 * y
            q(f"v_max3_f32 v{Mx}, v{x}, v{x+1}, v{x+2}\n v_min3_f32 v{Mx+2}, v{x}, v{x+1}, v{x+2}")
            for k in range(3, 19, 2):
                q(f"v_max3_f32 v{Mx}, v{Mx}, v{x+k}, v{x+k+1}\n v_min3_f32 v{Mx+2}, v{Mx+2}, v{x+k}, v{x+k+1}")
            q(f"v_max_f32 v{Mx}, v{Mx}, v{x+19}\n v_min_f32 v{Mx+2}, v{Mx+2}, v{x+19}")
            q(f"v_mul_f32 v{Mx}, s88, v{Mx}\n v_mul_f32 v{Mx+2}, s88, v{Mx+2}")
            return q
        for c in cv[:8]: p(c)
        m = Prog(); seen = set()
        for n, (U, ka) in enumerate(PH):
            mfma32(m, vr(V_PA + 16 * U, 16), ar(160 + 4 * n, 4), vr(B + 4 * ka, 4), None if U in seen else '0'); seen.add(U)
        c2 = Prog()
        for c in cv[8:]: c2(c)
        st = [(singles(c2), 0, 2)]
        if extra: st.append((bundles(extra), 2, 11))
        p.extend(pack(m, st))
        for y in range(2):
            x = V_PA + y * 20; Mx = M + 8 * y
            p.extend(minmax(y))
            for q in range(10):
                p(f"v_pk_fma_f32 {vr(E+2*q,2)}, {vr(x+2*q,2)}, s[88:89], {vr(Mx,2)} op_sel_hi:[1,1,0] neg_lo:[0,0,1] neg_hi:[0,0,1]")
                p(f"v_pk_fma_f32 {vr(E+20+2*q,2)}, {vr(x+2*q,2)}, s[88:89], {vr(Mx+2,2)} op_sel_hi:[1,1,0] neg_lo:[1,0,0] neg_hi:[1,0,0]")
            for q in range(40): p(f"v_exp_f32 v{E+q}, v{E+q}")
            for q in range(1, 10):
                for hh in range(2):
                    S = Mx + 4 + 2 * hh; e = E + 20 * hh
                    p(f"v_pk_add_f32 {vr(S,2)}, {vr(e if q == 1 else S,2)}, {vr(e+2*q,2)}")
            p(f"v_add_f32 v{Mx+4}, v{Mx+4}, v{Mx+5}\n v_add_f32 v{Mx+6}, v{Mx+6}, v{Mx+7}")
            p(f"v_rcp_f32 v{Mx+4}, v{Mx+4}\n v_rcp_f32 v{Mx+6}, v{Mx+6}")
            for hh in range(2):
                for q in range(10):
                    e = E + 20 * hh + 2 * q
                    p(f"v_pk_mul_f32 {vr(e,2)}, {vr(e,2)}, {vr(Mx+4+2*hh,2)} op_sel_hi:[1,0]")
            for q in range(20):
                p(f"v_cvt_pk_bf16_f32 v{out+y*20+q}, v{E+2*q}, v{E+2*q+1}")
            yield y

    unpark(p, 'vw', t + 1); unpark(p, 'phiw', t + 2)
    ex = Prog()
    for mm_ in range(10):
        a = V_VA + 4 * mm_; d = V_X + 2 * (mm_ % 4)
        ex(f"v_cvt_pk_bf16_f32 v{d}, v{a}, v{a+1}\n v_cvt_pk_bf16_f32 v{d+1}, v{a+2}, v{a+3}\n ds_write_b64 v{t+1}, {vr(d,2)} offset:{16*mm_}")
    for y in phi_step(p, V_KA, V_VA, ex):
        for q in range(5):
            p(f"ds_write_b128 v{t+2}, {vr(V_VA+y*20+4*q,4)} offset:{160*y + 16*q}")
    stamp(p)
    p(f"""v_readfirstlane_b32 s95, v{V_X+10}
    s_mov_b32 s94, {SPIN}
    s_cmp_ge_u32 s95, {NZERO_WG}""")
    p("s_cbranch_scc1 a_pz_x", tag='keep')
    p("a_pz:")
    p(f"""buffer_load_dword v{V_X+10}, v{V_Z}, {sr(S_DBG,4)}, 0 offen sc1
    s_sub_u32 s94, s94, 1
    s_waitcnt vmcnt(0)
    v_readfirstlane_b32 s95, v{V_X+10}
    s_cmp_eq_u32 s94, 0""", tag='offpath')
    p("s_cbranch_scc1 a_pz_x", tag='keep')
    p(f"s_cmp_ge_u32 s95, {NZERO_WG}")
    p("s_cbranch_scc0 a_pz", tag='keep')
    p("a_pz_x:")
    unpark(p, 'phir', t); unpark(p, 'vr0', t + 1); unpark(p, 'vr1', t + 2)
    p(f"v_mov_b32 v{t+3}, 0x3f803f80")
    for k in range(6): unpark(p, f'at{k}', V_X + k)
    unpark(p, 'tq', V_TA)
    p(f"""v_add_u32 v{V_TA+1}, {8*GR}, v{V_TA}
    s_lshl_b32 s78, s70, 2
    s_add_u32 s78, s78, s68
    s_lshl_b32 s78, s78, 12
    s_add_u32 s78, s78, {WS_KV}""")
    for i in range(5): unpark(p, f'wo{i}', V_WD + i)
    p("s_waitcnt lgkmcnt(0)\n s_barrier")
    F = V_WF
    for sw in range(4):
        fb = F + sw * 20
        for h in range(2): p(f"ds_read_b64_tr_b16 {vr(fb+2*h,2)}, v{t+1} offset:{(sw*32+h*16)*160}")
        for nf in range(3):
            for h in range(2):
                p(f"ds_read_b64_tr_b16 {vr(fb+8+4*nf+2*h,2)}, v{t} offset:{(sw*32+h*16)*PHI_RS + 32*nf}")
        for h in range(2): p(f"ds_read_b64_tr_b16 {vr(fb+4+2*h,2)}, v{t+2} offset:{(sw*32+h*16)*160}")
    D = V_PA
    for sw in range(4):
        fb = F + sw * 20
        for nf in range(3):
            mfma(p, vr(D + nf * 4, 4), vr(fb, 4), vr(fb + 8 + 4 * nf, 4), '0' if sw == 0 else None)
            if nf == 0:
                for q in range(4): p(f"v_cndmask_b32 v{fb+4+q}, v{t+3}, v{fb+4+q}, s[90:91]")
        for nf in range(3):
            mfma(p, vr(D + (3 + nf) * 4, 4), vr(fb + 4, 4), vr(fb + 8 + 4 * nf, 4), '0' if sw == 0 else None)
    def q_reads(k):
        q = Prog(); fb = V_WF + (k % 2) * 12
        slot = (40 + k // 2) % NSLOT; base = V_TA + (slot >= 8); so = (slot % 8) * GR + (k % 2) * 2560
        for T in range(3):
            for h in range(2):
                q(f"ds_read_b64_tr_b16 {vr(fb+4*T+2*h,2)}, v{base} offset:{so + 160*h + 64*T}")
        return q
    p.extend(q_reads(0))
    at = Prog(); a0 = V_X
    for md in range(2):
        for nf in range(3):
            for i in range(4):
                vo = (a0 if md == 0 else (a0 + 4 if i == 0 else a0 + 2)) + (1 if nf == 2 else 0)
                at(f"buffer_atomic_add_f32 v{D+(md*3+nf)*4+i}, v{vo}, {sr(S_WS,4)}, s78 offen offset:{i*192+nf*64}", tag='kvat')
    stamp(p)
    KS = opt('ks', 3)
    segs = [list(range(0, 7))] + [list(range(8 * g - 1, 8 * g + 7)) for g in range(1, 5)] + [[39]]
    for si, steps in enumerate(segs):
        G = 10 + si
        if si >= 1:
            if STAMP == 3: stamp(p)
            if si == KS:
                unpark(p, 'l0', V_X + 7)
                p(f"""v_mov_b32 v{V_X+6}, 1
                s_lshl_b32 s78, s70, 8
                s_lshl_b32 s85, s69, 4
                s_add_u32 s78, s78, s85
                s_lshl_b32 s85, s68, 2
                s_add_u32 s78, s78, s85""")
                p.waitvm('kvat')
                p(f"buffer_store_dword v{V_X+6}, v{V_X+7}, {sr(S_WS,4)}, s78 offen sc1")
            if G < 15: sync(p, G)
            else: p("s_barrier")
        m = Prog(); st = []
        for n, k in enumerate(steps):
            fb = V_WF + (k % 2) * 12
            for T in range(3): mfma32(m, vr(V_KA + 16 * T, 16), vr(fb + 4 * T, 4), ar(4 * k, 4), '0' if k == 0 else None)
            if k + 1 < 40: st.append((singles(q_reads(k + 1)), 3 * n, 3 * n + 3))
        if si == 0: st.append((singles(at), 0, None))
        elif si == 1: st.append((issue_group(13), 0, None))
        else: st.append((issue_group(G + 2), 0, None))
        p.extend(pack(m, st))
    stamp(p)
    ex = Prog()
    unpark(ex, 'kvz', t)
    ex(f"""v_mov_b32 v{V_X}, 0
    v_mov_b32 v{V_X+1}, 0
    v_mov_b32 v{V_X+2}, 0
    v_mov_b32 v{V_X+3}, 0
    ds_write_b128 v{t}, {vr(V_X,4)}
    v_lshlrev_b32 v{t+1}, 2, v{LN}
    v_lshlrev_b32 v{t+2}, 4, v{LN}
    s_lshl_b32 s78, s70, 8""")
    for i in range(4): unpark(ex, f'kvw{i}', V_X + 4 + i)
    for y in phi_step(p, V_KA, V_VA, ex): pass
    stamp(p)
    pollall(p, "a_pk", S_WS, 's78', V_X + 8, t + 1)
    stamp(p)
    p(f"""s_lshl_b32 s78, s70, 2
    s_add_u32 s78, s78, s68
    s_lshl_b32 s78, s78, 12
    s_add_u32 s78, s78, {WS_KV}""")
    for i in range(4):
        p(f"buffer_load_dwordx4 {vr(F+4*i,4)}, v{t+2}, {sr(S_WS,4)}, s78 offen offset:{1024*i} sc1")
    unpark(p, 'kvr0', t); unpark(p, 'kvr1', t + 1); unpark(p, 'l0', V_X + 9)
    p(f"""s_mul_i32 s76, s70, 5120
    s_add_u32 s78, s92, s76
    s_add_u32 s81, s78, 4096
    s_mov_b32 s85, {f2u(1e-6):#x}
    v_mov_b32 v{V_X+8}, 1""")
    for i in range(4):
        p(f"v_cvt_pk_bf16_f32 v{F+16+2*i}, v{F+4*i}, v{F+4*i+1}\n v_cvt_pk_bf16_f32 v{F+17+2*i}, v{F+4*i+2}, v{F+4*i+3}")
        p(f"ds_write_b64 v{V_X+4+i}, {vr(F+16+2*i,2)}")
    p("s_waitcnt lgkmcnt(0)\n s_barrier")
    stamp(p)
    order = [(y, u, ka) for y in range(2) for u in (1, 0) for ka in range(5)]
    NB = 10; O = F + 48
    def ord_(n):
        y, u, ka = order[n]; q = Prog(); q(f"ds_read_b128 {vr(F+4*(n%NB),4)}, v{t+y} offset:{u*1280+16*ka}"); return q
    for n in range(NB): p.extend(ord_(n))
    def fin(y):
        q = Prog(); dn = V_KA + 16 * y + 4
        vals = [V_PA + 16 * y + r for r in range(16)] + [V_KA + 16 * y + r for r in range(4)]
        for v in vals: q(f"v_mul_f32 v{v}, v{dn}, v{v}")
        for k in range(10): q(f"v_cvt_pk_bf16_f32 v{O+10*y+k}, v{vals[2*k]}, v{vals[2*k+1]}")
        return q
    om = Prog()
    for n, (y, u, ka) in enumerate(order):
        mfma32(om, vr((V_PA if u == 0 else V_KA) + 16 * y, 16), vr(F + 4 * (n % NB), 4), vr(V_VA + y * 20 + 4 * ka, 4), '0' if ka == 0 else None)
        if n + NB < 20: om.extend(ord_(n + NB))
        if ka == 2 and u == 0:
            dn = V_KA + 16 * y + 4
            om(f"v_add_f32 v{dn}, s85, v{dn}\n v_rcp_f32 v{dn}, v{dn}")
    p.extend(pack(om, [(issue_group(18), 0, 8), (singles(fin(0)), 12, 20)]))
    for pc in range(2): p(f"buffer_store_dwordx4 {vr(O+4*pc,4)}, v{t+2}, {sr(S_WS,4)}, s78 offen offset:{1024*pc} sc1")
    p.extend(fin(1))
    for pc in range(2, 5): p(f"buffer_store_dwordx4 {vr(O+4*pc,4)}, v{t+2}, {sr(S_WS,4)}, {'s81' if pc == 4 else 's78'} offen offset:{1024*(pc%4)} sc1")
    stamp(p)
    p(f"""s_lshl_b32 s85, s70, 2
    s_add_u32 s85, s85, s93
    s_waitcnt vmcnt(0)
    buffer_store_dword v{V_X+8}, v{V_X+9}, {sr(S_WS,4)}, s85 offen sc1""")
    gemm2_tail(p)
    return p

CP = 4168; YP = 4160; SRS = 544
B_RAW = 0
B_UC = 33280
B_KR = B_UC + 16 * CP
B_SC = B_KR + 4 * 4608
B_END = B_SC + 4 * 16 * SRS
def role_B():
    p = Prog(); nstamp[0] = 0
    S_U, S_LA, S_AI, S_CR, S_CI, S_LDT, S_DS, S_O, S_WSB = 40, 44, 48, 52, 56, 60, 64, 72, 76
    p("roleB:")
    stamp(p)
    p("""s_and_b32 s69, s2, 7
    s_mul_i32 s69, s69, 10
    s_lshr_b32 s70, s2, 3
    s_sub_u32 s70, s70, 16
    s_add_u32 s69, s69, s70""")
    LN, L15, G, Z = 1, 2, 3, 4
    p(f"""v_and_b32 v{LN}, 63, v0
    v_and_b32 v{L15}, 15, v0
    v_bfe_u32 v{G}, v0, 4, 2
    v_mov_b32 v{Z}, 0
    v_lshlrev_b32 v5, 2, v{LN}
    s_waitcnt lgkmcnt(0)""")
    for s_, ptr, size in ((S_LA, P_LA, 640*256), (S_AI, P_AI, 640*256), (S_CR, P_CR, 640*256), (S_CI, P_CI, 640*256), (S_LDT, P_LDT, 1280), (S_DS, P_DS, 1280)):
        srd(p, s_, ptr, size)
    PR = 8
    p(f"s_lshl_b32 s71, s69, 3\n s_add_u32 s71, s71, s68")
    for c2 in range(2):
        p(f"""s_add_u32 s80, s71, {4*c2}
        s_lshl_b32 s81, s80, 8
        s_lshl_b32 s80, s80, 1""")
        for k, s_ in enumerate((S_LA, S_AI, S_CR, S_CI)):
            p(f"buffer_load_dword v{PR+6*c2+k}, v5, {sr(s_,4)}, s81 offen")
        p(f"buffer_load_ushort v{PR+6*c2+4}, v{Z}, {sr(S_LDT,4)}, s80 offen")
        p(f"buffer_load_ushort v{PR+6*c2+5}, v{Z}, {sr(S_DS,4)}, s80 offen")
    p("s_lshl_b32 s80, s69, 4")
    srd(p, S_U, P_U, 0, 's80')
    p(f"""s_sub_u32 s{S_U+2}, {2048*1280}, s80
    v_mul_u32_u24 v6, 1280, v{LN}
    s_mul_i32 s80, s70, 3
    s_lshl_b32 s81, s68, 3
    s_add_u32 s80, s80, s81""")
    for i in range(8):
        p(f"""s_add_u32 s81, s80, {i}
        s_and_b32 s81, s81, 31
        s_mul_i32 s82, s81, {64*1280}
        s_lshl_b32 s81, s81, 10
        s_add_u32 m0, s81, {B_RAW+256}""")
        p(f"buffer_load_dwordx4 v6, {sr(S_U,4)}, s82 offen lds", tag='raw')
    stamp(p)
    p(f"s_lshl_b32 s80, s69, 4\n s_add_u32 s80, s80, 1280")
    srd(p, S_O, P_OUT, 0, 's80')
    p(f"s_sub_u32 s{S_O+2}, {2048*2560}, s80")
    srd(p, S_WSB, P_WS, WS_SIZE)
    T = 24
    p(f"""v_mov_b32 v20, 0
    v_mov_b32 v21, 0
    v_mov_b32 v22, 0
    v_mov_b32 v23, 0
    v_lshlrev_b32 v{T}, 4, v{L15}
    ds_write_b128 v{T}, v[20:23] offset:{B_RAW}
    s_mul_i32 s83, s68, 4608
    s_add_u32 s83, s83, {B_KR}
    s_mul_i32 s84, s68, {16*SRS}
    s_add_u32 s84, s84, {B_SC}
    v_and_b32 v{T}, 31, v0
    v_lshlrev_b32 v{T}, 4, v{T}
    v_add_u32 v{T}, s83, v{T}
    ds_write_b128 v{T}, v[20:23] offset:4096""")
    A_SW, A_SR, A_T0, A_T1, A_T1b, A_T2, A_X3, A_X2, A_X1, A_X0, A_KW, A_KW32, A_KB, MSK = range(24, 38)
    t = 40
    p(f"""v_lshl_add_u32 v{A_SW}, v{LN}, 3, v{Z}
    v_add_u32 v{A_SW}, s84, v{A_SW}
    v_mul_u32_u24 v{A_SR}, {SRS}, v{L15}
    v_lshl_add_u32 v{A_SR}, v{G}, 4, v{A_SR}
    v_add_u32 v{A_SR}, s84, v{A_SR}
    v_lshrrev_b32 v{t}, 1, v{G}
    v_and_b32 v{t+1}, 1, v{G}
    v_lshlrev_b32 v{A_T0}, 9, v{t}
    v_lshl_add_u32 v{A_T0}, v{t+1}, 4, v{A_T0}
    v_lshl_add_u32 v{A_T0}, v{L15}, 5, v{A_T0}
    v_add_u32 v{A_T0}, s84, v{A_T0}
    v_lshlrev_b32 v{t+2}, 4, v{L15}
    v_lshlrev_b32 v{t+3}, 3, v{L15}
    v_cmp_gt_u32 vcc, 2, v{G}
    v_cndmask_b32 v{t+2}, v{t+3}, v{t+2}, vcc
    v_lshl_add_u32 v{A_T1}, v{G}, 8, v{t+2}
    v_add_u32 v{A_T1}, s84, v{A_T1}
    v_mov_b32 v{t+2}, 128
    v_cndmask_b32 v{t+2}, v{t+2}, 8, vcc""".replace(f"v_cndmask_b32 v{t+2}, v{t+2}, 8, vcc", f"v_mov_b32 v{t+3}, 8\n v_cndmask_b32 v{t+2}, v{t+2}, v{t+3}, vcc"))
    p(f"""v_add_u32 v{A_T1b}, v{A_T1}, v{t+2}
    v_lshlrev_b32 v{A_T2}, 8, v{G}
    v_lshl_add_u32 v{A_T2}, v{L15}, 2, v{A_T2}
    v_add_u32 v{A_T2}, s84, v{A_T2}
    v_lshl_add_u32 v{A_X3}, v{LN}, 2, v{Z}
    v_add_u32 v{A_X3}, s84, v{A_X3}
    v_lshl_add_u32 v{A_X2}, v{LN}, 3, v{Z}
    v_add_u32 v{A_X2}, s84, v{A_X2}
    v_and_b32 v{t}, 31, v0
    v_lshlrev_b32 v{A_X1}, 4, v{t}
    v_add_u32 v{A_X1}, s84, v{A_X1}
    v_lshlrev_b32 v{A_X0}, 5, v{t}
    v_add_u32 v{A_X0}, s84, v{A_X0}
    v_lshlrev_b32 v{t+1}, 4, v{LN}
    v_sub_u32 v{A_KW}, s83, v{t+1}
    v_add_u32 v{A_KW}, 1008, v{A_KW}
    v_lshlrev_b32 v{t+1}, 4, v{t}
    v_sub_u32 v{A_KW32}, s83, v{t+1}
    v_add_u32 v{A_KW32}, 496, v{A_KW32}
    v_lshlrev_b32 v{t+1}, 5, v{L15}
    v_sub_u32 v{A_KB}, s83, v{t+1}
    v_lshl_add_u32 v{A_KB}, v{G}, 4, v{A_KB}
    v_add_u32 v{A_KB}, 480, v{A_KB}
    v_and_b32 v{t}, 1, v0
    v_mov_b32 v{t+1}, 0xffff
    v_mov_b32 v{t+2}, -1
    v_cmp_eq_u32 vcc, 1, v{t}
    v_cndmask_b32 v{MSK}, v{t+1}, v{t+2}, vcc
    s_mov_b32 s85, 0xffff
    s_mov_b32 s86, {f2u(1.4426950408889634):#x}
    s_mov_b32 s87, 0x32a57060
    s_mov_b32 s88, {f2u(0.6931471805599453):#x}
    s_mov_b32 s89, 0xffff0000""")

    def exp_bf16(p, d, x, t):
        p(f"""v_mul_f32 v{t}, s86, v{x}
        v_fma_f32 v{t+1}, v{x}, s86, -v{t}
        v_fma_f32 v{t+1}, v{x}, s87, v{t+1}
        v_exp_f32 v{t}, v{t}
        v_mul_f32 v{t+1}, s88, v{t+1}
        v_fma_f32 v{t}, v{t}, v{t+1}, v{t}
        v_cvt_pk_bf16_f32 v{t}, v{t}, v{t}
        v_and_b32 v{d}, s89, v{t}""")
    def cmul(p, c, a, b):
        p(f"v_pk_mul_f32 {vr(c,2)}, {vr(a,2)}, {vr(b,2)} op_sel:[0,0] op_sel_hi:[0,1]")
        p(f"v_pk_fma_f32 {vr(c,2)}, {vr(a,2)}, {vr(b,2)}, {vr(c,2)} op_sel:[1,1,0] op_sel_hi:[1,0,1] neg_lo:[0,1,0]")
    E = lambda k, mu: 48 + 4 * (k - 1) + 2 * mu
    E8 = lambda mu: 76 + 2 * mu
    E128 = lambda mu: 80 + 2 * mu
    GA = lambda par, mu: 84 + 4 * par + 2 * mu
    XT = lambda k, mu: 92 + 4 * (k % 2) + 2 * mu
    PK = lambda k: 100 + 2 * (k % 4)
    FB = 108
    FA = 140
    DT = 172
    def kgen(p, c2):
        P = PR + 6 * c2; t = 40
        p(f"v_lshlrev_b32 v{t+6}, 16, v{P+4}")
        exp_bf16(p, t + 7, t + 6, t)
        rho = lambda mu: 92 + mu; th = lambda mu: 94 + mu
        for mu in range(2):
            up = (lambda d, s_: f"v_lshlrev_b32 v{d}, 16, v{s_}") if mu == 0 else (lambda d, s_: f"v_and_b32 v{d}, s89, v{s_}")
            p(up(t + 6, P))
            exp_bf16(p, t + 5, t + 6, t)
            p(f"v_mul_f32 v{t+5}, v{t+5}, v{t+7}\n v_mul_f32 v{rho(mu)}, s86, v{t+5}")
            p(up(t + 6, P + 1))
            p(f"v_mul_f32 v{t+6}, v{t+6}, v{t+7}\n v_mul_f32 v{th(mu)}, 0.15915494, v{t+6}")
            p(up(t + 5, P + 2)); p(up(t + 6, P + 3))
            p(f"v_add_f32 v{t+4}, v{t+7}, v{t+7}\n v_mul_f32 v{GA(0,mu)}, v{t+5}, v{t+4}\n v_mul_f32 v{GA(0,mu)+1}, v{t+6}, v{t+4}")
        for pw, dst in ((1, lambda mu: E(1, mu)), (8, E8), (128, E128)):
            for mu in range(2):
                d = dst(mu); u = t + 3 * mu
                p(f"""v_mul_f32 v{u}, {f2u(-float(pw)):#x}, v{rho(mu)}
                v_mul_f32 v{u+1}, {f2u(float(pw)):#x}, v{th(mu)}
                v_exp_f32 v{u}, v{u}
                v_fract_f32 v{u+1}, v{u+1}
                v_cos_f32 v{d}, v{u+1}
                v_sin_f32 v{d+1}, v{u+1}
                v_pk_mul_f32 {vr(d,2)}, {vr(d,2)}, {vr(u if u % 2 == 0 else u - 1,2)} op_sel:[0,{u%2}] op_sel_hi:[1,{u%2}]""")
        cnt = [0]
        def put(row, src, neg=False):
            k = cnt[0]; cnt[0] += 1
            for mu in range(2):
                a = src(mu)
                p(f"v_cvt_pk_bf16_f32 v{PK(k)+mu}, v{a}, {'-' if neg else ''}v{a+1}")
            p(f"ds_write_b64 v{A_SW}, {vr(PK(k),2)} offset:{row*SRS}")
        p(f"v_mov_b32 v{PK(3)}, 0x3f80\n v_mov_b32 v{PK(3)+1}, 0x3f80\n ds_write_b64 v{A_SW}, {vr(PK(3),2)}")
        put(1, E8, True)
        prev = E8
        for b in range(2, 16):
            cur = (lambda bb: (lambda mu: XT(bb, mu)))(b)
            for mu in range(2): cmul(p, cur(mu), prev(mu), E8(mu))
            put(b, cur, True); prev = cur
        for ka in range(8): p(f"ds_read_b128 {vr(FB+4*ka,4)}, v{A_SR} offset:{64*ka}")
        for k in range(2, 8):
            for mu in range(2): cmul(p, E(k, mu), E(k - 1, mu), E(1, mu))
        al = [0]
        def Gcur(mu): return GA(al[0] % 2, mu)
        def Gnext():
            for mu in range(2): cmul(p, GA((al[0] + 1) % 2, mu), GA(al[0] % 2, mu), E128(mu))
            al[0] += 1
        def prod(row, k):
            if k == 0: put(row, Gcur); return
            for mu in range(2): cmul(p, XT(row, mu), Gcur(mu), E(k, mu))
            put(row, lambda mu: XT(row, mu))
        def tile(T):
            for ka in range(8): p(f"ds_read_b128 {vr(FA+4*ka,4)}, v{A_SR} offset:{64*ka}")
            return [f"v_mfma_f32_16x16x32_bf16 {vr(DT+4*T,4)}, {vr(FA+4*ka,4)}, {vr(FB+4*ka,4)}, {'0' if ka == 0 else vr(DT+4*T,4)}" for ka in range(8)]
        for a in range(2):
            for g in range(8): prod(8 * a + g, g)
            Gnext()
        mm = tile(0)
        for a in range(2):
            for g in range(4): prod(4 * a + g, 2 * g)
            Gnext()
            if a == 0:
                for x in mm: p(x)
        for a in range(4):
            for g in range(2): prod(8 + 2 * a + g, 4 * g)
            Gnext()
        mm = tile(1)
        for a in range(9):
            prod(a, 0)
            if a < 8: Gnext()
            if a == 3:
                for x in mm: p(x)
        for x in tile(2): p(x)
        p(f"""v_lshlrev_b32 v{t}, 16, v{P+5}
        v_cmp_eq_u32 vcc, 0, v{LN}
        v_cndmask_b32 v{t}, v{Z}, v{t}, vcc
        v_add_f32 v{DT}, v{DT}, v{t}""")
        for q in range(12): p(f"v_cvt_pk_bf16_f32 v{DT+q}, v{DT+q}, v{DT+q}")
        p(f"""ds_write_b128 v{A_T0}, {vr(DT,4)}
        ds_write_b64 v{A_T1}, {vr(DT+4,2)} offset:1024
        ds_write_b64 v{A_T1b}, {vr(DT+6,2)} offset:1024""")
        for i in range(4): p(f"ds_write_b32 v{A_T2}, v{DT+8+i} offset:{2048+64*i}")
        R = FA
        for r in range(2):
            p(f"ds_read_b32 v{R+4*r}, v{A_X3} offset:{2048+256*r+4}")
            p(f"ds_read_b32 v{R+4*r+2}, v{A_X3} offset:{2048+256*r}\n ds_read_b32 v{R+4*r+3}, v{A_X3} offset:{2048+256*r}")
        p(f"""ds_read_b32 v{R+8}, v{A_X2} offset:{1536+8}
        ds_read_b32 v{R+9}, v{A_X2} offset:{1536+4}
        ds_read_b32 v{R+11}, v{A_X2} offset:{1536}
        ds_read_b128 {vr(R+16,4)}, v{A_X1} offset:1024
        ds_read_b32 v{R+20}, v{A_X1} offset:{1024+16}
        ds_read_b128 {vr(R+24,4)}, v{A_X0}
        ds_read_b128 {vr(R+28,4)}, v{A_X0} offset:16""")
        for r in range(2):
            p(f"v_bfi_b32 v{R+4*r+1}, v{MSK}, v{R+4*r}, v{R+4*r+2}")
            p(f"ds_write_b128 v{A_KW}, {vr(R+4*r,4)} offset:{1024*(1-r)}")
        p(f"""v_bfi_b32 v{R+10}, s85, v{R+9}, v{R+11}
        ds_write_b128 v{A_KW}, {vr(R+8,4)} offset:2048
        v_bfi_b32 v{R+12}, s85, v{R+20}, v{R+19}
        v_mov_b32 v{R+13}, v{R+18}
        v_bfi_b32 v{R+14}, s85, v{R+18}, v{R+17}
        v_mov_b32 v{R+15}, v{R+16}
        ds_write_b128 v{A_KW32}, {vr(R+12,4)} offset:3072
        v_bfi_b32 v{R+16}, s85, v{R+31}, v{R+30}
        v_bfi_b32 v{R+17}, s85, v{R+29}, v{R+28}
        v_bfi_b32 v{R+18}, s85, v{R+27}, v{R+26}
        v_bfi_b32 v{R+19}, s85, v{R+25}, v{R+24}
        ds_write_b128 v{A_KW32}, {vr(R+16,4)} offset:3584""")

    Y = 184
    UB = 216
    def conv(p, c2):
        t = 40
        p(f"""s_add_u32 s80, s68, {4*c2}
        s_mul_i32 s81, s80, {2*CP}
        s_add_u32 s81, s81, {B_UC}
        v_and_b32 v{t}, 1, v0
        v_mul_u32_u24 v{t}, {CP}, v{t}
        v_lshrrev_b32 v{t+1}, 1, v{L15}
        v_lshl_add_u32 v{t+1}, v{G}, 2, v{t+1}
        v_lshl_add_u32 v{t}, v{t+1}, 2, v{t}
        v_add_u32 v{UB}, s81, v{t}
        v_add_u32 v{UB+1}, 1024, v{UB}
        v_add_u32 v{UB+2}, 2048, v{UB}
        v_add_u32 v{UB+3}, 3072, v{UB}
        s_mul_i32 s80, s80, {YP}
        v_lshlrev_b32 v{t}, 5, v{L15}
        v_lshl_add_u32 v{t}, v{G}, 3, v{t}
        v_add_u32 v{UB+4}, s80, v{t}""")
        def fa(b, a): return ar((b % 2) * 64 + 4 * a, 4)
        def fb(b, c): return ar((b % 2) * 64 + 32 + 4 * c, 4)
        def reads(b):
            q = Prog()
            for a in range(8):
                o = 128 * (a % 2) + 16 * b; r0 = (b % 2) * 64 + 4 * a
                q(f"ds_read_b128 {fb(b,a)}, v{A_KB} offset:{512*(7-a)+64*b}")
                q(f"ds_read2_b32 {ar(r0,2)}, v{UB+a//2} offset0:{o} offset1:{o+1}")
                q(f"ds_read2_b32 {ar(r0+2,2)}, v{UB+a//2} offset0:{o+2} offset1:{o+3}")
            return q
        p.extend(reads(0))
        for b in range(8):
            m = Prog()
            prs = sorted([(a, c) for c in range(8) for a in range(c + 1)], key=lambda x: (max(x[0], x[1] - x[0]), x[1]))
            seen = set()
            for a, c in prs:
                first = b == 0 and c not in seen; seen.add(c)
                mfma(m, vr(Y + 4 * c, 4), fa(b, a), fb(b, c - a), '0' if first else None)
            p.extend(merge(m, reads(b + 1) if b < 7 else Prog(), start=4))
        for c in range(8):
            d = 40 + 2 * (c % 4)
            p(f"v_cvt_pk_bf16_f32 v{d}, v{Y+4*c}, v{Y+4*c+1}\n v_cvt_pk_bf16_f32 v{d+1}, v{Y+4*c+2}, v{Y+4*c+3}")
            p(f"ds_write_b64 v{UB+4}, {vr(d,2)} offset:{B_RAW+512*c}")

    kgen(p, 0)
    stamp(p)
    p.waitvm('raw'); p("s_waitcnt lgkmcnt(0)\n s_barrier")
    stamp(p)
    p(f"""v_bfe_u32 v{t}, v0, 2, 2
    v_lshl_add_u32 v{t}, v{G}, 3, v{t}
    v_bfe_u32 v{t+1}, v0, 1, 1
    v_lshl_add_u32 v{t}, v{t+1}, 2, v{t}
    v_lshlrev_b32 v{t}, 4, v{t}
    v_and_b32 v{t+1}, 1, v0
    v_lshl_add_u32 v{t}, v{t+1}, 3, v{t}
    s_lshl_b32 s80, s68, 9
    v_add_u32 v{t}, s80, v{t}
    v_and_b32 v{t+1}, 7, v0
    v_mul_u32_u24 v{t+1}, {2*CP}, v{t+1}
    v_bfe_u32 v{t+2}, v0, 3, 1
    v_lshl_add_u32 v{t+1}, v{t+2}, 3, v{t+1}
    v_lshl_add_u32 v{t+1}, v{G}, 4, v{t+1}
    s_lshl_b32 s80, s68, 6
    s_add_u32 s80, s80, {B_UC}
    v_add_u32 v{t+1}, s80, v{t+1}""")
    jobs = [(k, pp) for k in range(17) for pp in range(2)]
    NBUF = 8
    def rdj(n):
        k, pp = jobs[n]; p(f"ds_read_b64_tr_b16 {vr(48+2*(n%NBUF),2)}, v{t} offset:{B_RAW + 16*(1+pp) + 2048*k}")
    def wrj(n):
        k, pp = jobs[n]
        if k == 16: p(f"ds_write_b64 v{t+3}, {vr(48+2*(n%NBUF),2)} offset:{pp*CP + 256*k}")
        else: p(f"ds_write_b64 v{t+1}, {vr(48+2*(n%NBUF),2)} offset:{pp*CP + 256*k}")
    p(f"""s_cmp_eq_u32 s68, 0
    s_cselect_b32 s80, 2, 0
    v_mov_b32 v{t+2}, {B_END - 4096}
    v_cmp_gt_u32 vcc, s80, v{G}
    v_cndmask_b32 v{t+3}, v{t+2}, v{t+1}, vcc""")
    for n in range(NBUF): rdj(n)
    for n in range(len(jobs)):
        wrj(n)
        if n + NBUF < len(jobs): rdj(n + NBUF)
    p("s_waitcnt lgkmcnt(0)\n s_barrier")
    stamp(p)
    conv(p, 0)
    stamp(p)
    kgen(p, 1)
    stamp(p)
    conv(p, 1)
    stamp(p)
    p("s_waitcnt lgkmcnt(0)\n s_barrier")
    p(f"""v_bfe_u32 v{t}, v0, 2, 2
    v_mul_u32_u24 v{t}, {YP}, v{t}
    v_and_b32 v{t+1}, 3, v0
    v_lshl_add_u32 v{t}, v{t+1}, 3, v{t}
    v_lshl_add_u32 v{t}, v{G}, 5, v{t}
    s_lshl_b32 s80, s68, 10
    v_add_u32 v{t}, s80, v{t}
    v_mul_u32_u24 v{t+1}, 2560, v{LN}
    s_mul_i32 s80, s68, {512*2560}""")
    for it in range(8):
        for h in range(2):
            p(f"ds_read_b64_tr_b16 {vr(48+4*it+2*h,2)}, v{t} offset:{B_RAW + h*4*YP + 128*it}")
    for it in range(8):
        p(f"buffer_store_dwordx4 {vr(48+4*it,4)}, v{t+1}, {sr(S_O,4)}, s80 offen")
        p(f"s_add_u32 s80, s80, {64*2560}")
    stamp(p)
    stamp_store(p, S_WSB)
    p("s_endpgm")
    return p

def role_S():
    p = Prog()
    p("roleS:")
    if opt('cpf', 1):
        p(f"""s_getpc_b64 s[40:41]
        cpf_here:
        s_sub_u32 s40, s40, cpf_here-{NAME}_kernel
        s_subb_u32 s41, s41, 0
        s_lshr_b32 s42, s2, 3
        s_and_b32 s42, s42, 1
        s_lshl_b32 s42, s42, 15
        v_lshlrev_b32 v8, 7, v0
        v_add_u32 v8, s42, v8
        v_cmp_gt_u32 vcc, code_end-{NAME}_kernel, v8
        v_cndmask_b32 v8, 0, v8, vcc
        global_load_dword v9, v8, s[40:41]""")
    p(f"""s_sub_u32 s69, s2, 208
    s_waitcnt lgkmcnt(0)""")
    srd(p, 40, P_WS, WS_ZERO_END)
    srd(p, S_DBG, P_DBG, 256)
    p(f"""s_lshl_b32 s70, s69, 12
    v_lshlrev_b32 v1, 4, v0
    v_mov_b32 v4, 0
    v_mov_b32 v5, 0
    v_mov_b32 v6, 0
    v_mov_b32 v7, 0
    buffer_store_dwordx4 v[4:7], v1, s[40:43], s70 offen sc1
    v_mov_b32 v2, 1
    v_mov_b32 v3, {OOB:#x}
    v_cmp_eq_u32 vcc, 0, v0
    v_cndmask_b32 v3, v3, v4, vcc
    s_waitcnt vmcnt(0)
    s_barrier
    buffer_atomic_add v2, v3, {sr(S_DBG,4)}, 0 offen sc1
    s_cmp_ge_u32 s2, 240""")
    p("s_cbranch_scc1 done", tag='keep')
    p(f"""s_and_b32 s72, s2, 7
    s_lshr_b32 s69, s72, 1
    s_lshl_b32 s69, s69, 2
    s_lshr_b32 s73, s2, 3
    s_sub_u32 s73, s73, 26
    s_add_u32 s69, s69, s73
    s_and_b32 s83, s72, 1
    s_add_u32 s83, s83, 8
    s_lshl_b32 s83, s83, 7
    s_mul_i32 s84, s68, {GR}
    v_and_b32 v{LN}, 63, v0
    v_mov_b32 v{V_Z}, 0""")
    if STAMP: p("v_mov_b32 v255, 0")
    setup_g2(p)
    for i in range(5): unpark(p, f'wo{i}', V_WD + i)
    for G in range(15, 19):
        for b in issue_group(G): p.extend(b)
    p(f"s_mov_b32 s94, {SPIN}")
    p("s_pz:")
    p(f"""buffer_load_dword v{V_X+10}, v{V_Z}, {sr(S_DBG,4)}, 0 offen sc1
    s_sub_u32 s94, s94, 1
    s_waitcnt vmcnt(0)
    v_readfirstlane_b32 s95, v{V_X+10}
    s_cmp_eq_u32 s94, 0""")
    p("s_cbranch_scc1 g2_tail", tag='keep')
    p(f"s_cmp_ge_u32 s95, {NZERO_WG}")
    p("s_cbranch_scc1 g2_tail", tag='keep')
    p("s_sleep 4\n s_branch s_pz")
    p("done:\n s_endpgm\n code_end:")
    return p

def main():
    LDS = max(A_END + 16, B_END + 4608)
    assert LDS <= 163840, LDS
    ref = open(f"cdna_kernels/{NAME}.s.ref").read().split('\n')
    hdr = [l for l in ref if l.startswith(';') and '@launch' not in l]
    s = '\n'.join(hdr) + f"\n; @launch grid=(256,1,1) block=(256,1,1) lds={LDS}\n"
    s += f""".amdgcn_target "amdgcn-amd-amdhsa--gfx950"
.text
.globl {NAME}_kernel
.p2align 8
.type {NAME}_kernel,@function
{NAME}_kernel:
"""
    e = Prog()
    e(f"""s_cmp_ge_u32 s2, 256
    s_cbranch_scc1 done
    s_load_dwordx16 s[8:23], s[0:1], 0
    s_load_dwordx8 s[24:31], s[0:1], 64
    s_load_dwordx4 s[32:35], s[0:1], 96
    v_lshrrev_b32 v1, 6, v0
    s_nop 0
    v_readfirstlane_b32 s68, v1
    s_cmp_ge_u32 s2, 208
    s_cbranch_scc1 roleS
    s_cmp_ge_u32 s2, 128
    s_cbranch_scc1 roleB""")
    a = role_A()
    e.extend(a)
    s += finalize(e) + finalize(role_B()) + finalize(role_S())
    s += f""".section .rodata,"a"
.p2align 6
.amdhsa_kernel {NAME}_kernel
  .amdhsa_next_free_vgpr 512
  .amdhsa_next_free_sgpr 102
  .amdhsa_accum_offset 256
  .amdhsa_group_segment_fixed_size 0
  .amdhsa_kernarg_size 112
  .amdhsa_user_sgpr_count 2
  .amdhsa_user_sgpr_kernarg_segment_ptr 1
  .amdhsa_system_sgpr_workgroup_id_x 1
.end_amdhsa_kernel
"""
    out = OPT.get('out', f"cdna_kernels/{NAME}.s")
    open(out, 'w').write(s)
    print("LDS", LDS, "A_END", A_END, "B_END", B_END, "lines", s.count('\n'))
main()
```

```python
import re

REG_RE = re.compile(r'(?<![\w.])([vas])(\d+)(?![\w\[])|(?<![\w.])([vas])\[(\d+):(\d+)\]')
TRANS = ('v_exp_f32', 'v_log_f32', 'v_rcp_f32', 'v_rsq_f32', 'v_sqrt_f32', 'v_sin_f32', 'v_cos_f32')

def regs_of(tok):
    out = []
    for m in REG_RE.finditer(tok):
        if m.group(1): out.append((m.group(1), int(m.group(2))))
        else: out += [(m.group(3), i) for i in range(int(m.group(4)), int(m.group(5)) + 1)]
    t = tok.strip().lstrip('-').strip('|')
    if t == 'vcc': out += [('s', 'vcc_lo'), ('s', 'vcc_hi')]
    elif t in ('vcc_lo', 'vcc_hi'): out.append(('s', t))
    elif t == 'exec': out += [('s', 'exec')]
    elif t == 'm0': out.append(('s', 'm0'))
    return out

def split_ops(s):
    ops = []; depth = 0; cur = ''
    for ch in s:
        if ch in '[(': depth += 1
        if ch in '])': depth -= 1
        if ch == ',' and depth == 0: ops.append(cur.strip()); cur = ''
        else: cur += ch
    if cur.strip(): ops.append(cur.strip())
    return ops

class I:
    __slots__ = ('text', 'mn', 'defs', 'uses', 'kind', 'tag', 'srcc', 'passes', 'wide', 'note')
    def __init__(self, text, tag=None):
        self.text = text.strip(); self.tag = tag; self.note = None
        self.srcc = []; self.passes = 0; self.wide = False
        t = self.text
        if t.endswith(':') or t.startswith('.') or t.startswith(';'):
            self.mn = t; self.kind = 'label' if t.endswith(':') else 'dir'; self.defs = []; self.uses = []; return
        parts = t.split(None, 1)
        mn = parts[0]; self.mn = mn
        rest = parts[1] if len(parts) > 1 else ''
        base = re.sub(r'_(e32|e64|dpp)$', '', mn)
        ops = split_ops(rest)
        if ops:
            last = ops[-1].split()
            mods = ' '.join(last[1:]) if len(last) > 1 else ''
            ops[-1] = last[0]
        else: mods = ''
        R = [regs_of(o) for o in ops]
        flat = lambda l: [x for y in l for x in y]
        defs = []; uses = []
        if base.startswith('v_mfma'):
            self.kind = 'mfma'; defs = R[0]; uses = flat(R[1:4]); self.srcc = R[3]
            self.passes = 8 if '32x32' in base else 4
        elif base.startswith('v_cmp'):
            self.kind = 'valu'; defs = R[0]; uses = flat(R[1:])
        elif base in ('v_readfirstlane_b32', 'v_readlane_b32'):
            self.kind = 'valu'; defs = R[0]; uses = flat(R[1:])
        elif base.startswith('v_permlane') and 'swap' in base:
            self.kind = 'valu'; defs = flat(R[:2]); uses = flat(R[:2])
        elif base.startswith('v_'):
            self.kind = 'valu'; defs = R[0]; uses = flat(R[1:])
            if base in ('v_fmac_f32', 'v_pk_fmac_f16', 'v_writelane_b32') or 'dpp' in mods or 'row_' in mods or 'quad_perm' in mods: uses = uses + R[0]
            if base in ('v_add_co_u32', 'v_sub_co_u32', 'v_addc_co_u32'): defs = flat(R[:2]); uses = flat(R[2:])
            if base == 'v_cndmask_b32' and len(ops) == 3: uses += regs_of('vcc')
        elif base.startswith('ds_read') or base.startswith('ds_bpermute') or base.startswith('ds_swizzle'):
            self.kind = 'ds'; defs = R[0]; uses = flat(R[1:])
        elif base.startswith('ds_'):
            self.kind = 'ds'; uses = flat(R)
        elif base.startswith('buffer_load') or base.startswith('global_load'):
            self.kind = 'vm'
            if re.search(r'\blds\b', mods): uses = flat(R) + [('s', 'm0')]; self.note = 'dma'
            else: defs = R[0]; uses = flat(R[1:])
        elif base.startswith('buffer_atomic') or base.startswith('global_atomic'):
            self.kind = 'vm'; uses = flat(R)
            if 'sc0' in mods: defs = R[0]
        elif base.startswith('buffer_store') or base.startswith('global_store'):
            self.kind = 'vm'; uses = flat(R)
            if 'x3' in base or 'x4' in base:
                self.wide = True
                self.srcc = R[0] if base.startswith('buffer') else R[1]
        elif base.startswith('s_load') or base in ('s_memtime', 's_memrealtime'):
            self.kind = 'smem'; defs = R[0]; uses = flat(R[1:])
        elif base == 's_waitcnt': self.kind = 'wait'
        elif base == 's_nop': self.kind = 'nop'
        elif base == 's_barrier': self.kind = 'barrier'
        elif base.startswith('s_cbranch') or base in ('s_branch', 's_setpc_b64', 's_swappc_b64', 's_endpgm', 's_call_b64'):
            self.kind = 'branch'; uses = flat(R)
        elif base.startswith('s_cmp') or base in ('s_sleep', 's_setprio', 's_bitcmp1_b32', 's_bitcmp0_b32'):
            self.kind = 'salu'; uses = flat(R)
        elif base.startswith('s_'):
            self.kind = 'salu'; defs = R[0]; uses = flat(R[1:])
            if 'saveexec' in base: defs = defs + [('s', 'exec')]
        else:
            raise ValueError('unknown instr ' + t)
        self.defs = defs; self.uses = uses
    def states(self):
        if self.kind == 'nop': return int(self.text.split()[1], 0) + 1
        if self.kind in ('label', 'dir'): return 0
        return 1

class Prog:
    def __init__(self):
        self.L = []
    def __call__(self, text, tag=None):
        for line in text.split('\n'):
            line = line.split(';;')[0].strip()
            if line: self.L.append(I(line, tag))
    def waitvm(self, tag):
        i = I('; waitvm ' + str(tag)); i.kind = 'waitvm'; i.tag = tag; self.L.append(i)
    def need(self, regs):
        i = I('; need'); i.kind = 'need'; i.uses = [r for tok in regs for r in regs_of(tok)]; i.defs = []; self.L.append(i)
    def waitall(self, vm=True, lgkm=True):
        self(('s_waitcnt ' + ('vmcnt(0) ' if vm else '') + ('lgkmcnt(0)' if lgkm else '')).strip())
    def extend(self, other): self.L += other.L

def merge(main, side, ratio_fn=None, start=0, every=1, count=1):
    out = Prog(); si = 0; nm = 0
    S = side.L
    for ins in main.L:
        out.L.append(ins)
        if ins.kind == 'mfma':
            nm += 1
            if nm > start and (nm - start) % every == 0:
                c = 0
                while c < count and si < len(S):
                    out.L.append(S[si]);
                    if S[si].kind not in ('dir', 'waitvm'): c += 1
                    si += 1
    out.L += S[si:]
    return out

def insert_waits(L):
    out = []; vm = []; lg = []; smem = set()
    def need(q, regs, tagmatch=None):
        idx = -1
        for k, e in enumerate(q):
            if (regs and e[0] & regs) or (tagmatch is not None and e[1] == tagmatch): idx = k
        return idx
    for ins in L:
        if ins.tag == 'offpath':
            out.append(ins); continue
        if ins.kind == 'wait':
            m = re.search(r'vmcnt\((\d+)\)', ins.text)
            if m: n = int(m.group(1)); vm = vm[len(vm) - n:] if n < len(vm) and n > 0 else ([] if n == 0 else vm)
            m = re.search(r'lgkmcnt\((\d+)\)', ins.text)
            if m:
                n = int(m.group(1))
                if n == 0: lg = []; smem = set()
                elif not smem and n < len(lg): lg = lg[len(lg) - n:]
            out.append(ins); continue
        if ins.kind == 'label':
            out.append(ins); continue
        regs = set(ins.uses) | set(ins.defs)
        w = []
        if ins.kind == 'waitvm': k = need(vm, None, ins.tag)
        else: k = need(vm, regs)
        if k >= 0:
            n = len(vm) - 1 - k
            w.append('vmcnt(%d)' % min(n, 62)); vm = vm[k + 1:]
        if smem & regs or (smem and need(lg, regs) >= 0):
            w.append('lgkmcnt(0)'); lg = []; smem = set()
        else:
            k = need(lg, regs)
            if k >= 0:
                n = len(lg) - 1 - k
                w.append('lgkmcnt(%d)' % min(n, 14)); lg = lg[k + 1:]
        if w: out.append(I('s_waitcnt ' + ' '.join(w)))
        if ins.kind in ('waitvm', 'need'): continue
        out.append(ins)
        if ins.kind == 'vm': vm.append((set(ins.defs), ins.tag))
        elif ins.kind == 'ds': lg.append((set(ins.defs), ins.tag))
        elif ins.kind == 'smem': smem |= set(ins.defs); smem.add(('x', 0))
        if ins.kind == 'branch' and ins.mn != 's_endpgm' and 'nocheck' not in (ins.tag or ''):
            pend = [e for e in vm + lg if e[0]]
            if pend and not (ins.tag and 'keep' in ins.tag):
                raise ValueError('pending loads across branch: ' + ins.text + ' ' + str(pend[:2]))
    return out

def isv(r): return r[0] in 'va'
def req_states(p, c):
    n = 0
    pd = set(p.defs); cu = set(c.uses); cd = set(c.defs)
    cb = re.sub(r'_e(32|64)$', '', c.mn); pb = re.sub(r'_e(32|64)$', '', p.mn)
    if p.kind == 'valu':
        vd = {r for r in pd if isv(r)}; sd = pd - vd
        if c.kind == 'mfma' and vd & cu: n = max(n, 2)
        if c.kind == 'valu':
            if cb in ('v_readfirstlane_b32', 'v_readlane_b32') and vd & cu: n = max(n, 1)
            if cb.startswith('v_permlane') and vd & cu: n = max(n, 2)
            if ('row_' in c.text or 'quad_perm' in c.text or 'dpp' in c.text) and vd & cu: n = max(n, 2)
            if pb in TRANS and cb not in TRANS and vd & cu: n = max(n, 1)
            if pb in TRANS and vd & cu: n = max(n, 1)
            if sd & cu: n = max(n, 4 if cb in ('v_readlane_b32', 'v_writelane_b32') else 2)
            if 'op_sel' in p.text and not pb.startswith('v_pk') and vd & (cu | cd): n = max(n, 1)
        if pb in TRANS and c.kind in ('ds', 'vm') and vd & cu: n = max(n, 1)
        if c.kind == 'vm' and sd & cu: n = max(n, 5)
        if c.kind in ('salu', 'branch', 'smem') and sd & cu: n = max(n, 1)
    elif p.kind == 'mfma':
        P = p.passes
        if c.kind == 'mfma':
            cc = set(c.srcc); ab = cu - cc if not (cu - cc) & cc else cu
            abregs = set(regs_of(split_ops(c.text.split(None, 1)[1])[1])) | set(regs_of(split_ops(c.text.split(None, 1)[1])[2]))
            if pd & abregs: n = max(n, 8 if P == 4 else 12)
            if pd & cc:
                if not (list(p.defs) == list(c.srcc) and c.passes == P): n = max(n, 6 if P == 4 else 10)
            elif pd & cd: n = max(n, 8 if P == 4 else 12)
        elif c.kind in ('valu', 'ds', 'vm'):
            if pd & (cu | cd): n = max(n, 8 if P == 4 else 12)
            if c.kind == 'valu' and set(p.srcc) & cd: n = max(n, 3 if P == 4 else 7)
    elif p.kind == 'salu':
        if ('s', 'm0') in pd and c.note == 'dma': n = max(n, 1)
        if ('s', 'exec') in pd and c.kind == 'mfma': n = max(n, 1)
    elif p.kind == 'vm' and p.wide:
        if set(p.srcc) & cd: n = max(n, 2)
    return n

def insert_nops(L):
    out = []
    for ins in L:
        if ins.kind in ('label', 'dir', 'nop', 'wait', 'barrier'):
            out.append(ins); continue
        need = 0; dist = 0
        for p in reversed(out):
            if dist >= 12: break
            r = req_states(p, ins)
            if r - dist > need: need = r - dist
            dist += p.states()
        if need > 0: out.append(I('s_nop %d' % (need - 1)))
        out.append(ins)
    return out

def finalize(prog):
    L = insert_waits(prog.L)
    L = insert_nops(L)
    return '\n'.join((i.text if i.kind in ('label',) or i.text.startswith('.') else ' ' + i.text) for i in L) + '\n'

def spread(main, bundles, lo=0, hi=None):
    n = sum(1 for i in main.L if i.kind == 'mfma')
    if hi is None: hi = n
    nb = len(bundles)
    pos = {}
    for k, b in enumerate(bundles):
        q = lo + int((k + 0.5) * (hi - lo) / nb) if nb else 0
        pos.setdefault(min(max(q, 0), n - 1), []).append(b)
    out = Prog(); c = 0
    for ins in main.L:
        out.L.append(ins)
        if ins.kind == 'mfma':
            for b in pos.get(c, []): out.L += b.L
            c += 1
    return out
def singles(prog):
    r = []
    for i in prog.L:
        q = Prog(); q.L = [i]; r.append(q)
    return r

def cost(i):
    if i.kind == 'vm': return 14
    if i.kind == 'ds': return 20 if i.mn.startswith('ds_write') else 4
    if i.kind == 'valu': return 8 if re.sub(r'_e(32|64)$', '', i.mn) in TRANS else 4
    if i.kind == 'salu': return 2
    return 0
def pack(main, streams, cap=24):
    n = sum(1 for i in main.L if i.kind == 'mfma')
    allit = []
    for si, (items, lo, hi) in enumerate(streams):
        hi = n if hi is None else hi
        for k, b in enumerate(items):
            allit.append((lo + (k + 0.5) * (hi - lo) / len(items) - 0.5, si, k, b))
    allit.sort(key=lambda x: (x[0], x[1], x[2]))
    out = Prog(); c = 0; q = 0
    for ins in main.L:
        out.L.append(ins)
        if ins.kind == 'mfma':
            used = 0
            while q < len(allit) and (allit[q][0] <= c + 0.49 or c == n - 1):
                cs = sum(cost(i) for i in allit[q][3].L)
                if used and used + cs > cap and c != n - 1: break
                out.L += allit[q][3].L; used += cs; q += 1
            c += 1
    return out
def bundles(prog):
    r = []; cur = None
    for i in prog.L:
        glue = cur is not None and (i.mn.startswith(('s_cselect', 's_addc', 's_subb', 's_cbranch')))
        if not glue:
            cur = Prog(); r.append(cur)
        cur.L.append(i)
    return r

import subprocess, tempfile, os
PROMO = re.compile(r'^v_(mov_b32|add_u32|sub_u32|and_b32|or_b32|xor_b32|lshlrev_b32|lshrrev_b32|mul_u32_u24|mul_f32|add_f32|max_f32|min_f32|exp_f32|rcp_f32|fract_f32|sin_f32|cos_f32|min_u32|cndmask_b32|cmp_\w+)$')
def sizes_of(text):
    d = tempfile.mkdtemp()
    open(d + '/a.s', 'w').write(text)
    r = subprocess.run(['clang', '-x', 'assembler', '-target', 'amdgcn-amd-amdhsa', '-mcpu=gfx950', '-c', d + '/a.s', '-o', d + '/a.o'], capture_output=True, text=True)
    assert r.returncode == 0, r.stderr[:3000]
    o = subprocess.run(['llvm-objdump', '-d', '--mcpu=gfx950', d + '/a.o'], capture_output=True, text=True).stdout
    out = []
    for l in o.split('\n'):
        m = re.search(r'//\s*([0-9A-F]{12}):((?: [0-9A-F]{8})+)', l)
        if m: out.append(4 * len(m.group(2).split()))
    return out
def align8(L, sizes, minrun=6):
    real = [i for i in L if i.kind not in ('label', 'dir')]
    assert len(real) == len(sizes), (len(real), len(sizes))
    sz = {id(i): s for i, s in zip(real, sizes)}
    out = []; off = 0; cand = None; n = len(L); nn = 0; npro = 0
    for k, ins in enumerate(L):
        if ins.kind in ('label', 'dir'):
            out.append(ins);
            if ins.kind == 'label': cand = None
            continue
        s = sz[id(ins)]
        if s == 8 and off % 8 == 4:
            run = 0
            for j in range(k, min(n, k + 12)):
                if L[j].kind in ('label', 'dir'): continue
                if sz[id(L[j])] != 8 or L[j].kind != 'valu': break
                run += 1
            if cand is not None:
                cand.text = cand.mn + '_e64 ' + cand.text.split(None, 1)[1]; off += 4; npro += 1
            elif run >= minrun:
                out.append(I('s_nop 0')); off += 4; nn += 1
            cand = None
        if s == 4 and ins.kind == 'valu' and PROMO.match(ins.mn): cand = ins
        elif s == 8: cand = None
        out.append(ins); off += s
    return out, nn, npro
def render(L):
    return '\n'.join((i.text if i.kind in ('label',) or i.text.startswith('.') else ' ' + i.text) for i in L) + '\n'
def lower(prog):
    return insert_nops(insert_waits(prog.L))
```

```python
import sys, struct
from gasm import Prog, finalize, merge, spread, singles, pack, bundles, lower, render, sizes_of, align8
NAME = "concat_heads__linear_kernel_hedgehog__ssm_conv_s4d__prompt"
OPT = dict(a.split('=') for a in sys.argv[1:] if '=' in a)
def opt(k, d): return type(d)(OPT.get(k, d))
STAMP = opt('stamp', 0)
ROT = opt('rot', 1)
def f2u(x): return struct.unpack('<I', struct.pack('<f', x))[0]
def vr(a, n): return f"v[{a}:{a+n-1}]" if n > 1 else f"v{a}"
def ar(a, n): return f"a[{a}:{a+n-1}]" if n > 1 else f"a{a}"
def sr(a, n): return f"s[{a}:{a+n-1}]" if n > 1 else f"s{a}"
def magic(d): return (2**32 + d - 1) // d

WS_KVF = 0; WS_OF = 2048; WS_KV = 10240; WS_ZERO_END = WS_KV + 32 * 4096
WS_O = 262144; WS_STAMP = 4 << 20; WS_SIZE = 8 << 20
NSPARE = 48
NZERO_WG = NSPARE
assert WS_ZERO_END <= NSPARE * 4096
P_X, P_W, P_PHI, P_WO, P_U, P_LA, P_AI, P_CR, P_CI, P_LDT, P_DS, P_OUT, P_DBG, P_WS = [8 + 2 * i for i in range(14)]
OOB = 0x80000000
SPIN = 400000

def srd(p, s, ptr, size, off=None):
    if off is None:
        p(f"s_mov_b32 s{s}, s{ptr}\n s_mov_b32 s{s+1}, s{ptr+1}")
    else:
        p(f"s_add_u32 s{s}, s{ptr}, {off}\n s_addc_u32 s{s+1}, s{ptr+1}, 0")
    p(f"s_mov_b32 s{s+2}, {size}\n s_mov_b32 s{s+3}, 0x20000")

nstamp = [0]
def stamp(p, sreg_base=96):
    if not STAMP: return
    k = nstamp[0]; nstamp[0] += 1
    if k == 0: p(f"s_memrealtime s[96:97]\n s_waitcnt lgkmcnt(0)\n v_writelane_b32 v255, s96, 62")
    p(f"s_memtime s[96:97]\n s_waitcnt lgkmcnt(0)\n v_writelane_b32 v255, s96, {k}")
def stamp_store(p, wsrd):
    if not STAMP: return
    p(f"s_waitcnt vmcnt(0)\n s_memtime s[96:97]\n s_waitcnt lgkmcnt(0)\n v_writelane_b32 v255, s96, 61\n s_memrealtime s[96:97]\n s_waitcnt lgkmcnt(0)\n v_writelane_b32 v255, s96, 63")
    p(f"""s_lshl_b32 s96, s2, 2
    s_add_u32 s96, s96, s68
    s_lshl_b32 s96, s96, 8
    s_add_u32 s96, s96, {WS_STAMP}
    v_and_b32 v254, 63, v0
    v_lshlrev_b32 v254, 2, v254
    buffer_store_dword v255, v254, {sr(wsrd,4)}, s96 offen""")

def pollall(p, name, srdreg, soff, vt, va):
    p(f"s_mov_b32 s94, {SPIN}")
    p(f"{name}:")
    p(f"""buffer_load_dword v{vt}, v{va}, {sr(srdreg,4)}, {soff} offen sc1
    s_sub_u32 s94, s94, 1
    s_waitcnt vmcnt(0)
    v_cmp_ne_u32 vcc, 0, v{vt}
    s_cmp_eq_u32 s94, 0""")
    p(f"s_cbranch_scc1 {name}_x", tag='keep')
    p(f"s_cmp_eq_u64 vcc, -1")
    p(f"s_cbranch_scc0 {name}", tag='keep')
    p(f"{name}_x:")

A_RING = 0; NSLOT = 16; GR = 5120
A_PHIK = NSLOT * GR; PHI_RS = 352
A_VST = A_PHIK + 128 * PHI_RS
A_BD = A_VST + 20480
A_END = A_BD + 12800
A_KVIMG = A_PHIK
S_X, S_W, S_WO, S_WS, S_OUT, S_DBG, S_PHI = 40, 44, 48, 52, 56, 60, 64
V_XO = 1
V_XD = 5
V_WD = 9
V_TA = 14
V_Z = 22; V_T = 23
V_WF = 32
V_KA = 112; V_VA = 152; V_PA = 192; V_X = 240
OLD = 'sc1' if opt('osc1', 0) else ''

def mfma(p, d, a, b, c=None):
    p(f"v_mfma_f32_16x16x32_bf16 {d}, {a}, {b}, {d if c is None else c}")
def mfma32(p, d, a, b, c=None):
    p(f"v_mfma_f32_32x32x16_bf16 {d}, {a}, {b}, {d if c is None else c}")

LN = V_T; t = V_T + 1
parked = {}
def park(p, name, v):
    if name not in parked: parked[name] = 204 + len(parked)
    assert parked[name] < 256
    p(f"v_accvgpr_write_b32 a{parked[name]}, v{v}")
def unpark(q, name, v): q(f"v_accvgpr_read_b32 v{v}, a{parked[name]}")

def trbase(p, d, rowk, rowrho, extra=0):
    p(f"""v_bfe_u32 v{t}, v0, 5, 1
    v_mul_u32_u24 v{t}, {rowk}, v{t}
    v_bfe_u32 v{t+1}, v0, 2, 2
    v_mul_u32_u24 v{t+1}, {rowrho}, v{t+1}
    v_bfe_u32 v{t+2}, v0, 4, 1
    v_lshl_add_u32 v{t}, v{t+2}, 5, v{t}
    v_and_b32 v{t+2}, 3, v0
    v_lshl_add_u32 v{t}, v{t+2}, 3, v{t}
    v_add_u32 v{d}, v{t}, v{t+1}""")
    if extra: p(f"v_add_u32 v{d}, {extra}, v{d}")

def setup_g2(p):
    srd(p, S_WO, P_WO, 640 * 1280)
    srd(p, S_WS, P_WS, WS_SIZE)
    p(f"s_mul_i32 s78, s69, {128*2560}\n s_add_u32 s78, s78, s83")
    srd(p, S_OUT, P_OUT, 0, 's78')
    p(f"s_sub_u32 s{S_OUT+2}, {2048*2560}, s78")
    p(f"""s_lshr_b32 s79, s68, 1
    s_mul_i32 s79, s79, {80*1280}
    s_add_u32 s79, s79, s83
    s_and_b32 s85, s68, 1
    s_mul_i32 s85, s85, 40
    s_lshl_b32 s78, s69, 2
    s_add_u32 s78, s78, s68
    s_mul_i32 s78, s78, 40960
    s_add_u32 s92, s78, {WS_O}""")
    for i in range(5):
        p(f"""v_lshrrev_b32 v{t}, 3, v{LN}
        v_add_u32 v{t}, s85, v{t}
        v_add_u32 v{t}, {8*i}, v{t}
        v_lshrrev_b32 v{t+1}, 4, v{t}
        v_and_b32 v{t+2}, 7, v{t}
        v_lshl_add_u32 v{t+1}, v{t+1}, 3, v{t+2}
        v_bfe_u32 v{t+2}, v{t}, 3, 1
        v_mad_u32_u24 v{t+2}, v{t+2}, 20, v{t+1}
        v_add_u32 v{t+3}, 20, v{t+2}
        v_cmp_le_u32 vcc, 20, v{t+1}
        v_cndmask_b32 v{t+2}, v{t+2}, v{t+3}, vcc
        v_mul_u32_u24 v{t+2}, 1280, v{t+2}
        v_bfe_u32 v{t}, v{t}, 1, 1
        v_lshlrev_b32 v{t}, 2, v{t}
        v_and_b32 v{t+1}, 7, v0
        v_xor_b32 v{t}, v{t}, v{t+1}
        v_lshl_add_u32 v{t}, v{t}, 4, v{t+2}""")
        park(p, f'wo{i}', t)
    trbase(p, t + 3, 8 * 128, 128)
    p(f"""v_bfe_u32 v{t}, v0, 3, 1
    v_lshl_add_u32 v{t+3}, v{t}, 6, v{t+3}""")
    park(p, 'two', t + 3)
    p(f"""s_add_u32 s78, s84, {A_VST}
    v_and_b32 v{t}, 31, v0
    v_mul_u32_u24 v{t}, 144, v{t}
    v_bfe_u32 v{t+1}, v0, 5, 1
    v_lshl_add_u32 v{t}, v{t+1}, 3, v{t}
    v_add_u32 v{t}, s78, v{t}""")
    park(p, 'outw', t)
    p(f"""v_lshrrev_b32 v{t}, 3, v{LN}
    v_and_b32 v{t+1}, 7, v0
    v_lshlrev_b32 v{t+1}, 4, v{t+1}
    v_mul_u32_u24 v{t+2}, 144, v{t}
    v_add3_u32 v{t+2}, v{t+2}, v{t+1}, s78
    v_mul_u32_u24 v{t}, 2560, v{t}
    v_add_u32 v{t}, v{t}, v{t+1}""")
    park(p, 'outr', t + 2); park(p, 'outg', t)

def dma_bundles(G, hdr, items):
    B = []
    hdr(items[0][0]); B.append(hdr)
    for k, (m0, ld) in enumerate(items):
        q = Prog(); q(ld, tag=('dma', G))
        if k + 1 < len(items): q(items[k + 1][0])
        B.append(q)
    return B
def issue_group(G):
    slotbase = A_RING + (G % 4) * 4 * GR
    h = Prog()
    if G < 10:
        h(f"s_mul_i32 s86, s80, {64*3840}\n s_add_u32 s86, s86, s82\n s_lshl_b32 s81, s80, 7")
        h(f"s_add_u32 s80, s80, 1\n s_cmp_eq_u32 s80, 10\n s_cselect_b32 s80, 0, s80")
        sd = S_W
    elif G < 15:
        h(f"""s_lshl_b32 s86, s71, 1
        s_add_u32 s86, s86, s68
        s_add_u32 s86, s86, {4*(G-10)}
        s_sub_u32 s74, s86, 20
        s_cmp_ge_u32 s86, 20
        s_cselect_b32 s86, s74, s86
        s_mul_i32 s86, s86, {32*3840}
        s_add_u32 s86, s86, s75""")
        sd = S_W
    else:
        h(f"s_add_u32 s86, s79, {(G%4)*160*1280}")
        sd = S_WO
    W = [(f"s_add_u32 m0, s84, {slotbase + 1024*i}", f"buffer_load_dwordx4 v{V_QD[i] if 10 <= G < 15 else (V_WD+i if G < 10 else V_XO+i)}, {sr(sd,4)}, s86 offen lds") for i in range(5)]
    if G < 10:
        X = [(f"s_add_u32 m0, s87, {(G%4)*4096 + 1024*r}", f"buffer_load_dwordx4 v{V_XD+r}, {sr(S_X,4)}, s81 offen lds") for r in range(4)]
        items = [W[0], X[0], W[1], X[1], W[2], X[2], W[3], X[3], W[4]]
    else: items = W
    return dma_bundles(G, h, items)
V_QD = [21, 29, 30, 31, 252]

OF = lambda n: 88 + 4 * n
G2ACC = 56
def gemm2_tail(p):
    F = V_WF
    p("g2_tail:")
    unpark(p, 'two', V_TA)
    p(f"""v_xor_b32 v{V_TA+1}, 64, v{V_TA}
    v_add_u32 v{V_TA+2}, {8*GR}, v{V_TA}
    v_add_u32 v{V_TA+3}, {8*GR}, v{V_TA+1}
    v_lshlrev_b32 v{t+2}, 4, v{LN}
    v_lshrrev_b32 v{t+4}, 3, v{LN}
    v_mul_u32_u24 v{t+4}, 5120, v{t+4}
    v_and_b32 v{t}, 7, v0
    v_lshl_add_u32 v{t+4}, v{t}, 7, v{t+4}
    s_mov_b32 s94, {SPIN}
    s_add_u32 s93, s92, 4096
    s_barrier""")
    unpark(p, 'outw', t); unpark(p, 'outr', t + 1); unpark(p, 'outg', t + 3)
    stamp(p)
    def reads(n):
        hq, pp = divmod(n, 5); q = Prog(); fb = F + (n % 3) * 8
        off = hq * 10240 + pp * 2048; hi = 0
        if hq >= 4: off -= 8 * GR; hi = 2
        for T in range(2):
            for h in range(2):
                q(f"ds_read_b64_tr_b16 {vr(fb+4*T+2*h,2)}, v{V_TA+hi+T} offset:{off + 512*h}")
        return q
    p("g2_retry:")
    p.extend(reads(0)); p.extend(reads(1))
    p(f"s_mov_b32 s81, s92\n v_mov_b32 v248, 0")
    p("g2_poll:")
    p(f"""buffer_load_dword v249, v{t+4}, {sr(S_WS,4)}, s93 offen sc1
    s_sub_u32 s94, s94, 1
    s_waitcnt vmcnt(0)
    v_cmp_ne_u32 vcc, -1, v249
    s_cmp_eq_u32 s94, 0""")
    p("s_cbranch_scc1 g2_go", tag='keep')
    p("s_cmp_eq_u64 vcc, -1")
    p("s_cbranch_scc0 g2_poll", tag='keep')
    p("g2_go:")
    stamp(p)
    def oload(n):
        q = Prog(); hq, pp = divmod(n, 5)
        if pp == 4: q(f"s_add_u32 s85, s81, 4096")
        q(f"buffer_load_dwordx4 {vr(OF(n),4)}, v{t+2}, {sr(S_WS,4)}, {'s85' if pp == 4 else 's81'} offen offset:{1024*(pp%4)} sc1")
        if pp == 4: q("s_add_u32 s81, s81, 5120")
        return q
    PRE = opt('opre', 10)
    for n in range(PRE): p.extend(oload(n))
    for n in range(40):
        fb = F + (n % 3) * 8
        mm = Prog(); mm.need([vr(fb, 8), vr(OF(n), 4)])
        for T in range(2): mfma32(mm, vr(G2ACC + 16 * T, 16), vr(fb + 4 * T, 4), vr(OF(n), 4), '0' if n == 0 else None)
        st = []
        if n + 2 < 40: st.append((singles(reads(n + 2)), 0, 2))
        if n + PRE < 40: st.append(([oload(n + PRE)], 0, 1))
        c = Prog(); c(f"v_max3_u32 v248, v248, v{OF(n)}, v{OF(n)+1}\n v_max3_u32 v248, v248, v{OF(n)+2}, v{OF(n)+3}")
        st.append((singles(c), 1, 2))
        p.extend(pack(mm, st, cap=32))
    p(f"""v_cmp_eq_u32 vcc, -1, v248
    s_mul_i32 s78, s68, {32*2560}
    s_cmp_eq_u32 s94, 0""")
    p("s_cbranch_scc1 g2_out", tag='keep')
    p("s_sub_u32 s94, s94, 1\n s_nop 7\n s_nop 7")
    p("s_cbranch_vccnz g2_retry", tag='keep')
    p("g2_out:")
    stamp(p)
    for T in range(2):
        for j in range(4):
            x = G2ACC + 16 * T + 4 * j; o = 88 + 8 * T + 2 * j
            p(f"v_cvt_pk_bf16_f32 v{o}, v{x}, v{x+1}\n v_cvt_pk_bf16_f32 v{o+1}, v{x+2}, v{x+3}")
            p(f"ds_write_b64 v{t}, {vr(o,2)} offset:{64*T+16*j}")
    for i in range(4): p(f"ds_read_b128 {vr(104+4*i,4)}, v{t+1} offset:{8*144*i}")
    for i in range(4):
        p(f"buffer_store_dwordx4 {vr(104+4*i,4)}, v{t+3}, {sr(S_OUT,4)}, s78 offen")
        if i < 3: p(f"s_add_u32 s78, s78, {8*2560}")
    stamp(p)
    stamp_store(p, S_WS)
    p("s_endpgm")

def divc(p, d, x, c):
    m, sh = {10: (205, 11), 20: (205, 12), 12: (171, 11), 5: (205, 10), 100: (41, 12)}[c]
    p(f"v_mul_u32_u24 v{d}, {m}, v{x}\n v_lshrrev_b32 v{d}, {sh}, v{d}")

V_PO = 160
V_D = 200
def role_A():
    p = Prog(); nstamp[0] = 0
    p("roleA:")
    stamp(p)
    p("""s_and_b32 s72, s2, 7
    s_lshr_b32 s73, s2, 3
    s_lshr_b32 s69, s72, 1
    s_lshl_b32 s69, s69, 2
    s_lshr_b32 s74, s73, 2
    s_add_u32 s69, s69, s74
    s_and_b32 s70, s72, 1
    s_lshl_b32 s70, s70, 2
    s_and_b32 s75, s73, 3
    s_add_u32 s70, s70, s75
    s_add_u32 s71, s74, s75
    s_and_b32 s71, s71, 3""")
    if ROT == 2:
        p("""s_add_u32 s71, s69, s70
        s_mul_i32 s71, s71, 3
        s_mul_i32 s74, s71, 205
        s_lshr_b32 s74, s74, 11
        s_mul_i32 s74, s74, 10
        s_sub_u32 s71, s71, s74""")
    else:
        p(f"s_mul_i32 s71, s71, {5 if ROT else 0}\n s_add_u32 s71, s71, {1 if ROT else 0}\n s_lshr_b32 s71, s71, 1")
    p(f"""v_and_b32 v{LN}, 63, v0
    v_mov_b32 v{V_Z}, 0""")
    p(f"""s_lshl_b32 s76, s68, 5
    v_lshrrev_b32 v{t}, 3, v{LN}
    v_add_u32 v{t}, s76, v{t}
    v_mul_u32_u24 v{t}, 1280, v{t}
    v_and_b32 v{t+1}, 7, v0
    v_bfe_u32 v{t+2}, v0, 4, 2
    v_xor_b32 v{t+1}, v{t+1}, v{t+2}
    v_lshl_add_u32 v{V_XD}, v{t+1}, 4, v{t}
    v_xor_b32 v{V_XD+1}, 64, v{V_XD}
    v_add_u32 v{V_XD+1}, {8*1280}, v{V_XD+1}
    v_add_u32 v{V_XD+2}, {16*1280}, v{V_XD}
    v_add_u32 v{V_XD+3}, {16*1280}, v{V_XD+1}""")
    p(f"s_movk_i32 s78, 1120")
    for i in range(5):
        p(f"v_add_u32 v{t}, {64*i}, v{LN}")
        divc(p, t + 1, t, 20)
        p(f"""v_mul_u32_u24 v{t+2}, 20, v{t+1}
        v_sub_u32 v{t}, v{t}, v{t+2}
        v_mul_u32_u24 v{t+1}, 3840, v{t+1}
        v_cmp_le_u32 vcc, 10, v{t}
        v_lshl_add_u32 v{t+1}, v{t}, 4, v{t+1}
        v_add_u32 v{t+2}, s78, v{t+1}
        v_cndmask_b32 v{V_WD+i}, v{t+1}, v{t+2}, vcc""")
    p(f"""s_mov_b32 s80, s71
    s_mul_i32 s75, s70, 160
    s_mul_i32 s82, s68, {16*3840}
    s_add_u32 s82, s82, s75
    s_add_u32 s82, s82, 1280
    s_lshl_b32 s83, s70, 7
    s_mul_i32 s84, s68, {GR}
    s_lshl_b32 s87, s68, 14
    s_add_u32 s87, s87, {A_PHIK}
    s_mul_i32 s78, s69, {128*1280}""")
    srd(p, S_X, P_X, 128 * 1280, 's78')
    srd(p, S_W, P_W, 640 * 3840)
    su = Prog()
    trbase(su, V_TA, 8 * 320, 320)
    su(f"""v_add_u32 v{V_TA+1}, {8*GR}, v{V_TA}
    v_and_b32 v{t}, 31, v0
    v_bfe_u32 v{t+1}, v0, 1, 3
    v_bfe_u32 v{t+2}, v0, 5, 1
    v_xor_b32 v{t+1}, v{t+1}, v{t+2}
    v_lshlrev_b32 v{t+1}, 4, v{t+1}
    v_lshl_add_u32 v{t}, v{t}, 7, v{t+1}
    v_add_u32 v{V_XO}, s87, v{t}
    v_xor_b32 v{V_XO+1}, 32, v{V_XO}
    v_xor_b32 v{V_XO+2}, 64, v{V_XO}
    v_xor_b32 v{V_XO+3}, 96, v{V_XO}""")
    su(f"""v_mov_b32 v{V_X+4}, 0
    v_mov_b32 v{V_X+5}, 0
    v_mov_b32 v{V_X+6}, 0
    v_mov_b32 v{V_X+7}, 0
    v_lshlrev_b32 v{t}, 4, v0
    v_add_u32 v{t}, {A_BD}, v{t}
    v_min_u32 v{t+1}, {A_BD+496}, v{t}
    ds_write_b128 v{t}, {vr(V_X+4,4)}
    ds_write_b128 v{t}, {vr(V_X+4,4)} offset:4096
    ds_write_b128 v{t}, {vr(V_X+4,4)} offset:8192
    ds_write_b128 v{t+1}, {vr(V_X+4,4)} offset:12288""")
    L2E = 1.4426950408889634
    su(f"s_mov_b32 s88, {f2u(L2E):#x}\n s_mov_b32 s89, {f2u(L2E):#x}")
    for r in range(2):
        su(f"v_add_u32 v{t}, {256*r}, v0")
        divc(su, t + 1, t, 5); divc(su, t + 2, t, 100)
        su(f"""v_mul_u32_u24 v{t+1}, 120, v{t+1}
        v_mad_u32_u24 v{t+1}, v{t+2}, 40, v{t+1}
        v_lshl_add_u32 v{t+1}, v{t}, 3, v{t+1}
        v_add_u32 v{V_X+8+r}, {A_BD}, v{t+1}""")
    su(f"""v_mov_b32 v{t+1}, {A_END}
    v_cmp_gt_u32 vcc, 400, v{t}
    v_cndmask_b32 v{V_X+9}, v{t+1}, v{V_X+9}, vcc""")
    srd(su, S_DBG, P_DBG, 256)
    for i in range(5):
        su(f"v_add_u32 v{t}, {64*i}, v{LN}")
        divc(su, t + 1, t, 10)
        su(f"""v_mul_u32_u24 v{t+2}, 10, v{t+1}
        v_sub_u32 v{t}, v{t}, v{t+2}
        v_and_b32 v{t+2}, 24, v{t+1}
        v_and_b32 v{t+3}, 1, v{t+1}
        v_lshl_add_u32 v{t+2}, v{t+3}, 2, v{t+2}
        v_bfe_u32 v{t+3}, v{t+1}, 1, 2
        v_add_u32 v{t+2}, v{t+2}, v{t+3}
        v_mul_u32_u24 v{t+2}, 3840, v{t+2}
        v_lshl_add_u32 v{V_QD[i]}, v{t}, 4, v{t+2}""")
    su(f"""v_bfe_u32 v{t}, v0, 5, 1
    v_bfe_u32 v{t+1}, v0, 2, 2
    v_lshl_add_u32 v{t}, v{t}, 2, v{t+1}
    v_mul_u32_u24 v{t}, 160, v{t}
    v_and_b32 v{t+1}, 1, v0
    v_mad_u32_u24 v{t}, v{t+1}, 40, v{t}
    v_bfe_u32 v{t+1}, v0, 4, 1
    v_bfe_u32 v{t+2}, v0, 1, 1
    v_lshl_add_u32 v{t+1}, v{t+1}, 1, v{t+2}
    v_lshl_add_u32 v{t}, v{t+1}, 3, v{t}
    v_add_u32 v18, {A_BD}, v{t}
    v_cmp_eq_u32 vcc, 0, v{t+1}
    v_add_u32 v19, 32, v18
    v_add_u32 v{t+2}, 72, v18
    v_cndmask_b32 v19, v{t+2}, v19, vcc
    v_cmp_gt_u32 vcc, 2, v{t+1}
    v_add_u32 v20, 104, v18
    v_nop
    v_cndmask_b32 v20, v18, v20, vcc""".replace("    v_nop\n", ""))
    trbase(su, t + 3, 8 * 160, 320); park(su, 'tq', t + 3)
    su(f"""v_and_b32 v{t}, 31, v0
    v_add_u32 v{t}, s76, v{t}
    v_bfe_u32 v{t+1}, v0, 5, 1
    v_mul_u32_u24 v{t+2}, {PHI_RS}, v{t}
    v_mul_u32_u24 v{t+3}, 80, v{t+1}
    v_add_u32 v{t+2}, v{t+2}, v{t+3}
    v_add_u32 v{t+2}, {A_PHIK}, v{t+2}
    v_mul_u32_u24 v{t}, 160, v{t}
    v_lshl_add_u32 v{t}, v{t+1}, 3, v{t}
    v_add_u32 v{t}, {A_VST}, v{t}""")
    park(su, 'phiw', t + 2); park(su, 'vw', t)
    su(f"""v_bfe_u32 v{t}, v0, 2, 4
    v_and_b32 v{t+1}, 3, v0
    v_mul_u32_u24 v{t+2}, {PHI_RS}, v{t}
    v_lshl_add_u32 v{t+2}, v{t+1}, 3, v{t+2}
    s_mul_i32 s78, s68, 80
    s_add_u32 s78, s78, {A_PHIK}
    v_add_u32 v{t+2}, s78, v{t+2}
    s_mul_i32 s78, s68, 40
    s_add_u32 s78, s78, {A_VST}
    v_mul_u32_u24 v{t}, 160, v{t}
    v_add_u32 v{t}, s78, v{t}
    v_lshl_add_u32 v{t+1}, v{t+1}, 3, v{t}
    v_add_u32 v{t}, 32, v{t}""")
    park(su, 'phir', t + 2); park(su, 'vr0', t + 1); park(su, 'vr1', t)
    a0 = V_PA
    su(f"""v_and_b32 v{t+3}, 15, v0
    v_bfe_u32 v{t+4}, v0, 4, 2
    v_cmp_gt_u32 s[90:91], 8, v{t+3}
    v_lshlrev_b32 v{t}, 2, v{t+3}
    v_mul_u32_u24 v{t+1}, 768, v{t+4}
    v_add_u32 v{a0}, v{t}, v{t+1}
    v_add_u32 v{t+1}, {192-32}, v{a0}
    v_cndmask_b32 v{a0+1}, v{t+1}, v{a0}, s[90:91]
    v_mul_u32_u24 v{t+1}, 192, v{t+4}
    v_add_u32 v{t+1}, {16*192}, v{t+1}
    v_add_u32 v{a0+2}, v{t+1}, v{t}
    v_mov_b32 v{t+2}, {OOB:#x}
    v_cmp_gt_u32 vcc, 40, v{LN}
    v_cndmask_b32 v{a0+3}, v{t+2}, v{a0+2}, s[90:91]
    v_lshlrev_b32 v{t+1}, 2, v{LN}
    v_add_u32 v{t+1}, {20*192}, v{t+1}
    v_cndmask_b32 v{a0+4}, v{t+2}, v{t+1}, vcc
    v_cmp_eq_u32 vcc, 0, v{LN}
    v_cmp_gt_u32 s[90:91], 4, v{t+3}
    v_cndmask_b32 v{a0+6}, v{t+2}, v{V_Z}, vcc""")
    for k in range(5): park(su, f'at{k}', a0 + k)
    park(su, 'l0', a0 + 6)
    su(f"s_mul_i32 s85, s68, 1920\n s_add_u32 s85, s85, {A_KVIMG}\n v_mov_b32 v{t+4}, {A_KVIMG+9600}")
    for i in range(4):
        su(f"v_add_u32 v{t}, {64*i}, v{LN}")
        divc(su, t + 1, t, 12)
        su(f"""v_mul_u32_u24 v{t+2}, 12, v{t+1}
        v_sub_u32 v{t+2}, v{t}, v{t+2}
        v_cmp_gt_u32 vcc, 10, v{t+2}
        v_mul_u32_u24 v{t+1}, 80, v{t+1}
        v_lshl_add_u32 v{t+1}, v{t+2}, 3, v{t+1}
        v_add_u32 v{t+1}, s85, v{t+1}
        v_cndmask_b32 v{t+1}, v{t+4}, v{t+1}, vcc""")
        if i == 3: su(f"v_cmp_gt_u32 vcc, 60, v{LN}\n v_cndmask_b32 v{t+1}, v{t+4}, v{t+1}, vcc")
        park(su, f'kvw{i}', t + 1)
    su(f"""v_cmp_gt_u32 vcc, 120, v0
    v_lshlrev_b32 v{t}, 4, v0
    v_add_u32 v{t}, {A_KVIMG+7680}, v{t}
    v_cndmask_b32 v{t}, v{t+4}, v{t}, vcc""")
    park(su, 'kvz', t)
    su(f"""v_bfe_u32 v{t}, v0, 3, 2
    v_and_b32 v{t+1}, 3, v0
    v_lshl_add_u32 v{t}, v{t}, 2, v{t+1}
    v_mul_u32_u24 v{t}, 80, v{t}
    v_bfe_u32 v{t+1}, v0, 2, 1
    v_bfe_u32 v{t+4}, v0, 5, 1
    v_cmp_eq_u32 vcc, v{t+1}, v{t+4}
    v_mul_u32_u24 v{t+2}, 1920, v{t+1}
    v_add_u32 v{t}, v{t}, v{t+2}
    v_add_u32 v{t}, {A_KVIMG}, v{t}
    v_add_u32 v{t+3}, 3840, v{t}
    v_mov_b32 v{t+2}, {A_KVIMG+7680}
    v_cndmask_b32 v{t}, v{t+2}, v{t}, vcc
    v_cndmask_b32 v{t+3}, v{t+2}, v{t+3}, vcc""")
    park(su, 'kvr0', t); park(su, 'kvr1', t + 3)
    setup_g2(su)
    wl = Prog()
    wl("s_mul_i32 s77, s70, 3200")
    srd(wl, S_PHI, P_PHI, 3200, 's77')
    wl(f"""v_lshlrev_b32 v{V_X+10}, 3, v0
    buffer_load_dwordx2 {vr(V_X,2)}, v{V_X+10}, {sr(S_PHI,4)}, 0 offen
    buffer_load_dwordx2 {vr(V_X+2,2)}, v{V_X+10}, {sr(S_PHI,4)}, 0 offen offset:2048""")
    iss = issue_group(0) + [wl] + issue_group(1)
    sub = bundles(su)
    LEAD = opt('lead', 5)
    per = -(-len(sub) // (len(iss) - LEAD + opt('sutail', 0)))
    for k, b in enumerate(iss):
        p.extend(b)
        if k >= LEAD:
            for x in sub[:per]: p.extend(x)
            sub = sub[per:]
    for x in sub: p.extend(x)
    stamp(p)

    def sync(p, G):
        p.waitvm(('dma', G)); p("s_barrier")
    p("s_waitcnt lgkmcnt(0)")
    sync(p, 0)
    stamp(p)
    FD = 2
    def kv_reads(k):
        q = Prog(); fb = V_WF + (k % 3) * 20
        slot = k % NSLOT; base = V_TA + (slot >= 8); so = (slot % 8) * GR
        q(f"ds_read_b128 {ar(4*k,4)}, v{V_XO+k%4} offset:{((k//4)%4)*4096}")
        for T in range(5):
            for h in range(2):
                q(f"ds_read_b64_tr_b16 {vr(fb+4*T+2*h,2)}, v{base} offset:{so + 1280*h + 64*T}")
        return q
    PH = [(0, 0), (0, 1), (0, 2), (1, 0), (1, 1), (1, 2), (1, 3), (1, 4), (2, 2), (2, 3), (2, 4)]
    bdr = Prog()
    for n, (U, ka) in enumerate(PH):
        for h in range(2): bdr(f"ds_read_b64_tr_b16 {ar(160+4*n+2*h,2)}, v{18+U} offset:{(16*ka+8*h)*160}")
    bdr = singles(bdr)
    for k in range(FD): p.extend(kv_reads(k))
    segs = [list(range(0, 4 - FD))] + [list(range(4 * G - FD, 4 * G + 4 - FD)) for G in range(1, 10)] + [list(range(40 - FD, 40))]
    for si, steps in enumerate(segs):
        if si >= 1:
            if si == 10: p("s_waitcnt lgkmcnt(0)")
            if STAMP == 2: stamp(p)
            sync(p, si)
        m = Prog(); st = []
        for n, k in enumerate(steps):
            fb = V_WF + (k % 3) * 20
            m.need([vr(fb, 20), ar(4 * k, 4)])
            for T in range(5): mfma32(m, vr(V_KA + 16 * T, 16), vr(fb + 4 * T, 4), ar(4 * k, 4), '0' if k == 0 else None)
            if k + FD < 40: st.append((singles(kv_reads(k + FD)), 5 * n, 5 * n + 5))
        st.append((issue_group(si + 2), 0, None))
        if si == 1:
            w = Prog(); w(f"ds_write_b64 v{V_X+8}, {vr(V_X,2)}\n ds_write_b64 v{V_X+9}, {vr(V_X+2,2)}")
            st.append((singles(w), 2, 12))
        if 3 <= si <= 8: st.append((bdr[4 * (si - 3): 4 * (si - 2)], 0, None))
        if si == 8:
            w = Prog(); w(f"buffer_load_dword v{V_X+10}, v{V_Z}, {sr(S_DBG,4)}, 0 offen sc1")
            st.append(([w], 0, 1))
        if si == 10:
            w = Prog(); unpark(w, 'vw', t + 1); unpark(w, 'phiw', t + 2); unpark(w, 'tq', V_TA + 2)
            w(f"v_add_u32 v{V_TA+3}, {8*GR}, v{V_TA+2}")
            for i in range(5): unpark(w, f'wo{i}', V_XO + i)
            st.append((singles(w), 0, None))
        p.extend(pack(m, st))
    stamp(p)

    def phi_step(p, acc, out, extra=None):
        B = V_WF; E = V_WF + 24; M = V_WF + 64
        cv = [f"v_cvt_pk_bf16_f32 v{B+k}, v{acc+2*k}, v{acc+2*k+1}" for k in range(20)]
        def minmax(y):
            q = Prog(); x = V_PA + y * 20; Mx = M + 8 * y
            q(f"v_max3_f32 v{Mx}, v{x}, v{x+1}, v{x+2}\n v_min3_f32 v{Mx+2}, v{x}, v{x+1}, v{x+2}")
            for k in range(3, 19, 2):
                q(f"v_max3_f32 v{Mx}, v{Mx}, v{x+k}, v{x+k+1}\n v_min3_f32 v{Mx+2}, v{Mx+2}, v{x+k}, v{x+k+1}")
            q(f"v_max_f32 v{Mx}, v{Mx}, v{x+19}\n v_min_f32 v{Mx+2}, v{Mx+2}, v{x+19}")
            q(f"v_mul_f32 v{Mx}, s88, v{Mx}\n v_mul_f32 v{Mx+2}, s88, v{Mx+2}")
            return q
        for c in cv[:8]: p(c)
        m = Prog(); seen = set()
        for n, (U, ka) in enumerate(PH):
            mfma32(m, vr(V_PA + 16 * U, 16), ar(160 + 4 * n, 4), vr(B + 4 * ka, 4), None if U in seen else '0'); seen.add(U)
        c2 = Prog()
        for c in cv[8:]: c2(c)
        st = [(singles(c2), 0, 2)]
        if extra: st.append((bundles(extra), 2, 11))
        p.extend(pack(m, st, cap=28))
        for y in range(2):
            x = V_PA + y * 20; Mx = M + 8 * y
            p.extend(minmax(y))
            for q in range(10):
                p(f"v_pk_fma_f32 {vr(E+2*q,2)}, {vr(x+2*q,2)}, s[88:89], {vr(Mx,2)} op_sel_hi:[1,1,0] neg_lo:[0,0,1] neg_hi:[0,0,1]")
                p(f"v_pk_fma_f32 {vr(E+20+2*q,2)}, {vr(x+2*q,2)}, s[88:89], {vr(Mx+2,2)} op_sel_hi:[1,1,0] neg_lo:[1,0,0] neg_hi:[1,0,0]")
            for q in range(40): p(f"v_exp_f32 v{E+q}, v{E+q}")
            for q in range(1, 10):
                for hh in range(2):
                    S = Mx + 4 + 2 * hh; e = E + 20 * hh
                    p(f"v_pk_add_f32 {vr(S,2)}, {vr(e if q == 1 else S,2)}, {vr(e+2*q,2)}")
            p(f"v_add_f32 v{Mx+4}, v{Mx+4}, v{Mx+5}\n v_add_f32 v{Mx+6}, v{Mx+6}, v{Mx+7}")
            p(f"v_rcp_f32 v{Mx+4}, v{Mx+4}\n v_rcp_f32 v{Mx+6}, v{Mx+6}")
            for hh in range(2):
                for q in range(10):
                    e = E + 20 * hh + 2 * q
                    p(f"v_pk_mul_f32 {vr(e,2)}, {vr(e,2)}, {vr(Mx+4+2*hh,2)} op_sel_hi:[1,0]")
            yield y
            for q in range(20):
                p(f"v_cvt_pk_bf16_f32 v{out+y*20+q}, v{E+2*q}, v{E+2*q+1}")

    def q_reads(k):
        q = Prog(); fb = V_WF + (k % 3) * 12
        slot = (40 + k // 2) % NSLOT; base = V_TA + 2 + (slot >= 8); so = (slot % 8) * GR + (k % 2) * 2560
        for T in range(3):
            for h in range(2):
                q(f"ds_read_b64_tr_b16 {vr(fb+4*T+2*h,2)}, v{base} offset:{so + 160*h + 64*T}")
        return q
    ex = Prog()
    for mm_ in range(10):
        a = V_VA + 4 * mm_; d = V_X + 2 * (mm_ % 4)
        ex(f"v_cvt_pk_bf16_f32 v{d}, v{a}, v{a+1}\n v_cvt_pk_bf16_f32 v{d+1}, v{a+2}, v{a+3}\n ds_write_b64 v{t+1}, {vr(d,2)} offset:{16*mm_}")
    for y in phi_step(p, V_KA, V_PO, ex):
        if y == 1:
            p.extend(q_reads(0));
    p.extend(q_reads(1))
    stamp(p)
    p(f"""v_readfirstlane_b32 s95, v{V_X+10}
    s_mov_b32 s94, {SPIN}
    s_cmp_ge_u32 s95, {NZERO_WG}""")
    p("s_cbranch_scc1 a_pz_x", tag='keep')
    p("a_pz:")
    p(f"""buffer_load_dword v{V_X+10}, v{V_Z}, {sr(S_DBG,4)}, 0 offen sc1
    s_sub_u32 s94, s94, 1
    s_waitcnt vmcnt(0)
    v_readfirstlane_b32 s95, v{V_X+10}
    s_cmp_eq_u32 s94, 0""", tag='offpath')
    p("s_cbranch_scc1 a_pz_x", tag='keep')
    p(f"s_cmp_ge_u32 s95, {NZERO_WG}")
    p("s_cbranch_scc0 a_pz", tag='keep')
    p("a_pz_x:")
    pw = Prog()
    for y in range(2):
        for q in range(5): pw(f"ds_write_b128 v{t+2}, {vr(V_PO+y*20+4*q,4)} offset:{160*y + 16*q}")
    pre = Prog()
    unpark(pre, 'phir', t); unpark(pre, 'vr0', t + 1); unpark(pre, 'vr1', t + 3)
    pre(f"v_mov_b32 v{t+4}, 0x3f803f80")
    for k in range(5): unpark(pre, f'at{k}', V_X + k)
    pre(f"""s_lshl_b32 s78, s70, 2
    s_add_u32 s78, s78, s68
    s_lshl_b32 s78, s78, 12
    s_add_u32 s78, s78, {WS_KV}""")
    KF = 72
    def kvs_reads(sw):
        q = Prog(); fb = KF + (sw % 2) * 20
        for h in range(2): q(f"ds_read_b64_tr_b16 {vr(fb+4+2*h,2)}, v{t+3} offset:{(sw*32+h*16)*160}")
        for h in range(2): q(f"ds_read_b64_tr_b16 {vr(fb+2*h,2)}, v{t+1} offset:{(sw*32+h*16)*160}")
        for nf in range(3):
            for h in range(2):
                q(f"ds_read_b64_tr_b16 {vr(fb+8+4*nf+2*h,2)}, v{t} offset:{(sw*32+h*16)*PHI_RS + 32*nf}")
        return q
    def kvs_mfma(m, sw):
        fb = KF + (sw % 2) * 20
        m.need([vr(fb, 20)])
        for q in range(4): m(f"v_cndmask_b32 v{fb+4+q}, v{t+4}, v{fb+4+q}, s[90:91]")
        for md in range(2):
            for nf in range(3):
                mfma(m, vr(V_D + (3 * md + nf) * 4, 4), vr(fb + 4 * md, 4), vr(fb + 8 + 4 * nf, 4), '0' if sw == 0 else None)
    at = Prog(); a0 = V_X
    def atom(v, vo, off): at(f"buffer_atomic_add_f32 v{v}, v{vo}, {sr(S_WS,4)}, s78 offen offset:{off}", tag='kvat')
    for nf in range(2):
        for i in range(4): atom(V_D + 4 * nf + i, a0, i * 192 + nf * 64)
    R = lambda nf, i: V_D + 12 + 4 * nf + i
    for i in (0, 2):
        at(f"v_mov_b32_dpp v{V_D+8+i}, v{V_D+9+i} row_shr:8 row_mask:0xf bank_mask:0xc")
    for nf in range(3):
        at(f"v_permlane16_swap_b32 v{R(nf,0)}, v{R(nf,1)}\n v_permlane16_swap_b32 v{R(nf,2)}, v{R(nf,3)}")
    for i in (0, 2): atom(V_D + 8 + i, a0 + 1, i * 192 + 128)
    for nf in range(3): at(f"v_permlane32_swap_b32 v{R(nf,0)}, v{R(nf,2)}")
    at(f"v_permlane16_swap_b32 v{R(0,1)}, v{R(1,1)}")
    for nf in range(3): atom(R(nf, 0), a0 + (3 if nf == 2 else 2), nf * 64)
    at(f"v_permlane32_swap_b32 v{R(0,1)}, v{R(2,1)}")
    atom(R(0, 1), a0 + 4, 0)
    KS = opt('ks', 5)
    segs = [list(range(0, 6))] + [list(range(8 * g - 2, 8 * g + 6)) for g in range(1, 5)] + [[38, 39]]
    def signal():
        unpark(p, 'l0', V_X + 7)
        p(f"""v_mov_b32 v{V_X+6}, 1
        s_lshl_b32 s78, s70, 8
        s_lshl_b32 s85, s69, 4
        s_add_u32 s78, s78, s85
        s_lshl_b32 s85, s68, 2
        s_add_u32 s78, s78, s85""")
        p.waitvm('kvat')
        p(f"buffer_store_dword v{V_X+6}, v{V_X+7}, {sr(S_WS,4)}, s78 offen sc1")
    for si, steps in enumerate(segs):
        G = 10 + si
        if si >= 1:
            if STAMP == 3: stamp(p)
            if si == KS: signal()
            if si == 1: p("s_waitcnt lgkmcnt(0)")
            if G < 15: sync(p, G)
            else: p("s_barrier")
        def qstep(k, extra):
            m = Prog(); fb = V_WF + (k % 3) * 12
            m.need([vr(fb, 12)])
            for T in range(3): mfma32(m, vr(V_KA + 16 * T, 16), vr(fb + 4 * T, 4), ar(4 * k, 4), '0' if k == 0 else None)
            return m
        if si == 1:
            grp = issue_group(13) + issue_group(14) if False else issue_group(13)
            for n, k in enumerate(steps):
                st = [(singles(q_reads(k + 2)), 0, 3)]
                if n in (0, 1, 3, 5): st.append((singles(kvs_reads({0: 0, 1: 1, 3: 2, 5: 3}[n])), 0, 3))
                else: st.append((grp[:2], 0, 3)); grp = grp[2:]
                p.extend(pack(qstep(k, None), st, cap=28))
                if n in (2, 4, 6, 7): kvs_mfma(p, {2: 0, 4: 1, 6: 2, 7: 3}[n])
            seg_pend = grp
            continue
        m = Prog(); st = []
        for n, k in enumerate(steps):
            m.extend(qstep(k, None))
            if k + 2 < 40: st.append((singles(q_reads(k + 2)), 3 * n, 3 * n + 3))
        if si == 0:
            st.append((singles(pw), 0, 14)); st.append((bundles(pre), 8, None))
        elif si == 2: st.append((issue_group(14), 0, 6)); st.append((singles(at), 2, None))
        else: st.append((issue_group(G + 2), 0, None))
        p.extend(pack(m, st, cap=28))
    if KS == 6: signal()
    stamp(p)
    F = V_WF
    ex = Prog()
    unpark(ex, 'kvz', t)
    ex(f"""v_mov_b32 v{V_X}, 0
    v_mov_b32 v{V_X+1}, 0
    v_mov_b32 v{V_X+2}, 0
    v_mov_b32 v{V_X+3}, 0
    ds_write_b128 v{t}, {vr(V_X,4)}
    v_lshlrev_b32 v{t+1}, 2, v{LN}
    v_lshlrev_b32 v{t+2}, 4, v{LN}
    s_lshl_b32 s78, s70, 8
    s_lshl_b32 s77, s70, 2
    s_add_u32 s77, s77, s68
    s_lshl_b32 s77, s77, 12
    s_add_u32 s77, s77, {WS_KV}""")
    for i in range(4): unpark(ex, f'kvw{i}', V_X + 4 + i)
    KL = V_KA + 32
    def kvloads(tag=None):
        for i in range(4):
            p(f"buffer_load_dwordx4 {vr(KL+4*i,4)}, v{t+2}, {sr(S_WS,4)}, s77 offen offset:{1024*i} sc1", tag=tag)
    for y in phi_step(p, V_KA, V_PO, ex):
        if y == 0:
            p(f"buffer_load_dword v{V_X+8}, v{t+1}, {sr(S_WS,4)}, s78 offen sc1")
        if y == 1 and opt('early', 1):
            p(f"v_cmp_ne_u32 vcc, 0, v{V_X+8}\n s_mov_b32 s95, 0\n s_nop 0\n s_cmp_eq_u64 vcc, -1")
            p("s_cbranch_scc0 a_noearly", tag='keep')
            kvloads('offpath')
            p("s_mov_b32 s95, 1", tag='offpath')
            p("a_noearly:")
    stamp(p)
    if opt('early', 1):
        p("s_cmp_eq_u32 s95, 1")
        p("s_cbranch_scc1 a_have", tag='keep')
    pollall(p, "a_pk", S_WS, 's78', V_X + 8, t + 1)
    kvloads()
    p("a_have:")
    stamp(p)
    unpark(p, 'kvr0', t); unpark(p, 'kvr1', t + 1)
    p(f"""s_mul_i32 s76, s70, 5120
    s_add_u32 s78, s92, s76
    s_add_u32 s81, s78, 4096
    s_mov_b32 s85, {f2u(1e-6):#x}
    s_waitcnt vmcnt(0)""")
    for i in range(4):
        p(f"v_cvt_pk_bf16_f32 v{F+16+2*i}, v{KL+4*i}, v{KL+4*i+1}\n v_cvt_pk_bf16_f32 v{F+17+2*i}, v{KL+4*i+2}, v{KL+4*i+3}")
        p(f"ds_write_b64 v{V_X+4+i}, {vr(F+16+2*i,2)}")
    p("s_waitcnt lgkmcnt(0)\n s_barrier")
    stamp(p)
    order = [(y, u, ka) for y in range(2) for u in (1, 0) for ka in range(5)]
    NB = 10; O = F + 48
    def ord_(n):
        y, u, ka = order[n]; q = Prog(); q(f"ds_read_b128 {vr(F+4*(n%NB),4)}, v{t+y} offset:{u*1280+16*ka}"); return q
    for n in range(NB): p.extend(ord_(n))
    def fin(y):
        q = Prog(); dn = V_KA + 16 * y + 4
        vals = [V_D + 16 * y + r for r in range(16)] + [V_KA + 16 * y + r for r in range(4)]
        for k in range(10):
            q(f"v_mul_f32 v{vals[2*k]}, v{dn}, v{vals[2*k]}\n v_mul_f32 v{vals[2*k+1]}, v{dn}, v{vals[2*k+1]}")
            q(f"v_cvt_pk_bf16_f32 v{O+10*y+k}, v{vals[2*k]}, v{vals[2*k+1]}")
        return q
    om = Prog()
    for n, (y, u, ka) in enumerate(order):
        mfma32(om, vr((V_D if u == 0 else V_KA) + 16 * y, 16), vr(F + 4 * (n % NB), 4), vr(V_PO + y * 20 + 4 * ka, 4), '0' if ka == 0 else None)
        if n + NB < 20: om.extend(ord_(n + NB))
        if ka == 3 and u == 0:
            dn = V_KA + 16 * y + 4
            om(f"v_add_f32 v{dn}, s85, v{dn}\n v_rcp_f32 v{dn}, v{dn}")
    f0 = fin(0); stq = Prog()
    for pc in range(2): stq(f"buffer_store_dwordx4 {vr(O+4*pc,4)}, v{t+2}, {sr(S_WS,4)}, s78 offen offset:{1024*pc} sc1", tag='ost')
    p.extend(pack(om, [(issue_group(18), 0, 8), (singles(f0), 12, 18), (singles(stq), 18, 20)], cap=28))
    f1 = fin(1).L
    def ost(pc): p(f"buffer_store_dwordx4 {vr(O+4*pc,4)}, v{t+2}, {sr(S_WS,4)}, {'s81' if pc == 4 else 's78'} offen offset:{1024*(pc%4)} sc1", tag='ost')
    p.L += f1[:6]; ost(2); p.L += f1[6:18]; ost(3); p.L += f1[18:]; ost(4)
    stamp(p)
    p.waitvm(('dma', 18))
    gemm2_tail(p)
    return p

CP = 4168; YP = 4160; SRS = 544
B_RAW = 0
B_UC = 33280
B_KR = B_UC + 16 * CP
B_SC = B_KR + 4 * 4608
B_END = B_SC + 4 * 16 * SRS
def role_B():
    p = Prog(); nstamp[0] = 0
    S_U, S_LA, S_AI, S_CR, S_CI, S_LDT, S_DS, S_O, S_WSB = 40, 44, 48, 52, 56, 60, 64, 72, 76
    p("roleB:")
    stamp(p)
    p("""s_and_b32 s69, s2, 7
    s_mul_i32 s69, s69, 10
    s_lshr_b32 s70, s2, 3
    s_sub_u32 s70, s70, 16
    s_add_u32 s69, s69, s70""")
    LN, L15, G, Z = 1, 2, 3, 4
    p(f"""v_and_b32 v{LN}, 63, v0
    v_and_b32 v{L15}, 15, v0
    v_bfe_u32 v{G}, v0, 4, 2
    v_mov_b32 v{Z}, 0
    v_lshlrev_b32 v5, 2, v{LN}
    s_waitcnt lgkmcnt(0)""")
    for s_, ptr, size in ((S_LA, P_LA, 640*256), (S_AI, P_AI, 640*256), (S_CR, P_CR, 640*256), (S_CI, P_CI, 640*256), (S_LDT, P_LDT, 1280), (S_DS, P_DS, 1280)):
        srd(p, s_, ptr, size)
    PR = 8
    p(f"s_lshl_b32 s71, s69, 3\n s_add_u32 s71, s71, s68")
    for c2 in range(2):
        p(f"""s_add_u32 s80, s71, {4*c2}
        s_lshl_b32 s81, s80, 8
        s_lshl_b32 s80, s80, 1""")
        for k, s_ in enumerate((S_LA, S_AI, S_CR, S_CI)):
            p(f"buffer_load_dword v{PR+6*c2+k}, v5, {sr(s_,4)}, s81 offen")
        p(f"buffer_load_ushort v{PR+6*c2+4}, v{Z}, {sr(S_LDT,4)}, s80 offen")
        p(f"buffer_load_ushort v{PR+6*c2+5}, v{Z}, {sr(S_DS,4)}, s80 offen")
    p("s_lshl_b32 s80, s69, 4")
    srd(p, S_U, P_U, 0, 's80')
    p(f"""s_sub_u32 s{S_U+2}, {2048*1280}, s80
    v_mul_u32_u24 v6, 1280, v{LN}
    s_mul_i32 s80, s70, 3
    s_lshl_b32 s81, s68, 3
    s_add_u32 s80, s80, s81""")
    for i in range(8):
        p(f"""s_add_u32 s81, s80, {i}
        s_and_b32 s81, s81, 31
        s_mul_i32 s82, s81, {64*1280}
        s_lshl_b32 s81, s81, 10
        s_add_u32 m0, s81, {B_RAW+256}""")
        p(f"buffer_load_dwordx4 v6, {sr(S_U,4)}, s82 offen lds", tag='raw')
    stamp(p)
    p(f"s_lshl_b32 s80, s69, 4\n s_add_u32 s80, s80, 1280")
    srd(p, S_O, P_OUT, 0, 's80')
    p(f"s_sub_u32 s{S_O+2}, {2048*2560}, s80")
    srd(p, S_WSB, P_WS, WS_SIZE)
    T = 24
    p(f"""v_mov_b32 v20, 0
    v_mov_b32 v21, 0
    v_mov_b32 v22, 0
    v_mov_b32 v23, 0
    v_lshlrev_b32 v{T}, 4, v{L15}
    ds_write_b128 v{T}, v[20:23] offset:{B_RAW}
    s_mul_i32 s83, s68, 4608
    s_add_u32 s83, s83, {B_KR}
    s_mul_i32 s84, s68, {16*SRS}
    s_add_u32 s84, s84, {B_SC}
    v_and_b32 v{T}, 31, v0
    v_lshlrev_b32 v{T}, 4, v{T}
    v_add_u32 v{T}, s83, v{T}
    ds_write_b128 v{T}, v[20:23] offset:4096""")
    A_SW, A_SR, A_T0, A_T1, A_T1b, A_T2, A_X3, A_X2, A_X1, A_X0, A_KW, A_KW32, A_KB, MSK = range(24, 38)
    t = 40
    p(f"""v_lshl_add_u32 v{A_SW}, v{LN}, 3, v{Z}
    v_add_u32 v{A_SW}, s84, v{A_SW}
    v_mul_u32_u24 v{A_SR}, {SRS}, v{L15}
    v_lshl_add_u32 v{A_SR}, v{G}, 4, v{A_SR}
    v_add_u32 v{A_SR}, s84, v{A_SR}
    v_lshrrev_b32 v{t}, 1, v{G}
    v_and_b32 v{t+1}, 1, v{G}
    v_lshlrev_b32 v{A_T0}, 9, v{t}
    v_lshl_add_u32 v{A_T0}, v{t+1}, 4, v{A_T0}
    v_lshl_add_u32 v{A_T0}, v{L15}, 5, v{A_T0}
    v_add_u32 v{A_T0}, s84, v{A_T0}
    v_lshlrev_b32 v{t+2}, 4, v{L15}
    v_lshlrev_b32 v{t+3}, 3, v{L15}
    v_cmp_gt_u32 vcc, 2, v{G}
    v_cndmask_b32 v{t+2}, v{t+3}, v{t+2}, vcc
    v_lshl_add_u32 v{A_T1}, v{G}, 8, v{t+2}
    v_add_u32 v{A_T1}, s84, v{A_T1}
    v_mov_b32 v{t+2}, 128
    v_cndmask_b32 v{t+2}, v{t+2}, 8, vcc""".replace(f"v_cndmask_b32 v{t+2}, v{t+2}, 8, vcc", f"v_mov_b32 v{t+3}, 8\n v_cndmask_b32 v{t+2}, v{t+2}, v{t+3}, vcc"))
    p(f"""v_add_u32 v{A_T1b}, v{A_T1}, v{t+2}
    v_lshlrev_b32 v{A_T2}, 8, v{G}
    v_lshl_add_u32 v{A_T2}, v{L15}, 2, v{A_T2}
    v_add_u32 v{A_T2}, s84, v{A_T2}
    v_lshl_add_u32 v{A_X3}, v{LN}, 2, v{Z}
    v_add_u32 v{A_X3}, s84, v{A_X3}
    v_lshl_add_u32 v{A_X2}, v{LN}, 3, v{Z}
    v_add_u32 v{A_X2}, s84, v{A_X2}
    v_and_b32 v{t}, 31, v0
    v_lshlrev_b32 v{A_X1}, 4, v{t}
    v_add_u32 v{A_X1}, s84, v{A_X1}
    v_lshlrev_b32 v{A_X0}, 5, v{t}
    v_add_u32 v{A_X0}, s84, v{A_X0}
    v_lshlrev_b32 v{t+1}, 4, v{LN}
    v_sub_u32 v{A_KW}, s83, v{t+1}
    v_add_u32 v{A_KW}, 1008, v{A_KW}
    v_lshlrev_b32 v{t+1}, 4, v{t}
    v_sub_u32 v{A_KW32}, s83, v{t+1}
    v_add_u32 v{A_KW32}, 496, v{A_KW32}
    v_lshlrev_b32 v{t+1}, 5, v{L15}
    v_sub_u32 v{A_KB}, s83, v{t+1}
    v_lshl_add_u32 v{A_KB}, v{G}, 4, v{A_KB}
    v_add_u32 v{A_KB}, 480, v{A_KB}
    v_and_b32 v{t}, 1, v0
    v_mov_b32 v{t+1}, 0xffff
    v_mov_b32 v{t+2}, -1
    v_cmp_eq_u32 vcc, 1, v{t}
    v_cndmask_b32 v{MSK}, v{t+1}, v{t+2}, vcc
    s_mov_b32 s85, 0xffff
    s_mov_b32 s86, {f2u(1.4426950408889634):#x}
    s_mov_b32 s87, 0x32a57060
    s_mov_b32 s88, {f2u(0.6931471805599453):#x}
    s_mov_b32 s89, 0xffff0000""")

    def exp_bf16(p, d, x, t):
        p(f"""v_mul_f32 v{t}, s86, v{x}
        v_fma_f32 v{t+1}, v{x}, s86, -v{t}
        v_fma_f32 v{t+1}, v{x}, s87, v{t+1}
        v_exp_f32 v{t}, v{t}
        v_mul_f32 v{t+1}, s88, v{t+1}
        v_fma_f32 v{t}, v{t}, v{t+1}, v{t}
        v_cvt_pk_bf16_f32 v{t}, v{t}, v{t}
        v_and_b32 v{d}, s89, v{t}""")
    def cmul(p, c, a, b):
        p(f"v_pk_mul_f32 {vr(c,2)}, {vr(a,2)}, {vr(b,2)} op_sel:[0,0] op_sel_hi:[0,1]")
        p(f"v_pk_fma_f32 {vr(c,2)}, {vr(a,2)}, {vr(b,2)}, {vr(c,2)} op_sel:[1,1,0] op_sel_hi:[1,0,1] neg_lo:[0,1,0]")
    E = lambda k, mu: 48 + 4 * (k - 1) + 2 * mu
    E8 = lambda mu: 76 + 2 * mu
    E128 = lambda mu: 80 + 2 * mu
    GA = lambda par, mu: 84 + 4 * par + 2 * mu
    XT = lambda k, mu: 92 + 4 * (k % 2) + 2 * mu
    PK = lambda k: 100 + 2 * (k % 4)
    FB = 108
    FA = 140
    DT = 172
    def kgen(p, c2):
        P = PR + 6 * c2; t = 40
        p(f"v_lshlrev_b32 v{t+6}, 16, v{P+4}")
        exp_bf16(p, t + 7, t + 6, t)
        rho = lambda mu: 92 + mu; th = lambda mu: 94 + mu
        for mu in range(2):
            up = (lambda d, s_: f"v_lshlrev_b32 v{d}, 16, v{s_}") if mu == 0 else (lambda d, s_: f"v_and_b32 v{d}, s89, v{s_}")
            p(up(t + 6, P))
            exp_bf16(p, t + 5, t + 6, t)
            p(f"v_mul_f32 v{t+5}, v{t+5}, v{t+7}\n v_mul_f32 v{rho(mu)}, s86, v{t+5}")
            p(up(t + 6, P + 1))
            p(f"v_mul_f32 v{t+6}, v{t+6}, v{t+7}\n v_mul_f32 v{th(mu)}, 0.15915494, v{t+6}")
            p(up(t + 5, P + 2)); p(up(t + 6, P + 3))
            p(f"v_add_f32 v{t+4}, v{t+7}, v{t+7}\n v_mul_f32 v{GA(0,mu)}, v{t+5}, v{t+4}\n v_mul_f32 v{GA(0,mu)+1}, v{t+6}, v{t+4}")
        for pw, dst in ((1, lambda mu: E(1, mu)), (8, E8), (128, E128)):
            for mu in range(2):
                d = dst(mu); u = t + 3 * mu
                p(f"""v_mul_f32 v{u}, {f2u(-float(pw)):#x}, v{rho(mu)}
                v_mul_f32 v{u+1}, {f2u(float(pw)):#x}, v{th(mu)}
                v_exp_f32 v{u}, v{u}
                v_fract_f32 v{u+1}, v{u+1}
                v_cos_f32 v{d}, v{u+1}
                v_sin_f32 v{d+1}, v{u+1}
                v_pk_mul_f32 {vr(d,2)}, {vr(d,2)}, {vr(u if u % 2 == 0 else u - 1,2)} op_sel:[0,{u%2}] op_sel_hi:[1,{u%2}]""")
        cnt = [0]
        def put(row, src, neg=False):
            k = cnt[0]; cnt[0] += 1
            for mu in range(2):
                a = src(mu)
                p(f"v_cvt_pk_bf16_f32 v{PK(k)+mu}, v{a}, {'-' if neg else ''}v{a+1}")
            p(f"ds_write_b64 v{A_SW}, {vr(PK(k),2)} offset:{row*SRS}")
        p(f"v_mov_b32 v{PK(3)}, 0x3f80\n v_mov_b32 v{PK(3)+1}, 0x3f80\n ds_write_b64 v{A_SW}, {vr(PK(3),2)}")
        put(1, E8, True)
        prev = E8
        for b in range(2, 16):
            cur = (lambda bb: (lambda mu: XT(bb, mu)))(b)
            for mu in range(2): cmul(p, cur(mu), prev(mu), E8(mu))
            put(b, cur, True); prev = cur
        for ka in range(8): p(f"ds_read_b128 {vr(FB+4*ka,4)}, v{A_SR} offset:{64*ka}")
        for k in range(2, 8):
            for mu in range(2): cmul(p, E(k, mu), E(k - 1, mu), E(1, mu))
        al = [0]
        def Gcur(mu): return GA(al[0] % 2, mu)
        def Gnext():
            for mu in range(2): cmul(p, GA((al[0] + 1) % 2, mu), GA(al[0] % 2, mu), E128(mu))
            al[0] += 1
        def prod(row, k):
            if k == 0: put(row, Gcur); return
            for mu in range(2): cmul(p, XT(row, mu), Gcur(mu), E(k, mu))
            put(row, lambda mu: XT(row, mu))
        def tile(T):
            for ka in range(8): p(f"ds_read_b128 {vr(FA+4*ka,4)}, v{A_SR} offset:{64*ka}")
            return [f"v_mfma_f32_16x16x32_bf16 {vr(DT+4*T,4)}, {vr(FA+4*ka,4)}, {vr(FB+4*ka,4)}, {'0' if ka == 0 else vr(DT+4*T,4)}" for ka in range(8)]
        for a in range(2):
            for g in range(8): prod(8 * a + g, g)
            Gnext()
        mm = tile(0)
        for a in range(2):
            for g in range(4): prod(4 * a + g, 2 * g)
            Gnext()
            if a == 0:
                for x in mm: p(x)
        for a in range(4):
            for g in range(2): prod(8 + 2 * a + g, 4 * g)
            Gnext()
        mm = tile(1)
        for a in range(9):
            prod(a, 0)
            if a < 8: Gnext()
            if a == 3:
                for x in mm: p(x)
        for x in tile(2): p(x)
        p(f"""v_lshlrev_b32 v{t}, 16, v{P+5}
        v_cmp_eq_u32 vcc, 0, v{LN}
        v_cndmask_b32 v{t}, v{Z}, v{t}, vcc
        v_add_f32 v{DT}, v{DT}, v{t}""")
        for q in range(12): p(f"v_cvt_pk_bf16_f32 v{DT+q}, v{DT+q}, v{DT+q}")
        p(f"""ds_write_b128 v{A_T0}, {vr(DT,4)}
        ds_write_b64 v{A_T1}, {vr(DT+4,2)} offset:1024
        ds_write_b64 v{A_T1b}, {vr(DT+6,2)} offset:1024""")
        for i in range(4): p(f"ds_write_b32 v{A_T2}, v{DT+8+i} offset:{2048+64*i}")
        R = FA
        for r in range(2):
            p(f"ds_read_b32 v{R+4*r}, v{A_X3} offset:{2048+256*r+4}")
            p(f"ds_read_b32 v{R+4*r+2}, v{A_X3} offset:{2048+256*r}\n ds_read_b32 v{R+4*r+3}, v{A_X3} offset:{2048+256*r}")
        p(f"""ds_read_b32 v{R+8}, v{A_X2} offset:{1536+8}
        ds_read_b32 v{R+9}, v{A_X2} offset:{1536+4}
        ds_read_b32 v{R+11}, v{A_X2} offset:{1536}
        ds_read_b128 {vr(R+16,4)}, v{A_X1} offset:1024
        ds_read_b32 v{R+20}, v{A_X1} offset:{1024+16}
        ds_read_b128 {vr(R+24,4)}, v{A_X0}
        ds_read_b128 {vr(R+28,4)}, v{A_X0} offset:16""")
        for r in range(2):
            p(f"v_bfi_b32 v{R+4*r+1}, v{MSK}, v{R+4*r}, v{R+4*r+2}")
            p(f"ds_write_b128 v{A_KW}, {vr(R+4*r,4)} offset:{1024*(1-r)}")
        p(f"""v_bfi_b32 v{R+10}, s85, v{R+9}, v{R+11}
        ds_write_b128 v{A_KW}, {vr(R+8,4)} offset:2048
        v_bfi_b32 v{R+12}, s85, v{R+20}, v{R+19}
        v_mov_b32 v{R+13}, v{R+18}
        v_bfi_b32 v{R+14}, s85, v{R+18}, v{R+17}
        v_mov_b32 v{R+15}, v{R+16}
        ds_write_b128 v{A_KW32}, {vr(R+12,4)} offset:3072
        v_bfi_b32 v{R+16}, s85, v{R+31}, v{R+30}
        v_bfi_b32 v{R+17}, s85, v{R+29}, v{R+28}
        v_bfi_b32 v{R+18}, s85, v{R+27}, v{R+26}
        v_bfi_b32 v{R+19}, s85, v{R+25}, v{R+24}
        ds_write_b128 v{A_KW32}, {vr(R+16,4)} offset:3584""")

    Y = 184
    UB = 216
    def conv(p, c2):
        t = 40
        p(f"""s_add_u32 s80, s68, {4*c2}
        s_mul_i32 s81, s80, {2*CP}
        s_add_u32 s81, s81, {B_UC}
        v_and_b32 v{t}, 1, v0
        v_mul_u32_u24 v{t}, {CP}, v{t}
        v_lshrrev_b32 v{t+1}, 1, v{L15}
        v_lshl_add_u32 v{t+1}, v{G}, 2, v{t+1}
        v_lshl_add_u32 v{t}, v{t+1}, 2, v{t}
        v_add_u32 v{UB}, s81, v{t}
        v_add_u32 v{UB+1}, 1024, v{UB}
        v_add_u32 v{UB+2}, 2048, v{UB}
        v_add_u32 v{UB+3}, 3072, v{UB}
        s_mul_i32 s80, s80, {YP}
        v_lshlrev_b32 v{t}, 5, v{L15}
        v_lshl_add_u32 v{t}, v{G}, 3, v{t}
        v_add_u32 v{UB+4}, s80, v{t}""")
        def fa(b, a): return ar((b % 2) * 64 + 4 * a, 4)
        def fb(b, c): return ar((b % 2) * 64 + 32 + 4 * c, 4)
        def reads(b):
            q = Prog()
            for a in range(8):
                o = 128 * (a % 2) + 16 * b; r0 = (b % 2) * 64 + 4 * a
                q(f"ds_read_b128 {fb(b,a)}, v{A_KB} offset:{512*(7-a)+64*b}")
                q(f"ds_read2_b32 {ar(r0,2)}, v{UB+a//2} offset0:{o} offset1:{o+1}")
                q(f"ds_read2_b32 {ar(r0+2,2)}, v{UB+a//2} offset0:{o+2} offset1:{o+3}")
            return q
        p.extend(reads(0))
        for b in range(8):
            m = Prog()
            prs = sorted([(a, c) for c in range(8) for a in range(c + 1)], key=lambda x: (max(x[0], x[1] - x[0]), x[1]))
            seen = set()
            for a, c in prs:
                first = b == 0 and c not in seen; seen.add(c)
                mfma(m, vr(Y + 4 * c, 4), fa(b, a), fb(b, c - a), '0' if first else None)
            p.extend(merge(m, reads(b + 1) if b < 7 else Prog(), start=4))
        for c in range(8):
            d = 40 + 2 * (c % 4)
            p(f"v_cvt_pk_bf16_f32 v{d}, v{Y+4*c}, v{Y+4*c+1}\n v_cvt_pk_bf16_f32 v{d+1}, v{Y+4*c+2}, v{Y+4*c+3}")
            p(f"ds_write_b64 v{UB+4}, {vr(d,2)} offset:{B_RAW+512*c}")

    kgen(p, 0)
    stamp(p)
    p.waitvm('raw'); p("s_waitcnt lgkmcnt(0)\n s_barrier")
    stamp(p)
    p(f"""v_bfe_u32 v{t}, v0, 2, 2
    v_lshl_add_u32 v{t}, v{G}, 3, v{t}
    v_bfe_u32 v{t+1}, v0, 1, 1
    v_lshl_add_u32 v{t}, v{t+1}, 2, v{t}
    v_lshlrev_b32 v{t}, 4, v{t}
    v_and_b32 v{t+1}, 1, v0
    v_lshl_add_u32 v{t}, v{t+1}, 3, v{t}
    s_lshl_b32 s80, s68, 9
    v_add_u32 v{t}, s80, v{t}
    v_and_b32 v{t+1}, 7, v0
    v_mul_u32_u24 v{t+1}, {2*CP}, v{t+1}
    v_bfe_u32 v{t+2}, v0, 3, 1
    v_lshl_add_u32 v{t+1}, v{t+2}, 3, v{t+1}
    v_lshl_add_u32 v{t+1}, v{G}, 4, v{t+1}
    s_lshl_b32 s80, s68, 6
    s_add_u32 s80, s80, {B_UC}
    v_add_u32 v{t+1}, s80, v{t+1}""")
    jobs = [(k, pp) for k in range(17) for pp in range(2)]
    NBUF = 8
    def rdj(n):
        k, pp = jobs[n]; p(f"ds_read_b64_tr_b16 {vr(48+2*(n%NBUF),2)}, v{t} offset:{B_RAW + 16*(1+pp) + 2048*k}")
    def wrj(n):
        k, pp = jobs[n]
        if k == 16: p(f"ds_write_b64 v{t+3}, {vr(48+2*(n%NBUF),2)} offset:{pp*CP + 256*k}")
        else: p(f"ds_write_b64 v{t+1}, {vr(48+2*(n%NBUF),2)} offset:{pp*CP + 256*k}")
    p(f"""s_cmp_eq_u32 s68, 0
    s_cselect_b32 s80, 2, 0
    v_mov_b32 v{t+2}, {B_END - 4096}
    v_cmp_gt_u32 vcc, s80, v{G}
    v_cndmask_b32 v{t+3}, v{t+2}, v{t+1}, vcc""")
    for n in range(NBUF): rdj(n)
    for n in range(len(jobs)):
        wrj(n)
        if n + NBUF < len(jobs): rdj(n + NBUF)
    p("s_waitcnt lgkmcnt(0)\n s_barrier")
    stamp(p)
    conv(p, 0)
    stamp(p)
    kgen(p, 1)
    stamp(p)
    conv(p, 1)
    stamp(p)
    p("s_waitcnt lgkmcnt(0)\n s_barrier")
    p(f"""v_bfe_u32 v{t}, v0, 2, 2
    v_mul_u32_u24 v{t}, {YP}, v{t}
    v_and_b32 v{t+1}, 3, v0
    v_lshl_add_u32 v{t}, v{t+1}, 3, v{t}
    v_lshl_add_u32 v{t}, v{G}, 5, v{t}
    s_lshl_b32 s80, s68, 10
    v_add_u32 v{t}, s80, v{t}
    v_mul_u32_u24 v{t+1}, 2560, v{LN}
    s_mul_i32 s80, s68, {512*2560}""")
    for it in range(8):
        for h in range(2):
            p(f"ds_read_b64_tr_b16 {vr(48+4*it+2*h,2)}, v{t} offset:{B_RAW + h*4*YP + 128*it}")
    for it in range(8):
        p(f"buffer_store_dwordx4 {vr(48+4*it,4)}, v{t+1}, {sr(S_O,4)}, s80 offen")
        p(f"s_add_u32 s80, s80, {64*2560}")
    stamp(p)
    stamp_store(p, S_WSB)
    p("s_endpgm")
    return p

def role_S():
    p = Prog()
    p("roleS:")
    if opt('cpf', 1):
        p(f"""s_getpc_b64 s[40:41]
        cpf_here:
        s_sub_u32 s40, s40, cpf_here-{NAME}_kernel
        s_subb_u32 s41, s41, 0
        s_lshr_b32 s42, s2, 3
        s_and_b32 s42, s42, 1
        s_lshl_b32 s42, s42, 15
        v_lshlrev_b32 v8, 7, v0
        v_add_u32 v8, s42, v8
        v_cmp_gt_u32 vcc, code_end-{NAME}_kernel, v8
        v_cndmask_b32 v8, 0, v8, vcc
        global_load_dword v9, v8, s[40:41]""")
    p(f"""s_sub_u32 s69, s2, 208
    s_waitcnt lgkmcnt(0)""")
    srd(p, 40, P_WS, WS_ZERO_END)
    srd(p, S_DBG, P_DBG, 256)
    p(f"""s_lshl_b32 s70, s69, 12
    v_lshlrev_b32 v1, 4, v0
    v_mov_b32 v4, 0
    v_mov_b32 v5, 0
    v_mov_b32 v6, 0
    v_mov_b32 v7, 0
    buffer_store_dwordx4 v[4:7], v1, s[40:43], s70 offen sc1
    v_mov_b32 v12, -1
    v_mov_b32 v13, -1
    v_mov_b32 v14, -1
    v_mov_b32 v15, -1
    s_add_u32 s70, s70, {WS_O}""")
    for _ in range(opt('sdelay', 0)): p("s_sleep 127")
    srd(p, 44, P_WS, WS_O + 64 * 40960)
    for i in range(14):
        p(f"buffer_store_dwordx4 v[12:15], v1, s[44:47], s70 offen sc1\n s_add_u32 s70, s70, {NSPARE*4096}")
    p(f"""v_mov_b32 v2, 1
    v_mov_b32 v3, {OOB:#x}
    v_cmp_eq_u32 vcc, 0, v0
    v_cndmask_b32 v3, v3, v4, vcc
    s_waitcnt vmcnt(0)
    s_barrier
    buffer_atomic_add v2, v3, {sr(S_DBG,4)}, 0 offen sc1
    s_cmp_ge_u32 s2, 240""")
    p("s_cbranch_scc1 done", tag='keep')
    p(f"""s_and_b32 s72, s2, 7
    s_lshr_b32 s69, s72, 1
    s_lshl_b32 s69, s69, 2
    s_lshr_b32 s73, s2, 3
    s_sub_u32 s73, s73, 26
    s_add_u32 s69, s69, s73
    s_and_b32 s83, s72, 1
    s_add_u32 s83, s83, 8
    s_lshl_b32 s83, s83, 7
    s_mul_i32 s84, s68, {GR}
    v_and_b32 v{LN}, 63, v0
    v_mov_b32 v{V_Z}, 0""")
    if STAMP: p("v_mov_b32 v255, 0")
    setup_g2(p)
    for i in range(5): unpark(p, f'wo{i}', V_XO + i)
    for G in range(15, 19):
        for b in issue_group(G): p.extend(b)
    p(f"s_mov_b32 s94, {SPIN}")
    p("s_pz:")
    p(f"""buffer_load_dword v{V_X+10}, v{V_Z}, {sr(S_DBG,4)}, 0 offen sc1
    s_sub_u32 s94, s94, 1
    s_waitcnt vmcnt(0)
    v_readfirstlane_b32 s95, v{V_X+10}
    s_cmp_eq_u32 s94, 0""")
    p("s_cbranch_scc1 g2_tail", tag='keep')
    p(f"s_cmp_ge_u32 s95, {NZERO_WG}")
    p("s_cbranch_scc1 g2_tail", tag='keep')
    p("s_sleep 4\n s_branch s_pz")
    p("done:\n s_endpgm\n code_end:")
    return p

def main():
    LDS = max(A_END + 16, B_END + 4608)
    assert LDS <= 163840, LDS
    ref = open(f"cdna_kernels/{NAME}.s.ref").read().split('\n')
    hdr = [l for l in ref if l.startswith(';') and '@launch' not in l]
    s = '\n'.join(hdr) + f"\n; @launch grid=(256,1,1) block=(256,1,1) lds={LDS}\n"
    s += f""".amdgcn_target "amdgcn-amd-amdhsa--gfx950"
.text
.globl {NAME}_kernel
.p2align 8
.type {NAME}_kernel,@function
{NAME}_kernel:
"""
    e = Prog()
    e(f"""s_cmp_ge_u32 s2, 256
    s_cbranch_scc1 done
    s_load_dwordx16 s[8:23], s[0:1], 0
    s_load_dwordx8 s[24:31], s[0:1], 64
    s_load_dwordx4 s[32:35], s[0:1], 96
    v_lshrrev_b32 v1, 6, v0
    s_nop 0
    v_readfirstlane_b32 s68, v1
    s_cmp_ge_u32 s2, 208
    s_cbranch_scc1 roleS
    s_cmp_ge_u32 s2, 128
    s_cbranch_scc1 roleB""")
    a = role_A()
    e.extend(a)
    L = lower(e) + lower(role_B()) + lower(role_S())
    if opt('align', 1):
        L, nn, npro = align8(L, sizes_of(s + render(L)))
        print("align: nops", nn, "promoted", npro)
    s += render(L)
    s += f""".section .rodata,"a"
.p2align 6
.amdhsa_kernel {NAME}_kernel
  .amdhsa_next_free_vgpr 512
  .amdhsa_next_free_sgpr 102
  .amdhsa_accum_offset 256
  .amdhsa_group_segment_fixed_size 0
  .amdhsa_kernarg_size 112
  .amdhsa_user_sgpr_count 2
  .amdhsa_user_sgpr_kernarg_segment_ptr 1
  .amdhsa_system_sgpr_workgroup_id_x 1
.end_amdhsa_kernel
"""
    out = OPT.get('out', f"cdna_kernels/{NAME}.s")
    open(out, 'w').write(s)
    print("LDS", LDS, "A_END", A_END, "B_END", B_END, "lines", s.count('\n'))
main()
```

```python
import sys, struct
from gasm import Prog, finalize, merge, spread, singles, pack, bundles, lower, render, sizes_of, align8
NAME = "concat_heads__linear_kernel_hedgehog__ssm_conv_s4d__prompt"
OPT = dict(a.split('=') for a in sys.argv[1:] if '=' in a)
def opt(k, d): return type(d)(OPT.get(k, d))
STAMP = opt('stamp', 0)
ROT = opt('rot', 2)
def f2u(x): return struct.unpack('<I', struct.pack('<f', x))[0]
def vr(a, n): return f"v[{a}:{a+n-1}]" if n > 1 else f"v{a}"
def ar(a, n): return f"a[{a}:{a+n-1}]" if n > 1 else f"a{a}"
def sr(a, n): return f"s[{a}:{a+n-1}]" if n > 1 else f"s{a}"
def magic(d): return (2**32 + d - 1) // d

WS_KVF = 0; WS_OF = 2048; WS_KV = 10240; WS_ZERO_END = WS_KV + 32 * 4096
WS_O = 262144; WS_STAMP = 4 << 20; WS_SIZE = 8 << 20
NSPARE = 48
NZERO_WG = NSPARE
assert WS_ZERO_END <= NSPARE * 4096
P_X, P_W, P_PHI, P_WO, P_U, P_LA, P_AI, P_CR, P_CI, P_LDT, P_DS, P_OUT, P_DBG, P_WS = [8 + 2 * i for i in range(14)]
OOB = 0x80000000
SPIN = 400000

def srd(p, s, ptr, size, off=None):
    if off is None:
        p(f"s_mov_b32 s{s}, s{ptr}\n s_mov_b32 s{s+1}, s{ptr+1}")
    else:
        p(f"s_add_u32 s{s}, s{ptr}, {off}\n s_addc_u32 s{s+1}, s{ptr+1}, 0")
    p(f"s_mov_b32 s{s+2}, {size}\n s_mov_b32 s{s+3}, 0x20000")

nstamp = [0]
def stamp(p, sreg_base=96):
    if not STAMP: return
    k = nstamp[0]; nstamp[0] += 1
    if k == 0: p(f"s_memrealtime s[96:97]\n s_waitcnt lgkmcnt(0)\n v_writelane_b32 v255, s96, 62")
    p(f"s_memtime s[96:97]\n s_waitcnt lgkmcnt(0)\n v_writelane_b32 v255, s96, {k}")
def stamp_store(p, wsrd):
    if not STAMP: return
    p(f"s_waitcnt vmcnt(0)\n s_memtime s[96:97]\n s_waitcnt lgkmcnt(0)\n v_writelane_b32 v255, s96, 61\n s_memrealtime s[96:97]\n s_waitcnt lgkmcnt(0)\n v_writelane_b32 v255, s96, 63")
    p(f"""s_lshl_b32 s96, s2, 2
    s_add_u32 s96, s96, s68
    s_lshl_b32 s96, s96, 8
    s_add_u32 s96, s96, {WS_STAMP}
    v_and_b32 v254, 63, v0
    v_lshlrev_b32 v254, 2, v254
    buffer_store_dword v255, v254, {sr(wsrd,4)}, s96 offen""")

def pollall(p, name, srdreg, soff, vt, va):
    p(f"s_mov_b32 s94, {SPIN}")
    p(f"{name}:")
    p(f"""buffer_load_dword v{vt}, v{va}, {sr(srdreg,4)}, {soff} offen sc1
    s_sub_u32 s94, s94, 1
    s_waitcnt vmcnt(0)
    v_cmp_ne_u32 vcc, 0, v{vt}
    s_cmp_eq_u32 s94, 0""")
    p(f"s_cbranch_scc1 {name}_x", tag='keep')
    p(f"s_cmp_eq_u64 vcc, -1")
    p(f"s_cbranch_scc0 {name}", tag='keep')
    p(f"{name}_x:")

A_RING = 0; NSLOT = 16; GR = 5120
A_PHIK = NSLOT * GR; PHI_RS = 352
A_VST = A_PHIK + 128 * PHI_RS
A_BD = A_VST + 20480
A_END = A_BD + 12800
A_KVIMG = A_PHIK
S_X, S_W, S_WO, S_WS, S_OUT, S_DBG, S_PHI = 40, 44, 48, 52, 56, 60, 64
V_XO = 1
V_XD = 5
V_WD = 9
V_TA = 14
V_Z = 22; V_T = 23
V_WF = 32
V_KA = 112; V_VA = 152; V_PA = 192; V_X = 240
OLD = 'sc1' if opt('osc1', 0) else ''

def mfma(p, d, a, b, c=None):
    p(f"v_mfma_f32_16x16x32_bf16 {d}, {a}, {b}, {d if c is None else c}")
def mfma32(p, d, a, b, c=None):
    p(f"v_mfma_f32_32x32x16_bf16 {d}, {a}, {b}, {d if c is None else c}")

LN = V_T; t = V_T + 1
parked = {}
def park(p, name, v):
    if name not in parked: parked[name] = 204 + len(parked)
    assert parked[name] < 256
    p(f"v_accvgpr_write_b32 a{parked[name]}, v{v}")
def unpark(q, name, v): q(f"v_accvgpr_read_b32 v{v}, a{parked[name]}")

def trbase(p, d, rowk, rowrho, extra=0):
    p(f"""v_bfe_u32 v{t}, v0, 5, 1
    v_mul_u32_u24 v{t}, {rowk}, v{t}
    v_bfe_u32 v{t+1}, v0, 2, 2
    v_mul_u32_u24 v{t+1}, {rowrho}, v{t+1}
    v_bfe_u32 v{t+2}, v0, 4, 1
    v_lshl_add_u32 v{t}, v{t+2}, 5, v{t}
    v_and_b32 v{t+2}, 3, v0
    v_lshl_add_u32 v{t}, v{t+2}, 3, v{t}
    v_add_u32 v{d}, v{t}, v{t+1}""")
    if extra: p(f"v_add_u32 v{d}, {extra}, v{d}")

def setup_g2(p):
    srd(p, S_WO, P_WO, 640 * 1280)
    srd(p, S_WS, P_WS, WS_SIZE)
    p(f"s_mul_i32 s78, s69, {128*2560}\n s_add_u32 s78, s78, s83")
    srd(p, S_OUT, P_OUT, 0, 's78')
    p(f"s_sub_u32 s{S_OUT+2}, {2048*2560}, s78")
    p(f"""s_lshr_b32 s79, s68, 1
    s_mul_i32 s79, s79, {80*1280}
    s_add_u32 s79, s79, s83
    s_and_b32 s85, s68, 1
    s_mul_i32 s85, s85, 40
    s_lshl_b32 s78, s69, 2
    s_add_u32 s78, s78, s68
    s_mul_i32 s78, s78, 40960
    s_add_u32 s92, s78, {WS_O}""")
    for i in range(5):
        p(f"""v_lshrrev_b32 v{t}, 3, v{LN}
        v_add_u32 v{t}, s85, v{t}
        v_add_u32 v{t}, {8*i}, v{t}
        v_lshrrev_b32 v{t+1}, 4, v{t}
        v_and_b32 v{t+2}, 7, v{t}
        v_lshl_add_u32 v{t+1}, v{t+1}, 3, v{t+2}
        v_bfe_u32 v{t+2}, v{t}, 3, 1
        v_mad_u32_u24 v{t+2}, v{t+2}, 20, v{t+1}
        v_add_u32 v{t+3}, 20, v{t+2}
        v_cmp_le_u32 vcc, 20, v{t+1}
        v_cndmask_b32 v{t+2}, v{t+2}, v{t+3}, vcc
        v_mul_u32_u24 v{t+2}, 1280, v{t+2}
        v_bfe_u32 v{t}, v{t}, 1, 1
        v_lshlrev_b32 v{t}, 2, v{t}
        v_and_b32 v{t+1}, 7, v0
        v_xor_b32 v{t}, v{t}, v{t+1}
        v_lshl_add_u32 v{t}, v{t}, 4, v{t+2}""")
        park(p, f'wo{i}', t)
    trbase(p, t + 3, 8 * 128, 128)
    p(f"""v_bfe_u32 v{t}, v0, 3, 1
    v_lshl_add_u32 v{t+3}, v{t}, 6, v{t+3}""")
    park(p, 'two', t + 3)
    p(f"""s_add_u32 s78, s84, {A_VST}
    v_and_b32 v{t}, 31, v0
    v_mul_u32_u24 v{t}, 144, v{t}
    v_bfe_u32 v{t+1}, v0, 5, 1
    v_lshl_add_u32 v{t}, v{t+1}, 3, v{t}
    v_add_u32 v{t}, s78, v{t}""")
    park(p, 'outw', t)
    p(f"""v_lshrrev_b32 v{t}, 3, v{LN}
    v_and_b32 v{t+1}, 7, v0
    v_lshlrev_b32 v{t+1}, 4, v{t+1}
    v_mul_u32_u24 v{t+2}, 144, v{t}
    v_add3_u32 v{t+2}, v{t+2}, v{t+1}, s78
    v_mul_u32_u24 v{t}, 2560, v{t}
    v_add_u32 v{t}, v{t}, v{t+1}""")
    park(p, 'outr', t + 2); park(p, 'outg', t)

def dma_bundles(G, hdr, items):
    B = []
    hdr(items[0][0]); B.append(hdr)
    for k, (m0, ld) in enumerate(items):
        q = Prog(); q(ld, tag=('dma', G))
        if k + 1 < len(items): q(items[k + 1][0])
        B.append(q)
    return B
def issue_group(G):
    slotbase = A_RING + (G % 4) * 4 * GR
    h = Prog()
    if G < 10:
        h(f"s_mul_i32 s86, s80, {64*3840}\n s_add_u32 s86, s86, s82\n s_lshl_b32 s81, s80, 7")
        h(f"s_add_u32 s80, s80, 1\n s_cmp_eq_u32 s80, 10\n s_cselect_b32 s80, 0, s80")
        sd = S_W
    elif G < 15:
        h(f"""s_lshl_b32 s86, s71, 1
        s_add_u32 s86, s86, s68
        s_add_u32 s86, s86, {4*(G-10)}
        s_sub_u32 s74, s86, 20
        s_cmp_ge_u32 s86, 20
        s_cselect_b32 s86, s74, s86
        s_mul_i32 s86, s86, {32*3840}
        s_add_u32 s86, s86, s75""")
        sd = S_W
    else:
        h(f"s_add_u32 s86, s79, {(G%4)*160*1280}")
        sd = S_WO
    W = [(f"s_add_u32 m0, s84, {slotbase + 1024*i}", f"buffer_load_dwordx4 v{V_QD[i] if 10 <= G < 15 else (V_WD+i if G < 10 else V_XO+i)}, {sr(sd,4)}, s86 offen lds") for i in range(5)]
    if G < 10:
        X = [(f"s_add_u32 m0, s87, {(G%4)*4096 + 1024*r}", f"buffer_load_dwordx4 v{V_XD+r}, {sr(S_X,4)}, s81 offen lds") for r in range(4)]
        items = [W[0], X[0], W[1], X[1], W[2], X[2], W[3], X[3], W[4]]
    else: items = W
    return dma_bundles(G, h, items)
V_QD = [21, 29, 30, 31, 252]

OF = lambda n: 88 + 4 * n
G2ACC = 56
def gemm2_tail(p):
    F = V_WF
    p("g2_tail:")
    unpark(p, 'two', V_TA)
    p(f"""v_xor_b32 v{V_TA+1}, 64, v{V_TA}
    v_add_u32 v{V_TA+2}, {8*GR}, v{V_TA}
    v_add_u32 v{V_TA+3}, {8*GR}, v{V_TA+1}
    v_lshlrev_b32 v{t+2}, 4, v{LN}
    v_lshrrev_b32 v{t+4}, 3, v{LN}
    v_mul_u32_u24 v{t+4}, 5120, v{t+4}
    v_and_b32 v{t}, 7, v0
    v_lshl_add_u32 v{t+4}, v{t}, 7, v{t+4}
    s_mov_b32 s94, {SPIN}
    s_add_u32 s93, s92, 4096
    s_barrier""")
    unpark(p, 'outw', t); unpark(p, 'outr', t + 1); unpark(p, 'outg', t + 3)
    stamp(p)
    def reads(n):
        hq, pp = divmod(n, 5); q = Prog(); fb = F + (n % 3) * 8
        off = hq * 10240 + pp * 2048; hi = 0
        if hq >= 4: off -= 8 * GR; hi = 2
        for T in range(2):
            for h in range(2):
                q(f"ds_read_b64_tr_b16 {vr(fb+4*T+2*h,2)}, v{V_TA+hi+T} offset:{off + 512*h}")
        return q
    p("g2_retry:")
    p.extend(reads(0)); p.extend(reads(1))
    p(f"s_mov_b32 s81, s92\n v_mov_b32 v248, 0")
    p("g2_poll:")
    p(f"""buffer_load_dword v249, v{t+4}, {sr(S_WS,4)}, s93 offen sc1
    s_sub_u32 s94, s94, 1
    s_waitcnt vmcnt(0)
    v_cmp_ne_u32 vcc, -1, v249
    s_cmp_eq_u32 s94, 0""")
    p("s_cbranch_scc1 g2_go", tag='keep')
    p("s_cmp_eq_u64 vcc, -1")
    p("s_cbranch_scc0 g2_poll", tag='keep')
    p("g2_go:")
    stamp(p)
    def oload(n):
        q = Prog(); hq, pp = divmod(n, 5)
        if pp == 4: q(f"s_add_u32 s85, s81, 4096")
        q(f"buffer_load_dwordx4 {vr(OF(n),4)}, v{t+2}, {sr(S_WS,4)}, {'s85' if pp == 4 else 's81'} offen offset:{1024*(pp%4)} sc1")
        if pp == 4: q("s_add_u32 s81, s81, 5120")
        return q
    PRE = opt('opre', 10)
    for n in range(PRE): p.extend(oload(n))
    for n in range(40):
        fb = F + (n % 3) * 8
        mm = Prog(); mm.need([vr(fb, 8), vr(OF(n), 4)])
        for T in range(2): mfma32(mm, vr(G2ACC + 16 * T, 16), vr(fb + 4 * T, 4), vr(OF(n), 4), '0' if n == 0 else None)
        st = []
        if n + 2 < 40: st.append((singles(reads(n + 2)), 0, 2))
        if n + PRE < 40: st.append(([oload(n + PRE)], 0, 1))
        c = Prog(); c(f"v_max3_u32 v248, v248, v{OF(n)}, v{OF(n)+1}\n v_max3_u32 v248, v248, v{OF(n)+2}, v{OF(n)+3}")
        st.append((singles(c), 1, 2))
        p.extend(pack(mm, st, cap=32))
    p(f"""v_cmp_eq_u32 vcc, -1, v248
    s_mul_i32 s78, s68, {32*2560}
    s_cmp_eq_u32 s94, 0""")
    p("s_cbranch_scc1 g2_out", tag='keep')
    p("s_sub_u32 s94, s94, 1\n s_nop 7\n s_nop 7")
    p("s_cbranch_vccnz g2_retry", tag='keep')
    p("g2_out:")
    stamp(p)
    for T in range(2):
        for j in range(4):
            x = G2ACC + 16 * T + 4 * j; o = 88 + 8 * T + 2 * j
            p(f"v_cvt_pk_bf16_f32 v{o}, v{x}, v{x+1}\n v_cvt_pk_bf16_f32 v{o+1}, v{x+2}, v{x+3}")
            p(f"ds_write_b64 v{t}, {vr(o,2)} offset:{64*T+16*j}")
    for i in range(4): p(f"ds_read_b128 {vr(104+4*i,4)}, v{t+1} offset:{8*144*i}")
    for i in range(4):
        p(f"buffer_store_dwordx4 {vr(104+4*i,4)}, v{t+3}, {sr(S_OUT,4)}, s78 offen")
        if i < 3: p(f"s_add_u32 s78, s78, {8*2560}")
    stamp(p)
    stamp_store(p, S_WS)
    p("s_endpgm")

def divc(p, d, x, c):
    m, sh = {10: (205, 11), 20: (205, 12), 12: (171, 11), 5: (205, 10), 100: (41, 12)}[c]
    p(f"v_mul_u32_u24 v{d}, {m}, v{x}\n v_lshrrev_b32 v{d}, {sh}, v{d}")

V_PO = 160
V_D = 200
def role_A():
    p = Prog(); nstamp[0] = 0
    p("roleA:")
    stamp(p)
    p("""s_and_b32 s72, s2, 7
    s_lshr_b32 s73, s2, 3
    s_lshr_b32 s69, s72, 1
    s_lshl_b32 s69, s69, 2
    s_lshr_b32 s74, s73, 2
    s_add_u32 s69, s69, s74
    s_and_b32 s70, s72, 1
    s_lshl_b32 s70, s70, 2
    s_and_b32 s75, s73, 3
    s_add_u32 s70, s70, s75
    s_add_u32 s71, s74, s75
    s_and_b32 s71, s71, 3""")
    if ROT == 2:
        p("""s_add_u32 s71, s69, s70
        s_mul_i32 s71, s71, 3
        s_mul_i32 s74, s71, 205
        s_lshr_b32 s74, s74, 11
        s_mul_i32 s74, s74, 10
        s_sub_u32 s71, s71, s74""")
    else:
        p(f"s_mul_i32 s71, s71, {5 if ROT else 0}\n s_add_u32 s71, s71, {1 if ROT else 0}\n s_lshr_b32 s71, s71, 1")
    p(f"""v_and_b32 v{LN}, 63, v0
    v_mov_b32 v{V_Z}, 0""")
    p(f"""s_lshl_b32 s76, s68, 5
    v_lshrrev_b32 v{t}, 3, v{LN}
    v_add_u32 v{t}, s76, v{t}
    v_mul_u32_u24 v{t}, 1280, v{t}
    v_and_b32 v{t+1}, 7, v0
    v_bfe_u32 v{t+2}, v0, 4, 2
    v_xor_b32 v{t+1}, v{t+1}, v{t+2}
    v_lshl_add_u32 v{V_XD}, v{t+1}, 4, v{t}
    v_xor_b32 v{V_XD+1}, 64, v{V_XD}
    v_add_u32 v{V_XD+1}, {8*1280}, v{V_XD+1}
    v_add_u32 v{V_XD+2}, {16*1280}, v{V_XD}
    v_add_u32 v{V_XD+3}, {16*1280}, v{V_XD+1}""")
    p(f"s_movk_i32 s78, 1120")
    for i in range(5):
        p(f"v_add_u32 v{t}, {64*i}, v{LN}")
        divc(p, t + 1, t, 20)
        p(f"""v_mul_u32_u24 v{t+2}, 20, v{t+1}
        v_sub_u32 v{t}, v{t}, v{t+2}
        v_mul_u32_u24 v{t+1}, 3840, v{t+1}
        v_cmp_le_u32 vcc, 10, v{t}
        v_lshl_add_u32 v{t+1}, v{t}, 4, v{t+1}
        v_add_u32 v{t+2}, s78, v{t+1}
        v_cndmask_b32 v{V_WD+i}, v{t+1}, v{t+2}, vcc""")
    p(f"""s_mov_b32 s80, s71
    s_mul_i32 s75, s70, 160
    s_mul_i32 s82, s68, {16*3840}
    s_add_u32 s82, s82, s75
    s_add_u32 s82, s82, 1280
    s_lshl_b32 s83, s70, 7
    s_mul_i32 s84, s68, {GR}
    s_lshl_b32 s87, s68, 14
    s_add_u32 s87, s87, {A_PHIK}
    s_mul_i32 s78, s69, {128*1280}""")
    srd(p, S_X, P_X, 128 * 1280, 's78')
    srd(p, S_W, P_W, 640 * 3840)
    su = Prog()
    trbase(su, V_TA, 8 * 320, 320)
    su(f"""v_add_u32 v{V_TA+1}, {8*GR}, v{V_TA}
    v_and_b32 v{t}, 31, v0
    v_bfe_u32 v{t+1}, v0, 1, 3
    v_bfe_u32 v{t+2}, v0, 5, 1
    v_xor_b32 v{t+1}, v{t+1}, v{t+2}
    v_lshlrev_b32 v{t+1}, 4, v{t+1}
    v_lshl_add_u32 v{t}, v{t}, 7, v{t+1}
    v_add_u32 v{V_XO}, s87, v{t}
    v_xor_b32 v{V_XO+1}, 32, v{V_XO}
    v_xor_b32 v{V_XO+2}, 64, v{V_XO}
    v_xor_b32 v{V_XO+3}, 96, v{V_XO}""")
    su(f"""v_mov_b32 v{V_X+4}, 0
    v_mov_b32 v{V_X+5}, 0
    v_mov_b32 v{V_X+6}, 0
    v_mov_b32 v{V_X+7}, 0
    v_lshlrev_b32 v{t}, 4, v0
    v_add_u32 v{t}, {A_BD}, v{t}
    v_min_u32 v{t+1}, {A_BD+496}, v{t}
    ds_write_b128 v{t}, {vr(V_X+4,4)}
    ds_write_b128 v{t}, {vr(V_X+4,4)} offset:4096
    ds_write_b128 v{t}, {vr(V_X+4,4)} offset:8192
    ds_write_b128 v{t+1}, {vr(V_X+4,4)} offset:12288""")
    L2E = 1.4426950408889634
    su(f"s_mov_b32 s88, {f2u(L2E):#x}\n s_mov_b32 s89, {f2u(L2E):#x}")
    for r in range(2):
        su(f"v_add_u32 v{t}, {256*r}, v0")
        divc(su, t + 1, t, 5); divc(su, t + 2, t, 100)
        su(f"""v_mul_u32_u24 v{t+1}, 120, v{t+1}
        v_mad_u32_u24 v{t+1}, v{t+2}, 40, v{t+1}
        v_lshl_add_u32 v{t+1}, v{t}, 3, v{t+1}
        v_add_u32 v{V_X+8+r}, {A_BD}, v{t+1}""")
    su(f"""v_mov_b32 v{t+1}, {A_END}
    v_cmp_gt_u32 vcc, 400, v{t}
    v_cndmask_b32 v{V_X+9}, v{t+1}, v{V_X+9}, vcc""")
    srd(su, S_DBG, P_DBG, 256)
    for i in range(5):
        su(f"v_add_u32 v{t}, {64*i}, v{LN}")
        divc(su, t + 1, t, 10)
        su(f"""v_mul_u32_u24 v{t+2}, 10, v{t+1}
        v_sub_u32 v{t}, v{t}, v{t+2}
        v_and_b32 v{t+2}, 24, v{t+1}
        v_and_b32 v{t+3}, 1, v{t+1}
        v_lshl_add_u32 v{t+2}, v{t+3}, 2, v{t+2}
        v_bfe_u32 v{t+3}, v{t+1}, 1, 2
        v_add_u32 v{t+2}, v{t+2}, v{t+3}
        v_mul_u32_u24 v{t+2}, 3840, v{t+2}
        v_lshl_add_u32 v{V_QD[i]}, v{t}, 4, v{t+2}""")
    su(f"""v_bfe_u32 v{t}, v0, 5, 1
    v_bfe_u32 v{t+1}, v0, 2, 2
    v_lshl_add_u32 v{t}, v{t}, 2, v{t+1}
    v_mul_u32_u24 v{t}, 160, v{t}
    v_and_b32 v{t+1}, 1, v0
    v_mad_u32_u24 v{t}, v{t+1}, 40, v{t}
    v_bfe_u32 v{t+1}, v0, 4, 1
    v_bfe_u32 v{t+2}, v0, 1, 1
    v_lshl_add_u32 v{t+1}, v{t+1}, 1, v{t+2}
    v_lshl_add_u32 v{t}, v{t+1}, 3, v{t}
    v_add_u32 v18, {A_BD}, v{t}
    v_cmp_eq_u32 vcc, 0, v{t+1}
    v_add_u32 v19, 32, v18
    v_add_u32 v{t+2}, 72, v18
    v_cndmask_b32 v19, v{t+2}, v19, vcc
    v_cmp_gt_u32 vcc, 2, v{t+1}
    v_add_u32 v20, 104, v18
    v_nop
    v_cndmask_b32 v20, v18, v20, vcc""".replace("    v_nop\n", ""))
    trbase(su, t + 3, 8 * 160, 320); park(su, 'tq', t + 3)
    su(f"""v_and_b32 v{t}, 31, v0
    v_add_u32 v{t}, s76, v{t}
    v_bfe_u32 v{t+1}, v0, 5, 1
    v_mul_u32_u24 v{t+2}, {PHI_RS}, v{t}
    v_mul_u32_u24 v{t+3}, 80, v{t+1}
    v_add_u32 v{t+2}, v{t+2}, v{t+3}
    v_add_u32 v{t+2}, {A_PHIK}, v{t+2}
    v_mul_u32_u24 v{t}, 160, v{t}
    v_lshl_add_u32 v{t}, v{t+1}, 3, v{t}
    v_add_u32 v{t}, {A_VST}, v{t}""")
    park(su, 'phiw', t + 2); park(su, 'vw', t)
    su(f"""v_bfe_u32 v{t}, v0, 2, 4
    v_and_b32 v{t+1}, 3, v0
    v_mul_u32_u24 v{t+2}, {PHI_RS}, v{t}
    v_lshl_add_u32 v{t+2}, v{t+1}, 3, v{t+2}
    s_mul_i32 s78, s68, 80
    s_add_u32 s78, s78, {A_PHIK}
    v_add_u32 v{t+2}, s78, v{t+2}
    s_mul_i32 s78, s68, 40
    s_add_u32 s78, s78, {A_VST}
    v_mul_u32_u24 v{t}, 160, v{t}
    v_add_u32 v{t}, s78, v{t}
    v_lshl_add_u32 v{t+1}, v{t+1}, 3, v{t}
    v_add_u32 v{t}, 32, v{t}""")
    park(su, 'phir', t + 2); park(su, 'vr0', t + 1); park(su, 'vr1', t)
    a0 = V_PA
    su(f"""v_and_b32 v{t+3}, 15, v0
    v_bfe_u32 v{t+4}, v0, 4, 2
    v_cmp_gt_u32 s[90:91], 8, v{t+3}
    v_lshlrev_b32 v{t}, 2, v{t+3}
    v_mul_u32_u24 v{t+1}, 768, v{t+4}
    v_add_u32 v{a0}, v{t}, v{t+1}
    v_add_u32 v{t+1}, {192-32}, v{a0}
    v_cndmask_b32 v{a0+1}, v{t+1}, v{a0}, s[90:91]
    v_mul_u32_u24 v{t+1}, 192, v{t+4}
    v_add_u32 v{t+1}, {16*192}, v{t+1}
    v_add_u32 v{a0+2}, v{t+1}, v{t}
    v_mov_b32 v{t+2}, {OOB:#x}
    v_cmp_gt_u32 vcc, 40, v{LN}
    v_cndmask_b32 v{a0+3}, v{t+2}, v{a0+2}, s[90:91]
    v_lshlrev_b32 v{t+1}, 2, v{LN}
    v_add_u32 v{t+1}, {20*192}, v{t+1}
    v_cndmask_b32 v{a0+4}, v{t+2}, v{t+1}, vcc
    v_cmp_eq_u32 vcc, 0, v{LN}
    v_cmp_gt_u32 s[90:91], 4, v{t+3}
    v_cndmask_b32 v{a0+6}, v{t+2}, v{V_Z}, vcc""")
    for k in range(5): park(su, f'at{k}', a0 + k)
    park(su, 'l0', a0 + 6)
    su(f"s_mul_i32 s85, s68, 1920\n s_add_u32 s85, s85, {A_KVIMG}\n v_mov_b32 v{t+4}, {A_KVIMG+9600}")
    for i in range(4):
        su(f"v_add_u32 v{t}, {64*i}, v{LN}")
        divc(su, t + 1, t, 12)
        su(f"""v_mul_u32_u24 v{t+2}, 12, v{t+1}
        v_sub_u32 v{t+2}, v{t}, v{t+2}
        v_cmp_gt_u32 vcc, 10, v{t+2}
        v_mul_u32_u24 v{t+1}, 80, v{t+1}
        v_lshl_add_u32 v{t+1}, v{t+2}, 3, v{t+1}
        v_add_u32 v{t+1}, s85, v{t+1}
        v_cndmask_b32 v{t+1}, v{t+4}, v{t+1}, vcc""")
        if i == 3: su(f"v_cmp_gt_u32 vcc, 60, v{LN}\n v_cndmask_b32 v{t+1}, v{t+4}, v{t+1}, vcc")
        park(su, f'kvw{i}', t + 1)
    su(f"""v_cmp_gt_u32 vcc, 120, v0
    v_lshlrev_b32 v{t}, 4, v0
    v_add_u32 v{t}, {A_KVIMG+7680}, v{t}
    v_cndmask_b32 v{t}, v{t+4}, v{t}, vcc""")
    park(su, 'kvz', t)
    su(f"""v_bfe_u32 v{t}, v0, 3, 2
    v_and_b32 v{t+1}, 3, v0
    v_lshl_add_u32 v{t}, v{t}, 2, v{t+1}
    v_mul_u32_u24 v{t}, 80, v{t}
    v_bfe_u32 v{t+1}, v0, 2, 1
    v_bfe_u32 v{t+4}, v0, 5, 1
    v_cmp_eq_u32 vcc, v{t+1}, v{t+4}
    v_mul_u32_u24 v{t+2}, 1920, v{t+1}
    v_add_u32 v{t}, v{t}, v{t+2}
    v_add_u32 v{t}, {A_KVIMG}, v{t}
    v_add_u32 v{t+3}, 3840, v{t}
    v_mov_b32 v{t+2}, {A_KVIMG+7680}
    v_cndmask_b32 v{t}, v{t+2}, v{t}, vcc
    v_cndmask_b32 v{t+3}, v{t+2}, v{t+3}, vcc""")
    park(su, 'kvr0', t); park(su, 'kvr1', t + 3)
    setup_g2(su)
    wl = Prog()
    wl("s_mul_i32 s77, s70, 3200")
    srd(wl, S_PHI, P_PHI, 3200, 's77')
    wl(f"""v_lshlrev_b32 v{V_X+10}, 3, v0
    buffer_load_dwordx2 {vr(V_X,2)}, v{V_X+10}, {sr(S_PHI,4)}, 0 offen
    buffer_load_dwordx2 {vr(V_X+2,2)}, v{V_X+10}, {sr(S_PHI,4)}, 0 offen offset:2048""")
    iss = issue_group(0) + [wl] + issue_group(1)
    sub = bundles(su)
    LEAD = opt('lead', 5)
    per = -(-len(sub) // (len(iss) - LEAD + opt('sutail', 0)))
    for k, b in enumerate(iss):
        p.extend(b)
        if k >= LEAD:
            for x in sub[:per]: p.extend(x)
            sub = sub[per:]
    for x in sub: p.extend(x)
    stamp(p)

    def sync(p, G):
        p.waitvm(('dma', G)); p("s_barrier")
    p("s_waitcnt lgkmcnt(0)")
    sync(p, 0)
    stamp(p)
    FD = 2
    def kv_reads(k):
        q = Prog(); fb = V_WF + (k % 3) * 20
        slot = k % NSLOT; base = V_TA + (slot >= 8); so = (slot % 8) * GR
        q(f"ds_read_b128 {ar(4*k,4)}, v{V_XO+k%4} offset:{((k//4)%4)*4096}")
        for T in range(5):
            for h in range(2):
                q(f"ds_read_b64_tr_b16 {vr(fb+4*T+2*h,2)}, v{base} offset:{so + 1280*h + 64*T}")
        return q
    PH = [(0, 0), (0, 1), (0, 2), (1, 0), (1, 1), (1, 2), (1, 3), (1, 4), (2, 2), (2, 3), (2, 4)]
    bdr = Prog()
    for n, (U, ka) in enumerate(PH):
        for h in range(2): bdr(f"ds_read_b64_tr_b16 {ar(160+4*n+2*h,2)}, v{18+U} offset:{(16*ka+8*h)*160}")
    bdr = singles(bdr)
    for k in range(FD): p.extend(kv_reads(k))
    segs = [list(range(0, 4 - FD))] + [list(range(4 * G - FD, 4 * G + 4 - FD)) for G in range(1, 10)] + [list(range(40 - FD, 40))]
    for si, steps in enumerate(segs):
        if si >= 1:
            if si == 10: p("s_waitcnt lgkmcnt(0)")
            if STAMP == 2: stamp(p)
            sync(p, si)
        m = Prog(); st = []
        for n, k in enumerate(steps):
            fb = V_WF + (k % 3) * 20
            m.need([vr(fb, 20), ar(4 * k, 4)])
            for T in range(5): mfma32(m, vr(V_KA + 16 * T, 16), vr(fb + 4 * T, 4), ar(4 * k, 4), '0' if k == 0 else None)
            if k + FD < 40: st.append((singles(kv_reads(k + FD)), 5 * n, 5 * n + 5))
        st.append((issue_group(si + 2), 0, None))
        if si == 1:
            w = Prog(); w(f"ds_write_b64 v{V_X+8}, {vr(V_X,2)}\n ds_write_b64 v{V_X+9}, {vr(V_X+2,2)}")
            st.append((singles(w), 2, 12))
        if 3 <= si <= 8: st.append((bdr[4 * (si - 3): 4 * (si - 2)], 0, None))
        if si == 8:
            w = Prog(); w(f"buffer_load_dword v{V_X+10}, v{V_Z}, {sr(S_DBG,4)}, 0 offen sc1")
            st.append(([w], 0, 1))
        if si == 10:
            w = Prog(); unpark(w, 'vw', t + 1); unpark(w, 'phiw', t + 2); unpark(w, 'tq', V_TA + 2)
            w(f"v_add_u32 v{V_TA+3}, {8*GR}, v{V_TA+2}")
            for i in range(5): unpark(w, f'wo{i}', V_XO + i)
            st.append((singles(w), 0, None))
        p.extend(pack(m, st))
    stamp(p)

    def phi_step(p, acc, out, extra=None):
        B = V_WF; E = V_WF + 24; M = V_WF + 64
        cv = [f"v_cvt_pk_bf16_f32 v{B+k}, v{acc+2*k}, v{acc+2*k+1}" for k in range(20)]
        def minmax(y):
            q = Prog(); x = V_PA + y * 20; Mx = M + 8 * y
            q(f"v_max3_f32 v{Mx}, v{x}, v{x+1}, v{x+2}\n v_min3_f32 v{Mx+2}, v{x}, v{x+1}, v{x+2}")
            for k in range(3, 19, 2):
                q(f"v_max3_f32 v{Mx}, v{Mx}, v{x+k}, v{x+k+1}\n v_min3_f32 v{Mx+2}, v{Mx+2}, v{x+k}, v{x+k+1}")
            q(f"v_max_f32 v{Mx}, v{Mx}, v{x+19}\n v_min_f32 v{Mx+2}, v{Mx+2}, v{x+19}")
            q(f"v_mul_f32 v{Mx}, s88, v{Mx}\n v_mul_f32 v{Mx+2}, s88, v{Mx+2}")
            return q
        for c in cv[:8]: p(c)
        m = Prog(); seen = set()
        for n, (U, ka) in enumerate(PH):
            mfma32(m, vr(V_PA + 16 * U, 16), ar(160 + 4 * n, 4), vr(B + 4 * ka, 4), None if U in seen else '0'); seen.add(U)
        c2 = Prog()
        for c in cv[8:]: c2(c)
        st = [(singles(c2), 0, 2)]
        if extra: st.append((bundles(extra), 2, 11))
        p.extend(pack(m, st, cap=28))
        for y in range(2):
            x = V_PA + y * 20; Mx = M + 8 * y
            p.extend(minmax(y))
            for q in range(10):
                p(f"v_pk_fma_f32 {vr(E+2*q,2)}, {vr(x+2*q,2)}, s[88:89], {vr(Mx,2)} op_sel_hi:[1,1,0] neg_lo:[0,0,1] neg_hi:[0,0,1]")
                p(f"v_pk_fma_f32 {vr(E+20+2*q,2)}, {vr(x+2*q,2)}, s[88:89], {vr(Mx+2,2)} op_sel_hi:[1,1,0] neg_lo:[1,0,0] neg_hi:[1,0,0]")
            for q in range(40): p(f"v_exp_f32 v{E+q}, v{E+q}")
            for q in range(1, 10):
                for hh in range(2):
                    S = Mx + 4 + 2 * hh; e = E + 20 * hh
                    p(f"v_pk_add_f32 {vr(S,2)}, {vr(e if q == 1 else S,2)}, {vr(e+2*q,2)}")
            p(f"v_add_f32 v{Mx+4}, v{Mx+4}, v{Mx+5}\n v_add_f32 v{Mx+6}, v{Mx+6}, v{Mx+7}")
            p(f"v_rcp_f32 v{Mx+4}, v{Mx+4}\n v_rcp_f32 v{Mx+6}, v{Mx+6}")
            for hh in range(2):
                for q in range(10):
                    e = E + 20 * hh + 2 * q
                    p(f"v_pk_mul_f32 {vr(e,2)}, {vr(e,2)}, {vr(Mx+4+2*hh,2)} op_sel_hi:[1,0]")
            yield y
            for q in range(20):
                p(f"v_cvt_pk_bf16_f32 v{out+y*20+q}, v{E+2*q}, v{E+2*q+1}")

    def q_reads(k):
        q = Prog(); fb = V_WF + (k % 3) * 12
        slot = (40 + k // 2) % NSLOT; base = V_TA + 2 + (slot >= 8); so = (slot % 8) * GR + (k % 2) * 2560
        for T in range(3):
            for h in range(2):
                q(f"ds_read_b64_tr_b16 {vr(fb+4*T+2*h,2)}, v{base} offset:{so + 160*h + 64*T}")
        return q
    ex = Prog()
    for mm_ in range(10):
        a = V_VA + 4 * mm_; d = V_X + 2 * (mm_ % 4)
        ex(f"v_cvt_pk_bf16_f32 v{d}, v{a}, v{a+1}\n v_cvt_pk_bf16_f32 v{d+1}, v{a+2}, v{a+3}\n ds_write_b64 v{t+1}, {vr(d,2)} offset:{16*mm_}")
    for y in phi_step(p, V_KA, V_PO, ex):
        if y == 1:
            p.extend(q_reads(0));
    p.extend(q_reads(1))
    stamp(p)
    p(f"""v_readfirstlane_b32 s95, v{V_X+10}
    s_mov_b32 s94, {SPIN}
    s_cmp_ge_u32 s95, {NZERO_WG}""")
    p("s_cbranch_scc1 a_pz_x", tag='keep')
    p("a_pz:")
    p(f"""buffer_load_dword v{V_X+10}, v{V_Z}, {sr(S_DBG,4)}, 0 offen sc1
    s_sub_u32 s94, s94, 1
    s_waitcnt vmcnt(0)
    v_readfirstlane_b32 s95, v{V_X+10}
    s_cmp_eq_u32 s94, 0""", tag='offpath')
    p("s_cbranch_scc1 a_pz_x", tag='keep')
    p(f"s_cmp_ge_u32 s95, {NZERO_WG}")
    p("s_cbranch_scc0 a_pz", tag='keep')
    p("a_pz_x:")
    pw = Prog()
    for y in range(2):
        for q in range(5): pw(f"ds_write_b128 v{t+2}, {vr(V_PO+y*20+4*q,4)} offset:{160*y + 16*q}")
    pre = Prog()
    unpark(pre, 'phir', t); unpark(pre, 'vr0', t + 1); unpark(pre, 'vr1', t + 3)
    pre(f"v_mov_b32 v{t+4}, 0x3f803f80")
    for k in range(5): unpark(pre, f'at{k}', V_X + k)
    pre(f"""s_lshl_b32 s78, s70, 2
    s_add_u32 s78, s78, s68
    s_lshl_b32 s78, s78, 12
    s_add_u32 s78, s78, {WS_KV}""")
    KF = 72
    def kvs_reads(sw):
        q = Prog(); fb = KF + (sw % 2) * 20
        for h in range(2): q(f"ds_read_b64_tr_b16 {vr(fb+4+2*h,2)}, v{t+3} offset:{(sw*32+h*16)*160}")
        for h in range(2): q(f"ds_read_b64_tr_b16 {vr(fb+2*h,2)}, v{t+1} offset:{(sw*32+h*16)*160}")
        for nf in range(3):
            for h in range(2):
                q(f"ds_read_b64_tr_b16 {vr(fb+8+4*nf+2*h,2)}, v{t} offset:{(sw*32+h*16)*PHI_RS + 32*nf}")
        return q
    def kvs_mfma(m, sw):
        fb = KF + (sw % 2) * 20
        m.need([vr(fb, 20)])
        for q in range(4): m(f"v_cndmask_b32 v{fb+4+q}, v{t+4}, v{fb+4+q}, s[90:91]")
        for md in range(2):
            for nf in range(3):
                mfma(m, vr(V_D + (3 * md + nf) * 4, 4), vr(fb + 4 * md, 4), vr(fb + 8 + 4 * nf, 4), '0' if sw == 0 else None)
    at = Prog(); a0 = V_X
    def atom(v, vo, off): at(f"buffer_atomic_add_f32 v{v}, v{vo}, {sr(S_WS,4)}, s78 offen offset:{off}", tag='kvat')
    for nf in range(2):
        for i in range(4): atom(V_D + 4 * nf + i, a0, i * 192 + nf * 64)
    R = lambda nf, i: V_D + 12 + 4 * nf + i
    for i in (0, 2):
        at(f"v_mov_b32_dpp v{V_D+8+i}, v{V_D+9+i} row_shr:8 row_mask:0xf bank_mask:0xc")
    for nf in range(3):
        at(f"v_permlane16_swap_b32 v{R(nf,0)}, v{R(nf,1)}\n v_permlane16_swap_b32 v{R(nf,2)}, v{R(nf,3)}")
    for i in (0, 2): atom(V_D + 8 + i, a0 + 1, i * 192 + 128)
    for nf in range(3): at(f"v_permlane32_swap_b32 v{R(nf,0)}, v{R(nf,2)}")
    at(f"v_permlane16_swap_b32 v{R(0,1)}, v{R(1,1)}")
    for nf in range(3): atom(R(nf, 0), a0 + (3 if nf == 2 else 2), nf * 64)
    at(f"v_permlane32_swap_b32 v{R(0,1)}, v{R(2,1)}")
    atom(R(0, 1), a0 + 4, 0)
    KS = opt('ks', 5)
    segs = [list(range(0, 6))] + [list(range(8 * g - 2, 8 * g + 6)) for g in range(1, 5)] + [[38, 39]]
    def signal():
        unpark(p, 'l0', V_X + 7)
        p(f"""v_mov_b32 v{V_X+6}, 1
        s_lshl_b32 s78, s70, 8
        s_lshl_b32 s85, s69, 4
        s_add_u32 s78, s78, s85
        s_lshl_b32 s85, s68, 2
        s_add_u32 s78, s78, s85""")
        p.waitvm('kvat')
        p(f"buffer_store_dword v{V_X+6}, v{V_X+7}, {sr(S_WS,4)}, s78 offen sc1")
    for si, steps in enumerate(segs):
        G = 10 + si
        if si >= 1:
            if STAMP == 3: stamp(p)
            if si == KS: signal()
            if si == 1: p("s_waitcnt lgkmcnt(0)")
            if G < 15: sync(p, G)
            else: p("s_barrier")
        def qstep(k, extra):
            m = Prog(); fb = V_WF + (k % 3) * 12
            m.need([vr(fb, 12)])
            for T in range(3): mfma32(m, vr(V_KA + 16 * T, 16), vr(fb + 4 * T, 4), ar(4 * k, 4), '0' if k == 0 else None)
            return m
        if si == 1:
            grp = issue_group(13) + issue_group(14) if False else issue_group(13)
            for n, k in enumerate(steps):
                st = [(singles(q_reads(k + 2)), 0, 3)]
                if n in (0, 1, 3, 5): st.append((singles(kvs_reads({0: 0, 1: 1, 3: 2, 5: 3}[n])), 0, 3))
                else: st.append((grp[:2], 0, 3)); grp = grp[2:]
                p.extend(pack(qstep(k, None), st, cap=28))
                if n in (2, 4, 6, 7): kvs_mfma(p, {2: 0, 4: 1, 6: 2, 7: 3}[n])
            seg_pend = grp
            continue
        m = Prog(); st = []
        for n, k in enumerate(steps):
            m.extend(qstep(k, None))
            if k + 2 < 40: st.append((singles(q_reads(k + 2)), 3 * n, 3 * n + 3))
        if si == 0:
            st.append((singles(pw), 0, 14)); st.append((bundles(pre), 8, None))
        elif si == 2: st.append((issue_group(14), 0, 6)); st.append((singles(at), 2, None))
        else: st.append((issue_group(G + 2), 0, None))
        p.extend(pack(m, st, cap=28))
    if KS == 6: signal()
    stamp(p)
    F = V_WF
    ex = Prog()
    unpark(ex, 'kvz', t)
    ex(f"""v_mov_b32 v{V_X}, 0
    v_mov_b32 v{V_X+1}, 0
    v_mov_b32 v{V_X+2}, 0
    v_mov_b32 v{V_X+3}, 0
    ds_write_b128 v{t}, {vr(V_X,4)}
    v_lshlrev_b32 v{t+1}, 2, v{LN}
    v_lshlrev_b32 v{t+2}, 4, v{LN}
    s_lshl_b32 s78, s70, 8
    s_lshl_b32 s77, s70, 2
    s_add_u32 s77, s77, s68
    s_lshl_b32 s77, s77, 12
    s_add_u32 s77, s77, {WS_KV}""")
    for i in range(4): unpark(ex, f'kvw{i}', V_X + 4 + i)
    KL = V_KA + 32
    def kvloads(tag=None):
        for i in range(4):
            p(f"buffer_load_dwordx4 {vr(KL+4*i,4)}, v{t+2}, {sr(S_WS,4)}, s77 offen offset:{1024*i} sc1", tag=tag)
    for y in phi_step(p, V_KA, V_PO, ex):
        if y == 0:
            p(f"buffer_load_dword v{V_X+8}, v{t+1}, {sr(S_WS,4)}, s78 offen sc1")
        if y == 1 and opt('early', 1):
            p(f"v_cmp_ne_u32 vcc, 0, v{V_X+8}\n s_mov_b32 s95, 0\n s_nop 0\n s_cmp_eq_u64 vcc, -1")
            p("s_cbranch_scc0 a_noearly", tag='keep')
            kvloads('offpath')
            p("s_mov_b32 s95, 1", tag='offpath')
            p("a_noearly:")
    stamp(p)
    if opt('early', 1):
        p("s_cmp_eq_u32 s95, 1")
        p("s_cbranch_scc1 a_have", tag='keep')
    pollall(p, "a_pk", S_WS, 's78', V_X + 8, t + 1)
    kvloads()
    p("a_have:")
    stamp(p)
    unpark(p, 'kvr0', t); unpark(p, 'kvr1', t + 1)
    p(f"""s_mul_i32 s76, s70, 5120
    s_add_u32 s78, s92, s76
    s_add_u32 s81, s78, 4096
    s_mov_b32 s85, {f2u(1e-6):#x}
    s_waitcnt vmcnt(0)""")
    for i in range(4):
        p(f"v_cvt_pk_bf16_f32 v{F+16+2*i}, v{KL+4*i}, v{KL+4*i+1}\n v_cvt_pk_bf16_f32 v{F+17+2*i}, v{KL+4*i+2}, v{KL+4*i+3}")
        p(f"ds_write_b64 v{V_X+4+i}, {vr(F+16+2*i,2)}")
    p("s_waitcnt lgkmcnt(0)\n s_barrier")
    stamp(p)
    order = [(y, u, ka) for y in range(2) for u in (1, 0) for ka in range(5)]
    NB = 10; O = F + 48
    def ord_(n):
        y, u, ka = order[n]; q = Prog(); q(f"ds_read_b128 {vr(F+4*(n%NB),4)}, v{t+y} offset:{u*1280+16*ka}"); return q
    for n in range(NB): p.extend(ord_(n))
    def fin(y):
        q = Prog(); dn = V_KA + 16 * y + 4
        vals = [V_D + 16 * y + r for r in range(16)] + [V_KA + 16 * y + r for r in range(4)]
        for k in range(10):
            q(f"v_mul_f32 v{vals[2*k]}, v{dn}, v{vals[2*k]}\n v_mul_f32 v{vals[2*k+1]}, v{dn}, v{vals[2*k+1]}")
            q(f"v_cvt_pk_bf16_f32 v{O+10*y+k}, v{vals[2*k]}, v{vals[2*k+1]}")
        return q
    om = Prog()
    for n, (y, u, ka) in enumerate(order):
        mfma32(om, vr((V_D if u == 0 else V_KA) + 16 * y, 16), vr(F + 4 * (n % NB), 4), vr(V_PO + y * 20 + 4 * ka, 4), '0' if ka == 0 else None)
        if n + NB < 20: om.extend(ord_(n + NB))
        if ka == 3 and u == 0:
            dn = V_KA + 16 * y + 4
            om(f"v_add_f32 v{dn}, s85, v{dn}\n v_rcp_f32 v{dn}, v{dn}")
    f0 = fin(0); stq = Prog()
    for pc in range(2): stq(f"buffer_store_dwordx4 {vr(O+4*pc,4)}, v{t+2}, {sr(S_WS,4)}, s78 offen offset:{1024*pc} sc1", tag='ost')
    p.extend(pack(om, [(issue_group(18), 0, 8), (singles(f0), 12, 18), (singles(stq), 18, 20)], cap=28))
    f1 = fin(1).L
    def ost(pc): p(f"buffer_store_dwordx4 {vr(O+4*pc,4)}, v{t+2}, {sr(S_WS,4)}, {'s81' if pc == 4 else 's78'} offen offset:{1024*(pc%4)} sc1", tag='ost')
    p.L += f1[:6]; ost(2); p.L += f1[6:18]; ost(3); p.L += f1[18:]; ost(4)
    stamp(p)
    p.waitvm(('dma', 18))
    gemm2_tail(p)
    return p

CP = 4168; YP = 4160; SRS = 544
B_RAW = 0
B_UC = 33280
B_KR = B_UC + 16 * CP
B_SC = B_KR + 4 * 4608
B_END = B_SC + 4 * 16 * SRS
def role_B():
    p = Prog(); nstamp[0] = 0
    S_U, S_LA, S_AI, S_CR, S_CI, S_LDT, S_DS, S_O, S_WSB = 40, 44, 48, 52, 56, 60, 64, 72, 76
    p("roleB:")
    stamp(p)
    p("""s_and_b32 s69, s2, 7
    s_mul_i32 s69, s69, 10
    s_lshr_b32 s70, s2, 3
    s_sub_u32 s70, s70, 16
    s_add_u32 s69, s69, s70""")
    LN, L15, G, Z = 1, 2, 3, 4
    p(f"""v_and_b32 v{LN}, 63, v0
    v_and_b32 v{L15}, 15, v0
    v_bfe_u32 v{G}, v0, 4, 2
    v_mov_b32 v{Z}, 0
    v_lshlrev_b32 v5, 2, v{LN}
    s_waitcnt lgkmcnt(0)""")
    for s_, ptr, size in ((S_LA, P_LA, 640*256), (S_AI, P_AI, 640*256), (S_CR, P_CR, 640*256), (S_CI, P_CI, 640*256), (S_LDT, P_LDT, 1280), (S_DS, P_DS, 1280)):
        srd(p, s_, ptr, size)
    PR = 8
    p(f"s_lshl_b32 s71, s69, 3\n s_add_u32 s71, s71, s68")
    for c2 in range(2):
        p(f"""s_add_u32 s80, s71, {4*c2}
        s_lshl_b32 s81, s80, 8
        s_lshl_b32 s80, s80, 1""")
        for k, s_ in enumerate((S_LA, S_AI, S_CR, S_CI)):
            p(f"buffer_load_dword v{PR+6*c2+k}, v5, {sr(s_,4)}, s81 offen")
        p(f"buffer_load_ushort v{PR+6*c2+4}, v{Z}, {sr(S_LDT,4)}, s80 offen")
        p(f"buffer_load_ushort v{PR+6*c2+5}, v{Z}, {sr(S_DS,4)}, s80 offen")
    p("s_lshl_b32 s80, s69, 4")
    srd(p, S_U, P_U, 0, 's80')
    p(f"""s_sub_u32 s{S_U+2}, {2048*1280}, s80
    v_mul_u32_u24 v6, 1280, v{LN}
    s_mul_i32 s80, s70, 3
    s_lshl_b32 s81, s68, 3
    s_add_u32 s80, s80, s81""")
    for i in range(8):
        p(f"""s_add_u32 s81, s80, {i}
        s_and_b32 s81, s81, 31
        s_mul_i32 s82, s81, {64*1280}
        s_lshl_b32 s81, s81, 10
        s_add_u32 m0, s81, {B_RAW+256}""")
        p(f"buffer_load_dwordx4 v6, {sr(S_U,4)}, s82 offen lds", tag='raw')
    stamp(p)
    p(f"s_lshl_b32 s80, s69, 4\n s_add_u32 s80, s80, 1280")
    srd(p, S_O, P_OUT, 0, 's80')
    p(f"s_sub_u32 s{S_O+2}, {2048*2560}, s80")
    srd(p, S_WSB, P_WS, WS_SIZE)
    T = 24
    p(f"""v_mov_b32 v20, 0
    v_mov_b32 v21, 0
    v_mov_b32 v22, 0
    v_mov_b32 v23, 0
    v_lshlrev_b32 v{T}, 4, v{L15}
    ds_write_b128 v{T}, v[20:23] offset:{B_RAW}
    s_mul_i32 s83, s68, 4608
    s_add_u32 s83, s83, {B_KR}
    s_mul_i32 s84, s68, {16*SRS}
    s_add_u32 s84, s84, {B_SC}
    v_and_b32 v{T}, 31, v0
    v_lshlrev_b32 v{T}, 4, v{T}
    v_add_u32 v{T}, s83, v{T}
    ds_write_b128 v{T}, v[20:23] offset:4096""")
    A_SW, A_SR, A_T0, A_T1, A_T1b, A_T2, A_X3, A_X2, A_X1, A_X0, A_KW, A_KW32, A_KB, MSK = range(24, 38)
    t = 40
    p(f"""v_lshl_add_u32 v{A_SW}, v{LN}, 3, v{Z}
    v_add_u32 v{A_SW}, s84, v{A_SW}
    v_mul_u32_u24 v{A_SR}, {SRS}, v{L15}
    v_lshl_add_u32 v{A_SR}, v{G}, 4, v{A_SR}
    v_add_u32 v{A_SR}, s84, v{A_SR}
    v_lshrrev_b32 v{t}, 1, v{G}
    v_and_b32 v{t+1}, 1, v{G}
    v_lshlrev_b32 v{A_T0}, 9, v{t}
    v_lshl_add_u32 v{A_T0}, v{t+1}, 4, v{A_T0}
    v_lshl_add_u32 v{A_T0}, v{L15}, 5, v{A_T0}
    v_add_u32 v{A_T0}, s84, v{A_T0}
    v_lshlrev_b32 v{t+2}, 4, v{L15}
    v_lshlrev_b32 v{t+3}, 3, v{L15}
    v_cmp_gt_u32 vcc, 2, v{G}
    v_cndmask_b32 v{t+2}, v{t+3}, v{t+2}, vcc
    v_lshl_add_u32 v{A_T1}, v{G}, 8, v{t+2}
    v_add_u32 v{A_T1}, s84, v{A_T1}
    v_mov_b32 v{t+2}, 128
    v_cndmask_b32 v{t+2}, v{t+2}, 8, vcc""".replace(f"v_cndmask_b32 v{t+2}, v{t+2}, 8, vcc", f"v_mov_b32 v{t+3}, 8\n v_cndmask_b32 v{t+2}, v{t+2}, v{t+3}, vcc"))
    p(f"""v_add_u32 v{A_T1b}, v{A_T1}, v{t+2}
    v_lshlrev_b32 v{A_T2}, 8, v{G}
    v_lshl_add_u32 v{A_T2}, v{L15}, 2, v{A_T2}
    v_add_u32 v{A_T2}, s84, v{A_T2}
    v_lshl_add_u32 v{A_X3}, v{LN}, 2, v{Z}
    v_add_u32 v{A_X3}, s84, v{A_X3}
    v_lshl_add_u32 v{A_X2}, v{LN}, 3, v{Z}
    v_add_u32 v{A_X2}, s84, v{A_X2}
    v_and_b32 v{t}, 31, v0
    v_lshlrev_b32 v{A_X1}, 4, v{t}
    v_add_u32 v{A_X1}, s84, v{A_X1}
    v_lshlrev_b32 v{A_X0}, 5, v{t}
    v_add_u32 v{A_X0}, s84, v{A_X0}
    v_lshlrev_b32 v{t+1}, 4, v{LN}
    v_sub_u32 v{A_KW}, s83, v{t+1}
    v_add_u32 v{A_KW}, 1008, v{A_KW}
    v_lshlrev_b32 v{t+1}, 4, v{t}
    v_sub_u32 v{A_KW32}, s83, v{t+1}
    v_add_u32 v{A_KW32}, 496, v{A_KW32}
    v_lshlrev_b32 v{t+1}, 5, v{L15}
    v_sub_u32 v{A_KB}, s83, v{t+1}
    v_lshl_add_u32 v{A_KB}, v{G}, 4, v{A_KB}
    v_add_u32 v{A_KB}, 480, v{A_KB}
    v_and_b32 v{t}, 1, v0
    v_mov_b32 v{t+1}, 0xffff
    v_mov_b32 v{t+2}, -1
    v_cmp_eq_u32 vcc, 1, v{t}
    v_cndmask_b32 v{MSK}, v{t+1}, v{t+2}, vcc
    s_mov_b32 s85, 0xffff
    s_mov_b32 s86, {f2u(1.4426950408889634):#x}
    s_mov_b32 s87, 0x32a57060
    s_mov_b32 s88, {f2u(0.6931471805599453):#x}
    s_mov_b32 s89, 0xffff0000""")

    def exp_bf16(p, d, x, t):
        p(f"""v_mul_f32 v{t}, s86, v{x}
        v_fma_f32 v{t+1}, v{x}, s86, -v{t}
        v_fma_f32 v{t+1}, v{x}, s87, v{t+1}
        v_exp_f32 v{t}, v{t}
        v_mul_f32 v{t+1}, s88, v{t+1}
        v_fma_f32 v{t}, v{t}, v{t+1}, v{t}
        v_cvt_pk_bf16_f32 v{t}, v{t}, v{t}
        v_and_b32 v{d}, s89, v{t}""")
    def cmul(p, c, a, b):
        p(f"v_pk_mul_f32 {vr(c,2)}, {vr(a,2)}, {vr(b,2)} op_sel:[0,0] op_sel_hi:[0,1]")
        p(f"v_pk_fma_f32 {vr(c,2)}, {vr(a,2)}, {vr(b,2)}, {vr(c,2)} op_sel:[1,1,0] op_sel_hi:[1,0,1] neg_lo:[0,1,0]")
    E = lambda k, mu: 48 + 4 * (k - 1) + 2 * mu
    E8 = lambda mu: 76 + 2 * mu
    E128 = lambda mu: 80 + 2 * mu
    GA = lambda par, mu: 84 + 4 * par + 2 * mu
    XT = lambda k, mu: 92 + 4 * (k % 2) + 2 * mu
    PK = lambda k: 100 + 2 * (k % 4)
    FB = 108
    FA = 140
    DT = 172
    def kgen(p, c2):
        P = PR + 6 * c2; t = 40
        p(f"v_lshlrev_b32 v{t+6}, 16, v{P+4}")
        exp_bf16(p, t + 7, t + 6, t)
        rho = lambda mu: 92 + mu; th = lambda mu: 94 + mu
        for mu in range(2):
            up = (lambda d, s_: f"v_lshlrev_b32 v{d}, 16, v{s_}") if mu == 0 else (lambda d, s_: f"v_and_b32 v{d}, s89, v{s_}")
            p(up(t + 6, P))
            exp_bf16(p, t + 5, t + 6, t)
            p(f"v_mul_f32 v{t+5}, v{t+5}, v{t+7}\n v_mul_f32 v{rho(mu)}, s86, v{t+5}")
            p(up(t + 6, P + 1))
            p(f"v_mul_f32 v{t+6}, v{t+6}, v{t+7}\n v_mul_f32 v{th(mu)}, 0.15915494, v{t+6}")
            p(up(t + 5, P + 2)); p(up(t + 6, P + 3))
            p(f"v_add_f32 v{t+4}, v{t+7}, v{t+7}\n v_mul_f32 v{GA(0,mu)}, v{t+5}, v{t+4}\n v_mul_f32 v{GA(0,mu)+1}, v{t+6}, v{t+4}")
        for pw, dst in ((1, lambda mu: E(1, mu)), (8, E8), (128, E128)):
            for mu in range(2):
                d = dst(mu); u = t + 3 * mu
                p(f"""v_mul_f32 v{u}, {f2u(-float(pw)):#x}, v{rho(mu)}
                v_mul_f32 v{u+1}, {f2u(float(pw)):#x}, v{th(mu)}
                v_exp_f32 v{u}, v{u}
                v_fract_f32 v{u+1}, v{u+1}
                v_cos_f32 v{d}, v{u+1}
                v_sin_f32 v{d+1}, v{u+1}
                v_pk_mul_f32 {vr(d,2)}, {vr(d,2)}, {vr(u if u % 2 == 0 else u - 1,2)} op_sel:[0,{u%2}] op_sel_hi:[1,{u%2}]""")
        cnt = [0]
        def put(row, src, neg=False):
            k = cnt[0]; cnt[0] += 1
            for mu in range(2):
                a = src(mu)
                p(f"v_cvt_pk_bf16_f32 v{PK(k)+mu}, v{a}, {'-' if neg else ''}v{a+1}")
            p(f"ds_write_b64 v{A_SW}, {vr(PK(k),2)} offset:{row*SRS}")
        p(f"v_mov_b32 v{PK(3)}, 0x3f80\n v_mov_b32 v{PK(3)+1}, 0x3f80\n ds_write_b64 v{A_SW}, {vr(PK(3),2)}")
        put(1, E8, True)
        prev = E8
        for b in range(2, 16):
            cur = (lambda bb: (lambda mu: XT(bb, mu)))(b)
            for mu in range(2): cmul(p, cur(mu), prev(mu), E8(mu))
            put(b, cur, True); prev = cur
        for ka in range(8): p(f"ds_read_b128 {vr(FB+4*ka,4)}, v{A_SR} offset:{64*ka}")
        for k in range(2, 8):
            for mu in range(2): cmul(p, E(k, mu), E(k - 1, mu), E(1, mu))
        al = [0]
        def Gcur(mu): return GA(al[0] % 2, mu)
        def Gnext():
            for mu in range(2): cmul(p, GA((al[0] + 1) % 2, mu), GA(al[0] % 2, mu), E128(mu))
            al[0] += 1
        def prod(row, k):
            if k == 0: put(row, Gcur); return
            for mu in range(2): cmul(p, XT(row, mu), Gcur(mu), E(k, mu))
            put(row, lambda mu: XT(row, mu))
        def tile(T):
            for ka in range(8): p(f"ds_read_b128 {vr(FA+4*ka,4)}, v{A_SR} offset:{64*ka}")
            return [f"v_mfma_f32_16x16x32_bf16 {vr(DT+4*T,4)}, {vr(FA+4*ka,4)}, {vr(FB+4*ka,4)}, {'0' if ka == 0 else vr(DT+4*T,4)}" for ka in range(8)]
        for a in range(2):
            for g in range(8): prod(8 * a + g, g)
            Gnext()
        mm = tile(0)
        for a in range(2):
            for g in range(4): prod(4 * a + g, 2 * g)
            Gnext()
            if a == 0:
                for x in mm: p(x)
        for a in range(4):
            for g in range(2): prod(8 + 2 * a + g, 4 * g)
            Gnext()
        mm = tile(1)
        for a in range(9):
            prod(a, 0)
            if a < 8: Gnext()
            if a == 3:
                for x in mm: p(x)
        for x in tile(2): p(x)
        p(f"""v_lshlrev_b32 v{t}, 16, v{P+5}
        v_cmp_eq_u32 vcc, 0, v{LN}
        v_cndmask_b32 v{t}, v{Z}, v{t}, vcc
        v_add_f32 v{DT}, v{DT}, v{t}""")
        for q in range(12): p(f"v_cvt_pk_bf16_f32 v{DT+q}, v{DT+q}, v{DT+q}")
        p(f"""ds_write_b128 v{A_T0}, {vr(DT,4)}
        ds_write_b64 v{A_T1}, {vr(DT+4,2)} offset:1024
        ds_write_b64 v{A_T1b}, {vr(DT+6,2)} offset:1024""")
        for i in range(4): p(f"ds_write_b32 v{A_T2}, v{DT+8+i} offset:{2048+64*i}")
        R = FA
        for r in range(2):
            p(f"ds_read_b32 v{R+4*r}, v{A_X3} offset:{2048+256*r+4}")
            p(f"ds_read_b32 v{R+4*r+2}, v{A_X3} offset:{2048+256*r}\n ds_read_b32 v{R+4*r+3}, v{A_X3} offset:{2048+256*r}")
        p(f"""ds_read_b32 v{R+8}, v{A_X2} offset:{1536+8}
        ds_read_b32 v{R+9}, v{A_X2} offset:{1536+4}
        ds_read_b32 v{R+11}, v{A_X2} offset:{1536}
        ds_read_b128 {vr(R+16,4)}, v{A_X1} offset:1024
        ds_read_b32 v{R+20}, v{A_X1} offset:{1024+16}
        ds_read_b128 {vr(R+24,4)}, v{A_X0}
        ds_read_b128 {vr(R+28,4)}, v{A_X0} offset:16""")
        for r in range(2):
            p(f"v_bfi_b32 v{R+4*r+1}, v{MSK}, v{R+4*r}, v{R+4*r+2}")
            p(f"ds_write_b128 v{A_KW}, {vr(R+4*r,4)} offset:{1024*(1-r)}")
        p(f"""v_bfi_b32 v{R+10}, s85, v{R+9}, v{R+11}
        ds_write_b128 v{A_KW}, {vr(R+8,4)} offset:2048
        v_bfi_b32 v{R+12}, s85, v{R+20}, v{R+19}
        v_mov_b32 v{R+13}, v{R+18}
        v_bfi_b32 v{R+14}, s85, v{R+18}, v{R+17}
        v_mov_b32 v{R+15}, v{R+16}
        ds_write_b128 v{A_KW32}, {vr(R+12,4)} offset:3072
        v_bfi_b32 v{R+16}, s85, v{R+31}, v{R+30}
        v_bfi_b32 v{R+17}, s85, v{R+29}, v{R+28}
        v_bfi_b32 v{R+18}, s85, v{R+27}, v{R+26}
        v_bfi_b32 v{R+19}, s85, v{R+25}, v{R+24}
        ds_write_b128 v{A_KW32}, {vr(R+16,4)} offset:3584""")

    Y = 184
    UB = 216
    def conv(p, c2):
        t = 40
        p(f"""s_add_u32 s80, s68, {4*c2}
        s_mul_i32 s81, s80, {2*CP}
        s_add_u32 s81, s81, {B_UC}
        v_and_b32 v{t}, 1, v0
        v_mul_u32_u24 v{t}, {CP}, v{t}
        v_lshrrev_b32 v{t+1}, 1, v{L15}
        v_lshl_add_u32 v{t+1}, v{G}, 2, v{t+1}
        v_lshl_add_u32 v{t}, v{t+1}, 2, v{t}
        v_add_u32 v{UB}, s81, v{t}
        v_add_u32 v{UB+1}, 1024, v{UB}
        v_add_u32 v{UB+2}, 2048, v{UB}
        v_add_u32 v{UB+3}, 3072, v{UB}
        s_mul_i32 s80, s80, {YP}
        v_lshlrev_b32 v{t}, 5, v{L15}
        v_lshl_add_u32 v{t}, v{G}, 3, v{t}
        v_add_u32 v{UB+4}, s80, v{t}""")
        def fa(b, a): return ar((b % 2) * 64 + 4 * a, 4)
        def fb(b, c): return ar((b % 2) * 64 + 32 + 4 * c, 4)
        def reads(b):
            q = Prog()
            for a in range(8):
                o = 128 * (a % 2) + 16 * b; r0 = (b % 2) * 64 + 4 * a
                q(f"ds_read_b128 {fb(b,a)}, v{A_KB} offset:{512*(7-a)+64*b}")
                q(f"ds_read2_b32 {ar(r0,2)}, v{UB+a//2} offset0:{o} offset1:{o+1}")
                q(f"ds_read2_b32 {ar(r0+2,2)}, v{UB+a//2} offset0:{o+2} offset1:{o+3}")
            return q
        p.extend(reads(0))
        for b in range(8):
            m = Prog()
            prs = sorted([(a, c) for c in range(8) for a in range(c + 1)], key=lambda x: (max(x[0], x[1] - x[0]), x[1]))
            seen = set()
            for a, c in prs:
                first = b == 0 and c not in seen; seen.add(c)
                mfma(m, vr(Y + 4 * c, 4), fa(b, a), fb(b, c - a), '0' if first else None)
            p.extend(merge(m, reads(b + 1) if b < 7 else Prog(), start=4))
        for c in range(8):
            d = 40 + 2 * (c % 4)
            p(f"v_cvt_pk_bf16_f32 v{d}, v{Y+4*c}, v{Y+4*c+1}\n v_cvt_pk_bf16_f32 v{d+1}, v{Y+4*c+2}, v{Y+4*c+3}")
            p(f"ds_write_b64 v{UB+4}, {vr(d,2)} offset:{B_RAW+512*c}")

    kgen(p, 0)
    stamp(p)
    p.waitvm('raw'); p("s_waitcnt lgkmcnt(0)\n s_barrier")
    stamp(p)
    p(f"""v_bfe_u32 v{t}, v0, 2, 2
    v_lshl_add_u32 v{t}, v{G}, 3, v{t}
    v_bfe_u32 v{t+1}, v0, 1, 1
    v_lshl_add_u32 v{t}, v{t+1}, 2, v{t}
    v_lshlrev_b32 v{t}, 4, v{t}
    v_and_b32 v{t+1}, 1, v0
    v_lshl_add_u32 v{t}, v{t+1}, 3, v{t}
    s_lshl_b32 s80, s68, 9
    v_add_u32 v{t}, s80, v{t}
    v_and_b32 v{t+1}, 7, v0
    v_mul_u32_u24 v{t+1}, {2*CP}, v{t+1}
    v_bfe_u32 v{t+2}, v0, 3, 1
    v_lshl_add_u32 v{t+1}, v{t+2}, 3, v{t+1}
    v_lshl_add_u32 v{t+1}, v{G}, 4, v{t+1}
    s_lshl_b32 s80, s68, 6
    s_add_u32 s80, s80, {B_UC}
    v_add_u32 v{t+1}, s80, v{t+1}""")
    jobs = [(k, pp) for k in range(17) for pp in range(2)]
    NBUF = 8
    def rdj(n):
        k, pp = jobs[n]; p(f"ds_read_b64_tr_b16 {vr(48+2*(n%NBUF),2)}, v{t} offset:{B_RAW + 16*(1+pp) + 2048*k}")
    def wrj(n):
        k, pp = jobs[n]
        if k == 16: p(f"ds_write_b64 v{t+3}, {vr(48+2*(n%NBUF),2)} offset:{pp*CP + 256*k}")
        else: p(f"ds_write_b64 v{t+1}, {vr(48+2*(n%NBUF),2)} offset:{pp*CP + 256*k}")
    p(f"""s_cmp_eq_u32 s68, 0
    s_cselect_b32 s80, 2, 0
    v_mov_b32 v{t+2}, {B_END - 4096}
    v_cmp_gt_u32 vcc, s80, v{G}
    v_cndmask_b32 v{t+3}, v{t+2}, v{t+1}, vcc""")
    for n in range(NBUF): rdj(n)
    for n in range(len(jobs)):
        wrj(n)
        if n + NBUF < len(jobs): rdj(n + NBUF)
    p("s_waitcnt lgkmcnt(0)\n s_barrier")
    stamp(p)
    conv(p, 0)
    stamp(p)
    kgen(p, 1)
    stamp(p)
    conv(p, 1)
    stamp(p)
    p("s_waitcnt lgkmcnt(0)\n s_barrier")
    p(f"""v_bfe_u32 v{t}, v0, 2, 2
    v_mul_u32_u24 v{t}, {YP}, v{t}
    v_and_b32 v{t+1}, 3, v0
    v_lshl_add_u32 v{t}, v{t+1}, 3, v{t}
    v_lshl_add_u32 v{t}, v{G}, 5, v{t}
    s_lshl_b32 s80, s68, 10
    v_add_u32 v{t}, s80, v{t}
    v_mul_u32_u24 v{t+1}, 2560, v{LN}
    s_mul_i32 s80, s68, {512*2560}""")
    for it in range(8):
        for h in range(2):
            p(f"ds_read_b64_tr_b16 {vr(48+4*it+2*h,2)}, v{t} offset:{B_RAW + h*4*YP + 128*it}")
    for it in range(8):
        p(f"buffer_store_dwordx4 {vr(48+4*it,4)}, v{t+1}, {sr(S_O,4)}, s80 offen")
        p(f"s_add_u32 s80, s80, {64*2560}")
    stamp(p)
    stamp_store(p, S_WSB)
    p("s_endpgm")
    return p

def role_S():
    p = Prog()
    p("roleS:")
    if opt('cpf', 1):
        p(f"""s_getpc_b64 s[40:41]
        cpf_here:
        s_sub_u32 s40, s40, cpf_here-{NAME}_kernel
        s_subb_u32 s41, s41, 0
        s_lshr_b32 s42, s2, 3
        s_and_b32 s42, s42, 1
        s_lshl_b32 s42, s42, 15
        v_lshlrev_b32 v8, 7, v0
        v_add_u32 v8, s42, v8
        v_cmp_gt_u32 vcc, code_end-{NAME}_kernel, v8
        v_cndmask_b32 v8, 0, v8, vcc
        global_load_dword v9, v8, s[40:41]""")
    p(f"""s_sub_u32 s69, s2, 208
    s_waitcnt lgkmcnt(0)""")
    if opt('tlb', 0):
        p("v_and_b32 v10, 63, v0\n v_lshlrev_b32 v10, 17, v10")
        for k, (ptr, size) in enumerate(((P_OUT, 2048*2560), (P_WS, 4 << 20), (P_WO, 640*1280), (P_U, 2048*1280), (P_X, 2048*1280), (P_W, 640*3840), (P_PHI, 25600), (P_DBG, 256))):
            srd(p, 44, ptr, size)
            p(f"buffer_load_dword v{16+k}, v10, s[44:47], 0 offen")
    srd(p, 40, P_WS, WS_ZERO_END)
    srd(p, S_DBG, P_DBG, 256)
    p(f"""s_lshl_b32 s70, s69, 12
    v_lshlrev_b32 v1, 4, v0
    v_mov_b32 v4, 0
    v_mov_b32 v5, 0
    v_mov_b32 v6, 0
    v_mov_b32 v7, 0
    buffer_store_dwordx4 v[4:7], v1, s[40:43], s70 offen sc1
    v_mov_b32 v12, -1
    v_mov_b32 v13, -1
    v_mov_b32 v14, -1
    v_mov_b32 v15, -1
    s_add_u32 s70, s70, {WS_O}""")
    for _ in range(opt('sdelay', 0)): p("s_sleep 127")
    srd(p, 44, P_WS, WS_O + 64 * 40960)
    for i in range(14):
        p(f"buffer_store_dwordx4 v[12:15], v1, s[44:47], s70 offen sc1\n s_add_u32 s70, s70, {NSPARE*4096}")
    p(f"""v_mov_b32 v2, 1
    v_mov_b32 v3, {OOB:#x}
    v_cmp_eq_u32 vcc, 0, v0
    v_cndmask_b32 v3, v3, v4, vcc
    s_waitcnt vmcnt(0)
    s_barrier
    buffer_atomic_add v2, v3, {sr(S_DBG,4)}, 0 offen sc1
    s_cmp_ge_u32 s2, 240""")
    p("s_cbranch_scc1 done", tag='keep')
    p(f"""s_and_b32 s72, s2, 7
    s_lshr_b32 s69, s72, 1
    s_lshl_b32 s69, s69, 2
    s_lshr_b32 s73, s2, 3
    s_sub_u32 s73, s73, 26
    s_add_u32 s69, s69, s73
    s_and_b32 s83, s72, 1
    s_add_u32 s83, s83, 8
    s_lshl_b32 s83, s83, 7
    s_mul_i32 s84, s68, {GR}
    v_and_b32 v{LN}, 63, v0
    v_mov_b32 v{V_Z}, 0""")
    if STAMP: p("v_mov_b32 v255, 0")
    setup_g2(p)
    for i in range(5): unpark(p, f'wo{i}', V_XO + i)
    for G in range(15, 19):
        for b in issue_group(G): p.extend(b)
    p(f"s_mov_b32 s94, {SPIN}")
    p("s_pz:")
    p(f"""buffer_load_dword v{V_X+10}, v{V_Z}, {sr(S_DBG,4)}, 0 offen sc1
    s_sub_u32 s94, s94, 1
    s_waitcnt vmcnt(0)
    v_readfirstlane_b32 s95, v{V_X+10}
    s_cmp_eq_u32 s94, 0""")
    p("s_cbranch_scc1 g2_tail", tag='keep')
    p(f"s_cmp_ge_u32 s95, {NZERO_WG}")
    p("s_cbranch_scc1 g2_tail", tag='keep')
    p("s_sleep 4\n s_branch s_pz")
    p("done:\n s_endpgm\n code_end:")
    return p

def main():
    LDS = max(A_END + 16, B_END + 4608)
    assert LDS <= 163840, LDS
    ref = open(f"cdna_kernels/{NAME}.s.ref").read().split('\n')
    hdr = [l for l in ref if l.startswith(';') and '@launch' not in l]
    s = '\n'.join(hdr) + f"\n; @launch grid=(256,1,1) block=(256,1,1) lds={LDS}\n"
    s += f""".amdgcn_target "amdgcn-amd-amdhsa--gfx950"
.text
.globl {NAME}_kernel
.p2align 8
.type {NAME}_kernel,@function
{NAME}_kernel:
"""
    e = Prog()
    e(f"""s_cmp_ge_u32 s2, 256
    s_cbranch_scc1 done""")
    if opt('cpf2', 0):
        e(f"""s_getpc_b64 s[36:37]
        v_lshlrev_b32 v2, 7, v0
        s_cmp_ge_u32 s2, 128
        s_cselect_b32 s38, roleB-{NAME}_kernel, 0
        v_add_u32 v2, s38, v2
        v_min_u32 v2, code_end-{NAME}_kernel-64, v2
        global_load_dword v253, v2, s[36:37]""", tag='offpath')
    e(f"""
    s_load_dwordx16 s[8:23], s[0:1], 0
    s_load_dwordx8 s[24:31], s[0:1], 64
    s_load_dwordx4 s[32:35], s[0:1], 96
    v_lshrrev_b32 v1, 6, v0
    s_nop 0
    v_readfirstlane_b32 s68, v1
    s_cmp_ge_u32 s2, 208
    s_cbranch_scc1 roleS
    s_cmp_ge_u32 s2, 128
    s_cbranch_scc1 roleB""")
    a = role_A()
    e.extend(a)
    L = lower(e) + lower(role_B()) + lower(role_S())
    if opt('align', 1):
        L, nn, npro = align8(L, sizes_of(s + render(L)))
        print("align: nops", nn, "promoted", npro)
    s += render(L)
    s += f""".section .rodata,"a"
.p2align 6
.amdhsa_kernel {NAME}_kernel
  .amdhsa_next_free_vgpr 512
  .amdhsa_next_free_sgpr 102
  .amdhsa_accum_offset 256
  .amdhsa_group_segment_fixed_size 0
  .amdhsa_kernarg_size 112
  .amdhsa_user_sgpr_count 2
  .amdhsa_user_sgpr_kernarg_segment_ptr 1
  .amdhsa_system_sgpr_workgroup_id_x 1
.end_amdhsa_kernel
"""
    out = OPT.get('out', f"cdna_kernels/{NAME}.s")
    open(out, 'w').write(s)
    print("LDS", LDS, "A_END", A_END, "B_END", B_END, "lines", s.count('\n'))
main()
```

```python
import sys, struct
from gasm import Prog, finalize, merge, spread, singles, pack, bundles, lower, render, sizes_of, align8
NAME = "concat_heads__linear_kernel_hedgehog__ssm_conv_s4d__prompt"
OPT = dict(a.split('=') for a in sys.argv[1:] if '=' in a)
def opt(k, d): return type(d)(OPT.get(k, d))
STAMP = opt('stamp', 0)
ROT = opt('rot', 2)
def f2u(x): return struct.unpack('<I', struct.pack('<f', x))[0]
def vr(a, n): return f"v[{a}:{a+n-1}]" if n > 1 else f"v{a}"
def ar(a, n): return f"a[{a}:{a+n-1}]" if n > 1 else f"a{a}"
def sr(a, n): return f"s[{a}:{a+n-1}]" if n > 1 else f"s{a}"
def magic(d): return (2**32 + d - 1) // d

WS_KVF = 0; WS_OF = 2048; WS_KV = 10240; WS_ZERO_END = WS_KV + 32 * 4096
WS_O = 262144; WS_STAMP = 4 << 20; WS_SIZE = 8 << 20
NSPARE = 48
NZERO_WG = NSPARE
assert WS_ZERO_END <= NSPARE * 4096
P_X, P_W, P_PHI, P_WO, P_U, P_LA, P_AI, P_CR, P_CI, P_LDT, P_DS, P_OUT, P_DBG, P_WS = [8 + 2 * i for i in range(14)]
OOB = 0x80000000
SPIN = 400000

def srd(p, s, ptr, size, off=None):
    if off is None:
        p(f"s_mov_b32 s{s}, s{ptr}\n s_mov_b32 s{s+1}, s{ptr+1}")
    else:
        p(f"s_add_u32 s{s}, s{ptr}, {off}\n s_addc_u32 s{s+1}, s{ptr+1}, 0")
    p(f"s_mov_b32 s{s+2}, {size}\n s_mov_b32 s{s+3}, 0x20000")

nstamp = [0]
def stamp(p, sreg_base=96):
    if not STAMP: return
    k = nstamp[0]; nstamp[0] += 1
    if k == 0: p(f"s_memrealtime s[96:97]\n s_waitcnt lgkmcnt(0)\n v_writelane_b32 v255, s96, 62")
    p(f"s_memtime s[96:97]\n s_waitcnt lgkmcnt(0)\n v_writelane_b32 v255, s96, {k}")
def stamp_store(p, wsrd):
    if not STAMP: return
    p(f"s_waitcnt vmcnt(0)\n s_memtime s[96:97]\n s_waitcnt lgkmcnt(0)\n v_writelane_b32 v255, s96, 61\n s_memrealtime s[96:97]\n s_waitcnt lgkmcnt(0)\n v_writelane_b32 v255, s96, 63")
    p(f"""s_lshl_b32 s96, s2, 2
    s_add_u32 s96, s96, s68
    s_lshl_b32 s96, s96, 8
    s_add_u32 s96, s96, {WS_STAMP}
    v_and_b32 v254, 63, v0
    v_lshlrev_b32 v254, 2, v254
    buffer_store_dword v255, v254, {sr(wsrd,4)}, s96 offen""")

def pollall(p, name, srdreg, soff, vt, va):
    p(f"s_mov_b32 s94, {SPIN}")
    p(f"{name}:")
    p(f"""buffer_load_dword v{vt}, v{va}, {sr(srdreg,4)}, {soff} offen sc1
    s_sub_u32 s94, s94, 1
    s_waitcnt vmcnt(0)
    v_cmp_ne_u32 vcc, 0, v{vt}
    s_cmp_eq_u32 s94, 0""")
    p(f"s_cbranch_scc1 {name}_x", tag='keep')
    p(f"s_cmp_eq_u64 vcc, -1")
    p(f"s_cbranch_scc0 {name}", tag='keep')
    p(f"{name}_x:")

A_RING = 0; NSLOT = 16; GR = 5120
A_PHIK = NSLOT * GR; PHI_RS = 352
A_VST = A_PHIK + 128 * PHI_RS
A_BD = A_VST + 20480
A_END = A_BD + 12800
A_KVIMG = A_PHIK
S_X, S_W, S_WO, S_WS, S_OUT, S_DBG, S_PHI = 40, 44, 48, 52, 56, 60, 64
V_XO = 1
V_XD = 5
V_WD = 9
V_TA = 14
V_Z = 22; V_T = 23
V_WF = 32
V_KA = 112; V_VA = 152; V_PA = 192; V_X = 240
OLD = 'sc1' if opt('osc1', 0) else ''

def mfma(p, d, a, b, c=None):
    p(f"v_mfma_f32_16x16x32_bf16 {d}, {a}, {b}, {d if c is None else c}")
def mfma32(p, d, a, b, c=None):
    p(f"v_mfma_f32_32x32x16_bf16 {d}, {a}, {b}, {d if c is None else c}")

LN = V_T; t = V_T + 1
parked = {}
def park(p, name, v):
    if name not in parked: parked[name] = 204 + len(parked)
    assert parked[name] < 256
    p(f"v_accvgpr_write_b32 a{parked[name]}, v{v}")
def unpark(q, name, v): q(f"v_accvgpr_read_b32 v{v}, a{parked[name]}")

def trbase(p, d, rowk, rowrho, extra=0):
    p(f"""v_bfe_u32 v{t}, v0, 5, 1
    v_mul_u32_u24 v{t}, {rowk}, v{t}
    v_bfe_u32 v{t+1}, v0, 2, 2
    v_mul_u32_u24 v{t+1}, {rowrho}, v{t+1}
    v_bfe_u32 v{t+2}, v0, 4, 1
    v_lshl_add_u32 v{t}, v{t+2}, 5, v{t}
    v_and_b32 v{t+2}, 3, v0
    v_lshl_add_u32 v{t}, v{t+2}, 3, v{t}
    v_add_u32 v{d}, v{t}, v{t+1}""")
    if extra: p(f"v_add_u32 v{d}, {extra}, v{d}")

def setup_g2(p):
    srd(p, S_WO, P_WO, 640 * 1280)
    srd(p, S_WS, P_WS, WS_SIZE)
    p(f"s_mul_i32 s78, s69, {128*2560}\n s_add_u32 s78, s78, s83")
    srd(p, S_OUT, P_OUT, 0, 's78')
    p(f"s_sub_u32 s{S_OUT+2}, {2048*2560}, s78")
    p(f"""s_lshr_b32 s79, s68, 1
    s_mul_i32 s79, s79, {80*1280}
    s_add_u32 s79, s79, s83
    s_and_b32 s85, s68, 1
    s_mul_i32 s85, s85, 40
    s_lshl_b32 s78, s69, 2
    s_add_u32 s78, s78, s68
    s_mul_i32 s78, s78, 40960
    s_add_u32 s92, s78, {WS_O}""")
    for i in range(5):
        p(f"""v_lshrrev_b32 v{t}, 3, v{LN}
        v_add_u32 v{t}, s85, v{t}
        v_add_u32 v{t}, {8*i}, v{t}
        v_lshrrev_b32 v{t+1}, 4, v{t}
        v_and_b32 v{t+2}, 7, v{t}
        v_lshl_add_u32 v{t+1}, v{t+1}, 3, v{t+2}
        v_bfe_u32 v{t+2}, v{t}, 3, 1
        v_mad_u32_u24 v{t+2}, v{t+2}, 20, v{t+1}
        v_add_u32 v{t+3}, 20, v{t+2}
        v_cmp_le_u32 vcc, 20, v{t+1}
        v_cndmask_b32 v{t+2}, v{t+2}, v{t+3}, vcc
        v_mul_u32_u24 v{t+2}, 1280, v{t+2}
        v_bfe_u32 v{t}, v{t}, 1, 1
        v_lshlrev_b32 v{t}, 2, v{t}
        v_and_b32 v{t+1}, 7, v0
        v_xor_b32 v{t}, v{t}, v{t+1}
        v_lshl_add_u32 v{t}, v{t}, 4, v{t+2}""")
        park(p, f'wo{i}', t)
    trbase(p, t + 3, 8 * 128, 128)
    p(f"""v_bfe_u32 v{t}, v0, 3, 1
    v_lshl_add_u32 v{t+3}, v{t}, 6, v{t+3}""")
    park(p, 'two', t + 3)
    p(f"""s_add_u32 s78, s84, {A_VST}
    v_and_b32 v{t}, 31, v0
    v_mul_u32_u24 v{t}, 144, v{t}
    v_bfe_u32 v{t+1}, v0, 5, 1
    v_lshl_add_u32 v{t}, v{t+1}, 3, v{t}
    v_add_u32 v{t}, s78, v{t}""")
    park(p, 'outw', t)
    p(f"""v_lshrrev_b32 v{t}, 3, v{LN}
    v_and_b32 v{t+1}, 7, v0
    v_lshlrev_b32 v{t+1}, 4, v{t+1}
    v_mul_u32_u24 v{t+2}, 144, v{t}
    v_add3_u32 v{t+2}, v{t+2}, v{t+1}, s78
    v_mul_u32_u24 v{t}, 2560, v{t}
    v_add_u32 v{t}, v{t}, v{t+1}""")
    park(p, 'outr', t + 2); park(p, 'outg', t)

def dma_bundles(G, hdr, items):
    B = []
    hdr(items[0][0]); B.append(hdr)
    for k, (m0, ld) in enumerate(items):
        q = Prog(); q(ld, tag=('dma', G))
        if k + 1 < len(items): q(items[k + 1][0])
        B.append(q)
    return B
def issue_group(G):
    slotbase = A_RING + (G % 4) * 4 * GR
    h = Prog()
    if G < 10:
        h(f"s_mul_i32 s86, s80, {64*3840}\n s_add_u32 s86, s86, s82\n s_lshl_b32 s81, s80, 7")
        h(f"s_add_u32 s80, s80, 1\n s_cmp_eq_u32 s80, 10\n s_cselect_b32 s80, 0, s80")
        sd = S_W
    elif G < 15:
        h(f"""s_lshl_b32 s86, s71, 1
        s_add_u32 s86, s86, s68
        s_add_u32 s86, s86, {4*(G-10)}
        s_sub_u32 s74, s86, 20
        s_cmp_ge_u32 s86, 20
        s_cselect_b32 s86, s74, s86
        s_mul_i32 s86, s86, {32*3840}
        s_add_u32 s86, s86, s75""")
        sd = S_W
    else:
        h(f"s_add_u32 s86, s79, {(G%4)*160*1280}")
        sd = S_WO
    W = [(f"s_add_u32 m0, s84, {slotbase + 1024*i}", f"buffer_load_dwordx4 v{V_QD[i] if 10 <= G < 15 else (V_WD+i if G < 10 else V_XO+i)}, {sr(sd,4)}, s86 offen lds") for i in range(5)]
    if G < 10:
        X = [(f"s_add_u32 m0, s87, {(G%4)*4096 + 1024*r}", f"buffer_load_dwordx4 v{V_XD+r}, {sr(S_X,4)}, s81 offen lds") for r in range(4)]
        items = [W[0], X[0], W[1], X[1], W[2], X[2], W[3], X[3], W[4]]
    else: items = W
    return dma_bundles(G, h, items)
V_QD = [21, 29, 30, 31, 252]

OF = lambda n: 88 + 4 * n
G2ACC = 56
def gemm2_tail(p):
    F = V_WF
    p("g2_tail:")
    unpark(p, 'two', V_TA)
    p(f"""v_xor_b32 v{V_TA+1}, 64, v{V_TA}
    v_add_u32 v{V_TA+2}, {8*GR}, v{V_TA}
    v_add_u32 v{V_TA+3}, {8*GR}, v{V_TA+1}
    v_lshlrev_b32 v{t+2}, 4, v{LN}
    v_lshrrev_b32 v{t+4}, 3, v{LN}
    v_mul_u32_u24 v{t+4}, 5120, v{t+4}
    v_and_b32 v{t}, 7, v0
    v_lshl_add_u32 v{t+4}, v{t}, 7, v{t+4}
    s_mov_b32 s94, {SPIN}
    s_add_u32 s93, s92, 4096
    s_barrier""")
    unpark(p, 'outw', t); unpark(p, 'outr', t + 1); unpark(p, 'outg', t + 3)
    stamp(p)
    def reads(n):
        hq, pp = divmod(n, 5); q = Prog(); fb = F + (n % 3) * 8
        off = hq * 10240 + pp * 2048; hi = 0
        if hq >= 4: off -= 8 * GR; hi = 2
        for T in range(2):
            for h in range(2):
                q(f"ds_read_b64_tr_b16 {vr(fb+4*T+2*h,2)}, v{V_TA+hi+T} offset:{off + 512*h}")
        return q
    p("g2_retry:")
    p.extend(reads(0)); p.extend(reads(1))
    p(f"s_mov_b32 s81, s92\n v_mov_b32 v248, 0")
    p("g2_poll:")
    p(f"""buffer_load_dword v249, v{t+4}, {sr(S_WS,4)}, s93 offen sc1
    s_sub_u32 s94, s94, 1
    s_waitcnt vmcnt(0)
    v_cmp_ne_u32 vcc, -1, v249
    s_cmp_eq_u32 s94, 0""")
    p("s_cbranch_scc1 g2_go", tag='keep')
    p("s_cmp_eq_u64 vcc, -1")
    p("s_cbranch_scc0 g2_poll", tag='keep')
    p("g2_go:")
    stamp(p)
    def oload(n):
        q = Prog(); hq, pp = divmod(n, 5)
        if pp == 4: q(f"s_add_u32 s85, s81, 4096")
        q(f"buffer_load_dwordx4 {vr(OF(n),4)}, v{t+2}, {sr(S_WS,4)}, {'s85' if pp == 4 else 's81'} offen offset:{1024*(pp%4)} sc1")
        if pp == 4: q("s_add_u32 s81, s81, 5120")
        return q
    PRE = opt('opre', 10)
    for n in range(PRE): p.extend(oload(n))
    for n in range(40):
        fb = F + (n % 3) * 8
        mm = Prog(); mm.need([vr(fb, 8), vr(OF(n), 4)])
        for T in range(2): mfma32(mm, vr(G2ACC + 16 * T, 16), vr(fb + 4 * T, 4), vr(OF(n), 4), '0' if n == 0 else None)
        st = []
        if n + 2 < 40: st.append((singles(reads(n + 2)), 0, 2))
        if n + PRE < 40: st.append(([oload(n + PRE)], 0, 1))
        c = Prog(); c(f"v_max3_u32 v248, v248, v{OF(n)}, v{OF(n)+1}\n v_max3_u32 v248, v248, v{OF(n)+2}, v{OF(n)+3}")
        st.append((singles(c), 1, 2))
        p.extend(pack(mm, st, cap=32))
    p(f"""v_cmp_eq_u32 vcc, -1, v248
    s_mul_i32 s78, s68, {32*2560}
    s_cmp_eq_u32 s94, 0""")
    p("s_cbranch_scc1 g2_out", tag='keep')
    p("s_sub_u32 s94, s94, 1\n s_nop 7\n s_nop 7")
    p("s_cbranch_vccnz g2_retry", tag='keep')
    p("g2_out:")
    stamp(p)
    for T in range(2):
        for j in range(4):
            x = G2ACC + 16 * T + 4 * j; o = 88 + 8 * T + 2 * j
            p(f"v_cvt_pk_bf16_f32 v{o}, v{x}, v{x+1}\n v_cvt_pk_bf16_f32 v{o+1}, v{x+2}, v{x+3}")
            p(f"ds_write_b64 v{t}, {vr(o,2)} offset:{64*T+16*j}")
    for i in range(4): p(f"ds_read_b128 {vr(104+4*i,4)}, v{t+1} offset:{8*144*i}")
    for i in range(4):
        p(f"buffer_store_dwordx4 {vr(104+4*i,4)}, v{t+3}, {sr(S_OUT,4)}, s78 offen")
        if i < 3: p(f"s_add_u32 s78, s78, {8*2560}")
    stamp(p)
    stamp_store(p, S_WS)
    p("s_endpgm")

def divc(p, d, x, c):
    m, sh = {10: (205, 11), 20: (205, 12), 12: (171, 11), 5: (205, 10), 100: (41, 12)}[c]
    p(f"v_mul_u32_u24 v{d}, {m}, v{x}\n v_lshrrev_b32 v{d}, {sh}, v{d}")

V_PO = 160
V_D = 200
def role_A():
    p = Prog(); nstamp[0] = 0
    p("roleA:")
    stamp(p)
    p("""s_and_b32 s72, s2, 7
    s_lshr_b32 s73, s2, 3
    s_lshr_b32 s69, s72, 1
    s_lshl_b32 s69, s69, 2
    s_lshr_b32 s74, s73, 2
    s_add_u32 s69, s69, s74
    s_and_b32 s70, s72, 1
    s_lshl_b32 s70, s70, 2
    s_and_b32 s75, s73, 3
    s_add_u32 s70, s70, s75
    s_add_u32 s71, s74, s75
    s_and_b32 s71, s71, 3""")
    if ROT == 2:
        p("""s_add_u32 s71, s69, s70
        s_mul_i32 s71, s71, 3
        s_mul_i32 s74, s71, 205
        s_lshr_b32 s74, s74, 11
        s_mul_i32 s74, s74, 10
        s_sub_u32 s71, s71, s74""")
    else:
        p(f"s_mul_i32 s71, s71, {5 if ROT else 0}\n s_add_u32 s71, s71, {1 if ROT else 0}\n s_lshr_b32 s71, s71, 1")
    p(f"""v_and_b32 v{LN}, 63, v0
    v_mov_b32 v{V_Z}, 0""")
    p(f"""s_lshl_b32 s76, s68, 5
    v_lshrrev_b32 v{t}, 3, v{LN}
    v_add_u32 v{t}, s76, v{t}
    v_mul_u32_u24 v{t}, 1280, v{t}
    v_and_b32 v{t+1}, 7, v0
    v_bfe_u32 v{t+2}, v0, 4, 2
    v_xor_b32 v{t+1}, v{t+1}, v{t+2}
    v_lshl_add_u32 v{V_XD}, v{t+1}, 4, v{t}
    v_xor_b32 v{V_XD+1}, 64, v{V_XD}
    v_add_u32 v{V_XD+1}, {8*1280}, v{V_XD+1}
    v_add_u32 v{V_XD+2}, {16*1280}, v{V_XD}
    v_add_u32 v{V_XD+3}, {16*1280}, v{V_XD+1}""")
    p(f"s_movk_i32 s78, 1120")
    for i in range(5):
        p(f"v_add_u32 v{t}, {64*i}, v{LN}")
        divc(p, t + 1, t, 20)
        p(f"""v_mul_u32_u24 v{t+2}, 20, v{t+1}
        v_sub_u32 v{t}, v{t}, v{t+2}
        v_mul_u32_u24 v{t+1}, 3840, v{t+1}
        v_cmp_le_u32 vcc, 10, v{t}
        v_lshl_add_u32 v{t+1}, v{t}, 4, v{t+1}
        v_add_u32 v{t+2}, s78, v{t+1}
        v_cndmask_b32 v{V_WD+i}, v{t+1}, v{t+2}, vcc""")
    p(f"""s_mov_b32 s80, s71
    s_mul_i32 s75, s70, 160
    s_mul_i32 s82, s68, {16*3840}
    s_add_u32 s82, s82, s75
    s_add_u32 s82, s82, 1280
    s_lshl_b32 s83, s70, 7
    s_mul_i32 s84, s68, {GR}
    s_lshl_b32 s87, s68, 14
    s_add_u32 s87, s87, {A_PHIK}
    s_mul_i32 s78, s69, {128*1280}""")
    srd(p, S_X, P_X, 128 * 1280, 's78')
    srd(p, S_W, P_W, 640 * 3840)
    su = Prog()
    trbase(su, V_TA, 8 * 320, 320)
    su(f"""v_add_u32 v{V_TA+1}, {8*GR}, v{V_TA}
    v_and_b32 v{t}, 31, v0
    v_bfe_u32 v{t+1}, v0, 1, 3
    v_bfe_u32 v{t+2}, v0, 5, 1
    v_xor_b32 v{t+1}, v{t+1}, v{t+2}
    v_lshlrev_b32 v{t+1}, 4, v{t+1}
    v_lshl_add_u32 v{t}, v{t}, 7, v{t+1}
    v_add_u32 v{V_XO}, s87, v{t}
    v_xor_b32 v{V_XO+1}, 32, v{V_XO}
    v_xor_b32 v{V_XO+2}, 64, v{V_XO}
    v_xor_b32 v{V_XO+3}, 96, v{V_XO}""")
    su(f"""v_mov_b32 v{V_X+4}, 0
    v_mov_b32 v{V_X+5}, 0
    v_mov_b32 v{V_X+6}, 0
    v_mov_b32 v{V_X+7}, 0
    v_lshlrev_b32 v{t}, 4, v0
    v_add_u32 v{t}, {A_BD}, v{t}
    v_min_u32 v{t+1}, {A_BD+496}, v{t}
    ds_write_b128 v{t}, {vr(V_X+4,4)}
    ds_write_b128 v{t}, {vr(V_X+4,4)} offset:4096
    ds_write_b128 v{t}, {vr(V_X+4,4)} offset:8192
    ds_write_b128 v{t+1}, {vr(V_X+4,4)} offset:12288""")
    L2E = 1.4426950408889634
    su(f"s_mov_b32 s88, {f2u(L2E):#x}\n s_mov_b32 s89, {f2u(L2E):#x}")
    for r in range(2):
        su(f"v_add_u32 v{t}, {256*r}, v0")
        divc(su, t + 1, t, 5); divc(su, t + 2, t, 100)
        su(f"""v_mul_u32_u24 v{t+1}, 120, v{t+1}
        v_mad_u32_u24 v{t+1}, v{t+2}, 40, v{t+1}
        v_lshl_add_u32 v{t+1}, v{t}, 3, v{t+1}
        v_add_u32 v{V_X+8+r}, {A_BD}, v{t+1}""")
    su(f"""v_mov_b32 v{t+1}, {A_END}
    v_cmp_gt_u32 vcc, 400, v{t}
    v_cndmask_b32 v{V_X+9}, v{t+1}, v{V_X+9}, vcc""")
    srd(su, S_DBG, P_DBG, 256)
    for i in range(5):
        su(f"v_add_u32 v{t}, {64*i}, v{LN}")
        divc(su, t + 1, t, 10)
        su(f"""v_mul_u32_u24 v{t+2}, 10, v{t+1}
        v_sub_u32 v{t}, v{t}, v{t+2}
        v_and_b32 v{t+2}, 24, v{t+1}
        v_and_b32 v{t+3}, 1, v{t+1}
        v_lshl_add_u32 v{t+2}, v{t+3}, 2, v{t+2}
        v_bfe_u32 v{t+3}, v{t+1}, 1, 2
        v_add_u32 v{t+2}, v{t+2}, v{t+3}
        v_mul_u32_u24 v{t+2}, 3840, v{t+2}
        v_lshl_add_u32 v{V_QD[i]}, v{t}, 4, v{t+2}""")
    su(f"""v_bfe_u32 v{t}, v0, 5, 1
    v_bfe_u32 v{t+1}, v0, 2, 2
    v_lshl_add_u32 v{t}, v{t}, 2, v{t+1}
    v_mul_u32_u24 v{t}, 160, v{t}
    v_and_b32 v{t+1}, 1, v0
    v_mad_u32_u24 v{t}, v{t+1}, 40, v{t}
    v_bfe_u32 v{t+1}, v0, 4, 1
    v_bfe_u32 v{t+2}, v0, 1, 1
    v_lshl_add_u32 v{t+1}, v{t+1}, 1, v{t+2}
    v_lshl_add_u32 v{t}, v{t+1}, 3, v{t}
    v_add_u32 v18, {A_BD}, v{t}
    v_cmp_eq_u32 vcc, 0, v{t+1}
    v_add_u32 v19, 32, v18
    v_add_u32 v{t+2}, 72, v18
    v_cndmask_b32 v19, v{t+2}, v19, vcc
    v_cmp_gt_u32 vcc, 2, v{t+1}
    v_add_u32 v20, 104, v18
    v_nop
    v_cndmask_b32 v20, v18, v20, vcc""".replace("    v_nop\n", ""))
    trbase(su, t + 3, 8 * 160, 320); park(su, 'tq', t + 3)
    su(f"""v_and_b32 v{t}, 31, v0
    v_add_u32 v{t}, s76, v{t}
    v_bfe_u32 v{t+1}, v0, 5, 1
    v_mul_u32_u24 v{t+2}, {PHI_RS}, v{t}
    v_mul_u32_u24 v{t+3}, 80, v{t+1}
    v_add_u32 v{t+2}, v{t+2}, v{t+3}
    v_add_u32 v{t+2}, {A_PHIK}, v{t+2}
    v_mul_u32_u24 v{t}, 160, v{t}
    v_lshl_add_u32 v{t}, v{t+1}, 3, v{t}
    v_add_u32 v{t}, {A_VST}, v{t}""")
    park(su, 'phiw', t + 2); park(su, 'vw', t)
    su(f"""v_bfe_u32 v{t}, v0, 2, 4
    v_and_b32 v{t+1}, 3, v0
    v_mul_u32_u24 v{t+2}, {PHI_RS}, v{t}
    v_lshl_add_u32 v{t+2}, v{t+1}, 3, v{t+2}
    s_mul_i32 s78, s68, 80
    s_add_u32 s78, s78, {A_PHIK}
    v_add_u32 v{t+2}, s78, v{t+2}
    s_mul_i32 s78, s68, 40
    s_add_u32 s78, s78, {A_VST}
    v_mul_u32_u24 v{t}, 160, v{t}
    v_add_u32 v{t}, s78, v{t}
    v_lshl_add_u32 v{t+1}, v{t+1}, 3, v{t}
    v_add_u32 v{t}, 32, v{t}""")
    park(su, 'phir', t + 2); park(su, 'vr0', t + 1); park(su, 'vr1', t)
    a0 = V_PA
    su(f"""v_and_b32 v{t+3}, 15, v0
    v_bfe_u32 v{t+4}, v0, 4, 2
    v_cmp_gt_u32 s[90:91], 8, v{t+3}
    v_lshlrev_b32 v{t}, 2, v{t+3}
    v_mul_u32_u24 v{t+1}, 768, v{t+4}
    v_add_u32 v{a0}, v{t}, v{t+1}
    v_add_u32 v{t+1}, {192-32}, v{a0}
    v_cndmask_b32 v{a0+1}, v{t+1}, v{a0}, s[90:91]
    v_mul_u32_u24 v{t+1}, 192, v{t+4}
    v_add_u32 v{t+1}, {16*192}, v{t+1}
    v_add_u32 v{a0+2}, v{t+1}, v{t}
    v_mov_b32 v{t+2}, {OOB:#x}
    v_cmp_gt_u32 vcc, 40, v{LN}
    v_cndmask_b32 v{a0+3}, v{t+2}, v{a0+2}, s[90:91]
    v_lshlrev_b32 v{t+1}, 2, v{LN}
    v_add_u32 v{t+1}, {20*192}, v{t+1}
    v_cndmask_b32 v{a0+4}, v{t+2}, v{t+1}, vcc
    v_cmp_eq_u32 vcc, 0, v{LN}
    v_cmp_gt_u32 s[90:91], 4, v{t+3}
    v_cndmask_b32 v{a0+6}, v{t+2}, v{V_Z}, vcc""")
    for k in range(5): park(su, f'at{k}', a0 + k)
    park(su, 'l0', a0 + 6)
    su(f"s_mul_i32 s85, s68, 1920\n s_add_u32 s85, s85, {A_KVIMG}\n v_mov_b32 v{t+4}, {A_KVIMG+9600}")
    for i in range(4):
        su(f"v_add_u32 v{t}, {64*i}, v{LN}")
        divc(su, t + 1, t, 12)
        su(f"""v_mul_u32_u24 v{t+2}, 12, v{t+1}
        v_sub_u32 v{t+2}, v{t}, v{t+2}
        v_cmp_gt_u32 vcc, 10, v{t+2}
        v_mul_u32_u24 v{t+1}, 80, v{t+1}
        v_lshl_add_u32 v{t+1}, v{t+2}, 3, v{t+1}
        v_add_u32 v{t+1}, s85, v{t+1}
        v_cndmask_b32 v{t+1}, v{t+4}, v{t+1}, vcc""")
        if i == 3: su(f"v_cmp_gt_u32 vcc, 60, v{LN}\n v_cndmask_b32 v{t+1}, v{t+4}, v{t+1}, vcc")
        park(su, f'kvw{i}', t + 1)
    su(f"""v_cmp_gt_u32 vcc, 120, v0
    v_lshlrev_b32 v{t}, 4, v0
    v_add_u32 v{t}, {A_KVIMG+7680}, v{t}
    v_cndmask_b32 v{t}, v{t+4}, v{t}, vcc""")
    park(su, 'kvz', t)
    su(f"""v_bfe_u32 v{t}, v0, 3, 2
    v_and_b32 v{t+1}, 3, v0
    v_lshl_add_u32 v{t}, v{t}, 2, v{t+1}
    v_mul_u32_u24 v{t}, 80, v{t}
    v_bfe_u32 v{t+1}, v0, 2, 1
    v_bfe_u32 v{t+4}, v0, 5, 1
    v_cmp_eq_u32 vcc, v{t+1}, v{t+4}
    v_mul_u32_u24 v{t+2}, 1920, v{t+1}
    v_add_u32 v{t}, v{t}, v{t+2}
    v_add_u32 v{t}, {A_KVIMG}, v{t}
    v_add_u32 v{t+3}, 3840, v{t}
    v_mov_b32 v{t+2}, {A_KVIMG+7680}
    v_cndmask_b32 v{t}, v{t+2}, v{t}, vcc
    v_cndmask_b32 v{t+3}, v{t+2}, v{t+3}, vcc""")
    park(su, 'kvr0', t); park(su, 'kvr1', t + 3)
    setup_g2(su)
    wl = Prog()
    wl("s_mul_i32 s77, s70, 3200")
    srd(wl, S_PHI, P_PHI, 3200, 's77')
    wl(f"""v_lshlrev_b32 v{V_X+10}, 3, v0
    buffer_load_dwordx2 {vr(V_X,2)}, v{V_X+10}, {sr(S_PHI,4)}, 0 offen
    buffer_load_dwordx2 {vr(V_X+2,2)}, v{V_X+10}, {sr(S_PHI,4)}, 0 offen offset:2048""")
    iss = issue_group(0) + [wl] + issue_group(1)
    sub = bundles(su)
    LEAD = opt('lead', 5)
    per = -(-len(sub) // (len(iss) - LEAD + opt('sutail', 0)))
    for k, b in enumerate(iss):
        p.extend(b)
        if k >= LEAD:
            for x in sub[:per]: p.extend(x)
            sub = sub[per:]
    for x in sub: p.extend(x)
    stamp(p)

    def sync(p, G):
        p.waitvm(('dma', G)); p("s_barrier")
    p("s_waitcnt lgkmcnt(0)")
    sync(p, 0)
    stamp(p)
    FD = 2
    def kv_reads(k):
        q = Prog(); fb = V_WF + (k % 3) * 20
        slot = k % NSLOT; base = V_TA + (slot >= 8); so = (slot % 8) * GR
        q(f"ds_read_b128 {ar(4*k,4)}, v{V_XO+k%4} offset:{((k//4)%4)*4096}")
        for T in range(5):
            for h in range(2):
                q(f"ds_read_b64_tr_b16 {vr(fb+4*T+2*h,2)}, v{base} offset:{so + 1280*h + 64*T}")
        return q
    PH = [(0, 0), (0, 1), (0, 2), (1, 0), (1, 1), (1, 2), (1, 3), (1, 4), (2, 2), (2, 3), (2, 4)]
    bdr = Prog()
    for n, (U, ka) in enumerate(PH):
        for h in range(2): bdr(f"ds_read_b64_tr_b16 {ar(160+4*n+2*h,2)}, v{18+U} offset:{(16*ka+8*h)*160}")
    bdr = singles(bdr)
    for k in range(FD): p.extend(kv_reads(k))
    segs = [list(range(0, 4 - FD))] + [list(range(4 * G - FD, 4 * G + 4 - FD)) for G in range(1, 10)] + [list(range(40 - FD, 40))]
    for si, steps in enumerate(segs):
        if si >= 1:
            if si == 10: p("s_waitcnt lgkmcnt(0)")
            if STAMP == 2: stamp(p)
            sync(p, si)
        m = Prog(); st = []
        for n, k in enumerate(steps):
            fb = V_WF + (k % 3) * 20
            m.need([vr(fb, 20), ar(4 * k, 4)])
            for T in range(5): mfma32(m, vr(V_KA + 16 * T, 16), vr(fb + 4 * T, 4), ar(4 * k, 4), '0' if k == 0 else None)
            if k + FD < 40: st.append((singles(kv_reads(k + FD)), 5 * n, 5 * n + 5))
        st.append((issue_group(si + 2), 0, None))
        if si == 1:
            w = Prog(); w(f"ds_write_b64 v{V_X+8}, {vr(V_X,2)}\n ds_write_b64 v{V_X+9}, {vr(V_X+2,2)}")
            st.append((singles(w), 2, 12))
        if 3 <= si <= 8: st.append((bdr[4 * (si - 3): 4 * (si - 2)], 0, None))
        if si == 8:
            w = Prog(); w(f"buffer_load_dword v{V_X+10}, v{V_Z}, {sr(S_DBG,4)}, 0 offen sc1")
            st.append(([w], 0, 1))
        if si == 10:
            w = Prog(); unpark(w, 'vw', t + 1); unpark(w, 'phiw', t + 2); unpark(w, 'tq', V_TA + 2)
            w(f"v_add_u32 v{V_TA+3}, {8*GR}, v{V_TA+2}")
            for i in range(5): unpark(w, f'wo{i}', V_XO + i)
            st.append((singles(w), 0, None))
        p.extend(pack(m, st))
    stamp(p)

    def phi_step(p, acc, out, extra=None):
        B = V_WF; E = V_WF + 24; M = V_WF + 64
        cv = [f"v_cvt_pk_bf16_f32 v{B+k}, v{acc+2*k}, v{acc+2*k+1}" for k in range(20)]
        def minmax(y):
            q = Prog(); x = V_PA + y * 20; Mx = M + 8 * y
            q(f"v_max3_f32 v{Mx}, v{x}, v{x+1}, v{x+2}\n v_min3_f32 v{Mx+2}, v{x}, v{x+1}, v{x+2}")
            for k in range(3, 19, 2):
                q(f"v_max3_f32 v{Mx}, v{Mx}, v{x+k}, v{x+k+1}\n v_min3_f32 v{Mx+2}, v{Mx+2}, v{x+k}, v{x+k+1}")
            q(f"v_max_f32 v{Mx}, v{Mx}, v{x+19}\n v_min_f32 v{Mx+2}, v{Mx+2}, v{x+19}")
            q(f"v_mul_f32 v{Mx}, s88, v{Mx}\n v_mul_f32 v{Mx+2}, s88, v{Mx+2}")
            return q
        for c in cv[:8]: p(c)
        m = Prog(); seen = set()
        for n, (U, ka) in enumerate(PH):
            mfma32(m, vr(V_PA + 16 * U, 16), ar(160 + 4 * n, 4), vr(B + 4 * ka, 4), None if U in seen else '0'); seen.add(U)
        c2 = Prog()
        for c in cv[8:]: c2(c)
        st = [(singles(c2), 0, 2)]
        if extra: st.append((bundles(extra), 2, 11))
        p.extend(pack(m, st, cap=28))
        for y in range(2):
            x = V_PA + y * 20; Mx = M + 8 * y
            p.extend(minmax(y))
            for q in range(10):
                p(f"v_pk_fma_f32 {vr(E+2*q,2)}, {vr(x+2*q,2)}, s[88:89], {vr(Mx,2)} op_sel_hi:[1,1,0] neg_lo:[0,0,1] neg_hi:[0,0,1]")
                p(f"v_pk_fma_f32 {vr(E+20+2*q,2)}, {vr(x+2*q,2)}, s[88:89], {vr(Mx+2,2)} op_sel_hi:[1,1,0] neg_lo:[1,0,0] neg_hi:[1,0,0]")
            for q in range(40): p(f"v_exp_f32 v{E+q}, v{E+q}")
            for q in range(1, 10):
                for hh in range(2):
                    S = Mx + 4 + 2 * hh; e = E + 20 * hh
                    p(f"v_pk_add_f32 {vr(S,2)}, {vr(e if q == 1 else S,2)}, {vr(e+2*q,2)}")
            p(f"v_add_f32 v{Mx+4}, v{Mx+4}, v{Mx+5}\n v_add_f32 v{Mx+6}, v{Mx+6}, v{Mx+7}")
            p(f"v_rcp_f32 v{Mx+4}, v{Mx+4}\n v_rcp_f32 v{Mx+6}, v{Mx+6}")
            for hh in range(2):
                for q in range(10):
                    e = E + 20 * hh + 2 * q
                    p(f"v_pk_mul_f32 {vr(e,2)}, {vr(e,2)}, {vr(Mx+4+2*hh,2)} op_sel_hi:[1,0]")
            yield y
            for q in range(20):
                p(f"v_cvt_pk_bf16_f32 v{out+y*20+q}, v{E+2*q}, v{E+2*q+1}")

    def q_reads(k):
        q = Prog(); fb = V_WF + (k % 3) * 12
        slot = (40 + k // 2) % NSLOT; base = V_TA + 2 + (slot >= 8); so = (slot % 8) * GR + (k % 2) * 2560
        for T in range(3):
            for h in range(2):
                q(f"ds_read_b64_tr_b16 {vr(fb+4*T+2*h,2)}, v{base} offset:{so + 160*h + 64*T}")
        return q
    ex = Prog()
    for mm_ in range(10):
        a = V_VA + 4 * mm_; d = V_X + 2 * (mm_ % 4)
        ex(f"v_cvt_pk_bf16_f32 v{d}, v{a}, v{a+1}\n v_cvt_pk_bf16_f32 v{d+1}, v{a+2}, v{a+3}\n ds_write_b64 v{t+1}, {vr(d,2)} offset:{16*mm_}")
    for y in phi_step(p, V_KA, V_PO, ex):
        if y == 1:
            p.extend(q_reads(0));
    p.extend(q_reads(1))
    stamp(p)
    p(f"""v_readfirstlane_b32 s95, v{V_X+10}
    s_mov_b32 s94, {SPIN}
    s_cmp_ge_u32 s95, {NZERO_WG}""")
    p("s_cbranch_scc1 a_pz_x", tag='keep')
    p("a_pz:")
    p(f"""buffer_load_dword v{V_X+10}, v{V_Z}, {sr(S_DBG,4)}, 0 offen sc1
    s_sub_u32 s94, s94, 1
    s_waitcnt vmcnt(0)
    v_readfirstlane_b32 s95, v{V_X+10}
    s_cmp_eq_u32 s94, 0""", tag='offpath')
    p("s_cbranch_scc1 a_pz_x", tag='keep')
    p(f"s_cmp_ge_u32 s95, {NZERO_WG}")
    p("s_cbranch_scc0 a_pz", tag='keep')
    p("a_pz_x:")
    pw = Prog()
    for y in range(2):
        for q in range(5): pw(f"ds_write_b128 v{t+2}, {vr(V_PO+y*20+4*q,4)} offset:{160*y + 16*q}")
    pre = Prog()
    unpark(pre, 'phir', t); unpark(pre, 'vr0', t + 1); unpark(pre, 'vr1', t + 3)
    pre(f"v_mov_b32 v{t+4}, 0x3f803f80")
    for k in range(5): unpark(pre, f'at{k}', V_X + k)
    pre(f"""s_lshl_b32 s78, s70, 2
    s_add_u32 s78, s78, s68
    s_lshl_b32 s78, s78, 12
    s_add_u32 s78, s78, {WS_KV}""")
    KF = 72
    def kvs_reads(sw):
        q = Prog(); fb = KF + (sw % 2) * 20
        for h in range(2): q(f"ds_read_b64_tr_b16 {vr(fb+4+2*h,2)}, v{t+3} offset:{(sw*32+h*16)*160}")
        for h in range(2): q(f"ds_read_b64_tr_b16 {vr(fb+2*h,2)}, v{t+1} offset:{(sw*32+h*16)*160}")
        for nf in range(3):
            for h in range(2):
                q(f"ds_read_b64_tr_b16 {vr(fb+8+4*nf+2*h,2)}, v{t} offset:{(sw*32+h*16)*PHI_RS + 32*nf}")
        return q
    def kvs_mfma(m, sw):
        fb = KF + (sw % 2) * 20
        m.need([vr(fb, 20)])
        for q in range(4): m(f"v_cndmask_b32 v{fb+4+q}, v{t+4}, v{fb+4+q}, s[90:91]")
        for md in range(2):
            for nf in range(3):
                mfma(m, vr(V_D + (3 * md + nf) * 4, 4), vr(fb + 4 * md, 4), vr(fb + 8 + 4 * nf, 4), '0' if sw == 0 else None)
    at = Prog(); a0 = V_X
    def atom(v, vo, off): at(f"buffer_atomic_add_f32 v{v}, v{vo}, {sr(S_WS,4)}, s78 offen offset:{off}", tag='kvat')
    for nf in range(2):
        for i in range(4): atom(V_D + 4 * nf + i, a0, i * 192 + nf * 64)
    R = lambda nf, i: V_D + 12 + 4 * nf + i
    for i in (0, 2):
        at(f"v_mov_b32_dpp v{V_D+8+i}, v{V_D+9+i} row_shr:8 row_mask:0xf bank_mask:0xc")
    for nf in range(3):
        at(f"v_permlane16_swap_b32 v{R(nf,0)}, v{R(nf,1)}\n v_permlane16_swap_b32 v{R(nf,2)}, v{R(nf,3)}")
    for i in (0, 2): atom(V_D + 8 + i, a0 + 1, i * 192 + 128)
    for nf in range(3): at(f"v_permlane32_swap_b32 v{R(nf,0)}, v{R(nf,2)}")
    at(f"v_permlane16_swap_b32 v{R(0,1)}, v{R(1,1)}")
    for nf in range(3): atom(R(nf, 0), a0 + (3 if nf == 2 else 2), nf * 64)
    at(f"v_permlane32_swap_b32 v{R(0,1)}, v{R(2,1)}")
    atom(R(0, 1), a0 + 4, 0)
    KS = opt('ks', 5)
    segs = [list(range(0, 6))] + [list(range(8 * g - 2, 8 * g + 6)) for g in range(1, 5)] + [[38, 39]]
    def signal():
        unpark(p, 'l0', V_X + 7)
        p(f"""v_mov_b32 v{V_X+6}, 1
        s_lshl_b32 s78, s70, 8
        s_lshl_b32 s85, s69, 4
        s_add_u32 s78, s78, s85
        s_lshl_b32 s85, s68, 2
        s_add_u32 s78, s78, s85""")
        p.waitvm('kvat')
        p(f"buffer_store_dword v{V_X+6}, v{V_X+7}, {sr(S_WS,4)}, s78 offen sc1")
    for si, steps in enumerate(segs):
        G = 10 + si
        if si >= 1:
            if STAMP == 3: stamp(p)
            if si == KS: signal()
            if si == 1: p("s_waitcnt lgkmcnt(0)")
            if G < 15: sync(p, G)
            else: p("s_barrier")
        def qstep(k, extra):
            m = Prog(); fb = V_WF + (k % 3) * 12
            m.need([vr(fb, 12)])
            for T in range(3): mfma32(m, vr(V_KA + 16 * T, 16), vr(fb + 4 * T, 4), ar(4 * k, 4), '0' if k == 0 else None)
            return m
        if si == 1:
            grp = issue_group(13) + issue_group(14) if False else issue_group(13)
            for n, k in enumerate(steps):
                st = [(singles(q_reads(k + 2)), 0, 3)]
                if n in (0, 1, 3, 5): st.append((singles(kvs_reads({0: 0, 1: 1, 3: 2, 5: 3}[n])), 0, 3))
                else: st.append((grp[:2], 0, 3)); grp = grp[2:]
                p.extend(pack(qstep(k, None), st, cap=28))
                if n in (2, 4, 6, 7): kvs_mfma(p, {2: 0, 4: 1, 6: 2, 7: 3}[n])
            seg_pend = grp
            continue
        m = Prog(); st = []
        for n, k in enumerate(steps):
            m.extend(qstep(k, None))
            if k + 2 < 40: st.append((singles(q_reads(k + 2)), 3 * n, 3 * n + 3))
        if si == 0:
            st.append((singles(pw), 0, 14)); st.append((bundles(pre), 8, None))
        elif si == 2: st.append((issue_group(14), 0, 6)); st.append((singles(at), 2, None))
        else: st.append((issue_group(G + 2), 0, None))
        p.extend(pack(m, st, cap=28))
    if KS == 6: signal()
    stamp(p)
    F = V_WF
    ex = Prog()
    unpark(ex, 'kvz', t)
    ex(f"""v_mov_b32 v{V_X}, 0
    v_mov_b32 v{V_X+1}, 0
    v_mov_b32 v{V_X+2}, 0
    v_mov_b32 v{V_X+3}, 0
    ds_write_b128 v{t}, {vr(V_X,4)}
    v_lshlrev_b32 v{t+1}, 2, v{LN}
    v_lshlrev_b32 v{t+2}, 4, v{LN}
    s_lshl_b32 s78, s70, 8
    s_lshl_b32 s77, s70, 2
    s_add_u32 s77, s77, s68
    s_lshl_b32 s77, s77, 12
    s_add_u32 s77, s77, {WS_KV}""")
    for i in range(4): unpark(ex, f'kvw{i}', V_X + 4 + i)
    KL = V_KA + 32
    def kvloads(tag=None):
        for i in range(4):
            p(f"buffer_load_dwordx4 {vr(KL+4*i,4)}, v{t+2}, {sr(S_WS,4)}, s77 offen offset:{1024*i} sc1", tag=tag)
    for y in phi_step(p, V_KA, V_PO, ex):
        if y == 0:
            p(f"buffer_load_dword v{V_X+9}, v{V_Z}, {sr(S_DBG,4)}, 4 offen sc1")
            p(f"buffer_load_dword v{V_X+8}, v{t+1}, {sr(S_WS,4)}, s78 offen sc1")
        if y == 1 and opt('early', 1):
            p(f"v_cmp_ne_u32 vcc, 0, v{V_X+8}\n s_mov_b32 s95, 0\n s_nop 0\n s_cmp_eq_u64 vcc, -1")
            p("s_cbranch_scc0 a_noearly", tag='keep')
            kvloads('offpath')
            p("s_mov_b32 s95, 1", tag='offpath')
            p("a_noearly:")
    stamp(p)
    if opt('early', 1):
        p("s_cmp_eq_u32 s95, 1")
        p("s_cbranch_scc1 a_have", tag='keep')
    pollall(p, "a_pk", S_WS, 's78', V_X + 8, t + 1)
    kvloads()
    p("a_have:")
    stamp(p)
    unpark(p, 'kvr0', t); unpark(p, 'kvr1', t + 1)
    p(f"""s_mul_i32 s76, s70, 5120
    s_add_u32 s78, s92, s76
    s_add_u32 s81, s78, 4096
    s_mov_b32 s85, {f2u(1e-6):#x}
    v_readfirstlane_b32 s95, v{V_X+9}
    s_mov_b32 s94, {SPIN}
    s_cmp_ge_u32 s95, {NZERO_WG}""")
    p("s_cbranch_scc1 a_ps_x", tag='keep')
    p("a_ps:")
    p(f"""buffer_load_dword v{V_X+9}, v{V_Z}, {sr(S_DBG,4)}, 4 offen sc1
    s_sub_u32 s94, s94, 1
    s_waitcnt vmcnt(0)
    v_readfirstlane_b32 s95, v{V_X+9}
    s_cmp_eq_u32 s94, 0""", tag='offpath')
    p("s_cbranch_scc1 a_ps_x", tag='keep')
    p(f"s_cmp_ge_u32 s95, {NZERO_WG}")
    p("s_cbranch_scc0 a_ps", tag='keep')
    p("a_ps_x:")
    p("s_waitcnt vmcnt(0)")
    for i in range(4):
        p(f"v_cvt_pk_bf16_f32 v{F+16+2*i}, v{KL+4*i}, v{KL+4*i+1}\n v_cvt_pk_bf16_f32 v{F+17+2*i}, v{KL+4*i+2}, v{KL+4*i+3}")
        p(f"ds_write_b64 v{V_X+4+i}, {vr(F+16+2*i,2)}")
    p("s_waitcnt lgkmcnt(0)\n s_barrier")
    stamp(p)
    order = [(y, u, ka) for y in range(2) for u in (1, 0) for ka in range(5)]
    NB = 10; O = F + 48
    def ord_(n):
        y, u, ka = order[n]; q = Prog(); q(f"ds_read_b128 {vr(F+4*(n%NB),4)}, v{t+y} offset:{u*1280+16*ka}"); return q
    for n in range(NB): p.extend(ord_(n))
    def fin(y):
        q = Prog(); dn = V_KA + 16 * y + 4
        vals = [V_D + 16 * y + r for r in range(16)] + [V_KA + 16 * y + r for r in range(4)]
        for k in range(10):
            q(f"v_mul_f32 v{vals[2*k]}, v{dn}, v{vals[2*k]}\n v_mul_f32 v{vals[2*k+1]}, v{dn}, v{vals[2*k+1]}")
            q(f"v_cvt_pk_bf16_f32 v{O+10*y+k}, v{vals[2*k]}, v{vals[2*k+1]}")
        return q
    om = Prog()
    for n, (y, u, ka) in enumerate(order):
        mfma32(om, vr((V_D if u == 0 else V_KA) + 16 * y, 16), vr(F + 4 * (n % NB), 4), vr(V_PO + y * 20 + 4 * ka, 4), '0' if ka == 0 else None)
        if n + NB < 20: om.extend(ord_(n + NB))
        if ka == 3 and u == 0:
            dn = V_KA + 16 * y + 4
            om(f"v_add_f32 v{dn}, s85, v{dn}\n v_rcp_f32 v{dn}, v{dn}")
    f0 = fin(0); stq = Prog()
    for pc in range(2): stq(f"buffer_store_dwordx4 {vr(O+4*pc,4)}, v{t+2}, {sr(S_WS,4)}, s78 offen offset:{1024*pc} sc1", tag='ost')
    p.extend(pack(om, [(issue_group(18), 0, 8), (singles(f0), 12, 18), (singles(stq), 18, 20)], cap=28))
    f1 = fin(1).L
    def ost(pc): p(f"buffer_store_dwordx4 {vr(O+4*pc,4)}, v{t+2}, {sr(S_WS,4)}, {'s81' if pc == 4 else 's78'} offen offset:{1024*(pc%4)} sc1", tag='ost')
    p.L += f1[:6]; ost(2); p.L += f1[6:18]; ost(3); p.L += f1[18:]; ost(4)
    stamp(p)
    p.waitvm(('dma', 18))
    gemm2_tail(p)
    return p

CP = 4168; YP = 4160; SRS = 544
B_RAW = 0
B_UC = 33280
B_KR = B_UC + 16 * CP
B_SC = B_KR + 4 * 4608
B_END = B_SC + 4 * 16 * SRS
S_KR = 81920; S_SC = S_KR + 4 * 4608
WS_KR = 3 << 20
WS_KF = 2048
BL, B15, BG, BZ = 1, 2, 3, 4
A_SW, A_SR, A_T0, A_T1, A_T1b, A_T2, A_X3, A_X2, A_X1, A_X0, A_KW, A_KW32, A_KB, MSK = range(24, 38)
PR = 8
S_U, S_LA, S_AI, S_CR, S_CI, S_LDT, S_DS, S_O, S_WSB = 40, 44, 48, 52, 56, 60, 64, 72, 76

def kg_lanes(p):
    p(f"""v_and_b32 v{BL}, 63, v0
    v_and_b32 v{B15}, 15, v0
    v_bfe_u32 v{BG}, v0, 4, 2
    v_mov_b32 v{BZ}, 0
    v_lshlrev_b32 v5, 2, v{BL}
    s_waitcnt lgkmcnt(0)""")
    for s_, ptr, size in ((S_LA, P_LA, 640*256), (S_AI, P_AI, 640*256), (S_CR, P_CR, 640*256), (S_CI, P_CI, 640*256), (S_LDT, P_LDT, 1280), (S_DS, P_DS, 1280)):
        srd(p, s_, ptr, size)
def kg_params(p, sch, P):
    p(f"s_lshl_b32 s81, {sch}, 8\n s_lshl_b32 s80, {sch}, 1")
    p(f"buffer_load_ushort v{P+4}, v{BZ}, {sr(S_LDT,4)}, s80 offen")
    for k, s_ in enumerate((S_LA, S_AI, S_CR, S_CI)):
        p(f"buffer_load_dword v{P+k}, v5, {sr(s_,4)}, s81 offen")
    p(f"buffer_load_ushort v{P+5}, v{BZ}, {sr(S_DS,4)}, s80 offen")
def kg_setup(p, KR, SC):
    t = 40
    p(f"""s_mul_i32 s83, s68, 4608
    s_add_u32 s83, s83, {KR}
    s_mul_i32 s84, s68, {16*SRS}
    s_add_u32 s84, s84, {SC}
    v_lshl_add_u32 v{A_SW}, v{BL}, 3, s84
    v_mul_u32_u24 v{A_SR}, {SRS}, v{B15}
    v_lshl_add_u32 v{A_SR}, v{BG}, 4, v{A_SR}
    v_add_u32 v{A_SR}, s84, v{A_SR}
    v_cmp_gt_u32 vcc, 2, v{BG}
    v_lshrrev_b32 v{t}, 1, v{BG}
    v_and_b32 v{t+1}, 1, v{BG}
    v_lshlrev_b32 v{A_T0}, 9, v{t}
    v_lshl_add_u32 v{A_T0}, v{t+1}, 4, v{A_T0}
    v_lshl_add_u32 v{A_T0}, v{B15}, 5, v{A_T0}
    v_add_u32 v{A_T0}, s84, v{A_T0}
    v_lshlrev_b32 v{t+2}, 4, v{B15}
    v_lshlrev_b32 v{t+3}, 3, v{B15}
    v_cndmask_b32 v{t+2}, v{t+3}, v{t+2}, vcc
    v_lshl_add_u32 v{A_T1}, v{BG}, 8, v{t+2}
    v_add_u32 v{A_T1}, s84, v{A_T1}
    v_mov_b32 v{t+2}, 128
    v_mov_b32 v{t+3}, 8
    v_cndmask_b32 v{t+2}, v{t+2}, v{t+3}, vcc
    v_add_u32 v{A_T1b}, v{A_T1}, v{t+2}
    v_lshlrev_b32 v{A_T2}, 8, v{BG}
    v_lshl_add_u32 v{A_T2}, v{B15}, 2, v{A_T2}
    v_add_u32 v{A_T2}, s84, v{A_T2}
    v_lshl_add_u32 v{A_X3}, v{BL}, 2, s84
    v_lshl_add_u32 v{A_X2}, v{BL}, 3, s84
    v_and_b32 v{t}, 31, v0
    v_lshl_add_u32 v{A_X1}, v{t}, 4, s84
    v_lshl_add_u32 v{A_X0}, v{t}, 5, s84
    v_lshlrev_b32 v{t+1}, 4, v{BL}
    v_sub_u32 v{A_KW}, s83, v{t+1}
    v_add_u32 v{A_KW}, 1008, v{A_KW}
    v_lshlrev_b32 v{t+1}, 4, v{t}
    v_sub_u32 v{A_KW32}, s83, v{t+1}
    v_add_u32 v{A_KW32}, 496, v{A_KW32}
    v_and_b32 v{t}, 1, v0
    v_cmp_eq_u32 vcc, 1, v{t}
    v_mov_b32 v{t+1}, 0xffff
    v_mov_b32 v{t+2}, -1
    v_cndmask_b32 v{MSK}, v{t+1}, v{t+2}, vcc
    s_mov_b32 s85, 0xffff
    s_mov_b32 s86, {f2u(1.4426950408889634):#x}
    s_mov_b32 s87, 0x32a57060
    s_mov_b32 s88, {f2u(0.6931471805599453):#x}
    s_mov_b32 s89, 0xffff0000""")

def exp_bf16(p, d, x, t):
    p(f"""v_mul_f32 v{t}, s86, v{x}
    v_fma_f32 v{t+1}, v{x}, s86, -v{t}
    v_exp_f32 v{t}, v{t}
    v_fma_f32 v{t+1}, v{x}, s87, v{t+1}
    v_mul_f32 v{t+1}, s88, v{t+1}
    v_fma_f32 v{t}, v{t}, v{t+1}, v{t}
    v_cvt_pk_bf16_f32 v{t}, v{t}, v{t}
    v_and_b32 v{d}, s89, v{t}""")
def cmul(p, c, a, b):
    p(f"v_pk_mul_f32 {vr(c,2)}, {vr(a,2)}, {vr(b,2)} op_sel:[0,0] op_sel_hi:[0,1]")
    p(f"v_pk_fma_f32 {vr(c,2)}, {vr(a,2)}, {vr(b,2)}, {vr(c,2)} op_sel:[1,1,0] op_sel_hi:[1,0,1] neg_lo:[0,1,0]")
def kgen(p, P, side=()):
    E = lambda k, mu: 48 + 4 * (k - 1) + 2 * mu
    E8 = lambda mu: 76 + 2 * mu
    E128 = lambda mu: 80 + 2 * mu
    GA = lambda par, mu: 84 + 4 * par + 2 * mu
    XT = lambda k, mu: 92 + 4 * (k % 2) + 2 * mu
    PK = lambda k: 100 + 2 * (k % 4)
    FB = 108; FA = 140; DT = 172
    t = 40; side = list(side)
    p(f"v_lshlrev_b32 v{t+6}, 16, v{P+4}")
    exp_bf16(p, t + 7, t + 6, t)
    rho = lambda mu: 92 + mu; th = lambda mu: 94 + mu
    p(f"v_add_f32 v{t+4}, v{t+7}, v{t+7}")
    for mu in range(2):
        up = (lambda d, s_: f"v_lshlrev_b32 v{d}, 16, v{s_}") if mu == 0 else (lambda d, s_: f"v_and_b32 v{d}, s89, v{s_}")
        p(up(t + 6, P))
        exp_bf16(p, t + 5, t + 6, t)
        p(f"v_mul_f32 v{t+5}, v{t+5}, v{t+7}\n v_mul_f32 v{rho(mu)}, s86, v{t+5}")
        p(up(t + 6, P + 1))
        p(f"v_mul_f32 v{t+6}, v{t+6}, v{t+7}\n v_mul_f32 v{th(mu)}, 0.15915494, v{t+6}")
        p(up(t + 5, P + 2)); p(up(t + 6, P + 3))
        p(f"v_mul_f32 v{GA(0,mu)}, v{t+5}, v{t+4}\n v_mul_f32 v{GA(0,mu)+1}, v{t+6}, v{t+4}")
    for pw, dst in ((8, E8), (1, lambda mu: E(1, mu)), (128, E128)):
        for mu in range(2):
            p(f"v_mul_f32 v{t+2*mu}, {f2u(-float(pw)):#x}, v{rho(mu)}\n v_mul_f32 v{t+2*mu+1}, {f2u(float(pw)):#x}, v{th(mu)}")
        for mu in range(2): p(f"v_exp_f32 v{t+2*mu}, v{t+2*mu}\n v_fract_f32 v{t+2*mu+1}, v{t+2*mu+1}")
        for mu in range(2): p(f"v_cos_f32 v{dst(mu)}, v{t+2*mu+1}\n v_sin_f32 v{dst(mu)+1}, v{t+2*mu+1}")
        for mu in range(2): p(f"v_pk_mul_f32 {vr(dst(mu),2)}, {vr(dst(mu),2)}, {vr(t+2*mu,2)} op_sel_hi:[1,0]")
    cnt = [0]; SIDE0 = opt('side0', 16); SIDEN = opt('siden', 5)
    def put(row, src, neg=False):
        k = cnt[0]; cnt[0] += 1
        for mu in range(2):
            a = src(mu)
            p(f"v_cvt_pk_bf16_f32 v{PK(k)+mu}, v{a}, {'-' if neg else ''}v{a+1}")
        p(f"ds_write_b64 v{A_SW}, {vr(PK(k),2)} offset:{row*SRS}")
        if side and k >= SIDE0 and (k - SIDE0) % SIDEN == 0: p.extend(side.pop(0))
    p(f"v_mov_b32 v{PK(3)}, 0x3f80\n v_mov_b32 v{PK(3)+1}, 0x3f80\n ds_write_b64 v{A_SW}, {vr(PK(3),2)}")
    put(1, E8, True)
    prev = E8
    for b in range(2, 16):
        cur = (lambda bb: (lambda mu: XT(bb, mu)))(b)
        for mu in range(2): cmul(p, cur(mu), prev(mu), E8(mu))
        put(b, cur, True); prev = cur
    for ka in range(8): p(f"ds_read_b128 {vr(FB+4*ka,4)}, v{A_SR} offset:{64*ka}")
    for k in range(2, 8):
        for mu in range(2): cmul(p, E(k, mu), E(k - 1, mu), E(1, mu))
    al = [0]
    def Gcur(mu): return GA(al[0] % 2, mu)
    def Gnext():
        for mu in range(2): cmul(p, GA((al[0] + 1) % 2, mu), GA(al[0] % 2, mu), E128(mu))
        al[0] += 1
    def prod(row, k):
        if k == 0: put(row, Gcur); return
        for mu in range(2): cmul(p, XT(row, mu), Gcur(mu), E(k, mu))
        put(row, lambda mu: XT(row, mu))
    def tile(T):
        for ka in range(8): p(f"ds_read_b128 {vr(FA+4*ka,4)}, v{A_SR} offset:{64*ka}")
        return [f"v_mfma_f32_16x16x32_bf16 {vr(DT+4*T,4)}, {vr(FA+4*ka,4)}, {vr(FB+4*ka,4)}, {'0' if ka == 0 else vr(DT+4*T,4)}" for ka in range(8)]
    for a in range(2):
        for g in range(8): prod(8 * a + g, g)
        Gnext()
    mm = tile(0)
    for a in range(2):
        for g in range(4): prod(4 * a + g, 2 * g)
        Gnext()
        if a == 0:
            for x in mm: p(x)
    for a in range(4):
        for g in range(2): prod(8 + 2 * a + g, 4 * g)
        Gnext()
    mm = tile(1)
    for a in range(9):
        prod(a, 0)
        if a < 8: Gnext()
        if a == 3:
            for x in mm: p(x)
    for b_ in side: p.extend(b_)
    mm = tile(2)
    p(f"""v_cmp_eq_u32 vcc, 0, v{BL}
    v_lshlrev_b32 v{t}, 16, v{P+5}
    v_cndmask_b32 v{t}, v{BZ}, v{t}, vcc
    v_add_f32 v{DT}, v{DT}, v{t}""")
    for q in range(8): p(f"v_cvt_pk_bf16_f32 v{DT+q}, v{DT+q}, v{DT+q}")
    p.need([vr(FA, 32)])
    p(mm[0]); p(f"ds_write_b128 v{A_T0}, {vr(DT,4)}")
    for x in mm[1:4]: p(x)
    p(f"ds_write_b64 v{A_T1}, {vr(DT+4,2)} offset:1024")
    for x in mm[4:6]: p(x)
    p(f"ds_write_b64 v{A_T1b}, {vr(DT+6,2)} offset:1024")
    for x in mm[6:]: p(x)
    R = FB
    p(f"""ds_read_b128 {vr(R+24,4)}, v{A_X0}
    ds_read_b128 {vr(R+28,4)}, v{A_X0} offset:16
    ds_read_b128 {vr(R+16,4)}, v{A_X1} offset:1024
    ds_read_b32 v{R+20}, v{A_X1} offset:{1024+16}""")
    for q in range(8, 12): p(f"v_cvt_pk_bf16_f32 v{DT+q}, v{DT+q}, v{DT+q}")
    for i in range(4): p(f"ds_write_b32 v{A_T2}, v{DT+8+i} offset:{2048+64*i}")
    p(f"""ds_read_b32 v{R+8}, v{A_X2} offset:{1536+8}
    ds_read_b32 v{R+9}, v{A_X2} offset:{1536+4}
    ds_read_b32 v{R+11}, v{A_X2} offset:{1536}""")
    for r in range(2):
        p(f"ds_read_b32 v{R+4*r}, v{A_X3} offset:{2048+256*r+4}")
        p(f"ds_read_b32 v{R+4*r+2}, v{A_X3} offset:{2048+256*r}\n ds_read_b32 v{R+4*r+3}, v{A_X3} offset:{2048+256*r}")
    p(f"""v_bfi_b32 v{R+12}, s85, v{R+20}, v{R+19}
    v_mov_b32 v{R+13}, v{R+18}
    v_bfi_b32 v{R+14}, s85, v{R+18}, v{R+17}
    v_mov_b32 v{R+15}, v{R+16}
    ds_write_b128 v{A_KW32}, {vr(R+12,4)} offset:3072
    v_bfi_b32 v{R+16}, s85, v{R+31}, v{R+30}
    v_bfi_b32 v{R+17}, s85, v{R+29}, v{R+28}
    v_bfi_b32 v{R+18}, s85, v{R+27}, v{R+26}
    v_bfi_b32 v{R+19}, s85, v{R+25}, v{R+24}
    ds_write_b128 v{A_KW32}, {vr(R+16,4)} offset:3584
    v_bfi_b32 v{R+10}, s85, v{R+9}, v{R+11}
    ds_write_b128 v{A_KW}, {vr(R+8,4)} offset:2048""")
    for r in range(2):
        p(f"v_bfi_b32 v{R+4*r+1}, v{MSK}, v{R+4*r}, v{R+4*r+2}")
        p(f"ds_write_b128 v{A_KW}, {vr(R+4*r,4)} offset:{1024*(1-r)}")

def role_B():
    p = Prog(); nstamp[0] = 0
    LN, L15, G, Z = BL, B15, BG, BZ
    p("roleB:")
    stamp(p)
    p("""s_and_b32 s69, s2, 7
    s_mul_i32 s69, s69, 10
    s_lshr_b32 s70, s2, 3
    s_sub_u32 s70, s70, 16
    s_add_u32 s69, s69, s70""")
    kg_lanes(p)
    p(f"s_lshl_b32 s71, s69, 3\n s_add_u32 s71, s71, s68")
    kg_params(p, 's71', PR)
    p("s_lshl_b32 s80, s69, 4")
    srd(p, S_U, P_U, 0, 's80')
    p(f"""s_sub_u32 s{S_U+2}, {2048*1280}, s80
    v_mul_u32_u24 v6, 1280, v{LN}
    s_mul_i32 s90, s70, 3
    s_lshl_b32 s81, s68, 3
    s_add_u32 s90, s90, s81""")
    raw = []
    for i in range(8):
        q = Prog()
        q(f"""s_add_u32 s81, s90, {i}
        s_and_b32 s81, s81, 31
        s_mul_i32 s82, s81, {64*1280}
        s_lshl_b32 s81, s81, 10
        s_add_u32 m0, s81, {B_RAW+256}""")
        q(f"buffer_load_dwordx4 v6, {sr(S_U,4)}, s82 offen lds", tag='raw')
        raw.append(q)
    p(f"s_lshl_b32 s80, s69, 4\n s_add_u32 s80, s80, 1280")
    srd(p, S_O, P_OUT, 0, 's80')
    p(f"s_sub_u32 s{S_O+2}, {2048*2560}, s80")
    srd(p, S_WSB, P_WS, WS_SIZE)
    kg_setup(p, B_KR, B_SC)
    t = 40
    p(f"""v_mov_b32 v20, 0
    v_mov_b32 v21, 0
    v_mov_b32 v22, 0
    v_mov_b32 v23, 0
    v_lshlrev_b32 v{t}, 4, v{L15}
    ds_write_b128 v{t}, v[20:23] offset:{B_RAW}
    v_and_b32 v{t}, 31, v0
    v_lshl_add_u32 v38, v{t}, 4, s83
    ds_write_b128 v38, v[20:23] offset:4096
    v_lshlrev_b32 v{t+1}, 5, v{L15}
    v_sub_u32 v{A_KB}, s83, v{t+1}
    v_lshl_add_u32 v{A_KB}, v{G}, 4, v{A_KB}
    v_add_u32 v{A_KB}, 480, v{A_KB}""")
    stamp(p)
    kgen(p, PR, raw)
    stamp(p)
    Y = 184; UB = 216
    p(f"""v_bfe_u32 v{t}, v0, 2, 2
    v_lshl_add_u32 v{t}, v{G}, 3, v{t}
    v_bfe_u32 v{t+1}, v0, 1, 1
    v_lshl_add_u32 v{t}, v{t+1}, 2, v{t}
    v_lshlrev_b32 v{t}, 4, v{t}
    v_and_b32 v{t+1}, 1, v0
    v_lshl_add_u32 v{t}, v{t+1}, 3, v{t}
    s_lshl_b32 s80, s68, 9
    v_add_u32 v{t}, s80, v{t}
    v_and_b32 v{t+1}, 7, v0
    v_mul_u32_u24 v{t+1}, {2*CP}, v{t+1}
    v_bfe_u32 v{t+2}, v0, 3, 1
    v_lshl_add_u32 v{t+1}, v{t+2}, 3, v{t+1}
    v_lshl_add_u32 v{t+1}, v{G}, 4, v{t+1}
    s_lshl_b32 s80, s68, 6
    s_add_u32 s80, s80, {B_UC}
    v_add_u32 v{t+1}, s80, v{t+1}
    s_cmp_eq_u32 s68, 0
    s_cselect_b32 s80, 2, 0
    v_cmp_gt_u32 vcc, s80, v{G}
    v_mov_b32 v{t+2}, {B_END - 4096}
    s_mul_i32 s81, s68, {2*CP}
    v_cndmask_b32 v{t+3}, v{t+2}, v{t+1}, vcc
    s_add_u32 s81, s81, {B_UC}
    v_and_b32 v{t+4}, 1, v0
    v_mul_u32_u24 v{t+4}, {CP}, v{t+4}
    v_lshrrev_b32 v{t+5}, 1, v{L15}
    v_lshl_add_u32 v{t+5}, v{G}, 2, v{t+5}
    v_lshl_add_u32 v{t+4}, v{t+5}, 2, v{t+4}
    v_add_u32 v{UB}, s81, v{t+4}
    v_add_u32 v{UB+1}, 1024, v{UB}
    v_add_u32 v{UB+2}, 2048, v{UB}
    v_add_u32 v{UB+3}, 3072, v{UB}
    s_mul_i32 s80, s68, {YP}
    v_lshlrev_b32 v{t+4}, 5, v{L15}
    v_lshl_add_u32 v{t+4}, v{G}, 3, v{t+4}
    v_add_u32 v{UB+4}, s80, v{t+4}
    s_lshl_b32 s90, s69, 2
    s_add_u32 s90, s90, s68
    s_lshl_b32 s91, s90, 12
    s_add_u32 s91, s91, {WS_KR}
    s_lshl_b32 s90, s90, 2
    s_add_u32 s90, s90, {WS_KF}
    s_sub_u32 s92, s84, s83
    v_lshlrev_b32 v39, 4, v{LN}
    v_add_u32 v38, s92, v38""")
    srd(p, S_LA, P_DBG, 256)
    p.waitvm('raw'); p("s_waitcnt lgkmcnt(0)\n s_barrier")
    stamp(p)
    p(f"ds_write_b128 v38, v[20:23] offset:4096")
    jobs = [(k, pp) for k in range(17) for pp in range(2)]
    NBUF = 8
    def rdj(n):
        k, pp = jobs[n]; p(f"ds_read_b64_tr_b16 {vr(48+2*(n%NBUF),2)}, v{t} offset:{B_RAW + 16*(1+pp) + 2048*k}")
    def wrj(n):
        k, pp = jobs[n]
        p(f"ds_write_b64 v{t+3 if k == 16 else t+1}, {vr(48+2*(n%NBUF),2)} offset:{pp*CP + 256*k}")
    for n in range(NBUF): rdj(n)
    for n in range(len(jobs)):
        wrj(n)
        if n + NBUF < len(jobs): rdj(n + NBUF)
    def fa(b, a): return ar((b % 2) * 64 + 4 * a, 4)
    def fb(b, c): return ar((b % 2) * 64 + 32 + 4 * c, 4)
    def reads(b, kind='ku'):
        q = Prog()
        for a in range(8):
            o = 128 * (a % 2) + 16 * b; r0 = (b % 2) * 64 + 4 * a
            if 'k' in kind: q(f"ds_read_b128 {fb(b,a)}, v{A_KB} offset:{512*(7-a)+64*b}")
            if 'u' in kind:
                q(f"ds_read2_b32 {ar(r0,2)}, v{UB+a//2} offset0:{o} offset1:{o+1}")
                q(f"ds_read2_b32 {ar(r0+2,2)}, v{UB+a//2} offset0:{o+2} offset1:{o+3}")
        return q
    def krdma(tag):
        for i in range(4):
            p(f"s_add_u32 m0, s84, {1024*i}\n s_nop 0\n buffer_load_dwordx4 v39, {sr(S_WSB,4)}, s91 offen sc1 lds\n s_add_u32 s91, s91, 1024", tag=tag)
    p("s_mov_b32 s93, 0\n s_mov_b32 s95, 0\n s_waitcnt lgkmcnt(0)\n s_barrier")
    stamp(p)
    p("b_conv:")
    p.extend(reads(0))
    prs = sorted([(a, c) for c in range(8) for a in range(c + 1)], key=lambda x: (max(x[0], x[1] - x[0]), x[1]))
    EB = opt('eb', 5)
    for b in range(8):
        m = Prog(); seen = set(); lvl = -1
        for a, c in prs:
            first = b == 0 and c not in seen; seen.add(c)
            if max(a, c - a) != lvl and (b == 0 or max(a, c - a) in (0, 4)):
                lvl = max(a, c - a); hi = lvl if b == 0 else lvl + 3
                m.need([fa(b, x) for x in range(lvl, hi + 1)] + [fb(b, x) for x in range(lvl, hi + 1)])
            mfma(m, vr(Y + 4 * c, 4), fa(b, a), fb(b, c - a), '0' if first else None)
        if b == EB - 2: p(f"buffer_load_dword v6, v{Z}, {sr(S_LA,4)}, 0 offen sc1")
        if b == EB:
            p.need(['v6']); p(f"buffer_load_dword v7, v{Z}, {sr(S_WSB,4)}, s90 offen sc1")
        if b == EB + 1:
            p(f"""v_readfirstlane_b32 s80, v6
            v_readfirstlane_b32 s81, v7
            s_cmp_lt_u32 s80, {NZERO_WG}
            s_cselect_b32 s81, 0, s81
            s_cmp_lg_u32 s93, 0
            s_cselect_b32 s81, 0, s81
            s_cmp_eq_u32 s81, 0""")
            p("s_cbranch_scc1 b_noearly", tag='keep')
            krdma('offpath')
            p("s_mov_b32 s95, 1", tag='offpath')
            p("b_noearly:")
        p.extend(pack(m, [(singles(reads(b + 1)), 2, 30)] if b < 7 else [], cap=4))
    for c in range(8):
        d = 40 + 2 * (c % 4)
        p(f"v_cvt_pk_bf16_f32 v{d}, v{Y+4*c}, v{Y+4*c+1}\n v_cvt_pk_bf16_f32 v{d+1}, v{Y+4*c+2}, v{Y+4*c+3}")
        p(f"ds_write_b64 v{UB+4}, {vr(d,2)} offset:{B_RAW+512*c}")
    p("s_cmp_lg_u32 s93, 0")
    p("s_cbranch_scc1 b_fin")
    stamp(p)
    p(f"""s_mov_b32 s93, 1
    v_add_u32 v{A_KB}, s92, v{A_KB}""")
    for k in range(4): p(f"v_add_u32 v{UB+k}, {8*CP}, v{UB+k}")
    p(f"v_add_u32 v{UB+4}, {4*YP}, v{UB+4}\n s_cmp_eq_u32 s95, 1")
    p("s_cbranch_scc1 b_have")
    p(f"s_mov_b32 s94, {SPIN}")
    p("b_poll:")
    p(f"""buffer_load_dword v6, v{Z}, {sr(S_LA,4)}, 0 offen sc1
    s_waitcnt vmcnt(0)
    buffer_load_dword v7, v{Z}, {sr(S_WSB,4)}, s90 offen sc1
    s_sub_u32 s94, s94, 1
    s_waitcnt vmcnt(0)
    v_readfirstlane_b32 s80, v6
    v_readfirstlane_b32 s81, v7
    s_cmp_eq_u32 s94, 0
    s_cbranch_scc1 b_got
    s_cmp_lt_u32 s80, {NZERO_WG}
    s_cselect_b32 s81, 0, s81
    s_cmp_eq_u32 s81, 0
    s_cbranch_scc1 b_poll""")
    p("b_got:")
    krdma(None)
    p("b_have:")
    p("s_waitcnt vmcnt(0)\n s_branch b_conv")
    p("b_fin:")
    stamp(p)
    p(f"""v_bfe_u32 v{t+8}, v0, 2, 2
    v_mul_u32_u24 v{t+8}, {YP}, v{t+8}
    v_and_b32 v{t+9}, 3, v0
    v_lshl_add_u32 v{t+8}, v{t+9}, 3, v{t+8}
    v_lshl_add_u32 v{t+8}, v{G}, 5, v{t+8}
    s_lshl_b32 s80, s68, 10
    v_add_u32 v{t+8}, s80, v{t+8}
    v_mul_u32_u24 v{t+9}, 2560, v{LN}
    s_mul_i32 s80, s68, {512*2560}""")
    p("s_waitcnt lgkmcnt(0)\n s_barrier")
    for it in range(8):
        for h in range(2):
            p(f"ds_read_b64_tr_b16 {vr(56+4*it+2*h,2)}, v{t+8} offset:{B_RAW + h*4*YP + 128*it}")
    for it in range(8):
        p(f"buffer_store_dwordx4 {vr(56+4*it,4)}, v{t+9}, {sr(S_O,4)}, s80 offen")
        p(f"s_add_u32 s80, s80, {64*2560}")
    stamp(p)
    stamp_store(p, S_WSB)
    p("s_endpgm")
    return p

def role_S():
    p = Prog(); nstamp[0] = 32
    p("roleS:")
    p(f"""s_getpc_b64 s[40:41]
    cpf_here:
    s_sub_u32 s40, s40, cpf_here-{NAME}_kernel
    s_subb_u32 s41, s41, 0
    s_lshr_b32 s42, s2, 3
    s_and_b32 s42, s42, 1
    s_lshl_b32 s42, s42, 15
    v_lshlrev_b32 v8, 7, v0
    v_add_u32 v8, s42, v8
    v_cmp_gt_u32 vcc, code_end-{NAME}_kernel, v8
    v_cndmask_b32 v8, 0, v8, vcc
    global_load_dword v253, v8, s[40:41]""")
    if STAMP: p("v_mov_b32 v255, 0")
    stamp(p)
    p(f"s_sub_u32 s69, s2, 208")
    kg_lanes(p)
    p(f"""s_lshl_b32 s90, s69, 2
    s_add_u32 s90, s90, s68
    s_lshl_b32 s71, s69, 3
    s_add_u32 s71, s71, s68
    s_add_u32 s71, s71, 4""")
    kg_params(p, 's71', PR)
    p(f"s_add_u32 s71, s71, 384\n s_min_u32 s71, s71, 639")
    kg_params(p, 's71', PR + 6)
    srd(p, S_U, P_WS, WS_ZERO_END)
    srd(p, S_O, P_DBG, 256)
    srd(p, S_WSB, P_WS, WS_SIZE)
    p(f"""s_lshl_b32 s70, s69, 12
    v_lshlrev_b32 v6, 4, v0
    v_mov_b32 v20, 0
    v_mov_b32 v21, 0
    v_mov_b32 v22, 0
    v_mov_b32 v23, 0
    buffer_store_dwordx4 v[20:23], v6, {sr(S_U,4)}, s70 offen sc1
    v_cmp_eq_u32 vcc, 0, v0
    v_mov_b32 v7, 1
    v_mov_b32 v38, {OOB:#x}
    v_cndmask_b32 v39, v38, v{BZ}, vcc""")
    kg_setup(p, S_KR, S_SC)
    p(f"""v_cmp_eq_u32 vcc, 0, v{BL}
    v_lshlrev_b32 v184, 4, v{BL}
    v_add_u32 v185, s83, v184
    v_cndmask_b32 v38, v38, v{BZ}, vcc
    s_waitcnt vmcnt(0)
    s_barrier
    buffer_atomic_add v7, v39, {sr(S_O,4)}, 0 offen sc1""")
    p("s_kloop:")
    kgen(p, PR)
    for i in range(4): p(f"ds_read_b128 {vr(48+4*i,4)}, v185 offset:{1024*i}")
    p(f"s_mov_b32 s94, {SPIN}\n s_lshl_b32 s91, s90, 12\n s_add_u32 s91, s91, {WS_KR}")
    for i in range(4): p(f"buffer_store_dwordx4 {vr(48+4*i,4)}, v184, {sr(S_WSB,4)}, s91 offen offset:{1024*i} sc1")
    p("s_pz:")
    p(f"""buffer_load_dword v186, v{BZ}, {sr(S_O,4)}, 0 offen sc1
    s_sub_u32 s94, s94, 1
    s_waitcnt vmcnt(0)
    v_readfirstlane_b32 s95, v186
    s_cmp_eq_u32 s94, 0
    s_cbranch_scc1 s_pz_x
    s_cmp_ge_u32 s95, {NZERO_WG}
    s_cbranch_scc0 s_pz""")
    p("s_pz_x:")
    p(f"""s_lshl_b32 s91, s90, 2
    s_add_u32 s91, s91, {WS_KF}
    buffer_store_dword v7, v38, {sr(S_WSB,4)}, s91 offen sc1
    s_add_u32 s90, s90, 192""")
    for k in range(6): p(f"v_mov_b32 v{PR+k}, v{PR+6+k}")
    stamp(p)
    p("s_cmp_lt_u32 s90, 320\n s_cbranch_scc1 s_kloop")
    p(f"""v_mov_b32 v12, -1
    v_mov_b32 v13, -1
    v_mov_b32 v14, -1
    v_mov_b32 v15, -1
    s_add_u32 s70, s70, {WS_O}""")
    srd(p, 44, P_WS, WS_O + 64 * 40960)
    for i in range(14):
        p(f"buffer_store_dwordx4 v[12:15], v6, s[44:47], s70 offen sc1\n s_add_u32 s70, s70, {NSPARE*4096}")
    p(f"""s_waitcnt vmcnt(0)
    s_barrier
    buffer_atomic_add v7, v39, {sr(S_O,4)}, 4 offen sc1
    s_cmp_ge_u32 s2, 240""")
    stamp(p)
    p("s_cbranch_scc1 s_done")
    srd(p, S_DBG, P_DBG, 256)
    p(f"""s_and_b32 s72, s2, 7
    s_lshr_b32 s69, s72, 1
    s_lshl_b32 s69, s69, 2
    s_lshr_b32 s73, s2, 3
    s_sub_u32 s73, s73, 26
    s_add_u32 s69, s69, s73
    s_and_b32 s83, s72, 1
    s_add_u32 s83, s83, 8
    s_lshl_b32 s83, s83, 7
    s_mul_i32 s84, s68, {GR}
    v_and_b32 v{LN}, 63, v0
    v_mov_b32 v{V_Z}, 0""")
    setup_g2(p)
    for i in range(5): unpark(p, f'wo{i}', V_XO + i)
    for G in range(15, 19):
        for b in issue_group(G): p.extend(b)
    p(f"s_mov_b32 s94, {SPIN}")
    p("s_ps:")
    p(f"""buffer_load_dword v{V_X+10}, v{V_Z}, {sr(S_DBG,4)}, 4 offen sc1
    s_sub_u32 s94, s94, 1
    s_waitcnt vmcnt(0)
    v_readfirstlane_b32 s95, v{V_X+10}
    s_cmp_eq_u32 s94, 0""")
    p("s_cbranch_scc1 g2_tail")
    p(f"s_cmp_ge_u32 s95, {NZERO_WG}")
    p("s_cbranch_scc1 g2_tail")
    p("s_branch s_ps")
    p("s_done:")
    if STAMP:
        stamp_store(p, S_WSB)
    p("done:\n s_endpgm\n code_end:")
    return p

def main():
    LDS = max(A_END + 16, B_END + 4608)
    assert LDS <= 163840, LDS
    ref = open(f"cdna_kernels/{NAME}.s.ref").read().split('\n')
    hdr = [l for l in ref if l.startswith(';') and '@launch' not in l]
    s = '\n'.join(hdr) + f"\n; @launch grid=(256,1,1) block=(256,1,1) lds={LDS}\n"
    s += f""".amdgcn_target "amdgcn-amd-amdhsa--gfx950"
.text
.globl {NAME}_kernel
.p2align 8
.type {NAME}_kernel,@function
{NAME}_kernel:
"""
    e = Prog()
    e(f"""s_cmp_ge_u32 s2, 256
    s_cbranch_scc1 done""")
    if opt('cpf2', 0):
        e(f"""s_getpc_b64 s[36:37]
        v_lshlrev_b32 v2, 7, v0
        s_cmp_ge_u32 s2, 128
        s_cselect_b32 s38, roleB-{NAME}_kernel, 0
        v_add_u32 v2, s38, v2
        v_min_u32 v2, code_end-{NAME}_kernel-64, v2
        global_load_dword v253, v2, s[36:37]""", tag='offpath')
    e(f"""
    s_load_dwordx16 s[8:23], s[0:1], 0
    s_load_dwordx8 s[24:31], s[0:1], 64
    s_load_dwordx4 s[32:35], s[0:1], 96
    v_lshrrev_b32 v1, 6, v0
    s_nop 0
    v_readfirstlane_b32 s68, v1
    s_cmp_ge_u32 s2, 208
    s_cbranch_scc1 roleS
    s_cmp_ge_u32 s2, 128
    s_cbranch_scc1 roleB""")
    a = role_A()
    e.extend(a)
    L = lower(e) + lower(role_B()) + lower(role_S())
    if opt('align', 1):
        L, nn, npro = align8(L, sizes_of(s + render(L)))
        print("align: nops", nn, "promoted", npro)
    s += render(L)
    s += f""".section .rodata,"a"
.p2align 6
.amdhsa_kernel {NAME}_kernel
  .amdhsa_next_free_vgpr 512
  .amdhsa_next_free_sgpr 102
  .amdhsa_accum_offset 256
  .amdhsa_group_segment_fixed_size 0
  .amdhsa_kernarg_size 112
  .amdhsa_user_sgpr_count 2
  .amdhsa_user_sgpr_kernarg_segment_ptr 1
  .amdhsa_system_sgpr_workgroup_id_x 1
.end_amdhsa_kernel
"""
    out = OPT.get('out', f"cdna_kernels/{NAME}.s")
    open(out, 'w').write(s)
    print("LDS", LDS, "A_END", A_END, "B_END", B_END, "lines", s.count('\n'))
main()
```

```python
import re

REG_RE = re.compile(r'(?<![\w.])([vas])(\d+)(?![\w\[])|(?<![\w.])([vas])\[(\d+):(\d+)\]')
TRANS = ('v_exp_f32', 'v_log_f32', 'v_rcp_f32', 'v_rsq_f32', 'v_sqrt_f32', 'v_sin_f32', 'v_cos_f32')

def regs_of(tok):
    out = []
    for m in REG_RE.finditer(tok):
        if m.group(1): out.append((m.group(1), int(m.group(2))))
        else: out += [(m.group(3), i) for i in range(int(m.group(4)), int(m.group(5)) + 1)]
    t = tok.strip().lstrip('-').strip('|')
    if t == 'vcc': out += [('s', 'vcc_lo'), ('s', 'vcc_hi')]
    elif t in ('vcc_lo', 'vcc_hi'): out.append(('s', t))
    elif t == 'exec': out += [('s', 'exec')]
    elif t == 'm0': out.append(('s', 'm0'))
    return out

def split_ops(s):
    ops = []; depth = 0; cur = ''
    for ch in s:
        if ch in '[(': depth += 1
        if ch in '])': depth -= 1
        if ch == ',' and depth == 0: ops.append(cur.strip()); cur = ''
        else: cur += ch
    if cur.strip(): ops.append(cur.strip())
    return ops

class I:
    __slots__ = ('text', 'mn', 'defs', 'uses', 'kind', 'tag', 'srcc', 'passes', 'wide', 'note')
    def __init__(self, text, tag=None):
        self.text = text.strip(); self.tag = tag; self.note = None
        self.srcc = []; self.passes = 0; self.wide = False
        t = self.text
        if t.endswith(':') or t.startswith('.') or t.startswith(';'):
            self.mn = t; self.kind = 'label' if t.endswith(':') else 'dir'; self.defs = []; self.uses = []; return
        parts = t.split(None, 1)
        mn = parts[0]; self.mn = mn
        rest = parts[1] if len(parts) > 1 else ''
        base = re.sub(r'_(e32|e64|dpp)$', '', mn)
        ops = split_ops(rest)
        if ops:
            last = ops[-1].split()
            mods = ' '.join(last[1:]) if len(last) > 1 else ''
            ops[-1] = last[0]
        else: mods = ''
        R = [regs_of(o) for o in ops]
        flat = lambda l: [x for y in l for x in y]
        defs = []; uses = []
        if base.startswith('v_mfma'):
            self.kind = 'mfma'; defs = R[0]; uses = flat(R[1:4]); self.srcc = R[3]
            self.passes = 8 if '32x32' in base else 4
        elif base.startswith('v_cmp'):
            self.kind = 'valu'; defs = R[0]; uses = flat(R[1:])
        elif base in ('v_readfirstlane_b32', 'v_readlane_b32'):
            self.kind = 'valu'; defs = R[0]; uses = flat(R[1:])
        elif base.startswith('v_permlane') and 'swap' in base:
            self.kind = 'valu'; defs = flat(R[:2]); uses = flat(R[:2])
        elif base.startswith('v_'):
            self.kind = 'valu'; defs = R[0]; uses = flat(R[1:])
            if base in ('v_fmac_f32', 'v_pk_fmac_f16', 'v_writelane_b32') or 'dpp' in mods or 'row_' in mods or 'quad_perm' in mods: uses = uses + R[0]
            if base in ('v_add_co_u32', 'v_sub_co_u32', 'v_addc_co_u32'): defs = flat(R[:2]); uses = flat(R[2:])
            if base == 'v_cndmask_b32' and len(ops) == 3: uses += regs_of('vcc')
        elif base.startswith('ds_read') or base.startswith('ds_bpermute') or base.startswith('ds_swizzle'):
            self.kind = 'ds'; defs = R[0]; uses = flat(R[1:])
        elif base.startswith('ds_'):
            self.kind = 'ds'; uses = flat(R)
        elif base.startswith('buffer_load') or base.startswith('global_load'):
            self.kind = 'vm'
            if re.search(r'\blds\b', mods): uses = flat(R) + [('s', 'm0')]; self.note = 'dma'
            else: defs = R[0]; uses = flat(R[1:])
        elif base.startswith('buffer_atomic') or base.startswith('global_atomic'):
            self.kind = 'vm'; uses = flat(R)
            if 'sc0' in mods: defs = R[0]
        elif base.startswith('buffer_store') or base.startswith('global_store'):
            self.kind = 'vm'; uses = flat(R)
            if 'x3' in base or 'x4' in base:
                self.wide = True
                self.srcc = R[0] if base.startswith('buffer') else R[1]
        elif base.startswith('buffer_wbl2') or base.startswith('buffer_inv'):
            self.kind = 'vm'
        elif base.startswith('s_load') or base in ('s_memtime', 's_memrealtime'):
            self.kind = 'smem'; defs = R[0]; uses = flat(R[1:])
        elif base == 's_waitcnt': self.kind = 'wait'
        elif base == 's_nop': self.kind = 'nop'
        elif base == 's_barrier': self.kind = 'barrier'
        elif base.startswith('s_cbranch') or base in ('s_branch', 's_setpc_b64', 's_swappc_b64', 's_endpgm', 's_call_b64'):
            self.kind = 'branch'; uses = flat(R)
        elif base.startswith('s_cmp') or base in ('s_sleep', 's_setprio', 's_bitcmp1_b32', 's_bitcmp0_b32'):
            self.kind = 'salu'; uses = flat(R)
        elif base.startswith('s_'):
            self.kind = 'salu'; defs = R[0]; uses = flat(R[1:])
            if 'saveexec' in base: defs = defs + [('s', 'exec')]
        else:
            raise ValueError('unknown instr ' + t)
        if self.kind == 'vm' and defs == [('v', 254)]: defs = []
        self.defs = defs; self.uses = uses
    def states(self):
        if self.kind == 'nop': return int(self.text.split()[1], 0) + 1
        if self.kind in ('label', 'dir'): return 0
        return 1

class Prog:
    def __init__(self):
        self.L = []
    def __call__(self, text, tag=None):
        for line in text.split('\n'):
            line = line.split(';;')[0].strip()
            if line: self.L.append(I(line, tag))
    def waitvm(self, tag):
        i = I('; waitvm ' + str(tag)); i.kind = 'waitvm'; i.tag = tag; self.L.append(i)
    def need(self, regs):
        i = I('; need'); i.kind = 'need'; i.uses = [r for tok in regs for r in regs_of(tok)]; i.defs = []; self.L.append(i)
    def waitall(self, vm=True, lgkm=True):
        self(('s_waitcnt ' + ('vmcnt(0) ' if vm else '') + ('lgkmcnt(0)' if lgkm else '')).strip())
    def extend(self, other): self.L += other.L

def merge(main, side, ratio_fn=None, start=0, every=1, count=1):
    out = Prog(); si = 0; nm = 0
    S = side.L
    for ins in main.L:
        out.L.append(ins)
        if ins.kind == 'mfma':
            nm += 1
            if nm > start and (nm - start) % every == 0:
                c = 0
                while c < count and si < len(S):
                    out.L.append(S[si]);
                    if S[si].kind not in ('dir', 'waitvm'): c += 1
                    si += 1
    out.L += S[si:]
    return out

def insert_waits(L):
    out = []; vm = []; lg = []; smem = set()
    def need(q, regs, tagmatch=None):
        idx = -1
        for k, e in enumerate(q):
            if (regs and e[0] & regs) or (tagmatch is not None and e[1] == tagmatch): idx = k
        return idx
    for ins in L:
        if ins.tag == 'offpath':
            out.append(ins); continue
        if ins.kind == 'wait':
            m = re.search(r'vmcnt\((\d+)\)', ins.text)
            if m: n = int(m.group(1)); vm = vm[len(vm) - n:] if n < len(vm) and n > 0 else ([] if n == 0 else vm)
            m = re.search(r'lgkmcnt\((\d+)\)', ins.text)
            if m:
                n = int(m.group(1))
                if n == 0: lg = []; smem = set()
                elif not smem and n < len(lg): lg = lg[len(lg) - n:]
            out.append(ins); continue
        if ins.kind == 'label':
            out.append(ins); continue
        regs = set(ins.uses) | set(ins.defs)
        w = []
        if ins.kind == 'waitvm': k = need(vm, None, ins.tag)
        else: k = need(vm, regs)
        if k >= 0:
            n = len(vm) - 1 - k
            w.append('vmcnt(%d)' % min(n, 62)); vm = vm[k + 1:]
        if smem & regs or (smem and need(lg, regs) >= 0):
            w.append('lgkmcnt(0)'); lg = []; smem = set()
        else:
            k = need(lg, regs)
            if k >= 0:
                n = len(lg) - 1 - k
                w.append('lgkmcnt(%d)' % min(n, 14)); lg = lg[k + 1:]
        if w: out.append(I('s_waitcnt ' + ' '.join(w)))
        if ins.kind in ('waitvm', 'need'): continue
        out.append(ins)
        if ins.kind == 'vm': vm.append((set(ins.defs), ins.tag))
        elif ins.kind == 'ds': lg.append((set(ins.defs), ins.tag))
        elif ins.kind == 'smem': smem |= set(ins.defs); smem.add(('x', 0))
        if ins.kind == 'branch' and ins.mn != 's_endpgm' and 'nocheck' not in (ins.tag or ''):
            pend = [e for e in vm + lg if e[0]]
            if pend and not (ins.tag and 'keep' in ins.tag):
                raise ValueError('pending loads across branch: ' + ins.text + ' ' + str(pend[:2]))
    return out

def isv(r): return r[0] in 'va'
def req_states(p, c):
    n = 0
    pd = set(p.defs); cu = set(c.uses); cd = set(c.defs)
    cb = re.sub(r'_e(32|64)$', '', c.mn); pb = re.sub(r'_e(32|64)$', '', p.mn)
    if p.kind == 'valu':
        vd = {r for r in pd if isv(r)}; sd = pd - vd
        if c.kind == 'mfma' and vd & cu: n = max(n, 2)
        if c.kind == 'valu':
            if cb in ('v_readfirstlane_b32', 'v_readlane_b32') and vd & cu: n = max(n, 1)
            if cb.startswith('v_permlane') and vd & cu: n = max(n, 2)
            if ('row_' in c.text or 'quad_perm' in c.text or 'dpp' in c.text) and vd & cu: n = max(n, 2)
            if pb in TRANS and cb not in TRANS and vd & cu: n = max(n, 1)
            if pb in TRANS and vd & cu: n = max(n, 1)
            if sd & cu: n = max(n, 4 if cb in ('v_readlane_b32', 'v_writelane_b32') else 2)
            if 'op_sel' in p.text and not pb.startswith('v_pk') and vd & (cu | cd): n = max(n, 1)
        if pb in TRANS and c.kind in ('ds', 'vm') and vd & cu: n = max(n, 1)
        if c.kind == 'vm' and sd & cu: n = max(n, 5)
        if c.kind in ('salu', 'branch', 'smem') and sd & cu: n = max(n, 1)
    elif p.kind == 'mfma':
        P = p.passes
        if c.kind == 'mfma':
            cc = set(c.srcc); ab = cu - cc if not (cu - cc) & cc else cu
            abregs = set(regs_of(split_ops(c.text.split(None, 1)[1])[1])) | set(regs_of(split_ops(c.text.split(None, 1)[1])[2]))
            if pd & abregs: n = max(n, 8 if P == 4 else 12)
            if pd & cc:
                if not (list(p.defs) == list(c.srcc) and c.passes == P): n = max(n, 6 if P == 4 else 10)
            elif pd & cd: n = max(n, 8 if P == 4 else 12)
        elif c.kind in ('valu', 'ds', 'vm'):
            if pd & (cu | cd): n = max(n, 8 if P == 4 else 12)
            if c.kind == 'valu' and set(p.srcc) & cd: n = max(n, 3 if P == 4 else 7)
    elif p.kind == 'salu':
        if ('s', 'm0') in pd and c.note == 'dma': n = max(n, 1)
        if ('s', 'exec') in pd and c.kind == 'mfma': n = max(n, 1)
    elif p.kind == 'vm' and p.wide:
        if set(p.srcc) & cd: n = max(n, 2)
    return n

def insert_nops(L):
    out = []
    for ins in L:
        if ins.kind in ('label', 'dir', 'nop', 'wait', 'barrier'):
            out.append(ins); continue
        need = 0; dist = 0
        for p in reversed(out):
            if dist >= 12: break
            r = req_states(p, ins)
            if r - dist > need: need = r - dist
            dist += p.states()
        if need > 0: out.append(I('s_nop %d' % (need - 1)))
        out.append(ins)
    return out

def finalize(prog):
    L = insert_waits(prog.L)
    L = insert_nops(L)
    return '\n'.join((i.text if i.kind in ('label',) or i.text.startswith('.') else ' ' + i.text) for i in L) + '\n'

def spread(main, bundles, lo=0, hi=None):
    n = sum(1 for i in main.L if i.kind == 'mfma')
    if hi is None: hi = n
    nb = len(bundles)
    pos = {}
    for k, b in enumerate(bundles):
        q = lo + int((k + 0.5) * (hi - lo) / nb) if nb else 0
        pos.setdefault(min(max(q, 0), n - 1), []).append(b)
    out = Prog(); c = 0
    for ins in main.L:
        out.L.append(ins)
        if ins.kind == 'mfma':
            for b in pos.get(c, []): out.L += b.L
            c += 1
    return out
def singles(prog):
    r = []
    for i in prog.L:
        q = Prog(); q.L = [i]; r.append(q)
    return r

def cost(i):
    if i.kind == 'vm': return 14
    if i.kind == 'ds': return 20 if i.mn.startswith('ds_write') else 4
    if i.kind == 'valu': return 8 if re.sub(r'_e(32|64)$', '', i.mn) in TRANS else 4
    if i.kind == 'salu': return 2
    return 0
def pack(main, streams, cap=24):
    n = sum(1 for i in main.L if i.kind == 'mfma')
    Q = []
    for items, lo, hi in streams:
        hi = n if hi is None else min(hi, n)
        Q.append([[(lo + (k + 0.5) * (hi - lo) / len(items) - 0.5, b) for k, b in enumerate(items)], hi])
    out = Prog(); c = 0
    if n == 0:
        out.L += main.L
        return out
    for ins in main.L:
        out.L.append(ins)
        if ins.kind != 'mfma': continue
        used = 0
        while True:
            cand = [q for q in Q if q[0] and (q[0][0][0] <= c + 0.49 or c >= q[1] - 1)]
            if not cand: break
            q = min(cand, key=lambda q: (q[1], q[0][0][0]))
            cs = sum(cost(i) for i in q[0][0][1].L)
            if used and used + cs > cap and c < q[1] - 1: break
            out.L += q[0].pop(0)[1].L; used += cs
        c += 1
    assert not any(q[0] for q in Q)
    return out
def bundles(prog):
    r = []; cur = None
    for i in prog.L:
        glue = cur is not None and (i.mn.startswith(('s_cselect', 's_addc', 's_subb', 's_cbranch')))
        if not glue:
            cur = Prog(); r.append(cur)
        cur.L.append(i)
    return r

import subprocess, tempfile, os
PROMO = re.compile(r'^v_(mov_b32|add_u32|sub_u32|and_b32|or_b32|xor_b32|lshlrev_b32|lshrrev_b32|mul_u32_u24|mul_f32|add_f32|max_f32|min_f32|exp_f32|rcp_f32|fract_f32|sin_f32|cos_f32|min_u32|cndmask_b32|cmp_\w+)$')
def sizes_of(text):
    d = tempfile.mkdtemp()
    open(d + '/a.s', 'w').write(text)
    r = subprocess.run(['clang', '-x', 'assembler', '-target', 'amdgcn-amd-amdhsa', '-mcpu=gfx950', '-c', d + '/a.s', '-o', d + '/a.o'], capture_output=True, text=True)
    assert r.returncode == 0, r.stderr[:3000]
    o = subprocess.run(['llvm-objdump', '-d', '--mcpu=gfx950', d + '/a.o'], capture_output=True, text=True).stdout
    out = []
    for l in o.split('\n'):
        m = re.search(r'//\s*([0-9A-F]{12}):((?: [0-9A-F]{8})+)', l)
        if m: out.append(4 * len(m.group(2).split()))
    return out
def align8(L, sizes, minrun=6):
    real = [i for i in L if i.kind not in ('label', 'dir')]
    assert len(real) == len(sizes), (len(real), len(sizes))
    sz = {id(i): s for i, s in zip(real, sizes)}
    out = []; off = 0; cand = None; n = len(L); nn = 0; npro = 0
    for k, ins in enumerate(L):
        if ins.kind in ('label', 'dir'):
            out.append(ins);
            if ins.kind == 'label': cand = None
            continue
        s = sz[id(ins)]
        if s == 8 and off % 8 == 4:
            run = 0
            for j in range(k, min(n, k + 12)):
                if L[j].kind in ('label', 'dir'): continue
                if sz[id(L[j])] != 8 or L[j].kind != 'valu': break
                run += 1
            if cand is not None:
                cand.text = cand.mn + '_e64 ' + cand.text.split(None, 1)[1]; off += 4; npro += 1
            elif run >= minrun:
                out.append(I('s_nop 0')); off += 4; nn += 1
            cand = None
        if s == 4 and ins.kind == 'valu' and PROMO.match(ins.mn): cand = ins
        elif s == 8: cand = None
        out.append(ins); off += s
    return out, nn, npro
def render(L):
    return '\n'.join((i.text if i.kind in ('label',) or i.text.startswith('.') else ' ' + i.text) for i in L) + '\n'
def lower(prog):
    return insert_nops(insert_waits(prog.L))
```

```python
import sys, struct
from gasm import Prog, finalize, merge, spread, singles, pack, bundles, lower, render, sizes_of, align8
NAME = "concat_heads__linear_kernel_hedgehog__ssm_conv_s4d__prompt"
OPT = dict(a.split('=') for a in sys.argv[1:] if '=' in a)
def opt(k, d): return type(d)(OPT.get(k, d))
STAMP = opt('stamp', 0)
ROT = opt('rot', 2)
def f2u(x): return struct.unpack('<I', struct.pack('<f', x))[0]
def vr(a, n): return f"v[{a}:{a+n-1}]" if n > 1 else f"v{a}"
def ar(a, n): return f"a[{a}:{a+n-1}]" if n > 1 else f"a{a}"
def sr(a, n): return f"s[{a}:{a+n-1}]" if n > 1 else f"s{a}"
def magic(d): return (2**32 + d - 1) // d

WS_KVF = 0; WS_KF = 65536; WS_KV = WS_KF + 40960; WS_ZERO_END = WS_KV + 32 * 4096
WS_O = 262144; WS_STAMP = 4 << 20; WS_SIZE = 8 << 20
NSPARE = 48
NZERO_WG = NSPARE
assert WS_ZERO_END <= 2 * NSPARE * 4096 and WS_ZERO_END <= WS_O
P_X, P_W, P_PHI, P_WO, P_U, P_LA, P_AI, P_CR, P_CI, P_LDT, P_DS, P_OUT, P_DBG, P_WS = [8 + 2 * i for i in range(14)]
OOB = 0x80000000
SPIN = 400000

def srd(p, s, ptr, size, off=None):
    if off is None:
        p(f"s_mov_b32 s{s}, s{ptr}\n s_mov_b32 s{s+1}, s{ptr+1}")
    else:
        p(f"s_add_u32 s{s}, s{ptr}, {off}\n s_addc_u32 s{s+1}, s{ptr+1}, 0")
    p(f"s_mov_b32 s{s+2}, {size}\n s_mov_b32 s{s+3}, 0x20000")

nstamp = [0]
def stamp(p, sreg_base=96):
    if not STAMP: return
    k = nstamp[0]; nstamp[0] += 1
    if k in (0, 32): p(f"s_getreg_b32 s36, hwreg(HW_REG_HW_ID)\n v_writelane_b32 v255, s36, 60\n s_getreg_b32 s36, hwreg(HW_REG_XCC_ID)\n v_writelane_b32 v255, s36, 59")
    if k == 0: p(f"s_memrealtime s[36:37]\n s_waitcnt lgkmcnt(0)\n v_writelane_b32 v255, s36, 62")
    p(f"s_memtime s[36:37]\n s_waitcnt lgkmcnt(0)\n v_writelane_b32 v255, s36, {k}")
def stamp_store(p, wsrd):
    if not STAMP: return
    p(f"s_waitcnt vmcnt(0)\n s_memtime s[36:37]\n s_waitcnt lgkmcnt(0)\n v_writelane_b32 v255, s36, 61\n s_memrealtime s[36:37]\n s_waitcnt lgkmcnt(0)\n v_writelane_b32 v255, s36, 63")
    p(f"""s_lshl_b32 s36, s2, 2
    s_add_u32 s36, s36, s68
    s_lshl_b32 s36, s36, 8
    s_add_u32 s36, s36, {WS_STAMP}
    v_and_b32 v254, 63, v0
    v_lshlrev_b32 v254, 2, v254
    buffer_store_dword v255, v254, {sr(wsrd,4)}, s36 offen""")

def pollall(p, name, srdreg, soff, vt, va, slp=0):
    p(f"s_mov_b32 s94, {SPIN}")
    p(f"{name}:")
    p(f"""buffer_load_dword v{vt}, v{va}, {sr(srdreg,4)}, {soff} offen sc1
    s_sub_u32 s94, s94, 1
    s_waitcnt vmcnt(0)
    v_cmp_ne_u32 vcc, 0, v{vt}
    s_cmp_eq_u32 s94, 0""")
    p(f"s_cbranch_scc1 {name}_x", tag='keep')
    p(f"s_cmp_eq_u64 vcc, -1")
    if slp:
        p(f"s_cbranch_scc1 {name}_x", tag='keep')
        p(f"s_sleep {slp}\n s_branch {name}", tag='keep')
    else: p(f"s_cbranch_scc0 {name}", tag='keep')
    p(f"{name}_x:")

A_RING = 0; NSLOT = 16; GR = 5120
A_PHIK = NSLOT * GR; PHI_RS = 352
A_VST = A_PHIK + 128 * PHI_RS
A_BD = A_VST + 20480
A_END = A_BD + 12800
A_KVIMG = A_PHIK
S_X, S_W, S_WO, S_WS, S_OUT, S_DBG, S_PHI = 40, 44, 48, 52, 56, 60, 64
V_XO = 1
V_XD = 5
V_WD = 9
V_TA = 14
V_Z = 22; V_T = 23
V_WF = 32
V_KA = 112; V_VA = 152; V_PA = 192; V_X = 240
OLD = 'sc1' if opt('osc1', 0) else ''

def mfma(p, d, a, b, c=None):
    p(f"v_mfma_f32_16x16x32_bf16 {d}, {a}, {b}, {d if c is None else c}")
def mfma32(p, d, a, b, c=None):
    p(f"v_mfma_f32_32x32x16_bf16 {d}, {a}, {b}, {d if c is None else c}")

LN = V_T; t = V_T + 1
parked = {}
def park(p, name, v):
    if name not in parked: parked[name] = 204 + len(parked)
    assert parked[name] < 256
    p(f"v_accvgpr_write_b32 a{parked[name]}, v{v}")
def unpark(q, name, v): q(f"v_accvgpr_read_b32 v{v}, a{parked[name]}")

def trbase(p, d, rowk, rowrho, extra=0):
    p(f"""v_bfe_u32 v{t}, v0, 5, 1
    v_mul_u32_u24 v{t}, {rowk}, v{t}
    v_bfe_u32 v{t+1}, v0, 2, 2
    v_mul_u32_u24 v{t+1}, {rowrho}, v{t+1}
    v_bfe_u32 v{t+2}, v0, 4, 1
    v_lshl_add_u32 v{t}, v{t+2}, 5, v{t}
    v_and_b32 v{t+2}, 3, v0
    v_lshl_add_u32 v{t}, v{t+2}, 3, v{t}
    v_add_u32 v{d}, v{t}, v{t+1}""")
    if extra: p(f"v_add_u32 v{d}, {extra}, v{d}")

def setup_g2(p):
    srd(p, S_WO, P_WO, 640 * 1280)
    srd(p, S_WS, P_WS, WS_SIZE)
    p(f"s_mul_i32 s78, s69, {128*2560}\n s_add_u32 s78, s78, s83")
    srd(p, S_OUT, P_OUT, 0, 's78')
    p(f"s_sub_u32 s{S_OUT+2}, {2048*2560}, s78")
    p(f"""s_lshr_b32 s79, s68, 1
    s_mul_i32 s79, s79, {80*1280}
    s_add_u32 s79, s79, s83
    s_and_b32 s85, s68, 1
    s_mul_i32 s85, s85, 40
    s_lshl_b32 s78, s69, 2
    s_add_u32 s78, s78, s68
    s_mul_i32 s78, s78, 40960
    s_add_u32 s92, s78, {WS_O}""")
    for i in range(5):
        p(f"""v_lshrrev_b32 v{t}, 3, v{LN}
        v_add_u32 v{t}, s85, v{t}
        v_add_u32 v{t}, {8*i}, v{t}
        v_lshrrev_b32 v{t+1}, 4, v{t}
        v_and_b32 v{t+2}, 7, v{t}
        v_lshl_add_u32 v{t+1}, v{t+1}, 3, v{t+2}
        v_bfe_u32 v{t+2}, v{t}, 3, 1
        v_mad_u32_u24 v{t+2}, v{t+2}, 20, v{t+1}
        v_add_u32 v{t+3}, 20, v{t+2}
        v_cmp_le_u32 vcc, 20, v{t+1}
        v_cndmask_b32 v{t+2}, v{t+2}, v{t+3}, vcc
        v_mul_u32_u24 v{t+2}, 1280, v{t+2}
        v_bfe_u32 v{t}, v{t}, 1, 1
        v_lshlrev_b32 v{t}, 2, v{t}
        v_and_b32 v{t+1}, 7, v0
        v_xor_b32 v{t}, v{t}, v{t+1}
        v_lshl_add_u32 v{t}, v{t}, 4, v{t+2}""")
        park(p, f'wo{i}', t)
    trbase(p, t + 3, 8 * 128, 128)
    p(f"""v_bfe_u32 v{t}, v0, 3, 1
    v_lshl_add_u32 v{t+3}, v{t}, 6, v{t+3}""")
    park(p, 'two', t + 3)
    p(f"""s_add_u32 s78, s84, {A_VST}
    v_and_b32 v{t}, 31, v0
    v_mul_u32_u24 v{t}, 144, v{t}
    v_bfe_u32 v{t+1}, v0, 5, 1
    v_lshl_add_u32 v{t}, v{t+1}, 3, v{t}
    v_add_u32 v{t}, s78, v{t}""")
    park(p, 'outw', t)
    p(f"""v_lshrrev_b32 v{t}, 3, v{LN}
    v_and_b32 v{t+1}, 7, v0
    v_lshlrev_b32 v{t+1}, 4, v{t+1}
    v_mul_u32_u24 v{t+2}, 144, v{t}
    v_add3_u32 v{t+2}, v{t+2}, v{t+1}, s78
    v_mul_u32_u24 v{t}, 2560, v{t}
    v_add_u32 v{t}, v{t}, v{t+1}""")
    park(p, 'outr', t + 2); park(p, 'outg', t)

def dma_bundles(G, hdr, items):
    B = []
    hdr(items[0][0]); B.append(hdr)
    for k, (m0, ld) in enumerate(items):
        q = Prog(); q(ld, tag=('dma', G))
        if k + 1 < len(items): q(items[k + 1][0])
        B.append(q)
    return B
def issue_group(G):
    slotbase = A_RING + (G % 4) * 4 * GR
    h = Prog()
    if G < 10:
        h(f"s_mul_i32 s86, s80, {64*3840}\n s_add_u32 s86, s86, s82\n s_lshl_b32 s81, s80, 7")
        h(f"s_add_u32 s80, s80, 1\n s_cmp_eq_u32 s80, 10\n s_cselect_b32 s80, 0, s80")
        sd = S_W
    elif G < 15:
        h(f"""s_lshl_b32 s86, s71, 1
        s_add_u32 s86, s86, s68
        s_add_u32 s86, s86, {4*(G-10)}
        s_sub_u32 s74, s86, 20
        s_cmp_ge_u32 s86, 20
        s_cselect_b32 s86, s74, s86
        s_mul_i32 s86, s86, {32*3840}
        s_add_u32 s86, s86, s75""")
        sd = S_W
    else:
        h(f"s_add_u32 s86, s79, {(G%4)*160*1280}")
        sd = S_WO
    W = [(f"s_add_u32 m0, s84, {slotbase + 1024*i}", f"buffer_load_dwordx4 v{V_QD[i] if 10 <= G < 15 else (V_WD+i if G < 10 else V_XO+i)}, {sr(sd,4)}, s86 offen {'nt' if opt('ntw', 0) else ''} lds") for i in range(5)]
    if G < 10:
        X = [(f"s_add_u32 m0, s87, {(G%4)*4096 + 1024*r}", f"buffer_load_dwordx4 v{V_XD+r}, {sr(S_X,4)}, s81 offen {'nt' if opt('ntx', 0) else ''} lds") for r in range(4)]
        items = [W[0], X[0], W[1], X[1], W[2], X[2], W[3], X[3], W[4]]
    else: items = W
    return dma_bundles(G, h, items)
V_QD = [21, 29, 30, 31, 252]

OF = lambda n: 88 + 4 * n
G2ACC = 56
def gemm2_tail(p):
    F = V_WF
    p("g2_tail:")
    unpark(p, 'two', V_TA)
    p(f"""v_xor_b32 v{V_TA+1}, 64, v{V_TA}
    v_add_u32 v{V_TA+2}, {8*GR}, v{V_TA}
    v_add_u32 v{V_TA+3}, {8*GR}, v{V_TA+1}
    v_lshlrev_b32 v{t+2}, 4, v{LN}
    v_lshrrev_b32 v{t+4}, 3, v{LN}
    v_mul_u32_u24 v{t+4}, 5120, v{t+4}
    v_and_b32 v{t}, 7, v0
    v_lshl_add_u32 v{t+4}, v{t}, 7, v{t+4}
    s_mov_b32 s94, {SPIN}
    s_add_u32 s93, s92, 4096
    s_barrier""")
    unpark(p, 'outw', t); unpark(p, 'outr', t + 1); unpark(p, 'outg', t + 3)
    stamp(p)
    def reads(n):
        hq, pp = divmod(n, 5); q = Prog(); fb = F + (n % 3) * 8
        off = hq * 10240 + pp * 2048; hi = 0
        if hq >= 4: off -= 8 * GR; hi = 2
        for T in range(2):
            for h in range(2):
                q(f"ds_read_b64_tr_b16 {vr(fb+4*T+2*h,2)}, v{V_TA+hi+T} offset:{off + 512*h}")
        return q
    p(f"""v_and_b32 v249, 7, v0
    v_lshlrev_b32 v249, 13, v249
    s_lshl_b32 s85, s69, 9
    s_lshl_b32 s81, s68, 7
    s_add_u32 s85, s85, s81""")
    pollall(p, "g2_pf", S_WS, 's85', 248, 249, opt('slp', 8))
    p(f"s_mov_b32 s94, {SPIN}")
    p("g2_retry:")
    p.extend(reads(0)); p.extend(reads(1))
    p(f"s_mov_b32 s81, s92\n v_mov_b32 v248, 0")
    p("g2_poll:")
    p(f"""buffer_load_dword v249, v{t+4}, {sr(S_WS,4)}, s93 offen sc1
    s_sub_u32 s94, s94, 1
    s_waitcnt vmcnt(0)
    v_cmp_ne_u32 vcc, -1, v249
    s_cmp_eq_u32 s94, 0""")
    p("s_cbranch_scc1 g2_go", tag='keep')
    p("s_cmp_eq_u64 vcc, -1")
    p("s_cbranch_scc0 g2_poll", tag='keep')
    p("g2_go:")
    stamp(p)
    def oload(n):
        q = Prog(); hq, pp = divmod(n, 5)
        if pp == 4: q(f"s_add_u32 s85, s81, 4096")
        q(f"buffer_load_dwordx4 {vr(OF(n),4)}, v{t+2}, {sr(S_WS,4)}, {'s85' if pp == 4 else 's81'} offen offset:{1024*(pp%4)} sc1")
        if pp == 4: q("s_add_u32 s81, s81, 5120")
        return q
    PRE = opt('opre', 10)
    for n in range(PRE): p.extend(oload(n))
    for n in range(40):
        fb = F + (n % 3) * 8
        mm = Prog(); mm.need([vr(fb, 8), vr(OF(n), 4)])
        for T in range(2): mfma32(mm, vr(G2ACC + 16 * T, 16), vr(fb + 4 * T, 4), vr(OF(n), 4), '0' if n == 0 else None)
        st = []
        if n + 2 < 40: st.append((singles(reads(n + 2)), 0, 2))
        if n + PRE < 40: st.append(([oload(n + PRE)], 0, 1))
        c = Prog(); c(f"v_max3_u32 v248, v248, v{OF(n)}, v{OF(n)+1}\n v_max3_u32 v248, v248, v{OF(n)+2}, v{OF(n)+3}")
        st.append((singles(c), 1, 2))
        p.extend(pack(mm, st, cap=32))
    p(f"""v_cmp_eq_u32 vcc, -1, v248
    s_mul_i32 s78, s68, {32*2560}
    s_cmp_eq_u32 s94, 0""")
    p("s_cbranch_scc1 g2_out", tag='keep')
    p("s_sub_u32 s94, s94, 1\n s_nop 7\n s_nop 7")
    p("s_cbranch_vccnz g2_retry", tag='keep')
    p("g2_out:")
    stamp(p)
    for T in range(2):
        for j in range(4):
            x = G2ACC + 16 * T + 4 * j; o = 88 + 8 * T + 2 * j
            p(f"v_cvt_pk_bf16_f32 v{o}, v{x}, v{x+1}\n v_cvt_pk_bf16_f32 v{o+1}, v{x+2}, v{x+3}")
            p(f"ds_write_b64 v{t}, {vr(o,2)} offset:{64*T+16*j}")
    for i in range(4): p(f"ds_read_b128 {vr(104+4*i,4)}, v{t+1} offset:{8*144*i}")
    for i in range(4):
        p(f"buffer_store_dwordx4 {vr(104+4*i,4)}, v{t+3}, {sr(S_OUT,4)}, s78 offen {OPT.get('ast', '')}")
        if i < 3: p(f"s_add_u32 s78, s78, {8*2560}")
    stamp(p)
    stamp_store(p, S_WS)
    p("s_endpgm")

def divc(p, d, x, c):
    m, sh = {10: (205, 11), 20: (205, 12), 12: (171, 11), 5: (205, 10), 100: (41, 12)}[c]
    p(f"v_mul_u32_u24 v{d}, {m}, v{x}\n v_lshrrev_b32 v{d}, {sh}, v{d}")

V_PO = 160
V_D = 200
def role_A():
    p = Prog(); nstamp[0] = 0
    p("roleA:")
    stamp(p)
    p("""s_and_b32 s72, s2, 7
    s_lshr_b32 s73, s2, 3
    s_lshr_b32 s69, s72, 1
    s_lshl_b32 s69, s69, 2
    s_lshr_b32 s74, s73, 2
    s_add_u32 s69, s69, s74
    s_and_b32 s70, s72, 1
    s_lshl_b32 s70, s70, 2
    s_and_b32 s75, s73, 3
    s_add_u32 s70, s70, s75
    s_add_u32 s71, s74, s75
    s_and_b32 s71, s71, 3""")
    if ROT == 2:
        p("""s_add_u32 s71, s69, s70
        s_mul_i32 s71, s71, 3
        s_mul_i32 s74, s71, 205
        s_lshr_b32 s74, s74, 11
        s_mul_i32 s74, s74, 10
        s_sub_u32 s71, s71, s74""")
    else:
        p(f"s_mul_i32 s71, s71, {5 if ROT else 0}\n s_add_u32 s71, s71, {1 if ROT else 0}\n s_lshr_b32 s71, s71, 1")
    p(f"""v_and_b32 v{LN}, 63, v0
    v_mov_b32 v{V_Z}, 0""")
    p(f"""s_lshl_b32 s76, s68, 5
    v_lshrrev_b32 v{t}, 3, v{LN}
    v_add_u32 v{t}, s76, v{t}
    v_mul_u32_u24 v{t}, 1280, v{t}
    v_and_b32 v{t+1}, 7, v0
    v_bfe_u32 v{t+2}, v0, 4, 2
    v_xor_b32 v{t+1}, v{t+1}, v{t+2}
    v_lshl_add_u32 v{V_XD}, v{t+1}, 4, v{t}
    v_xor_b32 v{V_XD+1}, 64, v{V_XD}
    v_add_u32 v{V_XD+1}, {8*1280}, v{V_XD+1}
    v_add_u32 v{V_XD+2}, {16*1280}, v{V_XD}
    v_add_u32 v{V_XD+3}, {16*1280}, v{V_XD+1}""")
    p(f"s_movk_i32 s78, 1120")
    for i in range(5):
        p(f"v_add_u32 v{t}, {64*i}, v{LN}")
        divc(p, t + 1, t, 20)
        p(f"""v_mul_u32_u24 v{t+2}, 20, v{t+1}
        v_sub_u32 v{t}, v{t}, v{t+2}
        v_mul_u32_u24 v{t+1}, 3840, v{t+1}
        v_cmp_le_u32 vcc, 10, v{t}
        v_lshl_add_u32 v{t+1}, v{t}, 4, v{t+1}
        v_add_u32 v{t+2}, s78, v{t+1}
        v_cndmask_b32 v{V_WD+i}, v{t+1}, v{t+2}, vcc""")
    p(f"""s_mov_b32 s80, s71
    s_mul_i32 s75, s70, 160
    s_mul_i32 s82, s68, {16*3840}
    s_add_u32 s82, s82, s75
    s_add_u32 s82, s82, 1280
    s_lshl_b32 s83, s70, 7
    s_mul_i32 s84, s68, {GR}
    s_lshl_b32 s87, s68, 14
    s_add_u32 s87, s87, {A_PHIK}
    s_mul_i32 s78, s69, {128*1280}""")
    srd(p, S_X, P_X, 128 * 1280, 's78')
    srd(p, S_W, P_W, 640 * 3840)
    su = Prog()
    trbase(su, V_TA, 8 * 320, 320)
    su(f"""v_add_u32 v{V_TA+1}, {8*GR}, v{V_TA}
    v_and_b32 v{t}, 31, v0
    v_bfe_u32 v{t+1}, v0, 1, 3
    v_bfe_u32 v{t+2}, v0, 5, 1
    v_xor_b32 v{t+1}, v{t+1}, v{t+2}
    v_lshlrev_b32 v{t+1}, 4, v{t+1}
    v_lshl_add_u32 v{t}, v{t}, 7, v{t+1}
    v_add_u32 v{V_XO}, s87, v{t}
    v_xor_b32 v{V_XO+1}, 32, v{V_XO}
    v_xor_b32 v{V_XO+2}, 64, v{V_XO}
    v_xor_b32 v{V_XO+3}, 96, v{V_XO}""")
    su(f"""v_mov_b32 v{V_X+4}, 0
    v_mov_b32 v{V_X+5}, 0
    v_mov_b32 v{V_X+6}, 0
    v_mov_b32 v{V_X+7}, 0
    v_lshlrev_b32 v{t}, 4, v0
    v_add_u32 v{t}, {A_BD}, v{t}
    v_min_u32 v{t+1}, {A_BD+496}, v{t}
    ds_write_b128 v{t}, {vr(V_X+4,4)}
    ds_write_b128 v{t}, {vr(V_X+4,4)} offset:4096
    ds_write_b128 v{t}, {vr(V_X+4,4)} offset:8192
    ds_write_b128 v{t+1}, {vr(V_X+4,4)} offset:12288""")
    L2E = 1.4426950408889634
    su(f"s_mov_b32 s88, {f2u(L2E):#x}\n s_mov_b32 s89, {f2u(L2E):#x}")
    for r in range(2):
        su(f"v_add_u32 v{t}, {256*r}, v0")
        divc(su, t + 1, t, 5); divc(su, t + 2, t, 100)
        su(f"""v_mul_u32_u24 v{t+1}, 120, v{t+1}
        v_mad_u32_u24 v{t+1}, v{t+2}, 40, v{t+1}
        v_lshl_add_u32 v{t+1}, v{t}, 3, v{t+1}
        v_add_u32 v{V_X+8+r}, {A_BD}, v{t+1}""")
    su(f"""v_mov_b32 v{t+1}, {A_END}
    v_cmp_gt_u32 vcc, 400, v{t}
    v_cndmask_b32 v{V_X+9}, v{t+1}, v{V_X+9}, vcc""")
    srd(su, S_DBG, P_DBG, 256)
    for i in range(5):
        su(f"v_add_u32 v{t}, {64*i}, v{LN}")
        divc(su, t + 1, t, 10)
        su(f"""v_mul_u32_u24 v{t+2}, 10, v{t+1}
        v_sub_u32 v{t}, v{t}, v{t+2}
        v_and_b32 v{t+2}, 24, v{t+1}
        v_and_b32 v{t+3}, 1, v{t+1}
        v_lshl_add_u32 v{t+2}, v{t+3}, 2, v{t+2}
        v_bfe_u32 v{t+3}, v{t+1}, 1, 2
        v_add_u32 v{t+2}, v{t+2}, v{t+3}
        v_mul_u32_u24 v{t+2}, 3840, v{t+2}
        v_lshl_add_u32 v{V_QD[i]}, v{t}, 4, v{t+2}""")
    su(f"""v_bfe_u32 v{t}, v0, 5, 1
    v_bfe_u32 v{t+1}, v0, 2, 2
    v_lshl_add_u32 v{t}, v{t}, 2, v{t+1}
    v_mul_u32_u24 v{t}, 160, v{t}
    v_and_b32 v{t+1}, 1, v0
    v_mad_u32_u24 v{t}, v{t+1}, 40, v{t}
    v_bfe_u32 v{t+1}, v0, 4, 1
    v_bfe_u32 v{t+2}, v0, 1, 1
    v_lshl_add_u32 v{t+1}, v{t+1}, 1, v{t+2}
    v_lshl_add_u32 v{t}, v{t+1}, 3, v{t}
    v_add_u32 v18, {A_BD}, v{t}
    v_cmp_eq_u32 vcc, 0, v{t+1}
    v_add_u32 v19, 32, v18
    v_add_u32 v{t+2}, 72, v18
    v_cndmask_b32 v19, v{t+2}, v19, vcc
    v_cmp_gt_u32 vcc, 2, v{t+1}
    v_add_u32 v20, 104, v18
    v_nop
    v_cndmask_b32 v20, v18, v20, vcc""".replace("    v_nop\n", ""))
    trbase(su, t + 3, 8 * 160, 320); park(su, 'tq', t + 3)
    su(f"""v_and_b32 v{t}, 31, v0
    v_add_u32 v{t}, s76, v{t}
    v_bfe_u32 v{t+1}, v0, 5, 1
    v_mul_u32_u24 v{t+2}, {PHI_RS}, v{t}
    v_mul_u32_u24 v{t+3}, 80, v{t+1}
    v_add_u32 v{t+2}, v{t+2}, v{t+3}
    v_add_u32 v{t+2}, {A_PHIK}, v{t+2}
    v_mul_u32_u24 v{t}, 160, v{t}
    v_lshl_add_u32 v{t}, v{t+1}, 3, v{t}
    v_add_u32 v{t}, {A_VST}, v{t}""")
    park(su, 'phiw', t + 2); park(su, 'vw', t)
    su(f"""v_bfe_u32 v{t}, v0, 2, 4
    v_and_b32 v{t+1}, 3, v0
    v_mul_u32_u24 v{t+2}, {PHI_RS}, v{t}
    v_lshl_add_u32 v{t+2}, v{t+1}, 3, v{t+2}
    s_mul_i32 s78, s68, 80
    s_add_u32 s78, s78, {A_PHIK}
    v_add_u32 v{t+2}, s78, v{t+2}
    s_mul_i32 s78, s68, 40
    s_add_u32 s78, s78, {A_VST}
    v_mul_u32_u24 v{t}, 160, v{t}
    v_add_u32 v{t}, s78, v{t}
    v_lshl_add_u32 v{t+1}, v{t+1}, 3, v{t}
    v_add_u32 v{t}, 32, v{t}""")
    park(su, 'phir', t + 2); park(su, 'vr0', t + 1); park(su, 'vr1', t)
    a0 = V_PA
    su(f"""v_and_b32 v{t+3}, 15, v0
    v_bfe_u32 v{t+4}, v0, 4, 2
    v_cmp_gt_u32 s[90:91], 8, v{t+3}
    v_lshlrev_b32 v{t}, 2, v{t+3}
    v_mul_u32_u24 v{t+1}, 768, v{t+4}
    v_add_u32 v{a0}, v{t}, v{t+1}
    v_add_u32 v{t+1}, {192-32}, v{a0}
    v_cndmask_b32 v{a0+1}, v{t+1}, v{a0}, s[90:91]
    v_mul_u32_u24 v{t+1}, 192, v{t+4}
    v_add_u32 v{t+1}, {16*192}, v{t+1}
    v_add_u32 v{a0+2}, v{t+1}, v{t}
    v_mov_b32 v{t+2}, {OOB:#x}
    v_cmp_gt_u32 vcc, 40, v{LN}
    v_cndmask_b32 v{a0+3}, v{t+2}, v{a0+2}, s[90:91]
    v_lshlrev_b32 v{t+1}, 2, v{LN}
    v_add_u32 v{t+1}, {20*192}, v{t+1}
    v_cndmask_b32 v{a0+4}, v{t+2}, v{t+1}, vcc
    v_cmp_eq_u32 vcc, 0, v{LN}
    v_cmp_gt_u32 s[90:91], 4, v{t+3}
    v_cndmask_b32 v{a0+6}, v{t+2}, v{V_Z}, vcc""")
    for k in range(5): park(su, f'at{k}', a0 + k)
    park(su, 'l0', a0 + 6)
    su(f"s_mul_i32 s85, s68, 1920\n s_add_u32 s85, s85, {A_KVIMG}\n v_mov_b32 v{t+4}, {A_KVIMG+9600}")
    for i in range(4):
        su(f"v_add_u32 v{t}, {64*i}, v{LN}")
        divc(su, t + 1, t, 12)
        su(f"""v_mul_u32_u24 v{t+2}, 12, v{t+1}
        v_sub_u32 v{t+2}, v{t}, v{t+2}
        v_cmp_gt_u32 vcc, 10, v{t+2}
        v_mul_u32_u24 v{t+1}, 80, v{t+1}
        v_lshl_add_u32 v{t+1}, v{t+2}, 3, v{t+1}
        v_add_u32 v{t+1}, s85, v{t+1}
        v_cndmask_b32 v{t+1}, v{t+4}, v{t+1}, vcc""")
        if i == 3: su(f"v_cmp_gt_u32 vcc, 60, v{LN}\n v_cndmask_b32 v{t+1}, v{t+4}, v{t+1}, vcc")
        park(su, f'kvw{i}', t + 1)
    su(f"""v_cmp_gt_u32 vcc, 120, v0
    v_lshlrev_b32 v{t}, 4, v0
    v_add_u32 v{t}, {A_KVIMG+7680}, v{t}
    v_cndmask_b32 v{t}, v{t+4}, v{t}, vcc""")
    park(su, 'kvz', t)
    su(f"""v_bfe_u32 v{t}, v0, 3, 2
    v_and_b32 v{t+1}, 3, v0
    v_lshl_add_u32 v{t}, v{t}, 2, v{t+1}
    v_mul_u32_u24 v{t}, 80, v{t}
    v_bfe_u32 v{t+1}, v0, 2, 1
    v_bfe_u32 v{t+4}, v0, 5, 1
    v_cmp_eq_u32 vcc, v{t+1}, v{t+4}
    v_mul_u32_u24 v{t+2}, 1920, v{t+1}
    v_add_u32 v{t}, v{t}, v{t+2}
    v_add_u32 v{t}, {A_KVIMG}, v{t}
    v_add_u32 v{t+3}, 3840, v{t}
    v_mov_b32 v{t+2}, {A_KVIMG+7680}
    v_cndmask_b32 v{t}, v{t+2}, v{t}, vcc
    v_cndmask_b32 v{t+3}, v{t+2}, v{t+3}, vcc""")
    park(su, 'kvr0', t); park(su, 'kvr1', t + 3)
    setup_g2(su)
    wl = Prog()
    wl("s_mul_i32 s77, s70, 3200")
    srd(wl, S_PHI, P_PHI, 3200, 's77')
    wl(f"""v_lshlrev_b32 v{V_X+10}, 3, v0
    buffer_load_dwordx2 {vr(V_X,2)}, v{V_X+10}, {sr(S_PHI,4)}, 0 offen
    buffer_load_dwordx2 {vr(V_X+2,2)}, v{V_X+10}, {sr(S_PHI,4)}, 0 offen offset:2048""")
    iss = issue_group(0) + [wl]
    sub = bundles(su)
    LEAD = opt('lead', 7)
    per = opt('suchunk', 30)
    for k, b in enumerate(iss):
        p.extend(b)
        if k >= LEAD:
            for x in sub[:per]: p.extend(x)
            sub = sub[per:]
    for x in sub: p.extend(x)
    for b in issue_group(1): p.extend(b)
    stamp(p)

    def sync(p, G):
        p.waitvm(('dma', G)); p("s_barrier")
    p("s_waitcnt lgkmcnt(0)")
    sync(p, 0)
    stamp(p)
    FD = 2
    def kv_reads(k):
        q = Prog(); fb = V_WF + (k % 3) * 20
        slot = k % NSLOT; base = V_TA + (slot >= 8); so = (slot % 8) * GR
        q(f"ds_read_b128 {ar(4*k,4)}, v{V_XO+k%4} offset:{((k//4)%4)*4096}")
        for T in range(5):
            for h in range(2):
                q(f"ds_read_b64_tr_b16 {vr(fb+4*T+2*h,2)}, v{base} offset:{so + 1280*h + 64*T}")
        return q
    PH = [(0, 0), (0, 1), (0, 2), (1, 0), (1, 1), (1, 2), (1, 3), (1, 4), (2, 2), (2, 3), (2, 4)]
    bdr = Prog()
    for n, (U, ka) in enumerate(PH):
        for h in range(2): bdr(f"ds_read_b64_tr_b16 {ar(160+4*n+2*h,2)}, v{18+U} offset:{(16*ka+8*h)*160}")
    bdr = singles(bdr)
    for k in range(FD): p.extend(kv_reads(k))
    segs = [list(range(0, 4 - FD))] + [list(range(4 * G - FD, 4 * G + 4 - FD)) for G in range(1, 10)] + [list(range(40 - FD, 40))]
    for si, steps in enumerate(segs):
        if si >= 1:
            if si == 10: p("s_waitcnt lgkmcnt(0)")
            if STAMP == 2: stamp(p)
            sync(p, si)
        m = Prog(); st = []
        for n, k in enumerate(steps):
            fb = V_WF + (k % 3) * 20
            m.need([vr(fb, 20), ar(4 * k, 4)])
            for T in range(5): mfma32(m, vr(V_KA + 16 * T, 16), vr(fb + 4 * T, 4), ar(4 * k, 4), '0' if k == 0 else None)
            if k + FD < 40: st.append((singles(kv_reads(k + FD)), 5 * n, 5 * n + 5))
        st.append((issue_group(si + 2), 0, None))
        if si == 1:
            w = Prog(); w(f"ds_write_b64 v{V_X+8}, {vr(V_X,2)}\n ds_write_b64 v{V_X+9}, {vr(V_X+2,2)}")
            st.append((singles(w), 2, 12))
        if si == 9:
            w = Prog()
            w(f"""v_mov_b32 v{V_X+4}, -1
            v_mov_b32 v{V_X+5}, -1
            v_mov_b32 v{V_X+6}, -1
            v_mov_b32 v{V_X+7}, -1
            v_lshlrev_b32 v{t}, 4, v{LN}
            s_mul_i32 s77, s70, 5120
            s_add_u32 s77, s77, s92
            s_add_u32 s78, s77, 4096""")
            st.append((singles(w), 0, None))
        if si == 10:
            w = Prog()
            for pc in range(5):
                w(f"buffer_store_dwordx4 {vr(V_X+4,4)}, v{t}, {sr(S_WS,4)}, {'s78' if pc == 4 else 's77'} offen offset:{1024*(pc%4)} sc1")
            st[-1] = (st[-1][0], 0, 5)
            st.append((singles(w), 5, None))
        if 3 <= si <= 8: st.append((bdr[4 * (si - 3): 4 * (si - 2)], 0, None))
        if si == 8:
            w = Prog(); w(f"buffer_load_dword v{V_X+10}, v{V_Z}, {sr(S_DBG,4)}, 0 offen sc1")
            st.append(([w], 0, 1))
        if si == 10:
            w = Prog(); unpark(w, 'vw', t + 1); unpark(w, 'phiw', t + 2); unpark(w, 'tq', V_TA + 2)
            w(f"v_add_u32 v{V_TA+3}, {8*GR}, v{V_TA+2}")
            for i in range(5): unpark(w, f'wo{i}', V_XO + i)
            st.append((singles(w), 0, None))
        p.extend(pack(m, st))
    stamp(p)

    def phi_step(p, acc, out, extra=None):
        B = V_WF; E = V_WF + 24; M = V_WF + 64
        cv = [f"v_cvt_pk_bf16_f32 v{B+k}, v{acc+2*k}, v{acc+2*k+1}" for k in range(20)]
        def minmax(y):
            q = Prog(); x = V_PA + y * 20; Mx = M + 8 * y
            q(f"v_max3_f32 v{Mx}, v{x}, v{x+1}, v{x+2}\n v_min3_f32 v{Mx+2}, v{x}, v{x+1}, v{x+2}")
            for k in range(3, 19, 2):
                q(f"v_max3_f32 v{Mx}, v{Mx}, v{x+k}, v{x+k+1}\n v_min3_f32 v{Mx+2}, v{Mx+2}, v{x+k}, v{x+k+1}")
            q(f"v_max_f32 v{Mx}, v{Mx}, v{x+19}\n v_min_f32 v{Mx+2}, v{Mx+2}, v{x+19}")
            q(f"v_mul_f32 v{Mx}, s88, v{Mx}\n v_mul_f32 v{Mx+2}, s88, v{Mx+2}")
            return q
        for c in cv[:8]: p(c)
        m = Prog(); seen = set()
        for n, (U, ka) in enumerate(PH):
            mfma32(m, vr(V_PA + 16 * U, 16), ar(160 + 4 * n, 4), vr(B + 4 * ka, 4), None if U in seen else '0'); seen.add(U)
        c2 = Prog()
        for c in cv[8:]: c2(c)
        st = [(singles(c2), 0, 2)]
        if extra: st.append((bundles(extra), 2, 11))
        p.extend(pack(m, st, cap=28))
        for y in range(2):
            x = V_PA + y * 20; Mx = M + 8 * y
            p.extend(minmax(y))
            for q in range(10):
                p(f"v_pk_fma_f32 {vr(E+2*q,2)}, {vr(x+2*q,2)}, s[88:89], {vr(Mx,2)} op_sel_hi:[1,1,0] neg_lo:[0,0,1] neg_hi:[0,0,1]")
                p(f"v_pk_fma_f32 {vr(E+20+2*q,2)}, {vr(x+2*q,2)}, s[88:89], {vr(Mx+2,2)} op_sel_hi:[1,1,0] neg_lo:[1,0,0] neg_hi:[1,0,0]")
            for q in range(40): p(f"v_exp_f32 v{E+q}, v{E+q}")
            for q in range(1, 10):
                for hh in range(2):
                    S = Mx + 4 + 2 * hh; e = E + 20 * hh
                    p(f"v_pk_add_f32 {vr(S,2)}, {vr(e if q == 1 else S,2)}, {vr(e+2*q,2)}")
            p(f"v_add_f32 v{Mx+4}, v{Mx+4}, v{Mx+5}\n v_add_f32 v{Mx+6}, v{Mx+6}, v{Mx+7}")
            p(f"v_rcp_f32 v{Mx+4}, v{Mx+4}\n v_rcp_f32 v{Mx+6}, v{Mx+6}")
            for hh in range(2):
                for q in range(10):
                    e = E + 20 * hh + 2 * q
                    p(f"v_pk_mul_f32 {vr(e,2)}, {vr(e,2)}, {vr(Mx+4+2*hh,2)} op_sel_hi:[1,0]")
            yield y
            for q in range(20):
                p(f"v_cvt_pk_bf16_f32 v{out+y*20+q}, v{E+2*q}, v{E+2*q+1}")

    def q_reads(k):
        q = Prog(); fb = V_WF + (k % 3) * 12
        slot = (40 + k // 2) % NSLOT; base = V_TA + 2 + (slot >= 8); so = (slot % 8) * GR + (k % 2) * 2560
        for T in range(3):
            for h in range(2):
                q(f"ds_read_b64_tr_b16 {vr(fb+4*T+2*h,2)}, v{base} offset:{so + 160*h + 64*T}")
        return q
    ex = Prog()
    for mm_ in range(10):
        a = V_VA + 4 * mm_; d = V_X + 2 * (mm_ % 4)
        ex(f"v_cvt_pk_bf16_f32 v{d}, v{a}, v{a+1}\n v_cvt_pk_bf16_f32 v{d+1}, v{a+2}, v{a+3}\n ds_write_b64 v{t+1}, {vr(d,2)} offset:{16*mm_}")
    for y in phi_step(p, V_KA, V_PO, ex):
        if y == 1:
            p.extend(q_reads(0));
    p.extend(q_reads(1))
    stamp(p)
    p(f"""v_readfirstlane_b32 s95, v{V_X+10}
    s_mov_b32 s94, {SPIN}
    s_cmp_ge_u32 s95, {NZERO_WG}""")
    p("s_cbranch_scc1 a_pz_x", tag='keep')
    p("a_pz:")
    p(f"""buffer_load_dword v{V_X+10}, v{V_Z}, {sr(S_DBG,4)}, 0 offen sc1
    s_sub_u32 s94, s94, 1
    s_waitcnt vmcnt(0)
    v_readfirstlane_b32 s95, v{V_X+10}
    s_cmp_eq_u32 s94, 0""", tag='offpath')
    p("s_cbranch_scc1 a_pz_x", tag='keep')
    p(f"s_cmp_ge_u32 s95, {NZERO_WG}")
    p("s_cbranch_scc0 a_pz", tag='keep')
    p("a_pz_x:")
    pw = Prog()
    for y in range(2):
        for q in range(5): pw(f"ds_write_b128 v{t+2}, {vr(V_PO+y*20+4*q,4)} offset:{160*y + 16*q}")
    pre = Prog()
    unpark(pre, 'phir', t); unpark(pre, 'vr0', t + 1); unpark(pre, 'vr1', t + 3)
    pre(f"v_mov_b32 v{t+4}, 0x3f803f80")
    for k in range(5): unpark(pre, f'at{k}', V_X + k)
    pre(f"""s_lshl_b32 s78, s70, 2
    s_add_u32 s78, s78, s68
    s_lshl_b32 s78, s78, 12
    s_add_u32 s78, s78, {WS_KV}""")
    KF = [72, 92, V_PO, V_PO + 20]
    def kvs_reads(sw):
        q = Prog(); fb = KF[sw]
        for h in range(2): q(f"ds_read_b64_tr_b16 {vr(fb+4+2*h,2)}, v{t+3} offset:{(sw*32+h*16)*160}")
        for h in range(2): q(f"ds_read_b64_tr_b16 {vr(fb+2*h,2)}, v{t+1} offset:{(sw*32+h*16)*160}")
        for nf in range(3):
            for h in range(2):
                q(f"ds_read_b64_tr_b16 {vr(fb+8+4*nf+2*h,2)}, v{t} offset:{(sw*32+h*16)*PHI_RS + 32*nf}")
        return q
    def kvs_mfma(m, sw):
        fb = KF[sw]
        m.need([vr(fb, 20)])
        for q in range(4): m(f"v_cndmask_b32 v{fb+4+q}, v{t+4}, v{fb+4+q}, s[90:91]")
        for md in range(2):
            for nf in range(3):
                mfma(m, vr(V_D + (3 * md + nf) * 4, 4), vr(fb + 4 * md, 4), vr(fb + 8 + 4 * nf, 4), '0' if sw == 0 else None)
    at = Prog(); a0 = V_X
    def atom(v, vo, off): at(f"buffer_atomic_add_f32 v{v}, v{vo}, {sr(S_WS,4)}, s78 offen offset:{off}", tag='kvat')
    for nf in range(2):
        for i in range(4): atom(V_D + 4 * nf + i, a0, i * 192 + nf * 64)
    R = lambda nf, i: V_D + 12 + 4 * nf + i
    for i in (0, 2):
        at(f"v_mov_b32_dpp v{V_D+8+i}, v{V_D+9+i} row_shr:8 row_mask:0xf bank_mask:0xc")
    for nf in range(3):
        at(f"v_permlane16_swap_b32 v{R(nf,0)}, v{R(nf,1)}\n v_permlane16_swap_b32 v{R(nf,2)}, v{R(nf,3)}")
    for i in (0, 2): atom(V_D + 8 + i, a0 + 1, i * 192 + 128)
    for nf in range(3): at(f"v_permlane32_swap_b32 v{R(nf,0)}, v{R(nf,2)}")
    at(f"v_permlane16_swap_b32 v{R(0,1)}, v{R(1,1)}")
    for nf in range(3): atom(R(nf, 0), a0 + (3 if nf == 2 else 2), nf * 64)
    at(f"v_permlane32_swap_b32 v{R(0,1)}, v{R(2,1)}")
    atom(R(0, 1), a0 + 4, 0)
    KS = opt('ks', 4)
    segs = [list(range(0, 6))] + [list(range(8 * g - 2, 8 * g + 6)) for g in range(1, 5)] + [[38, 39]]
    def signal():
        unpark(p, 'l0', V_X + 7)
        p(f"""v_mov_b32 v{V_X+6}, 1
        s_lshl_b32 s78, s70, 13
        s_lshl_b32 s85, s69, 9
        s_add_u32 s78, s78, s85
        s_lshl_b32 s85, s68, 7
        s_add_u32 s78, s78, s85""")
        p.waitvm('kvat')
        p(f"buffer_store_dword v{V_X+6}, v{V_X+7}, {sr(S_WS,4)}, s78 offen sc1")
    def qstep(k):
        m = Prog(); fb = V_WF + (k % 3) * 12
        m.need([vr(fb, 12)])
        for T in range(3): mfma32(m, vr(V_KA + 16 * T, 16), vr(fb + 4 * T, 4), ar(4 * k, 4), '0' if k == 0 else None)
        return m
    def qrun(steps, extra):
        m = Prog(); st = []
        for n, k in enumerate(steps):
            m.extend(qstep(k))
            if k + 2 < 40: st.append((singles(q_reads(k + 2)), 3 * n, 3 * n + 3))
        p.extend(pack(m, st + extra, cap=28))
    NW = opt('nw', 4)
    qrun(range(0, NW), [(singles(pw), 0, 3 * NW - 2), (bundles(pre), 2, None)])
    if STAMP == 3: stamp(p)
    p("s_waitcnt lgkmcnt(0)\n s_barrier")
    kr = Prog()
    for sw in range(4): kr.extend(kvs_reads(sw))
    kr = singles(kr)
    for x in kr[:10]: p.extend(x)
    qrun(range(NW, 6), [(kr[10:], 0, None), (issue_group(13), 0, None)])
    if NW >= 6:
        for x in kr[10:]: p.extend(x)
    for sw in range(4): kvs_mfma(p, sw)
    if STAMP == 3: stamp(p)
    for si, steps in enumerate(segs):
        G = 10 + si
        if si == 0: continue
        if STAMP == 3 and si > 1: stamp(p)
        if si == KS: signal()
        if G < 15: sync(p, G)
        if si == 1: qrun(steps, [(singles(at), 0, opt('atspan', 24))])
        elif si < 5: qrun(steps, [(issue_group(G + 2), 0, None)])
        else: qrun(steps, [])
    if KS == 6: signal()
    stamp(p)
    F = V_WF
    ex = Prog()
    unpark(ex, 'kvz', t)
    ex(f"""v_mov_b32 v{V_X}, 0
    v_mov_b32 v{V_X+1}, 0
    v_mov_b32 v{V_X+2}, 0
    v_mov_b32 v{V_X+3}, 0
    ds_write_b128 v{t}, {vr(V_X,4)}
    v_lshlrev_b32 v{t+1}, 7, v{LN}
    v_lshlrev_b32 v{t+2}, 4, v{LN}
    s_lshl_b32 s78, s70, 13
    s_lshl_b32 s77, s70, 2
    s_add_u32 s77, s77, s68
    s_lshl_b32 s77, s77, 12
    s_add_u32 s77, s77, {WS_KV}""")
    for i in range(4): unpark(ex, f'kvw{i}', V_X + 4 + i)
    KL = V_KA + 32
    def kvloads(tag=None):
        for i in range(4):
            p(f"buffer_load_dwordx4 {vr(KL+4*i,4)}, v{t+2}, {sr(S_WS,4)}, s77 offen offset:{1024*i} sc1", tag=tag)
    for y in phi_step(p, V_KA, V_PO, ex):
        if y == 0:
            p(f"buffer_load_dword v{V_X+8}, v{t+1}, {sr(S_WS,4)}, s78 offen sc1")
        if y == 1 and opt('early', 1):
            p(f"v_cmp_ne_u32 vcc, 0, v{V_X+8}\n s_mov_b32 s95, 0\n s_nop 0\n s_cmp_eq_u64 vcc, -1")
            p("s_cbranch_scc0 a_noearly", tag='keep')
            kvloads('offpath')
            p("s_mov_b32 s95, 1", tag='offpath')
            p("a_noearly:")
    stamp(p)
    if opt('early', 1):
        p("s_cmp_eq_u32 s95, 1")
        p("s_cbranch_scc1 a_have", tag='keep')
    pollall(p, "a_pk", S_WS, 's78', V_X + 8, t + 1)
    kvloads()
    p("a_have:")
    stamp(p)
    unpark(p, 'kvr0', t); unpark(p, 'kvr1', t + 1)
    p(f"""s_mul_i32 s76, s70, 5120
    s_add_u32 s78, s92, s76
    s_add_u32 s81, s78, 4096
    s_mov_b32 s85, {f2u(1e-6):#x}""")
    p("s_waitcnt vmcnt(0)")
    for i in range(4):
        p(f"v_cvt_pk_bf16_f32 v{F+16+2*i}, v{KL+4*i}, v{KL+4*i+1}\n v_cvt_pk_bf16_f32 v{F+17+2*i}, v{KL+4*i+2}, v{KL+4*i+3}")
        p(f"ds_write_b64 v{V_X+4+i}, {vr(F+16+2*i,2)}")
    p("s_waitcnt lgkmcnt(0)\n s_barrier")
    stamp(p)
    order = [(y, u, ka) for y in range(2) for u in (1, 0) for ka in range(5)]
    NB = 10; O = F + 48
    def ord_(n):
        y, u, ka = order[n]; q = Prog(); q(f"ds_read_b128 {vr(F+4*(n%NB),4)}, v{t+y} offset:{u*1280+16*ka}"); return q
    for n in range(NB): p.extend(ord_(n))
    def fin(y):
        q = Prog(); dn = V_KA + 16 * y + 4
        vals = [V_D + 16 * y + r for r in range(16)] + [V_KA + 16 * y + r for r in range(4)]
        for k in range(10):
            q(f"v_mul_f32 v{vals[2*k]}, v{dn}, v{vals[2*k]}\n v_mul_f32 v{vals[2*k+1]}, v{dn}, v{vals[2*k+1]}")
            q(f"v_cvt_pk_bf16_f32 v{O+10*y+k}, v{vals[2*k]}, v{vals[2*k+1]}")
        return q
    om = Prog()
    for n, (y, u, ka) in enumerate(order):
        mfma32(om, vr((V_D if u == 0 else V_KA) + 16 * y, 16), vr(F + 4 * (n % NB), 4), vr(V_PO + y * 20 + 4 * ka, 4), '0' if ka == 0 else None)
        if n + NB < 20: om.extend(ord_(n + NB))
        if ka == 3 and u == 0:
            dn = V_KA + 16 * y + 4
            om(f"v_add_f32 v{dn}, s85, v{dn}\n v_rcp_f32 v{dn}, v{dn}")
    f0 = fin(0); stq = Prog()
    for pc in range(2): stq(f"buffer_store_dwordx4 {vr(O+4*pc,4)}, v{t+2}, {sr(S_WS,4)}, s78 offen offset:{1024*pc} sc1", tag='ost')
    p.extend(pack(om, [(issue_group(17) + issue_group(18), 0, 12), (singles(f0), 12, 18), (singles(stq), 18, 20)], cap=28))
    f1 = fin(1).L
    def ost(pc): p(f"buffer_store_dwordx4 {vr(O+4*pc,4)}, v{t+2}, {sr(S_WS,4)}, {'s81' if pc == 4 else 's78'} offen offset:{1024*(pc%4)} sc1", tag='ost')
    p.L += f1[:6]; ost(2); p.L += f1[6:18]; ost(3); p.L += f1[18:]; ost(4)
    stamp(p)
    p.waitvm(('dma', 18))
    gemm2_tail(p)
    return p

CP = 4168; YP = 4160; SRS = 544
B_RAW = 0
B_UC = 33280
B_KR = B_UC + 16 * CP
B_SC = B_KR + 4 * 4608
B_END = B_SC + 4 * 16 * SRS
S_KR = 81920; S_SC = S_KR + 4 * 4608
WS_KR = 3 << 20
BL, B15, BG, BZ = 1, 2, 3, 4
A_SW, A_SR, A_T0, A_T1, A_T1b, A_T2, A_X3, A_X2, A_X1, A_X0, A_KW, A_KW32, A_KB, MSK = range(24, 38)
PR = 8
S_U, S_LA, S_AI, S_CR, S_CI, S_LDT, S_DS, S_O, S_WSB = 40, 44, 48, 52, 56, 60, 64, 72, 76

def kg_lanes(p):
    p(f"""v_and_b32 v{BL}, 63, v0
    v_and_b32 v{B15}, 15, v0
    v_bfe_u32 v{BG}, v0, 4, 2
    v_mov_b32 v{BZ}, 0
    v_lshlrev_b32 v5, 2, v{BL}
    s_waitcnt lgkmcnt(0)""")
    for s_, ptr, size in ((S_LA, P_LA, 640*256), (S_AI, P_AI, 640*256), (S_CR, P_CR, 640*256), (S_CI, P_CI, 640*256), (S_LDT, P_LDT, 1280), (S_DS, P_DS, 1280)):
        srd(p, s_, ptr, size)
def kg_params(p, sch, P):
    p(f"s_lshl_b32 s81, {sch}, 8\n s_lshl_b32 s80, {sch}, 1")
    p(f"buffer_load_ushort v{P+4}, v{BZ}, {sr(S_LDT,4)}, s80 offen")
    for k, s_ in enumerate((S_LA, S_AI, S_CR, S_CI)):
        p(f"buffer_load_dword v{P+k}, v5, {sr(s_,4)}, s81 offen {'nt' if opt('ntp', 1) else ''}")
    p(f"buffer_load_ushort v{P+5}, v{BZ}, {sr(S_DS,4)}, s80 offen")
def kg_setup(p, KR, SC):
    t = 40
    p(f"""s_mul_i32 s83, s68, 4608
    s_add_u32 s83, s83, {KR}
    s_mul_i32 s84, s68, {16*SRS}
    s_add_u32 s84, s84, {SC}
    v_lshl_add_u32 v{A_SW}, v{BL}, 3, s84
    v_mul_u32_u24 v{A_SR}, {SRS}, v{B15}
    v_lshl_add_u32 v{A_SR}, v{BG}, 4, v{A_SR}
    v_add_u32 v{A_SR}, s84, v{A_SR}
    v_cmp_gt_u32 vcc, 2, v{BG}
    v_lshrrev_b32 v{t}, 1, v{BG}
    v_and_b32 v{t+1}, 1, v{BG}
    v_lshlrev_b32 v{A_T0}, 9, v{t}
    v_lshl_add_u32 v{A_T0}, v{t+1}, 4, v{A_T0}
    v_lshl_add_u32 v{A_T0}, v{B15}, 5, v{A_T0}
    v_add_u32 v{A_T0}, s84, v{A_T0}
    v_lshlrev_b32 v{t+2}, 4, v{B15}
    v_lshlrev_b32 v{t+3}, 3, v{B15}
    v_cndmask_b32 v{t+2}, v{t+3}, v{t+2}, vcc
    v_lshl_add_u32 v{A_T1}, v{BG}, 8, v{t+2}
    v_add_u32 v{A_T1}, s84, v{A_T1}
    v_mov_b32 v{t+2}, 128
    v_mov_b32 v{t+3}, 8
    v_cndmask_b32 v{t+2}, v{t+2}, v{t+3}, vcc
    v_add_u32 v{A_T1b}, v{A_T1}, v{t+2}
    v_lshlrev_b32 v{A_T2}, 8, v{BG}
    v_lshl_add_u32 v{A_T2}, v{B15}, 2, v{A_T2}
    v_add_u32 v{A_T2}, s84, v{A_T2}
    v_lshl_add_u32 v{A_X3}, v{BL}, 2, s84
    v_lshl_add_u32 v{A_X2}, v{BL}, 3, s84
    v_and_b32 v{t}, 31, v0
    v_lshl_add_u32 v{A_X1}, v{t}, 4, s84
    v_lshl_add_u32 v{A_X0}, v{t}, 5, s84
    v_lshlrev_b32 v{t+1}, 4, v{BL}
    v_sub_u32 v{A_KW}, s83, v{t+1}
    v_add_u32 v{A_KW}, 1008, v{A_KW}
    v_lshlrev_b32 v{t+1}, 4, v{t}
    v_sub_u32 v{A_KW32}, s83, v{t+1}
    v_add_u32 v{A_KW32}, 496, v{A_KW32}
    v_and_b32 v{t}, 1, v0
    v_cmp_eq_u32 vcc, 1, v{t}
    v_mov_b32 v{t+1}, 0xffff
    v_mov_b32 v{t+2}, -1
    v_cndmask_b32 v{MSK}, v{t+1}, v{t+2}, vcc
    s_mov_b32 s85, 0xffff
    s_mov_b32 s86, {f2u(1.4426950408889634):#x}
    s_mov_b32 s87, 0x32a57060
    s_mov_b32 s88, {f2u(0.6931471805599453):#x}
    s_mov_b32 s89, 0xffff0000""")

def exp_bf16(p, d, x, t):
    p(f"""v_mul_f32 v{t}, s86, v{x}
    v_fma_f32 v{t+1}, v{x}, s86, -v{t}
    v_exp_f32 v{t}, v{t}
    v_fma_f32 v{t+1}, v{x}, s87, v{t+1}
    v_mul_f32 v{t+1}, s88, v{t+1}
    v_fma_f32 v{t}, v{t}, v{t+1}, v{t}
    v_cvt_pk_bf16_f32 v{t}, v{t}, v{t}
    v_and_b32 v{d}, s89, v{t}""")
def cmul(p, c, a, b):
    p(f"v_pk_mul_f32 {vr(c,2)}, {vr(a,2)}, {vr(b,2)} op_sel:[0,0] op_sel_hi:[0,1]")
    p(f"v_pk_fma_f32 {vr(c,2)}, {vr(a,2)}, {vr(b,2)}, {vr(c,2)} op_sel:[1,1,0] op_sel_hi:[1,0,1] neg_lo:[0,1,0]")
def kgen(p, P, side=(), early=()):
    E = lambda k, mu: 48 + 4 * (k - 1) + 2 * mu
    E8 = lambda mu: 76 + 2 * mu
    E128 = lambda mu: 80 + 2 * mu
    GA = lambda par, mu: 84 + 4 * par + 2 * mu
    XT = lambda k, mu: 92 + 4 * (k % 2) + 2 * mu
    PK = lambda k: 100 + 2 * (k % 4)
    FB = 108; FA = 140; DT = 172
    t = 40; side = list(side); early = list(early)
    p(f"v_lshlrev_b32 v{t+6}, 16, v{P+4}")
    exp_bf16(p, t + 7, t + 6, t)
    p.need([vr(P, 6)])
    if early: p.extend(early.pop(0))
    rho = lambda mu: 92 + mu; th = lambda mu: 94 + mu
    p(f"v_add_f32 v{t+4}, v{t+7}, v{t+7}")
    for mu in range(2):
        up = (lambda d, s_: f"v_lshlrev_b32 v{d}, 16, v{s_}") if mu == 0 else (lambda d, s_: f"v_and_b32 v{d}, s89, v{s_}")
        p(up(t + 6, P))
        exp_bf16(p, t + 5, t + 6, t)
        p(f"v_mul_f32 v{t+5}, v{t+5}, v{t+7}\n v_mul_f32 v{rho(mu)}, s86, v{t+5}")
        p(up(t + 6, P + 1))
        p(f"v_mul_f32 v{t+6}, v{t+6}, v{t+7}\n v_mul_f32 v{th(mu)}, 0.15915494, v{t+6}")
        p(up(t + 5, P + 2)); p(up(t + 6, P + 3))
        p(f"v_mul_f32 v{GA(0,mu)}, v{t+5}, v{t+4}\n v_mul_f32 v{GA(0,mu)+1}, v{t+6}, v{t+4}")
    for pw, dst in ((8, E8), (1, lambda mu: E(1, mu)), (128, E128)):
        for mu in range(2):
            p(f"v_mul_f32 v{t+2*mu}, {f2u(-float(pw)):#x}, v{rho(mu)}\n v_mul_f32 v{t+2*mu+1}, {f2u(float(pw)):#x}, v{th(mu)}")
        for mu in range(2): p(f"v_exp_f32 v{t+2*mu}, v{t+2*mu}\n v_fract_f32 v{t+2*mu+1}, v{t+2*mu+1}")
        for mu in range(2): p(f"v_cos_f32 v{dst(mu)}, v{t+2*mu+1}\n v_sin_f32 v{dst(mu)+1}, v{t+2*mu+1}")
        for mu in range(2): p(f"v_pk_mul_f32 {vr(dst(mu),2)}, {vr(dst(mu),2)}, {vr(t+2*mu,2)} op_sel_hi:[1,0]")
    cnt = [0]; SIDE0 = opt('side0', 36); SIDEN = opt('siden', 2)
    def put(row, src, neg=False):
        k = cnt[0]; cnt[0] += 1
        for mu in range(2):
            a = src(mu)
            p(f"v_cvt_pk_bf16_f32 v{PK(k)+mu}, v{a}, {'-' if neg else ''}v{a+1}")
        p(f"ds_write_b64 v{A_SW}, {vr(PK(k),2)} offset:{row*SRS}")
        if early and k % opt('earlyn', 3) == 0: p.extend(early.pop(0))
        if side and k >= SIDE0 and (k - SIDE0) % SIDEN == 0: p.extend(side.pop(0))
    p(f"v_mov_b32 v{PK(3)}, 0x3f80\n v_mov_b32 v{PK(3)+1}, 0x3f80\n ds_write_b64 v{A_SW}, {vr(PK(3),2)}")
    put(1, E8, True)
    prev = E8
    for b in range(2, 16):
        cur = (lambda bb: (lambda mu: XT(bb, mu)))(b)
        for mu in range(2): cmul(p, cur(mu), prev(mu), E8(mu))
        put(b, cur, True); prev = cur
    for ka in range(8): p(f"ds_read_b128 {vr(FB+4*ka,4)}, v{A_SR} offset:{64*ka}")
    for k in range(2, 8):
        for mu in range(2): cmul(p, E(k, mu), E(k - 1, mu), E(1, mu))
    al = [0]
    def Gcur(mu): return GA(al[0] % 2, mu)
    def Gnext():
        for mu in range(2): cmul(p, GA((al[0] + 1) % 2, mu), GA(al[0] % 2, mu), E128(mu))
        al[0] += 1
    def prod(row, k):
        if k == 0: put(row, Gcur); return
        for mu in range(2): cmul(p, XT(row, mu), Gcur(mu), E(k, mu))
        put(row, lambda mu: XT(row, mu))
    def tile(T):
        for ka in range(8): p(f"ds_read_b128 {vr(FA+4*ka,4)}, v{A_SR} offset:{64*ka}")
        return [f"v_mfma_f32_16x16x32_bf16 {vr(DT+4*T,4)}, {vr(FA+4*ka,4)}, {vr(FB+4*ka,4)}, {'0' if ka == 0 else vr(DT+4*T,4)}" for ka in range(8)]
    for a in range(2):
        for g in range(8): prod(8 * a + g, g)
        Gnext()
    mm = tile(0)
    for a in range(2):
        for g in range(4): prod(4 * a + g, 2 * g)
        Gnext()
        if a == 0:
            for x in mm: p(x)
    for a in range(4):
        for g in range(2): prod(8 + 2 * a + g, 4 * g)
        Gnext()
    mm = tile(1)
    for a in range(9):
        prod(a, 0)
        if a < 8: Gnext()
        if a == 3:
            for x in mm: p(x)
    for b_ in side: p.extend(b_)
    mm = tile(2)
    p(f"""v_cmp_eq_u32 vcc, 0, v{BL}
    v_lshlrev_b32 v{t}, 16, v{P+5}
    v_cndmask_b32 v{t}, v{BZ}, v{t}, vcc
    v_add_f32 v{DT}, v{DT}, v{t}""")
    for q in range(8): p(f"v_cvt_pk_bf16_f32 v{DT+q}, v{DT+q}, v{DT+q}")
    p.need([vr(FA, 32)])
    p(mm[0]); p(f"ds_write_b128 v{A_T0}, {vr(DT,4)}")
    for x in mm[1:4]: p(x)
    p(f"ds_write_b64 v{A_T1}, {vr(DT+4,2)} offset:1024")
    for x in mm[4:6]: p(x)
    p(f"ds_write_b64 v{A_T1b}, {vr(DT+6,2)} offset:1024")
    for x in mm[6:]: p(x)
    R = FB
    p(f"""ds_read_b128 {vr(R+24,4)}, v{A_X0}
    ds_read_b128 {vr(R+28,4)}, v{A_X0} offset:16
    ds_read_b128 {vr(R+16,4)}, v{A_X1} offset:1024
    ds_read_b32 v{R+20}, v{A_X1} offset:{1024+16}""")
    for q in range(8, 12): p(f"v_cvt_pk_bf16_f32 v{DT+q}, v{DT+q}, v{DT+q}")
    for i in range(4): p(f"ds_write_b32 v{A_T2}, v{DT+8+i} offset:{2048+64*i}")
    p(f"""ds_read_b32 v{R+8}, v{A_X2} offset:{1536+8}
    ds_read_b32 v{R+9}, v{A_X2} offset:{1536+4}
    ds_read_b32 v{R+11}, v{A_X2} offset:{1536}""")
    for r in range(2):
        p(f"ds_read_b32 v{R+4*r}, v{A_X3} offset:{2048+256*r+4}")
        p(f"ds_read_b32 v{R+4*r+2}, v{A_X3} offset:{2048+256*r}\n ds_read_b32 v{R+4*r+3}, v{A_X3} offset:{2048+256*r}")
    p(f"""v_bfi_b32 v{R+12}, s85, v{R+20}, v{R+19}
    v_mov_b32 v{R+13}, v{R+18}
    v_bfi_b32 v{R+14}, s85, v{R+18}, v{R+17}
    v_mov_b32 v{R+15}, v{R+16}
    ds_write_b128 v{A_KW32}, {vr(R+12,4)} offset:3072
    v_bfi_b32 v{R+16}, s85, v{R+31}, v{R+30}
    v_bfi_b32 v{R+17}, s85, v{R+29}, v{R+28}
    v_bfi_b32 v{R+18}, s85, v{R+27}, v{R+26}
    v_bfi_b32 v{R+19}, s85, v{R+25}, v{R+24}
    ds_write_b128 v{A_KW32}, {vr(R+16,4)} offset:3584
    v_bfi_b32 v{R+10}, s85, v{R+9}, v{R+11}
    ds_write_b128 v{A_KW}, {vr(R+8,4)} offset:2048""")
    for r in range(2):
        p(f"v_bfi_b32 v{R+4*r+1}, v{MSK}, v{R+4*r}, v{R+4*r+2}")
        p(f"ds_write_b128 v{A_KW}, {vr(R+4*r,4)} offset:{1024*(1-r)}")

def prefetch1():
    if not opt('pf1', 1): return []
    NG = opt('pfg', 2); B = []; p = Prog()
    p(f"""s_and_b32 s92, s2, 7
    s_lshr_b32 s93, s2, 3
    s_sub_u32 s93, s93, 16
    s_lshr_b32 s94, s92, 1
    s_lshl_b32 s94, s94, 2
    s_lshr_b32 s95, s93, 2
    s_add_u32 s94, s94, s95
    s_and_b32 s92, s92, 1
    s_lshl_b32 s92, s92, 2
    s_and_b32 s93, s93, 3
    s_add_u32 s92, s92, s93
    s_add_u32 s93, s94, s92
    s_mul_i32 s93, s93, 3""")
    srd(p, 96, P_W, 640 * 3840)
    p(f"""s_mul_i32 s92, s92, 160
    s_lshr_b32 s95, s68, 1
    s_add_u32 s95, s95, 1
    s_mul_i32 s95, s95, 1280
    s_add_u32 s92, s92, s95
    s_andn2_b32 s92, s92, 127
    s_and_b32 s95, s68, 1
    s_lshl_b32 s95, s95, 7
    s_add_u32 s92, s92, s95
    v_mul_u32_u24 v250, 3840, v{BL}
    v_mul_u32_u24 v251, 1280, v{BL}""")
    def g10(p, d, add):
        p(f"""s_add_u32 s{d}, s93, {add}
        s_mul_i32 s95, s{d}, 205
        s_lshr_b32 s95, s95, 11
        s_mul_i32 s95, s95, 10
        s_sub_u32 s{d}, s{d}, s95""")
    for k in range(1, NG + 1):
        g10(p, 100, k)
        p(f"s_mul_i32 s100, s100, {64*3840}\n s_add_u32 s100, s100, s92\n buffer_load_dword v254, v250, s[96:99], s100 offen {'nt' if opt('ntw', 0) else ''}")
        B.append(p); p = Prog()
    srd(p, 96, P_X, 2048 * 1280)
    p(f"""s_lshl_b32 s94, s94, 1
    s_and_b32 s95, s68, 1
    s_add_u32 s94, s94, s95
    s_mul_i32 s94, s94, {64*1280}
    s_lshr_b32 s95, s68, 1
    s_add_u32 s93, s93, s95""")
    for k in range(1, NG + 1, 2):
        g10(p, 100, k)
        p(f"s_lshl_b32 s100, s100, 7\n s_add_u32 s100, s100, s94\n buffer_load_dword v254, v251, s[96:99], s100 offen {'nt' if opt('ntx', 0) else ''}")
        B.append(p); p = Prog()
    return B
def prefetch2():
    if not opt('pf2', 1): return []
    a = Prog(); b = Prog()
    a(f"""s_lshr_b32 s92, s2, 3
    s_sub_u32 s92, s92, 16
    s_lshl_b32 s92, s92, 2
    s_add_u32 s92, s92, s68
    s_lshl_b32 s92, s92, 6
    v_add_u32 v250, s92, v{BL}
    v_mul_u32_u24 v251, 13108, v250
    v_lshrrev_b32 v251, 16, v251
    v_mul_u32_u24 v252, 5, v251
    v_sub_u32 v250, v250, v252
    v_mul_u32_u24 v252, 3840, v251
    v_lshl_add_u32 v252, v250, 7, v252
    s_and_b32 s93, s2, 1
    s_mul_i32 s94, s93, 640""")
    srd(a, 96, P_W, 640 * 3840)
    a("buffer_load_dword v254, v252, s[96:99], s94 offen")
    b(f"""s_lshl_b32 s94, s93, 9
    s_lshl_b32 s95, s93, 7
    s_add_u32 s95, s95, 1024
    v_lshlrev_b32 v252, 7, v250
    v_add_u32 v252, s94, v252
    v_mov_b32 v253, s95
    v_cmp_eq_u32 vcc, 4, v250
    v_mul_u32_u24 v251, 1280, v251
    v_cndmask_b32 v252, v252, v253, vcc
    v_add_u32 v252, v252, v251""")
    srd(b, 96, P_WO, 640 * 1280)
    b("buffer_load_dword v254, v252, s[96:99], 0 offen")
    return [a, b]

def role_B():
    p = Prog(); nstamp[0] = 0
    LN, L15, G, Z = BL, B15, BG, BZ
    p("roleB:")
    stamp(p)
    p("""s_and_b32 s69, s2, 7
    s_mul_i32 s69, s69, 10
    s_lshr_b32 s70, s2, 3
    s_sub_u32 s70, s70, 16
    s_add_u32 s69, s69, s70""")
    kg_lanes(p)
    p(f"s_lshl_b32 s71, s69, 3\n s_add_u32 s71, s71, s68")
    kg_params(p, 's71', PR)
    pf = prefetch1()[:opt('pfb', 3)]; NOW = opt('pfnow', 1)
    for b in pf[:NOW]: p.extend(b)
    p("s_lshl_b32 s80, s69, 4")
    srd(p, S_U, P_U, 0, 's80')
    p(f"""s_sub_u32 s{S_U+2}, {2048*1280}, s80
    v_mul_u32_u24 v6, 1280, v{LN}
    s_mul_i32 s90, s70, 3
    s_lshl_b32 s81, s68, 3
    s_add_u32 s90, s90, s81""")
    raw = []
    for i in range(8):
        q = Prog()
        q(f"""s_add_u32 s81, s90, {i}
        s_and_b32 s81, s81, 31
        s_mul_i32 s82, s81, {64*1280}
        s_lshl_b32 s81, s81, 10
        s_add_u32 m0, s81, {B_RAW+256}""")
        q(f"buffer_load_dwordx4 v6, {sr(S_U,4)}, s82 offen {'nt' if opt('ntu', 0) else ''} lds", tag='raw')
        raw.append(q)
    p(f"s_lshl_b32 s80, s69, 4\n s_add_u32 s80, s80, 1280")
    srd(p, S_O, P_OUT, 0, 's80')
    p(f"s_sub_u32 s{S_O+2}, {2048*2560}, s80")
    srd(p, S_WSB, P_WS, WS_SIZE)
    kg_setup(p, B_KR, B_SC)
    t = 40
    p(f"""v_mov_b32 v20, 0
    v_mov_b32 v21, 0
    v_mov_b32 v22, 0
    v_mov_b32 v23, 0
    v_lshlrev_b32 v{t}, 4, v{L15}
    ds_write_b128 v{t}, v[20:23] offset:{B_RAW}
    v_and_b32 v{t}, 31, v0
    v_lshl_add_u32 v38, v{t}, 4, s83
    ds_write_b128 v38, v[20:23] offset:4096
    v_lshlrev_b32 v{t+1}, 5, v{L15}
    v_sub_u32 v{A_KB}, s83, v{t+1}
    v_lshl_add_u32 v{A_KB}, v{G}, 4, v{A_KB}
    v_add_u32 v{A_KB}, 480, v{A_KB}""")
    stamp(p)
    kgen(p, PR, prefetch2() + raw, pf[NOW:])
    stamp(p)
    Y = 184; UB = 216
    p(f"""v_bfe_u32 v{t}, v0, 2, 2
    v_lshl_add_u32 v{t}, v{G}, 3, v{t}
    v_bfe_u32 v{t+1}, v0, 1, 1
    v_lshl_add_u32 v{t}, v{t+1}, 2, v{t}
    v_lshlrev_b32 v{t}, 4, v{t}
    v_and_b32 v{t+1}, 1, v0
    v_lshl_add_u32 v{t}, v{t+1}, 3, v{t}
    s_lshl_b32 s80, s68, 9
    v_add_u32 v{t}, s80, v{t}
    v_and_b32 v{t+1}, 7, v0
    v_mul_u32_u24 v{t+1}, {2*CP}, v{t+1}
    v_bfe_u32 v{t+2}, v0, 3, 1
    v_lshl_add_u32 v{t+1}, v{t+2}, 3, v{t+1}
    v_lshl_add_u32 v{t+1}, v{G}, 4, v{t+1}
    s_lshl_b32 s80, s68, 6
    s_add_u32 s80, s80, {B_UC}
    v_add_u32 v{t+1}, s80, v{t+1}
    s_cmp_eq_u32 s68, 0
    s_cselect_b32 s80, 2, 0
    v_cmp_gt_u32 vcc, s80, v{G}
    v_mov_b32 v{t+2}, {B_END - 4096}
    s_mul_i32 s81, s68, {2*CP}
    v_cndmask_b32 v{t+3}, v{t+2}, v{t+1}, vcc
    s_add_u32 s81, s81, {B_UC}
    v_and_b32 v{t+4}, 1, v0
    v_mul_u32_u24 v{t+4}, {CP}, v{t+4}
    v_lshrrev_b32 v{t+5}, 1, v{L15}
    v_lshl_add_u32 v{t+5}, v{G}, 2, v{t+5}
    v_lshl_add_u32 v{t+4}, v{t+5}, 2, v{t+4}
    v_add_u32 v{UB}, s81, v{t+4}
    v_add_u32 v{UB+1}, 1024, v{UB}
    v_add_u32 v{UB+2}, 2048, v{UB}
    v_add_u32 v{UB+3}, 3072, v{UB}
    s_mul_i32 s80, s68, {YP}
    v_lshlrev_b32 v{t+4}, 5, v{L15}
    v_lshl_add_u32 v{t+4}, v{G}, 3, v{t+4}
    v_add_u32 v{UB+4}, s80, v{t+4}
    s_lshl_b32 s90, s69, 2
    s_add_u32 s90, s90, s68
    s_lshl_b32 s91, s90, 12
    s_add_u32 s91, s91, {WS_KR}
    s_lshl_b32 s90, s90, 7
    s_add_u32 s90, s90, {WS_KF}
    s_sub_u32 s92, s84, s83
    v_lshlrev_b32 v39, 4, v{LN}
    v_add_u32 v38, s92, v38""")
    srd(p, S_LA, P_DBG, 256)
    p.waitvm('raw'); p("s_waitcnt lgkmcnt(0)\n s_barrier")
    stamp(p)
    p(f"ds_write_b128 v38, v[20:23] offset:4096")
    jobs = [(k, pp) for k in range(17) for pp in range(2)]
    NBUF = 8
    def rdj(n):
        k, pp = jobs[n]; p(f"ds_read_b64_tr_b16 {vr(48+2*(n%NBUF),2)}, v{t} offset:{B_RAW + 16*(1+pp) + 2048*k}")
    def wrj(n):
        k, pp = jobs[n]
        p(f"ds_write_b64 v{t+3 if k == 16 else t+1}, {vr(48+2*(n%NBUF),2)} offset:{pp*CP + 256*k}")
    for n in range(NBUF): rdj(n)
    for n in range(len(jobs)):
        wrj(n)
        if n + NBUF < len(jobs): rdj(n + NBUF)
    def fa(b, a): return ar((b % 2) * 64 + 4 * a, 4)
    def fb(b, c): return ar((b % 2) * 64 + 32 + 4 * c, 4)
    def reads(b, kind='ku'):
        q = Prog()
        for a in range(8):
            o = 128 * (a % 2) + 16 * b; r0 = (b % 2) * 64 + 4 * a
            if 'k' in kind: q(f"ds_read_b128 {fb(b,a)}, v{A_KB} offset:{512*(7-a)+64*b}")
            if 'u' in kind:
                q(f"ds_read2_b32 {ar(r0,2)}, v{UB+a//2} offset0:{o} offset1:{o+1}")
                q(f"ds_read2_b32 {ar(r0+2,2)}, v{UB+a//2} offset0:{o+2} offset1:{o+3}")
        return q
    def krdma(tag):
        for i in range(4):
            p(f"s_add_u32 m0, s84, {1024*i}\n s_nop 0\n buffer_load_dwordx4 v39, {sr(S_WSB,4)}, s91 offen sc1 lds\n s_add_u32 s91, s91, 1024", tag=tag)
    p("s_mov_b32 s93, 0\n s_mov_b32 s95, 0\n s_waitcnt lgkmcnt(0)\n s_barrier")
    stamp(p)
    p("b_conv:")
    p.extend(reads(0))
    prs = sorted([(a, c) for c in range(8) for a in range(c + 1)], key=lambda x: (max(x[0], x[1] - x[0]), x[1]))
    EB = opt('eb', 5)
    for b in range(8):
        m = Prog(); seen = set(); lvl = -1
        for a, c in prs:
            first = b == 0 and c not in seen; seen.add(c)
            if max(a, c - a) != lvl and (b == 0 or max(a, c - a) in (0, 4)):
                lvl = max(a, c - a); hi = lvl if b == 0 else lvl + 3
                m.need([fa(b, x) for x in range(lvl, hi + 1)] + [fb(b, x) for x in range(lvl, hi + 1)])
            mfma(m, vr(Y + 4 * c, 4), fa(b, a), fb(b, c - a), '0' if first else None)
        if b == EB - 2: p(f"buffer_load_dword v6, v{Z}, {sr(S_LA,4)}, 0 offen sc1")
        if b == EB:
            p.need(['v6']); p(f"buffer_load_dword v7, v{Z}, {sr(S_WSB,4)}, s90 offen sc1")
        if b == EB + 1:
            p(f"""v_readfirstlane_b32 s80, v6
            v_readfirstlane_b32 s81, v7
            s_cmp_lt_u32 s80, {NZERO_WG}
            s_cselect_b32 s81, 0, s81
            s_cmp_lg_u32 s93, 0
            s_cselect_b32 s81, 0, s81
            s_cmp_eq_u32 s81, 0""")
            p("s_cbranch_scc1 b_noearly", tag='keep')
            krdma('offpath')
            p("s_mov_b32 s95, 1", tag='offpath')
            p("b_noearly:")
        p.extend(pack(m, [(singles(reads(b + 1)), 2, 30)] if b < 7 else [], cap=4))
    for c in range(8):
        d = 40 + 2 * (c % 4)
        p(f"v_cvt_pk_bf16_f32 v{d}, v{Y+4*c}, v{Y+4*c+1}\n v_cvt_pk_bf16_f32 v{d+1}, v{Y+4*c+2}, v{Y+4*c+3}")
        p(f"ds_write_b64 v{UB+4}, {vr(d,2)} offset:{B_RAW+512*c}")
    p("s_cmp_lg_u32 s93, 0")
    p("s_cbranch_scc1 b_fin")
    stamp(p)
    p(f"""s_mov_b32 s93, 1
    v_add_u32 v{A_KB}, s92, v{A_KB}""")
    for k in range(4): p(f"v_add_u32 v{UB+k}, {8*CP}, v{UB+k}")
    p(f"v_add_u32 v{UB+4}, {4*YP}, v{UB+4}\n s_cmp_eq_u32 s95, 1")
    p("s_cbranch_scc1 b_have")
    p(f"s_mov_b32 s94, {SPIN}")
    p("b_poll:")
    p(f"""buffer_load_dword v6, v{Z}, {sr(S_LA,4)}, 0 offen sc1
    s_waitcnt vmcnt(0)
    buffer_load_dword v7, v{Z}, {sr(S_WSB,4)}, s90 offen sc1
    s_sub_u32 s94, s94, 1
    s_waitcnt vmcnt(0)
    v_readfirstlane_b32 s80, v6
    v_readfirstlane_b32 s81, v7
    s_cmp_eq_u32 s94, 0
    s_cbranch_scc1 b_got
    s_cmp_lt_u32 s80, {NZERO_WG}
    s_cselect_b32 s81, 0, s81
    s_cmp_eq_u32 s81, 0
    s_cbranch_scc1 b_poll""")
    p("b_got:")
    krdma(None)
    p("b_have:")
    p("s_waitcnt vmcnt(0)\n s_branch b_conv")
    p("b_fin:")
    stamp(p)
    p(f"""v_bfe_u32 v{t+8}, v0, 2, 2
    v_mul_u32_u24 v{t+8}, {YP}, v{t+8}
    v_and_b32 v{t+9}, 3, v0
    v_lshl_add_u32 v{t+8}, v{t+9}, 3, v{t+8}
    v_lshl_add_u32 v{t+8}, v{G}, 5, v{t+8}
    s_lshl_b32 s80, s68, 10
    v_add_u32 v{t+8}, s80, v{t+8}
    v_mul_u32_u24 v{t+9}, 2560, v{LN}
    s_mul_i32 s80, s68, {512*2560}""")
    p("s_waitcnt lgkmcnt(0)\n s_barrier")
    for it in range(8):
        for h in range(2):
            p(f"ds_read_b64_tr_b16 {vr(56+4*it+2*h,2)}, v{t+8} offset:{B_RAW + h*4*YP + 128*it}")
    for it in range(8):
        p(f"buffer_store_dwordx4 {vr(56+4*it,4)}, v{t+9}, {sr(S_O,4)}, s80 offen {OPT.get('bst', '')}")
        p(f"s_add_u32 s80, s80, {64*2560}")
    stamp(p)
    stamp_store(p, S_WSB)
    p("s_endpgm")
    return p

def role_S():
    p = Prog(); nstamp[0] = 32
    p("roleS:")
    p(f"""s_getpc_b64 s[40:41]
    cpf_here:
    s_sub_u32 s40, s40, cpf_here-{NAME}_kernel
    s_subb_u32 s41, s41, 0
    s_lshr_b32 s42, s2, 3
    s_and_b32 s42, s42, 1
    s_lshl_b32 s42, s42, 15
    v_lshlrev_b32 v8, 7, v0
    v_add_u32 v8, s42, v8
    v_cmp_gt_u32 vcc, code_end-{NAME}_kernel, v8
    v_cndmask_b32 v8, 0, v8, vcc
    global_load_dword v253, v8, s[40:41]""")
    if STAMP: p("v_mov_b32 v255, 0")
    stamp(p)
    p(f"s_sub_u32 s69, s2, 208")
    kg_lanes(p)
    p(f"""s_lshl_b32 s90, s69, 2
    s_add_u32 s90, s90, s68
    s_lshl_b32 s71, s69, 3
    s_add_u32 s71, s71, s68
    s_add_u32 s71, s71, 4""")
    kg_params(p, 's71', PR)
    p(f"s_add_u32 s71, s71, 384\n s_min_u32 s71, s71, 639")
    kg_params(p, 's71', PR + 6)
    pf = prefetch1()[:opt('pfs', 3)]; NOW = opt('pfnow', 1)
    for b in pf[:NOW]: p.extend(b)
    srd(p, S_U, P_WS, WS_ZERO_END)
    srd(p, S_O, P_DBG, 256)
    srd(p, S_WSB, P_WS, WS_SIZE)
    p(f"""s_lshl_b32 s70, s69, 12
    v_lshlrev_b32 v6, 4, v0
    v_mov_b32 v20, 0
    v_mov_b32 v21, 0
    v_mov_b32 v22, 0
    v_mov_b32 v23, 0
    buffer_store_dwordx4 v[20:23], v6, {sr(S_U,4)}, s70 offen sc1
    s_add_u32 s70, s70, {NSPARE*4096}
    buffer_store_dwordx4 v[20:23], v6, {sr(S_U,4)}, s70 offen sc1
    v_cmp_eq_u32 vcc, 0, v0
    v_mov_b32 v7, 1
    v_mov_b32 v38, {OOB:#x}
    v_cndmask_b32 v39, v38, v{BZ}, vcc""")
    kg_setup(p, S_KR, S_SC)
    p(f"""v_cmp_eq_u32 vcc, 0, v{BL}
    v_lshlrev_b32 v184, 4, v{BL}
    v_add_u32 v185, s83, v184
    v_cndmask_b32 v38, v38, v{BZ}, vcc
    s_waitcnt vmcnt(0)
    s_barrier
    buffer_atomic_add v7, v39, {sr(S_O,4)}, 0 offen sc1""")
    p("s_kloop:")
    kgen(p, PR, prefetch2(), pf[NOW:])
    for i in range(4): p(f"ds_read_b128 {vr(48+4*i,4)}, v185 offset:{1024*i}")
    p(f"s_mov_b32 s94, {SPIN}\n s_lshl_b32 s91, s90, 12\n s_add_u32 s91, s91, {WS_KR}")
    for i in range(4): p(f"buffer_store_dwordx4 {vr(48+4*i,4)}, v184, {sr(S_WSB,4)}, s91 offen offset:{1024*i} sc1")
    p("s_pz:")
    p(f"""buffer_load_dword v186, v{BZ}, {sr(S_O,4)}, 0 offen sc1
    s_sub_u32 s94, s94, 1
    s_waitcnt vmcnt(0)
    v_readfirstlane_b32 s95, v186
    s_cmp_eq_u32 s94, 0
    s_cbranch_scc1 s_pz_x
    s_cmp_ge_u32 s95, {NZERO_WG}
    s_cbranch_scc0 s_pz""")
    p("s_pz_x:")
    p(f"""s_lshl_b32 s91, s90, 7
    s_add_u32 s91, s91, {WS_KF}
    buffer_store_dword v7, v38, {sr(S_WSB,4)}, s91 offen sc1
    s_add_u32 s90, s90, 192""")
    for k in range(6): p(f"v_mov_b32 v{PR+k}, v{PR+6+k}")
    stamp(p)
    p("s_cmp_lt_u32 s90, 320\n s_cbranch_scc1 s_kloop")
    p("s_cmp_ge_u32 s2, 240")
    stamp(p)
    p("s_cbranch_scc1 s_done")
    srd(p, S_DBG, P_DBG, 256)
    p(f"""s_and_b32 s72, s2, 7
    s_lshr_b32 s69, s72, 1
    s_lshl_b32 s69, s69, 2
    s_lshr_b32 s73, s2, 3
    s_sub_u32 s73, s73, 26
    s_add_u32 s69, s69, s73
    s_and_b32 s83, s72, 1
    s_add_u32 s83, s83, 8
    s_lshl_b32 s83, s83, 7
    s_mul_i32 s84, s68, {GR}
    v_and_b32 v{LN}, 63, v0
    v_mov_b32 v{V_Z}, 0""")
    setup_g2(p)
    for i in range(5): unpark(p, f'wo{i}', V_XO + i)
    for G in range(15, 19):
        for b in issue_group(G): p.extend(b)
    p("s_waitcnt vmcnt(0)\n s_branch g2_tail")
    p("s_done:")
    if STAMP:
        stamp_store(p, S_WSB)
    p("done:\n s_endpgm\n code_end:")
    return p

def main():
    LDS = max(A_END + 16, B_END + 4608)
    assert LDS <= 163840, LDS
    ref = open(f"cdna_kernels/{NAME}.s.ref").read().split('\n')
    hdr = [l for l in ref if l.startswith(';') and '@launch' not in l]
    s = '\n'.join(hdr) + f"\n; @launch grid=(256,1,1) block=(256,1,1) lds={LDS}\n"
    s += f""".amdgcn_target "amdgcn-amd-amdhsa--gfx950"
.text
.globl {NAME}_kernel
.p2align 8
.type {NAME}_kernel,@function
{NAME}_kernel:
"""
    e = Prog()
    e(f"""s_cmp_ge_u32 s2, 256
    s_cbranch_scc1 done""")
    if opt('cpf2', 0):
        e(f"""s_getpc_b64 s[36:37]
        v_lshlrev_b32 v2, 7, v0
        s_cmp_ge_u32 s2, 128
        s_cselect_b32 s38, roleB-{NAME}_kernel, 0
        v_add_u32 v2, s38, v2
        v_min_u32 v2, code_end-{NAME}_kernel-64, v2
        global_load_dword v253, v2, s[36:37]""", tag='offpath')
    e(f"""
    s_load_dwordx16 s[8:23], s[0:1], 0
    s_load_dwordx8 s[24:31], s[0:1], 64
    s_load_dwordx4 s[32:35], s[0:1], 96
    v_lshrrev_b32 v1, 6, v0
    s_nop 0
    v_readfirstlane_b32 s68, v1
    s_cmp_ge_u32 s2, 208
    s_cbranch_scc1 roleS
    s_cmp_ge_u32 s2, 128
    s_cbranch_scc1 roleB""")
    a = role_A()
    e.extend(a)
    L = lower(e) + lower(role_B()) + lower(role_S())
    if opt('align', 1):
        L, nn, npro = align8(L, sizes_of(s + render(L)))
        print("align: nops", nn, "promoted", npro)
    s += render(L)
    s += f""".section .rodata,"a"
.p2align 6
.amdhsa_kernel {NAME}_kernel
  .amdhsa_next_free_vgpr 512
  .amdhsa_next_free_sgpr 102
  .amdhsa_accum_offset 256
  .amdhsa_group_segment_fixed_size 0
  .amdhsa_kernarg_size 112
  .amdhsa_user_sgpr_count 2
  .amdhsa_user_sgpr_kernarg_segment_ptr 1
  .amdhsa_system_sgpr_workgroup_id_x 1
.end_amdhsa_kernel
"""
    out = OPT.get('out', f"cdna_kernels/{NAME}.s")
    open(out, 'w').write(s)
    print("LDS", LDS, "A_END", A_END, "B_END", B_END, "lines", s.count('\n'))
main()
```

```python
import sys, struct
from gasm import Prog, finalize, merge, spread, singles, pack, bundles, lower, render, sizes_of, align8
NAME = "concat_heads__linear_kernel_hedgehog__ssm_conv_s4d__prompt"
OPT = dict(a.split('=') for a in sys.argv[1:] if '=' in a)
def opt(k, d): return type(d)(OPT.get(k, d))
STAMP = opt('stamp', 0)
ROT = opt('rot', 2)
def f2u(x): return struct.unpack('<I', struct.pack('<f', x))[0]
def vr(a, n): return f"v[{a}:{a+n-1}]" if n > 1 else f"v{a}"
def ar(a, n): return f"a[{a}:{a+n-1}]" if n > 1 else f"a{a}"
def sr(a, n): return f"s[{a}:{a+n-1}]" if n > 1 else f"s{a}"
def magic(d): return (2**32 + d - 1) // d

WS_KV = 0; WS_ZERO_END = 32 * 4096; WS_KVF = WS_ZERO_END; WS_KF = WS_KVF + 65536; WS_UF = WS_KF + 40960; WS_EP = WS_UF + 40960
WS_O = 262144; WS_STAMP = 4 << 20; WS_SIZE = 8 << 20
NSPARE = 48
NZERO_WG = 32
assert WS_EP + 128 <= WS_O
V_TOK = 253; V_CNT = 251
P_X, P_W, P_PHI, P_WO, P_U, P_LA, P_AI, P_CR, P_CI, P_LDT, P_DS, P_OUT, P_DBG, P_WS = [8 + 2 * i for i in range(14)]
OOB = 0x80000000
SPIN = 400000

def srd(p, s, ptr, size, off=None):
    if off is None:
        p(f"s_mov_b32 s{s}, s{ptr}\n s_mov_b32 s{s+1}, s{ptr+1}")
    else:
        p(f"s_add_u32 s{s}, s{ptr}, {off}\n s_addc_u32 s{s+1}, s{ptr+1}, 0")
    p(f"s_mov_b32 s{s+2}, {size}\n s_mov_b32 s{s+3}, 0x20000")

nstamp = [0]
def stamp(p, sreg_base=96):
    if not STAMP: return
    k = nstamp[0]; nstamp[0] += 1
    if k in (0, 32): p(f"s_getreg_b32 s36, hwreg(HW_REG_HW_ID)\n v_writelane_b32 v255, s36, 60\n s_getreg_b32 s36, hwreg(HW_REG_XCC_ID)\n v_writelane_b32 v255, s36, 59")
    if k == 0: p(f"s_memrealtime s[36:37]\n s_waitcnt lgkmcnt(0)\n v_writelane_b32 v255, s36, 62")
    p(f"s_memtime s[36:37]\n s_waitcnt lgkmcnt(0)\n v_writelane_b32 v255, s36, {k}")
def stamp_store(p, wsrd):
    if not STAMP: return
    p(f"s_waitcnt vmcnt(0)\n s_memtime s[36:37]\n s_waitcnt lgkmcnt(0)\n v_writelane_b32 v255, s36, 61\n s_memrealtime s[36:37]\n s_waitcnt lgkmcnt(0)\n v_writelane_b32 v255, s36, 63")
    p(f"""s_lshl_b32 s36, s2, 2
    s_add_u32 s36, s36, s68
    s_lshl_b32 s36, s36, 8
    s_add_u32 s36, s36, {WS_STAMP}
    v_and_b32 v254, 63, v0
    v_lshlrev_b32 v254, 2, v254
    buffer_store_dword v255, v254, {sr(wsrd,4)}, s36 offen""")

def token_load(p, wsrd, vz):
    p(f"s_mov_b32 s4, {WS_EP}\n buffer_load_dword v{V_TOK}, v{vz}, {sr(wsrd,4)}, s4 offen sc1")
def token_make(p):
    p(f"""s_mov_b32 s4, 0x9e3779b1
    v_mul_lo_u32 v{V_TOK}, v{V_TOK}, s4
    v_add_u32 v{V_TOK}, 0x7f4a7c15, v{V_TOK}""")
def token_seen(p, dsrd, vt):
    p(f"""v_cmp_eq_u32 vcc, 0, v0
    v_mov_b32 v{vt}, {OOB:#x}
    v_mov_b32 v{V_CNT}, 1
    v_cndmask_b32_e64 v{vt}, v{vt}, 0, vcc
    buffer_atomic_add v{V_CNT}, v{vt}, {sr(dsrd,4)}, 8 offen sc1""")
def spinpoll(p, name, srdreg, soff, vt, va, cmp, init, period=None):
    period = period or opt('period', 24)
    p(f"v_mov_b32 v{vt}, {init}" if init is not None else f"v_not_b32 v{vt}, v{V_TOK}", tag='offpath')
    p(f"{name}:")
    p(f"""buffer_load_dword v{vt}, v{va}, {sr(srdreg,4)}, {soff} offen sc1
    s_mov_b32 s95, {period}""", tag='offpath')
    p(f"{name}_i:")
    p(f"""{cmp}
    s_sub_u32 s94, s94, 1
    s_cbranch_scc1 {name}_x
    s_cmp_eq_u64 vcc, -1
    s_cbranch_scc1 {name}_x
    s_sub_u32 s95, s95, 1
    s_cbranch_scc0 {name}_i
    s_waitcnt vmcnt(24)
    s_branch {name}""", tag='offpath')
    p(f"{name}_x:")
def pollall(p, name, srdreg, soff, vt, va, slp=0):
    p(f"s_mov_b32 s94, {SPIN}")
    p(f"{name}:")
    p(f"""buffer_load_dword v{vt}, v{va}, {sr(srdreg,4)}, {soff} offen sc1
    s_sub_u32 s94, s94, 1
    s_waitcnt vmcnt(0)
    v_cmp_eq_u32 vcc, v{V_TOK}, v{vt}
    s_cmp_eq_u32 s94, 0""")
    p(f"s_cbranch_scc1 {name}_x", tag='keep')
    p(f"s_cmp_eq_u64 vcc, -1")
    if slp:
        p(f"s_cbranch_scc1 {name}_x", tag='keep')
        p(f"s_sleep {slp}\n s_branch {name}", tag='keep')
    else: p(f"s_cbranch_scc0 {name}", tag='keep')
    p(f"{name}_x:")

A_RING = 0; NSLOT = 16; GR = 5120
A_PHIK = NSLOT * GR; PHI_RS = 352
A_VST = A_PHIK + 128 * PHI_RS
A_BD = A_VST + 20480
A_END = A_BD + 12800
A_KVIMG = A_PHIK
S_X, S_W, S_WO, S_WS, S_OUT, S_DBG, S_PHI = 40, 44, 48, 52, 56, 60, 64
V_XO = 1
V_XD = 5
V_WD = 9
V_TA = 14
V_Z = 22; V_T = 23
V_WF = 32
V_KA = 112; V_VA = 152; V_PA = 192; V_X = 240
OLD = 'sc1' if opt('osc1', 0) else ''

def mfma(p, d, a, b, c=None):
    p(f"v_mfma_f32_16x16x32_bf16 {d}, {a}, {b}, {d if c is None else c}")
def mfma32(p, d, a, b, c=None):
    p(f"v_mfma_f32_32x32x16_bf16 {d}, {a}, {b}, {d if c is None else c}")

LN = V_T; t = V_T + 1
parked = {}
def park(p, name, v):
    if name not in parked: parked[name] = 204 + len(parked)
    assert parked[name] < 256
    p(f"v_accvgpr_write_b32 a{parked[name]}, v{v}")
def unpark(q, name, v): q(f"v_accvgpr_read_b32 v{v}, a{parked[name]}")

def trbase(p, d, rowk, rowrho, extra=0):
    p(f"""v_bfe_u32 v{t}, v0, 5, 1
    v_mul_u32_u24 v{t}, {rowk}, v{t}
    v_bfe_u32 v{t+1}, v0, 2, 2
    v_mul_u32_u24 v{t+1}, {rowrho}, v{t+1}
    v_bfe_u32 v{t+2}, v0, 4, 1
    v_lshl_add_u32 v{t}, v{t+2}, 5, v{t}
    v_and_b32 v{t+2}, 3, v0
    v_lshl_add_u32 v{t}, v{t+2}, 3, v{t}
    v_add_u32 v{d}, v{t}, v{t+1}""")
    if extra: p(f"v_add_u32 v{d}, {extra}, v{d}")

def setup_g2(p):
    srd(p, S_WO, P_WO, 640 * 1280)
    srd(p, S_WS, P_WS, WS_SIZE)
    p(f"s_mul_i32 s78, s69, {128*2560}\n s_add_u32 s78, s78, s83")
    srd(p, S_OUT, P_OUT, 0, 's78')
    p(f"s_sub_u32 s{S_OUT+2}, {2048*2560}, s78")
    p(f"""s_lshr_b32 s79, s68, 1
    s_mul_i32 s79, s79, {80*1280}
    s_add_u32 s79, s79, s83
    s_and_b32 s85, s68, 1
    s_mul_i32 s85, s85, 40
    s_lshl_b32 s78, s69, 2
    s_add_u32 s78, s78, s68
    s_mul_i32 s78, s78, 40960
    s_add_u32 s92, s78, {WS_O}""")
    for i in range(5):
        p(f"""v_lshrrev_b32 v{t}, 3, v{LN}
        v_add_u32 v{t}, s85, v{t}
        v_add_u32 v{t}, {8*i}, v{t}
        v_lshrrev_b32 v{t+1}, 4, v{t}
        v_and_b32 v{t+2}, 7, v{t}
        v_lshl_add_u32 v{t+1}, v{t+1}, 3, v{t+2}
        v_bfe_u32 v{t+2}, v{t}, 3, 1
        v_mad_u32_u24 v{t+2}, v{t+2}, 20, v{t+1}
        v_add_u32 v{t+3}, 20, v{t+2}
        v_cmp_le_u32 vcc, 20, v{t+1}
        v_cndmask_b32 v{t+2}, v{t+2}, v{t+3}, vcc
        v_mul_u32_u24 v{t+2}, 1280, v{t+2}
        v_bfe_u32 v{t}, v{t}, 1, 1
        v_lshlrev_b32 v{t}, 2, v{t}
        v_and_b32 v{t+1}, 7, v0
        v_xor_b32 v{t}, v{t}, v{t+1}
        v_lshl_add_u32 v{t}, v{t}, 4, v{t+2}""")
        park(p, f'wo{i}', t)
    trbase(p, t + 3, 8 * 128, 128)
    p(f"""v_bfe_u32 v{t}, v0, 3, 1
    v_lshl_add_u32 v{t+3}, v{t}, 6, v{t+3}""")
    park(p, 'two', t + 3)
    p(f"""s_add_u32 s78, s84, {A_VST}
    v_and_b32 v{t}, 31, v0
    v_mul_u32_u24 v{t}, 144, v{t}
    v_bfe_u32 v{t+1}, v0, 5, 1
    v_lshl_add_u32 v{t}, v{t+1}, 3, v{t}
    v_add_u32 v{t}, s78, v{t}""")
    park(p, 'outw', t)
    p(f"""v_lshrrev_b32 v{t}, 3, v{LN}
    v_and_b32 v{t+1}, 7, v0
    v_lshlrev_b32 v{t+1}, 4, v{t+1}
    v_mul_u32_u24 v{t+2}, 144, v{t}
    v_add3_u32 v{t+2}, v{t+2}, v{t+1}, s78
    v_mul_u32_u24 v{t}, 2560, v{t}
    v_add_u32 v{t}, v{t}, v{t+1}""")
    park(p, 'outr', t + 2); park(p, 'outg', t)

def dma_bundles(G, hdr, items):
    B = []
    hdr(items[0][0]); B.append(hdr)
    for k, (m0, ld) in enumerate(items):
        q = Prog(); q(ld, tag=('dma', G))
        if k + 1 < len(items): q(items[k + 1][0])
        B.append(q)
    return B
def issue_group(G):
    slotbase = A_RING + (G % 4) * 4 * GR
    h = Prog()
    if G < 10:
        h(f"s_mul_i32 s86, s80, {64*3840}\n s_add_u32 s86, s86, s82\n s_lshl_b32 s81, s80, 7")
        h(f"s_add_u32 s80, s80, 1\n s_cmp_eq_u32 s80, 10\n s_cselect_b32 s80, 0, s80")
        sd = S_W
    elif G < 15:
        h(f"""s_lshl_b32 s86, s71, 1
        s_add_u32 s86, s86, s68
        s_add_u32 s86, s86, {4*(G-10)}
        s_sub_u32 s74, s86, 20
        s_cmp_ge_u32 s86, 20
        s_cselect_b32 s86, s74, s86
        s_mul_i32 s86, s86, {32*3840}
        s_add_u32 s86, s86, s75""")
        sd = S_W
    else:
        h(f"s_add_u32 s86, s79, {(G%4)*160*1280}")
        sd = S_WO
    W = [(f"s_add_u32 m0, s84, {slotbase + 1024*i}", f"buffer_load_dwordx4 v{V_QD[i] if 10 <= G < 15 else (V_WD+i if G < 10 else V_XO+i)}, {sr(sd,4)}, s86 offen {'nt' if opt('ntw', 0) else ''} lds") for i in range(5)]
    if G < 10:
        X = [(f"s_add_u32 m0, s87, {(G%4)*4096 + 1024*r}", f"buffer_load_dwordx4 v{V_XD+r}, {sr(S_X,4)}, s81 offen {'nt' if opt('ntx', 0) else ''} lds") for r in range(4)]
        items = [W[0], X[0], W[1], X[1], W[2], X[2], W[3], X[3], W[4]]
    else: items = W
    return dma_bundles(G, h, items)
V_QD = [21, 29, 30, 31, 252]

OF = lambda n: 88 + 4 * n
G2ACC = 56
def gemm2_tail(p):
    F = V_WF
    p("g2_tail:")
    unpark(p, 'two', V_TA)
    p(f"""v_xor_b32 v{V_TA+1}, 64, v{V_TA}
    v_add_u32 v{V_TA+2}, {8*GR}, v{V_TA}
    v_add_u32 v{V_TA+3}, {8*GR}, v{V_TA+1}
    v_lshlrev_b32 v{t+2}, 4, v{LN}
    v_lshrrev_b32 v{t+4}, 3, v{LN}
    v_mul_u32_u24 v{t+4}, 5120, v{t+4}
    v_and_b32 v{t}, 7, v0
    v_lshl_add_u32 v{t+4}, v{t}, 7, v{t+4}
    s_mov_b32 s94, {SPIN*8}
    s_add_u32 s93, s92, 4096
    s_barrier""")
    unpark(p, 'outw', t); unpark(p, 'outr', t + 1); unpark(p, 'outg', t + 3)
    stamp(p)
    def reads(n):
        hq, pp = divmod(n, 5); q = Prog(); fb = F + (n % 3) * 8
        off = hq * 10240 + pp * 2048; hi = 0
        if hq >= 4: off -= 8 * GR; hi = 2
        for T in range(2):
            for h in range(2):
                q(f"ds_read_b64_tr_b16 {vr(fb+4*T+2*h,2)}, v{V_TA+hi+T} offset:{off + 512*h}")
        return q
    p("g2_retry:")
    p.extend(reads(0)); p.extend(reads(1))
    p(f"s_mov_b32 s81, s92\n v_mov_b32 v248, 0")
    p("g2_poll:")
    p(f"""buffer_load_dword v249, v{t+4}, {sr(S_WS,4)}, s93 offen sc1
    s_sub_u32 s94, s94, 1
    s_waitcnt vmcnt(0)
    v_cmp_ne_u32 vcc, -1, v249
    s_cmp_lt_i32 s94, 1""")
    p("s_cbranch_scc1 g2_go", tag='keep')
    p("s_cmp_eq_u64 vcc, -1")
    p("s_cbranch_scc0 g2_poll", tag='keep')
    p("g2_go:")
    stamp(p)
    def oload(n):
        q = Prog(); hq, pp = divmod(n, 5)
        if pp == 4: q(f"s_add_u32 s85, s81, 4096")
        q(f"buffer_load_dwordx4 {vr(OF(n),4)}, v{t+2}, {sr(S_WS,4)}, {'s85' if pp == 4 else 's81'} offen offset:{1024*(pp%4)} sc1")
        if pp == 4: q("s_add_u32 s81, s81, 5120")
        return q
    PRE = opt('opre', 10)
    for n in range(PRE): p.extend(oload(n))
    for n in range(40):
        fb = F + (n % 3) * 8
        mm = Prog(); mm.need([vr(fb, 8), vr(OF(n), 4)])
        for T in range(2): mfma32(mm, vr(G2ACC + 16 * T, 16), vr(fb + 4 * T, 4), vr(OF(n), 4), '0' if n == 0 else None)
        st = []
        if n + 2 < 40: st.append((singles(reads(n + 2)), 0, 2))
        if n + PRE < 40: st.append(([oload(n + PRE)], 0, 1))
        c = Prog(); c(f"v_max3_u32 v248, v248, v{OF(n)}, v{OF(n)+1}\n v_max3_u32 v248, v248, v{OF(n)+2}, v{OF(n)+3}")
        st.append((singles(c), 1, 2))
        p.extend(pack(mm, st, cap=32))
    p(f"""v_cmp_eq_u32 vcc, -1, v248
    s_mul_i32 s78, s68, {32*2560}
    s_cmp_lt_i32 s94, 1""")
    p("s_cbranch_scc1 g2_out", tag='keep')
    p("s_sub_u32 s94, s94, 1\n s_nop 7\n s_nop 7")
    p("s_cbranch_vccnz g2_retry", tag='keep')
    p("g2_out:")
    stamp(p)
    for T in range(2):
        for j in range(4):
            x = G2ACC + 16 * T + 4 * j; o = 88 + 8 * T + 2 * j
            p(f"v_cvt_pk_bf16_f32 v{o}, v{x}, v{x+1}\n v_cvt_pk_bf16_f32 v{o+1}, v{x+2}, v{x+3}")
            p(f"ds_write_b64 v{t}, {vr(o,2)} offset:{64*T+16*j}")
    for i in range(4): p(f"ds_read_b128 {vr(104+4*i,4)}, v{t+1} offset:{8*144*i}")
    for i in range(4):
        p(f"buffer_store_dwordx4 {vr(104+4*i,4)}, v{t+3}, {sr(S_OUT,4)}, s78 offen {OPT.get('ast', '')}")
        if i < 3: p(f"s_add_u32 s78, s78, {8*2560}")
    stamp(p)
    stamp_store(p, S_WS)
    p("s_endpgm")

def divc(p, d, x, c):
    m, sh = {10: (205, 11), 20: (205, 12), 12: (171, 11), 5: (205, 10), 100: (41, 12)}[c]
    p(f"v_mul_u32_u24 v{d}, {m}, v{x}\n v_lshrrev_b32 v{d}, {sh}, v{d}")

V_PO = 160
V_D = 200
XM = opt('xm', 0)
def decode_ab(p, tmp, sub, sb, hg):
    p(f"s_lshr_b32 {tmp}, s2, 3")
    if sub: p(f"s_sub_u32 {tmp}, {tmp}, {sub}")
    if XM == 0:
        p(f"""s_and_b32 s{sb}, s2, 6
        s_lshl_b32 s{sb}, s{sb}, 1
        s_and_b32 s{hg}, s2, 1
        s_lshl_b32 s{hg}, s{hg}, 2
        s_and_b32 s4, {tmp}, 3
        s_add_u32 s{hg}, s{hg}, s4
        s_lshr_b32 {tmp}, {tmp}, 2
        s_add_u32 s{sb}, s{sb}, {tmp}""")
    else:
        p(f"""s_and_b32 s{sb}, s2, 7
        s_lshl_b32 s{sb}, s{sb}, 1
        s_and_b32 s{hg}, {tmp}, 7
        s_lshr_b32 {tmp}, {tmp}, 3
        s_add_u32 s{sb}, s{sb}, {tmp}""")
def role_A():
    p = Prog(); nstamp[0] = 0
    p("roleA:")
    stamp(p)
    decode_ab(p, 's73', 0, 69, 70)
    if ROT == 2:
        p("""s_add_u32 s71, s69, s70
        s_mul_i32 s71, s71, 3
        s_mul_i32 s74, s71, 205
        s_lshr_b32 s74, s74, 11
        s_mul_i32 s74, s74, 10
        s_sub_u32 s71, s71, s74""")
    else:
        p(f"s_mul_i32 s71, s71, {5 if ROT else 0}\n s_add_u32 s71, s71, {1 if ROT else 0}\n s_lshr_b32 s71, s71, 1")
    p(f"""v_and_b32 v{LN}, 63, v0
    v_mov_b32 v{V_Z}, 0""")
    p(f"""s_lshl_b32 s76, s68, 5
    v_lshrrev_b32 v{t}, 3, v{LN}
    v_add_u32 v{t}, s76, v{t}
    v_mul_u32_u24 v{t}, 1280, v{t}
    v_and_b32 v{t+1}, 7, v0
    v_bfe_u32 v{t+2}, v0, 4, 2
    v_xor_b32 v{t+1}, v{t+1}, v{t+2}
    v_lshl_add_u32 v{V_XD}, v{t+1}, 4, v{t}
    v_xor_b32 v{V_XD+1}, 64, v{V_XD}
    v_add_u32 v{V_XD+1}, {8*1280}, v{V_XD+1}
    v_add_u32 v{V_XD+2}, {16*1280}, v{V_XD}
    v_add_u32 v{V_XD+3}, {16*1280}, v{V_XD+1}""")
    p(f"s_movk_i32 s78, 1120")
    for i in range(5):
        p(f"v_add_u32 v{t}, {64*i}, v{LN}")
        divc(p, t + 1, t, 20)
        p(f"""v_mul_u32_u24 v{t+2}, 20, v{t+1}
        v_sub_u32 v{t}, v{t}, v{t+2}
        v_mul_u32_u24 v{t+1}, 3840, v{t+1}
        v_cmp_le_u32 vcc, 10, v{t}
        v_lshl_add_u32 v{t+1}, v{t}, 4, v{t+1}
        v_add_u32 v{t+2}, s78, v{t+1}
        v_cndmask_b32 v{V_WD+i}, v{t+1}, v{t+2}, vcc""")
    p(f"""s_mov_b32 s80, s71
    s_mul_i32 s75, s70, 160
    s_mul_i32 s82, s68, {16*3840}
    s_add_u32 s82, s82, s75
    s_add_u32 s82, s82, 1280
    s_lshl_b32 s83, s70, 7
    s_mul_i32 s84, s68, {GR}
    s_lshl_b32 s87, s68, 14
    s_add_u32 s87, s87, {A_PHIK}
    s_mul_i32 s78, s69, {128*1280}""")
    srd(p, S_X, P_X, 128 * 1280, 's78')
    srd(p, S_W, P_W, 640 * 3840)
    su = Prog()
    trbase(su, V_TA, 8 * 320, 320)
    su(f"""v_add_u32 v{V_TA+1}, {8*GR}, v{V_TA}
    v_and_b32 v{t}, 31, v0
    v_bfe_u32 v{t+1}, v0, 1, 3
    v_bfe_u32 v{t+2}, v0, 5, 1
    v_xor_b32 v{t+1}, v{t+1}, v{t+2}
    v_lshlrev_b32 v{t+1}, 4, v{t+1}
    v_lshl_add_u32 v{t}, v{t}, 7, v{t+1}
    v_add_u32 v{V_XO}, s87, v{t}
    v_xor_b32 v{V_XO+1}, 32, v{V_XO}
    v_xor_b32 v{V_XO+2}, 64, v{V_XO}
    v_xor_b32 v{V_XO+3}, 96, v{V_XO}""")
    su(f"""v_mov_b32 v{V_X+4}, 0
    v_mov_b32 v{V_X+5}, 0
    v_mov_b32 v{V_X+6}, 0
    v_mov_b32 v{V_X+7}, 0
    v_lshlrev_b32 v{t}, 4, v0
    v_add_u32 v{t}, {A_BD}, v{t}
    v_min_u32 v{t+1}, {A_BD+496}, v{t}
    ds_write_b128 v{t}, {vr(V_X+4,4)}
    ds_write_b128 v{t}, {vr(V_X+4,4)} offset:4096
    ds_write_b128 v{t}, {vr(V_X+4,4)} offset:8192
    ds_write_b128 v{t+1}, {vr(V_X+4,4)} offset:12288""")
    L2E = 1.4426950408889634
    su(f"s_mov_b32 s88, {f2u(L2E):#x}\n s_mov_b32 s89, {f2u(L2E):#x}")
    for r in range(2):
        su(f"v_add_u32 v{t}, {256*r}, v0")
        divc(su, t + 1, t, 5); divc(su, t + 2, t, 100)
        su(f"""v_mul_u32_u24 v{t+1}, 120, v{t+1}
        v_mad_u32_u24 v{t+1}, v{t+2}, 40, v{t+1}
        v_lshl_add_u32 v{t+1}, v{t}, 3, v{t+1}
        v_add_u32 v{V_X+8+r}, {A_BD}, v{t+1}""")
    su(f"""v_mov_b32 v{t+1}, {A_END}
    v_cmp_gt_u32 vcc, 400, v{t}
    v_cndmask_b32 v{V_X+9}, v{t+1}, v{V_X+9}, vcc""")
    srd(su, S_DBG, P_DBG, 256)
    for i in range(5):
        su(f"v_add_u32 v{t}, {64*i}, v{LN}")
        divc(su, t + 1, t, 10)
        su(f"""v_mul_u32_u24 v{t+2}, 10, v{t+1}
        v_sub_u32 v{t}, v{t}, v{t+2}
        v_and_b32 v{t+2}, 24, v{t+1}
        v_and_b32 v{t+3}, 1, v{t+1}
        v_lshl_add_u32 v{t+2}, v{t+3}, 2, v{t+2}
        v_bfe_u32 v{t+3}, v{t+1}, 1, 2
        v_add_u32 v{t+2}, v{t+2}, v{t+3}
        v_mul_u32_u24 v{t+2}, 3840, v{t+2}
        v_lshl_add_u32 v{V_QD[i]}, v{t}, 4, v{t+2}""")
    su(f"""v_bfe_u32 v{t}, v0, 5, 1
    v_bfe_u32 v{t+1}, v0, 2, 2
    v_lshl_add_u32 v{t}, v{t}, 2, v{t+1}
    v_mul_u32_u24 v{t}, 160, v{t}
    v_and_b32 v{t+1}, 1, v0
    v_mad_u32_u24 v{t}, v{t+1}, 40, v{t}
    v_bfe_u32 v{t+1}, v0, 4, 1
    v_bfe_u32 v{t+2}, v0, 1, 1
    v_lshl_add_u32 v{t+1}, v{t+1}, 1, v{t+2}
    v_lshl_add_u32 v{t}, v{t+1}, 3, v{t}
    v_add_u32 v18, {A_BD}, v{t}
    v_cmp_eq_u32 vcc, 0, v{t+1}
    v_add_u32 v19, 32, v18
    v_add_u32 v{t+2}, 72, v18
    v_cndmask_b32 v19, v{t+2}, v19, vcc
    v_cmp_gt_u32 vcc, 2, v{t+1}
    v_add_u32 v20, 104, v18
    v_nop
    v_cndmask_b32 v20, v18, v20, vcc""".replace("    v_nop\n", ""))
    trbase(su, t + 3, 8 * 160, 320); park(su, 'tq', t + 3)
    su(f"""v_and_b32 v{t}, 31, v0
    v_add_u32 v{t}, s76, v{t}
    v_bfe_u32 v{t+1}, v0, 5, 1
    v_mul_u32_u24 v{t+2}, {PHI_RS}, v{t}
    v_mul_u32_u24 v{t+3}, 80, v{t+1}
    v_add_u32 v{t+2}, v{t+2}, v{t+3}
    v_add_u32 v{t+2}, {A_PHIK}, v{t+2}
    v_mul_u32_u24 v{t}, 160, v{t}
    v_lshl_add_u32 v{t}, v{t+1}, 3, v{t}
    v_add_u32 v{t}, {A_VST}, v{t}""")
    park(su, 'phiw', t + 2); park(su, 'vw', t)
    su(f"""v_bfe_u32 v{t}, v0, 2, 4
    v_and_b32 v{t+1}, 3, v0
    v_mul_u32_u24 v{t+2}, {PHI_RS}, v{t}
    v_lshl_add_u32 v{t+2}, v{t+1}, 3, v{t+2}
    s_mul_i32 s78, s68, 80
    s_add_u32 s78, s78, {A_PHIK}
    v_add_u32 v{t+2}, s78, v{t+2}
    s_mul_i32 s78, s68, 40
    s_add_u32 s78, s78, {A_VST}
    v_mul_u32_u24 v{t}, 160, v{t}
    v_add_u32 v{t}, s78, v{t}
    v_lshl_add_u32 v{t+1}, v{t+1}, 3, v{t}
    v_add_u32 v{t}, 32, v{t}""")
    park(su, 'phir', t + 2); park(su, 'vr0', t + 1); park(su, 'vr1', t)
    a0 = V_PA
    su(f"""v_and_b32 v{t+3}, 15, v0
    v_bfe_u32 v{t+4}, v0, 4, 2
    v_cmp_gt_u32 s[90:91], 8, v{t+3}
    v_lshlrev_b32 v{t}, 2, v{t+3}
    v_mul_u32_u24 v{t+1}, 768, v{t+4}
    v_add_u32 v{a0}, v{t}, v{t+1}
    v_add_u32 v{t+1}, {192-32}, v{a0}
    v_cndmask_b32 v{a0+1}, v{t+1}, v{a0}, s[90:91]
    v_mul_u32_u24 v{t+1}, 192, v{t+4}
    v_add_u32 v{t+1}, {16*192}, v{t+1}
    v_add_u32 v{a0+2}, v{t+1}, v{t}
    v_mov_b32 v{t+2}, {OOB:#x}
    v_cmp_gt_u32 vcc, 40, v{LN}
    v_cndmask_b32 v{a0+3}, v{t+2}, v{a0+2}, s[90:91]
    v_lshlrev_b32 v{t+1}, 2, v{LN}
    v_add_u32 v{t+1}, {20*192}, v{t+1}
    v_cndmask_b32 v{a0+4}, v{t+2}, v{t+1}, vcc
    v_cmp_eq_u32 vcc, 0, v{LN}
    v_cmp_gt_u32 s[90:91], 4, v{t+3}
    v_cndmask_b32 v{a0+6}, v{t+2}, v{V_Z}, vcc""")
    for k in range(5): park(su, f'at{k}', a0 + k)
    park(su, 'l0', a0 + 6)
    su(f"s_mul_i32 s85, s68, 1920\n s_add_u32 s85, s85, {A_KVIMG}\n v_mov_b32 v{t+4}, {A_KVIMG+9600}")
    for i in range(4):
        su(f"v_add_u32 v{t}, {64*i}, v{LN}")
        divc(su, t + 1, t, 12)
        su(f"""v_mul_u32_u24 v{t+2}, 12, v{t+1}
        v_sub_u32 v{t+2}, v{t}, v{t+2}
        v_cmp_gt_u32 vcc, 10, v{t+2}
        v_mul_u32_u24 v{t+1}, 80, v{t+1}
        v_lshl_add_u32 v{t+1}, v{t+2}, 3, v{t+1}
        v_add_u32 v{t+1}, s85, v{t+1}
        v_cndmask_b32 v{t+1}, v{t+4}, v{t+1}, vcc""")
        if i == 3: su(f"v_cmp_gt_u32 vcc, 60, v{LN}\n v_cndmask_b32 v{t+1}, v{t+4}, v{t+1}, vcc")
        park(su, f'kvw{i}', t + 1)
    su(f"""v_cmp_gt_u32 vcc, 120, v0
    v_lshlrev_b32 v{t}, 4, v0
    v_add_u32 v{t}, {A_KVIMG+7680}, v{t}
    v_cndmask_b32 v{t}, v{t+4}, v{t}, vcc""")
    park(su, 'kvz', t)
    su(f"""v_bfe_u32 v{t}, v0, 3, 2
    v_and_b32 v{t+1}, 3, v0
    v_lshl_add_u32 v{t}, v{t}, 2, v{t+1}
    v_mul_u32_u24 v{t}, 80, v{t}
    v_bfe_u32 v{t+1}, v0, 2, 1
    v_bfe_u32 v{t+4}, v0, 5, 1
    v_cmp_eq_u32 vcc, v{t+1}, v{t+4}
    v_mul_u32_u24 v{t+2}, 1920, v{t+1}
    v_add_u32 v{t}, v{t}, v{t+2}
    v_add_u32 v{t}, {A_KVIMG}, v{t}
    v_add_u32 v{t+3}, 3840, v{t}
    v_mov_b32 v{t+2}, {A_KVIMG+7680}
    v_cndmask_b32 v{t}, v{t+2}, v{t}, vcc
    v_cndmask_b32 v{t+3}, v{t+2}, v{t+3}, vcc""")
    park(su, 'kvr0', t); park(su, 'kvr1', t + 3)
    setup_g2(su)
    wl = Prog()
    wl("s_mul_i32 s77, s70, 3200")
    srd(wl, S_PHI, P_PHI, 3200, 's77')
    wl(f"""v_lshlrev_b32 v{V_X+10}, 3, v0
    buffer_load_dwordx2 {vr(V_X,2)}, v{V_X+10}, {sr(S_PHI,4)}, 0 offen
    buffer_load_dwordx2 {vr(V_X+2,2)}, v{V_X+10}, {sr(S_PHI,4)}, 0 offen offset:2048""")
    token_load(su, S_WS, V_Z)
    iss = issue_group(0) + [wl]
    sub = bundles(su)
    LEAD = opt('lead', 7)
    per = opt('suchunk', 30)
    for k, b in enumerate(iss):
        p.extend(b)
        if k >= LEAD:
            for x in sub[:per]: p.extend(x)
            sub = sub[per:]
    for x in sub: p.extend(x)
    for b in issue_group(1): p.extend(b)
    stamp(p)

    def sync(p, G):
        p.waitvm(('dma', G)); p("s_barrier")
    p("s_waitcnt lgkmcnt(0)")
    sync(p, 0)
    stamp(p)
    FD = 2
    def kv_reads(k):
        q = Prog(); fb = V_WF + (k % 3) * 20
        slot = k % NSLOT; base = V_TA + (slot >= 8); so = (slot % 8) * GR
        q(f"ds_read_b128 {ar(4*k,4)}, v{V_XO+k%4} offset:{((k//4)%4)*4096}")
        for T in range(5):
            for h in range(2):
                q(f"ds_read_b64_tr_b16 {vr(fb+4*T+2*h,2)}, v{base} offset:{so + 1280*h + 64*T}")
        return q
    PH = [(0, 0), (0, 1), (0, 2), (1, 0), (1, 1), (1, 2), (1, 3), (1, 4), (2, 2), (2, 3), (2, 4)]
    bdr = Prog()
    for n, (U, ka) in enumerate(PH):
        for h in range(2): bdr(f"ds_read_b64_tr_b16 {ar(160+4*n+2*h,2)}, v{18+U} offset:{(16*ka+8*h)*160}")
    bdr = singles(bdr)
    for k in range(FD): p.extend(kv_reads(k))
    segs = [list(range(0, 4 - FD))] + [list(range(4 * G - FD, 4 * G + 4 - FD)) for G in range(1, 10)] + [list(range(40 - FD, 40))]
    for si, steps in enumerate(segs):
        if si >= 1:
            if si == 10: p("s_waitcnt lgkmcnt(0)")
            if STAMP == 2: stamp(p)
            sync(p, si)
        m = Prog(); st = []
        for n, k in enumerate(steps):
            fb = V_WF + (k % 3) * 20
            m.need([vr(fb, 20), ar(4 * k, 4)])
            for T in range(5): mfma32(m, vr(V_KA + 16 * T, 16), vr(fb + 4 * T, 4), ar(4 * k, 4), '0' if k == 0 else None)
            if k + FD < 40: st.append((singles(kv_reads(k + FD)), 5 * n, 5 * n + 5))
        st.append((issue_group(si + 2), 0, None))
        if si == 1:
            w = Prog(); w(f"ds_write_b64 v{V_X+8}, {vr(V_X,2)}\n ds_write_b64 v{V_X+9}, {vr(V_X+2,2)}")
            st.append((singles(w), 2, 12))
        if si == 2:
            w = Prog(); token_make(w); st.append((singles(w), 0, None))
        if si == 8:
            w = Prog(); w(f"buffer_load_dword v{V_X+10}, v{V_Z}, {sr(S_DBG,4)}, 0 offen sc1")
            st.append(([w], 0, 1))
        if si == 10:
            w = Prog(); unpark(w, 'vw', t + 1); unpark(w, 'phiw', t + 2); unpark(w, 'tq', V_TA + 2)
            w(f"v_add_u32 v{V_TA+3}, {8*GR}, v{V_TA+2}")
            for i in range(5): unpark(w, f'wo{i}', V_XO + i)
            w(f"""v_lshlrev_b32 v{t}, 4, v{LN}
            s_mul_i32 s77, s70, 5120
            s_add_u32 s77, s77, s92
            s_add_u32 s78, s77, 4096""")
            st.append((singles(w), 0, None)); st.append((bdr, 0, None))
        p.extend(pack(m, st))
    stamp(p)

    def phi_step(p, acc, out, extra=None, inexp=None):
        B = V_WF; E = V_WF + 24; M = V_WF + 64
        cv = [f"v_cvt_pk_bf16_f32 v{B+k}, v{acc+2*k}, v{acc+2*k+1}" for k in range(20)]
        def minmax(y):
            q = Prog(); x = V_PA + y * 20; Mx = M + 8 * y
            q(f"v_max3_f32 v{Mx}, v{x}, v{x+1}, v{x+2}\n v_min3_f32 v{Mx+2}, v{x}, v{x+1}, v{x+2}")
            for k in range(3, 19, 2):
                q(f"v_max3_f32 v{Mx}, v{Mx}, v{x+k}, v{x+k+1}\n v_min3_f32 v{Mx+2}, v{Mx+2}, v{x+k}, v{x+k+1}")
            q(f"v_max_f32 v{Mx}, v{Mx}, v{x+19}\n v_min_f32 v{Mx+2}, v{Mx+2}, v{x+19}")
            q(f"v_mul_f32 v{Mx}, s88, v{Mx}\n v_mul_f32 v{Mx+2}, s88, v{Mx+2}")
            return q
        for c in cv[:8]: p(c)
        m = Prog(); seen = set()
        for n, (U, ka) in enumerate(PH):
            mfma32(m, vr(V_PA + 16 * U, 16), ar(160 + 4 * n, 4), vr(B + 4 * ka, 4), None if U in seen else '0'); seen.add(U)
        c2 = Prog()
        for c in cv[8:]: c2(c)
        st = [(singles(c2), 0, 2)]
        if extra: st.append((bundles(extra), 2, 11))
        p.extend(pack(m, st, cap=28))
        for y in range(2):
            x = V_PA + y * 20; Mx = M + 8 * y
            p.extend(minmax(y))
            for q in range(10):
                p(f"v_pk_fma_f32 {vr(E+2*q,2)}, {vr(x+2*q,2)}, s[88:89], {vr(Mx,2)} op_sel_hi:[1,1,0] neg_lo:[0,0,1] neg_hi:[0,0,1]")
                p(f"v_pk_fma_f32 {vr(E+20+2*q,2)}, {vr(x+2*q,2)}, s[88:89], {vr(Mx+2,2)} op_sel_hi:[1,1,0] neg_lo:[1,0,0] neg_hi:[1,0,0]")
            for q in range(40):
                p(f"v_exp_f32 v{E+q}, v{E+q}")
                if y == 0 and inexp and q % 6 == 5: p.extend(inexp.pop(0))
            for q in range(1, 10):
                for hh in range(2):
                    S = Mx + 4 + 2 * hh; e = E + 20 * hh
                    p(f"v_pk_add_f32 {vr(S,2)}, {vr(e if q == 1 else S,2)}, {vr(e+2*q,2)}")
            p(f"v_add_f32 v{Mx+4}, v{Mx+4}, v{Mx+5}\n v_add_f32 v{Mx+6}, v{Mx+6}, v{Mx+7}")
            p(f"v_rcp_f32 v{Mx+4}, v{Mx+4}\n v_rcp_f32 v{Mx+6}, v{Mx+6}")
            for hh in range(2):
                for q in range(10):
                    e = E + 20 * hh + 2 * q
                    p(f"v_pk_mul_f32 {vr(e,2)}, {vr(e,2)}, {vr(Mx+4+2*hh,2)} op_sel_hi:[1,0]")
            yield y
            for q in range(20):
                p(f"v_cvt_pk_bf16_f32 v{out+y*20+q}, v{E+2*q}, v{E+2*q+1}")

    def q_reads(k):
        q = Prog(); fb = V_WF + (k % 3) * 12
        slot = (40 + k // 2) % NSLOT; base = V_TA + 2 + (slot >= 8); so = (slot % 8) * GR + (k % 2) * 2560
        for T in range(3):
            for h in range(2):
                q(f"ds_read_b64_tr_b16 {vr(fb+4*T+2*h,2)}, v{base} offset:{so + 160*h + 64*T}")
        return q
    ex = Prog()
    for mm_ in range(10):
        a = V_VA + 4 * mm_; d = V_X + 2 * (mm_ % 4)
        ex(f"v_cvt_pk_bf16_f32 v{d}, v{a}, v{a+1}\n v_cvt_pk_bf16_f32 v{d+1}, v{a+2}, v{a+3}\n ds_write_b64 v{t+1}, {vr(d,2)} offset:{16*mm_}")
    w = Prog(); w0 = Prog()
    for k in range(4): w0(f"v_mov_b32 v{V_X+4+k}, -1")
    for pc in range(5):
        w(f"buffer_store_dwordx4 {vr(V_X+4,4)}, v{t}, {sr(S_WS,4)}, {'s78' if pc == 4 else 's77'} offen offset:{1024*(pc%4)} sc1")
    for y in phi_step(p, V_KA, V_PO, ex, [w0] + singles(w)):
        if y == 1:
            p.extend(q_reads(0));
    p.extend(q_reads(1))
    stamp(p)
    p(f"""v_readfirstlane_b32 s95, v{V_X+10}
    s_mov_b32 s94, {SPIN}
    s_cmp_ge_u32 s95, {NZERO_WG}""")
    p("s_cbranch_scc1 a_pz_x", tag='keep')
    p("a_pz:")
    p(f"""buffer_load_dword v{V_X+10}, v{V_Z}, {sr(S_DBG,4)}, 0 offen sc1
    s_sub_u32 s94, s94, 1
    s_waitcnt vmcnt(0)
    v_readfirstlane_b32 s95, v{V_X+10}
    s_cmp_eq_u32 s94, 0""", tag='offpath')
    p("s_cbranch_scc1 a_pz_x", tag='keep')
    p(f"s_cmp_ge_u32 s95, {NZERO_WG}")
    p("s_cbranch_scc0 a_pz", tag='keep')
    p("a_pz_x:")
    pw = Prog()
    for y in range(2):
        for q in range(5): pw(f"ds_write_b128 v{t+2}, {vr(V_PO+y*20+4*q,4)} offset:{160*y + 16*q}")
    pre = Prog()
    unpark(pre, 'phir', t); unpark(pre, 'vr0', t + 1); unpark(pre, 'vr1', t + 3)
    pre(f"v_mov_b32 v{t+4}, 0x3f803f80")
    for k in range(5): unpark(pre, f'at{k}', V_X + k)
    pre(f"""s_lshl_b32 s78, s70, 2
    s_add_u32 s78, s78, s68
    s_lshl_b32 s78, s78, 12
    s_add_u32 s78, s78, {WS_KV}""")
    KF = [72, 92, V_PO, V_PO + 20]
    def kvs_reads(sw):
        q = Prog(); fb = KF[sw]
        for h in range(2): q(f"ds_read_b64_tr_b16 {vr(fb+4+2*h,2)}, v{t+3} offset:{(sw*32+h*16)*160}")
        for h in range(2): q(f"ds_read_b64_tr_b16 {vr(fb+2*h,2)}, v{t+1} offset:{(sw*32+h*16)*160}")
        for nf in range(3):
            for h in range(2):
                q(f"ds_read_b64_tr_b16 {vr(fb+8+4*nf+2*h,2)}, v{t} offset:{(sw*32+h*16)*PHI_RS + 32*nf}")
        return q
    def kvs_mfma(m, sw):
        fb = KF[sw]
        m.need([vr(fb, 20)])
        for q in range(4): m(f"v_cndmask_b32 v{fb+4+q}, v{t+4}, v{fb+4+q}, s[90:91]")
        for md in range(2):
            for nf in range(3):
                mfma(m, vr(V_D + (3 * md + nf) * 4, 4), vr(fb + 4 * md, 4), vr(fb + 8 + 4 * nf, 4), '0' if sw == 0 else None)
    at = Prog(); a0 = V_X
    def atom(v, vo, off): at(f"buffer_atomic_add_f32 v{v}, v{vo}, {sr(S_WS,4)}, s78 offen offset:{off}", tag='kvat')
    for nf in range(2):
        for i in range(4): atom(V_D + 4 * nf + i, a0, i * 192 + nf * 64)
    R = lambda nf, i: V_D + 12 + 4 * nf + i
    for i in (0, 2):
        at(f"v_mov_b32_dpp v{V_D+8+i}, v{V_D+9+i} row_shr:8 row_mask:0xf bank_mask:0xc")
    for nf in range(3):
        at(f"v_permlane16_swap_b32 v{R(nf,0)}, v{R(nf,1)}\n v_permlane16_swap_b32 v{R(nf,2)}, v{R(nf,3)}")
    for i in (0, 2): atom(V_D + 8 + i, a0 + 1, i * 192 + 128)
    for nf in range(3): at(f"v_permlane32_swap_b32 v{R(nf,0)}, v{R(nf,2)}")
    at(f"v_permlane16_swap_b32 v{R(0,1)}, v{R(1,1)}")
    for nf in range(3): atom(R(nf, 0), a0 + (3 if nf == 2 else 2), nf * 64)
    at(f"v_permlane32_swap_b32 v{R(0,1)}, v{R(2,1)}")
    atom(R(0, 1), a0 + 4, 0)
    KS = opt('ks', 4)
    segs = [list(range(0, 6))] + [list(range(8 * g - 2, 8 * g + 6)) for g in range(1, 5)] + [[38, 39]]
    def signal():
        unpark(p, 'l0', V_X + 7)
        p(f"""s_lshl_b32 s78, s70, 13
        s_lshl_b32 s85, s69, 9
        s_add_u32 s78, s78, s85
        s_lshl_b32 s85, s68, 7
        s_add_u32 s78, s78, s85
        s_add_u32 s78, s78, {WS_KVF}""")
        p.waitvm('kvat')
        p(f"buffer_store_dword v{V_TOK}, v{V_X+7}, {sr(S_WS,4)}, s78 offen sc1")
    def qstep(k):
        m = Prog(); fb = V_WF + (k % 3) * 12
        m.need([vr(fb, 12)])
        for T in range(3): mfma32(m, vr(V_KA + 16 * T, 16), vr(fb + 4 * T, 4), ar(4 * k, 4), '0' if k == 0 else None)
        return m
    def qrun(steps, extra):
        m = Prog(); st = []
        for n, k in enumerate(steps):
            m.extend(qstep(k))
            if k + 2 < 40: st.append((singles(q_reads(k + 2)), 3 * n, 3 * n + 3))
        p.extend(pack(m, st + extra, cap=28))
    NW = opt('nw', 4)
    qrun(range(0, NW), [(singles(pw), 0, 3 * NW - 2), (bundles(pre), 2, None)])
    if STAMP == 3: stamp(p)
    p("s_waitcnt lgkmcnt(0)\n s_barrier")
    kr = Prog()
    for sw in range(4): kr.extend(kvs_reads(sw))
    kr = singles(kr)
    for x in kr[:10]: p.extend(x)
    qrun(range(NW, 6), [(kr[10:], 0, None), (issue_group(13), 0, None)])
    if NW >= 6:
        for x in kr[10:]: p.extend(x)
    for sw in range(4): kvs_mfma(p, sw)
    if STAMP == 3: stamp(p)
    for si, steps in enumerate(segs):
        G = 10 + si
        if si == 0: continue
        if STAMP == 3 and si > 1: stamp(p)
        if si == KS: signal()
        if G < 15: sync(p, G)
        if si == 1: qrun(steps, [(singles(at), 0, opt('atspan', 24))])
        elif si < 5: qrun(steps, [(issue_group(G + 2), 0, None)])
        else: qrun(steps, [])
    if KS == 6: signal()
    stamp(p)
    F = V_WF
    ex = Prog()
    unpark(ex, 'kvz', t)
    ex(f"""v_mov_b32 v{V_X}, 0
    v_mov_b32 v{V_X+1}, 0
    v_mov_b32 v{V_X+2}, 0
    v_mov_b32 v{V_X+3}, 0
    ds_write_b128 v{t}, {vr(V_X,4)}
    v_lshlrev_b32 v{t+1}, 7, v{LN}
    v_lshlrev_b32 v{t+2}, 4, v{LN}
    s_lshl_b32 s78, s70, 13
    s_add_u32 s78, s78, {WS_KVF}
    s_lshl_b32 s77, s70, 2
    s_add_u32 s77, s77, s68
    s_lshl_b32 s77, s77, 12
    s_add_u32 s77, s77, {WS_KV}""")
    for i in range(4): unpark(ex, f'kvw{i}', V_X + 4 + i)
    KL = V_KA + 32
    def kvloads(tag=None):
        for i in range(4):
            p(f"buffer_load_dwordx4 {vr(KL+4*i,4)}, v{t+2}, {sr(S_WS,4)}, s77 offen offset:{1024*i} sc1", tag=tag)
    ex(f"""buffer_load_dword v{V_X+8}, v{t+1}, {sr(S_WS,4)}, s78 offen sc1
    v_and_b32 v{t+3}, 7, v0
    v_lshlrev_b32 v{t+3}, 13, v{t+3}
    s_lshl_b32 s93, s69, 9
    s_lshl_b32 s81, s68, 7
    s_add_u32 s93, s93, s81
    s_add_u32 s93, s93, {WS_KVF}""")
    for y in phi_step(p, V_KA, V_PO, ex):
        if y == 0:
            p(f"v_cmp_eq_u32 vcc, v{V_TOK}, v{V_X+8}\n s_mov_b32 s95, 0\n s_nop 0\n s_cmp_eq_u64 vcc, -1")
            p("s_cbranch_scc0 a_noearly", tag='keep')
            kvloads('offpath')
            p("s_mov_b32 s95, 1", tag='offpath')
            p("a_noearly:")
            p(f"buffer_load_dword v{V_X+9}, v{t+3}, {sr(S_WS,4)}, s93 offen sc1")
        if y == 1:
            stamp(p)
            p("s_cmp_eq_u32 s95, 1")
            p("s_cbranch_scc1 a_have", tag='keep')
            pollall(p, "a_pk", S_WS, 's78', V_X + 8, t + 1)
            kvloads()
            p("a_have:")
            stamp(p)
            p("s_waitcnt vmcnt(0)")
            for i in range(4):
                p(f"v_cvt_pk_bf16_f32 v{F+2*i}, v{KL+4*i}, v{KL+4*i+1}\n v_cvt_pk_bf16_f32 v{F+1+2*i}, v{KL+4*i+2}, v{KL+4*i+3}")
                p(f"ds_write_b64 v{V_X+4+i}, {vr(F+2*i,2)}")
            p(f"v_cmp_eq_u32 vcc, v{V_TOK}, v{V_X+9}")
            unpark(p, 'kvr0', t); unpark(p, 'kvr1', t + 1)
            p("s_cmp_eq_u64 vcc, -1")
            p("s_cbranch_scc1 a_pf_x", tag='keep')
            q = Prog(); pollall(q, "a_pf", S_WS, 's93', V_X + 9, t + 3)
            for i_ in q.L: i_.tag = 'offpath' if i_.kind not in ('label',) else i_.tag
            p.extend(q)
            p(f"""s_mul_i32 s76, s70, 5120
            s_add_u32 s78, s92, s76
            s_add_u32 s81, s78, 4096
            s_mov_b32 s85, {f2u(1e-6):#x}""")
    p("s_waitcnt lgkmcnt(0)\n s_barrier")
    stamp(p)
    order = [(y, u, ka) for u in (1, 0) for y in range(2) for ka in range(5)]
    NB = 10; O = F + 48
    def ord_(n):
        y, u, ka = order[n]; q = Prog(); q(f"ds_read_b128 {vr(F+4*(n%NB),4)}, v{t+y} offset:{u*1280+16*ka}"); return q
    for n in range(NB): p.extend(ord_(n))
    def fin(y, ks):
        q = Prog(); dn = V_KA + 16 * y + 4
        vals = [V_D + 16 * y + r for r in range(16)] + [V_KA + 16 * y + r for r in range(4)]
        for k in ks:
            q(f"v_mul_f32 v{vals[2*k]}, v{dn}, v{vals[2*k]}\n v_mul_f32 v{vals[2*k+1]}, v{dn}, v{vals[2*k+1]}")
            q(f"v_cvt_pk_bf16_f32 v{O+10*y+k}, v{vals[2*k]}, v{vals[2*k+1]}")
        return q
    def ost(q, pc): q(f"buffer_store_dwordx4 {vr(O+4*pc,4)}, v{t+2}, {sr(S_WS,4)}, {'s81' if pc == 4 else 's78'} offen offset:{1024*(pc%4)} sc1", tag='ost')
    om = Prog()
    for n, (y, u, ka) in enumerate(order):
        if n in (0, 2, 5, 10, 15): om.need([vr(F + 4 * (m_ % NB), 4) for m_ in range(n, {0: 2, 2: 5}.get(n, n + 5))])
        mfma32(om, vr((V_D if u == 0 else V_KA) + 16 * y, 16), vr(F + 4 * (n % NB), 4), vr(V_PO + y * 20 + 4 * ka, 4), '0' if ka == 0 else None)
        if n + NB < 20: om.extend(ord_(n + NB))
    d0 = Prog(); d1 = Prog()
    for y, d in ((0, d0), (1, d1)):
        dn = V_KA + 16 * y + 4
        d(f"v_add_f32 v{dn}, s85, v{dn}\n v_rcp_f32 v{dn}, v{dn}"); d.extend(fin(y, (8, 9)))
    f0 = fin(0, range(4)); ost(f0, 0); f0.extend(fin(0, range(4, 8))); ost(f0, 1)
    p.extend(pack(om, [(issue_group(17) + issue_group(18), 0, 12), (singles(d0), 8, 11), (singles(d1), 12, 15), (singles(f0), 16, 20)], cap=28))
    dn = V_KA + 20
    for k in range(8):
        p(f"v_pk_mul_f32 {vr(V_D+16+2*k,2)}, {vr(V_D+16+2*k,2)}, {vr(dn,2)} op_sel_hi:[1,0]")
    for k in range(8):
        p(f"v_cvt_pk_bf16_f32 v{O+10+k}, v{V_D+16+2*k}, v{V_D+17+2*k}")
        if k in (1, 5, 7): ost(p, {1: 2, 5: 3, 7: 4}[k])
    stamp(p)
    p.waitvm(('dma', 18))
    gemm2_tail(p)
    return p

CP = 4168; YP = 4160; SRS = 544
B_RAW = 0
B_UC = 33280
B_KR = B_UC + 16 * CP
B_SC = B_KR + 4 * 4608
B_END = B_SC + 4 * 16 * SRS
S_KR = 81920; S_SC = S_KR + 4 * 4608
WS_KR = 4 << 20
BL, B15, BG, BZ = 1, 2, 3, 4
A_SW, A_SR, A_T0, A_T1, A_T1b, A_T2, A_X3, A_X2, A_X1, A_X0, A_KW, A_KW32, A_KB, MSK = range(24, 38)
PR = 8
S_U, S_LA, S_AI, S_CR, S_CI, S_LDT, S_DS, S_O, S_WSB = 40, 44, 48, 52, 56, 60, 64, 72, 76

def kg_lanes(p):
    p(f"""v_and_b32 v{BL}, 63, v0
    v_and_b32 v{B15}, 15, v0
    v_bfe_u32 v{BG}, v0, 4, 2
    v_mov_b32 v{BZ}, 0
    v_lshlrev_b32 v5, 2, v{BL}
    s_waitcnt lgkmcnt(0)""")
    for s_, ptr, size in ((S_LA, P_LA, 640*256), (S_AI, P_AI, 640*256), (S_CR, P_CR, 640*256), (S_CI, P_CI, 640*256), (S_LDT, P_LDT, 1280), (S_DS, P_DS, 1280)):
        srd(p, s_, ptr, size)
def kg_params(p, sch, P):
    p(f"s_lshl_b32 s81, {sch}, 8\n s_lshl_b32 s80, {sch}, 1")
    p(f"buffer_load_ushort v{P+4}, v{BZ}, {sr(S_LDT,4)}, s80 offen")
    for k, s_ in enumerate((S_LA, S_AI, S_CR, S_CI)):
        p(f"buffer_load_dword v{P+k}, v5, {sr(s_,4)}, s81 offen {'nt' if opt('ntp', 1) else ''}")
    p(f"buffer_load_ushort v{P+5}, v{BZ}, {sr(S_DS,4)}, s80 offen")
def kg_setup(p, KR, SC):
    t = 40
    p(f"""s_mul_i32 s83, s68, 4608
    s_add_u32 s83, s83, {KR}
    s_mul_i32 s84, s68, {16*SRS}
    s_add_u32 s84, s84, {SC}
    v_lshl_add_u32 v{A_SW}, v{BL}, 3, s84
    v_mul_u32_u24 v{A_SR}, {SRS}, v{B15}
    v_lshl_add_u32 v{A_SR}, v{BG}, 4, v{A_SR}
    v_add_u32 v{A_SR}, s84, v{A_SR}
    v_cmp_gt_u32 vcc, 2, v{BG}
    v_lshrrev_b32 v{t}, 1, v{BG}
    v_and_b32 v{t+1}, 1, v{BG}
    v_lshlrev_b32 v{A_T0}, 9, v{t}
    v_lshl_add_u32 v{A_T0}, v{t+1}, 4, v{A_T0}
    v_lshl_add_u32 v{A_T0}, v{B15}, 5, v{A_T0}
    v_add_u32 v{A_T0}, s84, v{A_T0}
    v_lshlrev_b32 v{t+2}, 4, v{B15}
    v_lshlrev_b32 v{t+3}, 3, v{B15}
    v_cndmask_b32 v{t+2}, v{t+3}, v{t+2}, vcc
    v_lshl_add_u32 v{A_T1}, v{BG}, 8, v{t+2}
    v_add_u32 v{A_T1}, s84, v{A_T1}
    v_mov_b32 v{t+2}, 128
    v_mov_b32 v{t+3}, 8
    v_cndmask_b32 v{t+2}, v{t+2}, v{t+3}, vcc
    v_add_u32 v{A_T1b}, v{A_T1}, v{t+2}
    v_lshlrev_b32 v{A_T2}, 8, v{BG}
    v_lshl_add_u32 v{A_T2}, v{B15}, 2, v{A_T2}
    v_add_u32 v{A_T2}, s84, v{A_T2}
    v_lshl_add_u32 v{A_X3}, v{BL}, 2, s84
    v_lshl_add_u32 v{A_X2}, v{BL}, 3, s84
    v_and_b32 v{t}, 31, v0
    v_lshl_add_u32 v{A_X1}, v{t}, 4, s84
    v_lshl_add_u32 v{A_X0}, v{t}, 5, s84
    v_lshlrev_b32 v{t+1}, 4, v{BL}
    v_sub_u32 v{A_KW}, s83, v{t+1}
    v_add_u32 v{A_KW}, 1008, v{A_KW}
    v_lshlrev_b32 v{t+1}, 4, v{t}
    v_sub_u32 v{A_KW32}, s83, v{t+1}
    v_add_u32 v{A_KW32}, 496, v{A_KW32}
    v_and_b32 v{t}, 1, v0
    v_cmp_eq_u32 vcc, 1, v{t}
    v_mov_b32 v{t+1}, 0xffff
    v_mov_b32 v{t+2}, -1
    v_cndmask_b32 v{MSK}, v{t+1}, v{t+2}, vcc
    s_mov_b32 s85, 0xffff
    s_mov_b32 s86, {f2u(1.4426950408889634):#x}
    s_mov_b32 s87, 0x32a57060
    s_mov_b32 s88, {f2u(0.6931471805599453):#x}
    s_mov_b32 s89, 0xffff0000""")

def exp_bf16(p, d, x, t):
    p(f"""v_mul_f32 v{t}, s86, v{x}
    v_fma_f32 v{t+1}, v{x}, s86, -v{t}
    v_exp_f32 v{t}, v{t}
    v_fma_f32 v{t+1}, v{x}, s87, v{t+1}
    v_mul_f32 v{t+1}, s88, v{t+1}
    v_fma_f32 v{t}, v{t}, v{t+1}, v{t}
    v_cvt_pk_bf16_f32 v{t}, v{t}, v{t}
    v_and_b32 v{d}, s89, v{t}""")
def cmul(p, c, a, b):
    p(f"v_pk_mul_f32 {vr(c,2)}, {vr(a,2)}, {vr(b,2)} op_sel:[0,0] op_sel_hi:[0,1]")
    p(f"v_pk_fma_f32 {vr(c,2)}, {vr(a,2)}, {vr(b,2)}, {vr(c,2)} op_sel:[1,1,0] op_sel_hi:[1,0,1] neg_lo:[0,1,0]")
def kgen(p, P, sched):
    E = lambda k, mu: 48 + 4 * (k - 1) + 2 * mu
    E8 = lambda mu: 76 + 2 * mu
    E128 = lambda mu: 80 + 2 * mu
    GA = lambda par, mu: 84 + 4 * par + 2 * mu
    XT = lambda k, mu: 92 + 4 * (k % 2) + 2 * mu
    PK = lambda k: 100 + 2 * (k % 4)
    FB = 108; FA = 140; DT = 172
    t = 40
    p(f"v_lshlrev_b32 v{t+6}, 16, v{P+4}")
    exp_bf16(p, t + 7, t + 6, t)
    p.need([vr(P, 6)])
    if STAMP == 4: stamp(p)
    rho = lambda mu: 92 + mu; th = lambda mu: 94 + mu
    p(f"v_add_f32 v{t+4}, v{t+7}, v{t+7}")
    for mu in range(2):
        up = (lambda d, s_: f"v_lshlrev_b32 v{d}, 16, v{s_}") if mu == 0 else (lambda d, s_: f"v_and_b32 v{d}, s89, v{s_}")
        p(up(t + 6, P))
        exp_bf16(p, t + 5, t + 6, t)
        p(f"v_mul_f32 v{t+5}, v{t+5}, v{t+7}\n v_mul_f32 v{rho(mu)}, s86, v{t+5}")
        p(up(t + 6, P + 1))
        p(f"v_mul_f32 v{t+6}, v{t+6}, v{t+7}\n v_mul_f32 v{th(mu)}, 0.15915494, v{t+6}")
        p(up(t + 5, P + 2)); p(up(t + 6, P + 3))
        p(f"v_mul_f32 v{GA(0,mu)}, v{t+5}, v{t+4}\n v_mul_f32 v{GA(0,mu)+1}, v{t+6}, v{t+4}")
    for pw, dst in ((8, E8), (1, lambda mu: E(1, mu)), (128, E128)):
        for mu in range(2):
            p(f"v_mul_f32 v{t+2*mu}, {f2u(-float(pw)):#x}, v{rho(mu)}\n v_mul_f32 v{t+2*mu+1}, {f2u(float(pw)):#x}, v{th(mu)}")
        for mu in range(2): p(f"v_exp_f32 v{t+2*mu}, v{t+2*mu}\n v_fract_f32 v{t+2*mu+1}, v{t+2*mu+1}")
        for mu in range(2): p(f"v_cos_f32 v{dst(mu)}, v{t+2*mu+1}\n v_sin_f32 v{dst(mu)+1}, v{t+2*mu+1}")
        for mu in range(2): p(f"v_pk_mul_f32 {vr(dst(mu),2)}, {vr(dst(mu),2)}, {vr(t+2*mu,2)} op_sel_hi:[1,0]")
    cnt = [0]; SIDE0 = opt('side0', 36); SIDEN = opt('siden', 2)
    def put(row, src, neg=False):
        k = cnt[0]; cnt[0] += 1
        for mu in range(2):
            a = src(mu)
            p(f"v_cvt_pk_bf16_f32 v{PK(k)+mu}, v{a}, {'-' if neg else ''}v{a+1}")
        p(f"ds_write_b64 v{A_SW}, {vr(PK(k),2)} offset:{row*SRS}")
        for b_ in sched.get(k, []): p.extend(b_)
    p(f"v_mov_b32 v{PK(3)}, 0x3f80\n v_mov_b32 v{PK(3)+1}, 0x3f80\n ds_write_b64 v{A_SW}, {vr(PK(3),2)}")
    put(1, E8, True)
    prev = E8
    for b in range(2, 16):
        cur = (lambda bb: (lambda mu: XT(bb, mu)))(b)
        for mu in range(2): cmul(p, cur(mu), prev(mu), E8(mu))
        put(b, cur, True); prev = cur
    if STAMP == 4: stamp(p)
    for ka in range(8): p(f"ds_read_b128 {vr(FB+4*ka,4)}, v{A_SR} offset:{64*ka}")
    for k in range(2, 8):
        for mu in range(2): cmul(p, E(k, mu), E(k - 1, mu), E(1, mu))
    al = [0]
    def Gcur(mu): return GA(al[0] % 2, mu)
    def Gnext():
        for mu in range(2): cmul(p, GA((al[0] + 1) % 2, mu), GA(al[0] % 2, mu), E128(mu))
        al[0] += 1
    def prod(row, k):
        if k == 0: put(row, Gcur); return
        for mu in range(2): cmul(p, XT(row, mu), Gcur(mu), E(k, mu))
        put(row, lambda mu: XT(row, mu))
    def tile(T):
        for ka in range(8): p(f"ds_read_b128 {vr(FA+4*ka,4)}, v{A_SR} offset:{64*ka}")
        return [f"v_mfma_f32_16x16x32_bf16 {vr(DT+4*T,4)}, {vr(FA+4*ka,4)}, {vr(FB+4*ka,4)}, {'0' if ka == 0 else vr(DT+4*T,4)}" for ka in range(8)]
    for a in range(2):
        for g in range(8): prod(8 * a + g, g)
        Gnext()
    if STAMP == 4: stamp(p)
    mm = tile(0)
    for a in range(2):
        for g in range(4): prod(4 * a + g, 2 * g)
        Gnext()
        if a == 0:
            for x in mm: p(x)
    for a in range(4):
        for g in range(2): prod(8 + 2 * a + g, 4 * g)
        Gnext()
    if STAMP == 4: stamp(p)
    mm = tile(1)
    for a in range(9):
        prod(a, 0)
        if a < 8: Gnext()
        if a == 3:
            for x in mm: p(x)
    if STAMP == 4: stamp(p)
    mm = tile(2)
    p(f"""v_cmp_eq_u32 vcc, 0, v{BL}
    v_lshlrev_b32 v{t}, 16, v{P+5}
    v_cndmask_b32 v{t}, v{BZ}, v{t}, vcc
    v_add_f32 v{DT}, v{DT}, v{t}""")
    for q in range(8): p(f"v_cvt_pk_bf16_f32 v{DT+q}, v{DT+q}, v{DT+q}")
    p.need([vr(FA, 32)])
    p(mm[0]); p(f"ds_write_b128 v{A_T0}, {vr(DT,4)}")
    for x in mm[1:4]: p(x)
    p(f"ds_write_b64 v{A_T1}, {vr(DT+4,2)} offset:1024")
    for x in mm[4:6]: p(x)
    p(f"ds_write_b64 v{A_T1b}, {vr(DT+6,2)} offset:1024")
    for x in mm[6:]: p(x)
    R = FB
    p(f"""ds_read_b128 {vr(R+24,4)}, v{A_X0}
    ds_read_b128 {vr(R+28,4)}, v{A_X0} offset:16
    ds_read_b128 {vr(R+16,4)}, v{A_X1} offset:1024
    ds_read_b32 v{R+20}, v{A_X1} offset:{1024+16}""")
    for q in range(8, 12): p(f"v_cvt_pk_bf16_f32 v{DT+q}, v{DT+q}, v{DT+q}")
    for i in range(4): p(f"ds_write_b32 v{A_T2}, v{DT+8+i} offset:{2048+64*i}")
    p(f"""ds_read_b32 v{R+8}, v{A_X2} offset:{1536+8}
    ds_read_b32 v{R+9}, v{A_X2} offset:{1536+4}
    ds_read_b32 v{R+11}, v{A_X2} offset:{1536}""")
    for r in range(2):
        p(f"ds_read_b32 v{R+4*r}, v{A_X3} offset:{2048+256*r+4}")
        p(f"ds_read_b32 v{R+4*r+2}, v{A_X3} offset:{2048+256*r}\n ds_read_b32 v{R+4*r+3}, v{A_X3} offset:{2048+256*r}")
    p(f"""v_bfi_b32 v{R+12}, s85, v{R+20}, v{R+19}
    v_mov_b32 v{R+13}, v{R+18}
    v_bfi_b32 v{R+14}, s85, v{R+18}, v{R+17}
    v_mov_b32 v{R+15}, v{R+16}
    ds_write_b128 v{A_KW32}, {vr(R+12,4)} offset:3072
    v_bfi_b32 v{R+16}, s85, v{R+31}, v{R+30}
    v_bfi_b32 v{R+17}, s85, v{R+29}, v{R+28}
    v_bfi_b32 v{R+18}, s85, v{R+27}, v{R+26}
    v_bfi_b32 v{R+19}, s85, v{R+25}, v{R+24}
    ds_write_b128 v{A_KW32}, {vr(R+16,4)} offset:3584
    v_bfi_b32 v{R+10}, s85, v{R+9}, v{R+11}
    ds_write_b128 v{A_KW}, {vr(R+8,4)} offset:2048""")
    for r in range(2):
        p(f"v_bfi_b32 v{R+4*r+1}, v{MSK}, v{R+4*r}, v{R+4*r+2}")
        p(f"ds_write_b128 v{A_KW}, {vr(R+4*r,4)} offset:{1024*(1-r)}")

def prefetch1():
    if not opt('pf1', 1): return []
    NG = opt('pfg', 2); B = []; p = Prog()
    decode_ab(p, 's93', 16, 94, 92)
    p("s_add_u32 s93, s94, s92\n s_mul_i32 s93, s93, 3")
    srd(p, 96, P_W, 640 * 3840)
    p(f"""s_mul_i32 s92, s92, 160
    s_lshr_b32 s95, s68, 1
    s_add_u32 s95, s95, 1
    s_mul_i32 s95, s95, 1280
    s_add_u32 s92, s92, s95
    s_andn2_b32 s92, s92, 127
    s_and_b32 s95, s68, 1
    s_lshl_b32 s95, s95, 7
    s_add_u32 s92, s92, s95
    v_mul_u32_u24 v250, 3840, v{BL}
    v_mul_u32_u24 v249, 1280, v{BL}""")
    def g10(p, d, add):
        p(f"""s_add_u32 s{d}, s93, {add}
        s_mul_i32 s95, s{d}, 205
        s_lshr_b32 s95, s95, 11
        s_mul_i32 s95, s95, 10
        s_sub_u32 s{d}, s{d}, s95""")
    for k in range(1, NG + 1):
        g10(p, 100, k)
        p(f"s_mul_i32 s100, s100, {64*3840}\n s_add_u32 s100, s100, s92\n buffer_load_dword v254, v250, s[96:99], s100 offen {'nt' if opt('ntw', 0) else ''}")
        B.append(p); p = Prog()
    srd(p, 96, P_X, 2048 * 1280)
    p(f"""s_lshl_b32 s94, s94, 1
    s_and_b32 s95, s68, 1
    s_add_u32 s94, s94, s95
    s_mul_i32 s94, s94, {64*1280}
    s_lshr_b32 s95, s68, 1
    s_add_u32 s93, s93, s95""")
    for k in range(1, NG + 1, 2):
        g10(p, 100, k)
        p(f"s_lshl_b32 s100, s100, 7\n s_add_u32 s100, s100, s94\n buffer_load_dword v254, v249, s[96:99], s100 offen {'nt' if opt('ntx', 0) else ''}")
        B.append(p); p = Prog()
    return B
def prefetch2x():
    if not opt('pf2', 1): return []
    B = []
    for r in range(2):
        a = Prog(); b = Prog()
        a(f"""s_lshr_b32 s92, s2, 3
        s_sub_u32 s92, s92, 16
        s_lshl_b32 s92, s92, 2
        s_add_u32 s92, s92, s68
        s_lshl_b32 s92, s92, 6
        s_add_u32 s92, s92, {4096*r}
        v_add_u32 v250, s92, v{BL}
        v_mul_u32_u24 v249, 6554, v250
        v_lshrrev_b32 v249, 16, v249
        v_mul_u32_u24 v252, 10, v249
        v_sub_u32 v250, v250, v252
        v_mul_u32_u24 v252, 3840, v249
        v_lshl_add_u32 v252, v250, 7, v252""")
        srd(a, 96, P_W, 640 * 3840)
        a("buffer_load_dword v254, v252, s[96:99], 0 offen")
        b(f"""v_mul_u32_u24 v252, 1280, v249
        v_lshl_add_u32 v252, v250, 7, v252""")
        srd(b, 96, P_WO, 640 * 1280)
        b("buffer_load_dword v254, v252, s[96:99], 0 offen")
        B += [a, b]
    return B
def prefetch2():
    if XM: return prefetch2x()
    if not opt('pf2', 1): return []
    a = Prog(); b = Prog()
    a(f"""s_lshr_b32 s92, s2, 3
    s_sub_u32 s92, s92, 16
    s_lshl_b32 s92, s92, 2
    s_add_u32 s92, s92, s68
    s_lshl_b32 s92, s92, 6
    v_add_u32 v250, s92, v{BL}
    v_mul_u32_u24 v249, 13108, v250
    v_lshrrev_b32 v249, 16, v249
    v_mul_u32_u24 v252, 5, v249
    v_sub_u32 v250, v250, v252
    v_mul_u32_u24 v252, 3840, v249
    v_lshl_add_u32 v252, v250, 7, v252
    s_and_b32 s93, s2, 1
    s_mul_i32 s94, s93, 640""")
    srd(a, 96, P_W, 640 * 3840)
    a("buffer_load_dword v254, v252, s[96:99], s94 offen")
    b(f"""s_lshl_b32 s94, s93, 9
    s_lshl_b32 s95, s93, 7
    s_add_u32 s95, s95, 1024
    v_lshlrev_b32 v252, 7, v250
    v_add_u32 v252, s94, v252
    v_mov_b32 v248, s95
    v_cmp_eq_u32 vcc, 4, v250
    v_mul_u32_u24 v249, 1280, v249
    v_cndmask_b32 v252, v252, v248, vcc
    v_add_u32 v252, v252, v249""")
    srd(b, 96, P_WO, 640 * 1280)
    b("buffer_load_dword v254, v252, s[96:99], 0 offen")
    return [a, b]

def role_B():
    p = Prog(); nstamp[0] = 0
    LN, L15, G, Z = BL, B15, BG, BZ
    p("roleB:")
    if opt('noB', 0): p("s_endpgm")
    stamp(p)
    if opt('bm', 1) == 0:
        p("""s_and_b32 s69, s2, 7
        s_mul_i32 s69, s69, 10
        s_lshr_b32 s70, s2, 3
        s_sub_u32 s70, s70, 16
        s_add_u32 s69, s69, s70""")
    else:
        p("""s_and_b32 s71, s2, 7
        s_lshr_b32 s70, s2, 3
        s_sub_u32 s70, s70, 16
        s_lshl_b32 s69, s71, 3
        s_add_u32 s69, s69, s70
        s_lshl_b32 s71, s71, 1
        s_add_u32 s71, s71, s70
        s_add_u32 s71, s71, 56
        s_cmp_ge_u32 s70, 8
        s_cselect_b32 s69, s71, s69""")
    kg_lanes(p)
    p(f"s_lshl_b32 s71, s69, 3\n s_add_u32 s71, s71, s68")
    kg_params(p, 's71', PR)
    pf = prefetch1()[:opt('pfb', 3)]; NOW = opt('pfnow', 3)
    srd(p, S_U, P_U, 2048 * 1280)
    p(f"""s_lshr_b32 s80, s69, 3
    s_and_b32 s81, s69, 7
    s_lshl_b32 s81, s81, 2
    s_add_u32 s81, s81, s68
    s_mul_i32 s82, s81, {64*1280}
    s_lshl_b32 s90, s80, 7
    s_add_u32 s82, s82, s90
    s_lshl_b32 s90, s68, 13
    s_add_u32 s90, s90, {B_UC}
    v_lshrrev_b32 v6, 3, v{LN}
    v_mul_u32_u24 v6, 1280, v6
    v_and_b32 v7, 7, v0
    v_xor_b32 v7, v7, v{G}
    v_lshl_add_u32 v6, v7, 4, v6
    v_xor_b32 v7, 64, v6
    v_add_u32 v7, {8*1280}, v7""")
    ut = Prog()
    ut("s_mov_b32 s82, s5")
    for i in range(8):
        ut(f"s_add_u32 m0, s90, {1024*i}\n s_nop 0\n buffer_load_dwordx4 v{6+i%2}, {sr(S_U,4)}, s82 offen nt lds", tag='ut')
        if i % 2: ut(f"s_add_u32 s82, s82, {16*1280}")
    p("s_mov_b32 s5, s82")
    for b in pf[:NOW]: p.extend(b)
    srd(p, S_WSB, P_WS, WS_SIZE)
    token_load(p, S_WSB, Z)
    p(f"""s_lshl_b32 s38, s80, 18
    s_lshl_b32 s82, s81, 10
    s_add_u32 s38, s38, s82
    s_add_u32 s38, s38, {WS_UT}
    s_lshl_b32 s39, s80, 12
    s_add_u32 s39, s39, {WS_UF}
    s_lshl_b32 s82, s81, 7
    s_add_u32 s101, s39, s82
    v_bfe_u32 v14, v0, 1, 3
    v_lshlrev_b32 v14, 4, v14
    v_lshl_add_u32 v14, v{LN}, 7, v14
    v_add_u32 v14, s90, v14
    v_lshlrev_b32 v39, 4, v{LN}
    v_cmp_eq_u32 vcc, 0, v{LN}
    v_mov_b32 v15, {OOB:#x}
    v_cndmask_b32 v15, v15, v{Z}, vcc""")
    UR = 188
    r1 = Prog(); r1.waitvm('ut')
    for j in range(8): r1(f"v_xor_b32 v17, {16*j}, v14\n ds_read_b128 {vr(UR+4*j,4)}, v17")
    r2 = []
    for j in range(0, 8, 2):
        q = Prog()
        for jj in (j, j + 1): q(f"buffer_store_dwordx4 {vr(UR+4*jj,4)}, v39, {sr(S_WSB,4)}, s38 offen sc1\n s_add_u32 s38, s38, 32768", tag='us')
        r2.append(q)
    r3 = Prog()
    r3.waitvm('us')
    r3(f"buffer_store_dword v{V_TOK}, v15, {sr(S_WSB,4)}, s101 offen sc1")
    tk = Prog(); token_make(tk)
    U0, U1, U3 = opt('u0', 6), opt('u1', 30), opt('u3', 55)
    sched = {}
    for k, b in ((U0, [ut]), (U1 - 2, [tk]), (U1, [r1]), (U1 + 2, r2[:2]), (U1 + 3, r2[2:]), (U3, [r3])): sched.setdefault(k, []).extend(b)
    for k, b in enumerate(pf[NOW:]): sched.setdefault(opt('pfa', 0) + 3 * k, []).append(b)
    for k, b in enumerate(prefetch2()): sched.setdefault(42 + 3 * k, []).append(b)
    p(f"s_lshl_b32 s80, s69, 4\n s_add_u32 s80, s80, 1280")
    srd(p, S_O, P_OUT, 0, 's80')
    p(f"s_sub_u32 s{S_O+2}, {2048*2560}, s80")
    kg_setup(p, B_KR, B_SC)
    t = 40
    p(f"""v_mov_b32 v20, 0
    v_mov_b32 v21, 0
    v_mov_b32 v22, 0
    v_mov_b32 v23, 0
    v_lshlrev_b32 v{t}, 4, v{L15}
    ds_write_b128 v{t}, v[20:23] offset:{B_RAW}
    v_and_b32 v{t}, 31, v0
    v_lshl_add_u32 v38, v{t}, 4, s83
    ds_write_b128 v38, v[20:23] offset:4096
    v_lshlrev_b32 v{t+1}, 5, v{L15}
    v_sub_u32 v{A_KB}, s83, v{t+1}
    v_lshl_add_u32 v{A_KB}, v{G}, 4, v{A_KB}
    v_add_u32 v{A_KB}, 480, v{A_KB}""")
    stamp(p)
    kgen(p, PR, sched)
    stamp(p)
    Y = 184; UB = 216
    p(f"""v_and_b32 v17, 31, v0
    v_lshlrev_b32 v17, 7, v17
    s_lshl_b32 s38, s69, 15
    s_lshl_b32 s80, s68, 13
    s_add_u32 s38, s38, s80
    s_add_u32 s38, s38, {WS_UT}
    s_add_u32 s80, s80, {B_RAW+256}""")
    p(f"s_mov_b32 s94, {SPIN*8}")
    spinpoll(p, "b_pu", S_WSB, 's39', 18, 17, f"v_cmp_eq_u32 vcc, v{V_TOK}, v18", None)
    stamp(p)
    for i in range(8):
        p(f"s_add_u32 m0, s80, {1024*i}\n s_nop 0\n buffer_load_dwordx4 v39, {sr(S_WSB,4)}, s38 offen sc1 lds\n s_add_u32 s38, s38, 1024", tag='raw')
    p(f"""v_bfe_u32 v{t}, v0, 2, 2
    v_lshl_add_u32 v{t}, v{G}, 3, v{t}
    v_bfe_u32 v{t+1}, v0, 1, 1
    v_lshl_add_u32 v{t}, v{t+1}, 2, v{t}
    v_lshlrev_b32 v{t}, 4, v{t}
    v_and_b32 v{t+1}, 1, v0
    v_lshl_add_u32 v{t}, v{t+1}, 3, v{t}
    s_lshl_b32 s80, s68, 9
    v_add_u32 v{t}, s80, v{t}
    v_and_b32 v{t+1}, 7, v0
    v_mul_u32_u24 v{t+1}, {2*CP}, v{t+1}
    v_bfe_u32 v{t+2}, v0, 3, 1
    v_lshl_add_u32 v{t+1}, v{t+2}, 3, v{t+1}
    v_lshl_add_u32 v{t+1}, v{G}, 4, v{t+1}
    s_lshl_b32 s80, s68, 6
    s_add_u32 s80, s80, {B_UC}
    v_add_u32 v{t+1}, s80, v{t+1}
    s_cmp_eq_u32 s68, 0
    s_cselect_b32 s80, 2, 0
    v_cmp_gt_u32 vcc, s80, v{G}
    v_mov_b32 v{t+2}, {B_END - 4096}
    s_mul_i32 s81, s68, {2*CP}
    v_cndmask_b32 v{t+3}, v{t+2}, v{t+1}, vcc
    s_add_u32 s81, s81, {B_UC}
    v_and_b32 v{t+4}, 1, v0
    v_mul_u32_u24 v{t+4}, {CP}, v{t+4}
    v_lshrrev_b32 v{t+5}, 1, v{L15}
    v_lshl_add_u32 v{t+5}, v{G}, 2, v{t+5}
    v_lshl_add_u32 v{t+4}, v{t+5}, 2, v{t+4}
    v_add_u32 v{UB}, s81, v{t+4}
    v_add_u32 v{UB+1}, 1024, v{UB}
    v_add_u32 v{UB+2}, 2048, v{UB}
    v_add_u32 v{UB+3}, 3072, v{UB}
    s_mul_i32 s80, s68, {YP}
    v_lshlrev_b32 v{t+4}, 5, v{L15}
    v_lshl_add_u32 v{t+4}, v{G}, 3, v{t+4}
    v_add_u32 v{UB+4}, s80, v{t+4}
    s_lshl_b32 s90, s69, 2
    s_add_u32 s90, s90, s68
    s_lshl_b32 s91, s90, 12
    s_add_u32 s91, s91, {WS_KR}
    s_lshl_b32 s90, s90, 7
    s_add_u32 s90, s90, {WS_KF}
    s_sub_u32 s92, s84, s83
    v_add_u32 v38, s92, v38""")
    p.waitvm('raw'); p("s_waitcnt lgkmcnt(0)\n s_barrier")
    stamp(p)
    p(f"ds_write_b128 v38, v[20:23] offset:4096")
    jobs = [(k, pp) for k in range(17) for pp in range(2)]
    NBUF = 8
    def rdj(n):
        k, pp = jobs[n]; p(f"ds_read_b64_tr_b16 {vr(48+2*(n%NBUF),2)}, v{t} offset:{B_RAW + 16*(1+pp) + 2048*k}")
    def wrj(n):
        k, pp = jobs[n]
        p(f"ds_write_b64 v{t+3 if k == 16 else t+1}, {vr(48+2*(n%NBUF),2)} offset:{pp*CP + 256*k}")
    for n in range(NBUF): rdj(n)
    for n in range(len(jobs)):
        wrj(n)
        if n + NBUF < len(jobs): rdj(n + NBUF)
    def fa(b, a): return ar((b % 2) * 64 + 4 * a, 4)
    def fb(b, c): return ar((b % 2) * 64 + 32 + 4 * c, 4)
    def reads(b, kind='ku'):
        q = Prog()
        for a in range(8):
            o = 128 * (a % 2) + 16 * b; r0 = (b % 2) * 64 + 4 * a
            if 'k' in kind: q(f"ds_read_b128 {fb(b,a)}, v{A_KB} offset:{512*(7-a)+64*b}")
            if 'u' in kind:
                q(f"ds_read2_b32 {ar(r0,2)}, v{UB+a//2} offset0:{o} offset1:{o+1}")
                q(f"ds_read2_b32 {ar(r0+2,2)}, v{UB+a//2} offset0:{o+2} offset1:{o+3}")
        return q
    def krdma(tag):
        for i in range(4):
            p(f"s_add_u32 m0, s84, {1024*i}\n s_nop 0\n buffer_load_dwordx4 v39, {sr(S_WSB,4)}, s91 offen sc1 lds\n s_add_u32 s91, s91, 1024", tag=tag)
    p("s_mov_b32 s93, 0\n s_mov_b32 s95, 0\n s_waitcnt lgkmcnt(0)\n s_barrier")
    stamp(p)
    p("b_conv:")
    p.extend(reads(0))
    prs = sorted([(a, c) for c in range(8) for a in range(c + 1)], key=lambda x: (max(x[0], x[1] - x[0]), x[1]))
    EB = opt('eb', 5)
    for b in range(8):
        m = Prog(); seen = set(); lvl = -1
        for a, c in prs:
            first = b == 0 and c not in seen; seen.add(c)
            if max(a, c - a) != lvl and (b == 0 or max(a, c - a) in (0, 4)):
                lvl = max(a, c - a); hi = lvl if b == 0 else lvl + 3
                m.need([fa(b, x) for x in range(lvl, hi + 1)] + [fb(b, x) for x in range(lvl, hi + 1)])
            mfma(m, vr(Y + 4 * c, 4), fa(b, a), fb(b, c - a), '0' if first else None)
        if b == EB: p(f"buffer_load_dword v7, v{Z}, {sr(S_WSB,4)}, s90 offen sc1")
        if b == EB + 1:
            p(f"""v_cmp_eq_u32 vcc, v{V_TOK}, v7
            s_cmp_lg_u32 s93, 0
            s_cselect_b64 s[80:81], 0, -1
            s_and_b64 vcc, vcc, s[80:81]""")
            p("s_cbranch_scc0 b_noearly", tag='keep')
            krdma('offpath')
            p("s_mov_b32 s95, 1", tag='offpath')
            p("b_noearly:")
        p.extend(pack(m, [(singles(reads(b + 1)), 2, 30)] if b < 7 else [], cap=4))
    for c in range(8):
        d = 40 + 2 * (c % 4)
        p(f"v_cvt_pk_bf16_f32 v{d}, v{Y+4*c}, v{Y+4*c+1}\n v_cvt_pk_bf16_f32 v{d+1}, v{Y+4*c+2}, v{Y+4*c+3}")
        p(f"ds_write_b64 v{UB+4}, {vr(d,2)} offset:{B_RAW+512*c}")
    p("s_cmp_lg_u32 s93, 0")
    p("s_cbranch_scc1 b_fin")
    stamp(p)
    p(f"""s_mov_b32 s93, 1
    v_add_u32 v{A_KB}, s92, v{A_KB}""")
    for k in range(4): p(f"v_add_u32 v{UB+k}, {8*CP}, v{UB+k}")
    p(f"v_add_u32 v{UB+4}, {4*YP}, v{UB+4}\n s_cmp_eq_u32 s95, 1")
    p("s_cbranch_scc1 b_have")
    p(f"s_mov_b32 s94, {SPIN}")
    p("b_poll:")
    p(f"""buffer_load_dword v7, v{Z}, {sr(S_WSB,4)}, s90 offen sc1
    s_sub_u32 s94, s94, 1
    s_waitcnt vmcnt(0)
    v_cmp_eq_u32 vcc, v{V_TOK}, v7
    s_cmp_eq_u32 s94, 0
    s_cbranch_scc1 b_got
    s_cmp_eq_u64 vcc, 0
    s_cbranch_scc1 b_poll""")
    p("b_got:")
    krdma(None)
    p("b_have:")
    p("s_waitcnt vmcnt(0)\n s_branch b_conv")
    p("b_fin:")
    stamp(p)
    p(f"""v_bfe_u32 v{t+8}, v0, 2, 2
    v_mul_u32_u24 v{t+8}, {YP}, v{t+8}
    v_and_b32 v{t+9}, 3, v0
    v_lshl_add_u32 v{t+8}, v{t+9}, 3, v{t+8}
    v_lshl_add_u32 v{t+8}, v{G}, 5, v{t+8}
    s_lshl_b32 s80, s68, 10
    v_add_u32 v{t+8}, s80, v{t+8}
    v_mul_u32_u24 v{t+9}, 2560, v{LN}
    s_mul_i32 s80, s68, {512*2560}""")
    p("s_waitcnt lgkmcnt(0)\n s_barrier")
    for it in range(8):
        for h in range(2):
            p(f"ds_read_b64_tr_b16 {vr(56+4*it+2*h,2)}, v{t+8} offset:{B_RAW + h*4*YP + 128*it}")
    for it in range(8 if not opt('nofin', 0) else 0):
        p(f"buffer_store_dwordx4 {vr(56+4*it,4)}, v{t+9}, {sr(S_O,4)}, s80 offen {OPT.get('bst', '')}")
        p(f"s_add_u32 s80, s80, {64*2560}")
    if opt('wb', 0) == 1: p("s_waitcnt vmcnt(0)\n buffer_wbl2 sc1")
    if opt('wb', 0) == 2: p("s_waitcnt vmcnt(0)\n s_barrier\n s_cmp_lg_u32 s68, 0\n s_cbranch_scc1 b_nowb\n buffer_wbl2 sc1\n b_nowb:")
    stamp(p)
    stamp_store(p, S_WSB)
    p("s_endpgm")
    return p

def role_S():
    p = Prog(); nstamp[0] = 32
    p("roleS:")
    p(f"""s_getpc_b64 s[40:41]
    cpf_here:
    s_sub_u32 s40, s40, cpf_here-{NAME}_kernel
    s_subb_u32 s41, s41, 0
    s_lshr_b32 s42, s2, 3
    s_and_b32 s42, s42, 1
    s_lshl_b32 s42, s42, 15
    v_lshlrev_b32 v8, 7, v0
    v_add_u32 v8, s42, v8
    v_cmp_gt_u32 vcc, code_end-{NAME}_kernel, v8
    v_cndmask_b32 v8, 0, v8, vcc
    global_load_dword v250, v8, s[40:41]""")
    if STAMP: p("v_mov_b32 v255, 0")
    stamp(p)
    p(f"s_sub_u32 s69, s2, 208")
    kg_lanes(p)
    p(f"""s_lshl_b32 s90, s69, 2
    s_add_u32 s90, s90, s68
    s_lshl_b32 s71, s69, 3
    s_add_u32 s71, s71, s68
    s_add_u32 s71, s71, 4""")
    kg_params(p, 's71', PR)
    p(f"s_add_u32 s71, s71, 384\n s_min_u32 s71, s71, 639")
    kg_params(p, 's71', PR + 6)
    pf = prefetch1()[:opt('pfs', 3)]; NOW = opt('pfnow', 3)
    for b in pf[:NOW]: p.extend(b)
    srd(p, S_U, P_WS, WS_ZERO_END)
    srd(p, S_O, P_DBG, 256)
    srd(p, S_WSB, P_WS, WS_SIZE)
    token_load(p, S_WSB, BZ)
    p(f"""s_lshl_b32 s70, s69, 12
    v_lshlrev_b32 v6, 4, v0
    v_mov_b32 v20, 0
    v_mov_b32 v21, 0
    v_mov_b32 v22, 0
    v_mov_b32 v23, 0
    buffer_store_dwordx4 v[20:23], v6, {sr(S_U,4)}, s70 offen sc1
    s_cmp_lt_u32 s69, {NZERO_WG}
    s_cselect_b32 s4, 0, -1
    v_cmp_eq_u32 vcc, s4, v0
    v_mov_b32 v7, 1
    v_mov_b32 v38, {OOB:#x}
    v_cndmask_b32 v39, v38, v{BZ}, vcc""")
    kg_setup(p, S_KR, S_SC)
    p(f"""v_cmp_eq_u32 vcc, 0, v{BL}
    v_lshlrev_b32 v184, 4, v{BL}
    v_add_u32 v185, s83, v184
    v_cndmask_b32 v38, v38, v{BZ}, vcc
    s_waitcnt vmcnt(0)
    s_barrier
    buffer_atomic_add v7, v39, {sr(S_O,4)}, 0 offen sc1""")
    token_make(p)
    p("s_kloop:", tag='keep')
    sched = {}
    for k, b in enumerate(pf[NOW:]): sched.setdefault(3 * k, []).append(b)
    for k, b in enumerate(prefetch2()): sched.setdefault(36 + 3 * k, []).append(b)
    kgen(p, PR, sched)
    for i in range(4): p(f"ds_read_b128 {vr(48+4*i,4)}, v185 offset:{1024*i}")
    p(f"s_lshl_b32 s91, s90, 12\n s_add_u32 s91, s91, {WS_KR}")
    for i in range(4): p(f"buffer_store_dwordx4 {vr(48+4*i,4)}, v184, {sr(S_WSB,4)}, s91 offen offset:{1024*i} sc1")
    p("s_waitcnt vmcnt(0)")
    p(f"""s_lshl_b32 s91, s90, 7
    s_add_u32 s91, s91, {WS_KF}
    buffer_store_dword v{V_TOK}, v38, {sr(S_WSB,4)}, s91 offen sc1
    s_add_u32 s90, s90, 192""")
    for k in range(6): p(f"v_mov_b32 v{PR+k}, v{PR+6+k}")
    stamp(p)
    p("s_cmp_lt_u32 s90, 320\n s_cbranch_scc1 s_kloop")
    p("s_cmp_ge_u32 s2, 240")
    stamp(p)
    p("s_cbranch_scc1 s_done")
    srd(p, S_DBG, P_DBG, 256)
    if XM == 0:
        p("""s_and_b32 s72, s2, 7
        s_lshr_b32 s69, s72, 1
        s_lshl_b32 s69, s69, 2
        s_lshr_b32 s73, s2, 3
        s_sub_u32 s73, s73, 26
        s_add_u32 s69, s69, s73
        s_and_b32 s83, s72, 1""")
    else:
        p("""s_and_b32 s69, s2, 7
        s_lshl_b32 s69, s69, 1
        s_lshr_b32 s73, s2, 3
        s_sub_u32 s73, s73, 26
        s_and_b32 s83, s73, 1
        s_lshr_b32 s73, s73, 1
        s_add_u32 s69, s69, s73""")
    p(f"""s_add_u32 s83, s83, 8
    s_lshl_b32 s83, s83, 7
    s_mul_i32 s84, s68, {GR}
    v_and_b32 v{LN}, 63, v0
    v_mov_b32 v{V_Z}, 0""")
    setup_g2(p)
    for i in range(5): unpark(p, f'wo{i}', V_XO + i)
    for G in range(15, 19):
        for b in issue_group(G): p.extend(b)
    p(f"""v_and_b32 v249, 7, v0
    v_lshlrev_b32 v249, 13, v249
    s_lshl_b32 s85, s69, 9
    s_lshl_b32 s81, s68, 7
    s_add_u32 s85, s85, s81
    s_add_u32 s85, s85, {WS_KVF}""")
    pollall(p, "s_pf", S_WS, 's85', 248, 249, opt('slp', 8))
    p("s_branch g2_tail")
    p("s_done:")
    p(f"""s_cmp_lg_u32 s2, 255
    s_cbranch_scc1 s_fin
    s_cmp_lg_u32 s68, 0
    s_cbranch_scc1 s_fin
    v_lshlrev_b32 v187, 7, v{BL}
    s_mov_b32 s91, {WS_EP}""")
    p("s_ep:")
    p("s_sub_u32 s91, s91, 8192")
    pollall(p, "s_epp", S_WSB, 's91', 186, 187, 32)
    p(f"""s_cmp_gt_u32 s91, {WS_KVF}
    s_cbranch_scc1 s_ep
    s_mov_b32 s4, {WS_EP}
    buffer_store_dword v{V_TOK}, v38, {sr(S_WSB,4)}, s4 offen sc1""")
    p("s_fin:")
    if STAMP:
        stamp_store(p, S_WSB)
    p("done:\n s_endpgm\n code_end:")
    return p

def main():
    LDS = max(A_END + 16, B_END + 4608)
    assert LDS <= 163840, LDS
    ref = open(f"cdna_kernels/{NAME}.s.ref").read().split('\n')
    hdr = [l for l in ref if l.startswith(';') and '@launch' not in l]
    s = '\n'.join(hdr) + f"\n; @launch grid=(256,1,1) block=(256,1,1) lds={LDS}\n"
    s += f""".amdgcn_target "amdgcn-amd-amdhsa--gfx950"
.text
.globl {NAME}_kernel
.p2align 8
.type {NAME}_kernel,@function
{NAME}_kernel:
"""
    e = Prog()
    e(f"""s_cmp_ge_u32 s2, 256
    s_cbranch_scc1 done""")
    if opt('cpf2', 0):
        e(f"""s_getpc_b64 s[36:37]
        v_lshlrev_b32 v2, 7, v0
        s_cmp_ge_u32 s2, 128
        s_cselect_b32 s38, roleB-{NAME}_kernel, 0
        v_add_u32 v2, s38, v2
        v_min_u32 v2, code_end-{NAME}_kernel-64, v2
        global_load_dword v253, v2, s[36:37]""", tag='offpath')
    e(f"""
    s_load_dwordx16 s[8:23], s[0:1], 0
    s_load_dwordx8 s[24:31], s[0:1], 64
    s_load_dwordx4 s[32:35], s[0:1], 96
    v_lshrrev_b32 v1, 6, v0
    s_nop 0
    v_readfirstlane_b32 s68, v1
    s_cmp_ge_u32 s2, 208
    s_cbranch_scc1 roleS
    s_cmp_ge_u32 s2, 128
    s_cbranch_scc1 roleB""")
    a = role_A()
    e.extend(a)
    L = lower(e) + lower(role_B()) + lower(role_S())
    if opt('align', 1):
        L, nn, npro = align8(L, sizes_of(s + render(L)))
        print("align: nops", nn, "promoted", npro)
    s += render(L)
    s += f""".section .rodata,"a"
.p2align 6
.amdhsa_kernel {NAME}_kernel
  .amdhsa_next_free_vgpr 512
  .amdhsa_next_free_sgpr 102
  .amdhsa_accum_offset 256
  .amdhsa_group_segment_fixed_size 0
  .amdhsa_kernarg_size 112
  .amdhsa_user_sgpr_count 2
  .amdhsa_user_sgpr_kernarg_segment_ptr 1
  .amdhsa_system_sgpr_workgroup_id_x 1
.end_amdhsa_kernel
"""
    out = OPT.get('out', f"cdna_kernels/{NAME}.s")
    open(out, 'w').write(s)
    print("LDS", LDS, "A_END", A_END, "B_END", B_END, "lines", s.count('\n'))
main()
```

```python
import sys, struct
from gasm import Prog, finalize, merge, spread, singles, pack, bundles, lower, render, sizes_of, align8
NAME = "concat_heads__linear_kernel_hedgehog__ssm_conv_s4d__prompt"
OPT = dict(a.split('=') for a in sys.argv[1:] if '=' in a)
def opt(k, d): return type(d)(OPT.get(k, d))
STAMP = opt('stamp', 0)
ROT = opt('rot', 2)
def f2u(x): return struct.unpack('<I', struct.pack('<f', x))[0]
def vr(a, n): return f"v[{a}:{a+n-1}]" if n > 1 else f"v{a}"
def ar(a, n): return f"a[{a}:{a+n-1}]" if n > 1 else f"a{a}"
def sr(a, n): return f"s[{a}:{a+n-1}]" if n > 1 else f"s{a}"
def magic(d): return (2**32 + d - 1) // d

WS_KV = 0; WS_ZERO_END = 32 * 4096; WS_KVF = WS_ZERO_END; WS_KF = WS_KVF + 65536; WS_UF = WS_KF + 40960; WS_EP = WS_UF + 40960
WS_O = 262144; WS_STAMP = 4 << 20; WS_SIZE = 8 << 20
NSPARE = 48
NZERO_WG = 32
assert WS_EP + 128 <= WS_O
V_TOK = 253; V_CNT = 251
P_X, P_W, P_PHI, P_WO, P_U, P_LA, P_AI, P_CR, P_CI, P_LDT, P_DS, P_OUT, P_DBG, P_WS = [8 + 2 * i for i in range(14)]
OOB = 0x80000000
SPIN = 400000

def srd(p, s, ptr, size, off=None):
    if off is None:
        p(f"s_mov_b32 s{s}, s{ptr}\n s_mov_b32 s{s+1}, s{ptr+1}")
    else:
        p(f"s_add_u32 s{s}, s{ptr}, {off}\n s_addc_u32 s{s+1}, s{ptr+1}, 0")
    p(f"s_mov_b32 s{s+2}, {size}\n s_mov_b32 s{s+3}, 0x20000")

nstamp = [0]
def stamp(p, sreg_base=96):
    if not STAMP: return
    k = nstamp[0]; nstamp[0] += 1
    if k in (0, 32): p(f"s_getreg_b32 s36, hwreg(HW_REG_HW_ID)\n v_writelane_b32 v255, s36, 60\n s_getreg_b32 s36, hwreg(HW_REG_XCC_ID)\n v_writelane_b32 v255, s36, 59")
    if k == 0: p(f"s_memrealtime s[36:37]\n s_waitcnt lgkmcnt(0)\n v_writelane_b32 v255, s36, 62")
    p(f"s_memtime s[36:37]\n s_waitcnt lgkmcnt(0)\n v_writelane_b32 v255, s36, {k}")
def stamp_store(p, wsrd):
    if not STAMP: return
    p(f"s_waitcnt vmcnt(0)\n s_memtime s[36:37]\n s_waitcnt lgkmcnt(0)\n v_writelane_b32 v255, s36, 61\n s_memrealtime s[36:37]\n s_waitcnt lgkmcnt(0)\n v_writelane_b32 v255, s36, 63")
    p(f"""s_lshl_b32 s36, s2, 2
    s_add_u32 s36, s36, s68
    s_lshl_b32 s36, s36, 8
    s_add_u32 s36, s36, {WS_STAMP}
    v_and_b32 v254, 63, v0
    v_lshlrev_b32 v254, 2, v254
    buffer_store_dword v255, v254, {sr(wsrd,4)}, s36 offen""")

def token_load(p, wsrd, vz):
    p(f"s_mov_b32 s4, {WS_EP}\n buffer_load_dword v{V_TOK}, v{vz}, {sr(wsrd,4)}, s4 offen sc1")
def token_make(p):
    p(f"""s_mov_b32 s4, 0x9e3779b1
    v_mul_lo_u32 v{V_TOK}, v{V_TOK}, s4
    v_add_u32 v{V_TOK}, 0x7f4a7c15, v{V_TOK}""")
def token_seen(p, dsrd, vt):
    p(f"""v_cmp_eq_u32 vcc, 0, v0
    v_mov_b32 v{vt}, {OOB:#x}
    v_mov_b32 v{V_CNT}, 1
    v_cndmask_b32_e64 v{vt}, v{vt}, 0, vcc
    buffer_atomic_add v{V_CNT}, v{vt}, {sr(dsrd,4)}, 8 offen sc1""")
def spinpoll(p, name, srdreg, soff, vt, va, cmp, init, period=None):
    period = period or opt('period', 24)
    p(f"v_mov_b32 v{vt}, {init}" if init is not None else f"v_not_b32 v{vt}, v{V_TOK}", tag='offpath')
    p(f"{name}:")
    p(f"""buffer_load_dword v{vt}, v{va}, {sr(srdreg,4)}, {soff} offen sc1
    s_mov_b32 s95, {period}""", tag='offpath')
    p(f"{name}_i:")
    p(f"""{cmp}
    s_sub_u32 s94, s94, 1
    s_cbranch_scc1 {name}_x
    s_cmp_eq_u64 vcc, -1
    s_cbranch_scc1 {name}_x
    s_sub_u32 s95, s95, 1
    s_cbranch_scc0 {name}_i
    s_waitcnt vmcnt(24)
    s_branch {name}""", tag='offpath')
    p(f"{name}_x:")
def pollall(p, name, srdreg, soff, vt, va, slp=0):
    p(f"s_mov_b32 s94, {SPIN}")
    p(f"{name}:")
    p(f"""buffer_load_dword v{vt}, v{va}, {sr(srdreg,4)}, {soff} offen sc1
    s_sub_u32 s94, s94, 1
    s_waitcnt vmcnt(0)
    v_cmp_eq_u32 vcc, v{V_TOK}, v{vt}
    s_cmp_eq_u32 s94, 0""")
    p(f"s_cbranch_scc1 {name}_x", tag='keep')
    p(f"s_cmp_eq_u64 vcc, -1")
    if slp:
        p(f"s_cbranch_scc1 {name}_x", tag='keep')
        p(f"s_sleep {slp}\n s_branch {name}", tag='keep')
    else: p(f"s_cbranch_scc0 {name}", tag='keep')
    p(f"{name}_x:")

A_RING = 0; NSLOT = 16; GR = 5120
A_PHIK = NSLOT * GR; PHI_RS = 352
A_VST = A_PHIK + 128 * PHI_RS
A_BD = A_VST + 20480
A_END = A_BD + 12800
A_KVIMG = A_PHIK
S_X, S_W, S_WO, S_WS, S_OUT, S_DBG, S_PHI = 40, 44, 48, 52, 56, 60, 64
V_XO = 1
V_XD = 5
V_WD = 9
V_TA = 14
V_Z = 22; V_T = 23
V_WF = 32
V_KA = 112; V_VA = 152; V_PA = 192; V_X = 240
OLD = 'sc1' if opt('osc1', 0) else ''

def mfma(p, d, a, b, c=None):
    p(f"v_mfma_f32_16x16x32_bf16 {d}, {a}, {b}, {d if c is None else c}")
def mfma32(p, d, a, b, c=None):
    p(f"v_mfma_f32_32x32x16_bf16 {d}, {a}, {b}, {d if c is None else c}")

LN = V_T; t = V_T + 1
parked = {}
def park(p, name, v):
    if name not in parked: parked[name] = 204 + len(parked)
    assert parked[name] < 256
    p(f"v_accvgpr_write_b32 a{parked[name]}, v{v}")
def unpark(q, name, v): q(f"v_accvgpr_read_b32 v{v}, a{parked[name]}")

def trbase(p, d, rowk, rowrho, extra=0):
    p(f"""v_bfe_u32 v{t}, v0, 5, 1
    v_mul_u32_u24 v{t}, {rowk}, v{t}
    v_bfe_u32 v{t+1}, v0, 2, 2
    v_mul_u32_u24 v{t+1}, {rowrho}, v{t+1}
    v_bfe_u32 v{t+2}, v0, 4, 1
    v_lshl_add_u32 v{t}, v{t+2}, 5, v{t}
    v_and_b32 v{t+2}, 3, v0
    v_lshl_add_u32 v{t}, v{t+2}, 3, v{t}
    v_add_u32 v{d}, v{t}, v{t+1}""")
    if extra: p(f"v_add_u32 v{d}, {extra}, v{d}")

def setup_g2(p):
    srd(p, S_WO, P_WO, 640 * 1280)
    srd(p, S_WS, P_WS, WS_SIZE)
    p(f"s_mul_i32 s78, s69, {128*2560}\n s_add_u32 s78, s78, s83")
    srd(p, S_OUT, P_OUT, 0, 's78')
    p(f"s_sub_u32 s{S_OUT+2}, {2048*2560}, s78")
    p(f"""s_lshr_b32 s79, s68, 1
    s_mul_i32 s79, s79, {80*1280}
    s_add_u32 s79, s79, s83
    s_and_b32 s85, s68, 1
    s_mul_i32 s85, s85, 40
    s_lshl_b32 s78, s69, 2
    s_add_u32 s78, s78, s68
    s_mul_i32 s78, s78, 40960
    s_add_u32 s92, s78, {WS_O}""")
    for i in range(5):
        p(f"""v_lshrrev_b32 v{t}, 3, v{LN}
        v_add_u32 v{t}, s85, v{t}
        v_add_u32 v{t}, {8*i}, v{t}
        v_lshrrev_b32 v{t+1}, 4, v{t}
        v_and_b32 v{t+2}, 7, v{t}
        v_lshl_add_u32 v{t+1}, v{t+1}, 3, v{t+2}
        v_bfe_u32 v{t+2}, v{t}, 3, 1
        v_mad_u32_u24 v{t+2}, v{t+2}, 20, v{t+1}
        v_add_u32 v{t+3}, 20, v{t+2}
        v_cmp_le_u32 vcc, 20, v{t+1}
        v_cndmask_b32 v{t+2}, v{t+2}, v{t+3}, vcc
        v_mul_u32_u24 v{t+2}, 1280, v{t+2}
        v_bfe_u32 v{t}, v{t}, 1, 1
        v_lshlrev_b32 v{t}, 2, v{t}
        v_and_b32 v{t+1}, 7, v0
        v_xor_b32 v{t}, v{t}, v{t+1}
        v_lshl_add_u32 v{t}, v{t}, 4, v{t+2}""")
        park(p, f'wo{i}', t)
    trbase(p, t + 3, 8 * 128, 128)
    p(f"""v_bfe_u32 v{t}, v0, 3, 1
    v_lshl_add_u32 v{t+3}, v{t}, 6, v{t+3}""")
    park(p, 'two', t + 3)
    p(f"""s_add_u32 s78, s84, {A_VST}
    v_and_b32 v{t}, 31, v0
    v_mul_u32_u24 v{t}, 144, v{t}
    v_bfe_u32 v{t+1}, v0, 5, 1
    v_lshl_add_u32 v{t}, v{t+1}, 3, v{t}
    v_add_u32 v{t}, s78, v{t}""")
    park(p, 'outw', t)
    p(f"""v_lshrrev_b32 v{t}, 3, v{LN}
    v_and_b32 v{t+1}, 7, v0
    v_lshlrev_b32 v{t+1}, 4, v{t+1}
    v_mul_u32_u24 v{t+2}, 144, v{t}
    v_add3_u32 v{t+2}, v{t+2}, v{t+1}, s78
    v_mul_u32_u24 v{t}, 2560, v{t}
    v_add_u32 v{t}, v{t}, v{t+1}""")
    park(p, 'outr', t + 2); park(p, 'outg', t)

def dma_bundles(G, hdr, items):
    B = []
    hdr(items[0][0]); B.append(hdr)
    for k, (m0, ld) in enumerate(items):
        q = Prog(); q(ld, tag=('dma', G))
        if k + 1 < len(items): q(items[k + 1][0])
        B.append(q)
    return B
def issue_group(G):
    slotbase = A_RING + (G % 4) * 4 * GR
    h = Prog()
    if G < 10:
        h(f"s_mul_i32 s86, s80, {64*3840}\n s_add_u32 s86, s86, s82\n s_lshl_b32 s81, s80, 7")
        h(f"s_add_u32 s80, s80, 1\n s_cmp_eq_u32 s80, 10\n s_cselect_b32 s80, 0, s80")
        sd = S_W
    elif G < 15:
        h(f"""s_lshl_b32 s86, s71, 1
        s_add_u32 s86, s86, s68
        s_add_u32 s86, s86, {4*(G-10)}
        s_sub_u32 s74, s86, 20
        s_cmp_ge_u32 s86, 20
        s_cselect_b32 s86, s74, s86
        s_mul_i32 s86, s86, {32*3840}
        s_add_u32 s86, s86, s75""")
        sd = S_W
    else:
        h(f"s_add_u32 s86, s79, {(G%4)*160*1280}")
        sd = S_WO
    W = [(f"s_add_u32 m0, s84, {slotbase + 1024*i}", f"buffer_load_dwordx4 v{V_QD[i] if 10 <= G < 15 else (V_WD+i if G < 10 else V_XO+i)}, {sr(sd,4)}, s86 offen {'nt' if opt('ntw', 0) else ''} lds") for i in range(5)]
    if G < 10:
        X = [(f"s_add_u32 m0, s87, {(G%4)*4096 + 1024*r}", f"buffer_load_dwordx4 v{V_XD+r}, {sr(S_X,4)}, s81 offen {'nt' if opt('ntx', 0) else ''} lds") for r in range(4)]
        items = [W[0], X[0], W[1], X[1], W[2], X[2], W[3], X[3], W[4]]
    else: items = W
    return dma_bundles(G, h, items)
V_QD = [21, 29, 30, 31, 252]

OF = lambda n: 88 + 4 * n
G2ACC = 56
def gemm2_tail(p):
    F = V_WF
    p("g2_tail:")
    unpark(p, 'two', V_TA)
    p(f"""v_xor_b32 v{V_TA+1}, 64, v{V_TA}
    v_add_u32 v{V_TA+2}, {8*GR}, v{V_TA}
    v_add_u32 v{V_TA+3}, {8*GR}, v{V_TA+1}
    v_lshlrev_b32 v{t+2}, 4, v{LN}
    v_lshrrev_b32 v{t+4}, 3, v{LN}
    v_mul_u32_u24 v{t+4}, 5120, v{t+4}
    v_and_b32 v{t}, 7, v0
    v_lshl_add_u32 v{t+4}, v{t}, 7, v{t+4}
    s_mov_b32 s94, {SPIN*8}
    s_add_u32 s93, s92, 4096
    s_barrier""")
    unpark(p, 'outw', t); unpark(p, 'outr', t + 1); unpark(p, 'outg', t + 3)
    stamp(p)
    def reads(n):
        hq, pp = divmod(n, 5); q = Prog(); fb = F + (n % 3) * 8
        off = hq * 10240 + pp * 2048; hi = 0
        if hq >= 4: off -= 8 * GR; hi = 2
        for T in range(2):
            for h in range(2):
                q(f"ds_read_b64_tr_b16 {vr(fb+4*T+2*h,2)}, v{V_TA+hi+T} offset:{off + 512*h}")
        return q
    p("g2_retry:")
    p.extend(reads(0)); p.extend(reads(1))
    p(f"s_mov_b32 s81, s92\n v_mov_b32 v248, 0")
    p("g2_poll:")
    p(f"""buffer_load_dword v249, v{t+4}, {sr(S_WS,4)}, s93 offen sc1
    s_sub_u32 s94, s94, 1
    s_waitcnt vmcnt(0)
    v_cmp_ne_u32 vcc, -1, v249
    s_cmp_lt_i32 s94, 1""")
    p("s_cbranch_scc1 g2_go", tag='keep')
    p("s_cmp_eq_u64 vcc, -1")
    p("s_cbranch_scc1 g2_go", tag='keep')
    p(f"s_sleep {opt('gslp', 2)}\n s_branch g2_poll", tag='keep')
    p("g2_go:")
    stamp(p)
    def oload(n):
        q = Prog(); hq, pp = divmod(n, 5)
        if pp == 4: q(f"s_add_u32 s85, s81, 4096")
        q(f"buffer_load_dwordx4 {vr(OF(n),4)}, v{t+2}, {sr(S_WS,4)}, {'s85' if pp == 4 else 's81'} offen offset:{1024*(pp%4)} sc1")
        if pp == 4: q("s_add_u32 s81, s81, 5120")
        return q
    PRE = opt('opre', 10)
    for n in range(PRE): p.extend(oload(n))
    for n in range(40):
        fb = F + (n % 3) * 8
        mm = Prog(); mm.need([vr(fb, 8), vr(OF(n), 4)])
        for T in range(2): mfma32(mm, vr(G2ACC + 16 * T, 16), vr(fb + 4 * T, 4), vr(OF(n), 4), '0' if n == 0 else None)
        st = []
        if n + 2 < 40: st.append((singles(reads(n + 2)), 0, 2))
        if n + PRE < 40: st.append(([oload(n + PRE)], 0, 1))
        c = Prog(); c(f"v_max3_u32 v248, v248, v{OF(n)}, v{OF(n)+1}\n v_max3_u32 v248, v248, v{OF(n)+2}, v{OF(n)+3}")
        st.append((singles(c), 1, 2))
        p.extend(pack(mm, st, cap=32))
    p(f"""v_cmp_eq_u32 vcc, -1, v248
    s_mul_i32 s78, s68, {32*2560}
    s_cmp_lt_i32 s94, 1""")
    p("s_cbranch_scc1 g2_out", tag='keep')
    p("s_sub_u32 s94, s94, 1\n s_nop 7\n s_nop 7")
    p("s_cbranch_vccnz g2_retry", tag='keep')
    p("g2_out:")
    stamp(p)
    for T in range(2):
        for j in range(4):
            x = G2ACC + 16 * T + 4 * j; o = 88 + 8 * T + 2 * j
            p(f"v_cvt_pk_bf16_f32 v{o}, v{x}, v{x+1}\n v_cvt_pk_bf16_f32 v{o+1}, v{x+2}, v{x+3}")
            p(f"ds_write_b64 v{t}, {vr(o,2)} offset:{64*T+16*j}")
    for i in range(4): p(f"ds_read_b128 {vr(104+4*i,4)}, v{t+1} offset:{8*144*i}")
    for i in range(4):
        p(f"buffer_store_dwordx4 {vr(104+4*i,4)}, v{t+3}, {sr(S_OUT,4)}, s78 offen {OPT.get('ast', '')}")
        if i < 3: p(f"s_add_u32 s78, s78, {8*2560}")
    stamp(p)
    stamp_store(p, S_WS)
    p("s_endpgm")

def divc(p, d, x, c):
    m, sh = {10: (205, 11), 20: (205, 12), 12: (171, 11), 5: (205, 10), 100: (41, 12)}[c]
    p(f"v_mul_u32_u24 v{d}, {m}, v{x}\n v_lshrrev_b32 v{d}, {sh}, v{d}")

V_PO = 160
V_D = 200
XM = opt('xm', 0)
def decode_ab(p, tmp, sub, sb, hg):
    p(f"s_lshr_b32 {tmp}, s2, 3")
    if sub: p(f"s_sub_u32 {tmp}, {tmp}, {sub}")
    if XM == 0:
        p(f"""s_and_b32 s{sb}, s2, 6
        s_lshl_b32 s{sb}, s{sb}, 1
        s_and_b32 s{hg}, s2, 1
        s_lshl_b32 s{hg}, s{hg}, 2
        s_and_b32 s4, {tmp}, 3
        s_add_u32 s{hg}, s{hg}, s4
        s_lshr_b32 {tmp}, {tmp}, 2
        s_add_u32 s{sb}, s{sb}, {tmp}""")
    else:
        p(f"""s_and_b32 s{sb}, s2, 7
        s_lshl_b32 s{sb}, s{sb}, 1
        s_and_b32 s{hg}, {tmp}, 7
        s_lshr_b32 {tmp}, {tmp}, 3
        s_add_u32 s{sb}, s{sb}, {tmp}""")
def role_A():
    p = Prog(); nstamp[0] = 0
    p("roleA:")
    stamp(p)
    decode_ab(p, 's73', 0, 69, 70)
    if ROT == 2:
        p("""s_add_u32 s71, s69, s70
        s_mul_i32 s71, s71, 3
        s_mul_i32 s74, s71, 205
        s_lshr_b32 s74, s74, 11
        s_mul_i32 s74, s74, 10
        s_sub_u32 s71, s71, s74""")
    else:
        p(f"s_mul_i32 s71, s71, {5 if ROT else 0}\n s_add_u32 s71, s71, {1 if ROT else 0}\n s_lshr_b32 s71, s71, 1")
    p(f"""v_and_b32 v{LN}, 63, v0
    v_mov_b32 v{V_Z}, 0""")
    p(f"""s_lshl_b32 s76, s68, 5
    v_lshrrev_b32 v{t}, 3, v{LN}
    v_add_u32 v{t}, s76, v{t}
    v_mul_u32_u24 v{t}, 1280, v{t}
    v_and_b32 v{t+1}, 7, v0
    v_bfe_u32 v{t+2}, v0, 4, 2
    v_xor_b32 v{t+1}, v{t+1}, v{t+2}
    v_lshl_add_u32 v{V_XD}, v{t+1}, 4, v{t}
    v_xor_b32 v{V_XD+1}, 64, v{V_XD}
    v_add_u32 v{V_XD+1}, {8*1280}, v{V_XD+1}
    v_add_u32 v{V_XD+2}, {16*1280}, v{V_XD}
    v_add_u32 v{V_XD+3}, {16*1280}, v{V_XD+1}""")
    p(f"s_movk_i32 s78, 1120")
    for i in range(5):
        p(f"v_add_u32 v{t}, {64*i}, v{LN}")
        divc(p, t + 1, t, 20)
        p(f"""v_mul_u32_u24 v{t+2}, 20, v{t+1}
        v_sub_u32 v{t}, v{t}, v{t+2}
        v_mul_u32_u24 v{t+1}, 3840, v{t+1}
        v_cmp_le_u32 vcc, 10, v{t}
        v_lshl_add_u32 v{t+1}, v{t}, 4, v{t+1}
        v_add_u32 v{t+2}, s78, v{t+1}
        v_cndmask_b32 v{V_WD+i}, v{t+1}, v{t+2}, vcc""")
    p(f"""s_mov_b32 s80, s71
    s_mul_i32 s75, s70, 160
    s_mul_i32 s82, s68, {16*3840}
    s_add_u32 s82, s82, s75
    s_add_u32 s82, s82, 1280
    s_lshl_b32 s83, s70, 7
    s_mul_i32 s84, s68, {GR}
    s_lshl_b32 s87, s68, 14
    s_add_u32 s87, s87, {A_PHIK}
    s_mul_i32 s78, s69, {128*1280}""")
    srd(p, S_X, P_X, 128 * 1280, 's78')
    srd(p, S_W, P_W, 640 * 3840)
    su = Prog()
    trbase(su, V_TA, 8 * 320, 320)
    su(f"""v_add_u32 v{V_TA+1}, {8*GR}, v{V_TA}
    v_and_b32 v{t}, 31, v0
    v_bfe_u32 v{t+1}, v0, 1, 3
    v_bfe_u32 v{t+2}, v0, 5, 1
    v_xor_b32 v{t+1}, v{t+1}, v{t+2}
    v_lshlrev_b32 v{t+1}, 4, v{t+1}
    v_lshl_add_u32 v{t}, v{t}, 7, v{t+1}
    v_add_u32 v{V_XO}, s87, v{t}
    v_xor_b32 v{V_XO+1}, 32, v{V_XO}
    v_xor_b32 v{V_XO+2}, 64, v{V_XO}
    v_xor_b32 v{V_XO+3}, 96, v{V_XO}""")
    su(f"""v_mov_b32 v{V_X+4}, 0
    v_mov_b32 v{V_X+5}, 0
    v_mov_b32 v{V_X+6}, 0
    v_mov_b32 v{V_X+7}, 0
    v_lshlrev_b32 v{t}, 4, v0
    v_add_u32 v{t}, {A_BD}, v{t}
    v_min_u32 v{t+1}, {A_BD+496}, v{t}
    ds_write_b128 v{t}, {vr(V_X+4,4)}
    ds_write_b128 v{t}, {vr(V_X+4,4)} offset:4096
    ds_write_b128 v{t}, {vr(V_X+4,4)} offset:8192
    ds_write_b128 v{t+1}, {vr(V_X+4,4)} offset:12288""")
    L2E = 1.4426950408889634
    su(f"s_mov_b32 s88, {f2u(L2E):#x}\n s_mov_b32 s89, {f2u(L2E):#x}")
    for r in range(2):
        su(f"v_add_u32 v{t}, {256*r}, v0")
        divc(su, t + 1, t, 5); divc(su, t + 2, t, 100)
        su(f"""v_mul_u32_u24 v{t+1}, 120, v{t+1}
        v_mad_u32_u24 v{t+1}, v{t+2}, 40, v{t+1}
        v_lshl_add_u32 v{t+1}, v{t}, 3, v{t+1}
        v_add_u32 v{V_X+8+r}, {A_BD}, v{t+1}""")
    su(f"""v_mov_b32 v{t+1}, {A_END}
    v_cmp_gt_u32 vcc, 400, v{t}
    v_cndmask_b32 v{V_X+9}, v{t+1}, v{V_X+9}, vcc""")
    srd(su, S_DBG, P_DBG, 256)
    for i in range(5):
        su(f"v_add_u32 v{t}, {64*i}, v{LN}")
        divc(su, t + 1, t, 10)
        su(f"""v_mul_u32_u24 v{t+2}, 10, v{t+1}
        v_sub_u32 v{t}, v{t}, v{t+2}
        v_and_b32 v{t+2}, 24, v{t+1}
        v_and_b32 v{t+3}, 1, v{t+1}
        v_lshl_add_u32 v{t+2}, v{t+3}, 2, v{t+2}
        v_bfe_u32 v{t+3}, v{t+1}, 1, 2
        v_add_u32 v{t+2}, v{t+2}, v{t+3}
        v_mul_u32_u24 v{t+2}, 3840, v{t+2}
        v_lshl_add_u32 v{V_QD[i]}, v{t}, 4, v{t+2}""")
    su(f"""v_bfe_u32 v{t}, v0, 5, 1
    v_bfe_u32 v{t+1}, v0, 2, 2
    v_lshl_add_u32 v{t}, v{t}, 2, v{t+1}
    v_mul_u32_u24 v{t}, 160, v{t}
    v_and_b32 v{t+1}, 1, v0
    v_mad_u32_u24 v{t}, v{t+1}, 40, v{t}
    v_bfe_u32 v{t+1}, v0, 4, 1
    v_bfe_u32 v{t+2}, v0, 1, 1
    v_lshl_add_u32 v{t+1}, v{t+1}, 1, v{t+2}
    v_lshl_add_u32 v{t}, v{t+1}, 3, v{t}
    v_add_u32 v18, {A_BD}, v{t}
    v_cmp_eq_u32 vcc, 0, v{t+1}
    v_add_u32 v19, 32, v18
    v_add_u32 v{t+2}, 72, v18
    v_cndmask_b32 v19, v{t+2}, v19, vcc
    v_cmp_gt_u32 vcc, 2, v{t+1}
    v_add_u32 v20, 104, v18
    v_nop
    v_cndmask_b32 v20, v18, v20, vcc""".replace("    v_nop\n", ""))
    trbase(su, t + 3, 8 * 160, 320); park(su, 'tq', t + 3)
    su(f"""v_and_b32 v{t}, 31, v0
    v_add_u32 v{t}, s76, v{t}
    v_bfe_u32 v{t+1}, v0, 5, 1
    v_mul_u32_u24 v{t+2}, {PHI_RS}, v{t}
    v_mul_u32_u24 v{t+3}, 80, v{t+1}
    v_add_u32 v{t+2}, v{t+2}, v{t+3}
    v_add_u32 v{t+2}, {A_PHIK}, v{t+2}
    v_mul_u32_u24 v{t}, 160, v{t}
    v_lshl_add_u32 v{t}, v{t+1}, 3, v{t}
    v_add_u32 v{t}, {A_VST}, v{t}""")
    park(su, 'phiw', t + 2); park(su, 'vw', t)
    su(f"""v_bfe_u32 v{t}, v0, 2, 4
    v_and_b32 v{t+1}, 3, v0
    v_mul_u32_u24 v{t+2}, {PHI_RS}, v{t}
    v_lshl_add_u32 v{t+2}, v{t+1}, 3, v{t+2}
    s_mul_i32 s78, s68, 80
    s_add_u32 s78, s78, {A_PHIK}
    v_add_u32 v{t+2}, s78, v{t+2}
    s_mul_i32 s78, s68, 40
    s_add_u32 s78, s78, {A_VST}
    v_mul_u32_u24 v{t}, 160, v{t}
    v_add_u32 v{t}, s78, v{t}
    v_lshl_add_u32 v{t+1}, v{t+1}, 3, v{t}
    v_add_u32 v{t}, 32, v{t}""")
    park(su, 'phir', t + 2); park(su, 'vr0', t + 1); park(su, 'vr1', t)
    a0 = V_PA
    su(f"""v_and_b32 v{t+3}, 15, v0
    v_bfe_u32 v{t+4}, v0, 4, 2
    v_cmp_gt_u32 s[90:91], 8, v{t+3}
    v_lshlrev_b32 v{t}, 2, v{t+3}
    v_mul_u32_u24 v{t+1}, 768, v{t+4}
    v_add_u32 v{a0}, v{t}, v{t+1}
    v_add_u32 v{t+1}, {192-32}, v{a0}
    v_cndmask_b32 v{a0+1}, v{t+1}, v{a0}, s[90:91]
    v_mul_u32_u24 v{t+1}, 192, v{t+4}
    v_add_u32 v{t+1}, {16*192}, v{t+1}
    v_add_u32 v{a0+2}, v{t+1}, v{t}
    v_mov_b32 v{t+2}, {OOB:#x}
    v_cmp_gt_u32 vcc, 40, v{LN}
    v_cndmask_b32 v{a0+3}, v{t+2}, v{a0+2}, s[90:91]
    v_lshlrev_b32 v{t+1}, 2, v{LN}
    v_add_u32 v{t+1}, {20*192}, v{t+1}
    v_cndmask_b32 v{a0+4}, v{t+2}, v{t+1}, vcc
    v_cmp_eq_u32 vcc, 0, v{LN}
    v_cmp_gt_u32 s[90:91], 4, v{t+3}
    v_cndmask_b32 v{a0+6}, v{t+2}, v{V_Z}, vcc""")
    for k in range(5): park(su, f'at{k}', a0 + k)
    park(su, 'l0', a0 + 6)
    su(f"s_mul_i32 s85, s68, 1920\n s_add_u32 s85, s85, {A_KVIMG}\n v_mov_b32 v{t+4}, {A_KVIMG+9600}")
    for i in range(4):
        su(f"v_add_u32 v{t}, {64*i}, v{LN}")
        divc(su, t + 1, t, 12)
        su(f"""v_mul_u32_u24 v{t+2}, 12, v{t+1}
        v_sub_u32 v{t+2}, v{t}, v{t+2}
        v_cmp_gt_u32 vcc, 10, v{t+2}
        v_mul_u32_u24 v{t+1}, 80, v{t+1}
        v_lshl_add_u32 v{t+1}, v{t+2}, 3, v{t+1}
        v_add_u32 v{t+1}, s85, v{t+1}
        v_cndmask_b32 v{t+1}, v{t+4}, v{t+1}, vcc""")
        if i == 3: su(f"v_cmp_gt_u32 vcc, 60, v{LN}\n v_cndmask_b32 v{t+1}, v{t+4}, v{t+1}, vcc")
        park(su, f'kvw{i}', t + 1)
    su(f"""v_cmp_gt_u32 vcc, 120, v0
    v_lshlrev_b32 v{t}, 4, v0
    v_add_u32 v{t}, {A_KVIMG+7680}, v{t}
    v_cndmask_b32 v{t}, v{t+4}, v{t}, vcc""")
    park(su, 'kvz', t)
    su(f"""v_bfe_u32 v{t}, v0, 3, 2
    v_and_b32 v{t+1}, 3, v0
    v_lshl_add_u32 v{t}, v{t}, 2, v{t+1}
    v_mul_u32_u24 v{t}, 80, v{t}
    v_bfe_u32 v{t+1}, v0, 2, 1
    v_bfe_u32 v{t+4}, v0, 5, 1
    v_cmp_eq_u32 vcc, v{t+1}, v{t+4}
    v_mul_u32_u24 v{t+2}, 1920, v{t+1}
    v_add_u32 v{t}, v{t}, v{t+2}
    v_add_u32 v{t}, {A_KVIMG}, v{t}
    v_add_u32 v{t+3}, 3840, v{t}
    v_mov_b32 v{t+2}, {A_KVIMG+7680}
    v_cndmask_b32 v{t}, v{t+2}, v{t}, vcc
    v_cndmask_b32 v{t+3}, v{t+2}, v{t+3}, vcc""")
    park(su, 'kvr0', t); park(su, 'kvr1', t + 3)
    setup_g2(su)
    wl = Prog()
    wl("s_mul_i32 s77, s70, 3200")
    srd(wl, S_PHI, P_PHI, 3200, 's77')
    wl(f"""v_lshlrev_b32 v{V_X+10}, 3, v0
    buffer_load_dwordx2 {vr(V_X,2)}, v{V_X+10}, {sr(S_PHI,4)}, 0 offen
    buffer_load_dwordx2 {vr(V_X+2,2)}, v{V_X+10}, {sr(S_PHI,4)}, 0 offen offset:2048""")
    token_load(su, S_WS, V_Z)
    iss = issue_group(0) + [wl]
    sub = bundles(su)
    LEAD = opt('lead', 7)
    per = opt('suchunk', 30)
    for k, b in enumerate(iss):
        p.extend(b)
        if k >= LEAD:
            for x in sub[:per]: p.extend(x)
            sub = sub[per:]
    for x in sub: p.extend(x)
    for b in issue_group(1): p.extend(b)
    stamp(p)

    def sync(p, G):
        p.waitvm(('dma', G)); p("s_barrier")
    p("s_waitcnt lgkmcnt(0)")
    sync(p, 0)
    stamp(p)
    FD = 2
    def kv_reads(k):
        q = Prog(); fb = V_WF + (k % 3) * 20
        slot = k % NSLOT; base = V_TA + (slot >= 8); so = (slot % 8) * GR
        q(f"ds_read_b128 {ar(4*k,4)}, v{V_XO+k%4} offset:{((k//4)%4)*4096}")
        for T in range(5):
            for h in range(2):
                q(f"ds_read_b64_tr_b16 {vr(fb+4*T+2*h,2)}, v{base} offset:{so + 1280*h + 64*T}")
        return q
    PH = [(0, 0), (0, 1), (0, 2), (1, 0), (1, 1), (1, 2), (1, 3), (1, 4), (2, 2), (2, 3), (2, 4)]
    bdr = Prog()
    for n, (U, ka) in enumerate(PH):
        for h in range(2): bdr(f"ds_read_b64_tr_b16 {ar(160+4*n+2*h,2)}, v{18+U} offset:{(16*ka+8*h)*160}")
    bdr = singles(bdr)
    for k in range(FD): p.extend(kv_reads(k))
    segs = [list(range(0, 4 - FD))] + [list(range(4 * G - FD, 4 * G + 4 - FD)) for G in range(1, 10)] + [list(range(40 - FD, 40))]
    for si, steps in enumerate(segs):
        if si >= 1:
            if si == 10: p("s_waitcnt lgkmcnt(0)")
            if STAMP == 2: stamp(p)
            sync(p, si)
        m = Prog(); st = []
        for n, k in enumerate(steps):
            fb = V_WF + (k % 3) * 20
            m.need([vr(fb, 20), ar(4 * k, 4)])
            for T in range(5): mfma32(m, vr(V_KA + 16 * T, 16), vr(fb + 4 * T, 4), ar(4 * k, 4), '0' if k == 0 else None)
            if k + FD < 40: st.append((singles(kv_reads(k + FD)), 5 * n, 5 * n + 5))
        st.append((issue_group(si + 2), 0, None))
        if si == 1:
            w = Prog(); w(f"ds_write_b64 v{V_X+8}, {vr(V_X,2)}\n ds_write_b64 v{V_X+9}, {vr(V_X+2,2)}")
            st.append((singles(w), 2, 12))
        if si == 2:
            w = Prog(); token_make(w); st.append((singles(w), 0, None))
        if si == 8:
            w = Prog(); w(f"buffer_load_dword v{V_X+10}, v{V_Z}, {sr(S_DBG,4)}, 0 offen sc1")
            st.append(([w], 0, 1))
        if si == 10:
            w = Prog(); unpark(w, 'vw', t + 1); unpark(w, 'phiw', t + 2); unpark(w, 'tq', V_TA + 2)
            w(f"v_add_u32 v{V_TA+3}, {8*GR}, v{V_TA+2}")
            for i in range(5): unpark(w, f'wo{i}', V_XO + i)
            w(f"""v_lshlrev_b32 v{t}, 4, v{LN}
            s_mul_i32 s77, s70, 5120
            s_add_u32 s77, s77, s92
            s_add_u32 s78, s77, 4096""")
            st.append((singles(w), 0, None)); st.append((bdr, 0, None))
        p.extend(pack(m, st))
    stamp(p)

    def phi_step(p, acc, out, extra=None, inexp=None):
        B = V_WF; E = V_WF + 24; M = V_WF + 64
        cv = [f"v_cvt_pk_bf16_f32 v{B+k}, v{acc+2*k}, v{acc+2*k+1}" for k in range(20)]
        def minmax(y):
            q = Prog(); x = V_PA + y * 20; Mx = M + 8 * y
            q(f"v_max3_f32 v{Mx}, v{x}, v{x+1}, v{x+2}\n v_min3_f32 v{Mx+2}, v{x}, v{x+1}, v{x+2}")
            for k in range(3, 19, 2):
                q(f"v_max3_f32 v{Mx}, v{Mx}, v{x+k}, v{x+k+1}\n v_min3_f32 v{Mx+2}, v{Mx+2}, v{x+k}, v{x+k+1}")
            q(f"v_max_f32 v{Mx}, v{Mx}, v{x+19}\n v_min_f32 v{Mx+2}, v{Mx+2}, v{x+19}")
            q(f"v_mul_f32 v{Mx}, s88, v{Mx}\n v_mul_f32 v{Mx+2}, s88, v{Mx+2}")
            return q
        for c in cv[:8]: p(c)
        m = Prog(); seen = set()
        for n, (U, ka) in enumerate(PH):
            mfma32(m, vr(V_PA + 16 * U, 16), ar(160 + 4 * n, 4), vr(B + 4 * ka, 4), None if U in seen else '0'); seen.add(U)
        c2 = Prog()
        for c in cv[8:]: c2(c)
        st = [(singles(c2), 0, 2)]
        if extra: st.append((bundles(extra), 2, 11))
        p.extend(pack(m, st, cap=28))
        for y in range(2):
            x = V_PA + y * 20; Mx = M + 8 * y
            p.extend(minmax(y))
            for q in range(10):
                p(f"v_pk_fma_f32 {vr(E+2*q,2)}, {vr(x+2*q,2)}, s[88:89], {vr(Mx,2)} op_sel_hi:[1,1,0] neg_lo:[0,0,1] neg_hi:[0,0,1]")
                p(f"v_pk_fma_f32 {vr(E+20+2*q,2)}, {vr(x+2*q,2)}, s[88:89], {vr(Mx+2,2)} op_sel_hi:[1,1,0] neg_lo:[1,0,0] neg_hi:[1,0,0]")
            for q in range(40):
                p(f"v_exp_f32 v{E+q}, v{E+q}")
                if y == 0 and inexp and q % 6 == 5: p.extend(inexp.pop(0))
            for q in range(1, 10):
                for hh in range(2):
                    S = Mx + 4 + 2 * hh; e = E + 20 * hh
                    p(f"v_pk_add_f32 {vr(S,2)}, {vr(e if q == 1 else S,2)}, {vr(e+2*q,2)}")
            p(f"v_add_f32 v{Mx+4}, v{Mx+4}, v{Mx+5}\n v_add_f32 v{Mx+6}, v{Mx+6}, v{Mx+7}")
            p(f"v_rcp_f32 v{Mx+4}, v{Mx+4}\n v_rcp_f32 v{Mx+6}, v{Mx+6}")
            for hh in range(2):
                for q in range(10):
                    e = E + 20 * hh + 2 * q
                    p(f"v_pk_mul_f32 {vr(e,2)}, {vr(e,2)}, {vr(Mx+4+2*hh,2)} op_sel_hi:[1,0]")
            yield y
            for q in range(20):
                p(f"v_cvt_pk_bf16_f32 v{out+y*20+q}, v{E+2*q}, v{E+2*q+1}")

    def q_reads(k):
        q = Prog(); fb = V_WF + (k % 3) * 12
        slot = (40 + k // 2) % NSLOT; base = V_TA + 2 + (slot >= 8); so = (slot % 8) * GR + (k % 2) * 2560
        for T in range(3):
            for h in range(2):
                q(f"ds_read_b64_tr_b16 {vr(fb+4*T+2*h,2)}, v{base} offset:{so + 160*h + 64*T}")
        return q
    ex = Prog()
    for mm_ in range(10):
        a = V_VA + 4 * mm_; d = V_X + 2 * (mm_ % 4)
        ex(f"v_cvt_pk_bf16_f32 v{d}, v{a}, v{a+1}\n v_cvt_pk_bf16_f32 v{d+1}, v{a+2}, v{a+3}\n ds_write_b64 v{t+1}, {vr(d,2)} offset:{16*mm_}")
    w = Prog(); w0 = Prog()
    for k in range(4): w0(f"v_mov_b32 v{V_X+4+k}, -1")
    for pc in range(5):
        w(f"buffer_store_dwordx4 {vr(V_X+4,4)}, v{t}, {sr(S_WS,4)}, {'s78' if pc == 4 else 's77'} offen offset:{1024*(pc%4)} sc1")
    for y in phi_step(p, V_KA, V_PO, ex, [w0] + singles(w)):
        if y == 1:
            p.extend(q_reads(0));
    p.extend(q_reads(1))
    stamp(p)
    p(f"""v_readfirstlane_b32 s95, v{V_X+10}
    s_mov_b32 s94, {SPIN}
    s_cmp_ge_u32 s95, {NZERO_WG}""")
    p("s_cbranch_scc1 a_pz_x", tag='keep')
    p("a_pz:")
    p(f"""buffer_load_dword v{V_X+10}, v{V_Z}, {sr(S_DBG,4)}, 0 offen sc1
    s_sub_u32 s94, s94, 1
    s_waitcnt vmcnt(0)
    v_readfirstlane_b32 s95, v{V_X+10}
    s_cmp_eq_u32 s94, 0""", tag='offpath')
    p("s_cbranch_scc1 a_pz_x", tag='keep')
    p(f"s_cmp_ge_u32 s95, {NZERO_WG}")
    p("s_cbranch_scc0 a_pz", tag='keep')
    p("a_pz_x:")
    pw = Prog()
    for y in range(2):
        for q in range(5): pw(f"ds_write_b128 v{t+2}, {vr(V_PO+y*20+4*q,4)} offset:{160*y + 16*q}")
    pre = Prog()
    unpark(pre, 'phir', t); unpark(pre, 'vr0', t + 1); unpark(pre, 'vr1', t + 3)
    pre(f"v_mov_b32 v{t+4}, 0x3f803f80")
    for k in range(5): unpark(pre, f'at{k}', V_X + k)
    pre(f"""s_lshl_b32 s78, s70, 2
    s_add_u32 s78, s78, s68
    s_lshl_b32 s78, s78, 12
    s_add_u32 s78, s78, {WS_KV}""")
    KF = [72, 92, V_PO, V_PO + 20]
    def kvs_reads(sw):
        q = Prog(); fb = KF[sw]
        for h in range(2): q(f"ds_read_b64_tr_b16 {vr(fb+4+2*h,2)}, v{t+3} offset:{(sw*32+h*16)*160}")
        for h in range(2): q(f"ds_read_b64_tr_b16 {vr(fb+2*h,2)}, v{t+1} offset:{(sw*32+h*16)*160}")
        for nf in range(3):
            for h in range(2):
                q(f"ds_read_b64_tr_b16 {vr(fb+8+4*nf+2*h,2)}, v{t} offset:{(sw*32+h*16)*PHI_RS + 32*nf}")
        return q
    def kvs_mfma(m, sw):
        fb = KF[sw]
        m.need([vr(fb, 20)])
        for q in range(4): m(f"v_cndmask_b32 v{fb+4+q}, v{t+4}, v{fb+4+q}, s[90:91]")
        for md in range(2):
            for nf in range(3):
                mfma(m, vr(V_D + (3 * md + nf) * 4, 4), vr(fb + 4 * md, 4), vr(fb + 8 + 4 * nf, 4), '0' if sw == 0 else None)
    at = Prog(); a0 = V_X
    def atom(v, vo, off): at(f"buffer_atomic_add_f32 v{v}, v{vo}, {sr(S_WS,4)}, s78 offen offset:{off}", tag='kvat')
    for nf in range(2):
        for i in range(4): atom(V_D + 4 * nf + i, a0, i * 192 + nf * 64)
    R = lambda nf, i: V_D + 12 + 4 * nf + i
    for i in (0, 2):
        at(f"v_mov_b32_dpp v{V_D+8+i}, v{V_D+9+i} row_shr:8 row_mask:0xf bank_mask:0xc")
    for nf in range(3):
        at(f"v_permlane16_swap_b32 v{R(nf,0)}, v{R(nf,1)}\n v_permlane16_swap_b32 v{R(nf,2)}, v{R(nf,3)}")
    for i in (0, 2): atom(V_D + 8 + i, a0 + 1, i * 192 + 128)
    for nf in range(3): at(f"v_permlane32_swap_b32 v{R(nf,0)}, v{R(nf,2)}")
    at(f"v_permlane16_swap_b32 v{R(0,1)}, v{R(1,1)}")
    for nf in range(3): atom(R(nf, 0), a0 + (3 if nf == 2 else 2), nf * 64)
    at(f"v_permlane32_swap_b32 v{R(0,1)}, v{R(2,1)}")
    atom(R(0, 1), a0 + 4, 0)
    KS = opt('ks', 4)
    segs = [list(range(0, 6))] + [list(range(8 * g - 2, 8 * g + 6)) for g in range(1, 5)] + [[38, 39]]
    def signal():
        unpark(p, 'l0', V_X + 7)
        p(f"""s_lshl_b32 s78, s70, 13
        s_lshl_b32 s85, s69, 9
        s_add_u32 s78, s78, s85
        s_lshl_b32 s85, s68, 7
        s_add_u32 s78, s78, s85
        s_add_u32 s78, s78, {WS_KVF}""")
        p.waitvm('kvat')
        p(f"buffer_store_dword v{V_TOK}, v{V_X+7}, {sr(S_WS,4)}, s78 offen sc1")
    def qstep(k):
        m = Prog(); fb = V_WF + (k % 3) * 12
        m.need([vr(fb, 12)])
        for T in range(3): mfma32(m, vr(V_KA + 16 * T, 16), vr(fb + 4 * T, 4), ar(4 * k, 4), '0' if k == 0 else None)
        return m
    def qrun(steps, extra):
        m = Prog(); st = []
        for n, k in enumerate(steps):
            m.extend(qstep(k))
            if k + 2 < 40: st.append((singles(q_reads(k + 2)), 3 * n, 3 * n + 3))
        p.extend(pack(m, st + extra, cap=28))
    NW = opt('nw', 4)
    qrun(range(0, NW), [(singles(pw), 0, 3 * NW - 2), (bundles(pre), 2, None)])
    if STAMP == 3: stamp(p)
    p("s_waitcnt lgkmcnt(0)\n s_barrier")
    kr = Prog()
    for sw in range(4): kr.extend(kvs_reads(sw))
    kr = singles(kr)
    for x in kr[:10]: p.extend(x)
    qrun(range(NW, 6), [(kr[10:], 0, None), (issue_group(13), 0, None)])
    if NW >= 6:
        for x in kr[10:]: p.extend(x)
    for sw in range(4): kvs_mfma(p, sw)
    if STAMP == 3: stamp(p)
    for si, steps in enumerate(segs):
        G = 10 + si
        if si == 0: continue
        if STAMP == 3 and si > 1: stamp(p)
        if si == KS: signal()
        if G < 15: sync(p, G)
        if si == 1: qrun(steps, [(singles(at), 0, opt('atspan', 24))])
        elif si < 5: qrun(steps, [(issue_group(G + 2), 0, None)])
        else: qrun(steps, [])
    if KS == 6: signal()
    stamp(p)
    F = V_WF
    ex = Prog()
    unpark(ex, 'kvz', t)
    ex(f"""v_mov_b32 v{V_X}, 0
    v_mov_b32 v{V_X+1}, 0
    v_mov_b32 v{V_X+2}, 0
    v_mov_b32 v{V_X+3}, 0
    ds_write_b128 v{t}, {vr(V_X,4)}
    v_lshlrev_b32 v{t+1}, 7, v{LN}
    v_lshlrev_b32 v{t+2}, 4, v{LN}
    s_lshl_b32 s78, s70, 13
    s_add_u32 s78, s78, {WS_KVF}
    s_lshl_b32 s77, s70, 2
    s_add_u32 s77, s77, s68
    s_lshl_b32 s77, s77, 12
    s_add_u32 s77, s77, {WS_KV}""")
    for i in range(4): unpark(ex, f'kvw{i}', V_X + 4 + i)
    KL = V_KA + 32
    def kvloads(tag=None):
        for i in range(4):
            p(f"buffer_load_dwordx4 {vr(KL+4*i,4)}, v{t+2}, {sr(S_WS,4)}, s77 offen offset:{1024*i} sc1", tag=tag)
    ex(f"""buffer_load_dword v{V_X+8}, v{t+1}, {sr(S_WS,4)}, s78 offen sc1
    v_and_b32 v{t+3}, 7, v0
    v_lshlrev_b32 v{t+3}, 13, v{t+3}
    s_lshl_b32 s93, s69, 9
    s_lshl_b32 s81, s68, 7
    s_add_u32 s93, s93, s81
    s_add_u32 s93, s93, {WS_KVF}""")
    for y in phi_step(p, V_KA, V_PO, ex):
        if y == 0:
            p(f"v_cmp_eq_u32 vcc, v{V_TOK}, v{V_X+8}\n s_mov_b32 s95, 0\n s_nop 0\n s_cmp_eq_u64 vcc, -1")
            p("s_cbranch_scc0 a_noearly", tag='keep')
            kvloads('offpath')
            p("s_mov_b32 s95, 1", tag='offpath')
            p("a_noearly:")
            p(f"buffer_load_dword v{V_X+9}, v{t+3}, {sr(S_WS,4)}, s93 offen sc1")
        if y == 1:
            stamp(p)
            p("s_cmp_eq_u32 s95, 1")
            p("s_cbranch_scc1 a_have", tag='keep')
            pollall(p, "a_pk", S_WS, 's78', V_X + 8, t + 1)
            kvloads()
            p("a_have:")
            stamp(p)
            p("s_waitcnt vmcnt(0)")
            for i in range(4):
                p(f"v_cvt_pk_bf16_f32 v{F+2*i}, v{KL+4*i}, v{KL+4*i+1}\n v_cvt_pk_bf16_f32 v{F+1+2*i}, v{KL+4*i+2}, v{KL+4*i+3}")
                p(f"ds_write_b64 v{V_X+4+i}, {vr(F+2*i,2)}")
            p(f"v_cmp_eq_u32 vcc, v{V_TOK}, v{V_X+9}")
            unpark(p, 'kvr0', t); unpark(p, 'kvr1', t + 1)
            p("s_cmp_eq_u64 vcc, -1")
            p("s_cbranch_scc1 a_pf_x", tag='keep')
            q = Prog(); pollall(q, "a_pf", S_WS, 's93', V_X + 9, t + 3)
            for i_ in q.L: i_.tag = 'offpath' if i_.kind not in ('label',) else i_.tag
            p.extend(q)
            p(f"""s_mul_i32 s76, s70, 5120
            s_add_u32 s78, s92, s76
            s_add_u32 s81, s78, 4096
            s_mov_b32 s85, {f2u(1e-6):#x}""")
    p("s_waitcnt lgkmcnt(0)\n s_barrier")
    stamp(p)
    order = [(y, u, ka) for u in (1, 0) for y in range(2) for ka in range(5)]
    NB = 10; O = F + 48
    def ord_(n):
        y, u, ka = order[n]; q = Prog(); q(f"ds_read_b128 {vr(F+4*(n%NB),4)}, v{t+y} offset:{u*1280+16*ka}"); return q
    for n in range(NB): p.extend(ord_(n))
    def fin(y, ks):
        q = Prog(); dn = V_KA + 16 * y + 4
        vals = [V_D + 16 * y + r for r in range(16)] + [V_KA + 16 * y + r for r in range(4)]
        for k in ks:
            q(f"v_mul_f32 v{vals[2*k]}, v{dn}, v{vals[2*k]}\n v_mul_f32 v{vals[2*k+1]}, v{dn}, v{vals[2*k+1]}")
            q(f"v_cvt_pk_bf16_f32 v{O+10*y+k}, v{vals[2*k]}, v{vals[2*k+1]}")
        return q
    def ost(q, pc): q(f"buffer_store_dwordx4 {vr(O+4*pc,4)}, v{t+2}, {sr(S_WS,4)}, {'s81' if pc == 4 else 's78'} offen offset:{1024*(pc%4)} sc1", tag='ost')
    om = Prog()
    for n, (y, u, ka) in enumerate(order):
        if n in (0, 2, 5, 10, 15): om.need([vr(F + 4 * (m_ % NB), 4) for m_ in range(n, {0: 2, 2: 5}.get(n, n + 5))])
        mfma32(om, vr((V_D if u == 0 else V_KA) + 16 * y, 16), vr(F + 4 * (n % NB), 4), vr(V_PO + y * 20 + 4 * ka, 4), '0' if ka == 0 else None)
        if n + NB < 20: om.extend(ord_(n + NB))
    d0 = Prog(); d1 = Prog()
    for y, d in ((0, d0), (1, d1)):
        dn = V_KA + 16 * y + 4
        d(f"v_add_f32 v{dn}, s85, v{dn}\n v_rcp_f32 v{dn}, v{dn}"); d.extend(fin(y, (8, 9)))
    f0 = fin(0, range(4)); ost(f0, 0); f0.extend(fin(0, range(4, 8))); ost(f0, 1)
    p.extend(pack(om, [(issue_group(17) + issue_group(18), 0, 12), (singles(d0), 8, 11), (singles(d1), 12, 15), (singles(f0), 16, 20)], cap=28))
    dn = V_KA + 20
    for k in range(8):
        p(f"v_pk_mul_f32 {vr(V_D+16+2*k,2)}, {vr(V_D+16+2*k,2)}, {vr(dn,2)} op_sel_hi:[1,0]")
    for k in range(8):
        p(f"v_cvt_pk_bf16_f32 v{O+10+k}, v{V_D+16+2*k}, v{V_D+17+2*k}")
        if k in (1, 5, 7): ost(p, {1: 2, 5: 3, 7: 4}[k])
    stamp(p)
    p.waitvm(('dma', 18))
    gemm2_tail(p)
    return p

CP = 4168; YP = 4160; SRS = 544
B_RAW = 0
B_UC = 33280
B_KR = B_UC + 16 * CP
B_SC = B_KR + 4 * 4608
B_END = B_SC + 4 * 16 * SRS
S_KR = 81920; S_SC = S_KR + 4 * 4608
WS_KR = 4 << 20
BL, B15, BG, BZ = 1, 2, 3, 4
A_SW, A_SR, A_T0, A_T1, A_T1b, A_T2, A_X3, A_X2, A_X1, A_X0, A_KW, A_KW32, A_KB, MSK = range(24, 38)
PR = 8
S_U, S_LA, S_AI, S_CR, S_CI, S_LDT, S_DS, S_O, S_WSB = 40, 44, 48, 52, 56, 60, 64, 72, 76

def kg_lanes(p):
    p(f"""v_and_b32 v{BL}, 63, v0
    v_and_b32 v{B15}, 15, v0
    v_bfe_u32 v{BG}, v0, 4, 2
    v_mov_b32 v{BZ}, 0
    v_lshlrev_b32 v5, 2, v{BL}
    s_waitcnt lgkmcnt(0)""")
    for s_, ptr, size in ((S_LA, P_LA, 640*256), (S_AI, P_AI, 640*256), (S_CR, P_CR, 640*256), (S_CI, P_CI, 640*256), (S_LDT, P_LDT, 1280), (S_DS, P_DS, 1280)):
        srd(p, s_, ptr, size)
def kg_params(p, sch, P):
    p(f"s_lshl_b32 s81, {sch}, 8\n s_lshl_b32 s80, {sch}, 1")
    p(f"buffer_load_ushort v{P+4}, v{BZ}, {sr(S_LDT,4)}, s80 offen")
    for k, s_ in enumerate((S_LA, S_AI, S_CR, S_CI)):
        p(f"buffer_load_dword v{P+k}, v5, {sr(s_,4)}, s81 offen {'nt' if opt('ntp', 1) else ''}")
    p(f"buffer_load_ushort v{P+5}, v{BZ}, {sr(S_DS,4)}, s80 offen")
def kg_setup(p, KR, SC):
    t = 40
    p(f"""s_mul_i32 s83, s68, 4608
    s_add_u32 s83, s83, {KR}
    s_mul_i32 s84, s68, {16*SRS}
    s_add_u32 s84, s84, {SC}
    v_lshl_add_u32 v{A_SW}, v{BL}, 3, s84
    v_mul_u32_u24 v{A_SR}, {SRS}, v{B15}
    v_lshl_add_u32 v{A_SR}, v{BG}, 4, v{A_SR}
    v_add_u32 v{A_SR}, s84, v{A_SR}
    v_cmp_gt_u32 vcc, 2, v{BG}
    v_lshrrev_b32 v{t}, 1, v{BG}
    v_and_b32 v{t+1}, 1, v{BG}
    v_lshlrev_b32 v{A_T0}, 9, v{t}
    v_lshl_add_u32 v{A_T0}, v{t+1}, 4, v{A_T0}
    v_lshl_add_u32 v{A_T0}, v{B15}, 5, v{A_T0}
    v_add_u32 v{A_T0}, s84, v{A_T0}
    v_lshlrev_b32 v{t+2}, 4, v{B15}
    v_lshlrev_b32 v{t+3}, 3, v{B15}
    v_cndmask_b32 v{t+2}, v{t+3}, v{t+2}, vcc
    v_lshl_add_u32 v{A_T1}, v{BG}, 8, v{t+2}
    v_add_u32 v{A_T1}, s84, v{A_T1}
    v_mov_b32 v{t+2}, 128
    v_mov_b32 v{t+3}, 8
    v_cndmask_b32 v{t+2}, v{t+2}, v{t+3}, vcc
    v_add_u32 v{A_T1b}, v{A_T1}, v{t+2}
    v_lshlrev_b32 v{A_T2}, 8, v{BG}
    v_lshl_add_u32 v{A_T2}, v{B15}, 2, v{A_T2}
    v_add_u32 v{A_T2}, s84, v{A_T2}
    v_lshl_add_u32 v{A_X3}, v{BL}, 2, s84
    v_lshl_add_u32 v{A_X2}, v{BL}, 3, s84
    v_and_b32 v{t}, 31, v0
    v_lshl_add_u32 v{A_X1}, v{t}, 4, s84
    v_lshl_add_u32 v{A_X0}, v{t}, 5, s84
    v_lshlrev_b32 v{t+1}, 4, v{BL}
    v_sub_u32 v{A_KW}, s83, v{t+1}
    v_add_u32 v{A_KW}, 1008, v{A_KW}
    v_lshlrev_b32 v{t+1}, 4, v{t}
    v_sub_u32 v{A_KW32}, s83, v{t+1}
    v_add_u32 v{A_KW32}, 496, v{A_KW32}
    v_and_b32 v{t}, 1, v0
    v_cmp_eq_u32 vcc, 1, v{t}
    v_mov_b32 v{t+1}, 0xffff
    v_mov_b32 v{t+2}, -1
    v_cndmask_b32 v{MSK}, v{t+1}, v{t+2}, vcc
    s_mov_b32 s85, 0xffff
    s_mov_b32 s86, {f2u(1.4426950408889634):#x}
    s_mov_b32 s87, 0x32a57060
    s_mov_b32 s88, {f2u(0.6931471805599453):#x}
    s_mov_b32 s89, 0xffff0000""")

def exp_bf16(p, d, x, t):
    p(f"""v_mul_f32 v{t}, s86, v{x}
    v_fma_f32 v{t+1}, v{x}, s86, -v{t}
    v_exp_f32 v{t}, v{t}
    v_fma_f32 v{t+1}, v{x}, s87, v{t+1}
    v_mul_f32 v{t+1}, s88, v{t+1}
    v_fma_f32 v{t}, v{t}, v{t+1}, v{t}
    v_cvt_pk_bf16_f32 v{t}, v{t}, v{t}
    v_and_b32 v{d}, s89, v{t}""")
def cmul(p, c, a, b):
    p(f"v_pk_mul_f32 {vr(c,2)}, {vr(a,2)}, {vr(b,2)} op_sel:[0,0] op_sel_hi:[0,1]")
    p(f"v_pk_fma_f32 {vr(c,2)}, {vr(a,2)}, {vr(b,2)}, {vr(c,2)} op_sel:[1,1,0] op_sel_hi:[1,0,1] neg_lo:[0,1,0]")
def kgen(p, P, sched):
    E = lambda k, mu: 48 + 4 * (k - 1) + 2 * mu
    E8 = lambda mu: 76 + 2 * mu
    E128 = lambda mu: 80 + 2 * mu
    GA = lambda par, mu: 84 + 4 * par + 2 * mu
    XT = lambda k, mu: 92 + 4 * (k % 2) + 2 * mu
    PK = lambda k: 100 + 2 * (k % 4)
    FB = 108; FA = 140; DT = 172
    t = 40
    p(f"v_lshlrev_b32 v{t+6}, 16, v{P+4}")
    exp_bf16(p, t + 7, t + 6, t)
    p.need([vr(P, 6)])
    if STAMP == 4: stamp(p)
    rho = lambda mu: 92 + mu; th = lambda mu: 94 + mu
    p(f"v_add_f32 v{t+4}, v{t+7}, v{t+7}")
    for mu in range(2):
        up = (lambda d, s_: f"v_lshlrev_b32 v{d}, 16, v{s_}") if mu == 0 else (lambda d, s_: f"v_and_b32 v{d}, s89, v{s_}")
        p(up(t + 6, P))
        exp_bf16(p, t + 5, t + 6, t)
        p(f"v_mul_f32 v{t+5}, v{t+5}, v{t+7}\n v_mul_f32 v{rho(mu)}, s86, v{t+5}")
        p(up(t + 6, P + 1))
        p(f"v_mul_f32 v{t+6}, v{t+6}, v{t+7}\n v_mul_f32 v{th(mu)}, 0.15915494, v{t+6}")
        p(up(t + 5, P + 2)); p(up(t + 6, P + 3))
        p(f"v_mul_f32 v{GA(0,mu)}, v{t+5}, v{t+4}\n v_mul_f32 v{GA(0,mu)+1}, v{t+6}, v{t+4}")
    for pw, dst in ((8, E8), (1, lambda mu: E(1, mu)), (128, E128)):
        for mu in range(2):
            p(f"v_mul_f32 v{t+2*mu}, {f2u(-float(pw)):#x}, v{rho(mu)}\n v_mul_f32 v{t+2*mu+1}, {f2u(float(pw)):#x}, v{th(mu)}")
        for mu in range(2): p(f"v_exp_f32 v{t+2*mu}, v{t+2*mu}\n v_fract_f32 v{t+2*mu+1}, v{t+2*mu+1}")
        for mu in range(2): p(f"v_cos_f32 v{dst(mu)}, v{t+2*mu+1}\n v_sin_f32 v{dst(mu)+1}, v{t+2*mu+1}")
        for mu in range(2): p(f"v_pk_mul_f32 {vr(dst(mu),2)}, {vr(dst(mu),2)}, {vr(t+2*mu,2)} op_sel_hi:[1,0]")
    cnt = [0]; SIDE0 = opt('side0', 36); SIDEN = opt('siden', 2)
    def put(row, src, neg=False):
        k = cnt[0]; cnt[0] += 1
        for mu in range(2):
            a = src(mu)
            p(f"v_cvt_pk_bf16_f32 v{PK(k)+mu}, v{a}, {'-' if neg else ''}v{a+1}")
        p(f"ds_write_b64 v{A_SW}, {vr(PK(k),2)} offset:{row*SRS}")
        for b_ in sched.get(k, []): p.extend(b_)
    p(f"v_mov_b32 v{PK(3)}, 0x3f80\n v_mov_b32 v{PK(3)+1}, 0x3f80\n ds_write_b64 v{A_SW}, {vr(PK(3),2)}")
    put(1, E8, True)
    prev = E8
    for b in range(2, 16):
        cur = (lambda bb: (lambda mu: XT(bb, mu)))(b)
        for mu in range(2): cmul(p, cur(mu), prev(mu), E8(mu))
        put(b, cur, True); prev = cur
    if STAMP == 4: stamp(p)
    for ka in range(8): p(f"ds_read_b128 {vr(FB+4*ka,4)}, v{A_SR} offset:{64*ka}")
    for k in range(2, 8):
        for mu in range(2): cmul(p, E(k, mu), E(k - 1, mu), E(1, mu))
    al = [0]
    def Gcur(mu): return GA(al[0] % 2, mu)
    def Gnext():
        for mu in range(2): cmul(p, GA((al[0] + 1) % 2, mu), GA(al[0] % 2, mu), E128(mu))
        al[0] += 1
    def prod(row, k):
        if k == 0: put(row, Gcur); return
        for mu in range(2): cmul(p, XT(row, mu), Gcur(mu), E(k, mu))
        put(row, lambda mu: XT(row, mu))
    def tile(T):
        for ka in range(8): p(f"ds_read_b128 {vr(FA+4*ka,4)}, v{A_SR} offset:{64*ka}")
        return [f"v_mfma_f32_16x16x32_bf16 {vr(DT+4*T,4)}, {vr(FA+4*ka,4)}, {vr(FB+4*ka,4)}, {'0' if ka == 0 else vr(DT+4*T,4)}" for ka in range(8)]
    for a in range(2):
        for g in range(8): prod(8 * a + g, g)
        Gnext()
    if STAMP == 4: stamp(p)
    mm = tile(0)
    for a in range(2):
        for g in range(4): prod(4 * a + g, 2 * g)
        Gnext()
        if a == 0:
            for x in mm: p(x)
    for a in range(4):
        for g in range(2): prod(8 + 2 * a + g, 4 * g)
        Gnext()
    if STAMP == 4: stamp(p)
    mm = tile(1)
    for a in range(9):
        prod(a, 0)
        if a < 8: Gnext()
        if a == 3:
            for x in mm: p(x)
    if STAMP == 4: stamp(p)
    mm = tile(2)
    p(f"""v_cmp_eq_u32 vcc, 0, v{BL}
    v_lshlrev_b32 v{t}, 16, v{P+5}
    v_cndmask_b32 v{t}, v{BZ}, v{t}, vcc
    v_add_f32 v{DT}, v{DT}, v{t}""")
    for q in range(8): p(f"v_cvt_pk_bf16_f32 v{DT+q}, v{DT+q}, v{DT+q}")
    p.need([vr(FA, 32)])
    p(mm[0]); p(f"ds_write_b128 v{A_T0}, {vr(DT,4)}")
    for x in mm[1:4]: p(x)
    p(f"ds_write_b64 v{A_T1}, {vr(DT+4,2)} offset:1024")
    for x in mm[4:6]: p(x)
    p(f"ds_write_b64 v{A_T1b}, {vr(DT+6,2)} offset:1024")
    for x in mm[6:]: p(x)
    R = FB
    p(f"""ds_read_b128 {vr(R+24,4)}, v{A_X0}
    ds_read_b128 {vr(R+28,4)}, v{A_X0} offset:16
    ds_read_b128 {vr(R+16,4)}, v{A_X1} offset:1024
    ds_read_b32 v{R+20}, v{A_X1} offset:{1024+16}""")
    for q in range(8, 12): p(f"v_cvt_pk_bf16_f32 v{DT+q}, v{DT+q}, v{DT+q}")
    for i in range(4): p(f"ds_write_b32 v{A_T2}, v{DT+8+i} offset:{2048+64*i}")
    p(f"""ds_read_b32 v{R+8}, v{A_X2} offset:{1536+8}
    ds_read_b32 v{R+9}, v{A_X2} offset:{1536+4}
    ds_read_b32 v{R+11}, v{A_X2} offset:{1536}""")
    for r in range(2):
        p(f"ds_read_b32 v{R+4*r}, v{A_X3} offset:{2048+256*r+4}")
        p(f"ds_read_b32 v{R+4*r+2}, v{A_X3} offset:{2048+256*r}\n ds_read_b32 v{R+4*r+3}, v{A_X3} offset:{2048+256*r}")
    p(f"""v_bfi_b32 v{R+12}, s85, v{R+20}, v{R+19}
    v_mov_b32 v{R+13}, v{R+18}
    v_bfi_b32 v{R+14}, s85, v{R+18}, v{R+17}
    v_mov_b32 v{R+15}, v{R+16}
    ds_write_b128 v{A_KW32}, {vr(R+12,4)} offset:3072
    v_bfi_b32 v{R+16}, s85, v{R+31}, v{R+30}
    v_bfi_b32 v{R+17}, s85, v{R+29}, v{R+28}
    v_bfi_b32 v{R+18}, s85, v{R+27}, v{R+26}
    v_bfi_b32 v{R+19}, s85, v{R+25}, v{R+24}
    ds_write_b128 v{A_KW32}, {vr(R+16,4)} offset:3584
    v_bfi_b32 v{R+10}, s85, v{R+9}, v{R+11}
    ds_write_b128 v{A_KW}, {vr(R+8,4)} offset:2048""")
    for r in range(2):
        p(f"v_bfi_b32 v{R+4*r+1}, v{MSK}, v{R+4*r}, v{R+4*r+2}")
        p(f"ds_write_b128 v{A_KW}, {vr(R+4*r,4)} offset:{1024*(1-r)}")

def prefetch1():
    if not opt('pf1', 1): return []
    NG = opt('pfg', 2); B = []; p = Prog()
    decode_ab(p, 's93', 16, 94, 92)
    p("s_add_u32 s93, s94, s92\n s_mul_i32 s93, s93, 3")
    srd(p, 96, P_W, 640 * 3840)
    p(f"""s_mul_i32 s92, s92, 160
    s_lshr_b32 s95, s68, 1
    s_add_u32 s95, s95, 1
    s_mul_i32 s95, s95, 1280
    s_add_u32 s92, s92, s95
    s_andn2_b32 s92, s92, 127
    s_and_b32 s95, s68, 1
    s_lshl_b32 s95, s95, 7
    s_add_u32 s92, s92, s95
    v_mul_u32_u24 v250, 3840, v{BL}
    v_mul_u32_u24 v249, 1280, v{BL}""")
    def g10(p, d, add):
        p(f"""s_add_u32 s{d}, s93, {add}
        s_mul_i32 s95, s{d}, 205
        s_lshr_b32 s95, s95, 11
        s_mul_i32 s95, s95, 10
        s_sub_u32 s{d}, s{d}, s95""")
    for k in range(1, NG + 1):
        g10(p, 100, k)
        p(f"s_mul_i32 s100, s100, {64*3840}\n s_add_u32 s100, s100, s92\n buffer_load_dword v254, v250, s[96:99], s100 offen {'nt' if opt('ntw', 0) else ''}")
        B.append(p); p = Prog()
    srd(p, 96, P_X, 2048 * 1280)
    p(f"""s_lshl_b32 s94, s94, 1
    s_and_b32 s95, s68, 1
    s_add_u32 s94, s94, s95
    s_mul_i32 s94, s94, {64*1280}
    s_lshr_b32 s95, s68, 1
    s_add_u32 s93, s93, s95""")
    for k in range(1, NG + 1, 2):
        g10(p, 100, k)
        p(f"s_lshl_b32 s100, s100, 7\n s_add_u32 s100, s100, s94\n buffer_load_dword v254, v249, s[96:99], s100 offen {'nt' if opt('ntx', 0) else ''}")
        B.append(p); p = Prog()
    return B
def prefetch2x():
    if not opt('pf2', 1): return []
    B = []
    for r in range(2):
        a = Prog(); b = Prog()
        a(f"""s_lshr_b32 s92, s2, 3
        s_sub_u32 s92, s92, 16
        s_lshl_b32 s92, s92, 2
        s_add_u32 s92, s92, s68
        s_lshl_b32 s92, s92, 6
        s_add_u32 s92, s92, {4096*r}
        v_add_u32 v250, s92, v{BL}
        v_mul_u32_u24 v249, 6554, v250
        v_lshrrev_b32 v249, 16, v249
        v_mul_u32_u24 v252, 10, v249
        v_sub_u32 v250, v250, v252
        v_mul_u32_u24 v252, 3840, v249
        v_lshl_add_u32 v252, v250, 7, v252""")
        srd(a, 96, P_W, 640 * 3840)
        a("buffer_load_dword v254, v252, s[96:99], 0 offen")
        b(f"""v_mul_u32_u24 v252, 1280, v249
        v_lshl_add_u32 v252, v250, 7, v252""")
        srd(b, 96, P_WO, 640 * 1280)
        b("buffer_load_dword v254, v252, s[96:99], 0 offen")
        B += [a, b]
    return B
def prefetch2():
    if XM: return prefetch2x()
    if not opt('pf2', 1): return []
    a = Prog(); b = Prog()
    a(f"""s_lshr_b32 s92, s2, 3
    s_sub_u32 s92, s92, 16
    s_lshl_b32 s92, s92, 2
    s_add_u32 s92, s92, s68
    s_lshl_b32 s92, s92, 6
    v_add_u32 v250, s92, v{BL}
    v_mul_u32_u24 v249, 13108, v250
    v_lshrrev_b32 v249, 16, v249
    v_mul_u32_u24 v252, 5, v249
    v_sub_u32 v250, v250, v252
    v_mul_u32_u24 v252, 3840, v249
    v_lshl_add_u32 v252, v250, 7, v252
    s_and_b32 s93, s2, 1
    s_mul_i32 s94, s93, 640""")
    srd(a, 96, P_W, 640 * 3840)
    a("buffer_load_dword v254, v252, s[96:99], s94 offen")
    b(f"""s_lshl_b32 s94, s93, 9
    s_lshl_b32 s95, s93, 7
    s_add_u32 s95, s95, 1024
    v_lshlrev_b32 v252, 7, v250
    v_add_u32 v252, s94, v252
    v_mov_b32 v248, s95
    v_cmp_eq_u32 vcc, 4, v250
    v_mul_u32_u24 v249, 1280, v249
    v_cndmask_b32 v252, v252, v248, vcc
    v_add_u32 v252, v252, v249""")
    srd(b, 96, P_WO, 640 * 1280)
    b("buffer_load_dword v254, v252, s[96:99], 0 offen")
    return [a, b]

def role_B():
    p = Prog(); nstamp[0] = 0
    LN, L15, G, Z = BL, B15, BG, BZ
    p("roleB:")
    if opt('noB', 0): p("s_endpgm")
    stamp(p)
    if opt('bm', 1) == 0:
        p("""s_and_b32 s69, s2, 7
        s_mul_i32 s69, s69, 10
        s_lshr_b32 s70, s2, 3
        s_sub_u32 s70, s70, 16
        s_add_u32 s69, s69, s70""")
    else:
        p("""s_and_b32 s71, s2, 7
        s_lshr_b32 s70, s2, 3
        s_sub_u32 s70, s70, 16
        s_lshl_b32 s69, s71, 3
        s_add_u32 s69, s69, s70
        s_lshl_b32 s71, s71, 1
        s_add_u32 s71, s71, s70
        s_add_u32 s71, s71, 56
        s_cmp_ge_u32 s70, 8
        s_cselect_b32 s69, s71, s69""")
    kg_lanes(p)
    p(f"s_lshl_b32 s71, s69, 3\n s_add_u32 s71, s71, s68")
    kg_params(p, 's71', PR)
    pf = prefetch1()[:opt('pfb', 3)]; NOW = opt('pfnow', 3)
    srd(p, S_U, P_U, 2048 * 1280)
    p(f"""s_lshr_b32 s80, s69, 3
    s_and_b32 s81, s69, 7
    s_lshl_b32 s81, s81, 2
    s_add_u32 s81, s81, s68
    s_mul_i32 s82, s81, {64*1280}
    s_lshl_b32 s90, s80, 7
    s_add_u32 s82, s82, s90
    s_lshl_b32 s90, s68, 13
    s_add_u32 s90, s90, {B_UC}
    v_lshrrev_b32 v6, 3, v{LN}
    v_mul_u32_u24 v6, 1280, v6
    v_and_b32 v7, 7, v0
    v_xor_b32 v7, v7, v{G}
    v_lshl_add_u32 v6, v7, 4, v6
    v_xor_b32 v7, 64, v6
    v_add_u32 v7, {8*1280}, v7""")
    ut = Prog()
    ut("s_mov_b32 s82, s5")
    for i in range(8):
        ut(f"s_add_u32 m0, s90, {1024*i}\n s_nop 0\n buffer_load_dwordx4 v{6+i%2}, {sr(S_U,4)}, s82 offen nt lds", tag='ut')
        if i % 2: ut(f"s_add_u32 s82, s82, {16*1280}")
    p("s_mov_b32 s5, s82")
    for b in pf[:NOW]: p.extend(b)
    srd(p, S_WSB, P_WS, WS_SIZE)
    token_load(p, S_WSB, Z)
    p(f"""s_lshl_b32 s38, s80, 18
    s_lshl_b32 s82, s81, 10
    s_add_u32 s38, s38, s82
    s_add_u32 s38, s38, {WS_UT}
    s_lshl_b32 s39, s80, 12
    s_add_u32 s39, s39, {WS_UF}
    s_lshl_b32 s82, s81, 7
    s_add_u32 s101, s39, s82
    v_bfe_u32 v14, v0, 1, 3
    v_lshlrev_b32 v14, 4, v14
    v_lshl_add_u32 v14, v{LN}, 7, v14
    v_add_u32 v14, s90, v14
    v_lshlrev_b32 v39, 4, v{LN}
    v_cmp_eq_u32 vcc, 0, v{LN}
    v_mov_b32 v15, {OOB:#x}
    v_cndmask_b32 v15, v15, v{Z}, vcc""")
    UR = 188
    r1 = Prog(); r1.waitvm('ut')
    for j in range(8): r1(f"v_xor_b32 v17, {16*j}, v14\n ds_read_b128 {vr(UR+4*j,4)}, v17")
    r2 = []
    for j in range(0, 8, 2):
        q = Prog()
        for jj in (j, j + 1): q(f"buffer_store_dwordx4 {vr(UR+4*jj,4)}, v39, {sr(S_WSB,4)}, s38 offen sc1\n s_add_u32 s38, s38, 32768", tag='us')
        r2.append(q)
    ys = []
    for j in range(0, 8, 2):
        q = Prog()
        if j == 0:
            q(f"""v_mov_b32 v220, -1
            v_mov_b32 v221, -1
            v_mov_b32 v222, -1
            v_mov_b32 v223, -1
            s_lshl_b32 s6, s69, 15
            s_lshl_b32 s7, s68, 13
            s_add_u32 s6, s6, s7
            s_add_u32 s6, s6, {WS_YT}
            s_add_u32 s7, s6, 4096""")
        for jj in (j, j + 1): q(f"buffer_store_dwordx4 v[220:223], v39, {sr(S_WSB,4)}, {'s6' if jj < 4 else 's7'} offen offset:{1024*(jj%4)} sc1", tag='us')
        ys.append(q)
    r3 = Prog()
    r3.waitvm('us')
    r3(f"buffer_store_dword v{V_TOK}, v15, {sr(S_WSB,4)}, s101 offen sc1")
    tk = Prog(); token_make(tk)
    U0, U1, U3 = opt('u0', 6), opt('u1', 30), opt('u3', 55)
    sched = {}
    for k, b in ((U0, [ut]), (U1 - 2, [tk]), (U1, [r1]), (U1 + 2, r2[:2]), (U1 + 3, r2[2:]), (U3, [r3])) + tuple((opt('ys', 16) + 2 * k, [b]) for k, b in enumerate(ys)): sched.setdefault(k, []).extend(b)
    for k, b in enumerate(pf[NOW:]): sched.setdefault(opt('pfa', 0) + 3 * k, []).append(b)
    for k, b in enumerate(prefetch2()): sched.setdefault(42 + 3 * k, []).append(b)
    srd(p, S_O, P_OUT, 2048 * 2560)
    kg_setup(p, B_KR, B_SC)
    t = 40
    p(f"""v_mov_b32 v20, 0
    v_mov_b32 v21, 0
    v_mov_b32 v22, 0
    v_mov_b32 v23, 0
    v_lshlrev_b32 v{t}, 4, v{L15}
    ds_write_b128 v{t}, v[20:23] offset:{B_RAW}
    v_and_b32 v{t}, 31, v0
    v_lshl_add_u32 v38, v{t}, 4, s83
    ds_write_b128 v38, v[20:23] offset:4096
    v_lshlrev_b32 v{t+1}, 5, v{L15}
    v_sub_u32 v{A_KB}, s83, v{t+1}
    v_lshl_add_u32 v{A_KB}, v{G}, 4, v{A_KB}
    v_add_u32 v{A_KB}, 480, v{A_KB}""")
    stamp(p)
    kgen(p, PR, sched)
    stamp(p)
    Y = 184; UB = 216
    p(f"""v_and_b32 v17, 31, v0
    v_lshlrev_b32 v17, 7, v17
    s_lshl_b32 s38, s69, 15
    s_lshl_b32 s80, s68, 13
    s_add_u32 s38, s38, s80
    s_add_u32 s38, s38, {WS_UT}
    s_add_u32 s80, s80, {B_RAW+256}""")
    p(f"s_mov_b32 s94, {SPIN*8}")
    spinpoll(p, "b_pu", S_WSB, 's39', 18, 17, f"v_cmp_eq_u32 vcc, v{V_TOK}, v18", None)
    stamp(p)
    for i in range(8):
        p(f"s_add_u32 m0, s80, {1024*i}\n s_nop 0\n buffer_load_dwordx4 v39, {sr(S_WSB,4)}, s38 offen sc1 lds\n s_add_u32 s38, s38, 1024", tag='raw')
    p(f"""v_bfe_u32 v{t}, v0, 2, 2
    v_lshl_add_u32 v{t}, v{G}, 3, v{t}
    v_bfe_u32 v{t+1}, v0, 1, 1
    v_lshl_add_u32 v{t}, v{t+1}, 2, v{t}
    v_lshlrev_b32 v{t}, 4, v{t}
    v_and_b32 v{t+1}, 1, v0
    v_lshl_add_u32 v{t}, v{t+1}, 3, v{t}
    s_lshl_b32 s80, s68, 9
    v_add_u32 v{t}, s80, v{t}
    v_and_b32 v{t+1}, 7, v0
    v_mul_u32_u24 v{t+1}, {2*CP}, v{t+1}
    v_bfe_u32 v{t+2}, v0, 3, 1
    v_lshl_add_u32 v{t+1}, v{t+2}, 3, v{t+1}
    v_lshl_add_u32 v{t+1}, v{G}, 4, v{t+1}
    s_lshl_b32 s80, s68, 6
    s_add_u32 s80, s80, {B_UC}
    v_add_u32 v{t+1}, s80, v{t+1}
    s_cmp_eq_u32 s68, 0
    s_cselect_b32 s80, 2, 0
    v_cmp_gt_u32 vcc, s80, v{G}
    v_mov_b32 v{t+2}, {B_END - 4096}
    s_mul_i32 s81, s68, {2*CP}
    v_cndmask_b32 v{t+3}, v{t+2}, v{t+1}, vcc
    s_add_u32 s81, s81, {B_UC}
    v_and_b32 v{t+4}, 1, v0
    v_mul_u32_u24 v{t+4}, {CP}, v{t+4}
    v_lshrrev_b32 v{t+5}, 1, v{L15}
    v_lshl_add_u32 v{t+5}, v{G}, 2, v{t+5}
    v_lshl_add_u32 v{t+4}, v{t+5}, 2, v{t+4}
    v_add_u32 v{UB}, s81, v{t+4}
    v_add_u32 v{UB+1}, 1024, v{UB}
    v_add_u32 v{UB+2}, 2048, v{UB}
    v_add_u32 v{UB+3}, 3072, v{UB}
    s_mul_i32 s80, s68, {YP}
    v_lshlrev_b32 v{t+4}, 5, v{L15}
    v_lshl_add_u32 v{t+4}, v{G}, 3, v{t+4}
    v_add_u32 v{UB+4}, s80, v{t+4}
    s_lshl_b32 s90, s69, 2
    s_add_u32 s90, s90, s68
    s_lshl_b32 s91, s90, 12
    s_add_u32 s91, s91, {WS_KR}
    s_lshl_b32 s90, s90, 7
    s_add_u32 s90, s90, {WS_KF}
    s_sub_u32 s92, s84, s83
    v_add_u32 v38, s92, v38""")
    p.waitvm('raw'); p("s_waitcnt lgkmcnt(0)\n s_barrier")
    stamp(p)
    p(f"ds_write_b128 v38, v[20:23] offset:4096")
    jobs = [(k, pp) for k in range(17) for pp in range(2)]
    NBUF = 8
    def rdj(n):
        k, pp = jobs[n]; p(f"ds_read_b64_tr_b16 {vr(48+2*(n%NBUF),2)}, v{t} offset:{B_RAW + 16*(1+pp) + 2048*k}")
    def wrj(n):
        k, pp = jobs[n]
        p(f"ds_write_b64 v{t+3 if k == 16 else t+1}, {vr(48+2*(n%NBUF),2)} offset:{pp*CP + 256*k}")
    for n in range(NBUF): rdj(n)
    for n in range(len(jobs)):
        wrj(n)
        if n + NBUF < len(jobs): rdj(n + NBUF)
    def fa(b, a): return ar((b % 2) * 64 + 4 * a, 4)
    def fb(b, c): return ar((b % 2) * 64 + 32 + 4 * c, 4)
    def reads(b, kind='ku'):
        q = Prog()
        for a in range(8):
            o = 128 * (a % 2) + 16 * b; r0 = (b % 2) * 64 + 4 * a
            if 'k' in kind: q(f"ds_read_b128 {fb(b,a)}, v{A_KB} offset:{512*(7-a)+64*b}")
            if 'u' in kind:
                q(f"ds_read2_b32 {ar(r0,2)}, v{UB+a//2} offset0:{o} offset1:{o+1}")
                q(f"ds_read2_b32 {ar(r0+2,2)}, v{UB+a//2} offset0:{o+2} offset1:{o+3}")
        return q
    def krdma(tag):
        for i in range(4):
            p(f"s_add_u32 m0, s84, {1024*i}\n s_nop 0\n buffer_load_dwordx4 v39, {sr(S_WSB,4)}, s91 offen sc1 lds\n s_add_u32 s91, s91, 1024", tag=tag)
    p("s_mov_b32 s93, 0\n s_mov_b32 s95, 0\n s_waitcnt lgkmcnt(0)\n s_barrier")
    stamp(p)
    p("b_conv:")
    p.extend(reads(0))
    prs = sorted([(a, c) for c in range(8) for a in range(c + 1)], key=lambda x: (max(x[0], x[1] - x[0]), x[1]))
    EB = opt('eb', 5)
    for b in range(8):
        m = Prog(); seen = set(); lvl = -1
        for a, c in prs:
            first = b == 0 and c not in seen; seen.add(c)
            if max(a, c - a) != lvl and (b == 0 or max(a, c - a) in (0, 4)):
                lvl = max(a, c - a); hi = lvl if b == 0 else lvl + 3
                m.need([fa(b, x) for x in range(lvl, hi + 1)] + [fb(b, x) for x in range(lvl, hi + 1)])
            mfma(m, vr(Y + 4 * c, 4), fa(b, a), fb(b, c - a), '0' if first else None)
        if b == EB: p(f"buffer_load_dword v7, v{Z}, {sr(S_WSB,4)}, s90 offen sc1")
        if b == EB + 1:
            p(f"""v_cmp_eq_u32 vcc, v{V_TOK}, v7
            s_cmp_lg_u32 s93, 0
            s_cselect_b64 s[80:81], 0, -1
            s_and_b64 vcc, vcc, s[80:81]""")
            p("s_cbranch_scc0 b_noearly", tag='keep')
            krdma('offpath')
            p("s_mov_b32 s95, 1", tag='offpath')
            p("b_noearly:")
        p.extend(pack(m, [(singles(reads(b + 1)), 2, 30)] if b < 7 else [], cap=4))
    for c in range(8):
        d = 40 + 2 * (c % 4)
        p(f"v_cvt_pk_bf16_f32 v{d}, v{Y+4*c}, v{Y+4*c+1}\n v_cvt_pk_bf16_f32 v{d+1}, v{Y+4*c+2}, v{Y+4*c+3}")
        p(f"ds_write_b64 v{UB+4}, {vr(d,2)} offset:{B_RAW+512*c}")
    p("s_cmp_lg_u32 s93, 0")
    p("s_cbranch_scc1 b_fin")
    stamp(p)
    p(f"""s_mov_b32 s93, 1
    v_add_u32 v{A_KB}, s92, v{A_KB}""")
    for k in range(4): p(f"v_add_u32 v{UB+k}, {8*CP}, v{UB+k}")
    p(f"v_add_u32 v{UB+4}, {4*YP}, v{UB+4}\n s_cmp_eq_u32 s95, 1")
    p("s_cbranch_scc1 b_have")
    p(f"s_mov_b32 s94, {SPIN}")
    p("b_poll:")
    p(f"""buffer_load_dword v7, v{Z}, {sr(S_WSB,4)}, s90 offen sc1
    s_sub_u32 s94, s94, 1
    s_waitcnt vmcnt(0)
    v_cmp_eq_u32 vcc, v{V_TOK}, v7
    s_cmp_eq_u32 s94, 0
    s_cbranch_scc1 b_got
    s_cmp_eq_u64 vcc, 0
    s_cbranch_scc1 b_poll""")
    p("b_got:")
    krdma(None)
    p("b_have:")
    p("s_waitcnt vmcnt(0)\n s_branch b_conv")
    p("b_fin:")
    stamp(p)
    p(f"""v_bfe_u32 v{t+8}, v0, 2, 2
    v_mul_u32_u24 v{t+8}, {YP}, v{t+8}
    v_and_b32 v{t+9}, 3, v0
    v_lshl_add_u32 v{t+8}, v{t+9}, 3, v{t+8}
    v_lshl_add_u32 v{t+8}, v{G}, 5, v{t+8}
    s_lshl_b32 s80, s68, 10
    v_add_u32 v{t+8}, s80, v{t+8}""")
    p(f"""s_lshr_b32 s80, s69, 3
    s_and_b32 s81, s69, 7
    s_lshl_b32 s81, s81, 2
    s_add_u32 s81, s81, s68
    s_lshl_b32 s38, s80, 18
    s_lshl_b32 s82, s81, 10
    s_add_u32 s38, s38, s82
    s_add_u32 s38, s38, {WS_YT}
    s_mul_i32 s39, s81, {64*2560}
    s_lshl_b32 s80, s80, 7
    s_add_u32 s39, s39, s80
    s_add_u32 s39, s39, 1280
    s_mul_i32 s90, s68, 8448
    s_add_u32 s90, s90, {B_UC}
    v_lshrrev_b32 v{t+10}, 3, v{LN}
    v_and_b32 v{t+11}, 7, v0
    v_lshlrev_b32 v{t+12}, 15, v{t+10}
    v_lshl_add_u32 v{t+12}, v{t+11}, 7, v{t+12}
    v_mul_u32_u24 v{t+13}, 1040, v{t+11}
    v_lshl_add_u32 v{t+13}, v{t+10}, 4, v{t+13}
    v_add_u32 v{t+13}, s90, v{t+13}
    v_mul_u32_u24 v{t+14}, 2560, v{t+10}
    v_lshl_add_u32 v{t+14}, v{t+11}, 4, v{t+14}
    s_mov_b32 s94, {SPIN}""")
    p("s_waitcnt lgkmcnt(0)\n s_barrier")
    for it in range(8):
        for h in range(2):
            p(f"ds_read_b64_tr_b16 {vr(56+4*it+2*h,2)}, v{t+8} offset:{B_RAW + h*4*YP + 128*it}")
    for it in range(8):
        p(f"buffer_store_dwordx4 {vr(56+4*it,4)}, v39, {sr(S_WSB,4)}, {'s6' if it < 4 else 's7'} offen offset:{1024*(it%4)} sc1")
    stamp(p)
    p("b_yp:")
    p(f"""buffer_load_dword v17, v{t+12}, {sr(S_WSB,4)}, s38 offen sc1
    s_sub_u32 s94, s94, 1
    s_waitcnt vmcnt(0)
    v_cmp_ne_u32 vcc, -1, v17
    s_cmp_lt_i32 s94, 1
    s_cbranch_scc1 b_yg
    s_cmp_eq_u64 vcc, -1
    s_cbranch_scc1 b_yg
    s_sleep {opt('yslp', 8)}
    s_branch b_yp""")
    p("b_yg:")
    stamp(p)
    p("s_mov_b32 s82, s38")
    for j in range(8):
        p(f"s_add_u32 m0, s90, {1040*j}\n s_nop 0\n buffer_load_dwordx4 v39, {sr(S_WSB,4)}, s82 offen sc1 lds\n s_add_u32 s82, s82, 32768")
    p("v_mov_b32 v18, 0\n s_waitcnt vmcnt(0)")
    for i in range(8): p(f"ds_read_b128 {vr(56+4*i,4)}, v{t+13} offset:{128*i}")
    for i in range(8): p(f"v_max3_u32 v18, v18, v{56+4*i}, v{57+4*i}\n v_max3_u32 v18, v18, v{58+4*i}, v{59+4*i}")
    p(f"""v_cmp_eq_u32 vcc, -1, v18
    s_cmp_lt_i32 s94, 1
    s_cbranch_scc1 b_yo
    s_cmp_lg_u64 vcc, 0
    s_cbranch_scc1 b_yp""")
    p("b_yo:")
    for i in range(8):
        p(f"buffer_store_dwordx4 {vr(56+4*i,4)}, v{t+14}, {sr(S_O,4)}, s39 offen {OPT.get('bst', '')}\n s_add_u32 s39, s39, {8*2560}")
    stamp(p)
    stamp_store(p, S_WSB)
    p("s_endpgm")
    return p

def role_S():
    p = Prog(); nstamp[0] = 32
    p("roleS:")
    p(f"""s_getpc_b64 s[40:41]
    cpf_here:
    s_sub_u32 s40, s40, cpf_here-{NAME}_kernel
    s_subb_u32 s41, s41, 0
    s_lshr_b32 s42, s2, 3
    s_and_b32 s42, s42, 1
    s_lshl_b32 s42, s42, 15
    v_lshlrev_b32 v8, 7, v0
    v_add_u32 v8, s42, v8
    v_cmp_gt_u32 vcc, code_end-{NAME}_kernel, v8
    v_cndmask_b32 v8, 0, v8, vcc
    global_load_dword v250, v8, s[40:41]""")
    if STAMP: p("v_mov_b32 v255, 0")
    stamp(p)
    p(f"s_sub_u32 s69, s2, 208")
    kg_lanes(p)
    p(f"""s_lshl_b32 s90, s69, 2
    s_add_u32 s90, s90, s68
    s_lshl_b32 s71, s69, 3
    s_add_u32 s71, s71, s68
    s_add_u32 s71, s71, 4""")
    kg_params(p, 's71', PR)
    p(f"s_add_u32 s71, s71, 384\n s_min_u32 s71, s71, 639")
    kg_params(p, 's71', PR + 6)
    pf = prefetch1()[:opt('pfs', 3)]; NOW = opt('pfnow', 3)
    for b in pf[:NOW]: p.extend(b)
    srd(p, S_U, P_WS, WS_ZERO_END)
    srd(p, S_O, P_DBG, 256)
    srd(p, S_WSB, P_WS, WS_SIZE)
    token_load(p, S_WSB, BZ)
    p(f"""s_lshl_b32 s70, s69, 12
    v_lshlrev_b32 v6, 4, v0
    v_mov_b32 v20, 0
    v_mov_b32 v21, 0
    v_mov_b32 v22, 0
    v_mov_b32 v23, 0
    buffer_store_dwordx4 v[20:23], v6, {sr(S_U,4)}, s70 offen sc1
    s_cmp_lt_u32 s69, {NZERO_WG}
    s_cselect_b32 s4, 0, -1
    v_cmp_eq_u32 vcc, s4, v0
    v_mov_b32 v7, 1
    v_mov_b32 v38, {OOB:#x}
    v_cndmask_b32 v39, v38, v{BZ}, vcc""")
    kg_setup(p, S_KR, S_SC)
    p(f"""v_cmp_eq_u32 vcc, 0, v{BL}
    v_lshlrev_b32 v184, 4, v{BL}
    v_add_u32 v185, s83, v184
    v_cndmask_b32 v38, v38, v{BZ}, vcc
    s_waitcnt vmcnt(0)
    s_barrier
    buffer_atomic_add v7, v39, {sr(S_O,4)}, 0 offen sc1""")
    token_make(p)
    p("s_kloop:", tag='keep')
    sched = {}
    for k, b in enumerate(pf[NOW:]): sched.setdefault(3 * k, []).append(b)
    for k, b in enumerate(prefetch2()): sched.setdefault(36 + 3 * k, []).append(b)
    kgen(p, PR, sched)
    for i in range(4): p(f"ds_read_b128 {vr(48+4*i,4)}, v185 offset:{1024*i}")
    p(f"s_lshl_b32 s91, s90, 12\n s_add_u32 s91, s91, {WS_KR}")
    for i in range(4): p(f"buffer_store_dwordx4 {vr(48+4*i,4)}, v184, {sr(S_WSB,4)}, s91 offen offset:{1024*i} sc1")
    p("s_waitcnt vmcnt(0)")
    p(f"""s_lshl_b32 s91, s90, 7
    s_add_u32 s91, s91, {WS_KF}
    buffer_store_dword v{V_TOK}, v38, {sr(S_WSB,4)}, s91 offen sc1
    s_add_u32 s90, s90, 192""")
    for k in range(6): p(f"v_mov_b32 v{PR+k}, v{PR+6+k}")
    stamp(p)
    p("s_cmp_lt_u32 s90, 320\n s_cbranch_scc1 s_kloop")
    p("s_cmp_ge_u32 s2, 240")
    stamp(p)
    p("s_cbranch_scc1 s_done")
    srd(p, S_DBG, P_DBG, 256)
    if XM == 0:
        p("""s_and_b32 s72, s2, 7
        s_lshr_b32 s69, s72, 1
        s_lshl_b32 s69, s69, 2
        s_lshr_b32 s73, s2, 3
        s_sub_u32 s73, s73, 26
        s_add_u32 s69, s69, s73
        s_and_b32 s83, s72, 1""")
    else:
        p("""s_and_b32 s69, s2, 7
        s_lshl_b32 s69, s69, 1
        s_lshr_b32 s73, s2, 3
        s_sub_u32 s73, s73, 26
        s_and_b32 s83, s73, 1
        s_lshr_b32 s73, s73, 1
        s_add_u32 s69, s69, s73""")
    p(f"""s_add_u32 s83, s83, 8
    s_lshl_b32 s83, s83, 7
    s_mul_i32 s84, s68, {GR}
    v_and_b32 v{LN}, 63, v0
    v_mov_b32 v{V_Z}, 0""")
    setup_g2(p)
    for i in range(5): unpark(p, f'wo{i}', V_XO + i)
    for G in range(15, 19):
        for b in issue_group(G): p.extend(b)
    p(f"""v_and_b32 v249, 7, v0
    v_lshlrev_b32 v249, 13, v249
    s_lshl_b32 s85, s69, 9
    s_lshl_b32 s81, s68, 7
    s_add_u32 s85, s85, s81
    s_add_u32 s85, s85, {WS_KVF}""")
    pollall(p, "s_pf", S_WS, 's85', 248, 249, opt('slp', 8))
    p("s_branch g2_tail")
    p("s_done:")
    p(f"""s_cmp_lg_u32 s2, 255
    s_cbranch_scc1 s_fin
    s_cmp_lg_u32 s68, 0
    s_cbranch_scc1 s_fin
    v_lshlrev_b32 v187, 7, v{BL}
    s_mov_b32 s91, {WS_EP}""")
    p("s_ep:")
    p("s_sub_u32 s91, s91, 8192")
    pollall(p, "s_epp", S_WSB, 's91', 186, 187, 32)
    p(f"""s_cmp_gt_u32 s91, {WS_KVF}
    s_cbranch_scc1 s_ep
    s_mov_b32 s4, {WS_EP}
    buffer_store_dword v{V_TOK}, v38, {sr(S_WSB,4)}, s4 offen sc1""")
    p("s_fin:")
    if STAMP:
        stamp_store(p, S_WSB)
    p("done:\n s_endpgm\n code_end:")
    return p

def main():
    LDS = max(A_END + 16, B_END + 4608)
    assert LDS <= 163840, LDS
    ref = open(f"cdna_kernels/{NAME}.s.ref").read().split('\n')
    hdr = [l for l in ref if l.startswith(';') and '@launch' not in l]
    s = '\n'.join(hdr) + f"\n; @launch grid=(256,1,1) block=(256,1,1) lds={LDS}\n"
    s += f""".amdgcn_target "amdgcn-amd-amdhsa--gfx950"
.text
.globl {NAME}_kernel
.p2align 8
.type {NAME}_kernel,@function
{NAME}_kernel:
"""
    e = Prog()
    e(f"""s_cmp_ge_u32 s2, 256
    s_cbranch_scc1 done""")
    if opt('cpf2', 0):
        e(f"""s_getpc_b64 s[36:37]
        v_lshlrev_b32 v2, 7, v0
        s_cmp_ge_u32 s2, 128
        s_cselect_b32 s38, roleB-{NAME}_kernel, 0
        v_add_u32 v2, s38, v2
        v_min_u32 v2, code_end-{NAME}_kernel-64, v2
        global_load_dword v253, v2, s[36:37]""", tag='offpath')
    e(f"""
    s_load_dwordx16 s[8:23], s[0:1], 0
    s_load_dwordx8 s[24:31], s[0:1], 64
    s_load_dwordx4 s[32:35], s[0:1], 96
    v_lshrrev_b32 v1, 6, v0
    s_nop 0
    v_readfirstlane_b32 s68, v1
    s_cmp_ge_u32 s2, 208
    s_cbranch_scc1 roleS
    s_cmp_ge_u32 s2, 128
    s_cbranch_scc1 roleB""")
    a = role_A()
    e.extend(a)
    L = lower(e) + lower(role_B()) + lower(role_S())
    if opt('align', 1):
        L, nn, npro = align8(L, sizes_of(s + render(L)))
        print("align: nops", nn, "promoted", npro)
    s += render(L)
    s += f""".section .rodata,"a"
.p2align 6
.amdhsa_kernel {NAME}_kernel
  .amdhsa_next_free_vgpr 512
  .amdhsa_next_free_sgpr 102
  .amdhsa_accum_offset 256
  .amdhsa_group_segment_fixed_size 0
  .amdhsa_kernarg_size 112
  .amdhsa_user_sgpr_count 2
  .amdhsa_user_sgpr_kernarg_segment_ptr 1
  .amdhsa_system_sgpr_workgroup_id_x 1
.end_amdhsa_kernel
"""
    out = OPT.get('out', f"cdna_kernels/{NAME}.s")
    open(out, 'w').write(s)
    print("LDS", LDS, "A_END", A_END, "B_END", B_END, "lines", s.count('\n'))
main()
```

```python
import sys, struct
from gasm import Prog, finalize, merge, spread, singles, pack, bundles, lower, render, sizes_of, align8
NAME = "concat_heads__linear_kernel_hedgehog__ssm_conv_s4d__prompt"
OPT = dict(a.split('=') for a in sys.argv[1:] if '=' in a)
def opt(k, d): return type(d)(OPT.get(k, d))
STAMP = opt('stamp', 0)
ROT = opt('rot', 2)
def f2u(x): return struct.unpack('<I', struct.pack('<f', x))[0]
def vr(a, n): return f"v[{a}:{a+n-1}]" if n > 1 else f"v{a}"
def ar(a, n): return f"a[{a}:{a+n-1}]" if n > 1 else f"a{a}"
def sr(a, n): return f"s[{a}:{a+n-1}]" if n > 1 else f"s{a}"
def magic(d): return (2**32 + d - 1) // d

WS_KV = 0; WS_ZERO_END = 32 * 4096; WS_KVF = WS_ZERO_END; WS_KF = WS_KVF + 65536; WS_UF = WS_KF + 40960; WS_YF = WS_UF + 40960; WS_EP = WS_YF + 40960
WS_O = 262144; WS_STAMP = 4 << 20; WS_SIZE = 8 << 20
NSPARE = 48
NZERO_WG = 32
assert WS_EP + 128 <= WS_O
V_TOK = 253; V_CNT = 251
P_X, P_W, P_PHI, P_WO, P_U, P_LA, P_AI, P_CR, P_CI, P_LDT, P_DS, P_OUT, P_DBG, P_WS = [8 + 2 * i for i in range(14)]
OOB = 0x80000000
SPIN = 400000

def srd(p, s, ptr, size, off=None):
    if off is None:
        p(f"s_mov_b32 s{s}, s{ptr}\n s_mov_b32 s{s+1}, s{ptr+1}")
    else:
        p(f"s_add_u32 s{s}, s{ptr}, {off}\n s_addc_u32 s{s+1}, s{ptr+1}, 0")
    p(f"s_mov_b32 s{s+2}, {size}\n s_mov_b32 s{s+3}, 0x20000")

nstamp = [0]
def stamp(p, sreg_base=96):
    if not STAMP: return
    k = nstamp[0]; nstamp[0] += 1
    if k in (0, 32): p(f"s_getreg_b32 s36, hwreg(HW_REG_HW_ID)\n v_writelane_b32 v255, s36, 60\n s_getreg_b32 s36, hwreg(HW_REG_XCC_ID)\n v_writelane_b32 v255, s36, 59")
    if k == 0: p(f"s_memrealtime s[36:37]\n s_waitcnt lgkmcnt(0)\n v_writelane_b32 v255, s36, 62")
    p(f"s_memtime s[36:37]\n s_waitcnt lgkmcnt(0)\n v_writelane_b32 v255, s36, {k}")
def stamp_store(p, wsrd):
    if not STAMP: return
    p(f"s_waitcnt vmcnt(0)\n s_memtime s[36:37]\n s_waitcnt lgkmcnt(0)\n v_writelane_b32 v255, s36, 61\n s_memrealtime s[36:37]\n s_waitcnt lgkmcnt(0)\n v_writelane_b32 v255, s36, 63")
    p(f"""s_lshl_b32 s36, s2, 2
    s_add_u32 s36, s36, s68
    s_lshl_b32 s36, s36, 8
    s_add_u32 s36, s36, {WS_STAMP}
    v_and_b32 v250, 63, v0
    v_lshlrev_b32 v250, 2, v250
    buffer_store_dword v255, v250, {sr(wsrd,4)}, s36 offen""")

def token_load(p, wsrd, vz):
    p(f"s_mov_b32 s4, {WS_EP}\n buffer_load_dword v{V_TOK}, v{vz}, {sr(wsrd,4)}, s4 offen sc1")
def token_make(p):
    p(f"""s_mov_b32 s4, 0x9e3779b1
    v_mul_lo_u32 v{V_TOK}, v{V_TOK}, s4
    v_add_u32 v{V_TOK}, 0x7f4a7c15, v{V_TOK}""")
def token_seen(p, dsrd, vt):
    p(f"""v_cmp_eq_u32 vcc, 0, v0
    v_mov_b32 v{vt}, {OOB:#x}
    v_mov_b32 v{V_CNT}, 1
    v_cndmask_b32_e64 v{vt}, v{vt}, 0, vcc
    buffer_atomic_add v{V_CNT}, v{vt}, {sr(dsrd,4)}, 8 offen sc1""")
def spinpoll(p, name, srdreg, soff, vt, va, cmp, init, period=None):
    period = period or opt('period', 24)
    p(f"v_mov_b32 v{vt}, {init}" if init is not None else f"v_not_b32 v{vt}, v{V_TOK}", tag='offpath')
    p(f"{name}:")
    p(f"""buffer_load_dword v{vt}, v{va}, {sr(srdreg,4)}, {soff} offen sc1
    s_mov_b32 s95, {period}""", tag='offpath')
    p(f"{name}_i:")
    p(f"""{cmp}
    s_sub_u32 s94, s94, 1
    s_cbranch_scc1 {name}_x
    s_cmp_eq_u64 vcc, -1
    s_cbranch_scc1 {name}_x
    s_sub_u32 s95, s95, 1
    s_cbranch_scc0 {name}_i
    s_waitcnt vmcnt(24)
    s_branch {name}""", tag='offpath')
    p(f"{name}_x:")
def pollall(p, name, srdreg, soff, vt, va, slp=0):
    p(f"s_mov_b32 s94, {SPIN}")
    p(f"{name}:")
    p(f"""buffer_load_dword v{vt}, v{va}, {sr(srdreg,4)}, {soff} offen sc1
    s_sub_u32 s94, s94, 1
    s_waitcnt vmcnt(0)
    v_cmp_eq_u32 vcc, v{V_TOK}, v{vt}
    s_cmp_eq_u32 s94, 0""")
    p(f"s_cbranch_scc1 {name}_x", tag='keep')
    p(f"s_cmp_eq_u64 vcc, -1")
    if slp:
        p(f"s_cbranch_scc1 {name}_x", tag='keep')
        p(f"s_sleep {slp}\n s_branch {name}", tag='keep')
    else: p(f"s_cbranch_scc0 {name}", tag='keep')
    p(f"{name}_x:")

A_RING = 0; NSLOT = 16; GR = 5120
A_PHIK = NSLOT * GR; PHI_RS = 352
A_VST = A_PHIK + 128 * PHI_RS
A_BD = A_VST + 20480
A_END = A_BD + 12800
A_KVIMG = A_PHIK
S_X, S_W, S_WO, S_WS, S_OUT, S_DBG, S_PHI = 40, 44, 48, 52, 56, 60, 64
V_XO = 1
V_XD = 5
V_WD = 9
V_TA = 14
V_Z = 22; V_T = 23
V_WF = 32
V_KA = 112; V_VA = 152; V_PA = 192; V_X = 240
OLD = 'sc1' if opt('osc1', 0) else ''

def mfma(p, d, a, b, c=None):
    p(f"v_mfma_f32_16x16x32_bf16 {d}, {a}, {b}, {d if c is None else c}")
def mfma32(p, d, a, b, c=None):
    p(f"v_mfma_f32_32x32x16_bf16 {d}, {a}, {b}, {d if c is None else c}")

LN = V_T; t = V_T + 1
parked = {}
def park(p, name, v):
    if name not in parked: parked[name] = 204 + len(parked)
    assert parked[name] < 256
    p(f"v_accvgpr_write_b32 a{parked[name]}, v{v}")
def unpark(q, name, v): q(f"v_accvgpr_read_b32 v{v}, a{parked[name]}")

def trbase(p, d, rowk, rowrho, extra=0):
    p(f"""v_bfe_u32 v{t}, v0, 5, 1
    v_mul_u32_u24 v{t}, {rowk}, v{t}
    v_bfe_u32 v{t+1}, v0, 2, 2
    v_mul_u32_u24 v{t+1}, {rowrho}, v{t+1}
    v_bfe_u32 v{t+2}, v0, 4, 1
    v_lshl_add_u32 v{t}, v{t+2}, 5, v{t}
    v_and_b32 v{t+2}, 3, v0
    v_lshl_add_u32 v{t}, v{t+2}, 3, v{t}
    v_add_u32 v{d}, v{t}, v{t+1}""")
    if extra: p(f"v_add_u32 v{d}, {extra}, v{d}")

def setup_g2(p):
    srd(p, S_WO, P_WO, 640 * 1280)
    srd(p, S_WS, P_WS, WS_SIZE)
    p(f"s_mul_i32 s78, s69, {128*2560}\n s_add_u32 s78, s78, s83")
    srd(p, S_OUT, P_OUT, 0, 's78')
    p(f"s_sub_u32 s{S_OUT+2}, {2048*2560}, s78")
    p(f"""s_lshr_b32 s79, s68, 1
    s_mul_i32 s79, s79, {80*1280}
    s_add_u32 s79, s79, s83
    s_and_b32 s85, s68, 1
    s_mul_i32 s85, s85, 40
    s_lshl_b32 s78, s69, 2
    s_add_u32 s78, s78, s68
    s_mul_i32 s78, s78, 40960
    s_add_u32 s92, s78, {WS_O}""")
    for i in range(5):
        p(f"""v_lshrrev_b32 v{t}, 3, v{LN}
        v_add_u32 v{t}, s85, v{t}
        v_add_u32 v{t}, {8*i}, v{t}
        v_lshrrev_b32 v{t+1}, 4, v{t}
        v_and_b32 v{t+2}, 7, v{t}
        v_lshl_add_u32 v{t+1}, v{t+1}, 3, v{t+2}
        v_bfe_u32 v{t+2}, v{t}, 3, 1
        v_mad_u32_u24 v{t+2}, v{t+2}, 20, v{t+1}
        v_add_u32 v{t+3}, 20, v{t+2}
        v_cmp_le_u32 vcc, 20, v{t+1}
        v_cndmask_b32 v{t+2}, v{t+2}, v{t+3}, vcc
        v_mul_u32_u24 v{t+2}, 1280, v{t+2}
        v_bfe_u32 v{t}, v{t}, 1, 1
        v_lshlrev_b32 v{t}, 2, v{t}
        v_and_b32 v{t+1}, 7, v0
        v_xor_b32 v{t}, v{t}, v{t+1}
        v_lshl_add_u32 v{t}, v{t}, 4, v{t+2}""")
        park(p, f'wo{i}', t)
    trbase(p, t + 3, 8 * 128, 128)
    p(f"""v_bfe_u32 v{t}, v0, 3, 1
    v_lshl_add_u32 v{t+3}, v{t}, 6, v{t+3}""")
    park(p, 'two', t + 3)
    p(f"""s_add_u32 s78, s84, {A_VST}
    v_and_b32 v{t}, 31, v0
    v_mul_u32_u24 v{t}, 144, v{t}
    v_bfe_u32 v{t+1}, v0, 5, 1
    v_lshl_add_u32 v{t}, v{t+1}, 3, v{t}
    v_add_u32 v{t}, s78, v{t}""")
    park(p, 'outw', t)
    p(f"""v_lshrrev_b32 v{t}, 3, v{LN}
    v_and_b32 v{t+1}, 7, v0
    v_lshlrev_b32 v{t+1}, 4, v{t+1}
    v_mul_u32_u24 v{t+2}, 144, v{t}
    v_add3_u32 v{t+2}, v{t+2}, v{t+1}, s78
    v_mul_u32_u24 v{t}, 2560, v{t}
    v_add_u32 v{t}, v{t}, v{t+1}""")
    park(p, 'outr', t + 2); park(p, 'outg', t)

def dma_bundles(G, hdr, items):
    B = []
    hdr(items[0][0]); B.append(hdr)
    for k, (m0, ld) in enumerate(items):
        q = Prog(); q(ld, tag=('dma', G))
        if k + 1 < len(items): q(items[k + 1][0])
        B.append(q)
    return B
def issue_group(G):
    slotbase = A_RING + (G % 4) * 4 * GR
    h = Prog()
    if G < 10:
        h(f"s_mul_i32 s86, s80, {64*3840}\n s_add_u32 s86, s86, s82\n s_lshl_b32 s81, s80, 7")
        h(f"s_add_u32 s80, s80, 1\n s_cmp_eq_u32 s80, 10\n s_cselect_b32 s80, 0, s80")
        sd = S_W
    elif G < 15:
        h(f"""s_lshl_b32 s86, s71, 1
        s_add_u32 s86, s86, s68
        s_add_u32 s86, s86, {4*(G-10)}
        s_sub_u32 s74, s86, 20
        s_cmp_ge_u32 s86, 20
        s_cselect_b32 s86, s74, s86
        s_mul_i32 s86, s86, {32*3840}
        s_add_u32 s86, s86, s75""")
        sd = S_W
    else:
        h(f"s_add_u32 s86, s79, {(G%4)*160*1280}")
        sd = S_WO
    W = [(f"s_add_u32 m0, s84, {slotbase + 1024*i}", f"buffer_load_dwordx4 v{V_QD[i] if 10 <= G < 15 else (V_WD+i if G < 10 else V_XO+i)}, {sr(sd,4)}, s86 offen {'nt' if opt('ntw', 0) else ''} lds") for i in range(5)]
    if G < 10:
        X = [(f"s_add_u32 m0, s87, {(G%4)*4096 + 1024*r}", f"buffer_load_dwordx4 v{V_XD+r}, {sr(S_X,4)}, s81 offen {'nt' if opt('ntx', 0) else ''} lds") for r in range(4)]
        items = [W[0], X[0], W[1], X[1], W[2], X[2], W[3], X[3], W[4]]
    else: items = W
    return dma_bundles(G, h, items)
V_QD = [21, 29, 30, 31, 252]

OF = lambda n: 88 + 4 * n
G2ACC = 56
def gemm2_tail(p):
    F = V_WF
    p("g2_tail:")
    unpark(p, 'two', V_TA)
    p(f"""v_xor_b32 v{V_TA+1}, 64, v{V_TA}
    v_add_u32 v{V_TA+2}, {8*GR}, v{V_TA}
    v_add_u32 v{V_TA+3}, {8*GR}, v{V_TA+1}
    v_lshlrev_b32 v{t+2}, 4, v{LN}
    v_lshrrev_b32 v{t+4}, 3, v{LN}
    v_mul_u32_u24 v{t+4}, 5120, v{t+4}
    v_and_b32 v{t}, 7, v0
    v_lshl_add_u32 v{t+4}, v{t}, 7, v{t+4}
    s_mov_b32 s94, {SPIN*8}
    s_add_u32 s93, s92, 4096
    s_barrier""")
    unpark(p, 'outw', t); unpark(p, 'outr', t + 1); unpark(p, 'outg', t + 3)
    stamp(p)
    def reads(n):
        hq, pp = divmod(n, 5); q = Prog(); fb = F + (n % 3) * 8
        off = hq * 10240 + pp * 2048; hi = 0
        if hq >= 4: off -= 8 * GR; hi = 2
        for T in range(2):
            for h in range(2):
                q(f"ds_read_b64_tr_b16 {vr(fb+4*T+2*h,2)}, v{V_TA+hi+T} offset:{off + 512*h}")
        return q
    p("g2_retry:")
    p.extend(reads(0)); p.extend(reads(1))
    p(f"s_mov_b32 s81, s92\n v_mov_b32 v248, 0")
    p("g2_poll:")
    p(f"""buffer_load_dword v249, v{t+4}, {sr(S_WS,4)}, s93 offen sc1
    s_sub_u32 s94, s94, 1
    s_waitcnt vmcnt(0)
    v_cmp_ne_u32 vcc, -1, v249
    s_cmp_lt_i32 s94, 1""")
    p("s_cbranch_scc1 g2_go", tag='keep')
    p("s_cmp_eq_u64 vcc, -1")
    p("s_cbranch_scc1 g2_go", tag='keep')
    p(f"s_sleep {opt('gslp', 2)}\n s_branch g2_poll", tag='keep')
    p("g2_go:")
    stamp(p)
    def oload(n):
        q = Prog(); hq, pp = divmod(n, 5)
        if pp == 4: q(f"s_add_u32 s85, s81, 4096")
        q(f"buffer_load_dwordx4 {vr(OF(n),4)}, v{t+2}, {sr(S_WS,4)}, {'s85' if pp == 4 else 's81'} offen offset:{1024*(pp%4)} sc1")
        if pp == 4: q("s_add_u32 s81, s81, 5120")
        return q
    PRE = opt('opre', 10)
    for n in range(PRE): p.extend(oload(n))
    for n in range(40):
        fb = F + (n % 3) * 8
        mm = Prog(); mm.need([vr(fb, 8), vr(OF(n), 4)])
        for T in range(2): mfma32(mm, vr(G2ACC + 16 * T, 16), vr(fb + 4 * T, 4), vr(OF(n), 4), '0' if n == 0 else None)
        st = []
        if n + 2 < 40: st.append((singles(reads(n + 2)), 0, 2))
        if n + PRE < 40: st.append(([oload(n + PRE)], 0, 1))
        c = Prog(); c(f"v_max3_u32 v248, v248, v{OF(n)}, v{OF(n)+1}\n v_max3_u32 v248, v248, v{OF(n)+2}, v{OF(n)+3}")
        st.append((singles(c), 1, 2))
        p.extend(pack(mm, st, cap=32))
    p(f"""v_cmp_eq_u32 vcc, -1, v248
    s_mul_i32 s78, s68, {32*2560}
    s_cmp_lt_i32 s94, 1""")
    p("s_cbranch_scc1 g2_out", tag='keep')
    p("s_sub_u32 s94, s94, 1\n s_nop 7\n s_nop 7")
    p("s_cbranch_vccnz g2_retry", tag='keep')
    p("g2_out:")
    stamp(p)
    for T in range(2):
        for j in range(4):
            x = G2ACC + 16 * T + 4 * j; o = 88 + 8 * T + 2 * j
            p(f"v_cvt_pk_bf16_f32 v{o}, v{x}, v{x+1}\n v_cvt_pk_bf16_f32 v{o+1}, v{x+2}, v{x+3}")
            p(f"ds_write_b64 v{t}, {vr(o,2)} offset:{64*T+16*j}")
    for i in range(4): p(f"ds_read_b128 {vr(104+4*i,4)}, v{t+1} offset:{8*144*i}")
    for i in range(4):
        p(f"buffer_store_dwordx4 {vr(104+4*i,4)}, v{t+3}, {sr(S_OUT,4)}, s78 offen {OPT.get('ast', 'sc1')}")
        if i < 3: p(f"s_add_u32 s78, s78, {8*2560}")
    stamp(p)
    stamp_store(p, S_WS)
    p("s_endpgm")

def divc(p, d, x, c):
    m, sh = {10: (205, 11), 20: (205, 12), 12: (171, 11), 5: (205, 10), 100: (41, 12)}[c]
    p(f"v_mul_u32_u24 v{d}, {m}, v{x}\n v_lshrrev_b32 v{d}, {sh}, v{d}")

V_PO = 160
V_D = 200
XM = opt('xm', 0); YT = opt('yt', 0); UT = opt('ut', 0)
def decode_ab(p, tmp, sub, sb, hg):
    p(f"s_lshr_b32 {tmp}, s2, 3")
    if sub: p(f"s_sub_u32 {tmp}, {tmp}, {sub}")
    if XM == 0:
        p(f"""s_and_b32 s{sb}, s2, 6
        s_lshl_b32 s{sb}, s{sb}, 1
        s_and_b32 s{hg}, s2, 1
        s_lshl_b32 s{hg}, s{hg}, 2
        s_and_b32 s4, {tmp}, 3
        s_add_u32 s{hg}, s{hg}, s4
        s_lshr_b32 {tmp}, {tmp}, 2
        s_add_u32 s{sb}, s{sb}, {tmp}""")
    else:
        p(f"""s_and_b32 s{sb}, s2, 7
        s_lshl_b32 s{sb}, s{sb}, 1
        s_and_b32 s{hg}, {tmp}, 7
        s_lshr_b32 {tmp}, {tmp}, 3
        s_add_u32 s{sb}, s{sb}, {tmp}""")
def role_A():
    p = Prog(); nstamp[0] = 0
    p("roleA:")
    stamp(p)
    decode_ab(p, 's73', 0, 69, 70)
    if ROT == 2:
        p("""s_add_u32 s71, s69, s70
        s_mul_i32 s71, s71, 3
        s_mul_i32 s74, s71, 205
        s_lshr_b32 s74, s74, 11
        s_mul_i32 s74, s74, 10
        s_sub_u32 s71, s71, s74""")
    else:
        p(f"s_mul_i32 s71, s71, {5 if ROT else 0}\n s_add_u32 s71, s71, {1 if ROT else 0}\n s_lshr_b32 s71, s71, 1")
    p(f"""v_and_b32 v{LN}, 63, v0
    v_mov_b32 v{V_Z}, 0""")
    p(f"""s_lshl_b32 s76, s68, 5
    v_lshrrev_b32 v{t}, 3, v{LN}
    v_add_u32 v{t}, s76, v{t}
    v_mul_u32_u24 v{t}, 1280, v{t}
    v_and_b32 v{t+1}, 7, v0
    v_bfe_u32 v{t+2}, v0, 4, 2
    v_xor_b32 v{t+1}, v{t+1}, v{t+2}
    v_lshl_add_u32 v{V_XD}, v{t+1}, 4, v{t}
    v_xor_b32 v{V_XD+1}, 64, v{V_XD}
    v_add_u32 v{V_XD+1}, {8*1280}, v{V_XD+1}
    v_add_u32 v{V_XD+2}, {16*1280}, v{V_XD}
    v_add_u32 v{V_XD+3}, {16*1280}, v{V_XD+1}""")
    p(f"s_movk_i32 s78, 1120")
    for i in range(5):
        p(f"v_add_u32 v{t}, {64*i}, v{LN}")
        divc(p, t + 1, t, 20)
        p(f"""v_mul_u32_u24 v{t+2}, 20, v{t+1}
        v_sub_u32 v{t}, v{t}, v{t+2}
        v_mul_u32_u24 v{t+1}, 3840, v{t+1}
        v_cmp_le_u32 vcc, 10, v{t}
        v_lshl_add_u32 v{t+1}, v{t}, 4, v{t+1}
        v_add_u32 v{t+2}, s78, v{t+1}
        v_cndmask_b32 v{V_WD+i}, v{t+1}, v{t+2}, vcc""")
    p(f"""s_mov_b32 s80, s71
    s_mul_i32 s75, s70, 160
    s_mul_i32 s82, s68, {16*3840}
    s_add_u32 s82, s82, s75
    s_add_u32 s82, s82, 1280
    s_lshl_b32 s83, s70, 7
    s_mul_i32 s84, s68, {GR}
    s_lshl_b32 s87, s68, 14
    s_add_u32 s87, s87, {A_PHIK}
    s_mul_i32 s78, s69, {128*1280}""")
    srd(p, S_X, P_X, 128 * 1280, 's78')
    srd(p, S_W, P_W, 640 * 3840)
    su = Prog()
    trbase(su, V_TA, 8 * 320, 320)
    su(f"""v_add_u32 v{V_TA+1}, {8*GR}, v{V_TA}
    v_and_b32 v{t}, 31, v0
    v_bfe_u32 v{t+1}, v0, 1, 3
    v_bfe_u32 v{t+2}, v0, 5, 1
    v_xor_b32 v{t+1}, v{t+1}, v{t+2}
    v_lshlrev_b32 v{t+1}, 4, v{t+1}
    v_lshl_add_u32 v{t}, v{t}, 7, v{t+1}
    v_add_u32 v{V_XO}, s87, v{t}
    v_xor_b32 v{V_XO+1}, 32, v{V_XO}
    v_xor_b32 v{V_XO+2}, 64, v{V_XO}
    v_xor_b32 v{V_XO+3}, 96, v{V_XO}""")
    su(f"""v_mov_b32 v{V_X+4}, 0
    v_mov_b32 v{V_X+5}, 0
    v_mov_b32 v{V_X+6}, 0
    v_mov_b32 v{V_X+7}, 0
    v_lshlrev_b32 v{t}, 4, v0
    v_add_u32 v{t}, {A_BD}, v{t}
    v_min_u32 v{t+1}, {A_BD+496}, v{t}
    ds_write_b128 v{t}, {vr(V_X+4,4)}
    ds_write_b128 v{t}, {vr(V_X+4,4)} offset:4096
    ds_write_b128 v{t}, {vr(V_X+4,4)} offset:8192
    ds_write_b128 v{t+1}, {vr(V_X+4,4)} offset:12288""")
    L2E = 1.4426950408889634
    su(f"s_mov_b32 s88, {f2u(L2E):#x}\n s_mov_b32 s89, {f2u(L2E):#x}")
    for r in range(2):
        su(f"v_add_u32 v{t}, {256*r}, v0")
        divc(su, t + 1, t, 5); divc(su, t + 2, t, 100)
        su(f"""v_mul_u32_u24 v{t+1}, 120, v{t+1}
        v_mad_u32_u24 v{t+1}, v{t+2}, 40, v{t+1}
        v_lshl_add_u32 v{t+1}, v{t}, 3, v{t+1}
        v_add_u32 v{V_X+8+r}, {A_BD}, v{t+1}""")
    su(f"""v_mov_b32 v{t+1}, {A_END}
    v_cmp_gt_u32 vcc, 400, v{t}
    v_cndmask_b32 v{V_X+9}, v{t+1}, v{V_X+9}, vcc""")
    srd(su, S_DBG, P_DBG, 256)
    for i in range(5):
        su(f"v_add_u32 v{t}, {64*i}, v{LN}")
        divc(su, t + 1, t, 10)
        su(f"""v_mul_u32_u24 v{t+2}, 10, v{t+1}
        v_sub_u32 v{t}, v{t}, v{t+2}
        v_and_b32 v{t+2}, 24, v{t+1}
        v_and_b32 v{t+3}, 1, v{t+1}
        v_lshl_add_u32 v{t+2}, v{t+3}, 2, v{t+2}
        v_bfe_u32 v{t+3}, v{t+1}, 1, 2
        v_add_u32 v{t+2}, v{t+2}, v{t+3}
        v_mul_u32_u24 v{t+2}, 3840, v{t+2}
        v_lshl_add_u32 v{V_QD[i]}, v{t}, 4, v{t+2}""")
    su(f"""v_bfe_u32 v{t}, v0, 5, 1
    v_bfe_u32 v{t+1}, v0, 2, 2
    v_lshl_add_u32 v{t}, v{t}, 2, v{t+1}
    v_mul_u32_u24 v{t}, 160, v{t}
    v_and_b32 v{t+1}, 1, v0
    v_mad_u32_u24 v{t}, v{t+1}, 40, v{t}
    v_bfe_u32 v{t+1}, v0, 4, 1
    v_bfe_u32 v{t+2}, v0, 1, 1
    v_lshl_add_u32 v{t+1}, v{t+1}, 1, v{t+2}
    v_lshl_add_u32 v{t}, v{t+1}, 3, v{t}
    v_add_u32 v18, {A_BD}, v{t}
    v_cmp_eq_u32 vcc, 0, v{t+1}
    v_add_u32 v19, 32, v18
    v_add_u32 v{t+2}, 72, v18
    v_cndmask_b32 v19, v{t+2}, v19, vcc
    v_cmp_gt_u32 vcc, 2, v{t+1}
    v_add_u32 v20, 104, v18
    v_nop
    v_cndmask_b32 v20, v18, v20, vcc""".replace("    v_nop\n", ""))
    trbase(su, t + 3, 8 * 160, 320); park(su, 'tq', t + 3)
    su(f"""v_and_b32 v{t}, 31, v0
    v_add_u32 v{t}, s76, v{t}
    v_bfe_u32 v{t+1}, v0, 5, 1
    v_mul_u32_u24 v{t+2}, {PHI_RS}, v{t}
    v_mul_u32_u24 v{t+3}, 80, v{t+1}
    v_add_u32 v{t+2}, v{t+2}, v{t+3}
    v_add_u32 v{t+2}, {A_PHIK}, v{t+2}
    v_mul_u32_u24 v{t}, 160, v{t}
    v_lshl_add_u32 v{t}, v{t+1}, 3, v{t}
    v_add_u32 v{t}, {A_VST}, v{t}""")
    park(su, 'phiw', t + 2); park(su, 'vw', t)
    su(f"""v_bfe_u32 v{t}, v0, 2, 4
    v_and_b32 v{t+1}, 3, v0
    v_mul_u32_u24 v{t+2}, {PHI_RS}, v{t}
    v_lshl_add_u32 v{t+2}, v{t+1}, 3, v{t+2}
    s_mul_i32 s78, s68, 80
    s_add_u32 s78, s78, {A_PHIK}
    v_add_u32 v{t+2}, s78, v{t+2}
    s_mul_i32 s78, s68, 40
    s_add_u32 s78, s78, {A_VST}
    v_mul_u32_u24 v{t}, 160, v{t}
    v_add_u32 v{t}, s78, v{t}
    v_lshl_add_u32 v{t+1}, v{t+1}, 3, v{t}
    v_add_u32 v{t}, 32, v{t}""")
    park(su, 'phir', t + 2); park(su, 'vr0', t + 1); park(su, 'vr1', t)
    a0 = V_PA
    su(f"""v_and_b32 v{t+3}, 15, v0
    v_bfe_u32 v{t+4}, v0, 4, 2
    v_cmp_gt_u32 s[90:91], 8, v{t+3}
    v_lshlrev_b32 v{t}, 2, v{t+3}
    v_mul_u32_u24 v{t+1}, 768, v{t+4}
    v_add_u32 v{a0}, v{t}, v{t+1}
    v_add_u32 v{t+1}, {192-32}, v{a0}
    v_cndmask_b32 v{a0+1}, v{t+1}, v{a0}, s[90:91]
    v_mul_u32_u24 v{t+1}, 192, v{t+4}
    v_add_u32 v{t+1}, {16*192}, v{t+1}
    v_add_u32 v{a0+2}, v{t+1}, v{t}
    v_mov_b32 v{t+2}, {OOB:#x}
    v_cmp_gt_u32 vcc, 40, v{LN}
    v_cndmask_b32 v{a0+3}, v{t+2}, v{a0+2}, s[90:91]
    v_lshlrev_b32 v{t+1}, 2, v{LN}
    v_add_u32 v{t+1}, {20*192}, v{t+1}
    v_cndmask_b32 v{a0+4}, v{t+2}, v{t+1}, vcc
    v_cmp_eq_u32 vcc, 0, v{LN}
    v_cmp_gt_u32 s[90:91], 4, v{t+3}
    v_cndmask_b32 v{a0+6}, v{t+2}, v{V_Z}, vcc""")
    for k in range(5): park(su, f'at{k}', a0 + k)
    park(su, 'l0', a0 + 6)
    su(f"s_mul_i32 s85, s68, 1920\n s_add_u32 s85, s85, {A_KVIMG}\n v_mov_b32 v{t+4}, {A_KVIMG+9600}")
    for i in range(4):
        su(f"v_add_u32 v{t}, {64*i}, v{LN}")
        divc(su, t + 1, t, 12)
        su(f"""v_mul_u32_u24 v{t+2}, 12, v{t+1}
        v_sub_u32 v{t+2}, v{t}, v{t+2}
        v_cmp_gt_u32 vcc, 10, v{t+2}
        v_mul_u32_u24 v{t+1}, 80, v{t+1}
        v_lshl_add_u32 v{t+1}, v{t+2}, 3, v{t+1}
        v_add_u32 v{t+1}, s85, v{t+1}
        v_cndmask_b32 v{t+1}, v{t+4}, v{t+1}, vcc""")
        if i == 3: su(f"v_cmp_gt_u32 vcc, 60, v{LN}\n v_cndmask_b32 v{t+1}, v{t+4}, v{t+1}, vcc")
        park(su, f'kvw{i}', t + 1)
    su(f"""v_cmp_gt_u32 vcc, 120, v0
    v_lshlrev_b32 v{t}, 4, v0
    v_add_u32 v{t}, {A_KVIMG+7680}, v{t}
    v_cndmask_b32 v{t}, v{t+4}, v{t}, vcc""")
    park(su, 'kvz', t)
    su(f"""v_bfe_u32 v{t}, v0, 3, 2
    v_and_b32 v{t+1}, 3, v0
    v_lshl_add_u32 v{t}, v{t}, 2, v{t+1}
    v_mul_u32_u24 v{t}, 80, v{t}
    v_bfe_u32 v{t+1}, v0, 2, 1
    v_bfe_u32 v{t+4}, v0, 5, 1
    v_cmp_eq_u32 vcc, v{t+1}, v{t+4}
    v_mul_u32_u24 v{t+2}, 1920, v{t+1}
    v_add_u32 v{t}, v{t}, v{t+2}
    v_add_u32 v{t}, {A_KVIMG}, v{t}
    v_add_u32 v{t+3}, 3840, v{t}
    v_mov_b32 v{t+2}, {A_KVIMG+7680}
    v_cndmask_b32 v{t}, v{t+2}, v{t}, vcc
    v_cndmask_b32 v{t+3}, v{t+2}, v{t+3}, vcc""")
    park(su, 'kvr0', t); park(su, 'kvr1', t + 3)
    setup_g2(su)
    wl = Prog()
    wl("s_mul_i32 s77, s70, 3200")
    srd(wl, S_PHI, P_PHI, 3200, 's77')
    wl(f"""v_lshlrev_b32 v{V_X+10}, 3, v0
    buffer_load_dwordx2 {vr(V_X,2)}, v{V_X+10}, {sr(S_PHI,4)}, 0 offen
    buffer_load_dwordx2 {vr(V_X+2,2)}, v{V_X+10}, {sr(S_PHI,4)}, 0 offen offset:2048""")
    token_load(su, S_WS, V_Z)
    iss = issue_group(0) + [wl]
    sub = bundles(su)
    LEAD = opt('lead', 7)
    per = opt('suchunk', 30)
    for k, b in enumerate(iss):
        p.extend(b)
        if k >= LEAD:
            for x in sub[:per]: p.extend(x)
            sub = sub[per:]
    for x in sub: p.extend(x)
    for b in issue_group(1): p.extend(b)
    stamp(p)

    def sync(p, G):
        p.waitvm(('dma', G)); p("s_barrier")
    p("s_waitcnt lgkmcnt(0)")
    sync(p, 0)
    stamp(p)
    FD = 2
    def kv_reads(k):
        q = Prog(); fb = V_WF + (k % 3) * 20
        slot = k % NSLOT; base = V_TA + (slot >= 8); so = (slot % 8) * GR
        q(f"ds_read_b128 {ar(4*k,4)}, v{V_XO+k%4} offset:{((k//4)%4)*4096}")
        for T in range(5):
            for h in range(2):
                q(f"ds_read_b64_tr_b16 {vr(fb+4*T+2*h,2)}, v{base} offset:{so + 1280*h + 64*T}")
        return q
    PH = [(0, 0), (0, 1), (0, 2), (1, 0), (1, 1), (1, 2), (1, 3), (1, 4), (2, 2), (2, 3), (2, 4)]
    bdr = Prog()
    for n, (U, ka) in enumerate(PH):
        for h in range(2): bdr(f"ds_read_b64_tr_b16 {ar(160+4*n+2*h,2)}, v{18+U} offset:{(16*ka+8*h)*160}")
    bdr = singles(bdr)
    for k in range(FD): p.extend(kv_reads(k))
    segs = [list(range(0, 4 - FD))] + [list(range(4 * G - FD, 4 * G + 4 - FD)) for G in range(1, 10)] + [list(range(40 - FD, 40))]
    for si, steps in enumerate(segs):
        if si >= 1:
            if si == 10: p("s_waitcnt lgkmcnt(0)")
            if STAMP == 2: stamp(p)
            sync(p, si)
        m = Prog(); st = []
        for n, k in enumerate(steps):
            fb = V_WF + (k % 3) * 20
            m.need([vr(fb, 20), ar(4 * k, 4)])
            for T in range(5): mfma32(m, vr(V_KA + 16 * T, 16), vr(fb + 4 * T, 4), ar(4 * k, 4), '0' if k == 0 else None)
            if k + FD < 40: st.append((singles(kv_reads(k + FD)), 5 * n, 5 * n + 5))
        st.append((issue_group(si + 2), 0, None))
        if si == 1:
            w = Prog(); w(f"ds_write_b64 v{V_X+8}, {vr(V_X,2)}\n ds_write_b64 v{V_X+9}, {vr(V_X+2,2)}")
            st.append((singles(w), 2, 12))
        if si == 2:
            w = Prog(); token_make(w); st.append((singles(w), 0, None))
        if si == 8:
            w = Prog(); w(f"buffer_load_dword v{V_X+10}, v{V_Z}, {sr(S_DBG,4)}, 0 offen sc1")
            st.append(([w], 0, 1))
        if si == 10:
            w = Prog(); unpark(w, 'vw', t + 1); unpark(w, 'phiw', t + 2); unpark(w, 'tq', V_TA + 2)
            w(f"v_add_u32 v{V_TA+3}, {8*GR}, v{V_TA+2}")
            for i in range(5): unpark(w, f'wo{i}', V_XO + i)
            w(f"""v_lshlrev_b32 v{t}, 4, v{LN}
            s_mul_i32 s77, s70, 5120
            s_add_u32 s77, s77, s92
            s_add_u32 s78, s77, 4096""")
            st.append((singles(w), 0, None)); st.append((bdr, 0, None))
        p.extend(pack(m, st))
    stamp(p)

    def phi_step(p, acc, out, extra=None, inexp=None):
        B = V_WF; E = V_WF + 24; M = V_WF + 64
        cv = [f"v_cvt_pk_bf16_f32 v{B+k}, v{acc+2*k}, v{acc+2*k+1}" for k in range(20)]
        def minmax(y):
            q = Prog(); x = V_PA + y * 20; Mx = M + 8 * y
            q(f"v_max3_f32 v{Mx}, v{x}, v{x+1}, v{x+2}\n v_min3_f32 v{Mx+2}, v{x}, v{x+1}, v{x+2}")
            for k in range(3, 19, 2):
                q(f"v_max3_f32 v{Mx}, v{Mx}, v{x+k}, v{x+k+1}\n v_min3_f32 v{Mx+2}, v{Mx+2}, v{x+k}, v{x+k+1}")
            q(f"v_max_f32 v{Mx}, v{Mx}, v{x+19}\n v_min_f32 v{Mx+2}, v{Mx+2}, v{x+19}")
            q(f"v_mul_f32 v{Mx}, s88, v{Mx}\n v_mul_f32 v{Mx+2}, s88, v{Mx+2}")
            return q
        for c in cv[:8]: p(c)
        m = Prog(); seen = set()
        for n, (U, ka) in enumerate(PH):
            mfma32(m, vr(V_PA + 16 * U, 16), ar(160 + 4 * n, 4), vr(B + 4 * ka, 4), None if U in seen else '0'); seen.add(U)
        c2 = Prog()
        for c in cv[8:]: c2(c)
        st = [(singles(c2), 0, 2)]
        if extra: st.append((bundles(extra), 2, 11))
        p.extend(pack(m, st, cap=28))
        for y in range(2):
            x = V_PA + y * 20; Mx = M + 8 * y
            p.extend(minmax(y))
            for q in range(10):
                p(f"v_pk_fma_f32 {vr(E+2*q,2)}, {vr(x+2*q,2)}, s[88:89], {vr(Mx,2)} op_sel_hi:[1,1,0] neg_lo:[0,0,1] neg_hi:[0,0,1]")
                p(f"v_pk_fma_f32 {vr(E+20+2*q,2)}, {vr(x+2*q,2)}, s[88:89], {vr(Mx+2,2)} op_sel_hi:[1,1,0] neg_lo:[1,0,0] neg_hi:[1,0,0]")
            for q in range(40):
                p(f"v_exp_f32 v{E+q}, v{E+q}")
                if y == 0 and inexp and q % 6 == 5: p.extend(inexp.pop(0))
            for q in range(1, 10):
                for hh in range(2):
                    S = Mx + 4 + 2 * hh; e = E + 20 * hh
                    p(f"v_pk_add_f32 {vr(S,2)}, {vr(e if q == 1 else S,2)}, {vr(e+2*q,2)}")
            p(f"v_add_f32 v{Mx+4}, v{Mx+4}, v{Mx+5}\n v_add_f32 v{Mx+6}, v{Mx+6}, v{Mx+7}")
            p(f"v_rcp_f32 v{Mx+4}, v{Mx+4}\n v_rcp_f32 v{Mx+6}, v{Mx+6}")
            for hh in range(2):
                for q in range(10):
                    e = E + 20 * hh + 2 * q
                    p(f"v_pk_mul_f32 {vr(e,2)}, {vr(e,2)}, {vr(Mx+4+2*hh,2)} op_sel_hi:[1,0]")
            yield y
            for q in range(20):
                p(f"v_cvt_pk_bf16_f32 v{out+y*20+q}, v{E+2*q}, v{E+2*q+1}")

    def q_reads(k):
        q = Prog(); fb = V_WF + (k % 3) * 12
        slot = (40 + k // 2) % NSLOT; base = V_TA + 2 + (slot >= 8); so = (slot % 8) * GR + (k % 2) * 2560
        for T in range(3):
            for h in range(2):
                q(f"ds_read_b64_tr_b16 {vr(fb+4*T+2*h,2)}, v{base} offset:{so + 160*h + 64*T}")
        return q
    ex = Prog()
    for mm_ in range(10):
        a = V_VA + 4 * mm_; d = V_X + 2 * (mm_ % 4)
        ex(f"v_cvt_pk_bf16_f32 v{d}, v{a}, v{a+1}\n v_cvt_pk_bf16_f32 v{d+1}, v{a+2}, v{a+3}\n ds_write_b64 v{t+1}, {vr(d,2)} offset:{16*mm_}")
    w = Prog(); w0 = Prog()
    for k in range(4): w0(f"v_mov_b32 v{V_X+4+k}, -1")
    for pc in range(5):
        w(f"buffer_store_dwordx4 {vr(V_X+4,4)}, v{t}, {sr(S_WS,4)}, {'s78' if pc == 4 else 's77'} offen offset:{1024*(pc%4)} sc1")
    for y in phi_step(p, V_KA, V_PO, ex, [w0] + singles(w)):
        if y == 1:
            p.extend(q_reads(0));
    p.extend(q_reads(1))
    stamp(p)
    p(f"""v_readfirstlane_b32 s95, v{V_X+10}
    s_mov_b32 s94, {SPIN}
    s_cmp_ge_u32 s95, {NZERO_WG}""")
    p("s_cbranch_scc1 a_pz_x", tag='keep')
    p("a_pz:")
    p(f"""buffer_load_dword v{V_X+10}, v{V_Z}, {sr(S_DBG,4)}, 0 offen sc1
    s_sub_u32 s94, s94, 1
    s_waitcnt vmcnt(0)
    v_readfirstlane_b32 s95, v{V_X+10}
    s_cmp_eq_u32 s94, 0""", tag='offpath')
    p("s_cbranch_scc1 a_pz_x", tag='keep')
    p(f"s_cmp_ge_u32 s95, {NZERO_WG}")
    p("s_cbranch_scc0 a_pz", tag='keep')
    p("a_pz_x:")
    pw = Prog()
    for y in range(2):
        for q in range(5): pw(f"ds_write_b128 v{t+2}, {vr(V_PO+y*20+4*q,4)} offset:{160*y + 16*q}")
    pre = Prog()
    unpark(pre, 'phir', t); unpark(pre, 'vr0', t + 1); unpark(pre, 'vr1', t + 3)
    pre(f"v_mov_b32 v{t+4}, 0x3f803f80")
    for k in range(5): unpark(pre, f'at{k}', V_X + k)
    pre(f"""s_lshl_b32 s78, s70, 2
    s_add_u32 s78, s78, s68
    s_lshl_b32 s78, s78, 12
    s_add_u32 s78, s78, {WS_KV}""")
    KF = [72, 92, V_PO, V_PO + 20]
    def kvs_reads(sw):
        q = Prog(); fb = KF[sw]
        for h in range(2): q(f"ds_read_b64_tr_b16 {vr(fb+4+2*h,2)}, v{t+3} offset:{(sw*32+h*16)*160}")
        for h in range(2): q(f"ds_read_b64_tr_b16 {vr(fb+2*h,2)}, v{t+1} offset:{(sw*32+h*16)*160}")
        for nf in range(3):
            for h in range(2):
                q(f"ds_read_b64_tr_b16 {vr(fb+8+4*nf+2*h,2)}, v{t} offset:{(sw*32+h*16)*PHI_RS + 32*nf}")
        return q
    def kvs_mfma(m, sw):
        fb = KF[sw]
        m.need([vr(fb, 20)])
        for q in range(4): m(f"v_cndmask_b32 v{fb+4+q}, v{t+4}, v{fb+4+q}, s[90:91]")
        for md in range(2):
            for nf in range(3):
                mfma(m, vr(V_D + (3 * md + nf) * 4, 4), vr(fb + 4 * md, 4), vr(fb + 8 + 4 * nf, 4), '0' if sw == 0 else None)
    at = Prog(); a0 = V_X
    def atom(v, vo, off): at(f"buffer_atomic_add_f32 v{v}, v{vo}, {sr(S_WS,4)}, s78 offen offset:{off}", tag='kvat')
    for nf in range(2):
        for i in range(4): atom(V_D + 4 * nf + i, a0, i * 192 + nf * 64)
    R = lambda nf, i: V_D + 12 + 4 * nf + i
    for i in (0, 2):
        at(f"v_mov_b32_dpp v{V_D+8+i}, v{V_D+9+i} row_shr:8 row_mask:0xf bank_mask:0xc")
    for nf in range(3):
        at(f"v_permlane16_swap_b32 v{R(nf,0)}, v{R(nf,1)}\n v_permlane16_swap_b32 v{R(nf,2)}, v{R(nf,3)}")
    for i in (0, 2): atom(V_D + 8 + i, a0 + 1, i * 192 + 128)
    for nf in range(3): at(f"v_permlane32_swap_b32 v{R(nf,0)}, v{R(nf,2)}")
    at(f"v_permlane16_swap_b32 v{R(0,1)}, v{R(1,1)}")
    for nf in range(3): atom(R(nf, 0), a0 + (3 if nf == 2 else 2), nf * 64)
    at(f"v_permlane32_swap_b32 v{R(0,1)}, v{R(2,1)}")
    atom(R(0, 1), a0 + 4, 0)
    KS = opt('ks', 4)
    segs = [list(range(0, 6))] + [list(range(8 * g - 2, 8 * g + 6)) for g in range(1, 5)] + [[38, 39]]
    def signal():
        unpark(p, 'l0', V_X + 7)
        p(f"""s_lshl_b32 s78, s70, 13
        s_lshl_b32 s85, s69, 9
        s_add_u32 s78, s78, s85
        s_lshl_b32 s85, s68, 7
        s_add_u32 s78, s78, s85
        s_add_u32 s78, s78, {WS_KVF}""")
        p.waitvm('kvat')
        p(f"buffer_store_dword v{V_TOK}, v{V_X+7}, {sr(S_WS,4)}, s78 offen sc1")
    def qstep(k):
        m = Prog(); fb = V_WF + (k % 3) * 12
        m.need([vr(fb, 12)])
        for T in range(3): mfma32(m, vr(V_KA + 16 * T, 16), vr(fb + 4 * T, 4), ar(4 * k, 4), '0' if k == 0 else None)
        return m
    def qrun(steps, extra):
        m = Prog(); st = []
        for n, k in enumerate(steps):
            m.extend(qstep(k))
            if k + 2 < 40: st.append((singles(q_reads(k + 2)), 3 * n, 3 * n + 3))
        p.extend(pack(m, st + extra, cap=28))
    NW = opt('nw', 4)
    qrun(range(0, NW), [(singles(pw), 0, 3 * NW - 2), (bundles(pre), 2, None)])
    if STAMP == 3: stamp(p)
    p("s_waitcnt lgkmcnt(0)\n s_barrier")
    kr = Prog()
    for sw in range(4): kr.extend(kvs_reads(sw))
    kr = singles(kr)
    for x in kr[:10]: p.extend(x)
    qrun(range(NW, 6), [(kr[10:], 0, None), (issue_group(13), 0, None)])
    if NW >= 6:
        for x in kr[10:]: p.extend(x)
    for sw in range(4): kvs_mfma(p, sw)
    if STAMP == 3: stamp(p)
    for si, steps in enumerate(segs):
        G = 10 + si
        if si == 0: continue
        if STAMP == 3 and si > 1: stamp(p)
        if si == KS: signal()
        if G < 15: sync(p, G)
        if si == 1: qrun(steps, [(singles(at), 0, opt('atspan', 24))])
        elif si < 5: qrun(steps, [(issue_group(G + 2), 0, None)])
        else: qrun(steps, [])
    if KS == 6: signal()
    stamp(p)
    F = V_WF
    ex = Prog()
    unpark(ex, 'kvz', t)
    ex(f"""v_mov_b32 v{V_X}, 0
    v_mov_b32 v{V_X+1}, 0
    v_mov_b32 v{V_X+2}, 0
    v_mov_b32 v{V_X+3}, 0
    ds_write_b128 v{t}, {vr(V_X,4)}
    v_lshlrev_b32 v{t+1}, 7, v{LN}
    v_lshlrev_b32 v{t+2}, 4, v{LN}
    s_lshl_b32 s78, s70, 13
    s_add_u32 s78, s78, {WS_KVF}
    s_lshl_b32 s77, s70, 2
    s_add_u32 s77, s77, s68
    s_lshl_b32 s77, s77, 12
    s_add_u32 s77, s77, {WS_KV}""")
    for i in range(4): unpark(ex, f'kvw{i}', V_X + 4 + i)
    KL = V_KA + 32
    def kvloads(tag=None):
        for i in range(4):
            p(f"buffer_load_dwordx4 {vr(KL+4*i,4)}, v{t+2}, {sr(S_WS,4)}, s77 offen offset:{1024*i} sc1", tag=tag)
    ex(f"""buffer_load_dword v{V_X+8}, v{t+1}, {sr(S_WS,4)}, s78 offen sc1
    v_and_b32 v{t+3}, 7, v0
    v_lshlrev_b32 v{t+3}, 13, v{t+3}
    s_lshl_b32 s93, s69, 9
    s_lshl_b32 s81, s68, 7
    s_add_u32 s93, s93, s81
    s_add_u32 s93, s93, {WS_KVF}""")
    for y in phi_step(p, V_KA, V_PO, ex):
        if y == 0:
            p(f"v_cmp_eq_u32 vcc, v{V_TOK}, v{V_X+8}\n s_mov_b32 s95, 0\n s_nop 0\n s_cmp_eq_u64 vcc, -1")
            p("s_cbranch_scc0 a_noearly", tag='keep')
            kvloads('offpath')
            p("s_mov_b32 s95, 1", tag='offpath')
            p("a_noearly:")
            p(f"buffer_load_dword v{V_X+9}, v{t+3}, {sr(S_WS,4)}, s93 offen sc1")
        if y == 1:
            stamp(p)
            p("s_cmp_eq_u32 s95, 1")
            p("s_cbranch_scc1 a_have", tag='keep')
            pollall(p, "a_pk", S_WS, 's78', V_X + 8, t + 1)
            kvloads()
            p("a_have:")
            stamp(p)
            p("s_waitcnt vmcnt(0)")
            for i in range(4):
                p(f"v_cvt_pk_bf16_f32 v{F+2*i}, v{KL+4*i}, v{KL+4*i+1}\n v_cvt_pk_bf16_f32 v{F+1+2*i}, v{KL+4*i+2}, v{KL+4*i+3}")
                p(f"ds_write_b64 v{V_X+4+i}, {vr(F+2*i,2)}")
            p(f"v_cmp_eq_u32 vcc, v{V_TOK}, v{V_X+9}")
            unpark(p, 'kvr0', t); unpark(p, 'kvr1', t + 1)
            p("s_cmp_eq_u64 vcc, -1")
            p("s_cbranch_scc1 a_pf_x", tag='keep')
            q = Prog(); pollall(q, "a_pf", S_WS, 's93', V_X + 9, t + 3)
            for i_ in q.L: i_.tag = 'offpath' if i_.kind not in ('label',) else i_.tag
            p.extend(q)
            p(f"""s_mul_i32 s76, s70, 5120
            s_add_u32 s78, s92, s76
            s_add_u32 s81, s78, 4096
            s_mov_b32 s85, {f2u(1e-6):#x}""")
    p("s_waitcnt lgkmcnt(0)\n s_barrier")
    stamp(p)
    order = [(y, u, ka) for u in (1, 0) for y in range(2) for ka in range(5)]
    NB = 10; O = F + 48
    def ord_(n):
        y, u, ka = order[n]; q = Prog(); q(f"ds_read_b128 {vr(F+4*(n%NB),4)}, v{t+y} offset:{u*1280+16*ka}"); return q
    for n in range(NB): p.extend(ord_(n))
    def fin(y, ks):
        q = Prog(); dn = V_KA + 16 * y + 4
        vals = [V_D + 16 * y + r for r in range(16)] + [V_KA + 16 * y + r for r in range(4)]
        for k in ks:
            q(f"v_mul_f32 v{vals[2*k]}, v{dn}, v{vals[2*k]}\n v_mul_f32 v{vals[2*k+1]}, v{dn}, v{vals[2*k+1]}")
            q(f"v_cvt_pk_bf16_f32 v{O+10*y+k}, v{vals[2*k]}, v{vals[2*k+1]}")
        return q
    def ost(q, pc): q(f"buffer_store_dwordx4 {vr(O+4*pc,4)}, v{t+2}, {sr(S_WS,4)}, {'s81' if pc == 4 else 's78'} offen offset:{1024*(pc%4)} sc1", tag='ost')
    om = Prog()
    for n, (y, u, ka) in enumerate(order):
        if n in (0, 2, 5, 10, 15): om.need([vr(F + 4 * (m_ % NB), 4) for m_ in range(n, {0: 2, 2: 5}.get(n, n + 5))])
        mfma32(om, vr((V_D if u == 0 else V_KA) + 16 * y, 16), vr(F + 4 * (n % NB), 4), vr(V_PO + y * 20 + 4 * ka, 4), '0' if ka == 0 else None)
        if n + NB < 20: om.extend(ord_(n + NB))
    d0 = Prog(); d1 = Prog()
    for y, d in ((0, d0), (1, d1)):
        dn = V_KA + 16 * y + 4
        d(f"v_add_f32 v{dn}, s85, v{dn}\n v_rcp_f32 v{dn}, v{dn}"); d.extend(fin(y, (8, 9)))
    f0 = fin(0, range(4)); ost(f0, 0); f0.extend(fin(0, range(4, 8))); ost(f0, 1)
    p.extend(pack(om, [(issue_group(17) + issue_group(18), 0, 12), (singles(d0), 8, 11), (singles(d1), 12, 15), (singles(f0), 16, 20)], cap=28))
    dn = V_KA + 20
    for k in range(8):
        p(f"v_pk_mul_f32 {vr(V_D+16+2*k,2)}, {vr(V_D+16+2*k,2)}, {vr(dn,2)} op_sel_hi:[1,0]")
    for k in range(8):
        p(f"v_cvt_pk_bf16_f32 v{O+10+k}, v{V_D+16+2*k}, v{V_D+17+2*k}")
        if k in (1, 5, 7): ost(p, {1: 2, 5: 3, 7: 4}[k])
    stamp(p)
    p.waitvm(('dma', 18))
    gemm2_tail(p)
    return p

CP = 4168; YP = 4160; SRS = 544
B_RAW = 0
B_UC = 33280
B_KR = B_UC + 16 * CP
B_SC = B_KR + 4 * 4608
B_END = B_SC + 4 * 16 * SRS
S_KR = 81920; S_SC = S_KR + 4 * 4608
WS_KR = 4 << 20
BL, B15, BG, BZ = 1, 2, 3, 4
A_SW, A_SR, A_T0, A_T1, A_T1b, A_T2, A_X3, A_X2, A_X1, A_X0, A_KW, A_KW32, A_KB, MSK = range(24, 38)
PR = 8
S_U, S_LA, S_AI, S_CR, S_CI, S_LDT, S_DS, S_O, S_WSB = 40, 44, 48, 52, 56, 60, 64, 72, 76

def kg_lanes(p):
    p(f"""v_and_b32 v{BL}, 63, v0
    v_and_b32 v{B15}, 15, v0
    v_bfe_u32 v{BG}, v0, 4, 2
    v_mov_b32 v{BZ}, 0
    v_lshlrev_b32 v5, 2, v{BL}
    s_waitcnt lgkmcnt(0)""")
    for s_, ptr, size in ((S_LA, P_LA, 640*256), (S_AI, P_AI, 640*256), (S_CR, P_CR, 640*256), (S_CI, P_CI, 640*256), (S_LDT, P_LDT, 1280), (S_DS, P_DS, 1280)):
        srd(p, s_, ptr, size)
def kg_params(p, sch, P):
    p(f"s_lshl_b32 s81, {sch}, 8\n s_lshl_b32 s80, {sch}, 1")
    p(f"buffer_load_ushort v{P+4}, v{BZ}, {sr(S_LDT,4)}, s80 offen")
    for k, s_ in enumerate((S_LA, S_AI, S_CR, S_CI)):
        p(f"buffer_load_dword v{P+k}, v5, {sr(s_,4)}, s81 offen {'nt' if opt('ntp', 1) else ''}")
    p(f"buffer_load_ushort v{P+5}, v{BZ}, {sr(S_DS,4)}, s80 offen")
def kg_setup(p, KR, SC):
    t = 40
    p(f"""s_mul_i32 s83, s68, 4608
    s_add_u32 s83, s83, {KR}
    s_mul_i32 s84, s68, {16*SRS}
    s_add_u32 s84, s84, {SC}
    v_lshl_add_u32 v{A_SW}, v{BL}, 3, s84
    v_mul_u32_u24 v{A_SR}, {SRS}, v{B15}
    v_lshl_add_u32 v{A_SR}, v{BG}, 4, v{A_SR}
    v_add_u32 v{A_SR}, s84, v{A_SR}
    v_cmp_gt_u32 vcc, 2, v{BG}
    v_lshrrev_b32 v{t}, 1, v{BG}
    v_and_b32 v{t+1}, 1, v{BG}
    v_lshlrev_b32 v{A_T0}, 9, v{t}
    v_lshl_add_u32 v{A_T0}, v{t+1}, 4, v{A_T0}
    v_lshl_add_u32 v{A_T0}, v{B15}, 5, v{A_T0}
    v_add_u32 v{A_T0}, s84, v{A_T0}
    v_lshlrev_b32 v{t+2}, 4, v{B15}
    v_lshlrev_b32 v{t+3}, 3, v{B15}
    v_cndmask_b32 v{t+2}, v{t+3}, v{t+2}, vcc
    v_lshl_add_u32 v{A_T1}, v{BG}, 8, v{t+2}
    v_add_u32 v{A_T1}, s84, v{A_T1}
    v_mov_b32 v{t+2}, 128
    v_mov_b32 v{t+3}, 8
    v_cndmask_b32 v{t+2}, v{t+2}, v{t+3}, vcc
    v_add_u32 v{A_T1b}, v{A_T1}, v{t+2}
    v_lshlrev_b32 v{A_T2}, 8, v{BG}
    v_lshl_add_u32 v{A_T2}, v{B15}, 2, v{A_T2}
    v_add_u32 v{A_T2}, s84, v{A_T2}
    v_lshl_add_u32 v{A_X3}, v{BL}, 2, s84
    v_lshl_add_u32 v{A_X2}, v{BL}, 3, s84
    v_and_b32 v{t}, 31, v0
    v_lshl_add_u32 v{A_X1}, v{t}, 4, s84
    v_lshl_add_u32 v{A_X0}, v{t}, 5, s84
    v_lshlrev_b32 v{t+1}, 4, v{BL}
    v_sub_u32 v{A_KW}, s83, v{t+1}
    v_add_u32 v{A_KW}, 1008, v{A_KW}
    v_lshlrev_b32 v{t+1}, 4, v{t}
    v_sub_u32 v{A_KW32}, s83, v{t+1}
    v_add_u32 v{A_KW32}, 496, v{A_KW32}
    v_and_b32 v{t}, 1, v0
    v_cmp_eq_u32 vcc, 1, v{t}
    v_mov_b32 v{t+1}, 0xffff
    v_mov_b32 v{t+2}, -1
    v_cndmask_b32 v{MSK}, v{t+1}, v{t+2}, vcc
    s_mov_b32 s85, 0xffff
    s_mov_b32 s86, {f2u(1.4426950408889634):#x}
    s_mov_b32 s87, 0x32a57060
    s_mov_b32 s88, {f2u(0.6931471805599453):#x}
    s_mov_b32 s89, 0xffff0000""")

def exp_bf16(p, d, x, t):
    p(f"""v_mul_f32 v{t}, s86, v{x}
    v_fma_f32 v{t+1}, v{x}, s86, -v{t}
    v_exp_f32 v{t}, v{t}
    v_fma_f32 v{t+1}, v{x}, s87, v{t+1}
    v_mul_f32 v{t+1}, s88, v{t+1}
    v_fma_f32 v{t}, v{t}, v{t+1}, v{t}
    v_cvt_pk_bf16_f32 v{t}, v{t}, v{t}
    v_and_b32 v{d}, s89, v{t}""")
def cmul(p, c, a, b):
    p(f"v_pk_mul_f32 {vr(c,2)}, {vr(a,2)}, {vr(b,2)} op_sel:[0,0] op_sel_hi:[0,1]")
    p(f"v_pk_fma_f32 {vr(c,2)}, {vr(a,2)}, {vr(b,2)}, {vr(c,2)} op_sel:[1,1,0] op_sel_hi:[1,0,1] neg_lo:[0,1,0]")
def kgen(p, P, sched):
    E = lambda k, mu: 48 + 4 * (k - 1) + 2 * mu
    E8 = lambda mu: 76 + 2 * mu
    E128 = lambda mu: 80 + 2 * mu
    GA = lambda par, mu: 84 + 4 * par + 2 * mu
    XT = lambda k, mu: 92 + 4 * (k % 2) + 2 * mu
    PK = lambda k: 100 + 2 * (k % 4)
    FB = 108; FA = 140; DT = 172
    t = 40
    p(f"v_lshlrev_b32 v{t+6}, 16, v{P+4}")
    exp_bf16(p, t + 7, t + 6, t)
    p.need([vr(P, 6)])
    if STAMP == 4: stamp(p)
    rho = lambda mu: 92 + mu; th = lambda mu: 94 + mu
    p(f"v_add_f32 v{t+4}, v{t+7}, v{t+7}")
    for mu in range(2):
        up = (lambda d, s_: f"v_lshlrev_b32 v{d}, 16, v{s_}") if mu == 0 else (lambda d, s_: f"v_and_b32 v{d}, s89, v{s_}")
        p(up(t + 6, P))
        exp_bf16(p, t + 5, t + 6, t)
        p(f"v_mul_f32 v{t+5}, v{t+5}, v{t+7}\n v_mul_f32 v{rho(mu)}, s86, v{t+5}")
        p(up(t + 6, P + 1))
        p(f"v_mul_f32 v{t+6}, v{t+6}, v{t+7}\n v_mul_f32 v{th(mu)}, 0.15915494, v{t+6}")
        p(up(t + 5, P + 2)); p(up(t + 6, P + 3))
        p(f"v_mul_f32 v{GA(0,mu)}, v{t+5}, v{t+4}\n v_mul_f32 v{GA(0,mu)+1}, v{t+6}, v{t+4}")
    for pw, dst in ((8, E8), (1, lambda mu: E(1, mu)), (128, E128)):
        for mu in range(2):
            p(f"v_mul_f32 v{t+2*mu}, {f2u(-float(pw)):#x}, v{rho(mu)}\n v_mul_f32 v{t+2*mu+1}, {f2u(float(pw)):#x}, v{th(mu)}")
        for mu in range(2): p(f"v_exp_f32 v{t+2*mu}, v{t+2*mu}\n v_fract_f32 v{t+2*mu+1}, v{t+2*mu+1}")
        for mu in range(2): p(f"v_cos_f32 v{dst(mu)}, v{t+2*mu+1}\n v_sin_f32 v{dst(mu)+1}, v{t+2*mu+1}")
        for mu in range(2): p(f"v_pk_mul_f32 {vr(dst(mu),2)}, {vr(dst(mu),2)}, {vr(t+2*mu,2)} op_sel_hi:[1,0]")
    cnt = [0]; SIDE0 = opt('side0', 36); SIDEN = opt('siden', 2)
    def put(row, src, neg=False):
        k = cnt[0]; cnt[0] += 1
        for mu in range(2):
            a = src(mu)
            p(f"v_cvt_pk_bf16_f32 v{PK(k)+mu}, v{a}, {'-' if neg else ''}v{a+1}")
        p(f"ds_write_b64 v{A_SW}, {vr(PK(k),2)} offset:{row*SRS}")
        for b_ in sched.get(k, []): p.extend(b_)
    p(f"v_mov_b32 v{PK(3)}, 0x3f80\n v_mov_b32 v{PK(3)+1}, 0x3f80\n ds_write_b64 v{A_SW}, {vr(PK(3),2)}")
    put(1, E8, True)
    prev = E8
    for b in range(2, 16):
        cur = (lambda bb: (lambda mu: XT(bb, mu)))(b)
        for mu in range(2): cmul(p, cur(mu), prev(mu), E8(mu))
        put(b, cur, True); prev = cur
    if STAMP == 4: stamp(p)
    for ka in range(8): p(f"ds_read_b128 {vr(FB+4*ka,4)}, v{A_SR} offset:{64*ka}")
    for k in range(2, 8):
        for mu in range(2): cmul(p, E(k, mu), E(k - 1, mu), E(1, mu))
    al = [0]
    def Gcur(mu): return GA(al[0] % 2, mu)
    def Gnext():
        for mu in range(2): cmul(p, GA((al[0] + 1) % 2, mu), GA(al[0] % 2, mu), E128(mu))
        al[0] += 1
    def prod(row, k):
        if k == 0: put(row, Gcur); return
        for mu in range(2): cmul(p, XT(row, mu), Gcur(mu), E(k, mu))
        put(row, lambda mu: XT(row, mu))
    def tile(T):
        for ka in range(8): p(f"ds_read_b128 {vr(FA+4*ka,4)}, v{A_SR} offset:{64*ka}")
        return [f"v_mfma_f32_16x16x32_bf16 {vr(DT+4*T,4)}, {vr(FA+4*ka,4)}, {vr(FB+4*ka,4)}, {'0' if ka == 0 else vr(DT+4*T,4)}" for ka in range(8)]
    for a in range(2):
        for g in range(8): prod(8 * a + g, g)
        Gnext()
    if STAMP == 4: stamp(p)
    mm = tile(0)
    for a in range(2):
        for g in range(4): prod(4 * a + g, 2 * g)
        Gnext()
        if a == 0:
            for x in mm: p(x)
    for a in range(4):
        for g in range(2): prod(8 + 2 * a + g, 4 * g)
        Gnext()
    if STAMP == 4: stamp(p)
    mm = tile(1)
    for a in range(9):
        prod(a, 0)
        if a < 8: Gnext()
        if a == 3:
            for x in mm: p(x)
    if STAMP == 4: stamp(p)
    mm = tile(2)
    p(f"""v_cmp_eq_u32 vcc, 0, v{BL}
    v_lshlrev_b32 v{t}, 16, v{P+5}
    v_cndmask_b32 v{t}, v{BZ}, v{t}, vcc
    v_add_f32 v{DT}, v{DT}, v{t}""")
    for q in range(8): p(f"v_cvt_pk_bf16_f32 v{DT+q}, v{DT+q}, v{DT+q}")
    p.need([vr(FA, 32)])
    p(mm[0]); p(f"ds_write_b128 v{A_T0}, {vr(DT,4)}")
    for x in mm[1:4]: p(x)
    p(f"ds_write_b64 v{A_T1}, {vr(DT+4,2)} offset:1024")
    for x in mm[4:6]: p(x)
    p(f"ds_write_b64 v{A_T1b}, {vr(DT+6,2)} offset:1024")
    for x in mm[6:]: p(x)
    R = FB
    p(f"""ds_read_b128 {vr(R+24,4)}, v{A_X0}
    ds_read_b128 {vr(R+28,4)}, v{A_X0} offset:16
    ds_read_b128 {vr(R+16,4)}, v{A_X1} offset:1024
    ds_read_b32 v{R+20}, v{A_X1} offset:{1024+16}""")
    for q in range(8, 12): p(f"v_cvt_pk_bf16_f32 v{DT+q}, v{DT+q}, v{DT+q}")
    for i in range(4): p(f"ds_write_b32 v{A_T2}, v{DT+8+i} offset:{2048+64*i}")
    p(f"""ds_read_b32 v{R+8}, v{A_X2} offset:{1536+8}
    ds_read_b32 v{R+9}, v{A_X2} offset:{1536+4}
    ds_read_b32 v{R+11}, v{A_X2} offset:{1536}""")
    for r in range(2):
        p(f"ds_read_b32 v{R+4*r}, v{A_X3} offset:{2048+256*r+4}")
        p(f"ds_read_b32 v{R+4*r+2}, v{A_X3} offset:{2048+256*r}\n ds_read_b32 v{R+4*r+3}, v{A_X3} offset:{2048+256*r}")
    p(f"""v_bfi_b32 v{R+12}, s85, v{R+20}, v{R+19}
    v_mov_b32 v{R+13}, v{R+18}
    v_bfi_b32 v{R+14}, s85, v{R+18}, v{R+17}
    v_mov_b32 v{R+15}, v{R+16}
    ds_write_b128 v{A_KW32}, {vr(R+12,4)} offset:3072
    v_bfi_b32 v{R+16}, s85, v{R+31}, v{R+30}
    v_bfi_b32 v{R+17}, s85, v{R+29}, v{R+28}
    v_bfi_b32 v{R+18}, s85, v{R+27}, v{R+26}
    v_bfi_b32 v{R+19}, s85, v{R+25}, v{R+24}
    ds_write_b128 v{A_KW32}, {vr(R+16,4)} offset:3584
    v_bfi_b32 v{R+10}, s85, v{R+9}, v{R+11}
    ds_write_b128 v{A_KW}, {vr(R+8,4)} offset:2048""")
    for r in range(2):
        p(f"v_bfi_b32 v{R+4*r+1}, v{MSK}, v{R+4*r}, v{R+4*r+2}")
        p(f"ds_write_b128 v{A_KW}, {vr(R+4*r,4)} offset:{1024*(1-r)}")

def prefetch1():
    if not opt('pf1', 1): return []
    NG = opt('pfg', 2); B = []; p = Prog()
    decode_ab(p, 's93', 16, 94, 92)
    p("s_add_u32 s93, s94, s92\n s_mul_i32 s93, s93, 3")
    srd(p, 96, P_W, 640 * 3840)
    p(f"""s_mul_i32 s92, s92, 160
    s_lshr_b32 s95, s68, 1
    s_add_u32 s95, s95, 1
    s_mul_i32 s95, s95, 1280
    s_add_u32 s92, s92, s95
    s_andn2_b32 s92, s92, 127
    s_and_b32 s95, s68, 1
    s_lshl_b32 s95, s95, 7
    s_add_u32 s92, s92, s95
    v_mul_u32_u24 v250, 3840, v{BL}
    v_mul_u32_u24 v249, 1280, v{BL}""")
    def g10(p, d, add):
        p(f"""s_add_u32 s{d}, s93, {add}
        s_mul_i32 s95, s{d}, 205
        s_lshr_b32 s95, s95, 11
        s_mul_i32 s95, s95, 10
        s_sub_u32 s{d}, s{d}, s95""")
    for k in range(1, NG + 1):
        g10(p, 100, k)
        p(f"s_mul_i32 s100, s100, {64*3840}\n s_add_u32 s100, s100, s92\n buffer_load_dword v254, v250, s[96:99], s100 offen {'nt' if opt('ntw', 0) else ''}")
        B.append(p); p = Prog()
    srd(p, 96, P_X, 2048 * 1280)
    p(f"""s_lshl_b32 s94, s94, 1
    s_and_b32 s95, s68, 1
    s_add_u32 s94, s94, s95
    s_mul_i32 s94, s94, {64*1280}
    s_lshr_b32 s95, s68, 1
    s_add_u32 s93, s93, s95""")
    for k in range(1, NG + 1, 2):
        g10(p, 100, k)
        p(f"s_lshl_b32 s100, s100, 7\n s_add_u32 s100, s100, s94\n buffer_load_dword v254, v249, s[96:99], s100 offen {'nt' if opt('ntx', 0) else ''}")
        B.append(p); p = Prog()
    return B
def prefetch2x():
    if not opt('pf2', 1): return []
    B = []
    for r in range(2):
        a = Prog(); b = Prog()
        a(f"""s_lshr_b32 s92, s2, 3
        s_sub_u32 s92, s92, 16
        s_lshl_b32 s92, s92, 2
        s_add_u32 s92, s92, s68
        s_lshl_b32 s92, s92, 6
        s_add_u32 s92, s92, {4096*r}
        v_add_u32 v250, s92, v{BL}
        v_mul_u32_u24 v249, 6554, v250
        v_lshrrev_b32 v249, 16, v249
        v_mul_u32_u24 v252, 10, v249
        v_sub_u32 v250, v250, v252
        v_mul_u32_u24 v252, 3840, v249
        v_lshl_add_u32 v252, v250, 7, v252""")
        srd(a, 96, P_W, 640 * 3840)
        a("buffer_load_dword v254, v252, s[96:99], 0 offen")
        b(f"""v_mul_u32_u24 v252, 1280, v249
        v_lshl_add_u32 v252, v250, 7, v252""")
        srd(b, 96, P_WO, 640 * 1280)
        b("buffer_load_dword v254, v252, s[96:99], 0 offen")
        B += [a, b]
    return B
def prefetch2():
    if XM: return prefetch2x()
    if not opt('pf2', 1): return []
    a = Prog(); b = Prog()
    a(f"""s_lshr_b32 s92, s2, 3
    s_sub_u32 s92, s92, 16
    s_lshl_b32 s92, s92, 2
    s_add_u32 s92, s92, s68
    s_lshl_b32 s92, s92, 6
    v_add_u32 v250, s92, v{BL}
    v_mul_u32_u24 v249, 13108, v250
    v_lshrrev_b32 v249, 16, v249
    v_mul_u32_u24 v252, 5, v249
    v_sub_u32 v250, v250, v252
    v_mul_u32_u24 v252, 3840, v249
    v_lshl_add_u32 v252, v250, 7, v252
    s_and_b32 s93, s2, 1
    s_mul_i32 s94, s93, 640""")
    srd(a, 96, P_W, 640 * 3840)
    a("buffer_load_dword v254, v252, s[96:99], s94 offen")
    b(f"""s_lshl_b32 s94, s93, 9
    s_lshl_b32 s95, s93, 7
    s_add_u32 s95, s95, 1024
    v_lshlrev_b32 v252, 7, v250
    v_add_u32 v252, s94, v252
    v_mov_b32 v248, s95
    v_cmp_eq_u32 vcc, 4, v250
    v_mul_u32_u24 v249, 1280, v249
    v_cndmask_b32 v252, v252, v248, vcc
    v_add_u32 v252, v252, v249""")
    srd(b, 96, P_WO, 640 * 1280)
    b("buffer_load_dword v254, v252, s[96:99], 0 offen")
    return [a, b]

def role_B():
    p = Prog(); nstamp[0] = 0
    LN, L15, G, Z = BL, B15, BG, BZ
    p("roleB:")
    if opt('noB', 0): p("s_endpgm")
    stamp(p)
    if opt('bm', 1) == 0:
        p("""s_and_b32 s69, s2, 7
        s_mul_i32 s69, s69, 10
        s_lshr_b32 s70, s2, 3
        s_sub_u32 s70, s70, 16
        s_add_u32 s69, s69, s70""")
    else:
        p("""s_and_b32 s71, s2, 7
        s_lshr_b32 s70, s2, 3
        s_sub_u32 s70, s70, 16
        s_lshl_b32 s69, s71, 3
        s_add_u32 s69, s69, s70
        s_lshl_b32 s71, s71, 1
        s_add_u32 s71, s71, s70
        s_add_u32 s71, s71, 56
        s_cmp_ge_u32 s70, 8
        s_cselect_b32 s69, s71, s69""")
    kg_lanes(p)
    p(f"s_lshl_b32 s71, s69, 3\n s_add_u32 s71, s71, s68")
    kg_params(p, 's71', PR)
    pf = prefetch1()[:opt('pfb', 3)]; NOW = opt('pfnow', 3)
    srd(p, S_WSB, P_WS, WS_SIZE)
    token_load(p, S_WSB, Z)
    for b in pf[:NOW]: p.extend(b)
    p(f"""s_lshr_b32 s80, s69, 3
    s_lshl_b32 s39, s80, 12
    s_add_u32 s39, s39, {WS_UF}
    s_lshl_b32 s101, s69, 2
    s_add_u32 s101, s101, s68
    s_lshl_b32 s101, s101, 7
    s_add_u32 s101, s101, {WS_YF}
    s_lshl_b32 s6, s69, 15
    s_lshl_b32 s7, s68, 13
    s_add_u32 s6, s6, s7
    s_add_u32 s6, s6, {WS_YT}
    s_add_u32 s7, s6, 4096
    v_lshlrev_b32 v39, 4, v{LN}
    v_cmp_eq_u32 vcc, 0, v{LN}
    v_mov_b32 v15, {OOB:#x}
    v_cndmask_b32 v15, v15, v{Z}, vcc""")
    tk = Prog(); token_make(tk)
    sched = {30: [tk]}
    for k, b in enumerate(pf[NOW:]): sched.setdefault(opt('pfa', 0) + 3 * k, []).append(b)
    for k, b in enumerate(prefetch2()): sched.setdefault(opt('pf2a', 30) + 3 * k, []).append(b)
    if not UT:
        p("s_lshl_b32 s80, s69, 4")
        srd(p, S_U, P_U, 0, 's80')
        p(f"""s_sub_u32 s{S_U+2}, {2048*1280}, s80
        v_mul_u32_u24 v6, 1280, v{LN}
        s_and_b32 s90, s69, 7
        s_lshl_b32 s90, s90, 2
        s_lshl_b32 s81, s68, 3
        s_add_u32 s90, s90, s81""")
        for i in range(8):
            q = Prog()
            q(f"""s_add_u32 s81, s90, {i}
            s_and_b32 s81, s81, 31
            s_mul_i32 s82, s81, {64*1280}
            s_lshl_b32 s81, s81, 10
            s_add_u32 m0, s81, {B_RAW+256}""")
            q(f"buffer_load_dwordx4 v6, {sr(S_U,4)}, s82 offen lds", tag='raw')
            sched.setdefault(min(55, opt('side0', 40) + opt('siden', 2) * i), []).append(q)
    srd(p, S_O, P_OUT, 2048 * 2560)
    kg_setup(p, B_KR, B_SC)
    t = 40
    p(f"""v_mov_b32 v20, 0
    v_mov_b32 v21, 0
    v_mov_b32 v22, 0
    v_mov_b32 v23, 0
    v_lshlrev_b32 v{t}, 4, v{L15}
    ds_write_b128 v{t}, v[20:23] offset:{B_RAW}
    v_and_b32 v{t}, 31, v0
    v_lshl_add_u32 v38, v{t}, 4, s83
    ds_write_b128 v38, v[20:23] offset:4096
    v_lshlrev_b32 v{t+1}, 5, v{L15}
    v_sub_u32 v{A_KB}, s83, v{t+1}
    v_lshl_add_u32 v{A_KB}, v{G}, 4, v{A_KB}
    v_add_u32 v{A_KB}, 480, v{A_KB}""")
    stamp(p)
    kgen(p, PR, sched)
    stamp(p)
    Y = 184; UB = 216
    p(f"""v_and_b32 v17, 31, v0
    v_lshlrev_b32 v17, 7, v17
    s_lshl_b32 s38, s69, 15
    s_lshl_b32 s80, s68, 13
    s_add_u32 s38, s38, s80
    s_add_u32 s38, s38, {WS_UT}
    s_add_u32 s80, s80, {B_RAW+256}""")
    if UT: pollall(p, "b_pu", S_WSB, 's39', 18, 17, opt('uslp', 4))
    stamp(p)
    for i in range(8 if UT else 0):
        p(f"s_add_u32 m0, s80, {1024*i}\n s_nop 0\n buffer_load_dwordx4 v39, {sr(S_WSB,4)}, s38 offen sc1 lds\n s_add_u32 s38, s38, 1024", tag='raw')
    p(f"""v_bfe_u32 v{t}, v0, 2, 2
    v_lshl_add_u32 v{t}, v{G}, 3, v{t}
    v_bfe_u32 v{t+1}, v0, 1, 1
    v_lshl_add_u32 v{t}, v{t+1}, 2, v{t}
    v_lshlrev_b32 v{t}, 4, v{t}
    v_and_b32 v{t+1}, 1, v0
    v_lshl_add_u32 v{t}, v{t+1}, 3, v{t}
    s_lshl_b32 s80, s68, 9
    v_add_u32 v{t}, s80, v{t}
    v_and_b32 v{t+1}, 7, v0
    v_mul_u32_u24 v{t+1}, {2*CP}, v{t+1}
    v_bfe_u32 v{t+2}, v0, 3, 1
    v_lshl_add_u32 v{t+1}, v{t+2}, 3, v{t+1}
    v_lshl_add_u32 v{t+1}, v{G}, 4, v{t+1}
    s_lshl_b32 s80, s68, 6
    s_add_u32 s80, s80, {B_UC}
    v_add_u32 v{t+1}, s80, v{t+1}
    s_cmp_eq_u32 s68, 0
    s_cselect_b32 s80, 2, 0
    v_cmp_gt_u32 vcc, s80, v{G}
    v_mov_b32 v{t+2}, {B_END - 4096}
    s_mul_i32 s81, s68, {2*CP}
    v_cndmask_b32 v{t+3}, v{t+2}, v{t+1}, vcc
    s_add_u32 s81, s81, {B_UC}
    v_and_b32 v{t+4}, 1, v0
    v_mul_u32_u24 v{t+4}, {CP}, v{t+4}
    v_lshrrev_b32 v{t+5}, 1, v{L15}
    v_lshl_add_u32 v{t+5}, v{G}, 2, v{t+5}
    v_lshl_add_u32 v{t+4}, v{t+5}, 2, v{t+4}
    v_add_u32 v{UB}, s81, v{t+4}
    v_add_u32 v{UB+1}, 1024, v{UB}
    v_add_u32 v{UB+2}, 2048, v{UB}
    v_add_u32 v{UB+3}, 3072, v{UB}
    s_mul_i32 s80, s68, {YP}
    v_lshlrev_b32 v{t+4}, 5, v{L15}
    v_lshl_add_u32 v{t+4}, v{G}, 3, v{t+4}
    v_add_u32 v{UB+4}, s80, v{t+4}
    s_lshl_b32 s90, s69, 2
    s_add_u32 s90, s90, s68
    s_lshl_b32 s91, s90, 12
    s_add_u32 s91, s91, {WS_KR}
    s_lshl_b32 s90, s90, 7
    s_add_u32 s90, s90, {WS_KF}
    s_sub_u32 s92, s84, s83
    v_add_u32 v38, s92, v38""")
    p.waitvm('raw'); p("s_waitcnt lgkmcnt(0)\n s_barrier")
    stamp(p)
    p(f"ds_write_b128 v38, v[20:23] offset:4096")
    jobs = [(k, pp) for k in range(17) for pp in range(2)]
    NBUF = 8
    def rdj(n):
        k, pp = jobs[n]; p(f"ds_read_b64_tr_b16 {vr(48+2*(n%NBUF),2)}, v{t} offset:{B_RAW + 16*(1+pp) + 2048*k}")
    def wrj(n):
        k, pp = jobs[n]
        p(f"ds_write_b64 v{t+3 if k == 16 else t+1}, {vr(48+2*(n%NBUF),2)} offset:{pp*CP + 256*k}")
    for n in range(NBUF): rdj(n)
    for n in range(len(jobs)):
        wrj(n)
        if n + NBUF < len(jobs): rdj(n + NBUF)
    def fa(b, a): return ar((b % 2) * 64 + 4 * a, 4)
    def fb(b, c): return ar((b % 2) * 64 + 32 + 4 * c, 4)
    def reads(b, kind='ku'):
        q = Prog()
        for a in range(8):
            o = 128 * (a % 2) + 16 * b; r0 = (b % 2) * 64 + 4 * a
            if 'k' in kind: q(f"ds_read_b128 {fb(b,a)}, v{A_KB} offset:{512*(7-a)+64*b}")
            if 'u' in kind:
                q(f"ds_read2_b32 {ar(r0,2)}, v{UB+a//2} offset0:{o} offset1:{o+1}")
                q(f"ds_read2_b32 {ar(r0+2,2)}, v{UB+a//2} offset0:{o+2} offset1:{o+3}")
        return q
    def krdma(tag):
        for i in range(4):
            p(f"s_add_u32 m0, s84, {1024*i}\n s_nop 0\n buffer_load_dwordx4 v39, {sr(S_WSB,4)}, s91 offen sc1 lds\n s_add_u32 s91, s91, 1024", tag=tag)
    p("s_mov_b32 s93, 0\n s_mov_b32 s95, 0\n s_waitcnt lgkmcnt(0)\n s_barrier")
    stamp(p)
    p("b_conv:")
    p.extend(reads(0))
    prs = sorted([(a, c) for c in range(8) for a in range(c + 1)], key=lambda x: (max(x[0], x[1] - x[0]), x[1]))
    EB = opt('eb', 5)
    for b in range(8):
        m = Prog(); seen = set(); lvl = -1
        for a, c in prs:
            first = b == 0 and c not in seen; seen.add(c)
            if max(a, c - a) != lvl and (b == 0 or max(a, c - a) in (0, 4)):
                lvl = max(a, c - a); hi = lvl if b == 0 else lvl + 3
                m.need([fa(b, x) for x in range(lvl, hi + 1)] + [fb(b, x) for x in range(lvl, hi + 1)])
            mfma(m, vr(Y + 4 * c, 4), fa(b, a), fb(b, c - a), '0' if first else None)
        if b in (0, 1, 2) and YT:
            p("s_cmp_lg_u32 s93, 0")
            p(f"s_cbranch_scc1 b_ys{b}", tag='keep')
            if b == 0: p("v_mov_b32 v8, -1\n v_mov_b32 v9, -1\n v_mov_b32 v10, -1\n v_mov_b32 v11, -1", tag='offpath')
            for jj in ((0, 1, 2), (3, 4, 5), (6, 7))[b]:
                p(f"buffer_store_dwordx4 v[8:11], v39, {sr(S_WSB,4)}, {'s6' if jj < 4 else 's7'} offen offset:{1024*(jj%4)} sc1", tag='offpath')
            p(f"b_ys{b}:")
        if b == EB: p(f"buffer_load_dword v7, v{Z}, {sr(S_WSB,4)}, s90 offen sc1")
        if b == EB + 1:
            p(f"""v_cmp_eq_u32 vcc, v{V_TOK}, v7
            s_cmp_lg_u32 s93, 0
            s_cselect_b64 s[80:81], 0, -1
            s_and_b64 vcc, vcc, s[80:81]""")
            p("s_cbranch_scc0 b_noearly", tag='keep')
            krdma('offpath')
            p("s_mov_b32 s95, 1", tag='offpath')
            p("b_noearly:")
        p.extend(pack(m, [(singles(reads(b + 1)), 2, 30)] if b < 7 else [], cap=4))
    for c in range(8):
        d = 40 + 2 * (c % 4)
        p(f"v_cvt_pk_bf16_f32 v{d}, v{Y+4*c}, v{Y+4*c+1}\n v_cvt_pk_bf16_f32 v{d+1}, v{Y+4*c+2}, v{Y+4*c+3}")
        p(f"ds_write_b64 v{UB+4}, {vr(d,2)} offset:{B_RAW+512*c}")
    p("s_cmp_lg_u32 s93, 0")
    p("s_cbranch_scc1 b_fin")
    stamp(p)
    p(f"""s_mov_b32 s93, 1
    v_add_u32 v{A_KB}, s92, v{A_KB}""")
    for k in range(4): p(f"v_add_u32 v{UB+k}, {8*CP}, v{UB+k}")
    p(f"v_add_u32 v{UB+4}, {4*YP}, v{UB+4}\n s_cmp_eq_u32 s95, 1")
    p("s_cbranch_scc1 b_have")
    p(f"s_mov_b32 s94, {SPIN}")
    p("b_poll:")
    p(f"""buffer_load_dword v7, v{Z}, {sr(S_WSB,4)}, s90 offen sc1
    s_sub_u32 s94, s94, 1
    s_waitcnt vmcnt(0)
    v_cmp_eq_u32 vcc, v{V_TOK}, v7
    s_cmp_eq_u32 s94, 0
    s_cbranch_scc1 b_got
    s_cmp_eq_u64 vcc, 0
    s_cbranch_scc1 b_poll""")
    p("b_got:")
    krdma(None)
    p("b_have:")
    p(f"s_waitcnt vmcnt(0)\n buffer_store_dword v{V_TOK}, v15, {sr(S_WSB,4)}, s101 offen sc1\n s_branch b_conv")
    p("b_fin:")
    stamp(p)
    p(f"""v_bfe_u32 v{t+8}, v0, 2, 2
    v_mul_u32_u24 v{t+8}, {YP}, v{t+8}
    v_and_b32 v{t+9}, 3, v0
    v_lshl_add_u32 v{t+8}, v{t+9}, 3, v{t+8}
    v_lshl_add_u32 v{t+8}, v{G}, 5, v{t+8}
    s_lshl_b32 s80, s68, 10
    v_add_u32 v{t+8}, s80, v{t+8}""")
    if not YT:
        p(f"""v_mul_u32_u24 v{t+9}, 2560, v{LN}
        s_mul_i32 s80, s68, {512*2560}
        s_lshl_b32 s81, s69, 4
        s_add_u32 s80, s80, s81
        s_add_u32 s80, s80, 1280
        s_waitcnt lgkmcnt(0)
        s_barrier""")
        for it in range(8):
            for h in range(2):
                p(f"ds_read_b64_tr_b16 {vr(56+4*it+2*h,2)}, v{t+8} offset:{B_RAW + h*4*YP + 128*it}")
        for it in range(8):
            p(f"buffer_store_dwordx4 {vr(56+4*it,4)}, v{t+9}, {sr(S_O,4)}, s80 offen\n s_add_u32 s80, s80, {64*2560}")
        stamp(p); stamp(p); stamp(p)
        stamp_store(p, S_WSB)
        p("s_endpgm")
        return p
    p(f"""s_mov_b32 s5, s39
    s_lshr_b32 s80, s69, 3
    s_and_b32 s81, s69, 7
    s_lshl_b32 s81, s81, 2
    s_add_u32 s81, s81, s68
    s_lshl_b32 s38, s80, 18
    s_lshl_b32 s82, s81, 10
    s_add_u32 s38, s38, s82
    s_add_u32 s38, s38, {WS_YT}
    s_mul_i32 s39, s81, {64*2560}
    s_lshl_b32 s80, s80, 7
    s_add_u32 s39, s39, s80
    s_add_u32 s39, s39, 1280
    s_mul_i32 s90, s68, 8448
    s_add_u32 s90, s90, {B_UC}
    v_lshrrev_b32 v{t+10}, 3, v{LN}
    v_and_b32 v{t+11}, 7, v0
    v_lshlrev_b32 v{t+12}, 15, v{t+10}
    v_lshl_add_u32 v{t+12}, v{t+11}, 7, v{t+12}
    v_mul_u32_u24 v{t+13}, 1040, v{t+11}
    v_lshl_add_u32 v{t+13}, v{t+10}, 4, v{t+13}
    v_add_u32 v{t+13}, s90, v{t+13}
    v_mul_u32_u24 v{t+14}, 2560, v{t+10}
    v_lshl_add_u32 v{t+14}, v{t+11}, 4, v{t+14}
    s_add_u32 s91, s5, {WS_YF-WS_UF}""")
    pollall(p, "b_pf", S_WSB, 's91', 18, 17)
    p(f"s_mov_b32 s94, {SPIN}")
    p("s_waitcnt lgkmcnt(0)\n s_barrier")
    for it in range(8):
        for h in range(2):
            p(f"ds_read_b64_tr_b16 {vr(56+4*it+2*h,2)}, v{t+8} offset:{B_RAW + h*4*YP + 128*it}")
    for it in range(8):
        p(f"buffer_store_dwordx4 {vr(56+4*it,4)}, v39, {sr(S_WSB,4)}, {'s6' if it < 4 else 's7'} offen offset:{1024*(it%4)} sc1")
    stamp(p)
    p("b_yp:")
    p(f"""buffer_load_dword v19, v{t+12}, {sr(S_WSB,4)}, s38 offen sc1
    s_sub_u32 s94, s94, 1
    s_waitcnt vmcnt(0)
    v_cmp_ne_u32 vcc, -1, v19
    s_cmp_lt_i32 s94, 1
    s_cbranch_scc1 b_yg
    s_cmp_eq_u64 vcc, -1
    s_cbranch_scc1 b_yg
    s_sleep {opt('yslp', 8)}
    s_branch b_yp""")
    p("b_yg:")
    stamp(p)
    p("s_mov_b32 s82, s38")
    for j in range(8):
        p(f"s_add_u32 m0, s90, {1040*j}\n s_nop 0\n buffer_load_dwordx4 v39, {sr(S_WSB,4)}, s82 offen sc1 lds\n s_add_u32 s82, s82, 32768")
    p("v_mov_b32 v18, 0\n s_waitcnt vmcnt(0)")
    for i in range(8): p(f"ds_read_b128 {vr(56+4*i,4)}, v{t+13} offset:{128*i}")
    for i in range(8): p(f"v_max3_u32 v18, v18, v{56+4*i}, v{57+4*i}\n v_max3_u32 v18, v18, v{58+4*i}, v{59+4*i}")
    p(f"""v_cmp_eq_u32 vcc, -1, v18
    s_cmp_lt_i32 s94, 1
    s_cbranch_scc1 b_yo
    s_cmp_lg_u64 vcc, 0
    s_cbranch_scc1 b_yp""")
    p("b_yo:")
    for i in range(8):
        p(f"buffer_store_dwordx4 {vr(56+4*i,4)}, v{t+14}, {sr(S_O,4)}, s39 offen {OPT.get('bst', 'sc1')}\n s_add_u32 s39, s39, {8*2560}")
    stamp(p)
    stamp_store(p, S_WSB)
    p("s_endpgm")
    return p

def role_S():
    p = Prog(); nstamp[0] = 32
    p("roleS:")
    p(f"""s_getpc_b64 s[40:41]
    cpf_here:
    s_sub_u32 s40, s40, cpf_here-{NAME}_kernel
    s_subb_u32 s41, s41, 0
    s_lshr_b32 s42, s2, 3
    s_and_b32 s42, s42, 1
    s_lshl_b32 s42, s42, 15
    v_lshlrev_b32 v8, 7, v0
    v_add_u32 v8, s42, v8
    v_cmp_gt_u32 vcc, code_end-{NAME}_kernel, v8
    v_cndmask_b32 v8, 0, v8, vcc
    global_load_dword v254, v8, s[40:41]""")
    if STAMP: p("v_mov_b32 v255, 0")
    stamp(p)
    p(f"s_sub_u32 s69, s2, 208")
    kg_lanes(p)
    p(f"""s_lshl_b32 s90, s69, 2
    s_add_u32 s90, s90, s68
    s_lshl_b32 s71, s69, 3
    s_add_u32 s71, s71, s68
    s_add_u32 s71, s71, 4""")
    kg_params(p, 's71', PR)
    p(f"s_add_u32 s71, s71, 384\n s_min_u32 s71, s71, 639")
    kg_params(p, 's71', PR + 6)
    srd(p, S_U, P_WS, WS_ZERO_END)
    srd(p, S_O, P_DBG, 256)
    srd(p, S_WSB, P_WS, WS_SIZE)
    token_load(p, S_WSB, BZ)
    p(f"""s_lshl_b32 s70, s69, 12
    v_lshlrev_b32 v6, 4, v0
    v_mov_b32 v20, 0
    v_mov_b32 v21, 0
    v_mov_b32 v22, 0
    v_mov_b32 v23, 0
""")
    p(f"buffer_store_dwordx4 v[20:23], v6, {sr(S_U,4)}, s70 offen sc1", tag='zero')
    srd(p, 96, P_U, 2048 * 1280)
    p(f"""v_lshrrev_b32 v240, 3, v{BL}
    v_mul_u32_u24 v240, 1280, v240
    v_and_b32 v241, 7, v0
    v_xor_b32 v241, v241, v{BG}
    v_lshl_add_u32 v240, v241, 4, v240
    v_xor_b32 v241, 64, v240
    v_add_u32 v241, {8*1280}, v241
    s_lshl_b32 s5, s68, 14""")
    for r in range(2 if UT else 0):
        p(f"""s_add_u32 s80, s90, {192*r}
        s_and_b32 s81, s80, 31
        s_lshr_b32 s82, s80, 5
        s_mul_i32 s81, s81, {64*1280}
        s_lshl_b32 s82, s82, 7
        s_add_u32 s82, s82, s81
        s_cmp_ge_u32 s80, 320
        s_cselect_b32 s82, {0x40000000}, s82""")
        for i in range(8):
            p(f"s_add_u32 m0, s5, {8192*r+1024*i}\n s_nop 0\n buffer_load_dwordx4 v{240+i%2}, s[96:99], s82 offen nt lds", tag=('ut', r))
            if i % 2: p(f"s_add_u32 s82, s82, {16*1280}")
    for b in prefetch1()[:opt('pfs', 0 if UT else 3)]: p.extend(b)
    p(f"""s_cmp_lt_u32 s69, {NZERO_WG}
    s_cselect_b32 s4, 0, -1
    v_cmp_eq_u32 vcc, s4, v0
    v_mov_b32 v7, 1
    v_mov_b32 v38, {OOB:#x}
    v_cndmask_b32 v39, v38, v{BZ}, vcc""")
    kg_setup(p, S_KR, S_SC)
    p(f"""v_cmp_eq_u32 vcc, 0, v{BL}
    v_lshlrev_b32 v184, 4, v{BL}
    v_add_u32 v185, s83, v184
    v_cndmask_b32 v38, v38, v{BZ}, vcc
    v_bfe_u32 v242, v0, 1, 3
    v_lshlrev_b32 v242, 4, v242
    v_lshl_add_u32 v242, v{BL}, 7, v242
    v_add_u32 v242, s5, v242""")
    p.waitvm('zero')
    p(f"s_barrier\n buffer_atomic_add v7, v39, {sr(S_O,4)}, 0 offen sc1")
    token_make(p)
    if not UT: p(f"s_mov_b32 s6, {0x40000000}\n s_mov_b32 s7, {0x40000000}")
    for r in range(2 if UT else 0):
        p(f"""s_add_u32 s80, s90, {192*r}
        s_and_b32 s81, s80, 31
        s_lshr_b32 s82, s80, 5
        s_lshl_b32 s81, s81, 10
        s_lshl_b32 s82, s82, 18
        s_add_u32 s82, s82, s81
        s_add_u32 s82, s82, {WS_UT}
        s_lshl_b32 s{6+r}, s80, 7
        s_add_u32 s{6+r}, s{6+r}, {WS_UF}
        s_cmp_ge_u32 s80, 320
        s_cselect_b32 s82, {0x40000000}, s82
        s_cselect_b32 s{6+r}, {0x40000000}, s{6+r}""")
        p.waitvm(('ut', r))
        for j in range(8): p(f"v_xor_b32 v243, {16*j}, v242\n ds_read_b128 {vr(48+32*r+4*j,4)}, v243 offset:{8192*r}")
        for j in range(8): p(f"buffer_store_dwordx4 {vr(48+32*r+4*j,4)}, v184, {sr(S_WSB,4)}, s82 offen sc1\n s_add_u32 s82, s82, 32768")
    stamp(p)
    p("s_kloop:", tag='keep')
    fl = Prog()
    fl(f"""s_waitcnt vmcnt(0)
    buffer_store_dword v{V_TOK}, v38, {sr(S_WSB,4)}, s6 offen sc1
    buffer_store_dword v{V_TOK}, v38, {sr(S_WSB,4)}, s7 offen sc1""")
    sched = {opt('sfl', 24): [fl]}
    for k, b in enumerate(prefetch2()): sched.setdefault(40 + 3 * k, []).append(b)
    kgen(p, PR, sched)
    for i in range(4): p(f"ds_read_b128 {vr(48+4*i,4)}, v185 offset:{1024*i}")
    p(f"s_lshl_b32 s91, s90, 12\n s_add_u32 s91, s91, {WS_KR}")
    for i in range(4): p(f"buffer_store_dwordx4 {vr(48+4*i,4)}, v184, {sr(S_WSB,4)}, s91 offen offset:{1024*i} sc1")
    p(f"""s_lshl_b32 s6, s90, 7
    s_add_u32 s6, s6, {WS_KF}
    s_mov_b32 s7, s6
    s_add_u32 s90, s90, 192""")
    for k in range(6): p(f"v_mov_b32 v{PR+k}, v{PR+6+k}")
    stamp(p)
    p("s_cmp_lt_u32 s90, 320\n s_cbranch_scc1 s_kloop")
    p(f"s_waitcnt vmcnt(0)\n buffer_store_dword v{V_TOK}, v38, {sr(S_WSB,4)}, s6 offen sc1")
    p("s_cmp_ge_u32 s2, 240")
    stamp(p)
    p("s_cbranch_scc1 s_done")
    srd(p, S_DBG, P_DBG, 256)
    if XM == 0:
        p("""s_and_b32 s72, s2, 7
        s_lshr_b32 s69, s72, 1
        s_lshl_b32 s69, s69, 2
        s_lshr_b32 s73, s2, 3
        s_sub_u32 s73, s73, 26
        s_add_u32 s69, s69, s73
        s_and_b32 s83, s72, 1""")
    else:
        p("""s_and_b32 s69, s2, 7
        s_lshl_b32 s69, s69, 1
        s_lshr_b32 s73, s2, 3
        s_sub_u32 s73, s73, 26
        s_and_b32 s83, s73, 1
        s_lshr_b32 s73, s73, 1
        s_add_u32 s69, s69, s73""")
    p(f"""s_add_u32 s83, s83, 8
    s_lshl_b32 s83, s83, 7
    s_mul_i32 s84, s68, {GR}
    v_and_b32 v{LN}, 63, v0
    v_mov_b32 v{V_Z}, 0""")
    setup_g2(p)
    for i in range(5): unpark(p, f'wo{i}', V_XO + i)
    for G in range(15, 19):
        for b in issue_group(G): p.extend(b)
    p(f"""v_and_b32 v249, 7, v0
    v_lshlrev_b32 v249, 13, v249
    s_lshl_b32 s85, s69, 9
    s_lshl_b32 s81, s68, 7
    s_add_u32 s85, s85, s81
    s_add_u32 s85, s85, {WS_KVF}""")
    pollall(p, "s_pf", S_WS, 's85', 248, 249, opt('slp', 8))
    p("s_branch g2_tail")
    p("s_done:")
    p(f"""s_cmp_lg_u32 s2, 255
    s_cbranch_scc1 s_fin
    s_cmp_lg_u32 s68, 0
    s_cbranch_scc1 s_fin
""")
    for n, (base, cnt, r) in enumerate(((WS_KF, 48, 0), (WS_YF, 80, 0), (WS_YF, 80, 1), (WS_KVF, 128, 0), (WS_KVF, 128, 1))):
        p(f"""v_add_u32 v187, {64*r}, v{BL}
        v_min_u32 v187, {cnt-1}, v187
        v_lshlrev_b32 v187, 9, v187
        s_mov_b32 s91, {base}""")
        pollall(p, f"s_ep{n}", S_WSB, 's91', 186, 187, 16)
    p(f"""s_mov_b32 s4, {WS_EP}
    buffer_store_dword v{V_TOK}, v38, {sr(S_WSB,4)}, s4 offen sc1""")
    p("s_fin:")
    if STAMP:
        stamp_store(p, S_WSB)
    p("done:\n s_endpgm\n code_end:")
    return p

def main():
    LDS = max(A_END + 16, B_END + 4608)
    assert LDS <= 163840, LDS
    ref = open(f"cdna_kernels/{NAME}.s.ref").read().split('\n')
    hdr = [l for l in ref if l.startswith(';') and '@launch' not in l]
    s = '\n'.join(hdr) + f"\n; @launch grid=(256,1,1) block=(256,1,1) lds={LDS}\n"
    s += f""".amdgcn_target "amdgcn-amd-amdhsa--gfx950"
.text
.globl {NAME}_kernel
.p2align 8
.type {NAME}_kernel,@function
{NAME}_kernel:
"""
    e = Prog()
    e(f"""s_cmp_ge_u32 s2, 256
    s_cbranch_scc1 done""")
    if opt('cpf2', 0):
        e(f"""s_getpc_b64 s[36:37]
        v_lshlrev_b32 v2, 7, v0
        s_cmp_ge_u32 s2, 128
        s_cselect_b32 s38, roleB-{NAME}_kernel, 0
        v_add_u32 v2, s38, v2
        v_min_u32 v2, code_end-{NAME}_kernel-64, v2
        global_load_dword v253, v2, s[36:37]""", tag='offpath')
    e(f"""
    s_load_dwordx16 s[8:23], s[0:1], 0
    s_load_dwordx8 s[24:31], s[0:1], 64
    s_load_dwordx4 s[32:35], s[0:1], 96
    v_lshrrev_b32 v1, 6, v0
    s_nop 0
    v_readfirstlane_b32 s68, v1
    s_cmp_ge_u32 s2, 208
    s_cbranch_scc1 roleS
    s_cmp_ge_u32 s2, 128
    s_cbranch_scc1 roleB""")
    a = role_A()
    e.extend(a)
    L = lower(e) + lower(role_B()) + lower(role_S())
    if opt('align', 1):
        L, nn, npro = align8(L, sizes_of(s + render(L)))
        print("align: nops", nn, "promoted", npro)
    s += render(L)
    s += f""".section .rodata,"a"
.p2align 6
.amdhsa_kernel {NAME}_kernel
  .amdhsa_next_free_vgpr 512
  .amdhsa_next_free_sgpr 102
  .amdhsa_accum_offset 256
  .amdhsa_group_segment_fixed_size 0
  .amdhsa_kernarg_size 112
  .amdhsa_user_sgpr_count 2
  .amdhsa_user_sgpr_kernarg_segment_ptr 1
  .amdhsa_system_sgpr_workgroup_id_x 1
.end_amdhsa_kernel
"""
    out = OPT.get('out', f"cdna_kernels/{NAME}.s")
    open(out, 'w').write(s)
    print("LDS", LDS, "A_END", A_END, "B_END", B_END, "lines", s.count('\n'))
main()
```

```python
import re

REG_RE = re.compile(r'(?<![\w.])([vas])(\d+)(?![\w\[])|(?<![\w.])([vas])\[(\d+):(\d+)\]')
TRANS = ('v_exp_f32', 'v_log_f32', 'v_rcp_f32', 'v_rsq_f32', 'v_sqrt_f32', 'v_sin_f32', 'v_cos_f32')

def regs_of(tok):
    out = []
    for m in REG_RE.finditer(tok):
        if m.group(1): out.append((m.group(1), int(m.group(2))))
        else: out += [(m.group(3), i) for i in range(int(m.group(4)), int(m.group(5)) + 1)]
    t = tok.strip().lstrip('-').strip('|')
    if t == 'vcc': out += [('s', 'vcc_lo'), ('s', 'vcc_hi')]
    elif t in ('vcc_lo', 'vcc_hi'): out.append(('s', t))
    elif t == 'exec': out += [('s', 'exec')]
    elif t == 'm0': out.append(('s', 'm0'))
    return out

def split_ops(s):
    ops = []; depth = 0; cur = ''
    for ch in s:
        if ch in '[(': depth += 1
        if ch in '])': depth -= 1
        if ch == ',' and depth == 0: ops.append(cur.strip()); cur = ''
        else: cur += ch
    if cur.strip(): ops.append(cur.strip())
    return ops

class I:
    __slots__ = ('text', 'mn', 'defs', 'uses', 'kind', 'tag', 'srcc', 'passes', 'wide', 'note')
    def __init__(self, text, tag=None):
        self.text = text.strip(); self.tag = tag; self.note = None
        self.srcc = []; self.passes = 0; self.wide = False
        t = self.text
        if t.endswith(':') or t.startswith('.') or t.startswith(';'):
            self.mn = t; self.kind = 'label' if t.endswith(':') else 'dir'; self.defs = []; self.uses = []; return
        parts = t.split(None, 1)
        mn = parts[0]; self.mn = mn
        rest = parts[1] if len(parts) > 1 else ''
        base = re.sub(r'_(e32|e64|dpp)$', '', mn)
        ops = split_ops(rest)
        if ops:
            last = ops[-1].split()
            mods = ' '.join(last[1:]) if len(last) > 1 else ''
            ops[-1] = last[0]
        else: mods = ''
        R = [regs_of(o) for o in ops]
        flat = lambda l: [x for y in l for x in y]
        defs = []; uses = []
        if base.startswith('v_mfma'):
            self.kind = 'mfma'; defs = R[0]; uses = flat(R[1:4]); self.srcc = R[3]
            self.passes = 8 if '32x32' in base else 4
        elif base.startswith('v_cmp'):
            self.kind = 'valu'; defs = R[0]; uses = flat(R[1:])
        elif base in ('v_readfirstlane_b32', 'v_readlane_b32'):
            self.kind = 'valu'; defs = R[0]; uses = flat(R[1:])
        elif base.startswith('v_permlane') and 'swap' in base:
            self.kind = 'valu'; defs = flat(R[:2]); uses = flat(R[:2])
        elif base.startswith('v_'):
            self.kind = 'valu'; defs = R[0]; uses = flat(R[1:])
            if base in ('v_fmac_f32', 'v_pk_fmac_f16', 'v_writelane_b32') or 'dpp' in mods or 'row_' in mods or 'quad_perm' in mods: uses = uses + R[0]
            if base in ('v_add_co_u32', 'v_sub_co_u32', 'v_addc_co_u32'): defs = flat(R[:2]); uses = flat(R[2:])
            if base == 'v_cndmask_b32' and len(ops) == 3: uses += regs_of('vcc')
        elif base.startswith('ds_read') or base.startswith('ds_bpermute') or base.startswith('ds_swizzle'):
            self.kind = 'ds'; defs = R[0]; uses = flat(R[1:])
        elif base.startswith('ds_'):
            self.kind = 'ds'; uses = flat(R)
        elif base.startswith('buffer_load') or base.startswith('global_load'):
            self.kind = 'vm'
            if re.search(r'\blds\b', mods): uses = flat(R) + [('s', 'm0')]; self.note = 'dma'
            else: defs = R[0]; uses = flat(R[1:])
        elif base.startswith('buffer_atomic') or base.startswith('global_atomic'):
            self.kind = 'vm'; uses = flat(R)
            if 'sc0' in mods: defs = R[0]
        elif base.startswith('buffer_store') or base.startswith('global_store'):
            self.kind = 'vm'; uses = flat(R)
            if 'x3' in base or 'x4' in base:
                self.wide = True
                self.srcc = R[0] if base.startswith('buffer') else R[1]
        elif base.startswith('buffer_wbl2') or base.startswith('buffer_inv'):
            self.kind = 'vm'
        elif base.startswith('s_load') or base in ('s_memtime', 's_memrealtime'):
            self.kind = 'smem'; defs = R[0]; uses = flat(R[1:])
        elif base == 's_waitcnt': self.kind = 'wait'
        elif base == 's_nop': self.kind = 'nop'
        elif base == 's_barrier': self.kind = 'barrier'
        elif base.startswith('s_cbranch') or base in ('s_branch', 's_setpc_b64', 's_swappc_b64', 's_endpgm', 's_call_b64'):
            self.kind = 'branch'; uses = flat(R)
        elif base.startswith('s_cmp') or base in ('s_sleep', 's_setprio', 's_bitcmp1_b32', 's_bitcmp0_b32'):
            self.kind = 'salu'; uses = flat(R)
        elif base.startswith('s_'):
            self.kind = 'salu'; defs = R[0]; uses = flat(R[1:])
            if 'saveexec' in base: defs = defs + [('s', 'exec')]
        else:
            raise ValueError('unknown instr ' + t)
        if self.kind == 'vm' and defs == [('v', 254)]: defs = []
        self.defs = defs; self.uses = uses
    def states(self):
        if self.kind == 'nop': return int(self.text.split()[1], 0) + 1
        if self.kind in ('label', 'dir'): return 0
        return 1

class Prog:
    def __init__(self):
        self.L = []
    def __call__(self, text, tag=None):
        for line in text.split('\n'):
            line = line.split(';;')[0].strip()
            if line: self.L.append(I(line, tag))
    def waitvm(self, tag):
        i = I('; waitvm ' + str(tag)); i.kind = 'waitvm'; i.tag = tag; self.L.append(i)
    def need(self, regs):
        i = I('; need'); i.kind = 'need'; i.uses = [r for tok in regs for r in regs_of(tok)]; i.defs = []; self.L.append(i)
    def waitall(self, vm=True, lgkm=True):
        self(('s_waitcnt ' + ('vmcnt(0) ' if vm else '') + ('lgkmcnt(0)' if lgkm else '')).strip())
    def extend(self, other): self.L += other.L

def merge(main, side, ratio_fn=None, start=0, every=1, count=1):
    out = Prog(); si = 0; nm = 0
    S = side.L
    for ins in main.L:
        out.L.append(ins)
        if ins.kind == 'mfma':
            nm += 1
            if nm > start and (nm - start) % every == 0:
                c = 0
                while c < count and si < len(S):
                    out.L.append(S[si]);
                    if S[si].kind not in ('dir', 'waitvm'): c += 1
                    si += 1
    out.L += S[si:]
    return out

def insert_waits(L):
    out = []; vm = []; lg = []; smem = set()
    def need(q, regs, tagmatch=None):
        idx = -1
        for k, e in enumerate(q):
            if (regs and e[0] & regs) or (tagmatch is not None and e[1] == tagmatch): idx = k
        return idx
    for ins in L:
        if ins.tag == 'offpath':
            out.append(ins); continue
        if ins.kind == 'wait':
            m = re.search(r'vmcnt\((\d+)\)', ins.text)
            if m: n = int(m.group(1)); vm = vm[len(vm) - n:] if n < len(vm) and n > 0 else ([] if n == 0 else vm)
            m = re.search(r'lgkmcnt\((\d+)\)', ins.text)
            if m:
                n = int(m.group(1))
                if n == 0: lg = []; smem = set()
                elif not smem and n < len(lg): lg = lg[len(lg) - n:]
            out.append(ins); continue
        if ins.kind == 'label':
            out.append(ins); continue
        regs = set(ins.uses) | set(ins.defs)
        w = []
        if ins.kind == 'waitvm': k = need(vm, None, ins.tag)
        else: k = need(vm, regs)
        if k >= 0:
            n = len(vm) - 1 - k
            w.append('vmcnt(%d)' % min(n, 62)); vm = vm[k + 1:]
        if smem & regs or (smem and need(lg, regs) >= 0):
            w.append('lgkmcnt(0)'); lg = []; smem = set()
        else:
            k = need(lg, regs)
            if k >= 0:
                n = len(lg) - 1 - k
                w.append('lgkmcnt(%d)' % min(n, 14)); lg = lg[k + 1:]
        if w: out.append(I('s_waitcnt ' + ' '.join(w)))
        if ins.kind in ('waitvm', 'need'): continue
        out.append(ins)
        if ins.kind == 'vm': vm.append((set(ins.defs), ins.tag))
        elif ins.kind == 'ds': lg.append((set(ins.defs), ins.tag))
        elif ins.kind == 'smem': smem |= set(ins.defs); smem.add(('x', 0))
        if ins.kind == 'branch' and ins.mn != 's_endpgm' and 'nocheck' not in (ins.tag or ''):
            pend = [e for e in vm + lg if e[0]]
            if pend and not (ins.tag and 'keep' in ins.tag):
                raise ValueError('pending loads across branch: ' + ins.text + ' ' + str(pend[:2]))
    return out

def isv(r): return r[0] in 'va'
def req_states(p, c):
    n = 0
    pd = set(p.defs); cu = set(c.uses); cd = set(c.defs)
    cb = re.sub(r'_e(32|64)$', '', c.mn); pb = re.sub(r'_e(32|64)$', '', p.mn)
    if p.kind == 'valu':
        vd = {r for r in pd if isv(r)}; sd = pd - vd
        if c.kind == 'mfma' and vd & cu: n = max(n, 2)
        if c.kind == 'valu':
            if cb in ('v_readfirstlane_b32', 'v_readlane_b32') and vd & cu: n = max(n, 1)
            if cb.startswith('v_permlane') and vd & cu: n = max(n, 2)
            if ('row_' in c.text or 'quad_perm' in c.text or 'dpp' in c.text) and vd & cu: n = max(n, 2)
            if pb in TRANS and cb not in TRANS and vd & cu: n = max(n, 1)
            if pb in TRANS and vd & cu: n = max(n, 1)
            if sd & cu: n = max(n, 4 if cb in ('v_readlane_b32', 'v_writelane_b32') else 2)
            if 'op_sel' in p.text and not pb.startswith('v_pk') and vd & (cu | cd): n = max(n, 1)
        if pb in TRANS and c.kind in ('ds', 'vm') and vd & cu: n = max(n, 1)
        if c.kind == 'vm' and sd & cu: n = max(n, 5)
        if c.kind in ('salu', 'branch', 'smem') and sd & cu: n = max(n, 1)
    elif p.kind == 'mfma':
        P = p.passes
        if c.kind == 'mfma':
            cc = set(c.srcc); ab = cu - cc if not (cu - cc) & cc else cu
            abregs = set(regs_of(split_ops(c.text.split(None, 1)[1])[1])) | set(regs_of(split_ops(c.text.split(None, 1)[1])[2]))
            if pd & abregs: n = max(n, 8 if P == 4 else 12)
            if pd & cc:
                if not (list(p.defs) == list(c.srcc) and c.passes == P): n = max(n, 6 if P == 4 else 10)
            elif pd & cd: n = max(n, 8 if P == 4 else 12)
        elif c.kind in ('valu', 'ds', 'vm'):
            if pd & (cu | cd): n = max(n, 8 if P == 4 else 12)
            if c.kind == 'valu' and set(p.srcc) & cd: n = max(n, 3 if P == 4 else 7)
    elif p.kind == 'salu':
        if ('s', 'm0') in pd and c.note == 'dma': n = max(n, 1)
        if ('s', 'exec') in pd and c.kind == 'mfma': n = max(n, 1)
    elif p.kind == 'vm' and p.wide:
        if set(p.srcc) & cd: n = max(n, 2)
    return n

def insert_nops(L):
    out = []
    for ins in L:
        if ins.kind in ('label', 'dir', 'nop', 'wait', 'barrier'):
            out.append(ins); continue
        need = 0; dist = 0
        for p in reversed(out):
            if dist >= 12: break
            r = req_states(p, ins)
            if r - dist > need: need = r - dist
            dist += p.states()
        if need > 0: out.append(I('s_nop %d' % (need - 1)))
        out.append(ins)
    return out

def finalize(prog):
    L = insert_waits(prog.L)
    L = insert_nops(L)
    return '\n'.join((i.text if i.kind in ('label',) or i.text.startswith('.') else ' ' + i.text) for i in L) + '\n'

def spread(main, bundles, lo=0, hi=None):
    n = sum(1 for i in main.L if i.kind == 'mfma')
    if hi is None: hi = n
    nb = len(bundles)
    pos = {}
    for k, b in enumerate(bundles):
        q = lo + int((k + 0.5) * (hi - lo) / nb) if nb else 0
        pos.setdefault(min(max(q, 0), n - 1), []).append(b)
    out = Prog(); c = 0
    for ins in main.L:
        out.L.append(ins)
        if ins.kind == 'mfma':
            for b in pos.get(c, []): out.L += b.L
            c += 1
    return out
def singles(prog):
    r = []
    for i in prog.L:
        q = Prog(); q.L = [i]; r.append(q)
    return r

def cost(i):
    if i.kind == 'vm': return 14
    if i.kind == 'ds': return 20 if i.mn.startswith('ds_write') else 4
    if i.kind == 'valu': return 8 if re.sub(r'_e(32|64)$', '', i.mn) in TRANS else 4
    if i.kind == 'salu': return 2
    return 0
def pack(main, streams, cap=24):
    n = sum(1 for i in main.L if i.kind == 'mfma')
    Q = []
    for items, lo, hi in streams:
        hi = n if hi is None else min(hi, n)
        Q.append([[(lo + (k + 0.5) * (hi - lo) / len(items) - 0.5, b) for k, b in enumerate(items)], hi])
    out = Prog(); c = 0
    if n == 0:
        out.L += main.L
        return out
    for ins in main.L:
        out.L.append(ins)
        if ins.kind != 'mfma': continue
        used = 0
        while True:
            cand = [q for q in Q if q[0] and (q[0][0][0] <= c + 0.49 or c >= q[1] - 1)]
            if not cand: break
            q = min(cand, key=lambda q: (q[1], q[0][0][0]))
            cs = sum(cost(i) for i in q[0][0][1].L)
            if used and used + cs > cap and c < q[1] - 1: break
            out.L += q[0].pop(0)[1].L; used += cs
        c += 1
    assert not any(q[0] for q in Q)
    return out
def bundles(prog):
    r = []; cur = None
    for i in prog.L:
        glue = cur is not None and (i.mn.startswith(('s_cselect', 's_addc', 's_subb', 's_cbranch')))
        if not glue:
            cur = Prog(); r.append(cur)
        cur.L.append(i)
    return r

import subprocess, tempfile, os
PROMO = re.compile(r'^v_(mov_b32|add_u32|sub_u32|and_b32|or_b32|xor_b32|lshlrev_b32|lshrrev_b32|mul_u32_u24|mul_f32|add_f32|max_f32|min_f32|exp_f32|rcp_f32|fract_f32|sin_f32|cos_f32|min_u32|cndmask_b32|cmp_\w+)$')
def sizes_of(text):
    d = tempfile.mkdtemp()
    open(d + '/a.s', 'w').write(text)
    r = subprocess.run(['clang', '-x', 'assembler', '-target', 'amdgcn-amd-amdhsa', '-mcpu=gfx950', '-c', d + '/a.s', '-o', d + '/a.o'], capture_output=True, text=True)
    assert r.returncode == 0, r.stderr[:3000]
    o = subprocess.run(['llvm-objdump', '-d', '--mcpu=gfx950', d + '/a.o'], capture_output=True, text=True).stdout
    out = []
    for l in o.split('\n'):
        m = re.search(r'//\s*([0-9A-F]{12}):((?: [0-9A-F]{8})+)', l)
        if m: out.append(4 * len(m.group(2).split()))
    return out
def align8(L, sizes, minrun=6):
    real = [i for i in L if i.kind not in ('label', 'dir')]
    assert len(real) == len(sizes), (len(real), len(sizes))
    sz = {id(i): s for i, s in zip(real, sizes)}
    out = []; off = 0; cand = None; n = len(L); nn = 0; npro = 0
    for k, ins in enumerate(L):
        if ins.kind in ('label', 'dir'):
            out.append(ins);
            if ins.kind == 'label': cand = None
            continue
        s = sz[id(ins)]
        if s == 8 and off % 8 == 4:
            run = 0
            for j in range(k, min(n, k + 12)):
                if L[j].kind in ('label', 'dir'): continue
                if sz[id(L[j])] != 8 or L[j].kind != 'valu': break
                run += 1
            if cand is not None:
                cand.text = cand.mn + '_e64 ' + cand.text.split(None, 1)[1]; off += 4; npro += 1
            elif run >= minrun:
                out.append(I('s_nop 0')); off += 4; nn += 1
            cand = None
        if s == 4 and ins.kind == 'valu' and PROMO.match(ins.mn): cand = ins
        elif s == 8: cand = None
        out.append(ins); off += s
    return out, nn, npro
def render(L):
    return '\n'.join((i.text if i.kind in ('label',) or i.text.startswith('.') else ' ' + i.text) for i in L) + '\n'
def lower(prog):
    return insert_nops(insert_waits(prog.L))

def page_stubs(L, sizes, first, upto, prefix='pg'):
    real = [i for i in L if i.kind not in ('label', 'dir')]
    sz = {id(i): s for i, s in zip(real, sizes)}
    out = []; room = first; n = 0; done = False
    for k, ins in enumerate(L):
        if ins.kind == 'label' and ins.text == upto + ':': done = True
        s = sz.get(id(ins), 0)
        if not done and room - s < 72 and ins.kind in ('mfma', 'valu') and out[-1].kind not in ('salu', 'label', 'branch', 'nop'):
            out += [I(f's_branch {prefix}{n}_skip'), I('.p2align 12'), I(f'{prefix}{n}:'), I('s_setpc_b64 s[4:5]'), I('s_nop 0'), I(f'{prefix}{n}_skip:')]
            room = 4096 - 8; n += 1
        assert done or room - s >= 4, 'no break point'
        out.append(ins); room -= s
    return out, n
```

```python
import sys, struct
from gasm import Prog, finalize, merge, spread, singles, pack, bundles, lower, render, sizes_of, align8, page_stubs
NAME = "concat_heads__linear_kernel_hedgehog__ssm_conv_s4d__prompt"
OPT = dict(a.split('=') for a in sys.argv[1:] if '=' in a)
def opt(k, d): return type(d)(OPT.get(k, d))
STAMP = opt('stamp', 0)
ROT = opt('rot', 2)
def f2u(x): return struct.unpack('<I', struct.pack('<f', x))[0]
def vr(a, n): return f"v[{a}:{a+n-1}]" if n > 1 else f"v{a}"
def ar(a, n): return f"a[{a}:{a+n-1}]" if n > 1 else f"a{a}"
def sr(a, n): return f"s[{a}:{a+n-1}]" if n > 1 else f"s{a}"
def magic(d): return (2**32 + d - 1) // d

WS_KV = 0; WS_ZERO_END = 32 * 4096; WS_KVF = WS_ZERO_END; WS_KF = WS_KVF + 65536; WS_UF = WS_KF + 40960; WS_YF = WS_UF + 40960; WS_EP = WS_YF + 40960
WS_O = 262144; WS_STAMP = 4 << 20; WS_SIZE = 8 << 20
NSPARE = 48
NZERO_WG = 32
assert WS_EP + 128 <= WS_O
V_TOK = 253
P_X, P_W, P_PHI, P_WO, P_U, P_LA, P_AI, P_CR, P_CI, P_LDT, P_DS, P_OUT, P_DBG, P_WS = [8 + 2 * i for i in range(14)]
OOB = 0x80000000
SPIN = 400000

def srd(p, s, ptr, size, off=None):
    if off is None:
        p(f"s_mov_b32 s{s}, s{ptr}\n s_mov_b32 s{s+1}, s{ptr+1}")
    else:
        p(f"s_add_u32 s{s}, s{ptr}, {off}\n s_addc_u32 s{s+1}, s{ptr+1}, 0")
    p(f"s_mov_b32 s{s+2}, {size}\n s_mov_b32 s{s+3}, 0x20000")

nstamp = [0]
def stamp(p, sreg_base=96):
    if not STAMP: return
    k = nstamp[0]; nstamp[0] += 1
    if k in (0, 32): p(f"s_getreg_b32 s36, hwreg(HW_REG_HW_ID)\n v_writelane_b32 v255, s36, 60\n s_getreg_b32 s36, hwreg(HW_REG_XCC_ID)\n v_writelane_b32 v255, s36, 59")
    if k == 0: p(f"s_memrealtime s[36:37]\n s_waitcnt lgkmcnt(0)\n v_writelane_b32 v255, s36, 62")
    p(f"s_memtime s[36:37]\n s_waitcnt lgkmcnt(0)\n v_writelane_b32 v255, s36, {k}")
def stamp_store(p, wsrd):
    if not STAMP: return
    p(f"s_waitcnt vmcnt(0)\n s_memtime s[36:37]\n s_waitcnt lgkmcnt(0)\n v_writelane_b32 v255, s36, 61\n s_memrealtime s[36:37]\n s_waitcnt lgkmcnt(0)\n v_writelane_b32 v255, s36, 63")
    p(f"""s_lshl_b32 s36, s2, 2
    s_add_u32 s36, s36, s68
    s_lshl_b32 s36, s36, 8
    s_add_u32 s36, s36, {WS_STAMP}
    v_and_b32 v250, 63, v0
    v_lshlrev_b32 v250, 2, v250
    buffer_store_dword v255, v250, {sr(wsrd,4)}, s36 offen""")

def token_load(p, wsrd, vz):
    p(f"s_mov_b32 s4, {WS_EP}\n buffer_load_dword v{V_TOK}, v{vz}, {sr(wsrd,4)}, s4 offen sc1")
def token_make(p):
    p(f"""s_mov_b32 s4, 0x9e3779b1
    v_mul_lo_u32 v{V_TOK}, v{V_TOK}, s4
    v_add_u32 v{V_TOK}, 0x7f4a7c15, v{V_TOK}""")
def token_seen(p, dsrd, vt):
    p(f"""v_cmp_eq_u32 vcc, 0, v0
    v_mov_b32 v{vt}, {OOB:#x}
    v_mov_b32 v{V_CNT}, 1
    v_cndmask_b32_e64 v{vt}, v{vt}, 0, vcc
    buffer_atomic_add v{V_CNT}, v{vt}, {sr(dsrd,4)}, 8 offen sc1""")
def spinpoll(p, name, srdreg, soff, vt, va, cmp, init, period=None):
    period = period or opt('period', 24)
    p(f"v_mov_b32 v{vt}, {init}" if init is not None else f"v_not_b32 v{vt}, v{V_TOK}", tag='offpath')
    p(f"{name}:")
    p(f"""buffer_load_dword v{vt}, v{va}, {sr(srdreg,4)}, {soff} offen sc1
    s_mov_b32 s95, {period}""", tag='offpath')
    p(f"{name}_i:")
    p(f"""{cmp}
    s_sub_u32 s94, s94, 1
    s_cbranch_scc1 {name}_x
    s_cmp_eq_u64 vcc, -1
    s_cbranch_scc1 {name}_x
    s_sub_u32 s95, s95, 1
    s_cbranch_scc0 {name}_i
    s_waitcnt vmcnt(24)
    s_branch {name}""", tag='offpath')
    p(f"{name}_x:")
def pollall(p, name, srdreg, soff, vt, va, slp=0):
    p(f"s_mov_b32 s94, {SPIN}")
    p(f"{name}:")
    p(f"""buffer_load_dword v{vt}, v{va}, {sr(srdreg,4)}, {soff} offen sc1
    s_sub_u32 s94, s94, 1
    s_waitcnt vmcnt(0)
    v_cmp_eq_u32 vcc, v{V_TOK}, v{vt}
    s_cmp_eq_u32 s94, 0""")
    p(f"s_cbranch_scc1 {name}_x", tag='keep')
    p(f"s_cmp_eq_u64 vcc, -1")
    if slp:
        p(f"s_cbranch_scc1 {name}_x", tag='keep')
        p(f"s_sleep {slp}\n s_branch {name}", tag='keep')
    else: p(f"s_cbranch_scc0 {name}", tag='keep')
    p(f"{name}_x:")

A_RING = 0; NSLOT = 16; GR = 5120
A_PHIK = NSLOT * GR; PHI_RS = 352
A_VST = A_PHIK + 128 * PHI_RS
A_BD = A_VST + 20480
A_END = A_BD + 12800
A_KVIMG = A_PHIK
S_X, S_W, S_WO, S_WS, S_OUT, S_DBG, S_PHI = 40, 44, 48, 52, 56, 60, 64
V_XO = 1
V_XD = 5
V_WD = 9
V_TA = 14
V_Z = 22; V_T = 23
V_WF = 32
V_KA = 112; V_VA = 152; V_PA = 192; V_X = 240
OLD = 'sc1' if opt('osc1', 0) else ''

def mfma(p, d, a, b, c=None):
    p(f"v_mfma_f32_16x16x32_bf16 {d}, {a}, {b}, {d if c is None else c}")
def mfma32(p, d, a, b, c=None):
    p(f"v_mfma_f32_32x32x16_bf16 {d}, {a}, {b}, {d if c is None else c}")

LN = V_T; t = V_T + 1
parked = {}
def park(p, name, v):
    if name not in parked: parked[name] = 204 + len(parked)
    assert parked[name] < 256
    p(f"v_accvgpr_write_b32 a{parked[name]}, v{v}")
def unpark(q, name, v): q(f"v_accvgpr_read_b32 v{v}, a{parked[name]}")

def trbase(p, d, rowk, rowrho, extra=0):
    p(f"""v_bfe_u32 v{t}, v0, 5, 1
    v_mul_u32_u24 v{t}, {rowk}, v{t}
    v_bfe_u32 v{t+1}, v0, 2, 2
    v_mul_u32_u24 v{t+1}, {rowrho}, v{t+1}
    v_bfe_u32 v{t+2}, v0, 4, 1
    v_lshl_add_u32 v{t}, v{t+2}, 5, v{t}
    v_and_b32 v{t+2}, 3, v0
    v_lshl_add_u32 v{t}, v{t+2}, 3, v{t}
    v_add_u32 v{d}, v{t}, v{t+1}""")
    if extra: p(f"v_add_u32 v{d}, {extra}, v{d}")

def setup_g2(p):
    srd(p, S_WO, P_WO, 640 * 1280)
    srd(p, S_WS, P_WS, WS_SIZE)
    p(f"s_mul_i32 s78, s69, {128*2560}\n s_add_u32 s78, s78, s83")
    srd(p, S_OUT, P_OUT, 0, 's78')
    p(f"s_sub_u32 s{S_OUT+2}, {2048*2560}, s78")
    p(f"""s_lshr_b32 s79, s68, 1
    s_mul_i32 s79, s79, {80*1280}
    s_add_u32 s79, s79, s83
    s_and_b32 s85, s68, 1
    s_mul_i32 s85, s85, 40
    s_lshl_b32 s78, s69, 2
    s_add_u32 s78, s78, s68
    s_mul_i32 s78, s78, 40960
    s_add_u32 s92, s78, {WS_O}""")
    for i in range(5):
        p(f"""v_lshrrev_b32 v{t}, 3, v{LN}
        v_add_u32 v{t}, s85, v{t}
        v_add_u32 v{t}, {8*i}, v{t}
        v_lshrrev_b32 v{t+1}, 4, v{t}
        v_and_b32 v{t+2}, 7, v{t}
        v_lshl_add_u32 v{t+1}, v{t+1}, 3, v{t+2}
        v_bfe_u32 v{t+2}, v{t}, 3, 1
        v_mad_u32_u24 v{t+2}, v{t+2}, 20, v{t+1}
        v_add_u32 v{t+3}, 20, v{t+2}
        v_cmp_le_u32 vcc, 20, v{t+1}
        v_cndmask_b32 v{t+2}, v{t+2}, v{t+3}, vcc
        v_mul_u32_u24 v{t+2}, 1280, v{t+2}
        v_bfe_u32 v{t}, v{t}, 1, 1
        v_lshlrev_b32 v{t}, 2, v{t}
        v_and_b32 v{t+1}, 7, v0
        v_xor_b32 v{t}, v{t}, v{t+1}
        v_lshl_add_u32 v{t}, v{t}, 4, v{t+2}""")
        park(p, f'wo{i}', t)
    trbase(p, t + 3, 8 * 128, 128)
    p(f"""v_bfe_u32 v{t}, v0, 3, 1
    v_lshl_add_u32 v{t+3}, v{t}, 6, v{t+3}""")
    park(p, 'two', t + 3)
    p(f"""s_add_u32 s78, s84, {A_VST}
    v_and_b32 v{t}, 31, v0
    v_mul_u32_u24 v{t}, 144, v{t}
    v_bfe_u32 v{t+1}, v0, 5, 1
    v_lshl_add_u32 v{t}, v{t+1}, 3, v{t}
    v_add_u32 v{t}, s78, v{t}""")
    park(p, 'outw', t)
    p(f"""v_lshrrev_b32 v{t}, 3, v{LN}
    v_and_b32 v{t+1}, 7, v0
    v_lshlrev_b32 v{t+1}, 4, v{t+1}
    v_mul_u32_u24 v{t+2}, 144, v{t}
    v_add3_u32 v{t+2}, v{t+2}, v{t+1}, s78
    v_mul_u32_u24 v{t}, 2560, v{t}
    v_add_u32 v{t}, v{t}, v{t+1}""")
    park(p, 'outr', t + 2); park(p, 'outg', t)

def dma_bundles(G, hdr, items):
    B = []
    hdr(items[0][0]); B.append(hdr)
    for k, (m0, ld) in enumerate(items):
        q = Prog(); q(ld, tag=('dma', G))
        if k + 1 < len(items): q(items[k + 1][0])
        B.append(q)
    return B
def issue_group(G):
    slotbase = A_RING + (G % 4) * 4 * GR
    h = Prog()
    if G < 10:
        h(f"s_mul_i32 s86, s80, {64*3840}\n s_add_u32 s86, s86, s82\n s_lshl_b32 s81, s80, 7")
        h(f"s_add_u32 s80, s80, 1\n s_cmp_eq_u32 s80, 10\n s_cselect_b32 s80, 0, s80")
        sd = S_W
    elif G < 15:
        h(f"""s_lshl_b32 s86, s71, 1
        s_add_u32 s86, s86, s68
        s_add_u32 s86, s86, {4*(G-10)}
        s_sub_u32 s74, s86, 20
        s_cmp_ge_u32 s86, 20
        s_cselect_b32 s86, s74, s86
        s_mul_i32 s86, s86, {32*3840}
        s_add_u32 s86, s86, s75""")
        sd = S_W
    else:
        h(f"s_add_u32 s86, s79, {(G%4)*160*1280}")
        sd = S_WO
    W = [(f"s_add_u32 m0, s84, {slotbase + 1024*i}", f"buffer_load_dwordx4 v{V_QD[i] if 10 <= G < 15 else (V_WD+i if G < 10 else V_XO+i)}, {sr(sd,4)}, s86 offen {'nt' if opt('ntw', 0) else ''} lds") for i in range(5)]
    if G < 10:
        X = [(f"s_add_u32 m0, s87, {(G%4)*4096 + 1024*r}", f"buffer_load_dwordx4 v{V_XD+r}, {sr(S_X,4)}, s81 offen {'nt' if opt('ntx', 0) else ''} lds") for r in range(4)]
        items = [W[0], X[0], W[1], X[1], W[2], X[2], W[3], X[3], W[4]]
    else: items = W
    return dma_bundles(G, h, items)
V_QD = [21, 29, 30, 31, 252]

OF = lambda n: 88 + 4 * n
G2ACC = 56
def gemm2_tail(p):
    F = V_WF
    p("g2_tail:")
    unpark(p, 'two', V_TA)
    p(f"""v_xor_b32 v{V_TA+1}, 64, v{V_TA}
    v_add_u32 v{V_TA+2}, {8*GR}, v{V_TA}
    v_add_u32 v{V_TA+3}, {8*GR}, v{V_TA+1}
    v_lshlrev_b32 v{t+2}, 4, v{LN}
    v_lshrrev_b32 v{t+4}, 3, v{LN}
    v_mul_u32_u24 v{t+4}, 5120, v{t+4}
    v_and_b32 v{t}, 7, v0
    v_lshl_add_u32 v{t+4}, v{t}, 7, v{t+4}
    s_mov_b32 s94, {SPIN*8}
    s_add_u32 s93, s92, 4096
    s_barrier""")
    unpark(p, 'outw', t); unpark(p, 'outr', t + 1); unpark(p, 'outg', t + 3)
    stamp(p)
    def reads(n):
        hq, pp = divmod(n, 5); q = Prog(); fb = F + (n % 3) * 8
        off = hq * 10240 + pp * 2048; hi = 0
        if hq >= 4: off -= 8 * GR; hi = 2
        for T in range(2):
            for h in range(2):
                q(f"ds_read_b64_tr_b16 {vr(fb+4*T+2*h,2)}, v{V_TA+hi+T} offset:{off + 512*h}")
        return q
    p("g2_retry:")
    p.extend(reads(0)); p.extend(reads(1))
    p(f"s_mov_b32 s81, s92\n v_mov_b32 v248, 0")
    p("g2_poll:")
    p(f"""buffer_load_dword v249, v{t+4}, {sr(S_WS,4)}, s93 offen sc1
    s_sub_u32 s94, s94, 1
    s_waitcnt vmcnt(0)
    v_cmp_ne_u32 vcc, -1, v249
    s_cmp_lt_i32 s94, 1""")
    p("s_cbranch_scc1 g2_go", tag='keep')
    p("s_cmp_eq_u64 vcc, -1")
    p("s_cbranch_scc1 g2_go", tag='keep')
    p(f"s_sleep {opt('gslp', 2)}\n s_branch g2_poll", tag='keep')
    p("g2_go:")
    stamp(p)
    def oload(n):
        q = Prog(); hq, pp = divmod(n, 5)
        if pp == 4: q(f"s_add_u32 s85, s81, 4096")
        q(f"buffer_load_dwordx4 {vr(OF(n),4)}, v{t+2}, {sr(S_WS,4)}, {'s85' if pp == 4 else 's81'} offen offset:{1024*(pp%4)} sc1")
        if pp == 4: q("s_add_u32 s81, s81, 5120")
        return q
    PRE = opt('opre', 10)
    for n in range(PRE): p.extend(oload(n))
    for n in range(40):
        fb = F + (n % 3) * 8
        mm = Prog(); mm.need([vr(fb, 8), vr(OF(n), 4)])
        for T in range(2): mfma32(mm, vr(G2ACC + 16 * T, 16), vr(fb + 4 * T, 4), vr(OF(n), 4), '0' if n == 0 else None)
        st = []
        if n + 2 < 40: st.append((singles(reads(n + 2)), 0, 2))
        if n + PRE < 40: st.append(([oload(n + PRE)], 0, 1))
        c = Prog(); c(f"v_max3_u32 v248, v248, v{OF(n)}, v{OF(n)+1}\n v_max3_u32 v248, v248, v{OF(n)+2}, v{OF(n)+3}")
        st.append((singles(c), 1, 2))
        p.extend(pack(mm, st, cap=32))
    p(f"""v_cmp_eq_u32 vcc, -1, v248
    s_mul_i32 s78, s68, {32*2560}
    s_cmp_lt_i32 s94, 1""")
    p("s_cbranch_scc1 g2_out", tag='keep')
    p("s_sub_u32 s94, s94, 1\n s_nop 7\n s_nop 7")
    p("s_cbranch_vccnz g2_retry", tag='keep')
    p("g2_out:")
    stamp(p)
    for T in range(2):
        for j in range(4):
            x = G2ACC + 16 * T + 4 * j; o = 88 + 8 * T + 2 * j
            p(f"v_cvt_pk_bf16_f32 v{o}, v{x}, v{x+1}\n v_cvt_pk_bf16_f32 v{o+1}, v{x+2}, v{x+3}")
            p(f"ds_write_b64 v{t}, {vr(o,2)} offset:{64*T+16*j}")
    for i in range(4): p(f"ds_read_b128 {vr(104+4*i,4)}, v{t+1} offset:{8*144*i}")
    for i in range(4):
        p(f"buffer_store_dwordx4 {vr(104+4*i,4)}, v{t+3}, {sr(S_OUT,4)}, s78 offen {OPT.get('ast', 'sc1')}")
        if i < 3: p(f"s_add_u32 s78, s78, {8*2560}")
    stamp(p)
    stamp_store(p, S_WS)
    p("s_endpgm")

def divc(p, d, x, c):
    m, sh = {10: (205, 11), 20: (205, 12), 12: (171, 11), 5: (205, 10), 100: (41, 12)}[c]
    p(f"v_mul_u32_u24 v{d}, {m}, v{x}\n v_lshrrev_b32 v{d}, {sh}, v{d}")

V_PO = 160
V_D = 200
NPG = opt('npg', 6); XM = opt('xm', 0); YT = opt('yt', 0); UT = opt('ut', 0)
def decode_ab(p, tmp, sub, sb, hg):
    p(f"s_lshr_b32 {tmp}, s2, 3")
    if sub: p(f"s_sub_u32 {tmp}, {tmp}, {sub}")
    if XM == 0:
        p(f"""s_and_b32 s{sb}, s2, 6
        s_lshl_b32 s{sb}, s{sb}, 1
        s_and_b32 s{hg}, s2, 1
        s_lshl_b32 s{hg}, s{hg}, 2
        s_and_b32 s4, {tmp}, 3
        s_add_u32 s{hg}, s{hg}, s4
        s_lshr_b32 {tmp}, {tmp}, 2
        s_add_u32 s{sb}, s{sb}, {tmp}""")
    else:
        p(f"""s_and_b32 s{sb}, s2, 7
        s_lshl_b32 s{sb}, s{sb}, 1
        s_and_b32 s{hg}, {tmp}, 7
        s_lshr_b32 {tmp}, {tmp}, 3
        s_add_u32 s{sb}, s{sb}, {tmp}""")
def role_A():
    p = Prog(); nstamp[0] = 0
    p("roleA:")
    stamp(p)
    decode_ab(p, 's73', 0, 69, 70)
    if ROT == 2:
        p("""s_add_u32 s71, s69, s70
        s_mul_i32 s71, s71, 3
        s_mul_i32 s74, s71, 205
        s_lshr_b32 s74, s74, 11
        s_mul_i32 s74, s74, 10
        s_sub_u32 s71, s71, s74""")
    else:
        p(f"s_mul_i32 s71, s71, {5 if ROT else 0}\n s_add_u32 s71, s71, {1 if ROT else 0}\n s_lshr_b32 s71, s71, 1")
    p(f"""v_and_b32 v{LN}, 63, v0
    v_mov_b32 v{V_Z}, 0""")
    p(f"""s_lshl_b32 s76, s68, 5
    v_lshrrev_b32 v{t}, 3, v{LN}
    v_add_u32 v{t}, s76, v{t}
    v_mul_u32_u24 v{t}, 1280, v{t}
    v_and_b32 v{t+1}, 7, v0
    v_bfe_u32 v{t+2}, v0, 4, 2
    v_xor_b32 v{t+1}, v{t+1}, v{t+2}
    v_lshl_add_u32 v{V_XD}, v{t+1}, 4, v{t}
    v_xor_b32 v{V_XD+1}, 64, v{V_XD}
    v_add_u32 v{V_XD+1}, {8*1280}, v{V_XD+1}
    v_add_u32 v{V_XD+2}, {16*1280}, v{V_XD}
    v_add_u32 v{V_XD+3}, {16*1280}, v{V_XD+1}""")
    p(f"s_movk_i32 s78, 1120")
    for i in range(5):
        p(f"v_add_u32 v{t}, {64*i}, v{LN}")
        divc(p, t + 1, t, 20)
        p(f"""v_mul_u32_u24 v{t+2}, 20, v{t+1}
        v_sub_u32 v{t}, v{t}, v{t+2}
        v_mul_u32_u24 v{t+1}, 3840, v{t+1}
        v_cmp_le_u32 vcc, 10, v{t}
        v_lshl_add_u32 v{t+1}, v{t}, 4, v{t+1}
        v_add_u32 v{t+2}, s78, v{t+1}
        v_cndmask_b32 v{V_WD+i}, v{t+1}, v{t+2}, vcc""")
    p(f"""s_mov_b32 s80, s71
    s_mul_i32 s75, s70, 160
    s_mul_i32 s82, s68, {16*3840}
    s_add_u32 s82, s82, s75
    s_add_u32 s82, s82, 1280
    s_lshl_b32 s83, s70, 7
    s_mul_i32 s84, s68, {GR}
    s_lshl_b32 s87, s68, 14
    s_add_u32 s87, s87, {A_PHIK}
    s_mul_i32 s78, s69, {128*1280}""")
    srd(p, S_X, P_X, 128 * 1280, 's78')
    srd(p, S_W, P_W, 640 * 3840)
    su = Prog()
    trbase(su, V_TA, 8 * 320, 320)
    su(f"""v_add_u32 v{V_TA+1}, {8*GR}, v{V_TA}
    v_and_b32 v{t}, 31, v0
    v_bfe_u32 v{t+1}, v0, 1, 3
    v_bfe_u32 v{t+2}, v0, 5, 1
    v_xor_b32 v{t+1}, v{t+1}, v{t+2}
    v_lshlrev_b32 v{t+1}, 4, v{t+1}
    v_lshl_add_u32 v{t}, v{t}, 7, v{t+1}
    v_add_u32 v{V_XO}, s87, v{t}
    v_xor_b32 v{V_XO+1}, 32, v{V_XO}
    v_xor_b32 v{V_XO+2}, 64, v{V_XO}
    v_xor_b32 v{V_XO+3}, 96, v{V_XO}""")
    su(f"""v_mov_b32 v{V_X+4}, 0
    v_mov_b32 v{V_X+5}, 0
    v_mov_b32 v{V_X+6}, 0
    v_mov_b32 v{V_X+7}, 0
    v_lshlrev_b32 v{t}, 4, v0
    v_add_u32 v{t}, {A_BD}, v{t}
    v_min_u32 v{t+1}, {A_BD+496}, v{t}
    ds_write_b128 v{t}, {vr(V_X+4,4)}
    ds_write_b128 v{t}, {vr(V_X+4,4)} offset:4096
    ds_write_b128 v{t}, {vr(V_X+4,4)} offset:8192
    ds_write_b128 v{t+1}, {vr(V_X+4,4)} offset:12288""")
    L2E = 1.4426950408889634
    su(f"s_mov_b32 s88, {f2u(L2E):#x}\n s_mov_b32 s89, {f2u(L2E):#x}")
    for r in range(2):
        su(f"v_add_u32 v{t}, {256*r}, v0")
        divc(su, t + 1, t, 5); divc(su, t + 2, t, 100)
        su(f"""v_mul_u32_u24 v{t+1}, 120, v{t+1}
        v_mad_u32_u24 v{t+1}, v{t+2}, 40, v{t+1}
        v_lshl_add_u32 v{t+1}, v{t}, 3, v{t+1}
        v_add_u32 v{V_X+8+r}, {A_BD}, v{t+1}""")
    su(f"""v_mov_b32 v{t+1}, {A_END}
    v_cmp_gt_u32 vcc, 400, v{t}
    v_cndmask_b32 v{V_X+9}, v{t+1}, v{V_X+9}, vcc""")
    srd(su, S_DBG, P_DBG, 256)
    for i in range(5):
        su(f"v_add_u32 v{t}, {64*i}, v{LN}")
        divc(su, t + 1, t, 10)
        su(f"""v_mul_u32_u24 v{t+2}, 10, v{t+1}
        v_sub_u32 v{t}, v{t}, v{t+2}
        v_and_b32 v{t+2}, 24, v{t+1}
        v_and_b32 v{t+3}, 1, v{t+1}
        v_lshl_add_u32 v{t+2}, v{t+3}, 2, v{t+2}
        v_bfe_u32 v{t+3}, v{t+1}, 1, 2
        v_add_u32 v{t+2}, v{t+2}, v{t+3}
        v_mul_u32_u24 v{t+2}, 3840, v{t+2}
        v_lshl_add_u32 v{V_QD[i]}, v{t}, 4, v{t+2}""")
    su(f"""v_bfe_u32 v{t}, v0, 5, 1
    v_bfe_u32 v{t+1}, v0, 2, 2
    v_lshl_add_u32 v{t}, v{t}, 2, v{t+1}
    v_mul_u32_u24 v{t}, 160, v{t}
    v_and_b32 v{t+1}, 1, v0
    v_mad_u32_u24 v{t}, v{t+1}, 40, v{t}
    v_bfe_u32 v{t+1}, v0, 4, 1
    v_bfe_u32 v{t+2}, v0, 1, 1
    v_lshl_add_u32 v{t+1}, v{t+1}, 1, v{t+2}
    v_lshl_add_u32 v{t}, v{t+1}, 3, v{t}
    v_add_u32 v18, {A_BD}, v{t}
    v_cmp_eq_u32 vcc, 0, v{t+1}
    v_add_u32 v19, 32, v18
    v_add_u32 v{t+2}, 72, v18
    v_cndmask_b32 v19, v{t+2}, v19, vcc
    v_cmp_gt_u32 vcc, 2, v{t+1}
    v_add_u32 v20, 104, v18
    v_nop
    v_cndmask_b32 v20, v18, v20, vcc""".replace("    v_nop\n", ""))
    trbase(su, t + 3, 8 * 160, 320); park(su, 'tq', t + 3)
    a0 = V_PA
    su(f"""v_and_b32 v{t}, 31, v0
    v_add_u32 v{t}, s76, v{t}
    v_bfe_u32 v{t+1}, v0, 5, 1
    v_mul_u32_u24 v{t+2}, {PHI_RS}, v{t}
    v_add_u32 v{t+2}, {A_PHIK}, v{t+2}
    v_bfe_u32 v{t+3}, v0, 2, 1
    v_mul_u32_u24 v{t+4}, 5, v{t+1}
    v_xor_b32 v{a0}, v{t+4}, v{t+3}
    v_lshl_add_u32 v{a0}, v{a0}, 4, v{t+2}
    v_add_u32 v{t+4}, 1, v{t+4}
    v_xor_b32 v{a0+1}, v{t+4}, v{t+3}
    v_lshl_add_u32 v{a0+1}, v{a0+1}, 4, v{t+2}
    v_mul_u32_u24 v{t}, 160, v{t}
    v_add_u32 v{t}, {A_VST}, v{t}
    v_bfe_u32 v{t+3}, v0, 2, 2
    v_xor_b32 v{t+3}, v{t+3}, v{t+1}
    v_lshl_add_u32 v{a0+2}, v{t+3}, 3, v{t}
    v_xor_b32 v{t+3}, 2, v{t+3}
    v_lshl_add_u32 v{a0+3}, v{t+3}, 3, v{t}""")
    park(su, 'phiw0', a0); park(su, 'phiw1', a0 + 1); park(su, 'vw0', a0 + 2); park(su, 'vw1', a0 + 3)
    su(f"""v_bfe_u32 v{t}, v0, 2, 4
    v_bfe_u32 v{t+1}, v0, 4, 2
    s_mul_i32 s78, s68, 5
    v_bfe_u32 v{t+2}, v0, 1, 1
    v_add_u32 v{t+2}, s78, v{t+2}
    v_and_b32 v{t+3}, 1, v{t+1}
    v_xor_b32 v{t+2}, v{t+2}, v{t+3}
    v_and_b32 v{t+3}, 1, v0
    v_lshlrev_b32 v{t+3}, 3, v{t+3}
    v_lshl_add_u32 v{t+2}, v{t+2}, 4, v{t+3}
    v_mul_u32_u24 v{t+3}, {PHI_RS}, v{t}
    v_add_u32 v{t+2}, v{t+2}, v{t+3}
    v_add_u32 v{a0}, {A_PHIK}, v{t+2}
    v_mul_u32_u24 v{t}, 160, v{t}
    v_add_u32 v{t}, {A_VST}, v{t}
    v_and_b32 v{t+2}, 3, v0
    v_add_u32 v{t+2}, s78, v{t+2}
    v_xor_b32 v{t+2}, v{t+2}, v{t+1}
    v_lshl_add_u32 v{a0+1}, v{t+2}, 3, v{t}
    s_add_u32 s78, s78, 4
    v_xor_b32 v{t+2}, s78, v{t+1}
    v_lshl_add_u32 v{a0+2}, v{t+2}, 3, v{t}""")
    park(su, 'phir', a0); park(su, 'vr0', a0 + 1); park(su, 'vr1', a0 + 2)
    a0 = V_PA
    su(f"""v_and_b32 v{t+3}, 15, v0
    v_bfe_u32 v{t+4}, v0, 4, 2
    v_cmp_gt_u32 s[90:91], 8, v{t+3}
    v_lshlrev_b32 v{t}, 2, v{t+3}
    v_mul_u32_u24 v{t+1}, 768, v{t+4}
    v_add_u32 v{a0}, v{t}, v{t+1}
    v_add_u32 v{t+1}, {192-32}, v{a0}
    v_cndmask_b32 v{a0+1}, v{t+1}, v{a0}, s[90:91]
    v_mul_u32_u24 v{t+1}, 192, v{t+4}
    v_add_u32 v{t+1}, {16*192}, v{t+1}
    v_add_u32 v{a0+2}, v{t+1}, v{t}
    v_mov_b32 v{t+2}, {OOB:#x}
    v_cmp_gt_u32 vcc, 40, v{LN}
    v_cndmask_b32 v{a0+3}, v{t+2}, v{a0+2}, s[90:91]
    v_lshlrev_b32 v{t+1}, 2, v{LN}
    v_add_u32 v{t+1}, {20*192}, v{t+1}
    v_cndmask_b32 v{a0+4}, v{t+2}, v{t+1}, vcc
    v_cmp_eq_u32 vcc, 0, v{LN}
    v_cmp_gt_u32 s[90:91], 4, v{t+3}
    v_cndmask_b32 v{a0+6}, v{t+2}, v{V_Z}, vcc""")
    for k in range(5): park(su, f'at{k}', a0 + k)
    park(su, 'l0', a0 + 6)
    su(f"s_mul_i32 s85, s68, 1920\n s_add_u32 s85, s85, {A_KVIMG}\n v_mov_b32 v{t+4}, {A_KVIMG+9600}")
    for i in range(4):
        su(f"v_add_u32 v{t}, {64*i}, v{LN}")
        divc(su, t + 1, t, 12)
        su(f"""v_mul_u32_u24 v{t+2}, 12, v{t+1}
        v_sub_u32 v{t+2}, v{t}, v{t+2}
        v_cmp_gt_u32 vcc, 10, v{t+2}
        v_mul_u32_u24 v{t+1}, 80, v{t+1}
        v_lshl_add_u32 v{t+1}, v{t+2}, 3, v{t+1}
        v_add_u32 v{t+1}, s85, v{t+1}
        v_cndmask_b32 v{t+1}, v{t+4}, v{t+1}, vcc""")
        if i == 3: su(f"v_cmp_gt_u32 vcc, 60, v{LN}\n v_cndmask_b32 v{t+1}, v{t+4}, v{t+1}, vcc")
        park(su, f'kvw{i}', t + 1)
    su(f"""v_cmp_gt_u32 vcc, 120, v0
    v_lshlrev_b32 v{t}, 4, v0
    v_add_u32 v{t}, {A_KVIMG+7680}, v{t}
    v_cndmask_b32 v{t}, v{t+4}, v{t}, vcc""")
    park(su, 'kvz', t)
    su(f"""v_bfe_u32 v{t}, v0, 3, 2
    v_and_b32 v{t+1}, 3, v0
    v_lshl_add_u32 v{t}, v{t}, 2, v{t+1}
    v_mul_u32_u24 v{t}, 80, v{t}
    v_bfe_u32 v{t+1}, v0, 2, 1
    v_bfe_u32 v{t+4}, v0, 5, 1
    v_cmp_eq_u32 vcc, v{t+1}, v{t+4}
    v_mul_u32_u24 v{t+2}, 1920, v{t+1}
    v_add_u32 v{t}, v{t}, v{t+2}
    v_add_u32 v{t}, {A_KVIMG}, v{t}
    v_add_u32 v{t+3}, 3840, v{t}
    v_mov_b32 v{t+2}, {A_KVIMG+7680}
    v_cndmask_b32 v{t}, v{t+2}, v{t}, vcc
    v_cndmask_b32 v{t+3}, v{t+2}, v{t+3}, vcc""")
    park(su, 'kvr0', t); park(su, 'kvr1', t + 3)
    setup_g2(su)
    wl = Prog()
    wl("s_mul_i32 s77, s70, 3200")
    srd(wl, S_PHI, P_PHI, 3200, 's77')
    wl(f"""v_lshlrev_b32 v{V_X+10}, 3, v0
    buffer_load_dwordx2 {vr(V_X,2)}, v{V_X+10}, {sr(S_PHI,4)}, 0 offen
    buffer_load_dwordx2 {vr(V_X+2,2)}, v{V_X+10}, {sr(S_PHI,4)}, 0 offen offset:2048""")
    token_load(su, S_WS, V_Z)
    iss = issue_group(0) + [wl]
    sub = bundles(su)
    LEAD = opt('lead', 7)
    per = opt('suchunk', 30)
    for k, b in enumerate(iss):
        p.extend(b)
        if k >= LEAD:
            for x in sub[:per]: p.extend(x)
            sub = sub[per:]
    for x in sub: p.extend(x)
    if NPG:
        for w_ in range(4):
            p(f"s_cmp_lg_u32 s68, {w_}")
            p(f"s_cbranch_scc1 a_t{w_}", tag='keep')
            for k in range(w_, NPG, 4): p(f"s_call_b64 s[4:5], pg{k}", tag='keep')
            p(f"a_t{w_}:")
    for b in issue_group(1): p.extend(b)
    stamp(p)

    def sync(p, G):
        p.waitvm(('dma', G)); p("s_barrier")
    p("s_waitcnt lgkmcnt(0)")
    sync(p, 0)
    stamp(p)
    FD = 2
    def kv_reads(k):
        q = Prog(); fb = V_WF + (k % 3) * 20
        slot = k % NSLOT; base = V_TA + (slot >= 8); so = (slot % 8) * GR
        q(f"ds_read_b128 {ar(4*k,4)}, v{V_XO+k%4} offset:{((k//4)%4)*4096}")
        for T in range(5):
            for h in range(2):
                q(f"ds_read_b64_tr_b16 {vr(fb+4*T+2*h,2)}, v{base} offset:{so + 1280*h + 64*T}")
        return q
    PH = [(0, 0), (0, 1), (0, 2), (1, 0), (1, 1), (1, 2), (1, 3), (1, 4), (2, 2), (2, 3), (2, 4)]
    bdr = Prog()
    for n, (U, ka) in enumerate(PH):
        for h in range(2): bdr(f"ds_read_b64_tr_b16 {ar(160+4*n+2*h,2)}, v{18+U} offset:{(16*ka+8*h)*160}")
    bdr = singles(bdr)
    for k in range(FD): p.extend(kv_reads(k))
    segs = [list(range(0, 4 - FD))] + [list(range(4 * G - FD, 4 * G + 4 - FD)) for G in range(1, 10)] + [list(range(40 - FD, 40))]
    for si, steps in enumerate(segs):
        if si >= 1:
            if si == 10: p("s_waitcnt lgkmcnt(0)")
            if STAMP == 2: stamp(p)
            sync(p, si)
        m = Prog(); st = []
        for n, k in enumerate(steps):
            fb = V_WF + (k % 3) * 20
            m.need([vr(fb, 20), ar(4 * k, 4)])
            for T in range(5): mfma32(m, vr(V_KA + 16 * T, 16), vr(fb + 4 * T, 4), ar(4 * k, 4), '0' if k == 0 else None)
            if k + FD < 40: st.append((singles(kv_reads(k + FD)), 5 * n, 5 * n + 5))
        st.append((issue_group(si + 2), 0, None))
        if si == 1:
            w = Prog(); w(f"ds_write_b64 v{V_X+8}, {vr(V_X,2)}\n ds_write_b64 v{V_X+9}, {vr(V_X+2,2)}")
            st.append((singles(w), 2, 12))
        if si == 2:
            w = Prog(); token_make(w); st.append((singles(w), 0, None))
        if si == 8:
            w = Prog(); w(f"buffer_load_dword v{V_X+10}, v{V_Z}, {sr(S_DBG,4)}, 0 offen sc1")
            st.append(([w], 0, 1))
        if si == 10:
            w = Prog(); unpark(w, 'vw0', t + 1); unpark(w, 'vw1', t + 3); unpark(w, 'phiw0', t + 2); unpark(w, 'phiw1', V_X + 11); unpark(w, 'tq', V_TA + 2)
            w(f"v_add_u32 v{V_TA+3}, {8*GR}, v{V_TA+2}")
            for i in range(5): unpark(w, f'wo{i}', V_XO + i)
            w(f"""v_lshlrev_b32 v{t}, 4, v{LN}
            s_mul_i32 s77, s70, 5120
            s_add_u32 s77, s77, s92
            s_add_u32 s78, s77, 4096""")
            st.append((singles(w), 0, None)); st.append((bdr, 0, None))
        p.extend(pack(m, st))
    stamp(p)

    def phi_step(p, acc, out, extra=None, inexp=None):
        B = V_WF; E = V_WF + 24; M = V_WF + 64
        cv = [f"v_cvt_pk_bf16_f32 v{B+k}, v{acc+2*k}, v{acc+2*k+1}" for k in range(20)]
        def minmax(y):
            q = Prog(); x = V_PA + y * 20; Mx = M + 8 * y
            q(f"v_max3_f32 v{Mx}, v{x}, v{x+1}, v{x+2}\n v_min3_f32 v{Mx+2}, v{x}, v{x+1}, v{x+2}")
            for k in range(3, 19, 2):
                q(f"v_max3_f32 v{Mx}, v{Mx}, v{x+k}, v{x+k+1}\n v_min3_f32 v{Mx+2}, v{Mx+2}, v{x+k}, v{x+k+1}")
            q(f"v_max_f32 v{Mx}, v{Mx}, v{x+19}\n v_min_f32 v{Mx+2}, v{Mx+2}, v{x+19}")
            q(f"v_mul_f32 v{Mx}, s88, v{Mx}\n v_mul_f32 v{Mx+2}, s88, v{Mx+2}")
            return q
        for c in cv[:8]: p(c)
        m = Prog(); seen = set()
        for n, (U, ka) in enumerate(PH):
            mfma32(m, vr(V_PA + 16 * U, 16), ar(160 + 4 * n, 4), vr(B + 4 * ka, 4), None if U in seen else '0'); seen.add(U)
        c2 = Prog()
        for c in cv[8:]: c2(c)
        st = [(singles(c2), 0, 2)]
        if extra: st.append((bundles(extra), 2, 11))
        p.extend(pack(m, st, cap=28))
        for y in range(2):
            x = V_PA + y * 20; Mx = M + 8 * y
            p.extend(minmax(y))
            for q in range(10):
                p(f"v_pk_fma_f32 {vr(E+2*q,2)}, {vr(x+2*q,2)}, s[88:89], {vr(Mx,2)} op_sel_hi:[1,1,0] neg_lo:[0,0,1] neg_hi:[0,0,1]")
                p(f"v_pk_fma_f32 {vr(E+20+2*q,2)}, {vr(x+2*q,2)}, s[88:89], {vr(Mx+2,2)} op_sel_hi:[1,1,0] neg_lo:[1,0,0] neg_hi:[1,0,0]")
            for q in range(40):
                p(f"v_exp_f32 v{E+q}, v{E+q}")
                if y == 0 and inexp and q % 6 == 5: p.extend(inexp.pop(0))
            for q in range(1, 10):
                for hh in range(2):
                    S = Mx + 4 + 2 * hh; e = E + 20 * hh
                    p(f"v_pk_add_f32 {vr(S,2)}, {vr(e if q == 1 else S,2)}, {vr(e+2*q,2)}")
            p(f"v_add_f32 v{Mx+4}, v{Mx+4}, v{Mx+5}\n v_add_f32 v{Mx+6}, v{Mx+6}, v{Mx+7}")
            p(f"v_rcp_f32 v{Mx+4}, v{Mx+4}\n v_rcp_f32 v{Mx+6}, v{Mx+6}")
            for hh in range(2):
                for q in range(10):
                    e = E + 20 * hh + 2 * q
                    p(f"v_pk_mul_f32 {vr(e,2)}, {vr(e,2)}, {vr(Mx+4+2*hh,2)} op_sel_hi:[1,0]")
            yield y
            for q in range(20):
                p(f"v_cvt_pk_bf16_f32 v{out+y*20+q}, v{E+2*q}, v{E+2*q+1}")

    def q_reads(k):
        q = Prog(); fb = V_WF + (k % 3) * 12
        slot = (40 + k // 2) % NSLOT; base = V_TA + 2 + (slot >= 8); so = (slot % 8) * GR + (k % 2) * 2560
        for T in range(3):
            for h in range(2):
                q(f"ds_read_b64_tr_b16 {vr(fb+4*T+2*h,2)}, v{base} offset:{so + 160*h + 64*T}")
        return q
    ex = Prog()
    for mm_ in range(10):
        a = V_VA + 4 * mm_; d = V_X + 2 * (mm_ % 4)
        ex(f"v_cvt_pk_bf16_f32 v{d}, v{a}, v{a+1}\n v_cvt_pk_bf16_f32 v{d+1}, v{a+2}, v{a+3}\n ds_write_b64 v{t+1+2*(mm_%2)}, {vr(d,2)} offset:{32*(mm_//2)}")
    w = Prog(); w0 = Prog()
    for k in range(4): w0(f"v_mov_b32 v{V_X+4+k}, -1")
    for pc in range(5):
        w(f"buffer_store_dwordx4 {vr(V_X+4,4)}, v{t}, {sr(S_WS,4)}, {'s78' if pc == 4 else 's77'} offen offset:{1024*(pc%4)} sc1")
    for y in phi_step(p, V_KA, V_PO, ex, [w0] + singles(w)):
        if y == 1:
            p.extend(q_reads(0));
    p.extend(q_reads(1))
    stamp(p)
    p(f"""v_readfirstlane_b32 s95, v{V_X+10}
    s_mov_b32 s94, {SPIN}
    s_cmp_ge_u32 s95, {NZERO_WG}""")
    p("s_cbranch_scc1 a_pz_x", tag='keep')
    p("a_pz:")
    p(f"""buffer_load_dword v{V_X+10}, v{V_Z}, {sr(S_DBG,4)}, 0 offen sc1
    s_sub_u32 s94, s94, 1
    s_waitcnt vmcnt(0)
    v_readfirstlane_b32 s95, v{V_X+10}
    s_cmp_eq_u32 s94, 0""", tag='offpath')
    p("s_cbranch_scc1 a_pz_x", tag='keep')
    p(f"s_cmp_ge_u32 s95, {NZERO_WG}")
    p("s_cbranch_scc0 a_pz", tag='keep')
    p("a_pz_x:")
    pw = Prog()
    for y in range(2):
        for q in range(5): pw(f"ds_write_b128 v{V_X+11 if q % 2 else t+2}, {vr(V_PO+y*20+4*q,4)} offset:{160*y + 32*(q//2)}")
    pre = Prog()
    unpark(pre, 'phir', t); unpark(pre, 'vr0', t + 1); unpark(pre, 'vr1', t + 3)
    pre(f"v_mov_b32 v{t+4}, 0x3f803f80")
    for k in range(5): unpark(pre, f'at{k}', V_X + k)
    pre(f"""s_lshl_b32 s78, s70, 2
    s_add_u32 s78, s78, s68
    s_lshl_b32 s78, s78, 12
    s_add_u32 s78, s78, {WS_KV}""")
    KF = [72, 92, V_PO, V_PO + 20]
    def kvs_reads(sw):
        q = Prog(); fb = KF[sw]
        for h in range(2): q(f"ds_read_b64_tr_b16 {vr(fb+4+2*h,2)}, v{t+3} offset:{(sw*32+h*16)*160}")
        for h in range(2): q(f"ds_read_b64_tr_b16 {vr(fb+2*h,2)}, v{t+1} offset:{(sw*32+h*16)*160}")
        for nf in range(3):
            for h in range(2):
                q(f"ds_read_b64_tr_b16 {vr(fb+8+4*nf+2*h,2)}, v{t} offset:{(sw*32+h*16)*PHI_RS + 32*nf}")
        return q
    def kvs_mfma(m, sw):
        fb = KF[sw]
        m.need([vr(fb, 20)])
        for q in range(4): m(f"v_cndmask_b32 v{fb+4+q}, v{t+4}, v{fb+4+q}, s[90:91]")
        for md in range(2):
            for nf in range(3):
                mfma(m, vr(V_D + (3 * md + nf) * 4, 4), vr(fb + 4 * md, 4), vr(fb + 8 + 4 * nf, 4), '0' if sw == 0 else None)
    at = Prog(); a0 = V_X
    def atom(v, vo, off): at(f"buffer_atomic_add_f32 v{v}, v{vo}, {sr(S_WS,4)}, s78 offen offset:{off}", tag='kvat')
    for nf in range(2):
        for i in range(4): atom(V_D + 4 * nf + i, a0, i * 192 + nf * 64)
    R = lambda nf, i: V_D + 12 + 4 * nf + i
    for i in (0, 2):
        at(f"v_mov_b32_dpp v{V_D+8+i}, v{V_D+9+i} row_shr:8 row_mask:0xf bank_mask:0xc")
    for nf in range(3):
        at(f"v_permlane16_swap_b32 v{R(nf,0)}, v{R(nf,1)}\n v_permlane16_swap_b32 v{R(nf,2)}, v{R(nf,3)}")
    for i in (0, 2): atom(V_D + 8 + i, a0 + 1, i * 192 + 128)
    for nf in range(3): at(f"v_permlane32_swap_b32 v{R(nf,0)}, v{R(nf,2)}")
    at(f"v_permlane16_swap_b32 v{R(0,1)}, v{R(1,1)}")
    for nf in range(3): atom(R(nf, 0), a0 + (3 if nf == 2 else 2), nf * 64)
    at(f"v_permlane32_swap_b32 v{R(0,1)}, v{R(2,1)}")
    atom(R(0, 1), a0 + 4, 0)
    KS = opt('ks', 4)
    segs = [list(range(0, 6))] + [list(range(8 * g - 2, 8 * g + 6)) for g in range(1, 5)] + [[38, 39]]
    def signal():
        unpark(p, 'l0', V_X + 7)
        p(f"""s_lshl_b32 s78, s70, 13
        s_lshl_b32 s85, s69, 9
        s_add_u32 s78, s78, s85
        s_lshl_b32 s85, s68, 7
        s_add_u32 s78, s78, s85
        s_add_u32 s78, s78, {WS_KVF}""")
        p.waitvm('kvat')
        p(f"buffer_store_dword v{V_TOK}, v{V_X+7}, {sr(S_WS,4)}, s78 offen sc1")
    def qstep(k):
        m = Prog(); fb = V_WF + (k % 3) * 12
        m.need([vr(fb, 12)])
        for T in range(3): mfma32(m, vr(V_KA + 16 * T, 16), vr(fb + 4 * T, 4), ar(4 * k, 4), '0' if k == 0 else None)
        return m
    def qrun(steps, extra):
        m = Prog(); st = []
        for n, k in enumerate(steps):
            m.extend(qstep(k))
            if k + 2 < 40: st.append((singles(q_reads(k + 2)), 3 * n, 3 * n + 3))
        p.extend(pack(m, st + extra, cap=28))
    NW = opt('nw', 4)
    qrun(range(0, NW), [(singles(pw), 0, 3 * NW - 2), (bundles(pre), 2, None)])
    if STAMP == 3: stamp(p)
    p("s_waitcnt lgkmcnt(0)\n s_barrier")
    kr = Prog()
    for sw in range(4): kr.extend(kvs_reads(sw))
    kr = singles(kr)
    for x in kr[:10]: p.extend(x)
    qrun(range(NW, 6), [(kr[10:], 0, None), (issue_group(13), 0, None)])
    if NW >= 6:
        for x in kr[10:]: p.extend(x)
    for sw in range(4): kvs_mfma(p, sw)
    if STAMP == 3: stamp(p)
    for si, steps in enumerate(segs):
        G = 10 + si
        if si == 0: continue
        if STAMP == 3 and si > 1: stamp(p)
        if si == KS: signal()
        if G < 15: sync(p, G)
        if si == 1: qrun(steps, [(singles(at), 0, opt('atspan', 24))])
        elif si < 5: qrun(steps, [(issue_group(G + 2), 0, None)])
        else: qrun(steps, [])
    if KS == 6: signal()
    stamp(p)
    F = V_WF
    ex = Prog()
    unpark(ex, 'kvz', t)
    ex(f"""v_mov_b32 v{V_X}, 0
    v_mov_b32 v{V_X+1}, 0
    v_mov_b32 v{V_X+2}, 0
    v_mov_b32 v{V_X+3}, 0
    ds_write_b128 v{t}, {vr(V_X,4)}
    v_lshlrev_b32 v{t+1}, 7, v{LN}
    v_lshlrev_b32 v{t+2}, 4, v{LN}
    s_lshl_b32 s78, s70, 13
    s_add_u32 s78, s78, {WS_KVF}
    s_lshl_b32 s77, s70, 2
    s_add_u32 s77, s77, s68
    s_lshl_b32 s77, s77, 12
    s_add_u32 s77, s77, {WS_KV}""")
    for i in range(4): unpark(ex, f'kvw{i}', V_X + 4 + i)
    KL = V_KA + 32
    def kvloads(tag=None):
        for i in range(4):
            p(f"buffer_load_dwordx4 {vr(KL+4*i,4)}, v{t+2}, {sr(S_WS,4)}, s77 offen offset:{1024*i} sc1", tag=tag)
    ex(f"""buffer_load_dword v{V_X+8}, v{t+1}, {sr(S_WS,4)}, s78 offen sc1
    v_and_b32 v{t+3}, 7, v0
    v_lshlrev_b32 v{t+3}, 13, v{t+3}
    s_lshl_b32 s93, s69, 9
    s_lshl_b32 s81, s68, 7
    s_add_u32 s93, s93, s81
    s_add_u32 s93, s93, {WS_KVF}""")
    for y in phi_step(p, V_KA, V_PO, ex):
        if y == 0:
            p(f"v_cmp_eq_u32 vcc, v{V_TOK}, v{V_X+8}\n s_mov_b32 s95, 0\n s_nop 0\n s_cmp_eq_u64 vcc, -1")
            p("s_cbranch_scc0 a_noearly", tag='keep')
            kvloads('offpath')
            p("s_mov_b32 s95, 1", tag='offpath')
            p("a_noearly:")
            p(f"buffer_load_dword v{V_X+9}, v{t+3}, {sr(S_WS,4)}, s93 offen sc1")
        if y == 1:
            stamp(p)
            p("s_cmp_eq_u32 s95, 1")
            p("s_cbranch_scc1 a_have", tag='keep')
            pollall(p, "a_pk", S_WS, 's78', V_X + 8, t + 1)
            kvloads()
            p("a_have:")
            stamp(p)
            p("s_waitcnt vmcnt(0)")
            for i in range(4):
                p(f"v_cvt_pk_bf16_f32 v{F+2*i}, v{KL+4*i}, v{KL+4*i+1}\n v_cvt_pk_bf16_f32 v{F+1+2*i}, v{KL+4*i+2}, v{KL+4*i+3}")
                p(f"ds_write_b64 v{V_X+4+i}, {vr(F+2*i,2)}")
            p(f"v_cmp_eq_u32 vcc, v{V_TOK}, v{V_X+9}")
            unpark(p, 'kvr0', t); unpark(p, 'kvr1', t + 1)
            p("s_cmp_eq_u64 vcc, -1")
            p("s_cbranch_scc1 a_pf_x", tag='keep')
            q = Prog(); pollall(q, "a_pf", S_WS, 's93', V_X + 9, t + 3)
            for i_ in q.L: i_.tag = 'offpath' if i_.kind not in ('label',) else i_.tag
            p.extend(q)
            p(f"""s_mul_i32 s76, s70, 5120
            s_add_u32 s78, s92, s76
            s_add_u32 s81, s78, 4096
            s_mov_b32 s85, {f2u(1e-6):#x}""")
    p("s_waitcnt lgkmcnt(0)\n s_barrier")
    stamp(p)
    order = [(y, u, ka) for u in (1, 0) for y in range(2) for ka in range(5)]
    NB = 10; O = F + 48
    def ord_(n):
        y, u, ka = order[n]; q = Prog(); q(f"ds_read_b128 {vr(F+4*(n%NB),4)}, v{t+y} offset:{u*1280+16*ka}"); return q
    for n in range(NB): p.extend(ord_(n))
    def fin(y, ks):
        q = Prog(); dn = V_KA + 16 * y + 4
        vals = [V_D + 16 * y + r for r in range(16)] + [V_KA + 16 * y + r for r in range(4)]
        for k in ks:
            q(f"v_mul_f32 v{vals[2*k]}, v{dn}, v{vals[2*k]}\n v_mul_f32 v{vals[2*k+1]}, v{dn}, v{vals[2*k+1]}")
            q(f"v_cvt_pk_bf16_f32 v{O+10*y+k}, v{vals[2*k]}, v{vals[2*k+1]}")
        return q
    def ost(q, pc): q(f"buffer_store_dwordx4 {vr(O+4*pc,4)}, v{t+2}, {sr(S_WS,4)}, {'s81' if pc == 4 else 's78'} offen offset:{1024*(pc%4)} sc1", tag='ost')
    om = Prog()
    for n, (y, u, ka) in enumerate(order):
        if n in (0, 2, 5, 10, 15): om.need([vr(F + 4 * (m_ % NB), 4) for m_ in range(n, {0: 2, 2: 5}.get(n, n + 5))])
        mfma32(om, vr((V_D if u == 0 else V_KA) + 16 * y, 16), vr(F + 4 * (n % NB), 4), vr(V_PO + y * 20 + 4 * ka, 4), '0' if ka == 0 else None)
        if n + NB < 20: om.extend(ord_(n + NB))
    d0 = Prog(); d1 = Prog()
    for y, d in ((0, d0), (1, d1)):
        dn = V_KA + 16 * y + 4
        d(f"v_add_f32 v{dn}, s85, v{dn}\n v_rcp_f32 v{dn}, v{dn}"); d.extend(fin(y, (8, 9)))
    f0 = fin(0, range(4)); ost(f0, 0); f0.extend(fin(0, range(4, 8))); ost(f0, 1)
    p.extend(pack(om, [(issue_group(17) + issue_group(18), 0, 12), (singles(d0), 8, 11), (singles(d1), 12, 15), (singles(f0), 16, 20)], cap=28))
    dn = V_KA + 20
    for k in range(8):
        p(f"v_pk_mul_f32 {vr(V_D+16+2*k,2)}, {vr(V_D+16+2*k,2)}, {vr(dn,2)} op_sel_hi:[1,0]")
    for k in range(8):
        p(f"v_cvt_pk_bf16_f32 v{O+10+k}, v{V_D+16+2*k}, v{V_D+17+2*k}")
        if k in (1, 5, 7): ost(p, {1: 2, 5: 3, 7: 4}[k])
    stamp(p)
    p.waitvm(('dma', 18))
    gemm2_tail(p)
    return p

CP = 4168; YP = 4160; SRS = 544
B_RAW = 0
B_UC = 33280
B_KR = B_UC + 16 * CP
B_SC = B_KR + 4 * 4608
B_END = B_SC + 4 * 16 * SRS
S_KR = 81920; S_SC = S_KR + 4 * 4608
WS_KR = 4 << 20
BL, B15, BG, BZ = 1, 2, 3, 4
A_SW, A_SR, A_T0, A_T1, A_T1b, A_T2, A_X3, A_X2, A_X1, A_X0, A_KW, A_KW32, A_KB, MSK = range(24, 38)
PR = 8
S_U, S_LA, S_AI, S_CR, S_CI, S_LDT, S_DS, S_O, S_WSB = 40, 44, 48, 52, 56, 60, 64, 72, 76

def kg_lanes(p):
    p(f"""v_and_b32 v{BL}, 63, v0
    v_and_b32 v{B15}, 15, v0
    v_bfe_u32 v{BG}, v0, 4, 2
    v_mov_b32 v{BZ}, 0
    v_lshlrev_b32 v5, 2, v{BL}
    s_waitcnt lgkmcnt(0)""")
    for s_, ptr, size in ((S_LA, P_LA, 640*256), (S_AI, P_AI, 640*256), (S_CR, P_CR, 640*256), (S_CI, P_CI, 640*256), (S_LDT, P_LDT, 1280), (S_DS, P_DS, 1280)):
        srd(p, s_, ptr, size)
def kg_params(p, sch, P):
    p(f"s_lshl_b32 s81, {sch}, 8\n s_lshl_b32 s80, {sch}, 1")
    p(f"buffer_load_ushort v{P+4}, v{BZ}, {sr(S_LDT,4)}, s80 offen")
    for k, s_ in enumerate((S_LA, S_AI, S_CR, S_CI)):
        p(f"buffer_load_dword v{P+k}, v5, {sr(s_,4)}, s81 offen {'nt' if opt('ntp', 1) else ''}")
    p(f"buffer_load_ushort v{P+5}, v{BZ}, {sr(S_DS,4)}, s80 offen")
def kg_setup(p, KR, SC):
    t = 40
    p(f"""s_mul_i32 s83, s68, 4608
    s_add_u32 s83, s83, {KR}
    s_mul_i32 s84, s68, {16*SRS}
    s_add_u32 s84, s84, {SC}
    v_lshl_add_u32 v{A_SW}, v{BL}, 3, s84
    v_mul_u32_u24 v{A_SR}, {SRS}, v{B15}
    v_lshl_add_u32 v{A_SR}, v{BG}, 4, v{A_SR}
    v_add_u32 v{A_SR}, s84, v{A_SR}
    v_cmp_gt_u32 vcc, 2, v{BG}
    v_lshrrev_b32 v{t}, 1, v{BG}
    v_and_b32 v{t+1}, 1, v{BG}
    v_lshlrev_b32 v{A_T0}, 9, v{t}
    v_lshl_add_u32 v{A_T0}, v{t+1}, 4, v{A_T0}
    v_lshl_add_u32 v{A_T0}, v{B15}, 5, v{A_T0}
    v_add_u32 v{A_T0}, s84, v{A_T0}
    v_lshlrev_b32 v{t+2}, 4, v{B15}
    v_lshlrev_b32 v{t+3}, 3, v{B15}
    v_cndmask_b32 v{t+2}, v{t+3}, v{t+2}, vcc
    v_lshl_add_u32 v{A_T1}, v{BG}, 8, v{t+2}
    v_add_u32 v{A_T1}, s84, v{A_T1}
    v_mov_b32 v{t+2}, 128
    v_mov_b32 v{t+3}, 8
    v_cndmask_b32 v{t+2}, v{t+2}, v{t+3}, vcc
    v_add_u32 v{A_T1b}, v{A_T1}, v{t+2}
    v_lshlrev_b32 v{A_T2}, 8, v{BG}
    v_lshl_add_u32 v{A_T2}, v{B15}, 2, v{A_T2}
    v_add_u32 v{A_T2}, s84, v{A_T2}
    v_lshl_add_u32 v{A_X3}, v{BL}, 2, s84
    v_lshl_add_u32 v{A_X2}, v{BL}, 3, s84
    v_and_b32 v{t}, 31, v0
    v_lshl_add_u32 v{A_X1}, v{t}, 4, s84
    v_lshl_add_u32 v{A_X0}, v{t}, 5, s84
    v_lshlrev_b32 v{t+1}, 4, v{BL}
    v_sub_u32 v{A_KW}, s83, v{t+1}
    v_add_u32 v{A_KW}, 1008, v{A_KW}
    v_lshlrev_b32 v{t+1}, 4, v{t}
    v_sub_u32 v{A_KW32}, s83, v{t+1}
    v_add_u32 v{A_KW32}, 496, v{A_KW32}
    v_and_b32 v{t}, 1, v0
    v_cmp_eq_u32 vcc, 1, v{t}
    v_mov_b32 v{t+1}, 0xffff
    v_mov_b32 v{t+2}, -1
    v_cndmask_b32 v{MSK}, v{t+1}, v{t+2}, vcc
    s_mov_b32 s85, 0xffff
    s_mov_b32 s86, {f2u(1.4426950408889634):#x}
    s_mov_b32 s87, 0x32a57060
    s_mov_b32 s88, {f2u(0.6931471805599453):#x}
    s_mov_b32 s89, 0xffff0000""")

def exp_bf16(p, d, x, t):
    p(f"""v_mul_f32 v{t}, s86, v{x}
    v_fma_f32 v{t+1}, v{x}, s86, -v{t}
    v_exp_f32 v{t}, v{t}
    v_fma_f32 v{t+1}, v{x}, s87, v{t+1}
    v_mul_f32 v{t+1}, s88, v{t+1}
    v_fma_f32 v{t}, v{t}, v{t+1}, v{t}
    v_cvt_pk_bf16_f32 v{t}, v{t}, v{t}
    v_and_b32 v{d}, s89, v{t}""")
def cmul(p, c, a, b):
    p(f"v_pk_mul_f32 {vr(c,2)}, {vr(a,2)}, {vr(b,2)} op_sel:[0,0] op_sel_hi:[0,1]")
    p(f"v_pk_fma_f32 {vr(c,2)}, {vr(a,2)}, {vr(b,2)}, {vr(c,2)} op_sel:[1,1,0] op_sel_hi:[1,0,1] neg_lo:[0,1,0]")
def kgen(p, P, sched):
    E = lambda k, mu: 48 + 4 * (k - 1) + 2 * mu
    E8 = lambda mu: 76 + 2 * mu
    E128 = lambda mu: 80 + 2 * mu
    GA = lambda par, mu: 84 + 4 * par + 2 * mu
    XT = lambda k, mu: 92 + 4 * (k % 2) + 2 * mu
    PK = lambda k: 100 + 2 * (k % 4)
    FB = 108; FA = 140; DT = 172
    t = 40
    p(f"v_lshlrev_b32 v{t+6}, 16, v{P+4}")
    exp_bf16(p, t + 7, t + 6, t)
    p.need([vr(P, 6)])
    if STAMP == 4: stamp(p)
    rho = lambda mu: 92 + mu; th = lambda mu: 94 + mu
    p(f"v_add_f32 v{t+4}, v{t+7}, v{t+7}")
    for mu in range(2):
        up = (lambda d, s_: f"v_lshlrev_b32 v{d}, 16, v{s_}") if mu == 0 else (lambda d, s_: f"v_and_b32 v{d}, s89, v{s_}")
        p(up(t + 6, P))
        exp_bf16(p, t + 5, t + 6, t)
        p(f"v_mul_f32 v{t+5}, v{t+5}, v{t+7}\n v_mul_f32 v{rho(mu)}, s86, v{t+5}")
        p(up(t + 6, P + 1))
        p(f"v_mul_f32 v{t+6}, v{t+6}, v{t+7}\n v_mul_f32 v{th(mu)}, 0.15915494, v{t+6}")
        p(up(t + 5, P + 2)); p(up(t + 6, P + 3))
        p(f"v_mul_f32 v{GA(0,mu)}, v{t+5}, v{t+4}\n v_mul_f32 v{GA(0,mu)+1}, v{t+6}, v{t+4}")
    for pw, dst in ((8, E8), (1, lambda mu: E(1, mu)), (128, E128)):
        for mu in range(2):
            p(f"v_mul_f32 v{t+2*mu}, {f2u(-float(pw)):#x}, v{rho(mu)}\n v_mul_f32 v{t+2*mu+1}, {f2u(float(pw)):#x}, v{th(mu)}")
        for mu in range(2): p(f"v_exp_f32 v{t+2*mu}, v{t+2*mu}\n v_fract_f32 v{t+2*mu+1}, v{t+2*mu+1}")
        for mu in range(2): p(f"v_cos_f32 v{dst(mu)}, v{t+2*mu+1}\n v_sin_f32 v{dst(mu)+1}, v{t+2*mu+1}")
        for mu in range(2): p(f"v_pk_mul_f32 {vr(dst(mu),2)}, {vr(dst(mu),2)}, {vr(t+2*mu,2)} op_sel_hi:[1,0]")
    cnt = [0]; SIDE0 = opt('side0', 36); SIDEN = opt('siden', 2)
    def put(row, src, neg=False):
        k = cnt[0]; cnt[0] += 1
        for mu in range(2):
            a = src(mu)
            p(f"v_cvt_pk_bf16_f32 v{PK(k)+mu}, v{a}, {'-' if neg else ''}v{a+1}")
        p(f"ds_write_b64 v{A_SW}, {vr(PK(k),2)} offset:{row*SRS}")
        for b_ in sched.get(k, []): p.extend(b_)
    p(f"v_mov_b32 v{PK(3)}, 0x3f80\n v_mov_b32 v{PK(3)+1}, 0x3f80\n ds_write_b64 v{A_SW}, {vr(PK(3),2)}")
    put(1, E8, True)
    prev = E8
    for b in range(2, 16):
        cur = (lambda bb: (lambda mu: XT(bb, mu)))(b)
        for mu in range(2): cmul(p, cur(mu), prev(mu), E8(mu))
        put(b, cur, True); prev = cur
    if STAMP == 4: stamp(p)
    for ka in range(8): p(f"ds_read_b128 {vr(FB+4*ka,4)}, v{A_SR} offset:{64*ka}")
    for k in range(2, 8):
        for mu in range(2): cmul(p, E(k, mu), E(k - 1, mu), E(1, mu))
    al = [0]
    def Gcur(mu): return GA(al[0] % 2, mu)
    def Gnext():
        for mu in range(2): cmul(p, GA((al[0] + 1) % 2, mu), GA(al[0] % 2, mu), E128(mu))
        al[0] += 1
    def prod(row, k):
        if k == 0: put(row, Gcur); return
        for mu in range(2): cmul(p, XT(row, mu), Gcur(mu), E(k, mu))
        put(row, lambda mu: XT(row, mu))
    def tile(T):
        for ka in range(8): p(f"ds_read_b128 {vr(FA+4*ka,4)}, v{A_SR} offset:{64*ka}")
        return [f"v_mfma_f32_16x16x32_bf16 {vr(DT+4*T,4)}, {vr(FA+4*ka,4)}, {vr(FB+4*ka,4)}, {'0' if ka == 0 else vr(DT+4*T,4)}" for ka in range(8)]
    for a in range(2):
        for g in range(8): prod(8 * a + g, g)
        Gnext()
    if STAMP == 4: stamp(p)
    mm = tile(0)
    for a in range(2):
        for g in range(4): prod(4 * a + g, 2 * g)
        Gnext()
        if a == 0:
            for x in mm: p(x)
    for a in range(4):
        for g in range(2): prod(8 + 2 * a + g, 4 * g)
        Gnext()
    if STAMP == 4: stamp(p)
    mm = tile(1)
    for a in range(9):
        prod(a, 0)
        if a < 8: Gnext()
        if a == 3:
            for x in mm: p(x)
    if STAMP == 4: stamp(p)
    mm = tile(2)
    p(f"""v_cmp_eq_u32 vcc, 0, v{BL}
    v_lshlrev_b32 v{t}, 16, v{P+5}
    v_cndmask_b32 v{t}, v{BZ}, v{t}, vcc
    v_add_f32 v{DT}, v{DT}, v{t}""")
    for q in range(8): p(f"v_cvt_pk_bf16_f32 v{DT+q}, v{DT+q}, v{DT+q}")
    p.need([vr(FA, 32)])
    p(mm[0]); p(f"ds_write_b128 v{A_T0}, {vr(DT,4)}")
    for x in mm[1:4]: p(x)
    p(f"ds_write_b64 v{A_T1}, {vr(DT+4,2)} offset:1024")
    for x in mm[4:6]: p(x)
    p(f"ds_write_b64 v{A_T1b}, {vr(DT+6,2)} offset:1024")
    for x in mm[6:]: p(x)
    R = FB
    p(f"""ds_read_b128 {vr(R+24,4)}, v{A_X0}
    ds_read_b128 {vr(R+28,4)}, v{A_X0} offset:16
    ds_read_b128 {vr(R+16,4)}, v{A_X1} offset:1024
    ds_read_b32 v{R+20}, v{A_X1} offset:{1024+16}""")
    for q in range(8, 12): p(f"v_cvt_pk_bf16_f32 v{DT+q}, v{DT+q}, v{DT+q}")
    for i in range(4): p(f"ds_write_b32 v{A_T2}, v{DT+8+i} offset:{2048+64*i}")
    p(f"""ds_read_b32 v{R+8}, v{A_X2} offset:{1536+8}
    ds_read_b32 v{R+9}, v{A_X2} offset:{1536+4}
    ds_read_b32 v{R+11}, v{A_X2} offset:{1536}""")
    for r in range(2):
        p(f"ds_read_b32 v{R+4*r}, v{A_X3} offset:{2048+256*r+4}")
        p(f"ds_read_b32 v{R+4*r+2}, v{A_X3} offset:{2048+256*r}\n ds_read_b32 v{R+4*r+3}, v{A_X3} offset:{2048+256*r}")
    p(f"""v_bfi_b32 v{R+12}, s85, v{R+20}, v{R+19}
    v_mov_b32 v{R+13}, v{R+18}
    v_bfi_b32 v{R+14}, s85, v{R+18}, v{R+17}
    v_mov_b32 v{R+15}, v{R+16}
    ds_write_b128 v{A_KW32}, {vr(R+12,4)} offset:3072
    v_bfi_b32 v{R+16}, s85, v{R+31}, v{R+30}
    v_bfi_b32 v{R+17}, s85, v{R+29}, v{R+28}
    v_bfi_b32 v{R+18}, s85, v{R+27}, v{R+26}
    v_bfi_b32 v{R+19}, s85, v{R+25}, v{R+24}
    ds_write_b128 v{A_KW32}, {vr(R+16,4)} offset:3584
    v_bfi_b32 v{R+10}, s85, v{R+9}, v{R+11}
    ds_write_b128 v{A_KW}, {vr(R+8,4)} offset:2048""")
    for r in range(2):
        p(f"v_bfi_b32 v{R+4*r+1}, v{MSK}, v{R+4*r}, v{R+4*r+2}")
        p(f"ds_write_b128 v{A_KW}, {vr(R+4*r,4)} offset:{1024*(1-r)}")

def prefetch1():
    if not opt('pf1', 1): return []
    NG = opt('pfg', 2); B = []; p = Prog()
    decode_ab(p, 's93', 16, 94, 92)
    p("s_add_u32 s93, s94, s92\n s_mul_i32 s93, s93, 3")
    srd(p, 96, P_W, 640 * 3840)
    p(f"""s_mul_i32 s92, s92, 160
    s_lshr_b32 s95, s68, 1
    s_add_u32 s95, s95, 1
    s_mul_i32 s95, s95, 1280
    s_add_u32 s92, s92, s95
    s_andn2_b32 s92, s92, 127
    s_and_b32 s95, s68, 1
    s_lshl_b32 s95, s95, 7
    s_add_u32 s92, s92, s95
    v_mul_u32_u24 v250, 3840, v{BL}
    v_mul_u32_u24 v249, 1280, v{BL}""")
    def g10(p, d, add):
        p(f"""s_add_u32 s{d}, s93, {add}
        s_mul_i32 s95, s{d}, 205
        s_lshr_b32 s95, s95, 11
        s_mul_i32 s95, s95, 10
        s_sub_u32 s{d}, s{d}, s95""")
    for k in range(1, NG + 1):
        g10(p, 100, k)
        p(f"s_mul_i32 s100, s100, {64*3840}\n s_add_u32 s100, s100, s92\n buffer_load_dword v254, v250, s[96:99], s100 offen {'nt' if opt('ntw', 0) else ''}")
        B.append(p); p = Prog()
    srd(p, 96, P_X, 2048 * 1280)
    p(f"""s_lshl_b32 s94, s94, 1
    s_and_b32 s95, s68, 1
    s_add_u32 s94, s94, s95
    s_mul_i32 s94, s94, {64*1280}
    s_lshr_b32 s95, s68, 1
    s_add_u32 s93, s93, s95""")
    for k in range(1, NG + 1, 2):
        g10(p, 100, k)
        p(f"s_lshl_b32 s100, s100, 7\n s_add_u32 s100, s100, s94\n buffer_load_dword v254, v249, s[96:99], s100 offen {'nt' if opt('ntx', 0) else ''}")
        B.append(p); p = Prog()
    return B
def prefetch2x():
    if not opt('pf2', 1): return []
    B = []
    for r in range(2):
        a = Prog(); b = Prog()
        a(f"""s_lshr_b32 s92, s2, 3
        s_sub_u32 s92, s92, 16
        s_lshl_b32 s92, s92, 2
        s_add_u32 s92, s92, s68
        s_lshl_b32 s92, s92, 6
        s_add_u32 s92, s92, {4096*r}
        v_add_u32 v250, s92, v{BL}
        v_mul_u32_u24 v249, 6554, v250
        v_lshrrev_b32 v249, 16, v249
        v_mul_u32_u24 v252, 10, v249
        v_sub_u32 v250, v250, v252
        v_mul_u32_u24 v252, 3840, v249
        v_lshl_add_u32 v252, v250, 7, v252""")
        srd(a, 96, P_W, 640 * 3840)
        a("buffer_load_dword v254, v252, s[96:99], 0 offen")
        b(f"""v_mul_u32_u24 v252, 1280, v249
        v_lshl_add_u32 v252, v250, 7, v252""")
        srd(b, 96, P_WO, 640 * 1280)
        b("buffer_load_dword v254, v252, s[96:99], 0 offen")
        B += [a, b]
    return B
def prefetch2():
    if XM: return prefetch2x()
    if not opt('pf2', 1): return []
    a = Prog(); b = Prog()
    a(f"""s_lshr_b32 s92, s2, 3
    s_sub_u32 s92, s92, 16
    s_lshl_b32 s92, s92, 2
    s_add_u32 s92, s92, s68
    s_lshl_b32 s92, s92, 6
    v_add_u32 v250, s92, v{BL}
    v_mul_u32_u24 v249, 13108, v250
    v_lshrrev_b32 v249, 16, v249
    v_mul_u32_u24 v252, 5, v249
    v_sub_u32 v250, v250, v252
    v_mul_u32_u24 v252, 3840, v249
    v_lshl_add_u32 v252, v250, 7, v252
    s_and_b32 s93, s2, 1
    s_mul_i32 s94, s93, 640""")
    srd(a, 96, P_W, 640 * 3840)
    a("buffer_load_dword v254, v252, s[96:99], s94 offen")
    b(f"""s_lshl_b32 s94, s93, 9
    s_lshl_b32 s95, s93, 7
    s_add_u32 s95, s95, 1024
    v_lshlrev_b32 v252, 7, v250
    v_add_u32 v252, s94, v252
    v_mov_b32 v248, s95
    v_cmp_eq_u32 vcc, 4, v250
    v_mul_u32_u24 v249, 1280, v249
    v_cndmask_b32 v252, v252, v248, vcc
    v_add_u32 v252, v252, v249""")
    srd(b, 96, P_WO, 640 * 1280)
    b("buffer_load_dword v254, v252, s[96:99], 0 offen")
    return [a, b]

def role_B():
    p = Prog(); nstamp[0] = 0
    LN, L15, G, Z = BL, B15, BG, BZ
    p("roleB:")
    if opt('noB', 0): p("s_endpgm")
    stamp(p)
    if opt('bm', 1) == 0:
        p("""s_and_b32 s69, s2, 7
        s_mul_i32 s69, s69, 10
        s_lshr_b32 s70, s2, 3
        s_sub_u32 s70, s70, 16
        s_add_u32 s69, s69, s70""")
    else:
        p("""s_and_b32 s71, s2, 7
        s_lshr_b32 s70, s2, 3
        s_sub_u32 s70, s70, 16
        s_lshl_b32 s69, s71, 3
        s_add_u32 s69, s69, s70
        s_lshl_b32 s71, s71, 1
        s_add_u32 s71, s71, s70
        s_add_u32 s71, s71, 56
        s_cmp_ge_u32 s70, 8
        s_cselect_b32 s69, s71, s69""")
    kg_lanes(p)
    p(f"s_lshl_b32 s71, s69, 3\n s_add_u32 s71, s71, s68")
    kg_params(p, 's71', PR)
    pf = prefetch1()[:opt('pfb', 3)]; NOW = opt('pfnow', 3)
    srd(p, S_WSB, P_WS, WS_SIZE)
    token_load(p, S_WSB, Z)
    for b in pf[:NOW]: p.extend(b)
    p(f"""s_lshr_b32 s80, s69, 3
    s_lshl_b32 s39, s80, 12
    s_add_u32 s39, s39, {WS_UF}
    s_lshl_b32 s101, s69, 2
    s_add_u32 s101, s101, s68
    s_lshl_b32 s101, s101, 7
    s_add_u32 s101, s101, {WS_YF}
    s_lshl_b32 s6, s69, 15
    s_lshl_b32 s7, s68, 13
    s_add_u32 s6, s6, s7
    s_add_u32 s6, s6, {WS_YT}
    s_add_u32 s7, s6, 4096
    v_lshlrev_b32 v39, 4, v{LN}
    v_cmp_eq_u32 vcc, 0, v{LN}
    v_mov_b32 v15, {OOB:#x}
    v_cndmask_b32 v15, v15, v{Z}, vcc""")
    tk = Prog(); token_make(tk)
    sched = {30: [tk]}
    for k, b in enumerate(pf[NOW:]): sched.setdefault(opt('pfa', 0) + 3 * k, []).append(b)
    for k, b in enumerate(prefetch2()): sched.setdefault(opt('pf2a', 30) + 3 * k, []).append(b)
    if not UT:
        p("s_lshl_b32 s80, s69, 4")
        srd(p, S_U, P_U, 0, 's80')
        p(f"""s_sub_u32 s{S_U+2}, {2048*1280}, s80
        v_mul_u32_u24 v6, 1280, v{LN}
        s_and_b32 s90, s69, 7
        s_lshl_b32 s90, s90, 2
        s_lshl_b32 s81, s68, 3
        s_add_u32 s90, s90, s81""")
        for i in range(8):
            q = Prog()
            q(f"""s_add_u32 s81, s90, {i}
            s_and_b32 s81, s81, 31
            s_mul_i32 s82, s81, {64*1280}
            s_lshl_b32 s81, s81, 10
            s_add_u32 m0, s81, {B_RAW+256}""")
            q(f"buffer_load_dwordx4 v6, {sr(S_U,4)}, s82 offen lds", tag='raw')
            sched.setdefault(min(55, opt('side0', 40) + opt('siden', 2) * i), []).append(q)
    srd(p, S_O, P_OUT, 2048 * 2560)
    kg_setup(p, B_KR, B_SC)
    t = 40
    p(f"""v_mov_b32 v20, 0
    v_mov_b32 v21, 0
    v_mov_b32 v22, 0
    v_mov_b32 v23, 0
    v_lshlrev_b32 v{t}, 4, v{L15}
    ds_write_b128 v{t}, v[20:23] offset:{B_RAW}
    v_and_b32 v{t}, 31, v0
    v_lshl_add_u32 v38, v{t}, 4, s83
    ds_write_b128 v38, v[20:23] offset:4096
    v_lshlrev_b32 v{t+1}, 5, v{L15}
    v_sub_u32 v{A_KB}, s83, v{t+1}
    v_lshl_add_u32 v{A_KB}, v{G}, 4, v{A_KB}
    v_add_u32 v{A_KB}, 480, v{A_KB}""")
    stamp(p)
    kgen(p, PR, sched)
    stamp(p)
    Y = 184; UB = 216
    p(f"""v_and_b32 v17, 31, v0
    v_lshlrev_b32 v17, 7, v17
    s_lshl_b32 s38, s69, 15
    s_lshl_b32 s80, s68, 13
    s_add_u32 s38, s38, s80
    s_add_u32 s38, s38, {WS_UT}
    s_add_u32 s80, s80, {B_RAW+256}""")
    if UT: pollall(p, "b_pu", S_WSB, 's39', 18, 17, opt('uslp', 4))
    stamp(p)
    for i in range(8 if UT else 0):
        p(f"s_add_u32 m0, s80, {1024*i}\n s_nop 0\n buffer_load_dwordx4 v39, {sr(S_WSB,4)}, s38 offen sc1 lds\n s_add_u32 s38, s38, 1024", tag='raw')
    p(f"""v_bfe_u32 v{t}, v0, 2, 2
    v_lshl_add_u32 v{t}, v{G}, 3, v{t}
    v_bfe_u32 v{t+1}, v0, 1, 1
    v_lshl_add_u32 v{t}, v{t+1}, 2, v{t}
    v_lshlrev_b32 v{t}, 4, v{t}
    v_and_b32 v{t+1}, 1, v0
    v_lshl_add_u32 v{t}, v{t+1}, 3, v{t}
    s_lshl_b32 s80, s68, 9
    v_add_u32 v{t}, s80, v{t}
    v_and_b32 v{t+1}, 7, v0
    v_mul_u32_u24 v{t+1}, {2*CP}, v{t+1}
    v_bfe_u32 v{t+2}, v0, 3, 1
    v_lshl_add_u32 v{t+1}, v{t+2}, 3, v{t+1}
    v_lshl_add_u32 v{t+1}, v{G}, 4, v{t+1}
    s_lshl_b32 s80, s68, 6
    s_add_u32 s80, s80, {B_UC}
    v_add_u32 v{t+1}, s80, v{t+1}
    s_cmp_eq_u32 s68, 0
    s_cselect_b32 s80, 2, 0
    v_cmp_gt_u32 vcc, s80, v{G}
    v_mov_b32 v{t+2}, {B_END - 4096}
    s_mul_i32 s81, s68, {2*CP}
    v_cndmask_b32 v{t+3}, v{t+2}, v{t+1}, vcc
    s_add_u32 s81, s81, {B_UC}
    v_and_b32 v{t+4}, 1, v0
    v_mul_u32_u24 v{t+4}, {CP}, v{t+4}
    v_lshrrev_b32 v{t+5}, 1, v{L15}
    v_lshl_add_u32 v{t+5}, v{G}, 2, v{t+5}
    v_lshl_add_u32 v{t+4}, v{t+5}, 2, v{t+4}
    v_add_u32 v{UB}, s81, v{t+4}
    v_add_u32 v{UB+1}, 1024, v{UB}
    v_add_u32 v{UB+2}, 2048, v{UB}
    v_add_u32 v{UB+3}, 3072, v{UB}
    s_mul_i32 s80, s68, {YP}
    v_lshlrev_b32 v{t+4}, 5, v{L15}
    v_lshl_add_u32 v{t+4}, v{G}, 3, v{t+4}
    v_add_u32 v{UB+4}, s80, v{t+4}
    s_lshl_b32 s90, s69, 2
    s_add_u32 s90, s90, s68
    s_lshl_b32 s91, s90, 12
    s_add_u32 s91, s91, {WS_KR}
    s_lshl_b32 s90, s90, 7
    s_add_u32 s90, s90, {WS_KF}
    s_sub_u32 s92, s84, s83
    v_add_u32 v38, s92, v38""")
    p.waitvm('raw'); p("s_waitcnt lgkmcnt(0)\n s_barrier")
    stamp(p)
    p(f"ds_write_b128 v38, v[20:23] offset:4096")
    jobs = [(k, pp) for k in range(17) for pp in range(2)]
    NBUF = 8
    def rdj(n):
        k, pp = jobs[n]; p(f"ds_read_b64_tr_b16 {vr(48+2*(n%NBUF),2)}, v{t} offset:{B_RAW + 16*(1+pp) + 2048*k}")
    def wrj(n):
        k, pp = jobs[n]
        p(f"ds_write_b64 v{t+3 if k == 16 else t+1}, {vr(48+2*(n%NBUF),2)} offset:{pp*CP + 256*k}")
    for n in range(NBUF): rdj(n)
    for n in range(len(jobs)):
        wrj(n)
        if n + NBUF < len(jobs): rdj(n + NBUF)
    def fa(b, a): return ar((b % 2) * 64 + 4 * a, 4)
    def fb(b, c): return ar((b % 2) * 64 + 32 + 4 * c, 4)
    def reads(b, kind='ku'):
        q = Prog()
        for a in range(8):
            o = 128 * (a % 2) + 16 * b; r0 = (b % 2) * 64 + 4 * a
            if 'k' in kind: q(f"ds_read_b128 {fb(b,a)}, v{A_KB} offset:{512*(7-a)+64*b}")
            if 'u' in kind:
                q(f"ds_read2_b32 {ar(r0,2)}, v{UB+a//2} offset0:{o} offset1:{o+1}")
                q(f"ds_read2_b32 {ar(r0+2,2)}, v{UB+a//2} offset0:{o+2} offset1:{o+3}")
        return q
    def krdma(tag):
        for i in range(4):
            p(f"s_add_u32 m0, s84, {1024*i}\n s_nop 0\n buffer_load_dwordx4 v39, {sr(S_WSB,4)}, s91 offen sc1 lds\n s_add_u32 s91, s91, 1024", tag=tag)
    p("s_mov_b32 s93, 0\n s_mov_b32 s95, 0\n s_waitcnt lgkmcnt(0)\n s_barrier")
    stamp(p)
    p("b_conv:")
    p.extend(reads(0))
    prs = sorted([(a, c) for c in range(8) for a in range(c + 1)], key=lambda x: (max(x[0], x[1] - x[0]), x[1]))
    EB = opt('eb', 5)
    for b in range(8):
        m = Prog(); seen = set(); lvl = -1
        for a, c in prs:
            first = b == 0 and c not in seen; seen.add(c)
            if max(a, c - a) != lvl and (b == 0 or max(a, c - a) in (0, 4)):
                lvl = max(a, c - a); hi = lvl if b == 0 else lvl + 3
                m.need([fa(b, x) for x in range(lvl, hi + 1)] + [fb(b, x) for x in range(lvl, hi + 1)])
            mfma(m, vr(Y + 4 * c, 4), fa(b, a), fb(b, c - a), '0' if first else None)
        if b in (0, 1, 2) and YT:
            p("s_cmp_lg_u32 s93, 0")
            p(f"s_cbranch_scc1 b_ys{b}", tag='keep')
            if b == 0: p("v_mov_b32 v8, -1\n v_mov_b32 v9, -1\n v_mov_b32 v10, -1\n v_mov_b32 v11, -1", tag='offpath')
            for jj in ((0, 1, 2), (3, 4, 5), (6, 7))[b]:
                p(f"buffer_store_dwordx4 v[8:11], v39, {sr(S_WSB,4)}, {'s6' if jj < 4 else 's7'} offen offset:{1024*(jj%4)} sc1", tag='offpath')
            p(f"b_ys{b}:")
        if b == EB: p(f"buffer_load_dword v7, v{Z}, {sr(S_WSB,4)}, s90 offen sc1")
        if b == EB + 1:
            p(f"""v_cmp_eq_u32 vcc, v{V_TOK}, v7
            s_cmp_lg_u32 s93, 0
            s_cselect_b64 s[80:81], 0, -1
            s_and_b64 vcc, vcc, s[80:81]""")
            p("s_cbranch_scc0 b_noearly", tag='keep')
            krdma('offpath')
            p("s_mov_b32 s95, 1", tag='offpath')
            p("b_noearly:")
        p.extend(pack(m, [(singles(reads(b + 1)), 2, 30)] if b < 7 else [], cap=4))
    for c in range(8):
        d = 40 + 2 * (c % 4)
        p(f"v_cvt_pk_bf16_f32 v{d}, v{Y+4*c}, v{Y+4*c+1}\n v_cvt_pk_bf16_f32 v{d+1}, v{Y+4*c+2}, v{Y+4*c+3}")
        p(f"ds_write_b64 v{UB+4}, {vr(d,2)} offset:{B_RAW+512*c}")
    p("s_cmp_lg_u32 s93, 0")
    p("s_cbranch_scc1 b_fin")
    stamp(p)
    p(f"""s_mov_b32 s93, 1
    v_add_u32 v{A_KB}, s92, v{A_KB}""")
    for k in range(4): p(f"v_add_u32 v{UB+k}, {8*CP}, v{UB+k}")
    p(f"v_add_u32 v{UB+4}, {4*YP}, v{UB+4}\n s_cmp_eq_u32 s95, 1")
    p("s_cbranch_scc1 b_have")
    p(f"s_mov_b32 s94, {SPIN}")
    p("b_poll:")
    p(f"""buffer_load_dword v7, v{Z}, {sr(S_WSB,4)}, s90 offen sc1
    s_sub_u32 s94, s94, 1
    s_waitcnt vmcnt(0)
    v_cmp_eq_u32 vcc, v{V_TOK}, v7
    s_cmp_eq_u32 s94, 0
    s_cbranch_scc1 b_got
    s_cmp_eq_u64 vcc, 0
    s_cbranch_scc1 b_poll""")
    p("b_got:")
    krdma(None)
    p("b_have:")
    p(f"s_waitcnt vmcnt(0)\n buffer_store_dword v{V_TOK}, v15, {sr(S_WSB,4)}, s101 offen sc1\n s_branch b_conv")
    p("b_fin:")
    stamp(p)
    p(f"""v_bfe_u32 v{t+8}, v0, 2, 2
    v_mul_u32_u24 v{t+8}, {YP}, v{t+8}
    v_and_b32 v{t+9}, 3, v0
    v_lshl_add_u32 v{t+8}, v{t+9}, 3, v{t+8}
    v_lshl_add_u32 v{t+8}, v{G}, 5, v{t+8}
    s_lshl_b32 s80, s68, 10
    v_add_u32 v{t+8}, s80, v{t+8}""")
    if not YT:
        p(f"""v_mul_u32_u24 v{t+9}, 2560, v{LN}
        s_mul_i32 s80, s68, {512*2560}
        s_lshl_b32 s81, s69, 4
        s_add_u32 s80, s80, s81
        s_add_u32 s80, s80, 1280
        s_waitcnt lgkmcnt(0)
        s_barrier""")
        for it in range(8):
            for h in range(2):
                p(f"ds_read_b64_tr_b16 {vr(56+4*it+2*h,2)}, v{t+8} offset:{B_RAW + h*4*YP + 128*it}")
        for it in range(8):
            p(f"buffer_store_dwordx4 {vr(56+4*it,4)}, v{t+9}, {sr(S_O,4)}, s80 offen\n s_add_u32 s80, s80, {64*2560}")
        stamp(p); stamp(p); stamp(p)
        stamp_store(p, S_WSB)
        p("s_endpgm")
        return p
    p(f"""s_mov_b32 s5, s39
    s_lshr_b32 s80, s69, 3
    s_and_b32 s81, s69, 7
    s_lshl_b32 s81, s81, 2
    s_add_u32 s81, s81, s68
    s_lshl_b32 s38, s80, 18
    s_lshl_b32 s82, s81, 10
    s_add_u32 s38, s38, s82
    s_add_u32 s38, s38, {WS_YT}
    s_mul_i32 s39, s81, {64*2560}
    s_lshl_b32 s80, s80, 7
    s_add_u32 s39, s39, s80
    s_add_u32 s39, s39, 1280
    s_mul_i32 s90, s68, 8448
    s_add_u32 s90, s90, {B_UC}
    v_lshrrev_b32 v{t+10}, 3, v{LN}
    v_and_b32 v{t+11}, 7, v0
    v_lshlrev_b32 v{t+12}, 15, v{t+10}
    v_lshl_add_u32 v{t+12}, v{t+11}, 7, v{t+12}
    v_mul_u32_u24 v{t+13}, 1040, v{t+11}
    v_lshl_add_u32 v{t+13}, v{t+10}, 4, v{t+13}
    v_add_u32 v{t+13}, s90, v{t+13}
    v_mul_u32_u24 v{t+14}, 2560, v{t+10}
    v_lshl_add_u32 v{t+14}, v{t+11}, 4, v{t+14}
    s_add_u32 s91, s5, {WS_YF-WS_UF}""")
    pollall(p, "b_pf", S_WSB, 's91', 18, 17)
    p(f"s_mov_b32 s94, {SPIN}")
    p("s_waitcnt lgkmcnt(0)\n s_barrier")
    for it in range(8):
        for h in range(2):
            p(f"ds_read_b64_tr_b16 {vr(56+4*it+2*h,2)}, v{t+8} offset:{B_RAW + h*4*YP + 128*it}")
    for it in range(8):
        p(f"buffer_store_dwordx4 {vr(56+4*it,4)}, v39, {sr(S_WSB,4)}, {'s6' if it < 4 else 's7'} offen offset:{1024*(it%4)} sc1")
    stamp(p)
    p("b_yp:")
    p(f"""buffer_load_dword v19, v{t+12}, {sr(S_WSB,4)}, s38 offen sc1
    s_sub_u32 s94, s94, 1
    s_waitcnt vmcnt(0)
    v_cmp_ne_u32 vcc, -1, v19
    s_cmp_lt_i32 s94, 1
    s_cbranch_scc1 b_yg
    s_cmp_eq_u64 vcc, -1
    s_cbranch_scc1 b_yg
    s_sleep {opt('yslp', 8)}
    s_branch b_yp""")
    p("b_yg:")
    stamp(p)
    p("s_mov_b32 s82, s38")
    for j in range(8):
        p(f"s_add_u32 m0, s90, {1040*j}\n s_nop 0\n buffer_load_dwordx4 v39, {sr(S_WSB,4)}, s82 offen sc1 lds\n s_add_u32 s82, s82, 32768")
    p("v_mov_b32 v18, 0\n s_waitcnt vmcnt(0)")
    for i in range(8): p(f"ds_read_b128 {vr(56+4*i,4)}, v{t+13} offset:{128*i}")
    for i in range(8): p(f"v_max3_u32 v18, v18, v{56+4*i}, v{57+4*i}\n v_max3_u32 v18, v18, v{58+4*i}, v{59+4*i}")
    p(f"""v_cmp_eq_u32 vcc, -1, v18
    s_cmp_lt_i32 s94, 1
    s_cbranch_scc1 b_yo
    s_cmp_lg_u64 vcc, 0
    s_cbranch_scc1 b_yp""")
    p("b_yo:")
    for i in range(8):
        p(f"buffer_store_dwordx4 {vr(56+4*i,4)}, v{t+14}, {sr(S_O,4)}, s39 offen {OPT.get('bst', 'sc1')}\n s_add_u32 s39, s39, {8*2560}")
    stamp(p)
    stamp_store(p, S_WSB)
    p("s_endpgm")
    return p

def role_S():
    p = Prog(); nstamp[0] = 32
    p("roleS:")
    p(f"""s_getpc_b64 s[40:41]
    cpf_here:
    s_sub_u32 s40, s40, cpf_here-{NAME}_kernel
    s_subb_u32 s41, s41, 0
    s_lshr_b32 s42, s2, 3
    s_and_b32 s42, s42, 1
    s_lshl_b32 s42, s42, 15
    v_lshlrev_b32 v8, 7, v0
    v_add_u32 v8, s42, v8
    v_cmp_gt_u32 vcc, code_end-{NAME}_kernel, v8
    v_cndmask_b32 v8, 0, v8, vcc
    global_load_dword v254, v8, s[40:41]""")
    if STAMP: p("v_mov_b32 v255, 0")
    stamp(p)
    p(f"s_sub_u32 s69, s2, 208")
    kg_lanes(p)
    p(f"""s_lshl_b32 s90, s69, 2
    s_add_u32 s90, s90, s68
    s_lshl_b32 s71, s69, 3
    s_add_u32 s71, s71, s68
    s_add_u32 s71, s71, 4""")
    kg_params(p, 's71', PR)
    p(f"s_add_u32 s71, s71, 384\n s_min_u32 s71, s71, 639")
    kg_params(p, 's71', PR + 6)
    srd(p, S_U, P_WS, WS_ZERO_END)
    srd(p, S_O, P_DBG, 256)
    srd(p, S_WSB, P_WS, WS_SIZE)
    token_load(p, S_WSB, BZ)
    p(f"""s_lshl_b32 s70, s69, 12
    v_lshlrev_b32 v6, 4, v0
    v_mov_b32 v20, 0
    v_mov_b32 v21, 0
    v_mov_b32 v22, 0
    v_mov_b32 v23, 0
""")
    p(f"buffer_store_dwordx4 v[20:23], v6, {sr(S_U,4)}, s70 offen sc1", tag='zero')
    srd(p, 96, P_U, 2048 * 1280)
    p(f"""v_lshrrev_b32 v240, 3, v{BL}
    v_mul_u32_u24 v240, 1280, v240
    v_and_b32 v241, 7, v0
    v_xor_b32 v241, v241, v{BG}
    v_lshl_add_u32 v240, v241, 4, v240
    v_xor_b32 v241, 64, v240
    v_add_u32 v241, {8*1280}, v241
    s_lshl_b32 s5, s68, 14""")
    for r in range(2 if UT else 0):
        p(f"""s_add_u32 s80, s90, {192*r}
        s_and_b32 s81, s80, 31
        s_lshr_b32 s82, s80, 5
        s_mul_i32 s81, s81, {64*1280}
        s_lshl_b32 s82, s82, 7
        s_add_u32 s82, s82, s81
        s_cmp_ge_u32 s80, 320
        s_cselect_b32 s82, {0x40000000}, s82""")
        for i in range(8):
            p(f"s_add_u32 m0, s5, {8192*r+1024*i}\n s_nop 0\n buffer_load_dwordx4 v{240+i%2}, s[96:99], s82 offen nt lds", tag=('ut', r))
            if i % 2: p(f"s_add_u32 s82, s82, {16*1280}")
    for b in prefetch1()[:opt('pfs', 0 if UT else 3)]: p.extend(b)
    p(f"""s_cmp_lt_u32 s69, {NZERO_WG}
    s_cselect_b32 s4, 0, -1
    v_cmp_eq_u32 vcc, s4, v0
    v_mov_b32 v7, 1
    v_mov_b32 v38, {OOB:#x}
    v_cndmask_b32 v39, v38, v{BZ}, vcc""")
    kg_setup(p, S_KR, S_SC)
    p(f"""v_cmp_eq_u32 vcc, 0, v{BL}
    v_lshlrev_b32 v184, 4, v{BL}
    v_add_u32 v185, s83, v184
    v_cndmask_b32 v38, v38, v{BZ}, vcc
    v_bfe_u32 v242, v0, 1, 3
    v_lshlrev_b32 v242, 4, v242
    v_lshl_add_u32 v242, v{BL}, 7, v242
    v_add_u32 v242, s5, v242""")
    p.waitvm('zero')
    p(f"s_barrier\n buffer_atomic_add v7, v39, {sr(S_O,4)}, 0 offen sc1")
    token_make(p)
    if not UT: p(f"s_mov_b32 s6, {0x40000000}\n s_mov_b32 s7, {0x40000000}")
    for r in range(2 if UT else 0):
        p(f"""s_add_u32 s80, s90, {192*r}
        s_and_b32 s81, s80, 31
        s_lshr_b32 s82, s80, 5
        s_lshl_b32 s81, s81, 10
        s_lshl_b32 s82, s82, 18
        s_add_u32 s82, s82, s81
        s_add_u32 s82, s82, {WS_UT}
        s_lshl_b32 s{6+r}, s80, 7
        s_add_u32 s{6+r}, s{6+r}, {WS_UF}
        s_cmp_ge_u32 s80, 320
        s_cselect_b32 s82, {0x40000000}, s82
        s_cselect_b32 s{6+r}, {0x40000000}, s{6+r}""")
        p.waitvm(('ut', r))
        for j in range(8): p(f"v_xor_b32 v243, {16*j}, v242\n ds_read_b128 {vr(48+32*r+4*j,4)}, v243 offset:{8192*r}")
        for j in range(8): p(f"buffer_store_dwordx4 {vr(48+32*r+4*j,4)}, v184, {sr(S_WSB,4)}, s82 offen sc1\n s_add_u32 s82, s82, 32768")
    stamp(p)
    p("s_kloop:", tag='keep')
    fl = Prog()
    fl(f"""s_waitcnt vmcnt(0)
    buffer_store_dword v{V_TOK}, v38, {sr(S_WSB,4)}, s6 offen sc1
    buffer_store_dword v{V_TOK}, v38, {sr(S_WSB,4)}, s7 offen sc1""")
    sched = {opt('sfl', 24): [fl]}
    for k, b in enumerate(prefetch2()): sched.setdefault(40 + 3 * k, []).append(b)
    kgen(p, PR, sched)
    for i in range(4): p(f"ds_read_b128 {vr(48+4*i,4)}, v185 offset:{1024*i}")
    p(f"s_lshl_b32 s91, s90, 12\n s_add_u32 s91, s91, {WS_KR}")
    for i in range(4): p(f"buffer_store_dwordx4 {vr(48+4*i,4)}, v184, {sr(S_WSB,4)}, s91 offen offset:{1024*i} sc1")
    p(f"""s_lshl_b32 s6, s90, 7
    s_add_u32 s6, s6, {WS_KF}
    s_mov_b32 s7, s6
    s_add_u32 s90, s90, 192""")
    for k in range(6): p(f"v_mov_b32 v{PR+k}, v{PR+6+k}")
    stamp(p)
    p("s_cmp_lt_u32 s90, 320\n s_cbranch_scc1 s_kloop")
    p(f"s_waitcnt vmcnt(0)\n buffer_store_dword v{V_TOK}, v38, {sr(S_WSB,4)}, s6 offen sc1")
    p("s_cmp_ge_u32 s2, 240")
    stamp(p)
    p("s_cbranch_scc1 s_done")
    srd(p, S_DBG, P_DBG, 256)
    if XM == 0:
        p("""s_and_b32 s72, s2, 7
        s_lshr_b32 s69, s72, 1
        s_lshl_b32 s69, s69, 2
        s_lshr_b32 s73, s2, 3
        s_sub_u32 s73, s73, 26
        s_add_u32 s69, s69, s73
        s_and_b32 s83, s72, 1""")
    else:
        p("""s_and_b32 s69, s2, 7
        s_lshl_b32 s69, s69, 1
        s_lshr_b32 s73, s2, 3
        s_sub_u32 s73, s73, 26
        s_and_b32 s83, s73, 1
        s_lshr_b32 s73, s73, 1
        s_add_u32 s69, s69, s73""")
    p(f"""s_add_u32 s83, s83, 8
    s_lshl_b32 s83, s83, 7
    s_mul_i32 s84, s68, {GR}
    v_and_b32 v{LN}, 63, v0
    v_mov_b32 v{V_Z}, 0""")
    setup_g2(p)
    for i in range(5): unpark(p, f'wo{i}', V_XO + i)
    for G in range(15, 19):
        for b in issue_group(G): p.extend(b)
    p(f"""v_and_b32 v249, 7, v0
    v_lshlrev_b32 v249, 13, v249
    s_lshl_b32 s85, s69, 9
    s_lshl_b32 s81, s68, 7
    s_add_u32 s85, s85, s81
    s_add_u32 s85, s85, {WS_KVF}""")
    pollall(p, "s_pf", S_WS, 's85', 248, 249, opt('slp', 8))
    p("s_branch g2_tail")
    p("s_done:")
    p(f"""s_cmp_lg_u32 s2, 255
    s_cbranch_scc1 s_fin
    s_cmp_lg_u32 s68, 0
    s_cbranch_scc1 s_fin
""")
    for n, (base, cnt, r) in enumerate(((WS_KF, 48, 0), (WS_YF, 80, 0), (WS_YF, 80, 1), (WS_KVF, 128, 0), (WS_KVF, 128, 1))):
        p(f"""v_add_u32 v187, {64*r}, v{BL}
        v_min_u32 v187, {cnt-1}, v187
        v_lshlrev_b32 v187, 9, v187
        s_mov_b32 s91, {base}""")
        pollall(p, f"s_ep{n}", S_WSB, 's91', 186, 187, 16)
    p(f"""s_mov_b32 s4, {WS_EP}
    buffer_store_dword v{V_TOK}, v38, {sr(S_WSB,4)}, s4 offen sc1""")
    p("s_fin:")
    if STAMP:
        stamp_store(p, S_WSB)
    p("done:\n s_endpgm\n code_end:")
    return p

def main():
    LDS = max(A_END + 16, B_END + 4608)
    assert LDS <= 163840, LDS
    ref = open(f"cdna_kernels/{NAME}.s.ref").read().split('\n')
    hdr = [l for l in ref if l.startswith(';') and '@launch' not in l]
    s = '\n'.join(hdr) + f"\n; @launch grid=(256,1,1) block=(256,1,1) lds={LDS}\n"
    s += f""".amdgcn_target "amdgcn-amd-amdhsa--gfx950"
.text
.p2align 12
.globl {NAME}_kernel
.p2align 8
.type {NAME}_kernel,@function
{NAME}_kernel:
"""
    e = Prog()
    e(f"""s_cmp_ge_u32 s2, 256
    s_cbranch_scc1 done""")
    if opt('cpf2', 0):
        e(f"""s_getpc_b64 s[36:37]
        v_lshlrev_b32 v2, 7, v0
        s_cmp_ge_u32 s2, 128
        s_cselect_b32 s38, roleB-{NAME}_kernel, 0
        v_add_u32 v2, s38, v2
        v_min_u32 v2, code_end-{NAME}_kernel-64, v2
        global_load_dword v253, v2, s[36:37]""", tag='offpath')
    e(f"""
    s_load_dwordx16 s[8:23], s[0:1], 0
    s_load_dwordx8 s[24:31], s[0:1], 64
    s_load_dwordx4 s[32:35], s[0:1], 96
    v_lshrrev_b32 v1, 6, v0
    s_nop 0
    v_readfirstlane_b32 s68, v1
    s_cmp_ge_u32 s2, 208
    s_cbranch_scc1 roleS
    s_cmp_ge_u32 s2, 128
    s_cbranch_scc1 roleB""")
    a = role_A()
    e.extend(a)
    L = lower(e) + lower(role_B()) + lower(role_S())
    if opt('align', 1):
        L, nn, npro = align8(L, sizes_of(s + render(L) + ''.join(f'pg{k}:\n' for k in range(NPG))))
        print("align: nops", nn, "promoted", npro)
    if NPG:
        dummy = ''.join(f"pg{k}:\n" for k in range(NPG))
        L, n = page_stubs(L, sizes_of(s + render(L) + dummy), 4096 - 0x300, 'roleB')
        print("page stubs", n)
        assert n == NPG
    s += render(L)
    s += f""".section .rodata,"a"
.p2align 6
.amdhsa_kernel {NAME}_kernel
  .amdhsa_next_free_vgpr 512
  .amdhsa_next_free_sgpr 102
  .amdhsa_accum_offset 256
  .amdhsa_group_segment_fixed_size 0
  .amdhsa_kernarg_size 112
  .amdhsa_user_sgpr_count 2
  .amdhsa_user_sgpr_kernarg_segment_ptr 1
  .amdhsa_system_sgpr_workgroup_id_x 1
.end_amdhsa_kernel
"""
    out = OPT.get('out', f"cdna_kernels/{NAME}.s")
    open(out, 'w').write(s)
    print("LDS", LDS, "A_END", A_END, "B_END", B_END, "lines", s.count('\n'))
main()
```

```python
import re

REG_RE = re.compile(r'(?<![\w.])([vas])(\d+)(?![\w\[])|(?<![\w.])([vas])\[(\d+):(\d+)\]')
TRANS = ('v_exp_f32', 'v_log_f32', 'v_rcp_f32', 'v_rsq_f32', 'v_sqrt_f32', 'v_sin_f32', 'v_cos_f32')

def regs_of(tok):
    out = []
    for m in REG_RE.finditer(tok):
        if m.group(1): out.append((m.group(1), int(m.group(2))))
        else: out += [(m.group(3), i) for i in range(int(m.group(4)), int(m.group(5)) + 1)]
    t = tok.strip().lstrip('-').strip('|')
    if t == 'vcc': out += [('s', 'vcc_lo'), ('s', 'vcc_hi')]
    elif t in ('vcc_lo', 'vcc_hi'): out.append(('s', t))
    elif t == 'exec': out += [('s', 'exec')]
    elif t == 'm0': out.append(('s', 'm0'))
    return out

def split_ops(s):
    ops = []; depth = 0; cur = ''
    for ch in s:
        if ch in '[(': depth += 1
        if ch in '])': depth -= 1
        if ch == ',' and depth == 0: ops.append(cur.strip()); cur = ''
        else: cur += ch
    if cur.strip(): ops.append(cur.strip())
    return ops

class I:
    __slots__ = ('text', 'mn', 'defs', 'uses', 'kind', 'tag', 'srcc', 'passes', 'wide', 'note')
    def __init__(self, text, tag=None):
        self.text = text.strip(); self.tag = tag; self.note = None
        self.srcc = []; self.passes = 0; self.wide = False
        t = self.text
        if t.endswith(':') or t.startswith('.') or t.startswith(';'):
            self.mn = t; self.kind = 'label' if t.endswith(':') else 'dir'; self.defs = []; self.uses = []; return
        parts = t.split(None, 1)
        mn = parts[0]; self.mn = mn
        rest = parts[1] if len(parts) > 1 else ''
        base = re.sub(r'_(e32|e64|dpp)$', '', mn)
        ops = split_ops(rest)
        if ops:
            last = ops[-1].split()
            mods = ' '.join(last[1:]) if len(last) > 1 else ''
            ops[-1] = last[0]
        else: mods = ''
        R = [regs_of(o) for o in ops]
        flat = lambda l: [x for y in l for x in y]
        defs = []; uses = []
        if base.startswith('v_mfma'):
            self.kind = 'mfma'; defs = R[0]; uses = flat(R[1:4]); self.srcc = R[3]
            self.passes = 8 if '32x32' in base else 4
        elif base.startswith('v_cmp'):
            self.kind = 'valu'; defs = R[0]; uses = flat(R[1:])
        elif base in ('v_readfirstlane_b32', 'v_readlane_b32'):
            self.kind = 'valu'; defs = R[0]; uses = flat(R[1:])
        elif (base.startswith('v_permlane') and 'swap' in base) or base == 'v_swap_b32':
            self.kind = 'valu'; defs = flat(R[:2]); uses = flat(R[:2])
        elif base.startswith('v_'):
            self.kind = 'valu'; defs = R[0]; uses = flat(R[1:])
            if base in ('v_fmac_f32', 'v_pk_fmac_f16', 'v_writelane_b32') or 'dpp' in mods or 'row_' in mods or 'quad_perm' in mods: uses = uses + R[0]
            if base in ('v_add_co_u32', 'v_sub_co_u32', 'v_addc_co_u32'): defs = flat(R[:2]); uses = flat(R[2:])
            if base == 'v_cndmask_b32' and len(ops) == 3: uses += regs_of('vcc')
        elif base.startswith('ds_read') or base.startswith('ds_bpermute') or base.startswith('ds_swizzle'):
            self.kind = 'ds'; defs = R[0]; uses = flat(R[1:])
        elif base.startswith('ds_'):
            self.kind = 'ds'; uses = flat(R)
        elif base.startswith('buffer_load') or base.startswith('global_load'):
            self.kind = 'vm'
            if re.search(r'\blds\b', mods): uses = flat(R) + [('s', 'm0')]; self.note = 'dma'
            else: defs = R[0]; uses = flat(R[1:])
        elif base.startswith('buffer_atomic') or base.startswith('global_atomic'):
            self.kind = 'vm'; uses = flat(R)
            if 'sc0' in mods: defs = R[0]
        elif base.startswith('buffer_store') or base.startswith('global_store'):
            self.kind = 'vm'; uses = flat(R)
            if 'x3' in base or 'x4' in base:
                self.wide = True
                self.srcc = R[0] if base.startswith('buffer') else R[1]
        elif base.startswith('buffer_wbl2') or base.startswith('buffer_inv'):
            self.kind = 'vm'
        elif base.startswith('s_load') or base in ('s_memtime', 's_memrealtime'):
            self.kind = 'smem'; defs = R[0]; uses = flat(R[1:])
        elif base == 's_waitcnt': self.kind = 'wait'
        elif base == 's_nop': self.kind = 'nop'
        elif base == 's_barrier': self.kind = 'barrier'
        elif base.startswith('s_cbranch') or base in ('s_branch', 's_setpc_b64', 's_swappc_b64', 's_endpgm', 's_call_b64'):
            self.kind = 'branch'; uses = flat(R)
        elif base.startswith('s_cmp') or base in ('s_sleep', 's_setprio', 's_bitcmp1_b32', 's_bitcmp0_b32'):
            self.kind = 'salu'; uses = flat(R)
        elif base.startswith('s_'):
            self.kind = 'salu'; defs = R[0]; uses = flat(R[1:])
            if 'saveexec' in base: defs = defs + [('s', 'exec')]
        else:
            raise ValueError('unknown instr ' + t)
        if self.kind == 'vm' and defs == [('v', 254)]: defs = []
        self.defs = defs; self.uses = uses
    def states(self):
        if self.kind == 'nop': return int(self.text.split()[1], 0) + 1
        if self.kind in ('label', 'dir'): return 0
        return 1

class Prog:
    def __init__(self):
        self.L = []
    def __call__(self, text, tag=None):
        for line in text.split('\n'):
            line = line.split(';;')[0].strip()
            if line: self.L.append(I(line, tag))
    def waitvm(self, tag):
        i = I('; waitvm ' + str(tag)); i.kind = 'waitvm'; i.tag = tag; self.L.append(i)
    def need(self, regs):
        i = I('; need'); i.kind = 'need'; i.uses = [r for tok in regs for r in regs_of(tok)]; i.defs = []; self.L.append(i)
    def waitall(self, vm=True, lgkm=True):
        self(('s_waitcnt ' + ('vmcnt(0) ' if vm else '') + ('lgkmcnt(0)' if lgkm else '')).strip())
    def extend(self, other): self.L += other.L
    def fork(self, side):
        a = I('; fork'); a.kind = 'fork'; b = I('; endfork'); b.kind = 'endfork'
        self.L += [a] + side.L + [b]

def merge(main, side, ratio_fn=None, start=0, every=1, count=1):
    out = Prog(); si = 0; nm = 0
    S = side.L
    for ins in main.L:
        out.L.append(ins)
        if ins.kind == 'mfma':
            nm += 1
            if nm > start and (nm - start) % every == 0:
                c = 0
                while c < count and si < len(S):
                    out.L.append(S[si]);
                    if S[si].kind not in ('dir', 'waitvm'): c += 1
                    si += 1
    out.L += S[si:]
    return out

def insert_waits(L):
    out = []; vm = []; lg = []; smem = set()
    def need(q, regs, tagmatch=None):
        idx = -1
        for k, e in enumerate(q):
            if (regs and e[0] & regs) or (tagmatch is not None and e[1] == tagmatch): idx = k
        return idx
    for ins in L:
        if ins.tag == 'offpath':
            out.append(ins); continue
        if ins.kind == 'fork':
            saved = (list(vm), list(lg), set(smem)); continue
        if ins.kind == 'endfork':
            vm, lg, smem = saved; continue
        if ins.kind == 'wait':
            m = re.search(r'vmcnt\((\d+)\)', ins.text)
            if m: n = int(m.group(1)); vm = vm[len(vm) - n:] if n < len(vm) and n > 0 else ([] if n == 0 else vm)
            m = re.search(r'lgkmcnt\((\d+)\)', ins.text)
            if m:
                n = int(m.group(1))
                if n == 0: lg = []; smem = set()
                elif not smem and n < len(lg): lg = lg[len(lg) - n:]
            out.append(ins); continue
        if ins.kind == 'label':
            out.append(ins); continue
        regs = set(ins.uses) | set(ins.defs)
        w = []
        if ins.kind == 'waitvm': k = need(vm, None, ins.tag)
        else: k = need(vm, regs)
        if k >= 0:
            n = len(vm) - 1 - k
            w.append('vmcnt(%d)' % min(n, 62)); vm = vm[k + 1:]
        if smem & regs or (smem and need(lg, regs) >= 0):
            w.append('lgkmcnt(0)'); lg = []; smem = set()
        else:
            k = need(lg, regs)
            if k >= 0:
                n = len(lg) - 1 - k
                w.append('lgkmcnt(%d)' % min(n, 14)); lg = lg[k + 1:]
        if w: out.append(I('s_waitcnt ' + ' '.join(w)))
        if ins.kind in ('waitvm', 'need'): continue
        out.append(ins)
        if ins.kind == 'vm': vm.append((set(ins.defs), ins.tag))
        elif ins.kind == 'ds': lg.append((set(ins.defs), ins.tag))
        elif ins.kind == 'smem': smem |= set(ins.defs); smem.add(('x', 0))
        if ins.kind == 'branch' and ins.mn != 's_endpgm' and 'nocheck' not in (ins.tag or ''):
            pend = [e for e in vm + lg if e[0]]
            if pend and not (ins.tag and 'keep' in ins.tag):
                raise ValueError('pending loads across branch: ' + ins.text + ' ' + str(pend[:2]))
    return out

def isv(r): return r[0] in 'va'
def req_states(p, c):
    n = 0
    pd = set(p.defs); cu = set(c.uses); cd = set(c.defs)
    cb = re.sub(r'_e(32|64)$', '', c.mn); pb = re.sub(r'_e(32|64)$', '', p.mn)
    if p.kind == 'valu':
        vd = {r for r in pd if isv(r)}; sd = pd - vd
        if c.kind == 'mfma' and vd & cu: n = max(n, 2)
        if c.kind == 'valu':
            if cb in ('v_readfirstlane_b32', 'v_readlane_b32') and vd & cu: n = max(n, 1)
            if cb.startswith('v_permlane') and vd & cu: n = max(n, 2)
            if ('row_' in c.text or 'quad_perm' in c.text or 'dpp' in c.text) and vd & cu: n = max(n, 2)
            if pb in TRANS and cb not in TRANS and vd & cu: n = max(n, 1)
            if pb in TRANS and vd & cu: n = max(n, 1)
            if sd & cu: n = max(n, 4 if cb in ('v_readlane_b32', 'v_writelane_b32') else 2)
            if 'op_sel' in p.text and not pb.startswith('v_pk') and vd & (cu | cd): n = max(n, 1)
        if pb in TRANS and c.kind in ('ds', 'vm') and vd & cu: n = max(n, 1)
        if c.kind == 'vm' and sd & cu: n = max(n, 5)
        if c.kind in ('salu', 'branch', 'smem') and sd & cu: n = max(n, 1)
    elif p.kind == 'mfma':
        P = p.passes
        if c.kind == 'mfma':
            cc = set(c.srcc); ab = cu - cc if not (cu - cc) & cc else cu
            abregs = set(regs_of(split_ops(c.text.split(None, 1)[1])[1])) | set(regs_of(split_ops(c.text.split(None, 1)[1])[2]))
            if pd & abregs: n = max(n, 8 if P == 4 else 12)
            if pd & cc:
                if not (list(p.defs) == list(c.srcc) and c.passes == P): n = max(n, 6 if P == 4 else 10)
            elif pd & cd: n = max(n, 8 if P == 4 else 12)
        elif c.kind in ('valu', 'ds', 'vm'):
            if pd & (cu | cd): n = max(n, 8 if P == 4 else 12)
            if c.kind == 'valu' and set(p.srcc) & cd: n = max(n, 3 if P == 4 else 7)
    elif p.kind == 'salu':
        if ('s', 'm0') in pd and c.note == 'dma': n = max(n, 1)
        if ('s', 'exec') in pd and c.kind == 'mfma': n = max(n, 1)
    elif p.kind == 'vm' and p.wide:
        if set(p.srcc) & cd: n = max(n, 2)
    return n

def insert_nops(L):
    out = []
    for ins in L:
        if ins.kind in ('label', 'dir', 'nop', 'wait', 'barrier'):
            out.append(ins); continue
        need = 0; dist = 0
        for p in reversed(out):
            if dist >= 12: break
            r = req_states(p, ins)
            if r - dist > need: need = r - dist
            dist += p.states()
        if need > 0: out.append(I('s_nop %d' % (need - 1)))
        out.append(ins)
    return out

def finalize(prog):
    L = insert_waits(prog.L)
    L = insert_nops(L)
    return '\n'.join((i.text if i.kind in ('label',) or i.text.startswith('.') else ' ' + i.text) for i in L) + '\n'

def spread(main, bundles, lo=0, hi=None):
    n = sum(1 for i in main.L if i.kind == 'mfma')
    if hi is None: hi = n
    nb = len(bundles)
    pos = {}
    for k, b in enumerate(bundles):
        q = lo + int((k + 0.5) * (hi - lo) / nb) if nb else 0
        pos.setdefault(min(max(q, 0), n - 1), []).append(b)
    out = Prog(); c = 0
    for ins in main.L:
        out.L.append(ins)
        if ins.kind == 'mfma':
            for b in pos.get(c, []): out.L += b.L
            c += 1
    return out
def singles(prog):
    r = []
    for i in prog.L:
        q = Prog(); q.L = [i]; r.append(q)
    return r

def cost(i):
    if i.kind == 'vm': return 14
    if i.kind == 'ds': return 20 if i.mn.startswith('ds_write') else 4
    if i.kind == 'valu': return 8 if re.sub(r'_e(32|64)$', '', i.mn) in TRANS else 4
    if i.kind == 'salu': return 2
    return 0
def pack(main, streams, cap=24):
    n = sum(1 for i in main.L if i.kind == 'mfma')
    Q = []
    for items, lo, hi in streams:
        hi = n if hi is None else min(hi, n)
        Q.append([[(lo + (k + 0.5) * (hi - lo) / len(items) - 0.5, b) for k, b in enumerate(items)], hi])
    out = Prog(); c = 0
    if n == 0:
        out.L += main.L
        return out
    for ins in main.L:
        out.L.append(ins)
        if ins.kind != 'mfma': continue
        used = 0
        while True:
            cand = [q for q in Q if q[0] and (q[0][0][0] <= c + 0.49 or c >= q[1] - 1)]
            if not cand: break
            q = min(cand, key=lambda q: (q[1], q[0][0][0]))
            cs = sum(cost(i) for i in q[0][0][1].L)
            if used and used + cs > cap and c < q[1] - 1: break
            out.L += q[0].pop(0)[1].L; used += cs
        c += 1
    assert not any(q[0] for q in Q)
    return out
def bundles(prog):
    r = []; cur = None
    for i in prog.L:
        glue = cur is not None and (i.mn.startswith(('s_cselect', 's_addc', 's_subb', 's_cbranch')))
        if not glue:
            cur = Prog(); r.append(cur)
        cur.L.append(i)
    return r

import subprocess, tempfile, os
PROMO = re.compile(r'^v_(mov_b32|add_u32|sub_u32|and_b32|or_b32|xor_b32|lshlrev_b32|lshrrev_b32|mul_u32_u24|mul_f32|add_f32|max_f32|min_f32|exp_f32|rcp_f32|fract_f32|sin_f32|cos_f32|min_u32|cndmask_b32|cmp_\w+)$')
def sizes_of(text):
    d = tempfile.mkdtemp()
    open(d + '/a.s', 'w').write(text)
    r = subprocess.run(['clang', '-x', 'assembler', '-target', 'amdgcn-amd-amdhsa', '-mcpu=gfx950', '-c', d + '/a.s', '-o', d + '/a.o'], capture_output=True, text=True)
    assert r.returncode == 0, r.stderr[:3000]
    o = subprocess.run(['llvm-objdump', '-d', '--mcpu=gfx950', d + '/a.o'], capture_output=True, text=True).stdout
    out = []
    for l in o.split('\n'):
        m = re.search(r'//\s*([0-9A-F]{12}):((?: [0-9A-F]{8})+)', l)
        if m: out.append(4 * len(m.group(2).split()))
    return out
def align8(L, sizes, minrun=6):
    real = [i for i in L if i.kind not in ('label', 'dir')]
    assert len(real) == len(sizes), (len(real), len(sizes))
    sz = {id(i): s for i, s in zip(real, sizes)}
    out = []; off = 0; cand = None; n = len(L); nn = 0; npro = 0
    for k, ins in enumerate(L):
        if ins.kind in ('label', 'dir'):
            out.append(ins);
            if ins.kind == 'label': cand = None
            continue
        s = sz[id(ins)]
        if s == 8 and off % 8 == 4:
            run = 0
            for j in range(k, min(n, k + 12)):
                if L[j].kind in ('label', 'dir'): continue
                if sz[id(L[j])] != 8 or L[j].kind != 'valu': break
                run += 1
            if cand is not None:
                cand.text = cand.mn + '_e64 ' + cand.text.split(None, 1)[1]; off += 4; npro += 1
            elif run >= minrun:
                out.append(I('s_nop 0')); off += 4; nn += 1
            cand = None
        if s == 4 and ins.kind == 'valu' and PROMO.match(ins.mn): cand = ins
        elif s == 8: cand = None
        out.append(ins); off += s
    return out, nn, npro
def render(L):
    return '\n'.join((i.text if i.kind in ('label',) or i.text.startswith('.') else ' ' + i.text) for i in L) + '\n'
def lower(prog):
    return insert_nops(insert_waits(prog.L))

def page_stubs(L, sizes, first, upto, prefix='pg'):
    real = [i for i in L if i.kind not in ('label', 'dir')]
    sz = {id(i): s for i, s in zip(real, sizes)}
    out = []; room = first; n = 0; done = False
    for k, ins in enumerate(L):
        if ins.kind == 'label' and ins.text == upto + ':': done = True
        s = sz.get(id(ins), 0)
        if not done and room - s < 96 and not ins.mn.startswith(('s_cselect', 's_addc', 's_subb', 's_cbranch')) and ins.kind not in ('label', 'dir') and not out[-1].mn.startswith('s_cmp'):
            out += [I(f's_branch {prefix}{n}_skip'), I('.p2align 12'), I(f'{prefix}{n}:'), I('s_setpc_b64 s[4:5]'), I('s_nop 0'), I(f'{prefix}{n}_skip:')]
            room = 4096 - 8; n += 1
        assert done or room - s >= 4, 'no break point'
        out.append(ins); room -= s
    return out, n
```

```python
import sys, struct
from gasm import Prog, finalize, merge, spread, singles, pack, bundles, lower, render, sizes_of, align8, page_stubs
NAME = "concat_heads__linear_kernel_hedgehog__ssm_conv_s4d__prompt"
OPT = dict(a.split('=') for a in sys.argv[1:] if '=' in a)
def opt(k, d): return type(d)(OPT.get(k, d))
STAMP = opt('stamp', 0)
ROT = opt('rot', 2)
def f2u(x): return struct.unpack('<I', struct.pack('<f', x))[0]
def vr(a, n): return f"v[{a}:{a+n-1}]" if n > 1 else f"v{a}"
def ar(a, n): return f"a[{a}:{a+n-1}]" if n > 1 else f"a{a}"
def sr(a, n): return f"s[{a}:{a+n-1}]" if n > 1 else f"s{a}"
def magic(d): return (2**32 + d - 1) // d

WS_KV = 0; WS_ZERO_END = 32 * 4096; WS_KVF = WS_ZERO_END; WS_KF = WS_KVF + 65536; WS_UF = WS_KF + 40960; WS_YF = WS_UF + 40960; WS_EP = WS_YF + 40960
WS_O = 262144; WS_STAMP = 4 << 20; WS_SIZE = 8 << 20
NSPARE = 48
NZERO_WG = 32
assert WS_EP + 128 <= WS_O
V_TOK = 253
P_X, P_W, P_PHI, P_WO, P_U, P_LA, P_AI, P_CR, P_CI, P_LDT, P_DS, P_OUT, P_DBG, P_WS = [8 + 2 * i for i in range(14)]
OOB = 0x80000000
SPIN = 400000

def srd(p, s, ptr, size, off=None):
    if off is None:
        p(f"s_mov_b32 s{s}, s{ptr}\n s_mov_b32 s{s+1}, s{ptr+1}")
    else:
        p(f"s_add_u32 s{s}, s{ptr}, {off}\n s_addc_u32 s{s+1}, s{ptr+1}, 0")
    p(f"s_mov_b32 s{s+2}, {size}\n s_mov_b32 s{s+3}, 0x20000")

nstamp = [0]
def stamp(p, sreg_base=96):
    if not STAMP: return
    k = nstamp[0]; nstamp[0] += 1
    if k in (0, 32): p(f"s_getreg_b32 s36, hwreg(HW_REG_HW_ID)\n v_writelane_b32 v255, s36, 60\n s_getreg_b32 s36, hwreg(HW_REG_XCC_ID)\n v_writelane_b32 v255, s36, 59")
    if k == 0: p(f"s_memrealtime s[36:37]\n s_waitcnt lgkmcnt(0)\n v_writelane_b32 v255, s36, 62")
    p(f"s_memtime s[36:37]\n s_waitcnt lgkmcnt(0)\n v_writelane_b32 v255, s36, {k}")
def stamp_store(p, wsrd):
    if not STAMP: return
    p(f"s_waitcnt vmcnt(0)\n s_memtime s[36:37]\n s_waitcnt lgkmcnt(0)\n v_writelane_b32 v255, s36, 61\n s_memrealtime s[36:37]\n s_waitcnt lgkmcnt(0)\n v_writelane_b32 v255, s36, 63")
    p(f"""s_lshl_b32 s36, s2, 2
    s_add_u32 s36, s36, s68
    s_lshl_b32 s36, s36, 8
    s_add_u32 s36, s36, {WS_STAMP}
    v_and_b32 v250, 63, v0
    v_lshlrev_b32 v250, 2, v250
    buffer_store_dword v255, v250, {sr(wsrd,4)}, s36 offen""")

def token_load(p, wsrd, vz):
    p(f"s_mov_b32 s4, {WS_EP}\n buffer_load_dword v{V_TOK}, v{vz}, {sr(wsrd,4)}, s4 offen sc1")
def token_make(p):
    p(f"""s_mov_b32 s4, 0x9e3779b1
    v_mul_lo_u32 v{V_TOK}, v{V_TOK}, s4
    v_add_u32 v{V_TOK}, 0x7f4a7c15, v{V_TOK}""")
def token_seen(p, dsrd, vt):
    p(f"""v_cmp_eq_u32 vcc, 0, v0
    v_mov_b32 v{vt}, {OOB:#x}
    v_mov_b32 v{V_CNT}, 1
    v_cndmask_b32_e64 v{vt}, v{vt}, 0, vcc
    buffer_atomic_add v{V_CNT}, v{vt}, {sr(dsrd,4)}, 8 offen sc1""")
def spinpoll(p, name, srdreg, soff, vt, va, cmp, init, period=None):
    period = period or opt('period', 24)
    p(f"v_mov_b32 v{vt}, {init}" if init is not None else f"v_not_b32 v{vt}, v{V_TOK}", tag='offpath')
    p(f"{name}:")
    p(f"""buffer_load_dword v{vt}, v{va}, {sr(srdreg,4)}, {soff} offen sc1
    s_mov_b32 s95, {period}""", tag='offpath')
    p(f"{name}_i:")
    p(f"""{cmp}
    s_sub_u32 s94, s94, 1
    s_cbranch_scc1 {name}_x
    s_cmp_eq_u64 vcc, -1
    s_cbranch_scc1 {name}_x
    s_sub_u32 s95, s95, 1
    s_cbranch_scc0 {name}_i
    s_waitcnt vmcnt(24)
    s_branch {name}""", tag='offpath')
    p(f"{name}_x:")
def pollall(p, name, srdreg, soff, vt, va, slp=0):
    p(f"s_mov_b32 s94, {SPIN}")
    p(f"{name}:")
    p(f"""buffer_load_dword v{vt}, v{va}, {sr(srdreg,4)}, {soff} offen sc1
    s_sub_u32 s94, s94, 1
    s_waitcnt vmcnt(0)
    v_cmp_eq_u32 vcc, v{V_TOK}, v{vt}
    s_cmp_eq_u32 s94, 0""")
    p(f"s_cbranch_scc1 {name}_x", tag='keep')
    p(f"s_cmp_eq_u64 vcc, -1")
    if slp:
        p(f"s_cbranch_scc1 {name}_x", tag='keep')
        p(f"s_sleep {slp}\n s_branch {name}", tag='keep')
    else: p(f"s_cbranch_scc0 {name}", tag='keep')
    p(f"{name}_x:")

A_RING = 0; NSLOT = 16; GR = 5120
A_PHIK = NSLOT * GR; PHI_RS = 352
A_VST = A_PHIK + 128 * PHI_RS
A_BD = A_VST + 20480
A_END = A_BD + 12800
A_KVIMG = A_PHIK
S_X, S_W, S_WO, S_WS, S_OUT, S_DBG, S_PHI = 40, 44, 48, 52, 56, 60, 64
V_XO = 1
V_XD = 5
V_WD = 9
V_TA = 14
V_Z = 22; V_T = 23
V_WF = 32
V_KA = 112; V_VA = 152; V_PA = 192; V_X = 240
OLD = 'sc1' if opt('osc1', 0) else ''

def mfma(p, d, a, b, c=None):
    p(f"v_mfma_f32_16x16x32_bf16 {d}, {a}, {b}, {d if c is None else c}")
def mfma32(p, d, a, b, c=None):
    p(f"v_mfma_f32_32x32x16_bf16 {d}, {a}, {b}, {d if c is None else c}")

LN = V_T; t = V_T + 1
parked = {}
def park(p, name, v):
    if name not in parked: parked[name] = 204 + len(parked)
    assert parked[name] < 256
    p(f"v_accvgpr_write_b32 a{parked[name]}, v{v}")
def unpark(q, name, v): q(f"v_accvgpr_read_b32 v{v}, a{parked[name]}")

def trbase(p, d, rowk, rowrho, extra=0):
    p(f"""v_bfe_u32 v{t}, v0, 5, 1
    v_mul_u32_u24 v{t}, {rowk}, v{t}
    v_bfe_u32 v{t+1}, v0, 2, 2
    v_mul_u32_u24 v{t+1}, {rowrho}, v{t+1}
    v_bfe_u32 v{t+2}, v0, 4, 1
    v_lshl_add_u32 v{t}, v{t+2}, 5, v{t}
    v_and_b32 v{t+2}, 3, v0
    v_lshl_add_u32 v{t}, v{t+2}, 3, v{t}
    v_add_u32 v{d}, v{t}, v{t+1}""")
    if extra: p(f"v_add_u32 v{d}, {extra}, v{d}")

def setup_g2(p):
    srd(p, S_WO, P_WO, 640 * 1280)
    srd(p, S_WS, P_WS, WS_SIZE)
    p(f"s_mul_i32 s78, s69, {128*2560}\n s_add_u32 s78, s78, s83")
    srd(p, S_OUT, P_OUT, 0, 's78')
    p(f"s_sub_u32 s{S_OUT+2}, {2048*2560}, s78")
    p(f"""s_lshr_b32 s79, s68, 1
    s_mul_i32 s79, s79, {80*1280}
    s_add_u32 s79, s79, s83
    s_and_b32 s85, s68, 1
    s_mul_i32 s85, s85, 40
    s_lshl_b32 s78, s69, 2
    s_add_u32 s78, s78, s68
    s_mul_i32 s78, s78, 40960
    s_add_u32 s92, s78, {WS_O}""")
    for i in range(5):
        p(f"""v_lshrrev_b32 v{t}, 3, v{LN}
        v_add_u32 v{t}, s85, v{t}
        v_add_u32 v{t}, {8*i}, v{t}
        v_lshrrev_b32 v{t+1}, 4, v{t}
        v_and_b32 v{t+2}, 7, v{t}
        v_lshl_add_u32 v{t+1}, v{t+1}, 3, v{t+2}
        v_bfe_u32 v{t+2}, v{t}, 3, 1
        v_mad_u32_u24 v{t+2}, v{t+2}, 20, v{t+1}
        v_add_u32 v{t+3}, 20, v{t+2}
        v_cmp_le_u32 vcc, 20, v{t+1}
        v_cndmask_b32 v{t+2}, v{t+2}, v{t+3}, vcc
        v_mul_u32_u24 v{t+2}, 1280, v{t+2}
        v_bfe_u32 v{t}, v{t}, 1, 1
        v_lshlrev_b32 v{t}, 2, v{t}
        v_and_b32 v{t+1}, 7, v0
        v_xor_b32 v{t}, v{t}, v{t+1}
        v_lshl_add_u32 v{t}, v{t}, 4, v{t+2}""")
        park(p, f'wo{i}', t)
    trbase(p, t + 3, 8 * 128, 128)
    p(f"""v_bfe_u32 v{t}, v0, 3, 1
    v_lshl_add_u32 v{t+3}, v{t}, 6, v{t+3}""")
    park(p, 'two', t + 3)
    p(f"""s_add_u32 s78, s84, {A_VST}
    v_and_b32 v{t}, 31, v0
    v_mul_u32_u24 v{t}, 144, v{t}
    v_bfe_u32 v{t+1}, v0, 5, 1
    v_lshl_add_u32 v{t}, v{t+1}, 3, v{t}
    v_add_u32 v{t}, s78, v{t}""")
    park(p, 'outw', t)
    p(f"""v_lshrrev_b32 v{t}, 3, v{LN}
    v_and_b32 v{t+1}, 7, v0
    v_lshlrev_b32 v{t+1}, 4, v{t+1}
    v_mul_u32_u24 v{t+2}, 144, v{t}
    v_add3_u32 v{t+2}, v{t+2}, v{t+1}, s78
    v_mul_u32_u24 v{t}, 2560, v{t}
    v_add_u32 v{t}, v{t}, v{t+1}""")
    park(p, 'outr', t + 2); park(p, 'outg', t)

def dma_bundles(G, hdr, items):
    B = []
    hdr(items[0][0]); B.append(hdr)
    for k, (m0, ld) in enumerate(items):
        q = Prog(); q(ld, tag=('dma', G))
        if k + 1 < len(items): q(items[k + 1][0])
        B.append(q)
    return B
def issue_group(G):
    slotbase = A_RING + (G % 4) * 4 * GR
    h = Prog()
    if G < 10:
        h(f"s_mul_i32 s86, s80, {64*3840}\n s_add_u32 s86, s86, s82\n s_lshl_b32 s81, s80, 7")
        h(f"s_add_u32 s80, s80, 1\n s_cmp_eq_u32 s80, 10\n s_cselect_b32 s80, 0, s80")
        sd = S_W
    elif G < 15:
        h(f"""s_lshl_b32 s86, s71, 1
        s_add_u32 s86, s86, s68
        s_add_u32 s86, s86, {4*(G-10)}
        s_sub_u32 s74, s86, 20
        s_cmp_ge_u32 s86, 20
        s_cselect_b32 s86, s74, s86
        s_mul_i32 s86, s86, {32*3840}
        s_add_u32 s86, s86, s75""")
        sd = S_W
    else:
        h(f"s_add_u32 s86, s79, {(G%4)*160*1280}")
        sd = S_WO
    W = [(f"s_add_u32 m0, s84, {slotbase + 1024*i}", f"buffer_load_dwordx4 v{V_QD[i] if 10 <= G < 15 else (V_WD+i if G < 10 else V_XO+i)}, {sr(sd,4)}, s86 offen {'nt' if opt('ntw', 0) else ''} lds") for i in range(5)]
    if G < 10:
        X = [(f"s_add_u32 m0, s87, {(G%4)*4096 + 1024*r}", f"buffer_load_dwordx4 v{V_XD+r}, {sr(S_X,4)}, s81 offen {'nt' if opt('ntx', 0) else ''} lds") for r in range(4)]
        items = [W[0], X[0], W[1], X[1], W[2], X[2], W[3], X[3], W[4]]
    else: items = W
    return dma_bundles(G, h, items)
V_QD = [21, 29, 30, 31, 252]

OF = lambda n: 88 + 4 * n
G2ACC = 56
def gemm2_tail(p):
    F = V_WF
    p("g2_tail:")
    unpark(p, 'two', V_TA)
    p(f"""v_xor_b32 v{V_TA+1}, 64, v{V_TA}
    v_add_u32 v{V_TA+2}, {8*GR}, v{V_TA}
    v_add_u32 v{V_TA+3}, {8*GR}, v{V_TA+1}
    v_lshlrev_b32 v{t+2}, 4, v{LN}
    v_lshrrev_b32 v{t+4}, 3, v{LN}
    v_mul_u32_u24 v{t+4}, 5120, v{t+4}
    v_and_b32 v{t}, 7, v0
    v_lshl_add_u32 v{t+4}, v{t}, 7, v{t+4}
    s_mov_b32 s94, {SPIN}
    s_add_u32 s93, s92, 4096
    s_barrier""")
    unpark(p, 'outw', t); unpark(p, 'outr', t + 1); unpark(p, 'outg', t + 3)
    stamp(p)
    def reads(n):
        hq, pp = divmod(n, 5); q = Prog(); fb = F + (n % 3) * 8
        off = hq * 10240 + pp * 2048; hi = 0
        if hq >= 4: off -= 8 * GR; hi = 2
        for T in range(2):
            for h in range(2):
                q(f"ds_read_b64_tr_b16 {vr(fb+4*T+2*h,2)}, v{V_TA+hi+T} offset:{off + 512*h}")
        return q
    p("g2_retry:")
    p.extend(reads(0)); p.extend(reads(1))
    p(f"s_mov_b32 s81, s92\n v_mov_b32 v248, 0")
    def oload(n):
        q = Prog(); hq, pp = divmod(n, 5)
        if pp == 4: q(f"s_add_u32 s85, s81, 4096")
        q(f"buffer_load_dwordx4 {vr(OF(n),4)}, v{t+2}, {sr(S_WS,4)}, {'s85' if pp == 4 else 's81'} offen offset:{1024*(pp%4)} sc1")
        if pp == 4: q("s_add_u32 s81, s81, 5120")
        return q
    PRE = opt('opre', 10); SPEC = opt('spec', 0)
    p(f"""buffer_load_dword v249, v{t+4}, {sr(S_WS,4)}, s93 offen sc1
    s_waitcnt vmcnt(0)
    v_cmp_ne_u32 vcc, -1, v249
    s_nop 1
    s_cmp_eq_u64 vcc, -1""")
    p("s_cbranch_scc1 g2_now", tag='keep')
    p("g2_poll:")
    if opt('gslp', 6): p(f"s_sleep {opt('gslp', 6)}")
    p(f"""buffer_load_dword v249, v{t+4}, {sr(S_WS,4)}, s93 offen sc1
    s_mov_b32 s81, s92
    s_sub_u32 s94, s94, 1""")
    if SPEC:
        for n in range(PRE): p.extend(oload(n))
    p(f"""v_cmp_ne_u32 vcc, -1, v249
    s_cmp_lt_i32 s94, 1""")
    p(f"s_cbranch_scc1 {'g2_go' if SPEC else 'g2_now'}", tag='keep')
    p("s_cmp_eq_u64 vcc, -1")
    p("s_cbranch_scc0 g2_poll", tag='keep')
    if SPEC: p("s_branch g2_go", tag='keep')
    p("g2_now:")
    for n in range(PRE):
        q = oload(n)
        if SPEC:
            for i_ in q.L: i_.tag = 'offpath'
        p.extend(q)
    p("g2_go:")
    stamp(p)
    for n in range(40):
        fb = F + (n % 3) * 8
        mm = Prog(); mm.need([vr(fb, 8), vr(OF(n), 4)])
        for T in range(2): mfma32(mm, vr(G2ACC + 16 * T, 16), vr(fb + 4 * T, 4), vr(OF(n), 4), '0' if n == 0 else None)
        st = []
        if n + 2 < 40: st.append((singles(reads(n + 2)), 0, 2))
        if n + PRE < 40: st.append(([oload(n + PRE)], 0, 1))
        c = Prog(); c(f"v_max3_u32 v248, v248, v{OF(n)}, v{OF(n)+1}\n v_max3_u32 v248, v248, v{OF(n)+2}, v{OF(n)+3}")
        st.append((singles(c), 1, 2))
        p.extend(pack(mm, st, cap=32))
    p(f"""v_cmp_eq_u32 vcc, -1, v248
    s_mul_i32 s78, s68, {32*2560}
    s_cmp_lt_i32 s94, 1""")
    p("s_cbranch_scc1 g2_out", tag='keep')
    p("s_sub_u32 s94, s94, 1\n s_nop 7\n s_nop 7")
    p("s_cbranch_vccnz g2_retry", tag='keep')
    p("g2_out:")
    stamp(p)
    for T in range(2):
        for j in range(4):
            x = G2ACC + 16 * T + 4 * j; o = 88 + 8 * T + 2 * j
            p(f"v_cvt_pk_bf16_f32 v{o}, v{x}, v{x+1}\n v_cvt_pk_bf16_f32 v{o+1}, v{x+2}, v{x+3}")
            p(f"ds_write_b64 v{t}, {vr(o,2)} offset:{64*T+16*j}")
    for i in range(4): p(f"ds_read_b128 {vr(104+4*i,4)}, v{t+1} offset:{8*144*i}")
    for i in range(4):
        p(f"buffer_store_dwordx4 {vr(104+4*i,4)}, v{t+3}, {sr(S_OUT,4)}, s78 offen {OPT.get('ast', 'sc1')}")
        if i < 3: p(f"s_add_u32 s78, s78, {8*2560}")
    stamp(p)
    stamp_store(p, S_WS)
    p("s_endpgm")

def divc(p, d, x, c):
    m, sh = {10: (205, 11), 20: (205, 12), 12: (171, 11), 5: (205, 10), 100: (41, 12)}[c]
    p(f"v_mul_u32_u24 v{d}, {m}, v{x}\n v_lshrrev_b32 v{d}, {sh}, v{d}")

V_PO = 160
V_D = 200
NPG = opt('npg', 6); XM = opt('xm', 0); YT = opt('yt', 0); UT = opt('ut', 0)
def decode_ab(p, tmp, sub, sb, hg):
    p(f"s_lshr_b32 {tmp}, s2, 3")
    if sub: p(f"s_sub_u32 {tmp}, {tmp}, {sub}")
    if XM == 0:
        p(f"""s_and_b32 s{sb}, s2, 6
        s_lshl_b32 s{sb}, s{sb}, 1
        s_and_b32 s{hg}, s2, 1
        s_lshl_b32 s{hg}, s{hg}, 2
        s_and_b32 s4, {tmp}, 3
        s_add_u32 s{hg}, s{hg}, s4
        s_lshr_b32 {tmp}, {tmp}, 2
        s_add_u32 s{sb}, s{sb}, {tmp}""")
    else:
        p(f"""s_and_b32 s{sb}, s2, 7
        s_lshl_b32 s{sb}, s{sb}, 1
        s_and_b32 s{hg}, {tmp}, 7
        s_lshr_b32 {tmp}, {tmp}, 3
        s_add_u32 s{sb}, s{sb}, {tmp}""")
def role_A():
    p = Prog(); nstamp[0] = 0
    p("roleA:")
    stamp(p)
    decode_ab(p, 's73', 0, 69, 70)
    if ROT == 2:
        p("""s_add_u32 s71, s69, s70
        s_mul_i32 s71, s71, 3
        s_mul_i32 s74, s71, 205
        s_lshr_b32 s74, s74, 11
        s_mul_i32 s74, s74, 10
        s_sub_u32 s71, s71, s74""")
    else:
        p(f"s_mul_i32 s71, s71, {5 if ROT else 0}\n s_add_u32 s71, s71, {1 if ROT else 0}\n s_lshr_b32 s71, s71, 1")
    p(f"""v_and_b32 v{LN}, 63, v0
    v_mov_b32 v{V_Z}, 0""")
    p(f"""s_lshl_b32 s76, s68, 5
    v_lshrrev_b32 v{t}, 3, v{LN}
    v_add_u32 v{t}, s76, v{t}
    v_mul_u32_u24 v{t}, 1280, v{t}
    v_and_b32 v{t+1}, 7, v0
    v_bfe_u32 v{t+2}, v0, 4, 2
    v_xor_b32 v{t+1}, v{t+1}, v{t+2}
    v_lshl_add_u32 v{V_XD}, v{t+1}, 4, v{t}
    v_xor_b32 v{V_XD+1}, 64, v{V_XD}
    v_add_u32 v{V_XD+1}, {8*1280}, v{V_XD+1}
    v_add_u32 v{V_XD+2}, {16*1280}, v{V_XD}
    v_add_u32 v{V_XD+3}, {16*1280}, v{V_XD+1}""")
    p(f"s_movk_i32 s78, 1120")
    for i in range(5):
        p(f"v_add_u32 v{t}, {64*i}, v{LN}")
        divc(p, t + 1, t, 20)
        p(f"""v_mul_u32_u24 v{t+2}, 20, v{t+1}
        v_sub_u32 v{t}, v{t}, v{t+2}
        v_mul_u32_u24 v{t+1}, 3840, v{t+1}
        v_cmp_le_u32 vcc, 10, v{t}
        v_lshl_add_u32 v{t+1}, v{t}, 4, v{t+1}
        v_add_u32 v{t+2}, s78, v{t+1}
        v_cndmask_b32 v{V_WD+i}, v{t+1}, v{t+2}, vcc""")
    p(f"""s_mov_b32 s80, s71
    s_mul_i32 s75, s70, 160
    s_mul_i32 s82, s68, {16*3840}
    s_add_u32 s82, s82, s75
    s_add_u32 s82, s82, 1280
    s_lshl_b32 s83, s70, 7
    s_mul_i32 s84, s68, {GR}
    s_lshl_b32 s87, s68, 14
    s_add_u32 s87, s87, {A_PHIK}
    s_mul_i32 s78, s69, {128*1280}""")
    srd(p, S_X, P_X, 128 * 1280, 's78')
    srd(p, S_W, P_W, 640 * 3840)
    su = Prog()
    trbase(su, V_TA, 8 * 320, 320)
    su(f"""v_add_u32 v{V_TA+1}, {8*GR}, v{V_TA}
    v_and_b32 v{t}, 31, v0
    v_bfe_u32 v{t+1}, v0, 1, 3
    v_bfe_u32 v{t+2}, v0, 5, 1
    v_xor_b32 v{t+1}, v{t+1}, v{t+2}
    v_lshlrev_b32 v{t+1}, 4, v{t+1}
    v_lshl_add_u32 v{t}, v{t}, 7, v{t+1}
    v_add_u32 v{V_XO}, s87, v{t}
    v_xor_b32 v{V_XO+1}, 32, v{V_XO}
    v_xor_b32 v{V_XO+2}, 64, v{V_XO}
    v_xor_b32 v{V_XO+3}, 96, v{V_XO}""")
    su(f"""v_mov_b32 v{V_X+4}, 0
    v_mov_b32 v{V_X+5}, 0
    v_mov_b32 v{V_X+6}, 0
    v_mov_b32 v{V_X+7}, 0
    v_lshlrev_b32 v{t}, 4, v0
    v_add_u32 v{t}, {A_BD}, v{t}
    v_min_u32 v{t+1}, {A_BD+496}, v{t}
    ds_write_b128 v{t}, {vr(V_X+4,4)}
    ds_write_b128 v{t}, {vr(V_X+4,4)} offset:4096
    ds_write_b128 v{t}, {vr(V_X+4,4)} offset:8192
    ds_write_b128 v{t+1}, {vr(V_X+4,4)} offset:12288""")
    L2E = 1.4426950408889634
    su(f"s_mov_b32 s88, {f2u(L2E):#x}\n s_mov_b32 s89, {f2u(L2E):#x}")
    for r in range(2):
        su(f"v_add_u32 v{t}, {256*r}, v0")
        divc(su, t + 1, t, 5); divc(su, t + 2, t, 100)
        su(f"""v_mul_u32_u24 v{t+1}, 120, v{t+1}
        v_mad_u32_u24 v{t+1}, v{t+2}, 40, v{t+1}
        v_lshl_add_u32 v{t+1}, v{t}, 3, v{t+1}
        v_add_u32 v{V_X+8+r}, {A_BD}, v{t+1}""")
    su(f"""v_mov_b32 v{t+1}, {A_END}
    v_cmp_gt_u32 vcc, 400, v{t}
    v_cndmask_b32 v{V_X+9}, v{t+1}, v{V_X+9}, vcc""")
    srd(su, S_DBG, P_DBG, 256)
    for i in range(5):
        su(f"v_add_u32 v{t}, {64*i}, v{LN}")
        divc(su, t + 1, t, 10)
        su(f"""v_mul_u32_u24 v{t+2}, 10, v{t+1}
        v_sub_u32 v{t}, v{t}, v{t+2}
        v_and_b32 v{t+2}, 24, v{t+1}
        v_and_b32 v{t+3}, 1, v{t+1}
        v_lshl_add_u32 v{t+2}, v{t+3}, 2, v{t+2}
        v_bfe_u32 v{t+3}, v{t+1}, 1, 2
        v_add_u32 v{t+2}, v{t+2}, v{t+3}
        v_mul_u32_u24 v{t+2}, 3840, v{t+2}
        v_lshl_add_u32 v{V_QD[i]}, v{t}, 4, v{t+2}""")
    su(f"""v_bfe_u32 v{t}, v0, 5, 1
    v_bfe_u32 v{t+1}, v0, 2, 2
    v_lshl_add_u32 v{t}, v{t}, 2, v{t+1}
    v_mul_u32_u24 v{t}, 160, v{t}
    v_and_b32 v{t+1}, 1, v0
    v_mad_u32_u24 v{t}, v{t+1}, 40, v{t}
    v_bfe_u32 v{t+1}, v0, 4, 1
    v_bfe_u32 v{t+2}, v0, 1, 1
    v_lshl_add_u32 v{t+1}, v{t+1}, 1, v{t+2}
    v_lshl_add_u32 v{t}, v{t+1}, 3, v{t}
    v_add_u32 v18, {A_BD}, v{t}
    v_cmp_eq_u32 vcc, 0, v{t+1}
    v_add_u32 v19, 32, v18
    v_add_u32 v{t+2}, 72, v18
    v_cndmask_b32 v19, v{t+2}, v19, vcc
    v_cmp_gt_u32 vcc, 2, v{t+1}
    v_add_u32 v20, 104, v18
    v_nop
    v_cndmask_b32 v20, v18, v20, vcc""".replace("    v_nop\n", ""))
    trbase(su, t + 3, 8 * 160, 320); park(su, 'tq', t + 3)
    a0 = V_PA
    su(f"""v_and_b32 v{t}, 31, v0
    v_add_u32 v{t}, s76, v{t}
    v_bfe_u32 v{t+1}, v0, 5, 1
    v_mul_u32_u24 v{t+2}, {PHI_RS}, v{t}
    v_add_u32 v{t+2}, {A_PHIK}, v{t+2}
    v_bfe_u32 v{t+3}, v0, 2, 1
    v_mul_u32_u24 v{t+4}, 5, v{t+1}
    v_xor_b32 v{a0}, v{t+4}, v{t+3}
    v_lshl_add_u32 v{a0}, v{a0}, 4, v{t+2}
    v_add_u32 v{t+4}, 1, v{t+4}
    v_xor_b32 v{a0+1}, v{t+4}, v{t+3}
    v_lshl_add_u32 v{a0+1}, v{a0+1}, 4, v{t+2}
    v_mul_u32_u24 v{t}, 160, v{t}
    v_add_u32 v{t}, {A_VST}, v{t}
    v_bfe_u32 v{t+3}, v0, 2, 2
    v_xor_b32 v{t+3}, v{t+3}, v{t+1}
    v_lshl_add_u32 v{a0+2}, v{t+3}, 3, v{t}
    v_xor_b32 v{t+3}, 2, v{t+3}
    v_lshl_add_u32 v{a0+3}, v{t+3}, 3, v{t}""")
    park(su, 'phiw0', a0); park(su, 'phiw1', a0 + 1); park(su, 'vw0', a0 + 2); park(su, 'vw1', a0 + 3)
    su(f"""v_bfe_u32 v{t}, v0, 2, 4
    v_bfe_u32 v{t+1}, v0, 4, 2
    s_mul_i32 s78, s68, 5
    v_bfe_u32 v{t+2}, v0, 1, 1
    v_add_u32 v{t+2}, s78, v{t+2}
    v_and_b32 v{t+3}, 1, v{t+1}
    v_xor_b32 v{t+2}, v{t+2}, v{t+3}
    v_and_b32 v{t+3}, 1, v0
    v_lshlrev_b32 v{t+3}, 3, v{t+3}
    v_lshl_add_u32 v{t+2}, v{t+2}, 4, v{t+3}
    v_mul_u32_u24 v{t+3}, {PHI_RS}, v{t}
    v_add_u32 v{t+2}, v{t+2}, v{t+3}
    v_add_u32 v{a0}, {A_PHIK}, v{t+2}
    v_mul_u32_u24 v{t}, 160, v{t}
    v_add_u32 v{t}, {A_VST}, v{t}
    v_and_b32 v{t+2}, 3, v0
    v_add_u32 v{t+2}, s78, v{t+2}
    v_xor_b32 v{t+2}, v{t+2}, v{t+1}
    v_lshl_add_u32 v{a0+1}, v{t+2}, 3, v{t}
    s_add_u32 s78, s78, 4
    v_xor_b32 v{t+2}, s78, v{t+1}
    v_lshl_add_u32 v{a0+2}, v{t+2}, 3, v{t}""")
    park(su, 'phir', a0); park(su, 'vr0', a0 + 1); park(su, 'vr1', a0 + 2)
    a0 = V_PA
    su(f"""v_and_b32 v{t+3}, 15, v0
    v_bfe_u32 v{t+4}, v0, 4, 2
    v_cmp_gt_u32 s[90:91], 8, v{t+3}
    v_lshlrev_b32 v{t}, 2, v{t+3}
    v_mul_u32_u24 v{t+1}, 768, v{t+4}
    v_add_u32 v{a0}, v{t}, v{t+1}
    v_add_u32 v{t+1}, {192-32}, v{a0}
    v_cndmask_b32 v{a0+1}, v{t+1}, v{a0}, s[90:91]
    v_mul_u32_u24 v{t+1}, 192, v{t+4}
    v_add_u32 v{t+1}, {16*192}, v{t+1}
    v_add_u32 v{a0+2}, v{t+1}, v{t}
    v_mov_b32 v{t+2}, {OOB:#x}
    v_cmp_gt_u32 vcc, 40, v{LN}
    v_cndmask_b32 v{a0+3}, v{t+2}, v{a0+2}, s[90:91]
    v_lshlrev_b32 v{t+1}, 2, v{LN}
    v_add_u32 v{t+1}, {20*192}, v{t+1}
    v_cndmask_b32 v{a0+4}, v{t+2}, v{t+1}, vcc
    v_cmp_eq_u32 vcc, 0, v{LN}
    v_cmp_gt_u32 s[90:91], 4, v{t+3}
    v_cndmask_b32 v{a0+6}, v{t+2}, v{V_Z}, vcc""")
    for k in range(5): park(su, f'at{k}', a0 + k)
    park(su, 'l0', a0 + 6)
    su(f"s_mul_i32 s85, s68, 1920\n s_add_u32 s85, s85, {A_KVIMG}\n v_mov_b32 v{t+4}, {A_KVIMG+9600}")
    for i in range(4):
        su(f"v_add_u32 v{t}, {64*i}, v{LN}")
        divc(su, t + 1, t, 12)
        su(f"""v_mul_u32_u24 v{t+2}, 12, v{t+1}
        v_sub_u32 v{t+2}, v{t}, v{t+2}
        v_cmp_gt_u32 vcc, 10, v{t+2}
        v_mul_u32_u24 v{t+1}, 80, v{t+1}
        v_lshl_add_u32 v{t+1}, v{t+2}, 3, v{t+1}
        v_add_u32 v{t+1}, s85, v{t+1}
        v_cndmask_b32 v{t+1}, v{t+4}, v{t+1}, vcc""")
        if i == 3: su(f"v_cmp_gt_u32 vcc, 60, v{LN}\n v_cndmask_b32 v{t+1}, v{t+4}, v{t+1}, vcc")
        park(su, f'kvw{i}', t + 1)
    su(f"""v_cmp_gt_u32 vcc, 120, v0
    v_lshlrev_b32 v{t}, 4, v0
    v_add_u32 v{t}, {A_KVIMG+7680}, v{t}
    v_cndmask_b32 v{t}, v{t+4}, v{t}, vcc""")
    park(su, 'kvz', t)
    su(f"""v_bfe_u32 v{t}, v0, 3, 2
    v_and_b32 v{t+1}, 3, v0
    v_lshl_add_u32 v{t}, v{t}, 2, v{t+1}
    v_mul_u32_u24 v{t}, 80, v{t}
    v_bfe_u32 v{t+1}, v0, 2, 1
    v_bfe_u32 v{t+4}, v0, 5, 1
    v_cmp_eq_u32 vcc, v{t+1}, v{t+4}
    v_mul_u32_u24 v{t+2}, 1920, v{t+1}
    v_add_u32 v{t}, v{t}, v{t+2}
    v_add_u32 v{t}, {A_KVIMG}, v{t}
    v_add_u32 v{t+3}, 3840, v{t}
    v_mov_b32 v{t+2}, {A_KVIMG+7680}
    v_cndmask_b32 v{t}, v{t+2}, v{t}, vcc
    v_cndmask_b32 v{t+3}, v{t+2}, v{t+3}, vcc""")
    park(su, 'kvr0', t); park(su, 'kvr1', t + 3)
    setup_g2(su)
    wl = Prog()
    wl("s_mul_i32 s77, s70, 3200")
    srd(wl, S_PHI, P_PHI, 3200, 's77')
    wl(f"""v_lshlrev_b32 v{V_X+10}, 3, v0
    buffer_load_dwordx2 {vr(V_X,2)}, v{V_X+10}, {sr(S_PHI,4)}, 0 offen
    buffer_load_dwordx2 {vr(V_X+2,2)}, v{V_X+10}, {sr(S_PHI,4)}, 0 offen offset:2048""")
    token_load(su, S_WS, V_Z)
    iss = issue_group(0) + [wl]
    sub = bundles(su)
    LEAD = opt('lead', 7)
    per = opt('suchunk', 30)
    for k, b in enumerate(iss):
        p.extend(b)
        if k >= LEAD:
            for x in sub[:per]: p.extend(x)
            sub = sub[per:]
    for x in sub: p.extend(x)
    if NPG:
        for w_ in range(4):
            p(f"s_cmp_lg_u32 s68, {w_}")
            p(f"s_cbranch_scc1 a_t{w_}", tag='keep')
            for k in range(w_, NPG, 4): p(f"s_call_b64 s[4:5], pg{k}", tag='keep')
            p(f"a_t{w_}:")
    for b in issue_group(1): p.extend(b)
    stamp(p)

    def sync(p, G):
        p.waitvm(('dma', G)); p("s_barrier")
    p("s_waitcnt lgkmcnt(0)")
    sync(p, 0)
    stamp(p)
    FD = 2
    def kv_reads(k):
        q = Prog(); fb = V_WF + (k % 3) * 20
        slot = k % NSLOT; base = V_TA + (slot >= 8); so = (slot % 8) * GR
        q(f"ds_read_b128 {ar(4*k,4)}, v{V_XO+k%4} offset:{((k//4)%4)*4096}")
        for T in range(5):
            for h in range(2):
                q(f"ds_read_b64_tr_b16 {vr(fb+4*T+2*h,2)}, v{base} offset:{so + 1280*h + 64*T}")
        return q
    PH = [(0, 0), (0, 1), (0, 2), (1, 0), (1, 1), (1, 2), (1, 3), (1, 4), (2, 2), (2, 3), (2, 4)]
    bdr = Prog()
    for n, (U, ka) in enumerate(PH):
        for h in range(2): bdr(f"ds_read_b64_tr_b16 {ar(160+4*n+2*h,2)}, v{18+U} offset:{(16*ka+8*h)*160}")
    bdr = singles(bdr)
    for k in range(FD): p.extend(kv_reads(k))
    segs = [list(range(0, 4 - FD))] + [list(range(4 * G - FD, 4 * G + 4 - FD)) for G in range(1, 10)] + [list(range(40 - FD, 40))]
    for si, steps in enumerate(segs):
        if si >= 1:
            if si == 10: p("s_waitcnt lgkmcnt(0)")
            if STAMP == 2: stamp(p)
            sync(p, si)
        m = Prog(); st = []
        for n, k in enumerate(steps):
            fb = V_WF + (k % 3) * 20
            m.need([vr(fb, 20), ar(4 * k, 4)])
            for T in range(5): mfma32(m, vr(V_KA + 16 * T, 16), vr(fb + 4 * T, 4), ar(4 * k, 4), '0' if k == 0 else None)
            if k + FD < 40: st.append((singles(kv_reads(k + FD)), 5 * n, 5 * n + 5))
        st.append((issue_group(si + 2), 0, None))
        if si == 1:
            w = Prog(); w(f"ds_write_b64 v{V_X+8}, {vr(V_X,2)}\n ds_write_b64 v{V_X+9}, {vr(V_X+2,2)}")
            st.append((singles(w), 2, 12))
        if si == 2:
            w = Prog(); token_make(w); st.append((singles(w), 0, None))
        if si == 8:
            w = Prog(); w(f"buffer_load_dword v{V_X+10}, v{V_Z}, {sr(S_DBG,4)}, 0 offen sc1")
            st.append(([w], 0, 1))
        if si == 10:
            w = Prog(); unpark(w, 'vw0', t + 1); unpark(w, 'vw1', t + 3); unpark(w, 'phiw0', t + 2); unpark(w, 'phiw1', V_X + 11); unpark(w, 'tq', V_TA + 2)
            w(f"v_add_u32 v{V_TA+3}, {8*GR}, v{V_TA+2}")
            for i in range(5): unpark(w, f'wo{i}', V_XO + i)
            w(f"""v_lshlrev_b32 v{t}, 4, v{LN}
            s_mul_i32 s77, s70, 5120
            s_add_u32 s77, s77, s92
            s_add_u32 s78, s77, 4096""")
            st.append((singles(w), 0, None)); st.append((bdr, 0, None))
        p.extend(pack(m, st))
    stamp(p)

    def phi_step(p, acc, out, extra=None, inexp=None):
        B = V_WF; E = V_WF + 24; M = V_WF + 64
        cv = [f"v_cvt_pk_bf16_f32 v{B+k}, v{acc+2*k}, v{acc+2*k+1}" for k in range(20)]
        def minmax(y):
            q = Prog(); x = V_PA + y * 20; Mx = M + 8 * y
            q(f"v_max3_f32 v{Mx}, v{x}, v{x+1}, v{x+2}\n v_min3_f32 v{Mx+2}, v{x}, v{x+1}, v{x+2}")
            for k in range(3, 19, 2):
                q(f"v_max3_f32 v{Mx}, v{Mx}, v{x+k}, v{x+k+1}\n v_min3_f32 v{Mx+2}, v{Mx+2}, v{x+k}, v{x+k+1}")
            q(f"v_max_f32 v{Mx}, v{Mx}, v{x+19}\n v_min_f32 v{Mx+2}, v{Mx+2}, v{x+19}")
            q(f"v_mul_f32 v{Mx}, s88, v{Mx}\n v_mul_f32 v{Mx+2}, s88, v{Mx+2}")
            return q
        for c in cv[:8]: p(c)
        m = Prog(); seen = set()
        for n, (U, ka) in enumerate(PH):
            mfma32(m, vr(V_PA + 16 * U, 16), ar(160 + 4 * n, 4), vr(B + 4 * ka, 4), None if U in seen else '0'); seen.add(U)
        c2 = Prog()
        for c in cv[8:]: c2(c)
        st = [(singles(c2), 0, 2)]
        if extra: st.append((bundles(extra), 2, 11))
        p.extend(pack(m, st, cap=28))
        for y in range(2):
            x = V_PA + y * 20; Mx = M + 8 * y
            p.extend(minmax(y))
            for q in range(10):
                p(f"v_pk_fma_f32 {vr(E+2*q,2)}, {vr(x+2*q,2)}, s[88:89], {vr(Mx,2)} op_sel_hi:[1,1,0] neg_lo:[0,0,1] neg_hi:[0,0,1]")
                p(f"v_pk_fma_f32 {vr(E+20+2*q,2)}, {vr(x+2*q,2)}, s[88:89], {vr(Mx+2,2)} op_sel_hi:[1,1,0] neg_lo:[1,0,0] neg_hi:[1,0,0]")
            for q in range(40):
                p(f"v_exp_f32 v{E+q}, v{E+q}")
                if y == 0 and inexp and q % 6 == 5: p.extend(inexp.pop(0))
            for q in range(1, 10):
                for hh in range(2):
                    S = Mx + 4 + 2 * hh; e = E + 20 * hh
                    p(f"v_pk_add_f32 {vr(S,2)}, {vr(e if q == 1 else S,2)}, {vr(e+2*q,2)}")
            p(f"v_add_f32 v{Mx+4}, v{Mx+4}, v{Mx+5}\n v_add_f32 v{Mx+6}, v{Mx+6}, v{Mx+7}")
            p(f"v_rcp_f32 v{Mx+4}, v{Mx+4}\n v_rcp_f32 v{Mx+6}, v{Mx+6}")
            for hh in range(2):
                for q in range(10):
                    e = E + 20 * hh + 2 * q
                    p(f"v_pk_mul_f32 {vr(e,2)}, {vr(e,2)}, {vr(Mx+4+2*hh,2)} op_sel_hi:[1,0]")
            yield y
            for q in range(20):
                p(f"v_cvt_pk_bf16_f32 v{out+y*20+q}, v{E+2*q}, v{E+2*q+1}")

    def q_reads(k):
        q = Prog(); fb = V_WF + (k % 3) * 12
        slot = (40 + k // 2) % NSLOT; base = V_TA + 2 + (slot >= 8); so = (slot % 8) * GR + (k % 2) * 2560
        for T in range(3):
            for h in range(2):
                q(f"ds_read_b64_tr_b16 {vr(fb+4*T+2*h,2)}, v{base} offset:{so + 160*h + 64*T}")
        return q
    ex = Prog()
    for mm_ in range(10):
        a = V_VA + 4 * mm_; d = V_X + 2 * (mm_ % 4)
        ex(f"v_cvt_pk_bf16_f32 v{d}, v{a}, v{a+1}\n v_cvt_pk_bf16_f32 v{d+1}, v{a+2}, v{a+3}\n ds_write_b64 v{t+1+2*(mm_%2)}, {vr(d,2)} offset:{32*(mm_//2)}")
    w = Prog(); w0 = Prog()
    for k in range(4): w0(f"v_mov_b32 v{V_X+4+k}, -1")
    for pc in range(5):
        w(f"buffer_store_dwordx4 {vr(V_X+4,4)}, v{t}, {sr(S_WS,4)}, {'s78' if pc == 4 else 's77'} offen offset:{1024*(pc%4)} sc1")
    for y in phi_step(p, V_KA, V_PO, ex, [w0] + singles(w)):
        if y == 1:
            p.extend(q_reads(0));
    p.extend(q_reads(1))
    stamp(p)
    p(f"""v_readfirstlane_b32 s95, v{V_X+10}
    s_mov_b32 s94, {SPIN}
    s_cmp_ge_u32 s95, {NZERO_WG}""")
    p("s_cbranch_scc1 a_pz_x", tag='keep')
    p("a_pz:")
    p(f"""buffer_load_dword v{V_X+10}, v{V_Z}, {sr(S_DBG,4)}, 0 offen sc1
    s_sub_u32 s94, s94, 1
    s_waitcnt vmcnt(0)
    v_readfirstlane_b32 s95, v{V_X+10}
    s_cmp_eq_u32 s94, 0""", tag='offpath')
    p("s_cbranch_scc1 a_pz_x", tag='keep')
    p(f"s_cmp_ge_u32 s95, {NZERO_WG}")
    p("s_cbranch_scc0 a_pz", tag='keep')
    p("a_pz_x:")
    pw = Prog()
    for y in range(2):
        for q in range(5): pw(f"ds_write_b128 v{V_X+11 if q % 2 else t+2}, {vr(V_PO+y*20+4*q,4)} offset:{160*y + 32*(q//2)}")
    pre = Prog()
    unpark(pre, 'phir', t); unpark(pre, 'vr0', t + 1); unpark(pre, 'vr1', t + 3)
    pre(f"v_mov_b32 v{t+4}, 0x3f803f80")
    for k in range(5): unpark(pre, f'at{k}', V_X + k)
    pre(f"""s_lshl_b32 s78, s70, 2
    s_add_u32 s78, s78, s68
    s_lshl_b32 s78, s78, 12
    s_add_u32 s78, s78, {WS_KV}""")
    KF = [72, 92, V_PO, V_PO + 20]
    def kvs_reads(sw):
        q = Prog(); fb = KF[sw]
        for h in range(2): q(f"ds_read_b64_tr_b16 {vr(fb+4+2*h,2)}, v{t+3} offset:{(sw*32+h*16)*160}")
        for h in range(2): q(f"ds_read_b64_tr_b16 {vr(fb+2*h,2)}, v{t+1} offset:{(sw*32+h*16)*160}")
        for nf in range(3):
            for h in range(2):
                q(f"ds_read_b64_tr_b16 {vr(fb+8+4*nf+2*h,2)}, v{t} offset:{(sw*32+h*16)*PHI_RS + 32*nf}")
        return q
    def kvs_mfma(m, sw):
        fb = KF[sw]
        m.need([vr(fb, 20)])
        for q in range(4): m(f"v_cndmask_b32 v{fb+4+q}, v{t+4}, v{fb+4+q}, s[90:91]")
        for md in range(2):
            for nf in range(3):
                mfma(m, vr(V_D + (3 * md + nf) * 4, 4), vr(fb + 4 * md, 4), vr(fb + 8 + 4 * nf, 4), '0' if sw == 0 else None)
    at = Prog(); a0 = V_X
    def atom(v, vo, off): at(f"buffer_atomic_add_f32 v{v}, v{vo}, {sr(S_WS,4)}, s78 offen offset:{off}", tag='kvat')
    for nf in range(2):
        for i in range(4): atom(V_D + 4 * nf + i, a0, i * 192 + nf * 64)
    R = lambda nf, i: V_D + 12 + 4 * nf + i
    for i in (0, 2):
        at(f"v_mov_b32_dpp v{V_D+8+i}, v{V_D+9+i} row_shr:8 row_mask:0xf bank_mask:0xc")
    for nf in range(3):
        at(f"v_permlane16_swap_b32 v{R(nf,0)}, v{R(nf,1)}\n v_permlane16_swap_b32 v{R(nf,2)}, v{R(nf,3)}")
    for i in (0, 2): atom(V_D + 8 + i, a0 + 1, i * 192 + 128)
    for nf in range(3): at(f"v_permlane32_swap_b32 v{R(nf,0)}, v{R(nf,2)}")
    at(f"v_permlane16_swap_b32 v{R(0,1)}, v{R(1,1)}")
    for nf in range(3): atom(R(nf, 0), a0 + (3 if nf == 2 else 2), nf * 64)
    at(f"v_permlane32_swap_b32 v{R(0,1)}, v{R(2,1)}")
    atom(R(0, 1), a0 + 4, 0)
    KS = opt('ks', 4)
    segs = [list(range(0, 6))] + [list(range(8 * g - 2, 8 * g + 6)) for g in range(1, 5)] + [[38, 39]]
    def signal():
        unpark(p, 'l0', V_X + 7)
        p(f"""s_lshl_b32 s78, s70, 13
        s_lshl_b32 s85, s69, 9
        s_add_u32 s78, s78, s85
        s_lshl_b32 s85, s68, 7
        s_add_u32 s78, s78, s85
        s_add_u32 s78, s78, {WS_KVF}""")
        p.waitvm('kvat')
        p(f"buffer_store_dword v{V_TOK}, v{V_X+7}, {sr(S_WS,4)}, s78 offen sc1")
    def qstep(k):
        m = Prog(); fb = V_WF + (k % 3) * 12
        m.need([vr(fb, 12)])
        for T in range(3): mfma32(m, vr(V_KA + 16 * T, 16), vr(fb + 4 * T, 4), ar(4 * k, 4), '0' if k == 0 else None)
        return m
    def qrun(steps, extra):
        m = Prog(); st = []
        for n, k in enumerate(steps):
            m.extend(qstep(k))
            if k + 2 < 40: st.append((singles(q_reads(k + 2)), 3 * n, 3 * n + 3))
        p.extend(pack(m, st + extra, cap=28))
    NW = opt('nw', 4)
    qrun(range(0, NW), [(singles(pw), 0, 3 * NW - 2), (bundles(pre), 2, None)])
    if STAMP == 3: stamp(p)
    p("s_waitcnt lgkmcnt(0)\n s_barrier")
    kr = Prog()
    for sw in range(4): kr.extend(kvs_reads(sw))
    kr = singles(kr)
    for x in kr[:10]: p.extend(x)
    qrun(range(NW, 6), [(kr[10:], 0, None)])
    m = Prog()
    for sw in range(4): kvs_mfma(m, sw)
    p.extend(pack(m, [(issue_group(13), 0, 20)], cap=8))
    if STAMP == 3: stamp(p)
    for si, steps in enumerate(segs):
        G = 10 + si
        if si == 0: continue
        if STAMP == 3 and si > 1: stamp(p)
        if si == KS: signal()
        if G < 15: sync(p, G)
        if si == 1: qrun(steps, [(singles(at), 0, opt('atspan', 24))])
        elif si < 5: qrun(steps, [(issue_group(G + 2), 0, None)])
        else: qrun(steps, [])
    if KS == 6: signal()
    stamp(p)
    F = V_WF
    ex = Prog()
    unpark(ex, 'kvz', t)
    ex(f"""v_mov_b32 v{V_X}, 0
    v_mov_b32 v{V_X+1}, 0
    v_mov_b32 v{V_X+2}, 0
    v_mov_b32 v{V_X+3}, 0
    ds_write_b128 v{t}, {vr(V_X,4)}
    v_lshlrev_b32 v{t+1}, 7, v{LN}
    v_lshlrev_b32 v{t+2}, 4, v{LN}
    s_lshl_b32 s78, s70, 13
    s_add_u32 s78, s78, {WS_KVF}
    s_lshl_b32 s77, s70, 2
    s_add_u32 s77, s77, s68
    s_lshl_b32 s77, s77, 12
    s_add_u32 s77, s77, {WS_KV}""")
    for i in range(4): unpark(ex, f'kvw{i}', V_X + 4 + i)
    KL = V_KA + 32
    def kvloads(tag=None):
        for i in range(4):
            p(f"buffer_load_dwordx4 {vr(KL+4*i,4)}, v{t+2}, {sr(S_WS,4)}, s77 offen offset:{1024*i} sc1", tag=tag)
    ex(f"""buffer_load_dword v{V_X+8}, v{t+1}, {sr(S_WS,4)}, s78 offen sc1
    v_and_b32 v{t+3}, 7, v0
    v_lshlrev_b32 v{t+3}, 13, v{t+3}
    s_lshl_b32 s93, s69, 9
    s_lshl_b32 s81, s68, 7
    s_add_u32 s93, s93, s81
    s_add_u32 s93, s93, {WS_KVF}""")
    for y in phi_step(p, V_KA, V_PO, ex):
        if y == 0:
            p(f"v_cmp_eq_u32 vcc, v{V_TOK}, v{V_X+8}\n s_mov_b32 s95, 0\n s_nop 0\n s_cmp_eq_u64 vcc, -1")
            p("s_cbranch_scc0 a_noearly", tag='keep')
            kvloads('offpath')
            p("s_mov_b32 s95, 1", tag='offpath')
            p("a_noearly:")
            p(f"buffer_load_dword v{V_X+9}, v{t+3}, {sr(S_WS,4)}, s93 offen sc1")
        if y == 1:
            stamp(p)
            p("s_cmp_eq_u32 s95, 1")
            p("s_cbranch_scc1 a_have", tag='keep')
            pollall(p, "a_pk", S_WS, 's78', V_X + 8, t + 1)
            kvloads()
            p("a_have:")
            stamp(p)
            p("s_waitcnt vmcnt(0)")
            for i in range(4):
                p(f"v_cvt_pk_bf16_f32 v{F+2*i}, v{KL+4*i}, v{KL+4*i+1}\n v_cvt_pk_bf16_f32 v{F+1+2*i}, v{KL+4*i+2}, v{KL+4*i+3}")
                p(f"ds_write_b64 v{V_X+4+i}, {vr(F+2*i,2)}")
            p(f"v_cmp_eq_u32 vcc, v{V_TOK}, v{V_X+9}")
            unpark(p, 'kvr0', t); unpark(p, 'kvr1', t + 1)
            p("s_cmp_eq_u64 vcc, -1")
            p("s_cbranch_scc1 a_pf_x", tag='keep')
            q = Prog(); pollall(q, "a_pf", S_WS, 's93', V_X + 9, t + 3)
            for i_ in q.L: i_.tag = 'offpath' if i_.kind not in ('label',) else i_.tag
            p.extend(q)
            p(f"""s_mul_i32 s76, s70, 5120
            s_add_u32 s78, s92, s76
            s_add_u32 s81, s78, 4096
            s_mov_b32 s85, {f2u(1e-6):#x}""")
    p("s_waitcnt lgkmcnt(0)\n s_barrier")
    stamp(p)
    order = [(y, u, ka) for u in (1, 0) for y in range(2) for ka in range(5)]
    NB = 10; O = F + 48
    def ord_(n):
        y, u, ka = order[n]; q = Prog(); q(f"ds_read_b128 {vr(F+4*(n%NB),4)}, v{t+y} offset:{u*1280+16*ka}"); return q
    for n in range(NB): p.extend(ord_(n))
    def fin(y, ks):
        q = Prog(); dn = V_KA + 16 * y + 4
        vals = [V_D + 16 * y + r for r in range(16)] + [V_KA + 16 * y + r for r in range(4)]
        for k in ks:
            q(f"v_mul_f32 v{vals[2*k]}, v{dn}, v{vals[2*k]}\n v_mul_f32 v{vals[2*k+1]}, v{dn}, v{vals[2*k+1]}")
            q(f"v_cvt_pk_bf16_f32 v{O+10*y+k}, v{vals[2*k]}, v{vals[2*k+1]}")
        return q
    def ost(q, pc): q(f"buffer_store_dwordx4 {vr(O+4*pc,4)}, v{t+2}, {sr(S_WS,4)}, {'s81' if pc == 4 else 's78'} offen offset:{1024*(pc%4)} sc1", tag='ost')
    om = Prog()
    for n, (y, u, ka) in enumerate(order):
        if n in (0, 2, 5, 10, 15): om.need([vr(F + 4 * (m_ % NB), 4) for m_ in range(n, {0: 2, 2: 5}.get(n, n + 5))])
        mfma32(om, vr((V_D if u == 0 else V_KA) + 16 * y, 16), vr(F + 4 * (n % NB), 4), vr(V_PO + y * 20 + 4 * ka, 4), '0' if ka == 0 else None)
        if n + NB < 20: om.extend(ord_(n + NB))
    d0 = Prog(); d1 = Prog()
    for y, d in ((0, d0), (1, d1)):
        dn = V_KA + 16 * y + 4
        d(f"v_add_f32 v{dn}, s85, v{dn}\n v_rcp_f32 v{dn}, v{dn}"); d.extend(fin(y, (8, 9)))
    f0 = fin(0, range(4)); ost(f0, 0); f0.extend(fin(0, range(4, 8))); ost(f0, 1)
    p.extend(pack(om, [(issue_group(17) + issue_group(18), 0, 12), (singles(d0), 8, 11), (singles(d1), 12, 15), (singles(f0), 16, 20)], cap=28))
    dn = V_KA + 20
    for k in range(8):
        p(f"v_pk_mul_f32 {vr(V_D+16+2*k,2)}, {vr(V_D+16+2*k,2)}, {vr(dn,2)} op_sel_hi:[1,0]")
    for k in range(8):
        p(f"v_cvt_pk_bf16_f32 v{O+10+k}, v{V_D+16+2*k}, v{V_D+17+2*k}")
        if k in (1, 5, 7): ost(p, {1: 2, 5: 3, 7: 4}[k])
    stamp(p)
    p.waitvm(('dma', 18))
    gemm2_tail(p)
    return p

CP = 4168; YP = 4160; SRS = 544
B_RAW = 0
B_UC = 33280
B_KR = B_UC + 16 * CP
B_SC = B_KR + 4 * 4608
B_END = B_SC + 4 * 16 * SRS
S_KR = 81920; S_SC = S_KR + 4 * 4608
WS_KR = 4 << 20
BL, B15, BG, BZ = 1, 2, 3, 4
A_SW, A_SR, A_T0, A_T1, A_T1b, A_T2, A_X3, A_X2, A_X1, A_X0, A_KW, A_KW32, A_KB, MSK = range(24, 38)
PR = 8
S_U, S_LA, S_AI, S_CR, S_CI, S_LDT, S_DS, S_O, S_WSB = 40, 44, 48, 52, 56, 60, 64, 72, 76

def kg_lanes(p):
    p(f"""v_and_b32 v{BL}, 63, v0
    v_and_b32 v{B15}, 15, v0
    v_bfe_u32 v{BG}, v0, 4, 2
    v_mov_b32 v{BZ}, 0
    v_lshlrev_b32 v5, 2, v{BL}
    s_waitcnt lgkmcnt(0)""")
    for s_, ptr, size in ((S_LA, P_LA, 640*256), (S_AI, P_AI, 640*256), (S_CR, P_CR, 640*256), (S_CI, P_CI, 640*256), (S_LDT, P_LDT, 1280), (S_DS, P_DS, 1280)):
        srd(p, s_, ptr, size)
def kg_params(p, sch, P):
    p(f"s_lshl_b32 s81, {sch}, 8\n s_lshl_b32 s80, {sch}, 1")
    p(f"buffer_load_ushort v{P+4}, v{BZ}, {sr(S_LDT,4)}, s80 offen")
    for k, s_ in enumerate((S_LA, S_AI, S_CR, S_CI)):
        p(f"buffer_load_dword v{P+k}, v5, {sr(s_,4)}, s81 offen {'nt' if opt('ntp', 1) else ''}")
    p(f"buffer_load_ushort v{P+5}, v{BZ}, {sr(S_DS,4)}, s80 offen")
def kg_setup(p, KR, SC):
    t = 40
    p(f"""s_mul_i32 s83, s68, 4608
    s_add_u32 s83, s83, {KR}
    s_mul_i32 s84, s68, {16*SRS}
    s_add_u32 s84, s84, {SC}
    v_lshl_add_u32 v{A_SW}, v{BL}, 3, s84
    v_mul_u32_u24 v{A_SR}, {SRS}, v{B15}
    v_lshl_add_u32 v{A_SR}, v{BG}, 4, v{A_SR}
    v_add_u32 v{A_SR}, s84, v{A_SR}
    v_cmp_gt_u32 vcc, 2, v{BG}
    v_lshrrev_b32 v{t}, 1, v{BG}
    v_and_b32 v{t+1}, 1, v{BG}
    v_lshlrev_b32 v{A_T0}, 9, v{t}
    v_lshl_add_u32 v{A_T0}, v{t+1}, 4, v{A_T0}
    v_lshl_add_u32 v{A_T0}, v{B15}, 5, v{A_T0}
    v_add_u32 v{A_T0}, s84, v{A_T0}
    v_lshlrev_b32 v{t+2}, 4, v{B15}
    v_lshlrev_b32 v{t+3}, 3, v{B15}
    v_cndmask_b32 v{t+2}, v{t+3}, v{t+2}, vcc
    v_lshl_add_u32 v{A_T1}, v{BG}, 8, v{t+2}
    v_add_u32 v{A_T1}, s84, v{A_T1}
    v_mov_b32 v{t+2}, 128
    v_mov_b32 v{t+3}, 8
    v_cndmask_b32 v{t+2}, v{t+2}, v{t+3}, vcc
    v_add_u32 v{A_T1b}, v{A_T1}, v{t+2}
    v_lshlrev_b32 v{A_T2}, 8, v{BG}
    v_lshl_add_u32 v{A_T2}, v{B15}, 2, v{A_T2}
    v_add_u32 v{A_T2}, s84, v{A_T2}
    v_lshl_add_u32 v{A_X3}, v{BL}, 2, s84
    v_lshl_add_u32 v{A_X2}, v{BL}, 3, s84
    v_and_b32 v{t}, 31, v0
    v_lshl_add_u32 v{A_X1}, v{t}, 4, s84
    v_lshl_add_u32 v{A_X0}, v{t}, 5, s84
    v_lshlrev_b32 v{t+1}, 4, v{BL}
    v_sub_u32 v{A_KW}, s83, v{t+1}
    v_add_u32 v{A_KW}, 1008, v{A_KW}
    v_lshlrev_b32 v{t+1}, 4, v{t}
    v_sub_u32 v{A_KW32}, s83, v{t+1}
    v_add_u32 v{A_KW32}, 496, v{A_KW32}
    v_and_b32 v{t}, 1, v0
    v_cmp_eq_u32 vcc, 1, v{t}
    v_mov_b32 v{t+1}, 0xffff
    v_mov_b32 v{t+2}, -1
    v_cndmask_b32 v{MSK}, v{t+1}, v{t+2}, vcc
    s_mov_b32 s85, 0xffff
    s_mov_b32 s86, {f2u(1.4426950408889634):#x}
    s_mov_b32 s87, 0x32a57060
    s_mov_b32 s88, {f2u(0.6931471805599453):#x}
    s_mov_b32 s89, 0xffff0000""")

def exp_bf16(p, d, x, t):
    p(f"""v_mul_f32 v{t}, s86, v{x}
    v_fma_f32 v{t+1}, v{x}, s86, -v{t}
    v_exp_f32 v{t}, v{t}
    v_fma_f32 v{t+1}, v{x}, s87, v{t+1}
    v_mul_f32 v{t+1}, s88, v{t+1}
    v_fma_f32 v{t}, v{t}, v{t+1}, v{t}
    v_cvt_pk_bf16_f32 v{t}, v{t}, v{t}
    v_and_b32 v{d}, s89, v{t}""")
def cmul(p, c, a, b):
    p(f"v_pk_mul_f32 {vr(c,2)}, {vr(a,2)}, {vr(b,2)} op_sel:[0,0] op_sel_hi:[0,1]")
    p(f"v_pk_fma_f32 {vr(c,2)}, {vr(a,2)}, {vr(b,2)}, {vr(c,2)} op_sel:[1,1,0] op_sel_hi:[1,0,1] neg_lo:[0,1,0]")
def kgen(p, P, sched):
    E = lambda k, mu: 48 + 4 * (k - 1) + 2 * mu
    E8 = lambda mu: 76 + 2 * mu
    E128 = lambda mu: 80 + 2 * mu
    GA = lambda par, mu: 84 + 4 * par + 2 * mu
    XT = lambda k, mu: 92 + 4 * (k % 2) + 2 * mu
    PK = lambda k: 100 + 2 * (k % 4)
    FB = 108; FA = 140; DT = 172
    t = 40
    p(f"v_lshlrev_b32 v{t+6}, 16, v{P+4}")
    exp_bf16(p, t + 7, t + 6, t)
    p.need([vr(P, 6)])
    if STAMP == 4: stamp(p)
    rho = lambda mu: 92 + mu; th = lambda mu: 94 + mu
    p(f"v_add_f32 v{t+4}, v{t+7}, v{t+7}")
    for mu in range(2):
        up = (lambda d, s_: f"v_lshlrev_b32 v{d}, 16, v{s_}") if mu == 0 else (lambda d, s_: f"v_and_b32 v{d}, s89, v{s_}")
        p(up(t + 6, P))
        exp_bf16(p, t + 5, t + 6, t)
        p(f"v_mul_f32 v{t+5}, v{t+5}, v{t+7}\n v_mul_f32 v{rho(mu)}, s86, v{t+5}")
        p(up(t + 6, P + 1))
        p(f"v_mul_f32 v{t+6}, v{t+6}, v{t+7}\n v_mul_f32 v{th(mu)}, 0.15915494, v{t+6}")
        p(up(t + 5, P + 2)); p(up(t + 6, P + 3))
        p(f"v_mul_f32 v{GA(0,mu)}, v{t+5}, v{t+4}\n v_mul_f32 v{GA(0,mu)+1}, v{t+6}, v{t+4}")
    for pw, dst in ((8, E8), (1, lambda mu: E(1, mu)), (128, E128)):
        for mu in range(2):
            p(f"v_mul_f32 v{t+2*mu}, {f2u(-float(pw)):#x}, v{rho(mu)}\n v_mul_f32 v{t+2*mu+1}, {f2u(float(pw)):#x}, v{th(mu)}")
        for mu in range(2): p(f"v_exp_f32 v{t+2*mu}, v{t+2*mu}\n v_fract_f32 v{t+2*mu+1}, v{t+2*mu+1}")
        for mu in range(2): p(f"v_cos_f32 v{dst(mu)}, v{t+2*mu+1}\n v_sin_f32 v{dst(mu)+1}, v{t+2*mu+1}")
        for mu in range(2): p(f"v_pk_mul_f32 {vr(dst(mu),2)}, {vr(dst(mu),2)}, {vr(t+2*mu,2)} op_sel_hi:[1,0]")
    cnt = [0]; SIDE0 = opt('side0', 36); SIDEN = opt('siden', 2)
    def put(row, src, neg=False):
        k = cnt[0]; cnt[0] += 1
        for mu in range(2):
            a = src(mu)
            p(f"v_cvt_pk_bf16_f32 v{PK(k)+mu}, v{a}, {'-' if neg else ''}v{a+1}")
        p(f"ds_write_b64 v{A_SW}, {vr(PK(k),2)} offset:{row*SRS}")
        for b_ in sched.get(k, []): p.extend(b_)
    p(f"v_mov_b32 v{PK(3)}, 0x3f80\n v_mov_b32 v{PK(3)+1}, 0x3f80\n ds_write_b64 v{A_SW}, {vr(PK(3),2)}")
    put(1, E8, True)
    prev = E8
    for b in range(2, 16):
        cur = (lambda bb: (lambda mu: XT(bb, mu)))(b)
        for mu in range(2): cmul(p, cur(mu), prev(mu), E8(mu))
        put(b, cur, True); prev = cur
    if STAMP == 4: stamp(p)
    for ka in range(8): p(f"ds_read_b128 {vr(FB+4*ka,4)}, v{A_SR} offset:{64*ka}")
    for k in range(2, 8):
        for mu in range(2): cmul(p, E(k, mu), E(k - 1, mu), E(1, mu))
    al = [0]
    def Gcur(mu): return GA(al[0] % 2, mu)
    def Gnext():
        for mu in range(2): cmul(p, GA((al[0] + 1) % 2, mu), GA(al[0] % 2, mu), E128(mu))
        al[0] += 1
    def prod(row, k):
        if k == 0: put(row, Gcur); return
        for mu in range(2): cmul(p, XT(row, mu), Gcur(mu), E(k, mu))
        put(row, lambda mu: XT(row, mu))
    def tile(T):
        for ka in range(8): p(f"ds_read_b128 {vr(FA+4*ka,4)}, v{A_SR} offset:{64*ka}")
        return [f"v_mfma_f32_16x16x32_bf16 {vr(DT+4*T,4)}, {vr(FA+4*ka,4)}, {vr(FB+4*ka,4)}, {'0' if ka == 0 else vr(DT+4*T,4)}" for ka in range(8)]
    for a in range(2):
        for g in range(8): prod(8 * a + g, g)
        Gnext()
    if STAMP == 4: stamp(p)
    mm = tile(0)
    for a in range(2):
        for g in range(4): prod(4 * a + g, 2 * g)
        Gnext()
        if a == 0:
            for x in mm: p(x)
    for a in range(4):
        for g in range(2): prod(8 + 2 * a + g, 4 * g)
        Gnext()
    if STAMP == 4: stamp(p)
    mm = tile(1)
    for a in range(9):
        prod(a, 0)
        if a < 8: Gnext()
        if a == 3:
            for x in mm: p(x)
    if STAMP == 4: stamp(p)
    mm = tile(2)
    p(f"""v_cmp_eq_u32 vcc, 0, v{BL}
    v_lshlrev_b32 v{t}, 16, v{P+5}
    v_cndmask_b32 v{t}, v{BZ}, v{t}, vcc
    v_add_f32 v{DT}, v{DT}, v{t}""")
    for q in range(8): p(f"v_cvt_pk_bf16_f32 v{DT+q}, v{DT+q}, v{DT+q}")
    p.need([vr(FA, 32)])
    p(mm[0]); p(f"ds_write_b128 v{A_T0}, {vr(DT,4)}")
    for x in mm[1:4]: p(x)
    p(f"ds_write_b64 v{A_T1}, {vr(DT+4,2)} offset:1024")
    for x in mm[4:6]: p(x)
    p(f"ds_write_b64 v{A_T1b}, {vr(DT+6,2)} offset:1024")
    for x in mm[6:]: p(x)
    R = FB
    p(f"""ds_read_b128 {vr(R+24,4)}, v{A_X0}
    ds_read_b128 {vr(R+28,4)}, v{A_X0} offset:16
    ds_read_b128 {vr(R+16,4)}, v{A_X1} offset:1024
    ds_read_b32 v{R+20}, v{A_X1} offset:{1024+16}""")
    for q in range(8, 12): p(f"v_cvt_pk_bf16_f32 v{DT+q}, v{DT+q}, v{DT+q}")
    for i in range(4): p(f"ds_write_b32 v{A_T2}, v{DT+8+i} offset:{2048+64*i}")
    p(f"""ds_read_b32 v{R+8}, v{A_X2} offset:{1536+8}
    ds_read_b32 v{R+9}, v{A_X2} offset:{1536+4}
    ds_read_b32 v{R+11}, v{A_X2} offset:{1536}""")
    for r in range(2):
        p(f"ds_read_b32 v{R+4*r}, v{A_X3} offset:{2048+256*r+4}")
        p(f"ds_read_b32 v{R+4*r+2}, v{A_X3} offset:{2048+256*r}\n ds_read_b32 v{R+4*r+3}, v{A_X3} offset:{2048+256*r}")
    p(f"""v_bfi_b32 v{R+12}, s85, v{R+20}, v{R+19}
    v_mov_b32 v{R+13}, v{R+18}
    v_bfi_b32 v{R+14}, s85, v{R+18}, v{R+17}
    v_mov_b32 v{R+15}, v{R+16}
    ds_write_b128 v{A_KW32}, {vr(R+12,4)} offset:3072
    v_bfi_b32 v{R+16}, s85, v{R+31}, v{R+30}
    v_bfi_b32 v{R+17}, s85, v{R+29}, v{R+28}
    v_bfi_b32 v{R+18}, s85, v{R+27}, v{R+26}
    v_bfi_b32 v{R+19}, s85, v{R+25}, v{R+24}
    ds_write_b128 v{A_KW32}, {vr(R+16,4)} offset:3584
    v_bfi_b32 v{R+10}, s85, v{R+9}, v{R+11}
    ds_write_b128 v{A_KW}, {vr(R+8,4)} offset:2048""")
    for r in range(2):
        p(f"v_bfi_b32 v{R+4*r+1}, v{MSK}, v{R+4*r}, v{R+4*r+2}")
        p(f"ds_write_b128 v{A_KW}, {vr(R+4*r,4)} offset:{1024*(1-r)}")

def prefetch1():
    if not opt('pf1', 1): return []
    NG = opt('pfg', 2); B = []; p = Prog()
    decode_ab(p, 's93', 16, 94, 92)
    p("s_add_u32 s93, s94, s92\n s_mul_i32 s93, s93, 3")
    srd(p, 96, P_W, 640 * 3840)
    p(f"""s_mul_i32 s92, s92, 160
    s_lshr_b32 s95, s68, 1
    s_add_u32 s95, s95, 1
    s_mul_i32 s95, s95, 1280
    s_add_u32 s92, s92, s95
    s_andn2_b32 s92, s92, 127
    s_and_b32 s95, s68, 1
    s_lshl_b32 s95, s95, 7
    s_add_u32 s92, s92, s95
    v_mul_u32_u24 v250, 3840, v{BL}
    v_mul_u32_u24 v249, 1280, v{BL}""")
    def g10(p, d, add):
        p(f"""s_add_u32 s{d}, s93, {add}
        s_mul_i32 s95, s{d}, 205
        s_lshr_b32 s95, s95, 11
        s_mul_i32 s95, s95, 10
        s_sub_u32 s{d}, s{d}, s95""")
    for k in range(1, NG + 1):
        g10(p, 100, k)
        p(f"s_mul_i32 s100, s100, {64*3840}\n s_add_u32 s100, s100, s92\n buffer_load_dword v254, v250, s[96:99], s100 offen {'nt' if opt('ntw', 0) else ''}")
        B.append(p); p = Prog()
    srd(p, 96, P_X, 2048 * 1280)
    p(f"""s_lshl_b32 s94, s94, 1
    s_and_b32 s95, s68, 1
    s_add_u32 s94, s94, s95
    s_mul_i32 s94, s94, {64*1280}
    s_lshr_b32 s95, s68, 1
    s_add_u32 s93, s93, s95""")
    for k in range(1, NG + 1, 2):
        g10(p, 100, k)
        p(f"s_lshl_b32 s100, s100, 7\n s_add_u32 s100, s100, s94\n buffer_load_dword v254, v249, s[96:99], s100 offen {'nt' if opt('ntx', 0) else ''}")
        B.append(p); p = Prog()
    return B
def prefetch2x():
    if not opt('pf2', 1): return []
    B = []
    for r in range(2):
        a = Prog(); b = Prog()
        a(f"""s_lshr_b32 s92, s2, 3
        s_sub_u32 s92, s92, 16
        s_lshl_b32 s92, s92, 2
        s_add_u32 s92, s92, s68
        s_lshl_b32 s92, s92, 6
        s_add_u32 s92, s92, {4096*r}
        v_add_u32 v250, s92, v{BL}
        v_mul_u32_u24 v249, 6554, v250
        v_lshrrev_b32 v249, 16, v249
        v_mul_u32_u24 v252, 10, v249
        v_sub_u32 v250, v250, v252
        v_mul_u32_u24 v252, 3840, v249
        v_lshl_add_u32 v252, v250, 7, v252""")
        srd(a, 96, P_W, 640 * 3840)
        a("buffer_load_dword v254, v252, s[96:99], 0 offen")
        b(f"""v_mul_u32_u24 v252, 1280, v249
        v_lshl_add_u32 v252, v250, 7, v252""")
        srd(b, 96, P_WO, 640 * 1280)
        b("buffer_load_dword v254, v252, s[96:99], 0 offen")
        B += [a, b]
    return B
def prefetch2():
    if XM: return prefetch2x()
    if not opt('pf2', 1): return []
    a = Prog(); b = Prog()
    a(f"""s_lshr_b32 s92, s2, 3
    s_sub_u32 s92, s92, 16
    s_lshl_b32 s92, s92, 2
    s_add_u32 s92, s92, s68
    s_lshl_b32 s92, s92, 6
    v_add_u32 v250, s92, v{BL}
    v_mul_u32_u24 v249, 13108, v250
    v_lshrrev_b32 v249, 16, v249
    v_mul_u32_u24 v252, 5, v249
    v_sub_u32 v250, v250, v252
    v_mul_u32_u24 v252, 3840, v249
    v_lshl_add_u32 v252, v250, 7, v252
    s_and_b32 s93, s2, 1
    s_mul_i32 s94, s93, 640""")
    srd(a, 96, P_W, 640 * 3840)
    a("buffer_load_dword v254, v252, s[96:99], s94 offen")
    b(f"""s_lshl_b32 s94, s93, 9
    s_lshl_b32 s95, s93, 7
    s_add_u32 s95, s95, 1024
    v_lshlrev_b32 v252, 7, v250
    v_add_u32 v252, s94, v252
    v_mov_b32 v248, s95
    v_cmp_eq_u32 vcc, 4, v250
    v_mul_u32_u24 v249, 1280, v249
    v_cndmask_b32 v252, v252, v248, vcc
    v_add_u32 v252, v252, v249""")
    srd(b, 96, P_WO, 640 * 1280)
    b("buffer_load_dword v254, v252, s[96:99], 0 offen")
    return [a, b]

def role_B():
    p = Prog(); nstamp[0] = 0
    LN, L15, G, Z = BL, B15, BG, BZ
    p("roleB:")
    if opt('noB', 0): p("s_endpgm")
    stamp(p)
    if opt('bm', 1) == 0:
        p("""s_and_b32 s69, s2, 7
        s_mul_i32 s69, s69, 10
        s_lshr_b32 s70, s2, 3
        s_sub_u32 s70, s70, 16
        s_add_u32 s69, s69, s70""")
    else:
        p("""s_and_b32 s71, s2, 7
        s_lshr_b32 s70, s2, 3
        s_sub_u32 s70, s70, 16
        s_lshl_b32 s69, s71, 3
        s_add_u32 s69, s69, s70
        s_lshl_b32 s71, s71, 1
        s_add_u32 s71, s71, s70
        s_add_u32 s71, s71, 56
        s_cmp_ge_u32 s70, 8
        s_cselect_b32 s69, s71, s69""")
    kg_lanes(p)
    p(f"s_lshl_b32 s71, s69, 3\n s_add_u32 s71, s71, s68")
    kg_params(p, 's71', PR)
    pf = prefetch1()[:opt('pfb', 3)]; NOW = opt('pfnow', 3)
    srd(p, S_WSB, P_WS, WS_SIZE)
    token_load(p, S_WSB, Z)
    for b in pf[:NOW]: p.extend(b)
    p(f"""s_lshr_b32 s80, s69, 3
    s_lshl_b32 s39, s80, 12
    s_add_u32 s39, s39, {WS_UF}
    s_lshl_b32 s101, s69, 2
    s_add_u32 s101, s101, s68
    s_lshl_b32 s101, s101, 7
    s_add_u32 s101, s101, {WS_YF}
    s_lshl_b32 s6, s69, 15
    s_lshl_b32 s7, s68, 13
    s_add_u32 s6, s6, s7
    s_add_u32 s6, s6, {WS_YT}
    s_add_u32 s7, s6, 4096
    v_lshlrev_b32 v39, 4, v{LN}
    v_cmp_eq_u32 vcc, 0, v{LN}
    v_mov_b32 v15, {OOB:#x}
    v_cndmask_b32 v15, v15, v{Z}, vcc""")
    tk = Prog(); token_make(tk)
    sched = {30: [tk]}
    for k, b in enumerate(pf[NOW:]): sched.setdefault(opt('pfa', 0) + opt('pfd', 3) * k, []).append(b)
    for k, b in enumerate(prefetch2()): sched.setdefault(opt('pf2a', 30) + 3 * k, []).append(b)
    if not UT:
        p("s_lshl_b32 s80, s69, 4")
        srd(p, S_U, P_U, 0, 's80')
        p(f"""s_sub_u32 s{S_U+2}, {2048*1280}, s80
        v_mul_u32_u24 v6, 1280, v{LN}
        s_and_b32 s90, s69, 7
        s_lshl_b32 s81, s68, 3
        s_add_u32 s90, s90, s81""")
        for i in range(8):
            q = Prog()
            q(f"""s_add_u32 s81, s90, {i}
            s_and_b32 s81, s81, 31
            s_mul_i32 s82, s81, {64*1280}
            s_lshl_b32 s81, s81, 10
            s_add_u32 m0, s81, {B_RAW+256}""")
            q(f"buffer_load_dwordx4 v6, {sr(S_U,4)}, s82 offen lds", tag='raw')
            sched.setdefault(opt('sidef', 10) if i == 0 else min(55, opt('side0', 40) + opt('siden', 2) * i), []).append(q)
    srd(p, S_O, P_OUT, 2048 * 2560)
    kg_setup(p, B_KR, B_SC)
    t = 40
    p(f"""v_mov_b32 v20, 0
    v_mov_b32 v21, 0
    v_mov_b32 v22, 0
    v_mov_b32 v23, 0
    v_lshlrev_b32 v{t}, 4, v{L15}
    ds_write_b128 v{t}, v[20:23] offset:{B_RAW}
    v_and_b32 v{t}, 31, v0
    v_lshl_add_u32 v38, v{t}, 4, s83
    ds_write_b128 v38, v[20:23] offset:4096
    v_lshlrev_b32 v{t+1}, 5, v{L15}
    v_sub_u32 v{A_KB}, s83, v{t+1}
    v_lshl_add_u32 v{A_KB}, v{G}, 4, v{A_KB}
    v_add_u32 v{A_KB}, 480, v{A_KB}""")
    stamp(p)
    kgen(p, PR, sched)
    stamp(p)
    Y = 184; UB = 216
    p(f"""v_and_b32 v17, 31, v0
    v_lshlrev_b32 v17, 7, v17
    s_lshl_b32 s38, s69, 15
    s_lshl_b32 s80, s68, 13
    s_add_u32 s38, s38, s80
    s_add_u32 s38, s38, {WS_UT}
    s_add_u32 s80, s80, {B_RAW+256}""")
    if UT: pollall(p, "b_pu", S_WSB, 's39', 18, 17, opt('uslp', 4))
    stamp(p)
    for i in range(8 if UT else 0):
        p(f"s_add_u32 m0, s80, {1024*i}\n s_nop 0\n buffer_load_dwordx4 v39, {sr(S_WSB,4)}, s38 offen sc1 lds\n s_add_u32 s38, s38, 1024", tag='raw')
    p(f"""v_bfe_u32 v{t}, v0, 2, 2
    v_lshl_add_u32 v{t}, v{G}, 3, v{t}
    v_bfe_u32 v{t+1}, v0, 1, 1
    v_lshl_add_u32 v{t}, v{t+1}, 2, v{t}
    v_lshlrev_b32 v{t}, 4, v{t}
    v_and_b32 v{t+1}, 1, v0
    v_lshl_add_u32 v{t}, v{t+1}, 3, v{t}
    s_lshl_b32 s80, s68, 9
    v_add_u32 v{t}, s80, v{t}
    v_and_b32 v{t+1}, 7, v0
    v_mul_u32_u24 v{t+1}, {2*CP}, v{t+1}
    v_bfe_u32 v{t+2}, v0, 3, 1
    v_lshl_add_u32 v{t+1}, v{t+2}, 3, v{t+1}
    v_lshl_add_u32 v{t+1}, v{G}, 4, v{t+1}
    s_lshl_b32 s80, s68, 6
    s_add_u32 s80, s80, {B_UC}
    v_add_u32 v{t+1}, s80, v{t+1}
    s_cmp_eq_u32 s68, 0
    s_cselect_b32 s80, 2, 0
    v_cmp_gt_u32 vcc, s80, v{G}
    v_mov_b32 v{t+2}, {B_END - 4096}
    s_mul_i32 s81, s68, {2*CP}
    v_cndmask_b32 v{t+3}, v{t+2}, v{t+1}, vcc
    s_add_u32 s81, s81, {B_UC}
    v_and_b32 v{t+4}, 1, v0
    v_mul_u32_u24 v{t+4}, {CP}, v{t+4}
    v_lshrrev_b32 v{t+5}, 1, v{L15}
    v_lshl_add_u32 v{t+5}, v{G}, 2, v{t+5}
    v_lshl_add_u32 v{t+4}, v{t+5}, 2, v{t+4}
    v_add_u32 v{UB}, s81, v{t+4}
    v_add_u32 v{UB+1}, 1024, v{UB}
    v_add_u32 v{UB+2}, 2048, v{UB}
    v_add_u32 v{UB+3}, 3072, v{UB}
    s_mul_i32 s80, s68, {YP}
    v_lshlrev_b32 v{t+4}, 5, v{L15}
    v_lshl_add_u32 v{t+4}, v{G}, 3, v{t+4}
    v_add_u32 v{UB+4}, s80, v{t+4}
    s_lshl_b32 s90, s69, 2
    s_add_u32 s90, s90, s68
    s_lshl_b32 s91, s90, 12
    s_add_u32 s91, s91, {WS_KR}
    s_lshl_b32 s90, s90, 7
    s_add_u32 s90, s90, {WS_KF}
    s_sub_u32 s92, s84, s83
    v_add_u32 v38, s92, v38""")
    p.waitvm('raw'); p("s_waitcnt lgkmcnt(0)\n s_barrier")
    stamp(p)
    p(f"ds_write_b128 v38, v[20:23] offset:4096")
    jobs = [(k, pp) for k in range(17) for pp in range(2)]
    NBUF = 8
    def rdj(n):
        k, pp = jobs[n]; p(f"ds_read_b64_tr_b16 {vr(48+2*(n%NBUF),2)}, v{t} offset:{B_RAW + 16*(1+pp) + 2048*k}")
    def wrj(n):
        k, pp = jobs[n]
        p(f"ds_write_b64 v{t+3 if k == 16 else t+1}, {vr(48+2*(n%NBUF),2)} offset:{pp*CP + 256*k}")
    for n in range(NBUF): rdj(n)
    for n in range(len(jobs)):
        wrj(n)
        if n + NBUF < len(jobs): rdj(n + NBUF)
    def fa(b, a): return ar((b % 2) * 64 + 4 * a, 4)
    def fb(b, c): return ar((b % 2) * 64 + 32 + 4 * c, 4)
    def reads(b, kind='ku'):
        q = Prog()
        for a in range(8):
            o = 128 * (a % 2) + 16 * b; r0 = (b % 2) * 64 + 4 * a
            if 'k' in kind: q(f"ds_read_b128 {fb(b,a)}, v{A_KB} offset:{512*(7-a)+64*b}")
            if 'u' in kind:
                q(f"ds_read2_b32 {ar(r0,2)}, v{UB+a//2} offset0:{o} offset1:{o+1}")
                q(f"ds_read2_b32 {ar(r0+2,2)}, v{UB+a//2} offset0:{o+2} offset1:{o+3}")
        return q
    def krdma(tag):
        for i in range(4):
            p(f"s_add_u32 m0, s84, {1024*i}\n s_nop 0\n buffer_load_dwordx4 v39, {sr(S_WSB,4)}, s91 offen sc1 lds\n s_add_u32 s91, s91, 1024", tag=tag)
    p("s_mov_b32 s93, 0\n s_mov_b32 s95, 0\n s_waitcnt lgkmcnt(0)\n s_barrier")
    stamp(p)
    p("b_conv:")
    p.extend(reads(0))
    prs = sorted([(a, c) for c in range(8) for a in range(c + 1)], key=lambda x: (max(x[0], x[1] - x[0]), x[1]))
    EB = opt('eb', 5)
    for b in range(8):
        m = Prog(); seen = set(); lvl = -1
        for a, c in prs:
            first = b == 0 and c not in seen; seen.add(c)
            if max(a, c - a) != lvl and (b == 0 or max(a, c - a) in (0, 4)):
                lvl = max(a, c - a); hi = lvl if b == 0 else lvl + 3
                m.need([fa(b, x) for x in range(lvl, hi + 1)] + [fb(b, x) for x in range(lvl, hi + 1)])
            mfma(m, vr(Y + 4 * c, 4), fa(b, a), fb(b, c - a), '0' if first else None)
        if b in (0, 1, 2) and YT:
            p("s_cmp_lg_u32 s93, 0")
            p(f"s_cbranch_scc1 b_ys{b}", tag='keep')
            if b == 0: p("v_mov_b32 v8, -1\n v_mov_b32 v9, -1\n v_mov_b32 v10, -1\n v_mov_b32 v11, -1", tag='offpath')
            for jj in ((0, 1, 2), (3, 4, 5), (6, 7))[b]:
                p(f"buffer_store_dwordx4 v[8:11], v39, {sr(S_WSB,4)}, {'s6' if jj < 4 else 's7'} offen offset:{1024*(jj%4)} sc1", tag='offpath')
            p(f"b_ys{b}:")
        if b == EB: p(f"buffer_load_dword v7, v{Z}, {sr(S_WSB,4)}, s90 offen sc1")
        if b == EB + 1:
            p(f"""v_cmp_eq_u32 vcc, v{V_TOK}, v7
            s_cmp_lg_u32 s93, 0
            s_cselect_b64 s[80:81], 0, -1
            s_and_b64 vcc, vcc, s[80:81]""")
            p("s_cbranch_scc0 b_noearly", tag='keep')
            krdma('offpath')
            p("s_mov_b32 s95, 1", tag='offpath')
            p("b_noearly:")
        p.extend(pack(m, [(singles(reads(b + 1)), 2, 30)] if b < 7 else [], cap=4))
    for c in range(8):
        d = 40 + 2 * (c % 4)
        p(f"v_cvt_pk_bf16_f32 v{d}, v{Y+4*c}, v{Y+4*c+1}\n v_cvt_pk_bf16_f32 v{d+1}, v{Y+4*c+2}, v{Y+4*c+3}")
        p(f"ds_write_b64 v{UB+4}, {vr(d,2)} offset:{B_RAW+512*c}")
    p("s_cmp_lg_u32 s93, 0")
    p("s_cbranch_scc1 b_fin")
    stamp(p)
    p(f"""s_mov_b32 s93, 1
    v_add_u32 v{A_KB}, s92, v{A_KB}""")
    for k in range(4): p(f"v_add_u32 v{UB+k}, {8*CP}, v{UB+k}")
    p(f"v_add_u32 v{UB+4}, {4*YP}, v{UB+4}\n s_cmp_eq_u32 s95, 1")
    p("s_cbranch_scc1 b_have")
    p(f"s_mov_b32 s94, {SPIN}")
    p("b_poll:")
    p(f"""buffer_load_dword v7, v{Z}, {sr(S_WSB,4)}, s90 offen sc1
    s_sub_u32 s94, s94, 1
    s_waitcnt vmcnt(0)
    v_cmp_eq_u32 vcc, v{V_TOK}, v7
    s_cmp_eq_u32 s94, 0
    s_cbranch_scc1 b_got
    s_cmp_eq_u64 vcc, 0
    s_cbranch_scc1 b_poll""")
    p("b_got:")
    krdma(None)
    p("b_have:")
    p(f"s_waitcnt vmcnt(0)\n buffer_store_dword v{V_TOK}, v15, {sr(S_WSB,4)}, s101 offen sc1\n s_branch b_conv")
    p("b_fin:")
    stamp(p)
    p(f"""v_bfe_u32 v{t+8}, v0, 2, 2
    v_mul_u32_u24 v{t+8}, {YP}, v{t+8}
    v_and_b32 v{t+9}, 3, v0
    v_lshl_add_u32 v{t+8}, v{t+9}, 3, v{t+8}
    v_lshl_add_u32 v{t+8}, v{G}, 5, v{t+8}
    s_lshl_b32 s80, s68, 10
    v_add_u32 v{t+8}, s80, v{t+8}""")
    if not YT:
        p(f"""v_mul_u32_u24 v{t+9}, 2560, v{LN}
        s_mul_i32 s80, s68, {512*2560}
        s_lshl_b32 s81, s69, 4
        s_add_u32 s80, s80, s81
        s_add_u32 s80, s80, 1280
        s_waitcnt lgkmcnt(0)
        s_barrier""")
        for it in range(8):
            for h in range(2):
                p(f"ds_read_b64_tr_b16 {vr(56+4*it+2*h,2)}, v{t+8} offset:{B_RAW + h*4*YP + 128*it}")
        for it in range(8):
            p(f"buffer_store_dwordx4 {vr(56+4*it,4)}, v{t+9}, {sr(S_O,4)}, s80 offen\n s_add_u32 s80, s80, {64*2560}")
        stamp(p); stamp(p); stamp(p)
        stamp_store(p, S_WSB)
        p("s_endpgm")
        return p
    p(f"""s_mov_b32 s5, s39
    s_lshr_b32 s80, s69, 3
    s_and_b32 s81, s69, 7
    s_lshl_b32 s81, s81, 2
    s_add_u32 s81, s81, s68
    s_lshl_b32 s38, s80, 18
    s_lshl_b32 s82, s81, 10
    s_add_u32 s38, s38, s82
    s_add_u32 s38, s38, {WS_YT}
    s_mul_i32 s39, s81, {64*2560}
    s_lshl_b32 s80, s80, 7
    s_add_u32 s39, s39, s80
    s_add_u32 s39, s39, 1280
    s_mul_i32 s90, s68, 8448
    s_add_u32 s90, s90, {B_UC}
    v_lshrrev_b32 v{t+10}, 3, v{LN}
    v_and_b32 v{t+11}, 7, v0
    v_lshlrev_b32 v{t+12}, 15, v{t+10}
    v_lshl_add_u32 v{t+12}, v{t+11}, 7, v{t+12}
    v_mul_u32_u24 v{t+13}, 1040, v{t+11}
    v_lshl_add_u32 v{t+13}, v{t+10}, 4, v{t+13}
    v_add_u32 v{t+13}, s90, v{t+13}
    v_mul_u32_u24 v{t+14}, 2560, v{t+10}
    v_lshl_add_u32 v{t+14}, v{t+11}, 4, v{t+14}
    s_add_u32 s91, s5, {WS_YF-WS_UF}""")
    pollall(p, "b_pf", S_WSB, 's91', 18, 17)
    p(f"s_mov_b32 s94, {SPIN}")
    p("s_waitcnt lgkmcnt(0)\n s_barrier")
    for it in range(8):
        for h in range(2):
            p(f"ds_read_b64_tr_b16 {vr(56+4*it+2*h,2)}, v{t+8} offset:{B_RAW + h*4*YP + 128*it}")
    for it in range(8):
        p(f"buffer_store_dwordx4 {vr(56+4*it,4)}, v39, {sr(S_WSB,4)}, {'s6' if it < 4 else 's7'} offen offset:{1024*(it%4)} sc1")
    stamp(p)
    p("b_yp:")
    p(f"""buffer_load_dword v19, v{t+12}, {sr(S_WSB,4)}, s38 offen sc1
    s_sub_u32 s94, s94, 1
    s_waitcnt vmcnt(0)
    v_cmp_ne_u32 vcc, -1, v19
    s_cmp_lt_i32 s94, 1
    s_cbranch_scc1 b_yg
    s_cmp_eq_u64 vcc, -1
    s_cbranch_scc1 b_yg
    s_sleep {opt('yslp', 8)}
    s_branch b_yp""")
    p("b_yg:")
    stamp(p)
    p("s_mov_b32 s82, s38")
    for j in range(8):
        p(f"s_add_u32 m0, s90, {1040*j}\n s_nop 0\n buffer_load_dwordx4 v39, {sr(S_WSB,4)}, s82 offen sc1 lds\n s_add_u32 s82, s82, 32768")
    p("v_mov_b32 v18, 0\n s_waitcnt vmcnt(0)")
    for i in range(8): p(f"ds_read_b128 {vr(56+4*i,4)}, v{t+13} offset:{128*i}")
    for i in range(8): p(f"v_max3_u32 v18, v18, v{56+4*i}, v{57+4*i}\n v_max3_u32 v18, v18, v{58+4*i}, v{59+4*i}")
    p(f"""v_cmp_eq_u32 vcc, -1, v18
    s_cmp_lt_i32 s94, 1
    s_cbranch_scc1 b_yo
    s_cmp_lg_u64 vcc, 0
    s_cbranch_scc1 b_yp""")
    p("b_yo:")
    for i in range(8):
        p(f"buffer_store_dwordx4 {vr(56+4*i,4)}, v{t+14}, {sr(S_O,4)}, s39 offen {OPT.get('bst', 'sc1')}\n s_add_u32 s39, s39, {8*2560}")
    stamp(p)
    stamp_store(p, S_WSB)
    p("s_endpgm")
    return p

def role_S():
    p = Prog(); nstamp[0] = 32
    p("roleS:")
    p(f"""s_getpc_b64 s[40:41]
    cpf_here:
    s_sub_u32 s40, s40, cpf_here-{NAME}_kernel
    s_subb_u32 s41, s41, 0
    s_lshr_b32 s42, s2, 3
    s_and_b32 s42, s42, 1
    s_lshl_b32 s42, s42, 15
    v_lshlrev_b32 v8, 7, v0
    v_add_u32 v8, s42, v8
    v_cmp_gt_u32 vcc, code_end-{NAME}_kernel, v8
    v_cndmask_b32 v8, 0, v8, vcc
    global_load_dword v254, v8, s[40:41]""")
    if STAMP: p("v_mov_b32 v255, 0")
    stamp(p)
    p(f"s_sub_u32 s69, s2, 208")
    kg_lanes(p)
    p(f"""s_lshl_b32 s90, s69, 2
    s_add_u32 s90, s90, s68
    s_lshl_b32 s71, s69, 3
    s_add_u32 s71, s71, s68
    s_add_u32 s71, s71, 4""")
    kg_params(p, 's71', PR)
    p(f"s_add_u32 s71, s71, 384\n s_min_u32 s71, s71, 639")
    kg_params(p, 's71', PR + 6)
    srd(p, S_U, P_WS, WS_ZERO_END)
    srd(p, S_O, P_DBG, 256)
    srd(p, S_WSB, P_WS, WS_SIZE)
    token_load(p, S_WSB, BZ)
    p(f"""s_lshl_b32 s70, s69, 12
    v_lshlrev_b32 v6, 4, v0
    v_mov_b32 v20, 0
    v_mov_b32 v21, 0
    v_mov_b32 v22, 0
    v_mov_b32 v23, 0
""")
    p(f"buffer_store_dwordx4 v[20:23], v6, {sr(S_U,4)}, s70 offen sc1", tag='zero')
    srd(p, 96, P_U, 2048 * 1280)
    p(f"""v_lshrrev_b32 v240, 3, v{BL}
    v_mul_u32_u24 v240, 1280, v240
    v_and_b32 v241, 7, v0
    v_xor_b32 v241, v241, v{BG}
    v_lshl_add_u32 v240, v241, 4, v240
    v_xor_b32 v241, 64, v240
    v_add_u32 v241, {8*1280}, v241
    s_lshl_b32 s5, s68, 14""")
    for r in range(2 if UT else 0):
        p(f"""s_add_u32 s80, s90, {192*r}
        s_and_b32 s81, s80, 31
        s_lshr_b32 s82, s80, 5
        s_mul_i32 s81, s81, {64*1280}
        s_lshl_b32 s82, s82, 7
        s_add_u32 s82, s82, s81
        s_cmp_ge_u32 s80, 320
        s_cselect_b32 s82, {0x40000000}, s82""")
        for i in range(8):
            p(f"s_add_u32 m0, s5, {8192*r+1024*i}\n s_nop 0\n buffer_load_dwordx4 v{240+i%2}, s[96:99], s82 offen nt lds", tag=('ut', r))
            if i % 2: p(f"s_add_u32 s82, s82, {16*1280}")
    pfS = prefetch1()[:opt('pfs', 0 if UT else 3)]
    for b in pfS[:opt('pfnow', 3)]: p.extend(b)
    p(f"""s_cmp_lt_u32 s69, {NZERO_WG}
    s_cselect_b32 s4, 0, -1
    v_cmp_eq_u32 vcc, s4, v0
    v_mov_b32 v7, 1
    v_mov_b32 v38, {OOB:#x}
    v_cndmask_b32 v39, v38, v{BZ}, vcc""")
    kg_setup(p, S_KR, S_SC)
    p(f"""v_cmp_eq_u32 vcc, 0, v{BL}
    v_lshlrev_b32 v184, 4, v{BL}
    v_add_u32 v185, s83, v184
    v_cndmask_b32 v38, v38, v{BZ}, vcc
    v_bfe_u32 v242, v0, 1, 3
    v_lshlrev_b32 v242, 4, v242
    v_lshl_add_u32 v242, v{BL}, 7, v242
    v_add_u32 v242, s5, v242""")
    p.waitvm('zero')
    p(f"s_barrier\n buffer_atomic_add v7, v39, {sr(S_O,4)}, 0 offen sc1")
    token_make(p)
    if not UT: p(f"s_mov_b32 s6, {0x40000000}\n s_mov_b32 s7, {0x40000000}")
    for r in range(2 if UT else 0):
        p(f"""s_add_u32 s80, s90, {192*r}
        s_and_b32 s81, s80, 31
        s_lshr_b32 s82, s80, 5
        s_lshl_b32 s81, s81, 10
        s_lshl_b32 s82, s82, 18
        s_add_u32 s82, s82, s81
        s_add_u32 s82, s82, {WS_UT}
        s_lshl_b32 s{6+r}, s80, 7
        s_add_u32 s{6+r}, s{6+r}, {WS_UF}
        s_cmp_ge_u32 s80, 320
        s_cselect_b32 s82, {0x40000000}, s82
        s_cselect_b32 s{6+r}, {0x40000000}, s{6+r}""")
        p.waitvm(('ut', r))
        for j in range(8): p(f"v_xor_b32 v243, {16*j}, v242\n ds_read_b128 {vr(48+32*r+4*j,4)}, v243 offset:{8192*r}")
        for j in range(8): p(f"buffer_store_dwordx4 {vr(48+32*r+4*j,4)}, v184, {sr(S_WSB,4)}, s82 offen sc1\n s_add_u32 s82, s82, 32768")
    stamp(p)
    p("s_kloop:", tag='keep')
    fl = Prog()
    fl(f"""s_waitcnt vmcnt(0)
    buffer_store_dword v{V_TOK}, v38, {sr(S_WSB,4)}, s6 offen sc1
    buffer_store_dword v{V_TOK}, v38, {sr(S_WSB,4)}, s7 offen sc1""")
    sched = {opt('sfl', 24): [fl]}
    for k, b in enumerate(pfS[opt('pfnow', 3):]): sched.setdefault(opt('pfa', 0) + opt('pfd', 3) * k, []).append(b)
    for k, b in enumerate(prefetch2()): sched.setdefault(40 + 3 * k, []).append(b)
    kgen(p, PR, sched)
    for i in range(4): p(f"ds_read_b128 {vr(48+4*i,4)}, v185 offset:{1024*i}")
    p(f"s_lshl_b32 s91, s90, 12\n s_add_u32 s91, s91, {WS_KR}")
    for i in range(4): p(f"buffer_store_dwordx4 {vr(48+4*i,4)}, v184, {sr(S_WSB,4)}, s91 offen offset:{1024*i} sc1")
    p(f"""s_lshl_b32 s6, s90, 7
    s_add_u32 s6, s6, {WS_KF}
    s_mov_b32 s7, s6
    s_add_u32 s90, s90, 192""")
    for k in range(6): p(f"v_mov_b32 v{PR+k}, v{PR+6+k}")
    stamp(p)
    p("s_cmp_lt_u32 s90, 320\n s_cbranch_scc1 s_kloop")
    p(f"s_waitcnt vmcnt(0)\n buffer_store_dword v{V_TOK}, v38, {sr(S_WSB,4)}, s6 offen sc1")
    p("s_cmp_ge_u32 s2, 240")
    stamp(p)
    p("s_cbranch_scc1 s_done")
    srd(p, S_DBG, P_DBG, 256)
    if XM == 0:
        p("""s_and_b32 s72, s2, 7
        s_lshr_b32 s69, s72, 1
        s_lshl_b32 s69, s69, 2
        s_lshr_b32 s73, s2, 3
        s_sub_u32 s73, s73, 26
        s_add_u32 s69, s69, s73
        s_and_b32 s83, s72, 1""")
    else:
        p("""s_and_b32 s69, s2, 7
        s_lshl_b32 s69, s69, 1
        s_lshr_b32 s73, s2, 3
        s_sub_u32 s73, s73, 26
        s_and_b32 s83, s73, 1
        s_lshr_b32 s73, s73, 1
        s_add_u32 s69, s69, s73""")
    p(f"""s_add_u32 s83, s83, 8
    s_lshl_b32 s83, s83, 7
    s_mul_i32 s84, s68, {GR}
    v_and_b32 v{LN}, 63, v0
    v_mov_b32 v{V_Z}, 0""")
    setup_g2(p)
    for i in range(5): unpark(p, f'wo{i}', V_XO + i)
    for G in range(15, 19):
        for b in issue_group(G): p.extend(b)
    p(f"""v_and_b32 v249, 7, v0
    v_lshlrev_b32 v249, 13, v249
    s_lshl_b32 s85, s69, 9
    s_lshl_b32 s81, s68, 7
    s_add_u32 s85, s85, s81
    s_add_u32 s85, s85, {WS_KVF}""")
    pollall(p, "s_pf", S_WS, 's85', 248, 249, opt('slp', 8))
    p("s_branch g2_tail")
    p("s_done:")
    p(f"""s_cmp_lg_u32 s2, 255
    s_cbranch_scc1 s_fin
    s_cmp_lg_u32 s68, 0
    s_cbranch_scc1 s_fin
""")
    for n, (base, cnt, r) in enumerate(((WS_KF, 48, 0), (WS_YF, 80, 0), (WS_YF, 80, 1), (WS_KVF, 128, 0), (WS_KVF, 128, 1))):
        p(f"""v_add_u32 v187, {64*r}, v{BL}
        v_min_u32 v187, {cnt-1}, v187
        v_lshlrev_b32 v187, 9, v187
        s_mov_b32 s91, {base}""")
        pollall(p, f"s_ep{n}", S_WSB, 's91', 186, 187, 16)
    p(f"""s_mov_b32 s4, {WS_EP}
    buffer_store_dword v{V_TOK}, v38, {sr(S_WSB,4)}, s4 offen sc1""")
    p("s_fin:")
    if STAMP:
        stamp_store(p, S_WSB)
    p("done:\n s_endpgm\n code_end:")
    return p

def main():
    LDS = max(A_END + 16, B_END + 4608)
    assert LDS <= 163840, LDS
    ref = open(f"cdna_kernels/{NAME}.s.ref").read().split('\n')
    hdr = [l for l in ref if l.startswith(';') and '@launch' not in l]
    s = '\n'.join(hdr) + f"\n; @launch grid=(256,1,1) block=(256,1,1) lds={LDS}\n"
    s += f""".amdgcn_target "amdgcn-amd-amdhsa--gfx950"
.text
.p2align 12
.globl {NAME}_kernel
.p2align 8
.type {NAME}_kernel,@function
{NAME}_kernel:
"""
    e = Prog()
    e(f"""s_cmp_ge_u32 s2, 256
    s_cbranch_scc1 done""")
    if opt('cpf2', 0):
        e(f"""s_getpc_b64 s[36:37]
        v_lshlrev_b32 v2, 7, v0
        s_cmp_ge_u32 s2, 128
        s_cselect_b32 s38, roleB-{NAME}_kernel, 0
        v_add_u32 v2, s38, v2
        v_min_u32 v2, code_end-{NAME}_kernel-64, v2
        global_load_dword v253, v2, s[36:37]""", tag='offpath')
    e(f"""
    s_load_dwordx16 s[8:23], s[0:1], 0
    s_load_dwordx8 s[24:31], s[0:1], 64
    s_load_dwordx4 s[32:35], s[0:1], 96
    v_lshrrev_b32 v1, 6, v0
    s_nop 0
    v_readfirstlane_b32 s68, v1
    s_cmp_ge_u32 s2, 208
    s_cbranch_scc1 roleS
    s_cmp_ge_u32 s2, 128
    s_cbranch_scc1 roleB""")
    a = role_A()
    e.extend(a)
    L = lower(e) + lower(role_B()) + lower(role_S())
    if opt('align', 1):
        L, nn, npro = align8(L, sizes_of(s + render(L) + ''.join(f'pg{k}:\n' for k in range(NPG))))
        print("align: nops", nn, "promoted", npro)
    if NPG:
        dummy = ''.join(f"pg{k}:\n" for k in range(NPG))
        L, n = page_stubs(L, sizes_of(s + render(L) + dummy), 4096 - 0x300, 'roleB')
        print("page stubs", n)
        assert n == NPG
    s += render(L)
    s += f""".section .rodata,"a"
.p2align 6
.amdhsa_kernel {NAME}_kernel
  .amdhsa_next_free_vgpr 512
  .amdhsa_next_free_sgpr 102
  .amdhsa_accum_offset 256
  .amdhsa_group_segment_fixed_size 0
  .amdhsa_kernarg_size 112
  .amdhsa_user_sgpr_count 2
  .amdhsa_user_sgpr_kernarg_segment_ptr 1
  .amdhsa_system_sgpr_workgroup_id_x 1
.end_amdhsa_kernel
"""
    out = OPT.get('out', f"cdna_kernels/{NAME}.s")
    open(out, 'w').write(s)
    print("LDS", LDS, "A_END", A_END, "B_END", B_END, "lines", s.count('\n'))
main()
```

```python
import sys, struct
from gasm import Prog, finalize, merge, spread, singles, pack, bundles, lower, render, sizes_of, align8, page_stubs
NAME = "concat_heads__linear_kernel_hedgehog__ssm_conv_s4d__prompt"
OPT = dict(a.split('=') for a in sys.argv[1:] if '=' in a)
def opt(k, d): return type(d)(OPT.get(k, d))
STAMP = opt('stamp', 0)
ROT = opt('rot', 2)
def f2u(x): return struct.unpack('<I', struct.pack('<f', x))[0]
def vr(a, n): return f"v[{a}:{a+n-1}]" if n > 1 else f"v{a}"
def ar(a, n): return f"a[{a}:{a+n-1}]" if n > 1 else f"a{a}"
def sr(a, n): return f"s[{a}:{a+n-1}]" if n > 1 else f"s{a}"
def magic(d): return (2**32 + d - 1) // d

WS_KV = 0; WS_ZERO_END = 32 * 4096; WS_KVF = WS_ZERO_END; WS_KF = WS_KVF + 65536; WS_UF = WS_KF + 40960; WS_YF = WS_UF + 40960; WS_EP = WS_YF + 40960
WS_O = 262144; WS_STAMP = 4 << 20; WS_SIZE = 8 << 20
NSPARE = 48
NZERO_WG = 32
assert WS_EP + 128 <= WS_O
V_TOK = 253
P_X, P_W, P_PHI, P_WO, P_U, P_LA, P_AI, P_CR, P_CI, P_LDT, P_DS, P_OUT, P_DBG, P_WS = [8 + 2 * i for i in range(14)]
OOB = 0x80000000
SPIN = 400000

def srd(p, s, ptr, size, off=None):
    if off is None:
        p(f"s_mov_b32 s{s}, s{ptr}\n s_mov_b32 s{s+1}, s{ptr+1}")
    else:
        p(f"s_add_u32 s{s}, s{ptr}, {off}\n s_addc_u32 s{s+1}, s{ptr+1}, 0")
    p(f"s_mov_b32 s{s+2}, {size}\n s_mov_b32 s{s+3}, 0x20000")

nstamp = [0]
def stamp(p, sreg_base=96):
    if not STAMP: return
    k = nstamp[0]; nstamp[0] += 1
    if k in (0, 32): p(f"s_getreg_b32 s36, hwreg(HW_REG_HW_ID)\n v_writelane_b32 v255, s36, 60\n s_getreg_b32 s36, hwreg(HW_REG_XCC_ID)\n v_writelane_b32 v255, s36, 59")
    if k == 0: p(f"s_memrealtime s[36:37]\n s_waitcnt lgkmcnt(0)\n v_writelane_b32 v255, s36, 62")
    p(f"s_memtime s[36:37]\n s_waitcnt lgkmcnt(0)\n v_writelane_b32 v255, s36, {k}")
def stamp_store(p, wsrd):
    if not STAMP: return
    p(f"s_waitcnt vmcnt(0)\n s_memtime s[36:37]\n s_waitcnt lgkmcnt(0)\n v_writelane_b32 v255, s36, 61\n s_memrealtime s[36:37]\n s_waitcnt lgkmcnt(0)\n v_writelane_b32 v255, s36, 63")
    p(f"""s_lshl_b32 s36, s2, 2
    s_add_u32 s36, s36, s68
    s_lshl_b32 s36, s36, 8
    s_add_u32 s36, s36, {WS_STAMP}
    v_and_b32 v250, 63, v0
    v_lshlrev_b32 v250, 2, v250
    buffer_store_dword v255, v250, {sr(wsrd,4)}, s36 offen""")

def token_load(p, wsrd, vz):
    p(f"s_mov_b32 s4, {WS_EP}\n buffer_load_dword v{V_TOK}, v{vz}, {sr(wsrd,4)}, s4 offen sc1")
def token_make(p):
    p(f"""s_mov_b32 s4, 0x9e3779b1
    v_mul_lo_u32 v{V_TOK}, v{V_TOK}, s4
    v_add_u32 v{V_TOK}, 0x7f4a7c15, v{V_TOK}""")
def token_seen(p, dsrd, vt):
    p(f"""v_cmp_eq_u32 vcc, 0, v0
    v_mov_b32 v{vt}, {OOB:#x}
    v_mov_b32 v{V_CNT}, 1
    v_cndmask_b32_e64 v{vt}, v{vt}, 0, vcc
    buffer_atomic_add v{V_CNT}, v{vt}, {sr(dsrd,4)}, 8 offen sc1""")
def spinpoll(p, name, srdreg, soff, vt, va, cmp, init, period=None):
    period = period or opt('period', 24)
    p(f"v_mov_b32 v{vt}, {init}" if init is not None else f"v_not_b32 v{vt}, v{V_TOK}", tag='offpath')
    p(f"{name}:")
    p(f"""buffer_load_dword v{vt}, v{va}, {sr(srdreg,4)}, {soff} offen sc1
    s_mov_b32 s95, {period}""", tag='offpath')
    p(f"{name}_i:")
    p(f"""{cmp}
    s_sub_u32 s94, s94, 1
    s_cbranch_scc1 {name}_x
    s_cmp_eq_u64 vcc, -1
    s_cbranch_scc1 {name}_x
    s_sub_u32 s95, s95, 1
    s_cbranch_scc0 {name}_i
    s_waitcnt vmcnt(24)
    s_branch {name}""", tag='offpath')
    p(f"{name}_x:")
def pollall(p, name, srdreg, soff, vt, va, slp=0):
    p(f"s_mov_b32 s94, {SPIN}")
    p(f"{name}:")
    p(f"""buffer_load_dword v{vt}, v{va}, {sr(srdreg,4)}, {soff} offen sc1
    s_sub_u32 s94, s94, 1
    s_waitcnt vmcnt(0)
    v_cmp_eq_u32 vcc, v{V_TOK}, v{vt}
    s_cmp_eq_u32 s94, 0""")
    p(f"s_cbranch_scc1 {name}_x", tag='keep')
    p(f"s_cmp_eq_u64 vcc, -1")
    if slp:
        p(f"s_cbranch_scc1 {name}_x", tag='keep')
        p(f"s_sleep {slp}\n s_branch {name}", tag='keep')
    else: p(f"s_cbranch_scc0 {name}", tag='keep')
    p(f"{name}_x:")

A_RING = 0; NSLOT = 16; GR = 5120
A_PHIK = NSLOT * GR; PHI_RS = 352
A_VST = A_PHIK + 128 * PHI_RS
A_BD = A_VST + 20480
A_END = A_BD + 12800
A_KVIMG = A_PHIK
S_X, S_W, S_WO, S_WS, S_OUT, S_DBG, S_PHI = 40, 44, 48, 52, 56, 60, 64
V_XO = 1
V_XD = 5
V_WD = 9
V_TA = 14
V_Z = 22; V_T = 23
V_WF = 32
V_KA = 112; V_VA = 152; V_PA = 192; V_X = 240
OLD = 'sc1' if opt('osc1', 0) else ''

def mfma(p, d, a, b, c=None):
    p(f"v_mfma_f32_16x16x32_bf16 {d}, {a}, {b}, {d if c is None else c}")
def mfma32(p, d, a, b, c=None):
    p(f"v_mfma_f32_32x32x16_bf16 {d}, {a}, {b}, {d if c is None else c}")

LN = V_T; t = V_T + 1
parked = {}
def park(p, name, v):
    if name not in parked: parked[name] = 204 + len(parked)
    assert parked[name] < 256
    p(f"v_accvgpr_write_b32 a{parked[name]}, v{v}")
def unpark(q, name, v): q(f"v_accvgpr_read_b32 v{v}, a{parked[name]}")

def trbase(p, d, rowk, rowrho, extra=0):
    p(f"""v_bfe_u32 v{t}, v0, 5, 1
    v_mul_u32_u24 v{t}, {rowk}, v{t}
    v_bfe_u32 v{t+1}, v0, 2, 2
    v_mul_u32_u24 v{t+1}, {rowrho}, v{t+1}
    v_bfe_u32 v{t+2}, v0, 4, 1
    v_lshl_add_u32 v{t}, v{t+2}, 5, v{t}
    v_and_b32 v{t+2}, 3, v0
    v_lshl_add_u32 v{t}, v{t+2}, 3, v{t}
    v_add_u32 v{d}, v{t}, v{t+1}""")
    if extra: p(f"v_add_u32 v{d}, {extra}, v{d}")

def setup_g2(p):
    srd(p, S_WO, P_WO, 640 * 1280)
    srd(p, S_WS, P_WS, WS_SIZE)
    p(f"s_mul_i32 s78, s69, {128*2560}\n s_add_u32 s78, s78, s83")
    srd(p, S_OUT, P_OUT, 0, 's78')
    p(f"s_sub_u32 s{S_OUT+2}, {2048*2560}, s78")
    p(f"""s_lshr_b32 s79, s68, 1
    s_mul_i32 s79, s79, {80*1280}
    s_add_u32 s79, s79, s83
    s_and_b32 s85, s68, 1
    s_mul_i32 s85, s85, 40
    s_lshl_b32 s78, s69, 2
    s_add_u32 s78, s78, s68
    s_mul_i32 s78, s78, 40960
    s_add_u32 s92, s78, {WS_O}""")
    for i in range(5):
        p(f"""v_lshrrev_b32 v{t}, 3, v{LN}
        v_add_u32 v{t}, s85, v{t}
        v_add_u32 v{t}, {8*i}, v{t}
        v_lshrrev_b32 v{t+1}, 4, v{t}
        v_and_b32 v{t+2}, 7, v{t}
        v_lshl_add_u32 v{t+1}, v{t+1}, 3, v{t+2}
        v_bfe_u32 v{t+2}, v{t}, 3, 1
        v_mad_u32_u24 v{t+2}, v{t+2}, 20, v{t+1}
        v_add_u32 v{t+3}, 20, v{t+2}
        v_cmp_le_u32 vcc, 20, v{t+1}
        v_cndmask_b32 v{t+2}, v{t+2}, v{t+3}, vcc
        v_mul_u32_u24 v{t+2}, 1280, v{t+2}
        v_bfe_u32 v{t}, v{t}, 1, 1
        v_lshlrev_b32 v{t}, 2, v{t}
        v_and_b32 v{t+1}, 7, v0
        v_xor_b32 v{t}, v{t}, v{t+1}
        v_lshl_add_u32 v{t}, v{t}, 4, v{t+2}""")
        park(p, f'wo{i}', t)
    trbase(p, t + 3, 8 * 128, 128)
    p(f"""v_bfe_u32 v{t}, v0, 3, 1
    v_lshl_add_u32 v{t+3}, v{t}, 6, v{t+3}""")
    park(p, 'two', t + 3)
    p(f"""s_add_u32 s78, s84, {A_VST}
    v_and_b32 v{t}, 31, v0
    v_mul_u32_u24 v{t}, 144, v{t}
    v_bfe_u32 v{t+1}, v0, 5, 1
    v_lshl_add_u32 v{t}, v{t+1}, 3, v{t}
    v_add_u32 v{t}, s78, v{t}""")
    park(p, 'outw', t)
    p(f"""v_lshrrev_b32 v{t}, 3, v{LN}
    v_and_b32 v{t+1}, 7, v0
    v_lshlrev_b32 v{t+1}, 4, v{t+1}
    v_mul_u32_u24 v{t+2}, 144, v{t}
    v_add3_u32 v{t+2}, v{t+2}, v{t+1}, s78
    v_mul_u32_u24 v{t}, 2560, v{t}
    v_add_u32 v{t}, v{t}, v{t+1}""")
    park(p, 'outr', t + 2); park(p, 'outg', t)

def dma_bundles(G, hdr, items):
    B = []
    hdr(items[0][0]); B.append(hdr)
    for k, (m0, ld) in enumerate(items):
        q = Prog(); q(ld, tag=('dma', G))
        if k + 1 < len(items): q(items[k + 1][0])
        B.append(q)
    return B
def issue_group(G):
    slotbase = A_RING + (G % 4) * 4 * GR
    h = Prog()
    if G < 10:
        h(f"s_mul_i32 s86, s80, {64*3840}\n s_add_u32 s86, s86, s82\n s_lshl_b32 s81, s80, 7")
        h(f"s_add_u32 s80, s80, 1\n s_cmp_eq_u32 s80, 10\n s_cselect_b32 s80, 0, s80")
        sd = S_W
    elif G < 15:
        h(f"""s_lshl_b32 s86, s71, 1
        s_add_u32 s86, s86, s68
        s_add_u32 s86, s86, {4*(G-10)}
        s_sub_u32 s74, s86, 20
        s_cmp_ge_u32 s86, 20
        s_cselect_b32 s86, s74, s86
        s_mul_i32 s86, s86, {32*3840}
        s_add_u32 s86, s86, s75""")
        sd = S_W
    else:
        h(f"s_add_u32 s86, s79, {(G%4)*160*1280}")
        sd = S_WO
    W = [(f"s_add_u32 m0, s84, {slotbase + 1024*i}", f"buffer_load_dwordx4 v{V_QD[i] if 10 <= G < 15 else (V_WD+i if G < 10 else V_XO+i)}, {sr(sd,4)}, s86 offen {'nt' if opt('ntw', 0) else ''} lds") for i in range(5)]
    if G < 10:
        X = [(f"s_add_u32 m0, s87, {(G%4)*4096 + 1024*r}", f"buffer_load_dwordx4 v{V_XD+r}, {sr(S_X,4)}, s81 offen {'nt' if opt('ntx', 0) else ''} lds") for r in range(4)]
        items = [W[0], X[0], W[1], X[1], W[2], X[2], W[3], X[3], W[4]]
    else: items = W
    return dma_bundles(G, h, items)
V_QD = [21, 29, 30, 31, 252]

OF = lambda n: 88 + 4 * n
G2ACC = 56
def gemm2_tail(p):
    F = V_WF
    p("g2_tail:")
    unpark(p, 'two', V_TA)
    p(f"""v_xor_b32 v{V_TA+1}, 64, v{V_TA}
    v_add_u32 v{V_TA+2}, {8*GR}, v{V_TA}
    v_add_u32 v{V_TA+3}, {8*GR}, v{V_TA+1}
    v_lshlrev_b32 v{t+2}, 4, v{LN}
    v_lshrrev_b32 v{t+4}, 3, v{LN}
    v_mul_u32_u24 v{t+4}, 5120, v{t+4}
    v_and_b32 v{t}, 7, v0
    v_lshl_add_u32 v{t+4}, v{t}, 7, v{t+4}
    s_mov_b32 s94, {SPIN}
    s_add_u32 s93, s92, 4096
    s_barrier""")
    unpark(p, 'outw', t); unpark(p, 'outr', t + 1); unpark(p, 'outg', t + 3)
    stamp(p)
    def reads(n):
        hq, pp = divmod(n, 5); q = Prog(); fb = F + (n % 3) * 8
        off = hq * 10240 + pp * 2048; hi = 0
        if hq >= 4: off -= 8 * GR; hi = 2
        for T in range(2):
            for h in range(2):
                q(f"ds_read_b64_tr_b16 {vr(fb+4*T+2*h,2)}, v{V_TA+hi+T} offset:{off + 512*h}")
        return q
    p("g2_retry:")
    p.extend(reads(0)); p.extend(reads(1))
    p(f"s_mov_b32 s81, s92\n v_mov_b32 v248, 0")
    def oload(n):
        q = Prog(); hq, pp = divmod(n, 5)
        if pp == 4: q(f"s_add_u32 s85, s81, 4096")
        q(f"buffer_load_dwordx4 {vr(OF(n),4)}, v{t+2}, {sr(S_WS,4)}, {'s85' if pp == 4 else 's81'} offen offset:{1024*(pp%4)} sc1")
        if pp == 4: q("s_add_u32 s81, s81, 5120")
        return q
    PRE = opt('opre', 10); SPEC = opt('spec', 0)
    p(f"""buffer_load_dword v249, v{t+4}, {sr(S_WS,4)}, s93 offen sc1
    s_waitcnt vmcnt(0)
    v_cmp_ne_u32 vcc, -1, v249
    s_nop 1
    s_cmp_eq_u64 vcc, -1""")
    p("s_cbranch_scc1 g2_now", tag='keep')
    p("g2_poll:")
    if opt('gslp', 6): p(f"s_sleep {opt('gslp', 6)}")
    p(f"""buffer_load_dword v249, v{t+4}, {sr(S_WS,4)}, s93 offen sc1
    s_mov_b32 s81, s92
    s_sub_u32 s94, s94, 1""")
    if SPEC:
        for n in range(PRE): p.extend(oload(n))
    p(f"""v_cmp_ne_u32 vcc, -1, v249
    s_cmp_lt_i32 s94, 1""")
    p(f"s_cbranch_scc1 {'g2_go' if SPEC else 'g2_now'}", tag='keep')
    p("s_cmp_eq_u64 vcc, -1")
    p("s_cbranch_scc0 g2_poll", tag='keep')
    if SPEC: p("s_branch g2_go", tag='keep')
    p("g2_now:")
    for n in range(PRE):
        q = oload(n)
        if SPEC:
            for i_ in q.L: i_.tag = 'offpath'
        p.extend(q)
    p("g2_go:")
    stamp(p)
    for n in range(40):
        fb = F + (n % 3) * 8
        mm = Prog(); mm.need([vr(fb, 8), vr(OF(n), 4)])
        for T in range(2): mfma32(mm, vr(G2ACC + 16 * T, 16), vr(fb + 4 * T, 4), vr(OF(n), 4), '0' if n == 0 else None)
        st = []
        if n + 2 < 40: st.append((singles(reads(n + 2)), 0, 2))
        if n + PRE < 40: st.append(([oload(n + PRE)], 0, 1))
        c = Prog(); c(f"v_max3_u32 v248, v248, v{OF(n)}, v{OF(n)+1}\n v_max3_u32 v248, v248, v{OF(n)+2}, v{OF(n)+3}")
        st.append((singles(c), 1, 2))
        p.extend(pack(mm, st, cap=32))
    p(f"""v_cmp_eq_u32 vcc, -1, v248
    s_mul_i32 s78, s68, {32*2560}
    s_cmp_lt_i32 s94, 1""")
    p("s_cbranch_scc1 g2_out", tag='keep')
    p("s_sub_u32 s94, s94, 1\n s_nop 7\n s_nop 7")
    p("s_cbranch_vccnz g2_retry", tag='keep')
    p("g2_out:")
    stamp(p)
    for T in range(2):
        for j in range(4):
            x = G2ACC + 16 * T + 4 * j; o = 88 + 8 * T + 2 * j
            p(f"v_cvt_pk_bf16_f32 v{o}, v{x}, v{x+1}\n v_cvt_pk_bf16_f32 v{o+1}, v{x+2}, v{x+3}")
            p(f"ds_write_b64 v{t}, {vr(o,2)} offset:{64*T+16*j}")
    for i in range(4): p(f"ds_read_b128 {vr(104+4*i,4)}, v{t+1} offset:{8*144*i}")
    for i in range(4):
        p(f"buffer_store_dwordx4 {vr(104+4*i,4)}, v{t+3}, {sr(S_OUT,4)}, s78 offen {OPT.get('ast', 'sc1')}")
        if i < 3: p(f"s_add_u32 s78, s78, {8*2560}")
    stamp(p)
    stamp_store(p, S_WS)
    p("s_endpgm")

def divc(p, d, x, c):
    m, sh = {10: (205, 11), 20: (205, 12), 12: (171, 11), 5: (205, 10), 100: (41, 12)}[c]
    p(f"v_mul_u32_u24 v{d}, {m}, v{x}\n v_lshrrev_b32 v{d}, {sh}, v{d}")

V_PO = 160
V_D = 200
NPG = opt('npg', 6); XM = opt('xm', 0); YT = opt('yt', 1); UT = opt('ut', 0)
def decode_ab(p, tmp, sub, sb, hg):
    p(f"s_lshr_b32 {tmp}, s2, 3")
    if sub: p(f"s_sub_u32 {tmp}, {tmp}, {sub}")
    if XM == 0:
        p(f"""s_and_b32 s{sb}, s2, 6
        s_lshl_b32 s{sb}, s{sb}, 1
        s_and_b32 s{hg}, s2, 1
        s_lshl_b32 s{hg}, s{hg}, 2
        s_and_b32 s4, {tmp}, 3
        s_add_u32 s{hg}, s{hg}, s4
        s_lshr_b32 {tmp}, {tmp}, 2
        s_add_u32 s{sb}, s{sb}, {tmp}""")
    else:
        p(f"""s_and_b32 s{sb}, s2, 7
        s_lshl_b32 s{sb}, s{sb}, 1
        s_and_b32 s{hg}, {tmp}, 7
        s_lshr_b32 {tmp}, {tmp}, 3
        s_add_u32 s{sb}, s{sb}, {tmp}""")
def role_A():
    p = Prog(); nstamp[0] = 0
    p("roleA:")
    stamp(p)
    decode_ab(p, 's73', 0, 69, 70)
    if ROT == 2:
        p("""s_add_u32 s71, s69, s70
        s_mul_i32 s71, s71, 3
        s_mul_i32 s74, s71, 205
        s_lshr_b32 s74, s74, 11
        s_mul_i32 s74, s74, 10
        s_sub_u32 s71, s71, s74""")
    else:
        p(f"s_mul_i32 s71, s71, {5 if ROT else 0}\n s_add_u32 s71, s71, {1 if ROT else 0}\n s_lshr_b32 s71, s71, 1")
    p(f"""v_and_b32 v{LN}, 63, v0
    v_mov_b32 v{V_Z}, 0""")
    p(f"""s_lshl_b32 s76, s68, 5
    v_lshrrev_b32 v{t}, 3, v{LN}
    v_add_u32 v{t}, s76, v{t}
    v_mul_u32_u24 v{t}, 1280, v{t}
    v_and_b32 v{t+1}, 7, v0
    v_bfe_u32 v{t+2}, v0, 4, 2
    v_xor_b32 v{t+1}, v{t+1}, v{t+2}
    v_lshl_add_u32 v{V_XD}, v{t+1}, 4, v{t}
    v_xor_b32 v{V_XD+1}, 64, v{V_XD}
    v_add_u32 v{V_XD+1}, {8*1280}, v{V_XD+1}
    v_add_u32 v{V_XD+2}, {16*1280}, v{V_XD}
    v_add_u32 v{V_XD+3}, {16*1280}, v{V_XD+1}""")
    p(f"s_movk_i32 s78, 1120")
    for i in range(5):
        p(f"v_add_u32 v{t}, {64*i}, v{LN}")
        divc(p, t + 1, t, 20)
        p(f"""v_mul_u32_u24 v{t+2}, 20, v{t+1}
        v_sub_u32 v{t}, v{t}, v{t+2}
        v_mul_u32_u24 v{t+1}, 3840, v{t+1}
        v_cmp_le_u32 vcc, 10, v{t}
        v_lshl_add_u32 v{t+1}, v{t}, 4, v{t+1}
        v_add_u32 v{t+2}, s78, v{t+1}
        v_cndmask_b32 v{V_WD+i}, v{t+1}, v{t+2}, vcc""")
    p(f"""s_mov_b32 s80, s71
    s_mul_i32 s75, s70, 160
    s_mul_i32 s82, s68, {16*3840}
    s_add_u32 s82, s82, s75
    s_add_u32 s82, s82, 1280
    s_lshl_b32 s83, s70, 7
    s_mul_i32 s84, s68, {GR}
    s_lshl_b32 s87, s68, 14
    s_add_u32 s87, s87, {A_PHIK}
    s_mul_i32 s78, s69, {128*1280}""")
    srd(p, S_X, P_X, 128 * 1280, 's78')
    srd(p, S_W, P_W, 640 * 3840)
    su = Prog()
    trbase(su, V_TA, 8 * 320, 320)
    su(f"""v_add_u32 v{V_TA+1}, {8*GR}, v{V_TA}
    v_and_b32 v{t}, 31, v0
    v_bfe_u32 v{t+1}, v0, 1, 3
    v_bfe_u32 v{t+2}, v0, 5, 1
    v_xor_b32 v{t+1}, v{t+1}, v{t+2}
    v_lshlrev_b32 v{t+1}, 4, v{t+1}
    v_lshl_add_u32 v{t}, v{t}, 7, v{t+1}
    v_add_u32 v{V_XO}, s87, v{t}
    v_xor_b32 v{V_XO+1}, 32, v{V_XO}
    v_xor_b32 v{V_XO+2}, 64, v{V_XO}
    v_xor_b32 v{V_XO+3}, 96, v{V_XO}""")
    su(f"""v_mov_b32 v{V_X+4}, 0
    v_mov_b32 v{V_X+5}, 0
    v_mov_b32 v{V_X+6}, 0
    v_mov_b32 v{V_X+7}, 0
    v_lshlrev_b32 v{t}, 4, v0
    v_add_u32 v{t}, {A_BD}, v{t}
    v_min_u32 v{t+1}, {A_BD+496}, v{t}
    ds_write_b128 v{t}, {vr(V_X+4,4)}
    ds_write_b128 v{t}, {vr(V_X+4,4)} offset:4096
    ds_write_b128 v{t}, {vr(V_X+4,4)} offset:8192
    ds_write_b128 v{t+1}, {vr(V_X+4,4)} offset:12288""")
    L2E = 1.4426950408889634
    su(f"s_mov_b32 s88, {f2u(L2E):#x}\n s_mov_b32 s89, {f2u(L2E):#x}")
    for r in range(2):
        su(f"v_add_u32 v{t}, {256*r}, v0")
        divc(su, t + 1, t, 5); divc(su, t + 2, t, 100)
        su(f"""v_mul_u32_u24 v{t+1}, 120, v{t+1}
        v_mad_u32_u24 v{t+1}, v{t+2}, 40, v{t+1}
        v_lshl_add_u32 v{t+1}, v{t}, 3, v{t+1}
        v_add_u32 v{V_X+8+r}, {A_BD}, v{t+1}""")
    su(f"""v_mov_b32 v{t+1}, {A_END}
    v_cmp_gt_u32 vcc, 400, v{t}
    v_cndmask_b32 v{V_X+9}, v{t+1}, v{V_X+9}, vcc""")
    srd(su, S_DBG, P_DBG, 256)
    for i in range(5):
        su(f"v_add_u32 v{t}, {64*i}, v{LN}")
        divc(su, t + 1, t, 10)
        su(f"""v_mul_u32_u24 v{t+2}, 10, v{t+1}
        v_sub_u32 v{t}, v{t}, v{t+2}
        v_and_b32 v{t+2}, 24, v{t+1}
        v_and_b32 v{t+3}, 1, v{t+1}
        v_lshl_add_u32 v{t+2}, v{t+3}, 2, v{t+2}
        v_bfe_u32 v{t+3}, v{t+1}, 1, 2
        v_add_u32 v{t+2}, v{t+2}, v{t+3}
        v_mul_u32_u24 v{t+2}, 3840, v{t+2}
        v_lshl_add_u32 v{V_QD[i]}, v{t}, 4, v{t+2}""")
    su(f"""v_bfe_u32 v{t}, v0, 5, 1
    v_bfe_u32 v{t+1}, v0, 2, 2
    v_lshl_add_u32 v{t}, v{t}, 2, v{t+1}
    v_mul_u32_u24 v{t}, 160, v{t}
    v_and_b32 v{t+1}, 1, v0
    v_mad_u32_u24 v{t}, v{t+1}, 40, v{t}
    v_bfe_u32 v{t+1}, v0, 4, 1
    v_bfe_u32 v{t+2}, v0, 1, 1
    v_lshl_add_u32 v{t+1}, v{t+1}, 1, v{t+2}
    v_lshl_add_u32 v{t}, v{t+1}, 3, v{t}
    v_add_u32 v18, {A_BD}, v{t}
    v_cmp_eq_u32 vcc, 0, v{t+1}
    v_add_u32 v19, 32, v18
    v_add_u32 v{t+2}, 72, v18
    v_cndmask_b32 v19, v{t+2}, v19, vcc
    v_cmp_gt_u32 vcc, 2, v{t+1}
    v_add_u32 v20, 104, v18
    v_nop
    v_cndmask_b32 v20, v18, v20, vcc""".replace("    v_nop\n", ""))
    trbase(su, t + 3, 8 * 160, 320); park(su, 'tq', t + 3)
    a0 = V_PA
    su(f"""v_and_b32 v{t}, 31, v0
    v_add_u32 v{t}, s76, v{t}
    v_bfe_u32 v{t+1}, v0, 5, 1
    v_mul_u32_u24 v{t+2}, {PHI_RS}, v{t}
    v_add_u32 v{t+2}, {A_PHIK}, v{t+2}
    v_bfe_u32 v{t+3}, v0, 2, 1
    v_mul_u32_u24 v{t+4}, 5, v{t+1}
    v_xor_b32 v{a0}, v{t+4}, v{t+3}
    v_lshl_add_u32 v{a0}, v{a0}, 4, v{t+2}
    v_add_u32 v{t+4}, 1, v{t+4}
    v_xor_b32 v{a0+1}, v{t+4}, v{t+3}
    v_lshl_add_u32 v{a0+1}, v{a0+1}, 4, v{t+2}
    v_mul_u32_u24 v{t}, 160, v{t}
    v_add_u32 v{t}, {A_VST}, v{t}
    v_bfe_u32 v{t+3}, v0, 2, 2
    v_xor_b32 v{t+3}, v{t+3}, v{t+1}
    v_lshl_add_u32 v{a0+2}, v{t+3}, 3, v{t}
    v_xor_b32 v{t+3}, 2, v{t+3}
    v_lshl_add_u32 v{a0+3}, v{t+3}, 3, v{t}""")
    park(su, 'phiw0', a0); park(su, 'phiw1', a0 + 1); park(su, 'vw0', a0 + 2); park(su, 'vw1', a0 + 3)
    su(f"""v_bfe_u32 v{t}, v0, 2, 4
    v_bfe_u32 v{t+1}, v0, 4, 2
    s_mul_i32 s78, s68, 5
    v_bfe_u32 v{t+2}, v0, 1, 1
    v_add_u32 v{t+2}, s78, v{t+2}
    v_and_b32 v{t+3}, 1, v{t+1}
    v_xor_b32 v{t+2}, v{t+2}, v{t+3}
    v_and_b32 v{t+3}, 1, v0
    v_lshlrev_b32 v{t+3}, 3, v{t+3}
    v_lshl_add_u32 v{t+2}, v{t+2}, 4, v{t+3}
    v_mul_u32_u24 v{t+3}, {PHI_RS}, v{t}
    v_add_u32 v{t+2}, v{t+2}, v{t+3}
    v_add_u32 v{a0}, {A_PHIK}, v{t+2}
    v_mul_u32_u24 v{t}, 160, v{t}
    v_add_u32 v{t}, {A_VST}, v{t}
    v_and_b32 v{t+2}, 3, v0
    v_add_u32 v{t+2}, s78, v{t+2}
    v_xor_b32 v{t+2}, v{t+2}, v{t+1}
    v_lshl_add_u32 v{a0+1}, v{t+2}, 3, v{t}
    s_add_u32 s78, s78, 4
    v_xor_b32 v{t+2}, s78, v{t+1}
    v_lshl_add_u32 v{a0+2}, v{t+2}, 3, v{t}""")
    park(su, 'phir', a0); park(su, 'vr0', a0 + 1); park(su, 'vr1', a0 + 2)
    a0 = V_PA
    su(f"""v_and_b32 v{t+3}, 15, v0
    v_bfe_u32 v{t+4}, v0, 4, 2
    v_cmp_gt_u32 s[90:91], 8, v{t+3}
    v_lshlrev_b32 v{t}, 2, v{t+3}
    v_mul_u32_u24 v{t+1}, 768, v{t+4}
    v_add_u32 v{a0}, v{t}, v{t+1}
    v_add_u32 v{t+1}, {192-32}, v{a0}
    v_cndmask_b32 v{a0+1}, v{t+1}, v{a0}, s[90:91]
    v_mul_u32_u24 v{t+1}, 192, v{t+4}
    v_add_u32 v{t+1}, {16*192}, v{t+1}
    v_add_u32 v{a0+2}, v{t+1}, v{t}
    v_mov_b32 v{t+2}, {OOB:#x}
    v_cmp_gt_u32 vcc, 40, v{LN}
    v_cndmask_b32 v{a0+3}, v{t+2}, v{a0+2}, s[90:91]
    v_lshlrev_b32 v{t+1}, 2, v{LN}
    v_add_u32 v{t+1}, {20*192}, v{t+1}
    v_cndmask_b32 v{a0+4}, v{t+2}, v{t+1}, vcc
    v_cmp_eq_u32 vcc, 0, v{LN}
    v_cmp_gt_u32 s[90:91], 4, v{t+3}
    v_cndmask_b32 v{a0+6}, v{t+2}, v{V_Z}, vcc""")
    for k in range(5): park(su, f'at{k}', a0 + k)
    park(su, 'l0', a0 + 6)
    su(f"s_mul_i32 s85, s68, 1920\n s_add_u32 s85, s85, {A_KVIMG}\n v_mov_b32 v{t+4}, {A_KVIMG+9600}")
    for i in range(4):
        su(f"v_add_u32 v{t}, {64*i}, v{LN}")
        divc(su, t + 1, t, 12)
        su(f"""v_mul_u32_u24 v{t+2}, 12, v{t+1}
        v_sub_u32 v{t+2}, v{t}, v{t+2}
        v_cmp_gt_u32 vcc, 10, v{t+2}
        v_mul_u32_u24 v{t+1}, 80, v{t+1}
        v_lshl_add_u32 v{t+1}, v{t+2}, 3, v{t+1}
        v_add_u32 v{t+1}, s85, v{t+1}
        v_cndmask_b32 v{t+1}, v{t+4}, v{t+1}, vcc""")
        if i == 3: su(f"v_cmp_gt_u32 vcc, 60, v{LN}\n v_cndmask_b32 v{t+1}, v{t+4}, v{t+1}, vcc")
        park(su, f'kvw{i}', t + 1)
    su(f"""v_cmp_gt_u32 vcc, 120, v0
    v_lshlrev_b32 v{t}, 4, v0
    v_add_u32 v{t}, {A_KVIMG+7680}, v{t}
    v_cndmask_b32 v{t}, v{t+4}, v{t}, vcc""")
    park(su, 'kvz', t)
    su(f"""v_bfe_u32 v{t}, v0, 3, 2
    v_and_b32 v{t+1}, 3, v0
    v_lshl_add_u32 v{t}, v{t}, 2, v{t+1}
    v_mul_u32_u24 v{t}, 80, v{t}
    v_bfe_u32 v{t+1}, v0, 2, 1
    v_bfe_u32 v{t+4}, v0, 5, 1
    v_cmp_eq_u32 vcc, v{t+1}, v{t+4}
    v_mul_u32_u24 v{t+2}, 1920, v{t+1}
    v_add_u32 v{t}, v{t}, v{t+2}
    v_add_u32 v{t}, {A_KVIMG}, v{t}
    v_add_u32 v{t+3}, 3840, v{t}
    v_mov_b32 v{t+2}, {A_KVIMG+7680}
    v_cndmask_b32 v{t}, v{t+2}, v{t}, vcc
    v_cndmask_b32 v{t+3}, v{t+2}, v{t+3}, vcc""")
    park(su, 'kvr0', t); park(su, 'kvr1', t + 3)
    setup_g2(su)
    wl = Prog()
    wl("s_mul_i32 s77, s70, 3200")
    srd(wl, S_PHI, P_PHI, 3200, 's77')
    wl(f"""v_lshlrev_b32 v{V_X+10}, 3, v0
    buffer_load_dwordx2 {vr(V_X,2)}, v{V_X+10}, {sr(S_PHI,4)}, 0 offen
    buffer_load_dwordx2 {vr(V_X+2,2)}, v{V_X+10}, {sr(S_PHI,4)}, 0 offen offset:2048""")
    token_load(su, S_WS, V_Z)
    iss = issue_group(0) + [wl]
    sub = bundles(su)
    LEAD = opt('lead', 7)
    per = opt('suchunk', 30)
    for k, b in enumerate(iss):
        p.extend(b)
        if k >= LEAD:
            for x in sub[:per]: p.extend(x)
            sub = sub[per:]
    for x in sub: p.extend(x)
    if NPG:
        for w_ in range(4):
            p(f"s_cmp_lg_u32 s68, {w_}")
            p(f"s_cbranch_scc1 a_t{w_}", tag='keep')
            for k in range(w_, NPG, 4): p(f"s_call_b64 s[4:5], pg{k}", tag='keep')
            p(f"a_t{w_}:")
    for b in issue_group(1): p.extend(b)
    stamp(p)

    def sync(p, G):
        p.waitvm(('dma', G)); p("s_barrier")
    p("s_waitcnt lgkmcnt(0)")
    sync(p, 0)
    stamp(p)
    FD = 2
    def kv_reads(k):
        q = Prog(); fb = V_WF + (k % 3) * 20
        slot = k % NSLOT; base = V_TA + (slot >= 8); so = (slot % 8) * GR
        q(f"ds_read_b128 {ar(4*k,4)}, v{V_XO+k%4} offset:{((k//4)%4)*4096}")
        for T in range(5):
            for h in range(2):
                q(f"ds_read_b64_tr_b16 {vr(fb+4*T+2*h,2)}, v{base} offset:{so + 1280*h + 64*T}")
        return q
    PH = [(0, 0), (0, 1), (0, 2), (1, 0), (1, 1), (1, 2), (1, 3), (1, 4), (2, 2), (2, 3), (2, 4)]
    bdr = Prog()
    for n, (U, ka) in enumerate(PH):
        for h in range(2): bdr(f"ds_read_b64_tr_b16 {ar(160+4*n+2*h,2)}, v{18+U} offset:{(16*ka+8*h)*160}")
    bdr = singles(bdr)
    for k in range(FD): p.extend(kv_reads(k))
    segs = [list(range(0, 4 - FD))] + [list(range(4 * G - FD, 4 * G + 4 - FD)) for G in range(1, 10)] + [list(range(40 - FD, 40))]
    for si, steps in enumerate(segs):
        if si >= 1:
            if si == 10: p("s_waitcnt lgkmcnt(0)")
            if STAMP == 2: stamp(p)
            sync(p, si)
        m = Prog(); st = []
        for n, k in enumerate(steps):
            fb = V_WF + (k % 3) * 20
            m.need([vr(fb, 20), ar(4 * k, 4)])
            for T in range(5): mfma32(m, vr(V_KA + 16 * T, 16), vr(fb + 4 * T, 4), ar(4 * k, 4), '0' if k == 0 else None)
            if k + FD < 40: st.append((singles(kv_reads(k + FD)), 5 * n, 5 * n + 5))
        st.append((issue_group(si + 2), 0, None))
        if si == 1:
            w = Prog(); w(f"ds_write_b64 v{V_X+8}, {vr(V_X,2)}\n ds_write_b64 v{V_X+9}, {vr(V_X+2,2)}")
            st.append((singles(w), 2, 12))
        if si == 2:
            w = Prog(); token_make(w); st.append((singles(w), 0, None))
        if si == 8:
            w = Prog(); w(f"buffer_load_dword v{V_X+10}, v{V_Z}, {sr(S_DBG,4)}, 0 offen sc1")
            st.append(([w], 0, 1))
        if si == 10:
            w = Prog(); unpark(w, 'vw0', t + 1); unpark(w, 'vw1', t + 3); unpark(w, 'phiw0', t + 2); unpark(w, 'phiw1', V_X + 11); unpark(w, 'tq', V_TA + 2)
            w(f"v_add_u32 v{V_TA+3}, {8*GR}, v{V_TA+2}")
            for i in range(5): unpark(w, f'wo{i}', V_XO + i)
            w(f"""v_lshlrev_b32 v{t}, 4, v{LN}
            s_mul_i32 s77, s70, 5120
            s_add_u32 s77, s77, s92
            s_add_u32 s78, s77, 4096""")
            st.append((singles(w), 0, None)); st.append((bdr, 0, None))
        p.extend(pack(m, st))
    stamp(p)

    def phi_step(p, acc, out, extra=None, inexp=None):
        B = V_WF; E = V_WF + 24; M = V_WF + 64
        cv = [f"v_cvt_pk_bf16_f32 v{B+k}, v{acc+2*k}, v{acc+2*k+1}" for k in range(20)]
        def minmax(y):
            q = Prog(); x = V_PA + y * 20; Mx = M + 8 * y
            q(f"v_max3_f32 v{Mx}, v{x}, v{x+1}, v{x+2}\n v_min3_f32 v{Mx+2}, v{x}, v{x+1}, v{x+2}")
            for k in range(3, 19, 2):
                q(f"v_max3_f32 v{Mx}, v{Mx}, v{x+k}, v{x+k+1}\n v_min3_f32 v{Mx+2}, v{Mx+2}, v{x+k}, v{x+k+1}")
            q(f"v_max_f32 v{Mx}, v{Mx}, v{x+19}\n v_min_f32 v{Mx+2}, v{Mx+2}, v{x+19}")
            q(f"v_mul_f32 v{Mx}, s88, v{Mx}\n v_mul_f32 v{Mx+2}, s88, v{Mx+2}")
            return q
        for c in cv[:8]: p(c)
        m = Prog(); seen = set()
        for n, (U, ka) in enumerate(PH):
            mfma32(m, vr(V_PA + 16 * U, 16), ar(160 + 4 * n, 4), vr(B + 4 * ka, 4), None if U in seen else '0'); seen.add(U)
        c2 = Prog()
        for c in cv[8:]: c2(c)
        st = [(singles(c2), 0, 2)]
        if extra: st.append((bundles(extra), 2, 11))
        p.extend(pack(m, st, cap=28))
        for y in range(2):
            x = V_PA + y * 20; Mx = M + 8 * y
            p.extend(minmax(y))
            for q in range(10):
                p(f"v_pk_fma_f32 {vr(E+2*q,2)}, {vr(x+2*q,2)}, s[88:89], {vr(Mx,2)} op_sel_hi:[1,1,0] neg_lo:[0,0,1] neg_hi:[0,0,1]")
                p(f"v_pk_fma_f32 {vr(E+20+2*q,2)}, {vr(x+2*q,2)}, s[88:89], {vr(Mx+2,2)} op_sel_hi:[1,1,0] neg_lo:[1,0,0] neg_hi:[1,0,0]")
            for q in range(40):
                p(f"v_exp_f32 v{E+q}, v{E+q}")
                if y == 0 and inexp and q % 6 == 5: p.extend(inexp.pop(0))
            for q in range(1, 10):
                for hh in range(2):
                    S = Mx + 4 + 2 * hh; e = E + 20 * hh
                    p(f"v_pk_add_f32 {vr(S,2)}, {vr(e if q == 1 else S,2)}, {vr(e+2*q,2)}")
            p(f"v_add_f32 v{Mx+4}, v{Mx+4}, v{Mx+5}\n v_add_f32 v{Mx+6}, v{Mx+6}, v{Mx+7}")
            p(f"v_rcp_f32 v{Mx+4}, v{Mx+4}\n v_rcp_f32 v{Mx+6}, v{Mx+6}")
            for hh in range(2):
                for q in range(10):
                    e = E + 20 * hh + 2 * q
                    p(f"v_pk_mul_f32 {vr(e,2)}, {vr(e,2)}, {vr(Mx+4+2*hh,2)} op_sel_hi:[1,0]")
            yield y
            for q in range(20):
                p(f"v_cvt_pk_bf16_f32 v{out+y*20+q}, v{E+2*q}, v{E+2*q+1}")

    def q_reads(k):
        q = Prog(); fb = V_WF + (k % 3) * 12
        slot = (40 + k // 2) % NSLOT; base = V_TA + 2 + (slot >= 8); so = (slot % 8) * GR + (k % 2) * 2560
        for T in range(3):
            for h in range(2):
                q(f"ds_read_b64_tr_b16 {vr(fb+4*T+2*h,2)}, v{base} offset:{so + 160*h + 64*T}")
        return q
    ex = Prog()
    for mm_ in range(10):
        a = V_VA + 4 * mm_; d = V_X + 2 * (mm_ % 4)
        ex(f"v_cvt_pk_bf16_f32 v{d}, v{a}, v{a+1}\n v_cvt_pk_bf16_f32 v{d+1}, v{a+2}, v{a+3}\n ds_write_b64 v{t+1+2*(mm_%2)}, {vr(d,2)} offset:{32*(mm_//2)}")
    w = Prog(); w0 = Prog()
    for k in range(4): w0(f"v_mov_b32 v{V_X+4+k}, -1")
    for pc in range(5):
        w(f"buffer_store_dwordx4 {vr(V_X+4,4)}, v{t}, {sr(S_WS,4)}, {'s78' if pc == 4 else 's77'} offen offset:{1024*(pc%4)} sc1")
    for y in phi_step(p, V_KA, V_PO, ex, [w0] + singles(w)):
        if y == 1:
            p.extend(q_reads(0));
    p.extend(q_reads(1))
    stamp(p)
    p(f"""v_readfirstlane_b32 s95, v{V_X+10}
    s_mov_b32 s94, {SPIN}
    s_cmp_ge_u32 s95, {NZERO_WG}""")
    p("s_cbranch_scc1 a_pz_x", tag='keep')
    p("a_pz:")
    p(f"""buffer_load_dword v{V_X+10}, v{V_Z}, {sr(S_DBG,4)}, 0 offen sc1
    s_sub_u32 s94, s94, 1
    s_waitcnt vmcnt(0)
    v_readfirstlane_b32 s95, v{V_X+10}
    s_cmp_eq_u32 s94, 0""", tag='offpath')
    p("s_cbranch_scc1 a_pz_x", tag='keep')
    p(f"s_cmp_ge_u32 s95, {NZERO_WG}")
    p("s_cbranch_scc0 a_pz", tag='keep')
    p("a_pz_x:")
    pw = Prog()
    for y in range(2):
        for q in range(5): pw(f"ds_write_b128 v{V_X+11 if q % 2 else t+2}, {vr(V_PO+y*20+4*q,4)} offset:{160*y + 32*(q//2)}")
    pre = Prog()
    unpark(pre, 'phir', t); unpark(pre, 'vr0', t + 1); unpark(pre, 'vr1', t + 3)
    pre(f"v_mov_b32 v{t+4}, 0x3f803f80")
    for k in range(5): unpark(pre, f'at{k}', V_X + k)
    pre(f"""s_lshl_b32 s78, s70, 2
    s_add_u32 s78, s78, s68
    s_lshl_b32 s78, s78, 12
    s_add_u32 s78, s78, {WS_KV}""")
    KF = [72, 92, V_PO, V_PO + 20]
    def kvs_reads(sw):
        q = Prog(); fb = KF[sw]
        for h in range(2): q(f"ds_read_b64_tr_b16 {vr(fb+4+2*h,2)}, v{t+3} offset:{(sw*32+h*16)*160}")
        for h in range(2): q(f"ds_read_b64_tr_b16 {vr(fb+2*h,2)}, v{t+1} offset:{(sw*32+h*16)*160}")
        for nf in range(3):
            for h in range(2):
                q(f"ds_read_b64_tr_b16 {vr(fb+8+4*nf+2*h,2)}, v{t} offset:{(sw*32+h*16)*PHI_RS + 32*nf}")
        return q
    def kvs_mfma(m, sw):
        fb = KF[sw]
        m.need([vr(fb, 20)])
        for q in range(4): m(f"v_cndmask_b32 v{fb+4+q}, v{t+4}, v{fb+4+q}, s[90:91]")
        for md in range(2):
            for nf in range(3):
                mfma(m, vr(V_D + (3 * md + nf) * 4, 4), vr(fb + 4 * md, 4), vr(fb + 8 + 4 * nf, 4), '0' if sw == 0 else None)
    at = Prog(); a0 = V_X
    def atom(v, vo, off): at(f"buffer_atomic_add_f32 v{v}, v{vo}, {sr(S_WS,4)}, s78 offen offset:{off}", tag='kvat')
    for nf in range(2):
        for i in range(4): atom(V_D + 4 * nf + i, a0, i * 192 + nf * 64)
    R = lambda nf, i: V_D + 12 + 4 * nf + i
    for i in (0, 2):
        at(f"v_mov_b32_dpp v{V_D+8+i}, v{V_D+9+i} row_shr:8 row_mask:0xf bank_mask:0xc")
    for nf in range(3):
        at(f"v_permlane16_swap_b32 v{R(nf,0)}, v{R(nf,1)}\n v_permlane16_swap_b32 v{R(nf,2)}, v{R(nf,3)}")
    for i in (0, 2): atom(V_D + 8 + i, a0 + 1, i * 192 + 128)
    for nf in range(3): at(f"v_permlane32_swap_b32 v{R(nf,0)}, v{R(nf,2)}")
    at(f"v_permlane16_swap_b32 v{R(0,1)}, v{R(1,1)}")
    for nf in range(3): atom(R(nf, 0), a0 + (3 if nf == 2 else 2), nf * 64)
    at(f"v_permlane32_swap_b32 v{R(0,1)}, v{R(2,1)}")
    atom(R(0, 1), a0 + 4, 0)
    KS = opt('ks', 4)
    segs = [list(range(0, 6))] + [list(range(8 * g - 2, 8 * g + 6)) for g in range(1, 5)] + [[38, 39]]
    def signal():
        unpark(p, 'l0', V_X + 7)
        p(f"""s_lshl_b32 s78, s70, 13
        s_lshl_b32 s85, s69, 9
        s_add_u32 s78, s78, s85
        s_lshl_b32 s85, s68, 7
        s_add_u32 s78, s78, s85
        s_add_u32 s78, s78, {WS_KVF}""")
        p.waitvm('kvat')
        p(f"buffer_store_dword v{V_TOK}, v{V_X+7}, {sr(S_WS,4)}, s78 offen sc1")
    def qstep(k):
        m = Prog(); fb = V_WF + (k % 3) * 12
        m.need([vr(fb, 12)])
        for T in range(3): mfma32(m, vr(V_KA + 16 * T, 16), vr(fb + 4 * T, 4), ar(4 * k, 4), '0' if k == 0 else None)
        return m
    def qrun(steps, extra):
        m = Prog(); st = []
        for n, k in enumerate(steps):
            m.extend(qstep(k))
            if k + 2 < 40: st.append((singles(q_reads(k + 2)), 3 * n, 3 * n + 3))
        p.extend(pack(m, st + extra, cap=28))
    NW = opt('nw', 4)
    qrun(range(0, NW), [(singles(pw), 0, 3 * NW - 2), (bundles(pre), 2, None)])
    if STAMP == 3: stamp(p)
    p("s_waitcnt lgkmcnt(0)\n s_barrier")
    kr = Prog()
    for sw in range(4): kr.extend(kvs_reads(sw))
    kr = singles(kr)
    for x in kr[:10]: p.extend(x)
    qrun(range(NW, 6), [(kr[10:], 0, None)])
    m = Prog()
    for sw in range(4): kvs_mfma(m, sw)
    p.extend(pack(m, [(issue_group(13), 0, 20)], cap=8))
    if STAMP == 3: stamp(p)
    for si, steps in enumerate(segs):
        G = 10 + si
        if si == 0: continue
        if STAMP == 3 and si > 1: stamp(p)
        if si == KS: signal()
        if G < 15: sync(p, G)
        if si == 1: qrun(steps, [(singles(at), 0, opt('atspan', 24))])
        elif si < 5: qrun(steps, [(issue_group(G + 2), 0, None)])
        else: qrun(steps, [])
    if KS == 6: signal()
    stamp(p)
    F = V_WF
    ex = Prog()
    unpark(ex, 'kvz', t)
    ex(f"""v_mov_b32 v{V_X}, 0
    v_mov_b32 v{V_X+1}, 0
    v_mov_b32 v{V_X+2}, 0
    v_mov_b32 v{V_X+3}, 0
    ds_write_b128 v{t}, {vr(V_X,4)}
    v_lshlrev_b32 v{t+1}, 7, v{LN}
    v_lshlrev_b32 v{t+2}, 4, v{LN}
    s_lshl_b32 s78, s70, 13
    s_add_u32 s78, s78, {WS_KVF}
    s_lshl_b32 s77, s70, 2
    s_add_u32 s77, s77, s68
    s_lshl_b32 s77, s77, 12
    s_add_u32 s77, s77, {WS_KV}""")
    for i in range(4): unpark(ex, f'kvw{i}', V_X + 4 + i)
    KL = V_KA + 32
    def kvloads(tag=None):
        for i in range(4):
            p(f"buffer_load_dwordx4 {vr(KL+4*i,4)}, v{t+2}, {sr(S_WS,4)}, s77 offen offset:{1024*i} sc1", tag=tag)
    ex(f"""buffer_load_dword v{V_X+8}, v{t+1}, {sr(S_WS,4)}, s78 offen sc1
    v_and_b32 v{t+3}, 7, v0
    v_lshlrev_b32 v{t+3}, 13, v{t+3}
    s_lshl_b32 s93, s69, 9
    s_lshl_b32 s81, s68, 7
    s_add_u32 s93, s93, s81
    s_add_u32 s93, s93, {WS_KVF}""")
    for y in phi_step(p, V_KA, V_PO, ex):
        if y == 0:
            p(f"v_cmp_eq_u32 vcc, v{V_TOK}, v{V_X+8}\n s_mov_b32 s95, 0\n s_nop 0\n s_cmp_eq_u64 vcc, -1")
            p("s_cbranch_scc0 a_noearly", tag='keep')
            kvloads('offpath')
            p("s_mov_b32 s95, 1", tag='offpath')
            p("a_noearly:")
            p(f"buffer_load_dword v{V_X+9}, v{t+3}, {sr(S_WS,4)}, s93 offen sc1")
        if y == 1:
            stamp(p)
            p("s_cmp_eq_u32 s95, 1")
            p("s_cbranch_scc1 a_have", tag='keep')
            pollall(p, "a_pk", S_WS, 's78', V_X + 8, t + 1)
            kvloads()
            p("a_have:")
            stamp(p)
            p("s_waitcnt vmcnt(0)")
            for i in range(4):
                p(f"v_cvt_pk_bf16_f32 v{F+2*i}, v{KL+4*i}, v{KL+4*i+1}\n v_cvt_pk_bf16_f32 v{F+1+2*i}, v{KL+4*i+2}, v{KL+4*i+3}")
                p(f"ds_write_b64 v{V_X+4+i}, {vr(F+2*i,2)}")
            p(f"v_cmp_eq_u32 vcc, v{V_TOK}, v{V_X+9}")
            unpark(p, 'kvr0', t); unpark(p, 'kvr1', t + 1)
            p("s_cmp_eq_u64 vcc, -1")
            p("s_cbranch_scc1 a_pf_x", tag='keep')
            q = Prog(); pollall(q, "a_pf", S_WS, 's93', V_X + 9, t + 3)
            for i_ in q.L: i_.tag = 'offpath' if i_.kind not in ('label',) else i_.tag
            p.extend(q)
            p(f"""s_mul_i32 s76, s70, 5120
            s_add_u32 s78, s92, s76
            s_add_u32 s81, s78, 4096
            s_mov_b32 s85, {f2u(1e-6):#x}""")
    p("s_waitcnt lgkmcnt(0)\n s_barrier")
    stamp(p)
    order = [(y, u, ka) for u in (1, 0) for y in range(2) for ka in range(5)]
    NB = 10; O = F + 48
    def ord_(n):
        y, u, ka = order[n]; q = Prog(); q(f"ds_read_b128 {vr(F+4*(n%NB),4)}, v{t+y} offset:{u*1280+16*ka}"); return q
    for n in range(NB): p.extend(ord_(n))
    def fin(y, ks):
        q = Prog(); dn = V_KA + 16 * y + 4
        vals = [V_D + 16 * y + r for r in range(16)] + [V_KA + 16 * y + r for r in range(4)]
        for k in ks:
            q(f"v_mul_f32 v{vals[2*k]}, v{dn}, v{vals[2*k]}\n v_mul_f32 v{vals[2*k+1]}, v{dn}, v{vals[2*k+1]}")
            q(f"v_cvt_pk_bf16_f32 v{O+10*y+k}, v{vals[2*k]}, v{vals[2*k+1]}")
        return q
    def ost(q, pc): q(f"buffer_store_dwordx4 {vr(O+4*pc,4)}, v{t+2}, {sr(S_WS,4)}, {'s81' if pc == 4 else 's78'} offen offset:{1024*(pc%4)} sc1", tag='ost')
    om = Prog()
    for n, (y, u, ka) in enumerate(order):
        if n in (0, 2, 5, 10, 15): om.need([vr(F + 4 * (m_ % NB), 4) for m_ in range(n, {0: 2, 2: 5}.get(n, n + 5))])
        mfma32(om, vr((V_D if u == 0 else V_KA) + 16 * y, 16), vr(F + 4 * (n % NB), 4), vr(V_PO + y * 20 + 4 * ka, 4), '0' if ka == 0 else None)
        if n + NB < 20: om.extend(ord_(n + NB))
    d0 = Prog(); d1 = Prog()
    for y, d in ((0, d0), (1, d1)):
        dn = V_KA + 16 * y + 4
        d(f"v_add_f32 v{dn}, s85, v{dn}\n v_rcp_f32 v{dn}, v{dn}"); d.extend(fin(y, (8, 9)))
    f0 = fin(0, range(4)); ost(f0, 0); f0.extend(fin(0, range(4, 8))); ost(f0, 1)
    p.extend(pack(om, [(issue_group(17) + issue_group(18), 0, 12), (singles(d0), 8, 11), (singles(d1), 12, 15), (singles(f0), 16, 20)], cap=28))
    dn = V_KA + 20
    for k in range(8):
        p(f"v_pk_mul_f32 {vr(V_D+16+2*k,2)}, {vr(V_D+16+2*k,2)}, {vr(dn,2)} op_sel_hi:[1,0]")
    for k in range(8):
        p(f"v_cvt_pk_bf16_f32 v{O+10+k}, v{V_D+16+2*k}, v{V_D+17+2*k}")
        if k in (1, 5, 7): ost(p, {1: 2, 5: 3, 7: 4}[k])
    stamp(p)
    p.waitvm(('dma', 18))
    gemm2_tail(p)
    return p

CP = 4168; YP = 4160; SRS = 544
B_RAW = 0
B_UC = 33280
B_KR = B_UC + 16 * CP
B_SC = B_KR + 4 * 4608
B_END = B_SC + 4 * 16 * SRS
S_KR = 81920; S_SC = S_KR + 4 * 4608
WS_KR = 4 << 20
BL, B15, BG, BZ = 1, 2, 3, 4
A_SW, A_SR, A_T0, A_T1, A_T1b, A_T2, A_X3, A_X2, A_X1, A_X0, A_KW, A_KW32, A_KB, MSK = range(24, 38)
PR = 8
S_U, S_LA, S_AI, S_CR, S_CI, S_LDT, S_DS, S_O, S_WSB = 40, 44, 48, 52, 56, 60, 64, 72, 76

def kg_lanes(p):
    p(f"""v_and_b32 v{BL}, 63, v0
    v_and_b32 v{B15}, 15, v0
    v_bfe_u32 v{BG}, v0, 4, 2
    v_mov_b32 v{BZ}, 0
    v_lshlrev_b32 v5, 2, v{BL}
    s_waitcnt lgkmcnt(0)""")
    for s_, ptr, size in ((S_LA, P_LA, 640*256), (S_AI, P_AI, 640*256), (S_CR, P_CR, 640*256), (S_CI, P_CI, 640*256), (S_LDT, P_LDT, 1280), (S_DS, P_DS, 1280)):
        srd(p, s_, ptr, size)
def kg_params(p, sch, P):
    p(f"s_lshl_b32 s81, {sch}, 8\n s_lshl_b32 s80, {sch}, 1")
    p(f"buffer_load_ushort v{P+4}, v{BZ}, {sr(S_LDT,4)}, s80 offen")
    for k, s_ in enumerate((S_LA, S_AI, S_CR, S_CI)):
        p(f"buffer_load_dword v{P+k}, v5, {sr(s_,4)}, s81 offen {'nt' if opt('ntp', 1) else ''}")
    p(f"buffer_load_ushort v{P+5}, v{BZ}, {sr(S_DS,4)}, s80 offen")
def kg_setup(p, KR, SC):
    t = 40
    p(f"""s_mul_i32 s83, s68, 4608
    s_add_u32 s83, s83, {KR}
    s_mul_i32 s84, s68, {16*SRS}
    s_add_u32 s84, s84, {SC}
    v_lshl_add_u32 v{A_SW}, v{BL}, 3, s84
    v_mul_u32_u24 v{A_SR}, {SRS}, v{B15}
    v_lshl_add_u32 v{A_SR}, v{BG}, 4, v{A_SR}
    v_add_u32 v{A_SR}, s84, v{A_SR}
    v_cmp_gt_u32 vcc, 2, v{BG}
    v_lshrrev_b32 v{t}, 1, v{BG}
    v_and_b32 v{t+1}, 1, v{BG}
    v_lshlrev_b32 v{A_T0}, 9, v{t}
    v_lshl_add_u32 v{A_T0}, v{t+1}, 4, v{A_T0}
    v_lshl_add_u32 v{A_T0}, v{B15}, 5, v{A_T0}
    v_add_u32 v{A_T0}, s84, v{A_T0}
    v_lshlrev_b32 v{t+2}, 4, v{B15}
    v_lshlrev_b32 v{t+3}, 3, v{B15}
    v_cndmask_b32 v{t+2}, v{t+3}, v{t+2}, vcc
    v_lshl_add_u32 v{A_T1}, v{BG}, 8, v{t+2}
    v_add_u32 v{A_T1}, s84, v{A_T1}
    v_mov_b32 v{t+2}, 128
    v_mov_b32 v{t+3}, 8
    v_cndmask_b32 v{t+2}, v{t+2}, v{t+3}, vcc
    v_add_u32 v{A_T1b}, v{A_T1}, v{t+2}
    v_lshlrev_b32 v{A_T2}, 8, v{BG}
    v_lshl_add_u32 v{A_T2}, v{B15}, 2, v{A_T2}
    v_add_u32 v{A_T2}, s84, v{A_T2}
    v_lshl_add_u32 v{A_X3}, v{BL}, 2, s84
    v_lshl_add_u32 v{A_X2}, v{BL}, 3, s84
    v_and_b32 v{t}, 31, v0
    v_lshl_add_u32 v{A_X1}, v{t}, 4, s84
    v_lshl_add_u32 v{A_X0}, v{t}, 5, s84
    v_lshlrev_b32 v{t+1}, 4, v{BL}
    v_sub_u32 v{A_KW}, s83, v{t+1}
    v_add_u32 v{A_KW}, 1008, v{A_KW}
    v_lshlrev_b32 v{t+1}, 4, v{t}
    v_sub_u32 v{A_KW32}, s83, v{t+1}
    v_add_u32 v{A_KW32}, 496, v{A_KW32}
    v_and_b32 v{t}, 1, v0
    v_cmp_eq_u32 vcc, 1, v{t}
    v_mov_b32 v{t+1}, 0xffff
    v_mov_b32 v{t+2}, -1
    v_cndmask_b32 v{MSK}, v{t+1}, v{t+2}, vcc
    s_mov_b32 s85, 0xffff
    s_mov_b32 s86, {f2u(1.4426950408889634):#x}
    s_mov_b32 s87, 0x32a57060
    s_mov_b32 s88, {f2u(0.6931471805599453):#x}
    s_mov_b32 s89, 0xffff0000""")

def exp_bf16(p, d, x, t):
    p(f"""v_mul_f32 v{t}, s86, v{x}
    v_fma_f32 v{t+1}, v{x}, s86, -v{t}
    v_exp_f32 v{t}, v{t}
    v_fma_f32 v{t+1}, v{x}, s87, v{t+1}
    v_mul_f32 v{t+1}, s88, v{t+1}
    v_fma_f32 v{t}, v{t}, v{t+1}, v{t}
    v_cvt_pk_bf16_f32 v{t}, v{t}, v{t}
    v_and_b32 v{d}, s89, v{t}""")
def cmul(p, c, a, b):
    p(f"v_pk_mul_f32 {vr(c,2)}, {vr(a,2)}, {vr(b,2)} op_sel:[0,0] op_sel_hi:[0,1]")
    p(f"v_pk_fma_f32 {vr(c,2)}, {vr(a,2)}, {vr(b,2)}, {vr(c,2)} op_sel:[1,1,0] op_sel_hi:[1,0,1] neg_lo:[0,1,0]")
def kgen(p, P, sched):
    E = lambda k, mu: 48 + 4 * (k - 1) + 2 * mu
    E8 = lambda mu: 76 + 2 * mu
    E128 = lambda mu: 80 + 2 * mu
    GA = lambda par, mu: 84 + 4 * par + 2 * mu
    XT = lambda k, mu: 92 + 4 * (k % 2) + 2 * mu
    PK = lambda k: 100 + 2 * (k % 4)
    FB = 108; FA = 140; DT = 172
    t = 40
    p(f"v_lshlrev_b32 v{t+6}, 16, v{P+4}")
    exp_bf16(p, t + 7, t + 6, t)
    p.need([vr(P, 6)])
    if STAMP == 4: stamp(p)
    rho = lambda mu: 92 + mu; th = lambda mu: 94 + mu
    p(f"v_add_f32 v{t+4}, v{t+7}, v{t+7}")
    for mu in range(2):
        up = (lambda d, s_: f"v_lshlrev_b32 v{d}, 16, v{s_}") if mu == 0 else (lambda d, s_: f"v_and_b32 v{d}, s89, v{s_}")
        p(up(t + 6, P))
        exp_bf16(p, t + 5, t + 6, t)
        p(f"v_mul_f32 v{t+5}, v{t+5}, v{t+7}\n v_mul_f32 v{rho(mu)}, s86, v{t+5}")
        p(up(t + 6, P + 1))
        p(f"v_mul_f32 v{t+6}, v{t+6}, v{t+7}\n v_mul_f32 v{th(mu)}, 0.15915494, v{t+6}")
        p(up(t + 5, P + 2)); p(up(t + 6, P + 3))
        p(f"v_mul_f32 v{GA(0,mu)}, v{t+5}, v{t+4}\n v_mul_f32 v{GA(0,mu)+1}, v{t+6}, v{t+4}")
    for pw, dst in ((8, E8), (1, lambda mu: E(1, mu)), (128, E128)):
        for mu in range(2):
            p(f"v_mul_f32 v{t+2*mu}, {f2u(-float(pw)):#x}, v{rho(mu)}\n v_mul_f32 v{t+2*mu+1}, {f2u(float(pw)):#x}, v{th(mu)}")
        for mu in range(2): p(f"v_exp_f32 v{t+2*mu}, v{t+2*mu}\n v_fract_f32 v{t+2*mu+1}, v{t+2*mu+1}")
        for mu in range(2): p(f"v_cos_f32 v{dst(mu)}, v{t+2*mu+1}\n v_sin_f32 v{dst(mu)+1}, v{t+2*mu+1}")
        for mu in range(2): p(f"v_pk_mul_f32 {vr(dst(mu),2)}, {vr(dst(mu),2)}, {vr(t+2*mu,2)} op_sel_hi:[1,0]")
    cnt = [0]; SIDE0 = opt('side0', 36); SIDEN = opt('siden', 2)
    def put(row, src, neg=False):
        k = cnt[0]; cnt[0] += 1
        for mu in range(2):
            a = src(mu)
            p(f"v_cvt_pk_bf16_f32 v{PK(k)+mu}, v{a}, {'-' if neg else ''}v{a+1}")
        p(f"ds_write_b64 v{A_SW}, {vr(PK(k),2)} offset:{row*SRS}")
        for b_ in sched.get(k, []): p.extend(b_)
    p(f"v_mov_b32 v{PK(3)}, 0x3f80\n v_mov_b32 v{PK(3)+1}, 0x3f80\n ds_write_b64 v{A_SW}, {vr(PK(3),2)}")
    put(1, E8, True)
    prev = E8
    for b in range(2, 16):
        cur = (lambda bb: (lambda mu: XT(bb, mu)))(b)
        for mu in range(2): cmul(p, cur(mu), prev(mu), E8(mu))
        put(b, cur, True); prev = cur
    if STAMP == 4: stamp(p)
    for ka in range(8): p(f"ds_read_b128 {vr(FB+4*ka,4)}, v{A_SR} offset:{64*ka}")
    for k in range(2, 8):
        for mu in range(2): cmul(p, E(k, mu), E(k - 1, mu), E(1, mu))
    al = [0]
    def Gcur(mu): return GA(al[0] % 2, mu)
    def Gnext():
        for mu in range(2): cmul(p, GA((al[0] + 1) % 2, mu), GA(al[0] % 2, mu), E128(mu))
        al[0] += 1
    def prod(row, k):
        if k == 0: put(row, Gcur); return
        for mu in range(2): cmul(p, XT(row, mu), Gcur(mu), E(k, mu))
        put(row, lambda mu: XT(row, mu))
    def tile(T):
        for ka in range(8): p(f"ds_read_b128 {vr(FA+4*ka,4)}, v{A_SR} offset:{64*ka}")
        return [f"v_mfma_f32_16x16x32_bf16 {vr(DT+4*T,4)}, {vr(FA+4*ka,4)}, {vr(FB+4*ka,4)}, {'0' if ka == 0 else vr(DT+4*T,4)}" for ka in range(8)]
    for a in range(2):
        for g in range(8): prod(8 * a + g, g)
        Gnext()
    if STAMP == 4: stamp(p)
    mm = tile(0)
    for a in range(2):
        for g in range(4): prod(4 * a + g, 2 * g)
        Gnext()
        if a == 0:
            for x in mm: p(x)
    for a in range(4):
        for g in range(2): prod(8 + 2 * a + g, 4 * g)
        Gnext()
    if STAMP == 4: stamp(p)
    mm = tile(1)
    for a in range(9):
        prod(a, 0)
        if a < 8: Gnext()
        if a == 3:
            for x in mm: p(x)
    if STAMP == 4: stamp(p)
    mm = tile(2)
    p(f"""v_cmp_eq_u32 vcc, 0, v{BL}
    v_lshlrev_b32 v{t}, 16, v{P+5}
    v_cndmask_b32 v{t}, v{BZ}, v{t}, vcc
    v_add_f32 v{DT}, v{DT}, v{t}""")
    for q in range(8): p(f"v_cvt_pk_bf16_f32 v{DT+q}, v{DT+q}, v{DT+q}")
    p.need([vr(FA, 32)])
    p(mm[0]); p(f"ds_write_b128 v{A_T0}, {vr(DT,4)}")
    for x in mm[1:4]: p(x)
    p(f"ds_write_b64 v{A_T1}, {vr(DT+4,2)} offset:1024")
    for x in mm[4:6]: p(x)
    p(f"ds_write_b64 v{A_T1b}, {vr(DT+6,2)} offset:1024")
    for x in mm[6:]: p(x)
    R = FB
    p(f"""ds_read_b128 {vr(R+24,4)}, v{A_X0}
    ds_read_b128 {vr(R+28,4)}, v{A_X0} offset:16
    ds_read_b128 {vr(R+16,4)}, v{A_X1} offset:1024
    ds_read_b32 v{R+20}, v{A_X1} offset:{1024+16}""")
    for q in range(8, 12): p(f"v_cvt_pk_bf16_f32 v{DT+q}, v{DT+q}, v{DT+q}")
    for i in range(4): p(f"ds_write_b32 v{A_T2}, v{DT+8+i} offset:{2048+64*i}")
    p(f"""ds_read_b32 v{R+8}, v{A_X2} offset:{1536+8}
    ds_read_b32 v{R+9}, v{A_X2} offset:{1536+4}
    ds_read_b32 v{R+11}, v{A_X2} offset:{1536}""")
    for r in range(2):
        p(f"ds_read_b32 v{R+4*r}, v{A_X3} offset:{2048+256*r+4}")
        p(f"ds_read_b32 v{R+4*r+2}, v{A_X3} offset:{2048+256*r}\n ds_read_b32 v{R+4*r+3}, v{A_X3} offset:{2048+256*r}")
    p(f"""v_bfi_b32 v{R+12}, s85, v{R+20}, v{R+19}
    v_mov_b32 v{R+13}, v{R+18}
    v_bfi_b32 v{R+14}, s85, v{R+18}, v{R+17}
    v_mov_b32 v{R+15}, v{R+16}
    ds_write_b128 v{A_KW32}, {vr(R+12,4)} offset:3072
    v_bfi_b32 v{R+16}, s85, v{R+31}, v{R+30}
    v_bfi_b32 v{R+17}, s85, v{R+29}, v{R+28}
    v_bfi_b32 v{R+18}, s85, v{R+27}, v{R+26}
    v_bfi_b32 v{R+19}, s85, v{R+25}, v{R+24}
    ds_write_b128 v{A_KW32}, {vr(R+16,4)} offset:3584
    v_bfi_b32 v{R+10}, s85, v{R+9}, v{R+11}
    ds_write_b128 v{A_KW}, {vr(R+8,4)} offset:2048""")
    for r in range(2):
        p(f"v_bfi_b32 v{R+4*r+1}, v{MSK}, v{R+4*r}, v{R+4*r+2}")
        p(f"ds_write_b128 v{A_KW}, {vr(R+4*r,4)} offset:{1024*(1-r)}")

def prefetch1():
    if not opt('pf1', 1): return []
    NG = opt('pfg', 2); B = []; p = Prog()
    decode_ab(p, 's93', 16, 94, 92)
    p("s_add_u32 s93, s94, s92\n s_mul_i32 s93, s93, 3")
    srd(p, 96, P_W, 640 * 3840)
    p(f"""s_mul_i32 s92, s92, 160
    s_lshr_b32 s95, s68, 1
    s_add_u32 s95, s95, 1
    s_mul_i32 s95, s95, 1280
    s_add_u32 s92, s92, s95
    s_andn2_b32 s92, s92, 127
    s_and_b32 s95, s68, 1
    s_lshl_b32 s95, s95, 7
    s_add_u32 s92, s92, s95
    v_mul_u32_u24 v250, 3840, v{BL}
    v_mul_u32_u24 v249, 1280, v{BL}""")
    def g10(p, d, add):
        p(f"""s_add_u32 s{d}, s93, {add}
        s_mul_i32 s95, s{d}, 205
        s_lshr_b32 s95, s95, 11
        s_mul_i32 s95, s95, 10
        s_sub_u32 s{d}, s{d}, s95""")
    for k in range(1, NG + 1):
        g10(p, 100, k)
        p(f"s_mul_i32 s100, s100, {64*3840}\n s_add_u32 s100, s100, s92\n buffer_load_dword v254, v250, s[96:99], s100 offen {'nt' if opt('ntw', 0) else ''}")
        B.append(p); p = Prog()
    srd(p, 96, P_X, 2048 * 1280)
    p(f"""s_lshl_b32 s94, s94, 1
    s_and_b32 s95, s68, 1
    s_add_u32 s94, s94, s95
    s_mul_i32 s94, s94, {64*1280}
    s_lshr_b32 s95, s68, 1
    s_add_u32 s93, s93, s95""")
    for k in range(1, NG + 1, 2):
        g10(p, 100, k)
        p(f"s_lshl_b32 s100, s100, 7\n s_add_u32 s100, s100, s94\n buffer_load_dword v254, v249, s[96:99], s100 offen {'nt' if opt('ntx', 0) else ''}")
        B.append(p); p = Prog()
    return B
def prefetch2x():
    if not opt('pf2', 1): return []
    B = []
    for r in range(2):
        a = Prog(); b = Prog()
        a(f"""s_lshr_b32 s92, s2, 3
        s_sub_u32 s92, s92, 16
        s_lshl_b32 s92, s92, 2
        s_add_u32 s92, s92, s68
        s_lshl_b32 s92, s92, 6
        s_add_u32 s92, s92, {4096*r}
        v_add_u32 v250, s92, v{BL}
        v_mul_u32_u24 v249, 6554, v250
        v_lshrrev_b32 v249, 16, v249
        v_mul_u32_u24 v252, 10, v249
        v_sub_u32 v250, v250, v252
        v_mul_u32_u24 v252, 3840, v249
        v_lshl_add_u32 v252, v250, 7, v252""")
        srd(a, 96, P_W, 640 * 3840)
        a("buffer_load_dword v254, v252, s[96:99], 0 offen")
        b(f"""v_mul_u32_u24 v252, 1280, v249
        v_lshl_add_u32 v252, v250, 7, v252""")
        srd(b, 96, P_WO, 640 * 1280)
        b("buffer_load_dword v254, v252, s[96:99], 0 offen")
        B += [a, b]
    return B
def prefetch2():
    if XM: return prefetch2x()
    if not opt('pf2', 1): return []
    a = Prog(); b = Prog()
    a(f"""s_lshr_b32 s92, s2, 3
    s_sub_u32 s92, s92, 16
    s_lshl_b32 s92, s92, 2
    s_add_u32 s92, s92, s68
    s_lshl_b32 s92, s92, 6
    v_add_u32 v250, s92, v{BL}
    v_mul_u32_u24 v249, 13108, v250
    v_lshrrev_b32 v249, 16, v249
    v_mul_u32_u24 v252, 5, v249
    v_sub_u32 v250, v250, v252
    v_mul_u32_u24 v252, 3840, v249
    v_lshl_add_u32 v252, v250, 7, v252
    s_and_b32 s93, s2, 1
    s_mul_i32 s94, s93, 640""")
    srd(a, 96, P_W, 640 * 3840)
    a("buffer_load_dword v254, v252, s[96:99], s94 offen")
    b(f"""s_lshl_b32 s94, s93, 9
    s_lshl_b32 s95, s93, 7
    s_add_u32 s95, s95, 1024
    v_lshlrev_b32 v252, 7, v250
    v_add_u32 v252, s94, v252
    v_mov_b32 v248, s95
    v_cmp_eq_u32 vcc, 4, v250
    v_mul_u32_u24 v249, 1280, v249
    v_cndmask_b32 v252, v252, v248, vcc
    v_add_u32 v252, v252, v249""")
    srd(b, 96, P_WO, 640 * 1280)
    b("buffer_load_dword v254, v252, s[96:99], 0 offen")
    return [a, b]

def role_B():
    p = Prog(); nstamp[0] = 0
    LN, L15, G, Z = BL, B15, BG, BZ
    p("roleB:")
    if opt('noB', 0): p("s_endpgm")
    stamp(p)
    if opt('bm', 1) == 0:
        p("""s_and_b32 s69, s2, 7
        s_mul_i32 s69, s69, 10
        s_lshr_b32 s70, s2, 3
        s_sub_u32 s70, s70, 16
        s_add_u32 s69, s69, s70""")
    else:
        p("""s_and_b32 s71, s2, 7
        s_lshr_b32 s70, s2, 3
        s_sub_u32 s70, s70, 16
        s_lshl_b32 s69, s71, 3
        s_add_u32 s69, s69, s70
        s_lshl_b32 s71, s71, 1
        s_add_u32 s71, s71, s70
        s_add_u32 s71, s71, 56
        s_cmp_ge_u32 s70, 8
        s_cselect_b32 s69, s71, s69""")
    kg_lanes(p)
    p(f"s_lshl_b32 s71, s69, 3\n s_add_u32 s71, s71, s68")
    kg_params(p, 's71', PR)
    pf = prefetch1()[:opt('pfb', 3)]; NOW = opt('pfnow', 3)
    srd(p, S_WSB, P_WS, WS_SIZE)
    token_load(p, S_WSB, Z)
    for b in pf[:NOW]: p.extend(b)
    p(f"""s_lshr_b32 s80, s69, 3
    s_lshl_b32 s39, s80, 12
    s_add_u32 s39, s39, {WS_UF}
    s_lshl_b32 s101, s69, 2
    s_add_u32 s101, s101, s68
    s_lshl_b32 s101, s101, 7
    s_add_u32 s101, s101, {WS_YF}
    s_lshl_b32 s6, s69, 15
    s_lshl_b32 s7, s68, 13
    s_add_u32 s6, s6, s7
    s_add_u32 s6, s6, {WS_YT}
    s_add_u32 s7, s6, 4096
    v_lshlrev_b32 v39, 4, v{LN}
    v_cmp_eq_u32 vcc, 0, v{LN}
    v_mov_b32 v15, {OOB:#x}
    v_cndmask_b32 v15, v15, v{Z}, vcc""")
    tk = Prog(); token_make(tk)
    sched = {30: [tk]}
    for k, b in enumerate(pf[NOW:]): sched.setdefault(opt('pfa', 0) + opt('pfd', 3) * k, []).append(b)
    for k, b in enumerate(prefetch2()): sched.setdefault(opt('pf2a', 30) + 3 * k, []).append(b)
    if not UT:
        p("s_lshl_b32 s80, s69, 4")
        srd(p, S_U, P_U, 0, 's80')
        p(f"""s_sub_u32 s{S_U+2}, {2048*1280}, s80
        v_mul_u32_u24 v6, 1280, v{LN}
        s_and_b32 s90, s69, 7
        s_lshl_b32 s81, s68, 3
        s_add_u32 s90, s90, s81""")
        for i in range(8):
            q = Prog()
            q(f"""s_add_u32 s81, s90, {i}
            s_and_b32 s81, s81, 31
            s_mul_i32 s82, s81, {64*1280}
            s_lshl_b32 s81, s81, 10
            s_add_u32 m0, s81, {B_RAW+256}""")
            q(f"buffer_load_dwordx4 v6, {sr(S_U,4)}, s82 offen lds", tag='raw')
            sched.setdefault(opt('sidef', 10) if i == 0 else min(55, opt('side0', 40) + opt('siden', 2) * i), []).append(q)
    srd(p, S_O, P_OUT, 2048 * 2560)
    kg_setup(p, B_KR, B_SC)
    t = 40
    p(f"""v_mov_b32 v20, 0
    v_mov_b32 v21, 0
    v_mov_b32 v22, 0
    v_mov_b32 v23, 0
    v_lshlrev_b32 v{t}, 4, v{L15}
    ds_write_b128 v{t}, v[20:23] offset:{B_RAW}
    v_and_b32 v{t}, 31, v0
    v_lshl_add_u32 v38, v{t}, 4, s83
    ds_write_b128 v38, v[20:23] offset:4096
    v_lshlrev_b32 v{t+1}, 5, v{L15}
    v_sub_u32 v{A_KB}, s83, v{t+1}
    v_lshl_add_u32 v{A_KB}, v{G}, 4, v{A_KB}
    v_add_u32 v{A_KB}, 480, v{A_KB}""")
    stamp(p)
    kgen(p, PR, sched)
    stamp(p)
    Y = 184; UB = 216
    p(f"""v_and_b32 v17, 31, v0
    v_lshlrev_b32 v17, 7, v17
    s_lshl_b32 s38, s69, 15
    s_lshl_b32 s80, s68, 13
    s_add_u32 s38, s38, s80
    s_add_u32 s38, s38, {WS_UT}
    s_add_u32 s80, s80, {B_RAW+256}""")
    if UT: pollall(p, "b_pu", S_WSB, 's39', 18, 17, opt('uslp', 4))
    stamp(p)
    for i in range(8 if UT else 0):
        p(f"s_add_u32 m0, s80, {1024*i}\n s_nop 0\n buffer_load_dwordx4 v39, {sr(S_WSB,4)}, s38 offen sc1 lds\n s_add_u32 s38, s38, 1024", tag='raw')
    p(f"""v_bfe_u32 v{t}, v0, 2, 2
    v_lshl_add_u32 v{t}, v{G}, 3, v{t}
    v_bfe_u32 v{t+1}, v0, 1, 1
    v_lshl_add_u32 v{t}, v{t+1}, 2, v{t}
    v_lshlrev_b32 v{t}, 4, v{t}
    v_and_b32 v{t+1}, 1, v0
    v_lshl_add_u32 v{t}, v{t+1}, 3, v{t}
    s_lshl_b32 s80, s68, 9
    v_add_u32 v{t}, s80, v{t}
    v_and_b32 v{t+1}, 7, v0
    v_mul_u32_u24 v{t+1}, {2*CP}, v{t+1}
    v_bfe_u32 v{t+2}, v0, 3, 1
    v_lshl_add_u32 v{t+1}, v{t+2}, 3, v{t+1}
    v_lshl_add_u32 v{t+1}, v{G}, 4, v{t+1}
    s_lshl_b32 s80, s68, 6
    s_add_u32 s80, s80, {B_UC}
    v_add_u32 v{t+1}, s80, v{t+1}
    s_cmp_eq_u32 s68, 0
    s_cselect_b32 s80, 2, 0
    v_cmp_gt_u32 vcc, s80, v{G}
    v_mov_b32 v{t+2}, {B_END - 4096}
    s_mul_i32 s81, s68, {2*CP}
    v_cndmask_b32 v{t+3}, v{t+2}, v{t+1}, vcc
    s_add_u32 s81, s81, {B_UC}
    v_and_b32 v{t+4}, 1, v0
    v_mul_u32_u24 v{t+4}, {CP}, v{t+4}
    v_lshrrev_b32 v{t+5}, 1, v{L15}
    v_lshl_add_u32 v{t+5}, v{G}, 2, v{t+5}
    v_lshl_add_u32 v{t+4}, v{t+5}, 2, v{t+4}
    v_add_u32 v{UB}, s81, v{t+4}
    v_add_u32 v{UB+1}, 1024, v{UB}
    v_add_u32 v{UB+2}, 2048, v{UB}
    v_add_u32 v{UB+3}, 3072, v{UB}
    s_mul_i32 s80, s68, {YP}
    v_lshlrev_b32 v{t+4}, 5, v{L15}
    v_lshl_add_u32 v{t+4}, v{G}, 3, v{t+4}
    v_add_u32 v{UB+4}, s80, v{t+4}
    s_lshl_b32 s90, s69, 2
    s_add_u32 s90, s90, s68
    s_lshl_b32 s91, s90, 12
    s_add_u32 s91, s91, {WS_KR}
    s_lshl_b32 s90, s90, 7
    s_add_u32 s90, s90, {WS_KF}
    s_sub_u32 s92, s84, s83
    v_add_u32 v38, s92, v38""")
    p(f"""v_bfe_u32 v224, v0, 2, 2
    v_mul_u32_u24 v224, {YP}, v224
    v_and_b32 v225, 3, v0
    v_lshl_add_u32 v224, v225, 3, v224
    v_lshl_add_u32 v224, v{G}, 5, v224
    s_lshl_b32 s80, s68, 10
    v_add_u32 v224, s80, v224""")
    if YT:
        p(f"""s_lshr_b32 s80, s69, 3
        s_and_b32 s81, s69, 7
        s_lshl_b32 s81, s81, 2
        s_add_u32 s81, s81, s68
        s_lshl_b32 s96, s80, 18
        s_lshl_b32 s82, s81, 10
        s_add_u32 s96, s96, s82
        s_add_u32 s96, s96, {WS_YT}
        s_mul_i32 s97, s81, {64*2560}
        s_lshl_b32 s80, s80, 7
        s_add_u32 s97, s97, s80
        s_add_u32 s97, s97, 1280
        s_mul_i32 s98, s68, 8448
        s_add_u32 s98, s98, {B_UC}
        v_lshrrev_b32 v226, 3, v{LN}
        v_and_b32 v227, 7, v0
        v_lshlrev_b32 v228, 15, v226
        v_lshl_add_u32 v228, v227, 7, v228
        v_mul_u32_u24 v229, 1040, v227
        v_lshl_add_u32 v229, v226, 4, v229
        v_add_u32 v229, s98, v229
        v_mul_u32_u24 v230, 2560, v226
        v_lshl_add_u32 v230, v227, 4, v230
        s_nop 0""")
    p.waitvm('raw'); p("s_waitcnt lgkmcnt(0)\n s_barrier")
    stamp(p)
    p(f"ds_write_b128 v38, v[20:23] offset:4096")
    jobs = [(k, pp) for k in range(17) for pp in range(2)]
    NBUF = 8
    def rdj(n):
        k, pp = jobs[n]; p(f"ds_read_b64_tr_b16 {vr(48+2*(n%NBUF),2)}, v{t} offset:{B_RAW + 16*(1+pp) + 2048*k}")
    def wrj(n):
        k, pp = jobs[n]
        p(f"ds_write_b64 v{t+3 if k == 16 else t+1}, {vr(48+2*(n%NBUF),2)} offset:{pp*CP + 256*k}")
    for n in range(NBUF): rdj(n)
    if YT: p("v_mov_b32 v8, -1\n v_mov_b32 v9, -1\n v_mov_b32 v10, -1\n v_mov_b32 v11, -1")
    for n in range(len(jobs)):
        wrj(n)
        if n + NBUF < len(jobs): rdj(n + NBUF)
        if YT and n % 4 == 1 and n // 4 < 8:
            jj = n // 4; p(f"buffer_store_dwordx4 v[8:11], v39, {sr(S_WSB,4)}, {'s6' if jj < 4 else 's7'} offen offset:{1024*(jj%4)} sc1")
    def fa(b, a): return ar((b % 2) * 64 + 4 * a, 4)
    def fb(b, c): return ar((b % 2) * 64 + 32 + 4 * c, 4)
    def reads(b, kind='ku'):
        q = Prog()
        for a in range(8):
            o = 128 * (a % 2) + 16 * b; r0 = (b % 2) * 64 + 4 * a
            if 'k' in kind: q(f"ds_read_b128 {fb(b,a)}, v{A_KB} offset:{512*(7-a)+64*b}")
            if 'u' in kind:
                q(f"ds_read2_b32 {ar(r0,2)}, v{UB+a//2} offset0:{o} offset1:{o+1}")
                q(f"ds_read2_b32 {ar(r0+2,2)}, v{UB+a//2} offset0:{o+2} offset1:{o+3}")
        return q
    def krdma(tag):
        for i in range(4):
            p(f"s_add_u32 m0, s84, {1024*i}\n s_nop 0\n buffer_load_dwordx4 v39, {sr(S_WSB,4)}, s91 offen sc1 lds\n s_add_u32 s91, s91, 1024", tag=tag)
    p("s_mov_b32 s93, 0\n s_mov_b32 s95, 0\n s_waitcnt lgkmcnt(0)\n s_barrier")
    stamp(p)
    p("b_conv:")
    p.extend(reads(0))
    prs = sorted([(a, c) for c in range(8) for a in range(c + 1)], key=lambda x: (max(x[0], x[1] - x[0]), x[1]))
    EB = opt('eb', 5)
    if opt('cord', 1):
        prs = sorted(prs, key=lambda x: (max(x[0], x[1] - x[0]), x[0] > x[1] - x[0], x[1]))
        if opt('cord', 1) == 2: prs = prs[:-6] + [(0, 6), (1, 7), (6, 6), (0, 7), (6, 7), (7, 7)]
    for b in range(8):
        m = Prog(); seen = set(); lvl = -1
        for a, c in prs:
            first = b == 0 and c not in seen; seen.add(c)
            if max(a, c - a) != lvl and (b == 0 or max(a, c - a) in (0, 4)):
                lvl = max(a, c - a); hi = lvl if b == 0 else lvl + 3
                m.need([fa(b, x) for x in range(lvl, hi + 1)] + [fb(b, x) for x in range(lvl, hi + 1)])
            mfma(m, vr(Y + 4 * c, 4), fa(b, a), fb(b, c - a), '0' if first else None)
        if b == EB: p(f"buffer_load_dword v7, v{Z}, {sr(S_WSB,4)}, s90 offen sc1")
        if b == EB + 1:
            p(f"""v_cmp_eq_u32 vcc, v{V_TOK}, v7
            s_cmp_lg_u32 s93, 0
            s_cselect_b64 s[80:81], 0, -1
            s_and_b64 vcc, vcc, s[80:81]""")
            p("s_cbranch_scc0 b_noearly", tag='keep')
            krdma('offpath')
            p("s_mov_b32 s95, 1", tag='offpath')
            p("b_noearly:")
            if YT: p(f"buffer_load_dword v18, v17, {sr(S_WSB,4)}, s101 offen sc1")
        p.extend(pack(m, [(singles(reads(b + 1)), 2, 30)] if b < 7 else [], cap=4))
    for c in range(8):
        d = 40 + 2 * (c % 4)
        p(f"v_cvt_pk_bf16_f32 v{d}, v{Y+4*c}, v{Y+4*c+1}\n v_cvt_pk_bf16_f32 v{d+1}, v{Y+4*c+2}, v{Y+4*c+3}")
        p(f"ds_write_b64 v{UB+4}, {vr(d,2)} offset:{B_RAW+512*c}")
    p("s_cmp_lg_u32 s93, 0")
    p("s_cbranch_scc1 b_fin", tag='keep')
    stamp(p)
    p(f"""s_mov_b32 s93, 1
    v_add_u32 v{A_KB}, s92, v{A_KB}""")
    for k in range(4): p(f"v_add_u32 v{UB+k}, {8*CP}, v{UB+k}")
    p(f"v_add_u32 v{UB+4}, {4*YP}, v{UB+4}\n s_cmp_eq_u32 s95, 1")
    p("s_cbranch_scc1 b_have", tag='keep')
    p(f"s_mov_b32 s94, {SPIN}")
    p("b_poll:")
    p(f"""buffer_load_dword v7, v{Z}, {sr(S_WSB,4)}, s90 offen sc1
    s_sub_u32 s94, s94, 1
    s_waitcnt vmcnt(0)
    v_cmp_eq_u32 vcc, v{V_TOK}, v7
    s_cmp_eq_u32 s94, 0
    s_cbranch_scc1 b_got
    s_cmp_eq_u64 vcc, 0
    s_cbranch_scc1 b_poll""")
    p("b_got:")
    krdma(None)
    p("b_have:")
    p(f"s_waitcnt vmcnt(0)\n buffer_store_dword v{V_TOK}, v15, {sr(S_WSB,4)}, s101 offen sc1\n s_add_u32 s101, s39, {WS_YF-WS_UF}\n s_branch b_conv")
    p("b_fin:")
    p("s_waitcnt vmcnt(0)")
    stamp(p)
    if not YT:
        p(f"""v_mul_u32_u24 v225, 2560, v{LN}
        s_mul_i32 s80, s68, {512*2560}
        s_lshl_b32 s81, s69, 4
        s_add_u32 s80, s80, s81
        s_add_u32 s80, s80, 1280
        s_waitcnt lgkmcnt(0)
        s_barrier""")
        for it in range(8):
            for h in range(2):
                p(f"ds_read_b64_tr_b16 {vr(56+4*it+2*h,2)}, v224 offset:{B_RAW + h*4*YP + 128*it}")
        for it in range(8):
            p(f"buffer_store_dwordx4 {vr(56+4*it,4)}, v225, {sr(S_O,4)}, s80 offen\n s_add_u32 s80, s80, {64*2560}")
        stamp(p); stamp(p); stamp(p)
        stamp_store(p, S_WSB)
        p("s_endpgm")
        return p
    p(f"v_cmp_eq_u32 vcc, v{V_TOK}, v18\n s_nop 1\n s_cmp_eq_u64 vcc, -1")
    p("s_cbranch_scc1 b_pf_x")
    pollall(p, "b_pf", S_WSB, 's101', 18, 17)
    p(f"s_mov_b32 s94, {SPIN}")
    p("s_waitcnt lgkmcnt(0)\n s_barrier")
    for it in range(8):
        for h in range(2):
            p(f"ds_read_b64_tr_b16 {vr(56+4*it+2*h,2)}, v224 offset:{B_RAW + h*4*YP + 128*it}")
    for it in range(8):
        p(f"buffer_store_dwordx4 {vr(56+4*it,4)}, v39, {sr(S_WSB,4)}, {'s6' if it < 4 else 's7'} offen offset:{1024*(it%4)} sc1")
    stamp(p)
    p("b_yp:")
    p(f"""buffer_load_dword v19, v228, {sr(S_WSB,4)}, s96 offen sc1
    s_sub_u32 s94, s94, 1
    s_waitcnt vmcnt(0)
    v_cmp_ne_u32 vcc, -1, v19
    s_cmp_lt_i32 s94, 1
    s_cbranch_scc1 b_yg
    s_cmp_eq_u64 vcc, -1
    s_cbranch_scc1 b_yg
    s_sleep {opt('yslp', 8)}
    s_branch b_yp""")
    p("b_yg:")
    stamp(p)
    p("s_mov_b32 s82, s96")
    for j in range(8):
        p(f"s_add_u32 m0, s98, {1040*j}\n s_nop 0\n buffer_load_dwordx4 v39, {sr(S_WSB,4)}, s82 offen sc1 lds\n s_add_u32 s82, s82, 32768")
    p("v_mov_b32 v18, 0\n s_waitcnt vmcnt(0)")
    for i in range(8): p(f"ds_read_b128 {vr(56+4*i,4)}, v229 offset:{128*i}")
    for i in range(8): p(f"v_max3_u32 v18, v18, v{56+4*i}, v{57+4*i}\n v_max3_u32 v18, v18, v{58+4*i}, v{59+4*i}")
    p(f"""v_cmp_eq_u32 vcc, -1, v18
    s_cmp_lt_i32 s94, 1
    s_cbranch_scc1 b_yo
    s_cmp_lg_u64 vcc, 0
    s_cbranch_scc1 b_yp""")
    p("b_yo:")
    for i in range(8):
        p(f"buffer_store_dwordx4 {vr(56+4*i,4)}, v230, {sr(S_O,4)}, s97 offen {OPT.get('bst', 'sc1')}\n s_add_u32 s97, s97, {8*2560}")
    stamp(p)
    stamp_store(p, S_WSB)
    p("s_endpgm")
    return p

def role_S():
    p = Prog(); nstamp[0] = 32
    p("roleS:")
    p(f"""s_getpc_b64 s[40:41]
    cpf_here:
    s_sub_u32 s40, s40, cpf_here-{NAME}_kernel
    s_subb_u32 s41, s41, 0
    s_lshr_b32 s42, s2, 3
    s_and_b32 s42, s42, 1
    s_lshl_b32 s42, s42, 15
    v_lshlrev_b32 v8, 7, v0
    v_add_u32 v8, s42, v8
    v_cmp_gt_u32 vcc, code_end-{NAME}_kernel, v8
    v_cndmask_b32 v8, 0, v8, vcc
    global_load_dword v254, v8, s[40:41]""")
    if STAMP: p("v_mov_b32 v255, 0")
    stamp(p)
    p(f"s_sub_u32 s69, s2, 208")
    kg_lanes(p)
    p(f"""s_lshl_b32 s90, s69, 2
    s_add_u32 s90, s90, s68
    s_lshl_b32 s71, s69, 3
    s_add_u32 s71, s71, s68
    s_add_u32 s71, s71, 4""")
    kg_params(p, 's71', PR)
    p(f"s_add_u32 s71, s71, 384\n s_min_u32 s71, s71, 639")
    kg_params(p, 's71', PR + 6)
    srd(p, S_U, P_WS, WS_ZERO_END)
    srd(p, S_O, P_DBG, 256)
    srd(p, S_WSB, P_WS, WS_SIZE)
    token_load(p, S_WSB, BZ)
    p(f"""s_lshl_b32 s70, s69, 12
    v_lshlrev_b32 v6, 4, v0
    v_mov_b32 v20, 0
    v_mov_b32 v21, 0
    v_mov_b32 v22, 0
    v_mov_b32 v23, 0
""")
    p(f"buffer_store_dwordx4 v[20:23], v6, {sr(S_U,4)}, s70 offen sc1", tag='zero')
    srd(p, 96, P_U, 2048 * 1280)
    p(f"""v_lshrrev_b32 v240, 3, v{BL}
    v_mul_u32_u24 v240, 1280, v240
    v_and_b32 v241, 7, v0
    v_xor_b32 v241, v241, v{BG}
    v_lshl_add_u32 v240, v241, 4, v240
    v_xor_b32 v241, 64, v240
    v_add_u32 v241, {8*1280}, v241
    s_lshl_b32 s5, s68, 14""")
    for r in range(2 if UT else 0):
        p(f"""s_add_u32 s80, s90, {192*r}
        s_and_b32 s81, s80, 31
        s_lshr_b32 s82, s80, 5
        s_mul_i32 s81, s81, {64*1280}
        s_lshl_b32 s82, s82, 7
        s_add_u32 s82, s82, s81
        s_cmp_ge_u32 s80, 320
        s_cselect_b32 s82, {0x40000000}, s82""")
        for i in range(8):
            p(f"s_add_u32 m0, s5, {8192*r+1024*i}\n s_nop 0\n buffer_load_dwordx4 v{240+i%2}, s[96:99], s82 offen nt lds", tag=('ut', r))
            if i % 2: p(f"s_add_u32 s82, s82, {16*1280}")
    pfS = prefetch1()[:opt('pfs', 0 if UT else 3)]
    for b in pfS[:opt('pfnow', 3)]: p.extend(b)
    p(f"""s_cmp_lt_u32 s69, {NZERO_WG}
    s_cselect_b32 s4, 0, -1
    v_cmp_eq_u32 vcc, s4, v0
    v_mov_b32 v7, 1
    v_mov_b32 v38, {OOB:#x}
    v_cndmask_b32 v39, v38, v{BZ}, vcc""")
    kg_setup(p, S_KR, S_SC)
    p(f"""v_cmp_eq_u32 vcc, 0, v{BL}
    v_lshlrev_b32 v184, 4, v{BL}
    v_add_u32 v185, s83, v184
    v_cndmask_b32 v38, v38, v{BZ}, vcc
    v_bfe_u32 v242, v0, 1, 3
    v_lshlrev_b32 v242, 4, v242
    v_lshl_add_u32 v242, v{BL}, 7, v242
    v_add_u32 v242, s5, v242""")
    p.waitvm('zero')
    p(f"s_barrier\n buffer_atomic_add v7, v39, {sr(S_O,4)}, 0 offen sc1")
    token_make(p)
    if not UT: p(f"s_mov_b32 s6, {0x40000000}\n s_mov_b32 s7, {0x40000000}")
    for r in range(2 if UT else 0):
        p(f"""s_add_u32 s80, s90, {192*r}
        s_and_b32 s81, s80, 31
        s_lshr_b32 s82, s80, 5
        s_lshl_b32 s81, s81, 10
        s_lshl_b32 s82, s82, 18
        s_add_u32 s82, s82, s81
        s_add_u32 s82, s82, {WS_UT}
        s_lshl_b32 s{6+r}, s80, 7
        s_add_u32 s{6+r}, s{6+r}, {WS_UF}
        s_cmp_ge_u32 s80, 320
        s_cselect_b32 s82, {0x40000000}, s82
        s_cselect_b32 s{6+r}, {0x40000000}, s{6+r}""")
        p.waitvm(('ut', r))
        for j in range(8): p(f"v_xor_b32 v243, {16*j}, v242\n ds_read_b128 {vr(48+32*r+4*j,4)}, v243 offset:{8192*r}")
        for j in range(8): p(f"buffer_store_dwordx4 {vr(48+32*r+4*j,4)}, v184, {sr(S_WSB,4)}, s82 offen sc1\n s_add_u32 s82, s82, 32768")
    stamp(p)
    p("s_kloop:", tag='keep')
    fl = Prog()
    fl(f"""s_waitcnt vmcnt(0)
    buffer_store_dword v{V_TOK}, v38, {sr(S_WSB,4)}, s6 offen sc1
    buffer_store_dword v{V_TOK}, v38, {sr(S_WSB,4)}, s7 offen sc1""")
    sched = {opt('sfl', 24): [fl]}
    for k, b in enumerate(pfS[opt('pfnow', 3):]): sched.setdefault(opt('pfa', 0) + opt('pfd', 3) * k, []).append(b)
    for k, b in enumerate(prefetch2()): sched.setdefault(40 + 3 * k, []).append(b)
    kgen(p, PR, sched)
    for i in range(4): p(f"ds_read_b128 {vr(48+4*i,4)}, v185 offset:{1024*i}")
    p(f"s_lshl_b32 s91, s90, 12\n s_add_u32 s91, s91, {WS_KR}")
    for i in range(4): p(f"buffer_store_dwordx4 {vr(48+4*i,4)}, v184, {sr(S_WSB,4)}, s91 offen offset:{1024*i} sc1")
    p(f"""s_lshl_b32 s6, s90, 7
    s_add_u32 s6, s6, {WS_KF}
    s_mov_b32 s7, s6
    s_add_u32 s90, s90, 192""")
    for k in range(6): p(f"v_mov_b32 v{PR+k}, v{PR+6+k}")
    stamp(p)
    p("s_cmp_lt_u32 s90, 320\n s_cbranch_scc1 s_kloop")
    p(f"s_waitcnt vmcnt(0)\n buffer_store_dword v{V_TOK}, v38, {sr(S_WSB,4)}, s6 offen sc1")
    p("s_cmp_ge_u32 s2, 240")
    stamp(p)
    p("s_cbranch_scc1 s_done")
    srd(p, S_DBG, P_DBG, 256)
    if XM == 0:
        p("""s_and_b32 s72, s2, 7
        s_lshr_b32 s69, s72, 1
        s_lshl_b32 s69, s69, 2
        s_lshr_b32 s73, s2, 3
        s_sub_u32 s73, s73, 26
        s_add_u32 s69, s69, s73
        s_and_b32 s83, s72, 1""")
    else:
        p("""s_and_b32 s69, s2, 7
        s_lshl_b32 s69, s69, 1
        s_lshr_b32 s73, s2, 3
        s_sub_u32 s73, s73, 26
        s_and_b32 s83, s73, 1
        s_lshr_b32 s73, s73, 1
        s_add_u32 s69, s69, s73""")
    p(f"""s_add_u32 s83, s83, 8
    s_lshl_b32 s83, s83, 7
    s_mul_i32 s84, s68, {GR}
    v_and_b32 v{LN}, 63, v0
    v_mov_b32 v{V_Z}, 0""")
    setup_g2(p)
    for i in range(5): unpark(p, f'wo{i}', V_XO + i)
    for G in range(15, 19):
        for b in issue_group(G): p.extend(b)
    p(f"""v_and_b32 v249, 7, v0
    v_lshlrev_b32 v249, 13, v249
    s_lshl_b32 s85, s69, 9
    s_lshl_b32 s81, s68, 7
    s_add_u32 s85, s85, s81
    s_add_u32 s85, s85, {WS_KVF}""")
    pollall(p, "s_pf", S_WS, 's85', 248, 249, opt('slp', 8))
    p("s_branch g2_tail")
    p("s_done:")
    p(f"""s_cmp_lg_u32 s2, 255
    s_cbranch_scc1 s_fin
    s_cmp_lg_u32 s68, 0
    s_cbranch_scc1 s_fin
""")
    for n, (base, cnt, r) in enumerate(((WS_KF, 48, 0), (WS_YF, 80, 0), (WS_YF, 80, 1), (WS_KVF, 128, 0), (WS_KVF, 128, 1))):
        p(f"""v_add_u32 v187, {64*r}, v{BL}
        v_min_u32 v187, {cnt-1}, v187
        v_lshlrev_b32 v187, 9, v187
        s_mov_b32 s91, {base}""")
        pollall(p, f"s_ep{n}", S_WSB, 's91', 186, 187, 16)
    p(f"""s_mov_b32 s4, {WS_EP}
    buffer_store_dword v{V_TOK}, v38, {sr(S_WSB,4)}, s4 offen sc1""")
    p("s_fin:")
    if STAMP:
        stamp_store(p, S_WSB)
    p("done:\n s_endpgm\n code_end:")
    return p

def main():
    LDS = max(A_END + 16, B_END + 4608)
    assert LDS <= 163840, LDS
    ref = open(f"cdna_kernels/{NAME}.s.ref").read().split('\n')
    hdr = [l for l in ref if l.startswith(';') and '@launch' not in l]
    s = '\n'.join(hdr) + f"\n; @launch grid=(256,1,1) block=(256,1,1) lds={LDS}\n"
    s += f""".amdgcn_target "amdgcn-amd-amdhsa--gfx950"
.text
.p2align 12
.globl {NAME}_kernel
.p2align 8
.type {NAME}_kernel,@function
{NAME}_kernel:
"""
    e = Prog()
    e(f"""s_cmp_ge_u32 s2, 256
    s_cbranch_scc1 done""")
    if opt('cpf2', 0):
        e(f"""s_getpc_b64 s[36:37]
        v_lshlrev_b32 v2, 7, v0
        s_cmp_ge_u32 s2, 128
        s_cselect_b32 s38, roleB-{NAME}_kernel, 0
        v_add_u32 v2, s38, v2
        v_min_u32 v2, code_end-{NAME}_kernel-64, v2
        global_load_dword v253, v2, s[36:37]""", tag='offpath')
    e(f"""
    s_load_dwordx16 s[8:23], s[0:1], 0
    s_load_dwordx8 s[24:31], s[0:1], 64
    s_load_dwordx4 s[32:35], s[0:1], 96
    v_lshrrev_b32 v1, 6, v0
    s_nop 0
    v_readfirstlane_b32 s68, v1
    s_cmp_ge_u32 s2, 208
    s_cbranch_scc1 roleS
    s_cmp_ge_u32 s2, 128
    s_cbranch_scc1 roleB""")
    a = role_A()
    e.extend(a)
    L = lower(e) + lower(role_B()) + lower(role_S())
    if opt('align', 1):
        L, nn, npro = align8(L, sizes_of(s + render(L) + ''.join(f'pg{k}:\n' for k in range(NPG))))
        print("align: nops", nn, "promoted", npro)
    if NPG:
        dummy = ''.join(f"pg{k}:\n" for k in range(NPG))
        L, n = page_stubs(L, sizes_of(s + render(L) + dummy), 4096 - 0x300, 'roleB')
        print("page stubs", n)
        assert n == NPG
    s += render(L)
    s += f""".section .rodata,"a"
.p2align 6
.amdhsa_kernel {NAME}_kernel
  .amdhsa_next_free_vgpr 512
  .amdhsa_next_free_sgpr 102
  .amdhsa_accum_offset 256
  .amdhsa_group_segment_fixed_size 0
  .amdhsa_kernarg_size 112
  .amdhsa_user_sgpr_count 2
  .amdhsa_user_sgpr_kernarg_segment_ptr 1
  .amdhsa_system_sgpr_workgroup_id_x 1
.end_amdhsa_kernel
"""
    out = OPT.get('out', f"cdna_kernels/{NAME}.s")
    open(out, 'w').write(s)
    print("LDS", LDS, "A_END", A_END, "B_END", B_END, "lines", s.count('\n'))
main()
```

```python
import sys, struct
from gasm import Prog, finalize, merge, spread, singles, pack, bundles, lower, render, sizes_of, align8, page_stubs
NAME = "concat_heads__linear_kernel_hedgehog__ssm_conv_s4d__prompt"
OPT = dict(a.split('=') for a in sys.argv[1:] if '=' in a)
def opt(k, d): return type(d)(OPT.get(k, d))
STAMP = opt('stamp', 0)
ROT = opt('rot', 2)
def f2u(x): return struct.unpack('<I', struct.pack('<f', x))[0]
def vr(a, n): return f"v[{a}:{a+n-1}]" if n > 1 else f"v{a}"
def ar(a, n): return f"a[{a}:{a+n-1}]" if n > 1 else f"a{a}"
def sr(a, n): return f"s[{a}:{a+n-1}]" if n > 1 else f"s{a}"
def magic(d): return (2**32 + d - 1) // d

WS_KV = 0; WS_ZERO_END = 32 * 4096; WS_KVF = WS_ZERO_END; WS_KF = WS_KVF + 65536; WS_UF = WS_KF + 40960; WS_YF = WS_UF + 40960; WS_EP = WS_YF + 40960
WS_O = 262144; WS_STAMP = 4 << 20; WS_SIZE = 8 << 20
NSPARE = 48
NZERO_WG = 32
assert WS_EP + 128 <= WS_O
V_TOK = 253
P_X, P_W, P_PHI, P_WO, P_U, P_LA, P_AI, P_CR, P_CI, P_LDT, P_DS, P_OUT, P_DBG, P_WS = [8 + 2 * i for i in range(14)]
OOB = 0x80000000
SPIN = 400000

def srd(p, s, ptr, size, off=None):
    if off is None:
        p(f"s_mov_b32 s{s}, s{ptr}\n s_mov_b32 s{s+1}, s{ptr+1}")
    else:
        p(f"s_add_u32 s{s}, s{ptr}, {off}\n s_addc_u32 s{s+1}, s{ptr+1}, 0")
    p(f"s_mov_b32 s{s+2}, {size}\n s_mov_b32 s{s+3}, 0x20000")

nstamp = [0]
def stamp(p, sreg_base=96):
    if not STAMP: return
    k = nstamp[0]; nstamp[0] += 1
    if k in (0, 32): p(f"s_getreg_b32 s36, hwreg(HW_REG_HW_ID)\n v_writelane_b32 v255, s36, 60\n s_getreg_b32 s36, hwreg(HW_REG_XCC_ID)\n v_writelane_b32 v255, s36, 59")
    if k == 0: p(f"s_memrealtime s[36:37]\n s_waitcnt lgkmcnt(0)\n v_writelane_b32 v255, s36, 62")
    p(f"s_memtime s[36:37]\n s_waitcnt lgkmcnt(0)\n v_writelane_b32 v255, s36, {k}")
def stamp_store(p, wsrd):
    if not STAMP: return
    p(f"s_waitcnt vmcnt(0)\n s_memtime s[36:37]\n s_waitcnt lgkmcnt(0)\n v_writelane_b32 v255, s36, 61\n s_memrealtime s[36:37]\n s_waitcnt lgkmcnt(0)\n v_writelane_b32 v255, s36, 63")
    p(f"""s_lshl_b32 s36, s2, 2
    s_add_u32 s36, s36, s68
    s_lshl_b32 s36, s36, 8
    s_add_u32 s36, s36, {WS_STAMP}
    v_and_b32 v250, 63, v0
    v_lshlrev_b32 v250, 2, v250
    buffer_store_dword v255, v250, {sr(wsrd,4)}, s36 offen""")

def token_load(p, wsrd, vz):
    p(f"s_mov_b32 s4, {WS_EP}\n buffer_load_dword v{V_TOK}, v{vz}, {sr(wsrd,4)}, s4 offen sc1")
def token_make(p):
    p(f"""s_mov_b32 s4, 0x9e3779b1
    v_mul_lo_u32 v{V_TOK}, v{V_TOK}, s4
    v_add_u32 v{V_TOK}, 0x7f4a7c15, v{V_TOK}""")
def token_seen(p, dsrd, vt):
    p(f"""v_cmp_eq_u32 vcc, 0, v0
    v_mov_b32 v{vt}, {OOB:#x}
    v_mov_b32 v{V_CNT}, 1
    v_cndmask_b32_e64 v{vt}, v{vt}, 0, vcc
    buffer_atomic_add v{V_CNT}, v{vt}, {sr(dsrd,4)}, 8 offen sc1""")
def spinpoll(p, name, srdreg, soff, vt, va, cmp, init, period=None):
    period = period or opt('period', 24)
    p(f"v_mov_b32 v{vt}, {init}" if init is not None else f"v_not_b32 v{vt}, v{V_TOK}", tag='offpath')
    p(f"{name}:")
    p(f"""buffer_load_dword v{vt}, v{va}, {sr(srdreg,4)}, {soff} offen sc1
    s_mov_b32 s95, {period}""", tag='offpath')
    p(f"{name}_i:")
    p(f"""{cmp}
    s_sub_u32 s94, s94, 1
    s_cbranch_scc1 {name}_x
    s_cmp_eq_u64 vcc, -1
    s_cbranch_scc1 {name}_x
    s_sub_u32 s95, s95, 1
    s_cbranch_scc0 {name}_i
    s_waitcnt vmcnt(24)
    s_branch {name}""", tag='offpath')
    p(f"{name}_x:")
def pollall(p, name, srdreg, soff, vt, va, slp=0):
    p(f"s_mov_b32 s94, {SPIN}")
    p(f"{name}:")
    p(f"""buffer_load_dword v{vt}, v{va}, {sr(srdreg,4)}, {soff} offen sc1
    s_sub_u32 s94, s94, 1
    s_waitcnt vmcnt(0)
    v_cmp_eq_u32 vcc, v{V_TOK}, v{vt}
    s_cmp_eq_u32 s94, 0""")
    p(f"s_cbranch_scc1 {name}_x", tag='keep')
    p(f"s_cmp_eq_u64 vcc, -1")
    if slp:
        p(f"s_cbranch_scc1 {name}_x", tag='keep')
        p(f"s_sleep {slp}\n s_branch {name}", tag='keep')
    else: p(f"s_cbranch_scc0 {name}", tag='keep')
    p(f"{name}_x:")

A_RING = 0; NSLOT = 16; GR = 5120
A_PHIK = NSLOT * GR; PHI_RS = 352
A_VST = A_PHIK + 128 * PHI_RS
A_BD = A_VST + 20480
A_END = A_BD + 12800
A_KVIMG = A_PHIK
S_X, S_W, S_WO, S_WS, S_OUT, S_DBG, S_PHI = 40, 44, 48, 52, 56, 60, 64
V_XO = 1
V_XD = 5
V_WD = 9
V_TA = 14
V_Z = 22; V_T = 23
V_WF = 32
V_KA = 112; V_VA = 152; V_PA = 192; V_X = 240
OLD = 'sc1' if opt('osc1', 0) else ''

def mfma(p, d, a, b, c=None):
    p(f"v_mfma_f32_16x16x32_bf16 {d}, {a}, {b}, {d if c is None else c}")
def mfma32(p, d, a, b, c=None):
    p(f"v_mfma_f32_32x32x16_bf16 {d}, {a}, {b}, {d if c is None else c}")

LN = V_T; t = V_T + 1
parked = {}
def park(p, name, v):
    if name not in parked: parked[name] = 204 + len(parked)
    assert parked[name] < 256
    p(f"v_accvgpr_write_b32 a{parked[name]}, v{v}")
def unpark(q, name, v): q(f"v_accvgpr_read_b32 v{v}, a{parked[name]}")

def trbase(p, d, rowk, rowrho, extra=0):
    p(f"""v_bfe_u32 v{t}, v0, 5, 1
    v_mul_u32_u24 v{t}, {rowk}, v{t}
    v_bfe_u32 v{t+1}, v0, 2, 2
    v_mul_u32_u24 v{t+1}, {rowrho}, v{t+1}
    v_bfe_u32 v{t+2}, v0, 4, 1
    v_lshl_add_u32 v{t}, v{t+2}, 5, v{t}
    v_and_b32 v{t+2}, 3, v0
    v_lshl_add_u32 v{t}, v{t+2}, 3, v{t}
    v_add_u32 v{d}, v{t}, v{t+1}""")
    if extra: p(f"v_add_u32 v{d}, {extra}, v{d}")

def setup_g2(p):
    srd(p, S_WO, P_WO, 640 * 1280)
    srd(p, S_WS, P_WS, WS_SIZE)
    p(f"s_mul_i32 s78, s69, {128*2560}\n s_add_u32 s78, s78, s83")
    srd(p, S_OUT, P_OUT, 0, 's78')
    p(f"s_sub_u32 s{S_OUT+2}, {2048*2560}, s78")
    p(f"""s_lshr_b32 s79, s68, 1
    s_mul_i32 s79, s79, {80*1280}
    s_add_u32 s79, s79, s83
    s_and_b32 s85, s68, 1
    s_mul_i32 s85, s85, 40
    s_lshl_b32 s78, s69, 2
    s_add_u32 s78, s78, s68
    s_mul_i32 s78, s78, 40960
    s_add_u32 s92, s78, {WS_O}""")
    for i in range(5):
        p(f"""v_lshrrev_b32 v{t}, 3, v{LN}
        v_add_u32 v{t}, s85, v{t}
        v_add_u32 v{t}, {8*i}, v{t}
        v_lshrrev_b32 v{t+1}, 4, v{t}
        v_and_b32 v{t+2}, 7, v{t}
        v_lshl_add_u32 v{t+1}, v{t+1}, 3, v{t+2}
        v_bfe_u32 v{t+2}, v{t}, 3, 1
        v_mad_u32_u24 v{t+2}, v{t+2}, 20, v{t+1}
        v_add_u32 v{t+3}, 20, v{t+2}
        v_cmp_le_u32 vcc, 20, v{t+1}
        v_cndmask_b32 v{t+2}, v{t+2}, v{t+3}, vcc
        v_mul_u32_u24 v{t+2}, 1280, v{t+2}
        v_bfe_u32 v{t}, v{t}, 1, 1
        v_lshlrev_b32 v{t}, 2, v{t}
        v_and_b32 v{t+1}, 7, v0
        v_xor_b32 v{t}, v{t}, v{t+1}
        v_lshl_add_u32 v{t}, v{t}, 4, v{t+2}""")
        park(p, f'wo{i}', t)
    trbase(p, t + 3, 8 * 128, 128)
    p(f"""v_bfe_u32 v{t}, v0, 3, 1
    v_lshl_add_u32 v{t+3}, v{t}, 6, v{t+3}""")
    park(p, 'two', t + 3)
    p(f"""s_add_u32 s78, s84, {A_VST}
    v_and_b32 v{t}, 31, v0
    v_mul_u32_u24 v{t}, 144, v{t}
    v_bfe_u32 v{t+1}, v0, 5, 1
    v_lshl_add_u32 v{t}, v{t+1}, 3, v{t}
    v_add_u32 v{t}, s78, v{t}""")
    park(p, 'outw', t)
    p(f"""v_lshrrev_b32 v{t}, 3, v{LN}
    v_and_b32 v{t+1}, 7, v0
    v_lshlrev_b32 v{t+1}, 4, v{t+1}
    v_mul_u32_u24 v{t+2}, 144, v{t}
    v_add3_u32 v{t+2}, v{t+2}, v{t+1}, s78
    v_mul_u32_u24 v{t}, 2560, v{t}
    v_add_u32 v{t}, v{t}, v{t+1}""")
    park(p, 'outr', t + 2); park(p, 'outg', t)

def dma_bundles(G, hdr, items):
    B = []
    hdr(items[0][0]); B.append(hdr)
    for k, (m0, ld) in enumerate(items):
        q = Prog(); q(ld, tag=('dma', G))
        if k + 1 < len(items): q(items[k + 1][0])
        B.append(q)
    return B
def issue_group(G):
    slotbase = A_RING + (G % 4) * 4 * GR
    h = Prog()
    if G < 10:
        h(f"s_mul_i32 s86, s80, {64*3840}\n s_add_u32 s86, s86, s82\n s_lshl_b32 s81, s80, 7")
        h(f"s_add_u32 s80, s80, 1\n s_cmp_eq_u32 s80, 10\n s_cselect_b32 s80, 0, s80")
        sd = S_W
    elif G < 15:
        h(f"""s_lshl_b32 s86, s71, 1
        s_add_u32 s86, s86, s68
        s_add_u32 s86, s86, {4*(G-10)}
        s_sub_u32 s74, s86, 20
        s_cmp_ge_u32 s86, 20
        s_cselect_b32 s86, s74, s86
        s_mul_i32 s86, s86, {32*3840}
        s_add_u32 s86, s86, s75""")
        sd = S_W
    else:
        h(f"s_add_u32 s86, s79, {(G%4)*160*1280}")
        sd = S_WO
    W = [(f"s_add_u32 m0, s84, {slotbase + 1024*i}", f"buffer_load_dwordx4 v{V_QD[i] if 10 <= G < 15 else (V_WD+i if G < 10 else V_XO+i)}, {sr(sd,4)}, s86 offen {'nt' if opt('ntw', 0) else ''} lds") for i in range(5)]
    if G < 10:
        X = [(f"s_add_u32 m0, s87, {(G%4)*4096 + 1024*r}", f"buffer_load_dwordx4 v{V_XD+r}, {sr(S_X,4)}, s81 offen {'nt' if opt('ntx', 0) else ''} lds") for r in range(4)]
        items = [W[0], X[0], W[1], X[1], W[2], X[2], W[3], X[3], W[4]]
    else: items = W
    return dma_bundles(G, h, items)
V_QD = [21, 29, 30, 31, 252]

OF = lambda n: 88 + 4 * n
G2ACC = 56
def gemm2_tail(p):
    F = V_WF
    p("g2_tail:")
    unpark(p, 'two', V_TA)
    p(f"""v_xor_b32 v{V_TA+1}, 64, v{V_TA}
    v_add_u32 v{V_TA+2}, {8*GR}, v{V_TA}
    v_add_u32 v{V_TA+3}, {8*GR}, v{V_TA+1}
    v_lshlrev_b32 v{t+2}, 4, v{LN}
    v_lshrrev_b32 v{t+4}, 3, v{LN}
    v_mul_u32_u24 v{t+4}, 5120, v{t+4}
    v_and_b32 v{t}, 7, v0
    v_lshl_add_u32 v{t+4}, v{t}, 7, v{t+4}
    s_mov_b32 s94, {SPIN}
    s_add_u32 s93, s92, 4096
    s_barrier""")
    unpark(p, 'outw', t); unpark(p, 'outr', t + 1); unpark(p, 'outg', t + 3)
    stamp(p)
    def reads(n):
        hq, pp = divmod(n, 5); q = Prog(); fb = F + (n % 3) * 8
        off = hq * 10240 + pp * 2048; hi = 0
        if hq >= 4: off -= 8 * GR; hi = 2
        for T in range(2):
            for h in range(2):
                q(f"ds_read_b64_tr_b16 {vr(fb+4*T+2*h,2)}, v{V_TA+hi+T} offset:{off + 512*h}")
        return q
    p("g2_retry:")
    p.extend(reads(0)); p.extend(reads(1))
    p(f"s_mov_b32 s81, s92\n v_mov_b32 v248, 0")
    def oload(n):
        q = Prog(); hq, pp = divmod(n, 5)
        if pp == 4: q(f"s_add_u32 s85, s81, 4096")
        q(f"buffer_load_dwordx4 {vr(OF(n),4)}, v{t+2}, {sr(S_WS,4)}, {'s85' if pp == 4 else 's81'} offen offset:{1024*(pp%4)} sc1")
        if pp == 4: q("s_add_u32 s81, s81, 5120")
        return q
    PRE = opt('opre', 10); SPEC = opt('spec', 0)
    p(f"""buffer_load_dword v249, v{t+4}, {sr(S_WS,4)}, s93 offen sc1
    s_waitcnt vmcnt(0)
    v_cmp_ne_u32 vcc, -1, v249
    s_nop 1
    s_cmp_eq_u64 vcc, -1""")
    p("s_cbranch_scc1 g2_now", tag='keep')
    p("g2_poll:")
    if opt('gslp', 6): p(f"s_sleep {opt('gslp', 6)}")
    p(f"""buffer_load_dword v249, v{t+4}, {sr(S_WS,4)}, s93 offen sc1
    s_mov_b32 s81, s92
    s_sub_u32 s94, s94, 1""")
    if SPEC:
        for n in range(PRE): p.extend(oload(n))
    p(f"""v_cmp_ne_u32 vcc, -1, v249
    s_cmp_lt_i32 s94, 1""")
    p(f"s_cbranch_scc1 {'g2_go' if SPEC else 'g2_now'}", tag='keep')
    p("s_cmp_eq_u64 vcc, -1")
    p("s_cbranch_scc0 g2_poll", tag='keep')
    if SPEC: p("s_branch g2_go", tag='keep')
    p("g2_now:")
    for n in range(PRE):
        q = oload(n)
        if SPEC:
            for i_ in q.L: i_.tag = 'offpath'
        p.extend(q)
    p("g2_go:")
    stamp(p)
    for n in range(40):
        fb = F + (n % 3) * 8
        mm = Prog(); mm.need([vr(fb, 8), vr(OF(n), 4)])
        for T in range(2): mfma32(mm, vr(G2ACC + 16 * T, 16), vr(fb + 4 * T, 4), vr(OF(n), 4), '0' if n == 0 else None)
        st = []
        if n + 2 < 40: st.append((singles(reads(n + 2)), 0, 2))
        if n + PRE < 40: st.append(([oload(n + PRE)], 0, 1))
        c = Prog(); c(f"v_max3_u32 v248, v248, v{OF(n)}, v{OF(n)+1}\n v_max3_u32 v248, v248, v{OF(n)+2}, v{OF(n)+3}")
        st.append((singles(c), 1, 2))
        p.extend(pack(mm, st, cap=32))
    p(f"""v_cmp_eq_u32 vcc, -1, v248
    s_mul_i32 s78, s68, {32*2560}
    s_cmp_lt_i32 s94, 1""")
    p("s_cbranch_scc1 g2_out", tag='keep')
    p("s_sub_u32 s94, s94, 1\n s_nop 7\n s_nop 7")
    p("s_cbranch_vccnz g2_retry", tag='keep')
    p("g2_out:")
    stamp(p)
    for T in range(2):
        for j in range(4):
            x = G2ACC + 16 * T + 4 * j; o = 88 + 8 * T + 2 * j
            p(f"v_cvt_pk_bf16_f32 v{o}, v{x}, v{x+1}\n v_cvt_pk_bf16_f32 v{o+1}, v{x+2}, v{x+3}")
            p(f"ds_write_b64 v{t}, {vr(o,2)} offset:{64*T+16*j}")
    for i in range(4): p(f"ds_read_b128 {vr(104+4*i,4)}, v{t+1} offset:{8*144*i}")
    for i in range(4):
        p(f"buffer_store_dwordx4 {vr(104+4*i,4)}, v{t+3}, {sr(S_OUT,4)}, s78 offen {OPT.get('ast', 'sc1')}")
        if i < 3: p(f"s_add_u32 s78, s78, {8*2560}")
    stamp(p)
    stamp_store(p, S_WS)
    p("s_endpgm")

def divc(p, d, x, c):
    m, sh = {10: (205, 11), 20: (205, 12), 12: (171, 11), 5: (205, 10), 100: (41, 12)}[c]
    p(f"v_mul_u32_u24 v{d}, {m}, v{x}\n v_lshrrev_b32 v{d}, {sh}, v{d}")

V_PO = 160
V_D = 200
NPG = opt('npg', 6); XM = opt('xm', 0); YT = opt('yt', 1); UT = opt('ut', 0)
def decode_ab(p, tmp, sub, sb, hg):
    p(f"s_lshr_b32 {tmp}, s2, 3")
    if sub: p(f"s_sub_u32 {tmp}, {tmp}, {sub}")
    if XM == 0:
        p(f"""s_and_b32 s{sb}, s2, 6
        s_lshl_b32 s{sb}, s{sb}, 1
        s_and_b32 s{hg}, s2, 1
        s_lshl_b32 s{hg}, s{hg}, 2
        s_and_b32 s4, {tmp}, 3
        s_add_u32 s{hg}, s{hg}, s4
        s_lshr_b32 {tmp}, {tmp}, 2
        s_add_u32 s{sb}, s{sb}, {tmp}""")
    else:
        p(f"""s_and_b32 s{sb}, s2, 7
        s_lshl_b32 s{sb}, s{sb}, 1
        s_and_b32 s{hg}, {tmp}, 7
        s_lshr_b32 {tmp}, {tmp}, 3
        s_add_u32 s{sb}, s{sb}, {tmp}""")
def role_A():
    p = Prog(); nstamp[0] = 0
    p("roleA:")
    stamp(p)
    decode_ab(p, 's73', 0, 69, 70)
    if ROT == 2:
        p("""s_add_u32 s71, s69, s70
        s_mul_i32 s71, s71, 3
        s_mul_i32 s74, s71, 205
        s_lshr_b32 s74, s74, 11
        s_mul_i32 s74, s74, 10
        s_sub_u32 s71, s71, s74""")
    else:
        p(f"s_mul_i32 s71, s71, {5 if ROT else 0}\n s_add_u32 s71, s71, {1 if ROT else 0}\n s_lshr_b32 s71, s71, 1")
    p(f"""v_and_b32 v{LN}, 63, v0
    v_mov_b32 v{V_Z}, 0""")
    p(f"""s_lshl_b32 s76, s68, 5
    v_lshrrev_b32 v{t}, 3, v{LN}
    v_add_u32 v{t}, s76, v{t}
    v_mul_u32_u24 v{t}, 1280, v{t}
    v_and_b32 v{t+1}, 7, v0
    v_bfe_u32 v{t+2}, v0, 4, 2
    v_xor_b32 v{t+1}, v{t+1}, v{t+2}
    v_lshl_add_u32 v{V_XD}, v{t+1}, 4, v{t}
    v_xor_b32 v{V_XD+1}, 64, v{V_XD}
    v_add_u32 v{V_XD+1}, {8*1280}, v{V_XD+1}
    v_add_u32 v{V_XD+2}, {16*1280}, v{V_XD}
    v_add_u32 v{V_XD+3}, {16*1280}, v{V_XD+1}""")
    p(f"s_movk_i32 s78, 1120")
    for i in range(5):
        p(f"v_add_u32 v{t}, {64*i}, v{LN}")
        divc(p, t + 1, t, 20)
        p(f"""v_mul_u32_u24 v{t+2}, 20, v{t+1}
        v_sub_u32 v{t}, v{t}, v{t+2}
        v_mul_u32_u24 v{t+1}, 3840, v{t+1}
        v_cmp_le_u32 vcc, 10, v{t}
        v_lshl_add_u32 v{t+1}, v{t}, 4, v{t+1}
        v_add_u32 v{t+2}, s78, v{t+1}
        v_cndmask_b32 v{V_WD+i}, v{t+1}, v{t+2}, vcc""")
    p(f"""s_mov_b32 s80, s71
    s_mul_i32 s75, s70, 160
    s_mul_i32 s82, s68, {16*3840}
    s_add_u32 s82, s82, s75
    s_add_u32 s82, s82, 1280
    s_lshl_b32 s83, s70, 7
    s_mul_i32 s84, s68, {GR}
    s_lshl_b32 s87, s68, 14
    s_add_u32 s87, s87, {A_PHIK}
    s_mul_i32 s78, s69, {128*1280}""")
    srd(p, S_X, P_X, 128 * 1280, 's78')
    srd(p, S_W, P_W, 640 * 3840)
    su = Prog()
    trbase(su, V_TA, 8 * 320, 320)
    su(f"""v_add_u32 v{V_TA+1}, {8*GR}, v{V_TA}
    v_and_b32 v{t}, 31, v0
    v_bfe_u32 v{t+1}, v0, 1, 3
    v_bfe_u32 v{t+2}, v0, 5, 1
    v_xor_b32 v{t+1}, v{t+1}, v{t+2}
    v_lshlrev_b32 v{t+1}, 4, v{t+1}
    v_lshl_add_u32 v{t}, v{t}, 7, v{t+1}
    v_add_u32 v{V_XO}, s87, v{t}
    v_xor_b32 v{V_XO+1}, 32, v{V_XO}
    v_xor_b32 v{V_XO+2}, 64, v{V_XO}
    v_xor_b32 v{V_XO+3}, 96, v{V_XO}""")
    su(f"""v_mov_b32 v{V_X+4}, 0
    v_mov_b32 v{V_X+5}, 0
    v_mov_b32 v{V_X+6}, 0
    v_mov_b32 v{V_X+7}, 0
    v_lshlrev_b32 v{t}, 4, v0
    v_add_u32 v{t}, {A_BD}, v{t}
    v_min_u32 v{t+1}, {A_BD+496}, v{t}
    ds_write_b128 v{t}, {vr(V_X+4,4)}
    ds_write_b128 v{t}, {vr(V_X+4,4)} offset:4096
    ds_write_b128 v{t}, {vr(V_X+4,4)} offset:8192
    ds_write_b128 v{t+1}, {vr(V_X+4,4)} offset:12288""")
    L2E = 1.4426950408889634
    su(f"s_mov_b32 s88, {f2u(L2E):#x}\n s_mov_b32 s89, {f2u(L2E):#x}")
    for r in range(2):
        su(f"v_add_u32 v{t}, {256*r}, v0")
        divc(su, t + 1, t, 5); divc(su, t + 2, t, 100)
        su(f"""v_mul_u32_u24 v{t+1}, 120, v{t+1}
        v_mad_u32_u24 v{t+1}, v{t+2}, 40, v{t+1}
        v_lshl_add_u32 v{t+1}, v{t}, 3, v{t+1}
        v_add_u32 v{V_X+8+r}, {A_BD}, v{t+1}""")
    su(f"""v_mov_b32 v{t+1}, {A_END}
    v_cmp_gt_u32 vcc, 400, v{t}
    v_cndmask_b32 v{V_X+9}, v{t+1}, v{V_X+9}, vcc""")
    srd(su, S_DBG, P_DBG, 256)
    for i in range(5):
        su(f"v_add_u32 v{t}, {64*i}, v{LN}")
        divc(su, t + 1, t, 10)
        su(f"""v_mul_u32_u24 v{t+2}, 10, v{t+1}
        v_sub_u32 v{t}, v{t}, v{t+2}
        v_and_b32 v{t+2}, 24, v{t+1}
        v_and_b32 v{t+3}, 1, v{t+1}
        v_lshl_add_u32 v{t+2}, v{t+3}, 2, v{t+2}
        v_bfe_u32 v{t+3}, v{t+1}, 1, 2
        v_add_u32 v{t+2}, v{t+2}, v{t+3}
        v_mul_u32_u24 v{t+2}, 3840, v{t+2}
        v_lshl_add_u32 v{V_QD[i]}, v{t}, 4, v{t+2}""")
    su(f"""v_bfe_u32 v{t}, v0, 5, 1
    v_bfe_u32 v{t+1}, v0, 2, 2
    v_lshl_add_u32 v{t}, v{t}, 2, v{t+1}
    v_mul_u32_u24 v{t}, 160, v{t}
    v_and_b32 v{t+1}, 1, v0
    v_mad_u32_u24 v{t}, v{t+1}, 40, v{t}
    v_bfe_u32 v{t+1}, v0, 4, 1
    v_bfe_u32 v{t+2}, v0, 1, 1
    v_lshl_add_u32 v{t+1}, v{t+1}, 1, v{t+2}
    v_lshl_add_u32 v{t}, v{t+1}, 3, v{t}
    v_add_u32 v18, {A_BD}, v{t}
    v_cmp_eq_u32 vcc, 0, v{t+1}
    v_add_u32 v19, 32, v18
    v_add_u32 v{t+2}, 72, v18
    v_cndmask_b32 v19, v{t+2}, v19, vcc
    v_cmp_gt_u32 vcc, 2, v{t+1}
    v_add_u32 v20, 104, v18
    v_nop
    v_cndmask_b32 v20, v18, v20, vcc""".replace("    v_nop\n", ""))
    trbase(su, t + 3, 8 * 160, 320); park(su, 'tq', t + 3)
    a0 = V_PA
    su(f"""v_and_b32 v{t}, 31, v0
    v_add_u32 v{t}, s76, v{t}
    v_bfe_u32 v{t+1}, v0, 5, 1
    v_mul_u32_u24 v{t+2}, {PHI_RS}, v{t}
    v_add_u32 v{t+2}, {A_PHIK}, v{t+2}
    v_bfe_u32 v{t+3}, v0, 2, 1
    v_mul_u32_u24 v{t+4}, 5, v{t+1}
    v_xor_b32 v{a0}, v{t+4}, v{t+3}
    v_lshl_add_u32 v{a0}, v{a0}, 4, v{t+2}
    v_add_u32 v{t+4}, 1, v{t+4}
    v_xor_b32 v{a0+1}, v{t+4}, v{t+3}
    v_lshl_add_u32 v{a0+1}, v{a0+1}, 4, v{t+2}
    v_mul_u32_u24 v{t}, 160, v{t}
    v_add_u32 v{t}, {A_VST}, v{t}
    v_bfe_u32 v{t+3}, v0, 2, 2
    v_xor_b32 v{t+3}, v{t+3}, v{t+1}
    v_lshl_add_u32 v{a0+2}, v{t+3}, 3, v{t}
    v_xor_b32 v{t+3}, 2, v{t+3}
    v_lshl_add_u32 v{a0+3}, v{t+3}, 3, v{t}""")
    park(su, 'phiw0', a0); park(su, 'phiw1', a0 + 1); park(su, 'vw0', a0 + 2); park(su, 'vw1', a0 + 3)
    su(f"""v_bfe_u32 v{t}, v0, 2, 4
    v_bfe_u32 v{t+1}, v0, 4, 2
    s_mul_i32 s78, s68, 5
    v_bfe_u32 v{t+2}, v0, 1, 1
    v_add_u32 v{t+2}, s78, v{t+2}
    v_and_b32 v{t+3}, 1, v{t+1}
    v_xor_b32 v{t+2}, v{t+2}, v{t+3}
    v_and_b32 v{t+3}, 1, v0
    v_lshlrev_b32 v{t+3}, 3, v{t+3}
    v_lshl_add_u32 v{t+2}, v{t+2}, 4, v{t+3}
    v_mul_u32_u24 v{t+3}, {PHI_RS}, v{t}
    v_add_u32 v{t+2}, v{t+2}, v{t+3}
    v_add_u32 v{a0}, {A_PHIK}, v{t+2}
    v_mul_u32_u24 v{t}, 160, v{t}
    v_add_u32 v{t}, {A_VST}, v{t}
    v_and_b32 v{t+2}, 3, v0
    v_add_u32 v{t+2}, s78, v{t+2}
    v_xor_b32 v{t+2}, v{t+2}, v{t+1}
    v_lshl_add_u32 v{a0+1}, v{t+2}, 3, v{t}
    s_add_u32 s78, s78, 4
    v_xor_b32 v{t+2}, s78, v{t+1}
    v_lshl_add_u32 v{a0+2}, v{t+2}, 3, v{t}""")
    park(su, 'phir', a0); park(su, 'vr0', a0 + 1); park(su, 'vr1', a0 + 2)
    a0 = V_PA
    su(f"""v_and_b32 v{t+3}, 15, v0
    v_bfe_u32 v{t+4}, v0, 4, 2
    v_cmp_gt_u32 s[90:91], 8, v{t+3}
    v_lshlrev_b32 v{t}, 2, v{t+3}
    v_mul_u32_u24 v{t+1}, 768, v{t+4}
    v_add_u32 v{a0}, v{t}, v{t+1}
    v_add_u32 v{t+1}, {192-32}, v{a0}
    v_cndmask_b32 v{a0+1}, v{t+1}, v{a0}, s[90:91]
    v_mul_u32_u24 v{t+1}, 192, v{t+4}
    v_add_u32 v{t+1}, {16*192}, v{t+1}
    v_add_u32 v{a0+2}, v{t+1}, v{t}
    v_mov_b32 v{t+2}, {OOB:#x}
    v_cmp_gt_u32 vcc, 40, v{LN}
    v_cndmask_b32 v{a0+3}, v{t+2}, v{a0+2}, s[90:91]
    v_lshlrev_b32 v{t+1}, 2, v{LN}
    v_add_u32 v{t+1}, {20*192}, v{t+1}
    v_cndmask_b32 v{a0+4}, v{t+2}, v{t+1}, vcc
    v_cmp_eq_u32 vcc, 0, v{LN}
    v_cmp_gt_u32 s[90:91], 4, v{t+3}
    v_cndmask_b32 v{a0+6}, v{t+2}, v{V_Z}, vcc""")
    for k in range(5): park(su, f'at{k}', a0 + k)
    park(su, 'l0', a0 + 6)
    su(f"s_mul_i32 s85, s68, 1920\n s_add_u32 s85, s85, {A_KVIMG}\n v_mov_b32 v{t+4}, {A_KVIMG+9600}")
    for i in range(4):
        su(f"v_add_u32 v{t}, {64*i}, v{LN}")
        divc(su, t + 1, t, 12)
        su(f"""v_mul_u32_u24 v{t+2}, 12, v{t+1}
        v_sub_u32 v{t+2}, v{t}, v{t+2}
        v_cmp_gt_u32 vcc, 10, v{t+2}
        v_mul_u32_u24 v{t+1}, 80, v{t+1}
        v_lshl_add_u32 v{t+1}, v{t+2}, 3, v{t+1}
        v_add_u32 v{t+1}, s85, v{t+1}
        v_cndmask_b32 v{t+1}, v{t+4}, v{t+1}, vcc""")
        if i == 3: su(f"v_cmp_gt_u32 vcc, 60, v{LN}\n v_cndmask_b32 v{t+1}, v{t+4}, v{t+1}, vcc")
        park(su, f'kvw{i}', t + 1)
    su(f"""v_cmp_gt_u32 vcc, 120, v0
    v_lshlrev_b32 v{t}, 4, v0
    v_add_u32 v{t}, {A_KVIMG+7680}, v{t}
    v_cndmask_b32 v{t}, v{t+4}, v{t}, vcc""")
    park(su, 'kvz', t)
    su(f"""v_bfe_u32 v{t}, v0, 3, 2
    v_and_b32 v{t+1}, 3, v0
    v_lshl_add_u32 v{t}, v{t}, 2, v{t+1}
    v_mul_u32_u24 v{t}, 80, v{t}
    v_bfe_u32 v{t+1}, v0, 2, 1
    v_bfe_u32 v{t+4}, v0, 5, 1
    v_cmp_eq_u32 vcc, v{t+1}, v{t+4}
    v_mul_u32_u24 v{t+2}, 1920, v{t+1}
    v_add_u32 v{t}, v{t}, v{t+2}
    v_add_u32 v{t}, {A_KVIMG}, v{t}
    v_add_u32 v{t+3}, 3840, v{t}
    v_mov_b32 v{t+2}, {A_KVIMG+7680}
    v_cndmask_b32 v{t}, v{t+2}, v{t}, vcc
    v_cndmask_b32 v{t+3}, v{t+2}, v{t+3}, vcc""")
    park(su, 'kvr0', t); park(su, 'kvr1', t + 3)
    setup_g2(su)
    wl = Prog()
    wl("s_mul_i32 s77, s70, 3200")
    srd(wl, S_PHI, P_PHI, 3200, 's77')
    wl(f"""v_lshlrev_b32 v{V_X+10}, 3, v0
    buffer_load_dwordx2 {vr(V_X,2)}, v{V_X+10}, {sr(S_PHI,4)}, 0 offen
    buffer_load_dwordx2 {vr(V_X+2,2)}, v{V_X+10}, {sr(S_PHI,4)}, 0 offen offset:2048""")
    token_load(su, S_WS, V_Z)
    def sync(p, G):
        p.waitvm(('dma', G)); p("s_barrier")
    def touches():
        if NPG:
            for w_ in range(4):
                p(f"s_cmp_lg_u32 s68, {w_}")
                p(f"s_cbranch_scc1 a_t{w_}", tag='keep')
                for k in range(w_, NPG, 4): p(f"s_call_b64 s[4:5], pg{k}", tag='keep')
                p(f"a_t{w_}:")
    HALF = opt('half', 0)
    if HALF:
        p(f"""s_mul_i32 s86, s80, {64*3840}
        s_add_u32 s86, s86, s82
        s_lshl_b32 s81, s80, 7
        s_add_u32 s80, s80, 1
        s_cmp_eq_u32 s80, 10
        s_cselect_b32 s80, 0, s80
        s_mov_b32 s95, s86""")
        def w0(tag):
            for i in range(5): p(f"s_add_u32 m0, s84, {1024*i}\n s_nop 0\n buffer_load_dwordx4 v{V_WD+i}, {sr(S_W,4)}, s95 offen lds", tag=tag)
        p("s_cmp_ge_u32 s68, 2")
        p("s_cbranch_scc1 a_w0a", tag='keep')
        w0('offpath')
        p("a_w0a:")
        for r in range(4): p(f"s_add_u32 m0, s87, {1024*r}\n s_nop 0\n buffer_load_dwordx4 v{V_XD+r}, {sr(S_X,4)}, s81 offen lds", tag=('dma', 0))
        p.extend(su); p.extend(wl); touches()
        p("s_cmp_lt_u32 s68, 2")
        p("s_cbranch_scc1 a_w0b", tag='keep')
        p(f"s_waitcnt vmcnt(3)", tag='offpath')
        w0('offpath')
        p("s_branch a_w0c", tag='keep')
        p("a_w0b:")
        p("s_waitcnt vmcnt(3)", tag='offpath')
        p("a_w0c:")
        stamp(p)
        p("s_waitcnt lgkmcnt(0)\n s_barrier")
    else:
        iss = issue_group(0) + [wl]
        sub = bundles(su)
        LEAD = opt('lead', 7); per = opt('suchunk', 30)
        for k, b in enumerate(iss):
            p.extend(b)
            if k >= LEAD:
                for x in sub[:per]: p.extend(x)
                sub = sub[per:]
        for x in sub: p.extend(x)
        touches()
        for b in issue_group(1): p.extend(b)
        stamp(p)
        p("s_waitcnt lgkmcnt(0)")
        sync(p, 0)
    stamp(p)
    FD = 2
    def kv_reads(k):
        q = Prog(); fb = V_WF + (k % 3) * 20
        slot = k % NSLOT; base = V_TA + (slot >= 8); so = (slot % 8) * GR
        q(f"ds_read_b128 {ar(4*k,4)}, v{V_XO+k%4} offset:{((k//4)%4)*4096}")
        for T in range(5):
            for h in range(2):
                q(f"ds_read_b64_tr_b16 {vr(fb+4*T+2*h,2)}, v{base} offset:{so + 1280*h + 64*T}")
        return q
    PH = [(0, 0), (0, 1), (0, 2), (1, 0), (1, 1), (1, 2), (1, 3), (1, 4), (2, 2), (2, 3), (2, 4)]
    bdr = Prog()
    for n, (U, ka) in enumerate(PH):
        for h in range(2): bdr(f"ds_read_b64_tr_b16 {ar(160+4*n+2*h,2)}, v{18+U} offset:{(16*ka+8*h)*160}")
    bdr = singles(bdr)
    for k in range(FD): p.extend(kv_reads(k))
    segs = [list(range(0, 4 - FD))] + [list(range(4 * G - FD, 4 * G + 4 - FD)) for G in range(1, 10)] + [list(range(40 - FD, 40))]
    for si, steps in enumerate(segs):
        if si >= 1:
            if si == 10: p("s_waitcnt lgkmcnt(0)")
            if STAMP == 2: stamp(p)
            sync(p, si)
            if HALF and si == 1: p.extend(kv_reads(2)); p.extend(kv_reads(3))
        m = Prog(); st = []
        for n, k in enumerate(steps):
            fb = V_WF + (k % 3) * 20
            m.need([vr(fb, 20), ar(4 * k, 4)])
            for T in range(5): mfma32(m, vr(V_KA + 16 * T, 16), vr(fb + 4 * T, 4), ar(4 * k, 4), '0' if k == 0 else None)
            if k + FD < 40 and not (HALF and si == 0): st.append((singles(kv_reads(k + FD)), 5 * n, 5 * n + 5))
        if HALF and si == 0: st.append((issue_group(1), 0, None))
        elif HALF and si == 1: st.append((issue_group(2) + issue_group(3), 0, None))
        else: st.append((issue_group(si + 2), 0, None))
        if si == 1:
            w = Prog(); w(f"ds_write_b64 v{V_X+8}, {vr(V_X,2)}\n ds_write_b64 v{V_X+9}, {vr(V_X+2,2)}")
            st.append((singles(w), 2, 12))
        if si == 2:
            w = Prog(); token_make(w); st.append((singles(w), 0, None))
        if si == 8:
            w = Prog(); w(f"buffer_load_dword v{V_X+10}, v{V_Z}, {sr(S_DBG,4)}, 0 offen sc1")
            st.append(([w], 0, 1))
        if si == 10:
            w = Prog(); unpark(w, 'vw0', t + 1); unpark(w, 'vw1', t + 3); unpark(w, 'phiw0', t + 2); unpark(w, 'phiw1', V_X + 11); unpark(w, 'tq', V_TA + 2)
            w(f"v_add_u32 v{V_TA+3}, {8*GR}, v{V_TA+2}")
            for i in range(5): unpark(w, f'wo{i}', V_XO + i)
            w(f"""v_lshlrev_b32 v{t}, 4, v{LN}
            s_mul_i32 s77, s70, 5120
            s_add_u32 s77, s77, s92
            s_add_u32 s78, s77, 4096""")
            st.append((singles(w), 0, None)); st.append((bdr, 0, None))
        p.extend(pack(m, st))
    stamp(p)

    def phi_step(p, acc, out, extra=None, inexp=None):
        B = V_WF; E = V_WF + 24; M = V_WF + 64
        cv = [f"v_cvt_pk_bf16_f32 v{B+k}, v{acc+2*k}, v{acc+2*k+1}" for k in range(20)]
        def minmax(y):
            q = Prog(); x = V_PA + y * 20; Mx = M + 8 * y
            q(f"v_max3_f32 v{Mx}, v{x}, v{x+1}, v{x+2}\n v_min3_f32 v{Mx+2}, v{x}, v{x+1}, v{x+2}")
            for k in range(3, 19, 2):
                q(f"v_max3_f32 v{Mx}, v{Mx}, v{x+k}, v{x+k+1}\n v_min3_f32 v{Mx+2}, v{Mx+2}, v{x+k}, v{x+k+1}")
            q(f"v_max_f32 v{Mx}, v{Mx}, v{x+19}\n v_min_f32 v{Mx+2}, v{Mx+2}, v{x+19}")
            q(f"v_mul_f32 v{Mx}, s88, v{Mx}\n v_mul_f32 v{Mx+2}, s88, v{Mx+2}")
            return q
        for c in cv[:8]: p(c)
        m = Prog(); seen = set()
        for n, (U, ka) in enumerate(PH):
            mfma32(m, vr(V_PA + 16 * U, 16), ar(160 + 4 * n, 4), vr(B + 4 * ka, 4), None if U in seen else '0'); seen.add(U)
        c2 = Prog()
        for c in cv[8:]: c2(c)
        st = [(singles(c2), 0, 2)]
        if extra: st.append((bundles(extra), 2, 11))
        p.extend(pack(m, st, cap=28))
        for y in range(2):
            x = V_PA + y * 20; Mx = M + 8 * y
            p.extend(minmax(y))
            for q in range(10):
                p(f"v_pk_fma_f32 {vr(E+2*q,2)}, {vr(x+2*q,2)}, s[88:89], {vr(Mx,2)} op_sel_hi:[1,1,0] neg_lo:[0,0,1] neg_hi:[0,0,1]")
                p(f"v_pk_fma_f32 {vr(E+20+2*q,2)}, {vr(x+2*q,2)}, s[88:89], {vr(Mx+2,2)} op_sel_hi:[1,1,0] neg_lo:[1,0,0] neg_hi:[1,0,0]")
            for q in range(40):
                p(f"v_exp_f32 v{E+q}, v{E+q}")
                if y == 0 and inexp and q % 6 == 5: p.extend(inexp.pop(0))
            for q in range(1, 10):
                for hh in range(2):
                    S = Mx + 4 + 2 * hh; e = E + 20 * hh
                    p(f"v_pk_add_f32 {vr(S,2)}, {vr(e if q == 1 else S,2)}, {vr(e+2*q,2)}")
            p(f"v_add_f32 v{Mx+4}, v{Mx+4}, v{Mx+5}\n v_add_f32 v{Mx+6}, v{Mx+6}, v{Mx+7}")
            p(f"v_rcp_f32 v{Mx+4}, v{Mx+4}\n v_rcp_f32 v{Mx+6}, v{Mx+6}")
            for hh in range(2):
                for q in range(10):
                    e = E + 20 * hh + 2 * q
                    p(f"v_pk_mul_f32 {vr(e,2)}, {vr(e,2)}, {vr(Mx+4+2*hh,2)} op_sel_hi:[1,0]")
            yield y
            for q in range(20):
                p(f"v_cvt_pk_bf16_f32 v{out+y*20+q}, v{E+2*q}, v{E+2*q+1}")

    def q_reads(k):
        q = Prog(); fb = V_WF + (k % 3) * 12
        slot = (40 + k // 2) % NSLOT; base = V_TA + 2 + (slot >= 8); so = (slot % 8) * GR + (k % 2) * 2560
        for T in range(3):
            for h in range(2):
                q(f"ds_read_b64_tr_b16 {vr(fb+4*T+2*h,2)}, v{base} offset:{so + 160*h + 64*T}")
        return q
    ex = Prog()
    for mm_ in range(10):
        a = V_VA + 4 * mm_; d = V_X + 2 * (mm_ % 4)
        ex(f"v_cvt_pk_bf16_f32 v{d}, v{a}, v{a+1}\n v_cvt_pk_bf16_f32 v{d+1}, v{a+2}, v{a+3}\n ds_write_b64 v{t+1+2*(mm_%2)}, {vr(d,2)} offset:{32*(mm_//2)}")
    w = Prog(); w0 = Prog()
    for k in range(4): w0(f"v_mov_b32 v{V_X+4+k}, -1")
    for pc in range(5):
        w(f"buffer_store_dwordx4 {vr(V_X+4,4)}, v{t}, {sr(S_WS,4)}, {'s78' if pc == 4 else 's77'} offen offset:{1024*(pc%4)} sc1")
    for y in phi_step(p, V_KA, V_PO, ex, [w0] + singles(w)):
        if y == 1:
            p.extend(q_reads(0));
    p.extend(q_reads(1))
    stamp(p)
    p(f"""v_readfirstlane_b32 s95, v{V_X+10}
    s_mov_b32 s94, {SPIN}
    s_cmp_ge_u32 s95, {NZERO_WG}""")
    p("s_cbranch_scc1 a_pz_x", tag='keep')
    p("a_pz:")
    p(f"""buffer_load_dword v{V_X+10}, v{V_Z}, {sr(S_DBG,4)}, 0 offen sc1
    s_sub_u32 s94, s94, 1
    s_waitcnt vmcnt(0)
    v_readfirstlane_b32 s95, v{V_X+10}
    s_cmp_eq_u32 s94, 0""", tag='offpath')
    p("s_cbranch_scc1 a_pz_x", tag='keep')
    p(f"s_cmp_ge_u32 s95, {NZERO_WG}")
    p("s_cbranch_scc0 a_pz", tag='keep')
    p("a_pz_x:")
    pw = Prog()
    for y in range(2):
        for q in range(5): pw(f"ds_write_b128 v{V_X+11 if q % 2 else t+2}, {vr(V_PO+y*20+4*q,4)} offset:{160*y + 32*(q//2)}")
    pre = Prog()
    unpark(pre, 'phir', t); unpark(pre, 'vr0', t + 1); unpark(pre, 'vr1', t + 3)
    pre(f"v_mov_b32 v{t+4}, 0x3f803f80")
    for k in range(5): unpark(pre, f'at{k}', V_X + k)
    pre(f"""s_lshl_b32 s78, s70, 2
    s_add_u32 s78, s78, s68
    s_lshl_b32 s78, s78, 12
    s_add_u32 s78, s78, {WS_KV}""")
    KF = [72, 92, V_PO, V_PO + 20]
    def kvs_reads(sw):
        q = Prog(); fb = KF[sw]
        for h in range(2): q(f"ds_read_b64_tr_b16 {vr(fb+4+2*h,2)}, v{t+3} offset:{(sw*32+h*16)*160}")
        for h in range(2): q(f"ds_read_b64_tr_b16 {vr(fb+2*h,2)}, v{t+1} offset:{(sw*32+h*16)*160}")
        for nf in range(3):
            for h in range(2):
                q(f"ds_read_b64_tr_b16 {vr(fb+8+4*nf+2*h,2)}, v{t} offset:{(sw*32+h*16)*PHI_RS + 32*nf}")
        return q
    def kvs_mfma(m, sw):
        fb = KF[sw]
        m.need([vr(fb, 20)])
        for q in range(4): m(f"v_cndmask_b32 v{fb+4+q}, v{t+4}, v{fb+4+q}, s[90:91]")
        for md in range(2):
            for nf in range(3):
                mfma(m, vr(V_D + (3 * md + nf) * 4, 4), vr(fb + 4 * md, 4), vr(fb + 8 + 4 * nf, 4), '0' if sw == 0 else None)
    at = Prog(); a0 = V_X
    def atom(v, vo, off): at(f"buffer_atomic_add_f32 v{v}, v{vo}, {sr(S_WS,4)}, s78 offen offset:{off}", tag='kvat')
    for nf in range(2):
        for i in range(4): atom(V_D + 4 * nf + i, a0, i * 192 + nf * 64)
    R = lambda nf, i: V_D + 12 + 4 * nf + i
    for i in (0, 2):
        at(f"v_mov_b32_dpp v{V_D+8+i}, v{V_D+9+i} row_shr:8 row_mask:0xf bank_mask:0xc")
    for nf in range(3):
        at(f"v_permlane16_swap_b32 v{R(nf,0)}, v{R(nf,1)}\n v_permlane16_swap_b32 v{R(nf,2)}, v{R(nf,3)}")
    for i in (0, 2): atom(V_D + 8 + i, a0 + 1, i * 192 + 128)
    for nf in range(3): at(f"v_permlane32_swap_b32 v{R(nf,0)}, v{R(nf,2)}")
    at(f"v_permlane16_swap_b32 v{R(0,1)}, v{R(1,1)}")
    for nf in range(3): atom(R(nf, 0), a0 + (3 if nf == 2 else 2), nf * 64)
    at(f"v_permlane32_swap_b32 v{R(0,1)}, v{R(2,1)}")
    atom(R(0, 1), a0 + 4, 0)
    KS = opt('ks', 4)
    segs = [list(range(0, 6))] + [list(range(8 * g - 2, 8 * g + 6)) for g in range(1, 5)] + [[38, 39]]
    def signal():
        unpark(p, 'l0', V_X + 7)
        p(f"""s_lshl_b32 s78, s70, 13
        s_lshl_b32 s85, s69, 9
        s_add_u32 s78, s78, s85
        s_lshl_b32 s85, s68, 7
        s_add_u32 s78, s78, s85
        s_add_u32 s78, s78, {WS_KVF}""")
        p.waitvm('kvat')
        p(f"buffer_store_dword v{V_TOK}, v{V_X+7}, {sr(S_WS,4)}, s78 offen sc1")
    def qstep(k):
        m = Prog(); fb = V_WF + (k % 3) * 12
        m.need([vr(fb, 12)])
        for T in range(3): mfma32(m, vr(V_KA + 16 * T, 16), vr(fb + 4 * T, 4), ar(4 * k, 4), '0' if k == 0 else None)
        return m
    def qrun(steps, extra):
        m = Prog(); st = []
        for n, k in enumerate(steps):
            m.extend(qstep(k))
            if k + 2 < 40: st.append((singles(q_reads(k + 2)), 3 * n, 3 * n + 3))
        p.extend(pack(m, st + extra, cap=28))
    NW = opt('nw', 4)
    qrun(range(0, NW), [(singles(pw), 0, 3 * NW - 2), (bundles(pre), 2, None)])
    if STAMP == 3: stamp(p)
    p("s_waitcnt lgkmcnt(0)\n s_barrier")
    kr = Prog()
    for sw in range(4): kr.extend(kvs_reads(sw))
    kr = singles(kr)
    for x in kr[:10]: p.extend(x)
    qrun(range(NW, 6), [(kr[10:], 0, None)])
    m = Prog()
    for sw in range(4): kvs_mfma(m, sw)
    p.extend(pack(m, [(issue_group(13), 0, 20)], cap=8))
    if STAMP == 3: stamp(p)
    for si, steps in enumerate(segs):
        G = 10 + si
        if si == 0: continue
        if STAMP == 3 and si > 1: stamp(p)
        if si == KS: signal()
        if G < 15: sync(p, G)
        if si == 1: qrun(steps, [(singles(at), 0, opt('atspan', 24))])
        elif si < 5: qrun(steps, [(issue_group(G + 2), 0, None)])
        else: qrun(steps, [])
    if KS == 6: signal()
    stamp(p)
    F = V_WF
    ex = Prog()
    unpark(ex, 'kvz', t)
    ex(f"""v_mov_b32 v{V_X}, 0
    v_mov_b32 v{V_X+1}, 0
    v_mov_b32 v{V_X+2}, 0
    v_mov_b32 v{V_X+3}, 0
    ds_write_b128 v{t}, {vr(V_X,4)}
    v_lshlrev_b32 v{t+1}, 7, v{LN}
    v_lshlrev_b32 v{t+2}, 4, v{LN}
    s_lshl_b32 s78, s70, 13
    s_add_u32 s78, s78, {WS_KVF}
    s_lshl_b32 s77, s70, 2
    s_add_u32 s77, s77, s68
    s_lshl_b32 s77, s77, 12
    s_add_u32 s77, s77, {WS_KV}""")
    for i in range(4): unpark(ex, f'kvw{i}', V_X + 4 + i)
    KL = V_KA + 32
    def kvloads(tag=None):
        for i in range(4):
            p(f"buffer_load_dwordx4 {vr(KL+4*i,4)}, v{t+2}, {sr(S_WS,4)}, s77 offen offset:{1024*i} sc1", tag=tag)
    ex(f"""buffer_load_dword v{V_X+8}, v{t+1}, {sr(S_WS,4)}, s78 offen sc1
    v_and_b32 v{t+3}, 7, v0
    v_lshlrev_b32 v{t+3}, 13, v{t+3}
    s_lshl_b32 s93, s69, 9
    s_lshl_b32 s81, s68, 7
    s_add_u32 s93, s93, s81
    s_add_u32 s93, s93, {WS_KVF}""")
    for y in phi_step(p, V_KA, V_PO, ex):
        if y == 0:
            p(f"v_cmp_eq_u32 vcc, v{V_TOK}, v{V_X+8}\n s_mov_b32 s95, 0\n s_nop 0\n s_cmp_eq_u64 vcc, -1")
            p("s_cbranch_scc0 a_noearly", tag='keep')
            kvloads('offpath')
            p("s_mov_b32 s95, 1", tag='offpath')
            p("a_noearly:")
            p(f"buffer_load_dword v{V_X+9}, v{t+3}, {sr(S_WS,4)}, s93 offen sc1")
        if y == 1:
            stamp(p)
            p("s_cmp_eq_u32 s95, 1")
            p("s_cbranch_scc1 a_have", tag='keep')
            pollall(p, "a_pk", S_WS, 's78', V_X + 8, t + 1)
            kvloads()
            p("a_have:")
            stamp(p)
            p("s_waitcnt vmcnt(0)")
            for i in range(4):
                p(f"v_cvt_pk_bf16_f32 v{F+2*i}, v{KL+4*i}, v{KL+4*i+1}\n v_cvt_pk_bf16_f32 v{F+1+2*i}, v{KL+4*i+2}, v{KL+4*i+3}")
                p(f"ds_write_b64 v{V_X+4+i}, {vr(F+2*i,2)}")
            p(f"v_cmp_eq_u32 vcc, v{V_TOK}, v{V_X+9}")
            unpark(p, 'kvr0', t); unpark(p, 'kvr1', t + 1)
            p("s_cmp_eq_u64 vcc, -1")
            p("s_cbranch_scc1 a_pf_x", tag='keep')
            q = Prog(); pollall(q, "a_pf", S_WS, 's93', V_X + 9, t + 3)
            for i_ in q.L: i_.tag = 'offpath' if i_.kind not in ('label',) else i_.tag
            p.extend(q)
            p(f"""s_mul_i32 s76, s70, 5120
            s_add_u32 s78, s92, s76
            s_add_u32 s81, s78, 4096
            s_mov_b32 s85, {f2u(1e-6):#x}""")
    p("s_waitcnt lgkmcnt(0)\n s_barrier")
    stamp(p)
    order = [(y, u, ka) for u in (1, 0) for y in range(2) for ka in range(5)]
    NB = 10; O = F + 48
    def ord_(n):
        y, u, ka = order[n]; q = Prog(); q(f"ds_read_b128 {vr(F+4*(n%NB),4)}, v{t+y} offset:{u*1280+16*ka}"); return q
    for n in range(NB): p.extend(ord_(n))
    def fin(y, ks):
        q = Prog(); dn = V_KA + 16 * y + 4
        vals = [V_D + 16 * y + r for r in range(16)] + [V_KA + 16 * y + r for r in range(4)]
        for k in ks:
            q(f"v_mul_f32 v{vals[2*k]}, v{dn}, v{vals[2*k]}\n v_mul_f32 v{vals[2*k+1]}, v{dn}, v{vals[2*k+1]}")
            q(f"v_cvt_pk_bf16_f32 v{O+10*y+k}, v{vals[2*k]}, v{vals[2*k+1]}")
        return q
    def ost(q, pc): q(f"buffer_store_dwordx4 {vr(O+4*pc,4)}, v{t+2}, {sr(S_WS,4)}, {'s81' if pc == 4 else 's78'} offen offset:{1024*(pc%4)} {'' if opt('oplain', 0) else 'sc1'}", tag='ost')
    om = Prog()
    for n, (y, u, ka) in enumerate(order):
        if n in (0, 2, 5, 10, 15): om.need([vr(F + 4 * (m_ % NB), 4) for m_ in range(n, {0: 2, 2: 5}.get(n, n + 5))])
        mfma32(om, vr((V_D if u == 0 else V_KA) + 16 * y, 16), vr(F + 4 * (n % NB), 4), vr(V_PO + y * 20 + 4 * ka, 4), '0' if ka == 0 else None)
        if n + NB < 20: om.extend(ord_(n + NB))
    d0 = Prog(); d1 = Prog()
    for y, d in ((0, d0), (1, d1)):
        dn = V_KA + 16 * y + 4
        d(f"v_add_f32 v{dn}, s85, v{dn}\n v_rcp_f32 v{dn}, v{dn}"); d.extend(fin(y, (8, 9)))
    f0 = fin(0, range(4)); ost(f0, 0); f0.extend(fin(0, range(4, 8))); ost(f0, 1)
    p.extend(pack(om, [(issue_group(17) + issue_group(18), 0, 12), (singles(d0), 8, 11), (singles(d1), 12, 15), (singles(f0), 16, 20)], cap=28))
    dn = V_KA + 20
    for k in range(8):
        p(f"v_pk_mul_f32 {vr(V_D+16+2*k,2)}, {vr(V_D+16+2*k,2)}, {vr(dn,2)} op_sel_hi:[1,0]")
    for k in range(8):
        p(f"v_cvt_pk_bf16_f32 v{O+10+k}, v{V_D+16+2*k}, v{V_D+17+2*k}")
        if k in (1, 5, 7): ost(p, {1: 2, 5: 3, 7: 4}[k])
    stamp(p)
    p.waitvm(('dma', 18))
    gemm2_tail(p)
    return p

CP = 4168; YP = 4160; SRS = 544
B_RAW = 0
B_UC = 33280
B_KR = B_UC + 16 * CP
B_SC = B_KR + 4 * 4608
B_END = B_SC + 4 * 16 * SRS
S_KR = 81920; S_SC = S_KR + 4 * 4608
WS_KR = 4 << 20
BL, B15, BG, BZ = 1, 2, 3, 4
A_SW, A_SR, A_T0, A_T1, A_T1b, A_T2, A_X3, A_X2, A_X1, A_X0, A_KW, A_KW32, A_KB, MSK = range(24, 38)
PR = 8
S_U, S_LA, S_AI, S_CR, S_CI, S_LDT, S_DS, S_O, S_WSB = 40, 44, 48, 52, 56, 60, 64, 72, 76

def kg_lanes(p):
    p(f"""v_and_b32 v{BL}, 63, v0
    v_and_b32 v{B15}, 15, v0
    v_bfe_u32 v{BG}, v0, 4, 2
    v_mov_b32 v{BZ}, 0
    v_lshlrev_b32 v5, 2, v{BL}
    s_waitcnt lgkmcnt(0)""")
    for s_, ptr, size in ((S_LA, P_LA, 640*256), (S_AI, P_AI, 640*256), (S_CR, P_CR, 640*256), (S_CI, P_CI, 640*256), (S_LDT, P_LDT, 1280), (S_DS, P_DS, 1280)):
        srd(p, s_, ptr, size)
def kg_params(p, sch, P):
    p(f"s_lshl_b32 s81, {sch}, 8\n s_lshl_b32 s80, {sch}, 1")
    p(f"buffer_load_ushort v{P+4}, v{BZ}, {sr(S_LDT,4)}, s80 offen")
    for k, s_ in enumerate((S_LA, S_AI, S_CR, S_CI)):
        p(f"buffer_load_dword v{P+k}, v5, {sr(s_,4)}, s81 offen {'nt' if opt('ntp', 1) else ''}")
    p(f"buffer_load_ushort v{P+5}, v{BZ}, {sr(S_DS,4)}, s80 offen")
def kg_setup(p, KR, SC):
    t = 40
    p(f"""s_mul_i32 s83, s68, 4608
    s_add_u32 s83, s83, {KR}
    s_mul_i32 s84, s68, {16*SRS}
    s_add_u32 s84, s84, {SC}
    v_lshl_add_u32 v{A_SW}, v{BL}, 3, s84
    v_mul_u32_u24 v{A_SR}, {SRS}, v{B15}
    v_lshl_add_u32 v{A_SR}, v{BG}, 4, v{A_SR}
    v_add_u32 v{A_SR}, s84, v{A_SR}
    v_cmp_gt_u32 vcc, 2, v{BG}
    v_lshrrev_b32 v{t}, 1, v{BG}
    v_and_b32 v{t+1}, 1, v{BG}
    v_lshlrev_b32 v{A_T0}, 9, v{t}
    v_lshl_add_u32 v{A_T0}, v{t+1}, 4, v{A_T0}
    v_lshl_add_u32 v{A_T0}, v{B15}, 5, v{A_T0}
    v_add_u32 v{A_T0}, s84, v{A_T0}
    v_lshlrev_b32 v{t+2}, 4, v{B15}
    v_lshlrev_b32 v{t+3}, 3, v{B15}
    v_cndmask_b32 v{t+2}, v{t+3}, v{t+2}, vcc
    v_lshl_add_u32 v{A_T1}, v{BG}, 8, v{t+2}
    v_add_u32 v{A_T1}, s84, v{A_T1}
    v_mov_b32 v{t+2}, 128
    v_mov_b32 v{t+3}, 8
    v_cndmask_b32 v{t+2}, v{t+2}, v{t+3}, vcc
    v_add_u32 v{A_T1b}, v{A_T1}, v{t+2}
    v_lshlrev_b32 v{A_T2}, 8, v{BG}
    v_lshl_add_u32 v{A_T2}, v{B15}, 2, v{A_T2}
    v_add_u32 v{A_T2}, s84, v{A_T2}
    v_lshl_add_u32 v{A_X3}, v{BL}, 2, s84
    v_lshl_add_u32 v{A_X2}, v{BL}, 3, s84
    v_and_b32 v{t}, 31, v0
    v_lshl_add_u32 v{A_X1}, v{t}, 4, s84
    v_lshl_add_u32 v{A_X0}, v{t}, 5, s84
    v_lshlrev_b32 v{t+1}, 4, v{BL}
    v_sub_u32 v{A_KW}, s83, v{t+1}
    v_add_u32 v{A_KW}, 1008, v{A_KW}
    v_lshlrev_b32 v{t+1}, 4, v{t}
    v_sub_u32 v{A_KW32}, s83, v{t+1}
    v_add_u32 v{A_KW32}, 496, v{A_KW32}
    v_and_b32 v{t}, 1, v0
    v_cmp_eq_u32 vcc, 1, v{t}
    v_mov_b32 v{t+1}, 0xffff
    v_mov_b32 v{t+2}, -1
    v_cndmask_b32 v{MSK}, v{t+1}, v{t+2}, vcc
    s_mov_b32 s85, 0xffff
    s_mov_b32 s86, {f2u(1.4426950408889634):#x}
    s_mov_b32 s87, 0x32a57060
    s_mov_b32 s88, {f2u(0.6931471805599453):#x}
    s_mov_b32 s89, 0xffff0000""")

def exp_bf16(p, d, x, t):
    p(f"""v_mul_f32 v{t}, s86, v{x}
    v_fma_f32 v{t+1}, v{x}, s86, -v{t}
    v_exp_f32 v{t}, v{t}
    v_fma_f32 v{t+1}, v{x}, s87, v{t+1}
    v_mul_f32 v{t+1}, s88, v{t+1}
    v_fma_f32 v{t}, v{t}, v{t+1}, v{t}
    v_cvt_pk_bf16_f32 v{t}, v{t}, v{t}
    v_and_b32 v{d}, s89, v{t}""")
def cmul(p, c, a, b):
    p(f"v_pk_mul_f32 {vr(c,2)}, {vr(a,2)}, {vr(b,2)} op_sel:[0,0] op_sel_hi:[0,1]")
    p(f"v_pk_fma_f32 {vr(c,2)}, {vr(a,2)}, {vr(b,2)}, {vr(c,2)} op_sel:[1,1,0] op_sel_hi:[1,0,1] neg_lo:[0,1,0]")
def kgen(p, P, sched):
    E = lambda k, mu: 48 + 4 * (k - 1) + 2 * mu
    E8 = lambda mu: 76 + 2 * mu
    E128 = lambda mu: 80 + 2 * mu
    GA = lambda par, mu: 84 + 4 * par + 2 * mu
    XT = lambda k, mu: 92 + 4 * (k % 2) + 2 * mu
    PK = lambda k: 100 + 2 * (k % 4)
    FB = 108; FA = 140; DT = 172
    t = 40
    p(f"v_lshlrev_b32 v{t+6}, 16, v{P+4}")
    exp_bf16(p, t + 7, t + 6, t)
    p.need([vr(P, 6)])
    if STAMP == 4: stamp(p)
    rho = lambda mu: 92 + mu; th = lambda mu: 94 + mu
    p(f"v_add_f32 v{t+4}, v{t+7}, v{t+7}")
    for mu in range(2):
        up = (lambda d, s_: f"v_lshlrev_b32 v{d}, 16, v{s_}") if mu == 0 else (lambda d, s_: f"v_and_b32 v{d}, s89, v{s_}")
        p(up(t + 6, P))
        exp_bf16(p, t + 5, t + 6, t)
        p(f"v_mul_f32 v{t+5}, v{t+5}, v{t+7}\n v_mul_f32 v{rho(mu)}, s86, v{t+5}")
        p(up(t + 6, P + 1))
        p(f"v_mul_f32 v{t+6}, v{t+6}, v{t+7}\n v_mul_f32 v{th(mu)}, 0.15915494, v{t+6}")
        p(up(t + 5, P + 2)); p(up(t + 6, P + 3))
        p(f"v_mul_f32 v{GA(0,mu)}, v{t+5}, v{t+4}\n v_mul_f32 v{GA(0,mu)+1}, v{t+6}, v{t+4}")
    for pw, dst in ((8, E8), (1, lambda mu: E(1, mu)), (128, E128)):
        for mu in range(2):
            p(f"v_mul_f32 v{t+2*mu}, {f2u(-float(pw)):#x}, v{rho(mu)}\n v_mul_f32 v{t+2*mu+1}, {f2u(float(pw)):#x}, v{th(mu)}")
        for mu in range(2): p(f"v_exp_f32 v{t+2*mu}, v{t+2*mu}\n v_fract_f32 v{t+2*mu+1}, v{t+2*mu+1}")
        for mu in range(2): p(f"v_cos_f32 v{dst(mu)}, v{t+2*mu+1}\n v_sin_f32 v{dst(mu)+1}, v{t+2*mu+1}")
        for mu in range(2): p(f"v_pk_mul_f32 {vr(dst(mu),2)}, {vr(dst(mu),2)}, {vr(t+2*mu,2)} op_sel_hi:[1,0]")
    cnt = [0]; SIDE0 = opt('side0', 36); SIDEN = opt('siden', 2)
    def put(row, src, neg=False):
        k = cnt[0]; cnt[0] += 1
        for mu in range(2):
            a = src(mu)
            p(f"v_cvt_pk_bf16_f32 v{PK(k)+mu}, v{a}, {'-' if neg else ''}v{a+1}")
        p(f"ds_write_b64 v{A_SW}, {vr(PK(k),2)} offset:{row*SRS}")
        for b_ in sched.get(k, []): p.extend(b_)
    p(f"v_mov_b32 v{PK(3)}, 0x3f80\n v_mov_b32 v{PK(3)+1}, 0x3f80\n ds_write_b64 v{A_SW}, {vr(PK(3),2)}")
    put(1, E8, True)
    prev = E8
    for b in range(2, 16):
        cur = (lambda bb: (lambda mu: XT(bb, mu)))(b)
        for mu in range(2): cmul(p, cur(mu), prev(mu), E8(mu))
        put(b, cur, True); prev = cur
    if STAMP == 4: stamp(p)
    for ka in range(8): p(f"ds_read_b128 {vr(FB+4*ka,4)}, v{A_SR} offset:{64*ka}")
    for k in range(2, 8):
        for mu in range(2): cmul(p, E(k, mu), E(k - 1, mu), E(1, mu))
    al = [0]
    def Gcur(mu): return GA(al[0] % 2, mu)
    def Gnext():
        for mu in range(2): cmul(p, GA((al[0] + 1) % 2, mu), GA(al[0] % 2, mu), E128(mu))
        al[0] += 1
    def prod(row, k):
        if k == 0: put(row, Gcur); return
        for mu in range(2): cmul(p, XT(row, mu), Gcur(mu), E(k, mu))
        put(row, lambda mu: XT(row, mu))
    def tile(T):
        for ka in range(8): p(f"ds_read_b128 {vr(FA+4*ka,4)}, v{A_SR} offset:{64*ka}")
        return [f"v_mfma_f32_16x16x32_bf16 {vr(DT+4*T,4)}, {vr(FA+4*ka,4)}, {vr(FB+4*ka,4)}, {'0' if ka == 0 else vr(DT+4*T,4)}" for ka in range(8)]
    for a in range(2):
        for g in range(8): prod(8 * a + g, g)
        Gnext()
    if STAMP == 4: stamp(p)
    mm = tile(0)
    for a in range(2):
        for g in range(4): prod(4 * a + g, 2 * g)
        Gnext()
        if a == 0:
            for x in mm: p(x)
    for a in range(4):
        for g in range(2): prod(8 + 2 * a + g, 4 * g)
        Gnext()
    if STAMP == 4: stamp(p)
    mm = tile(1)
    for a in range(9):
        prod(a, 0)
        if a < 8: Gnext()
        if a == 3:
            for x in mm: p(x)
    if STAMP == 4: stamp(p)
    mm = tile(2)
    p(f"""v_cmp_eq_u32 vcc, 0, v{BL}
    v_lshlrev_b32 v{t}, 16, v{P+5}
    v_cndmask_b32 v{t}, v{BZ}, v{t}, vcc
    v_add_f32 v{DT}, v{DT}, v{t}""")
    for q in range(8): p(f"v_cvt_pk_bf16_f32 v{DT+q}, v{DT+q}, v{DT+q}")
    p.need([vr(FA, 32)])
    p(mm[0]); p(f"ds_write_b128 v{A_T0}, {vr(DT,4)}")
    for x in mm[1:4]: p(x)
    p(f"ds_write_b64 v{A_T1}, {vr(DT+4,2)} offset:1024")
    for x in mm[4:6]: p(x)
    p(f"ds_write_b64 v{A_T1b}, {vr(DT+6,2)} offset:1024")
    for x in mm[6:]: p(x)
    R = FB
    p(f"""ds_read_b128 {vr(R+24,4)}, v{A_X0}
    ds_read_b128 {vr(R+28,4)}, v{A_X0} offset:16
    ds_read_b128 {vr(R+16,4)}, v{A_X1} offset:1024
    ds_read_b32 v{R+20}, v{A_X1} offset:{1024+16}""")
    for q in range(8, 12): p(f"v_cvt_pk_bf16_f32 v{DT+q}, v{DT+q}, v{DT+q}")
    for i in range(4): p(f"ds_write_b32 v{A_T2}, v{DT+8+i} offset:{2048+64*i}")
    p(f"""ds_read_b32 v{R+8}, v{A_X2} offset:{1536+8}
    ds_read_b32 v{R+9}, v{A_X2} offset:{1536+4}
    ds_read_b32 v{R+11}, v{A_X2} offset:{1536}""")
    for r in range(2):
        p(f"ds_read_b32 v{R+4*r}, v{A_X3} offset:{2048+256*r+4}")
        p(f"ds_read_b32 v{R+4*r+2}, v{A_X3} offset:{2048+256*r}\n ds_read_b32 v{R+4*r+3}, v{A_X3} offset:{2048+256*r}")
    p(f"""v_bfi_b32 v{R+12}, s85, v{R+20}, v{R+19}
    v_mov_b32 v{R+13}, v{R+18}
    v_bfi_b32 v{R+14}, s85, v{R+18}, v{R+17}
    v_mov_b32 v{R+15}, v{R+16}
    ds_write_b128 v{A_KW32}, {vr(R+12,4)} offset:3072
    v_bfi_b32 v{R+16}, s85, v{R+31}, v{R+30}
    v_bfi_b32 v{R+17}, s85, v{R+29}, v{R+28}
    v_bfi_b32 v{R+18}, s85, v{R+27}, v{R+26}
    v_bfi_b32 v{R+19}, s85, v{R+25}, v{R+24}
    ds_write_b128 v{A_KW32}, {vr(R+16,4)} offset:3584
    v_bfi_b32 v{R+10}, s85, v{R+9}, v{R+11}
    ds_write_b128 v{A_KW}, {vr(R+8,4)} offset:2048""")
    for r in range(2):
        p(f"v_bfi_b32 v{R+4*r+1}, v{MSK}, v{R+4*r}, v{R+4*r+2}")
        p(f"ds_write_b128 v{A_KW}, {vr(R+4*r,4)} offset:{1024*(1-r)}")

def prefetch1():
    if not opt('pf1', 1): return []
    NG = opt('pfg', 2); B = []; p = Prog()
    decode_ab(p, 's93', 16, 94, 92)
    p("s_add_u32 s93, s94, s92\n s_mul_i32 s93, s93, 3")
    srd(p, 96, P_W, 640 * 3840)
    p(f"""s_mul_i32 s92, s92, 160
    s_lshr_b32 s95, s68, 1
    s_add_u32 s95, s95, 1
    s_mul_i32 s95, s95, 1280
    s_add_u32 s92, s92, s95
    s_andn2_b32 s92, s92, 127
    s_and_b32 s95, s68, 1
    s_lshl_b32 s95, s95, 7
    s_add_u32 s92, s92, s95
    v_mul_u32_u24 v250, 3840, v{BL}
    v_mul_u32_u24 v249, 1280, v{BL}""")
    def g10(p, d, add):
        p(f"""s_add_u32 s{d}, s93, {add}
        s_mul_i32 s95, s{d}, 205
        s_lshr_b32 s95, s95, 11
        s_mul_i32 s95, s95, 10
        s_sub_u32 s{d}, s{d}, s95""")
    for k in range(opt('pf0', 1), NG + 1):
        g10(p, 100, k)
        p(f"s_mul_i32 s100, s100, {64*3840}\n s_add_u32 s100, s100, s92\n buffer_load_dword v254, v250, s[96:99], s100 offen {'nt' if opt('ntw', 0) else ''}")
        B.append(p); p = Prog()
    srd(p, 96, P_X, 2048 * 1280)
    p(f"""s_lshl_b32 s94, s94, 1
    s_and_b32 s95, s68, 1
    s_add_u32 s94, s94, s95
    s_mul_i32 s94, s94, {64*1280}
    s_lshr_b32 s95, s68, 1
    s_add_u32 s93, s93, s95""")
    for k in range(1, NG + 1, 2):
        g10(p, 100, k)
        p(f"s_lshl_b32 s100, s100, 7\n s_add_u32 s100, s100, s94\n buffer_load_dword v254, v249, s[96:99], s100 offen {'nt' if opt('ntx', 0) else ''}")
        B.append(p); p = Prog()
    return B
def prefetch2x():
    if not opt('pf2', 1): return []
    B = []
    for r in range(2):
        a = Prog(); b = Prog()
        a(f"""s_lshr_b32 s92, s2, 3
        s_sub_u32 s92, s92, 16
        s_lshl_b32 s92, s92, 2
        s_add_u32 s92, s92, s68
        s_lshl_b32 s92, s92, 6
        s_add_u32 s92, s92, {4096*r}
        v_add_u32 v250, s92, v{BL}
        v_mul_u32_u24 v249, 6554, v250
        v_lshrrev_b32 v249, 16, v249
        v_mul_u32_u24 v252, 10, v249
        v_sub_u32 v250, v250, v252
        v_mul_u32_u24 v252, 3840, v249
        v_lshl_add_u32 v252, v250, 7, v252""")
        srd(a, 96, P_W, 640 * 3840)
        a("buffer_load_dword v254, v252, s[96:99], 0 offen")
        b(f"""v_mul_u32_u24 v252, 1280, v249
        v_lshl_add_u32 v252, v250, 7, v252""")
        srd(b, 96, P_WO, 640 * 1280)
        b("buffer_load_dword v254, v252, s[96:99], 0 offen")
        B += [a, b]
    return B
def prefetch2():
    if XM: return prefetch2x()
    if not opt('pf2', 1): return []
    a = Prog(); b = Prog()
    a(f"""s_lshr_b32 s92, s2, 3
    s_sub_u32 s92, s92, 16
    s_lshl_b32 s92, s92, 2
    s_add_u32 s92, s92, s68
    s_lshl_b32 s92, s92, 6
    v_add_u32 v250, s92, v{BL}
    v_mul_u32_u24 v249, 13108, v250
    v_lshrrev_b32 v249, 16, v249
    v_mul_u32_u24 v252, 5, v249
    v_sub_u32 v250, v250, v252
    v_mul_u32_u24 v252, 3840, v249
    v_lshl_add_u32 v252, v250, 7, v252
    s_and_b32 s93, s2, 1
    s_mul_i32 s94, s93, 640""")
    srd(a, 96, P_W, 640 * 3840)
    a("buffer_load_dword v254, v252, s[96:99], s94 offen")
    b(f"""s_lshl_b32 s94, s93, 9
    s_lshl_b32 s95, s93, 7
    s_add_u32 s95, s95, 1024
    v_lshlrev_b32 v252, 7, v250
    v_add_u32 v252, s94, v252
    v_mov_b32 v248, s95
    v_cmp_eq_u32 vcc, 4, v250
    v_mul_u32_u24 v249, 1280, v249
    v_cndmask_b32 v252, v252, v248, vcc
    v_add_u32 v252, v252, v249""")
    srd(b, 96, P_WO, 640 * 1280)
    b("buffer_load_dword v254, v252, s[96:99], 0 offen")
    return [a, b]

def role_B():
    p = Prog(); nstamp[0] = 0
    LN, L15, G, Z = BL, B15, BG, BZ
    p("roleB:")
    if opt('noB', 0): p("s_endpgm")
    stamp(p)
    if opt('bm', 1) == 0:
        p("""s_and_b32 s69, s2, 7
        s_mul_i32 s69, s69, 10
        s_lshr_b32 s70, s2, 3
        s_sub_u32 s70, s70, 16
        s_add_u32 s69, s69, s70""")
    else:
        p("""s_and_b32 s71, s2, 7
        s_lshr_b32 s70, s2, 3
        s_sub_u32 s70, s70, 16
        s_lshl_b32 s69, s71, 3
        s_add_u32 s69, s69, s70
        s_lshl_b32 s71, s71, 1
        s_add_u32 s71, s71, s70
        s_add_u32 s71, s71, 56
        s_cmp_ge_u32 s70, 8
        s_cselect_b32 s69, s71, s69""")
    kg_lanes(p)
    p(f"s_lshl_b32 s71, s69, 3\n s_add_u32 s71, s71, s68")
    kg_params(p, 's71', PR)
    pf = prefetch1()[:opt('pfb', 3)]; NOW = opt('pfnow', 3)
    srd(p, S_WSB, P_WS, WS_SIZE)
    token_load(p, S_WSB, Z)
    for b in pf[:NOW]: p.extend(b)
    p(f"""s_lshr_b32 s80, s69, 3
    s_lshl_b32 s39, s80, 12
    s_add_u32 s39, s39, {WS_UF}
    s_lshl_b32 s101, s69, 2
    s_add_u32 s101, s101, s68
    s_lshl_b32 s101, s101, 7
    s_add_u32 s101, s101, {WS_YF}
    s_lshl_b32 s6, s69, 15
    s_lshl_b32 s7, s68, 13
    s_add_u32 s6, s6, s7
    s_add_u32 s6, s6, {WS_YT}
    s_add_u32 s7, s6, 4096
    v_lshlrev_b32 v39, 4, v{LN}
    v_cmp_eq_u32 vcc, 0, v{LN}
    v_mov_b32 v15, {OOB:#x}
    v_cndmask_b32 v15, v15, v{Z}, vcc""")
    tk = Prog(); token_make(tk)
    sched = {30: [tk]}
    for k, b in enumerate(pf[NOW:]): sched.setdefault(opt('pfa', 0) + opt('pfd', 3) * k, []).append(b)
    for k, b in enumerate(prefetch2()): sched.setdefault(opt('pf2a', 30) + 3 * k, []).append(b)
    if not UT:
        p("s_lshl_b32 s80, s69, 4")
        srd(p, S_U, P_U, 0, 's80')
        p(f"""s_sub_u32 s{S_U+2}, {2048*1280}, s80
        v_mul_u32_u24 v6, 1280, v{LN}
        s_and_b32 s90, s69, 7
        s_lshl_b32 s81, s68, 3
        s_add_u32 s90, s90, s81""")
        for i in range(8):
            q = Prog()
            q(f"""s_add_u32 s81, s90, {i}
            s_and_b32 s81, s81, 31
            s_mul_i32 s82, s81, {64*1280}
            s_lshl_b32 s81, s81, 10
            s_add_u32 m0, s81, {B_RAW+256}""")
            q(f"buffer_load_dwordx4 v6, {sr(S_U,4)}, s82 offen lds", tag='raw')
            sched.setdefault(opt('sidef', 10) if i == 0 else min(55, opt('side0', 40) + opt('siden', 2) * i), []).append(q)
    srd(p, S_O, P_OUT, 2048 * 2560)
    kg_setup(p, B_KR, B_SC)
    t = 40
    p(f"""v_mov_b32 v20, 0
    v_mov_b32 v21, 0
    v_mov_b32 v22, 0
    v_mov_b32 v23, 0
    v_lshlrev_b32 v{t}, 4, v{L15}
    ds_write_b128 v{t}, v[20:23] offset:{B_RAW}
    v_and_b32 v{t}, 31, v0
    v_lshl_add_u32 v38, v{t}, 4, s83
    ds_write_b128 v38, v[20:23] offset:4096
    v_lshlrev_b32 v{t+1}, 5, v{L15}
    v_sub_u32 v{A_KB}, s83, v{t+1}
    v_lshl_add_u32 v{A_KB}, v{G}, 4, v{A_KB}
    v_add_u32 v{A_KB}, 480, v{A_KB}""")
    stamp(p)
    kgen(p, PR, sched)
    stamp(p)
    Y = 184; UB = 216
    p(f"""v_and_b32 v17, 31, v0
    v_lshlrev_b32 v17, 7, v17
    s_lshl_b32 s38, s69, 15
    s_lshl_b32 s80, s68, 13
    s_add_u32 s38, s38, s80
    s_add_u32 s38, s38, {WS_UT}
    s_add_u32 s80, s80, {B_RAW+256}""")
    if UT: pollall(p, "b_pu", S_WSB, 's39', 18, 17, opt('uslp', 4))
    stamp(p)
    for i in range(8 if UT else 0):
        p(f"s_add_u32 m0, s80, {1024*i}\n s_nop 0\n buffer_load_dwordx4 v39, {sr(S_WSB,4)}, s38 offen sc1 lds\n s_add_u32 s38, s38, 1024", tag='raw')
    p(f"""v_bfe_u32 v{t}, v0, 2, 2
    v_lshl_add_u32 v{t}, v{G}, 3, v{t}
    v_bfe_u32 v{t+1}, v0, 1, 1
    v_lshl_add_u32 v{t}, v{t+1}, 2, v{t}
    v_lshlrev_b32 v{t}, 4, v{t}
    v_and_b32 v{t+1}, 1, v0
    v_lshl_add_u32 v{t}, v{t+1}, 3, v{t}
    s_lshl_b32 s80, s68, 9
    v_add_u32 v{t}, s80, v{t}
    v_and_b32 v{t+1}, 7, v0
    v_mul_u32_u24 v{t+1}, {2*CP}, v{t+1}
    v_bfe_u32 v{t+2}, v0, 3, 1
    v_lshl_add_u32 v{t+1}, v{t+2}, 3, v{t+1}
    v_lshl_add_u32 v{t+1}, v{G}, 4, v{t+1}
    s_lshl_b32 s80, s68, 6
    s_add_u32 s80, s80, {B_UC}
    v_add_u32 v{t+1}, s80, v{t+1}
    s_cmp_eq_u32 s68, 0
    s_cselect_b32 s80, 2, 0
    v_cmp_gt_u32 vcc, s80, v{G}
    v_mov_b32 v{t+2}, {B_END - 4096}
    s_mul_i32 s81, s68, {2*CP}
    v_cndmask_b32 v{t+3}, v{t+2}, v{t+1}, vcc
    s_add_u32 s81, s81, {B_UC}
    v_and_b32 v{t+4}, 1, v0
    v_mul_u32_u24 v{t+4}, {CP}, v{t+4}
    v_lshrrev_b32 v{t+5}, 1, v{L15}
    v_lshl_add_u32 v{t+5}, v{G}, 2, v{t+5}
    v_lshl_add_u32 v{t+4}, v{t+5}, 2, v{t+4}
    v_add_u32 v{UB}, s81, v{t+4}
    v_add_u32 v{UB+1}, 1024, v{UB}
    v_add_u32 v{UB+2}, 2048, v{UB}
    v_add_u32 v{UB+3}, 3072, v{UB}
    s_mul_i32 s80, s68, {YP}
    v_lshlrev_b32 v{t+4}, 5, v{L15}
    v_lshl_add_u32 v{t+4}, v{G}, 3, v{t+4}
    v_add_u32 v{UB+4}, s80, v{t+4}
    s_lshl_b32 s90, s69, 2
    s_add_u32 s90, s90, s68
    s_lshl_b32 s91, s90, 12
    s_add_u32 s91, s91, {WS_KR}
    s_lshl_b32 s90, s90, 7
    s_add_u32 s90, s90, {WS_KF}
    s_sub_u32 s92, s84, s83
    v_add_u32 v38, s92, v38""")
    p(f"""v_bfe_u32 v224, v0, 2, 2
    v_mul_u32_u24 v224, {YP}, v224
    v_and_b32 v225, 3, v0
    v_lshl_add_u32 v224, v225, 3, v224
    v_lshl_add_u32 v224, v{G}, 5, v224
    s_lshl_b32 s80, s68, 10
    v_add_u32 v224, s80, v224""")
    if YT:
        p(f"""s_lshr_b32 s80, s69, 3
        s_and_b32 s81, s69, 7
        s_lshl_b32 s81, s81, 2
        s_add_u32 s81, s81, s68
        s_lshl_b32 s96, s80, 18
        s_lshl_b32 s82, s81, 10
        s_add_u32 s96, s96, s82
        s_add_u32 s96, s96, {WS_YT}
        s_mul_i32 s97, s81, {64*2560}
        s_lshl_b32 s80, s80, 7
        s_add_u32 s97, s97, s80
        s_add_u32 s97, s97, 1280
        s_mul_i32 s98, s68, 8448
        s_add_u32 s98, s98, {B_UC}
        v_lshrrev_b32 v226, 3, v{LN}
        v_and_b32 v227, 7, v0
        v_lshlrev_b32 v228, 15, v226
        v_lshl_add_u32 v228, v227, 7, v228
        v_mul_u32_u24 v229, 1040, v227
        v_lshl_add_u32 v229, v226, 4, v229
        v_add_u32 v229, s98, v229
        v_mul_u32_u24 v230, 2560, v226
        v_lshl_add_u32 v230, v227, 4, v230
        s_nop 0""")
    p.waitvm('raw'); p("s_waitcnt lgkmcnt(0)\n s_barrier")
    stamp(p)
    p(f"ds_write_b128 v38, v[20:23] offset:4096")
    jobs = [(k, pp) for k in range(17) for pp in range(2)]
    NBUF = 8
    def rdj(n):
        k, pp = jobs[n]; p(f"ds_read_b64_tr_b16 {vr(48+2*(n%NBUF),2)}, v{t} offset:{B_RAW + 16*(1+pp) + 2048*k}")
    def wrj(n):
        k, pp = jobs[n]
        p(f"ds_write_b64 v{t+3 if k == 16 else t+1}, {vr(48+2*(n%NBUF),2)} offset:{pp*CP + 256*k}")
    for n in range(NBUF): rdj(n)
    if YT: p("v_mov_b32 v8, -1\n v_mov_b32 v9, -1\n v_mov_b32 v10, -1\n v_mov_b32 v11, -1")
    for n in range(len(jobs)):
        wrj(n)
        if n + NBUF < len(jobs): rdj(n + NBUF)
        if YT and n % 4 == 1 and n // 4 < 8:
            jj = n // 4; p(f"buffer_store_dwordx4 v[8:11], v39, {sr(S_WSB,4)}, {'s6' if jj < 4 else 's7'} offen offset:{1024*(jj%4)} sc1")
    def fa(b, a): return ar((b % 2) * 64 + 4 * a, 4)
    def fb(b, c): return ar((b % 2) * 64 + 32 + 4 * c, 4)
    def reads(b, kind='ku'):
        q = Prog()
        for a in range(8):
            o = 128 * (a % 2) + 16 * b; r0 = (b % 2) * 64 + 4 * a
            if 'k' in kind: q(f"ds_read_b128 {fb(b,a)}, v{A_KB} offset:{512*(7-a)+64*b}")
            if 'u' in kind:
                q(f"ds_read2_b32 {ar(r0,2)}, v{UB+a//2} offset0:{o} offset1:{o+1}")
                q(f"ds_read2_b32 {ar(r0+2,2)}, v{UB+a//2} offset0:{o+2} offset1:{o+3}")
        return q
    def krdma(tag):
        for i in range(4):
            p(f"s_add_u32 m0, s84, {1024*i}\n s_nop 0\n buffer_load_dwordx4 v39, {sr(S_WSB,4)}, s91 offen sc1 lds\n s_add_u32 s91, s91, 1024", tag=tag)
    p("s_mov_b32 s93, 0\n s_mov_b32 s95, 0\n s_waitcnt lgkmcnt(0)\n s_barrier")
    stamp(p)
    p("b_conv:")
    p.extend(reads(0))
    prs = sorted([(a, c) for c in range(8) for a in range(c + 1)], key=lambda x: (max(x[0], x[1] - x[0]), x[1]))
    EB = opt('eb', 5)
    if opt('cord', 1):
        prs = sorted(prs, key=lambda x: (max(x[0], x[1] - x[0]), x[0] > x[1] - x[0], x[1]))
        if opt('cord', 1) == 2: prs = prs[:-6] + [(0, 6), (1, 7), (6, 6), (0, 7), (6, 7), (7, 7)]
    for b in range(8):
        m = Prog(); seen = set(); lvl = -1
        for a, c in prs:
            first = b == 0 and c not in seen; seen.add(c)
            if max(a, c - a) != lvl and (b == 0 or max(a, c - a) in (0, 4)):
                lvl = max(a, c - a); hi = lvl if b == 0 else lvl + 3
                m.need([fa(b, x) for x in range(lvl, hi + 1)] + [fb(b, x) for x in range(lvl, hi + 1)])
            mfma(m, vr(Y + 4 * c, 4), fa(b, a), fb(b, c - a), '0' if first else None)
        if b == EB: p(f"buffer_load_dword v7, v{Z}, {sr(S_WSB,4)}, s90 offen sc1")
        if b == EB + 1:
            p(f"""v_cmp_eq_u32 vcc, v{V_TOK}, v7
            s_cmp_lg_u32 s93, 0
            s_cselect_b64 s[80:81], 0, -1
            s_and_b64 vcc, vcc, s[80:81]""")
            p("s_cbranch_scc0 b_noearly", tag='keep')
            krdma('offpath')
            p("s_mov_b32 s95, 1", tag='offpath')
            p("b_noearly:")
            if YT: p(f"buffer_load_dword v18, v17, {sr(S_WSB,4)}, s101 offen sc1")
        p.extend(pack(m, [(singles(reads(b + 1)), 2, 30)] if b < 7 else [], cap=4))
    for c in range(8):
        d = 40 + 2 * (c % 4)
        p(f"v_cvt_pk_bf16_f32 v{d}, v{Y+4*c}, v{Y+4*c+1}\n v_cvt_pk_bf16_f32 v{d+1}, v{Y+4*c+2}, v{Y+4*c+3}")
        p(f"ds_write_b64 v{UB+4}, {vr(d,2)} offset:{B_RAW+512*c}")
    p("s_cmp_lg_u32 s93, 0")
    p("s_cbranch_scc1 b_fin", tag='keep')
    stamp(p)
    p(f"""s_mov_b32 s93, 1
    v_add_u32 v{A_KB}, s92, v{A_KB}""")
    for k in range(4): p(f"v_add_u32 v{UB+k}, {8*CP}, v{UB+k}")
    p(f"v_add_u32 v{UB+4}, {4*YP}, v{UB+4}\n s_cmp_eq_u32 s95, 1")
    p("s_cbranch_scc1 b_have", tag='keep')
    p(f"s_mov_b32 s94, {SPIN}")
    p("b_poll:")
    p(f"""buffer_load_dword v7, v{Z}, {sr(S_WSB,4)}, s90 offen sc1
    s_sub_u32 s94, s94, 1
    s_waitcnt vmcnt(0)
    v_cmp_eq_u32 vcc, v{V_TOK}, v7
    s_cmp_eq_u32 s94, 0
    s_cbranch_scc1 b_got
    s_cmp_eq_u64 vcc, 0
    s_cbranch_scc1 b_poll""")
    p("b_got:")
    krdma(None)
    p("b_have:")
    p(f"s_waitcnt vmcnt(0)\n buffer_store_dword v{V_TOK}, v15, {sr(S_WSB,4)}, s101 offen sc1\n s_add_u32 s101, s39, {WS_YF-WS_UF}\n s_branch b_conv")
    p("b_fin:")
    p("s_waitcnt vmcnt(0)")
    stamp(p)
    if not YT:
        p(f"""v_mul_u32_u24 v225, 2560, v{LN}
        s_mul_i32 s80, s68, {512*2560}
        s_lshl_b32 s81, s69, 4
        s_add_u32 s80, s80, s81
        s_add_u32 s80, s80, 1280
        s_waitcnt lgkmcnt(0)
        s_barrier""")
        for it in range(8):
            for h in range(2):
                p(f"ds_read_b64_tr_b16 {vr(56+4*it+2*h,2)}, v224 offset:{B_RAW + h*4*YP + 128*it}")
        for it in range(8):
            p(f"buffer_store_dwordx4 {vr(56+4*it,4)}, v225, {sr(S_O,4)}, s80 offen\n s_add_u32 s80, s80, {64*2560}")
        stamp(p); stamp(p); stamp(p)
        stamp_store(p, S_WSB)
        p("s_endpgm")
        return p
    p(f"v_cmp_eq_u32 vcc, v{V_TOK}, v18\n s_nop 1\n s_cmp_eq_u64 vcc, -1")
    p("s_cbranch_scc1 b_pf_x")
    pollall(p, "b_pf", S_WSB, 's101', 18, 17)
    p(f"s_mov_b32 s94, {SPIN}")
    p("s_waitcnt lgkmcnt(0)\n s_barrier")
    for it in range(8):
        for h in range(2):
            p(f"ds_read_b64_tr_b16 {vr(56+4*it+2*h,2)}, v224 offset:{B_RAW + h*4*YP + 128*it}")
    for it in range(8):
        p(f"buffer_store_dwordx4 {vr(56+4*it,4)}, v39, {sr(S_WSB,4)}, {'s6' if it < 4 else 's7'} offen offset:{1024*(it%4)} sc1")
    stamp(p)
    p("b_yp:")
    p(f"""buffer_load_dword v19, v228, {sr(S_WSB,4)}, s96 offen sc1
    s_sub_u32 s94, s94, 1
    s_waitcnt vmcnt(0)
    v_cmp_ne_u32 vcc, -1, v19
    s_cmp_lt_i32 s94, 1
    s_cbranch_scc1 b_yg
    s_cmp_eq_u64 vcc, -1
    s_cbranch_scc1 b_yg
    s_sleep {opt('yslp', 8)}
    s_branch b_yp""")
    p("b_yg:")
    stamp(p)
    p("s_mov_b32 s82, s96")
    for j in range(8):
        p(f"s_add_u32 m0, s98, {1040*j}\n s_nop 0\n buffer_load_dwordx4 v39, {sr(S_WSB,4)}, s82 offen sc1 lds\n s_add_u32 s82, s82, 32768")
    p("v_mov_b32 v18, 0\n s_waitcnt vmcnt(0)")
    for i in range(8): p(f"ds_read_b128 {vr(56+4*i,4)}, v229 offset:{128*i}")
    for i in range(8): p(f"v_max3_u32 v18, v18, v{56+4*i}, v{57+4*i}\n v_max3_u32 v18, v18, v{58+4*i}, v{59+4*i}")
    p(f"""v_cmp_eq_u32 vcc, -1, v18
    s_cmp_lt_i32 s94, 1
    s_cbranch_scc1 b_yo
    s_cmp_lg_u64 vcc, 0
    s_cbranch_scc1 b_yp""")
    p("b_yo:")
    for i in range(8):
        p(f"buffer_store_dwordx4 {vr(56+4*i,4)}, v230, {sr(S_O,4)}, s97 offen {OPT.get('bst', 'sc1')}\n s_add_u32 s97, s97, {8*2560}")
    stamp(p)
    stamp_store(p, S_WSB)
    p("s_endpgm")
    return p

def role_S():
    p = Prog(); nstamp[0] = 32
    p("roleS:")
    p(f"""s_getpc_b64 s[40:41]
    cpf_here:
    s_sub_u32 s40, s40, cpf_here-{NAME}_kernel
    s_subb_u32 s41, s41, 0
    s_lshr_b32 s42, s2, 3
    s_and_b32 s42, s42, 1
    s_lshl_b32 s42, s42, 15
    v_lshlrev_b32 v8, 7, v0
    v_add_u32 v8, s42, v8
    v_cmp_gt_u32 vcc, code_end-{NAME}_kernel, v8
    v_cndmask_b32 v8, 0, v8, vcc
    global_load_dword v254, v8, s[40:41]""")
    if STAMP: p("v_mov_b32 v255, 0")
    stamp(p)
    p(f"s_sub_u32 s69, s2, 208")
    kg_lanes(p)
    p(f"""s_lshl_b32 s90, s69, 2
    s_add_u32 s90, s90, s68
    s_lshl_b32 s71, s69, 3
    s_add_u32 s71, s71, s68
    s_add_u32 s71, s71, 4""")
    kg_params(p, 's71', PR)
    p(f"s_add_u32 s71, s71, 384\n s_min_u32 s71, s71, 639")
    kg_params(p, 's71', PR + 6)
    srd(p, S_U, P_WS, WS_ZERO_END)
    srd(p, S_O, P_DBG, 256)
    srd(p, S_WSB, P_WS, WS_SIZE)
    token_load(p, S_WSB, BZ)
    p(f"""s_lshl_b32 s70, s69, 12
    v_lshlrev_b32 v6, 4, v0
    v_mov_b32 v20, 0
    v_mov_b32 v21, 0
    v_mov_b32 v22, 0
    v_mov_b32 v23, 0
""")
    p(f"buffer_store_dwordx4 v[20:23], v6, {sr(S_U,4)}, s70 offen sc1", tag='zero')
    srd(p, 96, P_U, 2048 * 1280)
    p(f"""v_lshrrev_b32 v240, 3, v{BL}
    v_mul_u32_u24 v240, 1280, v240
    v_and_b32 v241, 7, v0
    v_xor_b32 v241, v241, v{BG}
    v_lshl_add_u32 v240, v241, 4, v240
    v_xor_b32 v241, 64, v240
    v_add_u32 v241, {8*1280}, v241
    s_lshl_b32 s5, s68, 14""")
    for r in range(2 if UT else 0):
        p(f"""s_add_u32 s80, s90, {192*r}
        s_and_b32 s81, s80, 31
        s_lshr_b32 s82, s80, 5
        s_mul_i32 s81, s81, {64*1280}
        s_lshl_b32 s82, s82, 7
        s_add_u32 s82, s82, s81
        s_cmp_ge_u32 s80, 320
        s_cselect_b32 s82, {0x40000000}, s82""")
        for i in range(8):
            p(f"s_add_u32 m0, s5, {8192*r+1024*i}\n s_nop 0\n buffer_load_dwordx4 v{240+i%2}, s[96:99], s82 offen nt lds", tag=('ut', r))
            if i % 2: p(f"s_add_u32 s82, s82, {16*1280}")
    pfS = prefetch1()[:opt('pfs', 0 if UT else 3)]
    for b in pfS[:opt('pfnow', 3)]: p.extend(b)
    p(f"""s_cmp_lt_u32 s69, {NZERO_WG}
    s_cselect_b32 s4, 0, -1
    v_cmp_eq_u32 vcc, s4, v0
    v_mov_b32 v7, 1
    v_mov_b32 v38, {OOB:#x}
    v_cndmask_b32 v39, v38, v{BZ}, vcc""")
    kg_setup(p, S_KR, S_SC)
    p(f"""v_cmp_eq_u32 vcc, 0, v{BL}
    v_lshlrev_b32 v184, 4, v{BL}
    v_add_u32 v185, s83, v184
    v_cndmask_b32 v38, v38, v{BZ}, vcc
    v_bfe_u32 v242, v0, 1, 3
    v_lshlrev_b32 v242, 4, v242
    v_lshl_add_u32 v242, v{BL}, 7, v242
    v_add_u32 v242, s5, v242""")
    p.waitvm('zero')
    p(f"s_barrier\n buffer_atomic_add v7, v39, {sr(S_O,4)}, 0 offen sc1")
    token_make(p)
    if not UT: p(f"s_mov_b32 s6, {0x40000000}\n s_mov_b32 s7, {0x40000000}")
    for r in range(2 if UT else 0):
        p(f"""s_add_u32 s80, s90, {192*r}
        s_and_b32 s81, s80, 31
        s_lshr_b32 s82, s80, 5
        s_lshl_b32 s81, s81, 10
        s_lshl_b32 s82, s82, 18
        s_add_u32 s82, s82, s81
        s_add_u32 s82, s82, {WS_UT}
        s_lshl_b32 s{6+r}, s80, 7
        s_add_u32 s{6+r}, s{6+r}, {WS_UF}
        s_cmp_ge_u32 s80, 320
        s_cselect_b32 s82, {0x40000000}, s82
        s_cselect_b32 s{6+r}, {0x40000000}, s{6+r}""")
        p.waitvm(('ut', r))
        for j in range(8): p(f"v_xor_b32 v243, {16*j}, v242\n ds_read_b128 {vr(48+32*r+4*j,4)}, v243 offset:{8192*r}")
        for j in range(8): p(f"buffer_store_dwordx4 {vr(48+32*r+4*j,4)}, v184, {sr(S_WSB,4)}, s82 offen sc1\n s_add_u32 s82, s82, 32768")
    stamp(p)
    p("s_kloop:", tag='keep')
    fl = Prog()
    fl(f"""s_waitcnt vmcnt(0)
    buffer_store_dword v{V_TOK}, v38, {sr(S_WSB,4)}, s6 offen sc1
    buffer_store_dword v{V_TOK}, v38, {sr(S_WSB,4)}, s7 offen sc1""")
    sched = {opt('sfl', 24): [fl]}
    for k, b in enumerate(pfS[opt('pfnow', 3):]): sched.setdefault(opt('pfa', 0) + opt('pfd', 3) * k, []).append(b)
    for k, b in enumerate(prefetch2()): sched.setdefault(40 + 3 * k, []).append(b)
    kgen(p, PR, sched)
    for i in range(4): p(f"ds_read_b128 {vr(48+4*i,4)}, v185 offset:{1024*i}")
    p(f"s_lshl_b32 s91, s90, 12\n s_add_u32 s91, s91, {WS_KR}")
    for i in range(4): p(f"buffer_store_dwordx4 {vr(48+4*i,4)}, v184, {sr(S_WSB,4)}, s91 offen offset:{1024*i} sc1")
    p(f"""s_lshl_b32 s6, s90, 7
    s_add_u32 s6, s6, {WS_KF}
    s_mov_b32 s7, s6
    s_add_u32 s90, s90, 192""")
    for k in range(6): p(f"v_mov_b32 v{PR+k}, v{PR+6+k}")
    stamp(p)
    p("s_cmp_lt_u32 s90, 320\n s_cbranch_scc1 s_kloop")
    p(f"s_waitcnt vmcnt(0)\n buffer_store_dword v{V_TOK}, v38, {sr(S_WSB,4)}, s6 offen sc1")
    p("s_cmp_ge_u32 s2, 240")
    stamp(p)
    p("s_cbranch_scc1 s_done")
    srd(p, S_DBG, P_DBG, 256)
    if XM == 0:
        p("""s_and_b32 s72, s2, 7
        s_lshr_b32 s69, s72, 1
        s_lshl_b32 s69, s69, 2
        s_lshr_b32 s73, s2, 3
        s_sub_u32 s73, s73, 26
        s_add_u32 s69, s69, s73
        s_and_b32 s83, s72, 1""")
    else:
        p("""s_and_b32 s69, s2, 7
        s_lshl_b32 s69, s69, 1
        s_lshr_b32 s73, s2, 3
        s_sub_u32 s73, s73, 26
        s_and_b32 s83, s73, 1
        s_lshr_b32 s73, s73, 1
        s_add_u32 s69, s69, s73""")
    p(f"""s_add_u32 s83, s83, 8
    s_lshl_b32 s83, s83, 7
    s_mul_i32 s84, s68, {GR}
    v_and_b32 v{LN}, 63, v0
    v_mov_b32 v{V_Z}, 0""")
    setup_g2(p)
    for i in range(5): unpark(p, f'wo{i}', V_XO + i)
    for G in range(15, 19):
        for b in issue_group(G): p.extend(b)
    p(f"""v_and_b32 v249, 7, v0
    v_lshlrev_b32 v249, 13, v249
    s_lshl_b32 s85, s69, 9
    s_lshl_b32 s81, s68, 7
    s_add_u32 s85, s85, s81
    s_add_u32 s85, s85, {WS_KVF}""")
    pollall(p, "s_pf", S_WS, 's85', 248, 249, opt('slp', 8))
    p("s_branch g2_tail")
    p("s_done:")
    p(f"""s_cmp_lg_u32 s2, 255
    s_cbranch_scc1 s_fin
    s_cmp_lg_u32 s68, 0
    s_cbranch_scc1 s_fin
""")
    for n, (base, cnt, r) in enumerate(((WS_KF, 48, 0), (WS_YF, 80, 0), (WS_YF, 80, 1), (WS_KVF, 128, 0), (WS_KVF, 128, 1))):
        p(f"""v_add_u32 v187, {64*r}, v{BL}
        v_min_u32 v187, {cnt-1}, v187
        v_lshlrev_b32 v187, 9, v187
        s_mov_b32 s91, {base}""")
        pollall(p, f"s_ep{n}", S_WSB, 's91', 186, 187, 16)
    p(f"""s_mov_b32 s4, {WS_EP}
    buffer_store_dword v{V_TOK}, v38, {sr(S_WSB,4)}, s4 offen sc1""")
    p("s_fin:")
    if STAMP:
        stamp_store(p, S_WSB)
    p("done:\n s_endpgm\n code_end:")
    return p

def main():
    LDS = max(A_END + 16, B_END + 4608)
    assert LDS <= 163840, LDS
    ref = open(f"cdna_kernels/{NAME}.s.ref").read().split('\n')
    hdr = [l for l in ref if l.startswith(';') and '@launch' not in l]
    s = '\n'.join(hdr) + f"\n; @launch grid=(256,1,1) block=(256,1,1) lds={LDS}\n"
    s += f""".amdgcn_target "amdgcn-amd-amdhsa--gfx950"
.text
.p2align 12
.globl {NAME}_kernel
.p2align 8
.type {NAME}_kernel,@function
{NAME}_kernel:
"""
    e = Prog()
    e(f"""s_cmp_ge_u32 s2, 256
    s_cbranch_scc1 done""")
    if opt('cpf2', 0):
        e(f"""s_getpc_b64 s[36:37]
        v_lshlrev_b32 v2, 7, v0
        s_cmp_ge_u32 s2, 128
        s_cselect_b32 s38, roleB-{NAME}_kernel, 0
        v_add_u32 v2, s38, v2
        v_min_u32 v2, code_end-{NAME}_kernel-64, v2
        global_load_dword v253, v2, s[36:37]""", tag='offpath')
    e(f"""
    s_load_dwordx16 s[8:23], s[0:1], 0
    s_load_dwordx8 s[24:31], s[0:1], 64
    s_load_dwordx4 s[32:35], s[0:1], 96
    v_lshrrev_b32 v1, 6, v0
    s_nop 0
    v_readfirstlane_b32 s68, v1
    s_cmp_ge_u32 s2, 208
    s_cbranch_scc1 roleS
    s_cmp_ge_u32 s2, 128
    s_cbranch_scc1 roleB""")
    a = role_A()
    e.extend(a)
    L = lower(e) + lower(role_B()) + lower(role_S())
    if opt('align', 1):
        L, nn, npro = align8(L, sizes_of(s + render(L) + ''.join(f'pg{k}:\n' for k in range(NPG))))
        print("align: nops", nn, "promoted", npro)
    if NPG:
        dummy = ''.join(f"pg{k}:\n" for k in range(NPG))
        L, n = page_stubs(L, sizes_of(s + render(L) + dummy), 4096 - 0x300, 'roleB')
        print("page stubs", n)
        assert n == NPG
    s += render(L)
    s += f""".section .rodata,"a"
.p2align 6
.amdhsa_kernel {NAME}_kernel
  .amdhsa_next_free_vgpr 512
  .amdhsa_next_free_sgpr 102
  .amdhsa_accum_offset 256
  .amdhsa_group_segment_fixed_size 0
  .amdhsa_kernarg_size 112
  .amdhsa_user_sgpr_count 2
  .amdhsa_user_sgpr_kernarg_segment_ptr 1
  .amdhsa_system_sgpr_workgroup_id_x 1
.end_amdhsa_kernel
"""
    out = OPT.get('out', f"cdna_kernels/{NAME}.s")
    open(out, 'w').write(s)
    print("LDS", LDS, "A_END", A_END, "B_END", B_END, "lines", s.count('\n'))
main()
```

```python
import sys, struct
from gasm import Prog, finalize, merge, spread, singles, pack, bundles, lower, render, sizes_of, align8, page_stubs
NAME = "concat_heads__linear_kernel_hedgehog__ssm_conv_s4d__prompt"
OPT = dict(a.split('=') for a in sys.argv[1:] if '=' in a)
def opt(k, d): return type(d)(OPT.get(k, d))
STAMP = opt('stamp', 0)
ROT = opt('rot', 2)
def f2u(x): return struct.unpack('<I', struct.pack('<f', x))[0]
def vr(a, n): return f"v[{a}:{a+n-1}]" if n > 1 else f"v{a}"
def ar(a, n): return f"a[{a}:{a+n-1}]" if n > 1 else f"a{a}"
def sr(a, n): return f"s[{a}:{a+n-1}]" if n > 1 else f"s{a}"
def magic(d): return (2**32 + d - 1) // d

WS_KV = 0; WS_ZERO_END = 32 * 4096; WS_KVF = WS_ZERO_END; WS_KF = WS_KVF + 65536; WS_UF = WS_KF + 40960; WS_YF = WS_UF + 40960; WS_EP = WS_YF + 40960
WS_O = 262144; WS_STAMP = 4 << 20; WS_SIZE = 8 << 20
NSPARE = 48
NZERO_WG = 32
assert WS_EP + 128 <= WS_O
V_TOK = 253
P_X, P_W, P_PHI, P_WO, P_U, P_LA, P_AI, P_CR, P_CI, P_LDT, P_DS, P_OUT, P_DBG, P_WS = [8 + 2 * i for i in range(14)]
OOB = 0x80000000
SPIN = 400000

def srd(p, s, ptr, size, off=None):
    if off is None:
        p(f"s_mov_b32 s{s}, s{ptr}\n s_mov_b32 s{s+1}, s{ptr+1}")
    else:
        p(f"s_add_u32 s{s}, s{ptr}, {off}\n s_addc_u32 s{s+1}, s{ptr+1}, 0")
    p(f"s_mov_b32 s{s+2}, {size}\n s_mov_b32 s{s+3}, 0x20000")

nstamp = [0]
def stamp(p, sreg_base=96):
    if not STAMP: return
    k = nstamp[0]; nstamp[0] += 1
    if k in (0, 32): p(f"s_getreg_b32 s36, hwreg(HW_REG_HW_ID)\n v_writelane_b32 v255, s36, 60\n s_getreg_b32 s36, hwreg(HW_REG_XCC_ID)\n v_writelane_b32 v255, s36, 59")
    if k == 0: p(f"s_memrealtime s[36:37]\n s_waitcnt lgkmcnt(0)\n v_writelane_b32 v255, s36, 62")
    p(f"s_memtime s[36:37]\n s_waitcnt lgkmcnt(0)\n v_writelane_b32 v255, s36, {k}")
def stamp_store(p, wsrd):
    if not STAMP: return
    p(f"s_waitcnt vmcnt(0)\n s_memtime s[36:37]\n s_waitcnt lgkmcnt(0)\n v_writelane_b32 v255, s36, 61\n s_memrealtime s[36:37]\n s_waitcnt lgkmcnt(0)\n v_writelane_b32 v255, s36, 63")
    p(f"""s_lshl_b32 s36, s2, 2
    s_add_u32 s36, s36, s68
    s_lshl_b32 s36, s36, 8
    s_add_u32 s36, s36, {WS_STAMP}
    v_and_b32 v250, 63, v0
    v_lshlrev_b32 v250, 2, v250
    buffer_store_dword v255, v250, {sr(wsrd,4)}, s36 offen""")

def token_load(p, wsrd, vz):
    p(f"s_mov_b32 s4, {WS_EP}\n buffer_load_dword v{V_TOK}, v{vz}, {sr(wsrd,4)}, s4 offen sc1")
def token_make(p):
    p(f"""s_mov_b32 s4, 0x9e3779b1
    v_mul_lo_u32 v{V_TOK}, v{V_TOK}, s4
    v_add_u32 v{V_TOK}, 0x7f4a7c15, v{V_TOK}""")
def token_seen(p, dsrd, vt):
    p(f"""v_cmp_eq_u32 vcc, 0, v0
    v_mov_b32 v{vt}, {OOB:#x}
    v_mov_b32 v{V_CNT}, 1
    v_cndmask_b32_e64 v{vt}, v{vt}, 0, vcc
    buffer_atomic_add v{V_CNT}, v{vt}, {sr(dsrd,4)}, 8 offen sc1""")
def spinpoll(p, name, srdreg, soff, vt, va, cmp, init, period=None):
    period = period or opt('period', 24)
    p(f"v_mov_b32 v{vt}, {init}" if init is not None else f"v_not_b32 v{vt}, v{V_TOK}", tag='offpath')
    p(f"{name}:")
    p(f"""buffer_load_dword v{vt}, v{va}, {sr(srdreg,4)}, {soff} offen sc1
    s_mov_b32 s95, {period}""", tag='offpath')
    p(f"{name}_i:")
    p(f"""{cmp}
    s_sub_u32 s94, s94, 1
    s_cbranch_scc1 {name}_x
    s_cmp_eq_u64 vcc, -1
    s_cbranch_scc1 {name}_x
    s_sub_u32 s95, s95, 1
    s_cbranch_scc0 {name}_i
    s_waitcnt vmcnt(24)
    s_branch {name}""", tag='offpath')
    p(f"{name}_x:")
def pollall(p, name, srdreg, soff, vt, va, slp=0):
    p(f"s_mov_b32 s94, {SPIN}")
    p(f"{name}:")
    p(f"""buffer_load_dword v{vt}, v{va}, {sr(srdreg,4)}, {soff} offen sc1
    s_sub_u32 s94, s94, 1
    s_waitcnt vmcnt(0)
    v_cmp_eq_u32 vcc, v{V_TOK}, v{vt}
    s_cmp_eq_u32 s94, 0""")
    p(f"s_cbranch_scc1 {name}_x", tag='keep')
    p(f"s_cmp_eq_u64 vcc, -1")
    if slp:
        p(f"s_cbranch_scc1 {name}_x", tag='keep')
        p(f"s_sleep {slp}\n s_branch {name}", tag='keep')
    else: p(f"s_cbranch_scc0 {name}", tag='keep')
    p(f"{name}_x:")

A_RING = 0; NSLOT = 16; GR = 5120
A_PHIK = NSLOT * GR; PHI_RS = 352
A_VST = A_PHIK + 128 * PHI_RS
A_BD = A_VST + 20480
A_END = A_BD + 12800
A_KVIMG = A_PHIK
S_X, S_W, S_WO, S_WS, S_OUT, S_DBG, S_PHI = 40, 44, 48, 52, 56, 60, 64
V_XO = 1
V_XD = 5
V_WD = 9
V_TA = 14
V_Z = 22; V_T = 23
V_WF = 32
V_KA = 112; V_VA = 152; V_PA = 192; V_X = 240
OLD = 'sc1' if opt('osc1', 0) else ''

def mfma(p, d, a, b, c=None):
    p(f"v_mfma_f32_16x16x32_bf16 {d}, {a}, {b}, {d if c is None else c}")
def mfma32(p, d, a, b, c=None):
    p(f"v_mfma_f32_32x32x16_bf16 {d}, {a}, {b}, {d if c is None else c}")

LN = V_T; t = V_T + 1
parked = {}
def park(p, name, v):
    if name not in parked: parked[name] = 204 + len(parked)
    assert parked[name] < 256
    p(f"v_accvgpr_write_b32 a{parked[name]}, v{v}")
def unpark(q, name, v): q(f"v_accvgpr_read_b32 v{v}, a{parked[name]}")

def trbase(p, d, rowk, rowrho, extra=0):
    p(f"""v_bfe_u32 v{t}, v0, 5, 1
    v_mul_u32_u24 v{t}, {rowk}, v{t}
    v_bfe_u32 v{t+1}, v0, 2, 2
    v_mul_u32_u24 v{t+1}, {rowrho}, v{t+1}
    v_bfe_u32 v{t+2}, v0, 4, 1
    v_lshl_add_u32 v{t}, v{t+2}, 5, v{t}
    v_and_b32 v{t+2}, 3, v0
    v_lshl_add_u32 v{t}, v{t+2}, 3, v{t}
    v_add_u32 v{d}, v{t}, v{t+1}""")
    if extra: p(f"v_add_u32 v{d}, {extra}, v{d}")

def setup_g2(p):
    srd(p, S_WO, P_WO, 640 * 1280)
    srd(p, S_WS, P_WS, WS_SIZE)
    p(f"s_mul_i32 s78, s69, {128*2560}\n s_add_u32 s78, s78, s83")
    srd(p, S_OUT, P_OUT, 0, 's78')
    p(f"s_sub_u32 s{S_OUT+2}, {2048*2560}, s78")
    p(f"""s_lshr_b32 s79, s68, 1
    s_mul_i32 s79, s79, {80*1280}
    s_add_u32 s79, s79, s83
    s_and_b32 s85, s68, 1
    s_mul_i32 s85, s85, 40
    s_lshl_b32 s78, s69, 2
    s_add_u32 s78, s78, s68
    s_mul_i32 s78, s78, 40960
    s_add_u32 s92, s78, {WS_O}""")
    for i in range(5):
        p(f"""v_lshrrev_b32 v{t}, 3, v{LN}
        v_add_u32 v{t}, s85, v{t}
        v_add_u32 v{t}, {8*i}, v{t}
        v_lshrrev_b32 v{t+1}, 4, v{t}
        v_and_b32 v{t+2}, 7, v{t}
        v_lshl_add_u32 v{t+1}, v{t+1}, 3, v{t+2}
        v_bfe_u32 v{t+2}, v{t}, 3, 1
        v_mad_u32_u24 v{t+2}, v{t+2}, 20, v{t+1}
        v_add_u32 v{t+3}, 20, v{t+2}
        v_cmp_le_u32 vcc, 20, v{t+1}
        v_cndmask_b32 v{t+2}, v{t+2}, v{t+3}, vcc
        v_mul_u32_u24 v{t+2}, 1280, v{t+2}
        v_bfe_u32 v{t}, v{t}, 1, 1
        v_lshlrev_b32 v{t}, 2, v{t}
        v_and_b32 v{t+1}, 7, v0
        v_xor_b32 v{t}, v{t}, v{t+1}
        v_lshl_add_u32 v{t}, v{t}, 4, v{t+2}""")
        park(p, f'wo{i}', t)
    trbase(p, t + 3, 8 * 128, 128)
    p(f"""v_bfe_u32 v{t}, v0, 3, 1
    v_lshl_add_u32 v{t+3}, v{t}, 6, v{t+3}""")
    park(p, 'two', t + 3)
    p(f"""s_add_u32 s78, s84, {A_VST}
    v_and_b32 v{t}, 31, v0
    v_mul_u32_u24 v{t}, 144, v{t}
    v_bfe_u32 v{t+1}, v0, 5, 1
    v_lshl_add_u32 v{t}, v{t+1}, 3, v{t}
    v_add_u32 v{t}, s78, v{t}""")
    park(p, 'outw', t)
    p(f"""v_lshrrev_b32 v{t}, 3, v{LN}
    v_and_b32 v{t+1}, 7, v0
    v_lshlrev_b32 v{t+1}, 4, v{t+1}
    v_mul_u32_u24 v{t+2}, 144, v{t}
    v_add3_u32 v{t+2}, v{t+2}, v{t+1}, s78
    v_mul_u32_u24 v{t}, 2560, v{t}
    v_add_u32 v{t}, v{t}, v{t+1}""")
    park(p, 'outr', t + 2); park(p, 'outg', t)

def dma_bundles(G, hdr, items):
    B = []
    hdr(items[0][0]); B.append(hdr)
    for k, (m0, ld) in enumerate(items):
        q = Prog(); q(ld, tag=('dma', G))
        if k + 1 < len(items): q(items[k + 1][0])
        B.append(q)
    return B
def issue_group(G):
    slotbase = A_RING + (G % 4) * 4 * GR
    h = Prog()
    if G < 10:
        h(f"s_mul_i32 s86, s80, {64*3840}\n s_add_u32 s86, s86, s82\n s_lshl_b32 s81, s80, 7")
        h(f"s_add_u32 s80, s80, 1\n s_cmp_eq_u32 s80, 10\n s_cselect_b32 s80, 0, s80")
        sd = S_W
    elif G < 15:
        h(f"""s_lshl_b32 s86, s71, 1
        s_add_u32 s86, s86, s68
        s_add_u32 s86, s86, {4*(G-10)}
        s_sub_u32 s74, s86, 20
        s_cmp_ge_u32 s86, 20
        s_cselect_b32 s86, s74, s86
        s_mul_i32 s86, s86, {32*3840}
        s_add_u32 s86, s86, s75""")
        sd = S_W
    else:
        h(f"s_add_u32 s86, s79, {(G%4)*160*1280}")
        sd = S_WO
    W = [(f"s_add_u32 m0, s84, {slotbase + 1024*i}", f"buffer_load_dwordx4 v{V_QD[i] if 10 <= G < 15 else (V_WD+i if G < 10 else V_XO+i)}, {sr(sd,4)}, s86 offen {'nt' if opt('ntw', 0) else ''} lds") for i in range(5)]
    if G < 10:
        X = [(f"s_add_u32 m0, s87, {(G%4)*4096 + 1024*r}", f"buffer_load_dwordx4 v{V_XD+r}, {sr(S_X,4)}, s81 offen {'nt' if opt('ntx', 0) else ''} lds") for r in range(4)]
        items = [W[0], X[0], W[1], X[1], W[2], X[2], W[3], X[3], W[4]]
    else: items = W
    return dma_bundles(G, h, items)
V_QD = [21, 29, 30, 31, 252]

OF = lambda n: 88 + 4 * n
G2ACC = 56
def gemm2_tail(p):
    F = V_WF
    p("g2_tail:")
    unpark(p, 'two', V_TA)
    p(f"""v_xor_b32 v{V_TA+1}, 64, v{V_TA}
    v_add_u32 v{V_TA+2}, {8*GR}, v{V_TA}
    v_add_u32 v{V_TA+3}, {8*GR}, v{V_TA+1}
    v_lshlrev_b32 v{t+2}, 4, v{LN}
    v_lshrrev_b32 v{t+4}, 3, v{LN}
    v_mul_u32_u24 v{t+4}, 5120, v{t+4}
    v_and_b32 v{t}, 7, v0
    v_lshl_add_u32 v{t+4}, v{t}, 7, v{t+4}
    s_mov_b32 s94, {SPIN}
    s_add_u32 s93, s92, 4096
    s_barrier""")
    unpark(p, 'outw', t); unpark(p, 'outr', t + 1); unpark(p, 'outg', t + 3)
    stamp(p)
    def reads(n):
        hq, pp = divmod(n, 5); q = Prog(); fb = F + (n % 3) * 8
        off = hq * 10240 + pp * 2048; hi = 0
        if hq >= 4: off -= 8 * GR; hi = 2
        for T in range(2):
            for h in range(2):
                q(f"ds_read_b64_tr_b16 {vr(fb+4*T+2*h,2)}, v{V_TA+hi+T} offset:{off + 512*h}")
        return q
    p("g2_retry:")
    p.extend(reads(0)); p.extend(reads(1))
    p(f"s_mov_b32 s81, s92\n v_mov_b32 v248, 0")
    def oload(n):
        q = Prog(); hq, pp = divmod(n, 5)
        if pp == 4: q(f"s_add_u32 s85, s81, 4096")
        q(f"buffer_load_dwordx4 {vr(OF(n),4)}, v{t+2}, {sr(S_WS,4)}, {'s85' if pp == 4 else 's81'} offen offset:{1024*(pp%4)} sc1")
        if pp == 4: q("s_add_u32 s81, s81, 5120")
        return q
    PRE = opt('opre', 10); SPEC = opt('spec', 0)
    p(f"""buffer_load_dword v249, v{t+4}, {sr(S_WS,4)}, s93 offen sc1
    s_waitcnt vmcnt(0)
    v_cmp_ne_u32 vcc, -1, v249
    s_nop 1
    s_cmp_eq_u64 vcc, -1""")
    p("s_cbranch_scc1 g2_now", tag='keep')
    p("g2_poll:")
    if opt('gslp', 6): p(f"s_sleep {opt('gslp', 6)}")
    p(f"""buffer_load_dword v249, v{t+4}, {sr(S_WS,4)}, s93 offen sc1
    s_mov_b32 s81, s92
    s_sub_u32 s94, s94, 1""")
    if SPEC:
        for n in range(PRE): p.extend(oload(n))
    p(f"""v_cmp_ne_u32 vcc, -1, v249
    s_cmp_lt_i32 s94, 1""")
    p(f"s_cbranch_scc1 {'g2_go' if SPEC else 'g2_now'}", tag='keep')
    p("s_cmp_eq_u64 vcc, -1")
    p("s_cbranch_scc0 g2_poll", tag='keep')
    if SPEC: p("s_branch g2_go", tag='keep')
    p("g2_now:")
    for n in range(PRE):
        q = oload(n)
        if SPEC:
            for i_ in q.L: i_.tag = 'offpath'
        p.extend(q)
    p("g2_go:")
    stamp(p)
    for n in range(40):
        fb = F + (n % 3) * 8
        mm = Prog(); mm.need([vr(fb, 8), vr(OF(n), 4)])
        for T in range(2): mfma32(mm, vr(G2ACC + 16 * T, 16), vr(fb + 4 * T, 4), vr(OF(n), 4), '0' if n == 0 else None)
        st = []
        if n + 2 < 40: st.append((singles(reads(n + 2)), 0, 2))
        if n + PRE < 40: st.append(([oload(n + PRE)], 0, 1))
        c = Prog(); c(f"v_max3_u32 v248, v248, v{OF(n)}, v{OF(n)+1}\n v_max3_u32 v248, v248, v{OF(n)+2}, v{OF(n)+3}")
        st.append((singles(c), 1, 2))
        p.extend(pack(mm, st, cap=32))
    p(f"""v_cmp_eq_u32 vcc, -1, v248
    s_mul_i32 s78, s68, {32*2560}
    s_cmp_lt_i32 s94, 1""")
    p("s_cbranch_scc1 g2_out", tag='keep')
    p("s_sub_u32 s94, s94, 1\n s_nop 7\n s_nop 7")
    p("s_cbranch_vccnz g2_retry", tag='keep')
    p("g2_out:")
    stamp(p)
    for T in range(2):
        for j in range(4):
            x = G2ACC + 16 * T + 4 * j; o = 88 + 8 * T + 2 * j
            p(f"v_cvt_pk_bf16_f32 v{o}, v{x}, v{x+1}\n v_cvt_pk_bf16_f32 v{o+1}, v{x+2}, v{x+3}")
            p(f"ds_write_b64 v{t}, {vr(o,2)} offset:{64*T+16*j}")
    for i in range(4): p(f"ds_read_b128 {vr(104+4*i,4)}, v{t+1} offset:{8*144*i}")
    for i in range(4):
        p(f"buffer_store_dwordx4 {vr(104+4*i,4)}, v{t+3}, {sr(S_OUT,4)}, s78 offen {OPT.get('ast', 'sc1')}")
        if i < 3: p(f"s_add_u32 s78, s78, {8*2560}")
    stamp(p)
    stamp_store(p, S_WS)
    p("s_endpgm")

def divc(p, d, x, c):
    m, sh = {10: (205, 11), 20: (205, 12), 12: (171, 11), 5: (205, 10), 100: (41, 12)}[c]
    p(f"v_mul_u32_u24 v{d}, {m}, v{x}\n v_lshrrev_b32 v{d}, {sh}, v{d}")

V_PO = 160
V_D = 200
NPG = opt('npg', 6); XM = opt('xm', 0); YT = opt('yt', 1); UT = opt('ut', 0)
def decode_ab(p, tmp, sub, sb, hg):
    p(f"s_lshr_b32 {tmp}, s2, 3")
    if sub: p(f"s_sub_u32 {tmp}, {tmp}, {sub}")
    if XM == 0:
        p(f"""s_and_b32 s{sb}, s2, 6
        s_lshl_b32 s{sb}, s{sb}, 1
        s_and_b32 s{hg}, s2, 1
        s_lshl_b32 s{hg}, s{hg}, 2
        s_and_b32 s4, {tmp}, 3
        s_add_u32 s{hg}, s{hg}, s4
        s_lshr_b32 {tmp}, {tmp}, 2
        s_add_u32 s{sb}, s{sb}, {tmp}""")
    else:
        p(f"""s_and_b32 s{sb}, s2, 7
        s_lshl_b32 s{sb}, s{sb}, 1
        s_and_b32 s{hg}, {tmp}, 7
        s_lshr_b32 {tmp}, {tmp}, 3
        s_add_u32 s{sb}, s{sb}, {tmp}""")
def role_A():
    p = Prog(); nstamp[0] = 0
    p("roleA:")
    if opt('cpf3', 1):
        p(f"""s_cmp_lg_u32 s68, 0
        s_cbranch_scc1 a_c3
        s_getpc_b64 s[4:5]
        v_lshlrev_b32 v2, 7, v0""")
        for k in range(opt('cpf3', 1)):
            p(f"s_add_u32 s4, s4, {0xc80 if k == 0 else 8192}\n s_addc_u32 s5, s5, 0\n global_load_dword v254, v2, s[4:5]")
        p("a_c3:")
    stamp(p)
    decode_ab(p, 's73', 0, 69, 70)
    if ROT == 2:
        p("""s_add_u32 s71, s69, s70
        s_mul_i32 s71, s71, 3
        s_mul_i32 s74, s71, 205
        s_lshr_b32 s74, s74, 11
        s_mul_i32 s74, s74, 10
        s_sub_u32 s71, s71, s74""")
    else:
        p(f"s_mul_i32 s71, s71, {5 if ROT else 0}\n s_add_u32 s71, s71, {1 if ROT else 0}\n s_lshr_b32 s71, s71, 1")
    p(f"""v_and_b32 v{LN}, 63, v0
    v_mov_b32 v{V_Z}, 0""")
    p(f"""s_lshl_b32 s76, s68, 5
    v_lshrrev_b32 v{t}, 3, v{LN}
    v_add_u32 v{t}, s76, v{t}
    v_mul_u32_u24 v{t}, 1280, v{t}
    v_and_b32 v{t+1}, 7, v0
    v_bfe_u32 v{t+2}, v0, 4, 2
    v_xor_b32 v{t+1}, v{t+1}, v{t+2}
    v_lshl_add_u32 v{V_XD}, v{t+1}, 4, v{t}
    v_xor_b32 v{V_XD+1}, 64, v{V_XD}
    v_add_u32 v{V_XD+1}, {8*1280}, v{V_XD+1}
    v_add_u32 v{V_XD+2}, {16*1280}, v{V_XD}
    v_add_u32 v{V_XD+3}, {16*1280}, v{V_XD+1}""")
    p(f"s_movk_i32 s78, 1120")
    for i in range(5):
        p(f"v_add_u32 v{t}, {64*i}, v{LN}")
        divc(p, t + 1, t, 20)
        p(f"""v_mul_u32_u24 v{t+2}, 20, v{t+1}
        v_sub_u32 v{t}, v{t}, v{t+2}
        v_mul_u32_u24 v{t+1}, 3840, v{t+1}
        v_cmp_le_u32 vcc, 10, v{t}
        v_lshl_add_u32 v{t+1}, v{t}, 4, v{t+1}
        v_add_u32 v{t+2}, s78, v{t+1}
        v_cndmask_b32 v{V_WD+i}, v{t+1}, v{t+2}, vcc""")
    p(f"""s_mov_b32 s80, s71
    s_mul_i32 s75, s70, 160
    s_mul_i32 s82, s68, {16*3840}
    s_add_u32 s82, s82, s75
    s_add_u32 s82, s82, 1280
    s_lshl_b32 s83, s70, 7
    s_mul_i32 s84, s68, {GR}
    s_lshl_b32 s87, s68, 14
    s_add_u32 s87, s87, {A_PHIK}
    s_mul_i32 s78, s69, {128*1280}""")
    srd(p, S_X, P_X, 128 * 1280, 's78')
    srd(p, S_W, P_W, 640 * 3840)
    su = Prog()
    trbase(su, V_TA, 8 * 320, 320)
    su(f"""v_add_u32 v{V_TA+1}, {8*GR}, v{V_TA}
    v_and_b32 v{t}, 31, v0
    v_bfe_u32 v{t+1}, v0, 1, 3
    v_bfe_u32 v{t+2}, v0, 5, 1
    v_xor_b32 v{t+1}, v{t+1}, v{t+2}
    v_lshlrev_b32 v{t+1}, 4, v{t+1}
    v_lshl_add_u32 v{t}, v{t}, 7, v{t+1}
    v_add_u32 v{V_XO}, s87, v{t}
    v_xor_b32 v{V_XO+1}, 32, v{V_XO}
    v_xor_b32 v{V_XO+2}, 64, v{V_XO}
    v_xor_b32 v{V_XO+3}, 96, v{V_XO}""")
    su(f"""v_mov_b32 v{V_X+4}, 0
    v_mov_b32 v{V_X+5}, 0
    v_mov_b32 v{V_X+6}, 0
    v_mov_b32 v{V_X+7}, 0
    v_lshlrev_b32 v{t}, 4, v0
    v_add_u32 v{t}, {A_BD}, v{t}
    v_min_u32 v{t+1}, {A_BD+496}, v{t}
    ds_write_b128 v{t}, {vr(V_X+4,4)}
    ds_write_b128 v{t}, {vr(V_X+4,4)} offset:4096
    ds_write_b128 v{t}, {vr(V_X+4,4)} offset:8192
    ds_write_b128 v{t+1}, {vr(V_X+4,4)} offset:12288""")
    L2E = 1.4426950408889634
    su(f"s_mov_b32 s88, {f2u(L2E):#x}\n s_mov_b32 s89, {f2u(L2E):#x}")
    for r in range(2):
        su(f"v_add_u32 v{t}, {256*r}, v0")
        divc(su, t + 1, t, 5); divc(su, t + 2, t, 100)
        su(f"""v_mul_u32_u24 v{t+1}, 120, v{t+1}
        v_mad_u32_u24 v{t+1}, v{t+2}, 40, v{t+1}
        v_lshl_add_u32 v{t+1}, v{t}, 3, v{t+1}
        v_add_u32 v{V_X+8+r}, {A_BD}, v{t+1}""")
    su(f"""v_mov_b32 v{t+1}, {A_END}
    v_cmp_gt_u32 vcc, 400, v{t}
    v_cndmask_b32 v{V_X+9}, v{t+1}, v{V_X+9}, vcc""")
    srd(su, S_DBG, P_DBG, 256)
    for i in range(5):
        su(f"v_add_u32 v{t}, {64*i}, v{LN}")
        divc(su, t + 1, t, 10)
        su(f"""v_mul_u32_u24 v{t+2}, 10, v{t+1}
        v_sub_u32 v{t}, v{t}, v{t+2}
        v_and_b32 v{t+2}, 24, v{t+1}
        v_and_b32 v{t+3}, 1, v{t+1}
        v_lshl_add_u32 v{t+2}, v{t+3}, 2, v{t+2}
        v_bfe_u32 v{t+3}, v{t+1}, 1, 2
        v_add_u32 v{t+2}, v{t+2}, v{t+3}
        v_mul_u32_u24 v{t+2}, 3840, v{t+2}
        v_lshl_add_u32 v{V_QD[i]}, v{t}, 4, v{t+2}""")
    su(f"""v_bfe_u32 v{t}, v0, 5, 1
    v_bfe_u32 v{t+1}, v0, 2, 2
    v_lshl_add_u32 v{t}, v{t}, 2, v{t+1}
    v_mul_u32_u24 v{t}, 160, v{t}
    v_and_b32 v{t+1}, 1, v0
    v_mad_u32_u24 v{t}, v{t+1}, 40, v{t}
    v_bfe_u32 v{t+1}, v0, 4, 1
    v_bfe_u32 v{t+2}, v0, 1, 1
    v_lshl_add_u32 v{t+1}, v{t+1}, 1, v{t+2}
    v_lshl_add_u32 v{t}, v{t+1}, 3, v{t}
    v_add_u32 v18, {A_BD}, v{t}
    v_cmp_eq_u32 vcc, 0, v{t+1}
    v_add_u32 v19, 32, v18
    v_add_u32 v{t+2}, 72, v18
    v_cndmask_b32 v19, v{t+2}, v19, vcc
    v_cmp_gt_u32 vcc, 2, v{t+1}
    v_add_u32 v20, 104, v18
    v_nop
    v_cndmask_b32 v20, v18, v20, vcc""".replace("    v_nop\n", ""))
    trbase(su, t + 3, 8 * 160, 320); park(su, 'tq', t + 3)
    a0 = V_PA
    su(f"""v_and_b32 v{t}, 31, v0
    v_add_u32 v{t}, s76, v{t}
    v_bfe_u32 v{t+1}, v0, 5, 1
    v_mul_u32_u24 v{t+2}, {PHI_RS}, v{t}
    v_add_u32 v{t+2}, {A_PHIK}, v{t+2}
    v_bfe_u32 v{t+3}, v0, 2, 1
    v_mul_u32_u24 v{t+4}, 5, v{t+1}
    v_xor_b32 v{a0}, v{t+4}, v{t+3}
    v_lshl_add_u32 v{a0}, v{a0}, 4, v{t+2}
    v_add_u32 v{t+4}, 1, v{t+4}
    v_xor_b32 v{a0+1}, v{t+4}, v{t+3}
    v_lshl_add_u32 v{a0+1}, v{a0+1}, 4, v{t+2}
    v_mul_u32_u24 v{t}, 160, v{t}
    v_add_u32 v{t}, {A_VST}, v{t}
    v_bfe_u32 v{t+3}, v0, 2, 2
    v_xor_b32 v{t+3}, v{t+3}, v{t+1}
    v_lshl_add_u32 v{a0+2}, v{t+3}, 3, v{t}
    v_xor_b32 v{t+3}, 2, v{t+3}
    v_lshl_add_u32 v{a0+3}, v{t+3}, 3, v{t}""")
    park(su, 'phiw0', a0); park(su, 'phiw1', a0 + 1); park(su, 'vw0', a0 + 2); park(su, 'vw1', a0 + 3)
    su(f"""v_bfe_u32 v{t}, v0, 2, 4
    v_bfe_u32 v{t+1}, v0, 4, 2
    s_mul_i32 s78, s68, 5
    v_bfe_u32 v{t+2}, v0, 1, 1
    v_add_u32 v{t+2}, s78, v{t+2}
    v_and_b32 v{t+3}, 1, v{t+1}
    v_xor_b32 v{t+2}, v{t+2}, v{t+3}
    v_and_b32 v{t+3}, 1, v0
    v_lshlrev_b32 v{t+3}, 3, v{t+3}
    v_lshl_add_u32 v{t+2}, v{t+2}, 4, v{t+3}
    v_mul_u32_u24 v{t+3}, {PHI_RS}, v{t}
    v_add_u32 v{t+2}, v{t+2}, v{t+3}
    v_add_u32 v{a0}, {A_PHIK}, v{t+2}
    v_mul_u32_u24 v{t}, 160, v{t}
    v_add_u32 v{t}, {A_VST}, v{t}
    v_and_b32 v{t+2}, 3, v0
    v_add_u32 v{t+2}, s78, v{t+2}
    v_xor_b32 v{t+2}, v{t+2}, v{t+1}
    v_lshl_add_u32 v{a0+1}, v{t+2}, 3, v{t}
    s_add_u32 s78, s78, 4
    v_xor_b32 v{t+2}, s78, v{t+1}
    v_lshl_add_u32 v{a0+2}, v{t+2}, 3, v{t}""")
    park(su, 'phir', a0); park(su, 'vr0', a0 + 1); park(su, 'vr1', a0 + 2)
    a0 = V_PA
    su(f"""v_and_b32 v{t+3}, 15, v0
    v_bfe_u32 v{t+4}, v0, 4, 2
    v_cmp_gt_u32 s[90:91], 8, v{t+3}
    v_lshlrev_b32 v{t}, 2, v{t+3}
    v_mul_u32_u24 v{t+1}, 768, v{t+4}
    v_add_u32 v{a0}, v{t}, v{t+1}
    v_add_u32 v{t+1}, {192-32}, v{a0}
    v_cndmask_b32 v{a0+1}, v{t+1}, v{a0}, s[90:91]
    v_mul_u32_u24 v{t+1}, 192, v{t+4}
    v_add_u32 v{t+1}, {16*192}, v{t+1}
    v_add_u32 v{a0+2}, v{t+1}, v{t}
    v_mov_b32 v{t+2}, {OOB:#x}
    v_cmp_gt_u32 vcc, 40, v{LN}
    v_cndmask_b32 v{a0+3}, v{t+2}, v{a0+2}, s[90:91]
    v_lshlrev_b32 v{t+1}, 2, v{LN}
    v_add_u32 v{t+1}, {20*192}, v{t+1}
    v_cndmask_b32 v{a0+4}, v{t+2}, v{t+1}, vcc
    v_cmp_eq_u32 vcc, 0, v{LN}
    v_cmp_gt_u32 s[90:91], 4, v{t+3}
    v_cndmask_b32 v{a0+6}, v{t+2}, v{V_Z}, vcc""")
    for k in range(5): park(su, f'at{k}', a0 + k)
    park(su, 'l0', a0 + 6)
    su(f"s_mul_i32 s85, s68, 1920\n s_add_u32 s85, s85, {A_KVIMG}\n v_mov_b32 v{t+4}, {A_KVIMG+9600}")
    for i in range(4):
        su(f"v_add_u32 v{t}, {64*i}, v{LN}")
        divc(su, t + 1, t, 12)
        su(f"""v_mul_u32_u24 v{t+2}, 12, v{t+1}
        v_sub_u32 v{t+2}, v{t}, v{t+2}
        v_cmp_gt_u32 vcc, 10, v{t+2}
        v_mul_u32_u24 v{t+1}, 80, v{t+1}
        v_lshl_add_u32 v{t+1}, v{t+2}, 3, v{t+1}
        v_add_u32 v{t+1}, s85, v{t+1}
        v_cndmask_b32 v{t+1}, v{t+4}, v{t+1}, vcc""")
        if i == 3: su(f"v_cmp_gt_u32 vcc, 60, v{LN}\n v_cndmask_b32 v{t+1}, v{t+4}, v{t+1}, vcc")
        park(su, f'kvw{i}', t + 1)
    su(f"""v_cmp_gt_u32 vcc, 120, v0
    v_lshlrev_b32 v{t}, 4, v0
    v_add_u32 v{t}, {A_KVIMG+7680}, v{t}
    v_cndmask_b32 v{t}, v{t+4}, v{t}, vcc""")
    park(su, 'kvz', t)
    su(f"""v_bfe_u32 v{t}, v0, 3, 2
    v_and_b32 v{t+1}, 3, v0
    v_lshl_add_u32 v{t}, v{t}, 2, v{t+1}
    v_mul_u32_u24 v{t}, 80, v{t}
    v_bfe_u32 v{t+1}, v0, 2, 1
    v_bfe_u32 v{t+4}, v0, 5, 1
    v_cmp_eq_u32 vcc, v{t+1}, v{t+4}
    v_mul_u32_u24 v{t+2}, 1920, v{t+1}
    v_add_u32 v{t}, v{t}, v{t+2}
    v_add_u32 v{t}, {A_KVIMG}, v{t}
    v_add_u32 v{t+3}, 3840, v{t}
    v_mov_b32 v{t+2}, {A_KVIMG+7680}
    v_cndmask_b32 v{t}, v{t+2}, v{t}, vcc
    v_cndmask_b32 v{t+3}, v{t+2}, v{t+3}, vcc""")
    park(su, 'kvr0', t); park(su, 'kvr1', t + 3)
    setup_g2(su)
    wl = Prog()
    wl("s_mul_i32 s77, s70, 3200")
    srd(wl, S_PHI, P_PHI, 3200, 's77')
    wl(f"""v_lshlrev_b32 v{V_X+10}, 3, v0
    buffer_load_dwordx2 {vr(V_X,2)}, v{V_X+10}, {sr(S_PHI,4)}, 0 offen
    buffer_load_dwordx2 {vr(V_X+2,2)}, v{V_X+10}, {sr(S_PHI,4)}, 0 offen offset:2048""")
    token_load(su, S_WS, V_Z)
    def sync(p, G):
        p.waitvm(('dma', G)); p("s_barrier")
    def touches():
        if NPG:
            for w_ in range(4):
                p(f"s_cmp_lg_u32 s68, {w_}")
                p(f"s_cbranch_scc1 a_t{w_}", tag='keep')
                for k in range(w_, NPG, 4): p(f"s_call_b64 s[4:5], pg{k}", tag='keep')
                p(f"a_t{w_}:")
    HALF = opt('half', 0)
    if HALF:
        p(f"""s_mul_i32 s86, s80, {64*3840}
        s_add_u32 s86, s86, s82
        s_lshl_b32 s81, s80, 7
        s_add_u32 s80, s80, 1
        s_cmp_eq_u32 s80, 10
        s_cselect_b32 s80, 0, s80
        s_mov_b32 s95, s86""")
        def w0(tag):
            for i in range(5): p(f"s_add_u32 m0, s84, {1024*i}\n s_nop 0\n buffer_load_dwordx4 v{V_WD+i}, {sr(S_W,4)}, s95 offen lds", tag=tag)
        p("s_cmp_ge_u32 s68, 2")
        p("s_cbranch_scc1 a_w0a", tag='keep')
        w0('offpath')
        p("a_w0a:")
        for r in range(4): p(f"s_add_u32 m0, s87, {1024*r}\n s_nop 0\n buffer_load_dwordx4 v{V_XD+r}, {sr(S_X,4)}, s81 offen lds", tag=('dma', 0))
        p.extend(su); p.extend(wl); touches()
        p("s_cmp_lt_u32 s68, 2")
        p("s_cbranch_scc1 a_w0b", tag='keep')
        p(f"s_waitcnt vmcnt(3)", tag='offpath')
        w0('offpath')
        p("s_branch a_w0c", tag='keep')
        p("a_w0b:")
        p("s_waitcnt vmcnt(3)", tag='offpath')
        p("a_w0c:")
        stamp(p)
        p("s_waitcnt lgkmcnt(0)\n s_barrier")
    else:
        iss = issue_group(0) + [wl]
        sub = bundles(su)
        LEAD = opt('lead', 7); per = opt('suchunk', 30)
        for k, b in enumerate(iss):
            p.extend(b)
            if k >= LEAD:
                for x in sub[:per]: p.extend(x)
                sub = sub[per:]
        for x in sub: p.extend(x)
        touches()
        for b in issue_group(1): p.extend(b)
        stamp(p)
        p("s_waitcnt lgkmcnt(0)")
        sync(p, 0)
    stamp(p)
    FD = 2
    def kv_reads(k):
        q = Prog(); fb = V_WF + (k % 3) * 20
        slot = k % NSLOT; base = V_TA + (slot >= 8); so = (slot % 8) * GR
        q(f"ds_read_b128 {ar(4*k,4)}, v{V_XO+k%4} offset:{((k//4)%4)*4096}")
        for T in range(5):
            for h in range(2):
                q(f"ds_read_b64_tr_b16 {vr(fb+4*T+2*h,2)}, v{base} offset:{so + 1280*h + 64*T}")
        return q
    PH = [(0, 0), (0, 1), (0, 2), (1, 0), (1, 1), (1, 2), (1, 3), (1, 4), (2, 2), (2, 3), (2, 4)]
    bdr = Prog()
    for n, (U, ka) in enumerate(PH):
        for h in range(2): bdr(f"ds_read_b64_tr_b16 {ar(160+4*n+2*h,2)}, v{18+U} offset:{(16*ka+8*h)*160}")
    bdr = singles(bdr)
    for k in range(FD): p.extend(kv_reads(k))
    segs = [list(range(0, 4 - FD))] + [list(range(4 * G - FD, 4 * G + 4 - FD)) for G in range(1, 10)] + [list(range(40 - FD, 40))]
    for si, steps in enumerate(segs):
        if si >= 1:
            if si == 10: p("s_waitcnt lgkmcnt(0)")
            if STAMP == 2: stamp(p)
            sync(p, si)
            if HALF and si == 1: p.extend(kv_reads(2)); p.extend(kv_reads(3))
        m = Prog(); st = []
        for n, k in enumerate(steps):
            fb = V_WF + (k % 3) * 20
            m.need([vr(fb, 20), ar(4 * k, 4)])
            for T in range(5): mfma32(m, vr(V_KA + 16 * T, 16), vr(fb + 4 * T, 4), ar(4 * k, 4), '0' if k == 0 else None)
            if k + FD < 40 and not (HALF and si == 0): st.append((singles(kv_reads(k + FD)), 5 * n, 5 * n + 5))
        if HALF and si == 0: st.append((issue_group(1), 0, None))
        elif HALF and si == 1: st.append((issue_group(2) + issue_group(3), 0, None))
        else: st.append((issue_group(si + 2), 0, None))
        if si == 1:
            w = Prog(); w(f"ds_write_b64 v{V_X+8}, {vr(V_X,2)}\n ds_write_b64 v{V_X+9}, {vr(V_X+2,2)}")
            st.append((singles(w), 2, 12))
        if si == 2:
            w = Prog(); token_make(w); st.append((singles(w), 0, None))
        if si == 8:
            w = Prog(); w(f"buffer_load_dword v{V_X+10}, v{V_Z}, {sr(S_DBG,4)}, 0 offen sc1")
            st.append(([w], 0, 1))
        if si == 10:
            w = Prog(); unpark(w, 'vw0', t + 1); unpark(w, 'vw1', t + 3); unpark(w, 'phiw0', t + 2); unpark(w, 'phiw1', V_X + 11); unpark(w, 'tq', V_TA + 2)
            w(f"v_add_u32 v{V_TA+3}, {8*GR}, v{V_TA+2}")
            for i in range(5): unpark(w, f'wo{i}', V_XO + i)
            w(f"""v_lshlrev_b32 v{t}, 4, v{LN}
            s_mul_i32 s77, s70, 5120
            s_add_u32 s77, s77, s92
            s_add_u32 s78, s77, 4096""")
            st.append((singles(w), 0, None)); st.append((bdr, 0, None))
        p.extend(pack(m, st))
    stamp(p)

    def phi_step(p, acc, out, extra=None, inexp=None):
        B = V_WF; E = V_WF + 24; M = V_WF + 64
        cv = [f"v_cvt_pk_bf16_f32 v{B+k}, v{acc+2*k}, v{acc+2*k+1}" for k in range(20)]
        def minmax(y):
            q = Prog(); x = V_PA + y * 20; Mx = M + 8 * y
            q(f"v_max3_f32 v{Mx}, v{x}, v{x+1}, v{x+2}\n v_min3_f32 v{Mx+2}, v{x}, v{x+1}, v{x+2}")
            for k in range(3, 19, 2):
                q(f"v_max3_f32 v{Mx}, v{Mx}, v{x+k}, v{x+k+1}\n v_min3_f32 v{Mx+2}, v{Mx+2}, v{x+k}, v{x+k+1}")
            q(f"v_max_f32 v{Mx}, v{Mx}, v{x+19}\n v_min_f32 v{Mx+2}, v{Mx+2}, v{x+19}")
            q(f"v_mul_f32 v{Mx}, s88, v{Mx}\n v_mul_f32 v{Mx+2}, s88, v{Mx+2}")
            return q
        for c in cv[:8]: p(c)
        m = Prog(); seen = set()
        for n, (U, ka) in enumerate(PH):
            mfma32(m, vr(V_PA + 16 * U, 16), ar(160 + 4 * n, 4), vr(B + 4 * ka, 4), None if U in seen else '0'); seen.add(U)
        c2 = Prog()
        for c in cv[8:]: c2(c)
        st = [(singles(c2), 0, 2)]
        if extra: st.append((bundles(extra), 2, 11))
        p.extend(pack(m, st, cap=28))
        for y in range(2):
            x = V_PA + y * 20; Mx = M + 8 * y
            p.extend(minmax(y))
            for q in range(10):
                p(f"v_pk_fma_f32 {vr(E+2*q,2)}, {vr(x+2*q,2)}, s[88:89], {vr(Mx,2)} op_sel_hi:[1,1,0] neg_lo:[0,0,1] neg_hi:[0,0,1]")
                p(f"v_pk_fma_f32 {vr(E+20+2*q,2)}, {vr(x+2*q,2)}, s[88:89], {vr(Mx+2,2)} op_sel_hi:[1,1,0] neg_lo:[1,0,0] neg_hi:[1,0,0]")
            for q in range(40):
                p(f"v_exp_f32 v{E+q}, v{E+q}")
                if y == 0 and inexp and q % 6 == 5: p.extend(inexp.pop(0))
            for q in range(1, 10):
                for hh in range(2):
                    S = Mx + 4 + 2 * hh; e = E + 20 * hh
                    p(f"v_pk_add_f32 {vr(S,2)}, {vr(e if q == 1 else S,2)}, {vr(e+2*q,2)}")
            p(f"v_add_f32 v{Mx+4}, v{Mx+4}, v{Mx+5}\n v_add_f32 v{Mx+6}, v{Mx+6}, v{Mx+7}")
            p(f"v_rcp_f32 v{Mx+4}, v{Mx+4}\n v_rcp_f32 v{Mx+6}, v{Mx+6}")
            for hh in range(2):
                for q in range(10):
                    e = E + 20 * hh + 2 * q
                    p(f"v_pk_mul_f32 {vr(e,2)}, {vr(e,2)}, {vr(Mx+4+2*hh,2)} op_sel_hi:[1,0]")
            yield y
            for q in range(20):
                p(f"v_cvt_pk_bf16_f32 v{out+y*20+q}, v{E+2*q}, v{E+2*q+1}")

    def q_reads(k):
        q = Prog(); fb = V_WF + (k % 3) * 12
        slot = (40 + k // 2) % NSLOT; base = V_TA + 2 + (slot >= 8); so = (slot % 8) * GR + (k % 2) * 2560
        for T in range(3):
            for h in range(2):
                q(f"ds_read_b64_tr_b16 {vr(fb+4*T+2*h,2)}, v{base} offset:{so + 160*h + 64*T}")
        return q
    ex = Prog()
    for mm_ in range(10):
        a = V_VA + 4 * mm_; d = V_X + 2 * (mm_ % 4)
        ex(f"v_cvt_pk_bf16_f32 v{d}, v{a}, v{a+1}\n v_cvt_pk_bf16_f32 v{d+1}, v{a+2}, v{a+3}\n ds_write_b64 v{t+1+2*(mm_%2)}, {vr(d,2)} offset:{32*(mm_//2)}")
    w = Prog(); w0 = Prog()
    for k in range(4): w0(f"v_mov_b32 v{V_X+4+k}, -1")
    for pc in range(5):
        w(f"buffer_store_dwordx4 {vr(V_X+4,4)}, v{t}, {sr(S_WS,4)}, {'s78' if pc == 4 else 's77'} offen offset:{1024*(pc%4)} sc1")
    for y in phi_step(p, V_KA, V_PO, ex, [w0] + singles(w)):
        if y == 1:
            p.extend(q_reads(0));
    p.extend(q_reads(1))
    stamp(p)
    p(f"""v_readfirstlane_b32 s95, v{V_X+10}
    s_mov_b32 s94, {SPIN}
    s_cmp_ge_u32 s95, {NZERO_WG}""")
    p("s_cbranch_scc1 a_pz_x", tag='keep')
    p("a_pz:")
    p(f"""buffer_load_dword v{V_X+10}, v{V_Z}, {sr(S_DBG,4)}, 0 offen sc1
    s_sub_u32 s94, s94, 1
    s_waitcnt vmcnt(0)
    v_readfirstlane_b32 s95, v{V_X+10}
    s_cmp_eq_u32 s94, 0""", tag='offpath')
    p("s_cbranch_scc1 a_pz_x", tag='keep')
    p(f"s_cmp_ge_u32 s95, {NZERO_WG}")
    p("s_cbranch_scc0 a_pz", tag='keep')
    p("a_pz_x:")
    pw = Prog()
    for y in range(2):
        for q in range(5): pw(f"ds_write_b128 v{V_X+11 if q % 2 else t+2}, {vr(V_PO+y*20+4*q,4)} offset:{160*y + 32*(q//2)}")
    pre = Prog()
    unpark(pre, 'phir', t); unpark(pre, 'vr0', t + 1); unpark(pre, 'vr1', t + 3)
    pre(f"v_mov_b32 v{t+4}, 0x3f803f80")
    for k in range(5): unpark(pre, f'at{k}', V_X + k)
    pre(f"""s_lshl_b32 s78, s70, 2
    s_add_u32 s78, s78, s68
    s_lshl_b32 s78, s78, 12
    s_add_u32 s78, s78, {WS_KV}""")
    KF = [72, 92, V_PO, V_PO + 20]
    def kvs_reads(sw):
        q = Prog(); fb = KF[sw]
        for h in range(2): q(f"ds_read_b64_tr_b16 {vr(fb+4+2*h,2)}, v{t+3} offset:{(sw*32+h*16)*160}")
        for h in range(2): q(f"ds_read_b64_tr_b16 {vr(fb+2*h,2)}, v{t+1} offset:{(sw*32+h*16)*160}")
        for nf in range(3):
            for h in range(2):
                q(f"ds_read_b64_tr_b16 {vr(fb+8+4*nf+2*h,2)}, v{t} offset:{(sw*32+h*16)*PHI_RS + 32*nf}")
        return q
    def kvs_mfma(m, sw):
        fb = KF[sw]
        m.need([vr(fb, 20)])
        for q in range(4): m(f"v_cndmask_b32 v{fb+4+q}, v{t+4}, v{fb+4+q}, s[90:91]")
        for md in range(2):
            for nf in range(3):
                mfma(m, vr(V_D + (3 * md + nf) * 4, 4), vr(fb + 4 * md, 4), vr(fb + 8 + 4 * nf, 4), '0' if sw == 0 else None)
    at = Prog(); a0 = V_X
    def atom(v, vo, off): at(f"buffer_atomic_add_f32 v{v}, v{vo}, {sr(S_WS,4)}, s78 offen offset:{off}", tag='kvat')
    for nf in range(2):
        for i in range(4): atom(V_D + 4 * nf + i, a0, i * 192 + nf * 64)
    R = lambda nf, i: V_D + 12 + 4 * nf + i
    for i in (0, 2):
        at(f"v_mov_b32_dpp v{V_D+8+i}, v{V_D+9+i} row_shr:8 row_mask:0xf bank_mask:0xc")
    for nf in range(3):
        at(f"v_permlane16_swap_b32 v{R(nf,0)}, v{R(nf,1)}\n v_permlane16_swap_b32 v{R(nf,2)}, v{R(nf,3)}")
    for i in (0, 2): atom(V_D + 8 + i, a0 + 1, i * 192 + 128)
    for nf in range(3): at(f"v_permlane32_swap_b32 v{R(nf,0)}, v{R(nf,2)}")
    at(f"v_permlane16_swap_b32 v{R(0,1)}, v{R(1,1)}")
    for nf in range(3): atom(R(nf, 0), a0 + (3 if nf == 2 else 2), nf * 64)
    at(f"v_permlane32_swap_b32 v{R(0,1)}, v{R(2,1)}")
    atom(R(0, 1), a0 + 4, 0)
    KS = opt('ks', 4)
    segs = [list(range(0, 6))] + [list(range(8 * g - 2, 8 * g + 6)) for g in range(1, 5)] + [[38, 39]]
    def signal():
        unpark(p, 'l0', V_X + 7)
        p(f"""s_lshl_b32 s78, s70, 13
        s_lshl_b32 s85, s69, 9
        s_add_u32 s78, s78, s85
        s_lshl_b32 s85, s68, 7
        s_add_u32 s78, s78, s85
        s_add_u32 s78, s78, {WS_KVF}""")
        p.waitvm('kvat')
        p(f"buffer_store_dword v{V_TOK}, v{V_X+7}, {sr(S_WS,4)}, s78 offen sc1")
    def qstep(k):
        m = Prog(); fb = V_WF + (k % 3) * 12
        m.need([vr(fb, 12)])
        for T in range(3): mfma32(m, vr(V_KA + 16 * T, 16), vr(fb + 4 * T, 4), ar(4 * k, 4), '0' if k == 0 else None)
        return m
    def qrun(steps, extra):
        m = Prog(); st = []
        for n, k in enumerate(steps):
            m.extend(qstep(k))
            if k + 2 < 40: st.append((singles(q_reads(k + 2)), 3 * n, 3 * n + 3))
        p.extend(pack(m, st + extra, cap=28))
    NW = opt('nw', 4)
    qrun(range(0, NW), [(singles(pw), 0, 3 * NW - 2), (bundles(pre), 2, None)])
    if STAMP == 3: stamp(p)
    p("s_waitcnt lgkmcnt(0)\n s_barrier")
    kr = Prog()
    for sw in range(4): kr.extend(kvs_reads(sw))
    kr = singles(kr)
    for x in kr[:10]: p.extend(x)
    qrun(range(NW, 6), [(kr[10:], 0, None)])
    m = Prog()
    for sw in range(4): kvs_mfma(m, sw)
    p.extend(pack(m, [(issue_group(13), 0, 20)], cap=8))
    if STAMP == 3: stamp(p)
    for si, steps in enumerate(segs):
        G = 10 + si
        if si == 0: continue
        if STAMP == 3 and si > 1: stamp(p)
        if si == KS: signal()
        if G < 15: sync(p, G)
        if si == 1: qrun(steps, [(singles(at), 0, opt('atspan', 24))])
        elif si < 5: qrun(steps, [(issue_group(G + 2), 0, None)])
        else: qrun(steps, [])
    if KS == 6: signal()
    stamp(p)
    F = V_WF
    ex = Prog()
    unpark(ex, 'kvz', t)
    ex(f"""v_mov_b32 v{V_X}, 0
    v_mov_b32 v{V_X+1}, 0
    v_mov_b32 v{V_X+2}, 0
    v_mov_b32 v{V_X+3}, 0
    ds_write_b128 v{t}, {vr(V_X,4)}
    v_lshlrev_b32 v{t+1}, 7, v{LN}
    v_lshlrev_b32 v{t+2}, 4, v{LN}
    s_lshl_b32 s78, s70, 13
    s_add_u32 s78, s78, {WS_KVF}
    s_lshl_b32 s77, s70, 2
    s_add_u32 s77, s77, s68
    s_lshl_b32 s77, s77, 12
    s_add_u32 s77, s77, {WS_KV}""")
    for i in range(4): unpark(ex, f'kvw{i}', V_X + 4 + i)
    KL = V_KA + 32
    def kvloads(tag=None):
        for i in range(4):
            p(f"buffer_load_dwordx4 {vr(KL+4*i,4)}, v{t+2}, {sr(S_WS,4)}, s77 offen offset:{1024*i} sc1", tag=tag)
    ex(f"""buffer_load_dword v{V_X+8}, v{t+1}, {sr(S_WS,4)}, s78 offen sc1
    v_and_b32 v{t+3}, 7, v0
    v_lshlrev_b32 v{t+3}, 13, v{t+3}
    s_lshl_b32 s93, s69, 9
    s_lshl_b32 s81, s68, 7
    s_add_u32 s93, s93, s81
    s_add_u32 s93, s93, {WS_KVF}""")
    for y in phi_step(p, V_KA, V_PO, ex):
        if y == 0:
            p(f"v_cmp_eq_u32 vcc, v{V_TOK}, v{V_X+8}\n s_mov_b32 s95, 0\n s_nop 0\n s_cmp_eq_u64 vcc, -1")
            p("s_cbranch_scc0 a_noearly", tag='keep')
            kvloads('offpath')
            p("s_mov_b32 s95, 1", tag='offpath')
            p("a_noearly:")
            p(f"buffer_load_dword v{V_X+9}, v{t+3}, {sr(S_WS,4)}, s93 offen sc1")
        if y == 1:
            stamp(p)
            p("s_cmp_eq_u32 s95, 1")
            p("s_cbranch_scc1 a_have", tag='keep')
            pollall(p, "a_pk", S_WS, 's78', V_X + 8, t + 1)
            kvloads()
            p("a_have:")
            stamp(p)
            p("s_waitcnt vmcnt(0)")
            for i in range(4):
                p(f"v_cvt_pk_bf16_f32 v{F+2*i}, v{KL+4*i}, v{KL+4*i+1}\n v_cvt_pk_bf16_f32 v{F+1+2*i}, v{KL+4*i+2}, v{KL+4*i+3}")
                p(f"ds_write_b64 v{V_X+4+i}, {vr(F+2*i,2)}")
            p(f"v_cmp_eq_u32 vcc, v{V_TOK}, v{V_X+9}")
            unpark(p, 'kvr0', t); unpark(p, 'kvr1', t + 1)
            p("s_cmp_eq_u64 vcc, -1")
            p("s_cbranch_scc1 a_pf_x", tag='keep')
            q = Prog(); pollall(q, "a_pf", S_WS, 's93', V_X + 9, t + 3)
            for i_ in q.L: i_.tag = 'offpath' if i_.kind not in ('label',) else i_.tag
            p.extend(q)
            p(f"""s_mul_i32 s76, s70, 5120
            s_add_u32 s78, s92, s76
            s_add_u32 s81, s78, 4096
            s_mov_b32 s85, {f2u(1e-6):#x}""")
    p("s_waitcnt lgkmcnt(0)\n s_barrier")
    stamp(p)
    order = [(y, u, ka) for u in (1, 0) for y in range(2) for ka in range(5)]
    NB = 10; O = F + 48
    def ord_(n):
        y, u, ka = order[n]; q = Prog(); q(f"ds_read_b128 {vr(F+4*(n%NB),4)}, v{t+y} offset:{u*1280+16*ka}"); return q
    for n in range(NB): p.extend(ord_(n))
    def fin(y, ks):
        q = Prog(); dn = V_KA + 16 * y + 4
        vals = [V_D + 16 * y + r for r in range(16)] + [V_KA + 16 * y + r for r in range(4)]
        for k in ks:
            q(f"v_mul_f32 v{vals[2*k]}, v{dn}, v{vals[2*k]}\n v_mul_f32 v{vals[2*k+1]}, v{dn}, v{vals[2*k+1]}")
            q(f"v_cvt_pk_bf16_f32 v{O+10*y+k}, v{vals[2*k]}, v{vals[2*k+1]}")
        return q
    def ost(q, pc): q(f"buffer_store_dwordx4 {vr(O+4*pc,4)}, v{t+2}, {sr(S_WS,4)}, {'s81' if pc == 4 else 's78'} offen offset:{1024*(pc%4)} {'' if opt('oplain', 0) else 'sc1'}", tag='ost')
    om = Prog()
    for n, (y, u, ka) in enumerate(order):
        if n in (0, 2, 5, 10, 15): om.need([vr(F + 4 * (m_ % NB), 4) for m_ in range(n, {0: 2, 2: 5}.get(n, n + 5))])
        mfma32(om, vr((V_D if u == 0 else V_KA) + 16 * y, 16), vr(F + 4 * (n % NB), 4), vr(V_PO + y * 20 + 4 * ka, 4), '0' if ka == 0 else None)
        if n + NB < 20: om.extend(ord_(n + NB))
    d0 = Prog(); d1 = Prog()
    for y, d in ((0, d0), (1, d1)):
        dn = V_KA + 16 * y + 4
        d(f"v_add_f32 v{dn}, s85, v{dn}\n v_rcp_f32 v{dn}, v{dn}"); d.extend(fin(y, (8, 9)))
    f0 = fin(0, range(4)); ost(f0, 0); f0.extend(fin(0, range(4, 8))); ost(f0, 1)
    p.extend(pack(om, [(issue_group(17) + issue_group(18), 0, 12), (singles(d0), 8, 11), (singles(d1), 12, 15), (singles(f0), 16, 20)], cap=28))
    dn = V_KA + 20
    for k in range(8):
        p(f"v_pk_mul_f32 {vr(V_D+16+2*k,2)}, {vr(V_D+16+2*k,2)}, {vr(dn,2)} op_sel_hi:[1,0]")
    for k in range(8):
        p(f"v_cvt_pk_bf16_f32 v{O+10+k}, v{V_D+16+2*k}, v{V_D+17+2*k}")
        if k in (1, 5, 7): ost(p, {1: 2, 5: 3, 7: 4}[k])
    stamp(p)
    p.waitvm(('dma', 18))
    gemm2_tail(p)
    return p

CP = 4168; YP = 4160; SRS = 544
B_RAW = 0
B_UC = 33280
B_KR = B_UC + 16 * CP
B_SC = B_KR + 4 * 4608
B_END = B_SC + 4 * 16 * SRS
S_KR = 81920; S_SC = S_KR + 4 * 4608
WS_KR = 4 << 20
BL, B15, BG, BZ = 1, 2, 3, 4
A_SW, A_SR, A_T0, A_T1, A_T1b, A_T2, A_X3, A_X2, A_X1, A_X0, A_KW, A_KW32, A_KB, MSK = range(24, 38)
PR = 8
S_U, S_LA, S_AI, S_CR, S_CI, S_LDT, S_DS, S_O, S_WSB = 40, 44, 48, 52, 56, 60, 64, 72, 76

def kg_lanes(p):
    p(f"""v_and_b32 v{BL}, 63, v0
    v_and_b32 v{B15}, 15, v0
    v_bfe_u32 v{BG}, v0, 4, 2
    v_mov_b32 v{BZ}, 0
    v_lshlrev_b32 v5, 2, v{BL}
    s_waitcnt lgkmcnt(0)""")
    for s_, ptr, size in ((S_LA, P_LA, 640*256), (S_AI, P_AI, 640*256), (S_CR, P_CR, 640*256), (S_CI, P_CI, 640*256), (S_LDT, P_LDT, 1280), (S_DS, P_DS, 1280)):
        srd(p, s_, ptr, size)
def kg_params(p, sch, P):
    p(f"s_lshl_b32 s81, {sch}, 8\n s_lshl_b32 s80, {sch}, 1")
    p(f"buffer_load_ushort v{P+4}, v{BZ}, {sr(S_LDT,4)}, s80 offen")
    for k, s_ in enumerate((S_LA, S_AI, S_CR, S_CI)):
        p(f"buffer_load_dword v{P+k}, v5, {sr(s_,4)}, s81 offen {'nt' if opt('ntp', 1) else ''}")
    p(f"buffer_load_ushort v{P+5}, v{BZ}, {sr(S_DS,4)}, s80 offen")
def kg_setup(p, KR, SC):
    t = 40
    p(f"""s_mul_i32 s83, s68, 4608
    s_add_u32 s83, s83, {KR}
    s_mul_i32 s84, s68, {16*SRS}
    s_add_u32 s84, s84, {SC}
    v_lshl_add_u32 v{A_SW}, v{BL}, 3, s84
    v_mul_u32_u24 v{A_SR}, {SRS}, v{B15}
    v_lshl_add_u32 v{A_SR}, v{BG}, 4, v{A_SR}
    v_add_u32 v{A_SR}, s84, v{A_SR}
    v_cmp_gt_u32 vcc, 2, v{BG}
    v_lshrrev_b32 v{t}, 1, v{BG}
    v_and_b32 v{t+1}, 1, v{BG}
    v_lshlrev_b32 v{A_T0}, 9, v{t}
    v_lshl_add_u32 v{A_T0}, v{t+1}, 4, v{A_T0}
    v_lshl_add_u32 v{A_T0}, v{B15}, 5, v{A_T0}
    v_add_u32 v{A_T0}, s84, v{A_T0}
    v_lshlrev_b32 v{t+2}, 4, v{B15}
    v_lshlrev_b32 v{t+3}, 3, v{B15}
    v_cndmask_b32 v{t+2}, v{t+3}, v{t+2}, vcc
    v_lshl_add_u32 v{A_T1}, v{BG}, 8, v{t+2}
    v_add_u32 v{A_T1}, s84, v{A_T1}
    v_mov_b32 v{t+2}, 128
    v_mov_b32 v{t+3}, 8
    v_cndmask_b32 v{t+2}, v{t+2}, v{t+3}, vcc
    v_add_u32 v{A_T1b}, v{A_T1}, v{t+2}
    v_lshlrev_b32 v{A_T2}, 8, v{BG}
    v_lshl_add_u32 v{A_T2}, v{B15}, 2, v{A_T2}
    v_add_u32 v{A_T2}, s84, v{A_T2}
    v_lshl_add_u32 v{A_X3}, v{BL}, 2, s84
    v_lshl_add_u32 v{A_X2}, v{BL}, 3, s84
    v_and_b32 v{t}, 31, v0
    v_lshl_add_u32 v{A_X1}, v{t}, 4, s84
    v_lshl_add_u32 v{A_X0}, v{t}, 5, s84
    v_lshlrev_b32 v{t+1}, 4, v{BL}
    v_sub_u32 v{A_KW}, s83, v{t+1}
    v_add_u32 v{A_KW}, 1008, v{A_KW}
    v_lshlrev_b32 v{t+1}, 4, v{t}
    v_sub_u32 v{A_KW32}, s83, v{t+1}
    v_add_u32 v{A_KW32}, 496, v{A_KW32}
    v_and_b32 v{t}, 1, v0
    v_cmp_eq_u32 vcc, 1, v{t}
    v_mov_b32 v{t+1}, 0xffff
    v_mov_b32 v{t+2}, -1
    v_cndmask_b32 v{MSK}, v{t+1}, v{t+2}, vcc
    s_mov_b32 s85, 0xffff
    s_mov_b32 s86, {f2u(1.4426950408889634):#x}
    s_mov_b32 s87, 0x32a57060
    s_mov_b32 s88, {f2u(0.6931471805599453):#x}
    s_mov_b32 s89, 0xffff0000""")

def exp_bf16(p, d, x, t):
    p(f"""v_mul_f32 v{t}, s86, v{x}
    v_fma_f32 v{t+1}, v{x}, s86, -v{t}
    v_exp_f32 v{t}, v{t}
    v_fma_f32 v{t+1}, v{x}, s87, v{t+1}
    v_mul_f32 v{t+1}, s88, v{t+1}
    v_fma_f32 v{t}, v{t}, v{t+1}, v{t}
    v_cvt_pk_bf16_f32 v{t}, v{t}, v{t}
    v_and_b32 v{d}, s89, v{t}""")
def cmul(p, c, a, b):
    p(f"v_pk_mul_f32 {vr(c,2)}, {vr(a,2)}, {vr(b,2)} op_sel:[0,0] op_sel_hi:[0,1]")
    p(f"v_pk_fma_f32 {vr(c,2)}, {vr(a,2)}, {vr(b,2)}, {vr(c,2)} op_sel:[1,1,0] op_sel_hi:[1,0,1] neg_lo:[0,1,0]")
def kgen(p, P, sched):
    E = lambda k, mu: 48 + 4 * (k - 1) + 2 * mu
    E8 = lambda mu: 76 + 2 * mu
    E128 = lambda mu: 80 + 2 * mu
    GA = lambda par, mu: 84 + 4 * par + 2 * mu
    XT = lambda k, mu: 92 + 4 * (k % 2) + 2 * mu
    PK = lambda k: 100 + 2 * (k % 4)
    FB = 108; FA = 140; DT = 172
    t = 40
    p(f"v_lshlrev_b32 v{t+6}, 16, v{P+4}")
    exp_bf16(p, t + 7, t + 6, t)
    p.need([vr(P, 6)])
    if STAMP == 4: stamp(p)
    rho = lambda mu: 92 + mu; th = lambda mu: 94 + mu
    p(f"v_add_f32 v{t+4}, v{t+7}, v{t+7}")
    for mu in range(2):
        up = (lambda d, s_: f"v_lshlrev_b32 v{d}, 16, v{s_}") if mu == 0 else (lambda d, s_: f"v_and_b32 v{d}, s89, v{s_}")
        p(up(t + 6, P))
        exp_bf16(p, t + 5, t + 6, t)
        p(f"v_mul_f32 v{t+5}, v{t+5}, v{t+7}\n v_mul_f32 v{rho(mu)}, s86, v{t+5}")
        p(up(t + 6, P + 1))
        p(f"v_mul_f32 v{t+6}, v{t+6}, v{t+7}\n v_mul_f32 v{th(mu)}, 0.15915494, v{t+6}")
        p(up(t + 5, P + 2)); p(up(t + 6, P + 3))
        p(f"v_mul_f32 v{GA(0,mu)}, v{t+5}, v{t+4}\n v_mul_f32 v{GA(0,mu)+1}, v{t+6}, v{t+4}")
    for pw, dst in ((8, E8), (1, lambda mu: E(1, mu)), (128, E128)):
        for mu in range(2):
            p(f"v_mul_f32 v{t+2*mu}, {f2u(-float(pw)):#x}, v{rho(mu)}\n v_mul_f32 v{t+2*mu+1}, {f2u(float(pw)):#x}, v{th(mu)}")
        for mu in range(2): p(f"v_exp_f32 v{t+2*mu}, v{t+2*mu}\n v_fract_f32 v{t+2*mu+1}, v{t+2*mu+1}")
        for mu in range(2): p(f"v_cos_f32 v{dst(mu)}, v{t+2*mu+1}\n v_sin_f32 v{dst(mu)+1}, v{t+2*mu+1}")
        for mu in range(2): p(f"v_pk_mul_f32 {vr(dst(mu),2)}, {vr(dst(mu),2)}, {vr(t+2*mu,2)} op_sel_hi:[1,0]")
    cnt = [0]; SIDE0 = opt('side0', 36); SIDEN = opt('siden', 2)
    def put(row, src, neg=False):
        k = cnt[0]; cnt[0] += 1
        for mu in range(2):
            a = src(mu)
            p(f"v_cvt_pk_bf16_f32 v{PK(k)+mu}, v{a}, {'-' if neg else ''}v{a+1}")
        p(f"ds_write_b64 v{A_SW}, {vr(PK(k),2)} offset:{row*SRS}")
        for b_ in sched.get(k, []): p.extend(b_)
    p(f"v_mov_b32 v{PK(3)}, 0x3f80\n v_mov_b32 v{PK(3)+1}, 0x3f80\n ds_write_b64 v{A_SW}, {vr(PK(3),2)}")
    put(1, E8, True)
    prev = E8
    for b in range(2, 16):
        cur = (lambda bb: (lambda mu: XT(bb, mu)))(b)
        for mu in range(2): cmul(p, cur(mu), prev(mu), E8(mu))
        put(b, cur, True); prev = cur
    if STAMP == 4: stamp(p)
    for ka in range(8): p(f"ds_read_b128 {vr(FB+4*ka,4)}, v{A_SR} offset:{64*ka}")
    for k in range(2, 8):
        for mu in range(2): cmul(p, E(k, mu), E(k - 1, mu), E(1, mu))
    al = [0]
    def Gcur(mu): return GA(al[0] % 2, mu)
    def Gnext():
        for mu in range(2): cmul(p, GA((al[0] + 1) % 2, mu), GA(al[0] % 2, mu), E128(mu))
        al[0] += 1
    def prod(row, k):
        if k == 0: put(row, Gcur); return
        for mu in range(2): cmul(p, XT(row, mu), Gcur(mu), E(k, mu))
        put(row, lambda mu: XT(row, mu))
    def tile(T):
        for ka in range(8): p(f"ds_read_b128 {vr(FA+4*ka,4)}, v{A_SR} offset:{64*ka}")
        return [f"v_mfma_f32_16x16x32_bf16 {vr(DT+4*T,4)}, {vr(FA+4*ka,4)}, {vr(FB+4*ka,4)}, {'0' if ka == 0 else vr(DT+4*T,4)}" for ka in range(8)]
    for a in range(2):
        for g in range(8): prod(8 * a + g, g)
        Gnext()
    if STAMP == 4: stamp(p)
    mm = tile(0)
    for a in range(2):
        for g in range(4): prod(4 * a + g, 2 * g)
        Gnext()
        if a == 0:
            for x in mm: p(x)
    for a in range(4):
        for g in range(2): prod(8 + 2 * a + g, 4 * g)
        Gnext()
    if STAMP == 4: stamp(p)
    mm = tile(1)
    for a in range(9):
        prod(a, 0)
        if a < 8: Gnext()
        if a == 3:
            for x in mm: p(x)
    if STAMP == 4: stamp(p)
    mm = tile(2)
    p(f"""v_cmp_eq_u32 vcc, 0, v{BL}
    v_lshlrev_b32 v{t}, 16, v{P+5}
    v_cndmask_b32 v{t}, v{BZ}, v{t}, vcc
    v_add_f32 v{DT}, v{DT}, v{t}""")
    for q in range(8): p(f"v_cvt_pk_bf16_f32 v{DT+q}, v{DT+q}, v{DT+q}")
    p.need([vr(FA, 32)])
    p(mm[0]); p(f"ds_write_b128 v{A_T0}, {vr(DT,4)}")
    for x in mm[1:4]: p(x)
    p(f"ds_write_b64 v{A_T1}, {vr(DT+4,2)} offset:1024")
    for x in mm[4:6]: p(x)
    p(f"ds_write_b64 v{A_T1b}, {vr(DT+6,2)} offset:1024")
    for x in mm[6:]: p(x)
    R = FB
    p(f"""ds_read_b128 {vr(R+24,4)}, v{A_X0}
    ds_read_b128 {vr(R+28,4)}, v{A_X0} offset:16
    ds_read_b128 {vr(R+16,4)}, v{A_X1} offset:1024
    ds_read_b32 v{R+20}, v{A_X1} offset:{1024+16}""")
    for q in range(8, 12): p(f"v_cvt_pk_bf16_f32 v{DT+q}, v{DT+q}, v{DT+q}")
    for i in range(4): p(f"ds_write_b32 v{A_T2}, v{DT+8+i} offset:{2048+64*i}")
    p(f"""ds_read_b32 v{R+8}, v{A_X2} offset:{1536+8}
    ds_read_b32 v{R+9}, v{A_X2} offset:{1536+4}
    ds_read_b32 v{R+11}, v{A_X2} offset:{1536}""")
    for r in range(2):
        p(f"ds_read_b32 v{R+4*r}, v{A_X3} offset:{2048+256*r+4}")
        p(f"ds_read_b32 v{R+4*r+2}, v{A_X3} offset:{2048+256*r}\n ds_read_b32 v{R+4*r+3}, v{A_X3} offset:{2048+256*r}")
    p(f"""v_bfi_b32 v{R+12}, s85, v{R+20}, v{R+19}
    v_mov_b32 v{R+13}, v{R+18}
    v_bfi_b32 v{R+14}, s85, v{R+18}, v{R+17}
    v_mov_b32 v{R+15}, v{R+16}
    ds_write_b128 v{A_KW32}, {vr(R+12,4)} offset:3072
    v_bfi_b32 v{R+16}, s85, v{R+31}, v{R+30}
    v_bfi_b32 v{R+17}, s85, v{R+29}, v{R+28}
    v_bfi_b32 v{R+18}, s85, v{R+27}, v{R+26}
    v_bfi_b32 v{R+19}, s85, v{R+25}, v{R+24}
    ds_write_b128 v{A_KW32}, {vr(R+16,4)} offset:3584
    v_bfi_b32 v{R+10}, s85, v{R+9}, v{R+11}
    ds_write_b128 v{A_KW}, {vr(R+8,4)} offset:2048""")
    for r in range(2):
        p(f"v_bfi_b32 v{R+4*r+1}, v{MSK}, v{R+4*r}, v{R+4*r+2}")
        p(f"ds_write_b128 v{A_KW}, {vr(R+4*r,4)} offset:{1024*(1-r)}")

def prefetch1():
    if not opt('pf1', 1): return []
    NG = opt('pfg', 3); B = []; p = Prog()
    decode_ab(p, 's93', 16, 94, 92)
    p("s_add_u32 s93, s94, s92\n s_mul_i32 s93, s93, 3")
    srd(p, 96, P_W, 640 * 3840)
    p(f"""s_mul_i32 s92, s92, 160
    s_lshr_b32 s95, s68, 1
    s_add_u32 s95, s95, 1
    s_mul_i32 s95, s95, 1280
    s_add_u32 s92, s92, s95
    s_andn2_b32 s92, s92, 127
    s_and_b32 s95, s68, 1
    s_lshl_b32 s95, s95, 7
    s_add_u32 s92, s92, s95
    v_mul_u32_u24 v250, 3840, v{BL}
    v_mul_u32_u24 v249, 1280, v{BL}""")
    def g10(p, d, add):
        p(f"""s_add_u32 s{d}, s93, {add}
        s_mul_i32 s95, s{d}, 205
        s_lshr_b32 s95, s95, 11
        s_mul_i32 s95, s95, 10
        s_sub_u32 s{d}, s{d}, s95""")
    for k in range(opt('pf0', 1), NG + 1):
        g10(p, 100, k)
        p(f"s_mul_i32 s100, s100, {64*3840}\n s_add_u32 s100, s100, s92\n buffer_load_dword v254, v250, s[96:99], s100 offen {'nt' if opt('ntw', 0) else ''}")
        B.append(p); p = Prog()
    srd(p, 96, P_X, 2048 * 1280)
    p(f"""s_lshl_b32 s94, s94, 1
    s_and_b32 s95, s68, 1
    s_add_u32 s94, s94, s95
    s_mul_i32 s94, s94, {64*1280}
    s_lshr_b32 s95, s68, 1
    s_add_u32 s93, s93, s95""")
    for k in range(1, NG + 1, 2):
        g10(p, 100, k)
        p(f"s_lshl_b32 s100, s100, 7\n s_add_u32 s100, s100, s94\n buffer_load_dword v254, v249, s[96:99], s100 offen {'nt' if opt('ntx', 0) else ''}")
        B.append(p); p = Prog()
    return B
def prefetch2x():
    if not opt('pf2', 1): return []
    B = []
    for r in range(2):
        a = Prog(); b = Prog()
        a(f"""s_lshr_b32 s92, s2, 3
        s_sub_u32 s92, s92, 16
        s_lshl_b32 s92, s92, 2
        s_add_u32 s92, s92, s68
        s_lshl_b32 s92, s92, 6
        s_add_u32 s92, s92, {4096*r}
        v_add_u32 v250, s92, v{BL}
        v_mul_u32_u24 v249, 6554, v250
        v_lshrrev_b32 v249, 16, v249
        v_mul_u32_u24 v252, 10, v249
        v_sub_u32 v250, v250, v252
        v_mul_u32_u24 v252, 3840, v249
        v_lshl_add_u32 v252, v250, 7, v252""")
        srd(a, 96, P_W, 640 * 3840)
        a("buffer_load_dword v254, v252, s[96:99], 0 offen")
        b(f"""v_mul_u32_u24 v252, 1280, v249
        v_lshl_add_u32 v252, v250, 7, v252""")
        srd(b, 96, P_WO, 640 * 1280)
        b("buffer_load_dword v254, v252, s[96:99], 0 offen")
        B += [a, b]
    return B
def prefetch2():
    if XM: return prefetch2x()
    if not opt('pf2', 1): return []
    a = Prog(); b = Prog()
    a(f"""s_lshr_b32 s92, s2, 3
    s_sub_u32 s92, s92, 16
    s_lshl_b32 s92, s92, 2
    s_add_u32 s92, s92, s68
    s_lshl_b32 s92, s92, 6
    v_add_u32 v250, s92, v{BL}
    v_mul_u32_u24 v249, 13108, v250
    v_lshrrev_b32 v249, 16, v249
    v_mul_u32_u24 v252, 5, v249
    v_sub_u32 v250, v250, v252
    v_mul_u32_u24 v252, 3840, v249
    v_lshl_add_u32 v252, v250, 7, v252
    s_and_b32 s93, s2, 1
    s_mul_i32 s94, s93, 640""")
    srd(a, 96, P_W, 640 * 3840)
    a("buffer_load_dword v254, v252, s[96:99], s94 offen")
    b(f"""s_lshl_b32 s94, s93, 9
    s_lshl_b32 s95, s93, 7
    s_add_u32 s95, s95, 1024
    v_lshlrev_b32 v252, 7, v250
    v_add_u32 v252, s94, v252
    v_mov_b32 v248, s95
    v_cmp_eq_u32 vcc, 4, v250
    v_mul_u32_u24 v249, 1280, v249
    v_cndmask_b32 v252, v252, v248, vcc
    v_add_u32 v252, v252, v249""")
    srd(b, 96, P_WO, 640 * 1280)
    b("buffer_load_dword v254, v252, s[96:99], 0 offen")
    return [a, b]

def role_B():
    p = Prog(); nstamp[0] = 0
    LN, L15, G, Z = BL, B15, BG, BZ
    p("roleB:")
    stamp(p)
    if opt('bm', 1) == 0:
        p("""s_and_b32 s69, s2, 7
        s_mul_i32 s69, s69, 10
        s_lshr_b32 s70, s2, 3
        s_sub_u32 s70, s70, 16
        s_add_u32 s69, s69, s70""")
    else:
        p("""s_and_b32 s71, s2, 7
        s_lshr_b32 s70, s2, 3
        s_sub_u32 s70, s70, 16
        s_lshl_b32 s69, s71, 3
        s_add_u32 s69, s69, s70
        s_lshl_b32 s71, s71, 1
        s_add_u32 s71, s71, s70
        s_add_u32 s71, s71, 56
        s_cmp_ge_u32 s70, 8
        s_cselect_b32 s69, s71, s69""")
    kg_lanes(p)
    p(f"s_lshl_b32 s71, s69, 3\n s_add_u32 s71, s71, s68")
    kg_params(p, 's71', PR)
    pf = prefetch1()[:opt('pfb', 5)]; NOW = opt('pfnow', 5)
    srd(p, S_WSB, P_WS, WS_SIZE)
    token_load(p, S_WSB, Z)
    for b in pf[:NOW]: p.extend(b)
    p(f"""s_lshr_b32 s80, s69, 3
    s_lshl_b32 s39, s80, 12
    s_add_u32 s39, s39, {WS_UF}
    s_lshl_b32 s101, s69, 2
    s_add_u32 s101, s101, s68
    s_lshl_b32 s101, s101, 7
    s_add_u32 s101, s101, {WS_YF}
    s_lshl_b32 s6, s69, 15
    s_lshl_b32 s7, s68, 13
    s_add_u32 s6, s6, s7
    s_add_u32 s6, s6, {WS_YT}
    s_add_u32 s7, s6, 4096
    v_lshlrev_b32 v39, 4, v{LN}
    v_cmp_eq_u32 vcc, 0, v{LN}
    v_mov_b32 v15, {OOB:#x}
    v_cndmask_b32 v15, v15, v{Z}, vcc""")
    tk = Prog(); token_make(tk)
    sched = {30: [tk]}
    for k, b in enumerate(pf[NOW:]): sched.setdefault(opt('pfa', 0) + opt('pfd', 3) * k, []).append(b)
    for k, b in enumerate(prefetch2()): sched.setdefault(opt('pf2a', 30) + 3 * k, []).append(b)
    if not UT:
        p("s_lshl_b32 s80, s69, 4")
        srd(p, S_U, P_U, 0, 's80')
        p(f"""s_sub_u32 s{S_U+2}, {2048*1280}, s80
        v_mul_u32_u24 v6, 1280, v{LN}
        s_and_b32 s90, s69, 7
        s_lshl_b32 s81, s68, 3
        s_add_u32 s90, s90, s81""")
        for i in range(8):
            q = Prog()
            q(f"""s_add_u32 s81, s90, {i}
            s_and_b32 s81, s81, 31
            s_mul_i32 s82, s81, {64*1280}
            s_lshl_b32 s81, s81, 10
            s_add_u32 m0, s81, {B_RAW+256}""")
            q(f"buffer_load_dwordx4 v6, {sr(S_U,4)}, s82 offen lds", tag='raw')
            sched.setdefault(opt('sidef', 10) if i == 0 else min(55, opt('side0', 40) + opt('siden', 2) * i), []).append(q)
    srd(p, S_O, P_OUT, 2048 * 2560)
    if opt('noB', 0): p("s_endpgm")
    kg_setup(p, B_KR, B_SC)
    t = 40
    p(f"""v_mov_b32 v20, 0
    v_mov_b32 v21, 0
    v_mov_b32 v22, 0
    v_mov_b32 v23, 0
    v_lshlrev_b32 v{t}, 4, v{L15}
    ds_write_b128 v{t}, v[20:23] offset:{B_RAW}
    v_and_b32 v{t}, 31, v0
    v_lshl_add_u32 v38, v{t}, 4, s83
    ds_write_b128 v38, v[20:23] offset:4096
    v_lshlrev_b32 v{t+1}, 5, v{L15}
    v_sub_u32 v{A_KB}, s83, v{t+1}
    v_lshl_add_u32 v{A_KB}, v{G}, 4, v{A_KB}
    v_add_u32 v{A_KB}, 480, v{A_KB}""")
    stamp(p)
    kgen(p, PR, sched)
    stamp(p)
    Y = 184; UB = 216
    p(f"""v_and_b32 v17, 31, v0
    v_lshlrev_b32 v17, 7, v17
    s_lshl_b32 s38, s69, 15
    s_lshl_b32 s80, s68, 13
    s_add_u32 s38, s38, s80
    s_add_u32 s38, s38, {WS_UT}
    s_add_u32 s80, s80, {B_RAW+256}""")
    if UT: pollall(p, "b_pu", S_WSB, 's39', 18, 17, opt('uslp', 4))
    stamp(p)
    for i in range(8 if UT else 0):
        p(f"s_add_u32 m0, s80, {1024*i}\n s_nop 0\n buffer_load_dwordx4 v39, {sr(S_WSB,4)}, s38 offen sc1 lds\n s_add_u32 s38, s38, 1024", tag='raw')
    p(f"""v_bfe_u32 v{t}, v0, 2, 2
    v_lshl_add_u32 v{t}, v{G}, 3, v{t}
    v_bfe_u32 v{t+1}, v0, 1, 1
    v_lshl_add_u32 v{t}, v{t+1}, 2, v{t}
    v_lshlrev_b32 v{t}, 4, v{t}
    v_and_b32 v{t+1}, 1, v0
    v_lshl_add_u32 v{t}, v{t+1}, 3, v{t}
    s_lshl_b32 s80, s68, 9
    v_add_u32 v{t}, s80, v{t}
    v_and_b32 v{t+1}, 7, v0
    v_mul_u32_u24 v{t+1}, {2*CP}, v{t+1}
    v_bfe_u32 v{t+2}, v0, 3, 1
    v_lshl_add_u32 v{t+1}, v{t+2}, 3, v{t+1}
    v_lshl_add_u32 v{t+1}, v{G}, 4, v{t+1}
    s_lshl_b32 s80, s68, 6
    s_add_u32 s80, s80, {B_UC}
    v_add_u32 v{t+1}, s80, v{t+1}
    s_cmp_eq_u32 s68, 0
    s_cselect_b32 s80, 2, 0
    v_cmp_gt_u32 vcc, s80, v{G}
    v_mov_b32 v{t+2}, {B_END - 4096}
    s_mul_i32 s81, s68, {2*CP}
    v_cndmask_b32 v{t+3}, v{t+2}, v{t+1}, vcc
    s_add_u32 s81, s81, {B_UC}
    v_and_b32 v{t+4}, 1, v0
    v_mul_u32_u24 v{t+4}, {CP}, v{t+4}
    v_lshrrev_b32 v{t+5}, 1, v{L15}
    v_lshl_add_u32 v{t+5}, v{G}, 2, v{t+5}
    v_lshl_add_u32 v{t+4}, v{t+5}, 2, v{t+4}
    v_add_u32 v{UB}, s81, v{t+4}
    v_add_u32 v{UB+1}, 1024, v{UB}
    v_add_u32 v{UB+2}, 2048, v{UB}
    v_add_u32 v{UB+3}, 3072, v{UB}
    s_mul_i32 s80, s68, {YP}
    v_lshlrev_b32 v{t+4}, 5, v{L15}
    v_lshl_add_u32 v{t+4}, v{G}, 3, v{t+4}
    v_add_u32 v{UB+4}, s80, v{t+4}
    s_lshl_b32 s90, s69, 2
    s_add_u32 s90, s90, s68
    s_lshl_b32 s91, s90, 12
    s_add_u32 s91, s91, {WS_KR}
    s_lshl_b32 s90, s90, 7
    s_add_u32 s90, s90, {WS_KF}
    s_sub_u32 s92, s84, s83
    v_add_u32 v38, s92, v38""")
    p(f"""v_bfe_u32 v224, v0, 2, 2
    v_mul_u32_u24 v224, {YP}, v224
    v_and_b32 v225, 3, v0
    v_lshl_add_u32 v224, v225, 3, v224
    v_lshl_add_u32 v224, v{G}, 5, v224
    s_lshl_b32 s80, s68, 10
    v_add_u32 v224, s80, v224""")
    if YT:
        p(f"""s_lshr_b32 s80, s69, 3
        s_and_b32 s81, s69, 7
        s_lshl_b32 s81, s81, 2
        s_add_u32 s81, s81, s68
        s_lshl_b32 s96, s80, 18
        s_lshl_b32 s82, s81, 10
        s_add_u32 s96, s96, s82
        s_add_u32 s96, s96, {WS_YT}
        s_mul_i32 s97, s81, {64*2560}
        s_lshl_b32 s80, s80, 7
        s_add_u32 s97, s97, s80
        s_add_u32 s97, s97, 1280
        s_mul_i32 s98, s68, 8448
        s_add_u32 s98, s98, {B_UC}
        v_lshrrev_b32 v226, 3, v{LN}
        v_and_b32 v227, 7, v0
        v_lshlrev_b32 v228, 15, v226
        v_lshl_add_u32 v228, v227, 7, v228
        v_mul_u32_u24 v229, 1040, v227
        v_lshl_add_u32 v229, v226, 4, v229
        v_add_u32 v229, s98, v229
        v_mul_u32_u24 v230, 2560, v226
        v_lshl_add_u32 v230, v227, 4, v230
        s_nop 0""")
    p.waitvm('raw'); p("s_waitcnt lgkmcnt(0)\n s_barrier")
    stamp(p)
    p(f"ds_write_b128 v38, v[20:23] offset:4096")
    jobs = [(k, pp) for k in range(17) for pp in range(2)]
    NBUF = 8
    def rdj(n):
        k, pp = jobs[n]; p(f"ds_read_b64_tr_b16 {vr(48+2*(n%NBUF),2)}, v{t} offset:{B_RAW + 16*(1+pp) + 2048*k}")
    def wrj(n):
        k, pp = jobs[n]
        p(f"ds_write_b64 v{t+3 if k == 16 else t+1}, {vr(48+2*(n%NBUF),2)} offset:{pp*CP + 256*k}")
    for n in range(NBUF): rdj(n)
    if YT: p("v_mov_b32 v8, -1\n v_mov_b32 v9, -1\n v_mov_b32 v10, -1\n v_mov_b32 v11, -1")
    for n in range(len(jobs)):
        wrj(n)
        if n + NBUF < len(jobs): rdj(n + NBUF)
        if YT and n % 4 == 1 and n // 4 < 8:
            jj = n // 4; p(f"buffer_store_dwordx4 v[8:11], v39, {sr(S_WSB,4)}, {'s6' if jj < 4 else 's7'} offen offset:{1024*(jj%4)} sc1")
    def fa(b, a): return ar((b % 2) * 64 + 4 * a, 4)
    def fb(b, c): return ar((b % 2) * 64 + 32 + 4 * c, 4)
    def reads(b, kind='ku'):
        q = Prog()
        for a in range(8):
            o = 128 * (a % 2) + 16 * b; r0 = (b % 2) * 64 + 4 * a
            if 'k' in kind: q(f"ds_read_b128 {fb(b,a)}, v{A_KB} offset:{512*(7-a)+64*b}")
            if 'u' in kind:
                q(f"ds_read2_b32 {ar(r0,2)}, v{UB+a//2} offset0:{o} offset1:{o+1}")
                q(f"ds_read2_b32 {ar(r0+2,2)}, v{UB+a//2} offset0:{o+2} offset1:{o+3}")
        return q
    def krdma(tag):
        for i in range(4):
            p(f"s_add_u32 m0, s84, {1024*i}\n s_nop 0\n buffer_load_dwordx4 v39, {sr(S_WSB,4)}, s91 offen sc1 lds\n s_add_u32 s91, s91, 1024", tag=tag)
    p("s_mov_b32 s93, 0\n s_mov_b32 s95, 0\n s_waitcnt lgkmcnt(0)\n s_barrier")
    stamp(p)
    p("b_conv:")
    p.extend(reads(0))
    prs = sorted([(a, c) for c in range(8) for a in range(c + 1)], key=lambda x: (max(x[0], x[1] - x[0]), x[1]))
    EB = opt('eb', 5)
    if opt('cord', 1):
        prs = sorted(prs, key=lambda x: (max(x[0], x[1] - x[0]), x[0] > x[1] - x[0], x[1]))
        if opt('cord', 1) == 2: prs = prs[:-6] + [(0, 6), (1, 7), (6, 6), (0, 7), (6, 7), (7, 7)]
    for b in range(8):
        m = Prog(); seen = set(); lvl = -1
        for a, c in prs:
            first = b == 0 and c not in seen; seen.add(c)
            if max(a, c - a) != lvl and (b == 0 or max(a, c - a) in (0, 4)):
                lvl = max(a, c - a); hi = lvl if b == 0 else lvl + 3
                m.need([fa(b, x) for x in range(lvl, hi + 1)] + [fb(b, x) for x in range(lvl, hi + 1)])
            mfma(m, vr(Y + 4 * c, 4), fa(b, a), fb(b, c - a), '0' if first else None)
        if b == EB: p(f"buffer_load_dword v7, v{Z}, {sr(S_WSB,4)}, s90 offen sc1")
        if b == EB + 1:
            p(f"""v_cmp_eq_u32 vcc, v{V_TOK}, v7
            s_cmp_lg_u32 s93, 0
            s_cselect_b64 s[80:81], 0, -1
            s_and_b64 vcc, vcc, s[80:81]""")
            p("s_cbranch_scc0 b_noearly", tag='keep')
            krdma('offpath')
            p("s_mov_b32 s95, 1", tag='offpath')
            p("b_noearly:")
            if YT: p(f"buffer_load_dword v18, v17, {sr(S_WSB,4)}, s101 offen sc1")
        p.extend(pack(m, [(singles(reads(b + 1)), 2, 30)] if b < 7 else [], cap=4))
    for c in range(8):
        d = 40 + 2 * (c % 4)
        p(f"v_cvt_pk_bf16_f32 v{d}, v{Y+4*c}, v{Y+4*c+1}\n v_cvt_pk_bf16_f32 v{d+1}, v{Y+4*c+2}, v{Y+4*c+3}")
        p(f"ds_write_b64 v{UB+4}, {vr(d,2)} offset:{B_RAW+512*c}")
    p("s_cmp_lg_u32 s93, 0")
    p("s_cbranch_scc1 b_fin", tag='keep')
    stamp(p)
    p(f"""s_mov_b32 s93, 1
    v_add_u32 v{A_KB}, s92, v{A_KB}""")
    for k in range(4): p(f"v_add_u32 v{UB+k}, {8*CP}, v{UB+k}")
    p(f"v_add_u32 v{UB+4}, {4*YP}, v{UB+4}\n s_cmp_eq_u32 s95, 1")
    p("s_cbranch_scc1 b_have", tag='keep')
    p(f"s_mov_b32 s94, {SPIN}")
    p("b_poll:")
    p(f"""buffer_load_dword v7, v{Z}, {sr(S_WSB,4)}, s90 offen sc1
    s_sub_u32 s94, s94, 1
    s_waitcnt vmcnt(0)
    v_cmp_eq_u32 vcc, v{V_TOK}, v7
    s_cmp_eq_u32 s94, 0
    s_cbranch_scc1 b_got
    s_cmp_eq_u64 vcc, 0
    s_cbranch_scc1 b_poll""")
    p("b_got:")
    krdma(None)
    p("b_have:")
    p(f"s_waitcnt vmcnt(0)\n buffer_store_dword v{V_TOK}, v15, {sr(S_WSB,4)}, s101 offen sc1\n s_add_u32 s101, s39, {WS_YF-WS_UF}\n s_branch b_conv")
    p("b_fin:")
    p("s_waitcnt vmcnt(0)")
    stamp(p)
    if not YT:
        p(f"""v_mul_u32_u24 v225, 2560, v{LN}
        s_mul_i32 s80, s68, {512*2560}
        s_lshl_b32 s81, s69, 4
        s_add_u32 s80, s80, s81
        s_add_u32 s80, s80, 1280
        s_waitcnt lgkmcnt(0)
        s_barrier""")
        for it in range(8):
            for h in range(2):
                p(f"ds_read_b64_tr_b16 {vr(56+4*it+2*h,2)}, v224 offset:{B_RAW + h*4*YP + 128*it}")
        for it in range(8):
            p(f"buffer_store_dwordx4 {vr(56+4*it,4)}, v225, {sr(S_O,4)}, s80 offen\n s_add_u32 s80, s80, {64*2560}")
        stamp(p); stamp(p); stamp(p)
        stamp_store(p, S_WSB)
        p("s_endpgm")
        return p
    p(f"v_cmp_eq_u32 vcc, v{V_TOK}, v18\n s_nop 1\n s_cmp_eq_u64 vcc, -1")
    p("s_cbranch_scc1 b_pf_x")
    pollall(p, "b_pf", S_WSB, 's101', 18, 17)
    p(f"s_mov_b32 s94, {SPIN}")
    p("s_waitcnt lgkmcnt(0)\n s_barrier")
    for it in range(8):
        for h in range(2):
            p(f"ds_read_b64_tr_b16 {vr(56+4*it+2*h,2)}, v224 offset:{B_RAW + h*4*YP + 128*it}")
    for it in range(8):
        p(f"buffer_store_dwordx4 {vr(56+4*it,4)}, v39, {sr(S_WSB,4)}, {'s6' if it < 4 else 's7'} offen offset:{1024*(it%4)} sc1")
    stamp(p)
    p("b_yp:")
    p(f"""buffer_load_dword v19, v228, {sr(S_WSB,4)}, s96 offen sc1
    s_sub_u32 s94, s94, 1
    s_waitcnt vmcnt(0)
    v_cmp_ne_u32 vcc, -1, v19
    s_cmp_lt_i32 s94, 1
    s_cbranch_scc1 b_yg
    s_cmp_eq_u64 vcc, -1
    s_cbranch_scc1 b_yg
    s_sleep {opt('yslp', 8)}
    s_branch b_yp""")
    p("b_yg:")
    stamp(p)
    p("s_mov_b32 s82, s96")
    for j in range(8):
        p(f"s_add_u32 m0, s98, {1040*j}\n s_nop 0\n buffer_load_dwordx4 v39, {sr(S_WSB,4)}, s82 offen sc1 lds\n s_add_u32 s82, s82, 32768")
    p("v_mov_b32 v18, 0\n s_waitcnt vmcnt(0)")
    for i in range(8): p(f"ds_read_b128 {vr(56+4*i,4)}, v229 offset:{128*i}")
    for i in range(8): p(f"v_max3_u32 v18, v18, v{56+4*i}, v{57+4*i}\n v_max3_u32 v18, v18, v{58+4*i}, v{59+4*i}")
    p(f"""v_cmp_eq_u32 vcc, -1, v18
    s_cmp_lt_i32 s94, 1
    s_cbranch_scc1 b_yo
    s_cmp_lg_u64 vcc, 0
    s_cbranch_scc1 b_yp""")
    p("b_yo:")
    for i in range(8):
        p(f"buffer_store_dwordx4 {vr(56+4*i,4)}, v230, {sr(S_O,4)}, s97 offen {OPT.get('bst', 'sc1')}\n s_add_u32 s97, s97, {8*2560}")
    stamp(p)
    stamp_store(p, S_WSB)
    p("s_endpgm")
    return p

def role_S():
    p = Prog(); nstamp[0] = 32
    p("roleS:")
    p(f"""s_getpc_b64 s[40:41]
    cpf_here:
    s_sub_u32 s40, s40, cpf_here-{NAME}_kernel
    s_subb_u32 s41, s41, 0
    s_lshr_b32 s42, s2, 3
    s_and_b32 s42, s42, 1
    s_lshl_b32 s42, s42, 15
    v_lshlrev_b32 v8, 7, v0
    v_add_u32 v8, s42, v8
    v_cmp_gt_u32 vcc, code_end-{NAME}_kernel, v8
    v_cndmask_b32 v8, 0, v8, vcc
    global_load_dword v254, v8, s[40:41]""")
    if STAMP: p("v_mov_b32 v255, 0")
    stamp(p)
    p(f"s_sub_u32 s69, s2, 208")
    kg_lanes(p)
    p(f"""s_lshl_b32 s90, s69, 2
    s_add_u32 s90, s90, s68
    s_lshl_b32 s71, s69, 3
    s_add_u32 s71, s71, s68
    s_add_u32 s71, s71, 4""")
    kg_params(p, 's71', PR)
    p(f"s_add_u32 s71, s71, 384\n s_min_u32 s71, s71, 639")
    kg_params(p, 's71', PR + 6)
    srd(p, S_U, P_WS, WS_ZERO_END)
    srd(p, S_O, P_DBG, 256)
    srd(p, S_WSB, P_WS, WS_SIZE)
    token_load(p, S_WSB, BZ)
    p(f"""s_lshl_b32 s70, s69, 12
    v_lshlrev_b32 v6, 4, v0
    v_mov_b32 v20, 0
    v_mov_b32 v21, 0
    v_mov_b32 v22, 0
    v_mov_b32 v23, 0
""")
    p(f"buffer_store_dwordx4 v[20:23], v6, {sr(S_U,4)}, s70 offen sc1", tag='zero')
    srd(p, 96, P_U, 2048 * 1280)
    p(f"""v_lshrrev_b32 v240, 3, v{BL}
    v_mul_u32_u24 v240, 1280, v240
    v_and_b32 v241, 7, v0
    v_xor_b32 v241, v241, v{BG}
    v_lshl_add_u32 v240, v241, 4, v240
    v_xor_b32 v241, 64, v240
    v_add_u32 v241, {8*1280}, v241
    s_lshl_b32 s5, s68, 14""")
    for r in range(2 if UT else 0):
        p(f"""s_add_u32 s80, s90, {192*r}
        s_and_b32 s81, s80, 31
        s_lshr_b32 s82, s80, 5
        s_mul_i32 s81, s81, {64*1280}
        s_lshl_b32 s82, s82, 7
        s_add_u32 s82, s82, s81
        s_cmp_ge_u32 s80, 320
        s_cselect_b32 s82, {0x40000000}, s82""")
        for i in range(8):
            p(f"s_add_u32 m0, s5, {8192*r+1024*i}\n s_nop 0\n buffer_load_dwordx4 v{240+i%2}, s[96:99], s82 offen nt lds", tag=('ut', r))
            if i % 2: p(f"s_add_u32 s82, s82, {16*1280}")
    pfS = prefetch1()[:opt('pfs', 0 if UT else 5)]
    for b in pfS[:opt('pfnow', 5)]: p.extend(b)
    p(f"""s_cmp_lt_u32 s69, {NZERO_WG}
    s_cselect_b32 s4, 0, -1
    v_cmp_eq_u32 vcc, s4, v0
    v_mov_b32 v7, 1
    v_mov_b32 v38, {OOB:#x}
    v_cndmask_b32 v39, v38, v{BZ}, vcc""")
    kg_setup(p, S_KR, S_SC)
    p(f"""v_cmp_eq_u32 vcc, 0, v{BL}
    v_lshlrev_b32 v184, 4, v{BL}
    v_add_u32 v185, s83, v184
    v_cndmask_b32 v38, v38, v{BZ}, vcc
    v_bfe_u32 v242, v0, 1, 3
    v_lshlrev_b32 v242, 4, v242
    v_lshl_add_u32 v242, v{BL}, 7, v242
    v_add_u32 v242, s5, v242""")
    p.waitvm('zero')
    p(f"s_barrier\n buffer_atomic_add v7, v39, {sr(S_O,4)}, 0 offen sc1")
    token_make(p)
    if not UT: p(f"s_mov_b32 s6, {0x40000000}\n s_mov_b32 s7, {0x40000000}")
    for r in range(2 if UT else 0):
        p(f"""s_add_u32 s80, s90, {192*r}
        s_and_b32 s81, s80, 31
        s_lshr_b32 s82, s80, 5
        s_lshl_b32 s81, s81, 10
        s_lshl_b32 s82, s82, 18
        s_add_u32 s82, s82, s81
        s_add_u32 s82, s82, {WS_UT}
        s_lshl_b32 s{6+r}, s80, 7
        s_add_u32 s{6+r}, s{6+r}, {WS_UF}
        s_cmp_ge_u32 s80, 320
        s_cselect_b32 s82, {0x40000000}, s82
        s_cselect_b32 s{6+r}, {0x40000000}, s{6+r}""")
        p.waitvm(('ut', r))
        for j in range(8): p(f"v_xor_b32 v243, {16*j}, v242\n ds_read_b128 {vr(48+32*r+4*j,4)}, v243 offset:{8192*r}")
        for j in range(8): p(f"buffer_store_dwordx4 {vr(48+32*r+4*j,4)}, v184, {sr(S_WSB,4)}, s82 offen sc1\n s_add_u32 s82, s82, 32768")
    stamp(p)
    p("s_kloop:", tag='keep')
    fl = Prog()
    fl(f"""s_waitcnt vmcnt(0)
    buffer_store_dword v{V_TOK}, v38, {sr(S_WSB,4)}, s6 offen sc1
    buffer_store_dword v{V_TOK}, v38, {sr(S_WSB,4)}, s7 offen sc1""")
    sched = {opt('sfl', 24): [fl]}
    for k, b in enumerate(pfS[opt('pfnow', 5):]): sched.setdefault(opt('pfa', 0) + opt('pfd', 3) * k, []).append(b)
    for k, b in enumerate(prefetch2()): sched.setdefault(40 + 3 * k, []).append(b)
    kgen(p, PR, sched)
    for i in range(4): p(f"ds_read_b128 {vr(48+4*i,4)}, v185 offset:{1024*i}")
    p(f"s_lshl_b32 s91, s90, 12\n s_add_u32 s91, s91, {WS_KR}")
    for i in range(4): p(f"buffer_store_dwordx4 {vr(48+4*i,4)}, v184, {sr(S_WSB,4)}, s91 offen offset:{1024*i} sc1")
    p(f"""s_lshl_b32 s6, s90, 7
    s_add_u32 s6, s6, {WS_KF}
    s_mov_b32 s7, s6
    s_add_u32 s90, s90, 192""")
    for k in range(6): p(f"v_mov_b32 v{PR+k}, v{PR+6+k}")
    stamp(p)
    p("s_cmp_lt_u32 s90, 320\n s_cbranch_scc1 s_kloop")
    p(f"s_waitcnt vmcnt(0)\n buffer_store_dword v{V_TOK}, v38, {sr(S_WSB,4)}, s6 offen sc1")
    p("s_cmp_ge_u32 s2, 240")
    stamp(p)
    p("s_cbranch_scc1 s_done")
    srd(p, S_DBG, P_DBG, 256)
    if XM == 0:
        p("""s_and_b32 s72, s2, 7
        s_lshr_b32 s69, s72, 1
        s_lshl_b32 s69, s69, 2
        s_lshr_b32 s73, s2, 3
        s_sub_u32 s73, s73, 26
        s_add_u32 s69, s69, s73
        s_and_b32 s83, s72, 1""")
    else:
        p("""s_and_b32 s69, s2, 7
        s_lshl_b32 s69, s69, 1
        s_lshr_b32 s73, s2, 3
        s_sub_u32 s73, s73, 26
        s_and_b32 s83, s73, 1
        s_lshr_b32 s73, s73, 1
        s_add_u32 s69, s69, s73""")
    p(f"""s_add_u32 s83, s83, 8
    s_lshl_b32 s83, s83, 7
    s_mul_i32 s84, s68, {GR}
    v_and_b32 v{LN}, 63, v0
    v_mov_b32 v{V_Z}, 0""")
    setup_g2(p)
    for i in range(5): unpark(p, f'wo{i}', V_XO + i)
    for G in range(15, 19):
        for b in issue_group(G): p.extend(b)
    p(f"""v_and_b32 v249, 7, v0
    v_lshlrev_b32 v249, 13, v249
    s_lshl_b32 s85, s69, 9
    s_lshl_b32 s81, s68, 7
    s_add_u32 s85, s85, s81
    s_add_u32 s85, s85, {WS_KVF}""")
    pollall(p, "s_pf", S_WS, 's85', 248, 249, opt('slp', 8))
    p("s_branch g2_tail")
    p("s_done:")
    p(f"""s_cmp_lg_u32 s2, {999 if opt('noB', 0) else 255}
    s_cbranch_scc1 s_fin
    s_cmp_lg_u32 s68, 0
    s_cbranch_scc1 s_fin
""")
    for n, (base, cnt, r) in enumerate(((WS_KF, 48, 0), (WS_YF, 80, 0), (WS_YF, 80, 1), (WS_KVF, 128, 0), (WS_KVF, 128, 1))):
        p(f"""v_add_u32 v187, {64*r}, v{BL}
        v_min_u32 v187, {cnt-1}, v187
        v_lshlrev_b32 v187, 9, v187
        s_mov_b32 s91, {base}""")
        pollall(p, f"s_ep{n}", S_WSB, 's91', 186, 187, 16)
    p(f"""s_mov_b32 s4, {WS_EP}
    buffer_store_dword v{V_TOK}, v38, {sr(S_WSB,4)}, s4 offen sc1""")
    p("s_fin:")
    if STAMP:
        stamp_store(p, S_WSB)
    p("done:\n s_endpgm\n code_end:")
    return p

def main():
    LDS = max(A_END + 16, B_END + 4608)
    assert LDS <= 163840, LDS
    ref = open(f"cdna_kernels/{NAME}.s.ref").read().split('\n')
    hdr = [l for l in ref if l.startswith(';') and '@launch' not in l]
    s = '\n'.join(hdr) + f"\n; @launch grid=(256,1,1) block=(256,1,1) lds={LDS}\n"
    s += f""".amdgcn_target "amdgcn-amd-amdhsa--gfx950"
.text
.p2align 12
.globl {NAME}_kernel
.p2align 8
.type {NAME}_kernel,@function
{NAME}_kernel:
"""
    e = Prog()
    e(f"""s_cmp_ge_u32 s2, 256
    s_cbranch_scc1 done""")
    if opt('cpf2', 0):
        e(f"""s_getpc_b64 s[36:37]
        v_lshlrev_b32 v2, 7, v0
        s_cmp_ge_u32 s2, 128
        s_cselect_b32 s38, roleB-{NAME}_kernel, 0
        v_add_u32 v2, s38, v2
        v_min_u32 v2, code_end-{NAME}_kernel-64, v2
        global_load_dword v253, v2, s[36:37]""", tag='offpath')
    e(f"""
    s_load_dwordx16 s[8:23], s[0:1], 0
    s_load_dwordx8 s[24:31], s[0:1], 64
    s_load_dwordx4 s[32:35], s[0:1], 96
    v_lshrrev_b32 v1, 6, v0
    s_nop 0
    v_readfirstlane_b32 s68, v1
    s_cmp_ge_u32 s2, 208
    s_cbranch_scc1 roleS
    s_cmp_ge_u32 s2, 128
    s_cbranch_scc1 roleB""")
    a = role_A()
    e.extend(a)
    L = lower(e) + lower(role_B()) + lower(role_S())
    if opt('align', 1):
        L, nn, npro = align8(L, sizes_of(s + render(L) + ''.join(f'pg{k}:\n' for k in range(NPG))))
        print("align: nops", nn, "promoted", npro)
    if NPG:
        dummy = ''.join(f"pg{k}:\n" for k in range(NPG))
        L, n = page_stubs(L, sizes_of(s + render(L) + dummy), 4096 - 0x300, 'roleB')
        print("page stubs", n)
        assert n == NPG
    s += render(L)
    s += f""".section .rodata,"a"
.p2align 6
.amdhsa_kernel {NAME}_kernel
  .amdhsa_next_free_vgpr 512
  .amdhsa_next_free_sgpr 102
  .amdhsa_accum_offset 256
  .amdhsa_group_segment_fixed_size 0
  .amdhsa_kernarg_size 112
  .amdhsa_user_sgpr_count 2
  .amdhsa_user_sgpr_kernarg_segment_ptr 1
  .amdhsa_system_sgpr_workgroup_id_x 1
.end_amdhsa_kernel
"""
    out = OPT.get('out', f"cdna_kernels/{NAME}.s")
    open(out, 'w').write(s)
    print("LDS", LDS, "A_END", A_END, "B_END", B_END, "lines", s.count('\n'))
main()
```

```python
import sys, struct
from gasm import Prog, finalize, merge, spread, singles, pack, bundles, lower, render, sizes_of, align8, page_stubs
NAME = "concat_heads__linear_kernel_hedgehog__ssm_conv_s4d__prompt"
OPT = dict(a.split('=') for a in sys.argv[1:] if '=' in a)
def opt(k, d): return type(d)(OPT.get(k, d))
STAMP = opt('stamp', 0)
ROT = opt('rot', 2)
def f2u(x): return struct.unpack('<I', struct.pack('<f', x))[0]
def vr(a, n): return f"v[{a}:{a+n-1}]" if n > 1 else f"v{a}"
def ar(a, n): return f"a[{a}:{a+n-1}]" if n > 1 else f"a{a}"
def sr(a, n): return f"s[{a}:{a+n-1}]" if n > 1 else f"s{a}"
def magic(d): return (2**32 + d - 1) // d

WS_KV = 0; WS_ZERO_END = 32 * 4096; WS_KVF = WS_ZERO_END; WS_KF = WS_KVF + 65536; WS_UF = WS_KF + 40960; WS_YF = WS_UF + 40960; WS_EP = WS_YF + 40960
WS_O = 262144; WS_STAMP = 4 << 20; WS_SIZE = 8 << 20
NSPARE = 48
NZERO_WG = 32
assert WS_EP + 128 <= WS_O
V_TOK = 253
P_X, P_W, P_PHI, P_WO, P_U, P_LA, P_AI, P_CR, P_CI, P_LDT, P_DS, P_OUT, P_DBG, P_WS = [8 + 2 * i for i in range(14)]
OOB = 0x80000000
SPIN = 400000

def srd(p, s, ptr, size, off=None):
    if off is None:
        p(f"s_mov_b32 s{s}, s{ptr}\n s_mov_b32 s{s+1}, s{ptr+1}")
    else:
        p(f"s_add_u32 s{s}, s{ptr}, {off}\n s_addc_u32 s{s+1}, s{ptr+1}, 0")
    p(f"s_mov_b32 s{s+2}, {size}\n s_mov_b32 s{s+3}, 0x20000")

nstamp = [0]
def stamp(p, sreg_base=96):
    if not STAMP: return
    k = nstamp[0]; nstamp[0] += 1
    if k in (0, 32): p(f"s_getreg_b32 s36, hwreg(HW_REG_HW_ID)\n v_writelane_b32 v255, s36, 60\n s_getreg_b32 s36, hwreg(HW_REG_XCC_ID)\n v_writelane_b32 v255, s36, 59")
    if k == 0: p(f"s_memrealtime s[36:37]\n s_waitcnt lgkmcnt(0)\n v_writelane_b32 v255, s36, 62")
    p(f"s_memtime s[36:37]\n s_waitcnt lgkmcnt(0)\n v_writelane_b32 v255, s36, {k}")
def stamp_store(p, wsrd):
    if not STAMP: return
    p(f"s_waitcnt vmcnt(0)\n s_memtime s[36:37]\n s_waitcnt lgkmcnt(0)\n v_writelane_b32 v255, s36, 61\n s_memrealtime s[36:37]\n s_waitcnt lgkmcnt(0)\n v_writelane_b32 v255, s36, 63")
    p(f"""s_lshl_b32 s36, s2, 2
    s_add_u32 s36, s36, s68
    s_lshl_b32 s36, s36, 8
    s_add_u32 s36, s36, {WS_STAMP}
    v_and_b32 v250, 63, v0
    v_lshlrev_b32 v250, 2, v250
    buffer_store_dword v255, v250, {sr(wsrd,4)}, s36 offen""")

def token_load(p, wsrd, vz):
    p(f"s_mov_b32 s4, {WS_EP}\n buffer_load_dword v{V_TOK}, v{vz}, {sr(wsrd,4)}, s4 offen sc1")
def token_make(p):
    p(f"""s_mov_b32 s4, 0x9e3779b1
    v_mul_lo_u32 v{V_TOK}, v{V_TOK}, s4
    v_add_u32 v{V_TOK}, 0x7f4a7c15, v{V_TOK}""")
def token_seen(p, dsrd, vt):
    p(f"""v_cmp_eq_u32 vcc, 0, v0
    v_mov_b32 v{vt}, {OOB:#x}
    v_mov_b32 v{V_CNT}, 1
    v_cndmask_b32_e64 v{vt}, v{vt}, 0, vcc
    buffer_atomic_add v{V_CNT}, v{vt}, {sr(dsrd,4)}, 8 offen sc1""")
def spinpoll(p, name, srdreg, soff, vt, va, cmp, init, period=None):
    period = period or opt('period', 24)
    p(f"v_mov_b32 v{vt}, {init}" if init is not None else f"v_not_b32 v{vt}, v{V_TOK}", tag='offpath')
    p(f"{name}:")
    p(f"""buffer_load_dword v{vt}, v{va}, {sr(srdreg,4)}, {soff} offen sc1
    s_mov_b32 s95, {period}""", tag='offpath')
    p(f"{name}_i:")
    p(f"""{cmp}
    s_sub_u32 s94, s94, 1
    s_cbranch_scc1 {name}_x
    s_cmp_eq_u64 vcc, -1
    s_cbranch_scc1 {name}_x
    s_sub_u32 s95, s95, 1
    s_cbranch_scc0 {name}_i
    s_waitcnt vmcnt(24)
    s_branch {name}""", tag='offpath')
    p(f"{name}_x:")
def pollall(p, name, srdreg, soff, vt, va, slp=0):
    p(f"s_mov_b32 s94, {SPIN}")
    p(f"{name}:")
    p(f"""buffer_load_dword v{vt}, v{va}, {sr(srdreg,4)}, {soff} offen sc1
    s_sub_u32 s94, s94, 1
    s_waitcnt vmcnt(0)
    v_cmp_eq_u32 vcc, v{V_TOK}, v{vt}
    s_cmp_eq_u32 s94, 0""")
    p(f"s_cbranch_scc1 {name}_x", tag='keep')
    p(f"s_cmp_eq_u64 vcc, -1")
    if slp:
        p(f"s_cbranch_scc1 {name}_x", tag='keep')
        p(f"s_sleep {slp}\n s_branch {name}", tag='keep')
    else: p(f"s_cbranch_scc0 {name}", tag='keep')
    p(f"{name}_x:")

A_RING = 0; NSLOT = 16; GR = 5120
A_PHIK = NSLOT * GR; PHI_RS = 352
A_VST = A_PHIK + 128 * PHI_RS
A_BD = A_VST + 20480
A_END = A_BD + 12800
A_KVIMG = A_PHIK
S_X, S_W, S_WO, S_WS, S_OUT, S_DBG, S_PHI = 40, 44, 48, 52, 56, 60, 64
V_XO = 1
V_XD = 5
V_WD = 9
V_TA = 14
V_Z = 22; V_T = 23
V_WF = 32
V_KA = 112; V_VA = 152; V_PA = 192; V_X = 240
OLD = 'sc1' if opt('osc1', 0) else ''

def mfma(p, d, a, b, c=None):
    p(f"v_mfma_f32_16x16x32_bf16 {d}, {a}, {b}, {d if c is None else c}")
def mfma32(p, d, a, b, c=None):
    p(f"v_mfma_f32_32x32x16_bf16 {d}, {a}, {b}, {d if c is None else c}")

LN = V_T; t = V_T + 1
parked = {}
def park(p, name, v):
    if name not in parked: parked[name] = 204 + len(parked)
    assert parked[name] < 256
    p(f"v_accvgpr_write_b32 a{parked[name]}, v{v}")
def unpark(q, name, v): q(f"v_accvgpr_read_b32 v{v}, a{parked[name]}")

def trbase(p, d, rowk, rowrho, extra=0):
    p(f"""v_bfe_u32 v{t}, v0, 5, 1
    v_mul_u32_u24 v{t}, {rowk}, v{t}
    v_bfe_u32 v{t+1}, v0, 2, 2
    v_mul_u32_u24 v{t+1}, {rowrho}, v{t+1}
    v_bfe_u32 v{t+2}, v0, 4, 1
    v_lshl_add_u32 v{t}, v{t+2}, 5, v{t}
    v_and_b32 v{t+2}, 3, v0
    v_lshl_add_u32 v{t}, v{t+2}, 3, v{t}
    v_add_u32 v{d}, v{t}, v{t+1}""")
    if extra: p(f"v_add_u32 v{d}, {extra}, v{d}")

def setup_g2(p):
    srd(p, S_WO, P_WO, 640 * 1280)
    srd(p, S_WS, P_WS, WS_SIZE)
    p(f"s_mul_i32 s78, s69, {128*2560}\n s_add_u32 s78, s78, s83")
    srd(p, S_OUT, P_OUT, 0, 's78')
    p(f"s_sub_u32 s{S_OUT+2}, {2048*2560}, s78")
    p(f"""s_lshr_b32 s79, s68, 1
    s_mul_i32 s79, s79, {80*1280}
    s_add_u32 s79, s79, s83
    s_and_b32 s85, s68, 1
    s_mul_i32 s85, s85, 40
    s_lshl_b32 s78, s69, 2
    s_add_u32 s78, s78, s68
    s_mul_i32 s78, s78, 40960
    s_add_u32 s92, s78, {WS_O}""")
    for i in range(5):
        p(f"""v_lshrrev_b32 v{t}, 3, v{LN}
        v_add_u32 v{t}, s85, v{t}
        v_add_u32 v{t}, {8*i}, v{t}
        v_lshrrev_b32 v{t+1}, 4, v{t}
        v_and_b32 v{t+2}, 7, v{t}
        v_lshl_add_u32 v{t+1}, v{t+1}, 3, v{t+2}
        v_bfe_u32 v{t+2}, v{t}, 3, 1
        v_mad_u32_u24 v{t+2}, v{t+2}, 20, v{t+1}
        v_add_u32 v{t+3}, 20, v{t+2}
        v_cmp_le_u32 vcc, 20, v{t+1}
        v_cndmask_b32 v{t+2}, v{t+2}, v{t+3}, vcc
        v_mul_u32_u24 v{t+2}, 1280, v{t+2}
        v_bfe_u32 v{t}, v{t}, 1, 1
        v_lshlrev_b32 v{t}, 2, v{t}
        v_and_b32 v{t+1}, 7, v0
        v_xor_b32 v{t}, v{t}, v{t+1}
        v_lshl_add_u32 v{t}, v{t}, 4, v{t+2}""")
        park(p, f'wo{i}', t)
    trbase(p, t + 3, 8 * 128, 128)
    p(f"""v_bfe_u32 v{t}, v0, 3, 1
    v_lshl_add_u32 v{t+3}, v{t}, 6, v{t+3}""")
    park(p, 'two', t + 3)
    p(f"""s_add_u32 s78, s84, {A_VST}
    v_and_b32 v{t}, 31, v0
    v_mul_u32_u24 v{t}, 144, v{t}
    v_bfe_u32 v{t+1}, v0, 5, 1
    v_lshl_add_u32 v{t}, v{t+1}, 3, v{t}
    v_add_u32 v{t}, s78, v{t}""")
    park(p, 'outw', t)
    p(f"""v_lshrrev_b32 v{t}, 3, v{LN}
    v_and_b32 v{t+1}, 7, v0
    v_lshlrev_b32 v{t+1}, 4, v{t+1}
    v_mul_u32_u24 v{t+2}, 144, v{t}
    v_add3_u32 v{t+2}, v{t+2}, v{t+1}, s78
    v_mul_u32_u24 v{t}, 2560, v{t}
    v_add_u32 v{t}, v{t}, v{t+1}""")
    park(p, 'outr', t + 2); park(p, 'outg', t)

def dma_bundles(G, hdr, items):
    B = []
    hdr(items[0][0]); B.append(hdr)
    for k, (m0, ld) in enumerate(items):
        q = Prog(); q(ld, tag=('dma', G))
        if k + 1 < len(items): q(items[k + 1][0])
        B.append(q)
    return B
def issue_group(G):
    slotbase = A_RING + (G % 4) * 4 * GR
    h = Prog()
    if G < 10:
        h(f"s_mul_i32 s86, s80, {64*3840}\n s_add_u32 s86, s86, s82\n s_lshl_b32 s81, s80, 7")
        h(f"s_add_u32 s80, s80, 1\n s_cmp_eq_u32 s80, 10\n s_cselect_b32 s80, 0, s80")
        sd = S_W
    elif G < 15:
        h(f"""s_lshl_b32 s86, s71, 1
        s_add_u32 s86, s86, s68
        s_add_u32 s86, s86, {4*(G-10)}
        s_sub_u32 s74, s86, 20
        s_cmp_ge_u32 s86, 20
        s_cselect_b32 s86, s74, s86
        s_mul_i32 s86, s86, {32*3840}
        s_add_u32 s86, s86, s75""")
        sd = S_W
    else:
        h(f"s_add_u32 s86, s79, {(G%4)*160*1280}")
        sd = S_WO
    W = [(f"s_add_u32 m0, s84, {slotbase + 1024*i}", f"buffer_load_dwordx4 v{V_QD[i] if 10 <= G < 15 else (V_WD+i if G < 10 else V_XO+i)}, {sr(sd,4)}, s86 offen {'nt' if opt('ntw', 0) else ''} lds") for i in range(5)]
    if G < 10:
        X = [(f"s_add_u32 m0, s87, {(G%4)*4096 + 1024*r}", f"buffer_load_dwordx4 v{V_XD+r}, {sr(S_X,4)}, s81 offen {'nt' if opt('ntx', 0) else ''} lds") for r in range(4)]
        items = [W[0], X[0], W[1], X[1], W[2], X[2], W[3], X[3], W[4]]
    else: items = W
    return dma_bundles(G, h, items)
V_QD = [21, 29, 30, 31, 252]

OF = lambda n: 88 + 4 * n
G2ACC = 56
def gemm2_tail(p):
    F = V_WF
    p("g2_tail:")
    unpark(p, 'two', V_TA)
    p(f"""v_xor_b32 v{V_TA+1}, 64, v{V_TA}
    v_add_u32 v{V_TA+2}, {8*GR}, v{V_TA}
    v_add_u32 v{V_TA+3}, {8*GR}, v{V_TA+1}
    v_lshlrev_b32 v{t+2}, 4, v{LN}
    v_lshrrev_b32 v{t+4}, 3, v{LN}
    v_mul_u32_u24 v{t+4}, 5120, v{t+4}
    v_and_b32 v{t}, 7, v0
    v_lshl_add_u32 v{t+4}, v{t}, 7, v{t+4}
    s_mov_b32 s94, {SPIN}
    s_add_u32 s93, s92, 4096
    s_barrier""")
    unpark(p, 'outw', t); unpark(p, 'outr', t + 1); unpark(p, 'outg', t + 3)
    stamp(p)
    def reads(n):
        hq, pp = divmod(n, 5); q = Prog(); fb = F + (n % 3) * 8
        off = hq * 10240 + pp * 2048; hi = 0
        if hq >= 4: off -= 8 * GR; hi = 2
        for T in range(2):
            for h in range(2):
                q(f"ds_read_b64_tr_b16 {vr(fb+4*T+2*h,2)}, v{V_TA+hi+T} offset:{off + 512*h}")
        return q
    p("g2_retry:")
    p.extend(reads(0)); p.extend(reads(1))
    p(f"s_mov_b32 s81, s92\n v_mov_b32 v248, 0")
    def oload(n):
        q = Prog(); hq, pp = divmod(n, 5)
        if pp == 4: q(f"s_add_u32 s85, s81, 4096")
        q(f"buffer_load_dwordx4 {vr(OF(n),4)}, v{t+2}, {sr(S_WS,4)}, {'s85' if pp == 4 else 's81'} offen offset:{1024*(pp%4)} sc1")
        if pp == 4: q("s_add_u32 s81, s81, 5120")
        return q
    PRE = opt('opre', 10); SPEC = opt('spec', 0)
    p(f"""buffer_load_dword v249, v{t+4}, {sr(S_WS,4)}, s93 offen sc1
    s_waitcnt vmcnt(0)
    v_cmp_ne_u32 vcc, -1, v249
    s_nop 1
    s_cmp_eq_u64 vcc, -1""")
    p("s_cbranch_scc1 g2_now", tag='keep')
    p("g2_poll:")
    if opt('gslp', 6): p(f"s_sleep {opt('gslp', 6)}")
    p(f"""buffer_load_dword v249, v{t+4}, {sr(S_WS,4)}, s93 offen sc1
    s_mov_b32 s81, s92
    s_sub_u32 s94, s94, 1""")
    if SPEC:
        for n in range(PRE): p.extend(oload(n))
    p(f"""v_cmp_ne_u32 vcc, -1, v249
    s_cmp_lt_i32 s94, 1""")
    p(f"s_cbranch_scc1 {'g2_go' if SPEC else 'g2_now'}", tag='keep')
    p("s_cmp_eq_u64 vcc, -1")
    p("s_cbranch_scc0 g2_poll", tag='keep')
    if SPEC: p("s_branch g2_go", tag='keep')
    p("g2_now:")
    for n in range(PRE):
        q = oload(n)
        if SPEC:
            for i_ in q.L: i_.tag = 'offpath'
        p.extend(q)
    p("g2_go:")
    stamp(p)
    for n in range(40):
        fb = F + (n % 3) * 8
        mm = Prog(); mm.need([vr(fb, 8), vr(OF(n), 4)])
        for T in range(2): mfma32(mm, vr(G2ACC + 16 * T, 16), vr(fb + 4 * T, 4), vr(OF(n), 4), '0' if n == 0 else None)
        st = []
        if n + 2 < 40: st.append((singles(reads(n + 2)), 0, 2))
        if n + PRE < 40: st.append(([oload(n + PRE)], 0, 1))
        c = Prog(); c(f"v_max3_u32 v248, v248, v{OF(n)}, v{OF(n)+1}\n v_max3_u32 v248, v248, v{OF(n)+2}, v{OF(n)+3}")
        st.append((singles(c), 1, 2))
        p.extend(pack(mm, st, cap=32))
    p(f"""v_cmp_eq_u32 vcc, -1, v248
    s_mul_i32 s78, s68, {32*2560}
    s_cmp_lt_i32 s94, 1""")
    p("s_cbranch_scc1 g2_out", tag='keep')
    p("s_sub_u32 s94, s94, 1\n s_nop 7\n s_nop 7")
    p("s_cbranch_vccnz g2_retry", tag='keep')
    p("g2_out:")
    stamp(p)
    for T in range(2):
        for j in range(4):
            x = G2ACC + 16 * T + 4 * j; o = 88 + 8 * T + 2 * j
            p(f"v_cvt_pk_bf16_f32 v{o}, v{x}, v{x+1}\n v_cvt_pk_bf16_f32 v{o+1}, v{x+2}, v{x+3}")
            p(f"ds_write_b64 v{t}, {vr(o,2)} offset:{64*T+16*j}")
    for i in range(4): p(f"ds_read_b128 {vr(104+4*i,4)}, v{t+1} offset:{8*144*i}")
    for i in range(4):
        p(f"buffer_store_dwordx4 {vr(104+4*i,4)}, v{t+3}, {sr(S_OUT,4)}, s78 offen {OPT.get('ast', 'sc1')}")
        if i < 3: p(f"s_add_u32 s78, s78, {8*2560}")
    stamp(p)
    stamp_store(p, S_WS)
    p("s_endpgm")

def divc(p, d, x, c):
    m, sh = {10: (205, 11), 20: (205, 12), 12: (171, 11), 5: (205, 10), 100: (41, 12)}[c]
    p(f"v_mul_u32_u24 v{d}, {m}, v{x}\n v_lshrrev_b32 v{d}, {sh}, v{d}")

V_PO = 160
V_D = 200
NPG = opt('npg', 6); XM = opt('xm', 0); YT = opt('yt', 1); UT = opt('ut', 0)
def decode_ab(p, tmp, sub, sb, hg):
    p(f"s_lshr_b32 {tmp}, s2, 3")
    if sub: p(f"s_sub_u32 {tmp}, {tmp}, {sub}")
    if XM == 0:
        p(f"""s_and_b32 s{sb}, s2, 6
        s_lshl_b32 s{sb}, s{sb}, 1
        s_and_b32 s{hg}, s2, 1
        s_lshl_b32 s{hg}, s{hg}, 2
        s_and_b32 s4, {tmp}, 3
        s_add_u32 s{hg}, s{hg}, s4
        s_lshr_b32 {tmp}, {tmp}, 2
        s_add_u32 s{sb}, s{sb}, {tmp}""")
    else:
        p(f"""s_and_b32 s{sb}, s2, 7
        s_lshl_b32 s{sb}, s{sb}, 1
        s_and_b32 s{hg}, {tmp}, 7
        s_lshr_b32 {tmp}, {tmp}, 3
        s_add_u32 s{sb}, s{sb}, {tmp}""")
def role_A():
    p = Prog(); nstamp[0] = 0
    p("roleA:")
    if opt('cpf3', 0):
        p(f"""s_cmp_lg_u32 s68, 0
        s_cbranch_scc1 a_c3
        s_getpc_b64 s[4:5]
        v_lshlrev_b32 v2, 7, v0""")
        for k in range(opt('cpf3', 0)):
            p(f"s_add_u32 s4, s4, {0xc80 if k == 0 else 8192}\n s_addc_u32 s5, s5, 0\n global_load_dword v254, v2, s[4:5]")
        p("a_c3:")
    stamp(p)
    decode_ab(p, 's73', 0, 69, 70)
    if ROT == 2:
        p("""s_add_u32 s71, s69, s70
        s_mul_i32 s71, s71, 3
        s_mul_i32 s74, s71, 205
        s_lshr_b32 s74, s74, 11
        s_mul_i32 s74, s74, 10
        s_sub_u32 s71, s71, s74""")
    else:
        p(f"s_mul_i32 s71, s71, {5 if ROT else 0}\n s_add_u32 s71, s71, {1 if ROT else 0}\n s_lshr_b32 s71, s71, 1")
    p(f"""v_and_b32 v{LN}, 63, v0
    v_mov_b32 v{V_Z}, 0""")
    p(f"""s_lshl_b32 s76, s68, 5
    v_lshrrev_b32 v{t}, 3, v{LN}
    v_add_u32 v{t}, s76, v{t}
    v_mul_u32_u24 v{t}, 1280, v{t}
    v_and_b32 v{t+1}, 7, v0
    v_bfe_u32 v{t+2}, v0, 4, 2
    v_xor_b32 v{t+1}, v{t+1}, v{t+2}
    v_lshl_add_u32 v{V_XD}, v{t+1}, 4, v{t}
    v_xor_b32 v{V_XD+1}, 64, v{V_XD}
    v_add_u32 v{V_XD+1}, {8*1280}, v{V_XD+1}
    v_add_u32 v{V_XD+2}, {16*1280}, v{V_XD}
    v_add_u32 v{V_XD+3}, {16*1280}, v{V_XD+1}""")
    p(f"s_movk_i32 s78, 1120")
    for i in range(5):
        p(f"v_add_u32 v{t}, {64*i}, v{LN}")
        divc(p, t + 1, t, 20)
        p(f"""v_mul_u32_u24 v{t+2}, 20, v{t+1}
        v_sub_u32 v{t}, v{t}, v{t+2}
        v_mul_u32_u24 v{t+1}, 3840, v{t+1}
        v_cmp_le_u32 vcc, 10, v{t}
        v_lshl_add_u32 v{t+1}, v{t}, 4, v{t+1}
        v_add_u32 v{t+2}, s78, v{t+1}
        v_cndmask_b32 v{V_WD+i}, v{t+1}, v{t+2}, vcc""")
    p(f"""s_mov_b32 s80, s71
    s_mul_i32 s75, s70, 160
    s_mul_i32 s82, s68, {16*3840}
    s_add_u32 s82, s82, s75
    s_add_u32 s82, s82, 1280
    s_lshl_b32 s83, s70, 7
    s_mul_i32 s84, s68, {GR}
    s_lshl_b32 s87, s68, 14
    s_add_u32 s87, s87, {A_PHIK}
    s_mul_i32 s78, s69, {128*1280}""")
    srd(p, S_X, P_X, 128 * 1280, 's78')
    srd(p, S_W, P_W, 640 * 3840)
    su = Prog()
    trbase(su, V_TA, 8 * 320, 320)
    su(f"""v_add_u32 v{V_TA+1}, {8*GR}, v{V_TA}
    v_and_b32 v{t}, 31, v0
    v_bfe_u32 v{t+1}, v0, 1, 3
    v_bfe_u32 v{t+2}, v0, 5, 1
    v_xor_b32 v{t+1}, v{t+1}, v{t+2}
    v_lshlrev_b32 v{t+1}, 4, v{t+1}
    v_lshl_add_u32 v{t}, v{t}, 7, v{t+1}
    v_add_u32 v{V_XO}, s87, v{t}
    v_xor_b32 v{V_XO+1}, 32, v{V_XO}
    v_xor_b32 v{V_XO+2}, 64, v{V_XO}
    v_xor_b32 v{V_XO+3}, 96, v{V_XO}""")
    su(f"""v_mov_b32 v{V_X+4}, 0
    v_mov_b32 v{V_X+5}, 0
    v_mov_b32 v{V_X+6}, 0
    v_mov_b32 v{V_X+7}, 0
    v_lshlrev_b32 v{t}, 4, v0
    v_add_u32 v{t}, {A_BD}, v{t}
    v_min_u32 v{t+1}, {A_BD+496}, v{t}
    ds_write_b128 v{t}, {vr(V_X+4,4)}
    ds_write_b128 v{t}, {vr(V_X+4,4)} offset:4096
    ds_write_b128 v{t}, {vr(V_X+4,4)} offset:8192
    ds_write_b128 v{t+1}, {vr(V_X+4,4)} offset:12288""")
    L2E = 1.4426950408889634
    su(f"s_mov_b32 s88, {f2u(L2E):#x}\n s_mov_b32 s89, {f2u(L2E):#x}")
    for r in range(2):
        su(f"v_add_u32 v{t}, {256*r}, v0")
        divc(su, t + 1, t, 5); divc(su, t + 2, t, 100)
        su(f"""v_mul_u32_u24 v{t+1}, 120, v{t+1}
        v_mad_u32_u24 v{t+1}, v{t+2}, 40, v{t+1}
        v_lshl_add_u32 v{t+1}, v{t}, 3, v{t+1}
        v_add_u32 v{V_X+8+r}, {A_BD}, v{t+1}""")
    su(f"""v_mov_b32 v{t+1}, {A_END}
    v_cmp_gt_u32 vcc, 400, v{t}
    v_cndmask_b32 v{V_X+9}, v{t+1}, v{V_X+9}, vcc""")
    srd(su, S_DBG, P_DBG, 256)
    for i in range(5):
        su(f"v_add_u32 v{t}, {64*i}, v{LN}")
        divc(su, t + 1, t, 10)
        su(f"""v_mul_u32_u24 v{t+2}, 10, v{t+1}
        v_sub_u32 v{t}, v{t}, v{t+2}
        v_and_b32 v{t+2}, 24, v{t+1}
        v_and_b32 v{t+3}, 1, v{t+1}
        v_lshl_add_u32 v{t+2}, v{t+3}, 2, v{t+2}
        v_bfe_u32 v{t+3}, v{t+1}, 1, 2
        v_add_u32 v{t+2}, v{t+2}, v{t+3}
        v_mul_u32_u24 v{t+2}, 3840, v{t+2}
        v_lshl_add_u32 v{V_QD[i]}, v{t}, 4, v{t+2}""")
    su(f"""v_bfe_u32 v{t}, v0, 5, 1
    v_bfe_u32 v{t+1}, v0, 2, 2
    v_lshl_add_u32 v{t}, v{t}, 2, v{t+1}
    v_mul_u32_u24 v{t}, 160, v{t}
    v_and_b32 v{t+1}, 1, v0
    v_mad_u32_u24 v{t}, v{t+1}, 40, v{t}
    v_bfe_u32 v{t+1}, v0, 4, 1
    v_bfe_u32 v{t+2}, v0, 1, 1
    v_lshl_add_u32 v{t+1}, v{t+1}, 1, v{t+2}
    v_lshl_add_u32 v{t}, v{t+1}, 3, v{t}
    v_add_u32 v18, {A_BD}, v{t}
    v_cmp_eq_u32 vcc, 0, v{t+1}
    v_add_u32 v19, 32, v18
    v_add_u32 v{t+2}, 72, v18
    v_cndmask_b32 v19, v{t+2}, v19, vcc
    v_cmp_gt_u32 vcc, 2, v{t+1}
    v_add_u32 v20, 104, v18
    v_nop
    v_cndmask_b32 v20, v18, v20, vcc""".replace("    v_nop\n", ""))
    trbase(su, t + 3, 8 * 160, 320); park(su, 'tq', t + 3)
    a0 = V_PA
    su(f"""v_and_b32 v{t}, 31, v0
    v_add_u32 v{t}, s76, v{t}
    v_bfe_u32 v{t+1}, v0, 5, 1
    v_mul_u32_u24 v{t+2}, {PHI_RS}, v{t}
    v_add_u32 v{t+2}, {A_PHIK}, v{t+2}
    v_bfe_u32 v{t+3}, v0, 2, 1
    v_mul_u32_u24 v{t+4}, 5, v{t+1}
    v_xor_b32 v{a0}, v{t+4}, v{t+3}
    v_lshl_add_u32 v{a0}, v{a0}, 4, v{t+2}
    v_add_u32 v{t+4}, 1, v{t+4}
    v_xor_b32 v{a0+1}, v{t+4}, v{t+3}
    v_lshl_add_u32 v{a0+1}, v{a0+1}, 4, v{t+2}
    v_mul_u32_u24 v{t}, 160, v{t}
    v_add_u32 v{t}, {A_VST}, v{t}
    v_bfe_u32 v{t+3}, v0, 2, 2
    v_xor_b32 v{t+3}, v{t+3}, v{t+1}
    v_lshl_add_u32 v{a0+2}, v{t+3}, 3, v{t}
    v_xor_b32 v{t+3}, 2, v{t+3}
    v_lshl_add_u32 v{a0+3}, v{t+3}, 3, v{t}""")
    park(su, 'phiw0', a0); park(su, 'phiw1', a0 + 1); park(su, 'vw0', a0 + 2); park(su, 'vw1', a0 + 3)
    su(f"""v_bfe_u32 v{t}, v0, 2, 4
    v_bfe_u32 v{t+1}, v0, 4, 2
    s_mul_i32 s78, s68, 5
    v_bfe_u32 v{t+2}, v0, 1, 1
    v_add_u32 v{t+2}, s78, v{t+2}
    v_and_b32 v{t+3}, 1, v{t+1}
    v_xor_b32 v{t+2}, v{t+2}, v{t+3}
    v_and_b32 v{t+3}, 1, v0
    v_lshlrev_b32 v{t+3}, 3, v{t+3}
    v_lshl_add_u32 v{t+2}, v{t+2}, 4, v{t+3}
    v_mul_u32_u24 v{t+3}, {PHI_RS}, v{t}
    v_add_u32 v{t+2}, v{t+2}, v{t+3}
    v_add_u32 v{a0}, {A_PHIK}, v{t+2}
    v_mul_u32_u24 v{t}, 160, v{t}
    v_add_u32 v{t}, {A_VST}, v{t}
    v_and_b32 v{t+2}, 3, v0
    v_add_u32 v{t+2}, s78, v{t+2}
    v_xor_b32 v{t+2}, v{t+2}, v{t+1}
    v_lshl_add_u32 v{a0+1}, v{t+2}, 3, v{t}
    s_add_u32 s78, s78, 4
    v_xor_b32 v{t+2}, s78, v{t+1}
    v_lshl_add_u32 v{a0+2}, v{t+2}, 3, v{t}""")
    park(su, 'phir', a0); park(su, 'vr0', a0 + 1); park(su, 'vr1', a0 + 2)
    a0 = V_PA
    su(f"""v_and_b32 v{t+3}, 15, v0
    v_bfe_u32 v{t+4}, v0, 4, 2
    v_cmp_gt_u32 s[90:91], 8, v{t+3}
    v_lshlrev_b32 v{t}, 2, v{t+3}
    v_mul_u32_u24 v{t+1}, 768, v{t+4}
    v_add_u32 v{a0}, v{t}, v{t+1}
    v_add_u32 v{t+1}, {192-32}, v{a0}
    v_cndmask_b32 v{a0+1}, v{t+1}, v{a0}, s[90:91]
    v_mul_u32_u24 v{t+1}, 192, v{t+4}
    v_add_u32 v{t+1}, {16*192}, v{t+1}
    v_add_u32 v{a0+2}, v{t+1}, v{t}
    v_mov_b32 v{t+2}, {OOB:#x}
    v_cmp_gt_u32 vcc, 40, v{LN}
    v_cndmask_b32 v{a0+3}, v{t+2}, v{a0+2}, s[90:91]
    v_lshlrev_b32 v{t+1}, 2, v{LN}
    v_add_u32 v{t+1}, {20*192}, v{t+1}
    v_cndmask_b32 v{a0+4}, v{t+2}, v{t+1}, vcc
    v_cmp_eq_u32 vcc, 0, v{LN}
    v_cmp_gt_u32 s[90:91], 4, v{t+3}
    v_cndmask_b32 v{a0+6}, v{t+2}, v{V_Z}, vcc""")
    for k in range(5): park(su, f'at{k}', a0 + k)
    park(su, 'l0', a0 + 6)
    su(f"s_mul_i32 s85, s68, 1920\n s_add_u32 s85, s85, {A_KVIMG}\n v_mov_b32 v{t+4}, {A_KVIMG+9600}")
    for i in range(4):
        su(f"v_add_u32 v{t}, {64*i}, v{LN}")
        divc(su, t + 1, t, 12)
        su(f"""v_mul_u32_u24 v{t+2}, 12, v{t+1}
        v_sub_u32 v{t+2}, v{t}, v{t+2}
        v_cmp_gt_u32 vcc, 10, v{t+2}
        v_mul_u32_u24 v{t+1}, 80, v{t+1}
        v_lshl_add_u32 v{t+1}, v{t+2}, 3, v{t+1}
        v_add_u32 v{t+1}, s85, v{t+1}
        v_cndmask_b32 v{t+1}, v{t+4}, v{t+1}, vcc""")
        if i == 3: su(f"v_cmp_gt_u32 vcc, 60, v{LN}\n v_cndmask_b32 v{t+1}, v{t+4}, v{t+1}, vcc")
        park(su, f'kvw{i}', t + 1)
    su(f"""v_cmp_gt_u32 vcc, 120, v0
    v_lshlrev_b32 v{t}, 4, v0
    v_add_u32 v{t}, {A_KVIMG+7680}, v{t}
    v_cndmask_b32 v{t}, v{t+4}, v{t}, vcc""")
    park(su, 'kvz', t)
    su(f"""v_bfe_u32 v{t}, v0, 3, 2
    v_and_b32 v{t+1}, 3, v0
    v_lshl_add_u32 v{t}, v{t}, 2, v{t+1}
    v_mul_u32_u24 v{t}, 80, v{t}
    v_bfe_u32 v{t+1}, v0, 2, 1
    v_bfe_u32 v{t+4}, v0, 5, 1
    v_cmp_eq_u32 vcc, v{t+1}, v{t+4}
    v_mul_u32_u24 v{t+2}, 1920, v{t+1}
    v_add_u32 v{t}, v{t}, v{t+2}
    v_add_u32 v{t}, {A_KVIMG}, v{t}
    v_add_u32 v{t+3}, 3840, v{t}
    v_mov_b32 v{t+2}, {A_KVIMG+7680}
    v_cndmask_b32 v{t}, v{t+2}, v{t}, vcc
    v_cndmask_b32 v{t+3}, v{t+2}, v{t+3}, vcc""")
    park(su, 'kvr0', t); park(su, 'kvr1', t + 3)
    setup_g2(su)
    wl = Prog()
    wl("s_mul_i32 s77, s70, 3200")
    srd(wl, S_PHI, P_PHI, 3200, 's77')
    wl(f"""v_lshlrev_b32 v{V_X+10}, 3, v0
    buffer_load_dwordx2 {vr(V_X,2)}, v{V_X+10}, {sr(S_PHI,4)}, 0 offen
    buffer_load_dwordx2 {vr(V_X+2,2)}, v{V_X+10}, {sr(S_PHI,4)}, 0 offen offset:2048""")
    token_load(su, S_WS, V_Z)
    def sync(p, G):
        p.waitvm(('dma', G)); p("s_barrier")
    def touches():
        if NPG:
            for w_ in range(4):
                p(f"s_cmp_lg_u32 s68, {w_}")
                p(f"s_cbranch_scc1 a_t{w_}", tag='keep')
                for k in range(w_, NPG, 4): p(f"s_call_b64 s[4:5], pg{k}", tag='keep')
                p(f"a_t{w_}:")
    HALF = opt('half', 0)
    if HALF:
        p(f"""s_mul_i32 s86, s80, {64*3840}
        s_add_u32 s86, s86, s82
        s_lshl_b32 s81, s80, 7
        s_add_u32 s80, s80, 1
        s_cmp_eq_u32 s80, 10
        s_cselect_b32 s80, 0, s80
        s_mov_b32 s95, s86""")
        def w0(tag):
            for i in range(5): p(f"s_add_u32 m0, s84, {1024*i}\n s_nop 0\n buffer_load_dwordx4 v{V_WD+i}, {sr(S_W,4)}, s95 offen lds", tag=tag)
        p("s_cmp_ge_u32 s68, 2")
        p("s_cbranch_scc1 a_w0a", tag='keep')
        w0('offpath')
        p("a_w0a:")
        for r in range(4): p(f"s_add_u32 m0, s87, {1024*r}\n s_nop 0\n buffer_load_dwordx4 v{V_XD+r}, {sr(S_X,4)}, s81 offen lds", tag=('dma', 0))
        p.extend(su); p.extend(wl); touches()
        p("s_cmp_lt_u32 s68, 2")
        p("s_cbranch_scc1 a_w0b", tag='keep')
        p(f"s_waitcnt vmcnt(3)", tag='offpath')
        w0('offpath')
        p("s_branch a_w0c", tag='keep')
        p("a_w0b:")
        p("s_waitcnt vmcnt(3)", tag='offpath')
        p("a_w0c:")
        stamp(p)
        p("s_waitcnt lgkmcnt(0)\n s_barrier")
    else:
        iss = issue_group(0) + [wl]
        sub = bundles(su)
        LEAD = opt('lead', 7); per = opt('suchunk', 30)
        for k, b in enumerate(iss):
            p.extend(b)
            if k >= LEAD:
                for x in sub[:per]: p.extend(x)
                sub = sub[per:]
        for x in sub: p.extend(x)
        touches()
        for b in issue_group(1): p.extend(b)
        stamp(p)
        p("s_waitcnt lgkmcnt(0)")
        sync(p, 0)
    stamp(p)
    FD = 2
    def kv_reads(k):
        q = Prog(); fb = V_WF + (k % 3) * 20
        slot = k % NSLOT; base = V_TA + (slot >= 8); so = (slot % 8) * GR
        q(f"ds_read_b128 {ar(4*k,4)}, v{V_XO+k%4} offset:{((k//4)%4)*4096}")
        for T in range(5):
            for h in range(2):
                q(f"ds_read_b64_tr_b16 {vr(fb+4*T+2*h,2)}, v{base} offset:{so + 1280*h + 64*T}")
        return q
    PH = [(0, 0), (0, 1), (0, 2), (1, 0), (1, 1), (1, 2), (1, 3), (1, 4), (2, 2), (2, 3), (2, 4)]
    bdr = Prog()
    for n, (U, ka) in enumerate(PH):
        for h in range(2): bdr(f"ds_read_b64_tr_b16 {ar(160+4*n+2*h,2)}, v{18+U} offset:{(16*ka+8*h)*160}")
    bdr = singles(bdr)
    for k in range(FD): p.extend(kv_reads(k))
    segs = [list(range(0, 4 - FD))] + [list(range(4 * G - FD, 4 * G + 4 - FD)) for G in range(1, 10)] + [list(range(40 - FD, 40))]
    for si, steps in enumerate(segs):
        if si >= 1:
            if si == 10: p("s_waitcnt lgkmcnt(0)")
            if STAMP == 2: stamp(p)
            sync(p, si)
            if HALF and si == 1: p.extend(kv_reads(2)); p.extend(kv_reads(3))
        m = Prog(); st = []
        for n, k in enumerate(steps):
            fb = V_WF + (k % 3) * 20
            m.need([vr(fb, 20), ar(4 * k, 4)])
            for T in range(5): mfma32(m, vr(V_KA + 16 * T, 16), vr(fb + 4 * T, 4), ar(4 * k, 4), '0' if k == 0 else None)
            if k + FD < 40 and not (HALF and si == 0): st.append((singles(kv_reads(k + FD)), 5 * n, 5 * n + 5))
        if HALF and si == 0: st.append((issue_group(1), 0, None))
        elif HALF and si == 1: st.append((issue_group(2) + issue_group(3), 0, None))
        else: st.append((issue_group(si + 2), 0, None))
        if si == 1:
            w = Prog(); w(f"ds_write_b64 v{V_X+8}, {vr(V_X,2)}\n ds_write_b64 v{V_X+9}, {vr(V_X+2,2)}")
            st.append((singles(w), 2, 12))
        if si == 2:
            w = Prog(); token_make(w); st.append((singles(w), 0, None))
        if si == 8:
            w = Prog(); w(f"buffer_load_dword v{V_X+10}, v{V_Z}, {sr(S_DBG,4)}, 0 offen sc1")
            st.append(([w], 0, 1))
        if si == 10:
            w = Prog(); unpark(w, 'vw0', t + 1); unpark(w, 'vw1', t + 3); unpark(w, 'phiw0', t + 2); unpark(w, 'phiw1', V_X + 11); unpark(w, 'tq', V_TA + 2)
            w(f"v_add_u32 v{V_TA+3}, {8*GR}, v{V_TA+2}")
            for i in range(5): unpark(w, f'wo{i}', V_XO + i)
            w(f"""v_lshlrev_b32 v{t}, 4, v{LN}
            s_mul_i32 s77, s70, 5120
            s_add_u32 s77, s77, s92
            s_add_u32 s78, s77, 4096""")
            st.append((singles(w), 0, None)); st.append((bdr, 0, None))
        p.extend(pack(m, st))
    stamp(p)

    def phi_step(p, acc, out, extra=None, inexp=None):
        B = V_WF; E = V_WF + 24; M = V_WF + 64
        cv = [f"v_cvt_pk_bf16_f32 v{B+k}, v{acc+2*k}, v{acc+2*k+1}" for k in range(20)]
        def minmax(y):
            q = Prog(); x = V_PA + y * 20; Mx = M + 8 * y
            q(f"v_max3_f32 v{Mx}, v{x}, v{x+1}, v{x+2}\n v_min3_f32 v{Mx+2}, v{x}, v{x+1}, v{x+2}")
            for k in range(3, 19, 2):
                q(f"v_max3_f32 v{Mx}, v{Mx}, v{x+k}, v{x+k+1}\n v_min3_f32 v{Mx+2}, v{Mx+2}, v{x+k}, v{x+k+1}")
            q(f"v_max_f32 v{Mx}, v{Mx}, v{x+19}\n v_min_f32 v{Mx+2}, v{Mx+2}, v{x+19}")
            q(f"v_mul_f32 v{Mx}, s88, v{Mx}\n v_mul_f32 v{Mx+2}, s88, v{Mx+2}")
            return q
        for c in cv[:8]: p(c)
        m = Prog(); seen = set()
        for n, (U, ka) in enumerate(PH):
            mfma32(m, vr(V_PA + 16 * U, 16), ar(160 + 4 * n, 4), vr(B + 4 * ka, 4), None if U in seen else '0'); seen.add(U)
        c2 = Prog()
        for c in cv[8:]: c2(c)
        st = [(singles(c2), 0, 2)]
        if extra: st.append((bundles(extra), 2, 11))
        p.extend(pack(m, st, cap=28))
        for y in range(2):
            x = V_PA + y * 20; Mx = M + 8 * y
            p.extend(minmax(y))
            for q in range(10):
                p(f"v_pk_fma_f32 {vr(E+2*q,2)}, {vr(x+2*q,2)}, s[88:89], {vr(Mx,2)} op_sel_hi:[1,1,0] neg_lo:[0,0,1] neg_hi:[0,0,1]")
                p(f"v_pk_fma_f32 {vr(E+20+2*q,2)}, {vr(x+2*q,2)}, s[88:89], {vr(Mx+2,2)} op_sel_hi:[1,1,0] neg_lo:[1,0,0] neg_hi:[1,0,0]")
            for q in range(40):
                p(f"v_exp_f32 v{E+q}, v{E+q}")
                if y == 0 and inexp and q % 6 == 5: p.extend(inexp.pop(0))
            for q in range(1, 10):
                for hh in range(2):
                    S = Mx + 4 + 2 * hh; e = E + 20 * hh
                    p(f"v_pk_add_f32 {vr(S,2)}, {vr(e if q == 1 else S,2)}, {vr(e+2*q,2)}")
            p(f"v_add_f32 v{Mx+4}, v{Mx+4}, v{Mx+5}\n v_add_f32 v{Mx+6}, v{Mx+6}, v{Mx+7}")
            p(f"v_rcp_f32 v{Mx+4}, v{Mx+4}\n v_rcp_f32 v{Mx+6}, v{Mx+6}")
            for hh in range(2):
                for q in range(10):
                    e = E + 20 * hh + 2 * q
                    p(f"v_pk_mul_f32 {vr(e,2)}, {vr(e,2)}, {vr(Mx+4+2*hh,2)} op_sel_hi:[1,0]")
            yield y
            for q in range(20):
                p(f"v_cvt_pk_bf16_f32 v{out+y*20+q}, v{E+2*q}, v{E+2*q+1}")

    def q_reads(k):
        q = Prog(); fb = V_WF + (k % 3) * 12
        slot = (40 + k // 2) % NSLOT; base = V_TA + 2 + (slot >= 8); so = (slot % 8) * GR + (k % 2) * 2560
        for T in range(3):
            for h in range(2):
                q(f"ds_read_b64_tr_b16 {vr(fb+4*T+2*h,2)}, v{base} offset:{so + 160*h + 64*T}")
        return q
    ex = Prog()
    for mm_ in range(10):
        a = V_VA + 4 * mm_; d = V_X + 2 * (mm_ % 4)
        ex(f"v_cvt_pk_bf16_f32 v{d}, v{a}, v{a+1}\n v_cvt_pk_bf16_f32 v{d+1}, v{a+2}, v{a+3}\n ds_write_b64 v{t+1+2*(mm_%2)}, {vr(d,2)} offset:{32*(mm_//2)}")
    w = Prog(); w0 = Prog()
    for k in range(4): w0(f"v_mov_b32 v{V_X+4+k}, -1")
    for pc in range(5):
        w(f"buffer_store_dwordx4 {vr(V_X+4,4)}, v{t}, {sr(S_WS,4)}, {'s78' if pc == 4 else 's77'} offen offset:{1024*(pc%4)} sc1")
    for y in phi_step(p, V_KA, V_PO, ex, [w0] + singles(w)):
        if y == 1:
            p.extend(q_reads(0));
    p.extend(q_reads(1))
    stamp(p)
    p(f"""v_readfirstlane_b32 s95, v{V_X+10}
    s_mov_b32 s94, {SPIN}
    s_cmp_ge_u32 s95, {NZERO_WG}""")
    p("s_cbranch_scc1 a_pz_x", tag='keep')
    p("a_pz:")
    p(f"""buffer_load_dword v{V_X+10}, v{V_Z}, {sr(S_DBG,4)}, 0 offen sc1
    s_sub_u32 s94, s94, 1
    s_waitcnt vmcnt(0)
    v_readfirstlane_b32 s95, v{V_X+10}
    s_cmp_eq_u32 s94, 0""", tag='offpath')
    p("s_cbranch_scc1 a_pz_x", tag='keep')
    p(f"s_cmp_ge_u32 s95, {NZERO_WG}")
    p("s_cbranch_scc0 a_pz", tag='keep')
    p("a_pz_x:")
    pw = Prog()
    for y in range(2):
        for q in range(5): pw(f"ds_write_b128 v{V_X+11 if q % 2 else t+2}, {vr(V_PO+y*20+4*q,4)} offset:{160*y + 32*(q//2)}")
    pre = Prog()
    unpark(pre, 'phir', t); unpark(pre, 'vr0', t + 1); unpark(pre, 'vr1', t + 3)
    pre(f"v_mov_b32 v{t+4}, 0x3f803f80")
    for k in range(5): unpark(pre, f'at{k}', V_X + k)
    pre(f"""s_lshl_b32 s78, s70, 2
    s_add_u32 s78, s78, s68
    s_lshl_b32 s78, s78, 12
    s_add_u32 s78, s78, {WS_KV}""")
    KF = [72, 92, V_PO, V_PO + 20]
    def kvs_reads(sw):
        q = Prog(); fb = KF[sw]
        for h in range(2): q(f"ds_read_b64_tr_b16 {vr(fb+4+2*h,2)}, v{t+3} offset:{(sw*32+h*16)*160}")
        for h in range(2): q(f"ds_read_b64_tr_b16 {vr(fb+2*h,2)}, v{t+1} offset:{(sw*32+h*16)*160}")
        for nf in range(3):
            for h in range(2):
                q(f"ds_read_b64_tr_b16 {vr(fb+8+4*nf+2*h,2)}, v{t} offset:{(sw*32+h*16)*PHI_RS + 32*nf}")
        return q
    def kvs_mfma(m, sw):
        fb = KF[sw]
        m.need([vr(fb, 20)])
        for q in range(4): m(f"v_cndmask_b32 v{fb+4+q}, v{t+4}, v{fb+4+q}, s[90:91]")
        for md in range(2):
            for nf in range(3):
                mfma(m, vr(V_D + (3 * md + nf) * 4, 4), vr(fb + 4 * md, 4), vr(fb + 8 + 4 * nf, 4), '0' if sw == 0 else None)
    at = Prog(); a0 = V_X
    def atom(v, vo, off): at(f"buffer_atomic_add_f32 v{v}, v{vo}, {sr(S_WS,4)}, s78 offen offset:{off}", tag='kvat')
    for nf in range(2):
        for i in range(4): atom(V_D + 4 * nf + i, a0, i * 192 + nf * 64)
    R = lambda nf, i: V_D + 12 + 4 * nf + i
    for i in (0, 2):
        at(f"v_mov_b32_dpp v{V_D+8+i}, v{V_D+9+i} row_shr:8 row_mask:0xf bank_mask:0xc")
    for nf in range(3):
        at(f"v_permlane16_swap_b32 v{R(nf,0)}, v{R(nf,1)}\n v_permlane16_swap_b32 v{R(nf,2)}, v{R(nf,3)}")
    for i in (0, 2): atom(V_D + 8 + i, a0 + 1, i * 192 + 128)
    for nf in range(3): at(f"v_permlane32_swap_b32 v{R(nf,0)}, v{R(nf,2)}")
    at(f"v_permlane16_swap_b32 v{R(0,1)}, v{R(1,1)}")
    for nf in range(3): atom(R(nf, 0), a0 + (3 if nf == 2 else 2), nf * 64)
    at(f"v_permlane32_swap_b32 v{R(0,1)}, v{R(2,1)}")
    atom(R(0, 1), a0 + 4, 0)
    KS = opt('ks', 4)
    segs = [list(range(0, 6))] + [list(range(8 * g - 2, 8 * g + 6)) for g in range(1, 5)] + [[38, 39]]
    def signal():
        unpark(p, 'l0', V_X + 7)
        p(f"""s_lshl_b32 s78, s70, 13
        s_lshl_b32 s85, s69, 9
        s_add_u32 s78, s78, s85
        s_lshl_b32 s85, s68, 7
        s_add_u32 s78, s78, s85
        s_add_u32 s78, s78, {WS_KVF}""")
        p.waitvm('kvat')
        p(f"buffer_store_dword v{V_TOK}, v{V_X+7}, {sr(S_WS,4)}, s78 offen sc1")
    def qstep(k):
        m = Prog(); fb = V_WF + (k % 3) * 12
        m.need([vr(fb, 12)])
        for T in range(3): mfma32(m, vr(V_KA + 16 * T, 16), vr(fb + 4 * T, 4), ar(4 * k, 4), '0' if k == 0 else None)
        return m
    def qrun(steps, extra):
        m = Prog(); st = []
        for n, k in enumerate(steps):
            m.extend(qstep(k))
            if k + 2 < 40: st.append((singles(q_reads(k + 2)), 3 * n, 3 * n + 3))
        p.extend(pack(m, st + extra, cap=28))
    NW = opt('nw', 4)
    qrun(range(0, NW), [(singles(pw), 0, 3 * NW - 2), (bundles(pre), 2, None)])
    if STAMP == 3: stamp(p)
    p("s_waitcnt lgkmcnt(0)\n s_barrier")
    kr = Prog()
    for sw in range(4): kr.extend(kvs_reads(sw))
    kr = singles(kr)
    for x in kr[:10]: p.extend(x)
    qrun(range(NW, 6), [(kr[10:], 0, None)])
    m = Prog()
    for sw in range(4): kvs_mfma(m, sw)
    p.extend(pack(m, [(issue_group(13), 0, 20)], cap=8))
    if STAMP == 3: stamp(p)
    for si, steps in enumerate(segs):
        G = 10 + si
        if si == 0: continue
        if STAMP == 3 and si > 1: stamp(p)
        if si == KS: signal()
        if G < 15: sync(p, G)
        if si == 1: qrun(steps, [(singles(at), 0, opt('atspan', 24))])
        elif si < 5: qrun(steps, [(issue_group(G + 2), 0, None)])
        else: qrun(steps, [])
    if KS == 6: signal()
    stamp(p)
    F = V_WF
    ex = Prog()
    unpark(ex, 'kvz', t)
    ex(f"""v_mov_b32 v{V_X}, 0
    v_mov_b32 v{V_X+1}, 0
    v_mov_b32 v{V_X+2}, 0
    v_mov_b32 v{V_X+3}, 0
    ds_write_b128 v{t}, {vr(V_X,4)}
    v_lshlrev_b32 v{t+1}, 7, v{LN}
    v_lshlrev_b32 v{t+2}, 4, v{LN}
    s_lshl_b32 s78, s70, 13
    s_add_u32 s78, s78, {WS_KVF}
    s_lshl_b32 s77, s70, 2
    s_add_u32 s77, s77, s68
    s_lshl_b32 s77, s77, 12
    s_add_u32 s77, s77, {WS_KV}""")
    for i in range(4): unpark(ex, f'kvw{i}', V_X + 4 + i)
    KL = V_KA + 32
    def kvloads(tag=None):
        for i in range(4):
            p(f"buffer_load_dwordx4 {vr(KL+4*i,4)}, v{t+2}, {sr(S_WS,4)}, s77 offen offset:{1024*i} sc1", tag=tag)
    ex(f"""buffer_load_dword v{V_X+8}, v{t+1}, {sr(S_WS,4)}, s78 offen sc1
    v_and_b32 v{t+3}, 7, v0
    v_lshlrev_b32 v{t+3}, 13, v{t+3}
    s_lshl_b32 s93, s69, 9
    s_lshl_b32 s81, s68, 7
    s_add_u32 s93, s93, s81
    s_add_u32 s93, s93, {WS_KVF}""")
    for y in phi_step(p, V_KA, V_PO, ex):
        if y == 0:
            p(f"v_cmp_eq_u32 vcc, v{V_TOK}, v{V_X+8}\n s_mov_b32 s95, 0\n s_nop 0\n s_cmp_eq_u64 vcc, -1")
            p("s_cbranch_scc0 a_noearly", tag='keep')
            kvloads('offpath')
            p("s_mov_b32 s95, 1", tag='offpath')
            p("a_noearly:")
            p(f"buffer_load_dword v{V_X+9}, v{t+3}, {sr(S_WS,4)}, s93 offen sc1")
        if y == 1:
            stamp(p)
            p("s_cmp_eq_u32 s95, 1")
            p("s_cbranch_scc1 a_have", tag='keep')
            pollall(p, "a_pk", S_WS, 's78', V_X + 8, t + 1)
            kvloads()
            p("a_have:")
            stamp(p)
            p("s_waitcnt vmcnt(0)")
            for i in range(4):
                p(f"v_cvt_pk_bf16_f32 v{F+2*i}, v{KL+4*i}, v{KL+4*i+1}\n v_cvt_pk_bf16_f32 v{F+1+2*i}, v{KL+4*i+2}, v{KL+4*i+3}")
                p(f"ds_write_b64 v{V_X+4+i}, {vr(F+2*i,2)}")
            p(f"v_cmp_eq_u32 vcc, v{V_TOK}, v{V_X+9}")
            unpark(p, 'kvr0', t); unpark(p, 'kvr1', t + 1)
            p("s_cmp_eq_u64 vcc, -1")
            p("s_cbranch_scc1 a_pf_x", tag='keep')
            q = Prog(); pollall(q, "a_pf", S_WS, 's93', V_X + 9, t + 3)
            for i_ in q.L: i_.tag = 'offpath' if i_.kind not in ('label',) else i_.tag
            p.extend(q)
            p(f"""s_mul_i32 s76, s70, 5120
            s_add_u32 s78, s92, s76
            s_add_u32 s81, s78, 4096
            s_mov_b32 s85, {f2u(1e-6):#x}""")
    p("s_waitcnt lgkmcnt(0)\n s_barrier")
    stamp(p)
    order = [(y, u, ka) for u in (1, 0) for y in range(2) for ka in range(5)]
    NB = 10; O = F + 48
    def ord_(n):
        y, u, ka = order[n]; q = Prog(); q(f"ds_read_b128 {vr(F+4*(n%NB),4)}, v{t+y} offset:{u*1280+16*ka}"); return q
    for n in range(NB): p.extend(ord_(n))
    def fin(y, ks):
        q = Prog(); dn = V_KA + 16 * y + 4
        vals = [V_D + 16 * y + r for r in range(16)] + [V_KA + 16 * y + r for r in range(4)]
        for k in ks:
            q(f"v_mul_f32 v{vals[2*k]}, v{dn}, v{vals[2*k]}\n v_mul_f32 v{vals[2*k+1]}, v{dn}, v{vals[2*k+1]}")
            q(f"v_cvt_pk_bf16_f32 v{O+10*y+k}, v{vals[2*k]}, v{vals[2*k+1]}")
        return q
    def ost(q, pc): q(f"buffer_store_dwordx4 {vr(O+4*pc,4)}, v{t+2}, {sr(S_WS,4)}, {'s81' if pc == 4 else 's78'} offen offset:{1024*(pc%4)} {'' if opt('oplain', 0) else 'sc1'}", tag='ost')
    om = Prog()
    for n, (y, u, ka) in enumerate(order):
        if n in (0, 2, 5, 10, 15): om.need([vr(F + 4 * (m_ % NB), 4) for m_ in range(n, {0: 2, 2: 5}.get(n, n + 5))])
        mfma32(om, vr((V_D if u == 0 else V_KA) + 16 * y, 16), vr(F + 4 * (n % NB), 4), vr(V_PO + y * 20 + 4 * ka, 4), '0' if ka == 0 else None)
        if n + NB < 20: om.extend(ord_(n + NB))
    d0 = Prog(); d1 = Prog()
    for y, d in ((0, d0), (1, d1)):
        dn = V_KA + 16 * y + 4
        d(f"v_add_f32 v{dn}, s85, v{dn}\n v_rcp_f32 v{dn}, v{dn}"); d.extend(fin(y, (8, 9)))
    f0 = fin(0, range(4)); ost(f0, 0); f0.extend(fin(0, range(4, 8))); ost(f0, 1)
    p.extend(pack(om, [(issue_group(17) + issue_group(18), 0, 12), (singles(d0), 8, 11), (singles(d1), 12, 15), (singles(f0), 16, 20)], cap=28))
    dn = V_KA + 20
    for k in range(8):
        p(f"v_pk_mul_f32 {vr(V_D+16+2*k,2)}, {vr(V_D+16+2*k,2)}, {vr(dn,2)} op_sel_hi:[1,0]")
    for k in range(8):
        p(f"v_cvt_pk_bf16_f32 v{O+10+k}, v{V_D+16+2*k}, v{V_D+17+2*k}")
        if k in (1, 5, 7): ost(p, {1: 2, 5: 3, 7: 4}[k])
    stamp(p)
    p.waitvm(('dma', 18))
    gemm2_tail(p)
    return p

CP = 4168; YP = 4160; SRS = 544
B_RAW = 0
B_UC = 33280
B_KR = B_UC + 16 * CP
B_SC = B_KR + 4 * 4608
B_END = B_SC + 4 * 16 * SRS
S_KR = 81920; S_SC = S_KR + 4 * 4608
WS_KR = 4 << 20
BL, B15, BG, BZ = 1, 2, 3, 4
A_SW, A_SR, A_T0, A_T1, A_T1b, A_T2, A_X3, A_X2, A_X1, A_X0, A_KW, A_KW32, A_KB, MSK = range(24, 38)
PR = 8
S_U, S_LA, S_AI, S_CR, S_CI, S_LDT, S_DS, S_O, S_WSB = 40, 44, 48, 52, 56, 60, 64, 72, 76

def kg_lanes(p):
    p(f"""v_and_b32 v{BL}, 63, v0
    v_and_b32 v{B15}, 15, v0
    v_bfe_u32 v{BG}, v0, 4, 2
    v_mov_b32 v{BZ}, 0
    v_lshlrev_b32 v5, 2, v{BL}
    s_waitcnt lgkmcnt(0)""")
    for s_, ptr, size in ((S_LA, P_LA, 640*256), (S_AI, P_AI, 640*256), (S_CR, P_CR, 640*256), (S_CI, P_CI, 640*256), (S_LDT, P_LDT, 1280), (S_DS, P_DS, 1280)):
        srd(p, s_, ptr, size)
def kg_params(p, sch, P):
    p(f"s_lshl_b32 s81, {sch}, 8\n s_lshl_b32 s80, {sch}, 1")
    p(f"buffer_load_ushort v{P+4}, v{BZ}, {sr(S_LDT,4)}, s80 offen")
    for k, s_ in enumerate((S_LA, S_AI, S_CR, S_CI)):
        p(f"buffer_load_dword v{P+k}, v5, {sr(s_,4)}, s81 offen {'nt' if opt('ntp', 1) else ''}")
    p(f"buffer_load_ushort v{P+5}, v{BZ}, {sr(S_DS,4)}, s80 offen")
def kg_setup(p, KR, SC):
    t = 40
    p(f"""s_mul_i32 s83, s68, 4608
    s_add_u32 s83, s83, {KR}
    s_mul_i32 s84, s68, {16*SRS}
    s_add_u32 s84, s84, {SC}
    v_lshl_add_u32 v{A_SW}, v{BL}, 3, s84
    v_mul_u32_u24 v{A_SR}, {SRS}, v{B15}
    v_lshl_add_u32 v{A_SR}, v{BG}, 4, v{A_SR}
    v_add_u32 v{A_SR}, s84, v{A_SR}
    v_cmp_gt_u32 vcc, 2, v{BG}
    v_lshrrev_b32 v{t}, 1, v{BG}
    v_and_b32 v{t+1}, 1, v{BG}
    v_lshlrev_b32 v{A_T0}, 9, v{t}
    v_lshl_add_u32 v{A_T0}, v{t+1}, 4, v{A_T0}
    v_lshl_add_u32 v{A_T0}, v{B15}, 5, v{A_T0}
    v_add_u32 v{A_T0}, s84, v{A_T0}
    v_lshlrev_b32 v{t+2}, 4, v{B15}
    v_lshlrev_b32 v{t+3}, 3, v{B15}
    v_cndmask_b32 v{t+2}, v{t+3}, v{t+2}, vcc
    v_lshl_add_u32 v{A_T1}, v{BG}, 8, v{t+2}
    v_add_u32 v{A_T1}, s84, v{A_T1}
    v_mov_b32 v{t+2}, 128
    v_mov_b32 v{t+3}, 8
    v_cndmask_b32 v{t+2}, v{t+2}, v{t+3}, vcc
    v_add_u32 v{A_T1b}, v{A_T1}, v{t+2}
    v_lshlrev_b32 v{A_T2}, 8, v{BG}
    v_lshl_add_u32 v{A_T2}, v{B15}, 2, v{A_T2}
    v_add_u32 v{A_T2}, s84, v{A_T2}
    v_lshl_add_u32 v{A_X3}, v{BL}, 2, s84
    v_lshl_add_u32 v{A_X2}, v{BL}, 3, s84
    v_and_b32 v{t}, 31, v0
    v_lshl_add_u32 v{A_X1}, v{t}, 4, s84
    v_lshl_add_u32 v{A_X0}, v{t}, 5, s84
    v_lshlrev_b32 v{t+1}, 4, v{BL}
    v_sub_u32 v{A_KW}, s83, v{t+1}
    v_add_u32 v{A_KW}, 1008, v{A_KW}
    v_lshlrev_b32 v{t+1}, 4, v{t}
    v_sub_u32 v{A_KW32}, s83, v{t+1}
    v_add_u32 v{A_KW32}, 496, v{A_KW32}
    v_and_b32 v{t}, 1, v0
    v_cmp_eq_u32 vcc, 1, v{t}
    v_mov_b32 v{t+1}, 0xffff
    v_mov_b32 v{t+2}, -1
    v_cndmask_b32 v{MSK}, v{t+1}, v{t+2}, vcc
    s_mov_b32 s85, 0xffff
    s_mov_b32 s86, {f2u(1.4426950408889634):#x}
    s_mov_b32 s87, 0x32a57060
    s_mov_b32 s88, {f2u(0.6931471805599453):#x}
    s_mov_b32 s89, 0xffff0000""")

def exp_bf16(p, d, x, t):
    p(f"""v_mul_f32 v{t}, s86, v{x}
    v_fma_f32 v{t+1}, v{x}, s86, -v{t}
    v_exp_f32 v{t}, v{t}
    v_fma_f32 v{t+1}, v{x}, s87, v{t+1}
    v_mul_f32 v{t+1}, s88, v{t+1}
    v_fma_f32 v{t}, v{t}, v{t+1}, v{t}
    v_cvt_pk_bf16_f32 v{t}, v{t}, v{t}
    v_and_b32 v{d}, s89, v{t}""")
def cmul(p, c, a, b):
    p(f"v_pk_mul_f32 {vr(c,2)}, {vr(a,2)}, {vr(b,2)} op_sel:[0,0] op_sel_hi:[0,1]")
    p(f"v_pk_fma_f32 {vr(c,2)}, {vr(a,2)}, {vr(b,2)}, {vr(c,2)} op_sel:[1,1,0] op_sel_hi:[1,0,1] neg_lo:[0,1,0]")
def kgen(p, P, sched):
    E = lambda k, mu: 48 + 4 * (k - 1) + 2 * mu
    E8 = lambda mu: 76 + 2 * mu
    E128 = lambda mu: 80 + 2 * mu
    GA = lambda par, mu: 84 + 4 * par + 2 * mu
    XT = lambda k, mu: 92 + 4 * (k % 2) + 2 * mu
    PK = lambda k: 100 + 2 * (k % 4)
    FB = 108; FA = 140; DT = 172
    t = 40
    p(f"v_lshlrev_b32 v{t+6}, 16, v{P+4}")
    exp_bf16(p, t + 7, t + 6, t)
    p.need([vr(P, 6)])
    if STAMP == 4: stamp(p)
    rho = lambda mu: 92 + mu; th = lambda mu: 94 + mu
    p(f"v_add_f32 v{t+4}, v{t+7}, v{t+7}")
    for mu in range(2):
        up = (lambda d, s_: f"v_lshlrev_b32 v{d}, 16, v{s_}") if mu == 0 else (lambda d, s_: f"v_and_b32 v{d}, s89, v{s_}")
        p(up(t + 6, P))
        exp_bf16(p, t + 5, t + 6, t)
        p(f"v_mul_f32 v{t+5}, v{t+5}, v{t+7}\n v_mul_f32 v{rho(mu)}, s86, v{t+5}")
        p(up(t + 6, P + 1))
        p(f"v_mul_f32 v{t+6}, v{t+6}, v{t+7}\n v_mul_f32 v{th(mu)}, 0.15915494, v{t+6}")
        p(up(t + 5, P + 2)); p(up(t + 6, P + 3))
        p(f"v_mul_f32 v{GA(0,mu)}, v{t+5}, v{t+4}\n v_mul_f32 v{GA(0,mu)+1}, v{t+6}, v{t+4}")
    for pw, dst in ((8, E8), (1, lambda mu: E(1, mu)), (128, E128)):
        for mu in range(2):
            p(f"v_mul_f32 v{t+2*mu}, {f2u(-float(pw)):#x}, v{rho(mu)}\n v_mul_f32 v{t+2*mu+1}, {f2u(float(pw)):#x}, v{th(mu)}")
        for mu in range(2): p(f"v_exp_f32 v{t+2*mu}, v{t+2*mu}\n v_fract_f32 v{t+2*mu+1}, v{t+2*mu+1}")
        for mu in range(2): p(f"v_cos_f32 v{dst(mu)}, v{t+2*mu+1}\n v_sin_f32 v{dst(mu)+1}, v{t+2*mu+1}")
        for mu in range(2): p(f"v_pk_mul_f32 {vr(dst(mu),2)}, {vr(dst(mu),2)}, {vr(t+2*mu,2)} op_sel_hi:[1,0]")
    cnt = [0]; SIDE0 = opt('side0', 36); SIDEN = opt('siden', 2)
    def put(row, src, neg=False):
        k = cnt[0]; cnt[0] += 1
        for mu in range(2):
            a = src(mu)
            p(f"v_cvt_pk_bf16_f32 v{PK(k)+mu}, v{a}, {'-' if neg else ''}v{a+1}")
        p(f"ds_write_b64 v{A_SW}, {vr(PK(k),2)} offset:{row*SRS}")
        for b_ in sched.get(k, []): p.extend(b_)
    p(f"v_mov_b32 v{PK(3)}, 0x3f80\n v_mov_b32 v{PK(3)+1}, 0x3f80\n ds_write_b64 v{A_SW}, {vr(PK(3),2)}")
    put(1, E8, True)
    prev = E8
    for b in range(2, 16):
        cur = (lambda bb: (lambda mu: XT(bb, mu)))(b)
        for mu in range(2): cmul(p, cur(mu), prev(mu), E8(mu))
        put(b, cur, True); prev = cur
    if STAMP == 4: stamp(p)
    for ka in range(8): p(f"ds_read_b128 {vr(FB+4*ka,4)}, v{A_SR} offset:{64*ka}")
    for k in range(2, 8):
        for mu in range(2): cmul(p, E(k, mu), E(k - 1, mu), E(1, mu))
    al = [0]
    def Gcur(mu): return GA(al[0] % 2, mu)
    def Gnext():
        for mu in range(2): cmul(p, GA((al[0] + 1) % 2, mu), GA(al[0] % 2, mu), E128(mu))
        al[0] += 1
    def prod(row, k):
        if k == 0: put(row, Gcur); return
        for mu in range(2): cmul(p, XT(row, mu), Gcur(mu), E(k, mu))
        put(row, lambda mu: XT(row, mu))
    def tile(T):
        for ka in range(8): p(f"ds_read_b128 {vr(FA+4*ka,4)}, v{A_SR} offset:{64*ka}")
        return [f"v_mfma_f32_16x16x32_bf16 {vr(DT+4*T,4)}, {vr(FA+4*ka,4)}, {vr(FB+4*ka,4)}, {'0' if ka == 0 else vr(DT+4*T,4)}" for ka in range(8)]
    for a in range(2):
        for g in range(8): prod(8 * a + g, g)
        Gnext()
    if STAMP == 4: stamp(p)
    mm = tile(0)
    for a in range(2):
        for g in range(4): prod(4 * a + g, 2 * g)
        Gnext()
        if a == 0:
            for x in mm: p(x)
    for a in range(4):
        for g in range(2): prod(8 + 2 * a + g, 4 * g)
        Gnext()
    if STAMP == 4: stamp(p)
    mm = tile(1)
    for a in range(9):
        prod(a, 0)
        if a < 8: Gnext()
        if a == 3:
            for x in mm: p(x)
    if STAMP == 4: stamp(p)
    mm = tile(2)
    p(f"""v_cmp_eq_u32 vcc, 0, v{BL}
    v_lshlrev_b32 v{t}, 16, v{P+5}
    v_cndmask_b32 v{t}, v{BZ}, v{t}, vcc
    v_add_f32 v{DT}, v{DT}, v{t}""")
    for q in range(8): p(f"v_cvt_pk_bf16_f32 v{DT+q}, v{DT+q}, v{DT+q}")
    p.need([vr(FA, 32)])
    p(mm[0]); p(f"ds_write_b128 v{A_T0}, {vr(DT,4)}")
    for x in mm[1:4]: p(x)
    p(f"ds_write_b64 v{A_T1}, {vr(DT+4,2)} offset:1024")
    for x in mm[4:6]: p(x)
    p(f"ds_write_b64 v{A_T1b}, {vr(DT+6,2)} offset:1024")
    for x in mm[6:]: p(x)
    R = FB
    p(f"""ds_read_b128 {vr(R+24,4)}, v{A_X0}
    ds_read_b128 {vr(R+28,4)}, v{A_X0} offset:16
    ds_read_b128 {vr(R+16,4)}, v{A_X1} offset:1024
    ds_read_b32 v{R+20}, v{A_X1} offset:{1024+16}""")
    for q in range(8, 12): p(f"v_cvt_pk_bf16_f32 v{DT+q}, v{DT+q}, v{DT+q}")
    for i in range(4): p(f"ds_write_b32 v{A_T2}, v{DT+8+i} offset:{2048+64*i}")
    p(f"""ds_read_b32 v{R+8}, v{A_X2} offset:{1536+8}
    ds_read_b32 v{R+9}, v{A_X2} offset:{1536+4}
    ds_read_b32 v{R+11}, v{A_X2} offset:{1536}""")
    for r in range(2):
        p(f"ds_read_b32 v{R+4*r}, v{A_X3} offset:{2048+256*r+4}")
        p(f"ds_read_b32 v{R+4*r+2}, v{A_X3} offset:{2048+256*r}\n ds_read_b32 v{R+4*r+3}, v{A_X3} offset:{2048+256*r}")
    p(f"""v_bfi_b32 v{R+12}, s85, v{R+20}, v{R+19}
    v_mov_b32 v{R+13}, v{R+18}
    v_bfi_b32 v{R+14}, s85, v{R+18}, v{R+17}
    v_mov_b32 v{R+15}, v{R+16}
    ds_write_b128 v{A_KW32}, {vr(R+12,4)} offset:3072
    v_bfi_b32 v{R+16}, s85, v{R+31}, v{R+30}
    v_bfi_b32 v{R+17}, s85, v{R+29}, v{R+28}
    v_bfi_b32 v{R+18}, s85, v{R+27}, v{R+26}
    v_bfi_b32 v{R+19}, s85, v{R+25}, v{R+24}
    ds_write_b128 v{A_KW32}, {vr(R+16,4)} offset:3584
    v_bfi_b32 v{R+10}, s85, v{R+9}, v{R+11}
    ds_write_b128 v{A_KW}, {vr(R+8,4)} offset:2048""")
    for r in range(2):
        p(f"v_bfi_b32 v{R+4*r+1}, v{MSK}, v{R+4*r}, v{R+4*r+2}")
        p(f"ds_write_b128 v{A_KW}, {vr(R+4*r,4)} offset:{1024*(1-r)}")

def prefetch1():
    if not opt('pf1', 1): return []
    NG = opt('pfg', 3); B = []; p = Prog()
    decode_ab(p, 's93', 16, 94, 92)
    p("s_add_u32 s93, s94, s92\n s_mul_i32 s93, s93, 3")
    srd(p, 96, P_W, 640 * 3840)
    p(f"""s_mul_i32 s92, s92, 160
    s_lshr_b32 s95, s68, 1
    s_add_u32 s95, s95, 1
    s_mul_i32 s95, s95, 1280
    s_add_u32 s92, s92, s95
    s_andn2_b32 s92, s92, 127
    s_and_b32 s95, s68, 1
    s_lshl_b32 s95, s95, 7
    s_add_u32 s92, s92, s95
    v_mul_u32_u24 v250, 3840, v{BL}
    v_mul_u32_u24 v249, 1280, v{BL}""")
    def g10(p, d, add):
        p(f"""s_add_u32 s{d}, s93, {add}
        s_mul_i32 s95, s{d}, 205
        s_lshr_b32 s95, s95, 11
        s_mul_i32 s95, s95, 10
        s_sub_u32 s{d}, s{d}, s95""")
    for k in range(opt('pf0', 1), NG + 1):
        g10(p, 100, k)
        p(f"s_mul_i32 s100, s100, {64*3840}\n s_add_u32 s100, s100, s92\n buffer_load_dword v254, v250, s[96:99], s100 offen {'nt' if opt('ntw', 0) else ''}")
        B.append(p); p = Prog()
    srd(p, 96, P_X, 2048 * 1280)
    p(f"""s_lshl_b32 s94, s94, 1
    s_and_b32 s95, s68, 1
    s_add_u32 s94, s94, s95
    s_mul_i32 s94, s94, {64*1280}
    s_lshr_b32 s95, s68, 1
    s_add_u32 s93, s93, s95""")
    for k in range(1, NG + 1, 2):
        g10(p, 100, k)
        p(f"s_lshl_b32 s100, s100, 7\n s_add_u32 s100, s100, s94\n buffer_load_dword v254, v249, s[96:99], s100 offen {'nt' if opt('ntx', 0) else ''}")
        B.append(p); p = Prog()
    return B
def prefetch2x():
    if not opt('pf2', 1): return []
    B = []
    for r in range(2):
        a = Prog(); b = Prog()
        a(f"""s_lshr_b32 s92, s2, 3
        s_sub_u32 s92, s92, 16
        s_lshl_b32 s92, s92, 2
        s_add_u32 s92, s92, s68
        s_lshl_b32 s92, s92, 6
        s_add_u32 s92, s92, {4096*r}
        v_add_u32 v250, s92, v{BL}
        v_mul_u32_u24 v249, 6554, v250
        v_lshrrev_b32 v249, 16, v249
        v_mul_u32_u24 v252, 10, v249
        v_sub_u32 v250, v250, v252
        v_mul_u32_u24 v252, 3840, v249
        v_lshl_add_u32 v252, v250, 7, v252""")
        srd(a, 96, P_W, 640 * 3840)
        a("buffer_load_dword v254, v252, s[96:99], 0 offen")
        b(f"""v_mul_u32_u24 v252, 1280, v249
        v_lshl_add_u32 v252, v250, 7, v252""")
        srd(b, 96, P_WO, 640 * 1280)
        b("buffer_load_dword v254, v252, s[96:99], 0 offen")
        B += [a, b]
    return B
def prefetch2():
    if XM: return prefetch2x()
    if not opt('pf2', 1): return []
    a = Prog(); b = Prog()
    a(f"""s_lshr_b32 s92, s2, 3
    s_sub_u32 s92, s92, 16
    s_lshl_b32 s92, s92, 2
    s_add_u32 s92, s92, s68
    s_lshl_b32 s92, s92, 6
    v_add_u32 v250, s92, v{BL}
    v_mul_u32_u24 v249, 13108, v250
    v_lshrrev_b32 v249, 16, v249
    v_mul_u32_u24 v252, 5, v249
    v_sub_u32 v250, v250, v252
    v_mul_u32_u24 v252, 3840, v249
    v_lshl_add_u32 v252, v250, 7, v252
    s_and_b32 s93, s2, 1
    s_mul_i32 s94, s93, 640""")
    srd(a, 96, P_W, 640 * 3840)
    a("buffer_load_dword v254, v252, s[96:99], s94 offen")
    b(f"""s_lshl_b32 s94, s93, 9
    s_lshl_b32 s95, s93, 7
    s_add_u32 s95, s95, 1024
    v_lshlrev_b32 v252, 7, v250
    v_add_u32 v252, s94, v252
    v_mov_b32 v248, s95
    v_cmp_eq_u32 vcc, 4, v250
    v_mul_u32_u24 v249, 1280, v249
    v_cndmask_b32 v252, v252, v248, vcc
    v_add_u32 v252, v252, v249""")
    srd(b, 96, P_WO, 640 * 1280)
    b("buffer_load_dword v254, v252, s[96:99], 0 offen")
    return [a, b]

def role_B():
    p = Prog(); nstamp[0] = 0
    LN, L15, G, Z = BL, B15, BG, BZ
    p("roleB:")
    stamp(p)
    if opt('bm', 1) == 0:
        p("""s_and_b32 s69, s2, 7
        s_mul_i32 s69, s69, 10
        s_lshr_b32 s70, s2, 3
        s_sub_u32 s70, s70, 16
        s_add_u32 s69, s69, s70""")
    else:
        p("""s_and_b32 s71, s2, 7
        s_lshr_b32 s70, s2, 3
        s_sub_u32 s70, s70, 16
        s_lshl_b32 s69, s71, 3
        s_add_u32 s69, s69, s70
        s_lshl_b32 s71, s71, 1
        s_add_u32 s71, s71, s70
        s_add_u32 s71, s71, 56
        s_cmp_ge_u32 s70, 8
        s_cselect_b32 s69, s71, s69""")
    kg_lanes(p)
    p(f"s_lshl_b32 s71, s69, 3\n s_add_u32 s71, s71, s68")
    kg_params(p, 's71', PR)
    pf = prefetch1()[:opt('pfb', 5)]; NOW = opt('pfnow', 5)
    srd(p, S_WSB, P_WS, WS_SIZE)
    token_load(p, S_WSB, Z)
    for b in pf[:NOW]: p.extend(b)
    p(f"""s_lshr_b32 s80, s69, 3
    s_lshl_b32 s39, s80, 12
    s_add_u32 s39, s39, {WS_UF}
    s_lshl_b32 s101, s69, 2
    s_add_u32 s101, s101, s68
    s_lshl_b32 s101, s101, 7
    s_add_u32 s101, s101, {WS_YF}
    s_lshl_b32 s6, s69, 15
    s_lshl_b32 s7, s68, 13
    s_add_u32 s6, s6, s7
    s_add_u32 s6, s6, {WS_YT}
    s_add_u32 s7, s6, 4096
    v_lshlrev_b32 v39, 4, v{LN}
    v_cmp_eq_u32 vcc, 0, v{LN}
    v_mov_b32 v15, {OOB:#x}
    v_cndmask_b32 v15, v15, v{Z}, vcc""")
    tk = Prog(); token_make(tk)
    sched = {30: [tk]}
    for k, b in enumerate(pf[NOW:]): sched.setdefault(opt('pfa', 0) + opt('pfd', 3) * k, []).append(b)
    for k, b in enumerate(prefetch2()): sched.setdefault(opt('pf2a', 30) + 3 * k, []).append(b)
    if not UT:
        p("s_lshl_b32 s80, s69, 4")
        srd(p, S_U, P_U, 0, 's80')
        p(f"""s_sub_u32 s{S_U+2}, {2048*1280}, s80
        v_mul_u32_u24 v6, 1280, v{LN}
        s_and_b32 s90, s69, 7
        s_lshl_b32 s81, s68, 3
        s_add_u32 s90, s90, s81""")
        for i in range(8):
            q = Prog()
            q(f"""s_add_u32 s81, s90, {i}
            s_and_b32 s81, s81, 31
            s_mul_i32 s82, s81, {64*1280}
            s_lshl_b32 s81, s81, 10
            s_add_u32 m0, s81, {B_RAW+256}""")
            q(f"buffer_load_dwordx4 v6, {sr(S_U,4)}, s82 offen lds", tag='raw')
            sched.setdefault(opt('sidef', 10) if i == 0 else min(55, opt('side0', 40) + opt('siden', 2) * i), []).append(q)
    srd(p, S_O, P_OUT, 2048 * 2560)
    if opt('noB', 0): p("s_endpgm")
    kg_setup(p, B_KR, B_SC)
    t = 40
    p(f"""v_mov_b32 v20, 0
    v_mov_b32 v21, 0
    v_mov_b32 v22, 0
    v_mov_b32 v23, 0
    v_lshlrev_b32 v{t}, 4, v{L15}
    ds_write_b128 v{t}, v[20:23] offset:{B_RAW}
    v_and_b32 v{t}, 31, v0
    v_lshl_add_u32 v38, v{t}, 4, s83
    ds_write_b128 v38, v[20:23] offset:4096
    v_lshlrev_b32 v{t+1}, 5, v{L15}
    v_sub_u32 v{A_KB}, s83, v{t+1}
    v_lshl_add_u32 v{A_KB}, v{G}, 4, v{A_KB}
    v_add_u32 v{A_KB}, 480, v{A_KB}""")
    stamp(p)
    kgen(p, PR, sched)
    stamp(p)
    Y = 184; UB = 216
    p(f"""v_and_b32 v17, 31, v0
    v_lshlrev_b32 v17, 7, v17
    s_lshl_b32 s38, s69, 15
    s_lshl_b32 s80, s68, 13
    s_add_u32 s38, s38, s80
    s_add_u32 s38, s38, {WS_UT}
    s_add_u32 s80, s80, {B_RAW+256}""")
    if UT: pollall(p, "b_pu", S_WSB, 's39', 18, 17, opt('uslp', 4))
    stamp(p)
    for i in range(8 if UT else 0):
        p(f"s_add_u32 m0, s80, {1024*i}\n s_nop 0\n buffer_load_dwordx4 v39, {sr(S_WSB,4)}, s38 offen sc1 lds\n s_add_u32 s38, s38, 1024", tag='raw')
    p(f"""v_bfe_u32 v{t}, v0, 2, 2
    v_lshl_add_u32 v{t}, v{G}, 3, v{t}
    v_bfe_u32 v{t+1}, v0, 1, 1
    v_lshl_add_u32 v{t}, v{t+1}, 2, v{t}
    v_lshlrev_b32 v{t}, 4, v{t}
    v_and_b32 v{t+1}, 1, v0
    v_lshl_add_u32 v{t}, v{t+1}, 3, v{t}
    s_lshl_b32 s80, s68, 9
    v_add_u32 v{t}, s80, v{t}
    v_and_b32 v{t+1}, 7, v0
    v_mul_u32_u24 v{t+1}, {2*CP}, v{t+1}
    v_bfe_u32 v{t+2}, v0, 3, 1
    v_lshl_add_u32 v{t+1}, v{t+2}, 3, v{t+1}
    v_lshl_add_u32 v{t+1}, v{G}, 4, v{t+1}
    s_lshl_b32 s80, s68, 6
    s_add_u32 s80, s80, {B_UC}
    v_add_u32 v{t+1}, s80, v{t+1}
    s_cmp_eq_u32 s68, 0
    s_cselect_b32 s80, 2, 0
    v_cmp_gt_u32 vcc, s80, v{G}
    v_mov_b32 v{t+2}, {B_END - 4096}
    s_mul_i32 s81, s68, {2*CP}
    v_cndmask_b32 v{t+3}, v{t+2}, v{t+1}, vcc
    s_add_u32 s81, s81, {B_UC}
    v_and_b32 v{t+4}, 1, v0
    v_mul_u32_u24 v{t+4}, {CP}, v{t+4}
    v_lshrrev_b32 v{t+5}, 1, v{L15}
    v_lshl_add_u32 v{t+5}, v{G}, 2, v{t+5}
    v_lshl_add_u32 v{t+4}, v{t+5}, 2, v{t+4}
    v_add_u32 v{UB}, s81, v{t+4}
    v_add_u32 v{UB+1}, 1024, v{UB}
    v_add_u32 v{UB+2}, 2048, v{UB}
    v_add_u32 v{UB+3}, 3072, v{UB}
    s_mul_i32 s80, s68, {YP}
    v_lshlrev_b32 v{t+4}, 5, v{L15}
    v_lshl_add_u32 v{t+4}, v{G}, 3, v{t+4}
    v_add_u32 v{UB+4}, s80, v{t+4}
    s_lshl_b32 s90, s69, 2
    s_add_u32 s90, s90, s68
    s_lshl_b32 s91, s90, 12
    s_add_u32 s91, s91, {WS_KR}
    s_lshl_b32 s90, s90, 7
    s_add_u32 s90, s90, {WS_KF}
    s_sub_u32 s92, s84, s83
    v_add_u32 v38, s92, v38""")
    p(f"""v_bfe_u32 v224, v0, 2, 2
    v_mul_u32_u24 v224, {YP}, v224
    v_and_b32 v225, 3, v0
    v_lshl_add_u32 v224, v225, 3, v224
    v_lshl_add_u32 v224, v{G}, 5, v224
    s_lshl_b32 s80, s68, 10
    v_add_u32 v224, s80, v224""")
    if YT:
        p(f"""s_lshr_b32 s80, s69, 3
        s_and_b32 s81, s69, 7
        s_lshl_b32 s81, s81, 2
        s_add_u32 s81, s81, s68
        s_lshl_b32 s96, s80, 18
        s_lshl_b32 s82, s81, 10
        s_add_u32 s96, s96, s82
        s_add_u32 s96, s96, {WS_YT}
        s_mul_i32 s97, s81, {64*2560}
        s_lshl_b32 s80, s80, 7
        s_add_u32 s97, s97, s80
        s_add_u32 s97, s97, 1280
        s_mul_i32 s98, s68, 8448
        s_add_u32 s98, s98, {B_UC}
        v_lshrrev_b32 v226, 3, v{LN}
        v_and_b32 v227, 7, v0
        v_lshlrev_b32 v228, 15, v226
        v_lshl_add_u32 v228, v227, 7, v228
        v_mul_u32_u24 v229, 1040, v227
        v_lshl_add_u32 v229, v226, 4, v229
        v_add_u32 v229, s98, v229
        v_mul_u32_u24 v230, 2560, v226
        v_lshl_add_u32 v230, v227, 4, v230
        s_nop 0""")
    p.waitvm('raw'); p("s_waitcnt lgkmcnt(0)\n s_barrier")
    stamp(p)
    p(f"ds_write_b128 v38, v[20:23] offset:4096")
    jobs = [(k, pp) for k in range(17) for pp in range(2)]
    NBUF = 8
    def rdj(n):
        k, pp = jobs[n]; p(f"ds_read_b64_tr_b16 {vr(48+2*(n%NBUF),2)}, v{t} offset:{B_RAW + 16*(1+pp) + 2048*k}")
    def wrj(n):
        k, pp = jobs[n]
        p(f"ds_write_b64 v{t+3 if k == 16 else t+1}, {vr(48+2*(n%NBUF),2)} offset:{pp*CP + 256*k}")
    for n in range(NBUF): rdj(n)
    if YT: p("v_mov_b32 v8, -1\n v_mov_b32 v9, -1\n v_mov_b32 v10, -1\n v_mov_b32 v11, -1")
    for n in range(len(jobs)):
        wrj(n)
        if n + NBUF < len(jobs): rdj(n + NBUF)
        if YT and n % 4 == 1 and n // 4 < 8:
            jj = n // 4; p(f"buffer_store_dwordx4 v[8:11], v39, {sr(S_WSB,4)}, {'s6' if jj < 4 else 's7'} offen offset:{1024*(jj%4)} sc1")
    def fa(b, a): return ar((b % 2) * 64 + 4 * a, 4)
    def fb(b, c): return ar((b % 2) * 64 + 32 + 4 * c, 4)
    def reads(b, kind='ku'):
        q = Prog()
        for a in range(8):
            o = 128 * (a % 2) + 16 * b; r0 = (b % 2) * 64 + 4 * a
            if 'k' in kind: q(f"ds_read_b128 {fb(b,a)}, v{A_KB} offset:{512*(7-a)+64*b}")
            if 'u' in kind:
                q(f"ds_read2_b32 {ar(r0,2)}, v{UB+a//2} offset0:{o} offset1:{o+1}")
                q(f"ds_read2_b32 {ar(r0+2,2)}, v{UB+a//2} offset0:{o+2} offset1:{o+3}")
        return q
    def krdma(tag):
        for i in range(4):
            p(f"s_add_u32 m0, s84, {1024*i}\n s_nop 0\n buffer_load_dwordx4 v39, {sr(S_WSB,4)}, s91 offen sc1 lds\n s_add_u32 s91, s91, 1024", tag=tag)
    p("s_mov_b32 s93, 0\n s_mov_b32 s95, 0\n s_waitcnt lgkmcnt(0)\n s_barrier")
    stamp(p)
    p("b_conv:")
    p.extend(reads(0))
    prs = sorted([(a, c) for c in range(8) for a in range(c + 1)], key=lambda x: (max(x[0], x[1] - x[0]), x[1]))
    EB = opt('eb', 5)
    if opt('cord', 1):
        prs = sorted(prs, key=lambda x: (max(x[0], x[1] - x[0]), x[0] > x[1] - x[0], x[1]))
        if opt('cord', 1) == 2: prs = prs[:-6] + [(0, 6), (1, 7), (6, 6), (0, 7), (6, 7), (7, 7)]
    for b in range(8):
        m = Prog(); seen = set(); lvl = -1
        for a, c in prs:
            first = b == 0 and c not in seen; seen.add(c)
            if max(a, c - a) != lvl and (b == 0 or max(a, c - a) in (0, 4)):
                lvl = max(a, c - a); hi = lvl if b == 0 else lvl + 3
                m.need([fa(b, x) for x in range(lvl, hi + 1)] + [fb(b, x) for x in range(lvl, hi + 1)])
            mfma(m, vr(Y + 4 * c, 4), fa(b, a), fb(b, c - a), '0' if first else None)
        if b == EB: p(f"buffer_load_dword v7, v{Z}, {sr(S_WSB,4)}, s90 offen sc1")
        if b == EB + 1:
            p(f"""v_cmp_eq_u32 vcc, v{V_TOK}, v7
            s_cmp_lg_u32 s93, 0
            s_cselect_b64 s[80:81], 0, -1
            s_and_b64 vcc, vcc, s[80:81]""")
            p("s_cbranch_scc0 b_noearly", tag='keep')
            krdma('offpath')
            p("s_mov_b32 s95, 1", tag='offpath')
            p("b_noearly:")
            if YT: p(f"buffer_load_dword v18, v17, {sr(S_WSB,4)}, s101 offen sc1")
        p.extend(pack(m, [(singles(reads(b + 1)), 2, 30)] if b < 7 else [], cap=4))
    for c in range(8):
        d = 40 + 2 * (c % 4)
        p(f"v_cvt_pk_bf16_f32 v{d}, v{Y+4*c}, v{Y+4*c+1}\n v_cvt_pk_bf16_f32 v{d+1}, v{Y+4*c+2}, v{Y+4*c+3}")
        p(f"ds_write_b64 v{UB+4}, {vr(d,2)} offset:{B_RAW+512*c}")
    p("s_cmp_lg_u32 s93, 0")
    p("s_cbranch_scc1 b_fin", tag='keep')
    stamp(p)
    p(f"""s_mov_b32 s93, 1
    v_add_u32 v{A_KB}, s92, v{A_KB}""")
    for k in range(4): p(f"v_add_u32 v{UB+k}, {8*CP}, v{UB+k}")
    p(f"v_add_u32 v{UB+4}, {4*YP}, v{UB+4}\n s_cmp_eq_u32 s95, 1")
    p("s_cbranch_scc1 b_have", tag='keep')
    p(f"s_mov_b32 s94, {SPIN}")
    p("b_poll:")
    p(f"""buffer_load_dword v7, v{Z}, {sr(S_WSB,4)}, s90 offen sc1
    s_sub_u32 s94, s94, 1
    s_waitcnt vmcnt(0)
    v_cmp_eq_u32 vcc, v{V_TOK}, v7
    s_cmp_eq_u32 s94, 0
    s_cbranch_scc1 b_got
    s_cmp_eq_u64 vcc, 0
    s_cbranch_scc1 b_poll""")
    p("b_got:")
    krdma(None)
    p("b_have:")
    p(f"s_waitcnt vmcnt(0)\n buffer_store_dword v{V_TOK}, v15, {sr(S_WSB,4)}, s101 offen sc1\n s_add_u32 s101, s39, {WS_YF-WS_UF}\n s_branch b_conv")
    p("b_fin:")
    p("s_waitcnt vmcnt(0)")
    stamp(p)
    if not YT:
        p(f"""v_mul_u32_u24 v225, 2560, v{LN}
        s_mul_i32 s80, s68, {512*2560}
        s_lshl_b32 s81, s69, 4
        s_add_u32 s80, s80, s81
        s_add_u32 s80, s80, 1280
        s_waitcnt lgkmcnt(0)
        s_barrier""")
        for it in range(8):
            for h in range(2):
                p(f"ds_read_b64_tr_b16 {vr(56+4*it+2*h,2)}, v224 offset:{B_RAW + h*4*YP + 128*it}")
        for it in range(8):
            p(f"buffer_store_dwordx4 {vr(56+4*it,4)}, v225, {sr(S_O,4)}, s80 offen\n s_add_u32 s80, s80, {64*2560}")
        stamp(p); stamp(p); stamp(p)
        stamp_store(p, S_WSB)
        p("s_endpgm")
        return p
    p(f"v_cmp_eq_u32 vcc, v{V_TOK}, v18\n s_nop 1\n s_cmp_eq_u64 vcc, -1")
    p("s_cbranch_scc1 b_pf_x")
    pollall(p, "b_pf", S_WSB, 's101', 18, 17)
    p(f"s_mov_b32 s94, {SPIN}")
    p("s_waitcnt lgkmcnt(0)\n s_barrier")
    for it in range(8):
        for h in range(2):
            p(f"ds_read_b64_tr_b16 {vr(56+4*it+2*h,2)}, v224 offset:{B_RAW + h*4*YP + 128*it}")
    for it in range(8):
        p(f"buffer_store_dwordx4 {vr(56+4*it,4)}, v39, {sr(S_WSB,4)}, {'s6' if it < 4 else 's7'} offen offset:{1024*(it%4)} sc1")
    stamp(p)
    p("b_yp:")
    p(f"""buffer_load_dword v19, v228, {sr(S_WSB,4)}, s96 offen sc1
    s_sub_u32 s94, s94, 1
    s_waitcnt vmcnt(0)
    v_cmp_ne_u32 vcc, -1, v19
    s_cmp_lt_i32 s94, 1
    s_cbranch_scc1 b_yg
    s_cmp_eq_u64 vcc, -1
    s_cbranch_scc1 b_yg
    s_sleep {opt('yslp', 8)}
    s_branch b_yp""")
    p("b_yg:")
    stamp(p)
    p("s_mov_b32 s82, s96")
    for j in range(8):
        p(f"s_add_u32 m0, s98, {1040*j}\n s_nop 0\n buffer_load_dwordx4 v39, {sr(S_WSB,4)}, s82 offen sc1 lds\n s_add_u32 s82, s82, 32768")
    p("v_mov_b32 v18, 0\n s_waitcnt vmcnt(0)")
    for i in range(8): p(f"ds_read_b128 {vr(56+4*i,4)}, v229 offset:{128*i}")
    for i in range(8): p(f"v_max3_u32 v18, v18, v{56+4*i}, v{57+4*i}\n v_max3_u32 v18, v18, v{58+4*i}, v{59+4*i}")
    p(f"""v_cmp_eq_u32 vcc, -1, v18
    s_cmp_lt_i32 s94, 1
    s_cbranch_scc1 b_yo
    s_cmp_lg_u64 vcc, 0
    s_cbranch_scc1 b_yp""")
    p("b_yo:")
    for i in range(8):
        p(f"buffer_store_dwordx4 {vr(56+4*i,4)}, v230, {sr(S_O,4)}, s97 offen {OPT.get('bst', 'sc1')}\n s_add_u32 s97, s97, {8*2560}")
    stamp(p)
    stamp_store(p, S_WSB)
    p("s_endpgm")
    return p

def role_S():
    p = Prog(); nstamp[0] = 32
    p("roleS:")
    p(f"""s_getpc_b64 s[40:41]
    cpf_here:
    s_sub_u32 s40, s40, cpf_here-{NAME}_kernel
    s_subb_u32 s41, s41, 0
    s_lshr_b32 s42, s2, 3
    s_and_b32 s42, s42, 1
    s_lshl_b32 s42, s42, 15
    v_lshlrev_b32 v8, 7, v0
    v_add_u32 v8, s42, v8
    v_cmp_gt_u32 vcc, code_end-{NAME}_kernel, v8
    v_cndmask_b32 v8, 0, v8, vcc
    global_load_dword v254, v8, s[40:41]""")
    if STAMP: p("v_mov_b32 v255, 0")
    stamp(p)
    p(f"s_sub_u32 s69, s2, 208")
    kg_lanes(p)
    p(f"""s_lshl_b32 s90, s69, 2
    s_add_u32 s90, s90, s68
    s_lshl_b32 s71, s69, 3
    s_add_u32 s71, s71, s68
    s_add_u32 s71, s71, 4""")
    kg_params(p, 's71', PR)
    p(f"s_add_u32 s71, s71, 384\n s_min_u32 s71, s71, 639")
    kg_params(p, 's71', PR + 6)
    srd(p, S_U, P_WS, WS_ZERO_END)
    srd(p, S_O, P_DBG, 256)
    srd(p, S_WSB, P_WS, WS_SIZE)
    token_load(p, S_WSB, BZ)
    p(f"""s_lshl_b32 s70, s69, 12
    v_lshlrev_b32 v6, 4, v0
    v_mov_b32 v20, 0
    v_mov_b32 v21, 0
    v_mov_b32 v22, 0
    v_mov_b32 v23, 0
""")
    p(f"buffer_store_dwordx4 v[20:23], v6, {sr(S_U,4)}, s70 offen sc1", tag='zero')
    srd(p, 96, P_U, 2048 * 1280)
    p(f"""v_lshrrev_b32 v240, 3, v{BL}
    v_mul_u32_u24 v240, 1280, v240
    v_and_b32 v241, 7, v0
    v_xor_b32 v241, v241, v{BG}
    v_lshl_add_u32 v240, v241, 4, v240
    v_xor_b32 v241, 64, v240
    v_add_u32 v241, {8*1280}, v241
    s_lshl_b32 s5, s68, 14""")
    for r in range(2 if UT else 0):
        p(f"""s_add_u32 s80, s90, {192*r}
        s_and_b32 s81, s80, 31
        s_lshr_b32 s82, s80, 5
        s_mul_i32 s81, s81, {64*1280}
        s_lshl_b32 s82, s82, 7
        s_add_u32 s82, s82, s81
        s_cmp_ge_u32 s80, 320
        s_cselect_b32 s82, {0x40000000}, s82""")
        for i in range(8):
            p(f"s_add_u32 m0, s5, {8192*r+1024*i}\n s_nop 0\n buffer_load_dwordx4 v{240+i%2}, s[96:99], s82 offen nt lds", tag=('ut', r))
            if i % 2: p(f"s_add_u32 s82, s82, {16*1280}")
    pfS = prefetch1()[:opt('pfs', 0 if UT else 5)]
    for b in pfS[:opt('pfnow', 5)]: p.extend(b)
    p(f"""s_cmp_lt_u32 s69, {NZERO_WG}
    s_cselect_b32 s4, 0, -1
    v_cmp_eq_u32 vcc, s4, v0
    v_mov_b32 v7, 1
    v_mov_b32 v38, {OOB:#x}
    v_cndmask_b32 v39, v38, v{BZ}, vcc""")
    kg_setup(p, S_KR, S_SC)
    p(f"""v_cmp_eq_u32 vcc, 0, v{BL}
    v_lshlrev_b32 v184, 4, v{BL}
    v_add_u32 v185, s83, v184
    v_cndmask_b32 v38, v38, v{BZ}, vcc
    v_bfe_u32 v242, v0, 1, 3
    v_lshlrev_b32 v242, 4, v242
    v_lshl_add_u32 v242, v{BL}, 7, v242
    v_add_u32 v242, s5, v242""")
    p.waitvm('zero')
    p(f"s_barrier\n buffer_atomic_add v7, v39, {sr(S_O,4)}, 0 offen sc1")
    token_make(p)
    if not UT: p(f"s_mov_b32 s6, {0x40000000}\n s_mov_b32 s7, {0x40000000}")
    for r in range(2 if UT else 0):
        p(f"""s_add_u32 s80, s90, {192*r}
        s_and_b32 s81, s80, 31
        s_lshr_b32 s82, s80, 5
        s_lshl_b32 s81, s81, 10
        s_lshl_b32 s82, s82, 18
        s_add_u32 s82, s82, s81
        s_add_u32 s82, s82, {WS_UT}
        s_lshl_b32 s{6+r}, s80, 7
        s_add_u32 s{6+r}, s{6+r}, {WS_UF}
        s_cmp_ge_u32 s80, 320
        s_cselect_b32 s82, {0x40000000}, s82
        s_cselect_b32 s{6+r}, {0x40000000}, s{6+r}""")
        p.waitvm(('ut', r))
        for j in range(8): p(f"v_xor_b32 v243, {16*j}, v242\n ds_read_b128 {vr(48+32*r+4*j,4)}, v243 offset:{8192*r}")
        for j in range(8): p(f"buffer_store_dwordx4 {vr(48+32*r+4*j,4)}, v184, {sr(S_WSB,4)}, s82 offen sc1\n s_add_u32 s82, s82, 32768")
    stamp(p)
    p("s_kloop:", tag='keep')
    fl = Prog()
    fl(f"""s_waitcnt vmcnt(0)
    buffer_store_dword v{V_TOK}, v38, {sr(S_WSB,4)}, s6 offen sc1
    buffer_store_dword v{V_TOK}, v38, {sr(S_WSB,4)}, s7 offen sc1""")
    sched = {opt('sfl', 24): [fl]}
    for k, b in enumerate(pfS[opt('pfnow', 5):]): sched.setdefault(opt('pfa', 0) + opt('pfd', 3) * k, []).append(b)
    for k, b in enumerate(prefetch2()): sched.setdefault(40 + 3 * k, []).append(b)
    kgen(p, PR, sched)
    for i in range(4): p(f"ds_read_b128 {vr(48+4*i,4)}, v185 offset:{1024*i}")
    p(f"s_lshl_b32 s91, s90, 12\n s_add_u32 s91, s91, {WS_KR}")
    for i in range(4): p(f"buffer_store_dwordx4 {vr(48+4*i,4)}, v184, {sr(S_WSB,4)}, s91 offen offset:{1024*i} sc1")
    p(f"""s_lshl_b32 s6, s90, 7
    s_add_u32 s6, s6, {WS_KF}
    s_mov_b32 s7, s6
    s_add_u32 s90, s90, 192""")
    for k in range(6): p(f"v_mov_b32 v{PR+k}, v{PR+6+k}")
    stamp(p)
    p("s_cmp_lt_u32 s90, 320\n s_cbranch_scc1 s_kloop")
    p(f"s_waitcnt vmcnt(0)\n buffer_store_dword v{V_TOK}, v38, {sr(S_WSB,4)}, s6 offen sc1")
    p("s_cmp_ge_u32 s2, 240")
    stamp(p)
    p("s_cbranch_scc1 s_done")
    srd(p, S_DBG, P_DBG, 256)
    if XM == 0:
        p("""s_and_b32 s72, s2, 7
        s_lshr_b32 s69, s72, 1
        s_lshl_b32 s69, s69, 2
        s_lshr_b32 s73, s2, 3
        s_sub_u32 s73, s73, 26
        s_add_u32 s69, s69, s73
        s_and_b32 s83, s72, 1""")
    else:
        p("""s_and_b32 s69, s2, 7
        s_lshl_b32 s69, s69, 1
        s_lshr_b32 s73, s2, 3
        s_sub_u32 s73, s73, 26
        s_and_b32 s83, s73, 1
        s_lshr_b32 s73, s73, 1
        s_add_u32 s69, s69, s73""")
    p(f"""s_add_u32 s83, s83, 8
    s_lshl_b32 s83, s83, 7
    s_mul_i32 s84, s68, {GR}
    v_and_b32 v{LN}, 63, v0
    v_mov_b32 v{V_Z}, 0""")
    setup_g2(p)
    for i in range(5): unpark(p, f'wo{i}', V_XO + i)
    for G in range(15, 19):
        for b in issue_group(G): p.extend(b)
    p(f"""v_and_b32 v249, 7, v0
    v_lshlrev_b32 v249, 13, v249
    s_lshl_b32 s85, s69, 9
    s_lshl_b32 s81, s68, 7
    s_add_u32 s85, s85, s81
    s_add_u32 s85, s85, {WS_KVF}""")
    pollall(p, "s_pf", S_WS, 's85', 248, 249, opt('slp', 8))
    p("s_branch g2_tail")
    p("s_done:")
    p(f"""s_cmp_lg_u32 s2, {999 if opt('noB', 0) else 255}
    s_cbranch_scc1 s_fin
    s_cmp_lg_u32 s68, 0
    s_cbranch_scc1 s_fin
""")
    for n, (base, cnt, r) in enumerate(((WS_KF, 48, 0), (WS_YF, 80, 0), (WS_YF, 80, 1), (WS_KVF, 128, 0), (WS_KVF, 128, 1))):
        p(f"""v_add_u32 v187, {64*r}, v{BL}
        v_min_u32 v187, {cnt-1}, v187
        v_lshlrev_b32 v187, 9, v187
        s_mov_b32 s91, {base}""")
        pollall(p, f"s_ep{n}", S_WSB, 's91', 186, 187, 16)
    p(f"""s_mov_b32 s4, {WS_EP}
    buffer_store_dword v{V_TOK}, v38, {sr(S_WSB,4)}, s4 offen sc1""")
    p("s_fin:")
    if STAMP:
        stamp_store(p, S_WSB)
    p("done:\n s_endpgm\n code_end:")
    return p

def main():
    LDS = max(A_END + 16, B_END + 4608)
    assert LDS <= 163840, LDS
    ref = open(f"cdna_kernels/{NAME}.s.ref").read().split('\n')
    hdr = [l for l in ref if l.startswith(';') and '@launch' not in l]
    s = '\n'.join(hdr) + f"\n; @launch grid=(256,1,1) block=(256,1,1) lds={LDS}\n"
    s += f""".amdgcn_target "amdgcn-amd-amdhsa--gfx950"
.text
.p2align 12
.globl {NAME}_kernel
.p2align 8
.type {NAME}_kernel,@function
{NAME}_kernel:
"""
    e = Prog()
    e(f"""s_cmp_ge_u32 s2, 256
    s_cbranch_scc1 done""")
    if opt('cpf2', 0):
        e(f"""s_getpc_b64 s[36:37]
        v_lshlrev_b32 v2, 7, v0
        s_cmp_ge_u32 s2, 128
        s_cselect_b32 s38, roleB-{NAME}_kernel, 0
        v_add_u32 v2, s38, v2
        v_min_u32 v2, code_end-{NAME}_kernel-64, v2
        global_load_dword v253, v2, s[36:37]""", tag='offpath')
    e(f"""
    s_load_dwordx16 s[8:23], s[0:1], 0
    s_load_dwordx8 s[24:31], s[0:1], 64
    s_load_dwordx4 s[32:35], s[0:1], 96
    v_lshrrev_b32 v1, 6, v0
    s_nop 0
    v_readfirstlane_b32 s68, v1
    s_cmp_ge_u32 s2, 208
    s_cbranch_scc1 roleS
    s_cmp_ge_u32 s2, 128
    s_cbranch_scc1 roleB""")
    a = role_A()
    e.extend(a)
    L = lower(e) + lower(role_B()) + lower(role_S())
    if opt('align', 1):
        L, nn, npro = align8(L, sizes_of(s + render(L) + ''.join(f'pg{k}:\n' for k in range(NPG))))
        print("align: nops", nn, "promoted", npro)
    if NPG:
        dummy = ''.join(f"pg{k}:\n" for k in range(NPG))
        L, n = page_stubs(L, sizes_of(s + render(L) + dummy), 4096 - 0x300, 'roleB')
        print("page stubs", n)
        assert n == NPG
    s += render(L)
    s += f""".section .rodata,"a"
.p2align 6
.amdhsa_kernel {NAME}_kernel
  .amdhsa_next_free_vgpr 512
  .amdhsa_next_free_sgpr 102
  .amdhsa_accum_offset 256
  .amdhsa_group_segment_fixed_size 0
  .amdhsa_kernarg_size 112
  .amdhsa_user_sgpr_count 2
  .amdhsa_user_sgpr_kernarg_segment_ptr 1
  .amdhsa_system_sgpr_workgroup_id_x 1
.end_amdhsa_kernel
"""
    out = OPT.get('out', f"cdna_kernels/{NAME}.s")
    open(out, 'w').write(s)
    print("LDS", LDS, "A_END", A_END, "B_END", B_END, "lines", s.count('\n'))
main()
```

```python
import sys, struct
from gasm import Prog, finalize, merge, spread, singles, pack, bundles, lower, render, sizes_of, align8, page_stubs
NAME = "concat_heads__linear_kernel_hedgehog__ssm_conv_s4d__prompt"
OPT = dict(a.split('=') for a in sys.argv[1:] if '=' in a)
def opt(k, d): return type(d)(OPT.get(k, d))
STAMP = opt('stamp', 0)
ROT = opt('rot', 2)
def f2u(x): return struct.unpack('<I', struct.pack('<f', x))[0]
def vr(a, n): return f"v[{a}:{a+n-1}]" if n > 1 else f"v{a}"
def ar(a, n): return f"a[{a}:{a+n-1}]" if n > 1 else f"a{a}"
def sr(a, n): return f"s[{a}:{a+n-1}]" if n > 1 else f"s{a}"
def magic(d): return (2**32 + d - 1) // d

WS_KV = 0; WS_ZERO_END = 32 * 4096; WS_KVF = WS_ZERO_END; WS_KF = WS_KVF + 65536; WS_UF = WS_KF + 40960; WS_YF = WS_UF + 40960; WS_EP = WS_YF + 40960
WS_O = 262144; WS_STAMP = 4 << 20; WS_SIZE = 8 << 20
NSPARE = 48
NZERO_WG = 32
assert WS_EP + 128 <= WS_O
V_TOK = 253
P_X, P_W, P_PHI, P_WO, P_U, P_LA, P_AI, P_CR, P_CI, P_LDT, P_DS, P_OUT, P_DBG, P_WS = [8 + 2 * i for i in range(14)]
OOB = 0x80000000
SPIN = 400000

def srd(p, s, ptr, size, off=None):
    if off is None:
        p(f"s_mov_b32 s{s}, s{ptr}\n s_mov_b32 s{s+1}, s{ptr+1}")
    else:
        p(f"s_add_u32 s{s}, s{ptr}, {off}\n s_addc_u32 s{s+1}, s{ptr+1}, 0")
    p(f"s_mov_b32 s{s+2}, {size}\n s_mov_b32 s{s+3}, 0x20000")

nstamp = [0]
def stamp(p, sreg_base=96):
    if not STAMP: return
    k = nstamp[0]; nstamp[0] += 1
    if k in (0, 32): p(f"s_getreg_b32 s36, hwreg(HW_REG_HW_ID)\n v_writelane_b32 v255, s36, 60\n s_getreg_b32 s36, hwreg(HW_REG_XCC_ID)\n v_writelane_b32 v255, s36, 59")
    if k == 0: p(f"s_memrealtime s[36:37]\n s_waitcnt lgkmcnt(0)\n v_writelane_b32 v255, s36, 62")
    p(f"s_memtime s[36:37]\n s_waitcnt lgkmcnt(0)\n v_writelane_b32 v255, s36, {k}")
def stamp_store(p, wsrd):
    if not STAMP: return
    if opt('dbgst', 0):
        if wsrd != S_WS: return
        srd(p, 96, P_DBG, 256)
        p(f"""s_waitcnt vmcnt(0)
        s_memtime s[36:37]
        s_waitcnt lgkmcnt(0)
        v_writelane_b32 v255, s36, 14
        s_cmp_ge_u32 s2, 128
        s_cbranch_scc1 dbg_skip
        v_readlane_b32 s36, v255, 0
        v_and_b32 v250, 63, v0
        v_subrev_u32 v255, s36, v255
        v_lshlrev_b32 v249, 2, v250
        v_mov_b32 v248, {OOB:#x}
        v_cmp_gt_u32 vcc, 15, v250
        v_cndmask_b32 v249, v248, v249, vcc
        buffer_atomic_umax v255, v249, s[96:99], 4 offen sc1
        dbg_skip:""")
        return
    p(f"s_waitcnt vmcnt(0)\n s_memtime s[36:37]\n s_waitcnt lgkmcnt(0)\n v_writelane_b32 v255, s36, 61\n s_memrealtime s[36:37]\n s_waitcnt lgkmcnt(0)\n v_writelane_b32 v255, s36, 63")
    p(f"""s_lshl_b32 s36, s2, 2
    s_add_u32 s36, s36, s68
    s_lshl_b32 s36, s36, 8
    s_add_u32 s36, s36, {WS_STAMP}
    v_and_b32 v250, 63, v0
    v_lshlrev_b32 v250, 2, v250
    buffer_store_dword v255, v250, {sr(wsrd,4)}, s36 offen""")

def token_load(p, wsrd, vz):
    p(f"s_mov_b32 s4, {WS_EP}\n buffer_load_dword v{V_TOK}, v{vz}, {sr(wsrd,4)}, s4 offen sc1")
def token_make(p):
    p(f"""s_mov_b32 s4, 0x9e3779b1
    v_mul_lo_u32 v{V_TOK}, v{V_TOK}, s4
    v_add_u32 v{V_TOK}, 0x7f4a7c15, v{V_TOK}""")
def token_seen(p, dsrd, vt):
    p(f"""v_cmp_eq_u32 vcc, 0, v0
    v_mov_b32 v{vt}, {OOB:#x}
    v_mov_b32 v{V_CNT}, 1
    v_cndmask_b32_e64 v{vt}, v{vt}, 0, vcc
    buffer_atomic_add v{V_CNT}, v{vt}, {sr(dsrd,4)}, 8 offen sc1""")
def spinpoll(p, name, srdreg, soff, vt, va, cmp, init, period=None):
    period = period or opt('period', 24)
    p(f"v_mov_b32 v{vt}, {init}" if init is not None else f"v_not_b32 v{vt}, v{V_TOK}", tag='offpath')
    p(f"{name}:")
    p(f"""buffer_load_dword v{vt}, v{va}, {sr(srdreg,4)}, {soff} offen sc1
    s_mov_b32 s95, {period}""", tag='offpath')
    p(f"{name}_i:")
    p(f"""{cmp}
    s_sub_u32 s94, s94, 1
    s_cbranch_scc1 {name}_x
    s_cmp_eq_u64 vcc, -1
    s_cbranch_scc1 {name}_x
    s_sub_u32 s95, s95, 1
    s_cbranch_scc0 {name}_i
    s_waitcnt vmcnt(24)
    s_branch {name}""", tag='offpath')
    p(f"{name}_x:")
def pollall(p, name, srdreg, soff, vt, va, slp=0):
    p(f"s_mov_b32 s94, {SPIN}")
    p(f"{name}:")
    p(f"""buffer_load_dword v{vt}, v{va}, {sr(srdreg,4)}, {soff} offen sc1
    s_sub_u32 s94, s94, 1
    s_waitcnt vmcnt(0)
    v_cmp_eq_u32 vcc, v{V_TOK}, v{vt}
    s_cmp_eq_u32 s94, 0""")
    p(f"s_cbranch_scc1 {name}_x", tag='keep')
    p(f"s_cmp_eq_u64 vcc, -1")
    if slp:
        p(f"s_cbranch_scc1 {name}_x", tag='keep')
        p(f"s_sleep {slp}\n s_branch {name}", tag='keep')
    else: p(f"s_cbranch_scc0 {name}", tag='keep')
    p(f"{name}_x:")

A_RING = 0; NSLOT = 16; GR = 5120
A_PHIK = NSLOT * GR; PHI_RS = 352
A_VST = A_PHIK + 128 * PHI_RS
A_BD = A_VST + 20480
A_END = A_BD + 12800
A_KVIMG = A_PHIK
S_X, S_W, S_WO, S_WS, S_OUT, S_DBG, S_PHI = 40, 44, 48, 52, 56, 60, 64
V_XO = 1
V_XD = 5
V_WD = 9
V_TA = 14
V_Z = 22; V_T = 23
V_WF = 32
V_KA = 112; V_VA = 152; V_PA = 192; V_X = 240
OLD = 'sc1' if opt('osc1', 0) else ''

def mfma(p, d, a, b, c=None):
    p(f"v_mfma_f32_16x16x32_bf16 {d}, {a}, {b}, {d if c is None else c}")
def mfma32(p, d, a, b, c=None):
    p(f"v_mfma_f32_32x32x16_bf16 {d}, {a}, {b}, {d if c is None else c}")

LN = V_T; t = V_T + 1
parked = {}
def park(p, name, v):
    if name not in parked: parked[name] = 204 + len(parked)
    assert parked[name] < 256
    p(f"v_accvgpr_write_b32 a{parked[name]}, v{v}")
def unpark(q, name, v): q(f"v_accvgpr_read_b32 v{v}, a{parked[name]}")

def trbase(p, d, rowk, rowrho, extra=0):
    p(f"""v_bfe_u32 v{t}, v0, 5, 1
    v_mul_u32_u24 v{t}, {rowk}, v{t}
    v_bfe_u32 v{t+1}, v0, 2, 2
    v_mul_u32_u24 v{t+1}, {rowrho}, v{t+1}
    v_bfe_u32 v{t+2}, v0, 4, 1
    v_lshl_add_u32 v{t}, v{t+2}, 5, v{t}
    v_and_b32 v{t+2}, 3, v0
    v_lshl_add_u32 v{t}, v{t+2}, 3, v{t}
    v_add_u32 v{d}, v{t}, v{t+1}""")
    if extra: p(f"v_add_u32 v{d}, {extra}, v{d}")

def setup_g2(p):
    srd(p, S_WO, P_WO, 640 * 1280)
    srd(p, S_WS, P_WS, WS_SIZE)
    p(f"s_mul_i32 s78, s69, {128*2560}\n s_add_u32 s78, s78, s83")
    srd(p, S_OUT, P_OUT, 0, 's78')
    p(f"s_sub_u32 s{S_OUT+2}, {2048*2560}, s78")
    p(f"""s_lshr_b32 s79, s68, 1
    s_mul_i32 s79, s79, {80*1280}
    s_add_u32 s79, s79, s83
    s_and_b32 s85, s68, 1
    s_mul_i32 s85, s85, 40
    s_lshl_b32 s78, s69, 2
    s_add_u32 s78, s78, s68
    s_mul_i32 s78, s78, 40960
    s_add_u32 s92, s78, {WS_O}""")
    for i in range(5):
        p(f"""v_lshrrev_b32 v{t}, 3, v{LN}
        v_add_u32 v{t}, s85, v{t}
        v_add_u32 v{t}, {8*i}, v{t}
        v_lshrrev_b32 v{t+1}, 4, v{t}
        v_and_b32 v{t+2}, 7, v{t}
        v_lshl_add_u32 v{t+1}, v{t+1}, 3, v{t+2}
        v_bfe_u32 v{t+2}, v{t}, 3, 1
        v_mad_u32_u24 v{t+2}, v{t+2}, 20, v{t+1}
        v_add_u32 v{t+3}, 20, v{t+2}
        v_cmp_le_u32 vcc, 20, v{t+1}
        v_cndmask_b32 v{t+2}, v{t+2}, v{t+3}, vcc
        v_mul_u32_u24 v{t+2}, 1280, v{t+2}
        v_bfe_u32 v{t}, v{t}, 1, 1
        v_lshlrev_b32 v{t}, 2, v{t}
        v_and_b32 v{t+1}, 7, v0
        v_xor_b32 v{t}, v{t}, v{t+1}
        v_lshl_add_u32 v{t}, v{t}, 4, v{t+2}""")
        park(p, f'wo{i}', t)
    trbase(p, t + 3, 8 * 128, 128)
    p(f"""v_bfe_u32 v{t}, v0, 3, 1
    v_lshl_add_u32 v{t+3}, v{t}, 6, v{t+3}""")
    park(p, 'two', t + 3)
    p(f"""s_add_u32 s78, s84, {A_VST}
    v_and_b32 v{t}, 31, v0
    v_mul_u32_u24 v{t}, 144, v{t}
    v_bfe_u32 v{t+1}, v0, 5, 1
    v_lshl_add_u32 v{t}, v{t+1}, 3, v{t}
    v_add_u32 v{t}, s78, v{t}""")
    park(p, 'outw', t)
    p(f"""v_lshrrev_b32 v{t}, 3, v{LN}
    v_and_b32 v{t+1}, 7, v0
    v_lshlrev_b32 v{t+1}, 4, v{t+1}
    v_mul_u32_u24 v{t+2}, 144, v{t}
    v_add3_u32 v{t+2}, v{t+2}, v{t+1}, s78
    v_mul_u32_u24 v{t}, 2560, v{t}
    v_add_u32 v{t}, v{t}, v{t+1}""")
    park(p, 'outr', t + 2); park(p, 'outg', t)

def dma_bundles(G, hdr, items):
    B = []
    hdr(items[0][0]); B.append(hdr)
    for k, (m0, ld) in enumerate(items):
        q = Prog(); q(ld, tag=('dma', G))
        if k + 1 < len(items): q(items[k + 1][0])
        B.append(q)
    return B
def issue_group(G):
    slotbase = A_RING + (G % 4) * 4 * GR
    h = Prog()
    if G < 10:
        h(f"s_mul_i32 s86, s80, {64*3840}\n s_add_u32 s86, s86, s82\n s_lshl_b32 s81, s80, 7")
        h(f"s_add_u32 s80, s80, 1\n s_cmp_eq_u32 s80, 10\n s_cselect_b32 s80, 0, s80")
        sd = S_W
    elif G < 15:
        h(f"""s_lshl_b32 s86, s71, 1
        s_add_u32 s86, s86, s68
        s_add_u32 s86, s86, {4*(G-10)}
        s_sub_u32 s74, s86, 20
        s_cmp_ge_u32 s86, 20
        s_cselect_b32 s86, s74, s86
        s_mul_i32 s86, s86, {32*3840}
        s_add_u32 s86, s86, s75""")
        sd = S_W
    else:
        h(f"s_add_u32 s86, s79, {(G%4)*160*1280}")
        sd = S_WO
    W = [(f"s_add_u32 m0, s84, {slotbase + 1024*i}", f"buffer_load_dwordx4 v{V_QD[i] if 10 <= G < 15 else (V_WD+i if G < 10 else V_XO+i)}, {sr(sd,4)}, s86 offen {'nt' if opt('ntw', 0) else ''} lds") for i in range(5)]
    if G < 10:
        X = [(f"s_add_u32 m0, s87, {(G%4)*4096 + 1024*r}", f"buffer_load_dwordx4 v{V_XD+r}, {sr(S_X,4)}, s81 offen {'nt' if opt('ntx', 0) else ''} lds") for r in range(4)]
        items = [W[0], X[0], W[1], X[1], W[2], X[2], W[3], X[3], W[4]]
    else: items = W
    return dma_bundles(G, h, items)
V_QD = [21, 29, 30, 31, 252]

OF = lambda n: 88 + 4 * n
G2ACC = 56
def gemm2_tail(p):
    F = V_WF
    p("g2_tail:")
    unpark(p, 'two', V_TA)
    p(f"""v_xor_b32 v{V_TA+1}, 64, v{V_TA}
    v_add_u32 v{V_TA+2}, {8*GR}, v{V_TA}
    v_add_u32 v{V_TA+3}, {8*GR}, v{V_TA+1}
    v_lshlrev_b32 v{t+2}, 4, v{LN}
    v_lshrrev_b32 v{t+4}, 3, v{LN}
    v_mul_u32_u24 v{t+4}, 5120, v{t+4}
    v_and_b32 v{t}, 7, v0
    v_lshl_add_u32 v{t+4}, v{t}, 7, v{t+4}
    s_mov_b32 s94, {SPIN}
    s_add_u32 s93, s92, 4096
    s_barrier""")
    unpark(p, 'outw', t); unpark(p, 'outr', t + 1); unpark(p, 'outg', t + 3)
    stamp(p)
    def reads(n):
        hq, pp = divmod(n, 5); q = Prog(); fb = F + (n % 3) * 8
        off = hq * 10240 + pp * 2048; hi = 0
        if hq >= 4: off -= 8 * GR; hi = 2
        for T in range(2):
            for h in range(2):
                q(f"ds_read_b64_tr_b16 {vr(fb+4*T+2*h,2)}, v{V_TA+hi+T} offset:{off + 512*h}")
        return q
    p("g2_retry:")
    p.extend(reads(0)); p.extend(reads(1))
    p(f"s_mov_b32 s81, s92\n v_mov_b32 v248, 0")
    def oload(n):
        q = Prog(); hq, pp = divmod(n, 5)
        if pp == 4: q(f"s_add_u32 s85, s81, 4096")
        q(f"buffer_load_dwordx4 {vr(OF(n),4)}, v{t+2}, {sr(S_WS,4)}, {'s85' if pp == 4 else 's81'} offen offset:{1024*(pp%4)} sc1")
        if pp == 4: q("s_add_u32 s81, s81, 5120")
        return q
    PRE = opt('opre', 10); SPEC = opt('spec', 0)
    p(f"""buffer_load_dword v249, v{t+4}, {sr(S_WS,4)}, s93 offen sc1
    s_waitcnt vmcnt(0)
    v_cmp_ne_u32 vcc, -1, v249
    s_nop 1
    s_cmp_eq_u64 vcc, -1""")
    p("s_cbranch_scc1 g2_now", tag='keep')
    p("g2_poll:")
    if opt('gslp', 6): p(f"s_sleep {opt('gslp', 6)}")
    p(f"""buffer_load_dword v249, v{t+4}, {sr(S_WS,4)}, s93 offen sc1
    s_mov_b32 s81, s92
    s_sub_u32 s94, s94, 1""")
    if SPEC:
        for n in range(PRE): p.extend(oload(n))
    p(f"""v_cmp_ne_u32 vcc, -1, v249
    s_cmp_lt_i32 s94, 1""")
    p(f"s_cbranch_scc1 {'g2_go' if SPEC else 'g2_now'}", tag='keep')
    p("s_cmp_eq_u64 vcc, -1")
    p("s_cbranch_scc0 g2_poll", tag='keep')
    if SPEC: p("s_branch g2_go", tag='keep')
    p("g2_now:")
    for n in range(PRE):
        q = oload(n)
        if SPEC:
            for i_ in q.L: i_.tag = 'offpath'
        p.extend(q)
    p("g2_go:")
    stamp(p)
    for n in range(40):
        fb = F + (n % 3) * 8
        mm = Prog(); mm.need([vr(fb, 8), vr(OF(n), 4)])
        for T in range(2): mfma32(mm, vr(G2ACC + 16 * T, 16), vr(fb + 4 * T, 4), vr(OF(n), 4), '0' if n == 0 else None)
        st = []
        if n + 2 < 40: st.append((singles(reads(n + 2)), 0, 2))
        if n + PRE < 40: st.append(([oload(n + PRE)], 0, 1))
        c = Prog(); c(f"v_max3_u32 v248, v248, v{OF(n)}, v{OF(n)+1}\n v_max3_u32 v248, v248, v{OF(n)+2}, v{OF(n)+3}")
        st.append((singles(c), 1, 2))
        p.extend(pack(mm, st, cap=32))
    p(f"""v_cmp_eq_u32 vcc, -1, v248
    s_mul_i32 s78, s68, {32*2560}
    s_cmp_lt_i32 s94, 1""")
    p("s_cbranch_scc1 g2_out", tag='keep')
    p("s_sub_u32 s94, s94, 1\n s_nop 7\n s_nop 7")
    p("s_cbranch_vccnz g2_retry", tag='keep')
    p("g2_out:")
    stamp(p)
    for T in range(2):
        for j in range(4):
            x = G2ACC + 16 * T + 4 * j; o = 88 + 8 * T + 2 * j
            p(f"v_cvt_pk_bf16_f32 v{o}, v{x}, v{x+1}\n v_cvt_pk_bf16_f32 v{o+1}, v{x+2}, v{x+3}")
            p(f"ds_write_b64 v{t}, {vr(o,2)} offset:{64*T+16*j}")
    for i in range(4): p(f"ds_read_b128 {vr(104+4*i,4)}, v{t+1} offset:{8*144*i}")
    for i in range(4):
        p(f"buffer_store_dwordx4 {vr(104+4*i,4)}, v{t+3}, {sr(S_OUT,4)}, s78 offen {OPT.get('ast', 'sc1')}")
        if i < 3: p(f"s_add_u32 s78, s78, {8*2560}")
    stamp(p)
    stamp_store(p, S_WS)
    p("s_endpgm")

def divc(p, d, x, c):
    m, sh = {10: (205, 11), 20: (205, 12), 12: (171, 11), 5: (205, 10), 100: (41, 12)}[c]
    p(f"v_mul_u32_u24 v{d}, {m}, v{x}\n v_lshrrev_b32 v{d}, {sh}, v{d}")

V_PO = 160
V_D = 200
NPG = opt('npg', 6); XM = opt('xm', 0); YT = opt('yt', 1); UT = opt('ut', 0)
def decode_ab(p, tmp, sub, sb, hg):
    p(f"s_lshr_b32 {tmp}, s2, 3")
    if sub: p(f"s_sub_u32 {tmp}, {tmp}, {sub}")
    if XM == 0:
        p(f"""s_and_b32 s{sb}, s2, 6
        s_lshl_b32 s{sb}, s{sb}, 1
        s_and_b32 s{hg}, s2, 1
        s_lshl_b32 s{hg}, s{hg}, 2
        s_and_b32 s4, {tmp}, 3
        s_add_u32 s{hg}, s{hg}, s4
        s_lshr_b32 {tmp}, {tmp}, 2
        s_add_u32 s{sb}, s{sb}, {tmp}""")
    else:
        p(f"""s_and_b32 s{sb}, s2, 7
        s_lshl_b32 s{sb}, s{sb}, 1
        s_and_b32 s{hg}, {tmp}, 7
        s_lshr_b32 {tmp}, {tmp}, 3
        s_add_u32 s{sb}, s{sb}, {tmp}""")
def role_A():
    p = Prog(); nstamp[0] = 0
    p("roleA:")
    if opt('cpf3', 0):
        p(f"""s_cmp_lg_u32 s68, 0
        s_cbranch_scc1 a_c3
        s_getpc_b64 s[4:5]
        v_lshlrev_b32 v2, 7, v0""")
        for k in range(opt('cpf3', 0)):
            p(f"s_add_u32 s4, s4, {0xc80 if k == 0 else 8192}\n s_addc_u32 s5, s5, 0\n global_load_dword v254, v2, s[4:5]")
        p("a_c3:")
    stamp(p)
    decode_ab(p, 's73', 0, 69, 70)
    if ROT == 2:
        p("""s_add_u32 s71, s69, s70
        s_mul_i32 s71, s71, 3
        s_mul_i32 s74, s71, 205
        s_lshr_b32 s74, s74, 11
        s_mul_i32 s74, s74, 10
        s_sub_u32 s71, s71, s74""")
    else:
        p(f"s_mul_i32 s71, s71, {5 if ROT else 0}\n s_add_u32 s71, s71, {1 if ROT else 0}\n s_lshr_b32 s71, s71, 1")
    p(f"""v_and_b32 v{LN}, 63, v0
    v_mov_b32 v{V_Z}, 0""")
    p(f"""s_lshl_b32 s76, s68, 5
    v_lshrrev_b32 v{t}, 3, v{LN}
    v_add_u32 v{t}, s76, v{t}
    v_mul_u32_u24 v{t}, 1280, v{t}
    v_and_b32 v{t+1}, 7, v0
    v_bfe_u32 v{t+2}, v0, 4, 2
    v_xor_b32 v{t+1}, v{t+1}, v{t+2}
    v_lshl_add_u32 v{V_XD}, v{t+1}, 4, v{t}
    v_xor_b32 v{V_XD+1}, 64, v{V_XD}
    v_add_u32 v{V_XD+1}, {8*1280}, v{V_XD+1}
    v_add_u32 v{V_XD+2}, {16*1280}, v{V_XD}
    v_add_u32 v{V_XD+3}, {16*1280}, v{V_XD+1}""")
    p(f"s_movk_i32 s78, 1120")
    for i in range(5):
        p(f"v_add_u32 v{t}, {64*i}, v{LN}")
        divc(p, t + 1, t, 20)
        p(f"""v_mul_u32_u24 v{t+2}, 20, v{t+1}
        v_sub_u32 v{t}, v{t}, v{t+2}
        v_mul_u32_u24 v{t+1}, 3840, v{t+1}
        v_cmp_le_u32 vcc, 10, v{t}
        v_lshl_add_u32 v{t+1}, v{t}, 4, v{t+1}
        v_add_u32 v{t+2}, s78, v{t+1}
        v_cndmask_b32 v{V_WD+i}, v{t+1}, v{t+2}, vcc""")
    p(f"""s_mov_b32 s80, s71
    s_mul_i32 s75, s70, 160
    s_mul_i32 s82, s68, {16*3840}
    s_add_u32 s82, s82, s75
    s_add_u32 s82, s82, 1280
    s_lshl_b32 s83, s70, 7
    s_mul_i32 s84, s68, {GR}
    s_lshl_b32 s87, s68, 14
    s_add_u32 s87, s87, {A_PHIK}
    s_mul_i32 s78, s69, {128*1280}""")
    srd(p, S_X, P_X, 128 * 1280, 's78')
    srd(p, S_W, P_W, 640 * 3840)
    su = Prog()
    trbase(su, V_TA, 8 * 320, 320)
    su(f"""v_add_u32 v{V_TA+1}, {8*GR}, v{V_TA}
    v_and_b32 v{t}, 31, v0
    v_bfe_u32 v{t+1}, v0, 1, 3
    v_bfe_u32 v{t+2}, v0, 5, 1
    v_xor_b32 v{t+1}, v{t+1}, v{t+2}
    v_lshlrev_b32 v{t+1}, 4, v{t+1}
    v_lshl_add_u32 v{t}, v{t}, 7, v{t+1}
    v_add_u32 v{V_XO}, s87, v{t}
    v_xor_b32 v{V_XO+1}, 32, v{V_XO}
    v_xor_b32 v{V_XO+2}, 64, v{V_XO}
    v_xor_b32 v{V_XO+3}, 96, v{V_XO}""")
    su(f"""v_mov_b32 v{V_X+4}, 0
    v_mov_b32 v{V_X+5}, 0
    v_mov_b32 v{V_X+6}, 0
    v_mov_b32 v{V_X+7}, 0
    v_lshlrev_b32 v{t}, 4, v0
    v_add_u32 v{t}, {A_BD}, v{t}
    v_min_u32 v{t+1}, {A_BD+496}, v{t}
    ds_write_b128 v{t}, {vr(V_X+4,4)}
    ds_write_b128 v{t}, {vr(V_X+4,4)} offset:4096
    ds_write_b128 v{t}, {vr(V_X+4,4)} offset:8192
    ds_write_b128 v{t+1}, {vr(V_X+4,4)} offset:12288""")
    L2E = 1.4426950408889634
    su(f"s_mov_b32 s88, {f2u(L2E):#x}\n s_mov_b32 s89, {f2u(L2E):#x}")
    for r in range(2):
        su(f"v_add_u32 v{t}, {256*r}, v0")
        divc(su, t + 1, t, 5); divc(su, t + 2, t, 100)
        su(f"""v_mul_u32_u24 v{t+1}, 120, v{t+1}
        v_mad_u32_u24 v{t+1}, v{t+2}, 40, v{t+1}
        v_lshl_add_u32 v{t+1}, v{t}, 3, v{t+1}
        v_add_u32 v{V_X+8+r}, {A_BD}, v{t+1}""")
    su(f"""v_mov_b32 v{t+1}, {A_END}
    v_cmp_gt_u32 vcc, 400, v{t}
    v_cndmask_b32 v{V_X+9}, v{t+1}, v{V_X+9}, vcc""")
    srd(su, S_DBG, P_DBG, 256)
    for i in range(5):
        su(f"v_add_u32 v{t}, {64*i}, v{LN}")
        divc(su, t + 1, t, 10)
        su(f"""v_mul_u32_u24 v{t+2}, 10, v{t+1}
        v_sub_u32 v{t}, v{t}, v{t+2}
        v_and_b32 v{t+2}, 24, v{t+1}
        v_and_b32 v{t+3}, 1, v{t+1}
        v_lshl_add_u32 v{t+2}, v{t+3}, 2, v{t+2}
        v_bfe_u32 v{t+3}, v{t+1}, 1, 2
        v_add_u32 v{t+2}, v{t+2}, v{t+3}
        v_mul_u32_u24 v{t+2}, 3840, v{t+2}
        v_lshl_add_u32 v{V_QD[i]}, v{t}, 4, v{t+2}""")
    su(f"""v_bfe_u32 v{t}, v0, 5, 1
    v_bfe_u32 v{t+1}, v0, 2, 2
    v_lshl_add_u32 v{t}, v{t}, 2, v{t+1}
    v_mul_u32_u24 v{t}, 160, v{t}
    v_and_b32 v{t+1}, 1, v0
    v_mad_u32_u24 v{t}, v{t+1}, 40, v{t}
    v_bfe_u32 v{t+1}, v0, 4, 1
    v_bfe_u32 v{t+2}, v0, 1, 1
    v_lshl_add_u32 v{t+1}, v{t+1}, 1, v{t+2}
    v_lshl_add_u32 v{t}, v{t+1}, 3, v{t}
    v_add_u32 v18, {A_BD}, v{t}
    v_cmp_eq_u32 vcc, 0, v{t+1}
    v_add_u32 v19, 32, v18
    v_add_u32 v{t+2}, 72, v18
    v_cndmask_b32 v19, v{t+2}, v19, vcc
    v_cmp_gt_u32 vcc, 2, v{t+1}
    v_add_u32 v20, 104, v18
    v_nop
    v_cndmask_b32 v20, v18, v20, vcc""".replace("    v_nop\n", ""))
    trbase(su, t + 3, 8 * 160, 320); park(su, 'tq', t + 3)
    a0 = V_PA
    su(f"""v_and_b32 v{t}, 31, v0
    v_add_u32 v{t}, s76, v{t}
    v_bfe_u32 v{t+1}, v0, 5, 1
    v_mul_u32_u24 v{t+2}, {PHI_RS}, v{t}
    v_add_u32 v{t+2}, {A_PHIK}, v{t+2}
    v_bfe_u32 v{t+3}, v0, 2, 1
    v_mul_u32_u24 v{t+4}, 5, v{t+1}
    v_xor_b32 v{a0}, v{t+4}, v{t+3}
    v_lshl_add_u32 v{a0}, v{a0}, 4, v{t+2}
    v_add_u32 v{t+4}, 1, v{t+4}
    v_xor_b32 v{a0+1}, v{t+4}, v{t+3}
    v_lshl_add_u32 v{a0+1}, v{a0+1}, 4, v{t+2}
    v_mul_u32_u24 v{t}, 160, v{t}
    v_add_u32 v{t}, {A_VST}, v{t}
    v_bfe_u32 v{t+3}, v0, 2, 2
    v_xor_b32 v{t+3}, v{t+3}, v{t+1}
    v_lshl_add_u32 v{a0+2}, v{t+3}, 3, v{t}
    v_xor_b32 v{t+3}, 2, v{t+3}
    v_lshl_add_u32 v{a0+3}, v{t+3}, 3, v{t}""")
    park(su, 'phiw0', a0); park(su, 'phiw1', a0 + 1); park(su, 'vw0', a0 + 2); park(su, 'vw1', a0 + 3)
    su(f"""v_bfe_u32 v{t}, v0, 2, 4
    v_bfe_u32 v{t+1}, v0, 4, 2
    s_mul_i32 s78, s68, 5
    v_bfe_u32 v{t+2}, v0, 1, 1
    v_add_u32 v{t+2}, s78, v{t+2}
    v_and_b32 v{t+3}, 1, v{t+1}
    v_xor_b32 v{t+2}, v{t+2}, v{t+3}
    v_and_b32 v{t+3}, 1, v0
    v_lshlrev_b32 v{t+3}, 3, v{t+3}
    v_lshl_add_u32 v{t+2}, v{t+2}, 4, v{t+3}
    v_mul_u32_u24 v{t+3}, {PHI_RS}, v{t}
    v_add_u32 v{t+2}, v{t+2}, v{t+3}
    v_add_u32 v{a0}, {A_PHIK}, v{t+2}
    v_mul_u32_u24 v{t}, 160, v{t}
    v_add_u32 v{t}, {A_VST}, v{t}
    v_and_b32 v{t+2}, 3, v0
    v_add_u32 v{t+2}, s78, v{t+2}
    v_xor_b32 v{t+2}, v{t+2}, v{t+1}
    v_lshl_add_u32 v{a0+1}, v{t+2}, 3, v{t}
    s_add_u32 s78, s78, 4
    v_xor_b32 v{t+2}, s78, v{t+1}
    v_lshl_add_u32 v{a0+2}, v{t+2}, 3, v{t}""")
    park(su, 'phir', a0); park(su, 'vr0', a0 + 1); park(su, 'vr1', a0 + 2)
    a0 = V_PA
    su(f"""v_and_b32 v{t+3}, 15, v0
    v_bfe_u32 v{t+4}, v0, 4, 2
    v_cmp_gt_u32 s[90:91], 8, v{t+3}
    v_lshlrev_b32 v{t}, 2, v{t+3}
    v_mul_u32_u24 v{t+1}, 768, v{t+4}
    v_add_u32 v{a0}, v{t}, v{t+1}
    v_add_u32 v{t+1}, {192-32}, v{a0}
    v_cndmask_b32 v{a0+1}, v{t+1}, v{a0}, s[90:91]
    v_mul_u32_u24 v{t+1}, 192, v{t+4}
    v_add_u32 v{t+1}, {16*192}, v{t+1}
    v_add_u32 v{a0+2}, v{t+1}, v{t}
    v_mov_b32 v{t+2}, {OOB:#x}
    v_cmp_gt_u32 vcc, 40, v{LN}
    v_cndmask_b32 v{a0+3}, v{t+2}, v{a0+2}, s[90:91]
    v_lshlrev_b32 v{t+1}, 2, v{LN}
    v_add_u32 v{t+1}, {20*192}, v{t+1}
    v_cndmask_b32 v{a0+4}, v{t+2}, v{t+1}, vcc
    v_cmp_eq_u32 vcc, 0, v{LN}
    v_cmp_gt_u32 s[90:91], 4, v{t+3}
    v_cndmask_b32 v{a0+6}, v{t+2}, v{V_Z}, vcc""")
    for k in range(5): park(su, f'at{k}', a0 + k)
    park(su, 'l0', a0 + 6)
    su(f"s_mul_i32 s85, s68, 1920\n s_add_u32 s85, s85, {A_KVIMG}\n v_mov_b32 v{t+4}, {A_KVIMG+9600}")
    for i in range(4):
        su(f"v_add_u32 v{t}, {64*i}, v{LN}")
        divc(su, t + 1, t, 12)
        su(f"""v_mul_u32_u24 v{t+2}, 12, v{t+1}
        v_sub_u32 v{t+2}, v{t}, v{t+2}
        v_cmp_gt_u32 vcc, 10, v{t+2}
        v_mul_u32_u24 v{t+1}, 80, v{t+1}
        v_lshl_add_u32 v{t+1}, v{t+2}, 3, v{t+1}
        v_add_u32 v{t+1}, s85, v{t+1}
        v_cndmask_b32 v{t+1}, v{t+4}, v{t+1}, vcc""")
        if i == 3: su(f"v_cmp_gt_u32 vcc, 60, v{LN}\n v_cndmask_b32 v{t+1}, v{t+4}, v{t+1}, vcc")
        park(su, f'kvw{i}', t + 1)
    su(f"""v_cmp_gt_u32 vcc, 120, v0
    v_lshlrev_b32 v{t}, 4, v0
    v_add_u32 v{t}, {A_KVIMG+7680}, v{t}
    v_cndmask_b32 v{t}, v{t+4}, v{t}, vcc""")
    park(su, 'kvz', t)
    su(f"""v_bfe_u32 v{t}, v0, 3, 2
    v_and_b32 v{t+1}, 3, v0
    v_lshl_add_u32 v{t}, v{t}, 2, v{t+1}
    v_mul_u32_u24 v{t}, 80, v{t}
    v_bfe_u32 v{t+1}, v0, 2, 1
    v_bfe_u32 v{t+4}, v0, 5, 1
    v_cmp_eq_u32 vcc, v{t+1}, v{t+4}
    v_mul_u32_u24 v{t+2}, 1920, v{t+1}
    v_add_u32 v{t}, v{t}, v{t+2}
    v_add_u32 v{t}, {A_KVIMG}, v{t}
    v_add_u32 v{t+3}, 3840, v{t}
    v_mov_b32 v{t+2}, {A_KVIMG+7680}
    v_cndmask_b32 v{t}, v{t+2}, v{t}, vcc
    v_cndmask_b32 v{t+3}, v{t+2}, v{t+3}, vcc""")
    park(su, 'kvr0', t); park(su, 'kvr1', t + 3)
    setup_g2(su)
    wl = Prog()
    wl("s_mul_i32 s77, s70, 3200")
    srd(wl, S_PHI, P_PHI, 3200, 's77')
    wl(f"""v_lshlrev_b32 v{V_X+10}, 3, v0
    buffer_load_dwordx2 {vr(V_X,2)}, v{V_X+10}, {sr(S_PHI,4)}, 0 offen
    buffer_load_dwordx2 {vr(V_X+2,2)}, v{V_X+10}, {sr(S_PHI,4)}, 0 offen offset:2048""")
    token_load(su, S_WS, V_Z)
    def sync(p, G):
        p.waitvm(('dma', G)); p("s_barrier")
    def touches():
        if NPG:
            for w_ in range(4):
                p(f"s_cmp_lg_u32 s68, {w_}")
                p(f"s_cbranch_scc1 a_t{w_}", tag='keep')
                for k in range(w_, NPG, 4): p(f"s_call_b64 s[4:5], pg{k}", tag='keep')
                p(f"a_t{w_}:")
    HALF = opt('half', 0)
    if HALF:
        p(f"""s_mul_i32 s86, s80, {64*3840}
        s_add_u32 s86, s86, s82
        s_lshl_b32 s81, s80, 7
        s_add_u32 s80, s80, 1
        s_cmp_eq_u32 s80, 10
        s_cselect_b32 s80, 0, s80
        s_mov_b32 s95, s86""")
        def w0(tag):
            for i in range(5): p(f"s_add_u32 m0, s84, {1024*i}\n s_nop 0\n buffer_load_dwordx4 v{V_WD+i}, {sr(S_W,4)}, s95 offen lds", tag=tag)
        p("s_cmp_ge_u32 s68, 2")
        p("s_cbranch_scc1 a_w0a", tag='keep')
        w0('offpath')
        p("a_w0a:")
        for r in range(4): p(f"s_add_u32 m0, s87, {1024*r}\n s_nop 0\n buffer_load_dwordx4 v{V_XD+r}, {sr(S_X,4)}, s81 offen lds", tag=('dma', 0))
        p.extend(su); p.extend(wl); touches()
        p("s_cmp_lt_u32 s68, 2")
        p("s_cbranch_scc1 a_w0b", tag='keep')
        p(f"s_waitcnt vmcnt(3)", tag='offpath')
        w0('offpath')
        p("s_branch a_w0c", tag='keep')
        p("a_w0b:")
        p("s_waitcnt vmcnt(3)", tag='offpath')
        p("a_w0c:")
        stamp(p)
        p("s_waitcnt lgkmcnt(0)\n s_barrier")
    else:
        iss = issue_group(0) + [wl]
        sub = bundles(su)
        LEAD = opt('lead', 7); per = opt('suchunk', 30)
        for k, b in enumerate(iss):
            p.extend(b)
            if k >= LEAD:
                for x in sub[:per]: p.extend(x)
                sub = sub[per:]
        for x in sub: p.extend(x)
        touches()
        for b in issue_group(1): p.extend(b)
        stamp(p)
        p("s_waitcnt lgkmcnt(0)")
        sync(p, 0)
    stamp(p)
    FD = 2
    def kv_reads(k):
        q = Prog(); fb = V_WF + (k % 3) * 20
        slot = k % NSLOT; base = V_TA + (slot >= 8); so = (slot % 8) * GR
        q(f"ds_read_b128 {ar(4*k,4)}, v{V_XO+k%4} offset:{((k//4)%4)*4096}")
        for T in range(5):
            for h in range(2):
                q(f"ds_read_b64_tr_b16 {vr(fb+4*T+2*h,2)}, v{base} offset:{so + 1280*h + 64*T}")
        return q
    PH = [(0, 0), (0, 1), (0, 2), (1, 0), (1, 1), (1, 2), (1, 3), (1, 4), (2, 2), (2, 3), (2, 4)]
    bdr = Prog()
    for n, (U, ka) in enumerate(PH):
        for h in range(2): bdr(f"ds_read_b64_tr_b16 {ar(160+4*n+2*h,2)}, v{18+U} offset:{(16*ka+8*h)*160}")
    bdr = singles(bdr)
    for k in range(FD): p.extend(kv_reads(k))
    segs = [list(range(0, 4 - FD))] + [list(range(4 * G - FD, 4 * G + 4 - FD)) for G in range(1, 10)] + [list(range(40 - FD, 40))]
    for si, steps in enumerate(segs):
        if si >= 1:
            if si == 10: p("s_waitcnt lgkmcnt(0)")
            if STAMP == 2: stamp(p)
            sync(p, si)
            if HALF and si == 1: p.extend(kv_reads(2)); p.extend(kv_reads(3))
        m = Prog(); st = []
        for n, k in enumerate(steps):
            fb = V_WF + (k % 3) * 20
            m.need([vr(fb, 20), ar(4 * k, 4)])
            for T in range(5): mfma32(m, vr(V_KA + 16 * T, 16), vr(fb + 4 * T, 4), ar(4 * k, 4), '0' if k == 0 else None)
            if k + FD < 40 and not (HALF and si == 0): st.append((singles(kv_reads(k + FD)), 5 * n, 5 * n + 5))
        if HALF and si == 0: st.append((issue_group(1), 0, None))
        elif HALF and si == 1: st.append((issue_group(2) + issue_group(3), 0, None))
        else: st.append((issue_group(si + 2), 0, None))
        if si == 1:
            w = Prog(); w(f"ds_write_b64 v{V_X+8}, {vr(V_X,2)}\n ds_write_b64 v{V_X+9}, {vr(V_X+2,2)}")
            st.append((singles(w), 2, 12))
        if si == 2:
            w = Prog(); token_make(w); st.append((singles(w), 0, None))
        if si == 8:
            w = Prog(); w(f"buffer_load_dword v{V_X+10}, v{V_Z}, {sr(S_DBG,4)}, 0 offen sc1")
            st.append(([w], 0, 1))
        if si == 10:
            w = Prog(); unpark(w, 'vw0', t + 1); unpark(w, 'vw1', t + 3); unpark(w, 'phiw0', t + 2); unpark(w, 'phiw1', V_X + 11); unpark(w, 'tq', V_TA + 2)
            w(f"v_add_u32 v{V_TA+3}, {8*GR}, v{V_TA+2}")
            for i in range(5): unpark(w, f'wo{i}', V_XO + i)
            w(f"""v_lshlrev_b32 v{t}, 4, v{LN}
            s_mul_i32 s77, s70, 5120
            s_add_u32 s77, s77, s92
            s_add_u32 s78, s77, 4096""")
            st.append((singles(w), 0, None)); st.append((bdr, 0, None))
        p.extend(pack(m, st))
    stamp(p)

    def phi_step(p, acc, out, extra=None, inexp=None):
        B = V_WF; E = V_WF + 24; M = V_WF + 64
        cv = [f"v_cvt_pk_bf16_f32 v{B+k}, v{acc+2*k}, v{acc+2*k+1}" for k in range(20)]
        def minmax(y):
            q = Prog(); x = V_PA + y * 20; Mx = M + 8 * y
            q(f"v_max3_f32 v{Mx}, v{x}, v{x+1}, v{x+2}\n v_min3_f32 v{Mx+2}, v{x}, v{x+1}, v{x+2}")
            for k in range(3, 19, 2):
                q(f"v_max3_f32 v{Mx}, v{Mx}, v{x+k}, v{x+k+1}\n v_min3_f32 v{Mx+2}, v{Mx+2}, v{x+k}, v{x+k+1}")
            q(f"v_max_f32 v{Mx}, v{Mx}, v{x+19}\n v_min_f32 v{Mx+2}, v{Mx+2}, v{x+19}")
            q(f"v_mul_f32 v{Mx}, s88, v{Mx}\n v_mul_f32 v{Mx+2}, s88, v{Mx+2}")
            return q
        for c in cv[:8]: p(c)
        m = Prog(); seen = set()
        for n, (U, ka) in enumerate(PH):
            mfma32(m, vr(V_PA + 16 * U, 16), ar(160 + 4 * n, 4), vr(B + 4 * ka, 4), None if U in seen else '0'); seen.add(U)
        c2 = Prog()
        for c in cv[8:]: c2(c)
        st = [(singles(c2), 0, 2)]
        if extra: st.append((bundles(extra), 2, 11))
        p.extend(pack(m, st, cap=28))
        for y in range(2):
            x = V_PA + y * 20; Mx = M + 8 * y
            p.extend(minmax(y))
            for q in range(10):
                p(f"v_pk_fma_f32 {vr(E+2*q,2)}, {vr(x+2*q,2)}, s[88:89], {vr(Mx,2)} op_sel_hi:[1,1,0] neg_lo:[0,0,1] neg_hi:[0,0,1]")
                p(f"v_pk_fma_f32 {vr(E+20+2*q,2)}, {vr(x+2*q,2)}, s[88:89], {vr(Mx+2,2)} op_sel_hi:[1,1,0] neg_lo:[1,0,0] neg_hi:[1,0,0]")
            for q in range(40):
                p(f"v_exp_f32 v{E+q}, v{E+q}")
                if y == 0 and inexp and q % 6 == 5: p.extend(inexp.pop(0))
            for q in range(1, 10):
                for hh in range(2):
                    S = Mx + 4 + 2 * hh; e = E + 20 * hh
                    p(f"v_pk_add_f32 {vr(S,2)}, {vr(e if q == 1 else S,2)}, {vr(e+2*q,2)}")
            p(f"v_add_f32 v{Mx+4}, v{Mx+4}, v{Mx+5}\n v_add_f32 v{Mx+6}, v{Mx+6}, v{Mx+7}")
            p(f"v_rcp_f32 v{Mx+4}, v{Mx+4}\n v_rcp_f32 v{Mx+6}, v{Mx+6}")
            for hh in range(2):
                for q in range(10):
                    e = E + 20 * hh + 2 * q
                    p(f"v_pk_mul_f32 {vr(e,2)}, {vr(e,2)}, {vr(Mx+4+2*hh,2)} op_sel_hi:[1,0]")
            yield y
            for q in range(20):
                p(f"v_cvt_pk_bf16_f32 v{out+y*20+q}, v{E+2*q}, v{E+2*q+1}")

    def q_reads(k):
        q = Prog(); fb = V_WF + (k % 3) * 12
        slot = (40 + k // 2) % NSLOT; base = V_TA + 2 + (slot >= 8); so = (slot % 8) * GR + (k % 2) * 2560
        for T in range(3):
            for h in range(2):
                q(f"ds_read_b64_tr_b16 {vr(fb+4*T+2*h,2)}, v{base} offset:{so + 160*h + 64*T}")
        return q
    ex = Prog()
    for mm_ in range(10):
        a = V_VA + 4 * mm_; d = V_X + 2 * (mm_ % 4)
        ex(f"v_cvt_pk_bf16_f32 v{d}, v{a}, v{a+1}\n v_cvt_pk_bf16_f32 v{d+1}, v{a+2}, v{a+3}\n ds_write_b64 v{t+1+2*(mm_%2)}, {vr(d,2)} offset:{32*(mm_//2)}")
    w = Prog(); w0 = Prog()
    for k in range(4): w0(f"v_mov_b32 v{V_X+4+k}, -1")
    for pc in range(5):
        w(f"buffer_store_dwordx4 {vr(V_X+4,4)}, v{t}, {sr(S_WS,4)}, {'s78' if pc == 4 else 's77'} offen offset:{1024*(pc%4)} sc1")
    for y in phi_step(p, V_KA, V_PO, ex, [w0] + singles(w)):
        if y == 1:
            p.extend(q_reads(0));
    p.extend(q_reads(1))
    stamp(p)
    p(f"""v_readfirstlane_b32 s95, v{V_X+10}
    s_mov_b32 s94, {SPIN}
    s_cmp_ge_u32 s95, {NZERO_WG}""")
    p("s_cbranch_scc1 a_pz_x", tag='keep')
    p("a_pz:")
    p(f"""buffer_load_dword v{V_X+10}, v{V_Z}, {sr(S_DBG,4)}, 0 offen sc1
    s_sub_u32 s94, s94, 1
    s_waitcnt vmcnt(0)
    v_readfirstlane_b32 s95, v{V_X+10}
    s_cmp_eq_u32 s94, 0""", tag='offpath')
    p("s_cbranch_scc1 a_pz_x", tag='keep')
    p(f"s_cmp_ge_u32 s95, {NZERO_WG}")
    p("s_cbranch_scc0 a_pz", tag='keep')
    p("a_pz_x:")
    pw = Prog()
    for y in range(2):
        for q in range(5): pw(f"ds_write_b128 v{V_X+11 if q % 2 else t+2}, {vr(V_PO+y*20+4*q,4)} offset:{160*y + 32*(q//2)}")
    pre = Prog()
    unpark(pre, 'phir', t); unpark(pre, 'vr0', t + 1); unpark(pre, 'vr1', t + 3)
    pre(f"v_mov_b32 v{t+4}, 0x3f803f80")
    for k in range(5): unpark(pre, f'at{k}', V_X + k)
    pre(f"""s_lshl_b32 s78, s70, 2
    s_add_u32 s78, s78, s68
    s_lshl_b32 s78, s78, 12
    s_add_u32 s78, s78, {WS_KV}""")
    KF = [72, 92, V_PO, V_PO + 20]
    def kvs_reads(sw):
        q = Prog(); fb = KF[sw]
        for h in range(2): q(f"ds_read_b64_tr_b16 {vr(fb+4+2*h,2)}, v{t+3} offset:{(sw*32+h*16)*160}")
        for h in range(2): q(f"ds_read_b64_tr_b16 {vr(fb+2*h,2)}, v{t+1} offset:{(sw*32+h*16)*160}")
        for nf in range(3):
            for h in range(2):
                q(f"ds_read_b64_tr_b16 {vr(fb+8+4*nf+2*h,2)}, v{t} offset:{(sw*32+h*16)*PHI_RS + 32*nf}")
        return q
    def kvs_mfma(m, sw):
        fb = KF[sw]
        m.need([vr(fb, 20)])
        for q in range(4): m(f"v_cndmask_b32 v{fb+4+q}, v{t+4}, v{fb+4+q}, s[90:91]")
        for md in range(2):
            for nf in range(3):
                mfma(m, vr(V_D + (3 * md + nf) * 4, 4), vr(fb + 4 * md, 4), vr(fb + 8 + 4 * nf, 4), '0' if sw == 0 else None)
    at = Prog(); a0 = V_X
    def atom(v, vo, off): at(f"buffer_atomic_add_f32 v{v}, v{vo}, {sr(S_WS,4)}, s78 offen offset:{off}", tag='kvat')
    for nf in range(2):
        for i in range(4): atom(V_D + 4 * nf + i, a0, i * 192 + nf * 64)
    R = lambda nf, i: V_D + 12 + 4 * nf + i
    for i in (0, 2):
        at(f"v_mov_b32_dpp v{V_D+8+i}, v{V_D+9+i} row_shr:8 row_mask:0xf bank_mask:0xc")
    for nf in range(3):
        at(f"v_permlane16_swap_b32 v{R(nf,0)}, v{R(nf,1)}\n v_permlane16_swap_b32 v{R(nf,2)}, v{R(nf,3)}")
    for i in (0, 2): atom(V_D + 8 + i, a0 + 1, i * 192 + 128)
    for nf in range(3): at(f"v_permlane32_swap_b32 v{R(nf,0)}, v{R(nf,2)}")
    at(f"v_permlane16_swap_b32 v{R(0,1)}, v{R(1,1)}")
    for nf in range(3): atom(R(nf, 0), a0 + (3 if nf == 2 else 2), nf * 64)
    at(f"v_permlane32_swap_b32 v{R(0,1)}, v{R(2,1)}")
    atom(R(0, 1), a0 + 4, 0)
    KS = opt('ks', 4)
    segs = [list(range(0, 6))] + [list(range(8 * g - 2, 8 * g + 6)) for g in range(1, 5)] + [[38, 39]]
    def signal():
        unpark(p, 'l0', V_X + 7)
        p(f"""s_lshl_b32 s78, s70, 13
        s_lshl_b32 s85, s69, 9
        s_add_u32 s78, s78, s85
        s_lshl_b32 s85, s68, 7
        s_add_u32 s78, s78, s85
        s_add_u32 s78, s78, {WS_KVF}""")
        p.waitvm('kvat')
        p(f"buffer_store_dword v{V_TOK}, v{V_X+7}, {sr(S_WS,4)}, s78 offen sc1")
    def qstep(k):
        m = Prog(); fb = V_WF + (k % 3) * 12
        m.need([vr(fb, 12)])
        for T in range(3): mfma32(m, vr(V_KA + 16 * T, 16), vr(fb + 4 * T, 4), ar(4 * k, 4), '0' if k == 0 else None)
        return m
    def qrun(steps, extra):
        m = Prog(); st = []
        for n, k in enumerate(steps):
            m.extend(qstep(k))
            if k + 2 < 40: st.append((singles(q_reads(k + 2)), 3 * n, 3 * n + 3))
        p.extend(pack(m, st + extra, cap=28))
    NW = opt('nw', 4)
    qrun(range(0, NW), [(singles(pw), 0, 3 * NW - 2), (bundles(pre), 2, None)])
    if STAMP == 3: stamp(p)
    p("s_waitcnt lgkmcnt(0)\n s_barrier")
    kr = Prog()
    for sw in range(4): kr.extend(kvs_reads(sw))
    kr = singles(kr)
    for x in kr[:10]: p.extend(x)
    qrun(range(NW, 6), [(kr[10:], 0, None)])
    m = Prog()
    for sw in range(4): kvs_mfma(m, sw)
    p.extend(pack(m, [(issue_group(13), 0, 20)], cap=8))
    if STAMP == 3: stamp(p)
    for si, steps in enumerate(segs):
        G = 10 + si
        if si == 0: continue
        if STAMP == 3 and si > 1: stamp(p)
        if si == KS: signal()
        if G < 15: sync(p, G)
        if si == 1: qrun(steps, [(singles(at), 0, opt('atspan', 24))])
        elif si < 5: qrun(steps, [(issue_group(G + 2), 0, None)])
        else: qrun(steps, [])
    if KS == 6: signal()
    stamp(p)
    F = V_WF
    ex = Prog()
    unpark(ex, 'kvz', t)
    ex(f"""v_mov_b32 v{V_X}, 0
    v_mov_b32 v{V_X+1}, 0
    v_mov_b32 v{V_X+2}, 0
    v_mov_b32 v{V_X+3}, 0
    ds_write_b128 v{t}, {vr(V_X,4)}
    v_lshlrev_b32 v{t+1}, 7, v{LN}
    v_lshlrev_b32 v{t+2}, 4, v{LN}
    s_lshl_b32 s78, s70, 13
    s_add_u32 s78, s78, {WS_KVF}
    s_lshl_b32 s77, s70, 2
    s_add_u32 s77, s77, s68
    s_lshl_b32 s77, s77, 12
    s_add_u32 s77, s77, {WS_KV}""")
    for i in range(4): unpark(ex, f'kvw{i}', V_X + 4 + i)
    KL = V_KA + 32
    def kvloads(tag=None):
        for i in range(4):
            p(f"buffer_load_dwordx4 {vr(KL+4*i,4)}, v{t+2}, {sr(S_WS,4)}, s77 offen offset:{1024*i} sc1", tag=tag)
    ex(f"""buffer_load_dword v{V_X+8}, v{t+1}, {sr(S_WS,4)}, s78 offen sc1
    v_and_b32 v{t+3}, 7, v0
    v_lshlrev_b32 v{t+3}, 13, v{t+3}
    s_lshl_b32 s93, s69, 9
    s_lshl_b32 s81, s68, 7
    s_add_u32 s93, s93, s81
    s_add_u32 s93, s93, {WS_KVF}""")
    for y in phi_step(p, V_KA, V_PO, ex):
        if y == 0:
            p(f"v_cmp_eq_u32 vcc, v{V_TOK}, v{V_X+8}\n s_mov_b32 s95, 0\n s_nop 0\n s_cmp_eq_u64 vcc, -1")
            p("s_cbranch_scc0 a_noearly", tag='keep')
            kvloads('offpath')
            p("s_mov_b32 s95, 1", tag='offpath')
            p("a_noearly:")
            p(f"buffer_load_dword v{V_X+9}, v{t+3}, {sr(S_WS,4)}, s93 offen sc1")
        if y == 1:
            stamp(p)
            p("s_cmp_eq_u32 s95, 1")
            p("s_cbranch_scc1 a_have", tag='keep')
            pollall(p, "a_pk", S_WS, 's78', V_X + 8, t + 1)
            kvloads()
            p("a_have:")
            stamp(p)
            p("s_waitcnt vmcnt(0)")
            for i in range(4):
                p(f"v_cvt_pk_bf16_f32 v{F+2*i}, v{KL+4*i}, v{KL+4*i+1}\n v_cvt_pk_bf16_f32 v{F+1+2*i}, v{KL+4*i+2}, v{KL+4*i+3}")
                p(f"ds_write_b64 v{V_X+4+i}, {vr(F+2*i,2)}")
            p(f"v_cmp_eq_u32 vcc, v{V_TOK}, v{V_X+9}")
            unpark(p, 'kvr0', t); unpark(p, 'kvr1', t + 1)
            p("s_cmp_eq_u64 vcc, -1")
            p("s_cbranch_scc1 a_pf_x", tag='keep')
            q = Prog(); pollall(q, "a_pf", S_WS, 's93', V_X + 9, t + 3)
            for i_ in q.L: i_.tag = 'offpath' if i_.kind not in ('label',) else i_.tag
            p.extend(q)
            p(f"""s_mul_i32 s76, s70, 5120
            s_add_u32 s78, s92, s76
            s_add_u32 s81, s78, 4096
            s_mov_b32 s85, {f2u(1e-6):#x}""")
    p("s_waitcnt lgkmcnt(0)\n s_barrier")
    stamp(p)
    order = [(y, u, ka) for u in (1, 0) for y in range(2) for ka in range(5)]
    NB = 10; O = F + 48
    def ord_(n):
        y, u, ka = order[n]; q = Prog(); q(f"ds_read_b128 {vr(F+4*(n%NB),4)}, v{t+y} offset:{u*1280+16*ka}"); return q
    for n in range(NB): p.extend(ord_(n))
    def fin(y, ks):
        q = Prog(); dn = V_KA + 16 * y + 4
        vals = [V_D + 16 * y + r for r in range(16)] + [V_KA + 16 * y + r for r in range(4)]
        for k in ks:
            q(f"v_mul_f32 v{vals[2*k]}, v{dn}, v{vals[2*k]}\n v_mul_f32 v{vals[2*k+1]}, v{dn}, v{vals[2*k+1]}")
            q(f"v_cvt_pk_bf16_f32 v{O+10*y+k}, v{vals[2*k]}, v{vals[2*k+1]}")
        return q
    def ost(q, pc): q(f"buffer_store_dwordx4 {vr(O+4*pc,4)}, v{t+2}, {sr(S_WS,4)}, {'s81' if pc == 4 else 's78'} offen offset:{1024*(pc%4)} {'' if opt('oplain', 0) else 'sc1'}", tag='ost')
    om = Prog()
    for n, (y, u, ka) in enumerate(order):
        if n in (0, 2, 5, 10, 15): om.need([vr(F + 4 * (m_ % NB), 4) for m_ in range(n, {0: 2, 2: 5}.get(n, n + 5))])
        mfma32(om, vr((V_D if u == 0 else V_KA) + 16 * y, 16), vr(F + 4 * (n % NB), 4), vr(V_PO + y * 20 + 4 * ka, 4), '0' if ka == 0 else None)
        if n + NB < 20: om.extend(ord_(n + NB))
    d0 = Prog(); d1 = Prog()
    for y, d in ((0, d0), (1, d1)):
        dn = V_KA + 16 * y + 4
        d(f"v_add_f32 v{dn}, s85, v{dn}\n v_rcp_f32 v{dn}, v{dn}"); d.extend(fin(y, (8, 9)))
    f0 = fin(0, range(4)); ost(f0, 0); f0.extend(fin(0, range(4, 8))); ost(f0, 1)
    p.extend(pack(om, [(issue_group(17) + issue_group(18), 0, 12), (singles(d0), 8, 11), (singles(d1), 12, 15), (singles(f0), 16, 20)], cap=28))
    dn = V_KA + 20
    for k in range(8):
        p(f"v_pk_mul_f32 {vr(V_D+16+2*k,2)}, {vr(V_D+16+2*k,2)}, {vr(dn,2)} op_sel_hi:[1,0]")
    for k in range(8):
        p(f"v_cvt_pk_bf16_f32 v{O+10+k}, v{V_D+16+2*k}, v{V_D+17+2*k}")
        if k in (1, 5, 7): ost(p, {1: 2, 5: 3, 7: 4}[k])
    stamp(p)
    p.waitvm(('dma', 18))
    gemm2_tail(p)
    return p

CP = 4168; YP = 4160; SRS = 544
B_RAW = 0
B_UC = 33280
B_KR = B_UC + 16 * CP
B_SC = B_KR + 4 * 4608
B_END = B_SC + 4 * 16 * SRS
S_KR = 81920; S_SC = S_KR + 4 * 4608
WS_KR = 4 << 20
BL, B15, BG, BZ = 1, 2, 3, 4
A_SW, A_SR, A_T0, A_T1, A_T1b, A_T2, A_X3, A_X2, A_X1, A_X0, A_KW, A_KW32, A_KB, MSK = range(24, 38)
PR = 8
S_U, S_LA, S_AI, S_CR, S_CI, S_LDT, S_DS, S_O, S_WSB = 40, 44, 48, 52, 56, 60, 64, 72, 76

def kg_lanes(p):
    p(f"""v_and_b32 v{BL}, 63, v0
    v_and_b32 v{B15}, 15, v0
    v_bfe_u32 v{BG}, v0, 4, 2
    v_mov_b32 v{BZ}, 0
    v_lshlrev_b32 v5, 2, v{BL}
    s_waitcnt lgkmcnt(0)""")
    for s_, ptr, size in ((S_LA, P_LA, 640*256), (S_AI, P_AI, 640*256), (S_CR, P_CR, 640*256), (S_CI, P_CI, 640*256), (S_LDT, P_LDT, 1280), (S_DS, P_DS, 1280)):
        srd(p, s_, ptr, size)
def kg_params(p, sch, P):
    p(f"s_lshl_b32 s81, {sch}, 8\n s_lshl_b32 s80, {sch}, 1")
    p(f"buffer_load_ushort v{P+4}, v{BZ}, {sr(S_LDT,4)}, s80 offen")
    for k, s_ in enumerate((S_LA, S_AI, S_CR, S_CI)):
        p(f"buffer_load_dword v{P+k}, v5, {sr(s_,4)}, s81 offen {'nt' if opt('ntp', 1) else ''}")
    p(f"buffer_load_ushort v{P+5}, v{BZ}, {sr(S_DS,4)}, s80 offen")
def kg_setup(p, KR, SC):
    t = 40
    p(f"""s_mul_i32 s83, s68, 4608
    s_add_u32 s83, s83, {KR}
    s_mul_i32 s84, s68, {16*SRS}
    s_add_u32 s84, s84, {SC}
    v_lshl_add_u32 v{A_SW}, v{BL}, 3, s84
    v_mul_u32_u24 v{A_SR}, {SRS}, v{B15}
    v_lshl_add_u32 v{A_SR}, v{BG}, 4, v{A_SR}
    v_add_u32 v{A_SR}, s84, v{A_SR}
    v_cmp_gt_u32 vcc, 2, v{BG}
    v_lshrrev_b32 v{t}, 1, v{BG}
    v_and_b32 v{t+1}, 1, v{BG}
    v_lshlrev_b32 v{A_T0}, 9, v{t}
    v_lshl_add_u32 v{A_T0}, v{t+1}, 4, v{A_T0}
    v_lshl_add_u32 v{A_T0}, v{B15}, 5, v{A_T0}
    v_add_u32 v{A_T0}, s84, v{A_T0}
    v_lshlrev_b32 v{t+2}, 4, v{B15}
    v_lshlrev_b32 v{t+3}, 3, v{B15}
    v_cndmask_b32 v{t+2}, v{t+3}, v{t+2}, vcc
    v_lshl_add_u32 v{A_T1}, v{BG}, 8, v{t+2}
    v_add_u32 v{A_T1}, s84, v{A_T1}
    v_mov_b32 v{t+2}, 128
    v_mov_b32 v{t+3}, 8
    v_cndmask_b32 v{t+2}, v{t+2}, v{t+3}, vcc
    v_add_u32 v{A_T1b}, v{A_T1}, v{t+2}
    v_lshlrev_b32 v{A_T2}, 8, v{BG}
    v_lshl_add_u32 v{A_T2}, v{B15}, 2, v{A_T2}
    v_add_u32 v{A_T2}, s84, v{A_T2}
    v_lshl_add_u32 v{A_X3}, v{BL}, 2, s84
    v_lshl_add_u32 v{A_X2}, v{BL}, 3, s84
    v_and_b32 v{t}, 31, v0
    v_lshl_add_u32 v{A_X1}, v{t}, 4, s84
    v_lshl_add_u32 v{A_X0}, v{t}, 5, s84
    v_lshlrev_b32 v{t+1}, 4, v{BL}
    v_sub_u32 v{A_KW}, s83, v{t+1}
    v_add_u32 v{A_KW}, 1008, v{A_KW}
    v_lshlrev_b32 v{t+1}, 4, v{t}
    v_sub_u32 v{A_KW32}, s83, v{t+1}
    v_add_u32 v{A_KW32}, 496, v{A_KW32}
    v_and_b32 v{t}, 1, v0
    v_cmp_eq_u32 vcc, 1, v{t}
    v_mov_b32 v{t+1}, 0xffff
    v_mov_b32 v{t+2}, -1
    v_cndmask_b32 v{MSK}, v{t+1}, v{t+2}, vcc
    s_mov_b32 s85, 0xffff
    s_mov_b32 s86, {f2u(1.4426950408889634):#x}
    s_mov_b32 s87, 0x32a57060
    s_mov_b32 s88, {f2u(0.6931471805599453):#x}
    s_mov_b32 s89, 0xffff0000""")

def exp_bf16(p, d, x, t):
    p(f"""v_mul_f32 v{t}, s86, v{x}
    v_fma_f32 v{t+1}, v{x}, s86, -v{t}
    v_exp_f32 v{t}, v{t}
    v_fma_f32 v{t+1}, v{x}, s87, v{t+1}
    v_mul_f32 v{t+1}, s88, v{t+1}
    v_fma_f32 v{t}, v{t}, v{t+1}, v{t}
    v_cvt_pk_bf16_f32 v{t}, v{t}, v{t}
    v_and_b32 v{d}, s89, v{t}""")
def cmul(p, c, a, b):
    p(f"v_pk_mul_f32 {vr(c,2)}, {vr(a,2)}, {vr(b,2)} op_sel:[0,0] op_sel_hi:[0,1]")
    p(f"v_pk_fma_f32 {vr(c,2)}, {vr(a,2)}, {vr(b,2)}, {vr(c,2)} op_sel:[1,1,0] op_sel_hi:[1,0,1] neg_lo:[0,1,0]")
def kgen(p, P, sched):
    E = lambda k, mu: 48 + 4 * (k - 1) + 2 * mu
    E8 = lambda mu: 76 + 2 * mu
    E128 = lambda mu: 80 + 2 * mu
    GA = lambda par, mu: 84 + 4 * par + 2 * mu
    XT = lambda k, mu: 92 + 4 * (k % 2) + 2 * mu
    PK = lambda k: 100 + 2 * (k % 4)
    FB = 108; FA = 140; DT = 172
    t = 40
    p(f"v_lshlrev_b32 v{t+6}, 16, v{P+4}")
    exp_bf16(p, t + 7, t + 6, t)
    p.need([vr(P, 6)])
    if STAMP == 4: stamp(p)
    rho = lambda mu: 92 + mu; th = lambda mu: 94 + mu
    p(f"v_add_f32 v{t+4}, v{t+7}, v{t+7}")
    for mu in range(2):
        up = (lambda d, s_: f"v_lshlrev_b32 v{d}, 16, v{s_}") if mu == 0 else (lambda d, s_: f"v_and_b32 v{d}, s89, v{s_}")
        p(up(t + 6, P))
        exp_bf16(p, t + 5, t + 6, t)
        p(f"v_mul_f32 v{t+5}, v{t+5}, v{t+7}\n v_mul_f32 v{rho(mu)}, s86, v{t+5}")
        p(up(t + 6, P + 1))
        p(f"v_mul_f32 v{t+6}, v{t+6}, v{t+7}\n v_mul_f32 v{th(mu)}, 0.15915494, v{t+6}")
        p(up(t + 5, P + 2)); p(up(t + 6, P + 3))
        p(f"v_mul_f32 v{GA(0,mu)}, v{t+5}, v{t+4}\n v_mul_f32 v{GA(0,mu)+1}, v{t+6}, v{t+4}")
    for pw, dst in ((8, E8), (1, lambda mu: E(1, mu)), (128, E128)):
        for mu in range(2):
            p(f"v_mul_f32 v{t+2*mu}, {f2u(-float(pw)):#x}, v{rho(mu)}\n v_mul_f32 v{t+2*mu+1}, {f2u(float(pw)):#x}, v{th(mu)}")
        for mu in range(2): p(f"v_exp_f32 v{t+2*mu}, v{t+2*mu}\n v_fract_f32 v{t+2*mu+1}, v{t+2*mu+1}")
        for mu in range(2): p(f"v_cos_f32 v{dst(mu)}, v{t+2*mu+1}\n v_sin_f32 v{dst(mu)+1}, v{t+2*mu+1}")
        for mu in range(2): p(f"v_pk_mul_f32 {vr(dst(mu),2)}, {vr(dst(mu),2)}, {vr(t+2*mu,2)} op_sel_hi:[1,0]")
    cnt = [0]; SIDE0 = opt('side0', 36); SIDEN = opt('siden', 2)
    def put(row, src, neg=False):
        k = cnt[0]; cnt[0] += 1
        for mu in range(2):
            a = src(mu)
            p(f"v_cvt_pk_bf16_f32 v{PK(k)+mu}, v{a}, {'-' if neg else ''}v{a+1}")
        p(f"ds_write_b64 v{A_SW}, {vr(PK(k),2)} offset:{row*SRS}")
        for b_ in sched.get(k, []): p.extend(b_)
    p(f"v_mov_b32 v{PK(3)}, 0x3f80\n v_mov_b32 v{PK(3)+1}, 0x3f80\n ds_write_b64 v{A_SW}, {vr(PK(3),2)}")
    put(1, E8, True)
    prev = E8
    for b in range(2, 16):
        cur = (lambda bb: (lambda mu: XT(bb, mu)))(b)
        for mu in range(2): cmul(p, cur(mu), prev(mu), E8(mu))
        put(b, cur, True); prev = cur
    if STAMP == 4: stamp(p)
    for ka in range(8): p(f"ds_read_b128 {vr(FB+4*ka,4)}, v{A_SR} offset:{64*ka}")
    for k in range(2, 8):
        for mu in range(2): cmul(p, E(k, mu), E(k - 1, mu), E(1, mu))
    al = [0]
    def Gcur(mu): return GA(al[0] % 2, mu)
    def Gnext():
        for mu in range(2): cmul(p, GA((al[0] + 1) % 2, mu), GA(al[0] % 2, mu), E128(mu))
        al[0] += 1
    def prod(row, k):
        if k == 0: put(row, Gcur); return
        for mu in range(2): cmul(p, XT(row, mu), Gcur(mu), E(k, mu))
        put(row, lambda mu: XT(row, mu))
    def tile(T):
        for ka in range(8): p(f"ds_read_b128 {vr(FA+4*ka,4)}, v{A_SR} offset:{64*ka}")
        return [f"v_mfma_f32_16x16x32_bf16 {vr(DT+4*T,4)}, {vr(FA+4*ka,4)}, {vr(FB+4*ka,4)}, {'0' if ka == 0 else vr(DT+4*T,4)}" for ka in range(8)]
    for a in range(2):
        for g in range(8): prod(8 * a + g, g)
        Gnext()
    if STAMP == 4: stamp(p)
    mm = tile(0)
    for a in range(2):
        for g in range(4): prod(4 * a + g, 2 * g)
        Gnext()
        if a == 0:
            for x in mm: p(x)
    for a in range(4):
        for g in range(2): prod(8 + 2 * a + g, 4 * g)
        Gnext()
    if STAMP == 4: stamp(p)
    mm = tile(1)
    for a in range(9):
        prod(a, 0)
        if a < 8: Gnext()
        if a == 3:
            for x in mm: p(x)
    if STAMP == 4: stamp(p)
    mm = tile(2)
    p(f"""v_cmp_eq_u32 vcc, 0, v{BL}
    v_lshlrev_b32 v{t}, 16, v{P+5}
    v_cndmask_b32 v{t}, v{BZ}, v{t}, vcc
    v_add_f32 v{DT}, v{DT}, v{t}""")
    for q in range(8): p(f"v_cvt_pk_bf16_f32 v{DT+q}, v{DT+q}, v{DT+q}")
    p.need([vr(FA, 32)])
    p(mm[0]); p(f"ds_write_b128 v{A_T0}, {vr(DT,4)}")
    for x in mm[1:4]: p(x)
    p(f"ds_write_b64 v{A_T1}, {vr(DT+4,2)} offset:1024")
    for x in mm[4:6]: p(x)
    p(f"ds_write_b64 v{A_T1b}, {vr(DT+6,2)} offset:1024")
    for x in mm[6:]: p(x)
    R = FB
    p(f"""ds_read_b128 {vr(R+24,4)}, v{A_X0}
    ds_read_b128 {vr(R+28,4)}, v{A_X0} offset:16
    ds_read_b128 {vr(R+16,4)}, v{A_X1} offset:1024
    ds_read_b32 v{R+20}, v{A_X1} offset:{1024+16}""")
    for q in range(8, 12): p(f"v_cvt_pk_bf16_f32 v{DT+q}, v{DT+q}, v{DT+q}")
    for i in range(4): p(f"ds_write_b32 v{A_T2}, v{DT+8+i} offset:{2048+64*i}")
    p(f"""ds_read_b32 v{R+8}, v{A_X2} offset:{1536+8}
    ds_read_b32 v{R+9}, v{A_X2} offset:{1536+4}
    ds_read_b32 v{R+11}, v{A_X2} offset:{1536}""")
    for r in range(2):
        p(f"ds_read_b32 v{R+4*r}, v{A_X3} offset:{2048+256*r+4}")
        p(f"ds_read_b32 v{R+4*r+2}, v{A_X3} offset:{2048+256*r}\n ds_read_b32 v{R+4*r+3}, v{A_X3} offset:{2048+256*r}")
    p(f"""v_bfi_b32 v{R+12}, s85, v{R+20}, v{R+19}
    v_mov_b32 v{R+13}, v{R+18}
    v_bfi_b32 v{R+14}, s85, v{R+18}, v{R+17}
    v_mov_b32 v{R+15}, v{R+16}
    ds_write_b128 v{A_KW32}, {vr(R+12,4)} offset:3072
    v_bfi_b32 v{R+16}, s85, v{R+31}, v{R+30}
    v_bfi_b32 v{R+17}, s85, v{R+29}, v{R+28}
    v_bfi_b32 v{R+18}, s85, v{R+27}, v{R+26}
    v_bfi_b32 v{R+19}, s85, v{R+25}, v{R+24}
    ds_write_b128 v{A_KW32}, {vr(R+16,4)} offset:3584
    v_bfi_b32 v{R+10}, s85, v{R+9}, v{R+11}
    ds_write_b128 v{A_KW}, {vr(R+8,4)} offset:2048""")
    for r in range(2):
        p(f"v_bfi_b32 v{R+4*r+1}, v{MSK}, v{R+4*r}, v{R+4*r+2}")
        p(f"ds_write_b128 v{A_KW}, {vr(R+4*r,4)} offset:{1024*(1-r)}")

def prefetch1():
    if not opt('pf1', 1): return []
    NG = opt('pfg', 3); B = []; p = Prog()
    decode_ab(p, 's93', 16, 94, 92)
    p("s_add_u32 s93, s94, s92\n s_mul_i32 s93, s93, 3")
    srd(p, 96, P_W, 640 * 3840)
    p(f"""s_mul_i32 s92, s92, 160
    s_lshr_b32 s95, s68, 1
    s_add_u32 s95, s95, 1
    s_mul_i32 s95, s95, 1280
    s_add_u32 s92, s92, s95
    s_andn2_b32 s92, s92, 127
    s_and_b32 s95, s68, 1
    s_lshl_b32 s95, s95, 7
    s_add_u32 s92, s92, s95
    v_mul_u32_u24 v250, 3840, v{BL}
    v_mul_u32_u24 v249, 1280, v{BL}""")
    def g10(p, d, add):
        p(f"""s_add_u32 s{d}, s93, {add}
        s_mul_i32 s95, s{d}, 205
        s_lshr_b32 s95, s95, 11
        s_mul_i32 s95, s95, 10
        s_sub_u32 s{d}, s{d}, s95""")
    for k in range(opt('pf0', 1), NG + 1):
        g10(p, 100, k)
        p(f"s_mul_i32 s100, s100, {64*3840}\n s_add_u32 s100, s100, s92\n buffer_load_dword v254, v250, s[96:99], s100 offen {'nt' if opt('ntw', 0) else ''}")
        B.append(p); p = Prog()
    srd(p, 96, P_X, 2048 * 1280)
    p(f"""s_lshl_b32 s94, s94, 1
    s_and_b32 s95, s68, 1
    s_add_u32 s94, s94, s95
    s_mul_i32 s94, s94, {64*1280}
    s_lshr_b32 s95, s68, 1
    s_add_u32 s93, s93, s95""")
    for k in range(1, NG + 1, 2):
        g10(p, 100, k)
        p(f"s_lshl_b32 s100, s100, 7\n s_add_u32 s100, s100, s94\n buffer_load_dword v254, v249, s[96:99], s100 offen {'nt' if opt('ntx', 0) else ''}")
        B.append(p); p = Prog()
    return B
def prefetch2x():
    if not opt('pf2', 1): return []
    B = []
    for r in range(2):
        a = Prog(); b = Prog()
        a(f"""s_lshr_b32 s92, s2, 3
        s_sub_u32 s92, s92, 16
        s_lshl_b32 s92, s92, 2
        s_add_u32 s92, s92, s68
        s_lshl_b32 s92, s92, 6
        s_add_u32 s92, s92, {4096*r}
        v_add_u32 v250, s92, v{BL}
        v_mul_u32_u24 v249, 6554, v250
        v_lshrrev_b32 v249, 16, v249
        v_mul_u32_u24 v252, 10, v249
        v_sub_u32 v250, v250, v252
        v_mul_u32_u24 v252, 3840, v249
        v_lshl_add_u32 v252, v250, 7, v252""")
        srd(a, 96, P_W, 640 * 3840)
        a("buffer_load_dword v254, v252, s[96:99], 0 offen")
        b(f"""v_mul_u32_u24 v252, 1280, v249
        v_lshl_add_u32 v252, v250, 7, v252""")
        srd(b, 96, P_WO, 640 * 1280)
        b("buffer_load_dword v254, v252, s[96:99], 0 offen")
        B += [a, b]
    return B
def prefetch2():
    if XM: return prefetch2x()
    if not opt('pf2', 1): return []
    a = Prog(); b = Prog()
    a(f"""s_lshr_b32 s92, s2, 3
    s_sub_u32 s92, s92, 16
    s_lshl_b32 s92, s92, 2
    s_add_u32 s92, s92, s68
    s_lshl_b32 s92, s92, 6
    v_add_u32 v250, s92, v{BL}
    v_mul_u32_u24 v249, 13108, v250
    v_lshrrev_b32 v249, 16, v249
    v_mul_u32_u24 v252, 5, v249
    v_sub_u32 v250, v250, v252
    v_mul_u32_u24 v252, 3840, v249
    v_lshl_add_u32 v252, v250, 7, v252
    s_and_b32 s93, s2, 1
    s_mul_i32 s94, s93, 640""")
    srd(a, 96, P_W, 640 * 3840)
    a("buffer_load_dword v254, v252, s[96:99], s94 offen")
    b(f"""s_lshl_b32 s94, s93, 9
    s_lshl_b32 s95, s93, 7
    s_add_u32 s95, s95, 1024
    v_lshlrev_b32 v252, 7, v250
    v_add_u32 v252, s94, v252
    v_mov_b32 v248, s95
    v_cmp_eq_u32 vcc, 4, v250
    v_mul_u32_u24 v249, 1280, v249
    v_cndmask_b32 v252, v252, v248, vcc
    v_add_u32 v252, v252, v249""")
    srd(b, 96, P_WO, 640 * 1280)
    b("buffer_load_dword v254, v252, s[96:99], 0 offen")
    return [a, b]

def role_B():
    p = Prog(); nstamp[0] = 0
    LN, L15, G, Z = BL, B15, BG, BZ
    p("roleB:")
    stamp(p)
    if opt('bm', 1) == 0:
        p("""s_and_b32 s69, s2, 7
        s_mul_i32 s69, s69, 10
        s_lshr_b32 s70, s2, 3
        s_sub_u32 s70, s70, 16
        s_add_u32 s69, s69, s70""")
    else:
        p("""s_and_b32 s71, s2, 7
        s_lshr_b32 s70, s2, 3
        s_sub_u32 s70, s70, 16
        s_lshl_b32 s69, s71, 3
        s_add_u32 s69, s69, s70
        s_lshl_b32 s71, s71, 1
        s_add_u32 s71, s71, s70
        s_add_u32 s71, s71, 56
        s_cmp_ge_u32 s70, 8
        s_cselect_b32 s69, s71, s69""")
    kg_lanes(p)
    p(f"s_lshl_b32 s71, s69, 3\n s_add_u32 s71, s71, s68")
    kg_params(p, 's71', PR)
    pf = prefetch1()[:opt('pfb', 5)]; NOW = opt('pfnow', 5)
    srd(p, S_WSB, P_WS, WS_SIZE)
    token_load(p, S_WSB, Z)
    for b in pf[:NOW]: p.extend(b)
    p(f"""s_lshr_b32 s80, s69, 3
    s_lshl_b32 s39, s80, 12
    s_add_u32 s39, s39, {WS_UF}
    s_lshl_b32 s101, s69, 2
    s_add_u32 s101, s101, s68
    s_lshl_b32 s101, s101, 7
    s_add_u32 s101, s101, {WS_YF}
    s_lshl_b32 s6, s69, 15
    s_lshl_b32 s7, s68, 13
    s_add_u32 s6, s6, s7
    s_add_u32 s6, s6, {WS_YT}
    s_add_u32 s7, s6, 4096
    v_lshlrev_b32 v39, 4, v{LN}
    v_cmp_eq_u32 vcc, 0, v{LN}
    v_mov_b32 v15, {OOB:#x}
    v_cndmask_b32 v15, v15, v{Z}, vcc""")
    tk = Prog(); token_make(tk)
    sched = {30: [tk]}
    for k, b in enumerate(pf[NOW:]): sched.setdefault(opt('pfa', 0) + opt('pfd', 3) * k, []).append(b)
    for k, b in enumerate(prefetch2()): sched.setdefault(opt('pf2a', 30) + 3 * k, []).append(b)
    if not UT:
        p("s_lshl_b32 s80, s69, 4")
        srd(p, S_U, P_U, 0, 's80')
        p(f"""s_sub_u32 s{S_U+2}, {2048*1280}, s80
        v_mul_u32_u24 v6, 1280, v{LN}
        s_and_b32 s90, s69, 7
        s_lshl_b32 s81, s68, 3
        s_add_u32 s90, s90, s81""")
        for i in range(8):
            q = Prog()
            q(f"""s_add_u32 s81, s90, {i}
            s_and_b32 s81, s81, 31
            s_mul_i32 s82, s81, {64*1280}
            s_lshl_b32 s81, s81, 10
            s_add_u32 m0, s81, {B_RAW+256}""")
            q(f"buffer_load_dwordx4 v6, {sr(S_U,4)}, s82 offen lds", tag='raw')
            sched.setdefault(opt('sidef', 10) if i == 0 else min(55, opt('side0', 40) + opt('siden', 2) * i), []).append(q)
    srd(p, S_O, P_OUT, 2048 * 2560)
    if opt('noB', 0): p("s_endpgm")
    kg_setup(p, B_KR, B_SC)
    t = 40
    p(f"""v_mov_b32 v20, 0
    v_mov_b32 v21, 0
    v_mov_b32 v22, 0
    v_mov_b32 v23, 0
    v_lshlrev_b32 v{t}, 4, v{L15}
    ds_write_b128 v{t}, v[20:23] offset:{B_RAW}
    v_and_b32 v{t}, 31, v0
    v_lshl_add_u32 v38, v{t}, 4, s83
    ds_write_b128 v38, v[20:23] offset:4096
    v_lshlrev_b32 v{t+1}, 5, v{L15}
    v_sub_u32 v{A_KB}, s83, v{t+1}
    v_lshl_add_u32 v{A_KB}, v{G}, 4, v{A_KB}
    v_add_u32 v{A_KB}, 480, v{A_KB}""")
    stamp(p)
    kgen(p, PR, sched)
    stamp(p)
    Y = 184; UB = 216
    p(f"""v_and_b32 v17, 31, v0
    v_lshlrev_b32 v17, 7, v17
    s_lshl_b32 s38, s69, 15
    s_lshl_b32 s80, s68, 13
    s_add_u32 s38, s38, s80
    s_add_u32 s38, s38, {WS_UT}
    s_add_u32 s80, s80, {B_RAW+256}""")
    if UT: pollall(p, "b_pu", S_WSB, 's39', 18, 17, opt('uslp', 4))
    stamp(p)
    for i in range(8 if UT else 0):
        p(f"s_add_u32 m0, s80, {1024*i}\n s_nop 0\n buffer_load_dwordx4 v39, {sr(S_WSB,4)}, s38 offen sc1 lds\n s_add_u32 s38, s38, 1024", tag='raw')
    p(f"""v_bfe_u32 v{t}, v0, 2, 2
    v_lshl_add_u32 v{t}, v{G}, 3, v{t}
    v_bfe_u32 v{t+1}, v0, 1, 1
    v_lshl_add_u32 v{t}, v{t+1}, 2, v{t}
    v_lshlrev_b32 v{t}, 4, v{t}
    v_and_b32 v{t+1}, 1, v0
    v_lshl_add_u32 v{t}, v{t+1}, 3, v{t}
    s_lshl_b32 s80, s68, 9
    v_add_u32 v{t}, s80, v{t}
    v_and_b32 v{t+1}, 7, v0
    v_mul_u32_u24 v{t+1}, {2*CP}, v{t+1}
    v_bfe_u32 v{t+2}, v0, 3, 1
    v_lshl_add_u32 v{t+1}, v{t+2}, 3, v{t+1}
    v_lshl_add_u32 v{t+1}, v{G}, 4, v{t+1}
    s_lshl_b32 s80, s68, 6
    s_add_u32 s80, s80, {B_UC}
    v_add_u32 v{t+1}, s80, v{t+1}
    s_cmp_eq_u32 s68, 0
    s_cselect_b32 s80, 2, 0
    v_cmp_gt_u32 vcc, s80, v{G}
    v_mov_b32 v{t+2}, {B_END - 4096}
    s_mul_i32 s81, s68, {2*CP}
    v_cndmask_b32 v{t+3}, v{t+2}, v{t+1}, vcc
    s_add_u32 s81, s81, {B_UC}
    v_and_b32 v{t+4}, 1, v0
    v_mul_u32_u24 v{t+4}, {CP}, v{t+4}
    v_lshrrev_b32 v{t+5}, 1, v{L15}
    v_lshl_add_u32 v{t+5}, v{G}, 2, v{t+5}
    v_lshl_add_u32 v{t+4}, v{t+5}, 2, v{t+4}
    v_add_u32 v{UB}, s81, v{t+4}
    v_add_u32 v{UB+1}, 1024, v{UB}
    v_add_u32 v{UB+2}, 2048, v{UB}
    v_add_u32 v{UB+3}, 3072, v{UB}
    s_mul_i32 s80, s68, {YP}
    v_lshlrev_b32 v{t+4}, 5, v{L15}
    v_lshl_add_u32 v{t+4}, v{G}, 3, v{t+4}
    v_add_u32 v{UB+4}, s80, v{t+4}
    s_lshl_b32 s90, s69, 2
    s_add_u32 s90, s90, s68
    s_lshl_b32 s91, s90, 12
    s_add_u32 s91, s91, {WS_KR}
    s_lshl_b32 s90, s90, 7
    s_add_u32 s90, s90, {WS_KF}
    s_sub_u32 s92, s84, s83
    v_add_u32 v38, s92, v38""")
    p(f"""v_bfe_u32 v224, v0, 2, 2
    v_mul_u32_u24 v224, {YP}, v224
    v_and_b32 v225, 3, v0
    v_lshl_add_u32 v224, v225, 3, v224
    v_lshl_add_u32 v224, v{G}, 5, v224
    s_lshl_b32 s80, s68, 10
    v_add_u32 v224, s80, v224""")
    if YT:
        p(f"""s_lshr_b32 s80, s69, 3
        s_and_b32 s81, s69, 7
        s_lshl_b32 s81, s81, 2
        s_add_u32 s81, s81, s68
        s_lshl_b32 s96, s80, 18
        s_lshl_b32 s82, s81, 10
        s_add_u32 s96, s96, s82
        s_add_u32 s96, s96, {WS_YT}
        s_mul_i32 s97, s81, {64*2560}
        s_lshl_b32 s80, s80, 7
        s_add_u32 s97, s97, s80
        s_add_u32 s97, s97, 1280
        s_mul_i32 s98, s68, 8448
        s_add_u32 s98, s98, {B_UC}
        v_lshrrev_b32 v226, 3, v{LN}
        v_and_b32 v227, 7, v0
        v_lshlrev_b32 v228, 15, v226
        v_lshl_add_u32 v228, v227, 7, v228
        v_mul_u32_u24 v229, 1040, v227
        v_lshl_add_u32 v229, v226, 4, v229
        v_add_u32 v229, s98, v229
        v_mul_u32_u24 v230, 2560, v226
        v_lshl_add_u32 v230, v227, 4, v230
        s_nop 0""")
    p.waitvm('raw'); p("s_waitcnt lgkmcnt(0)\n s_barrier")
    stamp(p)
    p(f"ds_write_b128 v38, v[20:23] offset:4096")
    jobs = [(k, pp) for k in range(17) for pp in range(2)]
    NBUF = 8
    def rdj(n):
        k, pp = jobs[n]; p(f"ds_read_b64_tr_b16 {vr(48+2*(n%NBUF),2)}, v{t} offset:{B_RAW + 16*(1+pp) + 2048*k}")
    def wrj(n):
        k, pp = jobs[n]
        p(f"ds_write_b64 v{t+3 if k == 16 else t+1}, {vr(48+2*(n%NBUF),2)} offset:{pp*CP + 256*k}")
    for n in range(NBUF): rdj(n)
    if YT: p("v_mov_b32 v8, -1\n v_mov_b32 v9, -1\n v_mov_b32 v10, -1\n v_mov_b32 v11, -1")
    for n in range(len(jobs)):
        wrj(n)
        if n + NBUF < len(jobs): rdj(n + NBUF)
        if YT and n % 4 == 1 and n // 4 < 8:
            jj = n // 4; p(f"buffer_store_dwordx4 v[8:11], v39, {sr(S_WSB,4)}, {'s6' if jj < 4 else 's7'} offen offset:{1024*(jj%4)} sc1")
    def fa(b, a): return ar((b % 2) * 64 + 4 * a, 4)
    def fb(b, c): return ar((b % 2) * 64 + 32 + 4 * c, 4)
    def reads(b, kind='ku'):
        q = Prog()
        for a in range(8):
            o = 128 * (a % 2) + 16 * b; r0 = (b % 2) * 64 + 4 * a
            if 'k' in kind: q(f"ds_read_b128 {fb(b,a)}, v{A_KB} offset:{512*(7-a)+64*b}")
            if 'u' in kind:
                q(f"ds_read2_b32 {ar(r0,2)}, v{UB+a//2} offset0:{o} offset1:{o+1}")
                q(f"ds_read2_b32 {ar(r0+2,2)}, v{UB+a//2} offset0:{o+2} offset1:{o+3}")
        return q
    def krdma(tag):
        for i in range(4):
            p(f"s_add_u32 m0, s84, {1024*i}\n s_nop 0\n buffer_load_dwordx4 v39, {sr(S_WSB,4)}, s91 offen sc1 lds\n s_add_u32 s91, s91, 1024", tag=tag)
    p("s_mov_b32 s93, 0\n s_mov_b32 s95, 0\n s_waitcnt lgkmcnt(0)\n s_barrier")
    stamp(p)
    p("b_conv:")
    p.extend(reads(0))
    prs = sorted([(a, c) for c in range(8) for a in range(c + 1)], key=lambda x: (max(x[0], x[1] - x[0]), x[1]))
    EB = opt('eb', 5)
    if opt('cord', 1):
        prs = sorted(prs, key=lambda x: (max(x[0], x[1] - x[0]), x[0] > x[1] - x[0], x[1]))
        if opt('cord', 1) == 2: prs = prs[:-6] + [(0, 6), (1, 7), (6, 6), (0, 7), (6, 7), (7, 7)]
    for b in range(8):
        m = Prog(); seen = set(); lvl = -1
        for a, c in prs:
            first = b == 0 and c not in seen; seen.add(c)
            if max(a, c - a) != lvl and (b == 0 or max(a, c - a) in (0, 4)):
                lvl = max(a, c - a); hi = lvl if b == 0 else lvl + 3
                m.need([fa(b, x) for x in range(lvl, hi + 1)] + [fb(b, x) for x in range(lvl, hi + 1)])
            mfma(m, vr(Y + 4 * c, 4), fa(b, a), fb(b, c - a), '0' if first else None)
        if b == EB: p(f"buffer_load_dword v7, v{Z}, {sr(S_WSB,4)}, s90 offen sc1")
        if b == EB + 1:
            p(f"""v_cmp_eq_u32 vcc, v{V_TOK}, v7
            s_cmp_lg_u32 s93, 0
            s_cselect_b64 s[80:81], 0, -1
            s_and_b64 vcc, vcc, s[80:81]""")
            p("s_cbranch_scc0 b_noearly", tag='keep')
            krdma('offpath')
            p("s_mov_b32 s95, 1", tag='offpath')
            p("b_noearly:")
            if YT: p(f"buffer_load_dword v18, v17, {sr(S_WSB,4)}, s101 offen sc1")
        p.extend(pack(m, [(singles(reads(b + 1)), 2, 30)] if b < 7 else [], cap=4))
    for c in range(8):
        d = 40 + 2 * (c % 4)
        p(f"v_cvt_pk_bf16_f32 v{d}, v{Y+4*c}, v{Y+4*c+1}\n v_cvt_pk_bf16_f32 v{d+1}, v{Y+4*c+2}, v{Y+4*c+3}")
        p(f"ds_write_b64 v{UB+4}, {vr(d,2)} offset:{B_RAW+512*c}")
    p("s_cmp_lg_u32 s93, 0")
    p("s_cbranch_scc1 b_fin", tag='keep')
    stamp(p)
    p(f"""s_mov_b32 s93, 1
    v_add_u32 v{A_KB}, s92, v{A_KB}""")
    for k in range(4): p(f"v_add_u32 v{UB+k}, {8*CP}, v{UB+k}")
    p(f"v_add_u32 v{UB+4}, {4*YP}, v{UB+4}\n s_cmp_eq_u32 s95, 1")
    p("s_cbranch_scc1 b_have", tag='keep')
    p(f"s_mov_b32 s94, {SPIN}")
    p("b_poll:")
    p(f"""buffer_load_dword v7, v{Z}, {sr(S_WSB,4)}, s90 offen sc1
    s_sub_u32 s94, s94, 1
    s_waitcnt vmcnt(0)
    v_cmp_eq_u32 vcc, v{V_TOK}, v7
    s_cmp_eq_u32 s94, 0
    s_cbranch_scc1 b_got
    s_cmp_eq_u64 vcc, 0
    s_cbranch_scc1 b_poll""")
    p("b_got:")
    krdma(None)
    p("b_have:")
    p(f"s_waitcnt vmcnt(0)\n buffer_store_dword v{V_TOK}, v15, {sr(S_WSB,4)}, s101 offen sc1\n s_add_u32 s101, s39, {WS_YF-WS_UF}\n s_branch b_conv")
    p("b_fin:")
    p("s_waitcnt vmcnt(0)")
    stamp(p)
    if not YT:
        p(f"""v_mul_u32_u24 v225, 2560, v{LN}
        s_mul_i32 s80, s68, {512*2560}
        s_lshl_b32 s81, s69, 4
        s_add_u32 s80, s80, s81
        s_add_u32 s80, s80, 1280
        s_waitcnt lgkmcnt(0)
        s_barrier""")
        for it in range(8):
            for h in range(2):
                p(f"ds_read_b64_tr_b16 {vr(56+4*it+2*h,2)}, v224 offset:{B_RAW + h*4*YP + 128*it}")
        for it in range(8):
            p(f"buffer_store_dwordx4 {vr(56+4*it,4)}, v225, {sr(S_O,4)}, s80 offen\n s_add_u32 s80, s80, {64*2560}")
        stamp(p); stamp(p); stamp(p)
        stamp_store(p, S_WSB)
        p("s_endpgm")
        return p
    p(f"v_cmp_eq_u32 vcc, v{V_TOK}, v18\n s_nop 1\n s_cmp_eq_u64 vcc, -1")
    p("s_cbranch_scc1 b_pf_x")
    pollall(p, "b_pf", S_WSB, 's101', 18, 17)
    p(f"s_mov_b32 s94, {SPIN}")
    p("s_waitcnt lgkmcnt(0)\n s_barrier")
    for it in range(8):
        for h in range(2):
            p(f"ds_read_b64_tr_b16 {vr(56+4*it+2*h,2)}, v224 offset:{B_RAW + h*4*YP + 128*it}")
    for it in range(8):
        p(f"buffer_store_dwordx4 {vr(56+4*it,4)}, v39, {sr(S_WSB,4)}, {'s6' if it < 4 else 's7'} offen offset:{1024*(it%4)} sc1")
    stamp(p)
    p("b_yp:")
    p(f"""buffer_load_dword v19, v228, {sr(S_WSB,4)}, s96 offen sc1
    s_sub_u32 s94, s94, 1
    s_waitcnt vmcnt(0)
    v_cmp_ne_u32 vcc, -1, v19
    s_cmp_lt_i32 s94, 1
    s_cbranch_scc1 b_yg
    s_cmp_eq_u64 vcc, -1
    s_cbranch_scc1 b_yg
    s_sleep {opt('yslp', 8)}
    s_branch b_yp""")
    p("b_yg:")
    stamp(p)
    p("s_mov_b32 s82, s96")
    for j in range(8):
        p(f"s_add_u32 m0, s98, {1040*j}\n s_nop 0\n buffer_load_dwordx4 v39, {sr(S_WSB,4)}, s82 offen sc1 lds\n s_add_u32 s82, s82, 32768")
    p("v_mov_b32 v18, 0\n s_waitcnt vmcnt(0)")
    for i in range(8): p(f"ds_read_b128 {vr(56+4*i,4)}, v229 offset:{128*i}")
    for i in range(8): p(f"v_max3_u32 v18, v18, v{56+4*i}, v{57+4*i}\n v_max3_u32 v18, v18, v{58+4*i}, v{59+4*i}")
    p(f"""v_cmp_eq_u32 vcc, -1, v18
    s_cmp_lt_i32 s94, 1
    s_cbranch_scc1 b_yo
    s_cmp_lg_u64 vcc, 0
    s_cbranch_scc1 b_yp""")
    p("b_yo:")
    for i in range(8):
        p(f"buffer_store_dwordx4 {vr(56+4*i,4)}, v230, {sr(S_O,4)}, s97 offen {OPT.get('bst', 'sc1')}\n s_add_u32 s97, s97, {8*2560}")
    stamp(p)
    stamp_store(p, S_WSB)
    p("s_endpgm")
    return p

def role_S():
    p = Prog(); nstamp[0] = 32
    p("roleS:")
    p(f"""s_getpc_b64 s[40:41]
    cpf_here:
    s_sub_u32 s40, s40, cpf_here-{NAME}_kernel
    s_subb_u32 s41, s41, 0
    s_lshr_b32 s42, s2, 3
    s_and_b32 s42, s42, 1
    s_lshl_b32 s42, s42, 15
    v_lshlrev_b32 v8, 7, v0
    v_add_u32 v8, s42, v8
    v_cmp_gt_u32 vcc, code_end-{NAME}_kernel, v8
    v_cndmask_b32 v8, 0, v8, vcc
    global_load_dword v254, v8, s[40:41]""")
    if STAMP: p("v_mov_b32 v255, 0")
    stamp(p)
    p(f"s_sub_u32 s69, s2, 208")
    kg_lanes(p)
    p(f"""s_lshl_b32 s90, s69, 2
    s_add_u32 s90, s90, s68
    s_lshl_b32 s71, s69, 3
    s_add_u32 s71, s71, s68
    s_add_u32 s71, s71, 4""")
    kg_params(p, 's71', PR)
    p(f"s_add_u32 s71, s71, 384\n s_min_u32 s71, s71, 639")
    kg_params(p, 's71', PR + 6)
    srd(p, S_U, P_WS, WS_ZERO_END)
    srd(p, S_O, P_DBG, 256)
    srd(p, S_WSB, P_WS, WS_SIZE)
    token_load(p, S_WSB, BZ)
    p(f"""s_lshl_b32 s70, s69, 12
    v_lshlrev_b32 v6, 4, v0
    v_mov_b32 v20, 0
    v_mov_b32 v21, 0
    v_mov_b32 v22, 0
    v_mov_b32 v23, 0
""")
    p(f"buffer_store_dwordx4 v[20:23], v6, {sr(S_U,4)}, s70 offen sc1", tag='zero')
    srd(p, 96, P_U, 2048 * 1280)
    p(f"""v_lshrrev_b32 v240, 3, v{BL}
    v_mul_u32_u24 v240, 1280, v240
    v_and_b32 v241, 7, v0
    v_xor_b32 v241, v241, v{BG}
    v_lshl_add_u32 v240, v241, 4, v240
    v_xor_b32 v241, 64, v240
    v_add_u32 v241, {8*1280}, v241
    s_lshl_b32 s5, s68, 14""")
    for r in range(2 if UT else 0):
        p(f"""s_add_u32 s80, s90, {192*r}
        s_and_b32 s81, s80, 31
        s_lshr_b32 s82, s80, 5
        s_mul_i32 s81, s81, {64*1280}
        s_lshl_b32 s82, s82, 7
        s_add_u32 s82, s82, s81
        s_cmp_ge_u32 s80, 320
        s_cselect_b32 s82, {0x40000000}, s82""")
        for i in range(8):
            p(f"s_add_u32 m0, s5, {8192*r+1024*i}\n s_nop 0\n buffer_load_dwordx4 v{240+i%2}, s[96:99], s82 offen nt lds", tag=('ut', r))
            if i % 2: p(f"s_add_u32 s82, s82, {16*1280}")
    pfS = prefetch1()[:opt('pfs', 0 if UT else 5)]
    for b in pfS[:opt('pfnow', 5)]: p.extend(b)
    p(f"""s_cmp_lt_u32 s69, {NZERO_WG}
    s_cselect_b32 s4, 0, -1
    v_cmp_eq_u32 vcc, s4, v0
    v_mov_b32 v7, 1
    v_mov_b32 v38, {OOB:#x}
    v_cndmask_b32 v39, v38, v{BZ}, vcc""")
    kg_setup(p, S_KR, S_SC)
    p(f"""v_cmp_eq_u32 vcc, 0, v{BL}
    v_lshlrev_b32 v184, 4, v{BL}
    v_add_u32 v185, s83, v184
    v_cndmask_b32 v38, v38, v{BZ}, vcc
    v_bfe_u32 v242, v0, 1, 3
    v_lshlrev_b32 v242, 4, v242
    v_lshl_add_u32 v242, v{BL}, 7, v242
    v_add_u32 v242, s5, v242""")
    p.waitvm('zero')
    p(f"s_barrier\n buffer_atomic_add v7, v39, {sr(S_O,4)}, 0 offen sc1")
    token_make(p)
    if not UT: p(f"s_mov_b32 s6, {0x40000000}\n s_mov_b32 s7, {0x40000000}")
    for r in range(2 if UT else 0):
        p(f"""s_add_u32 s80, s90, {192*r}
        s_and_b32 s81, s80, 31
        s_lshr_b32 s82, s80, 5
        s_lshl_b32 s81, s81, 10
        s_lshl_b32 s82, s82, 18
        s_add_u32 s82, s82, s81
        s_add_u32 s82, s82, {WS_UT}
        s_lshl_b32 s{6+r}, s80, 7
        s_add_u32 s{6+r}, s{6+r}, {WS_UF}
        s_cmp_ge_u32 s80, 320
        s_cselect_b32 s82, {0x40000000}, s82
        s_cselect_b32 s{6+r}, {0x40000000}, s{6+r}""")
        p.waitvm(('ut', r))
        for j in range(8): p(f"v_xor_b32 v243, {16*j}, v242\n ds_read_b128 {vr(48+32*r+4*j,4)}, v243 offset:{8192*r}")
        for j in range(8): p(f"buffer_store_dwordx4 {vr(48+32*r+4*j,4)}, v184, {sr(S_WSB,4)}, s82 offen sc1\n s_add_u32 s82, s82, 32768")
    stamp(p)
    p("s_kloop:", tag='keep')
    fl = Prog()
    fl(f"""s_waitcnt vmcnt(0)
    buffer_store_dword v{V_TOK}, v38, {sr(S_WSB,4)}, s6 offen sc1
    buffer_store_dword v{V_TOK}, v38, {sr(S_WSB,4)}, s7 offen sc1""")
    sched = {opt('sfl', 24): [fl]}
    for k, b in enumerate(pfS[opt('pfnow', 5):]): sched.setdefault(opt('pfa', 0) + opt('pfd', 3) * k, []).append(b)
    for k, b in enumerate(prefetch2()): sched.setdefault(40 + 3 * k, []).append(b)
    kgen(p, PR, sched)
    for i in range(4): p(f"ds_read_b128 {vr(48+4*i,4)}, v185 offset:{1024*i}")
    p(f"s_lshl_b32 s91, s90, 12\n s_add_u32 s91, s91, {WS_KR}")
    for i in range(4): p(f"buffer_store_dwordx4 {vr(48+4*i,4)}, v184, {sr(S_WSB,4)}, s91 offen offset:{1024*i} sc1")
    p(f"""s_lshl_b32 s6, s90, 7
    s_add_u32 s6, s6, {WS_KF}
    s_mov_b32 s7, s6
    s_add_u32 s90, s90, 192""")
    for k in range(6): p(f"v_mov_b32 v{PR+k}, v{PR+6+k}")
    stamp(p)
    p("s_cmp_lt_u32 s90, 320\n s_cbranch_scc1 s_kloop")
    p(f"s_waitcnt vmcnt(0)\n buffer_store_dword v{V_TOK}, v38, {sr(S_WSB,4)}, s6 offen sc1")
    p("s_cmp_ge_u32 s2, 240")
    stamp(p)
    p("s_cbranch_scc1 s_done")
    srd(p, S_DBG, P_DBG, 256)
    if XM == 0:
        p("""s_and_b32 s72, s2, 7
        s_lshr_b32 s69, s72, 1
        s_lshl_b32 s69, s69, 2
        s_lshr_b32 s73, s2, 3
        s_sub_u32 s73, s73, 26
        s_add_u32 s69, s69, s73
        s_and_b32 s83, s72, 1""")
    else:
        p("""s_and_b32 s69, s2, 7
        s_lshl_b32 s69, s69, 1
        s_lshr_b32 s73, s2, 3
        s_sub_u32 s73, s73, 26
        s_and_b32 s83, s73, 1
        s_lshr_b32 s73, s73, 1
        s_add_u32 s69, s69, s73""")
    p(f"""s_add_u32 s83, s83, 8
    s_lshl_b32 s83, s83, 7
    s_mul_i32 s84, s68, {GR}
    v_and_b32 v{LN}, 63, v0
    v_mov_b32 v{V_Z}, 0""")
    setup_g2(p)
    for i in range(5): unpark(p, f'wo{i}', V_XO + i)
    for G in range(15, 19):
        for b in issue_group(G): p.extend(b)
    p(f"""v_and_b32 v249, 7, v0
    v_lshlrev_b32 v249, 13, v249
    s_lshl_b32 s85, s69, 9
    s_lshl_b32 s81, s68, 7
    s_add_u32 s85, s85, s81
    s_add_u32 s85, s85, {WS_KVF}""")
    pollall(p, "s_pf", S_WS, 's85', 248, 249, opt('slp', 8))
    p("s_branch g2_tail")
    p("s_done:")
    p(f"""s_cmp_lg_u32 s2, {999 if opt('noB', 0) else 255}
    s_cbranch_scc1 s_fin
    s_cmp_lg_u32 s68, 0
    s_cbranch_scc1 s_fin
""")
    for n, (base, cnt, r) in enumerate(((WS_KF, 48, 0), (WS_YF, 80, 0), (WS_YF, 80, 1), (WS_KVF, 128, 0), (WS_KVF, 128, 1))):
        p(f"""v_add_u32 v187, {64*r}, v{BL}
        v_min_u32 v187, {cnt-1}, v187
        v_lshlrev_b32 v187, 9, v187
        s_mov_b32 s91, {base}""")
        pollall(p, f"s_ep{n}", S_WSB, 's91', 186, 187, 16)
    p(f"""s_mov_b32 s4, {WS_EP}
    buffer_store_dword v{V_TOK}, v38, {sr(S_WSB,4)}, s4 offen sc1""")
    p("s_fin:")
    if STAMP:
        stamp_store(p, S_WSB)
    p("done:\n s_endpgm\n code_end:")
    return p

def main():
    LDS = max(A_END + 16, B_END + 4608)
    assert LDS <= 163840, LDS
    ref = open(f"cdna_kernels/{NAME}.s.ref").read().split('\n')
    hdr = [l for l in ref if l.startswith(';') and '@launch' not in l]
    s = '\n'.join(hdr) + f"\n; @launch grid=(256,1,1) block=(256,1,1) lds={LDS}\n"
    s += f""".amdgcn_target "amdgcn-amd-amdhsa--gfx950"
.text
.p2align 12
.globl {NAME}_kernel
.p2align 8
.type {NAME}_kernel,@function
{NAME}_kernel:
"""
    e = Prog()
    e(f"""s_cmp_ge_u32 s2, 256
    s_cbranch_scc1 done""")
    if opt('cpf2', 0):
        e(f"""s_getpc_b64 s[36:37]
        v_lshlrev_b32 v2, 7, v0
        s_cmp_ge_u32 s2, 128
        s_cselect_b32 s38, roleB-{NAME}_kernel, 0
        v_add_u32 v2, s38, v2
        v_min_u32 v2, code_end-{NAME}_kernel-64, v2
        global_load_dword v253, v2, s[36:37]""", tag='offpath')
    e(f"""
    s_load_dwordx16 s[8:23], s[0:1], 0
    s_load_dwordx8 s[24:31], s[0:1], 64
    s_load_dwordx4 s[32:35], s[0:1], 96
    v_lshrrev_b32 v1, 6, v0
    s_nop 0
    v_readfirstlane_b32 s68, v1
    s_cmp_ge_u32 s2, 208
    s_cbranch_scc1 roleS
    s_cmp_ge_u32 s2, 128
    s_cbranch_scc1 roleB""")
    a = role_A()
    e.extend(a)
    L = lower(e) + lower(role_B()) + lower(role_S())
    if opt('align', 1):
        L, nn, npro = align8(L, sizes_of(s + render(L) + ''.join(f'pg{k}:\n' for k in range(NPG))))
        print("align: nops", nn, "promoted", npro)
    if NPG:
        dummy = ''.join(f"pg{k}:\n" for k in range(NPG))
        L, n = page_stubs(L, sizes_of(s + render(L) + dummy), 4096 - 0x300, 'roleB')
        print("page stubs", n)
        assert n == NPG
    s += render(L)
    s += f""".section .rodata,"a"
.p2align 6
.amdhsa_kernel {NAME}_kernel
  .amdhsa_next_free_vgpr 512
  .amdhsa_next_free_sgpr 102
  .amdhsa_accum_offset 256
  .amdhsa_group_segment_fixed_size 0
  .amdhsa_kernarg_size 112
  .amdhsa_user_sgpr_count 2
  .amdhsa_user_sgpr_kernarg_segment_ptr 1
  .amdhsa_system_sgpr_workgroup_id_x 1
.end_amdhsa_kernel
"""
    out = OPT.get('out', f"cdna_kernels/{NAME}.s")
    open(out, 'w').write(s)
    print("LDS", LDS, "A_END", A_END, "B_END", B_END, "lines", s.count('\n'))
main()
```

```python
import sys, struct
from gasm import Prog, finalize, merge, spread, singles, pack, bundles, lower, render, sizes_of, align8, page_stubs
NAME = "concat_heads__linear_kernel_hedgehog__ssm_conv_s4d__prompt"
OPT = dict(a.split('=') for a in sys.argv[1:] if '=' in a)
def opt(k, d): return type(d)(OPT.get(k, d))
STAMP = opt('stamp', 0)
ROT = opt('rot', 2)
def f2u(x): return struct.unpack('<I', struct.pack('<f', x))[0]
def vr(a, n): return f"v[{a}:{a+n-1}]" if n > 1 else f"v{a}"
def ar(a, n): return f"a[{a}:{a+n-1}]" if n > 1 else f"a{a}"
def sr(a, n): return f"s[{a}:{a+n-1}]" if n > 1 else f"s{a}"
def magic(d): return (2**32 + d - 1) // d

WS_KV = 0; WS_ZERO_END = 32 * 4096; WS_KVF = WS_ZERO_END; WS_KF = WS_KVF + 65536; WS_UF = WS_KF + 40960; WS_YF = WS_UF + 40960; WS_EP = WS_YF + 40960
WS_O = 262144; WS_STAMP = 4 << 20; WS_SIZE = 8 << 20
NSPARE = 48
NZERO_WG = 32
assert WS_EP + 128 <= WS_O
V_TOK = 253
P_X, P_W, P_PHI, P_WO, P_U, P_LA, P_AI, P_CR, P_CI, P_LDT, P_DS, P_OUT, P_DBG, P_WS = [8 + 2 * i for i in range(14)]
OOB = 0x80000000
SPIN = 400000

def srd(p, s, ptr, size, off=None):
    if off is None:
        p(f"s_mov_b32 s{s}, s{ptr}\n s_mov_b32 s{s+1}, s{ptr+1}")
    else:
        p(f"s_add_u32 s{s}, s{ptr}, {off}\n s_addc_u32 s{s+1}, s{ptr+1}, 0")
    p(f"s_mov_b32 s{s+2}, {size}\n s_mov_b32 s{s+3}, 0x20000")

nstamp = [0]
def stamp(p, sreg_base=96):
    if not STAMP: return
    k = nstamp[0]; nstamp[0] += 1
    if k in (0, 32): p(f"s_getreg_b32 s36, hwreg(HW_REG_HW_ID)\n v_writelane_b32 v255, s36, 60\n s_getreg_b32 s36, hwreg(HW_REG_XCC_ID)\n v_writelane_b32 v255, s36, 59")
    if k == 0: p(f"s_memrealtime s[36:37]\n s_waitcnt lgkmcnt(0)\n v_writelane_b32 v255, s36, 62")
    p(f"s_memtime s[36:37]\n s_waitcnt lgkmcnt(0)\n v_writelane_b32 v255, s36, {k}")
def stamp_store(p, wsrd):
    if not STAMP: return
    if opt('dbgst', 0):
        if wsrd != S_WS: return
        srd(p, 96, P_DBG, 256)
        p(f"""s_waitcnt vmcnt(0)
        s_memtime s[36:37]
        s_waitcnt lgkmcnt(0)
        v_writelane_b32 v255, s36, 14
        s_cmp_ge_u32 s2, 128
        s_cbranch_scc1 dbg_skip
        v_readlane_b32 s36, v255, 0
        v_and_b32 v250, 63, v0
        v_subrev_u32 v255, s36, v255
        v_lshlrev_b32 v249, 2, v250
        v_mov_b32 v248, {OOB:#x}
        v_cmp_gt_u32 vcc, 15, v250
        v_cndmask_b32 v249, v248, v249, vcc
        buffer_atomic_umax v255, v249, s[96:99], 4 offen sc1
        dbg_skip:""")
        return
    p(f"s_waitcnt vmcnt(0)\n s_memtime s[36:37]\n s_waitcnt lgkmcnt(0)\n v_writelane_b32 v255, s36, 61\n s_memrealtime s[36:37]\n s_waitcnt lgkmcnt(0)\n v_writelane_b32 v255, s36, 63")
    p(f"""s_lshl_b32 s36, s2, 2
    s_add_u32 s36, s36, s68
    s_lshl_b32 s36, s36, 8
    s_add_u32 s36, s36, {WS_STAMP}
    v_and_b32 v250, 63, v0
    v_lshlrev_b32 v250, 2, v250
    buffer_store_dword v255, v250, {sr(wsrd,4)}, s36 offen""")

def token_load(p, wsrd, vz):
    p(f"s_mov_b32 s4, {WS_EP}\n buffer_load_dword v{V_TOK}, v{vz}, {sr(wsrd,4)}, s4 offen sc1")
def token_make(p):
    p(f"""s_mov_b32 s4, 0x9e3779b1
    v_mul_lo_u32 v{V_TOK}, v{V_TOK}, s4
    v_add_u32 v{V_TOK}, 0x7f4a7c15, v{V_TOK}""")
def token_seen(p, dsrd, vt):
    p(f"""v_cmp_eq_u32 vcc, 0, v0
    v_mov_b32 v{vt}, {OOB:#x}
    v_mov_b32 v{V_CNT}, 1
    v_cndmask_b32_e64 v{vt}, v{vt}, 0, vcc
    buffer_atomic_add v{V_CNT}, v{vt}, {sr(dsrd,4)}, 8 offen sc1""")
def spinpoll(p, name, srdreg, soff, vt, va, cmp, init, period=None):
    period = period or opt('period', 24)
    p(f"v_mov_b32 v{vt}, {init}" if init is not None else f"v_not_b32 v{vt}, v{V_TOK}", tag='offpath')
    p(f"{name}:")
    p(f"""buffer_load_dword v{vt}, v{va}, {sr(srdreg,4)}, {soff} offen sc1
    s_mov_b32 s95, {period}""", tag='offpath')
    p(f"{name}_i:")
    p(f"""{cmp}
    s_sub_u32 s94, s94, 1
    s_cbranch_scc1 {name}_x
    s_cmp_eq_u64 vcc, -1
    s_cbranch_scc1 {name}_x
    s_sub_u32 s95, s95, 1
    s_cbranch_scc0 {name}_i
    s_waitcnt vmcnt(24)
    s_branch {name}""", tag='offpath')
    p(f"{name}_x:")
def pollall(p, name, srdreg, soff, vt, va, slp=0):
    p(f"s_mov_b32 s94, {SPIN}")
    p(f"{name}:")
    p(f"""buffer_load_dword v{vt}, v{va}, {sr(srdreg,4)}, {soff} offen sc1
    s_sub_u32 s94, s94, 1
    s_waitcnt vmcnt(0)
    v_cmp_eq_u32 vcc, v{V_TOK}, v{vt}
    s_cmp_eq_u32 s94, 0""")
    p(f"s_cbranch_scc1 {name}_x", tag='keep')
    p(f"s_cmp_eq_u64 vcc, -1")
    if slp:
        p(f"s_cbranch_scc1 {name}_x", tag='keep')
        p(f"s_sleep {slp}\n s_branch {name}", tag='keep')
    else: p(f"s_cbranch_scc0 {name}", tag='keep')
    p(f"{name}_x:")

A_RING = 0; NSLOT = 16; GR = 5120
A_PHIK = NSLOT * GR; PHI_RS = 352
A_VST = A_PHIK + 128 * PHI_RS
A_BD = A_VST + 20480
A_END = A_BD + 12800
A_KVIMG = A_PHIK
S_X, S_W, S_WO, S_WS, S_OUT, S_DBG, S_PHI = 40, 44, 48, 52, 56, 60, 64
V_XO = 1
V_XD = 5
V_WD = 9
V_TA = 14
V_Z = 22; V_T = 23
V_WF = 32
V_KA = 112; V_VA = 152; V_PA = 192; V_X = 240
OLD = 'sc1' if opt('osc1', 0) else ''

def mfma(p, d, a, b, c=None):
    p(f"v_mfma_f32_16x16x32_bf16 {d}, {a}, {b}, {d if c is None else c}")
def mfma32(p, d, a, b, c=None):
    p(f"v_mfma_f32_32x32x16_bf16 {d}, {a}, {b}, {d if c is None else c}")

LN = V_T; t = V_T + 1
parked = {}
def park(p, name, v):
    if name not in parked: parked[name] = 204 + len(parked)
    assert parked[name] < 256
    p(f"v_accvgpr_write_b32 a{parked[name]}, v{v}")
def unpark(q, name, v): q(f"v_accvgpr_read_b32 v{v}, a{parked[name]}")

def trbase(p, d, rowk, rowrho, extra=0):
    p(f"""v_bfe_u32 v{t}, v0, 5, 1
    v_mul_u32_u24 v{t}, {rowk}, v{t}
    v_bfe_u32 v{t+1}, v0, 2, 2
    v_mul_u32_u24 v{t+1}, {rowrho}, v{t+1}
    v_bfe_u32 v{t+2}, v0, 4, 1
    v_lshl_add_u32 v{t}, v{t+2}, 5, v{t}
    v_and_b32 v{t+2}, 3, v0
    v_lshl_add_u32 v{t}, v{t+2}, 3, v{t}
    v_add_u32 v{d}, v{t}, v{t+1}""")
    if extra: p(f"v_add_u32 v{d}, {extra}, v{d}")

def setup_g2(p):
    srd(p, S_WO, P_WO, 640 * 1280)
    srd(p, S_WS, P_WS, WS_SIZE)
    p(f"s_mul_i32 s78, s69, {128*2560}\n s_add_u32 s78, s78, s83")
    srd(p, S_OUT, P_OUT, 0, 's78')
    p(f"s_sub_u32 s{S_OUT+2}, {2048*2560}, s78")
    p(f"""s_lshr_b32 s100, s83, 7
    s_and_b32 s79, s100, 3
    s_cmp_ge_u32 s100, 8
    s_cselect_b32 s100, 4, s79
    s_mul_i32 s100, s100, {13 if opt('grot', 0) else 0}
    s_lshr_b32 s100, s100, 3
    s_lshr_b32 s79, s68, 1
    s_add_u32 s79, s79, s100
    s_and_b32 s85, s68, 1
    s_mul_i32 s85, s85, 40
    s_lshl_b32 s78, s69, 2
    s_add_u32 s78, s78, s68
    s_mul_i32 s78, s78, 40960
    s_add_u32 s92, s78, {WS_O}""")
    for i in range(5):
        p(f"""v_lshrrev_b32 v{t}, 3, v{LN}
        v_add_u32 v{t}, s85, v{t}
        v_add_u32 v{t}, {8*i}, v{t}
        v_lshrrev_b32 v{t+1}, 4, v{t}
        v_and_b32 v{t+2}, 7, v{t}
        v_lshl_add_u32 v{t+1}, v{t+1}, 3, v{t+2}
        v_bfe_u32 v{t+2}, v{t}, 3, 1
        v_mad_u32_u24 v{t+2}, v{t+2}, 20, v{t+1}
        v_add_u32 v{t+3}, 20, v{t+2}
        v_cmp_le_u32 vcc, 20, v{t+1}
        v_cndmask_b32 v{t+2}, v{t+2}, v{t+3}, vcc
        v_mul_u32_u24 v{t+2}, 1280, v{t+2}
        v_bfe_u32 v{t}, v{t}, 1, 1
        v_lshlrev_b32 v{t}, 2, v{t}
        v_and_b32 v{t+1}, 7, v0
        v_xor_b32 v{t}, v{t}, v{t+1}
        v_lshl_add_u32 v{t}, v{t}, 4, v{t+2}""")
        park(p, f'wo{i}', t)
    trbase(p, t + 3, 8 * 128, 128)
    p(f"""v_bfe_u32 v{t}, v0, 3, 1
    v_lshl_add_u32 v{t+3}, v{t}, 6, v{t+3}""")
    park(p, 'two', t + 3)
    p(f"""s_add_u32 s78, s84, {A_VST}
    v_and_b32 v{t}, 31, v0
    v_mul_u32_u24 v{t}, 144, v{t}
    v_bfe_u32 v{t+1}, v0, 5, 1
    v_lshl_add_u32 v{t}, v{t+1}, 3, v{t}
    v_add_u32 v{t}, s78, v{t}""")
    park(p, 'outw', t)
    p(f"""v_lshrrev_b32 v{t}, 3, v{LN}
    v_and_b32 v{t+1}, 7, v0
    v_lshlrev_b32 v{t+1}, 4, v{t+1}
    v_mul_u32_u24 v{t+2}, 144, v{t}
    v_add3_u32 v{t+2}, v{t+2}, v{t+1}, s78
    v_mul_u32_u24 v{t}, 2560, v{t}
    v_add_u32 v{t}, v{t}, v{t+1}""")
    park(p, 'outr', t + 2); park(p, 'outg', t)

def dma_bundles(G, hdr, items):
    B = []
    hdr(items[0][0]); B.append(hdr)
    for k, (m0, ld) in enumerate(items):
        q = Prog(); q(ld, tag=('dma', G))
        if k + 1 < len(items): q(items[k + 1][0])
        B.append(q)
    return B
def issue_group(G):
    slotbase = A_RING + (G % 4) * 4 * GR
    h = Prog()
    if G < 10:
        h(f"s_mul_i32 s86, s80, {64*3840}\n s_add_u32 s86, s86, s82\n s_lshl_b32 s81, s80, 7")
        h(f"s_add_u32 s80, s80, 1\n s_cmp_eq_u32 s80, 10\n s_cselect_b32 s80, 0, s80")
        sd = S_W
    elif G < 15:
        h(f"""s_lshl_b32 s86, s71, 1
        s_add_u32 s86, s86, s68
        s_add_u32 s86, s86, {4*(G-10)}
        s_sub_u32 s74, s86, 20
        s_cmp_ge_u32 s86, 20
        s_cselect_b32 s86, s74, s86
        s_mul_i32 s86, s86, {32*3840}
        s_add_u32 s86, s86, s75""")
        sd = S_W
    else:
        h(f"s_add_u32 s86, s79, {2*(G%4)}\n s_and_b32 s86, s86, 7\n s_mul_i32 s86, s86, {80*1280}\n s_add_u32 s86, s86, s83")
        sd = S_WO
    W = [(f"s_add_u32 m0, s84, {slotbase + 1024*i}", f"buffer_load_dwordx4 v{V_QD[i] if 10 <= G < 15 else (V_WD+i if G < 10 else V_XO+i)}, {sr(sd,4)}, s86 offen {'nt' if opt('ntw', 0) else ''} lds") for i in range(5)]
    if G < 10:
        X = [(f"s_add_u32 m0, s87, {(G%4)*4096 + 1024*r}", f"buffer_load_dwordx4 v{V_XD+r}, {sr(S_X,4)}, s81 offen {'nt' if opt('ntx', 0) else ''} lds") for r in range(4)]
        items = [W[0], X[0], W[1], X[1], W[2], X[2], W[3], X[3], W[4]]
    else: items = W
    return dma_bundles(G, h, items)
V_QD = [21, 29, 30, 31, 252]

OF = lambda n: 88 + 4 * n
G2ACC = 56
def gemm2_tail(p):
    F = V_WF
    p("g2_tail:")
    unpark(p, 'two', V_TA)
    p(f"""v_xor_b32 v{V_TA+1}, 64, v{V_TA}
    v_add_u32 v{V_TA+2}, {8*GR}, v{V_TA}
    v_add_u32 v{V_TA+3}, {8*GR}, v{V_TA+1}
    v_lshlrev_b32 v{t+2}, 4, v{LN}
    v_lshrrev_b32 v{t+4}, 3, v{LN}
    v_mul_u32_u24 v{t+4}, 5120, v{t+4}
    v_and_b32 v{t}, 7, v0
    v_lshl_add_u32 v{t+4}, v{t}, 7, v{t+4}
    s_mov_b32 s94, {SPIN}
    s_add_u32 s93, s92, 4096
    s_barrier""")
    unpark(p, 'outw', t); unpark(p, 'outr', t + 1); unpark(p, 'outg', t + 3)
    stamp(p)
    def reads(n):
        hq, pp = divmod(n, 5); q = Prog(); fb = F + (n % 3) * 8
        off = hq * 10240 + pp * 2048; hi = 0
        if hq >= 4: off -= 8 * GR; hi = 2
        for T in range(2):
            for h in range(2):
                q(f"ds_read_b64_tr_b16 {vr(fb+4*T+2*h,2)}, v{V_TA+hi+T} offset:{off + 512*h}")
        return q
    p("g2_retry:")
    p.extend(reads(0)); p.extend(reads(1))
    p(f"s_mul_i32 s76, s100, 5120\n s_add_u32 s76, s76, s92\n s_add_u32 s77, s92, 40960\n s_mov_b32 s81, s76\n v_mov_b32 v248, 0")
    def oload(n):
        q = Prog(); hq, pp = divmod(n, 5)
        if pp == 4: q(f"s_add_u32 s85, s81, 4096")
        q(f"buffer_load_dwordx4 {vr(OF(n),4)}, v{t+2}, {sr(S_WS,4)}, {'s85' if pp == 4 else 's81'} offen offset:{1024*(pp%4)} {OPT.get('old', 'sc1')}")
        if pp == 4: q("s_add_u32 s81, s81, 5120\n s_cmp_eq_u32 s81, s77\n s_cselect_b32 s81, s92, s81")
        return q
    PRE = opt('opre', 14); SPEC = opt('spec', 0)
    if opt('pw', 1): p("s_waitcnt vmcnt(0)")
    p(f"""buffer_load_dword v249, v{t+4}, {sr(S_WS,4)}, s93 offen sc1
    s_waitcnt vmcnt(0)
    v_cmp_ne_u32 vcc, -1, v249
    s_nop 1
    s_cmp_eq_u64 vcc, -1""")
    p("s_cbranch_scc1 g2_now", tag='keep')
    p("g2_poll:")
    if opt('gslp', 6): p(f"s_sleep {opt('gslp', 6)}")
    p(f"""buffer_load_dword v249, v{t+4}, {sr(S_WS,4)}, s93 offen sc1
    s_mov_b32 s81, s76
    s_sub_u32 s94, s94, 1""")
    if SPEC:
        for n in range(PRE): p.extend(oload(n))
    p(f"""v_cmp_ne_u32 vcc, -1, v249
    s_cmp_lt_i32 s94, 1""")
    p(f"s_cbranch_scc1 {'g2_go' if SPEC else 'g2_now'}", tag='keep')
    p("s_cmp_eq_u64 vcc, -1")
    p("s_cbranch_scc0 g2_poll", tag='keep')
    if SPEC: p("s_branch g2_go", tag='keep')
    p("g2_now:")
    for n in range(PRE):
        q = oload(n)
        if SPEC:
            for i_ in q.L: i_.tag = 'offpath'
        p.extend(q)
    p("g2_go:")
    stamp(p)
    for n in range(40):
        fb = F + (n % 3) * 8
        mm = Prog(); mm.need([vr(fb, 8), vr(OF(n), 4)])
        for T in range(2): mfma32(mm, vr(G2ACC + 16 * T, 16), vr(fb + 4 * T, 4), vr(OF(n), 4), '0' if n == 0 else None)
        st = []
        if n + 2 < 40: st.append((singles(reads(n + 2)), 0, 2))
        if n + PRE < 40: st.append(([oload(n + PRE)], 0, 1))
        c = Prog(); c(f"v_max3_u32 v248, v248, v{OF(n)}, v{OF(n)+1}\n v_max3_u32 v248, v248, v{OF(n)+2}, v{OF(n)+3}")
        st.append((singles(c), 1, 2))
        p.extend(pack(mm, st, cap=32))
    p(f"""v_cmp_eq_u32 vcc, -1, v248
    s_mul_i32 s78, s68, {32*2560}
    s_cmp_lt_i32 s94, 1""")
    p("s_cbranch_scc1 g2_out", tag='keep')
    p("s_sub_u32 s94, s94, 1\n s_nop 7\n s_nop 7")
    p("s_cbranch_vccnz g2_retry", tag='keep')
    p("g2_out:")
    stamp(p)
    for T in range(2):
        for j in range(4):
            x = G2ACC + 16 * T + 4 * j; o = 88 + 8 * T + 2 * j
            p(f"v_cvt_pk_bf16_f32 v{o}, v{x}, v{x+1}\n v_cvt_pk_bf16_f32 v{o+1}, v{x+2}, v{x+3}")
            p(f"ds_write_b64 v{t}, {vr(o,2)} offset:{64*T+16*j}")
    for i in range(4): p(f"ds_read_b128 {vr(104+4*i,4)}, v{t+1} offset:{8*144*i}")
    for i in range(4):
        p(f"buffer_store_dwordx4 {vr(104+4*i,4)}, v{t+3}, {sr(S_OUT,4)}, s78 offen {OPT.get('ast', 'sc1')}")
        if i < 3: p(f"s_add_u32 s78, s78, {8*2560}")
    stamp(p)
    stamp_store(p, S_WS)
    p("s_endpgm")

def divc(p, d, x, c):
    m, sh = {10: (205, 11), 20: (205, 12), 12: (171, 11), 5: (205, 10), 100: (41, 12)}[c]
    p(f"v_mul_u32_u24 v{d}, {m}, v{x}\n v_lshrrev_b32 v{d}, {sh}, v{d}")

V_PO = 160
V_D = 200
NPG = opt('npg', 6); XM = opt('xm', 0); YT = opt('yt', 1); UT = opt('ut', 0)
def decode_ab(p, tmp, sub, sb, hg):
    p(f"s_lshr_b32 {tmp}, s2, 3")
    if sub: p(f"s_sub_u32 {tmp}, {tmp}, {sub}")
    if XM == 0:
        p(f"""s_and_b32 s{sb}, s2, 6
        s_lshl_b32 s{sb}, s{sb}, 1
        s_and_b32 s{hg}, s2, 1
        s_lshl_b32 s{hg}, s{hg}, 2
        s_and_b32 s4, {tmp}, 3
        s_add_u32 s{hg}, s{hg}, s4
        s_lshr_b32 {tmp}, {tmp}, 2
        s_add_u32 s{sb}, s{sb}, {tmp}""")
    else:
        p(f"""s_and_b32 s{sb}, s2, 7
        s_lshl_b32 s{sb}, s{sb}, 1
        s_and_b32 s{hg}, {tmp}, 7
        s_lshr_b32 {tmp}, {tmp}, 3
        s_add_u32 s{sb}, s{sb}, {tmp}""")
def role_A():
    p = Prog(); nstamp[0] = 0
    p("roleA:")
    if opt('cpf3', 0):
        p(f"""s_cmp_lg_u32 s68, 0
        s_cbranch_scc1 a_c3
        s_getpc_b64 s[4:5]
        v_lshlrev_b32 v2, 7, v0""")
        for k in range(opt('cpf3', 0)):
            p(f"s_add_u32 s4, s4, {0xc80 if k == 0 else 8192}\n s_addc_u32 s5, s5, 0\n global_load_dword v254, v2, s[4:5]")
        p("a_c3:")
    stamp(p)
    decode_ab(p, 's73', 0, 69, 70)
    if ROT == 2:
        p("""s_add_u32 s71, s69, s70
        s_mul_i32 s71, s71, 3
        s_mul_i32 s74, s71, 205
        s_lshr_b32 s74, s74, 11
        s_mul_i32 s74, s74, 10
        s_sub_u32 s71, s71, s74""")
    else:
        p(f"s_mul_i32 s71, s71, {5 if ROT else 0}\n s_add_u32 s71, s71, {1 if ROT else 0}\n s_lshr_b32 s71, s71, 1")
    p(f"""v_and_b32 v{LN}, 63, v0
    v_mov_b32 v{V_Z}, 0""")
    p(f"""s_lshl_b32 s76, s68, 5
    v_lshrrev_b32 v{t}, 3, v{LN}
    v_add_u32 v{t}, s76, v{t}
    v_mul_u32_u24 v{t}, 1280, v{t}
    v_and_b32 v{t+1}, 7, v0
    v_bfe_u32 v{t+2}, v0, 4, 2
    v_xor_b32 v{t+1}, v{t+1}, v{t+2}
    v_lshl_add_u32 v{V_XD}, v{t+1}, 4, v{t}
    v_xor_b32 v{V_XD+1}, 64, v{V_XD}
    v_add_u32 v{V_XD+1}, {8*1280}, v{V_XD+1}
    v_add_u32 v{V_XD+2}, {16*1280}, v{V_XD}
    v_add_u32 v{V_XD+3}, {16*1280}, v{V_XD+1}""")
    p(f"s_movk_i32 s78, 1120")
    for i in range(5):
        p(f"v_add_u32 v{t}, {64*i}, v{LN}")
        divc(p, t + 1, t, 20)
        p(f"""v_mul_u32_u24 v{t+2}, 20, v{t+1}
        v_sub_u32 v{t}, v{t}, v{t+2}
        v_mul_u32_u24 v{t+1}, 3840, v{t+1}
        v_cmp_le_u32 vcc, 10, v{t}
        v_lshl_add_u32 v{t+1}, v{t}, 4, v{t+1}
        v_add_u32 v{t+2}, s78, v{t+1}
        v_cndmask_b32 v{V_WD+i}, v{t+1}, v{t+2}, vcc""")
    p(f"""s_mov_b32 s80, s71
    s_mul_i32 s75, s70, 160
    s_mul_i32 s82, s68, {16*3840}
    s_add_u32 s82, s82, s75
    s_add_u32 s82, s82, 1280
    s_lshl_b32 s83, s70, 7
    s_mul_i32 s84, s68, {GR}
    s_lshl_b32 s87, s68, 14
    s_add_u32 s87, s87, {A_PHIK}
    s_mul_i32 s78, s69, {128*1280}""")
    srd(p, S_X, P_X, 128 * 1280, 's78')
    srd(p, S_W, P_W, 640 * 3840)
    su = Prog()
    trbase(su, V_TA, 8 * 320, 320)
    su(f"""v_add_u32 v{V_TA+1}, {8*GR}, v{V_TA}
    v_and_b32 v{t}, 31, v0
    v_bfe_u32 v{t+1}, v0, 1, 3
    v_bfe_u32 v{t+2}, v0, 5, 1
    v_xor_b32 v{t+1}, v{t+1}, v{t+2}
    v_lshlrev_b32 v{t+1}, 4, v{t+1}
    v_lshl_add_u32 v{t}, v{t}, 7, v{t+1}
    v_add_u32 v{V_XO}, s87, v{t}
    v_xor_b32 v{V_XO+1}, 32, v{V_XO}
    v_xor_b32 v{V_XO+2}, 64, v{V_XO}
    v_xor_b32 v{V_XO+3}, 96, v{V_XO}""")
    su(f"""v_mov_b32 v{V_X+4}, 0
    v_mov_b32 v{V_X+5}, 0
    v_mov_b32 v{V_X+6}, 0
    v_mov_b32 v{V_X+7}, 0
    v_lshlrev_b32 v{t}, 4, v0
    v_add_u32 v{t}, {A_BD}, v{t}
    v_min_u32 v{t+1}, {A_BD+496}, v{t}
    ds_write_b128 v{t}, {vr(V_X+4,4)}
    ds_write_b128 v{t}, {vr(V_X+4,4)} offset:4096
    ds_write_b128 v{t}, {vr(V_X+4,4)} offset:8192
    ds_write_b128 v{t+1}, {vr(V_X+4,4)} offset:12288""")
    L2E = 1.4426950408889634
    su(f"s_mov_b32 s88, {f2u(L2E):#x}\n s_mov_b32 s89, {f2u(L2E):#x}")
    for r in range(2):
        su(f"v_add_u32 v{t}, {256*r}, v0")
        divc(su, t + 1, t, 5); divc(su, t + 2, t, 100)
        su(f"""v_mul_u32_u24 v{t+1}, 120, v{t+1}
        v_mad_u32_u24 v{t+1}, v{t+2}, 40, v{t+1}
        v_lshl_add_u32 v{t+1}, v{t}, 3, v{t+1}
        v_add_u32 v{V_X+8+r}, {A_BD}, v{t+1}""")
    su(f"""v_mov_b32 v{t+1}, {A_END}
    v_cmp_gt_u32 vcc, 400, v{t}
    v_cndmask_b32 v{V_X+9}, v{t+1}, v{V_X+9}, vcc""")
    srd(su, S_DBG, P_DBG, 256)
    for i in range(5):
        su(f"v_add_u32 v{t}, {64*i}, v{LN}")
        divc(su, t + 1, t, 10)
        su(f"""v_mul_u32_u24 v{t+2}, 10, v{t+1}
        v_sub_u32 v{t}, v{t}, v{t+2}
        v_and_b32 v{t+2}, 24, v{t+1}
        v_and_b32 v{t+3}, 1, v{t+1}
        v_lshl_add_u32 v{t+2}, v{t+3}, 2, v{t+2}
        v_bfe_u32 v{t+3}, v{t+1}, 1, 2
        v_add_u32 v{t+2}, v{t+2}, v{t+3}
        v_mul_u32_u24 v{t+2}, 3840, v{t+2}
        v_lshl_add_u32 v{V_QD[i]}, v{t}, 4, v{t+2}""")
    su(f"""v_bfe_u32 v{t}, v0, 5, 1
    v_bfe_u32 v{t+1}, v0, 2, 2
    v_lshl_add_u32 v{t}, v{t}, 2, v{t+1}
    v_mul_u32_u24 v{t}, 160, v{t}
    v_and_b32 v{t+1}, 1, v0
    v_mad_u32_u24 v{t}, v{t+1}, 40, v{t}
    v_bfe_u32 v{t+1}, v0, 4, 1
    v_bfe_u32 v{t+2}, v0, 1, 1
    v_lshl_add_u32 v{t+1}, v{t+1}, 1, v{t+2}
    v_lshl_add_u32 v{t}, v{t+1}, 3, v{t}
    v_add_u32 v18, {A_BD}, v{t}
    v_cmp_eq_u32 vcc, 0, v{t+1}
    v_add_u32 v19, 32, v18
    v_add_u32 v{t+2}, 72, v18
    v_cndmask_b32 v19, v{t+2}, v19, vcc
    v_cmp_gt_u32 vcc, 2, v{t+1}
    v_add_u32 v20, 104, v18
    v_nop
    v_cndmask_b32 v20, v18, v20, vcc""".replace("    v_nop\n", ""))
    trbase(su, t + 3, 8 * 160, 320); park(su, 'tq', t + 3)
    a0 = V_PA
    su(f"""v_and_b32 v{t}, 31, v0
    v_add_u32 v{t}, s76, v{t}
    v_bfe_u32 v{t+1}, v0, 5, 1
    v_mul_u32_u24 v{t+2}, {PHI_RS}, v{t}
    v_add_u32 v{t+2}, {A_PHIK}, v{t+2}
    v_bfe_u32 v{t+3}, v0, 2, 1
    v_mul_u32_u24 v{t+4}, 5, v{t+1}
    v_xor_b32 v{a0}, v{t+4}, v{t+3}
    v_lshl_add_u32 v{a0}, v{a0}, 4, v{t+2}
    v_add_u32 v{t+4}, 1, v{t+4}
    v_xor_b32 v{a0+1}, v{t+4}, v{t+3}
    v_lshl_add_u32 v{a0+1}, v{a0+1}, 4, v{t+2}
    v_mul_u32_u24 v{t}, 160, v{t}
    v_add_u32 v{t}, {A_VST}, v{t}
    v_bfe_u32 v{t+3}, v0, 2, 2
    v_xor_b32 v{t+3}, v{t+3}, v{t+1}
    v_lshl_add_u32 v{a0+2}, v{t+3}, 3, v{t}
    v_xor_b32 v{t+3}, 2, v{t+3}
    v_lshl_add_u32 v{a0+3}, v{t+3}, 3, v{t}""")
    park(su, 'phiw0', a0); park(su, 'phiw1', a0 + 1); park(su, 'vw0', a0 + 2); park(su, 'vw1', a0 + 3)
    su(f"""v_bfe_u32 v{t}, v0, 2, 4
    v_bfe_u32 v{t+1}, v0, 4, 2
    s_mul_i32 s78, s68, 5
    v_bfe_u32 v{t+2}, v0, 1, 1
    v_add_u32 v{t+2}, s78, v{t+2}
    v_and_b32 v{t+3}, 1, v{t+1}
    v_xor_b32 v{t+2}, v{t+2}, v{t+3}
    v_and_b32 v{t+3}, 1, v0
    v_lshlrev_b32 v{t+3}, 3, v{t+3}
    v_lshl_add_u32 v{t+2}, v{t+2}, 4, v{t+3}
    v_mul_u32_u24 v{t+3}, {PHI_RS}, v{t}
    v_add_u32 v{t+2}, v{t+2}, v{t+3}
    v_add_u32 v{a0}, {A_PHIK}, v{t+2}
    v_mul_u32_u24 v{t}, 160, v{t}
    v_add_u32 v{t}, {A_VST}, v{t}
    v_and_b32 v{t+2}, 3, v0
    v_add_u32 v{t+2}, s78, v{t+2}
    v_xor_b32 v{t+2}, v{t+2}, v{t+1}
    v_lshl_add_u32 v{a0+1}, v{t+2}, 3, v{t}
    s_add_u32 s78, s78, 4
    v_xor_b32 v{t+2}, s78, v{t+1}
    v_lshl_add_u32 v{a0+2}, v{t+2}, 3, v{t}""")
    park(su, 'phir', a0); park(su, 'vr0', a0 + 1); park(su, 'vr1', a0 + 2)
    a0 = V_PA
    su(f"""v_and_b32 v{t+3}, 15, v0
    v_bfe_u32 v{t+4}, v0, 4, 2
    v_cmp_gt_u32 s[90:91], 8, v{t+3}
    v_lshlrev_b32 v{t}, 2, v{t+3}
    v_mul_u32_u24 v{t+1}, 768, v{t+4}
    v_add_u32 v{a0}, v{t}, v{t+1}
    v_add_u32 v{t+1}, {192-32}, v{a0}
    v_cndmask_b32 v{a0+1}, v{t+1}, v{a0}, s[90:91]
    v_mul_u32_u24 v{t+1}, 192, v{t+4}
    v_add_u32 v{t+1}, {16*192}, v{t+1}
    v_add_u32 v{a0+2}, v{t+1}, v{t}
    v_mov_b32 v{t+2}, {OOB:#x}
    v_cmp_gt_u32 vcc, 40, v{LN}
    v_cndmask_b32 v{a0+3}, v{t+2}, v{a0+2}, s[90:91]
    v_lshlrev_b32 v{t+1}, 2, v{LN}
    v_add_u32 v{t+1}, {20*192}, v{t+1}
    v_cndmask_b32 v{a0+4}, v{t+2}, v{t+1}, vcc
    v_cmp_eq_u32 vcc, 0, v{LN}
    v_cmp_gt_u32 s[90:91], 4, v{t+3}
    v_cndmask_b32 v{a0+6}, v{t+2}, v{V_Z}, vcc""")
    for k in range(5): park(su, f'at{k}', a0 + k)
    park(su, 'l0', a0 + 6)
    su(f"s_mul_i32 s85, s68, 1920\n s_add_u32 s85, s85, {A_KVIMG}\n v_mov_b32 v{t+4}, {A_KVIMG+9600}")
    for i in range(4):
        su(f"v_add_u32 v{t}, {64*i}, v{LN}")
        divc(su, t + 1, t, 12)
        su(f"""v_mul_u32_u24 v{t+2}, 12, v{t+1}
        v_sub_u32 v{t+2}, v{t}, v{t+2}
        v_cmp_gt_u32 vcc, 10, v{t+2}
        v_mul_u32_u24 v{t+1}, 80, v{t+1}
        v_lshl_add_u32 v{t+1}, v{t+2}, 3, v{t+1}
        v_add_u32 v{t+1}, s85, v{t+1}
        v_cndmask_b32 v{t+1}, v{t+4}, v{t+1}, vcc""")
        if i == 3: su(f"v_cmp_gt_u32 vcc, 60, v{LN}\n v_cndmask_b32 v{t+1}, v{t+4}, v{t+1}, vcc")
        park(su, f'kvw{i}', t + 1)
    su(f"""v_cmp_gt_u32 vcc, 120, v0
    v_lshlrev_b32 v{t}, 4, v0
    v_add_u32 v{t}, {A_KVIMG+7680}, v{t}
    v_cndmask_b32 v{t}, v{t+4}, v{t}, vcc""")
    park(su, 'kvz', t)
    su(f"""v_bfe_u32 v{t}, v0, 3, 2
    v_and_b32 v{t+1}, 3, v0
    v_lshl_add_u32 v{t}, v{t}, 2, v{t+1}
    v_mul_u32_u24 v{t}, 80, v{t}
    v_bfe_u32 v{t+1}, v0, 2, 1
    v_bfe_u32 v{t+4}, v0, 5, 1
    v_cmp_eq_u32 vcc, v{t+1}, v{t+4}
    v_mul_u32_u24 v{t+2}, 1920, v{t+1}
    v_add_u32 v{t}, v{t}, v{t+2}
    v_add_u32 v{t}, {A_KVIMG}, v{t}
    v_add_u32 v{t+3}, 3840, v{t}
    v_mov_b32 v{t+2}, {A_KVIMG+7680}
    v_cndmask_b32 v{t}, v{t+2}, v{t}, vcc
    v_cndmask_b32 v{t+3}, v{t+2}, v{t+3}, vcc""")
    park(su, 'kvr0', t); park(su, 'kvr1', t + 3)
    setup_g2(su)
    wl = Prog()
    wl("s_mul_i32 s77, s70, 3200")
    srd(wl, S_PHI, P_PHI, 3200, 's77')
    wl(f"""v_lshlrev_b32 v{V_X+10}, 3, v0
    buffer_load_dwordx2 {vr(V_X,2)}, v{V_X+10}, {sr(S_PHI,4)}, 0 offen
    buffer_load_dwordx2 {vr(V_X+2,2)}, v{V_X+10}, {sr(S_PHI,4)}, 0 offen offset:2048""")
    token_load(su, S_WS, V_Z)
    def sync(p, G):
        p.waitvm(('dma', G)); p("s_barrier")
    def touches():
        if NPG:
            for w_ in range(4):
                p(f"s_cmp_lg_u32 s68, {w_}")
                p(f"s_cbranch_scc1 a_t{w_}", tag='keep')
                for k in range(w_, NPG, 4): p(f"s_call_b64 s[4:5], pg{k}", tag='keep')
                p(f"a_t{w_}:")
    HALF = opt('half', 0)
    if HALF:
        p(f"""s_mul_i32 s86, s80, {64*3840}
        s_add_u32 s86, s86, s82
        s_lshl_b32 s81, s80, 7
        s_add_u32 s80, s80, 1
        s_cmp_eq_u32 s80, 10
        s_cselect_b32 s80, 0, s80
        s_mov_b32 s95, s86""")
        def w0(tag):
            for i in range(5): p(f"s_add_u32 m0, s84, {1024*i}\n s_nop 0\n buffer_load_dwordx4 v{V_WD+i}, {sr(S_W,4)}, s95 offen lds", tag=tag)
        p("s_cmp_ge_u32 s68, 2")
        p("s_cbranch_scc1 a_w0a", tag='keep')
        w0('offpath')
        p("a_w0a:")
        for r in range(4): p(f"s_add_u32 m0, s87, {1024*r}\n s_nop 0\n buffer_load_dwordx4 v{V_XD+r}, {sr(S_X,4)}, s81 offen lds", tag=('dma', 0))
        p.extend(su); p.extend(wl); touches()
        p("s_cmp_lt_u32 s68, 2")
        p("s_cbranch_scc1 a_w0b", tag='keep')
        p(f"s_waitcnt vmcnt(3)", tag='offpath')
        w0('offpath')
        p("s_branch a_w0c", tag='keep')
        p("a_w0b:")
        p("s_waitcnt vmcnt(3)", tag='offpath')
        p("a_w0c:")
        stamp(p)
        p("s_waitcnt lgkmcnt(0)\n s_barrier")
    else:
        iss = issue_group(0) + [wl]
        sub = bundles(su)
        LEAD = opt('lead', 7); per = opt('suchunk', 30)
        for k, b in enumerate(iss):
            p.extend(b)
            if k >= LEAD:
                for x in sub[:per]: p.extend(x)
                sub = sub[per:]
        for x in sub: p.extend(x)
        touches()
        for b in issue_group(1): p.extend(b)
        stamp(p)
        p("s_waitcnt lgkmcnt(0)")
        sync(p, 0)
    stamp(p)
    FD = 2
    def kv_reads(k):
        q = Prog(); fb = V_WF + (k % 3) * 20
        slot = k % NSLOT; base = V_TA + (slot >= 8); so = (slot % 8) * GR
        q(f"ds_read_b128 {ar(4*k,4)}, v{V_XO+k%4} offset:{((k//4)%4)*4096}")
        for T in range(5):
            for h in range(2):
                q(f"ds_read_b64_tr_b16 {vr(fb+4*T+2*h,2)}, v{base} offset:{so + 1280*h + 64*T}")
        return q
    PH = [(0, 0), (0, 1), (0, 2), (1, 0), (1, 1), (1, 2), (1, 3), (1, 4), (2, 2), (2, 3), (2, 4)]
    bdr = Prog()
    for n, (U, ka) in enumerate(PH):
        for h in range(2): bdr(f"ds_read_b64_tr_b16 {ar(160+4*n+2*h,2)}, v{18+U} offset:{(16*ka+8*h)*160}")
    bdr = singles(bdr)
    for k in range(FD): p.extend(kv_reads(k))
    segs = [list(range(0, 4 - FD))] + [list(range(4 * G - FD, 4 * G + 4 - FD)) for G in range(1, 10)] + [list(range(40 - FD, 40))]
    for si, steps in enumerate(segs):
        if si >= 1:
            if si == 10: p("s_waitcnt lgkmcnt(0)")
            if STAMP == 2: stamp(p)
            sync(p, si)
            if HALF and si == 1: p.extend(kv_reads(2)); p.extend(kv_reads(3))
        m = Prog(); st = []
        for n, k in enumerate(steps):
            fb = V_WF + (k % 3) * 20
            m.need([vr(fb, 20), ar(4 * k, 4)])
            for T in range(5): mfma32(m, vr(V_KA + 16 * T, 16), vr(fb + 4 * T, 4), ar(4 * k, 4), '0' if k == 0 else None)
            if k + FD < 40 and not (HALF and si == 0): st.append((singles(kv_reads(k + FD)), 5 * n, 5 * n + 5))
        if HALF and si == 0: st.append((issue_group(1), 0, None))
        elif HALF and si == 1: st.append((issue_group(2) + issue_group(3), 0, None))
        else: st.append((issue_group(si + 2), 0, None))
        if si == 1:
            w = Prog(); w(f"ds_write_b64 v{V_X+8}, {vr(V_X,2)}\n ds_write_b64 v{V_X+9}, {vr(V_X+2,2)}")
            st.append((singles(w), 2, 12))
        if si == 2:
            w = Prog(); token_make(w); st.append((singles(w), 0, None))
        if si == 8:
            w = Prog(); w(f"buffer_load_dword v{V_X+10}, v{V_Z}, {sr(S_DBG,4)}, 0 offen sc1")
            st.append(([w], 0, 1))
        if si == 10:
            w = Prog(); unpark(w, 'vw0', t + 1); unpark(w, 'vw1', t + 3); unpark(w, 'phiw0', t + 2); unpark(w, 'phiw1', V_X + 11); unpark(w, 'tq', V_TA + 2)
            w(f"v_add_u32 v{V_TA+3}, {8*GR}, v{V_TA+2}")
            for i in range(5): unpark(w, f'wo{i}', V_XO + i)
            w(f"""v_lshlrev_b32 v{t}, 4, v{LN}
            s_mul_i32 s77, s70, 5120
            s_add_u32 s77, s77, s92
            s_add_u32 s78, s77, 4096""")
            st.append((singles(w), 0, None)); st.append((bdr, 0, None))
        p.extend(pack(m, st))
    stamp(p)

    def phi_step(p, acc, out, extra=None, inexp=None):
        B = V_WF; E = V_WF + 24; M = V_WF + 64
        cv = [f"v_cvt_pk_bf16_f32 v{B+k}, v{acc+2*k}, v{acc+2*k+1}" for k in range(20)]
        def minmax(y):
            q = Prog(); x = V_PA + y * 20; Mx = M + 8 * y
            q(f"v_max3_f32 v{Mx}, v{x}, v{x+1}, v{x+2}\n v_min3_f32 v{Mx+2}, v{x}, v{x+1}, v{x+2}")
            for k in range(3, 19, 2):
                q(f"v_max3_f32 v{Mx}, v{Mx}, v{x+k}, v{x+k+1}\n v_min3_f32 v{Mx+2}, v{Mx+2}, v{x+k}, v{x+k+1}")
            q(f"v_max_f32 v{Mx}, v{Mx}, v{x+19}\n v_min_f32 v{Mx+2}, v{Mx+2}, v{x+19}")
            q(f"v_mul_f32 v{Mx}, s88, v{Mx}\n v_mul_f32 v{Mx+2}, s88, v{Mx+2}")
            return q
        for c in cv[:8]: p(c)
        m = Prog(); seen = set()
        for n, (U, ka) in enumerate(PH):
            mfma32(m, vr(V_PA + 16 * U, 16), ar(160 + 4 * n, 4), vr(B + 4 * ka, 4), None if U in seen else '0'); seen.add(U)
        c2 = Prog()
        for c in cv[8:]: c2(c)
        st = [(singles(c2), 0, 2)]
        if extra: st.append((bundles(extra), 2, 11))
        p.extend(pack(m, st, cap=28))
        for y in range(2):
            x = V_PA + y * 20; Mx = M + 8 * y
            p.extend(minmax(y))
            for q in range(10):
                p(f"v_pk_fma_f32 {vr(E+2*q,2)}, {vr(x+2*q,2)}, s[88:89], {vr(Mx,2)} op_sel_hi:[1,1,0] neg_lo:[0,0,1] neg_hi:[0,0,1]")
                p(f"v_pk_fma_f32 {vr(E+20+2*q,2)}, {vr(x+2*q,2)}, s[88:89], {vr(Mx+2,2)} op_sel_hi:[1,1,0] neg_lo:[1,0,0] neg_hi:[1,0,0]")
            for q in range(40):
                p(f"v_exp_f32 v{E+q}, v{E+q}")
                if y == 0 and inexp and q % 6 == 5: p.extend(inexp.pop(0))
            for q in range(1, 10):
                for hh in range(2):
                    S = Mx + 4 + 2 * hh; e = E + 20 * hh
                    p(f"v_pk_add_f32 {vr(S,2)}, {vr(e if q == 1 else S,2)}, {vr(e+2*q,2)}")
            p(f"v_add_f32 v{Mx+4}, v{Mx+4}, v{Mx+5}\n v_add_f32 v{Mx+6}, v{Mx+6}, v{Mx+7}")
            p(f"v_rcp_f32 v{Mx+4}, v{Mx+4}\n v_rcp_f32 v{Mx+6}, v{Mx+6}")
            for hh in range(2):
                for q in range(10):
                    e = E + 20 * hh + 2 * q
                    p(f"v_pk_mul_f32 {vr(e,2)}, {vr(e,2)}, {vr(Mx+4+2*hh,2)} op_sel_hi:[1,0]")
            yield y
            for q in range(20):
                p(f"v_cvt_pk_bf16_f32 v{out+y*20+q}, v{E+2*q}, v{E+2*q+1}")

    def q_reads(k):
        q = Prog(); fb = V_WF + (k % 3) * 12
        slot = (40 + k // 2) % NSLOT; base = V_TA + 2 + (slot >= 8); so = (slot % 8) * GR + (k % 2) * 2560
        for T in range(3):
            for h in range(2):
                q(f"ds_read_b64_tr_b16 {vr(fb+4*T+2*h,2)}, v{base} offset:{so + 160*h + 64*T}")
        return q
    ex = Prog()
    for mm_ in range(10):
        a = V_VA + 4 * mm_; d = V_X + 2 * (mm_ % 4)
        ex(f"v_cvt_pk_bf16_f32 v{d}, v{a}, v{a+1}\n v_cvt_pk_bf16_f32 v{d+1}, v{a+2}, v{a+3}\n ds_write_b64 v{t+1+2*(mm_%2)}, {vr(d,2)} offset:{32*(mm_//2)}")
    w = Prog(); w0 = Prog()
    for k in range(4): w0(f"v_mov_b32 v{V_X+4+k}, -1")
    for pc in range(5):
        w(f"buffer_store_dwordx4 {vr(V_X+4,4)}, v{t}, {sr(S_WS,4)}, {'s78' if pc == 4 else 's77'} offen offset:{1024*(pc%4)} sc1")
    for y in phi_step(p, V_KA, V_PO, ex, [w0] + singles(w)):
        if y == 1:
            p.extend(q_reads(0));
    p.extend(q_reads(1))
    stamp(p)
    p(f"""v_readfirstlane_b32 s95, v{V_X+10}
    s_mov_b32 s94, {SPIN}
    s_cmp_ge_u32 s95, {NZERO_WG}""")
    p("s_cbranch_scc1 a_pz_x", tag='keep')
    p("a_pz:")
    p(f"""buffer_load_dword v{V_X+10}, v{V_Z}, {sr(S_DBG,4)}, 0 offen sc1
    s_sub_u32 s94, s94, 1
    s_waitcnt vmcnt(0)
    v_readfirstlane_b32 s95, v{V_X+10}
    s_cmp_eq_u32 s94, 0""", tag='offpath')
    p("s_cbranch_scc1 a_pz_x", tag='keep')
    p(f"s_cmp_ge_u32 s95, {NZERO_WG}")
    p("s_cbranch_scc0 a_pz", tag='keep')
    p("a_pz_x:")
    pw = Prog()
    for y in range(2):
        for q in range(5): pw(f"ds_write_b128 v{V_X+11 if q % 2 else t+2}, {vr(V_PO+y*20+4*q,4)} offset:{160*y + 32*(q//2)}")
    pre = Prog()
    unpark(pre, 'phir', t); unpark(pre, 'vr0', t + 1); unpark(pre, 'vr1', t + 3)
    pre(f"v_mov_b32 v{t+4}, 0x3f803f80")
    for k in range(5): unpark(pre, f'at{k}', V_X + k)
    pre(f"""s_lshl_b32 s78, s70, 2
    s_add_u32 s78, s78, s68
    s_lshl_b32 s78, s78, 12
    s_add_u32 s78, s78, {WS_KV}""")
    KF = [72, 92, V_PO, V_PO + 20]
    def kvs_reads(sw):
        q = Prog(); fb = KF[sw]
        for h in range(2): q(f"ds_read_b64_tr_b16 {vr(fb+4+2*h,2)}, v{t+3} offset:{(sw*32+h*16)*160}")
        for h in range(2): q(f"ds_read_b64_tr_b16 {vr(fb+2*h,2)}, v{t+1} offset:{(sw*32+h*16)*160}")
        for nf in range(3):
            for h in range(2):
                q(f"ds_read_b64_tr_b16 {vr(fb+8+4*nf+2*h,2)}, v{t} offset:{(sw*32+h*16)*PHI_RS + 32*nf}")
        return q
    def kvs_mfma(m, sw):
        fb = KF[sw]
        m.need([vr(fb, 20)])
        for q in range(4): m(f"v_cndmask_b32 v{fb+4+q}, v{t+4}, v{fb+4+q}, s[90:91]")
        for md in range(2):
            for nf in range(3):
                mfma(m, vr(V_D + (3 * md + nf) * 4, 4), vr(fb + 4 * md, 4), vr(fb + 8 + 4 * nf, 4), '0' if sw == 0 else None)
    at = Prog(); a0 = V_X
    def atom(v, vo, off): at(f"buffer_atomic_add_f32 v{v}, v{vo}, {sr(S_WS,4)}, s78 offen offset:{off}", tag='kvat')
    for nf in range(2):
        for i in range(4): atom(V_D + 4 * nf + i, a0, i * 192 + nf * 64)
    R = lambda nf, i: V_D + 12 + 4 * nf + i
    for i in (0, 2):
        at(f"v_mov_b32_dpp v{V_D+8+i}, v{V_D+9+i} row_shr:8 row_mask:0xf bank_mask:0xc")
    for nf in range(3):
        at(f"v_permlane16_swap_b32 v{R(nf,0)}, v{R(nf,1)}\n v_permlane16_swap_b32 v{R(nf,2)}, v{R(nf,3)}")
    for i in (0, 2): atom(V_D + 8 + i, a0 + 1, i * 192 + 128)
    for nf in range(3): at(f"v_permlane32_swap_b32 v{R(nf,0)}, v{R(nf,2)}")
    at(f"v_permlane16_swap_b32 v{R(0,1)}, v{R(1,1)}")
    for nf in range(3): atom(R(nf, 0), a0 + (3 if nf == 2 else 2), nf * 64)
    at(f"v_permlane32_swap_b32 v{R(0,1)}, v{R(2,1)}")
    atom(R(0, 1), a0 + 4, 0)
    KS = opt('ks', 4)
    segs = [list(range(0, 6))] + [list(range(8 * g - 2, 8 * g + 6)) for g in range(1, 5)] + [[38, 39]]
    def signal():
        unpark(p, 'l0', V_X + 7)
        p(f"""s_lshl_b32 s78, s70, 13
        s_lshl_b32 s85, s69, 9
        s_add_u32 s78, s78, s85
        s_lshl_b32 s85, s68, 7
        s_add_u32 s78, s78, s85
        s_add_u32 s78, s78, {WS_KVF}""")
        p.waitvm('kvat')
        p(f"buffer_store_dword v{V_TOK}, v{V_X+7}, {sr(S_WS,4)}, s78 offen sc1")
    def qstep(k):
        m = Prog(); fb = V_WF + (k % 3) * 12
        m.need([vr(fb, 12)])
        for T in range(3): mfma32(m, vr(V_KA + 16 * T, 16), vr(fb + 4 * T, 4), ar(4 * k, 4), '0' if k == 0 else None)
        return m
    def qrun(steps, extra):
        m = Prog(); st = []
        for n, k in enumerate(steps):
            m.extend(qstep(k))
            if k + 2 < 40: st.append((singles(q_reads(k + 2)), 3 * n, 3 * n + 3))
        p.extend(pack(m, st + extra, cap=28))
    NW = opt('nw', 4)
    qrun(range(0, NW), [(singles(pw), 0, 3 * NW - 2), (bundles(pre), 2, None)])
    if STAMP == 3: stamp(p)
    p("s_waitcnt lgkmcnt(0)\n s_barrier")
    kr = Prog()
    for sw in range(4): kr.extend(kvs_reads(sw))
    kr = singles(kr)
    for x in kr[:10]: p.extend(x)
    qrun(range(NW, 6), [(kr[10:], 0, None)])
    m = Prog()
    for sw in range(4): kvs_mfma(m, sw)
    p.extend(pack(m, [(issue_group(13), 0, 20)], cap=8))
    if STAMP == 3: stamp(p)
    for si, steps in enumerate(segs):
        G = 10 + si
        if si == 0: continue
        if STAMP == 3 and si > 1: stamp(p)
        if si == KS: signal()
        if G < 15: sync(p, G)
        if si == 1: qrun(steps, [(singles(at), 0, opt('atspan', 24))])
        elif si < 5: qrun(steps, [(issue_group(G + 2), 0, None)])
        else: qrun(steps, [])
    if KS == 6: signal()
    stamp(p)
    F = V_WF
    ex = Prog()
    unpark(ex, 'kvz', t)
    ex(f"""v_mov_b32 v{V_X}, 0
    v_mov_b32 v{V_X+1}, 0
    v_mov_b32 v{V_X+2}, 0
    v_mov_b32 v{V_X+3}, 0
    ds_write_b128 v{t}, {vr(V_X,4)}
    v_lshlrev_b32 v{t+1}, 7, v{LN}
    v_lshlrev_b32 v{t+2}, 4, v{LN}
    s_lshl_b32 s78, s70, 13
    s_add_u32 s78, s78, {WS_KVF}
    s_lshl_b32 s77, s70, 2
    s_add_u32 s77, s77, s68
    s_lshl_b32 s77, s77, 12
    s_add_u32 s77, s77, {WS_KV}""")
    for i in range(4): unpark(ex, f'kvw{i}', V_X + 4 + i)
    KL = V_KA + 32
    def kvloads(tag=None):
        for i in range(4):
            p(f"buffer_load_dwordx4 {vr(KL+4*i,4)}, v{t+2}, {sr(S_WS,4)}, s77 offen offset:{1024*i} sc1", tag=tag)
    ex(f"""buffer_load_dword v{V_X+8}, v{t+1}, {sr(S_WS,4)}, s78 offen sc1
    v_and_b32 v{t+3}, 7, v0
    v_lshlrev_b32 v{t+3}, 13, v{t+3}
    s_lshl_b32 s93, s69, 9
    s_lshl_b32 s81, s68, 7
    s_add_u32 s93, s93, s81
    s_add_u32 s93, s93, {WS_KVF}""")
    for y in phi_step(p, V_KA, V_PO, ex):
        if y == 0:
            p(f"v_cmp_eq_u32 vcc, v{V_TOK}, v{V_X+8}\n s_mov_b32 s95, 0\n s_nop 0\n s_cmp_eq_u64 vcc, -1")
            p("s_cbranch_scc0 a_noearly", tag='keep')
            kvloads('offpath')
            p("s_mov_b32 s95, 1", tag='offpath')
            p("a_noearly:")
            p(f"buffer_load_dword v{V_X+9}, v{t+3}, {sr(S_WS,4)}, s93 offen sc1")
        if y == 1:
            stamp(p)
            p("s_cmp_eq_u32 s95, 1")
            p("s_cbranch_scc1 a_have", tag='keep')
            pollall(p, "a_pk", S_WS, 's78', V_X + 8, t + 1)
            kvloads()
            p("a_have:")
            stamp(p)
            p("s_waitcnt vmcnt(0)")
            for i in range(4):
                p(f"v_cvt_pk_bf16_f32 v{F+2*i}, v{KL+4*i}, v{KL+4*i+1}\n v_cvt_pk_bf16_f32 v{F+1+2*i}, v{KL+4*i+2}, v{KL+4*i+3}")
                p(f"ds_write_b64 v{V_X+4+i}, {vr(F+2*i,2)}")
            p(f"v_cmp_eq_u32 vcc, v{V_TOK}, v{V_X+9}")
            unpark(p, 'kvr0', t); unpark(p, 'kvr1', t + 1)
            p("s_cmp_eq_u64 vcc, -1")
            p("s_cbranch_scc1 a_pf_x", tag='keep')
            q = Prog(); pollall(q, "a_pf", S_WS, 's93', V_X + 9, t + 3)
            for i_ in q.L: i_.tag = 'offpath' if i_.kind not in ('label',) else i_.tag
            p.extend(q)
            p(f"""s_mul_i32 s76, s70, 5120
            s_add_u32 s78, s92, s76
            s_add_u32 s81, s78, 4096
            s_mov_b32 s85, {f2u(1e-6):#x}""")
    p("s_waitcnt lgkmcnt(0)\n s_barrier")
    stamp(p)
    order = [(y, u, ka) for u in (1, 0) for y in range(2) for ka in range(5)]
    NB = 10; O = F + 48
    def ord_(n):
        y, u, ka = order[n]; q = Prog(); q(f"ds_read_b128 {vr(F+4*(n%NB),4)}, v{t+y} offset:{u*1280+16*ka}"); return q
    for n in range(NB): p.extend(ord_(n))
    def fin(y, ks):
        q = Prog(); dn = V_KA + 16 * y + 4
        vals = [V_D + 16 * y + r for r in range(16)] + [V_KA + 16 * y + r for r in range(4)]
        for k in ks:
            q(f"v_mul_f32 v{vals[2*k]}, v{dn}, v{vals[2*k]}\n v_mul_f32 v{vals[2*k+1]}, v{dn}, v{vals[2*k+1]}")
            q(f"v_cvt_pk_bf16_f32 v{O+10*y+k}, v{vals[2*k]}, v{vals[2*k+1]}")
        return q
    def ost(q, pc): q(f"buffer_store_dwordx4 {vr(O+4*pc,4)}, v{t+2}, {sr(S_WS,4)}, {'s81' if pc == 4 else 's78'} offen offset:{1024*(pc%4)} {'' if opt('oplain', 0) else 'sc1'}", tag='ost')
    om = Prog()
    for n, (y, u, ka) in enumerate(order):
        if n in (0, 2, 5, 10, 15): om.need([vr(F + 4 * (m_ % NB), 4) for m_ in range(n, {0: 2, 2: 5}.get(n, n + 5))])
        mfma32(om, vr((V_D if u == 0 else V_KA) + 16 * y, 16), vr(F + 4 * (n % NB), 4), vr(V_PO + y * 20 + 4 * ka, 4), '0' if ka == 0 else None)
        if n + NB < 20: om.extend(ord_(n + NB))
    d0 = Prog(); d1 = Prog()
    for y, d in ((0, d0), (1, d1)):
        dn = V_KA + 16 * y + 4
        d(f"v_add_f32 v{dn}, s85, v{dn}\n v_rcp_f32 v{dn}, v{dn}"); d.extend(fin(y, (8, 9)))
    f0 = fin(0, range(4)); ost(f0, 0); f0.extend(fin(0, range(4, 8))); ost(f0, 1)
    p.extend(pack(om, [(issue_group(17) + issue_group(18), 0, 12), (singles(d0), 8, 11), (singles(d1), 12, 15), (singles(f0), 16, 20)], cap=28))
    dn = V_KA + 20
    for k in range(8):
        p(f"v_pk_mul_f32 {vr(V_D+16+2*k,2)}, {vr(V_D+16+2*k,2)}, {vr(dn,2)} op_sel_hi:[1,0]")
    for k in range(8):
        p(f"v_cvt_pk_bf16_f32 v{O+10+k}, v{V_D+16+2*k}, v{V_D+17+2*k}")
        if k in (1, 5, 7): ost(p, {1: 2, 5: 3, 7: 4}[k])
    stamp(p)
    p.waitvm(('dma', 18))
    gemm2_tail(p)
    return p

CP = 4168; YP = 4160; SRS = 544
B_RAW = 0
B_UC = 33280
B_KR = B_UC + 16 * CP
B_SC = B_KR + 4 * 4608
B_END = B_SC + 4 * 16 * SRS
S_KR = 81920; S_SC = S_KR + 4 * 4608
WS_KR = 4 << 20
BL, B15, BG, BZ = 1, 2, 3, 4
A_SW, A_SR, A_T0, A_T1, A_T1b, A_T2, A_X3, A_X2, A_X1, A_X0, A_KW, A_KW32, A_KB, MSK = range(24, 38)
PR = 8
S_U, S_LA, S_AI, S_CR, S_CI, S_LDT, S_DS, S_O, S_WSB = 40, 44, 48, 52, 56, 60, 64, 72, 76

def kg_lanes(p):
    p(f"""v_and_b32 v{BL}, 63, v0
    v_and_b32 v{B15}, 15, v0
    v_bfe_u32 v{BG}, v0, 4, 2
    v_mov_b32 v{BZ}, 0
    v_lshlrev_b32 v5, 2, v{BL}
    s_waitcnt lgkmcnt(0)""")
    for s_, ptr, size in ((S_LA, P_LA, 640*256), (S_AI, P_AI, 640*256), (S_CR, P_CR, 640*256), (S_CI, P_CI, 640*256), (S_LDT, P_LDT, 1280), (S_DS, P_DS, 1280)):
        srd(p, s_, ptr, size)
def kg_params(p, sch, P):
    p(f"s_lshl_b32 s81, {sch}, 8\n s_lshl_b32 s80, {sch}, 1")
    p(f"buffer_load_ushort v{P+4}, v{BZ}, {sr(S_LDT,4)}, s80 offen")
    for k, s_ in enumerate((S_LA, S_AI, S_CR, S_CI)):
        p(f"buffer_load_dword v{P+k}, v5, {sr(s_,4)}, s81 offen {'nt' if opt('ntp', 1) else ''}")
    p(f"buffer_load_ushort v{P+5}, v{BZ}, {sr(S_DS,4)}, s80 offen")
def kg_setup(p, KR, SC):
    t = 40
    p(f"""s_mul_i32 s83, s68, 4608
    s_add_u32 s83, s83, {KR}
    s_mul_i32 s84, s68, {16*SRS}
    s_add_u32 s84, s84, {SC}
    v_lshl_add_u32 v{A_SW}, v{BL}, 3, s84
    v_mul_u32_u24 v{A_SR}, {SRS}, v{B15}
    v_lshl_add_u32 v{A_SR}, v{BG}, 4, v{A_SR}
    v_add_u32 v{A_SR}, s84, v{A_SR}
    v_cmp_gt_u32 vcc, 2, v{BG}
    v_lshrrev_b32 v{t}, 1, v{BG}
    v_and_b32 v{t+1}, 1, v{BG}
    v_lshlrev_b32 v{A_T0}, 9, v{t}
    v_lshl_add_u32 v{A_T0}, v{t+1}, 4, v{A_T0}
    v_lshl_add_u32 v{A_T0}, v{B15}, 5, v{A_T0}
    v_add_u32 v{A_T0}, s84, v{A_T0}
    v_lshlrev_b32 v{t+2}, 4, v{B15}
    v_lshlrev_b32 v{t+3}, 3, v{B15}
    v_cndmask_b32 v{t+2}, v{t+3}, v{t+2}, vcc
    v_lshl_add_u32 v{A_T1}, v{BG}, 8, v{t+2}
    v_add_u32 v{A_T1}, s84, v{A_T1}
    v_mov_b32 v{t+2}, 128
    v_mov_b32 v{t+3}, 8
    v_cndmask_b32 v{t+2}, v{t+2}, v{t+3}, vcc
    v_add_u32 v{A_T1b}, v{A_T1}, v{t+2}
    v_lshlrev_b32 v{A_T2}, 8, v{BG}
    v_lshl_add_u32 v{A_T2}, v{B15}, 2, v{A_T2}
    v_add_u32 v{A_T2}, s84, v{A_T2}
    v_lshl_add_u32 v{A_X3}, v{BL}, 2, s84
    v_lshl_add_u32 v{A_X2}, v{BL}, 3, s84
    v_and_b32 v{t}, 31, v0
    v_lshl_add_u32 v{A_X1}, v{t}, 4, s84
    v_lshl_add_u32 v{A_X0}, v{t}, 5, s84
    v_lshlrev_b32 v{t+1}, 4, v{BL}
    v_sub_u32 v{A_KW}, s83, v{t+1}
    v_add_u32 v{A_KW}, 1008, v{A_KW}
    v_lshlrev_b32 v{t+1}, 4, v{t}
    v_sub_u32 v{A_KW32}, s83, v{t+1}
    v_add_u32 v{A_KW32}, 496, v{A_KW32}
    v_and_b32 v{t}, 1, v0
    v_cmp_eq_u32 vcc, 1, v{t}
    v_mov_b32 v{t+1}, 0xffff
    v_mov_b32 v{t+2}, -1
    v_cndmask_b32 v{MSK}, v{t+1}, v{t+2}, vcc
    s_mov_b32 s85, 0xffff
    s_mov_b32 s86, {f2u(1.4426950408889634):#x}
    s_mov_b32 s87, 0x32a57060
    s_mov_b32 s88, {f2u(0.6931471805599453):#x}
    s_mov_b32 s89, 0xffff0000""")

def exp_bf16(p, d, x, t):
    p(f"""v_mul_f32 v{t}, s86, v{x}
    v_fma_f32 v{t+1}, v{x}, s86, -v{t}
    v_exp_f32 v{t}, v{t}
    v_fma_f32 v{t+1}, v{x}, s87, v{t+1}
    v_mul_f32 v{t+1}, s88, v{t+1}
    v_fma_f32 v{t}, v{t}, v{t+1}, v{t}
    v_cvt_pk_bf16_f32 v{t}, v{t}, v{t}
    v_and_b32 v{d}, s89, v{t}""")
def cmul(p, c, a, b):
    p(f"v_pk_mul_f32 {vr(c,2)}, {vr(a,2)}, {vr(b,2)} op_sel:[0,0] op_sel_hi:[0,1]")
    p(f"v_pk_fma_f32 {vr(c,2)}, {vr(a,2)}, {vr(b,2)}, {vr(c,2)} op_sel:[1,1,0] op_sel_hi:[1,0,1] neg_lo:[0,1,0]")
def kgen(p, P, sched):
    E = lambda k, mu: 48 + 4 * (k - 1) + 2 * mu
    E8 = lambda mu: 76 + 2 * mu
    E128 = lambda mu: 80 + 2 * mu
    GA = lambda par, mu: 84 + 4 * par + 2 * mu
    XT = lambda k, mu: 92 + 4 * (k % 2) + 2 * mu
    PK = lambda k: 100 + 2 * (k % 4)
    FB = 108; FA = 140; DT = 172
    t = 40
    p(f"v_lshlrev_b32 v{t+6}, 16, v{P+4}")
    exp_bf16(p, t + 7, t + 6, t)
    p.need([vr(P, 6)])
    if STAMP == 4: stamp(p)
    rho = lambda mu: 92 + mu; th = lambda mu: 94 + mu
    p(f"v_add_f32 v{t+4}, v{t+7}, v{t+7}")
    for mu in range(2):
        up = (lambda d, s_: f"v_lshlrev_b32 v{d}, 16, v{s_}") if mu == 0 else (lambda d, s_: f"v_and_b32 v{d}, s89, v{s_}")
        p(up(t + 6, P))
        exp_bf16(p, t + 5, t + 6, t)
        p(f"v_mul_f32 v{t+5}, v{t+5}, v{t+7}\n v_mul_f32 v{rho(mu)}, s86, v{t+5}")
        p(up(t + 6, P + 1))
        p(f"v_mul_f32 v{t+6}, v{t+6}, v{t+7}\n v_mul_f32 v{th(mu)}, 0.15915494, v{t+6}")
        p(up(t + 5, P + 2)); p(up(t + 6, P + 3))
        p(f"v_mul_f32 v{GA(0,mu)}, v{t+5}, v{t+4}\n v_mul_f32 v{GA(0,mu)+1}, v{t+6}, v{t+4}")
    for pw, dst in ((8, E8), (1, lambda mu: E(1, mu)), (128, E128)):
        for mu in range(2):
            p(f"v_mul_f32 v{t+2*mu}, {f2u(-float(pw)):#x}, v{rho(mu)}\n v_mul_f32 v{t+2*mu+1}, {f2u(float(pw)):#x}, v{th(mu)}")
        for mu in range(2): p(f"v_exp_f32 v{t+2*mu}, v{t+2*mu}\n v_fract_f32 v{t+2*mu+1}, v{t+2*mu+1}")
        for mu in range(2): p(f"v_cos_f32 v{dst(mu)}, v{t+2*mu+1}\n v_sin_f32 v{dst(mu)+1}, v{t+2*mu+1}")
        for mu in range(2): p(f"v_pk_mul_f32 {vr(dst(mu),2)}, {vr(dst(mu),2)}, {vr(t+2*mu,2)} op_sel_hi:[1,0]")
    cnt = [0]; SIDE0 = opt('side0', 36); SIDEN = opt('siden', 2)
    def put(row, src, neg=False):
        k = cnt[0]; cnt[0] += 1
        for mu in range(2):
            a = src(mu)
            p(f"v_cvt_pk_bf16_f32 v{PK(k)+mu}, v{a}, {'-' if neg else ''}v{a+1}")
        p(f"ds_write_b64 v{A_SW}, {vr(PK(k),2)} offset:{row*SRS}")
        for b_ in sched.get(k, []): p.extend(b_)
    p(f"v_mov_b32 v{PK(3)}, 0x3f80\n v_mov_b32 v{PK(3)+1}, 0x3f80\n ds_write_b64 v{A_SW}, {vr(PK(3),2)}")
    put(1, E8, True)
    prev = E8
    for b in range(2, 16):
        cur = (lambda bb: (lambda mu: XT(bb, mu)))(b)
        for mu in range(2): cmul(p, cur(mu), prev(mu), E8(mu))
        put(b, cur, True); prev = cur
    if STAMP == 4: stamp(p)
    for ka in range(8): p(f"ds_read_b128 {vr(FB+4*ka,4)}, v{A_SR} offset:{64*ka}")
    for k in range(2, 8):
        for mu in range(2): cmul(p, E(k, mu), E(k - 1, mu), E(1, mu))
    al = [0]
    def Gcur(mu): return GA(al[0] % 2, mu)
    def Gnext():
        for mu in range(2): cmul(p, GA((al[0] + 1) % 2, mu), GA(al[0] % 2, mu), E128(mu))
        al[0] += 1
    def prod(row, k):
        if k == 0: put(row, Gcur); return
        for mu in range(2): cmul(p, XT(row, mu), Gcur(mu), E(k, mu))
        put(row, lambda mu: XT(row, mu))
    def tile(T):
        for ka in range(8): p(f"ds_read_b128 {vr(FA+4*ka,4)}, v{A_SR} offset:{64*ka}")
        return [f"v_mfma_f32_16x16x32_bf16 {vr(DT+4*T,4)}, {vr(FA+4*ka,4)}, {vr(FB+4*ka,4)}, {'0' if ka == 0 else vr(DT+4*T,4)}" for ka in range(8)]
    for a in range(2):
        for g in range(8): prod(8 * a + g, g)
        Gnext()
    if STAMP == 4: stamp(p)
    mm = tile(0)
    for a in range(2):
        for g in range(4): prod(4 * a + g, 2 * g)
        Gnext()
        if a == 0:
            for x in mm: p(x)
    for a in range(4):
        for g in range(2): prod(8 + 2 * a + g, 4 * g)
        Gnext()
    if STAMP == 4: stamp(p)
    mm = tile(1)
    for a in range(9):
        prod(a, 0)
        if a < 8: Gnext()
        if a == 3:
            for x in mm: p(x)
    if STAMP == 4: stamp(p)
    mm = tile(2)
    p(f"""v_cmp_eq_u32 vcc, 0, v{BL}
    v_lshlrev_b32 v{t}, 16, v{P+5}
    v_cndmask_b32 v{t}, v{BZ}, v{t}, vcc
    v_add_f32 v{DT}, v{DT}, v{t}""")
    for q in range(8): p(f"v_cvt_pk_bf16_f32 v{DT+q}, v{DT+q}, v{DT+q}")
    p.need([vr(FA, 32)])
    p(mm[0]); p(f"ds_write_b128 v{A_T0}, {vr(DT,4)}")
    for x in mm[1:4]: p(x)
    p(f"ds_write_b64 v{A_T1}, {vr(DT+4,2)} offset:1024")
    for x in mm[4:6]: p(x)
    p(f"ds_write_b64 v{A_T1b}, {vr(DT+6,2)} offset:1024")
    for x in mm[6:]: p(x)
    R = FB
    p(f"""ds_read_b128 {vr(R+24,4)}, v{A_X0}
    ds_read_b128 {vr(R+28,4)}, v{A_X0} offset:16
    ds_read_b128 {vr(R+16,4)}, v{A_X1} offset:1024
    ds_read_b32 v{R+20}, v{A_X1} offset:{1024+16}""")
    for q in range(8, 12): p(f"v_cvt_pk_bf16_f32 v{DT+q}, v{DT+q}, v{DT+q}")
    for i in range(4): p(f"ds_write_b32 v{A_T2}, v{DT+8+i} offset:{2048+64*i}")
    p(f"""ds_read_b32 v{R+8}, v{A_X2} offset:{1536+8}
    ds_read_b32 v{R+9}, v{A_X2} offset:{1536+4}
    ds_read_b32 v{R+11}, v{A_X2} offset:{1536}""")
    for r in range(2):
        p(f"ds_read_b32 v{R+4*r}, v{A_X3} offset:{2048+256*r+4}")
        p(f"ds_read_b32 v{R+4*r+2}, v{A_X3} offset:{2048+256*r}\n ds_read_b32 v{R+4*r+3}, v{A_X3} offset:{2048+256*r}")
    p(f"""v_bfi_b32 v{R+12}, s85, v{R+20}, v{R+19}
    v_mov_b32 v{R+13}, v{R+18}
    v_bfi_b32 v{R+14}, s85, v{R+18}, v{R+17}
    v_mov_b32 v{R+15}, v{R+16}
    ds_write_b128 v{A_KW32}, {vr(R+12,4)} offset:3072
    v_bfi_b32 v{R+16}, s85, v{R+31}, v{R+30}
    v_bfi_b32 v{R+17}, s85, v{R+29}, v{R+28}
    v_bfi_b32 v{R+18}, s85, v{R+27}, v{R+26}
    v_bfi_b32 v{R+19}, s85, v{R+25}, v{R+24}
    ds_write_b128 v{A_KW32}, {vr(R+16,4)} offset:3584
    v_bfi_b32 v{R+10}, s85, v{R+9}, v{R+11}
    ds_write_b128 v{A_KW}, {vr(R+8,4)} offset:2048""")
    for r in range(2):
        p(f"v_bfi_b32 v{R+4*r+1}, v{MSK}, v{R+4*r}, v{R+4*r+2}")
        p(f"ds_write_b128 v{A_KW}, {vr(R+4*r,4)} offset:{1024*(1-r)}")

def prefetch1():
    if not opt('pf1', 1): return []
    NG = opt('pfg', 3); B = []; p = Prog()
    decode_ab(p, 's93', 16, 94, 92)
    p("s_add_u32 s93, s94, s92\n s_mul_i32 s93, s93, 3")
    srd(p, 96, P_W, 640 * 3840)
    p(f"""s_mul_i32 s92, s92, 160
    s_lshr_b32 s95, s68, 1
    s_add_u32 s95, s95, 1
    s_mul_i32 s95, s95, 1280
    s_add_u32 s92, s92, s95
    s_andn2_b32 s92, s92, 127
    s_and_b32 s95, s68, 1
    s_lshl_b32 s95, s95, 7
    s_add_u32 s92, s92, s95
    v_mul_u32_u24 v250, 3840, v{BL}
    v_mul_u32_u24 v249, 1280, v{BL}""")
    def g10(p, d, add):
        p(f"""s_add_u32 s{d}, s93, {add}
        s_mul_i32 s95, s{d}, 205
        s_lshr_b32 s95, s95, 11
        s_mul_i32 s95, s95, 10
        s_sub_u32 s{d}, s{d}, s95""")
    for k in range(opt('pf0', 1), NG + 1):
        g10(p, 100, k)
        p(f"s_mul_i32 s100, s100, {64*3840}\n s_add_u32 s100, s100, s92\n buffer_load_dword v254, v250, s[96:99], s100 offen {'nt' if opt('ntw', 0) else ''}")
        B.append(p); p = Prog()
    srd(p, 96, P_X, 2048 * 1280)
    p(f"""s_lshl_b32 s94, s94, 1
    s_and_b32 s95, s68, 1
    s_add_u32 s94, s94, s95
    s_mul_i32 s94, s94, {64*1280}
    s_lshr_b32 s95, s68, 1
    s_add_u32 s93, s93, s95""")
    for k in range(1, NG + 1, 2):
        g10(p, 100, k)
        p(f"s_lshl_b32 s100, s100, 7\n s_add_u32 s100, s100, s94\n buffer_load_dword v254, v249, s[96:99], s100 offen {'nt' if opt('ntx', 0) else ''}")
        B.append(p); p = Prog()
    return B
def prefetch2x():
    if not opt('pf2', 1): return []
    B = []
    for r in range(2):
        a = Prog(); b = Prog()
        a(f"""s_lshr_b32 s92, s2, 3
        s_sub_u32 s92, s92, 16
        s_lshl_b32 s92, s92, 2
        s_add_u32 s92, s92, s68
        s_lshl_b32 s92, s92, 6
        s_add_u32 s92, s92, {4096*r}
        v_add_u32 v250, s92, v{BL}
        v_mul_u32_u24 v249, 6554, v250
        v_lshrrev_b32 v249, 16, v249
        v_mul_u32_u24 v252, 10, v249
        v_sub_u32 v250, v250, v252
        v_mul_u32_u24 v252, 3840, v249
        v_lshl_add_u32 v252, v250, 7, v252""")
        srd(a, 96, P_W, 640 * 3840)
        a("buffer_load_dword v254, v252, s[96:99], 0 offen")
        b(f"""v_mul_u32_u24 v252, 1280, v249
        v_lshl_add_u32 v252, v250, 7, v252""")
        srd(b, 96, P_WO, 640 * 1280)
        b("buffer_load_dword v254, v252, s[96:99], 0 offen")
        B += [a, b]
    return B
def prefetch2():
    if XM: return prefetch2x()
    if not opt('pf2', 1): return []
    a = Prog(); b = Prog()
    a(f"""s_lshr_b32 s92, s2, 3
    s_sub_u32 s92, s92, 16
    s_lshl_b32 s92, s92, 2
    s_add_u32 s92, s92, s68
    s_lshl_b32 s92, s92, 6
    v_add_u32 v250, s92, v{BL}
    v_mul_u32_u24 v249, 13108, v250
    v_lshrrev_b32 v249, 16, v249
    v_mul_u32_u24 v252, 5, v249
    v_sub_u32 v250, v250, v252
    v_mul_u32_u24 v252, 3840, v249
    v_lshl_add_u32 v252, v250, 7, v252
    s_and_b32 s93, s2, 1
    s_mul_i32 s94, s93, 640""")
    srd(a, 96, P_W, 640 * 3840)
    a("buffer_load_dword v254, v252, s[96:99], s94 offen")
    b(f"""s_lshl_b32 s94, s93, 9
    s_lshl_b32 s95, s93, 7
    s_add_u32 s95, s95, 1024
    v_lshlrev_b32 v252, 7, v250
    v_add_u32 v252, s94, v252
    v_mov_b32 v248, s95
    v_cmp_eq_u32 vcc, 4, v250
    v_mul_u32_u24 v249, 1280, v249
    v_cndmask_b32 v252, v252, v248, vcc
    v_add_u32 v252, v252, v249""")
    srd(b, 96, P_WO, 640 * 1280)
    b("buffer_load_dword v254, v252, s[96:99], 0 offen")
    return [a, b]

def role_B():
    p = Prog(); nstamp[0] = 0
    LN, L15, G, Z = BL, B15, BG, BZ
    p("roleB:")
    stamp(p)
    if opt('bm', 1) == 0:
        p("""s_and_b32 s69, s2, 7
        s_mul_i32 s69, s69, 10
        s_lshr_b32 s70, s2, 3
        s_sub_u32 s70, s70, 16
        s_add_u32 s69, s69, s70""")
    else:
        p("""s_and_b32 s71, s2, 7
        s_lshr_b32 s70, s2, 3
        s_sub_u32 s70, s70, 16
        s_lshl_b32 s69, s71, 3
        s_add_u32 s69, s69, s70
        s_lshl_b32 s71, s71, 1
        s_add_u32 s71, s71, s70
        s_add_u32 s71, s71, 56
        s_cmp_ge_u32 s70, 8
        s_cselect_b32 s69, s71, s69""")
    kg_lanes(p)
    p(f"s_lshl_b32 s71, s69, 3\n s_add_u32 s71, s71, s68")
    kg_params(p, 's71', PR)
    pf = prefetch1()[:opt('pfb', 5)]; NOW = opt('pfnow', 5)
    srd(p, S_WSB, P_WS, WS_SIZE)
    token_load(p, S_WSB, Z)
    for b in pf[:NOW]: p.extend(b)
    p(f"""s_lshr_b32 s80, s69, 3
    s_lshl_b32 s39, s80, 12
    s_add_u32 s39, s39, {WS_UF}
    s_lshl_b32 s101, s69, 2
    s_add_u32 s101, s101, s68
    s_lshl_b32 s101, s101, 7
    s_add_u32 s101, s101, {WS_YF}
    s_lshl_b32 s6, s69, 15
    s_lshl_b32 s7, s68, 13
    s_add_u32 s6, s6, s7
    s_add_u32 s6, s6, {WS_YT}
    s_add_u32 s7, s6, 4096
    v_lshlrev_b32 v39, 4, v{LN}
    v_cmp_eq_u32 vcc, 0, v{LN}
    v_mov_b32 v15, {OOB:#x}
    v_cndmask_b32 v15, v15, v{Z}, vcc""")
    tk = Prog(); token_make(tk)
    sched = {30: [tk]}
    for k, b in enumerate(pf[NOW:]): sched.setdefault(opt('pfa', 0) + opt('pfd', 3) * k, []).append(b)
    for k, b in enumerate(prefetch2()): sched.setdefault(opt('pf2a', 30) + 3 * k, []).append(b)
    if not UT:
        p("s_lshl_b32 s80, s69, 4")
        srd(p, S_U, P_U, 0, 's80')
        p(f"""s_sub_u32 s{S_U+2}, {2048*1280}, s80
        v_mul_u32_u24 v6, 1280, v{LN}
        s_and_b32 s90, s69, 7
        s_lshl_b32 s81, s68, 3
        s_add_u32 s90, s90, s81""")
        for i in range(8):
            q = Prog()
            q(f"""s_add_u32 s81, s90, {i}
            s_and_b32 s81, s81, 31
            s_mul_i32 s82, s81, {64*1280}
            s_lshl_b32 s81, s81, 10
            s_add_u32 m0, s81, {B_RAW+256}""")
            q(f"buffer_load_dwordx4 v6, {sr(S_U,4)}, s82 offen lds", tag='raw')
            sched.setdefault(opt('sidef', 10) if i == 0 else min(55, opt('side0', 40) + opt('siden', 2) * i), []).append(q)
    srd(p, S_O, P_OUT, 2048 * 2560)
    if opt('noB', 0): p("s_endpgm")
    kg_setup(p, B_KR, B_SC)
    t = 40
    p(f"""v_mov_b32 v20, 0
    v_mov_b32 v21, 0
    v_mov_b32 v22, 0
    v_mov_b32 v23, 0
    v_lshlrev_b32 v{t}, 4, v{L15}
    ds_write_b128 v{t}, v[20:23] offset:{B_RAW}
    v_and_b32 v{t}, 31, v0
    v_lshl_add_u32 v38, v{t}, 4, s83
    ds_write_b128 v38, v[20:23] offset:4096
    v_lshlrev_b32 v{t+1}, 5, v{L15}
    v_sub_u32 v{A_KB}, s83, v{t+1}
    v_lshl_add_u32 v{A_KB}, v{G}, 4, v{A_KB}
    v_add_u32 v{A_KB}, 480, v{A_KB}""")
    stamp(p)
    kgen(p, PR, sched)
    stamp(p)
    Y = 184; UB = 216
    p(f"""v_and_b32 v17, 31, v0
    v_lshlrev_b32 v17, 7, v17
    s_lshl_b32 s38, s69, 15
    s_lshl_b32 s80, s68, 13
    s_add_u32 s38, s38, s80
    s_add_u32 s38, s38, {WS_UT}
    s_add_u32 s80, s80, {B_RAW+256}""")
    if UT: pollall(p, "b_pu", S_WSB, 's39', 18, 17, opt('uslp', 4))
    stamp(p)
    for i in range(8 if UT else 0):
        p(f"s_add_u32 m0, s80, {1024*i}\n s_nop 0\n buffer_load_dwordx4 v39, {sr(S_WSB,4)}, s38 offen sc1 lds\n s_add_u32 s38, s38, 1024", tag='raw')
    p(f"""v_bfe_u32 v{t}, v0, 2, 2
    v_lshl_add_u32 v{t}, v{G}, 3, v{t}
    v_bfe_u32 v{t+1}, v0, 1, 1
    v_lshl_add_u32 v{t}, v{t+1}, 2, v{t}
    v_lshlrev_b32 v{t}, 4, v{t}
    v_and_b32 v{t+1}, 1, v0
    v_lshl_add_u32 v{t}, v{t+1}, 3, v{t}
    s_lshl_b32 s80, s68, 9
    v_add_u32 v{t}, s80, v{t}
    v_and_b32 v{t+1}, 7, v0
    v_mul_u32_u24 v{t+1}, {2*CP}, v{t+1}
    v_bfe_u32 v{t+2}, v0, 3, 1
    v_lshl_add_u32 v{t+1}, v{t+2}, 3, v{t+1}
    v_lshl_add_u32 v{t+1}, v{G}, 4, v{t+1}
    s_lshl_b32 s80, s68, 6
    s_add_u32 s80, s80, {B_UC}
    v_add_u32 v{t+1}, s80, v{t+1}
    s_cmp_eq_u32 s68, 0
    s_cselect_b32 s80, 2, 0
    v_cmp_gt_u32 vcc, s80, v{G}
    v_mov_b32 v{t+2}, {B_END - 4096}
    s_mul_i32 s81, s68, {2*CP}
    v_cndmask_b32 v{t+3}, v{t+2}, v{t+1}, vcc
    s_add_u32 s81, s81, {B_UC}
    v_and_b32 v{t+4}, 1, v0
    v_mul_u32_u24 v{t+4}, {CP}, v{t+4}
    v_lshrrev_b32 v{t+5}, 1, v{L15}
    v_lshl_add_u32 v{t+5}, v{G}, 2, v{t+5}
    v_lshl_add_u32 v{t+4}, v{t+5}, 2, v{t+4}
    v_add_u32 v{UB}, s81, v{t+4}
    v_add_u32 v{UB+1}, 1024, v{UB}
    v_add_u32 v{UB+2}, 2048, v{UB}
    v_add_u32 v{UB+3}, 3072, v{UB}
    s_mul_i32 s80, s68, {YP}
    v_lshlrev_b32 v{t+4}, 5, v{L15}
    v_lshl_add_u32 v{t+4}, v{G}, 3, v{t+4}
    v_add_u32 v{UB+4}, s80, v{t+4}
    s_lshl_b32 s90, s69, 2
    s_add_u32 s90, s90, s68
    s_lshl_b32 s91, s90, 12
    s_add_u32 s91, s91, {WS_KR}
    s_lshl_b32 s90, s90, 7
    s_add_u32 s90, s90, {WS_KF}
    s_sub_u32 s92, s84, s83
    v_add_u32 v38, s92, v38""")
    p(f"""v_bfe_u32 v224, v0, 2, 2
    v_mul_u32_u24 v224, {YP}, v224
    v_and_b32 v225, 3, v0
    v_lshl_add_u32 v224, v225, 3, v224
    v_lshl_add_u32 v224, v{G}, 5, v224
    s_lshl_b32 s80, s68, 10
    v_add_u32 v224, s80, v224""")
    if YT:
        p(f"""s_lshr_b32 s80, s69, 3
        s_and_b32 s81, s69, 7
        s_lshl_b32 s81, s81, 2
        s_add_u32 s81, s81, s68
        s_lshl_b32 s96, s80, 18
        s_lshl_b32 s82, s81, 10
        s_add_u32 s96, s96, s82
        s_add_u32 s96, s96, {WS_YT}
        s_mul_i32 s97, s81, {64*2560}
        s_lshl_b32 s80, s80, 7
        s_add_u32 s97, s97, s80
        s_add_u32 s97, s97, 1280
        s_mul_i32 s98, s68, 8448
        s_add_u32 s98, s98, {B_UC}
        v_lshrrev_b32 v226, 3, v{LN}
        v_and_b32 v227, 7, v0
        v_lshlrev_b32 v228, 15, v226
        v_lshl_add_u32 v228, v227, 7, v228
        v_mul_u32_u24 v229, 1040, v227
        v_lshl_add_u32 v229, v226, 4, v229
        v_add_u32 v229, s98, v229
        v_mul_u32_u24 v230, 2560, v226
        v_lshl_add_u32 v230, v227, 4, v230
        s_nop 0""")
    p.waitvm('raw'); p("s_waitcnt lgkmcnt(0)\n s_barrier")
    stamp(p)
    p(f"ds_write_b128 v38, v[20:23] offset:4096")
    jobs = [(k, pp) for k in range(17) for pp in range(2)]
    NBUF = 8
    def rdj(n):
        k, pp = jobs[n]; p(f"ds_read_b64_tr_b16 {vr(48+2*(n%NBUF),2)}, v{t} offset:{B_RAW + 16*(1+pp) + 2048*k}")
    def wrj(n):
        k, pp = jobs[n]
        p(f"ds_write_b64 v{t+3 if k == 16 else t+1}, {vr(48+2*(n%NBUF),2)} offset:{pp*CP + 256*k}")
    for n in range(NBUF): rdj(n)
    if YT: p("v_mov_b32 v8, -1\n v_mov_b32 v9, -1\n v_mov_b32 v10, -1\n v_mov_b32 v11, -1")
    for n in range(len(jobs)):
        wrj(n)
        if n + NBUF < len(jobs): rdj(n + NBUF)
        if YT and n % 4 == 1 and n // 4 < 8:
            jj = n // 4; p(f"buffer_store_dwordx4 v[8:11], v39, {sr(S_WSB,4)}, {'s6' if jj < 4 else 's7'} offen offset:{1024*(jj%4)} sc1")
    def fa(b, a): return ar((b % 2) * 64 + 4 * a, 4)
    def fb(b, c): return ar((b % 2) * 64 + 32 + 4 * c, 4)
    def reads(b, kind='ku'):
        q = Prog()
        for a in range(8):
            o = 128 * (a % 2) + 16 * b; r0 = (b % 2) * 64 + 4 * a
            if 'k' in kind: q(f"ds_read_b128 {fb(b,a)}, v{A_KB} offset:{512*(7-a)+64*b}")
            if 'u' in kind:
                q(f"ds_read2_b32 {ar(r0,2)}, v{UB+a//2} offset0:{o} offset1:{o+1}")
                q(f"ds_read2_b32 {ar(r0+2,2)}, v{UB+a//2} offset0:{o+2} offset1:{o+3}")
        return q
    def krdma(tag):
        for i in range(4):
            p(f"s_add_u32 m0, s84, {1024*i}\n s_nop 0\n buffer_load_dwordx4 v39, {sr(S_WSB,4)}, s91 offen sc1 lds\n s_add_u32 s91, s91, 1024", tag=tag)
    p("s_mov_b32 s93, 0\n s_mov_b32 s95, 0\n s_waitcnt lgkmcnt(0)\n s_barrier")
    stamp(p)
    p("b_conv:")
    p.extend(reads(0))
    prs = sorted([(a, c) for c in range(8) for a in range(c + 1)], key=lambda x: (max(x[0], x[1] - x[0]), x[1]))
    EB = opt('eb', 5)
    if opt('cord', 1):
        prs = sorted(prs, key=lambda x: (max(x[0], x[1] - x[0]), x[0] > x[1] - x[0], x[1]))
        if opt('cord', 1) == 2: prs = prs[:-6] + [(0, 6), (1, 7), (6, 6), (0, 7), (6, 7), (7, 7)]
    for b in range(8):
        m = Prog(); seen = set(); lvl = -1
        for a, c in prs:
            first = b == 0 and c not in seen; seen.add(c)
            if max(a, c - a) != lvl and (b == 0 or max(a, c - a) in (0, 4)):
                lvl = max(a, c - a); hi = lvl if b == 0 else lvl + 3
                m.need([fa(b, x) for x in range(lvl, hi + 1)] + [fb(b, x) for x in range(lvl, hi + 1)])
            mfma(m, vr(Y + 4 * c, 4), fa(b, a), fb(b, c - a), '0' if first else None)
        if b == EB: p(f"buffer_load_dword v7, v{Z}, {sr(S_WSB,4)}, s90 offen sc1")
        if b == EB + 1:
            p(f"""v_cmp_eq_u32 vcc, v{V_TOK}, v7
            s_cmp_lg_u32 s93, 0
            s_cselect_b64 s[80:81], 0, -1
            s_and_b64 vcc, vcc, s[80:81]""")
            p("s_cbranch_scc0 b_noearly", tag='keep')
            krdma('offpath')
            p("s_mov_b32 s95, 1", tag='offpath')
            p("b_noearly:")
            if YT: p(f"buffer_load_dword v18, v17, {sr(S_WSB,4)}, s101 offen sc1")
        p.extend(pack(m, [(singles(reads(b + 1)), 2, 30)] if b < 7 else [], cap=4))
    for c in range(8):
        d = 40 + 2 * (c % 4)
        p(f"v_cvt_pk_bf16_f32 v{d}, v{Y+4*c}, v{Y+4*c+1}\n v_cvt_pk_bf16_f32 v{d+1}, v{Y+4*c+2}, v{Y+4*c+3}")
        p(f"ds_write_b64 v{UB+4}, {vr(d,2)} offset:{B_RAW+512*c}")
    p("s_cmp_lg_u32 s93, 0")
    p("s_cbranch_scc1 b_fin", tag='keep')
    stamp(p)
    p(f"""s_mov_b32 s93, 1
    v_add_u32 v{A_KB}, s92, v{A_KB}""")
    for k in range(4): p(f"v_add_u32 v{UB+k}, {8*CP}, v{UB+k}")
    p(f"v_add_u32 v{UB+4}, {4*YP}, v{UB+4}\n s_cmp_eq_u32 s95, 1")
    p("s_cbranch_scc1 b_have", tag='keep')
    p(f"s_mov_b32 s94, {SPIN}")
    p("b_poll:")
    p(f"""buffer_load_dword v7, v{Z}, {sr(S_WSB,4)}, s90 offen sc1
    s_sub_u32 s94, s94, 1
    s_waitcnt vmcnt(0)
    v_cmp_eq_u32 vcc, v{V_TOK}, v7
    s_cmp_eq_u32 s94, 0
    s_cbranch_scc1 b_got
    s_cmp_eq_u64 vcc, 0
    s_cbranch_scc1 b_poll""")
    p("b_got:")
    krdma(None)
    p("b_have:")
    p(f"s_waitcnt vmcnt(0)\n buffer_store_dword v{V_TOK}, v15, {sr(S_WSB,4)}, s101 offen sc1\n s_add_u32 s101, s39, {WS_YF-WS_UF}\n s_branch b_conv")
    p("b_fin:")
    p("s_waitcnt vmcnt(0)")
    stamp(p)
    if not YT:
        p(f"""v_mul_u32_u24 v225, 2560, v{LN}
        s_mul_i32 s80, s68, {512*2560}
        s_lshl_b32 s81, s69, 4
        s_add_u32 s80, s80, s81
        s_add_u32 s80, s80, 1280
        s_waitcnt lgkmcnt(0)
        s_barrier""")
        for it in range(8):
            for h in range(2):
                p(f"ds_read_b64_tr_b16 {vr(56+4*it+2*h,2)}, v224 offset:{B_RAW + h*4*YP + 128*it}")
        for it in range(8):
            p(f"buffer_store_dwordx4 {vr(56+4*it,4)}, v225, {sr(S_O,4)}, s80 offen\n s_add_u32 s80, s80, {64*2560}")
        stamp(p); stamp(p); stamp(p)
        stamp_store(p, S_WSB)
        p("s_endpgm")
        return p
    p(f"v_cmp_eq_u32 vcc, v{V_TOK}, v18\n s_nop 1\n s_cmp_eq_u64 vcc, -1")
    p("s_cbranch_scc1 b_pf_x")
    pollall(p, "b_pf", S_WSB, 's101', 18, 17)
    p(f"s_mov_b32 s94, {SPIN}")
    p("s_waitcnt lgkmcnt(0)\n s_barrier")
    for it in range(8):
        for h in range(2):
            p(f"ds_read_b64_tr_b16 {vr(56+4*it+2*h,2)}, v224 offset:{B_RAW + h*4*YP + 128*it}")
    for it in range(8):
        p(f"buffer_store_dwordx4 {vr(56+4*it,4)}, v39, {sr(S_WSB,4)}, {'s6' if it < 4 else 's7'} offen offset:{1024*(it%4)} sc1")
    stamp(p)
    p("b_yp:")
    p(f"""buffer_load_dword v19, v228, {sr(S_WSB,4)}, s96 offen sc1
    s_sub_u32 s94, s94, 1
    s_waitcnt vmcnt(0)
    v_cmp_ne_u32 vcc, -1, v19
    s_cmp_lt_i32 s94, 1
    s_cbranch_scc1 b_yg
    s_cmp_eq_u64 vcc, -1
    s_cbranch_scc1 b_yg
    s_sleep {opt('yslp', 8)}
    s_branch b_yp""")
    p("b_yg:")
    stamp(p)
    p("s_mov_b32 s82, s96")
    for j in range(8):
        p(f"s_add_u32 m0, s98, {1040*j}\n s_nop 0\n buffer_load_dwordx4 v39, {sr(S_WSB,4)}, s82 offen sc1 lds\n s_add_u32 s82, s82, 32768")
    p("v_mov_b32 v18, 0\n s_waitcnt vmcnt(0)")
    for i in range(8): p(f"ds_read_b128 {vr(56+4*i,4)}, v229 offset:{128*i}")
    for i in range(8): p(f"v_max3_u32 v18, v18, v{56+4*i}, v{57+4*i}\n v_max3_u32 v18, v18, v{58+4*i}, v{59+4*i}")
    p(f"""v_cmp_eq_u32 vcc, -1, v18
    s_cmp_lt_i32 s94, 1
    s_cbranch_scc1 b_yo
    s_cmp_lg_u64 vcc, 0
    s_cbranch_scc1 b_yp""")
    p("b_yo:")
    for i in range(8):
        p(f"buffer_store_dwordx4 {vr(56+4*i,4)}, v230, {sr(S_O,4)}, s97 offen {OPT.get('bst', 'sc1')}\n s_add_u32 s97, s97, {8*2560}")
    stamp(p)
    stamp_store(p, S_WSB)
    p("s_endpgm")
    return p

def role_S():
    p = Prog(); nstamp[0] = 32
    p("roleS:")
    p(f"""s_getpc_b64 s[40:41]
    cpf_here:
    s_sub_u32 s40, s40, cpf_here-{NAME}_kernel
    s_subb_u32 s41, s41, 0
    s_lshr_b32 s42, s2, 3
    s_and_b32 s42, s42, 1
    s_lshl_b32 s42, s42, 15
    v_lshlrev_b32 v8, 7, v0
    v_add_u32 v8, s42, v8
    v_cmp_gt_u32 vcc, code_end-{NAME}_kernel, v8
    v_cndmask_b32 v8, 0, v8, vcc
    global_load_dword v254, v8, s[40:41]""")
    if STAMP: p("v_mov_b32 v255, 0")
    stamp(p)
    p(f"s_sub_u32 s69, s2, 208")
    kg_lanes(p)
    p(f"""s_lshl_b32 s90, s69, 2
    s_add_u32 s90, s90, s68
    s_lshl_b32 s71, s69, 3
    s_add_u32 s71, s71, s68
    s_add_u32 s71, s71, 4""")
    kg_params(p, 's71', PR)
    p(f"s_add_u32 s71, s71, 384\n s_min_u32 s71, s71, 639")
    kg_params(p, 's71', PR + 6)
    srd(p, S_U, P_WS, WS_ZERO_END)
    srd(p, S_O, P_DBG, 256)
    srd(p, S_WSB, P_WS, WS_SIZE)
    token_load(p, S_WSB, BZ)
    p(f"""s_lshl_b32 s70, s69, 12
    v_lshlrev_b32 v6, 4, v0
    v_mov_b32 v20, 0
    v_mov_b32 v21, 0
    v_mov_b32 v22, 0
    v_mov_b32 v23, 0
""")
    p(f"buffer_store_dwordx4 v[20:23], v6, {sr(S_U,4)}, s70 offen sc1", tag='zero')
    srd(p, 96, P_U, 2048 * 1280)
    p(f"""v_lshrrev_b32 v240, 3, v{BL}
    v_mul_u32_u24 v240, 1280, v240
    v_and_b32 v241, 7, v0
    v_xor_b32 v241, v241, v{BG}
    v_lshl_add_u32 v240, v241, 4, v240
    v_xor_b32 v241, 64, v240
    v_add_u32 v241, {8*1280}, v241
    s_lshl_b32 s5, s68, 14""")
    for r in range(2 if UT else 0):
        p(f"""s_add_u32 s80, s90, {192*r}
        s_and_b32 s81, s80, 31
        s_lshr_b32 s82, s80, 5
        s_mul_i32 s81, s81, {64*1280}
        s_lshl_b32 s82, s82, 7
        s_add_u32 s82, s82, s81
        s_cmp_ge_u32 s80, 320
        s_cselect_b32 s82, {0x40000000}, s82""")
        for i in range(8):
            p(f"s_add_u32 m0, s5, {8192*r+1024*i}\n s_nop 0\n buffer_load_dwordx4 v{240+i%2}, s[96:99], s82 offen nt lds", tag=('ut', r))
            if i % 2: p(f"s_add_u32 s82, s82, {16*1280}")
    pfS = prefetch1()[:opt('pfs', 0 if UT else 5)]
    for b in pfS[:opt('pfnow', 5)]: p.extend(b)
    p(f"""s_cmp_lt_u32 s69, {NZERO_WG}
    s_cselect_b32 s4, 0, -1
    v_cmp_eq_u32 vcc, s4, v0
    v_mov_b32 v7, 1
    v_mov_b32 v38, {OOB:#x}
    v_cndmask_b32 v39, v38, v{BZ}, vcc""")
    kg_setup(p, S_KR, S_SC)
    p(f"""v_cmp_eq_u32 vcc, 0, v{BL}
    v_lshlrev_b32 v184, 4, v{BL}
    v_add_u32 v185, s83, v184
    v_cndmask_b32 v38, v38, v{BZ}, vcc
    v_bfe_u32 v242, v0, 1, 3
    v_lshlrev_b32 v242, 4, v242
    v_lshl_add_u32 v242, v{BL}, 7, v242
    v_add_u32 v242, s5, v242""")
    p.waitvm('zero')
    p(f"s_barrier\n buffer_atomic_add v7, v39, {sr(S_O,4)}, 0 offen sc1")
    token_make(p)
    if not UT: p(f"s_mov_b32 s6, {0x40000000}\n s_mov_b32 s7, {0x40000000}")
    for r in range(2 if UT else 0):
        p(f"""s_add_u32 s80, s90, {192*r}
        s_and_b32 s81, s80, 31
        s_lshr_b32 s82, s80, 5
        s_lshl_b32 s81, s81, 10
        s_lshl_b32 s82, s82, 18
        s_add_u32 s82, s82, s81
        s_add_u32 s82, s82, {WS_UT}
        s_lshl_b32 s{6+r}, s80, 7
        s_add_u32 s{6+r}, s{6+r}, {WS_UF}
        s_cmp_ge_u32 s80, 320
        s_cselect_b32 s82, {0x40000000}, s82
        s_cselect_b32 s{6+r}, {0x40000000}, s{6+r}""")
        p.waitvm(('ut', r))
        for j in range(8): p(f"v_xor_b32 v243, {16*j}, v242\n ds_read_b128 {vr(48+32*r+4*j,4)}, v243 offset:{8192*r}")
        for j in range(8): p(f"buffer_store_dwordx4 {vr(48+32*r+4*j,4)}, v184, {sr(S_WSB,4)}, s82 offen sc1\n s_add_u32 s82, s82, 32768")
    stamp(p)
    p("s_kloop:", tag='keep')
    fl = Prog()
    fl(f"""s_waitcnt vmcnt(0)
    buffer_store_dword v{V_TOK}, v38, {sr(S_WSB,4)}, s6 offen sc1
    buffer_store_dword v{V_TOK}, v38, {sr(S_WSB,4)}, s7 offen sc1""")
    sched = {opt('sfl', 24): [fl]}
    for k, b in enumerate(pfS[opt('pfnow', 5):]): sched.setdefault(opt('pfa', 0) + opt('pfd', 3) * k, []).append(b)
    for k, b in enumerate(prefetch2()): sched.setdefault(40 + 3 * k, []).append(b)
    kgen(p, PR, sched)
    for i in range(4): p(f"ds_read_b128 {vr(48+4*i,4)}, v185 offset:{1024*i}")
    p(f"s_lshl_b32 s91, s90, 12\n s_add_u32 s91, s91, {WS_KR}")
    for i in range(4): p(f"buffer_store_dwordx4 {vr(48+4*i,4)}, v184, {sr(S_WSB,4)}, s91 offen offset:{1024*i} sc1")
    p(f"""s_lshl_b32 s6, s90, 7
    s_add_u32 s6, s6, {WS_KF}
    s_mov_b32 s7, s6
    s_add_u32 s90, s90, 192""")
    for k in range(6): p(f"v_mov_b32 v{PR+k}, v{PR+6+k}")
    stamp(p)
    p("s_cmp_lt_u32 s90, 320\n s_cbranch_scc1 s_kloop")
    p(f"s_waitcnt vmcnt(0)\n buffer_store_dword v{V_TOK}, v38, {sr(S_WSB,4)}, s6 offen sc1")
    p("s_cmp_ge_u32 s2, 240")
    stamp(p)
    p("s_cbranch_scc1 s_done")
    srd(p, S_DBG, P_DBG, 256)
    if XM == 0:
        p("""s_and_b32 s72, s2, 7
        s_lshr_b32 s69, s72, 1
        s_lshl_b32 s69, s69, 2
        s_lshr_b32 s73, s2, 3
        s_sub_u32 s73, s73, 26
        s_add_u32 s69, s69, s73
        s_and_b32 s83, s72, 1""")
    else:
        p("""s_and_b32 s69, s2, 7
        s_lshl_b32 s69, s69, 1
        s_lshr_b32 s73, s2, 3
        s_sub_u32 s73, s73, 26
        s_and_b32 s83, s73, 1
        s_lshr_b32 s73, s73, 1
        s_add_u32 s69, s69, s73""")
    p(f"""s_add_u32 s83, s83, 8
    s_lshl_b32 s83, s83, 7
    s_mul_i32 s84, s68, {GR}
    v_and_b32 v{LN}, 63, v0
    v_mov_b32 v{V_Z}, 0""")
    setup_g2(p)
    for i in range(5): unpark(p, f'wo{i}', V_XO + i)
    for G in range(15, 19):
        for b in issue_group(G): p.extend(b)
    p(f"""v_and_b32 v249, 7, v0
    v_lshlrev_b32 v249, 13, v249
    s_lshl_b32 s85, s69, 9
    s_lshl_b32 s81, s68, 7
    s_add_u32 s85, s85, s81
    s_add_u32 s85, s85, {WS_KVF}""")
    pollall(p, "s_pf", S_WS, 's85', 248, 249, opt('slp', 8))
    p("s_branch g2_tail")
    p("s_done:")
    p(f"""s_cmp_lg_u32 s2, {999 if opt('noB', 0) else 255}
    s_cbranch_scc1 s_fin
    s_cmp_lg_u32 s68, 0
    s_cbranch_scc1 s_fin
""")
    for n, (base, cnt, r) in enumerate(((WS_KF, 48, 0), (WS_YF, 80, 0), (WS_YF, 80, 1), (WS_KVF, 128, 0), (WS_KVF, 128, 1))):
        p(f"""v_add_u32 v187, {64*r}, v{BL}
        v_min_u32 v187, {cnt-1}, v187
        v_lshlrev_b32 v187, 9, v187
        s_mov_b32 s91, {base}""")
        pollall(p, f"s_ep{n}", S_WSB, 's91', 186, 187, 16)
    p(f"""s_mov_b32 s4, {WS_EP}
    buffer_store_dword v{V_TOK}, v38, {sr(S_WSB,4)}, s4 offen sc1""")
    p("s_fin:")
    if STAMP:
        stamp_store(p, S_WSB)
    p("done:\n s_endpgm\n code_end:")
    return p

def main():
    LDS = max(A_END + 16, B_END + 4608)
    assert LDS <= 163840, LDS
    ref = open(f"cdna_kernels/{NAME}.s.ref").read().split('\n')
    hdr = [l for l in ref if l.startswith(';') and '@launch' not in l]
    s = '\n'.join(hdr) + f"\n; @launch grid=(256,1,1) block=(256,1,1) lds={LDS}\n"
    s += f""".amdgcn_target "amdgcn-amd-amdhsa--gfx950"
.text
.p2align 12
.globl {NAME}_kernel
.p2align 8
.type {NAME}_kernel,@function
{NAME}_kernel:
"""
    e = Prog()
    e(f"""s_cmp_ge_u32 s2, 256
    s_cbranch_scc1 done""")
    if opt('cpf2', 0):
        e(f"""s_getpc_b64 s[36:37]
        v_lshlrev_b32 v2, 7, v0
        s_cmp_ge_u32 s2, 128
        s_cselect_b32 s38, roleB-{NAME}_kernel, 0
        v_add_u32 v2, s38, v2
        v_min_u32 v2, code_end-{NAME}_kernel-64, v2
        global_load_dword v253, v2, s[36:37]""", tag='offpath')
    e(f"""
    s_load_dwordx16 s[8:23], s[0:1], 0
    s_load_dwordx8 s[24:31], s[0:1], 64
    s_load_dwordx4 s[32:35], s[0:1], 96
    v_lshrrev_b32 v1, 6, v0
    s_nop 0
    v_readfirstlane_b32 s68, v1
    s_cmp_ge_u32 s2, 208
    s_cbranch_scc1 roleS
    s_cmp_ge_u32 s2, 128
    s_cbranch_scc1 roleB""")
    a = role_A()
    e.extend(a)
    L = lower(e) + lower(role_B()) + lower(role_S())
    if opt('align', 1):
        L, nn, npro = align8(L, sizes_of(s + render(L) + ''.join(f'pg{k}:\n' for k in range(NPG))))
        print("align: nops", nn, "promoted", npro)
    if NPG:
        dummy = ''.join(f"pg{k}:\n" for k in range(NPG))
        L, n = page_stubs(L, sizes_of(s + render(L) + dummy), 4096 - 0x300, 'roleB')
        print("page stubs", n)
        assert n == NPG
    s += render(L)
    s += f""".section .rodata,"a"
.p2align 6
.amdhsa_kernel {NAME}_kernel
  .amdhsa_next_free_vgpr 512
  .amdhsa_next_free_sgpr 102
  .amdhsa_accum_offset 256
  .amdhsa_group_segment_fixed_size 0
  .amdhsa_kernarg_size 112
  .amdhsa_user_sgpr_count 2
  .amdhsa_user_sgpr_kernarg_segment_ptr 1
  .amdhsa_system_sgpr_workgroup_id_x 1
.end_amdhsa_kernel
"""
    out = OPT.get('out', f"cdna_kernels/{NAME}.s")
    open(out, 'w').write(s)
    print("LDS", LDS, "A_END", A_END, "B_END", B_END, "lines", s.count('\n'))
main()
```

```python
import re

REG_RE = re.compile(r'(?<![\w.])([vas])(\d+)(?![\w\[])|(?<![\w.])([vas])\[(\d+):(\d+)\]')
TRANS = ('v_exp_f32', 'v_log_f32', 'v_rcp_f32', 'v_rsq_f32', 'v_sqrt_f32', 'v_sin_f32', 'v_cos_f32')

def regs_of(tok):
    out = []
    for m in REG_RE.finditer(tok):
        if m.group(1): out.append((m.group(1), int(m.group(2))))
        else: out += [(m.group(3), i) for i in range(int(m.group(4)), int(m.group(5)) + 1)]
    t = tok.strip().lstrip('-').strip('|')
    if t == 'vcc': out += [('s', 'vcc_lo'), ('s', 'vcc_hi')]
    elif t in ('vcc_lo', 'vcc_hi'): out.append(('s', t))
    elif t == 'exec': out += [('s', 'exec')]
    elif t == 'm0': out.append(('s', 'm0'))
    return out

def split_ops(s):
    ops = []; depth = 0; cur = ''
    for ch in s:
        if ch in '[(': depth += 1
        if ch in '])': depth -= 1
        if ch == ',' and depth == 0: ops.append(cur.strip()); cur = ''
        else: cur += ch
    if cur.strip(): ops.append(cur.strip())
    return ops

class I:
    __slots__ = ('text', 'mn', 'defs', 'uses', 'kind', 'tag', 'srcc', 'passes', 'wide', 'note')
    def __init__(self, text, tag=None):
        self.text = text.strip(); self.tag = tag; self.note = None
        self.srcc = []; self.passes = 0; self.wide = False
        t = self.text
        if t.endswith(':') or t.startswith('.') or t.startswith(';'):
            self.mn = t; self.kind = 'label' if t.endswith(':') else 'dir'; self.defs = []; self.uses = []; return
        parts = t.split(None, 1)
        mn = parts[0]; self.mn = mn
        rest = parts[1] if len(parts) > 1 else ''
        base = re.sub(r'_(e32|e64|dpp)$', '', mn)
        ops = split_ops(rest)
        if ops:
            last = ops[-1].split()
            mods = ' '.join(last[1:]) if len(last) > 1 else ''
            ops[-1] = last[0]
        else: mods = ''
        R = [regs_of(o) for o in ops]
        flat = lambda l: [x for y in l for x in y]
        defs = []; uses = []
        if base.startswith('v_mfma'):
            self.kind = 'mfma'; defs = R[0]; uses = flat(R[1:4]); self.srcc = R[3]
            self.passes = 8 if '32x32' in base else 4
        elif base.startswith('v_cmp'):
            self.kind = 'valu'; defs = R[0]; uses = flat(R[1:])
        elif base in ('v_readfirstlane_b32', 'v_readlane_b32'):
            self.kind = 'valu'; defs = R[0]; uses = flat(R[1:])
        elif (base.startswith('v_permlane') and 'swap' in base) or base == 'v_swap_b32':
            self.kind = 'valu'; defs = flat(R[:2]); uses = flat(R[:2])
        elif base.startswith('v_'):
            self.kind = 'valu'; defs = R[0]; uses = flat(R[1:])
            if base in ('v_fmac_f32', 'v_pk_fmac_f16', 'v_writelane_b32') or 'dpp' in mods or 'row_' in mods or 'quad_perm' in mods: uses = uses + R[0]
            if base in ('v_add_co_u32', 'v_sub_co_u32', 'v_addc_co_u32'): defs = flat(R[:2]); uses = flat(R[2:])
            if base == 'v_cndmask_b32' and len(ops) == 3: uses += regs_of('vcc')
        elif base.startswith('ds_read') or base.startswith('ds_bpermute') or base.startswith('ds_swizzle'):
            self.kind = 'ds'; defs = R[0]; uses = flat(R[1:])
        elif base.startswith('ds_'):
            self.kind = 'ds'; uses = flat(R)
        elif base.startswith('buffer_load') or base.startswith('global_load'):
            self.kind = 'vm'
            if re.search(r'\blds\b', mods): uses = flat(R) + [('s', 'm0')]; self.note = 'dma'
            else: defs = R[0]; uses = flat(R[1:])
        elif base.startswith('buffer_atomic') or base.startswith('global_atomic'):
            self.kind = 'vm'; uses = flat(R)
            if 'sc0' in mods: defs = R[0]
        elif base.startswith('buffer_store') or base.startswith('global_store'):
            self.kind = 'vm'; uses = flat(R)
            if 'x3' in base or 'x4' in base:
                self.wide = True
                self.srcc = R[0] if base.startswith('buffer') else R[1]
        elif base.startswith('buffer_wbl2') or base.startswith('buffer_inv'):
            self.kind = 'vm'
        elif base.startswith('s_load') or base in ('s_memtime', 's_memrealtime'):
            self.kind = 'smem'; defs = R[0]; uses = flat(R[1:])
        elif base == 's_waitcnt': self.kind = 'wait'
        elif base == 's_nop': self.kind = 'nop'
        elif base == 's_barrier': self.kind = 'barrier'
        elif base.startswith('s_cbranch') or base in ('s_branch', 's_setpc_b64', 's_swappc_b64', 's_endpgm', 's_call_b64'):
            self.kind = 'branch'; uses = flat(R)
        elif base.startswith('s_cmp') or base in ('s_sleep', 's_setprio', 's_bitcmp1_b32', 's_bitcmp0_b32'):
            self.kind = 'salu'; uses = flat(R)
        elif base.startswith('s_'):
            self.kind = 'salu'; defs = R[0]; uses = flat(R[1:])
            if 'saveexec' in base: defs = defs + [('s', 'exec')]
        else:
            raise ValueError('unknown instr ' + t)
        if self.kind == 'vm' and defs == [('v', 254)]: defs = []
        self.defs = defs; self.uses = uses
    def states(self):
        if self.kind == 'nop': return int(self.text.split()[1], 0) + 1
        if self.kind in ('label', 'dir'): return 0
        return 1

class Prog:
    def __init__(self):
        self.L = []
    def __call__(self, text, tag=None):
        for line in text.split('\n'):
            line = line.split(';;')[0].strip()
            if line: self.L.append(I(line, tag))
    def waitvm(self, tag):
        i = I('; waitvm ' + str(tag)); i.kind = 'waitvm'; i.tag = tag; self.L.append(i)
    def need(self, regs):
        i = I('; need'); i.kind = 'need'; i.uses = [r for tok in regs for r in regs_of(tok)]; i.defs = []; self.L.append(i)
    def waitall(self, vm=True, lgkm=True):
        self(('s_waitcnt ' + ('vmcnt(0) ' if vm else '') + ('lgkmcnt(0)' if lgkm else '')).strip())
    def extend(self, other): self.L += other.L
    def fork(self, side):
        a = I('; fork'); a.kind = 'fork'; b = I('; endfork'); b.kind = 'endfork'
        self.L += [a] + side.L + [b]

def merge(main, side, ratio_fn=None, start=0, every=1, count=1):
    out = Prog(); si = 0; nm = 0
    S = side.L
    for ins in main.L:
        out.L.append(ins)
        if ins.kind == 'mfma':
            nm += 1
            if nm > start and (nm - start) % every == 0:
                c = 0
                while c < count and si < len(S):
                    out.L.append(S[si]);
                    if S[si].kind not in ('dir', 'waitvm'): c += 1
                    si += 1
    out.L += S[si:]
    return out

def insert_waits(L):
    out = []; vm = []; lg = []; smem = set()
    def need(q, regs, tagmatch=None):
        idx = -1
        for k, e in enumerate(q):
            if (regs and e[0] & regs) or (tagmatch is not None and e[1] == tagmatch): idx = k
        return idx
    for ins in L:
        if ins.tag == 'offpath':
            out.append(ins); continue
        if ins.kind == 'fork':
            saved = (list(vm), list(lg), set(smem)); continue
        if ins.kind == 'endfork':
            vm, lg, smem = saved; continue
        if ins.kind == 'wait':
            m = re.search(r'vmcnt\((\d+)\)', ins.text)
            if m: n = int(m.group(1)); vm = vm[len(vm) - n:] if n < len(vm) and n > 0 else ([] if n == 0 else vm)
            m = re.search(r'lgkmcnt\((\d+)\)', ins.text)
            if m:
                n = int(m.group(1))
                if n == 0: lg = []; smem = set()
                elif not smem and n < len(lg): lg = lg[len(lg) - n:]
            out.append(ins); continue
        if ins.kind == 'label':
            out.append(ins); continue
        regs = set(ins.uses) | set(ins.defs)
        w = []
        if ins.kind == 'waitvm': k = need(vm, None, ins.tag)
        else: k = need(vm, regs)
        if k >= 0:
            n = len(vm) - 1 - k
            w.append('vmcnt(%d)' % min(n, 62)); vm = vm[k + 1:]
        if smem & regs or (smem and need(lg, regs) >= 0):
            w.append('lgkmcnt(0)'); lg = []; smem = set()
        else:
            k = need(lg, regs)
            if k >= 0:
                n = len(lg) - 1 - k
                w.append('lgkmcnt(%d)' % min(n, 14)); lg = lg[k + 1:]
        if w: out.append(I('s_waitcnt ' + ' '.join(w)))
        if ins.kind in ('waitvm', 'need'): continue
        out.append(ins)
        if ins.kind == 'vm': vm.append((set(ins.defs), ins.tag))
        elif ins.kind == 'ds': lg.append((set(ins.defs), ins.tag))
        elif ins.kind == 'smem': smem |= set(ins.defs); smem.add(('x', 0))
        if ins.kind == 'branch' and ins.mn != 's_endpgm' and 'nocheck' not in (ins.tag or ''):
            pend = [e for e in vm + lg if e[0]]
            if pend and not (ins.tag and 'keep' in ins.tag):
                raise ValueError('pending loads across branch: ' + ins.text + ' ' + str(pend[:2]))
    return out

def isv(r): return r[0] in 'va'
def req_states(p, c):
    n = 0
    pd = set(p.defs); cu = set(c.uses); cd = set(c.defs)
    cb = re.sub(r'_e(32|64)$', '', c.mn); pb = re.sub(r'_e(32|64)$', '', p.mn)
    if p.kind == 'valu':
        vd = {r for r in pd if isv(r)}; sd = pd - vd
        if c.kind == 'mfma' and vd & cu: n = max(n, 2)
        if c.kind == 'valu':
            if cb in ('v_readfirstlane_b32', 'v_readlane_b32') and vd & cu: n = max(n, 1)
            if cb.startswith('v_permlane') and vd & cu: n = max(n, 2)
            if ('row_' in c.text or 'quad_perm' in c.text or 'dpp' in c.text) and vd & cu: n = max(n, 2)
            if pb in TRANS and cb not in TRANS and vd & cu: n = max(n, 1)
            if pb in TRANS and vd & cu: n = max(n, 1)
            if sd & cu: n = max(n, 4 if cb in ('v_readlane_b32', 'v_writelane_b32') else 2)
            if 'op_sel' in p.text and not pb.startswith('v_pk') and vd & (cu | cd): n = max(n, 1)
        if pb in TRANS and c.kind in ('ds', 'vm') and vd & cu: n = max(n, 1)
        if c.kind == 'vm' and sd & cu: n = max(n, 5)
        if c.kind in ('salu', 'branch', 'smem') and sd & cu: n = max(n, 1)
    elif p.kind == 'mfma':
        P = p.passes
        if c.kind == 'mfma':
            cc = set(c.srcc); ab = cu - cc if not (cu - cc) & cc else cu
            abregs = set(regs_of(split_ops(c.text.split(None, 1)[1])[1])) | set(regs_of(split_ops(c.text.split(None, 1)[1])[2]))
            if pd & abregs: n = max(n, 8 if P == 4 else 12)
            if pd & cc:
                if not (list(p.defs) == list(c.srcc) and c.passes == P): n = max(n, 6 if P == 4 else 10)
            elif pd & cd: n = max(n, 8 if P == 4 else 12)
        elif c.kind in ('valu', 'ds', 'vm'):
            if pd & (cu | cd): n = max(n, 8 if P == 4 else 12)
            if c.kind == 'valu' and set(p.srcc) & cd: n = max(n, 3 if P == 4 else 7)
    elif p.kind == 'salu':
        if ('s', 'm0') in pd and c.note == 'dma': n = max(n, 1)
        if ('s', 'exec') in pd and c.kind == 'mfma': n = max(n, 1)
    elif p.kind == 'vm' and p.wide:
        if set(p.srcc) & cd: n = max(n, 2)
    return n

def insert_nops(L):
    out = []
    for ins in L:
        if ins.kind in ('label', 'dir', 'nop', 'wait', 'barrier'):
            out.append(ins); continue
        need = 0; dist = 0
        for p in reversed(out):
            if dist >= 12: break
            r = req_states(p, ins)
            if r - dist > need: need = r - dist
            dist += p.states()
        if need > 0: out.append(I('s_nop %d' % (need - 1)))
        out.append(ins)
    return out

def finalize(prog):
    L = insert_waits(prog.L)
    L = insert_nops(L)
    return '\n'.join((i.text if i.kind in ('label',) or i.text.startswith('.') else ' ' + i.text) for i in L) + '\n'

def spread(main, bundles, lo=0, hi=None):
    n = sum(1 for i in main.L if i.kind == 'mfma')
    if hi is None: hi = n
    nb = len(bundles)
    pos = {}
    for k, b in enumerate(bundles):
        q = lo + int((k + 0.5) * (hi - lo) / nb) if nb else 0
        pos.setdefault(min(max(q, 0), n - 1), []).append(b)
    out = Prog(); c = 0
    for ins in main.L:
        out.L.append(ins)
        if ins.kind == 'mfma':
            for b in pos.get(c, []): out.L += b.L
            c += 1
    return out
def singles(prog):
    r = []
    for i in prog.L:
        q = Prog(); q.L = [i]; r.append(q)
    return r

def cost(i):
    if i.kind == 'vm': return 14
    if i.kind == 'ds': return 20 if i.mn.startswith('ds_write') else 4
    if i.kind == 'valu': return 8 if re.sub(r'_e(32|64)$', '', i.mn) in TRANS else 4
    if i.kind == 'salu': return 2
    return 0
def pack(main, streams, cap=24):
    n = sum(1 for i in main.L if i.kind == 'mfma')
    Q = []
    for items, lo, hi in streams:
        hi = n if hi is None else min(hi, n)
        Q.append([[(lo + (k + 0.5) * (hi - lo) / len(items) - 0.5, b) for k, b in enumerate(items)], hi])
    out = Prog(); c = 0
    if n == 0:
        out.L += main.L
        return out
    for ins in main.L:
        out.L.append(ins)
        if ins.kind != 'mfma': continue
        used = 0
        while True:
            cand = [q for q in Q if q[0] and (q[0][0][0] <= c + 0.49 or c >= q[1] - 1)]
            if not cand: break
            q = min(cand, key=lambda q: (q[1], q[0][0][0]))
            cs = sum(cost(i) for i in q[0][0][1].L)
            if used and used + cs > cap and c < q[1] - 1: break
            out.L += q[0].pop(0)[1].L; used += cs
        c += 1
    assert not any(q[0] for q in Q)
    return out
def bundles(prog):
    r = []; cur = None
    for i in prog.L:
        glue = cur is not None and (i.mn.startswith(('s_cselect', 's_addc', 's_subb', 's_cbranch')))
        if not glue:
            cur = Prog(); r.append(cur)
        cur.L.append(i)
    return r

import subprocess, tempfile, os
PROMO = re.compile(r'^v_(mov_b32|add_u32|sub_u32|and_b32|or_b32|xor_b32|lshlrev_b32|lshrrev_b32|mul_u32_u24|mul_f32|add_f32|max_f32|min_f32|exp_f32|rcp_f32|fract_f32|sin_f32|cos_f32|min_u32|cndmask_b32|cmp_\w+)$')
def sizes_of(text):
    d = tempfile.mkdtemp()
    open(d + '/a.s', 'w').write(text)
    r = subprocess.run(['clang', '-x', 'assembler', '-target', 'amdgcn-amd-amdhsa', '-mcpu=gfx950', '-c', d + '/a.s', '-o', d + '/a.o'], capture_output=True, text=True)
    assert r.returncode == 0, r.stderr[:3000]
    o = subprocess.run(['llvm-objdump', '-d', '--mcpu=gfx950', d + '/a.o'], capture_output=True, text=True).stdout
    out = []
    for l in o.split('\n'):
        m = re.search(r'//\s*([0-9A-F]{12}):((?: [0-9A-F]{8})+)', l)
        if m: out.append(4 * len(m.group(2).split()))
    return out
def align8(L, sizes, minrun=6):
    real = [i for i in L if i.kind not in ('label', 'dir')]
    assert len(real) == len(sizes), (len(real), len(sizes))
    sz = {id(i): s for i, s in zip(real, sizes)}
    out = []; off = 0; cand = None; n = len(L); nn = 0; npro = 0
    for k, ins in enumerate(L):
        if ins.kind in ('label', 'dir'):
            out.append(ins);
            if ins.kind == 'label': cand = None
            continue
        s = sz[id(ins)]
        if s == 8 and off % 8 == 4:
            run = 0
            for j in range(k, min(n, k + 12)):
                if L[j].kind in ('label', 'dir'): continue
                if sz[id(L[j])] != 8 or L[j].kind != 'valu': break
                run += 1
            if cand is not None:
                cand.text = cand.mn + '_e64 ' + cand.text.split(None, 1)[1]; off += 4; npro += 1
            elif run >= minrun:
                out.append(I('s_nop 0')); off += 4; nn += 1
            cand = None
        if s == 4 and ins.kind == 'valu' and PROMO.match(ins.mn): cand = ins
        elif s == 8: cand = None
        out.append(ins); off += s
    return out, nn, npro
def render(L):
    return '\n'.join((i.text if i.kind in ('label',) or i.text.startswith('.') else ' ' + i.text) for i in L) + '\n'
def lower(prog):
    return insert_nops(insert_waits(prog.L))

def page_stubs(L, sizes, first, mid, upto=None):
    one = upto is None
    if one: upto = mid
    real = [i for i in L if i.kind not in ('label', 'dir')]
    sz = {id(i): s for i, s in zip(real, sizes)}
    out = []; room = first; n = {'pg': 0, 'pb': 0}; done = False; prefix = 'pg'
    for k, ins in enumerate(L):
        if ins.kind == 'label' and ins.text == upto + ':': done = True
        if ins.kind == 'label' and ins.text == mid + ':': prefix = 'pb'
        s = sz.get(id(ins), 0)
        if not done and room - s < 96 and not ins.mn.startswith(('s_cselect', 's_addc', 's_subb', 's_cbranch')) and ins.kind not in ('label', 'dir') and not out[-1].mn.startswith('s_cmp'):
            x = f'{prefix}{n[prefix]}'
            out += [I(f's_branch {x}_skip'), I('.p2align 12'), I(f'{x}:'), I('s_setpc_b64 ' + ('s[4:5]' if prefix == 'pg' else 's[36:37]')), I('s_nop 0'), I(f'{x}_skip:')]
            room = 4096 - 8; n[prefix] += 1
        assert done or room - s >= 4, 'no break point'
        out.append(ins); room -= s
    return (out, n['pg']) if one else (out, n['pg'], n['pb'])
```

```python
import sys, struct
from gasm import Prog, finalize, merge, spread, singles, pack, bundles, lower, render, sizes_of, align8, page_stubs
NAME = "concat_heads__linear_kernel_hedgehog__ssm_conv_s4d__prompt"
OPT = dict(a.split('=') for a in sys.argv[1:] if '=' in a)
def opt(k, d): return type(d)(OPT.get(k, d))
STAMP = opt('stamp', 0)
ROT = opt('rot', 2)
def f2u(x): return struct.unpack('<I', struct.pack('<f', x))[0]
def vr(a, n): return f"v[{a}:{a+n-1}]" if n > 1 else f"v{a}"
def ar(a, n): return f"a[{a}:{a+n-1}]" if n > 1 else f"a{a}"
def sr(a, n): return f"s[{a}:{a+n-1}]" if n > 1 else f"s{a}"
def magic(d): return (2**32 + d - 1) // d

WS_KV = 0; WS_ZERO_END = 32 * 4096; WS_KVF = WS_ZERO_END; WS_KF = WS_KVF + 65536; WS_UF = WS_KF + 40960; WS_YF = WS_UF + 40960; WS_EP = WS_YF + 40960
WS_O = 262144; WS_STAMP = 4 << 20; WS_SIZE = 8 << 20
NSPARE = 48
NZERO_WG = 32
assert WS_EP + 128 <= WS_O
V_TOK = 253
P_X, P_W, P_PHI, P_WO, P_U, P_LA, P_AI, P_CR, P_CI, P_LDT, P_DS, P_OUT, P_DBG, P_WS = [8 + 2 * i for i in range(14)]
OOB = 0x80000000
SPIN = 400000

def srd(p, s, ptr, size, off=None):
    if off is None:
        p(f"s_mov_b32 s{s}, s{ptr}\n s_mov_b32 s{s+1}, s{ptr+1}")
    else:
        p(f"s_add_u32 s{s}, s{ptr}, {off}\n s_addc_u32 s{s+1}, s{ptr+1}, 0")
    p(f"s_mov_b32 s{s+2}, {size}\n s_mov_b32 s{s+3}, 0x20000")

nstamp = [0]
def stamp(p, sreg_base=96):
    if not STAMP: return
    k = nstamp[0]; nstamp[0] += 1
    if k in (0, 32): p(f"s_getreg_b32 s36, hwreg(HW_REG_HW_ID)\n v_writelane_b32 v255, s36, 60\n s_getreg_b32 s36, hwreg(HW_REG_XCC_ID)\n v_writelane_b32 v255, s36, 59")
    if k == 0: p(f"s_memrealtime s[36:37]\n s_waitcnt lgkmcnt(0)\n v_writelane_b32 v255, s36, 62")
    p(f"s_memtime s[36:37]\n s_waitcnt lgkmcnt(0)\n v_writelane_b32 v255, s36, {k}")
def stamp_store(p, wsrd):
    if not STAMP: return
    if opt('dbgst', 0):
        if wsrd != S_WS: return
        srd(p, 96, P_DBG, 256)
        p(f"""s_waitcnt vmcnt(0)
        s_memtime s[36:37]
        s_waitcnt lgkmcnt(0)
        v_writelane_b32 v255, s36, 14
        s_cmp_ge_u32 s2, 128
        s_cbranch_scc1 dbg_skip
        v_readlane_b32 s36, v255, 0
        v_and_b32 v250, 63, v0
        v_subrev_u32 v255, s36, v255
        v_lshlrev_b32 v249, 2, v250
        v_mov_b32 v248, {OOB:#x}
        v_cmp_gt_u32 vcc, 15, v250
        v_cndmask_b32 v249, v248, v249, vcc
        buffer_atomic_umax v255, v249, s[96:99], 4 offen sc1
        dbg_skip:""")
        return
    p(f"s_waitcnt vmcnt(0)\n s_memtime s[36:37]\n s_waitcnt lgkmcnt(0)\n v_writelane_b32 v255, s36, 61\n s_memrealtime s[36:37]\n s_waitcnt lgkmcnt(0)\n v_writelane_b32 v255, s36, 63")
    p(f"""s_lshl_b32 s36, s2, 2
    s_add_u32 s36, s36, s68
    s_lshl_b32 s36, s36, 8
    s_add_u32 s36, s36, {WS_STAMP}
    v_and_b32 v250, 63, v0
    v_lshlrev_b32 v250, 2, v250
    buffer_store_dword v255, v250, {sr(wsrd,4)}, s36 offen""")

def token_load(p, wsrd, vz):
    p(f"s_mov_b32 s4, {WS_EP}\n buffer_load_dword v{V_TOK}, v{vz}, {sr(wsrd,4)}, s4 offen sc1")
def token_make(p):
    p(f"""s_mov_b32 s4, 0x9e3779b1
    v_mul_lo_u32 v{V_TOK}, v{V_TOK}, s4
    v_add_u32 v{V_TOK}, 0x7f4a7c15, v{V_TOK}""")
def token_seen(p, dsrd, vt):
    p(f"""v_cmp_eq_u32 vcc, 0, v0
    v_mov_b32 v{vt}, {OOB:#x}
    v_mov_b32 v{V_CNT}, 1
    v_cndmask_b32_e64 v{vt}, v{vt}, 0, vcc
    buffer_atomic_add v{V_CNT}, v{vt}, {sr(dsrd,4)}, 8 offen sc1""")
def spinpoll(p, name, srdreg, soff, vt, va, cmp, init, period=None):
    period = period or opt('period', 24)
    p(f"v_mov_b32 v{vt}, {init}" if init is not None else f"v_not_b32 v{vt}, v{V_TOK}", tag='offpath')
    p(f"{name}:")
    p(f"""buffer_load_dword v{vt}, v{va}, {sr(srdreg,4)}, {soff} offen sc1
    s_mov_b32 s95, {period}""", tag='offpath')
    p(f"{name}_i:")
    p(f"""{cmp}
    s_sub_u32 s94, s94, 1
    s_cbranch_scc1 {name}_x
    s_cmp_eq_u64 vcc, -1
    s_cbranch_scc1 {name}_x
    s_sub_u32 s95, s95, 1
    s_cbranch_scc0 {name}_i
    s_waitcnt vmcnt(24)
    s_branch {name}""", tag='offpath')
    p(f"{name}_x:")
def pollall(p, name, srdreg, soff, vt, va, slp=0):
    p(f"s_mov_b32 s94, {SPIN}")
    p(f"{name}:")
    p(f"""buffer_load_dword v{vt}, v{va}, {sr(srdreg,4)}, {soff} offen sc1
    s_sub_u32 s94, s94, 1
    s_waitcnt vmcnt(0)
    v_cmp_eq_u32 vcc, v{V_TOK}, v{vt}
    s_cmp_eq_u32 s94, 0""")
    p(f"s_cbranch_scc1 {name}_x", tag='keep')
    p(f"s_cmp_eq_u64 vcc, -1")
    if slp:
        p(f"s_cbranch_scc1 {name}_x", tag='keep')
        p(f"s_sleep {slp}\n s_branch {name}", tag='keep')
    else: p(f"s_cbranch_scc0 {name}", tag='keep')
    p(f"{name}_x:")

A_RING = 0; NSLOT = 16; GR = 5120
A_PHIK = NSLOT * GR; PHI_RS = 352
A_VST = A_PHIK + 128 * PHI_RS
A_BD = A_VST + 20480
A_END = A_BD + 12800
A_KVIMG = A_PHIK
S_X, S_W, S_WO, S_WS, S_OUT, S_DBG, S_PHI = 40, 44, 48, 52, 56, 60, 64
V_XO = 1
V_XD = 5
V_WD = 9
V_TA = 14
V_Z = 22; V_T = 23
V_WF = 32
V_KA = 112; V_VA = 152; V_PA = 192; V_X = 240
OLD = 'sc1' if opt('osc1', 0) else ''

def mfma(p, d, a, b, c=None):
    p(f"v_mfma_f32_16x16x32_bf16 {d}, {a}, {b}, {d if c is None else c}")
def mfma32(p, d, a, b, c=None):
    p(f"v_mfma_f32_32x32x16_bf16 {d}, {a}, {b}, {d if c is None else c}")

LN = V_T; t = V_T + 1
parked = {}
def park(p, name, v):
    if name not in parked: parked[name] = 204 + len(parked)
    assert parked[name] < 256
    p(f"v_accvgpr_write_b32 a{parked[name]}, v{v}")
def unpark(q, name, v): q(f"v_accvgpr_read_b32 v{v}, a{parked[name]}")

def trbase(p, d, rowk, rowrho, extra=0):
    p(f"""v_bfe_u32 v{t}, v0, 5, 1
    v_mul_u32_u24 v{t}, {rowk}, v{t}
    v_bfe_u32 v{t+1}, v0, 2, 2
    v_mul_u32_u24 v{t+1}, {rowrho}, v{t+1}
    v_bfe_u32 v{t+2}, v0, 4, 1
    v_lshl_add_u32 v{t}, v{t+2}, 5, v{t}
    v_and_b32 v{t+2}, 3, v0
    v_lshl_add_u32 v{t}, v{t+2}, 3, v{t}
    v_add_u32 v{d}, v{t}, v{t+1}""")
    if extra: p(f"v_add_u32 v{d}, {extra}, v{d}")

def setup_g2(p):
    srd(p, S_WO, P_WO, 640 * 1280)
    srd(p, S_WS, P_WS, WS_SIZE)
    p(f"s_mul_i32 s78, s69, {128*2560}\n s_add_u32 s78, s78, s83")
    srd(p, S_OUT, P_OUT, 0, 's78')
    p(f"s_sub_u32 s{S_OUT+2}, {2048*2560}, s78")
    p(f"""s_lshr_b32 s100, s83, 7
    s_and_b32 s79, s100, 3
    s_cmp_ge_u32 s100, 8
    s_cselect_b32 s100, 4, s79
    s_mul_i32 s100, s100, {13 if opt('grot', 0) else 0}
    s_lshr_b32 s100, s100, 3
    s_lshr_b32 s79, s68, 1
    s_add_u32 s79, s79, s100
    s_and_b32 s85, s68, 1
    s_mul_i32 s85, s85, 40
    s_lshl_b32 s78, s69, 2
    s_add_u32 s78, s78, s68
    s_mul_i32 s78, s78, 40960
    s_add_u32 s92, s78, {WS_O}""")
    for i in range(5):
        p(f"""v_lshrrev_b32 v{t}, 3, v{LN}
        v_add_u32 v{t}, s85, v{t}
        v_add_u32 v{t}, {8*i}, v{t}
        v_lshrrev_b32 v{t+1}, 4, v{t}
        v_and_b32 v{t+2}, 7, v{t}
        v_lshl_add_u32 v{t+1}, v{t+1}, 3, v{t+2}
        v_bfe_u32 v{t+2}, v{t}, 3, 1
        v_mad_u32_u24 v{t+2}, v{t+2}, 20, v{t+1}
        v_add_u32 v{t+3}, 20, v{t+2}
        v_cmp_le_u32 vcc, 20, v{t+1}
        v_cndmask_b32 v{t+2}, v{t+2}, v{t+3}, vcc
        v_mul_u32_u24 v{t+2}, 1280, v{t+2}
        v_bfe_u32 v{t}, v{t}, 1, 1
        v_lshlrev_b32 v{t}, 2, v{t}
        v_and_b32 v{t+1}, 7, v0
        v_xor_b32 v{t}, v{t}, v{t+1}
        v_lshl_add_u32 v{t}, v{t}, 4, v{t+2}""")
        park(p, f'wo{i}', t)
    trbase(p, t + 3, 8 * 128, 128)
    p(f"""v_bfe_u32 v{t}, v0, 3, 1
    v_lshl_add_u32 v{t+3}, v{t}, 6, v{t+3}""")
    park(p, 'two', t + 3)
    p(f"""s_add_u32 s78, s84, {A_VST}
    v_and_b32 v{t}, 31, v0
    v_mul_u32_u24 v{t}, 144, v{t}
    v_bfe_u32 v{t+1}, v0, 5, 1
    v_lshl_add_u32 v{t}, v{t+1}, 3, v{t}
    v_add_u32 v{t}, s78, v{t}""")
    park(p, 'outw', t)
    p(f"""v_lshrrev_b32 v{t}, 3, v{LN}
    v_and_b32 v{t+1}, 7, v0
    v_lshlrev_b32 v{t+1}, 4, v{t+1}
    v_mul_u32_u24 v{t+2}, 144, v{t}
    v_add3_u32 v{t+2}, v{t+2}, v{t+1}, s78
    v_mul_u32_u24 v{t}, 2560, v{t}
    v_add_u32 v{t}, v{t}, v{t+1}""")
    park(p, 'outr', t + 2); park(p, 'outg', t)

def dma_bundles(G, hdr, items):
    B = []
    hdr(items[0][0]); B.append(hdr)
    for k, (m0, ld) in enumerate(items):
        q = Prog(); q(ld, tag=('dma', G))
        if k + 1 < len(items): q(items[k + 1][0])
        B.append(q)
    return B
def issue_group(G):
    slotbase = A_RING + (G % 4) * 4 * GR
    h = Prog()
    if G < 10:
        h(f"s_mul_i32 s86, s80, {64*3840}\n s_add_u32 s86, s86, s82\n s_lshl_b32 s81, s80, 7")
        h(f"s_add_u32 s80, s80, 1\n s_cmp_eq_u32 s80, 10\n s_cselect_b32 s80, 0, s80")
        sd = S_W
    elif G < 15:
        h(f"""s_lshl_b32 s86, s71, 1
        s_add_u32 s86, s86, s68
        s_add_u32 s86, s86, {4*(G-10)}
        s_sub_u32 s74, s86, 20
        s_cmp_ge_u32 s86, 20
        s_cselect_b32 s86, s74, s86
        s_mul_i32 s86, s86, {32*3840}
        s_add_u32 s86, s86, s75""")
        sd = S_W
    else:
        h(f"s_add_u32 s86, s79, {2*(G%4)}\n s_and_b32 s86, s86, 7\n s_mul_i32 s86, s86, {80*1280}\n s_add_u32 s86, s86, s83")
        sd = S_WO
    W = [(f"s_add_u32 m0, s84, {slotbase + 1024*i}", f"buffer_load_dwordx4 v{V_QD[i] if 10 <= G < 15 else (V_WD+i if G < 10 else V_XO+i)}, {sr(sd,4)}, s86 offen {'nt' if opt('ntw', 0) else ''} lds") for i in range(5)]
    if G < 10:
        X = [(f"s_add_u32 m0, s87, {(G%4)*4096 + 1024*r}", f"buffer_load_dwordx4 v{V_XD+r}, {sr(S_X,4)}, s81 offen {'nt' if opt('ntx', 0) else ''} lds") for r in range(4)]
        items = [W[0], X[0], W[1], X[1], W[2], X[2], W[3], X[3], W[4]]
    else: items = W
    return dma_bundles(G, h, items)
V_QD = [21, 29, 30, 31, 252]

OF = lambda n: 88 + 4 * n
G2ACC = 56
def gemm2_tail(p):
    F = V_WF
    p("g2_tail:")
    unpark(p, 'two', V_TA)
    p(f"""v_xor_b32 v{V_TA+1}, 64, v{V_TA}
    v_add_u32 v{V_TA+2}, {8*GR}, v{V_TA}
    v_add_u32 v{V_TA+3}, {8*GR}, v{V_TA+1}
    v_lshlrev_b32 v{t+2}, 4, v{LN}
    v_lshrrev_b32 v{t+4}, 3, v{LN}
    v_mul_u32_u24 v{t+4}, 5120, v{t+4}
    v_and_b32 v{t}, 7, v0
    v_lshl_add_u32 v{t+4}, v{t}, 7, v{t+4}
    s_mov_b32 s94, {SPIN}
    s_add_u32 s93, s92, 4096
    s_barrier""")
    unpark(p, 'outw', t); unpark(p, 'outr', t + 1); unpark(p, 'outg', t + 3)
    stamp(p)
    def reads(n):
        hq, pp = divmod(n, 5); q = Prog(); fb = F + (n % 3) * 8
        off = hq * 10240 + pp * 2048; hi = 0
        if hq >= 4: off -= 8 * GR; hi = 2
        for T in range(2):
            for h in range(2):
                q(f"ds_read_b64_tr_b16 {vr(fb+4*T+2*h,2)}, v{V_TA+hi+T} offset:{off + 512*h}")
        return q
    p("g2_retry:")
    p.extend(reads(0)); p.extend(reads(1))
    p(f"s_mul_i32 s76, s100, 5120\n s_add_u32 s76, s76, s92\n s_add_u32 s77, s92, 40960\n s_mov_b32 s81, s76\n v_mov_b32 v248, 0")
    def oload(n):
        q = Prog(); hq, pp = divmod(n, 5)
        if pp == 4: q(f"s_add_u32 s85, s81, 4096")
        q(f"buffer_load_dwordx4 {vr(OF(n),4)}, v{t+2}, {sr(S_WS,4)}, {'s85' if pp == 4 else 's81'} offen offset:{1024*(pp%4)} {OPT.get('old', 'sc1')}")
        if pp == 4: q("s_add_u32 s81, s81, 5120\n s_cmp_eq_u32 s81, s77\n s_cselect_b32 s81, s92, s81")
        return q
    PRE = opt('opre', 14); SPEC = opt('spec', 0)
    if opt('pw', 1): p("s_waitcnt vmcnt(0)")
    p(f"""buffer_load_dword v249, v{t+4}, {sr(S_WS,4)}, s93 offen sc1
    s_waitcnt vmcnt(0)
    v_cmp_ne_u32 vcc, -1, v249
    s_nop 1
    s_cmp_eq_u64 vcc, -1""")
    p("s_cbranch_scc1 g2_now", tag='keep')
    p("g2_poll:")
    if opt('gslp', 6): p(f"s_sleep {opt('gslp', 6)}")
    p(f"""buffer_load_dword v249, v{t+4}, {sr(S_WS,4)}, s93 offen sc1
    s_mov_b32 s81, s76
    s_sub_u32 s94, s94, 1""")
    if SPEC:
        for n in range(PRE): p.extend(oload(n))
    p(f"""v_cmp_ne_u32 vcc, -1, v249
    s_cmp_lt_i32 s94, 1""")
    p(f"s_cbranch_scc1 {'g2_go' if SPEC else 'g2_now'}", tag='keep')
    p("s_cmp_eq_u64 vcc, -1")
    p("s_cbranch_scc0 g2_poll", tag='keep')
    if SPEC: p("s_branch g2_go", tag='keep')
    p("g2_now:")
    for n in range(PRE):
        q = oload(n)
        if SPEC:
            for i_ in q.L: i_.tag = 'offpath'
        p.extend(q)
    p("g2_go:")
    stamp(p)
    for n in range(40):
        fb = F + (n % 3) * 8
        mm = Prog(); mm.need([vr(fb, 8), vr(OF(n), 4)])
        for T in range(2): mfma32(mm, vr(G2ACC + 16 * T, 16), vr(fb + 4 * T, 4), vr(OF(n), 4), '0' if n == 0 else None)
        st = []
        if n + 2 < 40: st.append((singles(reads(n + 2)), 0, 2))
        if n + PRE < 40: st.append(([oload(n + PRE)], 0, 1))
        c = Prog(); c(f"v_max3_u32 v248, v248, v{OF(n)}, v{OF(n)+1}\n v_max3_u32 v248, v248, v{OF(n)+2}, v{OF(n)+3}")
        st.append((singles(c), 1, 2))
        p.extend(pack(mm, st, cap=32))
    p(f"""v_cmp_eq_u32 vcc, -1, v248
    s_mul_i32 s78, s68, {32*2560}
    s_cmp_lt_i32 s94, 1""")
    p("s_cbranch_scc1 g2_out", tag='keep')
    p("s_sub_u32 s94, s94, 1\n s_nop 7\n s_nop 7")
    p("s_cbranch_vccnz g2_retry", tag='keep')
    p("g2_out:")
    stamp(p)
    for T in range(2):
        for j in range(4):
            x = G2ACC + 16 * T + 4 * j; o = 88 + 8 * T + 2 * j
            p(f"v_cvt_pk_bf16_f32 v{o}, v{x}, v{x+1}\n v_cvt_pk_bf16_f32 v{o+1}, v{x+2}, v{x+3}")
            p(f"ds_write_b64 v{t}, {vr(o,2)} offset:{64*T+16*j}")
    for i in range(4): p(f"ds_read_b128 {vr(104+4*i,4)}, v{t+1} offset:{8*144*i}")
    for i in range(4):
        p(f"buffer_store_dwordx4 {vr(104+4*i,4)}, v{t+3}, {sr(S_OUT,4)}, s78 offen {OPT.get('ast', 'sc1')}")
        if i < 3: p(f"s_add_u32 s78, s78, {8*2560}")
    stamp(p)
    stamp_store(p, S_WS)
    p("s_endpgm")

def divc(p, d, x, c):
    m, sh = {10: (205, 11), 20: (205, 12), 12: (171, 11), 5: (205, 10), 100: (41, 12)}[c]
    p(f"v_mul_u32_u24 v{d}, {m}, v{x}\n v_lshrrev_b32 v{d}, {sh}, v{d}")

V_PO = 160
V_D = 200
NPG = opt('npg', 6); NPB = opt('npb', 4); XM = opt('xm', 0); YT = opt('yt', 1); UT = opt('ut', 0)
def decode_ab(p, tmp, sub, sb, hg):
    p(f"s_lshr_b32 {tmp}, s2, 3")
    if sub: p(f"s_sub_u32 {tmp}, {tmp}, {sub}")
    if XM == 0:
        p(f"""s_and_b32 s{sb}, s2, 6
        s_lshl_b32 s{sb}, s{sb}, 1
        s_and_b32 s{hg}, s2, 1
        s_lshl_b32 s{hg}, s{hg}, 2
        s_and_b32 s4, {tmp}, 3
        s_add_u32 s{hg}, s{hg}, s4
        s_lshr_b32 {tmp}, {tmp}, 2
        s_add_u32 s{sb}, s{sb}, {tmp}""")
    else:
        p(f"""s_and_b32 s{sb}, s2, 7
        s_lshl_b32 s{sb}, s{sb}, 1
        s_and_b32 s{hg}, {tmp}, 7
        s_lshr_b32 {tmp}, {tmp}, 3
        s_add_u32 s{sb}, s{sb}, {tmp}""")
def role_A():
    p = Prog(); nstamp[0] = 0
    p("roleA:")
    if opt('cpf3', 0):
        p(f"""s_cmp_lg_u32 s68, 0
        s_cbranch_scc1 a_c3
        s_getpc_b64 s[4:5]
        v_lshlrev_b32 v2, 7, v0""")
        for k in range(opt('cpf3', 0)):
            p(f"s_add_u32 s4, s4, {0xc80 if k == 0 else 8192}\n s_addc_u32 s5, s5, 0\n global_load_dword v254, v2, s[4:5]")
        p("a_c3:")
    stamp(p)
    decode_ab(p, 's73', 0, 69, 70)
    if ROT == 2:
        p("""s_add_u32 s71, s69, s70
        s_mul_i32 s71, s71, 3
        s_mul_i32 s74, s71, 205
        s_lshr_b32 s74, s74, 11
        s_mul_i32 s74, s74, 10
        s_sub_u32 s71, s71, s74""")
    else:
        p(f"s_mul_i32 s71, s71, {5 if ROT else 0}\n s_add_u32 s71, s71, {1 if ROT else 0}\n s_lshr_b32 s71, s71, 1")
    p(f"""v_and_b32 v{LN}, 63, v0
    v_mov_b32 v{V_Z}, 0""")
    p(f"""s_lshl_b32 s76, s68, 5
    v_lshrrev_b32 v{t}, 3, v{LN}
    v_add_u32 v{t}, s76, v{t}
    v_mul_u32_u24 v{t}, 1280, v{t}
    v_and_b32 v{t+1}, 7, v0
    v_bfe_u32 v{t+2}, v0, 4, 2
    v_xor_b32 v{t+1}, v{t+1}, v{t+2}
    v_lshl_add_u32 v{V_XD}, v{t+1}, 4, v{t}
    v_xor_b32 v{V_XD+1}, 64, v{V_XD}
    v_add_u32 v{V_XD+1}, {8*1280}, v{V_XD+1}
    v_add_u32 v{V_XD+2}, {16*1280}, v{V_XD}
    v_add_u32 v{V_XD+3}, {16*1280}, v{V_XD+1}""")
    p(f"s_movk_i32 s78, 1120")
    for i in range(5):
        p(f"v_add_u32 v{t}, {64*i}, v{LN}")
        divc(p, t + 1, t, 20)
        p(f"""v_mul_u32_u24 v{t+2}, 20, v{t+1}
        v_sub_u32 v{t}, v{t}, v{t+2}
        v_mul_u32_u24 v{t+1}, 3840, v{t+1}
        v_cmp_le_u32 vcc, 10, v{t}
        v_lshl_add_u32 v{t+1}, v{t}, 4, v{t+1}
        v_add_u32 v{t+2}, s78, v{t+1}
        v_cndmask_b32 v{V_WD+i}, v{t+1}, v{t+2}, vcc""")
    p(f"""s_mov_b32 s80, s71
    s_mul_i32 s75, s70, 160
    s_mul_i32 s82, s68, {16*3840}
    s_add_u32 s82, s82, s75
    s_add_u32 s82, s82, 1280
    s_lshl_b32 s83, s70, 7
    s_mul_i32 s84, s68, {GR}
    s_lshl_b32 s87, s68, 14
    s_add_u32 s87, s87, {A_PHIK}
    s_mul_i32 s78, s69, {128*1280}""")
    srd(p, S_X, P_X, 128 * 1280, 's78')
    srd(p, S_W, P_W, 640 * 3840)
    su = Prog()
    trbase(su, V_TA, 8 * 320, 320)
    su(f"""v_add_u32 v{V_TA+1}, {8*GR}, v{V_TA}
    v_and_b32 v{t}, 31, v0
    v_bfe_u32 v{t+1}, v0, 1, 3
    v_bfe_u32 v{t+2}, v0, 5, 1
    v_xor_b32 v{t+1}, v{t+1}, v{t+2}
    v_lshlrev_b32 v{t+1}, 4, v{t+1}
    v_lshl_add_u32 v{t}, v{t}, 7, v{t+1}
    v_add_u32 v{V_XO}, s87, v{t}
    v_xor_b32 v{V_XO+1}, 32, v{V_XO}
    v_xor_b32 v{V_XO+2}, 64, v{V_XO}
    v_xor_b32 v{V_XO+3}, 96, v{V_XO}""")
    su(f"""v_mov_b32 v{V_X+4}, 0
    v_mov_b32 v{V_X+5}, 0
    v_mov_b32 v{V_X+6}, 0
    v_mov_b32 v{V_X+7}, 0
    v_lshlrev_b32 v{t}, 4, v0
    v_add_u32 v{t}, {A_BD}, v{t}
    v_min_u32 v{t+1}, {A_BD+496}, v{t}
    ds_write_b128 v{t}, {vr(V_X+4,4)}
    ds_write_b128 v{t}, {vr(V_X+4,4)} offset:4096
    ds_write_b128 v{t}, {vr(V_X+4,4)} offset:8192
    ds_write_b128 v{t+1}, {vr(V_X+4,4)} offset:12288""")
    L2E = 1.4426950408889634
    su(f"s_mov_b32 s88, {f2u(L2E):#x}\n s_mov_b32 s89, {f2u(L2E):#x}")
    for r in range(2):
        su(f"v_add_u32 v{t}, {256*r}, v0")
        divc(su, t + 1, t, 5); divc(su, t + 2, t, 100)
        su(f"""v_mul_u32_u24 v{t+1}, 120, v{t+1}
        v_mad_u32_u24 v{t+1}, v{t+2}, 40, v{t+1}
        v_lshl_add_u32 v{t+1}, v{t}, 3, v{t+1}
        v_add_u32 v{V_X+8+r}, {A_BD}, v{t+1}""")
    su(f"""v_mov_b32 v{t+1}, {A_END}
    v_cmp_gt_u32 vcc, 400, v{t}
    v_cndmask_b32 v{V_X+9}, v{t+1}, v{V_X+9}, vcc""")
    srd(su, S_DBG, P_DBG, 256)
    for i in range(5):
        su(f"v_add_u32 v{t}, {64*i}, v{LN}")
        divc(su, t + 1, t, 10)
        su(f"""v_mul_u32_u24 v{t+2}, 10, v{t+1}
        v_sub_u32 v{t}, v{t}, v{t+2}
        v_and_b32 v{t+2}, 24, v{t+1}
        v_and_b32 v{t+3}, 1, v{t+1}
        v_lshl_add_u32 v{t+2}, v{t+3}, 2, v{t+2}
        v_bfe_u32 v{t+3}, v{t+1}, 1, 2
        v_add_u32 v{t+2}, v{t+2}, v{t+3}
        v_mul_u32_u24 v{t+2}, 3840, v{t+2}
        v_lshl_add_u32 v{V_QD[i]}, v{t}, 4, v{t+2}""")
    su(f"""v_bfe_u32 v{t}, v0, 5, 1
    v_bfe_u32 v{t+1}, v0, 2, 2
    v_lshl_add_u32 v{t}, v{t}, 2, v{t+1}
    v_mul_u32_u24 v{t}, 160, v{t}
    v_and_b32 v{t+1}, 1, v0
    v_mad_u32_u24 v{t}, v{t+1}, 40, v{t}
    v_bfe_u32 v{t+1}, v0, 4, 1
    v_bfe_u32 v{t+2}, v0, 1, 1
    v_lshl_add_u32 v{t+1}, v{t+1}, 1, v{t+2}
    v_lshl_add_u32 v{t}, v{t+1}, 3, v{t}
    v_add_u32 v18, {A_BD}, v{t}
    v_cmp_eq_u32 vcc, 0, v{t+1}
    v_add_u32 v19, 32, v18
    v_add_u32 v{t+2}, 72, v18
    v_cndmask_b32 v19, v{t+2}, v19, vcc
    v_cmp_gt_u32 vcc, 2, v{t+1}
    v_add_u32 v20, 104, v18
    v_nop
    v_cndmask_b32 v20, v18, v20, vcc""".replace("    v_nop\n", ""))
    trbase(su, t + 3, 8 * 160, 320); park(su, 'tq', t + 3)
    a0 = V_PA
    su(f"""v_and_b32 v{t}, 31, v0
    v_add_u32 v{t}, s76, v{t}
    v_bfe_u32 v{t+1}, v0, 5, 1
    v_mul_u32_u24 v{t+2}, {PHI_RS}, v{t}
    v_add_u32 v{t+2}, {A_PHIK}, v{t+2}
    v_bfe_u32 v{t+3}, v0, 2, 1
    v_mul_u32_u24 v{t+4}, 5, v{t+1}
    v_xor_b32 v{a0}, v{t+4}, v{t+3}
    v_lshl_add_u32 v{a0}, v{a0}, 4, v{t+2}
    v_add_u32 v{t+4}, 1, v{t+4}
    v_xor_b32 v{a0+1}, v{t+4}, v{t+3}
    v_lshl_add_u32 v{a0+1}, v{a0+1}, 4, v{t+2}
    v_mul_u32_u24 v{t}, 160, v{t}
    v_add_u32 v{t}, {A_VST}, v{t}
    v_bfe_u32 v{t+3}, v0, 2, 2
    v_xor_b32 v{t+3}, v{t+3}, v{t+1}
    v_lshl_add_u32 v{a0+2}, v{t+3}, 3, v{t}
    v_xor_b32 v{t+3}, 2, v{t+3}
    v_lshl_add_u32 v{a0+3}, v{t+3}, 3, v{t}""")
    park(su, 'phiw0', a0); park(su, 'phiw1', a0 + 1); park(su, 'vw0', a0 + 2); park(su, 'vw1', a0 + 3)
    su(f"""v_bfe_u32 v{t}, v0, 2, 4
    v_bfe_u32 v{t+1}, v0, 4, 2
    s_mul_i32 s78, s68, 5
    v_bfe_u32 v{t+2}, v0, 1, 1
    v_add_u32 v{t+2}, s78, v{t+2}
    v_and_b32 v{t+3}, 1, v{t+1}
    v_xor_b32 v{t+2}, v{t+2}, v{t+3}
    v_and_b32 v{t+3}, 1, v0
    v_lshlrev_b32 v{t+3}, 3, v{t+3}
    v_lshl_add_u32 v{t+2}, v{t+2}, 4, v{t+3}
    v_mul_u32_u24 v{t+3}, {PHI_RS}, v{t}
    v_add_u32 v{t+2}, v{t+2}, v{t+3}
    v_add_u32 v{a0}, {A_PHIK}, v{t+2}
    v_mul_u32_u24 v{t}, 160, v{t}
    v_add_u32 v{t}, {A_VST}, v{t}
    v_and_b32 v{t+2}, 3, v0
    v_add_u32 v{t+2}, s78, v{t+2}
    v_xor_b32 v{t+2}, v{t+2}, v{t+1}
    v_lshl_add_u32 v{a0+1}, v{t+2}, 3, v{t}
    s_add_u32 s78, s78, 4
    v_xor_b32 v{t+2}, s78, v{t+1}
    v_lshl_add_u32 v{a0+2}, v{t+2}, 3, v{t}""")
    park(su, 'phir', a0); park(su, 'vr0', a0 + 1); park(su, 'vr1', a0 + 2)
    a0 = V_PA
    su(f"""v_and_b32 v{t+3}, 15, v0
    v_bfe_u32 v{t+4}, v0, 4, 2
    v_cmp_gt_u32 s[90:91], 8, v{t+3}
    v_lshlrev_b32 v{t}, 2, v{t+3}
    v_mul_u32_u24 v{t+1}, 768, v{t+4}
    v_add_u32 v{a0}, v{t}, v{t+1}
    v_add_u32 v{t+1}, {192-32}, v{a0}
    v_cndmask_b32 v{a0+1}, v{t+1}, v{a0}, s[90:91]
    v_mul_u32_u24 v{t+1}, 192, v{t+4}
    v_add_u32 v{t+1}, {16*192}, v{t+1}
    v_add_u32 v{a0+2}, v{t+1}, v{t}
    v_mov_b32 v{t+2}, {OOB:#x}
    v_cmp_gt_u32 vcc, 40, v{LN}
    v_cndmask_b32 v{a0+3}, v{t+2}, v{a0+2}, s[90:91]
    v_lshlrev_b32 v{t+1}, 2, v{LN}
    v_add_u32 v{t+1}, {20*192}, v{t+1}
    v_cndmask_b32 v{a0+4}, v{t+2}, v{t+1}, vcc
    v_cmp_eq_u32 vcc, 0, v{LN}
    v_cmp_gt_u32 s[90:91], 4, v{t+3}
    v_cndmask_b32 v{a0+6}, v{t+2}, v{V_Z}, vcc""")
    for k in range(5): park(su, f'at{k}', a0 + k)
    park(su, 'l0', a0 + 6)
    su(f"s_mul_i32 s85, s68, 1920\n s_add_u32 s85, s85, {A_KVIMG}\n v_mov_b32 v{t+4}, {A_KVIMG+9600}")
    for i in range(4):
        su(f"v_add_u32 v{t}, {64*i}, v{LN}")
        divc(su, t + 1, t, 12)
        su(f"""v_mul_u32_u24 v{t+2}, 12, v{t+1}
        v_sub_u32 v{t+2}, v{t}, v{t+2}
        v_cmp_gt_u32 vcc, 10, v{t+2}
        v_mul_u32_u24 v{t+1}, 80, v{t+1}
        v_lshl_add_u32 v{t+1}, v{t+2}, 3, v{t+1}
        v_add_u32 v{t+1}, s85, v{t+1}
        v_cndmask_b32 v{t+1}, v{t+4}, v{t+1}, vcc""")
        if i == 3: su(f"v_cmp_gt_u32 vcc, 60, v{LN}\n v_cndmask_b32 v{t+1}, v{t+4}, v{t+1}, vcc")
        park(su, f'kvw{i}', t + 1)
    su(f"""v_cmp_gt_u32 vcc, 120, v0
    v_lshlrev_b32 v{t}, 4, v0
    v_add_u32 v{t}, {A_KVIMG+7680}, v{t}
    v_cndmask_b32 v{t}, v{t+4}, v{t}, vcc""")
    park(su, 'kvz', t)
    su(f"""v_bfe_u32 v{t}, v0, 3, 2
    v_and_b32 v{t+1}, 3, v0
    v_lshl_add_u32 v{t}, v{t}, 2, v{t+1}
    v_mul_u32_u24 v{t}, 80, v{t}
    v_bfe_u32 v{t+1}, v0, 2, 1
    v_bfe_u32 v{t+4}, v0, 5, 1
    v_cmp_eq_u32 vcc, v{t+1}, v{t+4}
    v_mul_u32_u24 v{t+2}, 1920, v{t+1}
    v_add_u32 v{t}, v{t}, v{t+2}
    v_add_u32 v{t}, {A_KVIMG}, v{t}
    v_add_u32 v{t+3}, 3840, v{t}
    v_mov_b32 v{t+2}, {A_KVIMG+7680}
    v_cndmask_b32 v{t}, v{t+2}, v{t}, vcc
    v_cndmask_b32 v{t+3}, v{t+2}, v{t+3}, vcc""")
    park(su, 'kvr0', t); park(su, 'kvr1', t + 3)
    setup_g2(su)
    wl = Prog()
    wl("s_mul_i32 s77, s70, 3200")
    srd(wl, S_PHI, P_PHI, 3200, 's77')
    wl(f"""v_lshlrev_b32 v{V_X+10}, 3, v0
    buffer_load_dwordx2 {vr(V_X,2)}, v{V_X+10}, {sr(S_PHI,4)}, 0 offen
    buffer_load_dwordx2 {vr(V_X+2,2)}, v{V_X+10}, {sr(S_PHI,4)}, 0 offen offset:2048""")
    token_load(su, S_WS, V_Z)
    def sync(p, G):
        p.waitvm(('dma', G)); p("s_barrier")
    def touches():
        if NPG:
            for w_ in range(4):
                p(f"s_cmp_lg_u32 s68, {w_}")
                p(f"s_cbranch_scc1 a_t{w_}", tag='keep')
                for k in range(w_, NPG, 4): p(f"s_call_b64 s[4:5], pg{k}", tag='keep')
                p(f"a_t{w_}:")
    HALF = opt('half', 0)
    if HALF:
        p(f"""s_mul_i32 s86, s80, {64*3840}
        s_add_u32 s86, s86, s82
        s_lshl_b32 s81, s80, 7
        s_add_u32 s80, s80, 1
        s_cmp_eq_u32 s80, 10
        s_cselect_b32 s80, 0, s80
        s_mov_b32 s95, s86""")
        def w0(tag):
            for i in range(5): p(f"s_add_u32 m0, s84, {1024*i}\n s_nop 0\n buffer_load_dwordx4 v{V_WD+i}, {sr(S_W,4)}, s95 offen lds", tag=tag)
        p("s_cmp_ge_u32 s68, 2")
        p("s_cbranch_scc1 a_w0a", tag='keep')
        w0('offpath')
        p("a_w0a:")
        for r in range(4): p(f"s_add_u32 m0, s87, {1024*r}\n s_nop 0\n buffer_load_dwordx4 v{V_XD+r}, {sr(S_X,4)}, s81 offen lds", tag=('dma', 0))
        p.extend(su); p.extend(wl); touches()
        p("s_cmp_lt_u32 s68, 2")
        p("s_cbranch_scc1 a_w0b", tag='keep')
        p(f"s_waitcnt vmcnt(3)", tag='offpath')
        w0('offpath')
        p("s_branch a_w0c", tag='keep')
        p("a_w0b:")
        p("s_waitcnt vmcnt(3)", tag='offpath')
        p("a_w0c:")
        stamp(p)
        p("s_waitcnt lgkmcnt(0)\n s_barrier")
    else:
        iss = issue_group(0) + [wl]
        sub = bundles(su)
        LEAD = opt('lead', 7); per = opt('suchunk', 30)
        for k, b in enumerate(iss):
            p.extend(b)
            if k >= LEAD:
                for x in sub[:per]: p.extend(x)
                sub = sub[per:]
        for x in sub: p.extend(x)
        touches()
        for b in issue_group(1): p.extend(b)
        stamp(p)
        p("s_waitcnt lgkmcnt(0)")
        sync(p, 0)
    stamp(p)
    FD = 2
    def kv_reads(k):
        q = Prog(); fb = V_WF + (k % 3) * 20
        slot = k % NSLOT; base = V_TA + (slot >= 8); so = (slot % 8) * GR
        q(f"ds_read_b128 {ar(4*k,4)}, v{V_XO+k%4} offset:{((k//4)%4)*4096}")
        for T in range(5):
            for h in range(2):
                q(f"ds_read_b64_tr_b16 {vr(fb+4*T+2*h,2)}, v{base} offset:{so + 1280*h + 64*T}")
        return q
    PH = [(0, 0), (0, 1), (0, 2), (1, 0), (1, 1), (1, 2), (1, 3), (1, 4), (2, 2), (2, 3), (2, 4)]
    bdr = Prog()
    for n, (U, ka) in enumerate(PH):
        for h in range(2): bdr(f"ds_read_b64_tr_b16 {ar(160+4*n+2*h,2)}, v{18+U} offset:{(16*ka+8*h)*160}")
    bdr = singles(bdr)
    for k in range(FD): p.extend(kv_reads(k))
    segs = [list(range(0, 4 - FD))] + [list(range(4 * G - FD, 4 * G + 4 - FD)) for G in range(1, 10)] + [list(range(40 - FD, 40))]
    for si, steps in enumerate(segs):
        if si >= 1:
            if si == 10: p("s_waitcnt lgkmcnt(0)")
            if STAMP == 2: stamp(p)
            sync(p, si)
            if HALF and si == 1: p.extend(kv_reads(2)); p.extend(kv_reads(3))
        m = Prog(); st = []
        for n, k in enumerate(steps):
            fb = V_WF + (k % 3) * 20
            m.need([vr(fb, 20), ar(4 * k, 4)])
            for T in range(5): mfma32(m, vr(V_KA + 16 * T, 16), vr(fb + 4 * T, 4), ar(4 * k, 4), '0' if k == 0 else None)
            if k + FD < 40 and not (HALF and si == 0): st.append((singles(kv_reads(k + FD)), 5 * n, 5 * n + 5))
        if HALF and si == 0: st.append((issue_group(1), 0, None))
        elif HALF and si == 1: st.append((issue_group(2) + issue_group(3), 0, None))
        else: st.append((issue_group(si + 2), 0, None))
        if si == 1:
            w = Prog(); w(f"ds_write_b64 v{V_X+8}, {vr(V_X,2)}\n ds_write_b64 v{V_X+9}, {vr(V_X+2,2)}")
            st.append((singles(w), 2, 12))
        if si == 2:
            w = Prog(); token_make(w); st.append((singles(w), 0, None))
        if si == 8:
            w = Prog(); w(f"buffer_load_dword v{V_X+10}, v{V_Z}, {sr(S_DBG,4)}, 0 offen sc1")
            st.append(([w], 0, 1))
        if si == 10:
            w = Prog(); unpark(w, 'vw0', t + 1); unpark(w, 'vw1', t + 3); unpark(w, 'phiw0', t + 2); unpark(w, 'phiw1', V_X + 11); unpark(w, 'tq', V_TA + 2)
            w(f"v_add_u32 v{V_TA+3}, {8*GR}, v{V_TA+2}")
            for i in range(5): unpark(w, f'wo{i}', V_XO + i)
            w(f"""v_lshlrev_b32 v{t}, 4, v{LN}
            s_mul_i32 s77, s70, 5120
            s_add_u32 s77, s77, s92
            s_add_u32 s78, s77, 4096""")
            st.append((singles(w), 0, None)); st.append((bdr, 0, None))
        p.extend(pack(m, st))
    stamp(p)

    def phi_step(p, acc, out, extra=None, inexp=None, mid=None, hide=False):
        B = V_WF; E = V_WF + 24; M = V_WF + 64
        cv = [f"v_cvt_pk_bf16_f32 v{B+k}, v{acc+2*k}, v{acc+2*k+1}" for k in range(20)]
        def minmax(y):
            q = Prog(); x = V_PA + y * 20; Mx = M + 8 * y
            q(f"v_max3_f32 v{Mx}, v{x}, v{x+1}, v{x+2}\n v_min3_f32 v{Mx+2}, v{x}, v{x+1}, v{x+2}")
            for k in range(3, 19, 2):
                q(f"v_max3_f32 v{Mx}, v{Mx}, v{x+k}, v{x+k+1}\n v_min3_f32 v{Mx+2}, v{Mx+2}, v{x+k}, v{x+k+1}")
            q(f"v_max_f32 v{Mx}, v{Mx}, v{x+19}\n v_min_f32 v{Mx+2}, v{Mx+2}, v{x+19}")
            q(f"v_mul_f32 v{Mx}, s88, v{Mx}\n v_mul_f32 v{Mx+2}, s88, v{Mx+2}")
            return q
        for c in cv[:8]: p(c)
        m = Prog(); seen = set()
        for n, (U, ka) in enumerate(PH):
            mfma32(m, vr(V_PA + 16 * U, 16), ar(160 + 4 * n, 4), vr(B + 4 * ka, 4), None if U in seen else '0'); seen.add(U)
        c2 = Prog()
        for c in cv[8:]: c2(c)
        st = [(singles(c2), 0, 2)]
        if extra: st.append((bundles(extra), 2, 11))
        mm0 = minmax(0).L; HID = 14 if (hide and opt('hide', 1)) else 0
        if HID:
            q = Prog(); q.L = mm0[:HID]; st.append((singles(q), 6, 11))
        p.extend(pack(m, st, cap=28))
        for y in range(2):
            x = V_PA + y * 20; Mx = M + 8 * y
            if y == 0: p.L += mm0[HID:]
            else: p.extend(minmax(1))
            for q in range(10):
                p(f"v_pk_fma_f32 {vr(E+2*q,2)}, {vr(x+2*q,2)}, s[88:89], {vr(Mx,2)} op_sel_hi:[1,1,0] neg_lo:[0,0,1] neg_hi:[0,0,1]")
                p(f"v_pk_fma_f32 {vr(E+20+2*q,2)}, {vr(x+2*q,2)}, s[88:89], {vr(Mx+2,2)} op_sel_hi:[1,1,0] neg_lo:[1,0,0] neg_hi:[1,0,0]")
            for q in range(40):
                p(f"v_exp_f32 v{E+q}, v{E+q}")
                if y == 0 and inexp and q % 6 == 5: p.extend(inexp.pop(0))
                if y == 1 and mid and q == opt('midq', 24): mid()
            for q in range(1, 10):
                for hh in range(2):
                    S = Mx + 4 + 2 * hh; e = E + 20 * hh
                    p(f"v_pk_add_f32 {vr(S,2)}, {vr(e if q == 1 else S,2)}, {vr(e+2*q,2)}")
            p(f"v_add_f32 v{Mx+4}, v{Mx+4}, v{Mx+5}\n v_add_f32 v{Mx+6}, v{Mx+6}, v{Mx+7}")
            p(f"v_rcp_f32 v{Mx+4}, v{Mx+4}\n v_rcp_f32 v{Mx+6}, v{Mx+6}")
            for hh in range(2):
                for q in range(10):
                    e = E + 20 * hh + 2 * q
                    p(f"v_pk_mul_f32 {vr(e,2)}, {vr(e,2)}, {vr(Mx+4+2*hh,2)} op_sel_hi:[1,0]")
            yield y
            for q in range(20):
                p(f"v_cvt_pk_bf16_f32 v{out+y*20+q}, v{E+2*q}, v{E+2*q+1}")

    def q_reads(k):
        q = Prog(); fb = V_WF + (k % 3) * 12
        slot = (40 + k // 2) % NSLOT; base = V_TA + 2 + (slot >= 8); so = (slot % 8) * GR + (k % 2) * 2560
        for T in range(3):
            for h in range(2):
                q(f"ds_read_b64_tr_b16 {vr(fb+4*T+2*h,2)}, v{base} offset:{so + 160*h + 64*T}")
        return q
    ex = Prog()
    for mm_ in range(10):
        a = V_VA + 4 * mm_; d = V_X + 2 * (mm_ % 4)
        ex(f"v_cvt_pk_bf16_f32 v{d}, v{a}, v{a+1}\n v_cvt_pk_bf16_f32 v{d+1}, v{a+2}, v{a+3}\n ds_write_b64 v{t+1+2*(mm_%2)}, {vr(d,2)} offset:{32*(mm_//2)}")
    w = Prog(); w0 = Prog()
    for k in range(4): w0(f"v_mov_b32 v{V_X+4+k}, -1")
    for pc in range(5):
        w(f"buffer_store_dwordx4 {vr(V_X+4,4)}, v{t}, {sr(S_WS,4)}, {'s78' if pc == 4 else 's77'} offen offset:{1024*(pc%4)} sc1")
    for y in phi_step(p, V_KA, V_PO, ex, [w0] + singles(w)):
        if y == 1:
            p.extend(q_reads(0));
    p.extend(q_reads(1))
    stamp(p)
    p(f"""v_readfirstlane_b32 s95, v{V_X+10}
    s_mov_b32 s94, {SPIN}
    s_cmp_ge_u32 s95, {NZERO_WG}""")
    p("s_cbranch_scc1 a_pz_x", tag='keep')
    p("a_pz:")
    p(f"""buffer_load_dword v{V_X+10}, v{V_Z}, {sr(S_DBG,4)}, 0 offen sc1
    s_sub_u32 s94, s94, 1
    s_waitcnt vmcnt(0)
    v_readfirstlane_b32 s95, v{V_X+10}
    s_cmp_eq_u32 s94, 0""", tag='offpath')
    p("s_cbranch_scc1 a_pz_x", tag='keep')
    p(f"s_cmp_ge_u32 s95, {NZERO_WG}")
    p("s_cbranch_scc0 a_pz", tag='keep')
    p("a_pz_x:")
    pw = Prog()
    for y in range(2):
        for q in range(5): pw(f"ds_write_b128 v{V_X+11 if q % 2 else t+2}, {vr(V_PO+y*20+4*q,4)} offset:{160*y + 32*(q//2)}")
    pre = Prog()
    unpark(pre, 'phir', t); unpark(pre, 'vr0', t + 1); unpark(pre, 'vr1', t + 3)
    pre(f"v_mov_b32 v{t+4}, 0x3f803f80")
    for k in range(5): unpark(pre, f'at{k}', V_X + k)
    pre(f"""s_lshl_b32 s78, s70, 2
    s_add_u32 s78, s78, s68
    s_lshl_b32 s78, s78, 12
    s_add_u32 s78, s78, {WS_KV}""")
    KF = [72, 92, V_PO, V_PO + 20]
    def kvs_reads(sw):
        q = Prog(); fb = KF[sw]
        for h in range(2): q(f"ds_read_b64_tr_b16 {vr(fb+4+2*h,2)}, v{t+3} offset:{(sw*32+h*16)*160}")
        for h in range(2): q(f"ds_read_b64_tr_b16 {vr(fb+2*h,2)}, v{t+1} offset:{(sw*32+h*16)*160}")
        for nf in range(3):
            for h in range(2):
                q(f"ds_read_b64_tr_b16 {vr(fb+8+4*nf+2*h,2)}, v{t} offset:{(sw*32+h*16)*PHI_RS + 32*nf}")
        return q
    def kvs_mfma(m, sw):
        fb = KF[sw]
        m.need([vr(fb, 20)])
        for q in range(4): m(f"v_cndmask_b32 v{fb+4+q}, v{t+4}, v{fb+4+q}, s[90:91]")
        for md in range(2):
            for nf in range(3):
                mfma(m, vr(V_D + (3 * md + nf) * 4, 4), vr(fb + 4 * md, 4), vr(fb + 8 + 4 * nf, 4), '0' if sw == 0 else None)
    at = Prog(); a0 = V_X
    def atom(v, vo, off): at(f"buffer_atomic_add_f32 v{v}, v{vo}, {sr(S_WS,4)}, s78 offen offset:{off}", tag='kvat')
    for nf in range(2):
        for i in range(4): atom(V_D + 4 * nf + i, a0, i * 192 + nf * 64)
    R = lambda nf, i: V_D + 12 + 4 * nf + i
    for i in (0, 2):
        at(f"v_mov_b32_dpp v{V_D+8+i}, v{V_D+9+i} row_shr:8 row_mask:0xf bank_mask:0xc")
    for nf in range(3):
        at(f"v_permlane16_swap_b32 v{R(nf,0)}, v{R(nf,1)}\n v_permlane16_swap_b32 v{R(nf,2)}, v{R(nf,3)}")
    for i in (0, 2): atom(V_D + 8 + i, a0 + 1, i * 192 + 128)
    for nf in range(3): at(f"v_permlane32_swap_b32 v{R(nf,0)}, v{R(nf,2)}")
    at(f"v_permlane16_swap_b32 v{R(0,1)}, v{R(1,1)}")
    for nf in range(3): atom(R(nf, 0), a0 + (3 if nf == 2 else 2), nf * 64)
    at(f"v_permlane32_swap_b32 v{R(0,1)}, v{R(2,1)}")
    atom(R(0, 1), a0 + 4, 0)
    KS = opt('ks', 4)
    segs = [list(range(0, 6))] + [list(range(8 * g - 2, 8 * g + 6)) for g in range(1, 5)] + [[38, 39]]
    def signal():
        unpark(p, 'l0', V_X + 7)
        p(f"""s_lshl_b32 s78, s70, 13
        s_lshl_b32 s85, s69, 9
        s_add_u32 s78, s78, s85
        s_lshl_b32 s85, s68, 7
        s_add_u32 s78, s78, s85
        s_add_u32 s78, s78, {WS_KVF}""")
        p.waitvm('kvat')
        p(f"buffer_store_dword v{V_TOK}, v{V_X+7}, {sr(S_WS,4)}, s78 offen sc1")
    def qstep(k):
        m = Prog(); fb = V_WF + (k % 3) * 12
        m.need([vr(fb, 12)])
        for T in range(3): mfma32(m, vr(V_KA + 16 * T, 16), vr(fb + 4 * T, 4), ar(4 * k, 4), '0' if k == 0 else None)
        return m
    def qrun(steps, extra):
        m = Prog(); st = []
        for n, k in enumerate(steps):
            m.extend(qstep(k))
            if k + 2 < 40: st.append((singles(q_reads(k + 2)), 3 * n, 3 * n + 3))
        p.extend(pack(m, st + extra, cap=28))
    UNW = opt('unw', 1); na = 0
    if UNW:
        U0 = opt('u0s', 2)
        if U0: qrun(range(0, U0), [(singles(pw), 0, None), (bundles(pre), 1, None)])
        else: p.extend(pw); p.extend(pre)
        if STAMP == 3: stamp(p)
        p("s_waitcnt lgkmcnt(0)\n s_barrier")
        for sw in range(2): p.extend(kvs_reads(sw))
        UB_ = opt('ubs', 1)
        if UB_: qrun(range(U0, U0 + UB_), [])
        U0 += UB_
        m = Prog()
        for sw in range(4): kvs_mfma(m, sw)
        p.extend(pack(m, [(singles(kvs_reads(2)) + singles(kvs_reads(3)), 0, 11), (issue_group(13), 12, 23)], cap=8))
        if STAMP == 3: stamp(p)
        na = opt('na', 11)
        qrun(range(U0, 6), [(singles(at)[:na], 0, None)])
    else:
        NW = opt('nw', 4)
        qrun(range(0, NW), [(singles(pw), 0, 3 * NW - 2), (bundles(pre), 2, None)])
        if STAMP == 3: stamp(p)
        p("s_waitcnt lgkmcnt(0)\n s_barrier")
        kr = Prog()
        for sw in range(4): kr.extend(kvs_reads(sw))
        kr = singles(kr)
        for x in kr[:10]: p.extend(x)
        qrun(range(NW, 6), [(kr[10:], 0, None)])
        m = Prog()
        for sw in range(4): kvs_mfma(m, sw)
        p.extend(pack(m, [(issue_group(13), 0, 20)], cap=8))
        if STAMP == 3: stamp(p)
    for si, steps in enumerate(segs):
        G = 10 + si
        if si == 0: continue
        if STAMP == 3 and si > 1: stamp(p)
        if si == KS: signal()
        if G < 15: sync(p, G)
        if si == 1: qrun(steps, [(singles(at)[na:], 0, opt('atspan', 24) if not UNW else 8)])
        elif si < 5: qrun(steps, [(issue_group(G + 2), 0, None)])
        else: qrun(steps, [])
    if KS == 6: signal()
    stamp(p)
    F = V_WF
    ex = Prog()
    unpark(ex, 'kvz', t)
    ex(f"""v_mov_b32 v{V_X}, 0
    v_mov_b32 v{V_X+1}, 0
    v_mov_b32 v{V_X+2}, 0
    v_mov_b32 v{V_X+3}, 0
    ds_write_b128 v{t}, {vr(V_X,4)}
    v_lshlrev_b32 v{t+1}, 7, v{LN}
    v_lshlrev_b32 v{t+2}, 4, v{LN}
    s_lshl_b32 s78, s70, 13
    s_add_u32 s78, s78, {WS_KVF}
    s_lshl_b32 s77, s70, 2
    s_add_u32 s77, s77, s68
    s_lshl_b32 s77, s77, 12
    s_add_u32 s77, s77, {WS_KV}""")
    for i in range(4): unpark(ex, f'kvw{i}', V_X + 4 + i)
    KL = V_KA + 32
    def kvloads(tag=None):
        for i in range(4):
            p(f"buffer_load_dwordx4 {vr(KL+4*i,4)}, v{t+2}, {sr(S_WS,4)}, s77 offen offset:{1024*i} sc1", tag=tag)
    ex(f"""buffer_load_dword v{V_X+8}, v{t+1}, {sr(S_WS,4)}, s78 offen sc1
    v_and_b32 v{t+3}, 7, v0
    v_lshlrev_b32 v{t+3}, 13, v{t+3}
    s_lshl_b32 s93, s69, 9
    s_lshl_b32 s81, s68, 7
    s_add_u32 s93, s93, s81
    s_add_u32 s93, s93, {WS_KVF}""")
    def second():
        p(f"v_cmp_eq_u32 vcc, v{V_TOK}, v{V_X+8}\n s_cmp_eq_u32 s95, 1")
        p("s_cbranch_scc1 a_no2", tag='keep')
        p("s_cmp_eq_u64 vcc, -1")
        p("s_cbranch_scc0 a_no2", tag='keep')
        kvloads('offpath')
        p("s_mov_b32 s95, 1", tag='offpath')
        p("a_no2:")
    for y in phi_step(p, V_KA, V_PO, ex, None, second if opt('e2', 0) else None, True):
        if y == 0:
            p(f"v_cmp_eq_u32 vcc, v{V_TOK}, v{V_X+8}\n s_mov_b32 s95, 0\n s_nop 0\n s_cmp_eq_u64 vcc, -1")
            p("s_cbranch_scc0 a_noearly", tag='keep')
            kvloads('offpath')
            p("s_mov_b32 s95, 1", tag='offpath')
            p("a_noearly:")
            if opt('e2', 0): p(f"buffer_load_dword v{V_X+8}, v{t+1}, {sr(S_WS,4)}, s78 offen sc1")
            p(f"buffer_load_dword v{V_X+9}, v{t+3}, {sr(S_WS,4)}, s93 offen sc1")
        if y == 1:
            stamp(p)
            p("s_cmp_eq_u32 s95, 1")
            p("s_cbranch_scc1 a_have", tag='keep')
            pollall(p, "a_pk", S_WS, 's78', V_X + 8, t + 1)
            kvloads()
            p("a_have:")
            stamp(p)
            p("s_waitcnt vmcnt(0)")
            for i in range(4):
                p(f"v_cvt_pk_bf16_f32 v{F+2*i}, v{KL+4*i}, v{KL+4*i+1}\n v_cvt_pk_bf16_f32 v{F+1+2*i}, v{KL+4*i+2}, v{KL+4*i+3}")
                p(f"ds_write_b64 v{V_X+4+i}, {vr(F+2*i,2)}")
            p(f"v_cmp_eq_u32 vcc, v{V_TOK}, v{V_X+9}")
            unpark(p, 'kvr0', t); unpark(p, 'kvr1', t + 1)
            p("s_cmp_eq_u64 vcc, -1")
            p("s_cbranch_scc1 a_pf_x", tag='keep')
            q = Prog(); pollall(q, "a_pf", S_WS, 's93', V_X + 9, t + 3)
            for i_ in q.L: i_.tag = 'offpath' if i_.kind not in ('label',) else i_.tag
            p.extend(q)
            p(f"""s_mul_i32 s76, s70, 5120
            s_add_u32 s78, s92, s76
            s_add_u32 s81, s78, 4096
            s_mov_b32 s85, {f2u(1e-6):#x}""")
    p("s_waitcnt lgkmcnt(0)\n s_barrier")
    stamp(p)
    order = [(y, u, ka) for u in (1, 0) for y in range(2) for ka in range(5)]
    NB = 10; O = F + 48
    def ord_(n):
        y, u, ka = order[n]; q = Prog(); q(f"ds_read_b128 {vr(F+4*(n%NB),4)}, v{t+y} offset:{u*1280+16*ka}"); return q
    for n in range(NB): p.extend(ord_(n))
    def fin(y, ks):
        q = Prog(); dn = V_KA + 16 * y + 4
        vals = [V_D + 16 * y + r for r in range(16)] + [V_KA + 16 * y + r for r in range(4)]
        for k in ks:
            q(f"v_mul_f32 v{vals[2*k]}, v{dn}, v{vals[2*k]}\n v_mul_f32 v{vals[2*k+1]}, v{dn}, v{vals[2*k+1]}")
            q(f"v_cvt_pk_bf16_f32 v{O+10*y+k}, v{vals[2*k]}, v{vals[2*k+1]}")
        return q
    def ost(q, pc): q(f"buffer_store_dwordx4 {vr(O+4*pc,4)}, v{t+2}, {sr(S_WS,4)}, {'s81' if pc == 4 else 's78'} offen offset:{1024*(pc%4)} {'' if opt('oplain', 0) else 'sc1'}", tag='ost')
    om = Prog()
    for n, (y, u, ka) in enumerate(order):
        if n in (0, 2, 5, 10, 15): om.need([vr(F + 4 * (m_ % NB), 4) for m_ in range(n, {0: 2, 2: 5}.get(n, n + 5))])
        mfma32(om, vr((V_D if u == 0 else V_KA) + 16 * y, 16), vr(F + 4 * (n % NB), 4), vr(V_PO + y * 20 + 4 * ka, 4), '0' if ka == 0 else None)
        if n + NB < 20: om.extend(ord_(n + NB))
    d0 = Prog(); d1 = Prog()
    for y, d in ((0, d0), (1, d1)):
        dn = V_KA + 16 * y + 4
        d(f"v_add_f32 v{dn}, s85, v{dn}\n v_rcp_f32 v{dn}, v{dn}"); d.extend(fin(y, (8, 9)))
    f0 = fin(0, range(4)); ost(f0, 0); f0.extend(fin(0, range(4, 8))); ost(f0, 1)
    p.extend(pack(om, [(issue_group(17) + issue_group(18), 0, 12), (singles(d0), 8, 11), (singles(d1), 12, 15), (singles(f0), 16, 20)], cap=28))
    dn = V_KA + 20
    for k in range(8):
        p(f"v_pk_mul_f32 {vr(V_D+16+2*k,2)}, {vr(V_D+16+2*k,2)}, {vr(dn,2)} op_sel_hi:[1,0]")
    for k in range(8):
        p(f"v_cvt_pk_bf16_f32 v{O+10+k}, v{V_D+16+2*k}, v{V_D+17+2*k}")
        if k in (1, 5, 7): ost(p, {1: 2, 5: 3, 7: 4}[k])
    stamp(p)
    p.waitvm(('dma', 18))
    gemm2_tail(p)
    return p

CP = 4168; YP = 4160; SRS = 544
B_RAW = 0
B_UC = 33280
B_KR = B_UC + 16 * CP
B_SC = B_KR + 4 * 4608
B_END = B_SC + 4 * 16 * SRS
S_KR = 81920; S_SC = S_KR + 4 * 4608
WS_KR = 4 << 20
BL, B15, BG, BZ = 1, 2, 3, 4
A_SW, A_SR, A_T0, A_T1, A_T1b, A_T2, A_X3, A_X2, A_X1, A_X0, A_KW, A_KW32, A_KB, MSK = range(24, 38)
PR = 8
S_U, S_LA, S_AI, S_CR, S_CI, S_LDT, S_DS, S_O, S_WSB = 40, 44, 48, 52, 56, 60, 64, 72, 76

def kg_lanes(p):
    p(f"""v_and_b32 v{BL}, 63, v0
    v_and_b32 v{B15}, 15, v0
    v_bfe_u32 v{BG}, v0, 4, 2
    v_mov_b32 v{BZ}, 0
    v_lshlrev_b32 v5, 2, v{BL}
    s_waitcnt lgkmcnt(0)""")
    for s_, ptr, size in ((S_LA, P_LA, 640*256), (S_AI, P_AI, 640*256), (S_CR, P_CR, 640*256), (S_CI, P_CI, 640*256), (S_LDT, P_LDT, 1280), (S_DS, P_DS, 1280)):
        srd(p, s_, ptr, size)
def kg_params(p, sch, P):
    p(f"s_lshl_b32 s81, {sch}, 8\n s_lshl_b32 s80, {sch}, 1")
    p(f"buffer_load_ushort v{P+4}, v{BZ}, {sr(S_LDT,4)}, s80 offen")
    for k, s_ in enumerate((S_LA, S_AI, S_CR, S_CI)):
        p(f"buffer_load_dword v{P+k}, v5, {sr(s_,4)}, s81 offen {'nt' if opt('ntp', 1) else ''}")
    p(f"buffer_load_ushort v{P+5}, v{BZ}, {sr(S_DS,4)}, s80 offen")
def kg_setup(p, KR, SC):
    t = 40
    p(f"""s_mul_i32 s83, s68, 4608
    s_add_u32 s83, s83, {KR}
    s_mul_i32 s84, s68, {16*SRS}
    s_add_u32 s84, s84, {SC}
    v_lshl_add_u32 v{A_SW}, v{BL}, 3, s84
    v_mul_u32_u24 v{A_SR}, {SRS}, v{B15}
    v_lshl_add_u32 v{A_SR}, v{BG}, 4, v{A_SR}
    v_add_u32 v{A_SR}, s84, v{A_SR}
    v_cmp_gt_u32 vcc, 2, v{BG}
    v_lshrrev_b32 v{t}, 1, v{BG}
    v_and_b32 v{t+1}, 1, v{BG}
    v_lshlrev_b32 v{A_T0}, 9, v{t}
    v_lshl_add_u32 v{A_T0}, v{t+1}, 4, v{A_T0}
    v_lshl_add_u32 v{A_T0}, v{B15}, 5, v{A_T0}
    v_add_u32 v{A_T0}, s84, v{A_T0}
    v_lshlrev_b32 v{t+2}, 4, v{B15}
    v_lshlrev_b32 v{t+3}, 3, v{B15}
    v_cndmask_b32 v{t+2}, v{t+3}, v{t+2}, vcc
    v_lshl_add_u32 v{A_T1}, v{BG}, 8, v{t+2}
    v_add_u32 v{A_T1}, s84, v{A_T1}
    v_mov_b32 v{t+2}, 128
    v_mov_b32 v{t+3}, 8
    v_cndmask_b32 v{t+2}, v{t+2}, v{t+3}, vcc
    v_add_u32 v{A_T1b}, v{A_T1}, v{t+2}
    v_lshlrev_b32 v{A_T2}, 8, v{BG}
    v_lshl_add_u32 v{A_T2}, v{B15}, 2, v{A_T2}
    v_add_u32 v{A_T2}, s84, v{A_T2}
    v_lshl_add_u32 v{A_X3}, v{BL}, 2, s84
    v_lshl_add_u32 v{A_X2}, v{BL}, 3, s84
    v_and_b32 v{t}, 31, v0
    v_lshl_add_u32 v{A_X1}, v{t}, 4, s84
    v_lshl_add_u32 v{A_X0}, v{t}, 5, s84
    v_lshlrev_b32 v{t+1}, 4, v{BL}
    v_sub_u32 v{A_KW}, s83, v{t+1}
    v_add_u32 v{A_KW}, 1008, v{A_KW}
    v_lshlrev_b32 v{t+1}, 4, v{t}
    v_sub_u32 v{A_KW32}, s83, v{t+1}
    v_add_u32 v{A_KW32}, 496, v{A_KW32}
    v_and_b32 v{t}, 1, v0
    v_cmp_eq_u32 vcc, 1, v{t}
    v_mov_b32 v{t+1}, 0xffff
    v_mov_b32 v{t+2}, -1
    v_cndmask_b32 v{MSK}, v{t+1}, v{t+2}, vcc
    s_mov_b32 s85, 0xffff
    s_mov_b32 s86, {f2u(1.4426950408889634):#x}
    s_mov_b32 s87, 0x32a57060
    s_mov_b32 s88, {f2u(0.6931471805599453):#x}
    s_mov_b32 s89, 0xffff0000""")

def exp_bf16(p, d, x, t):
    p(f"""v_mul_f32 v{t}, s86, v{x}
    v_fma_f32 v{t+1}, v{x}, s86, -v{t}
    v_exp_f32 v{t}, v{t}
    v_fma_f32 v{t+1}, v{x}, s87, v{t+1}
    v_mul_f32 v{t+1}, s88, v{t+1}
    v_fma_f32 v{t}, v{t}, v{t+1}, v{t}
    v_cvt_pk_bf16_f32 v{t}, v{t}, v{t}
    v_and_b32 v{d}, s89, v{t}""")
def cmul(p, c, a, b):
    p(f"v_pk_mul_f32 {vr(c,2)}, {vr(a,2)}, {vr(b,2)} op_sel:[0,0] op_sel_hi:[0,1]")
    p(f"v_pk_fma_f32 {vr(c,2)}, {vr(a,2)}, {vr(b,2)}, {vr(c,2)} op_sel:[1,1,0] op_sel_hi:[1,0,1] neg_lo:[0,1,0]")
def kgen(p, P, sched):
    E = lambda k, mu: 48 + 4 * (k - 1) + 2 * mu
    E8 = lambda mu: 76 + 2 * mu
    E128 = lambda mu: 80 + 2 * mu
    GA = lambda par, mu: 84 + 4 * par + 2 * mu
    XT = lambda k, mu: 92 + 4 * (k % 2) + 2 * mu
    PK = lambda k: 100 + 2 * (k % 4)
    FB = 108; FA = 140; DT = 172
    t = 40
    p(f"v_lshlrev_b32 v{t+6}, 16, v{P+4}")
    exp_bf16(p, t + 7, t + 6, t)
    p.need([vr(P, 6)])
    if STAMP == 4: stamp(p)
    rho = lambda mu: 92 + mu; th = lambda mu: 94 + mu
    p(f"v_add_f32 v{t+4}, v{t+7}, v{t+7}")
    for mu in range(2):
        up = (lambda d, s_: f"v_lshlrev_b32 v{d}, 16, v{s_}") if mu == 0 else (lambda d, s_: f"v_and_b32 v{d}, s89, v{s_}")
        p(up(t + 6, P))
        exp_bf16(p, t + 5, t + 6, t)
        p(f"v_mul_f32 v{t+5}, v{t+5}, v{t+7}\n v_mul_f32 v{rho(mu)}, s86, v{t+5}")
        p(up(t + 6, P + 1))
        p(f"v_mul_f32 v{t+6}, v{t+6}, v{t+7}\n v_mul_f32 v{th(mu)}, 0.15915494, v{t+6}")
        p(up(t + 5, P + 2)); p(up(t + 6, P + 3))
        p(f"v_mul_f32 v{GA(0,mu)}, v{t+5}, v{t+4}\n v_mul_f32 v{GA(0,mu)+1}, v{t+6}, v{t+4}")
    for pw, dst in ((8, E8), (1, lambda mu: E(1, mu)), (128, E128)):
        for mu in range(2):
            p(f"v_mul_f32 v{t+2*mu}, {f2u(-float(pw)):#x}, v{rho(mu)}\n v_mul_f32 v{t+2*mu+1}, {f2u(float(pw)):#x}, v{th(mu)}")
        for mu in range(2): p(f"v_exp_f32 v{t+2*mu}, v{t+2*mu}\n v_fract_f32 v{t+2*mu+1}, v{t+2*mu+1}")
        for mu in range(2): p(f"v_cos_f32 v{dst(mu)}, v{t+2*mu+1}\n v_sin_f32 v{dst(mu)+1}, v{t+2*mu+1}")
        for mu in range(2): p(f"v_pk_mul_f32 {vr(dst(mu),2)}, {vr(dst(mu),2)}, {vr(t+2*mu,2)} op_sel_hi:[1,0]")
    cnt = [0]; SIDE0 = opt('side0', 36); SIDEN = opt('siden', 2)
    def put(row, src, neg=False):
        k = cnt[0]; cnt[0] += 1
        for mu in range(2):
            a = src(mu)
            p(f"v_cvt_pk_bf16_f32 v{PK(k)+mu}, v{a}, {'-' if neg else ''}v{a+1}")
        p(f"ds_write_b64 v{A_SW}, {vr(PK(k),2)} offset:{row*SRS}")
        for b_ in sched.get(k, []): p.extend(b_)
    p(f"v_mov_b32 v{PK(3)}, 0x3f80\n v_mov_b32 v{PK(3)+1}, 0x3f80\n ds_write_b64 v{A_SW}, {vr(PK(3),2)}")
    put(1, E8, True)
    prev = E8
    for b in range(2, 16):
        cur = (lambda bb: (lambda mu: XT(bb, mu)))(b)
        for mu in range(2): cmul(p, cur(mu), prev(mu), E8(mu))
        put(b, cur, True); prev = cur
    if STAMP == 4: stamp(p)
    for ka in range(8): p(f"ds_read_b128 {vr(FB+4*ka,4)}, v{A_SR} offset:{64*ka}")
    for k in range(2, 8):
        for mu in range(2): cmul(p, E(k, mu), E(k - 1, mu), E(1, mu))
    al = [0]
    def Gcur(mu): return GA(al[0] % 2, mu)
    def Gnext():
        for mu in range(2): cmul(p, GA((al[0] + 1) % 2, mu), GA(al[0] % 2, mu), E128(mu))
        al[0] += 1
    def prod(row, k):
        if k == 0: put(row, Gcur); return
        for mu in range(2): cmul(p, XT(row, mu), Gcur(mu), E(k, mu))
        put(row, lambda mu: XT(row, mu))
    def tile(T):
        for ka in range(8): p(f"ds_read_b128 {vr(FA+4*ka,4)}, v{A_SR} offset:{64*ka}")
        return [f"v_mfma_f32_16x16x32_bf16 {vr(DT+4*T,4)}, {vr(FA+4*ka,4)}, {vr(FB+4*ka,4)}, {'0' if ka == 0 else vr(DT+4*T,4)}" for ka in range(8)]
    for a in range(2):
        for g in range(8): prod(8 * a + g, g)
        Gnext()
    if STAMP == 4: stamp(p)
    mm = tile(0)
    for a in range(2):
        for g in range(4): prod(4 * a + g, 2 * g)
        Gnext()
        if a == 0:
            for x in mm: p(x)
    for a in range(4):
        for g in range(2): prod(8 + 2 * a + g, 4 * g)
        Gnext()
    if STAMP == 4: stamp(p)
    mm = tile(1)
    for a in range(9):
        prod(a, 0)
        if a < 8: Gnext()
        if a == 3:
            for x in mm: p(x)
    if STAMP == 4: stamp(p)
    mm = tile(2)
    p(f"""v_cmp_eq_u32 vcc, 0, v{BL}
    v_lshlrev_b32 v{t}, 16, v{P+5}
    v_cndmask_b32 v{t}, v{BZ}, v{t}, vcc
    v_add_f32 v{DT}, v{DT}, v{t}""")
    for q in range(8): p(f"v_cvt_pk_bf16_f32 v{DT+q}, v{DT+q}, v{DT+q}")
    p.need([vr(FA, 32)])
    p(mm[0]); p(f"ds_write_b128 v{A_T0}, {vr(DT,4)}")
    for x in mm[1:4]: p(x)
    p(f"ds_write_b64 v{A_T1}, {vr(DT+4,2)} offset:1024")
    for x in mm[4:6]: p(x)
    p(f"ds_write_b64 v{A_T1b}, {vr(DT+6,2)} offset:1024")
    for x in mm[6:]: p(x)
    R = FB
    p(f"""ds_read_b128 {vr(R+24,4)}, v{A_X0}
    ds_read_b128 {vr(R+28,4)}, v{A_X0} offset:16
    ds_read_b128 {vr(R+16,4)}, v{A_X1} offset:1024
    ds_read_b32 v{R+20}, v{A_X1} offset:{1024+16}""")
    for q in range(8, 12): p(f"v_cvt_pk_bf16_f32 v{DT+q}, v{DT+q}, v{DT+q}")
    for i in range(4): p(f"ds_write_b32 v{A_T2}, v{DT+8+i} offset:{2048+64*i}")
    p(f"""ds_read_b32 v{R+8}, v{A_X2} offset:{1536+8}
    ds_read_b32 v{R+9}, v{A_X2} offset:{1536+4}
    ds_read_b32 v{R+11}, v{A_X2} offset:{1536}""")
    for r in range(2):
        p(f"ds_read_b32 v{R+4*r}, v{A_X3} offset:{2048+256*r+4}")
        p(f"ds_read_b32 v{R+4*r+2}, v{A_X3} offset:{2048+256*r}\n ds_read_b32 v{R+4*r+3}, v{A_X3} offset:{2048+256*r}")
    p(f"""v_bfi_b32 v{R+12}, s85, v{R+20}, v{R+19}
    v_mov_b32 v{R+13}, v{R+18}
    v_bfi_b32 v{R+14}, s85, v{R+18}, v{R+17}
    v_mov_b32 v{R+15}, v{R+16}
    ds_write_b128 v{A_KW32}, {vr(R+12,4)} offset:3072
    v_bfi_b32 v{R+16}, s85, v{R+31}, v{R+30}
    v_bfi_b32 v{R+17}, s85, v{R+29}, v{R+28}
    v_bfi_b32 v{R+18}, s85, v{R+27}, v{R+26}
    v_bfi_b32 v{R+19}, s85, v{R+25}, v{R+24}
    ds_write_b128 v{A_KW32}, {vr(R+16,4)} offset:3584
    v_bfi_b32 v{R+10}, s85, v{R+9}, v{R+11}
    ds_write_b128 v{A_KW}, {vr(R+8,4)} offset:2048""")
    for r in range(2):
        p(f"v_bfi_b32 v{R+4*r+1}, v{MSK}, v{R+4*r}, v{R+4*r+2}")
        p(f"ds_write_b128 v{A_KW}, {vr(R+4*r,4)} offset:{1024*(1-r)}")

def prefetch1():
    if not opt('pf1', 1): return []
    NG = opt('pfg', 3); B = []; p = Prog()
    decode_ab(p, 's93', 16, 94, 92)
    p("s_add_u32 s93, s94, s92\n s_mul_i32 s93, s93, 3")
    srd(p, 96, P_W, 640 * 3840)
    p(f"""s_mul_i32 s92, s92, 160
    s_lshr_b32 s95, s68, 1
    s_add_u32 s95, s95, 1
    s_mul_i32 s95, s95, 1280
    s_add_u32 s92, s92, s95
    s_andn2_b32 s92, s92, 127
    s_and_b32 s95, s68, 1
    s_lshl_b32 s95, s95, 7
    s_add_u32 s92, s92, s95
    v_mul_u32_u24 v250, 3840, v{BL}
    v_mul_u32_u24 v249, 1280, v{BL}""")
    def g10(p, d, add):
        p(f"""s_add_u32 s{d}, s93, {add}
        s_mul_i32 s95, s{d}, 205
        s_lshr_b32 s95, s95, 11
        s_mul_i32 s95, s95, 10
        s_sub_u32 s{d}, s{d}, s95""")
    for k in range(opt('pf0', 1), NG + 1):
        g10(p, 100, k)
        p(f"s_mul_i32 s100, s100, {64*3840}\n s_add_u32 s100, s100, s92\n buffer_load_dword v254, v250, s[96:99], s100 offen {'nt' if opt('ntw', 0) else ''}")
        B.append(p); p = Prog()
    srd(p, 96, P_X, 2048 * 1280)
    p(f"""s_lshl_b32 s94, s94, 1
    s_and_b32 s95, s68, 1
    s_add_u32 s94, s94, s95
    s_mul_i32 s94, s94, {64*1280}
    s_lshr_b32 s95, s68, 1
    s_add_u32 s93, s93, s95""")
    for k in range(1, NG + 1, 2):
        g10(p, 100, k)
        p(f"s_lshl_b32 s100, s100, 7\n s_add_u32 s100, s100, s94\n buffer_load_dword v254, v249, s[96:99], s100 offen {'nt' if opt('ntx', 0) else ''}")
        B.append(p); p = Prog()
    return B
def prefetch2x():
    if not opt('pf2', 1): return []
    B = []
    for r in range(2):
        a = Prog(); b = Prog()
        a(f"""s_lshr_b32 s92, s2, 3
        s_sub_u32 s92, s92, 16
        s_lshl_b32 s92, s92, 2
        s_add_u32 s92, s92, s68
        s_lshl_b32 s92, s92, 6
        s_add_u32 s92, s92, {4096*r}
        v_add_u32 v250, s92, v{BL}
        v_mul_u32_u24 v249, 6554, v250
        v_lshrrev_b32 v249, 16, v249
        v_mul_u32_u24 v252, 10, v249
        v_sub_u32 v250, v250, v252
        v_mul_u32_u24 v252, 3840, v249
        v_lshl_add_u32 v252, v250, 7, v252""")
        srd(a, 96, P_W, 640 * 3840)
        a("buffer_load_dword v254, v252, s[96:99], 0 offen")
        b(f"""v_mul_u32_u24 v252, 1280, v249
        v_lshl_add_u32 v252, v250, 7, v252""")
        srd(b, 96, P_WO, 640 * 1280)
        b("buffer_load_dword v254, v252, s[96:99], 0 offen")
        B += [a, b]
    return B
def prefetch2():
    if XM: return prefetch2x()
    if not opt('pf2', 1): return []
    a = Prog(); b = Prog()
    a(f"""s_lshr_b32 s92, s2, 3
    s_sub_u32 s92, s92, 16
    s_lshl_b32 s92, s92, 2
    s_add_u32 s92, s92, s68
    s_lshl_b32 s92, s92, 6
    v_add_u32 v250, s92, v{BL}
    v_mul_u32_u24 v249, 13108, v250
    v_lshrrev_b32 v249, 16, v249
    v_mul_u32_u24 v252, 5, v249
    v_sub_u32 v250, v250, v252
    v_mul_u32_u24 v252, 3840, v249
    v_lshl_add_u32 v252, v250, 7, v252
    s_and_b32 s93, s2, 1
    s_mul_i32 s94, s93, 640""")
    srd(a, 96, P_W, 640 * 3840)
    a("buffer_load_dword v254, v252, s[96:99], s94 offen")
    b(f"""s_lshl_b32 s94, s93, 9
    s_lshl_b32 s95, s93, 7
    s_add_u32 s95, s95, 1024
    v_lshlrev_b32 v252, 7, v250
    v_add_u32 v252, s94, v252
    v_mov_b32 v248, s95
    v_cmp_eq_u32 vcc, 4, v250
    v_mul_u32_u24 v249, 1280, v249
    v_cndmask_b32 v252, v252, v248, vcc
    v_add_u32 v252, v252, v249""")
    srd(b, 96, P_WO, 640 * 1280)
    b("buffer_load_dword v254, v252, s[96:99], 0 offen")
    return [a, b]

def prefetch3():
    if not opt('pf3', 1): return []
    B = []
    for r in range(2):
        a = Prog()
        a(f"""s_lshr_b32 s92, s2, 3
        s_sub_u32 s92, s92, 26
        s_lshl_b32 s92, s92, 2
        s_add_u32 s92, s92, s68
        s_add_u32 s92, s92, {24*r}
        s_mul_i32 s92, s92, {64*1280}
        s_and_b32 s93, s2, 4
        s_lshl_b32 s93, s93, 5
        s_add_u32 s92, s92, s93
        s_add_u32 s92, s92, 1024
        v_mul_u32_u24 v252, 1280, v{BL}""")
        srd(a, 96, P_U, 2048 * 1280)
        a("buffer_load_dword v254, v252, s[96:99], s92 offen")
        B.append(a)
    return B

def role_B():
    p = Prog(); nstamp[0] = 0
    LN, L15, G, Z = BL, B15, BG, BZ
    p("roleB:")
    stamp(p)
    if opt('bm', 1) == 0:
        p("""s_and_b32 s69, s2, 7
        s_mul_i32 s69, s69, 10
        s_lshr_b32 s70, s2, 3
        s_sub_u32 s70, s70, 16
        s_add_u32 s69, s69, s70""")
    else:
        p("""s_and_b32 s71, s2, 7
        s_lshr_b32 s70, s2, 3
        s_sub_u32 s70, s70, 16
        s_lshl_b32 s69, s71, 3
        s_add_u32 s69, s69, s70
        s_lshl_b32 s71, s71, 1
        s_add_u32 s71, s71, s70
        s_add_u32 s71, s71, 56
        s_cmp_ge_u32 s70, 8
        s_cselect_b32 s69, s71, s69""")
    kg_lanes(p)
    p(f"s_lshl_b32 s71, s69, 3\n s_add_u32 s71, s71, s68")
    kg_params(p, 's71', PR)
    pf = prefetch1()[:opt('pfb', 5)]; NOW = opt('pfnow', 5)
    srd(p, S_WSB, P_WS, WS_SIZE)
    token_load(p, S_WSB, Z)
    for b in pf[:NOW]: p.extend(b)
    p(f"""s_lshr_b32 s80, s69, 3
    s_lshl_b32 s39, s80, 12
    s_add_u32 s39, s39, {WS_UF}
    s_lshl_b32 s101, s69, 2
    s_add_u32 s101, s101, s68
    s_lshl_b32 s101, s101, 7
    s_add_u32 s101, s101, {WS_YF}
    s_lshl_b32 s6, s69, 15
    s_lshl_b32 s7, s68, 13
    s_add_u32 s6, s6, s7
    s_add_u32 s6, s6, {WS_YT}
    s_add_u32 s7, s6, 4096
    v_lshlrev_b32 v39, 4, v{LN}
    v_cmp_eq_u32 vcc, 0, v{LN}
    v_mov_b32 v15, {OOB:#x}
    v_cndmask_b32 v15, v15, v{Z}, vcc""")
    tk = Prog(); token_make(tk)
    sched = {30: [tk]}
    for k, b in enumerate(pf[NOW:]): sched.setdefault(opt('pfa', 0) + opt('pfd', 3) * k, []).append(b)
    for k, b in enumerate(prefetch2()): sched.setdefault(opt('pf2a', 30) + 3 * k, []).append(b)
    NI = opt('ni', 3); late = []
    if not UT:
        p("s_lshl_b32 s80, s69, 4")
        srd(p, S_U, P_U, 0, 's80')
        p(f"""s_sub_u32 s{S_U+2}, {2048*1280}, s80
        v_mul_u32_u24 v6, 1280, v{LN}
        s_and_b32 s5, s69, 7
        s_lshl_b32 s81, s68, 3
        s_add_u32 s5, s5, s81""")
        for i in range(8):
            q = Prog()
            q(f"""s_add_u32 s81, s5, {i}
            s_and_b32 s81, s81, 31
            s_mul_i32 s82, s81, {64*1280}
            s_lshl_b32 s81, s81, 10
            s_add_u32 m0, s81, {B_RAW+256}""")
            q(f"buffer_load_dwordx4 v6, {sr(S_U,4)}, s82 offen lds", tag=('raw', i))
            if i < NI: sched.setdefault(opt('sidef', 10) if i == 0 else min(55, opt('side0', 30) + opt('siden', 8) * i), []).append(q)
            else: late.append(q)
    srd(p, S_O, P_OUT, 2048 * 2560)
    if opt('noB', 0): p("s_endpgm")
    kg_setup(p, B_KR, B_SC)
    t = 40
    p(f"""v_mov_b32 v20, 0
    v_mov_b32 v21, 0
    v_mov_b32 v22, 0
    v_mov_b32 v23, 0
    v_lshlrev_b32 v{t}, 4, v{L15}
    ds_write_b128 v{t}, v[20:23] offset:{B_RAW}
    v_lshrrev_b32 v{t}, 2, v{LN}
    v_mul_u32_u24 v{t}, {CP}, v{t}
    v_and_b32 v{t+1}, 3, v0
    v_lshl_add_u32 v{t}, v{t+1}, 3, v{t}
    ds_write_b64 v{t}, v[20:21] offset:{B_UC}
    v_and_b32 v{t}, 31, v0
    v_lshl_add_u32 v38, v{t}, 4, s83
    ds_write_b128 v38, v[20:23] offset:4096
    v_lshlrev_b32 v{t+1}, 5, v{L15}
    v_sub_u32 v{A_KB}, s83, v{t+1}
    v_lshl_add_u32 v{A_KB}, v{G}, 4, v{A_KB}
    v_add_u32 v{A_KB}, 480, v{A_KB}""")
    stamp(p)
    kgen(p, PR, sched)
    stamp(p)
    Y = 184; UB = 216
    p(f"""v_and_b32 v17, 31, v0
    v_lshlrev_b32 v17, 7, v17
    s_lshl_b32 s38, s69, 15
    s_lshl_b32 s80, s68, 13
    s_add_u32 s38, s38, s80
    s_add_u32 s38, s38, {WS_UT}
    s_add_u32 s80, s80, {B_RAW+256}""")
    if UT: pollall(p, "b_pu", S_WSB, 's39', 18, 17, opt('uslp', 4))
    stamp(p)
    for i in range(8 if UT else 0):
        p(f"s_add_u32 m0, s80, {1024*i}\n s_nop 0\n buffer_load_dwordx4 v39, {sr(S_WSB,4)}, s38 offen sc1 lds\n s_add_u32 s38, s38, 1024", tag='raw')
    for k in range(NPB):
        pass
    LA = opt('la', 2)
    for q in late[:LA]: p.extend(q)
    late = late[LA:]
    p(f"""s_mov_b32 s99, s5
    v_bfe_u32 v{t+2}, v0, 2, 2
    v_and_b32 v{t+1}, 1, v0
    v_lshlrev_b32 v{t+1}, 3, v{t+1}
    v_lshl_add_u32 v{t+2}, v{t+2}, 4, v{t+1}
    v_bfe_u32 v{t+1}, v0, 1, 1
    v_lshl_add_u32 v{t+1}, v{G}, 1, v{t+1}
    v_lshl_add_u32 v{t}, v{t+1}, 6, v{t+2}
    s_lshl_b32 s80, s68, 13
    v_lshl_add_u32 v{t+2}, v{t+1}, 10, v{t+2}
    v_add_u32 v{t+2}, s80, v{t+2}
    v_and_b32 v{t+1}, 7, v0
    v_mul_u32_u24 v{t+1}, {2*CP}, v{t+1}
    v_bfe_u32 v{t+3}, v0, 3, 1
    v_lshl_add_u32 v{t+3}, v{G}, 1, v{t+3}
    v_lshl_add_u32 v{t+6}, v{t+3}, 7, v{t+1}
    v_lshl_add_u32 v{t+1}, v{t+3}, 3, v{t+1}
    s_lshl_b32 s80, s68, 10
    v_add_u32 v{t+3}, s80, v{t+6}
    s_mul_i32 s81, s68, {2*CP}
    s_add_u32 s81, s81, {B_UC}
    v_and_b32 v{t+4}, 1, v0
    v_mul_u32_u24 v{t+4}, {CP+4}, v{t+4}
    v_lshrrev_b32 v{t+5}, 1, v{L15}
    v_lshl_add_u32 v{t+5}, v{G}, 2, v{t+5}
    v_lshl_add_u32 v{t+4}, v{t+5}, 2, v{t+4}
    v_add_u32 v{UB}, s81, v{t+4}
    v_add_u32 v{UB+1}, 1024, v{UB}
    v_add_u32 v{UB+2}, 2048, v{UB}
    v_add_u32 v{UB+3}, 3072, v{UB}
    s_mul_i32 s80, s68, {YP}
    v_lshlrev_b32 v{t+4}, 5, v{L15}
    v_lshl_add_u32 v{t+4}, v{G}, 3, v{t+4}
    v_add_u32 v{UB+4}, s80, v{t+4}
    s_lshl_b32 s90, s69, 2
    s_add_u32 s90, s90, s68
    s_lshl_b32 s91, s90, 12
    s_add_u32 s91, s91, {WS_KR}
    s_lshl_b32 s90, s90, 7
    s_add_u32 s90, s90, {WS_KF}
    s_sub_u32 s92, s84, s83
    v_add_u32 v38, s92, v38""")
    p(f"""v_bfe_u32 v224, v0, 2, 2
    v_mul_u32_u24 v224, {YP}, v224
    v_and_b32 v225, 3, v0
    v_lshl_add_u32 v224, v225, 3, v224
    v_lshl_add_u32 v224, v{G}, 5, v224
    s_lshl_b32 s80, s68, 10
    v_add_u32 v224, s80, v224""")
    if YT:
        p(f"""s_lshr_b32 s80, s69, 3
        s_and_b32 s81, s69, 7
        s_lshl_b32 s81, s81, 2
        s_add_u32 s81, s81, s68
        s_lshl_b32 s96, s80, 18
        s_lshl_b32 s82, s81, 10
        s_add_u32 s96, s96, s82
        s_add_u32 s96, s96, {WS_YT}
        s_mul_i32 s97, s81, {64*2560}
        s_lshl_b32 s80, s80, 7
        s_add_u32 s97, s97, s80
        s_add_u32 s97, s97, 1280
        s_mul_i32 s98, s68, 8448
        s_add_u32 s98, s98, {B_UC}
        v_lshrrev_b32 v226, 3, v{LN}
        v_and_b32 v227, 7, v0
        v_lshlrev_b32 v228, 15, v226
        v_lshl_add_u32 v228, v227, 7, v228
        v_mul_u32_u24 v229, 1040, v227
        v_lshl_add_u32 v229, v226, 4, v229
        v_add_u32 v229, s98, v229
        v_mul_u32_u24 v230, 2560, v226
        v_lshl_add_u32 v230, v227, 4, v230
        s_nop 0""")
    p(f"ds_write_b128 v38, v[20:23] offset:4096")
    if YT: p("v_mov_b32 v8, -1\n v_mov_b32 v9, -1\n v_mov_b32 v10, -1\n v_mov_b32 v11, -1\n v_mov_b32 v12, v39")
    if NPB:
        for w_ in range(4):
            if w_ < NPB:
                p(f"s_cmp_lg_u32 s68, {w_}")
                p(f"s_cbranch_scc1 b_t{w_}", tag='keep')
                for k in range(w_, NPB, 4): p(f"s_call_b64 s[100:101], pb{k}".replace("s[100:101]", "s[36:37]"), tag='keep')
                p(f"b_t{w_}:")
    for i in range(8):
        ra, wa, d = 64 + 2 * (i % 2), 65 + 2 * (i % 2), 48 + 8 * (i % 2)
        p(f"""s_add_u32 s81, s99, {i}
        s_and_b32 s81, s81, 31
        s_lshl_b32 s80, s81, 10
        s_lshl_b32 s81, s81, 7
        v_add_u32 v{ra}, s80, v{t}
        v_add_u32 v{wa}, s81, v{t+1}""")
        if late: p.extend(late.pop(0))
        p.waitvm(('raw', i))
        jobs = [(hb, pp) for hb in range(2) for pp in range(2)]
        for n, (hb, pp) in enumerate(jobs): p(f"ds_read_b64_tr_b16 {vr(d+2*n,2)}, v{ra} offset:{B_RAW + 16*(16 + 32*hb + 1 - pp)}")
        for n, (hb, pp) in enumerate(jobs): p(f"ds_write_b64 v{wa}, {vr(d+2*n,2)} offset:{B_UC + pp*CP + 2*(16 + 32*hb)}")
    p("s_waitcnt lgkmcnt(0)\n s_barrier")
    stamp(p)
    p(f"ds_read_b64_tr_b16 v[48:49], v{t+2} offset:{B_RAW + 16*13}")
    p(f"ds_write_b64 v{t+3}, v[48:49] offset:{B_UC + 24}")
    def fa(b, a): return ar((b % 2) * 64 + 4 * a, 4)
    def fb(b, c): return ar((b % 2) * 64 + 32 + 4 * c, 4)
    def reads(b, kind='ku'):
        q = Prog()
        for a in range(8):
            o = 128 * (a % 2) + 16 * b; r0 = (b % 2) * 64 + 4 * a
            if 'k' in kind: q(f"ds_read_b128 {fb(b,a)}, v{A_KB} offset:{512*(7-a)+64*b}")
            if 'u' in kind:
                q(f"ds_read2_b32 {ar(r0,2)}, v{UB+a//2} offset0:{o} offset1:{o+1}")
                q(f"ds_read2_b32 {ar(r0+2,2)}, v{UB+a//2} offset0:{o+2} offset1:{o+3}")
        return q
    def krdma(tag):
        for i in range(4):
            p(f"s_add_u32 m0, s84, {1024*i}\n s_nop 0\n buffer_load_dwordx4 v39, {sr(S_WSB,4)}, s91 offen sc1 lds\n s_add_u32 s91, s91, 1024", tag=tag)
    p("s_mov_b32 s93, 0\n s_mov_b32 s95, 0\n s_waitcnt lgkmcnt(0)\n s_barrier")
    stamp(p)
    p("b_conv:")
    p.extend(reads(0))
    prs = sorted([(a, c) for c in range(8) for a in range(c + 1)], key=lambda x: (max(x[0], x[1] - x[0]), x[1]))
    EB = opt('eb', 5)
    if opt('cord', 1):
        prs = sorted(prs, key=lambda x: (max(x[0], x[1] - x[0]), x[0] > x[1] - x[0], x[1]))
        if opt('cord', 1) == 2: prs = prs[:-6] + [(0, 6), (1, 7), (6, 6), (0, 7), (6, 7), (7, 7)]
    for b in range(8):
        m = Prog(); seen = set(); lvl = -1
        for a, c in prs:
            first = b == 0 and c not in seen; seen.add(c)
            if max(a, c - a) != lvl and (b == 0 or max(a, c - a) in (0, 4)):
                lvl = max(a, c - a); hi = lvl if b == 0 else lvl + 3
                m.need([fa(b, x) for x in range(lvl, hi + 1)] + [fb(b, x) for x in range(lvl, hi + 1)])
            mfma(m, vr(Y + 4 * c, 4), fa(b, a), fb(b, c - a), '0' if first else None)
        if b < 2 and YT:
            w = Prog()
            for jj in range(4 * b, 4 * b + 4):
                w(f"buffer_store_dwordx4 v[8:11], v12, {sr(S_WSB,4)}, {'s6' if jj < 4 else 's7'} offen offset:{1024*(jj%4)} sc1")
            ysent = [(singles(w), 4, 34)]
        else: ysent = []
        if b == EB: p(f"buffer_load_dword v7, v{Z}, {sr(S_WSB,4)}, s90 offen sc1")
        if b == EB + 1:
            p(f"""v_cmp_eq_u32 vcc, v{V_TOK}, v7
            s_cmp_lg_u32 s93, 0
            s_cselect_b64 s[80:81], 0, -1
            s_and_b64 vcc, vcc, s[80:81]""")
            p("s_cbranch_scc0 b_noearly", tag='keep')
            krdma('offpath')
            p("s_mov_b32 s95, 1", tag='offpath')
            p("b_noearly:")
            if YT: p(f"buffer_load_dword v18, v17, {sr(S_WSB,4)}, s101 offen sc1")
        p.extend(pack(m, ([(singles(reads(b + 1)), 2, 30)] if b < 7 else []) + ysent, cap=4))
    for c in range(8):
        d = 40 + 2 * (c % 4)
        p(f"v_cvt_pk_bf16_f32 v{d}, v{Y+4*c}, v{Y+4*c+1}\n v_cvt_pk_bf16_f32 v{d+1}, v{Y+4*c+2}, v{Y+4*c+3}")
        p(f"ds_write_b64 v{UB+4}, {vr(d,2)} offset:{B_RAW+512*c}")
    p("s_cmp_lg_u32 s93, 0")
    p("s_cbranch_scc1 b_fin", tag='keep')
    stamp(p)
    p(f"""s_mov_b32 s93, 1
    v_mov_b32 v12, {OOB:#x}
    v_add_u32 v{A_KB}, s92, v{A_KB}""")
    for k in range(4): p(f"v_add_u32 v{UB+k}, {8*CP}, v{UB+k}")
    p(f"v_add_u32 v{UB+4}, {4*YP}, v{UB+4}\n s_cmp_eq_u32 s95, 1")
    p("s_cbranch_scc1 b_have", tag='keep')
    p(f"s_mov_b32 s94, {SPIN}")
    p("b_poll:")
    p(f"""buffer_load_dword v7, v{Z}, {sr(S_WSB,4)}, s90 offen sc1
    s_sub_u32 s94, s94, 1
    s_waitcnt vmcnt(0)
    v_cmp_eq_u32 vcc, v{V_TOK}, v7
    s_cmp_eq_u32 s94, 0
    s_cbranch_scc1 b_got
    s_cmp_eq_u64 vcc, 0
    s_cbranch_scc1 b_poll""")
    p("b_got:")
    krdma(None)
    p("b_have:")
    p(f"s_waitcnt vmcnt(0)\n buffer_store_dword v{V_TOK}, v15, {sr(S_WSB,4)}, s101 offen sc1\n s_add_u32 s101, s39, {WS_YF-WS_UF}\n s_branch b_conv")
    p("b_fin:")
    p("s_waitcnt vmcnt(0)")
    stamp(p)
    if not YT:
        p(f"""v_mul_u32_u24 v225, 2560, v{LN}
        s_mul_i32 s80, s68, {512*2560}
        s_lshl_b32 s81, s69, 4
        s_add_u32 s80, s80, s81
        s_add_u32 s80, s80, 1280
        s_waitcnt lgkmcnt(0)
        s_barrier""")
        for it in range(8):
            for h in range(2):
                p(f"ds_read_b64_tr_b16 {vr(56+4*it+2*h,2)}, v224 offset:{B_RAW + h*4*YP + 128*it}")
        for it in range(8):
            p(f"buffer_store_dwordx4 {vr(56+4*it,4)}, v225, {sr(S_O,4)}, s80 offen\n s_add_u32 s80, s80, {64*2560}")
        stamp(p); stamp(p); stamp(p)
        stamp_store(p, S_WSB)
        p("s_endpgm")
        return p
    p(f"v_cmp_eq_u32 vcc, v{V_TOK}, v18\n s_nop 1\n s_cmp_eq_u64 vcc, -1")
    p("s_cbranch_scc1 b_pf_x")
    pollall(p, "b_pf", S_WSB, 's101', 18, 17)
    p(f"s_mov_b32 s94, {SPIN}")
    p("s_waitcnt lgkmcnt(0)\n s_barrier")
    for it in range(8):
        for h in range(2):
            p(f"ds_read_b64_tr_b16 {vr(56+4*it+2*h,2)}, v224 offset:{B_RAW + h*4*YP + 128*it}")
    for it in range(8):
        p(f"buffer_store_dwordx4 {vr(56+4*it,4)}, v39, {sr(S_WSB,4)}, {'s6' if it < 4 else 's7'} offen offset:{1024*(it%4)} sc1")
    stamp(p)
    p("b_yp:")
    p(f"""buffer_load_dword v19, v228, {sr(S_WSB,4)}, s96 offen sc1
    s_sub_u32 s94, s94, 1
    s_waitcnt vmcnt(0)
    v_cmp_ne_u32 vcc, -1, v19
    s_cmp_lt_i32 s94, 1
    s_cbranch_scc1 b_yg
    s_cmp_eq_u64 vcc, -1
    s_cbranch_scc1 b_yg
    s_sleep {opt('yslp', 8)}
    s_branch b_yp""")
    p("b_yg:")
    stamp(p)
    p("s_mov_b32 s82, s96")
    for j in range(8):
        p(f"s_add_u32 m0, s98, {1040*j}\n s_nop 0\n buffer_load_dwordx4 v39, {sr(S_WSB,4)}, s82 offen sc1 lds\n s_add_u32 s82, s82, 32768")
    p("v_mov_b32 v18, 0\n s_waitcnt vmcnt(0)")
    for i in range(8): p(f"ds_read_b128 {vr(56+4*i,4)}, v229 offset:{128*i}")
    for i in range(8): p(f"v_max3_u32 v18, v18, v{56+4*i}, v{57+4*i}\n v_max3_u32 v18, v18, v{58+4*i}, v{59+4*i}")
    p(f"""v_cmp_eq_u32 vcc, -1, v18
    s_cmp_lt_i32 s94, 1
    s_cbranch_scc1 b_yo
    s_cmp_lg_u64 vcc, 0
    s_cbranch_scc1 b_yp""")
    p("b_yo:")
    for i in range(8):
        p(f"buffer_store_dwordx4 {vr(56+4*i,4)}, v230, {sr(S_O,4)}, s97 offen {OPT.get('bst', 'sc1')}\n s_add_u32 s97, s97, {8*2560}")
    stamp(p)
    stamp_store(p, S_WSB)
    p("s_endpgm")
    return p

def role_S():
    p = Prog(); nstamp[0] = 32
    p("roleS:")
    p(f"""s_getpc_b64 s[40:41]
    cpf_here:
    s_sub_u32 s40, s40, cpf_here-{NAME}_kernel
    s_subb_u32 s41, s41, 0
    s_lshr_b32 s42, s2, 3
    s_and_b32 s42, s42, 1
    s_lshl_b32 s42, s42, 15
    v_lshlrev_b32 v8, 7, v0
    v_add_u32 v8, s42, v8
    v_cmp_gt_u32 vcc, code_end-{NAME}_kernel, v8
    v_cndmask_b32 v8, 0, v8, vcc
    global_load_dword v254, v8, s[40:41]""")
    if STAMP: p("v_mov_b32 v255, 0")
    stamp(p)
    p(f"s_sub_u32 s69, s2, 208")
    kg_lanes(p)
    p(f"""s_lshl_b32 s90, s69, 2
    s_add_u32 s90, s90, s68
    s_lshl_b32 s71, s69, 3
    s_add_u32 s71, s71, s68
    s_add_u32 s71, s71, 4""")
    kg_params(p, 's71', PR)
    p(f"s_add_u32 s71, s71, 384\n s_min_u32 s71, s71, 639")
    kg_params(p, 's71', PR + 6)
    srd(p, S_U, P_WS, WS_ZERO_END)
    srd(p, S_O, P_DBG, 256)
    srd(p, S_WSB, P_WS, WS_SIZE)
    token_load(p, S_WSB, BZ)
    p(f"""s_lshl_b32 s70, s69, 12
    v_lshlrev_b32 v6, 4, v0
    v_mov_b32 v20, 0
    v_mov_b32 v21, 0
    v_mov_b32 v22, 0
    v_mov_b32 v23, 0
""")
    p(f"buffer_store_dwordx4 v[20:23], v6, {sr(S_U,4)}, s70 offen sc1", tag='zero')
    srd(p, 96, P_U, 2048 * 1280)
    p(f"""v_lshrrev_b32 v240, 3, v{BL}
    v_mul_u32_u24 v240, 1280, v240
    v_and_b32 v241, 7, v0
    v_xor_b32 v241, v241, v{BG}
    v_lshl_add_u32 v240, v241, 4, v240
    v_xor_b32 v241, 64, v240
    v_add_u32 v241, {8*1280}, v241
    s_lshl_b32 s5, s68, 14""")
    for r in range(2 if UT else 0):
        p(f"""s_add_u32 s80, s90, {192*r}
        s_and_b32 s81, s80, 31
        s_lshr_b32 s82, s80, 5
        s_mul_i32 s81, s81, {64*1280}
        s_lshl_b32 s82, s82, 7
        s_add_u32 s82, s82, s81
        s_cmp_ge_u32 s80, 320
        s_cselect_b32 s82, {0x40000000}, s82""")
        for i in range(8):
            p(f"s_add_u32 m0, s5, {8192*r+1024*i}\n s_nop 0\n buffer_load_dwordx4 v{240+i%2}, s[96:99], s82 offen nt lds", tag=('ut', r))
            if i % 2: p(f"s_add_u32 s82, s82, {16*1280}")
    pfS = prefetch1()[:opt('pfs', 0 if UT else 5)]
    for b in pfS[:opt('pfnow', 5)]: p.extend(b)
    p(f"""s_cmp_lt_u32 s69, {NZERO_WG}
    s_cselect_b32 s4, 0, -1
    v_cmp_eq_u32 vcc, s4, v0
    v_mov_b32 v7, 1
    v_mov_b32 v38, {OOB:#x}
    v_cndmask_b32 v39, v38, v{BZ}, vcc""")
    kg_setup(p, S_KR, S_SC)
    p(f"""v_cmp_eq_u32 vcc, 0, v{BL}
    v_lshlrev_b32 v184, 4, v{BL}
    v_add_u32 v185, s83, v184
    v_cndmask_b32 v38, v38, v{BZ}, vcc
    v_bfe_u32 v242, v0, 1, 3
    v_lshlrev_b32 v242, 4, v242
    v_lshl_add_u32 v242, v{BL}, 7, v242
    v_add_u32 v242, s5, v242""")
    p.waitvm('zero')
    p(f"s_barrier\n buffer_atomic_add v7, v39, {sr(S_O,4)}, 0 offen sc1")
    token_make(p)
    if not UT: p(f"s_mov_b32 s6, {0x40000000}\n s_mov_b32 s7, {0x40000000}")
    for r in range(2 if UT else 0):
        p(f"""s_add_u32 s80, s90, {192*r}
        s_and_b32 s81, s80, 31
        s_lshr_b32 s82, s80, 5
        s_lshl_b32 s81, s81, 10
        s_lshl_b32 s82, s82, 18
        s_add_u32 s82, s82, s81
        s_add_u32 s82, s82, {WS_UT}
        s_lshl_b32 s{6+r}, s80, 7
        s_add_u32 s{6+r}, s{6+r}, {WS_UF}
        s_cmp_ge_u32 s80, 320
        s_cselect_b32 s82, {0x40000000}, s82
        s_cselect_b32 s{6+r}, {0x40000000}, s{6+r}""")
        p.waitvm(('ut', r))
        for j in range(8): p(f"v_xor_b32 v243, {16*j}, v242\n ds_read_b128 {vr(48+32*r+4*j,4)}, v243 offset:{8192*r}")
        for j in range(8): p(f"buffer_store_dwordx4 {vr(48+32*r+4*j,4)}, v184, {sr(S_WSB,4)}, s82 offen sc1\n s_add_u32 s82, s82, 32768")
    stamp(p)
    p("s_kloop:", tag='keep')
    fl = Prog()
    fl(f"""s_waitcnt vmcnt(0)
    buffer_store_dword v{V_TOK}, v38, {sr(S_WSB,4)}, s6 offen sc1
    buffer_store_dword v{V_TOK}, v38, {sr(S_WSB,4)}, s7 offen sc1""")
    sched = {opt('sfl', 24): [fl]}
    for k, b in enumerate(pfS[opt('pfnow', 5):]): sched.setdefault(opt('pfa', 0) + opt('pfd', 3) * k, []).append(b)
    for k, b in enumerate(prefetch2()): sched.setdefault(40 + 3 * k, []).append(b)
    for k, b in enumerate(prefetch3()): sched.setdefault(opt('pf3a', 20) + 6 * k, []).append(b)
    kgen(p, PR, sched)
    for i in range(4): p(f"ds_read_b128 {vr(48+4*i,4)}, v185 offset:{1024*i}")
    p(f"s_lshl_b32 s91, s90, 12\n s_add_u32 s91, s91, {WS_KR}")
    for i in range(4): p(f"buffer_store_dwordx4 {vr(48+4*i,4)}, v184, {sr(S_WSB,4)}, s91 offen offset:{1024*i} sc1")
    p(f"""s_lshl_b32 s6, s90, 7
    s_add_u32 s6, s6, {WS_KF}
    s_mov_b32 s7, s6
    s_add_u32 s90, s90, 192""")
    for k in range(6): p(f"v_mov_b32 v{PR+k}, v{PR+6+k}")
    stamp(p)
    p("s_cmp_lt_u32 s90, 320\n s_cbranch_scc1 s_kloop")
    p(f"s_waitcnt vmcnt(0)\n buffer_store_dword v{V_TOK}, v38, {sr(S_WSB,4)}, s6 offen sc1")
    p("s_cmp_ge_u32 s2, 240")
    stamp(p)
    p("s_cbranch_scc1 s_done")
    srd(p, S_DBG, P_DBG, 256)
    if XM == 0:
        p("""s_and_b32 s72, s2, 7
        s_lshr_b32 s69, s72, 1
        s_lshl_b32 s69, s69, 2
        s_lshr_b32 s73, s2, 3
        s_sub_u32 s73, s73, 26
        s_add_u32 s69, s69, s73
        s_and_b32 s83, s72, 1""")
    else:
        p("""s_and_b32 s69, s2, 7
        s_lshl_b32 s69, s69, 1
        s_lshr_b32 s73, s2, 3
        s_sub_u32 s73, s73, 26
        s_and_b32 s83, s73, 1
        s_lshr_b32 s73, s73, 1
        s_add_u32 s69, s69, s73""")
    p(f"""s_add_u32 s83, s83, 8
    s_lshl_b32 s83, s83, 7
    s_mul_i32 s84, s68, {GR}
    v_and_b32 v{LN}, 63, v0
    v_mov_b32 v{V_Z}, 0""")
    setup_g2(p)
    for i in range(5): unpark(p, f'wo{i}', V_XO + i)
    for G in range(15, 19):
        for b in issue_group(G): p.extend(b)
    p(f"""v_and_b32 v249, 7, v0
    v_lshlrev_b32 v249, 13, v249
    s_lshl_b32 s85, s69, 9
    s_lshl_b32 s81, s68, 7
    s_add_u32 s85, s85, s81
    s_add_u32 s85, s85, {WS_KVF}""")
    pollall(p, "s_pf", S_WS, 's85', 248, 249, opt('slp', 8))
    p("s_branch g2_tail")
    p("s_done:")
    p(f"""s_cmp_lg_u32 s2, {999 if opt('noB', 0) else 255}
    s_cbranch_scc1 s_fin
    s_cmp_lg_u32 s68, 0
    s_cbranch_scc1 s_fin
""")
    for n, (base, cnt, r) in enumerate(((WS_KF, 48, 0), (WS_YF, 80, 0), (WS_YF, 80, 1), (WS_KVF, 128, 0), (WS_KVF, 128, 1))):
        p(f"""v_add_u32 v187, {64*r}, v{BL}
        v_min_u32 v187, {cnt-1}, v187
        v_lshlrev_b32 v187, 9, v187
        s_mov_b32 s91, {base}""")
        pollall(p, f"s_ep{n}", S_WSB, 's91', 186, 187, 16)
    p(f"""s_mov_b32 s4, {WS_EP}
    buffer_store_dword v{V_TOK}, v38, {sr(S_WSB,4)}, s4 offen sc1""")
    p("s_fin:")
    if STAMP:
        stamp_store(p, S_WSB)
    p("done:\n s_endpgm\n code_end:")
    return p

def main():
    LDS = max(A_END + 16, B_END + 4608)
    assert LDS <= 163840, LDS
    ref = open(f"cdna_kernels/{NAME}.s.ref").read().split('\n')
    hdr = [l for l in ref if l.startswith(';') and '@launch' not in l]
    s = '\n'.join(hdr) + f"\n; @launch grid=(256,1,1) block=(256,1,1) lds={LDS}\n"
    s += f""".amdgcn_target "amdgcn-amd-amdhsa--gfx950"
.text
.p2align 12
.globl {NAME}_kernel
.p2align 8
.type {NAME}_kernel,@function
{NAME}_kernel:
"""
    e = Prog()
    e(f"""s_cmp_ge_u32 s2, 256
    s_cbranch_scc1 done""")
    if opt('cpf2', 0):
        e(f"""s_getpc_b64 s[36:37]
        v_lshlrev_b32 v2, 7, v0
        s_cmp_ge_u32 s2, 128
        s_cselect_b32 s38, roleB-{NAME}_kernel, 0
        v_add_u32 v2, s38, v2
        v_min_u32 v2, code_end-{NAME}_kernel-64, v2
        global_load_dword v253, v2, s[36:37]""", tag='offpath')
    e(f"""
    s_load_dwordx16 s[8:23], s[0:1], 0
    s_load_dwordx8 s[24:31], s[0:1], 64
    s_load_dwordx4 s[32:35], s[0:1], 96
    v_lshrrev_b32 v1, 6, v0
    s_nop 0
    v_readfirstlane_b32 s68, v1
    s_cmp_ge_u32 s2, 208
    s_cbranch_scc1 roleS
    s_cmp_ge_u32 s2, 128
    s_cbranch_scc1 roleB""")
    a = role_A()
    e.extend(a)
    L = lower(e) + lower(role_B()) + lower(role_S())
    if opt('align', 1):
        L, nn, npro = align8(L, sizes_of(s + render(L) + ''.join(f'pg{k}:\n' for k in range(NPG)) + ''.join(f'pb{k}:\n' for k in range(NPB))))
        print("align: nops", nn, "promoted", npro)
    if NPG:
        dummy = ''.join(f"pg{k}:\n" for k in range(NPG)) + ''.join(f"pb{k}:\n" for k in range(NPB))
        L, n, nb = page_stubs(L, sizes_of(s + render(L) + dummy), 4096 - 0x300, 'roleB', 'roleS' if NPB else 'roleB')
        print("page stubs", n, nb)
        assert n == NPG and nb == NPB
    s += render(L)
    s += f""".section .rodata,"a"
.p2align 6
.amdhsa_kernel {NAME}_kernel
  .amdhsa_next_free_vgpr 512
  .amdhsa_next_free_sgpr 102
  .amdhsa_accum_offset 256
  .amdhsa_group_segment_fixed_size 0
  .amdhsa_kernarg_size 112
  .amdhsa_user_sgpr_count 2
  .amdhsa_user_sgpr_kernarg_segment_ptr 1
  .amdhsa_system_sgpr_workgroup_id_x 1
.end_amdhsa_kernel
"""
    out = OPT.get('out', f"cdna_kernels/{NAME}.s")
    open(out, 'w').write(s)
    print("LDS", LDS, "A_END", A_END, "B_END", B_END, "lines", s.count('\n'))
main()
```
